```python
import torch

def _softmax(x, axis=-1):
    return torch.softmax(x, dim=axis)
def _gelu(x):
    return torch.nn.functional.gelu(x, approximate="tanh")
def _silu(x):
    return torch.nn.functional.silu(x)
def _sigmoid(x):
    return torch.sigmoid(x)
def _layernorm(x, axis=-1, eps=1e-5):
    m = x.mean(dim=axis, keepdim=True)
    v = x.var(dim=axis, keepdim=True, unbiased=False)
    return (x - m) / torch.sqrt(v + eps)
def _scatter_add(tgt, idx, src, axis=0):
    return tgt.clone().index_add_(axis, idx, src)
def _segment_sum(src, seg, n):
    out = torch.zeros((n,) + src.shape[1:], dtype=src.dtype)
    return out.index_add_(0, seg, src)
def _pad(x, pw):
    flat = tuple(v for pair in reversed(pw) for v in pair)
    return torch.nn.functional.pad(x, flat)

kernel_name = 'standalone__edge_featured_mpnn_egc__graph'

def setup_inputs():

    _w = (lambda a: (lambda t: t.to(torch.bfloat16) if t.is_floating_point() else t)(torch.as_tensor(a)))
    N, deg, D, De = 12500, 64, 64, max(4, 1)
    E = N * deg
    return {
        "x": _w((lambda *s: torch.randn(*s, dtype=torch.bfloat16) * 0.2)(N, D)),
        "e_attr": _w((lambda *s: torch.randn(*s, dtype=torch.bfloat16) * 0.2)(E, De)),
        "src": _w((lambda lo, hi, *s: torch.randint(lo, hi, s))(0, N, E).to(torch.int64)),
        "dst": _w((lambda lo, hi, *s: torch.randint(lo, hi, s))(0, N, E).to(torch.int64)),
        "u_w": _w((lambda *s: torch.randn(*s, dtype=torch.bfloat16) * 0.05)(D, D)),
        "v_w": _w((lambda *s: torch.randn(*s, dtype=torch.bfloat16) * 0.05)(D, D)),
        "g_w": _w((lambda *s: torch.randn(*s, dtype=torch.bfloat16) * 0.2)(2 * D + De, D)),
    }

def reference(x, e_attr, src, dst, u_w, v_w, g_w):
    N, D = x.shape
    g_in = torch.concatenate([x[dst], x[src], e_attr], axis=-1)
    eta = _sigmoid(g_in @ g_w)
    hv = x @ v_w
    msg = eta * hv[src]
    agg = _segment_sum(msg, dst, N)
    return _silu(x @ u_w + agg)
```

```python
import sys, struct

OPT = dict(a.split('=') for a in sys.argv[2:] if '=' in a)
def opt(name, default):
    return type(default)(OPT.get(name, default))

N_NODES = 12500
E_EDGES = 800000
NB = 49
NBINS = 256
CH = 3200
NCH = 250
CHB = CH * 12
WS_TAB = 0x00A00000
WS_IMG = 0x00B00000
IMG_BLOCKS = 33
KEXP = 31
SV = 30
LOG2E = 1.4426950408889634

def f2u(x):
    return struct.unpack('<I', struct.pack('<f', x))[0]

out = []
def e(s=''):
    out.append(s)
def I(s):
    out.append('    ' + s)
def L(name):
    out.append(name + ':')
def vr(a, n):
    return f'v[{a}:{a+n-1}]' if n > 1 else f'v{a}'
def sr(a, n):
    return f's[{a}:{a+n-1}]' if n > 1 else f's{a}'

def srd(d, base_lo, base_hi, nrec):
    I(f's_mov_b32 s{d}, s{base_lo}')
    I(f's_mov_b32 s{d+1}, s{base_hi}')
    I(f's_mov_b32 s{d+2}, {nrec}')
    I(f's_mov_b32 s{d+3}, 0x00020000')

def srd_off(d, base_lo, base_hi, off, nrec):
    I(f's_add_u32 s{d}, s{base_lo}, {off}')
    I(f's_addc_u32 s{d+1}, s{base_hi}, 0')
    I(f's_mov_b32 s{d+2}, {nrec}')
    I(f's_mov_b32 s{d+3}, 0x00020000')

def wave_scan(v):
    for sh in (1, 2, 4, 8):
        I('s_nop 1')
        I(f'v_add_u32_dpp v{v}, v{v}, v{v} row_shr:{sh} row_mask:0xf bank_mask:0xf')
    I('s_nop 1')
    I(f'v_add_u32_dpp v{v}, v{v}, v{v} row_bcast:15 row_mask:0xa bank_mask:0xf')
    I('s_nop 1')
    I(f'v_add_u32_dpp v{v}, v{v}, v{v} row_bcast:31 row_mask:0xc bank_mask:0xf')
    I('s_nop 1')

STORE_FLAGS = opt('stf', '')
STORE_FLAGS = (' ' + STORE_FLAGS.replace('+', ' ')) if STORE_FLAGS else ''

K1_THREADS = 832
K1_HIST, K1_BASE, K1_STG = 0, 1024, 2048
K1_LDS = K1_STG + 2496 * 16

def gen_k1():
    e('.globl egc_bin_kernel')
    e('.p2align 8')
    e('.type egc_bin_kernel,@function')
    L('egc_bin_kernel')
    I('s_cmp_ge_u32 s2, 255')
    I('s_cbranch_scc1 K1_END')
    I('s_cmp_ge_u32 s2, %d' % NCH)
    I('s_cbranch_scc1 K1_PREP')
    I('s_load_dwordx4 s[4:7], s[0:1], 8')
    I('s_load_dwordx2 s[8:9], s[0:1], 24')
    I('s_load_dwordx2 s[10:11], s[0:1], 72')
    I('v_lshlrev_b32 v1, 4, v0')
    I('v_lshlrev_b32 v2, 5, v0')
    I('s_mul_i32 s32, s2, %d' % (CH * 4))
    I('s_mul_i32 s33, s2, %d' % (CH * 8))
    I('s_mul_i32 s34, s2, %d' % CHB)
    I('s_lshl_b32 s35, s2, 10')
    I('s_add_u32 s35, s35, 0x%x' % WS_TAB)
    I('v_and_b32 v3, 255, v0')
    I('v_lshlrev_b32 v3, 2, v3')
    I('v_mov_b32 v20, 0')
    I('ds_write_b32 v3, v20 offset:%d' % K1_HIST)
    I('s_waitcnt lgkmcnt(0)')
    srd_off(12, 8, 9, 's32', CH * 4)
    I('buffer_load_dwordx4 v[4:7], v1, s[12:15], 0 offen')
    srd_off(16, 6, 7, 's32', CH * 4)
    I('buffer_load_dwordx4 v[8:11], v1, s[16:19], 0 offen')
    srd_off(20, 4, 5, 's33', CH * 8)
    I('buffer_load_dwordx4 v[12:15], v2, s[20:23], 0 offen')
    I('buffer_load_dwordx4 v[16:19], v2, s[20:23], 0 offen offset:16')
    srd_off(24, 10, 11, 's34', CHB)
    srd_off(28, 10, 11, 's35', 1024)
    I('s_mov_b32 s36, -%d' % NB)
    I('v_mov_b32 v21, 12')
    I('v_cmp_gt_u32 vcc, %d, v0' % (CH // 4))
    I('s_barrier')
    I('s_and_saveexec_b64 s[38:39], vcc')
    I('s_waitcnt vmcnt(3)')
    for i in range(4):
        I(f'v_mul_u32_u24 v{24+i}, 21400, v{4+i}')
    for i in range(4):
        I(f'v_lshrrev_b32 v{24+i}, 20, v{24+i}')
    for i in range(4):
        I(f'v_mad_i32_i24 v{28+i}, v{24+i}, s36, v{4+i}')
        I(f'v_lshlrev_b32 v{24+i}, 2, v{24+i}')
        I(f'ds_add_rtn_u32 v{32+i}, v{24+i}, v21 offset:{K1_HIST}')
    for i in range(4):
        I(f'v_lshlrev_b32 v{28+i}, 26, v{28+i}')
    I('s_waitcnt vmcnt(2)')
    for i in range(4):
        I(f'v_lshl_or_b32 v{28+i}, v{8+i}, 7, v{28+i}')
    I('s_mov_b64 exec, s[38:39]')
    I('s_waitcnt lgkmcnt(0)')
    I('s_barrier')
    I('v_readfirstlane_b32 s40, v0')
    I('s_nop 3')
    I('s_cmp_lg_u32 s40, 0')
    I('s_cbranch_scc1 K1_NOSCAN')
    I(f'ds_read_b128 v[36:39], v1 offset:{K1_HIST}')
    I('s_waitcnt lgkmcnt(0)')
    I('v_add_u32 v41, v36, v37')
    I('v_add_u32 v42, v41, v38')
    I('v_add_u32 v43, v42, v39')
    I('v_mov_b32 v44, v43')
    wave_scan(44)
    I('v_sub_u32 v44, v44, v43')
    I('v_add_u32 v45, v44, v36')
    I('v_add_u32 v46, v44, v41')
    I('v_add_u32 v47, v44, v42')
    for k in range(4):
        I(f'v_lshl_or_b32 v{48+k}, v{36+k}, 16, v{44+k}')
    for k in range(4):
        I(f'v_add_u32 v{44+k}, {K1_STG}, v{44+k}')
    I(f'ds_write_b128 v1, v[44:47] offset:{K1_BASE}')
    I('buffer_store_dwordx4 v[48:51], v1, s[28:31], 0 offen' + STORE_FLAGS)
    I('s_waitcnt lgkmcnt(0)')
    L('K1_NOSCAN')
    I('s_barrier')
    I('s_and_saveexec_b64 s[38:39], vcc')
    for i in range(4):
        I(f'ds_read_b32 v{24+i}, v{24+i} offset:{K1_BASE}')
    I('s_waitcnt vmcnt(0)')
    for i in range(4):
        I(f's_waitcnt lgkmcnt({3-i + 2*i})')
        I(f'v_add_u32 v{24+i}, v{24+i}, v{32+i}')
        I(f'ds_write_b32 v{24+i}, v{28+i} offset:8')
        I(f'ds_write2_b32 v{24+i}, v{12+2*i}, v{13+2*i} offset0:0 offset1:1')
    I('s_mov_b64 exec, s[38:39]')
    I('s_waitcnt lgkmcnt(0)')
    I('s_barrier')
    for k in range(3):
        I(f'ds_read_b128 v[{36+4*k}:{39+4*k}], v1 offset:{K1_STG + k*K1_THREADS*16}')
    I('v_add_u32 v2, %d, v1' % (K1_THREADS * 16))
    I('v_add_u32 v3, %d, v1' % (2 * K1_THREADS * 16))
    for k in range(3):
        I(f's_waitcnt lgkmcnt({2-k})')
        I(f'buffer_store_dwordx4 v[{36+4*k}:{39+4*k}], v{1+k}, s[24:27], 0 offen' + STORE_FLAGS)
    I('s_endpgm')

    L('K1_PREP')
    I('s_load_dwordx4 s[4:7], s[0:1], 32')
    I('s_load_dwordx2 s[8:9], s[0:1], 48')
    I('s_load_dwordx2 s[10:11], s[0:1], 72')
    I('v_readfirstlane_b32 s40, v0')
    I('s_sub_u32 s32, s2, %d' % NCH)
    I('v_and_b32 v1, 63, v0')
    I('v_lshrrev_b32 v2, 6, v0')
    I('s_cmp_ge_u32 s40, 512')
    I('s_cbranch_scc1 K1_END')
    I('s_waitcnt lgkmcnt(0)')
    srd_off(16, 10, 11, '0x%x' % WS_IMG, IMG_BLOCKS * 1024)
    I('s_cmp_eq_u32 s32, 2')
    I('s_cbranch_scc1 K1_PREPC')
    I('s_add_u32 s12, s8, %d' % (64 * 128))
    I('s_addc_u32 s13, s9, 0')
    I('s_mov_b32 s33, 0x%x' % f2u(-LOG2E))
    I('s_mov_b32 s34, 0')
    I('s_cmp_eq_u32 s32, 1')
    I('s_cbranch_scc0 K1_P1')
    I('s_mov_b32 s12, s6')
    I('s_mov_b32 s13, s7')
    I('s_mov_b32 s33, 0x%x' % f2u(2.0 ** SV))
    I('s_mov_b32 s34, %d' % (8 * 1024))
    L('K1_P1')
    I('s_cmp_eq_u32 s32, 3')
    I('s_cbranch_scc0 K1_P2')
    I('s_mov_b32 s12, s8')
    I('s_mov_b32 s13, s9')
    I('s_mov_b32 s33, 1.0')
    I('s_mov_b32 s34, %d' % (17 * 1024))
    L('K1_P2')
    I('s_cmp_eq_u32 s32, 4')
    I('s_cbranch_scc0 K1_P3')
    I('s_mov_b32 s12, s4')
    I('s_mov_b32 s13, s5')
    I('s_mov_b32 s33, 1.0')
    I('s_mov_b32 s34, %d' % (25 * 1024))
    L('K1_P3')
    I('s_mov_b32 s14, %d' % (64 * 128))
    I('s_mov_b32 s15, 0x00020000')
    I('v_and_b32 v3, 3, v2')
    I('v_lshlrev_b32 v3, 11, v3')
    I('v_lshrrev_b32 v4, 5, v1')
    I('v_lshl_add_u32 v3, v4, 10, v3')
    I('v_lshrrev_b32 v4, 2, v2')
    I('v_lshl_add_u32 v3, v4, 6, v3')
    I('v_and_b32 v4, 31, v1')
    I('v_lshl_add_u32 v3, v4, 1, v3')
    for j in range(8):
        I(f'buffer_load_ushort v{8+j}, v3, s[12:15], 0 offen offset:{j*128}')
    I('v_lshlrev_b32 v5, 4, v0')
    I('s_waitcnt vmcnt(0)')
    for j in range(8):
        I(f'v_lshlrev_b32 v{8+j}, 16, v{8+j}')
    for j in range(8):
        I(f'v_mul_f32 v{8+j}, s33, v{8+j}')
    for m in range(4):
        I(f'v_cvt_pk_bf16_f32 v{16+m}, v{8+2*m}, v{9+2*m}')
    I('buffer_store_dwordx4 v[16:19], v5, s[16:19], s34 offen')
    I('s_endpgm')
    L('K1_PREPC')
    I('s_cmp_ge_u32 s40, 64')
    I('s_cbranch_scc1 K1_END')
    srd_off(12, 8, 9, str(128 * 128), 4 * 128)
    I('v_and_b32 v3, 31, v1')
    I('v_lshlrev_b32 v3, 1, v3')
    for nt in range(2):
        for k in range(4):
            I(f'buffer_load_ushort v{8+nt*4+k}, v3, s[12:15], 0 offen offset:{k*128+nt*64}')
    I('s_mov_b32 s33, 0x%x' % f2u(-LOG2E))
    I('v_lshlrev_b32 v5, 4, v1')
    I('v_cmp_lt_u32 vcc, 31, v1')
    I('s_waitcnt vmcnt(0)')
    for j in range(8):
        I(f'v_lshlrev_b32 v{8+j}, 16, v{8+j}')
    for j in range(8):
        I(f'v_mul_f32 v{8+j}, s33, v{8+j}')
    for m in range(4):
        I(f'v_cvt_pk_bf16_f32 v{16+m}, v{8+2*m}, v{9+2*m}')
    for m in range(4):
        I(f'v_lshlrev_b32 v{20+2*m}, 16, v{16+m}')
        I(f'v_and_b32 v{21+2*m}, 0xffff0000, v{16+m}')
    for j in range(8):
        I(f'v_sub_f32 v{8+j}, v{8+j}, v{20+j}')
    for m in range(4):
        I(f'v_cvt_pk_bf16_f32 v{28+m}, v{8+2*m}, v{9+2*m}')
    for m in range(4):
        I(f'v_cndmask_b32 v{16+m}, v{16+m}, v{28+m}, vcc')
    I('s_mov_b32 s34, %d' % (16 * 1024))
    I('buffer_store_dwordx4 v[16:19], v5, s[16:19], s34 offen')
    L('K1_END')
    I('s_endpgm')

PT = 0
ACC = 12544
ZR = 25088
CNT = 33280
MISC = 33536
BASET = 33792
NINFO = 35840
DESCP = 36352
LE = 39424
LS = 74240
DESCA = 91648
STG = 94208
K2_LDS = STG + 65536
MAXG = 544
WTMP = STG
XTMP = STG + 24576
PADW = 0x200000

V_TID, V_LANE = 0, 1
V_M0, V_M1 = 2, 4
V_VAA = (6, 8)
V_VAP = 10
V_SO = 12
V_DC = 16
V_AR = 18
V_PS, V_PE, V_PD = 22, 23, 24
V_CH4 = 25
V_T01D, V_T01N, V_T23D, V_T23N = 26, 28, 30, 32
V_TMP = 34
V_TAB = 40
V_RA = 48
V_X = 56
ZH = ((64, 80), (96, 112))
V_REC = 64
WB, WV = 128, 160
B5 = (192, 196)
AOP, A5 = 200, 216
V_SW = 220
V_SD = 236

S_X, S_TAB, S_REC, S_IMG, S_OUT = 12, 16, 20, 24, 28
S_MASK = 32
S_W, S_L, S_CNT, S_JB, S_WID, S_MORE = 64, 65, 66, 67, 68, 69
S_C = 70
S_MSK = 72
S_STG = 73
S_T = 74
S_RO = 84
S_EX = 92
S_FIRST = 94
S_MINV = 95

class Lg:
    def __init__(self):
        self.q = []
    def op(self, tag, text):
        I(text)
        self.q.append(tag)
    def need(self, *tags):
        idx = -1
        for t in tags:
            for i in range(len(self.q) - 1, -1, -1):
                if self.q[i] == t:
                    idx = max(idx, i)
                    break
        if idx < 0:
            return
        n = len(self.q) - 1 - idx
        assert n <= 15, (tags, n)
        I(f's_waitcnt lgkmcnt({n})')
        self.q = self.q[idx + 1:]

def prefill():
    I(f'v_lshlrev_b32 v{V_X}, 4, v{V_TID}')
    I(f'v_add_u32 v{V_X+1}, {LS}, v{V_X}')
    I(f'v_add_u32 v{V_X}, {ZR}, v{V_X}')
    for k in range(4):
        I(f'v_mov_b32 v{V_X+2+k}, 0')
    for k in range(6):
        I(f'ds_write_b128 v{V_X}, v[{V_X+2}:{V_X+5}] offset:{k*8192}')
    for k in range(4):
        I(f'v_mov_b32 v{V_TMP+k}, 0x{PADW:x}')
    I(f'ds_write_b128 v{V_X+1}, v[{V_TMP}:{V_TMP+3}]')
    I(f'ds_write_b128 v{V_X+1}, v[{V_TMP}:{V_TMP+3}] offset:8192')
    I(f'v_and_b32 v{V_X+2}, 7, v{V_TID}')
    I(f'v_lshlrev_b32 v{V_X+2}, 10, v{V_X+2}')
    I(f'v_add_u32 v{V_X+2}, {ACC + NB*256}, v{V_X+2}')
    for k in range(1, 4):
        I(f'v_add_u32 v{V_X+2+k}, {256*k}, v{V_X+2}')
    I(f'v_cmp_gt_u32 vcc, 136, v{V_TID}')
    I(f's_and_saveexec_b64 s[{S_EX}:{S_EX+1}], vcc')
    I(f'ds_write_b128 v{V_X+1}, v[{V_X+2}:{V_X+5}] offset:{DESCA-LS}')
    I(f'v_cmp_gt_u32 vcc, 64, v{V_TID}')
    I(f's_and_b64 exec, exec, vcc')
    I(f'ds_write_b128 v{V_X+1}, v[{V_TMP}:{V_TMP+3}] offset:16384')
    I(f's_mov_b64 exec, s[{S_EX}:{S_EX+1}]')

def valu_ops(s):
    Z, H = ZH[s]
    def E(i): return f'v_exp_f32 v{Z+i}, v{Z+i} clamp'
    def D(i): return f'v_pk_add_f32 v[{Z+i}:{Z+i+1}], v[{Z+i}:{Z+i+1}], s[{S_C}:{S_C+1}]'
    def p(r): return f'v[{r}:{r+1}]'
    def T(k): return f'v_pk_mul_f32 {p(H+4*k)}, {p(H+4*k)}, {p(Z+4*k+2)}'
    def DD(k): return f'v_pk_mul_f32 {p(Z+4*k+2)}, {p(Z+4*k)}, {p(Z+4*k+2)}'
    def NN(k): return f'v_pk_fma_f32 {p(H+4*k)}, {p(H+4*k+2)}, {p(Z+4*k)}, {p(H+4*k)}'
    def T2(a, b, tn): return f'v_pk_mul_f32 {p(tn)}, {p(H+4*a)}, {p(Z+4*b+2)}'
    def DD2(a, b, td): return f'v_pk_mul_f32 {p(td)}, {p(Z+4*a+2)}, {p(Z+4*b+2)}'
    def NN2(a, b, tn): return f'v_pk_fma_f32 {p(tn)}, {p(H+4*b)}, {p(Z+4*a+2)}, {p(tn)}'
    seq = [E(0), E(1), E(2), E(3), E(4), E(5), D(0), D(2), E(6), E(7), T(0), DD(0), E(8), E(9), NN(0), D(4), D(6),
           E(10), E(11), T(1), DD(1), E(12), E(13), NN(1), D(8), D(10), E(14), E(15), T(2), DD(2),
           T2(0, 1, V_T01N), NN(2), D(12), D(14), DD2(0, 1, V_T01D), NN2(0, 1, V_T01N), T(3), DD(3),
           f'v_rcp_f32 v{V_T01D}, v{V_T01D}', NN(3), f'v_rcp_f32 v{V_T01D+1}, v{V_T01D+1}',
           T2(2, 3, V_T23N), DD2(2, 3, V_T23D), NN2(2, 3, V_T23N)]
    return seq

def tail_ops(s):
    M = (V_M0, V_M1)[s]
    def p(r): return f'v[{r}:{r+1}]'
    return [f'v_rcp_f32 v{V_T23D}, v{V_T23D}',
            f'v_rcp_f32 v{V_T23D+1}, v{V_T23D+1}',
            f'v_pk_fma_f32 {p(M)}, {p(V_T01N)}, {p(V_T01D)}, {p(M)}',
            f'v_pk_fma_f32 {p(M)}, {p(V_T23N)}, {p(V_T23D)}, {p(M)}']

def mfma_ops(s):
    Z, H = ZH[s]
    z, h = vr(Z, 16), vr(H, 16)
    ops = [('Z5', f'v_mfma_f32_32x32x16_bf16 {z}, {vr(A5,4)}, {vr(B5[s],4)}, 0')]
    for sg in range(4):
        a = vr(AOP + 4 * sg, 4)
        ops.append((f'Z{sg}', f'v_mfma_f32_32x32x16_bf16 {z}, {a}, {vr(WB + 16*s + 4*sg, 4)}, {z}'))
        ops.append((f'H{sg}', f'v_mfma_f32_32x32x16_bf16 {h}, {a}, {vr(WV + 16*s + 4*sg, 4)}, ' + ('0' if sg == 0 else h)))
    return ops

MF_POS = [int(x) for x in opt('mfpos', '4,8,12,16,20,24,28,32,37').split(',')]

def dma(buf):
    for i in range(4):
        I(f'v_and_or_b32 v{V_SO+i}, v{V_SO+i}, s{S_MSK}, v{V_DC + (i & 1)}')
    for i in range(4):
        I(f's_add_u32 m0, s{S_STG}, {buf*4096 + i*1024}')
        I('s_nop 0')
        I(f'buffer_load_dwordx4 v{V_SO+i}, s[{S_X}:{S_X+3}], 0 offen lds')

def half_A(lg, par, uo, with_tail):
    seq = valu_ops(0)
    if with_tail:
        t = tail_ops(1)
        seq = [t[0], t[1], seq[0], t[2], seq[1], t[3]] + seq[2:]
        shift = 0
    else:
        shift = 4
    mf = mfma_ops(1)
    ev = {}
    def at(pos, fn):
        ev.setdefault(max(pos - shift, 0), []).append(fn)
    vaa_prev, vaa_cur, vaa_nxt = V_VAA[par ^ 1], V_VAA[par], V_VAA[par ^ 1]
    nb = (par ^ 1) * 4096
    if with_tail:
        at(3, lambda: lg.need('R1a', 'R1b'))
        def w1():
            lg.op('W1a', f'ds_write_b32 v{vaa_prev}, v{V_M1} offset:128')
            lg.op('W1b', f'ds_write_b32 v{vaa_prev+1}, v{V_M1+1} offset:128')
        at(7, w1)
    def r1():
        lg.op('R1a', f'ds_read_b32 v{V_M1}, v{vaa_cur} offset:128')
        lg.op('R1b', f'ds_read_b32 v{V_M1+1}, v{vaa_cur+1} offset:128')
        lg.op('dP', f'ds_read_b64 v[{V_VAP}:{V_VAP+1}], v{V_PD} offset:{(uo+1)*128}')
        lg.op('dA', f'ds_read_b64 v[{vaa_nxt}:{vaa_nxt+1}], v{V_PD} offset:{(uo+1)*128 + DESCA - DESCP}')
    at(7, r1)
    for k, (tag, txt) in enumerate(mf):
        def f(tag=tag, txt=txt):
            if tag == 'Z5':
                lg.need('P1a', 'P1b')
            I(txt)
        at(MF_POS[k], f)
    at(MF_POS[0] + 4, lambda: lg.op('e', f'ds_read_b64 v[{A5}:{A5+1}], v{V_PE} offset:{(uo+1)*64}'))
    def va():
        lg.need('dP', 'dA')
        I(f'v_add_u32 v{V_VAP}, v{V_VAP}, v{V_CH4}')
        I(f'v_add_u32 v{V_VAP+1}, v{V_VAP+1}, v{V_CH4}')
        I(f'v_add_u32 v{vaa_nxt}, v{vaa_nxt}, v{V_CH4}')
        I(f'v_add_u32 v{vaa_nxt+1}, v{vaa_nxt+1}, v{V_CH4}')
        lg.op('P0a', f'ds_read_b32 v{B5[0]+2}, v{V_VAP}')
        lg.op('P0b', f'ds_read_b32 v{B5[0]+3}, v{V_VAP+1}')
    at(MF_POS[2] + 1, va)
    for sg in range(4):
        def f(sg=sg):
            if sg == 0:
                I('s_waitcnt vmcnt(4)')
            lg.op(f'A{sg}', f'ds_read_b128 {vr(AOP+4*sg,4)}, v{V_AR+sg} offset:{nb}')
            if sg == 0:
                lg.op('S', f'ds_read_b128 {vr(V_SO,4)}, v{V_PS} offset:{(uo+3)*32}')
        at(MF_POS[2 + 2 * sg] + 2, f)
    for i, op in enumerate(seq):
        for fn in ev.pop(i, []):
            fn()
        I(op)
    for k in sorted(ev):
        for fn in ev[k]:
            fn()

def half_B(lg, par, uo):
    seq = valu_ops(1)
    t = tail_ops(0)
    seq = [t[0], t[1], seq[0], t[2], seq[1], t[3]] + seq[2:]
    mf = mfma_ops(0)
    ev = {}
    def at(pos, fn):
        ev.setdefault(pos, []).append(fn)
    vaa_cur, vaa_nxt = V_VAA[par], V_VAA[par ^ 1]
    at(3, lambda: lg.need('R0a', 'R0b'))
    def w0():
        lg.op('W0a', f'ds_write_b32 v{vaa_cur}, v{V_M0}')
        lg.op('W0b', f'ds_write_b32 v{vaa_cur+1}, v{V_M0+1}')
        lg.op('R0a', f'ds_read_b32 v{V_M0}, v{vaa_nxt}')
        lg.op('R0b', f'ds_read_b32 v{V_M0+1}, v{vaa_nxt+1}')
        lg.op('P1a', f'ds_read_b32 v{B5[1]+2}, v{V_VAP} offset:128')
        lg.op('P1b', f'ds_read_b32 v{B5[1]+3}, v{V_VAP+1} offset:128')
    at(7, w0)
    for k, (tag, txt) in enumerate(mf):
        def f(tag=tag, txt=txt):
            if tag == 'Z5':
                lg.need('P0a', 'P0b', 'e')
            elif tag[0] == 'Z':
                lg.need('A' + tag[1])
            I(txt)
        at(MF_POS[k], f)
    def d():
        lg.need('S', 'A3')
        dma(par ^ 1)
    at(MF_POS[7] + 1, d)
    for i, op in enumerate(seq):
        for fn in ev.pop(i, []):
            fn()
        I(op)
    for k in sorted(ev):
        for fn in ev[k]:
            fn()

def gen_k2():
    e('.globl egc_main_kernel')
    e('.p2align 8')
    e('.type egc_main_kernel,@function')
    L('egc_main_kernel')
    I('s_cmp_ge_u32 s2, %d' % NBINS)
    I('s_cbranch_scc1 K2_END')
    I('s_load_dwordx2 s[4:5], s[0:1], 0')
    I('s_load_dwordx2 s[6:7], s[0:1], 56')
    I('s_load_dwordx2 s[8:9], s[0:1], 72')
    I(f'v_lshrrev_b32 v{V_X}, 6, v{V_TID}')
    I(f'v_and_b32 v{V_LANE}, 63, v{V_TID}')
    I(f'v_readfirstlane_b32 s{S_W}, v{V_X}')
    I(f'v_lshrrev_b32 v{V_X+1}, 4, v{V_LANE}')
    I(f'v_lshl_add_u32 v{V_X+1}, v{V_X}, 5, v{V_X+1}')
    I(f's_lshl_b32 s{S_T}, s2, 2')
    I(f'v_lshlrev_b32 v{V_X+2}, 10, v{V_X+1}')
    I(f'v_add_u32 v{V_X+2}, s{S_T}, v{V_X+2}')
    for r in range(8):
        I(f'v_add_u32 v{V_RA+r}, {r*4096}, v{V_X+2}')
    I('s_waitcnt lgkmcnt(0)')
    srd_off(S_TAB, 8, 9, '0x%x' % WS_TAB, NCH * 1024)
    for r in range(8):
        I(f'buffer_load_dword v{V_TAB+r}, v{V_RA+r}, s[{S_TAB}:{S_TAB+3}], 0 offen')
    srd(S_X, 4, 5, N_NODES * 128)
    srd_off(S_IMG, 8, 9, '0x%x' % WS_IMG, IMG_BLOCKS * 1024)
    srd(S_REC, 8, 9, NCH * CHB)
    srd(S_OUT, 6, 7, N_NODES * 128)
    I(f'v_lshrrev_b32 v{V_X+3}, 3, v{V_TID}')
    I(f'v_bfe_u32 v{V_X+4}, v{V_X+3}, 1, 3')
    I(f'v_and_b32 v{V_X+5}, 7, v{V_TID}')
    I(f'v_xor_b32 v{V_X+4}, v{V_X+4}, v{V_X+5}')
    I(f'v_lshlrev_b32 v{V_X+4}, 4, v{V_X+4}')
    I(f'v_lshl_add_u32 v{V_X+4}, v{V_X+3}, 7, v{V_X+4}')
    I(f's_mul_i32 s{S_T+1}, s2, {NB*128}')
    I(f's_lshl_b32 s{S_T+2}, s{S_W}, 10')
    I(f's_add_u32 m0, s{S_T+2}, {XTMP}')
    I(f'v_add_u32 v{V_X+4}, s{S_T+1}, v{V_X+4}')
    I(f'v_lshlrev_b32 v{V_X+5}, 4, v{V_LANE}')
    I(f'buffer_load_dwordx4 v{V_X+4}, s[{S_X}:{S_X+3}], 0 offen lds')
    for k in range(3):
        I(f's_add_u32 s{S_T+3}, s{S_T+2}, {k*8192}')
        I(f's_add_u32 m0, s{S_T+3}, {WTMP}')
        I('s_nop 0')
        I(f'buffer_load_dwordx4 v{V_X+5}, s[{S_IMG}:{S_IMG+3}], s{S_T+3} offen lds')
    I(f's_lshr_b32 s{S_T+3}, s{S_W}, 1')
    I(f's_lshl_b32 s{S_T+3}, s{S_T+3}, 12')
    I(f's_add_u32 s{S_T+3}, s{S_T+3}, {17*1024}')
    for sg in range(4):
        I(f'buffer_load_dwordx4 {vr(V_SW+4*sg,4)}, v{V_X+5}, s[{S_IMG}:{S_IMG+3}], s{S_T+3} offen offset:{sg*1024}')
    I(f's_mov_b32 s{S_C}, 0x{f2u(2.0**-KEXP):x}')
    I(f's_mov_b32 s{S_C+1}, 0x{f2u(2.0**-KEXP):x}')
    I(f's_mov_b32 s{S_MSK}, 0x3fffff')
    I(f's_lshl_b32 s{S_STG}, s{S_W}, 13')
    I(f's_add_u32 s{S_STG}, s{S_STG}, {STG}')
    I(f's_mov_b32 s{S_JB}, 0')
    I(f's_mov_b32 s{S_WID}, 384')
    I(f's_mov_b32 s{S_FIRST}, 1')
    for r in range(8):
        I(f's_mov_b32 s{S_RO+r}, {r*4*CHB}')
    I(f'v_and_b32 v{V_TMP+4}, 15, v{V_LANE}')
    I(f'v_mul_u32_u24 v{V_TMP+4}, 12, v{V_TMP+4}')
    I(f'v_mul_u32_u24 v{V_TMP+5}, {CHB}, v{V_X+1}')
    I(f'v_add_u32 v{V_TMP+5}, v{V_TMP+5}, v{V_TMP+4}')
    I(f'v_and_b32 v{V_CH4}, 31, v{V_LANE}')
    I(f'v_lshlrev_b32 v{V_CH4}, 2, v{V_CH4}')
    I(f'v_bfe_u32 v{V_X+2}, v{V_LANE}, 4, 1')
    I(f'v_lshrrev_b32 v{V_X+3}, 5, v{V_LANE}')
    I(f'v_lshl_or_b32 v{V_X+2}, v{V_X+2}, 1, v{V_X+3}')
    I(f'v_and_b32 v{V_X+4}, 7, v{V_LANE}')
    I(f'v_xor_b32 v{V_X+2}, v{V_X+2}, v{V_X+4}')
    I(f'v_lshlrev_b32 v{V_DC}, 4, v{V_X+2}')
    I(f'v_xor_b32 v{V_DC+1}, 64, v{V_DC}')
    I(f'v_bfe_u32 v{V_X+2}, v{V_LANE}, 0, 1')
    I(f'v_bfe_u32 v{V_X+4}, v{V_LANE}, 1, 1')
    I(f'v_bfe_u32 v{V_X+5}, v{V_LANE}, 2, 1')
    I(f'v_bfe_u32 v{V_X+6}, v{V_LANE}, 3, 1')
    I(f'v_bfe_u32 v{V_X+7}, v{V_LANE}, 4, 1')
    I(f'v_lshl_or_b32 v{V_AR}, v{V_X+7}, 1, v{V_X+4}')
    I(f'v_lshl_or_b32 v{V_AR}, v{V_AR}, 1, v{V_X+5}')
    I(f'v_lshl_or_b32 v{V_AR}, v{V_AR}, 1, v{V_X+2}')
    I(f'v_lshl_or_b32 v{V_AR}, v{V_AR}, 1, v{V_X+6}')
    I(f'v_lshl_or_b32 v{V_AR+1}, v{V_X+4}, 1, v{V_X+2}')
    I(f'v_lshl_or_b32 v{V_AR+1}, v{V_AR+1}, 1, v{V_X+5}')
    I(f'v_xor_b32 v{V_AR+1}, v{V_AR+1}, v{V_X+3}')
    I(f'v_lshlrev_b32 v{V_AR+1}, 4, v{V_AR+1}')
    I(f'v_lshl_or_b32 v{V_AR}, v{V_AR}, 7, v{V_AR+1}')
    for sg in (3, 2, 1):
        I(f'v_xor_b32 v{V_AR+sg}, {sg*32}, v{V_AR}')
    for sg in range(4):
        I(f'v_add_u32 v{V_AR+sg}, s{S_STG}, v{V_AR+sg}')
    I(f'v_xor_b32 v{V_X+4}, v{V_X+5}, v{V_X+3}')
    I(f'v_lshl_or_b32 v{V_X+4}, v{V_X+4}, 1, v{V_X+2}')
    I(f'v_mov_b32 v{V_X+6}, 0x3f803f80')
    I(f'v_cmp_eq_u32 vcc, 0, v{V_X+4}')
    I('s_nop 1')
    I(f'v_cndmask_b32 v{A5+2}, 0, v{V_X+6}, vcc')
    I(f'v_cmp_eq_u32 vcc, 1, v{V_X+4}')
    I('s_nop 1')
    I(f'v_cndmask_b32 v{A5+3}, 0, v{V_X+6}, vcc')
    prefill()
    I('s_waitcnt vmcnt(8)')
    L('K2_PASS')
    I(f'v_add_u32 v{V_X}, s{S_JB}, v{V_TMP+4}')
    I(f'v_add_u32 v{V_X+1}, 192, v{V_X}')
    I(f'v_add_u32 v{V_X+2}, s{S_JB}, v{V_TMP+5}')
    I(f's_add_u32 s{S_T}, s{S_JB}, s{S_WID}')
    I(f's_mov_b64 s[{S_T+2}:{S_T+3}], 0')
    I(f's_cmp_eq_u32 s{S_WID}, 384')
    I(f's_cselect_b64 s[{S_T+4}:{S_T+5}], -1, 0')
    for r in range(8):
        I(f'v_and_b32 v{V_RA+r}, 0xffff, v{V_TAB+r}')
        I(f'v_lshrrev_b32 v{V_X+3}, 16, v{V_TAB+r}')
        I(f'v_add_u32 v{V_RA+r}, v{V_RA+r}, v{V_X+2}')
        I(f'v_cmp_lt_u32 s[{S_MASK+4*r}:{S_MASK+4*r+1}], v{V_X}, v{V_X+3}')
        I(f'v_cmp_lt_u32 vcc, v{V_X+1}, v{V_X+3}')
        I(f's_and_b64 s[{S_MASK+4*r+2}:{S_MASK+4*r+3}], vcc, s[{S_T+4}:{S_T+5}]')
        I(f'v_cmp_lt_u32 vcc, s{S_T}, v{V_X+3}')
        I(f's_or_b64 s[{S_T+2}:{S_T+3}], s[{S_T+2}:{S_T+3}], vcc')
        I(f's_mov_b64 exec, s[{S_MASK+4*r}:{S_MASK+4*r+1}]')
        I(f'buffer_load_dwordx3 {vr(V_REC+8*r,3)}, v{V_RA+r}, s[{S_REC}:{S_REC+3}], s{S_RO+r} offen')
        I('s_mov_b64 exec, -1')
    for r in range(8):
        I(f's_mov_b64 exec, s[{S_MASK+4*r+2}:{S_MASK+4*r+3}]')
        I(f'buffer_load_dwordx3 {vr(V_REC+8*r+4,3)}, v{V_RA+r}, s[{S_REC}:{S_REC+3}], s{S_RO+r} offen offset:192')
    I('s_mov_b64 exec, -1')
    I('s_waitcnt vmcnt(16) lgkmcnt(0)')
    I('s_barrier')
    I(f's_cmp_eq_u64 s[{S_T+2}:{S_T+3}], 0')
    I('s_cbranch_scc1 K2_NOMORE')
    I(f'v_mov_b32 v{V_X}, {MISC}')
    I(f'v_mov_b32 v{V_X+1}, 1')
    I(f'ds_write_b32 v{V_X}, v{V_X+1}')
    L('K2_NOMORE')
    I(f's_cmp_eq_u32 s{S_FIRST}, 0')
    I('s_cbranch_scc1 K2_NOTFIRST')
    I(f's_mov_b32 s{S_FIRST}, 0')
    I(f'v_lshlrev_b32 v{V_X}, 4, v{V_LANE}')
    I(f'v_add_u32 v{V_X}, {WTMP}, v{V_X}')
    I(f'v_and_b32 v{V_X+1}, 31, v{V_LANE}')
    I(f's_and_b32 s{S_T}, s{S_W}, 1')
    I(f's_lshl_b32 s{S_T+1}, s{S_T}, 12')
    I(f's_add_u32 s{S_T+1}, s{S_T+1}, {XTMP}')
    I(f'v_bfe_u32 v{V_X+2}, v{V_LANE}, 1, 3')
    I(f'v_lshrrev_b32 v{V_X+3}, 5, v{V_LANE}')
    I(f'v_xor_b32 v{V_X+2}, v{V_X+2}, v{V_X+3}')
    I(f'v_lshlrev_b32 v{V_X+2}, 4, v{V_X+2}')
    I(f'v_lshl_or_b32 v{V_X+2}, v{V_X+1}, 7, v{V_X+2}')
    for sg in range(4):
        I(f'v_xor_b32 v{V_X+4}, {sg*32}, v{V_X+2}')
        I(f'v_add_u32 v{V_X+4}, s{S_T+1}, v{V_X+4}')
        I(f'ds_read_b128 {vr(AOP+4*sg,4)}, v{V_X+4}')
    for k in range(8):
        I(f'ds_read_b128 {vr(WB+4*k,4)}, v{V_X} offset:{k*1024}')
    I('s_waitcnt lgkmcnt(8)')
    for sg in range(4):
        I(f'v_mfma_f32_32x32x16_bf16 {vr(V_SD,16)}, {vr(AOP+4*sg,4)}, {vr(V_SW+4*sg,4)}, ' + ('0' if sg == 0 else vr(V_SD, 16)))
    for k in range(8):
        I(f'ds_read_b128 {vr(WV+4*k,4)}, v{V_X} offset:{(8+k)*1024}')
        if k == 3:
            I('s_waitcnt lgkmcnt(4)')
    I(f'ds_read_b64 {vr(B5[0],2)}, v{V_X} offset:{16*1024}')
    I(f'ds_read_b64 {vr(B5[1],2)}, v{V_X} offset:{16*1024+8}')
    I(f's_bfe_u32 s{S_T+1}, s{S_W}, 0x10001')
    I(f's_lshl_b32 s{S_T+1}, s{S_T+1}, 7')
    I(f's_lshl_b32 s{S_T+2}, s{S_T}, 13')
    I(f's_add_u32 s{S_T+1}, s{S_T+1}, s{S_T+2}')
    I(f'v_lshl_add_u32 v{V_X+4}, v{V_X+3}, 10, v{V_CH4}')
    I(f'v_add_u32 v{V_X+4}, s{S_T+1}, v{V_X+4}')
    I('s_nop 7')
    I(f's_cmp_ge_u32 s{S_W}, 4')
    I('s_cbranch_scc1 K2_UINIT')
    I(f's_mov_b32 s{S_T+2}, 0x{f2u(-LOG2E):x}')
    I(f'v_mov_b32 v{V_X+5}, 0x{f2u(-float(KEXP)):x}')
    for i in range(16):
        I(f'v_fma_f32 v{V_SD+i}, v{V_SD+i}, s{S_T+2}, v{V_X+5}')
    for i in range(0, 16, 2):
        I(f'v_cvt_pk_bf16_f32 v{V_X+6}, v{V_SD+i}, v{V_SD+i+1}')
        I(f'v_lshlrev_b32 v{V_X+7}, 16, v{V_X+6}')
        I(f'v_and_b32 v{V_X+6}, 0xffff0000, v{V_X+6}')
        I(f'v_sub_f32 v{V_SD+i}, v{V_SD+i}, v{V_X+7}')
        I(f'v_sub_f32 v{V_SD+i+1}, v{V_SD+i+1}, v{V_X+6}')
        I(f'v_cvt_pk_bf16_f32 v{V_SD+i}, v{V_X+7}, v{V_SD+i}')
        I(f'v_cvt_pk_bf16_f32 v{V_SD+i+1}, v{V_X+6}, v{V_SD+i+1}')
    I('s_branch K2_SWRITE')
    L('K2_UINIT')
    I(f's_mov_b32 s{S_T+2}, 0x{f2u(2.0**(SV+KEXP)):x}')
    I(f'v_add_u32 v{V_X+4}, {ACC}, v{V_X+4}')
    for i in range(16):
        I(f'v_mul_f32 v{V_SD+i}, s{S_T+2}, v{V_SD+i}')
    L('K2_SWRITE')
    for i in range(8):
        I(f'ds_write_b32 v{V_X+4}, v{V_SD+i} offset:{((i&3)+8*(i>>2))*256}')
    I(f's_cmp_eq_u32 s{S_T}, 0')
    I('s_cbranch_scc1 K2_SW0')
    I('s_mov_b64 exec, 0xffffffff')
    I(f'ds_write_b32 v{V_X+4}, v{V_SD+8} offset:{16*256}')
    I('s_mov_b64 exec, -1')
    I('s_branch K2_NOTFIRST')
    L('K2_SW0')
    for i in range(8, 16):
        I(f'ds_write_b32 v{V_X+4}, v{V_SD+i} offset:{((i&3)+8*(i>>2))*256}')
    L('K2_NOTFIRST')
    I(f'v_mov_b32 v{V_X}, 4')
    for r in range(8):
        I(f's_waitcnt vmcnt({15-r})')
        I(f's_mov_b64 exec, s[{S_MASK+4*r}:{S_MASK+4*r+1}]')
        I(f'v_lshrrev_b32 v{V_RA+r}, 24, v{V_REC+8*r+2}')
        I(f'ds_add_rtn_u32 v{V_REC+8*r+3}, v{V_RA+r}, v{V_X} offset:{CNT}')
    I('s_waitcnt vmcnt(0)')
    for r in range(8):
        I(f's_mov_b64 exec, s[{S_MASK+4*r+2}:{S_MASK+4*r+3}]')
        I(f's_cbranch_execz K2_C{r}')
        I(f'v_lshrrev_b32 v{V_X+1}, 24, v{V_REC+8*r+6}')
        I(f'ds_add_rtn_u32 v{V_REC+8*r+7}, v{V_X+1}, v{V_X} offset:{CNT}')
        L(f'K2_C{r}')
    I('s_mov_b64 exec, -1')
    I('s_waitcnt lgkmcnt(0)')
    I('s_barrier')
    I(f'v_lshlrev_b32 v{V_X}, 2, v{V_LANE}')
    I(f'v_mov_b32 v{V_X+1}, {MISC}')
    I(f'ds_read_b32 v{V_X+2}, v{V_X} offset:{CNT}')
    I(f'ds_read_b32 v{V_X+1}, v{V_X+1}')
    I('s_waitcnt lgkmcnt(1)')
    I(f'v_add_u32 v{V_X+2}, 28, v{V_X+2}')
    I(f'v_and_b32 v{V_X+2}, 0xffffffe0, v{V_X+2}')
    I(f'v_mov_b32 v{V_X+3}, v{V_X+2}')
    wave_scan(V_X + 3)
    I(f'v_readlane_b32 s{S_T}, v{V_X+3}, 63')
    I(f'v_sub_u32 v{V_X+3}, v{V_X+3}, v{V_X+2}')
    I(f'ds_write_b32 v{V_X}, v{V_X+3} offset:{BASET}')
    I('s_waitcnt lgkmcnt(1)')
    I(f'v_readfirstlane_b32 s{S_MORE}, v{V_X+1}')
    I(f's_lshr_b32 s{S_T}, s{S_T}, 5')
    I(f's_cmp_eq_u32 s{S_WID}, 384')
    I(f's_cselect_b32 s{S_T+1}, {MAXG}, -1')
    I(f's_cmp_gt_u32 s{S_T}, s{S_T+1}')
    I('s_cbranch_scc1 K2_OVERFLOW')
    I(f's_add_u32 s{S_L}, s{S_T}, 31')
    I(f's_lshr_b32 s{S_L}, s{S_L}, 5')
    for r in range(8):
        I(f's_mov_b64 exec, s[{S_MASK+4*r}:{S_MASK+4*r+1}]')
        I(f'ds_read_b32 v{V_RA+r}, v{V_RA+r} offset:{BASET}')
    I('s_mov_b64 exec, -1')
    I(f'v_cvt_f32_u32 v{V_X+4}, s{S_L}')
    I(f'v_rcp_f32 v{V_X+4}, v{V_X+4}')
    I(f'v_lshrrev_b32 v{V_X+3}, 5, v{V_X+3}')
    I(f'v_mul_f32 v{V_X+4}, 0x47800000, v{V_X+4}')
    I(f'v_cvt_u32_f32 v{V_X+4}, v{V_X+4}')
    I(f'v_lshrrev_b32 v{V_X+2}, 5, v{V_X+2}')
    I(f'v_add_u32 v{V_X+4}, 2, v{V_X+4}')
    for r in range(8):
        I(f's_waitcnt lgkmcnt({7 - r + 2*r})' if 7 + r <= 15 else 's_nop 0')
        I(f's_mov_b64 exec, s[{S_MASK+4*r}:{S_MASK+4*r+1}]')
        I(f'v_add_u32 v{V_RA+r}, v{V_RA+r}, v{V_REC+8*r+3}')
        I(f'v_add_u32 v{V_REC+8*r+3}, {LS}, v{V_RA+r}')
        I(f'v_add_u32 v{V_RA+r}, v{V_RA+r}, v{V_RA+r}')
        I(f'ds_write_b32 v{V_REC+8*r+3}, v{V_REC+8*r+2}')
        I(f'ds_write_b64 v{V_RA+r}, v[{V_REC+8*r}:{V_REC+8*r+1}] offset:{LE}')
    for r in range(8):
        I(f's_mov_b64 exec, s[{S_MASK+4*r+2}:{S_MASK+4*r+3}]')
        I(f's_cbranch_execz K2_P{r}')
        I(f'v_lshrrev_b32 v{V_X+1}, 24, v{V_REC+8*r+6}')
        I(f'ds_read_b32 v{V_X+1}, v{V_X+1} offset:{BASET}')
        I('s_waitcnt lgkmcnt(0)')
        I(f'v_add_u32 v{V_X+1}, v{V_X+1}, v{V_REC+8*r+7}')
        I(f'v_add_u32 v{V_REC+8*r+7}, {LS}, v{V_X+1}')
        I(f'v_add_u32 v{V_X+1}, v{V_X+1}, v{V_X+1}')
        I(f'ds_write_b32 v{V_REC+8*r+7}, v{V_REC+8*r+6}')
        I(f'ds_write_b64 v{V_X+1}, v[{V_REC+8*r+4}:{V_REC+8*r+5}] offset:{LE}')
        L(f'K2_P{r}')
    I('s_mov_b64 exec, -1')
    I(f'v_mul_u32_u24 v{V_X+5}, v{V_X+3}, v{V_X+4}')
    I(f'v_lshrrev_b32 v{V_X+5}, 16, v{V_X+5}')
    I(f'v_max_u32 v{V_X+6}, 1, v{V_X+2}')
    I(f'v_add3_u32 v{V_X+6}, v{V_X+6}, v{V_X+3}, -1')
    I(f'v_mul_u32_u24 v{V_X+6}, v{V_X+6}, v{V_X+4}')
    I(f'v_lshrrev_b32 v{V_X+6}, 16, v{V_X+6}')
    I(f'v_lshlrev_b32 v{V_X+7}, 3, v{V_LANE}')
    I(f'v_mov_b32 v{V_TMP}, v{V_X+5}')
    I(f'v_mov_b32 v{V_TMP+1}, v{V_X+6}')
    I(f'ds_write_b64 v{V_X+7}, v[{V_TMP}:{V_TMP+1}] offset:{NINFO}')
    I(f'v_lshlrev_b32 v{V_X+7}, 8, v{V_LANE}')
    I(f's_mov_b32 s{S_T}, s{S_W}')
    I(f's_sub_u32 s{S_T+1}, 0, s{S_L}')
    L('K2_DLOOP')
    I(f'v_cmp_lt_u32 vcc, s{S_T}, v{V_X+2}')
    I('s_and_b64 exec, exec, vcc')
    I('s_cbranch_execz K2_DEND')
    I(f'v_add_u32 v{V_TMP}, s{S_T}, v{V_X+3}')
    I(f'v_mul_u32_u24 v{V_TMP+1}, v{V_TMP}, v{V_X+4}')
    I(f'v_lshrrev_b32 v{V_TMP+1}, 16, v{V_TMP+1}')
    I(f'v_mad_i32_i24 v{V_TMP}, v{V_TMP+1}, s{S_T+1}, v{V_TMP}')
    I(f'v_lshl_add_u32 v{V_TMP}, v{V_TMP}, 5, v{V_TMP+1}')
    I(f'v_lshlrev_b32 v{V_TMP}, 2, v{V_TMP}')
    I(f'v_cmp_eq_u32 vcc, v{V_TMP+1}, v{V_X+5}')
    I(f'v_lshlrev_b32 v{V_TMP+1}, 8, v{V_TMP+1}')
    I(f'v_add_u32 v{V_TMP+1}, {NB*256}, v{V_TMP+1}')
    I(f'v_cndmask_b32 v{V_TMP+1}, v{V_TMP+1}, v{V_X+7}, vcc')
    I(f'v_add_u32 v{V_TMP+1}, {ACC}, v{V_TMP+1}')
    I(f'v_add_u32 v{V_TMP+2}, {DESCP}, v{V_TMP}')
    I(f'ds_write_b32 v{V_TMP+2}, v{V_X+7}')
    I(f'ds_write_b32 v{V_TMP+2}, v{V_TMP+1} offset:{DESCA-DESCP}')
    I(f's_add_u32 s{S_T}, s{S_T}, 8')
    I('s_branch K2_DLOOP')
    L('K2_DEND')
    I('s_mov_b64 exec, -1')
    I(f's_lshl_b32 s{S_T}, s{S_W}, 2')
    I(f's_lshl_b32 s{S_T+1}, s{S_L}, 5')
    I(f'v_lshrrev_b32 v{V_X}, 4, v{V_LANE}')
    I(f'v_add_u32 v{V_X}, s{S_T}, v{V_X}')
    I(f'v_mul_u32_u24 v{V_PS}, s{S_T+1}, v{V_X}')
    I(f'v_bfe_u32 v{V_X+1}, v{V_LANE}, 3, 1')
    I(f'v_lshl_add_u32 v{V_PS}, v{V_X+1}, 4, v{V_PS}')
    I(f'v_add_u32 v{V_PS}, {LS}, v{V_PS}')
    I(f'v_bfe_u32 v{V_X}, v{V_LANE}, 2, 1')
    I(f'v_and_b32 v{V_X+2}, 1, v{V_LANE}')
    I(f'v_lshl_or_b32 v{V_X}, v{V_X}, 1, v{V_X+2}')
    I(f'v_add_u32 v{V_X}, s{S_T}, v{V_X}')
    I(f's_lshl_b32 s{S_T+1}, s{S_L}, 6')
    I(f'v_mul_u32_u24 v{V_PE}, s{S_T+1}, v{V_X}')
    I(f'v_bfe_u32 v{V_X+2}, v{V_LANE}, 4, 1')
    I(f'v_lshl_or_b32 v{V_X+1}, v{V_X+1}, 1, v{V_X+2}')
    I(f'v_bfe_u32 v{V_X+2}, v{V_LANE}, 1, 1')
    I(f'v_lshl_or_b32 v{V_X+1}, v{V_X+1}, 1, v{V_X+2}')
    I(f'v_lshl_add_u32 v{V_PE}, v{V_X+1}, 3, v{V_PE}')
    I(f'v_add_u32 v{V_PE}, {LE}, v{V_PE}')
    I(f'v_lshrrev_b32 v{V_X}, 5, v{V_LANE}')
    I(f'v_lshlrev_b32 v{V_X}, 3, v{V_X}')
    I(f's_lshl_b32 s{S_T}, s{S_W}, 4')
    I(f's_add_u32 s{S_T}, s{S_T}, {DESCP}')
    I(f'v_add_u32 v{V_PD}, s{S_T}, v{V_X}')
    I('s_waitcnt lgkmcnt(0)')
    I('s_barrier')
    I(f's_cmp_eq_u32 s{S_L}, 0')
    I('s_cbranch_scc1 K2_FOLD')
    lg = Lg()
    lg.op('S', f'ds_read_b128 {vr(V_SO,4)}, v{V_PS}')
    lg.op('S1', f'ds_read_b128 {vr(V_X,4)}, v{V_PS} offset:32')
    lg.op('dP', f'ds_read_b64 v[{V_VAP}:{V_VAP+1}], v{V_PD}')
    lg.op('dA', f'ds_read_b64 v[{V_VAA[0]}:{V_VAA[0]+1}], v{V_PD} offset:{DESCA-DESCP}')
    lg.op('e', f'ds_read_b64 v[{A5}:{A5+1}], v{V_PE}')
    lg.need('S')
    dma(0)
    lg.need('S1')
    for i in range(4):
        I(f'v_mov_b32 v{V_SO+i}, v{V_X+i}')
    dma(1)
    lg.op('S', f'ds_read_b128 {vr(V_SO,4)}, v{V_PS} offset:64')
    lg.need('dP', 'dA')
    I(f'v_add_u32 v{V_VAP}, v{V_VAP}, v{V_CH4}')
    I(f'v_add_u32 v{V_VAP+1}, v{V_VAP+1}, v{V_CH4}')
    I(f'v_add_u32 v{V_VAA[0]}, v{V_VAA[0]}, v{V_CH4}')
    I(f'v_add_u32 v{V_VAA[0]+1}, v{V_VAA[0]+1}, v{V_CH4}')
    lg.op('P0a', f'ds_read_b32 v{B5[0]+2}, v{V_VAP}')
    lg.op('P0b', f'ds_read_b32 v{B5[0]+3}, v{V_VAP+1}')
    lg.op('P1a', f'ds_read_b32 v{B5[1]+2}, v{V_VAP} offset:128')
    lg.op('P1b', f'ds_read_b32 v{B5[1]+3}, v{V_VAP+1} offset:128')
    lg.op('R0a', f'ds_read_b32 v{V_M0}, v{V_VAA[0]}')
    lg.op('R0b', f'ds_read_b32 v{V_M0+1}, v{V_VAA[0]+1}')
    I(f's_mov_b32 s{S_CNT}, s{S_L}')
    I('s_waitcnt vmcnt(4)')
    for sg in range(4):
        lg.op(f'A{sg}', f'ds_read_b128 {vr(AOP+4*sg,4)}, v{V_AR+sg}')
    for tag, txt in mfma_ops(0):
        if tag == 'Z5':
            lg.need('P0a', 'P0b', 'e')
        elif tag[0] == 'Z':
            lg.need('A' + tag[1])
        I(txt)
    lg.need('S', 'A3')
    dma(0)
    I('s_nop 3')
    assert not lg.q, lg.q
    half_A(lg, 0, 0, False)
    state0 = list(lg.q)
    def loop_body():
        half_B(lg, 0, 0)
        I(f's_sub_u32 s{S_CNT}, s{S_CNT}, 1')
        I(f's_cmp_eq_u32 s{S_CNT}, 0')
        I('s_cbranch_scc1 K2_FIN0')
        half_A(lg, 1, 1, True)
        half_B(lg, 1, 1)
        I(f's_sub_u32 s{S_CNT}, s{S_CNT}, 1')
        I(f's_cmp_eq_u32 s{S_CNT}, 0')
        I('s_cbranch_scc1 K2_FIN1')
        half_A(lg, 0, 2, True)
        I(f'v_add_u32 v{V_PS}, 64, v{V_PS}')
        I(f'v_add_u32 v{V_PE}, 128, v{V_PE}')
        I(f'v_add_u32 v{V_PD}, 256, v{V_PD}')
        I('s_branch K2_LOOP')
    mark = len(out)
    loop_body()
    del out[mark:]
    qb = list(lg.q)
    n = min(len(qb), len(state0))
    assert qb[len(qb)-n:] == state0[len(state0)-n:], (state0, qb)
    lg.q = list(qb if len(qb) >= len(state0) else state0)
    e('.p2align 3')
    L('K2_LOOP')
    loop_body()
    assert lg.q == qb, (lg.q, qb)
    print('loop entry queue', state0, 'back edge queue', qb, file=sys.stderr)
    for p in range(2):
        L(f'K2_FIN{p}')
        t = tail_ops(1)
        I(t[0]); I(t[1])
        I('s_waitcnt lgkmcnt(0)')
        I(t[2]); I(t[3])
        I('s_nop 0')
        I(f'ds_write_b32 v{V_VAA[p]}, v{V_M1} offset:128')
        I(f'ds_write_b32 v{V_VAA[p]+1}, v{V_M1+1} offset:128')
        if p == 0:
            I('s_branch K2_FOLD')
    L('K2_FOLD')
    I('s_waitcnt vmcnt(0) lgkmcnt(0)')
    I('s_barrier')
    I(f'v_lshrrev_b32 v{V_X}, 3, v{V_TID}')
    I(f'v_and_b32 v{V_X+1}, 7, v{V_TID}')
    I(f'v_lshlrev_b32 v{V_X+1}, 5, v{V_X+1}')
    I(f'v_lshl_add_u32 v{V_X+2}, v{V_X}, 8, v{V_X+1}')
    I(f'v_lshlrev_b32 v{V_X+3}, 3, v{V_X}')
    I(f's_mul_i32 s{S_T+4}, s2, {NB*128}')
    I(f'v_lshlrev_b32 v{V_X+6}, 4, v{V_TID}')
    I(f'v_add_u32 v{V_X+6}, s{S_T+4}, v{V_X+6}')
    I(f'v_mov_b32 v{V_X+7}, 0')
    I(f'v_cmp_gt_u32 vcc, {NB*8}, v{V_TID}')
    I(f's_and_saveexec_b64 s[{S_EX}:{S_EX+1}], vcc')
    I('s_cbranch_execz K2_FDONE')
    I(f'ds_read_b64 v[{V_X+4}:{V_X+5}], v{V_X+3} offset:{NINFO}')
    I(f'ds_read_b128 v[64:67], v{V_X+2} offset:{ACC}')
    I(f'ds_read_b128 v[68:71], v{V_X+2} offset:{ACC+16}')
    I(f's_mov_b64 s[{S_T}:{S_T+1}], exec')
    I('s_waitcnt lgkmcnt(0)')
    L('K2_FLOOP')
    I(f'v_cmp_lt_u32 vcc, v{V_X+4}, v{V_X+5}')
    I('s_and_b64 exec, exec, vcc')
    I('s_cbranch_execz K2_FLEND')
    I(f'v_add_u32 v{V_X+4}, 1, v{V_X+4}')
    I(f'v_lshl_add_u32 v{V_X+7}, v{V_X+4}, 8, v{V_X+1}')
    I(f'ds_read_b128 v[72:75], v{V_X+7} offset:{ZR}')
    I(f'ds_read_b128 v[76:79], v{V_X+7} offset:{ZR+16}')
    I('s_waitcnt lgkmcnt(0)')
    for k in range(8):
        I(f'v_add_f32 v{64+k}, v{64+k}, v{72+k}')
    I('s_branch K2_FLOOP')
    L('K2_FLEND')
    I(f's_mov_b64 exec, s[{S_T}:{S_T+1}]')
    I(f's_cmp_lg_u32 s{S_MORE}, 0')
    I('s_cbranch_scc1 K2_WB')
    I(f's_mov_b32 s{S_T+2}, 0x{f2u(2.0**-(SV+KEXP)):x}')
    I(f's_mov_b32 s{S_T+3}, 0x{f2u(-LOG2E):x}')
    for k in range(8):
        I(f'v_mul_f32 v{64+k}, s{S_T+2}, v{64+k}')
    for k in range(8):
        I(f'v_mul_f32 v{72+k}, s{S_T+3}, v{64+k}')
    for k in range(8):
        I(f'v_exp_f32 v{72+k}, v{72+k}')
    for k in range(8):
        I(f'v_add_f32 v{72+k}, 1.0, v{72+k}')
    for k in range(8):
        I(f'v_rcp_f32 v{72+k}, v{72+k}')
    for k in range(8):
        I(f'v_mul_f32 v{64+k}, v{64+k}, v{72+k}')
    for k in range(4):
        I(f'v_cvt_pk_bf16_f32 v{80+k}, v{64+2*k}, v{65+2*k}')
    I(f'buffer_store_dwordx4 v[80:83], v{V_X+6}, s[{S_OUT}:{S_OUT+3}], 0 offen')
    I('s_endpgm')
    L('K2_WB')
    I(f'ds_write_b128 v{V_X+2}, v[64:67] offset:{ACC}')
    I(f'ds_write_b128 v{V_X+2}, v[68:71] offset:{ACC+16}')
    L('K2_FDONE')
    I(f's_mov_b64 exec, -1')
    I(f's_cmp_eq_u32 s{S_MORE}, 0')
    I('s_cbranch_scc1 K2_END')
    I(f's_add_u32 s{S_JB}, s{S_JB}, s{S_WID}')
    I('s_waitcnt lgkmcnt(0)')
    I('s_barrier')
    prefill()
    I('s_branch K2_PASS')
    L('K2_OVERFLOW')
    I(f's_mov_b32 s{S_WID}, 192')
    I('s_waitcnt lgkmcnt(0)')
    I('s_barrier')
    prefill()
    I('s_branch K2_PASS')
    L('K2_END')
    I('s_endpgm')

def kd(name, vgpr, sgpr):
    e(f'.amdhsa_kernel {name}')
    e(f'  .amdhsa_next_free_vgpr {vgpr}')
    e(f'  .amdhsa_next_free_sgpr {sgpr}')
    e(f'  .amdhsa_accum_offset {(vgpr + 3) // 4 * 4}')
    e('  .amdhsa_group_segment_fixed_size 0')
    e('  .amdhsa_kernarg_size 80')
    e('  .amdhsa_user_sgpr_count 2')
    e('  .amdhsa_user_sgpr_kernarg_segment_ptr 1')
    e('  .amdhsa_system_sgpr_workgroup_id_x 1')
    e('  .amdhsa_float_denorm_mode_32 3')
    e('.end_amdhsa_kernel')

hdr = open('standalone__edge_featured_mpnn_egc__graph.s.ref').read().split('\n')
for line in hdr:
    if line.startswith('; Override'):
        break
    e(line)
e(f'; @launch kernel=egc_bin_kernel grid=(256,1,1) block=({K1_THREADS},1,1) lds={K1_LDS}')
e(f'; @launch kernel=egc_main_kernel grid=({NBINS},1,1) block=(512,1,1) lds={K2_LDS}')
e('.amdgcn_target "amdgcn-amd-amdhsa--gfx950"')
e('.text')
gen_k1()
gen_k2()
e('.section .rodata,"a"')
e('.p2align 6')
kd('egc_bin_kernel', 56, 48)
e('.p2align 6')
kd('egc_main_kernel', 252, 96)
open(sys.argv[1], 'w').write('\n'.join(out) + '\n')
```

```python
import sys, struct

OPT = dict(a.split('=') for a in sys.argv[2:] if '=' in a)
def opt(name, default):
    return type(default)(OPT.get(name, default))

N_NODES = 12500
E_EDGES = 800000
NB = 49
NBINS = 256
CH = 3200
NCH = 250
CHB = CH * 12
WS_TAB = 0x00A00000
WS_IMG = 0x00B00000
IMG_BLOCKS = 33
KEXP = 31
SV = 30
LOG2E = 1.4426950408889634

def f2u(x):
    return struct.unpack('<I', struct.pack('<f', x))[0]

out = []
def e(s=''):
    out.append(s)
def I(s):
    out.append('    ' + s)
def L(name):
    out.append(name + ':')
def vr(a, n):
    return f'v[{a}:{a+n-1}]' if n > 1 else f'v{a}'
def sr(a, n):
    return f's[{a}:{a+n-1}]' if n > 1 else f's{a}'

def srd(d, base_lo, base_hi, nrec):
    I(f's_mov_b32 s{d}, s{base_lo}')
    I(f's_mov_b32 s{d+1}, s{base_hi}')
    I(f's_mov_b32 s{d+2}, {nrec}')
    I(f's_mov_b32 s{d+3}, 0x00020000')

def srd_off(d, base_lo, base_hi, off, nrec):
    I(f's_add_u32 s{d}, s{base_lo}, {off}')
    I(f's_addc_u32 s{d+1}, s{base_hi}, 0')
    I(f's_mov_b32 s{d+2}, {nrec}')
    I(f's_mov_b32 s{d+3}, 0x00020000')

def wave_scan(v):
    for sh in (1, 2, 4, 8):
        I('s_nop 1')
        I(f'v_add_u32_dpp v{v}, v{v}, v{v} row_shr:{sh} row_mask:0xf bank_mask:0xf')
    I('s_nop 1')
    I(f'v_add_u32_dpp v{v}, v{v}, v{v} row_bcast:15 row_mask:0xa bank_mask:0xf')
    I('s_nop 1')
    I(f'v_add_u32_dpp v{v}, v{v}, v{v} row_bcast:31 row_mask:0xc bank_mask:0xf')
    I('s_nop 1')

PROF = opt('prof', 0)
V_PROF = 252
def stamp(i):
    if not PROF:
        return
    I('s_memtime s[98:99]')
    I('s_waitcnt lgkmcnt(0)')
    I(f'v_writelane_b32 v{V_PROF}, s98, {i}')
def prof_store(wsl, wsh, wreg, base):
    if not PROF:
        return
    I('s_memrealtime s[98:99]')
    I('s_waitcnt lgkmcnt(0)')
    I(f'v_writelane_b32 v{V_PROF}, s98, 15')
    I('s_mov_b64 exec, 0xffff')
    I(f's_add_u32 s96, s{wsl}, 0x{base:x}')
    I(f's_addc_u32 s97, s{wsh}, 0')
    I(f'v_mbcnt_lo_u32_b32 v{V_PROF+1}, -1, 0')
    I(f'v_lshlrev_b32 v{V_PROF+1}, 2, v{V_PROF+1}')
    I(f's_lshl_b32 s98, s2, 4')
    I(f's_add_u32 s98, s98, s{wreg}')
    I(f's_lshl_b32 s98, s98, 6')
    I(f'v_add_u32 v{V_PROF+1}, s98, v{V_PROF+1}')
    I(f'global_store_dword v{V_PROF+1}, v{V_PROF}, s[96:97]')

STORE_FLAGS = opt('stf', '')
STORE_FLAGS = (' ' + STORE_FLAGS.replace('+', ' ')) if STORE_FLAGS else ''

K1_THREADS = 832
K1_HIST, K1_BASE, K1_STG = 0, 1024, 2048
K1_LDS = K1_STG + 2496 * 16

def gen_k1():
    global V_PROF
    V_PROF = 100
    e('.globl egc_bin_kernel')
    e('.p2align 8')
    e('.type egc_bin_kernel,@function')
    L('egc_bin_kernel')
    I('s_cmp_ge_u32 s2, 255')
    I('s_cbranch_scc1 K1_END')
    I('s_cmp_ge_u32 s2, %d' % NCH)
    I('s_cbranch_scc1 K1_PREP')
    I('s_load_dwordx4 s[4:7], s[0:1], 8')
    I('s_load_dwordx2 s[8:9], s[0:1], 24')
    I('s_load_dwordx2 s[10:11], s[0:1], 72')
    if PROF:
        I(f'v_mov_b32 v{V_PROF}, 0')
        I('s_memrealtime s[98:99]')
        I('s_waitcnt lgkmcnt(0)')
        I(f'v_writelane_b32 v{V_PROF}, s98, 14')
        I('v_lshrrev_b32 v1, 6, v0')
        I('s_nop 0')
        I('v_readfirstlane_b32 s95, v1')
    stamp(0)
    I('v_lshlrev_b32 v1, 4, v0')
    I('v_lshlrev_b32 v2, 5, v0')
    I('s_mul_i32 s32, s2, %d' % (CH * 4))
    I('s_mul_i32 s33, s2, %d' % (CH * 8))
    I('s_mul_i32 s34, s2, %d' % CHB)
    I('s_lshl_b32 s35, s2, 10')
    I('s_add_u32 s35, s35, 0x%x' % WS_TAB)
    I('v_and_b32 v3, 255, v0')
    I('v_lshlrev_b32 v3, 2, v3')
    I('v_mov_b32 v20, 0')
    I('ds_write_b32 v3, v20 offset:%d' % K1_HIST)
    I('s_waitcnt lgkmcnt(0)')
    srd_off(12, 8, 9, 's32', CH * 4)
    I('buffer_load_dwordx4 v[4:7], v1, s[12:15], 0 offen')
    srd_off(16, 6, 7, 's32', CH * 4)
    I('buffer_load_dwordx4 v[8:11], v1, s[16:19], 0 offen')
    srd_off(20, 4, 5, 's33', CH * 8)
    I('buffer_load_dwordx4 v[12:15], v2, s[20:23], 0 offen')
    I('buffer_load_dwordx4 v[16:19], v2, s[20:23], 0 offen offset:16')
    srd_off(24, 10, 11, 's34', CHB)
    srd_off(28, 10, 11, 's35', 1024)
    I('s_mov_b32 s36, -%d' % NB)
    I('v_mov_b32 v21, 12')
    I('v_cmp_gt_u32 vcc, %d, v0' % (CH // 4))
    stamp(1)
    I('s_barrier')
    I('s_and_saveexec_b64 s[38:39], vcc')
    I('s_waitcnt vmcnt(3)')
    stamp(2)
    for i in range(4):
        I(f'v_mul_u32_u24 v{24+i}, 21400, v{4+i}')
    for i in range(4):
        I(f'v_lshrrev_b32 v{24+i}, 20, v{24+i}')
    for i in range(4):
        I(f'v_mad_i32_i24 v{28+i}, v{24+i}, s36, v{4+i}')
        I(f'v_lshlrev_b32 v{24+i}, 2, v{24+i}')
        I(f'ds_add_rtn_u32 v{32+i}, v{24+i}, v21 offset:{K1_HIST}')
    for i in range(4):
        I(f'v_lshlrev_b32 v{28+i}, 26, v{28+i}')
    I('s_waitcnt vmcnt(2)')
    stamp(3)
    for i in range(4):
        I(f'v_lshl_or_b32 v{28+i}, v{8+i}, 7, v{28+i}')
    I('s_mov_b64 exec, s[38:39]')
    I('s_waitcnt lgkmcnt(0)')
    I('s_barrier')
    stamp(4)
    I('v_readfirstlane_b32 s40, v0')
    I('s_nop 3')
    I('s_cmp_lg_u32 s40, 0')
    I('s_cbranch_scc1 K1_NOSCAN')
    I(f'ds_read_b128 v[36:39], v1 offset:{K1_HIST}')
    I('s_waitcnt lgkmcnt(0)')
    I('v_add_u32 v41, v36, v37')
    I('v_add_u32 v42, v41, v38')
    I('v_add_u32 v43, v42, v39')
    I('v_mov_b32 v44, v43')
    wave_scan(44)
    I('v_sub_u32 v44, v44, v43')
    I('v_add_u32 v45, v44, v36')
    I('v_add_u32 v46, v44, v41')
    I('v_add_u32 v47, v44, v42')
    for k in range(4):
        I(f'v_lshl_or_b32 v{48+k}, v{36+k}, 16, v{44+k}')
    for k in range(4):
        I(f'v_add_u32 v{44+k}, {K1_STG}, v{44+k}')
    I(f'ds_write_b128 v1, v[44:47] offset:{K1_BASE}')
    I('buffer_store_dwordx4 v[48:51], v1, s[28:31], 0 offen' + STORE_FLAGS)
    I('s_waitcnt lgkmcnt(0)')
    L('K1_NOSCAN')
    I('s_barrier')
    stamp(5)
    I('s_and_saveexec_b64 s[38:39], vcc')
    for i in range(4):
        I(f'ds_read_b32 v{24+i}, v{24+i} offset:{K1_BASE}')
    I('s_waitcnt vmcnt(0)')
    stamp(6)
    for i in range(4):
        I(f's_waitcnt lgkmcnt({3-i + 2*i})')
        I(f'v_add_u32 v{24+i}, v{24+i}, v{32+i}')
        I(f'ds_write_b32 v{24+i}, v{28+i} offset:8')
        I(f'ds_write2_b32 v{24+i}, v{12+2*i}, v{13+2*i} offset0:0 offset1:1')
    I('s_mov_b64 exec, s[38:39]')
    I('s_waitcnt lgkmcnt(0)')
    I('s_barrier')
    stamp(7)
    for k in range(3):
        I(f'ds_read_b128 v[{36+4*k}:{39+4*k}], v1 offset:{K1_STG + k*K1_THREADS*16}')
    I('v_add_u32 v2, %d, v1' % (K1_THREADS * 16))
    I('v_add_u32 v3, %d, v1' % (2 * K1_THREADS * 16))
    for k in range(3):
        I(f's_waitcnt lgkmcnt({2-k})')
        I(f'buffer_store_dwordx4 v[{36+4*k}:{39+4*k}], v{1+k}, s[24:27], 0 offen' + STORE_FLAGS)
    stamp(8)
    if PROF:
        I('s_waitcnt vmcnt(0)')
    stamp(9)
    prof_store(10, 11, 95, 0xD00000)
    I('s_endpgm')

    L('K1_PREP')
    I('s_load_dwordx4 s[4:7], s[0:1], 32')
    I('s_load_dwordx2 s[8:9], s[0:1], 48')
    I('s_load_dwordx2 s[10:11], s[0:1], 72')
    I('v_readfirstlane_b32 s40, v0')
    I('s_sub_u32 s32, s2, %d' % NCH)
    I('v_and_b32 v1, 63, v0')
    I('v_lshrrev_b32 v2, 6, v0')
    I('s_cmp_ge_u32 s40, 512')
    I('s_cbranch_scc1 K1_END')
    I('s_waitcnt lgkmcnt(0)')
    srd_off(16, 10, 11, '0x%x' % WS_IMG, IMG_BLOCKS * 1024)
    I('s_cmp_eq_u32 s32, 2')
    I('s_cbranch_scc1 K1_PREPC')
    I('s_add_u32 s12, s8, %d' % (64 * 128))
    I('s_addc_u32 s13, s9, 0')
    I('s_mov_b32 s33, 0x%x' % f2u(-LOG2E))
    I('s_mov_b32 s34, 0')
    I('s_cmp_eq_u32 s32, 1')
    I('s_cbranch_scc0 K1_P1')
    I('s_mov_b32 s12, s6')
    I('s_mov_b32 s13, s7')
    I('s_mov_b32 s33, 0x%x' % f2u(2.0 ** SV))
    I('s_mov_b32 s34, %d' % (8 * 1024))
    L('K1_P1')
    I('s_cmp_eq_u32 s32, 3')
    I('s_cbranch_scc0 K1_P2')
    I('s_mov_b32 s12, s8')
    I('s_mov_b32 s13, s9')
    I('s_mov_b32 s33, 1.0')
    I('s_mov_b32 s34, %d' % (17 * 1024))
    L('K1_P2')
    I('s_cmp_eq_u32 s32, 4')
    I('s_cbranch_scc0 K1_P3')
    I('s_mov_b32 s12, s4')
    I('s_mov_b32 s13, s5')
    I('s_mov_b32 s33, 1.0')
    I('s_mov_b32 s34, %d' % (25 * 1024))
    L('K1_P3')
    I('s_mov_b32 s14, %d' % (64 * 128))
    I('s_mov_b32 s15, 0x00020000')
    I('v_and_b32 v3, 3, v2')
    I('v_lshlrev_b32 v3, 11, v3')
    I('v_lshrrev_b32 v4, 5, v1')
    I('v_lshl_add_u32 v3, v4, 10, v3')
    I('v_lshrrev_b32 v4, 2, v2')
    I('v_lshl_add_u32 v3, v4, 6, v3')
    I('v_and_b32 v4, 31, v1')
    I('v_lshl_add_u32 v3, v4, 1, v3')
    for j in range(8):
        I(f'buffer_load_ushort v{8+j}, v3, s[12:15], 0 offen offset:{j*128}')
    I('v_lshlrev_b32 v5, 4, v0')
    I('s_waitcnt vmcnt(0)')
    for j in range(8):
        I(f'v_lshlrev_b32 v{8+j}, 16, v{8+j}')
    for j in range(8):
        I(f'v_mul_f32 v{8+j}, s33, v{8+j}')
    for m in range(4):
        I(f'v_cvt_pk_bf16_f32 v{16+m}, v{8+2*m}, v{9+2*m}')
    I('buffer_store_dwordx4 v[16:19], v5, s[16:19], s34 offen')
    I('s_endpgm')
    L('K1_PREPC')
    I('s_cmp_ge_u32 s40, 64')
    I('s_cbranch_scc1 K1_END')
    srd_off(12, 8, 9, str(128 * 128), 4 * 128)
    I('v_and_b32 v3, 31, v1')
    I('v_lshlrev_b32 v3, 1, v3')
    for nt in range(2):
        for k in range(4):
            I(f'buffer_load_ushort v{8+nt*4+k}, v3, s[12:15], 0 offen offset:{k*128+nt*64}')
    I('s_mov_b32 s33, 0x%x' % f2u(-LOG2E))
    I('v_lshlrev_b32 v5, 4, v1')
    I('v_cmp_lt_u32 vcc, 31, v1')
    I('s_waitcnt vmcnt(0)')
    for j in range(8):
        I(f'v_lshlrev_b32 v{8+j}, 16, v{8+j}')
    for j in range(8):
        I(f'v_mul_f32 v{8+j}, s33, v{8+j}')
    for m in range(4):
        I(f'v_cvt_pk_bf16_f32 v{16+m}, v{8+2*m}, v{9+2*m}')
    for m in range(4):
        I(f'v_lshlrev_b32 v{20+2*m}, 16, v{16+m}')
        I(f'v_and_b32 v{21+2*m}, 0xffff0000, v{16+m}')
    for j in range(8):
        I(f'v_sub_f32 v{8+j}, v{8+j}, v{20+j}')
    for m in range(4):
        I(f'v_cvt_pk_bf16_f32 v{28+m}, v{8+2*m}, v{9+2*m}')
    for m in range(4):
        I(f'v_cndmask_b32 v{16+m}, v{16+m}, v{28+m}, vcc')
    I('s_mov_b32 s34, %d' % (16 * 1024))
    I('buffer_store_dwordx4 v[16:19], v5, s[16:19], s34 offen')
    L('K1_END')
    I('s_endpgm')

PT = 0
ACC = 12544
ZR = 25088
CNT = 33280
MISC = 33536
BASET = 33792
NINFO = 35840
DESCP = 36352
LE = 39424
LS = 74240
DESCA = 91648
STG = 94208
K2_LDS = STG + 65536
MAXG = 544
WTMP = STG
XTMP = STG + 24576
PADW = 0x200000

V_TID, V_LANE = 0, 1
V_M0, V_M1 = 2, 4
V_VAA = (6, 8)
V_VAP = 10
V_SO = 12
V_DC = 16
V_AR = 18
V_PS, V_PE, V_PD = 22, 23, 24
V_CH4 = 25
V_T01D, V_T01N, V_T23D, V_T23N = 26, 28, 30, 32
V_TMP = 34
V_TAB = 40
V_RA = 48
V_X = 56
ZH = ((64, 80), (96, 112))
V_REC = 64
WB, WV = 128, 160
B5 = (192, 196)
AOP, A5 = 200, 216
V_SW = 220
V_SD = 236

S_X, S_TAB, S_REC, S_IMG, S_OUT = 12, 16, 20, 24, 28
S_MASK = 32
S_W, S_L, S_CNT, S_JB, S_WID, S_MORE = 64, 65, 66, 67, 68, 69
S_C = 70
S_MSK = 72
S_STG = 73
S_T = 74
S_RO = 84
S_EX = 92
S_FIRST = 94
S_MINV = 95

class Lg:
    def __init__(self):
        self.q = []
    def op(self, tag, text):
        I(text)
        self.q.append(tag)
    def need(self, *tags):
        idx = -1
        for t in tags:
            for i in range(len(self.q) - 1, -1, -1):
                if self.q[i] == t:
                    idx = max(idx, i)
                    break
        if idx < 0:
            return
        n = len(self.q) - 1 - idx
        assert n <= 15, (tags, n)
        I(f's_waitcnt lgkmcnt({n})')
        self.q = self.q[idx + 1:]

def prefill():
    I(f'v_lshlrev_b32 v{V_X}, 4, v{V_TID}')
    I(f'v_add_u32 v{V_X+1}, {LS}, v{V_X}')
    I(f'v_add_u32 v{V_X}, {ZR}, v{V_X}')
    for k in range(4):
        I(f'v_mov_b32 v{V_X+2+k}, 0')
    for k in range(6):
        I(f'ds_write_b128 v{V_X}, v[{V_X+2}:{V_X+5}] offset:{k*8192}')
    for k in range(4):
        I(f'v_mov_b32 v{V_TMP+k}, 0x{PADW:x}')
    I(f'ds_write_b128 v{V_X+1}, v[{V_TMP}:{V_TMP+3}]')
    I(f'ds_write_b128 v{V_X+1}, v[{V_TMP}:{V_TMP+3}] offset:8192')
    I(f'v_and_b32 v{V_X+2}, 7, v{V_TID}')
    I(f'v_lshlrev_b32 v{V_X+2}, 10, v{V_X+2}')
    I(f'v_add_u32 v{V_X+2}, {ACC + NB*256}, v{V_X+2}')
    for k in range(1, 4):
        I(f'v_add_u32 v{V_X+2+k}, {256*k}, v{V_X+2}')
    I(f'v_cmp_gt_u32 vcc, 136, v{V_TID}')
    I(f's_and_saveexec_b64 s[{S_EX}:{S_EX+1}], vcc')
    I(f'ds_write_b128 v{V_X+1}, v[{V_X+2}:{V_X+5}] offset:{DESCA-LS}')
    I(f'v_cmp_gt_u32 vcc, 64, v{V_TID}')
    I(f's_and_b64 exec, exec, vcc')
    I(f'ds_write_b128 v{V_X+1}, v[{V_TMP}:{V_TMP+3}] offset:16384')
    I(f's_mov_b64 exec, s[{S_EX}:{S_EX+1}]')

def valu_ops(s):
    Z, H = ZH[s]
    def E(i): return f'v_exp_f32 v{Z+i}, v{Z+i} clamp'
    def D(i): return f'v_pk_add_f32 v[{Z+i}:{Z+i+1}], v[{Z+i}:{Z+i+1}], s[{S_C}:{S_C+1}]'
    def p(r): return f'v[{r}:{r+1}]'
    def T(k): return f'v_pk_mul_f32 {p(H+4*k)}, {p(H+4*k)}, {p(Z+4*k+2)}'
    def DD(k): return f'v_pk_mul_f32 {p(Z+4*k+2)}, {p(Z+4*k)}, {p(Z+4*k+2)}'
    def NN(k): return f'v_pk_fma_f32 {p(H+4*k)}, {p(H+4*k+2)}, {p(Z+4*k)}, {p(H+4*k)}'
    def T2(a, b, tn): return f'v_pk_mul_f32 {p(tn)}, {p(H+4*a)}, {p(Z+4*b+2)}'
    def DD2(a, b, td): return f'v_pk_mul_f32 {p(td)}, {p(Z+4*a+2)}, {p(Z+4*b+2)}'
    def NN2(a, b, tn): return f'v_pk_fma_f32 {p(tn)}, {p(H+4*b)}, {p(Z+4*a+2)}, {p(tn)}'
    seq = [E(0), E(1), E(2), E(3), E(4), E(5), D(0), D(2), E(6), E(7), T(0), DD(0), E(8), E(9), NN(0), D(4), D(6),
           E(10), E(11), T(1), DD(1), E(12), E(13), NN(1), D(8), D(10), E(14), E(15), T(2), DD(2),
           T2(0, 1, V_T01N), NN(2), D(12), D(14), DD2(0, 1, V_T01D), NN2(0, 1, V_T01N), T(3), DD(3),
           f'v_rcp_f32 v{V_T01D}, v{V_T01D}', NN(3), f'v_rcp_f32 v{V_T01D+1}, v{V_T01D+1}',
           T2(2, 3, V_T23N), DD2(2, 3, V_T23D), NN2(2, 3, V_T23N)]
    return seq

def tail_ops(s):
    M = (V_M0, V_M1)[s]
    def p(r): return f'v[{r}:{r+1}]'
    return [f'v_rcp_f32 v{V_T23D}, v{V_T23D}',
            f'v_rcp_f32 v{V_T23D+1}, v{V_T23D+1}',
            f'v_pk_fma_f32 {p(M)}, {p(V_T01N)}, {p(V_T01D)}, {p(M)}',
            f'v_pk_fma_f32 {p(M)}, {p(V_T23N)}, {p(V_T23D)}, {p(M)}']

def mfma_ops(s):
    Z, H = ZH[s]
    z, h = vr(Z, 16), vr(H, 16)
    ops = [('Z5', f'v_mfma_f32_32x32x16_bf16 {z}, {vr(A5,4)}, {vr(B5[s],4)}, 0')]
    for sg in range(4):
        a = vr(AOP + 4 * sg, 4)
        ops.append((f'Z{sg}', f'v_mfma_f32_32x32x16_bf16 {z}, {a}, {vr(WB + 16*s + 4*sg, 4)}, {z}'))
        ops.append((f'H{sg}', f'v_mfma_f32_32x32x16_bf16 {h}, {a}, {vr(WV + 16*s + 4*sg, 4)}, ' + ('0' if sg == 0 else h)))
    return ops

MF_POS = [int(x) for x in opt('mfpos', '4,8,12,16,20,24,28,32,37').split(',')]

def dma(buf):
    for i in range(4):
        I(f'v_and_or_b32 v{V_SO+i}, v{V_SO+i}, s{S_MSK}, v{V_DC + (i & 1)}')
    for i in range(4):
        I(f's_add_u32 m0, s{S_STG}, {buf*4096 + i*1024}')
        I('s_nop 0')
        I(f'buffer_load_dwordx4 v{V_SO+i}, s[{S_X}:{S_X+3}], 0 offen lds')

def half_A(lg, par, uo, with_tail):
    seq = valu_ops(0)
    if with_tail:
        t = tail_ops(1)
        seq = [t[0], t[1], seq[0], t[2], seq[1], t[3]] + seq[2:]
        shift = 0
    else:
        shift = 4
    mf = mfma_ops(1)
    ev = {}
    def at(pos, fn):
        ev.setdefault(max(pos - shift, 0), []).append(fn)
    vaa_prev, vaa_cur, vaa_nxt = V_VAA[par ^ 1], V_VAA[par], V_VAA[par ^ 1]
    nb = (par ^ 1) * 4096
    if with_tail:
        at(3, lambda: lg.need('R1a', 'R1b'))
        def w1():
            lg.op('W1a', f'ds_write_b32 v{vaa_prev}, v{V_M1} offset:128')
            lg.op('W1b', f'ds_write_b32 v{vaa_prev+1}, v{V_M1+1} offset:128')
        at(7, w1)
    def r1():
        lg.op('R1a', f'ds_read_b32 v{V_M1}, v{vaa_cur} offset:128')
        lg.op('R1b', f'ds_read_b32 v{V_M1+1}, v{vaa_cur+1} offset:128')
        lg.op('dP', f'ds_read_b64 v[{V_VAP}:{V_VAP+1}], v{V_PD} offset:{(uo+1)*128}')
        lg.op('dA', f'ds_read_b64 v[{vaa_nxt}:{vaa_nxt+1}], v{V_PD} offset:{(uo+1)*128 + DESCA - DESCP}')
    at(7, r1)
    for k, (tag, txt) in enumerate(mf):
        def f(tag=tag, txt=txt):
            if tag == 'Z5':
                lg.need('P1a', 'P1b')
            I(txt)
        at(MF_POS[k], f)
    at(MF_POS[0] + 4, lambda: lg.op('e', f'ds_read_b64 v[{A5}:{A5+1}], v{V_PE} offset:{(uo+1)*64}'))
    def va():
        lg.need('dP', 'dA')
        I(f'v_add_u32 v{V_VAP}, v{V_VAP}, v{V_CH4}')
        I(f'v_add_u32 v{V_VAP+1}, v{V_VAP+1}, v{V_CH4}')
        I(f'v_add_u32 v{vaa_nxt}, v{vaa_nxt}, v{V_CH4}')
        I(f'v_add_u32 v{vaa_nxt+1}, v{vaa_nxt+1}, v{V_CH4}')
        lg.op('P0a', f'ds_read_b32 v{B5[0]+2}, v{V_VAP}')
        lg.op('P0b', f'ds_read_b32 v{B5[0]+3}, v{V_VAP+1}')
    at(MF_POS[2] + 1, va)
    for sg in range(4):
        def f(sg=sg):
            if sg == 0:
                I('s_waitcnt vmcnt(4)')
            lg.op(f'A{sg}', f'ds_read_b128 {vr(AOP+4*sg,4)}, v{V_AR+sg} offset:{nb}')
            if sg == 0:
                lg.op('S', f'ds_read_b128 {vr(V_SO,4)}, v{V_PS} offset:{(uo+3)*32}')
        at(MF_POS[2 + 2 * sg] + 2, f)
    for i, op in enumerate(seq):
        for fn in ev.pop(i, []):
            fn()
        I(op)
    for k in sorted(ev):
        for fn in ev[k]:
            fn()

def half_B(lg, par, uo):
    seq = valu_ops(1)
    t = tail_ops(0)
    seq = [t[0], t[1], seq[0], t[2], seq[1], t[3]] + seq[2:]
    mf = mfma_ops(0)
    ev = {}
    def at(pos, fn):
        ev.setdefault(pos, []).append(fn)
    vaa_cur, vaa_nxt = V_VAA[par], V_VAA[par ^ 1]
    at(3, lambda: lg.need('R0a', 'R0b'))
    def w0():
        lg.op('W0a', f'ds_write_b32 v{vaa_cur}, v{V_M0}')
        lg.op('W0b', f'ds_write_b32 v{vaa_cur+1}, v{V_M0+1}')
        lg.op('R0a', f'ds_read_b32 v{V_M0}, v{vaa_nxt}')
        lg.op('R0b', f'ds_read_b32 v{V_M0+1}, v{vaa_nxt+1}')
        lg.op('P1a', f'ds_read_b32 v{B5[1]+2}, v{V_VAP} offset:128')
        lg.op('P1b', f'ds_read_b32 v{B5[1]+3}, v{V_VAP+1} offset:128')
    at(7, w0)
    for k, (tag, txt) in enumerate(mf):
        def f(tag=tag, txt=txt):
            if tag == 'Z5':
                lg.need('P0a', 'P0b', 'e')
            elif tag[0] == 'Z':
                lg.need('A' + tag[1])
            I(txt)
        at(MF_POS[k], f)
    def d():
        lg.need('S', 'A3')
        dma(par ^ 1)
    at(MF_POS[7] + 1, d)
    for i, op in enumerate(seq):
        for fn in ev.pop(i, []):
            fn()
        I(op)
    for k in sorted(ev):
        for fn in ev[k]:
            fn()

def gen_k2():
    global V_PROF
    V_PROF = 252
    e('.globl egc_main_kernel')
    e('.p2align 8')
    e('.type egc_main_kernel,@function')
    L('egc_main_kernel')
    I('s_cmp_ge_u32 s2, %d' % NBINS)
    I('s_cbranch_scc1 K2_END')
    I('s_load_dwordx2 s[4:5], s[0:1], 0')
    I('s_load_dwordx2 s[6:7], s[0:1], 56')
    I('s_load_dwordx2 s[8:9], s[0:1], 72')
    if PROF:
        I(f'v_mov_b32 v{V_PROF}, 0')
        I('s_memrealtime s[98:99]')
        I('s_waitcnt lgkmcnt(0)')
        I(f'v_writelane_b32 v{V_PROF}, s98, 14')
    stamp(0)
    I(f'v_lshrrev_b32 v{V_X}, 6, v{V_TID}')
    I(f'v_and_b32 v{V_LANE}, 63, v{V_TID}')
    I(f'v_readfirstlane_b32 s{S_W}, v{V_X}')
    I(f'v_lshrrev_b32 v{V_X+1}, 4, v{V_LANE}')
    I(f'v_lshl_add_u32 v{V_X+1}, v{V_X}, 5, v{V_X+1}')
    I(f's_lshl_b32 s{S_T}, s2, 2')
    I(f'v_lshlrev_b32 v{V_X+2}, 10, v{V_X+1}')
    I(f'v_add_u32 v{V_X+2}, s{S_T}, v{V_X+2}')
    for r in range(8):
        I(f'v_add_u32 v{V_RA+r}, {r*4096}, v{V_X+2}')
    I('s_waitcnt lgkmcnt(0)')
    srd_off(S_TAB, 8, 9, '0x%x' % WS_TAB, NCH * 1024)
    for r in range(8):
        I(f'buffer_load_dword v{V_TAB+r}, v{V_RA+r}, s[{S_TAB}:{S_TAB+3}], 0 offen')
    srd(S_X, 4, 5, N_NODES * 128)
    srd_off(S_IMG, 8, 9, '0x%x' % WS_IMG, IMG_BLOCKS * 1024)
    srd(S_REC, 8, 9, NCH * CHB)
    srd(S_OUT, 6, 7, N_NODES * 128)
    I(f'v_lshrrev_b32 v{V_X+3}, 3, v{V_TID}')
    I(f'v_bfe_u32 v{V_X+4}, v{V_X+3}, 1, 3')
    I(f'v_and_b32 v{V_X+5}, 7, v{V_TID}')
    I(f'v_xor_b32 v{V_X+4}, v{V_X+4}, v{V_X+5}')
    I(f'v_lshlrev_b32 v{V_X+4}, 4, v{V_X+4}')
    I(f'v_lshl_add_u32 v{V_X+4}, v{V_X+3}, 7, v{V_X+4}')
    I(f's_mul_i32 s{S_T+1}, s2, {NB*128}')
    I(f's_lshl_b32 s{S_T+2}, s{S_W}, 10')
    I(f's_add_u32 m0, s{S_T+2}, {XTMP}')
    I(f'v_add_u32 v{V_X+4}, s{S_T+1}, v{V_X+4}')
    I(f'v_lshlrev_b32 v{V_X+5}, 4, v{V_LANE}')
    I(f'buffer_load_dwordx4 v{V_X+4}, s[{S_X}:{S_X+3}], 0 offen lds')
    for k in range(3):
        I(f's_add_u32 s{S_T+3}, s{S_T+2}, {k*8192}')
        I(f's_add_u32 m0, s{S_T+3}, {WTMP}')
        I('s_nop 0')
        I(f'buffer_load_dwordx4 v{V_X+5}, s[{S_IMG}:{S_IMG+3}], s{S_T+3} offen lds')
    I(f's_lshr_b32 s{S_T+3}, s{S_W}, 1')
    I(f's_lshl_b32 s{S_T+3}, s{S_T+3}, 12')
    I(f's_add_u32 s{S_T+3}, s{S_T+3}, {17*1024}')
    for sg in range(4):
        I(f'buffer_load_dwordx4 {vr(V_SW+4*sg,4)}, v{V_X+5}, s[{S_IMG}:{S_IMG+3}], s{S_T+3} offen offset:{sg*1024}')
    I(f's_mov_b32 s{S_C}, 0x{f2u(2.0**-KEXP):x}')
    I(f's_mov_b32 s{S_C+1}, 0x{f2u(2.0**-KEXP):x}')
    I(f's_mov_b32 s{S_MSK}, 0x3fffff')
    I(f's_lshl_b32 s{S_STG}, s{S_W}, 13')
    I(f's_add_u32 s{S_STG}, s{S_STG}, {STG}')
    I(f's_mov_b32 s{S_JB}, 0')
    I(f's_mov_b32 s{S_WID}, 384')
    I(f's_mov_b32 s{S_FIRST}, 1')
    for r in range(8):
        I(f's_mov_b32 s{S_RO+r}, {r*4*CHB}')
    I(f'v_and_b32 v{V_TMP+4}, 15, v{V_LANE}')
    I(f'v_mul_u32_u24 v{V_TMP+4}, 12, v{V_TMP+4}')
    I(f'v_mul_u32_u24 v{V_TMP+5}, {CHB}, v{V_X+1}')
    I(f'v_add_u32 v{V_TMP+5}, v{V_TMP+5}, v{V_TMP+4}')
    I(f'v_and_b32 v{V_CH4}, 31, v{V_LANE}')
    I(f'v_lshlrev_b32 v{V_CH4}, 2, v{V_CH4}')
    I(f'v_bfe_u32 v{V_X+2}, v{V_LANE}, 4, 1')
    I(f'v_lshrrev_b32 v{V_X+3}, 5, v{V_LANE}')
    I(f'v_lshl_or_b32 v{V_X+2}, v{V_X+2}, 1, v{V_X+3}')
    I(f'v_and_b32 v{V_X+4}, 7, v{V_LANE}')
    I(f'v_xor_b32 v{V_X+2}, v{V_X+2}, v{V_X+4}')
    I(f'v_lshlrev_b32 v{V_DC}, 4, v{V_X+2}')
    I(f'v_xor_b32 v{V_DC+1}, 64, v{V_DC}')
    I(f'v_bfe_u32 v{V_X+2}, v{V_LANE}, 0, 1')
    I(f'v_bfe_u32 v{V_X+4}, v{V_LANE}, 1, 1')
    I(f'v_bfe_u32 v{V_X+5}, v{V_LANE}, 2, 1')
    I(f'v_bfe_u32 v{V_X+6}, v{V_LANE}, 3, 1')
    I(f'v_bfe_u32 v{V_X+7}, v{V_LANE}, 4, 1')
    I(f'v_lshl_or_b32 v{V_AR}, v{V_X+7}, 1, v{V_X+4}')
    I(f'v_lshl_or_b32 v{V_AR}, v{V_AR}, 1, v{V_X+5}')
    I(f'v_lshl_or_b32 v{V_AR}, v{V_AR}, 1, v{V_X+2}')
    I(f'v_lshl_or_b32 v{V_AR}, v{V_AR}, 1, v{V_X+6}')
    I(f'v_lshl_or_b32 v{V_AR+1}, v{V_X+4}, 1, v{V_X+2}')
    I(f'v_lshl_or_b32 v{V_AR+1}, v{V_AR+1}, 1, v{V_X+5}')
    I(f'v_xor_b32 v{V_AR+1}, v{V_AR+1}, v{V_X+3}')
    I(f'v_lshlrev_b32 v{V_AR+1}, 4, v{V_AR+1}')
    I(f'v_lshl_or_b32 v{V_AR}, v{V_AR}, 7, v{V_AR+1}')
    for sg in (3, 2, 1):
        I(f'v_xor_b32 v{V_AR+sg}, {sg*32}, v{V_AR}')
    for sg in range(4):
        I(f'v_add_u32 v{V_AR+sg}, s{S_STG}, v{V_AR+sg}')
    I(f'v_xor_b32 v{V_X+4}, v{V_X+5}, v{V_X+3}')
    I(f'v_lshl_or_b32 v{V_X+4}, v{V_X+4}, 1, v{V_X+2}')
    I(f'v_mov_b32 v{V_X+6}, 0x3f803f80')
    I(f'v_cmp_eq_u32 vcc, 0, v{V_X+4}')
    I('s_nop 1')
    I(f'v_cndmask_b32 v{A5+2}, 0, v{V_X+6}, vcc')
    I(f'v_cmp_eq_u32 vcc, 1, v{V_X+4}')
    I('s_nop 1')
    I(f'v_cndmask_b32 v{A5+3}, 0, v{V_X+6}, vcc')
    prefill()
    stamp(1)
    I('s_waitcnt vmcnt(8)')
    stamp(2)
    L('K2_PASS')
    I(f'v_add_u32 v{V_X}, s{S_JB}, v{V_TMP+4}')
    I(f'v_add_u32 v{V_X+1}, 192, v{V_X}')
    I(f'v_add_u32 v{V_X+2}, s{S_JB}, v{V_TMP+5}')
    I(f's_add_u32 s{S_T}, s{S_JB}, s{S_WID}')
    I(f's_mov_b64 s[{S_T+2}:{S_T+3}], 0')
    I(f's_cmp_eq_u32 s{S_WID}, 384')
    I(f's_cselect_b64 s[{S_T+4}:{S_T+5}], -1, 0')
    for r in range(8):
        I(f'v_and_b32 v{V_RA+r}, 0xffff, v{V_TAB+r}')
        I(f'v_lshrrev_b32 v{V_X+3}, 16, v{V_TAB+r}')
        I(f'v_add_u32 v{V_RA+r}, v{V_RA+r}, v{V_X+2}')
        I(f'v_cmp_lt_u32 s[{S_MASK+4*r}:{S_MASK+4*r+1}], v{V_X}, v{V_X+3}')
        I(f'v_cmp_lt_u32 vcc, v{V_X+1}, v{V_X+3}')
        I(f's_and_b64 s[{S_MASK+4*r+2}:{S_MASK+4*r+3}], vcc, s[{S_T+4}:{S_T+5}]')
        I(f'v_cmp_lt_u32 vcc, s{S_T}, v{V_X+3}')
        I(f's_or_b64 s[{S_T+2}:{S_T+3}], s[{S_T+2}:{S_T+3}], vcc')
        I(f's_mov_b64 exec, s[{S_MASK+4*r}:{S_MASK+4*r+1}]')
        I(f'buffer_load_dwordx3 {vr(V_REC+8*r,3)}, v{V_RA+r}, s[{S_REC}:{S_REC+3}], s{S_RO+r} offen')
        I('s_mov_b64 exec, -1')
    for r in range(8):
        I(f's_mov_b64 exec, s[{S_MASK+4*r+2}:{S_MASK+4*r+3}]')
        I(f'buffer_load_dwordx3 {vr(V_REC+8*r+4,3)}, v{V_RA+r}, s[{S_REC}:{S_REC+3}], s{S_RO+r} offen offset:192')
    I('s_mov_b64 exec, -1')
    stamp(3)
    I('s_waitcnt vmcnt(16) lgkmcnt(0)')
    stamp(4)
    I('s_barrier')
    stamp(5)
    I(f's_cmp_eq_u64 s[{S_T+2}:{S_T+3}], 0')
    I('s_cbranch_scc1 K2_NOMORE')
    I(f'v_mov_b32 v{V_X}, {MISC}')
    I(f'v_mov_b32 v{V_X+1}, 1')
    I(f'ds_write_b32 v{V_X}, v{V_X+1}')
    L('K2_NOMORE')
    I(f's_cmp_eq_u32 s{S_FIRST}, 0')
    I('s_cbranch_scc1 K2_NOTFIRST')
    I(f's_mov_b32 s{S_FIRST}, 0')
    I(f'v_lshlrev_b32 v{V_X}, 4, v{V_LANE}')
    I(f'v_add_u32 v{V_X}, {WTMP}, v{V_X}')
    I(f'v_and_b32 v{V_X+1}, 31, v{V_LANE}')
    I(f's_and_b32 s{S_T}, s{S_W}, 1')
    I(f's_lshl_b32 s{S_T+1}, s{S_T}, 12')
    I(f's_add_u32 s{S_T+1}, s{S_T+1}, {XTMP}')
    I(f'v_bfe_u32 v{V_X+2}, v{V_LANE}, 1, 3')
    I(f'v_lshrrev_b32 v{V_X+3}, 5, v{V_LANE}')
    I(f'v_xor_b32 v{V_X+2}, v{V_X+2}, v{V_X+3}')
    I(f'v_lshlrev_b32 v{V_X+2}, 4, v{V_X+2}')
    I(f'v_lshl_or_b32 v{V_X+2}, v{V_X+1}, 7, v{V_X+2}')
    for sg in range(4):
        I(f'v_xor_b32 v{V_X+4}, {sg*32}, v{V_X+2}')
        I(f'v_add_u32 v{V_X+4}, s{S_T+1}, v{V_X+4}')
        I(f'ds_read_b128 {vr(AOP+4*sg,4)}, v{V_X+4}')
    for k in range(8):
        I(f'ds_read_b128 {vr(WB+4*k,4)}, v{V_X} offset:{k*1024}')
    I('s_waitcnt lgkmcnt(8)')
    for sg in range(4):
        I(f'v_mfma_f32_32x32x16_bf16 {vr(V_SD,16)}, {vr(AOP+4*sg,4)}, {vr(V_SW+4*sg,4)}, ' + ('0' if sg == 0 else vr(V_SD, 16)))
    for k in range(8):
        I(f'ds_read_b128 {vr(WV+4*k,4)}, v{V_X} offset:{(8+k)*1024}')
        if k == 3:
            I('s_waitcnt lgkmcnt(4)')
    I(f'ds_read_b64 {vr(B5[0],2)}, v{V_X} offset:{16*1024}')
    I(f'ds_read_b64 {vr(B5[1],2)}, v{V_X} offset:{16*1024+8}')
    I(f's_bfe_u32 s{S_T+1}, s{S_W}, 0x10001')
    I(f's_lshl_b32 s{S_T+1}, s{S_T+1}, 7')
    I(f's_lshl_b32 s{S_T+2}, s{S_T}, 13')
    I(f's_add_u32 s{S_T+1}, s{S_T+1}, s{S_T+2}')
    I(f'v_lshl_add_u32 v{V_X+4}, v{V_X+3}, 10, v{V_CH4}')
    I(f'v_add_u32 v{V_X+4}, s{S_T+1}, v{V_X+4}')
    I('s_nop 7')
    I(f's_cmp_ge_u32 s{S_W}, 4')
    I('s_cbranch_scc1 K2_UINIT')
    I(f's_mov_b32 s{S_T+2}, 0x{f2u(-LOG2E):x}')
    I(f'v_mov_b32 v{V_X+5}, 0x{f2u(-float(KEXP)):x}')
    for i in range(16):
        I(f'v_fma_f32 v{V_SD+i}, v{V_SD+i}, s{S_T+2}, v{V_X+5}')
    for i in range(0, 16, 2):
        I(f'v_cvt_pk_bf16_f32 v{V_X+6}, v{V_SD+i}, v{V_SD+i+1}')
        I(f'v_lshlrev_b32 v{V_X+7}, 16, v{V_X+6}')
        I(f'v_and_b32 v{V_X+6}, 0xffff0000, v{V_X+6}')
        I(f'v_sub_f32 v{V_SD+i}, v{V_SD+i}, v{V_X+7}')
        I(f'v_sub_f32 v{V_SD+i+1}, v{V_SD+i+1}, v{V_X+6}')
        I(f'v_cvt_pk_bf16_f32 v{V_SD+i}, v{V_X+7}, v{V_SD+i}')
        I(f'v_cvt_pk_bf16_f32 v{V_SD+i+1}, v{V_X+6}, v{V_SD+i+1}')
    I('s_branch K2_SWRITE')
    L('K2_UINIT')
    I(f's_mov_b32 s{S_T+2}, 0x{f2u(2.0**(SV+KEXP)):x}')
    I(f'v_add_u32 v{V_X+4}, {ACC}, v{V_X+4}')
    for i in range(16):
        I(f'v_mul_f32 v{V_SD+i}, s{S_T+2}, v{V_SD+i}')
    L('K2_SWRITE')
    for i in range(8):
        I(f'ds_write_b32 v{V_X+4}, v{V_SD+i} offset:{((i&3)+8*(i>>2))*256}')
    I(f's_cmp_eq_u32 s{S_T}, 0')
    I('s_cbranch_scc1 K2_SW0')
    I('s_mov_b64 exec, 0xffffffff')
    I(f'ds_write_b32 v{V_X+4}, v{V_SD+8} offset:{16*256}')
    I('s_mov_b64 exec, -1')
    I('s_branch K2_NOTFIRST')
    L('K2_SW0')
    for i in range(8, 16):
        I(f'ds_write_b32 v{V_X+4}, v{V_SD+i} offset:{((i&3)+8*(i>>2))*256}')
    L('K2_NOTFIRST')
    stamp(6)
    I(f'v_mov_b32 v{V_X}, 4')
    for r in range(8):
        I(f's_waitcnt vmcnt({15-r})')
        I(f's_mov_b64 exec, s[{S_MASK+4*r}:{S_MASK+4*r+1}]')
        I(f'v_lshrrev_b32 v{V_RA+r}, 24, v{V_REC+8*r+2}')
        I(f'ds_add_rtn_u32 v{V_REC+8*r+3}, v{V_RA+r}, v{V_X} offset:{CNT}')
    I('s_waitcnt vmcnt(0)')
    for r in range(8):
        I(f's_mov_b64 exec, s[{S_MASK+4*r+2}:{S_MASK+4*r+3}]')
        I(f's_cbranch_execz K2_C{r}')
        I(f'v_lshrrev_b32 v{V_X+1}, 24, v{V_REC+8*r+6}')
        I(f'ds_add_rtn_u32 v{V_REC+8*r+7}, v{V_X+1}, v{V_X} offset:{CNT}')
        L(f'K2_C{r}')
    I('s_mov_b64 exec, -1')
    I('s_waitcnt lgkmcnt(0)')
    I('s_barrier')
    stamp(7)
    I(f'v_lshlrev_b32 v{V_X}, 2, v{V_LANE}')
    I(f'v_mov_b32 v{V_X+1}, {MISC}')
    I(f'ds_read_b32 v{V_X+2}, v{V_X} offset:{CNT}')
    I(f'ds_read_b32 v{V_X+1}, v{V_X+1}')
    I('s_waitcnt lgkmcnt(1)')
    I(f'v_add_u32 v{V_X+2}, 28, v{V_X+2}')
    I(f'v_and_b32 v{V_X+2}, 0xffffffe0, v{V_X+2}')
    I(f'v_mov_b32 v{V_X+3}, v{V_X+2}')
    wave_scan(V_X + 3)
    I(f'v_readlane_b32 s{S_T}, v{V_X+3}, 63')
    I(f'v_sub_u32 v{V_X+3}, v{V_X+3}, v{V_X+2}')
    I(f'ds_write_b32 v{V_X}, v{V_X+3} offset:{BASET}')
    I('s_waitcnt lgkmcnt(1)')
    I(f'v_readfirstlane_b32 s{S_MORE}, v{V_X+1}')
    I(f's_lshr_b32 s{S_T}, s{S_T}, 5')
    I(f's_cmp_eq_u32 s{S_WID}, 384')
    I(f's_cselect_b32 s{S_T+1}, {MAXG}, -1')
    I(f's_cmp_gt_u32 s{S_T}, s{S_T+1}')
    I('s_cbranch_scc1 K2_OVERFLOW')
    I(f's_add_u32 s{S_L}, s{S_T}, 31')
    I(f's_lshr_b32 s{S_L}, s{S_L}, 5')
    for r in range(8):
        I(f's_mov_b64 exec, s[{S_MASK+4*r}:{S_MASK+4*r+1}]')
        I(f'ds_read_b32 v{V_RA+r}, v{V_RA+r} offset:{BASET}')
    I('s_mov_b64 exec, -1')
    I(f'v_cvt_f32_u32 v{V_X+4}, s{S_L}')
    I(f'v_rcp_f32 v{V_X+4}, v{V_X+4}')
    I(f'v_lshrrev_b32 v{V_X+3}, 5, v{V_X+3}')
    I(f'v_mul_f32 v{V_X+4}, 0x47800000, v{V_X+4}')
    I(f'v_cvt_u32_f32 v{V_X+4}, v{V_X+4}')
    I(f'v_lshrrev_b32 v{V_X+2}, 5, v{V_X+2}')
    I(f'v_add_u32 v{V_X+4}, 2, v{V_X+4}')
    for r in range(8):
        I(f's_waitcnt lgkmcnt({7 - r + 2*r})' if 7 + r <= 15 else 's_nop 0')
        I(f's_mov_b64 exec, s[{S_MASK+4*r}:{S_MASK+4*r+1}]')
        I(f'v_add_u32 v{V_RA+r}, v{V_RA+r}, v{V_REC+8*r+3}')
        I(f'v_add_u32 v{V_REC+8*r+3}, {LS}, v{V_RA+r}')
        I(f'v_add_u32 v{V_RA+r}, v{V_RA+r}, v{V_RA+r}')
        I(f'ds_write_b32 v{V_REC+8*r+3}, v{V_REC+8*r+2}')
        I(f'ds_write_b64 v{V_RA+r}, v[{V_REC+8*r}:{V_REC+8*r+1}] offset:{LE}')
    for r in range(8):
        I(f's_mov_b64 exec, s[{S_MASK+4*r+2}:{S_MASK+4*r+3}]')
        I(f's_cbranch_execz K2_P{r}')
        I(f'v_lshrrev_b32 v{V_X+1}, 24, v{V_REC+8*r+6}')
        I(f'ds_read_b32 v{V_X+1}, v{V_X+1} offset:{BASET}')
        I('s_waitcnt lgkmcnt(0)')
        I(f'v_add_u32 v{V_X+1}, v{V_X+1}, v{V_REC+8*r+7}')
        I(f'v_add_u32 v{V_REC+8*r+7}, {LS}, v{V_X+1}')
        I(f'v_add_u32 v{V_X+1}, v{V_X+1}, v{V_X+1}')
        I(f'ds_write_b32 v{V_REC+8*r+7}, v{V_REC+8*r+6}')
        I(f'ds_write_b64 v{V_X+1}, v[{V_REC+8*r+4}:{V_REC+8*r+5}] offset:{LE}')
        L(f'K2_P{r}')
    I('s_mov_b64 exec, -1')
    I(f'v_mul_u32_u24 v{V_X+5}, v{V_X+3}, v{V_X+4}')
    I(f'v_lshrrev_b32 v{V_X+5}, 16, v{V_X+5}')
    I(f'v_max_u32 v{V_X+6}, 1, v{V_X+2}')
    I(f'v_add3_u32 v{V_X+6}, v{V_X+6}, v{V_X+3}, -1')
    I(f'v_mul_u32_u24 v{V_X+6}, v{V_X+6}, v{V_X+4}')
    I(f'v_lshrrev_b32 v{V_X+6}, 16, v{V_X+6}')
    I(f'v_lshlrev_b32 v{V_X+7}, 3, v{V_LANE}')
    I(f'v_mov_b32 v{V_TMP}, v{V_X+5}')
    I(f'v_mov_b32 v{V_TMP+1}, v{V_X+6}')
    I(f'ds_write_b64 v{V_X+7}, v[{V_TMP}:{V_TMP+1}] offset:{NINFO}')
    I(f'v_lshlrev_b32 v{V_X+7}, 8, v{V_LANE}')
    I(f's_mov_b32 s{S_T}, s{S_W}')
    I(f's_sub_u32 s{S_T+1}, 0, s{S_L}')
    L('K2_DLOOP')
    I(f'v_cmp_lt_u32 vcc, s{S_T}, v{V_X+2}')
    I('s_and_b64 exec, exec, vcc')
    I('s_cbranch_execz K2_DEND')
    I(f'v_add_u32 v{V_TMP}, s{S_T}, v{V_X+3}')
    I(f'v_mul_u32_u24 v{V_TMP+1}, v{V_TMP}, v{V_X+4}')
    I(f'v_lshrrev_b32 v{V_TMP+1}, 16, v{V_TMP+1}')
    I(f'v_mad_i32_i24 v{V_TMP}, v{V_TMP+1}, s{S_T+1}, v{V_TMP}')
    I(f'v_lshl_add_u32 v{V_TMP}, v{V_TMP}, 5, v{V_TMP+1}')
    I(f'v_lshlrev_b32 v{V_TMP}, 2, v{V_TMP}')
    I(f'v_cmp_eq_u32 vcc, v{V_TMP+1}, v{V_X+5}')
    I(f'v_lshlrev_b32 v{V_TMP+1}, 8, v{V_TMP+1}')
    I(f'v_add_u32 v{V_TMP+1}, {NB*256}, v{V_TMP+1}')
    I(f'v_cndmask_b32 v{V_TMP+1}, v{V_TMP+1}, v{V_X+7}, vcc')
    I(f'v_add_u32 v{V_TMP+1}, {ACC}, v{V_TMP+1}')
    I(f'v_add_u32 v{V_TMP+2}, {DESCP}, v{V_TMP}')
    I(f'ds_write_b32 v{V_TMP+2}, v{V_X+7}')
    I(f'ds_write_b32 v{V_TMP+2}, v{V_TMP+1} offset:{DESCA-DESCP}')
    I(f's_add_u32 s{S_T}, s{S_T}, 8')
    I('s_branch K2_DLOOP')
    L('K2_DEND')
    I('s_mov_b64 exec, -1')
    I(f's_lshl_b32 s{S_T}, s{S_W}, 2')
    I(f's_lshl_b32 s{S_T+1}, s{S_L}, 5')
    I(f'v_lshrrev_b32 v{V_X}, 4, v{V_LANE}')
    I(f'v_add_u32 v{V_X}, s{S_T}, v{V_X}')
    I(f'v_mul_u32_u24 v{V_PS}, s{S_T+1}, v{V_X}')
    I(f'v_bfe_u32 v{V_X+1}, v{V_LANE}, 3, 1')
    I(f'v_lshl_add_u32 v{V_PS}, v{V_X+1}, 4, v{V_PS}')
    I(f'v_add_u32 v{V_PS}, {LS}, v{V_PS}')
    I(f'v_bfe_u32 v{V_X}, v{V_LANE}, 2, 1')
    I(f'v_and_b32 v{V_X+2}, 1, v{V_LANE}')
    I(f'v_lshl_or_b32 v{V_X}, v{V_X}, 1, v{V_X+2}')
    I(f'v_add_u32 v{V_X}, s{S_T}, v{V_X}')
    I(f's_lshl_b32 s{S_T+1}, s{S_L}, 6')
    I(f'v_mul_u32_u24 v{V_PE}, s{S_T+1}, v{V_X}')
    I(f'v_bfe_u32 v{V_X+2}, v{V_LANE}, 4, 1')
    I(f'v_lshl_or_b32 v{V_X+1}, v{V_X+1}, 1, v{V_X+2}')
    I(f'v_bfe_u32 v{V_X+2}, v{V_LANE}, 1, 1')
    I(f'v_lshl_or_b32 v{V_X+1}, v{V_X+1}, 1, v{V_X+2}')
    I(f'v_lshl_add_u32 v{V_PE}, v{V_X+1}, 3, v{V_PE}')
    I(f'v_add_u32 v{V_PE}, {LE}, v{V_PE}')
    I(f'v_lshrrev_b32 v{V_X}, 5, v{V_LANE}')
    I(f'v_lshlrev_b32 v{V_X}, 3, v{V_X}')
    I(f's_lshl_b32 s{S_T}, s{S_W}, 4')
    I(f's_add_u32 s{S_T}, s{S_T}, {DESCP}')
    I(f'v_add_u32 v{V_PD}, s{S_T}, v{V_X}')
    I('s_waitcnt lgkmcnt(0)')
    I('s_barrier')
    stamp(8)
    I(f's_cmp_eq_u32 s{S_L}, 0')
    I('s_cbranch_scc1 K2_FOLD')
    lg = Lg()
    lg.op('S', f'ds_read_b128 {vr(V_SO,4)}, v{V_PS}')
    lg.op('S1', f'ds_read_b128 {vr(V_X,4)}, v{V_PS} offset:32')
    lg.op('dP', f'ds_read_b64 v[{V_VAP}:{V_VAP+1}], v{V_PD}')
    lg.op('dA', f'ds_read_b64 v[{V_VAA[0]}:{V_VAA[0]+1}], v{V_PD} offset:{DESCA-DESCP}')
    lg.op('e', f'ds_read_b64 v[{A5}:{A5+1}], v{V_PE}')
    lg.need('S')
    dma(0)
    lg.need('S1')
    for i in range(4):
        I(f'v_mov_b32 v{V_SO+i}, v{V_X+i}')
    dma(1)
    lg.op('S', f'ds_read_b128 {vr(V_SO,4)}, v{V_PS} offset:64')
    lg.need('dP', 'dA')
    I(f'v_add_u32 v{V_VAP}, v{V_VAP}, v{V_CH4}')
    I(f'v_add_u32 v{V_VAP+1}, v{V_VAP+1}, v{V_CH4}')
    I(f'v_add_u32 v{V_VAA[0]}, v{V_VAA[0]}, v{V_CH4}')
    I(f'v_add_u32 v{V_VAA[0]+1}, v{V_VAA[0]+1}, v{V_CH4}')
    lg.op('P0a', f'ds_read_b32 v{B5[0]+2}, v{V_VAP}')
    lg.op('P0b', f'ds_read_b32 v{B5[0]+3}, v{V_VAP+1}')
    lg.op('P1a', f'ds_read_b32 v{B5[1]+2}, v{V_VAP} offset:128')
    lg.op('P1b', f'ds_read_b32 v{B5[1]+3}, v{V_VAP+1} offset:128')
    lg.op('R0a', f'ds_read_b32 v{V_M0}, v{V_VAA[0]}')
    lg.op('R0b', f'ds_read_b32 v{V_M0+1}, v{V_VAA[0]+1}')
    I(f's_mov_b32 s{S_CNT}, s{S_L}')
    I('s_waitcnt vmcnt(4)')
    for sg in range(4):
        lg.op(f'A{sg}', f'ds_read_b128 {vr(AOP+4*sg,4)}, v{V_AR+sg}')
    for tag, txt in mfma_ops(0):
        if tag == 'Z5':
            lg.need('P0a', 'P0b', 'e')
        elif tag[0] == 'Z':
            lg.need('A' + tag[1])
        I(txt)
    lg.need('S', 'A3')
    dma(0)
    I('s_nop 3')
    assert not lg.q, lg.q
    stamp(9)
    half_A(lg, 0, 0, False)
    state0 = list(lg.q)
    def loop_body():
        half_B(lg, 0, 0)
        I(f's_sub_u32 s{S_CNT}, s{S_CNT}, 1')
        I(f's_cmp_eq_u32 s{S_CNT}, 0')
        I('s_cbranch_scc1 K2_FIN0')
        half_A(lg, 1, 1, True)
        half_B(lg, 1, 1)
        I(f's_sub_u32 s{S_CNT}, s{S_CNT}, 1')
        I(f's_cmp_eq_u32 s{S_CNT}, 0')
        I('s_cbranch_scc1 K2_FIN1')
        half_A(lg, 0, 2, True)
        I(f'v_add_u32 v{V_PS}, 64, v{V_PS}')
        I(f'v_add_u32 v{V_PE}, 128, v{V_PE}')
        I(f'v_add_u32 v{V_PD}, 256, v{V_PD}')
        I('s_branch K2_LOOP')
    mark = len(out)
    loop_body()
    del out[mark:]
    qb = list(lg.q)
    n = min(len(qb), len(state0))
    assert qb[len(qb)-n:] == state0[len(state0)-n:], (state0, qb)
    lg.q = list(qb if len(qb) >= len(state0) else state0)
    e('.p2align 3')
    L('K2_LOOP')
    loop_body()
    assert lg.q == qb, (lg.q, qb)
    print('loop entry queue', state0, 'back edge queue', qb, file=sys.stderr)
    for p in range(2):
        L(f'K2_FIN{p}')
        t = tail_ops(1)
        I(t[0]); I(t[1])
        I('s_waitcnt lgkmcnt(0)')
        I(t[2]); I(t[3])
        I('s_nop 0')
        I(f'ds_write_b32 v{V_VAA[p]}, v{V_M1} offset:128')
        I(f'ds_write_b32 v{V_VAA[p]+1}, v{V_M1+1} offset:128')
        if p == 0:
            I('s_branch K2_FOLD')
    L('K2_FOLD')
    stamp(10)
    I('s_waitcnt vmcnt(0) lgkmcnt(0)')
    I('s_barrier')
    stamp(11)
    if PROF:
        I(f'v_writelane_b32 v{V_PROF}, s{S_L}, 13')
    I(f'v_lshrrev_b32 v{V_X}, 3, v{V_TID}')
    I(f'v_and_b32 v{V_X+1}, 7, v{V_TID}')
    I(f'v_lshlrev_b32 v{V_X+1}, 5, v{V_X+1}')
    I(f'v_lshl_add_u32 v{V_X+2}, v{V_X}, 8, v{V_X+1}')
    I(f'v_lshlrev_b32 v{V_X+3}, 3, v{V_X}')
    I(f's_mul_i32 s{S_T+4}, s2, {NB*128}')
    I(f'v_lshlrev_b32 v{V_X+6}, 4, v{V_TID}')
    I(f'v_add_u32 v{V_X+6}, s{S_T+4}, v{V_X+6}')
    I(f'v_mov_b32 v{V_X+7}, 0')
    I(f'v_cmp_gt_u32 vcc, {NB*8}, v{V_TID}')
    I(f's_and_saveexec_b64 s[{S_EX}:{S_EX+1}], vcc')
    I('s_cbranch_execz K2_FDONE')
    I(f'ds_read_b64 v[{V_X+4}:{V_X+5}], v{V_X+3} offset:{NINFO}')
    I(f'ds_read_b128 v[64:67], v{V_X+2} offset:{ACC}')
    I(f'ds_read_b128 v[68:71], v{V_X+2} offset:{ACC+16}')
    I(f's_mov_b64 s[{S_T}:{S_T+1}], exec')
    I('s_waitcnt lgkmcnt(0)')
    L('K2_FLOOP')
    I(f'v_cmp_lt_u32 vcc, v{V_X+4}, v{V_X+5}')
    I('s_and_b64 exec, exec, vcc')
    I('s_cbranch_execz K2_FLEND')
    I(f'v_add_u32 v{V_X+4}, 1, v{V_X+4}')
    I(f'v_lshl_add_u32 v{V_X+7}, v{V_X+4}, 8, v{V_X+1}')
    I(f'ds_read_b128 v[72:75], v{V_X+7} offset:{ZR}')
    I(f'ds_read_b128 v[76:79], v{V_X+7} offset:{ZR+16}')
    I('s_waitcnt lgkmcnt(0)')
    for k in range(8):
        I(f'v_add_f32 v{64+k}, v{64+k}, v{72+k}')
    I('s_branch K2_FLOOP')
    L('K2_FLEND')
    I(f's_mov_b64 exec, s[{S_T}:{S_T+1}]')
    I(f's_cmp_lg_u32 s{S_MORE}, 0')
    I('s_cbranch_scc1 K2_WB')
    I(f's_mov_b32 s{S_T+2}, 0x{f2u(2.0**-(SV+KEXP)):x}')
    I(f's_mov_b32 s{S_T+3}, 0x{f2u(-LOG2E):x}')
    for k in range(8):
        I(f'v_mul_f32 v{64+k}, s{S_T+2}, v{64+k}')
    for k in range(8):
        I(f'v_mul_f32 v{72+k}, s{S_T+3}, v{64+k}')
    for k in range(8):
        I(f'v_exp_f32 v{72+k}, v{72+k}')
    for k in range(8):
        I(f'v_add_f32 v{72+k}, 1.0, v{72+k}')
    for k in range(8):
        I(f'v_rcp_f32 v{72+k}, v{72+k}')
    for k in range(8):
        I(f'v_mul_f32 v{64+k}, v{64+k}, v{72+k}')
    for k in range(4):
        I(f'v_cvt_pk_bf16_f32 v{80+k}, v{64+2*k}, v{65+2*k}')
    I(f'buffer_store_dwordx4 v[80:83], v{V_X+6}, s[{S_OUT}:{S_OUT+3}], 0 offen')
    stamp(12)
    prof_store(8, 9, S_W, 0xC00000)
    I('s_endpgm')
    L('K2_WB')
    I(f'ds_write_b128 v{V_X+2}, v[64:67] offset:{ACC}')
    I(f'ds_write_b128 v{V_X+2}, v[68:71] offset:{ACC+16}')
    L('K2_FDONE')
    I(f's_mov_b64 exec, -1')
    I(f's_cmp_eq_u32 s{S_MORE}, 0')
    I('s_cbranch_scc1 K2_END')
    I(f's_add_u32 s{S_JB}, s{S_JB}, s{S_WID}')
    I('s_waitcnt lgkmcnt(0)')
    I('s_barrier')
    prefill()
    I('s_branch K2_PASS')
    L('K2_OVERFLOW')
    I(f's_mov_b32 s{S_WID}, 192')
    I('s_waitcnt lgkmcnt(0)')
    I('s_barrier')
    prefill()
    I('s_branch K2_PASS')
    L('K2_END')
    I('s_endpgm')

def kd(name, vgpr, sgpr):
    e(f'.amdhsa_kernel {name}')
    e(f'  .amdhsa_next_free_vgpr {vgpr}')
    e(f'  .amdhsa_next_free_sgpr {sgpr}')
    e(f'  .amdhsa_accum_offset {(vgpr + 3) // 4 * 4}')
    e('  .amdhsa_group_segment_fixed_size 0')
    e('  .amdhsa_kernarg_size 80')
    e('  .amdhsa_user_sgpr_count 2')
    e('  .amdhsa_user_sgpr_kernarg_segment_ptr 1')
    e('  .amdhsa_system_sgpr_workgroup_id_x 1')
    e('  .amdhsa_float_denorm_mode_32 %d' % opt('denorm', 3))
    e('.end_amdhsa_kernel')

hdr = open('standalone__edge_featured_mpnn_egc__graph.s.ref').read().split('\n')
for line in hdr:
    if line.startswith('; Override'):
        break
    e(line)
e(f'; @launch kernel=egc_bin_kernel grid=(256,1,1) block=({K1_THREADS},1,1) lds={K1_LDS}')
e(f'; @launch kernel=egc_main_kernel grid=({NBINS},1,1) block=(512,1,1) lds={K2_LDS}')
for _ in range(opt('nempty', 0)):
    e('; @launch kernel=egc_empty_kernel grid=(256,1,1) block=(64,1,1) lds=0')
e('.amdgcn_target "amdgcn-amd-amdhsa--gfx950"')
e('.text')
gen_k1()
gen_k2()
if opt('nempty', 0):
    e('.globl egc_empty_kernel')
    e('.p2align 8')
    e('.type egc_empty_kernel,@function')
    L('egc_empty_kernel')
    I('s_endpgm')
e('.section .rodata,"a"')
if opt('nempty', 0):
    e('.p2align 6')
    kd('egc_empty_kernel', 8, 16)
e('.p2align 6')
kd('egc_bin_kernel', 128 if PROF else 56, 102 if PROF else 48)
e('.p2align 6')
kd('egc_main_kernel', 256 if PROF else 252, 102 if PROF else 96)
open(sys.argv[1], 'w').write('\n'.join(out) + '\n')
```

```python
import sys, struct

OPT = dict(a.split('=') for a in sys.argv[2:] if '=' in a)
def opt(name, default):
    return type(default)(OPT.get(name, default))

KNAME = 'standalone__edge_featured_mpnn_egc__graph_kernel'
N_NODES = 12500
E_EDGES = 800000
NB = 49
NWG = 256
CH = 3136
WS_RW = 0
WS_RE = 0x00400000
WS_TAB = 0x00B00000
WS_NT = 0x00C00000
WS_PROF = 0x01000000
KEXP = 31
SV = 30
LOG2E = 1.4426950408889634
SC = opt('sc', 'sc1')
SC = (' ' + SC.replace('+', ' ')) if SC != 'none' else ''
LSC = opt('lsc', 'sc1')
LSC = (' ' + LSC.replace('+', ' ')) if LSC != 'none' else ''
GSC = opt('gsc', 'sc1')
GSC = (' ' + GSC.replace('+', ' ')) if GSC != 'none' else ''
ELD = opt('eld', 'none')
ELD = (' ' + ELD.replace('+', ' ')) if ELD != 'none' else ''

def f2u(x):
    return struct.unpack('<I', struct.pack('<f', x))[0]

out = []
def e(s=''):
    out.append(s)
def I(s):
    out.append('    ' + s)
def L(name):
    out.append(name + ':')
def vr(a, n):
    return f'v[{a}:{a+n-1}]' if n > 1 else f'v{a}'
def sr4(a):
    return f's[{a}:{a+3}]'
def sp(a):
    return f's[{a}:{a+1}]'
def p(r):
    return f'v[{r}:{r+1}]'

def srd(d, lo, hi, nrec):
    I(f's_mov_b32 s{d}, s{lo}')
    I(f's_mov_b32 s{d+1}, s{hi}')
    I(f's_mov_b32 s{d+2}, {nrec}')
    I(f's_mov_b32 s{d+3}, 0x00020000')

def srd_off(d, lo, hi, off, nrec):
    I(f's_add_u32 s{d}, s{lo}, {off}')
    I(f's_addc_u32 s{d+1}, s{hi}, 0')
    I(f's_mov_b32 s{d+2}, {nrec}')
    I(f's_mov_b32 s{d+3}, 0x00020000')

def wave_scan(v):
    for sh in (1, 2, 4, 8):
        I('s_nop 1')
        I(f'v_add_u32_dpp v{v}, v{v}, v{v} row_shr:{sh} row_mask:0xf bank_mask:0xf')
    I('s_nop 1')
    I(f'v_add_u32_dpp v{v}, v{v}, v{v} row_bcast:15 row_mask:0xa bank_mask:0xf')
    I('s_nop 1')
    I(f'v_add_u32_dpp v{v}, v{v}, v{v} row_bcast:31 row_mask:0xc bank_mask:0xf')
    I('s_nop 1')

LS = 0
ZR = 18688
LE = 18688
CNT = 56064
MISC = 56320
BASET = 56576
NINFO = 56832
HIST = 57344
HBASE = 58368
DESCP = 59392
EXTRA = 67840
DESCA = 84224
PT = 86784
ACCN = 99328
WRAW = 111872
WG_, WV_, WU_ = WRAW, WRAW + 17408, WRAW + 25600
XOWN = WRAW + 33792
LDS_BYTES = XOWN + 8192
STGW = WRAW
STGE = WRAW + CH * 4
NTI = 0
MAXG = 576
assert STGE + 2048 * 16 <= LDS_BYTES + 8192

V_TID, V_LANE = 0, 1
V_MA, V_MB = 2, 4
V_VAA = (6, 8)
V_VAP = 10
V_PS0, V_PS1, V_PE, V_PD, V_CH8, V_CHP = 12, 13, 14, 15, 16, 17
V_PROF = 18
V_TAB = 20
V_J4, V_CB4 = 24, 25
V_X = 26
V_T01D, V_T01N, V_T23D, V_T23N = 40, 42, 44, 46
B5 = (48, 52)
A5 = 56
V_TT = (60, 62)
G = (64, 80)
Z = 96
S = 112

S_XS, S_WS, S_DST, S_SRC, S_EA, S_RW, S_RE, S_TAB, S_NTS, S_NTG, S_OUT = 12, 16, 20, 24, 28, 32, 36, 40, 44, 48, 52
S_MASK = 56
S_W, S_L, S_CNT, S_JB, S_WID, S_MORE = 72, 73, 74, 75, 76, 77
S_C = 78
S_EX = 80
S_LDX = 82
S_T = 84
S_WSP = 94
S_DBG = 96
S_TAG, S_TAG2 = 100, 101
TAGM = 0xC003C003
TAGL = MISC + 64

NT2 = 2 if opt('touch', 0) else 0
LDXV = 0 if opt('noload', 0) else -1
PROF = opt('prof', 0)
def stamp(i):
    if not PROF:
        return
    I('s_memtime s[98:99]')
    I('s_waitcnt lgkmcnt(0)')
    I(f'v_writelane_b32 v{V_PROF}, s98, {i}')
def rstamp(i):
    if not PROF:
        return
    I('s_memrealtime s[98:99]')
    I('s_waitcnt lgkmcnt(0)')
    I(f'v_writelane_b32 v{V_PROF}, s98, {i}')
def prof_store():
    if not PROF:
        return
    rstamp(31)
    I('s_mov_b64 exec, 0xffffffff')
    I(f's_add_u32 s{S_T}, s{S_WSP}, 0x{WS_PROF:x}')
    I(f's_addc_u32 s{S_T+1}, s{S_WSP+1}, 0')
    I(f'v_mbcnt_lo_u32_b32 v{V_PROF+1}, -1, 0')
    I(f'v_lshlrev_b32 v{V_PROF+1}, 2, v{V_PROF+1}')
    I(f's_lshl_b32 s98, s2, 4')
    I(f's_add_u32 s98, s98, s{S_W}')
    I(f's_lshl_b32 s98, s98, 7')
    I(f'v_add_u32 v{V_PROF+1}, s98, v{V_PROF+1}')
    I(f'global_store_dword v{V_PROF+1}, v{V_PROF}, {sp(S_T)}')

class Lg:
    def __init__(self):
        self.q = []
    def op(self, tag, text):
        I(text)
        self.q.append(tag)
    def need(self, *tags):
        idx = -1
        for t in tags:
            for i in range(len(self.q) - 1, -1, -1):
                if self.q[i] == t:
                    idx = max(idx, i)
                    break
        if idx < 0:
            return
        n = len(self.q) - 1 - idx
        assert n <= 15, (tags, n)
        I(f's_waitcnt lgkmcnt({n})')
        self.q = self.q[idx + 1:]

X = V_X

def fill_zero():
    I(f'v_lshlrev_b32 v{X}, 4, v{V_TID}')
    I(f'v_add_u32 v{X+1}, {ZR}, v{X}')
    for k in range(4):
        I(f'v_mov_b32 v{X+2+k}, 0')
    for k in range(4):
        I(f'ds_write_b128 v{X+1}, v[{X+2}:{X+5}] offset:{k*16384}')
    I(f'v_and_b32 v{X+6}, 15, v{V_TID}')
    I(f'v_lshlrev_b32 v{X+6}, 10, v{X+6}')
    I(f'v_add_u32 v{X+6}, {EXTRA}, v{X+6}')
    for k in range(1, 4):
        I(f'v_add_u32 v{X+6+k}, {256*k}, v{X+6}')
    I(f'v_add_u32 v{X+1}, {DESCA}, v{X}')
    I(f'v_cmp_gt_u32 vcc, 160, v{V_TID}')
    I(f's_and_saveexec_b64 {sp(S_EX)}, vcc')
    I(f'ds_write_b128 v{X+1}, v[{X+6}:{X+9}]')
    I(f's_mov_b64 exec, {sp(S_EX)}')

def fill_words():
    I(f'v_lshlrev_b32 v{X}, 4, v{V_TID}')
    I(f'v_and_b32 v{X+2}, 7, v{V_TID}')
    I(f'v_lshlrev_b32 v{X+2}, 5, v{X+2}')
    I(f'v_add_u32 v{X+2}, {N_NODES*8}, v{X+2}')
    for k in range(1, 4):
        I(f'v_add_u32 v{X+2+k}, {8*k}, v{X+2}')
    I(f'ds_write_b128 v{X}, v[{X+2}:{X+5}] offset:{LS}')
    I(f'v_cmp_gt_u32 vcc, 144, v{V_TID}')
    I(f's_and_saveexec_b64 {sp(S_EX)}, vcc')
    I(f'ds_write_b128 v{X}, v[{X+2}:{X+5}] offset:{LS+16384}')
    I(f's_mov_b64 exec, {sp(S_EX)}')

def tail_ops(n):
    return [f'v_rcp_f32 v{V_T01D}, v{V_T01D}',
            f'v_rcp_f32 v{V_T01D+1}, v{V_T01D+1}',
            f'v_rcp_f32 v{V_T23D}, v{V_T23D}',
            f'v_rcp_f32 v{V_T23D+1}, v{V_T23D+1}',
            f'v_fmac_f32 v{V_MA+n}, v{V_T01N}, v{V_T01D}',
            f'v_fmac_f32 v{V_MB+n}, v{V_T01N+1}, v{V_T01D+1}',
            f'v_fmac_f32 v{V_MA+n}, v{V_T23N}, v{V_T23D}',
            f'v_fmac_f32 v{V_MB+n}, v{V_T23N+1}, v{V_T23D+1}']

def gload(n, i):
    return f'buffer_load_dword v{G[n]+i}, v{S + (i & 1) * 8 + (i >> 1)}, {sr4(S_NTG)}, 0 offen offset:{4*n}' + GSC

def s_reads(lg, uo):
    lg.op('S0', f'ds_read_b128 {vr(S,4)}, v{V_PS0} offset:{uo*32}')
    lg.op('S1', f'ds_read_b128 {vr(S+4,4)}, v{V_PS0} offset:{uo*32+16}')
    lg.op('S2', f'ds_read_b128 {vr(S+8,4)}, v{V_PS1} offset:{uo*32}')
    lg.op('S3', f'ds_read_b128 {vr(S+12,4)}, v{V_PS1} offset:{uo*32+16}')

def half(lg, n, par, uo, with_tail=True):
    g = G[n]
    I('s_waitcnt vmcnt(16)')
    if n == 0:
        lg.need('P0a', 'P0b', 'e')
    else:
        lg.need('P1a', 'P1b')
    I(f'v_mfma_f32_32x32x16_bf16 {vr(Z,16)}, {vr(A5,4)}, {vr(B5[n],4)}, {vr(g,16)}')
    t = tail_ops(n ^ 1)
    va_prev, va_cur, va_nxt = V_VAA[par ^ 1], V_VAA[par], V_VAA[par ^ 1]
    if with_tail:
        for op in t[:4]:
            I(op)
        if n == 1:
            lg.need('Ra', 'Rb')
        for op in t[4:]:
            I(op)
    else:
        I('s_nop 7')
    if n == 0:
        if with_tail:
            lg.op('Wa', f'ds_write_b64 v{va_prev}, {p(V_MA)}')
            lg.op('Wb', f'ds_write_b64 v{va_prev+1}, {p(V_MB)}')
        lg.op('Ra', f'ds_read_b64 {p(V_MA)}, v{va_cur}')
        lg.op('Rb', f'ds_read_b64 {p(V_MB)}, v{va_cur+1}')
        lg.op('dP', f'ds_read_b64 {p(V_VAP)}, v{V_PD} offset:{(uo+1)*256}')
        lg.op('dA', f'ds_read_b64 {p(va_nxt)}, v{V_PD} offset:{(uo+1)*256 + DESCA - DESCP}')
    else:
        lg.op('e', f'ds_read_b64 {p(A5)}, v{V_PE} offset:{(uo+1)*64}')
        lg.op('P1a', f'ds_read_b32 v{B5[1]+2}, v{V_VAP} offset:4')
        lg.op('P1b', f'ds_read_b32 v{B5[1]+3}, v{V_VAP+1} offset:4')
    sh = [f'v_lshlrev_b32 v{g+i}, 16, v{g+i}' for i in range(16)]
    ex = [f'v_exp_f32 v{Z+i}, v{Z+i} clamp' for i in range(16)]
    for op in sh[:4]:
        I(op)
    for i in range(12):
        I(ex[i])
        I(sh[4 + i])
        if n == 0 and i == 7:
            lg.need('dP', 'dA')
            I(f'v_add_u32 v{V_VAP}, v{V_VAP}, v{V_CHP}')
            I(f'v_add_u32 v{V_VAP+1}, v{V_VAP+1}, v{V_CHP}')
            I(f'v_add_u32 v{va_nxt}, v{va_nxt}, v{V_CH8}')
            I(f'v_add_u32 v{va_nxt+1}, v{va_nxt+1}, v{V_CH8}')
            lg.op('P0a', f'ds_read_b32 v{B5[0]+2}, v{V_VAP}')
            lg.op('P0b', f'ds_read_b32 v{B5[0]+3}, v{V_VAP+1}')
    for op in ex[12:]:
        I(op)
    for i in range(0, 16, 2):
        I(f'v_pk_add_f32 {p(Z+i)}, {p(Z+i)}, {sp(S_C)}')
    def T(k): return f'v_pk_mul_f32 {p(V_TT[k&1])}, {p(g+4*k)}, {p(Z+4*k+2)}'
    def DD(k): return f'v_pk_mul_f32 {p(Z+4*k+2)}, {p(Z+4*k)}, {p(Z+4*k+2)}'
    def NN(k): return f'v_pk_fma_f32 {p(Z+4*k)}, {p(g+4*k+2)}, {p(Z+4*k)}, {p(V_TT[k&1])}'
    for k0 in (0, 2):
        for op in (T(k0), T(k0 + 1), DD(k0), DD(k0 + 1), NN(k0), NN(k0 + 1)):
            I(op)
        if n == 0 and k0 == 0:
            lg.need('S0', 'S1', 'S2', 'S3')
        I(f's_mov_b64 exec, {sp(S_LDX)}')
        for i in range(4 * k0, 4 * k0 + 8):
            I(gload(n, i))
        I('s_mov_b64 exec, -1')
    if n == 1:
        s_reads(lg, uo + 2)
    I(f'v_pk_mul_f32 {p(V_T01N)}, {p(Z)}, {p(Z+6)}')
    I(f'v_pk_mul_f32 {p(V_T23N)}, {p(Z+8)}, {p(Z+14)}')
    I(f'v_pk_mul_f32 {p(V_T01D)}, {p(Z+2)}, {p(Z+6)}')
    I(f'v_pk_mul_f32 {p(V_T23D)}, {p(Z+10)}, {p(Z+14)}')
    I(f'v_pk_fma_f32 {p(V_T01N)}, {p(Z+4)}, {p(Z+2)}, {p(V_T01N)}')
    I(f'v_pk_fma_f32 {p(V_T23N)}, {p(Z+12)}, {p(Z+10)}, {p(V_T23N)}')

def prio(tag):
    pr = opt('prio', 0)
    if not pr:
        return
    th = {1: (4, 2, 1), 2: (5, 3, 1), 3: (3, 2, 1), 4: (6, 4, 2)}[pr]
    for lvl, t in zip((2, 1, 0), th):
        I(f's_cmp_eq_u32 s{S_CNT}, {t}')
        I(f's_cbranch_scc0 L_PR{tag}_{lvl}')
        I(f's_setprio {lvl}')
        L(f'L_PR{tag}_{lvl}')

def split_hilo(a, b, t0, t1):
    I(f'v_cvt_pk_bf16_f32 v{t0}, v{a}, v{b}')
    I(f'v_lshlrev_b32 v{t1}, 16, v{t0}')
    I(f'v_and_b32 v{t0}, 0xffff0000, v{t0}')
    I(f'v_sub_f32 v{a}, v{a}, v{t1}')
    I(f'v_sub_f32 v{b}, v{b}, v{t0}')
    I(f'v_cvt_pk_bf16_f32 v{a}, v{t1}, v{a}')
    I(f'v_cvt_pk_bf16_f32 v{b}, v{t0}, v{b}')

def gen():
    e(f'.globl {KNAME}')
    e('.p2align 8')
    e(f'.type {KNAME},@function')
    L(KNAME)
    I(f's_cmp_ge_u32 s2, {NWG}')
    I('s_cbranch_scc1 L_END')
    I('s_load_dwordx8 s[84:91], s[0:1], 0')
    if opt('xmap', 1):
        I('s_and_b32 s3, s2, 7')
        I('s_lshl_b32 s3, s3, 5')
        I('s_lshr_b32 s60, s2, 3')
        I('s_add_u32 s3, s3, s60')
    else:
        I('s_mov_b32 s3, s2')
    I('s_load_dwordx4 s[4:7], s[0:1], 32')
    I('s_load_dwordx4 s[8:11], s[0:1], 48')
    I('s_load_dwordx4 s[56:59], s[0:1], 64')
    if PROF:
        I(f'v_mov_b32 v{V_PROF}, 0')
    rstamp(30)
    stamp(0)
    I(f'v_lshrrev_b32 v{X}, 6, v{V_TID}')
    I(f'v_and_b32 v{V_LANE}, 63, v{V_TID}')
    I(f'v_readfirstlane_b32 s{S_W}, v{X}')
    I(f'v_lshlrev_b32 v{X+1}, 4, v{V_LANE}')
    I(f'v_lshrrev_b32 v{X+3}, 3, v{V_TID}')
    I(f'v_bfe_u32 v{X+4}, v{X+3}, 1, 3')
    I(f'v_and_b32 v{X+5}, 7, v{V_TID}')
    I(f'v_xor_b32 v{X+4}, v{X+4}, v{X+5}')
    I(f'v_lshlrev_b32 v{X+4}, 4, v{X+4}')
    I(f'v_lshl_add_u32 v{X+4}, v{X+3}, 7, v{X+4}')
    I(f's_mul_i32 s60, s3, {NB*128}')
    I(f'v_add_u32 v{X+4}, s60, v{X+4}')
    I(f'v_lshlrev_b32 v{X+6}, 2, v{V_TID}')
    I(f'v_lshlrev_b32 v{X+7}, 3, v{V_TID}')
    I(f's_mul_i32 s61, s2, {CH*4}')
    I(f's_mul_i32 s62, s2, {CH*8}')
    I(f's_mul_i32 s63, s2, {CH}')
    I(f's_sub_u32 s63, {E_EDGES}, s63')
    I(f's_min_u32 s63, s63, {CH}')
    I(f's_lshl_b32 s64, s63, 2')
    I(f's_lshl_b32 s65, s63, 3')
    I(f's_lshl_b32 s66, s{S_W}, 10')
    I(f'v_add_u32 v{X+2}, s66, v{X+1}')
    I('s_waitcnt lgkmcnt(0)')
    I(f's_mov_b64 {sp(S_DBG)}, s[56:57]')
    I(f's_mov_b64 {sp(S_WSP)}, s[58:59]')
    I(f's_or_b32 s67, s2, s{S_W}')
    I('s_cmp_lg_u32 s67, 0')
    I('s_cbranch_scc1 L_NOTAG')
    I('s_memrealtime s[68:69]')
    I(f'v_mov_b32 v{X+8}, 0')
    I('s_waitcnt lgkmcnt(0)')
    I('s_or_b32 s68, s68, 1')
    I(f'v_mov_b32 v{X+9}, s68')
    I('s_mov_b64 exec, 1')
    I(f'global_store_dword v{X+8}, v{X+9}, {sp(S_DBG)} sc1')
    I('s_mov_b64 exec, -1')
    L('L_NOTAG')
    srd(S_WS, 8, 9, 132 * 128)
    I(f's_add_u32 m0, s66, {WG_}')
    srd(S_XS, 84, 85, N_NODES * 128)
    I(f'buffer_load_dwordx4 v{X+2}, {sr4(S_WS)}, 0 offen lds')
    I(f's_cmp_lt_u32 s{S_W}, 8')
    I(f's_cselect_b32 s{S_RW}, s6, s4')
    I(f's_cselect_b32 s{S_RW+1}, s7, s5')
    I(f's_mov_b32 s{S_RW+2}, {64*128}')
    I(f's_mov_b32 s{S_RW+3}, 0x00020000')
    I(f'v_and_b32 v{X+8}, 0x1fff, v{X+2}')
    I(f's_add_u32 m0, s66, {WV_}')
    I('s_nop 0')
    I(f'buffer_load_dwordx4 v{X+8}, {sr4(S_RW)}, 0 offen lds')
    I(f's_cmp_lt_u32 s{S_W}, 8')
    I('s_cbranch_scc0 L_D3B')
    I(f's_add_u32 m0, s66, {XOWN}')
    I('s_nop 0')
    I(f'buffer_load_dwordx4 v{X+4}, {sr4(S_XS)}, 0 offen lds')
    I('s_branch L_D3C')
    L('L_D3B')
    I(f'v_add_u32 v{X+8}, 16384, v{X+1}')
    I(f's_mov_b32 m0, {WG_ + 16384}')
    I('s_nop 0')
    I(f'buffer_load_dwordx4 v{X+8}, {sr4(S_WS)}, 0 offen lds')
    L('L_D3C')
    srd_off(S_DST, 90, 91, 's61', 's64')
    I(f'buffer_load_dword v64, v{X+6}, {sr4(S_DST)}, 0 offen' + ELD)
    I(f'v_add_u32 v{X+8}, 4096, v{X+6}')
    I(f'v_add_u32 v{X+9}, 8192, v{X+6}')
    I(f'v_add_u32 v{X+10}, 12288, v{X+6}')
    for k in range(1, 4):
        I(f'buffer_load_dword v{64+k}, v{X+7+k}, {sr4(S_DST)}, 0 offen' + ELD)
    srd_off(S_SRC, 88, 89, 's61', 's64')
    I(f'buffer_load_dword v68, v{X+6}, {sr4(S_SRC)}, 0 offen' + ELD)
    for k in range(1, 4):
        I(f'buffer_load_dword v{68+k}, v{X+7+k}, {sr4(S_SRC)}, 0 offen' + ELD)
    srd_off(S_EA, 86, 87, 's62', 's65')
    I(f'buffer_load_dwordx2 v[72:73], v{X+7}, {sr4(S_EA)}, 0 offen' + ELD)
    for k in range(1, 4):
        I(f'v_add_u32 v{X+7+k}, {8192*k}, v{X+7}')
        I(f'buffer_load_dwordx2 v[{72+2*k}:{73+2*k}], v{X+7+k}, {sr4(S_EA)}, 0 offen' + ELD)
    if opt('touch', 0):
        I(f'v_and_b32 v{X+8}, 15, v{V_LANE}')
        I(f'v_lshlrev_b32 v{X+8}, 20, v{X+8}')
        I(f'v_mov_b32 v{X+9}, 0')
        I(f'global_load_dword v60, v{X+8}, {sp(S_WSP)}')
        I(f'global_load_dword v61, v{X+9}, s[10:11]')
    stamp(1)
    srd(S_OUT, 10, 11, N_NODES * 128)
    I(f's_add_u32 s{S_T}, s61, 0x{WS_RW:x}')
    srd_off(S_RW, S_WSP, S_WSP + 1, f's{S_T}', CH * 4)
    I(f's_add_u32 s{S_T}, s62, 0x{WS_RE:x}')
    srd_off(S_RE, S_WSP, S_WSP + 1, f's{S_T}', CH * 8)
    I(f's_lshl_b32 s{S_T}, s2, 11')
    I(f's_add_u32 s{S_T}, s{S_T}, 0x{WS_TAB:x}')
    srd_off(S_TAB, S_WSP, S_WSP + 1, f's{S_T}', 2048)
    I(f's_mul_i32 s{S_T}, s3, {NB*256}')
    I(f's_add_u32 s{S_T}, s{S_T}, 0x{WS_NT:x}')
    srd_off(S_NTS, S_WSP, S_WSP + 1, f's{S_T}', NB * 256)
    I(f's_add_u32 s{S_NTG}, s{S_WSP}, 0x{WS_NT:x}')
    I(f's_addc_u32 s{S_NTG+1}, s{S_WSP+1}, 0')
    I(f's_or_b32 s{S_NTG+1}, s{S_NTG+1}, 0x80000000')
    I(f's_mov_b32 s{S_NTG+2}, 0x400000')
    I(f's_mov_b32 s{S_NTG+3}, 0x00c00000')
    for k in range(4):
        I(f'v_add_u32 v{X}, {1024*k}, v{V_TID}')
        I(f'v_cmp_gt_u32 {sp(S_MASK+2*k)}, s63, v{X}')
    I(f's_mov_b32 s{S_C}, 0x{f2u(2.0**-KEXP):x}')
    I(f's_mov_b32 s{S_C+1}, 0x{f2u(2.0**-KEXP):x}')
    I(f's_mov_b32 s{S_JB}, 0')
    I(f's_mov_b32 s{S_WID}, 128')
    I(f'v_and_b32 v{V_J4}, 15, v{V_LANE}')
    I(f'v_lshlrev_b32 v{V_J4}, 2, v{V_J4}')
    I(f'v_lshrrev_b32 v{X}, 4, v{V_LANE}')
    I(f's_lshl_b32 s{S_T}, s{S_W}, 4')
    I(f'v_add_u32 v{X}, s{S_T}, v{X}')
    I(f'v_mul_u32_u24 v{V_CB4}, {CH*4}, v{X}')
    I(f'v_add_u32 v{V_CB4}, v{V_CB4}, v{V_J4}')
    I(f'v_and_b32 v{V_CH8}, 31, v{V_LANE}')
    I(f'v_lshlrev_b32 v{V_CH8}, 3, v{V_CH8}')
    I(f'v_add_u32 v{V_CHP}, {PT}, v{V_CH8}')
    fill_zero()
    I(f's_waitcnt vmcnt({12 + NT2}) lgkmcnt(0)')
    I('s_barrier')
    stamp(2)
    SA, SB1, SD1, SB2, SD2 = 80, 96, 112, 44, 28
    I(f's_cmp_lg_u32 s{S_W}, 15')
    I('s_cbranch_scc1 L_P0GO')
    I(f'v_mov_b32 v12, 0')
    I(f's_mov_b32 s{S_T}, 0x40000')
    L('L_TAGP')
    I(f'global_load_dword v13, v12, {sp(S_DBG)} sc1')
    I('s_waitcnt vmcnt(0)')
    I(f'v_readfirstlane_b32 s{S_T+1}, v13')
    I(f's_sub_u32 s{S_T}, s{S_T}, 1')
    I(f's_cselect_b32 s{S_T+1}, 1, s{S_T+1}')
    I(f's_cmp_eq_u32 s{S_T+1}, 0')
    I('s_cbranch_scc0 L_TAGD')
    I('s_sleep 4')
    I('s_branch L_TAGP')
    L('L_TAGD')
    I(f'v_mov_b32 v12, {TAGL}')
    I(f'ds_write_b32 v12, v13')
    L('L_P0GO')
    I(f's_cmp_ge_u32 s{S_W}, 12')
    I('s_cbranch_scc1 L_P0END')
    I(f's_and_b32 s{S_T}, s{S_W}, 1')
    I(f's_bfe_u32 s{S_T+1}, s{S_W}, 0x10001')
    I(f's_lshr_b32 s{S_T+2}, s{S_W}, 2')
    I(f'v_and_b32 v12, 31, v{V_LANE}')
    I(f'v_bfe_u32 v13, v{V_LANE}, 1, 3')
    I(f'v_lshrrev_b32 v14, 5, v{V_LANE}')
    I(f'v_xor_b32 v13, v13, v14')
    I(f'v_lshlrev_b32 v13, 4, v13')
    I(f'v_lshl_or_b32 v13, v12, 7, v13')
    I(f's_lshl_b32 s{S_T+3}, s{S_T}, 12')
    I(f's_add_u32 s{S_T+3}, s{S_T+3}, {XOWN}')
    for sg in range(4):
        I(f'v_xor_b32 v15, {sg*32}, v13')
        I(f'v_add_u32 v15, s{S_T+3}, v15')
        I(f'ds_read_b128 {vr(SA+4*sg,4)}, v15')
    I(f'v_bfe_u32 v13, v{V_LANE}, 2, 2')
    I(f'v_lshl_add_u32 v13, v14, 3, v13')
    I(f'v_lshlrev_b32 v13, 7, v13')
    I(f'v_bfe_u32 v15, v{V_LANE}, 4, 1')
    I(f'v_lshl_add_u32 v13, v15, 5, v13')
    I(f'v_and_b32 v15, 3, v{V_LANE}')
    I(f'v_lshl_add_u32 v13, v15, 3, v13')
    I(f's_lshl_b32 s{S_T+3}, s{S_T+1}, 6')
    I(f's_mov_b32 s{S_T+4}, {WG_}')
    I(f's_cmp_eq_u32 s{S_T+2}, 0')
    I(f's_cselect_b32 s{S_T+4}, {WG_ + 8192}, s{S_T+4}')
    I(f's_cmp_eq_u32 s{S_T+2}, 2')
    I(f's_cselect_b32 s{S_T+4}, {WU_}, s{S_T+4}')
    I(f's_add_u32 s{S_T+4}, s{S_T+4}, s{S_T+3}')
    I(f'v_add_u32 v15, s{S_T+4}, v13')
    for sg in range(4):
        for pp in range(2):
            I(f'ds_read_b64_tr_b16 {vr(SB1+4*sg+2*pp,2)}, v15 offset:{sg*2048+pp*512}')
    I(f's_lshl_b32 s{S_T+5}, s{S_T}, 13')
    I(f'v_lshlrev_b32 v14, 10, v14')
    I(f'v_add_u32 v14, s{S_T+5}, v14')
    I('s_waitcnt lgkmcnt(0)')
    for sg in range(4):
        I(f'v_mfma_f32_32x32x16_bf16 {vr(SD1,16)}, {vr(SA+4*sg,4)}, {vr(SB1+4*sg,4)}, ' + ('0' if sg == 0 else vr(SD1, 16)))
    I(f's_cmp_lg_u32 s{S_T+2}, 0')
    I('s_cbranch_scc1 L_P0PU')
    I(f's_add_u32 s{S_T+4}, s{S_T+3}, {WV_}')
    I(f'v_add_u32 v15, s{S_T+4}, v13')
    for sg in range(4):
        for pp in range(2):
            I(f'ds_read_b64_tr_b16 {vr(SB2+4*sg+2*pp,2)}, v15 offset:{sg*2048+pp*512}')
    I(f's_lshl_b32 s{S_T+3}, s{S_T+1}, 7')
    I(f'v_lshl_add_u32 v14, v12, 2, v14')
    I(f'v_add_u32 v14, s{S_T+3}, v14')
    I(f's_mov_b32 s{S_T+4}, 0x{f2u(-LOG2E):x}')
    I(f's_mov_b32 s{S_T+5}, 0x{f2u(2.0**SV):x}')
    I(f's_mov_b32 s{S_T+6}, 0x7fffffff')
    I(f's_mov_b32 s{S_T+7}, 0xffff0000')
    I('s_waitcnt lgkmcnt(0)')
    for sg in range(4):
        I(f'v_mfma_f32_32x32x16_bf16 {vr(SD2,16)}, {vr(SA+4*sg,4)}, {vr(SB2+4*sg,4)}, ' + ('0' if sg == 0 else vr(SD2, 16)))
    for i in range(16):
        I(f'v_mul_f32 v{SD1+i}, s{S_T+4}, v{SD1+i}')
    for i in range(16):
        I(f'v_mul_f32 v{SD2+i}, s{S_T+5}, v{SD2+i}')
    for i in range(16):
        q, h = SD1 + i, SD2 + i
        I(f'v_cvt_pk_bf16_f32 v{h}, v{h}, v{h}')
        I(f'v_and_b32 v13, s{S_T+6}, v{q}')
        I(f'v_and_b32 v{h}, 0xffff, v{h}')
        I(f'v_add_u32 v13, 0x8000, v13')
        I(f'v_sub_u32 v13, v13, v{h} clamp')
        I(f'v_and_or_b32 v13, v13, s{S_T+7}, v{h}')
        I(f'v_bfi_b32 v{q}, s{S_T+6}, v13, v{q}')
    I('s_branch L_P0WR')
    L('L_P0PU')
    I(f's_lshl_b32 s{S_T+3}, s{S_T+1}, 2')
    I(f'v_add_u32 v14, v14, v{V_CH8}')
    I(f'v_add_u32 v14, s{S_T+3}, v14')
    I('s_nop 7')
    I(f's_cmp_eq_u32 s{S_T+2}, 2')
    I('s_cbranch_scc1 L_P0U')
    I(f'v_add_u32 v14, {PT}, v14')
    I(f's_mov_b32 s{S_T+4}, 0x{f2u(-LOG2E):x}')
    I(f'v_mov_b32 v13, 0x{f2u(-float(KEXP)):x}')
    for i in range(16):
        I(f'v_fma_f32 v{SD1+i}, v{SD1+i}, s{S_T+4}, v13')
    for i in range(0, 16, 2):
        split_hilo(SD1 + i, SD1 + i + 1, 12, 13)
    I('s_branch L_P0WR')
    L('L_P0U')
    I(f'v_add_u32 v14, {ACCN}, v14')
    I(f's_mov_b32 s{S_T+4}, 0x{f2u(2.0**(SV+KEXP)):x}')
    for i in range(16):
        I(f'v_mul_f32 v{SD1+i}, s{S_T+4}, v{SD1+i}')
    L('L_P0WR')
    for i in range(8):
        I(f'ds_write_b32 v14, v{SD1+i} offset:{((i&3)+8*(i>>2))*256}')
    I(f's_cmp_eq_u32 s{S_T}, 0')
    I('s_cbranch_scc1 L_P0W0')
    I('s_mov_b64 exec, 0xffffffff')
    I(f'ds_write_b32 v14, v{SD1+8} offset:{16*256}')
    I('s_mov_b64 exec, -1')
    I('s_branch L_P0END')
    L('L_P0W0')
    for i in range(8, 16):
        I(f'ds_write_b32 v14, v{SD1+i} offset:{((i&3)+8*(i>>2))*256}')
    L('L_P0END')
    I(f'v_bfe_u32 v13, v{V_LANE}, 2, 2')
    I(f'v_lshlrev_b32 v13, 7, v13')
    I(f'v_bfe_u32 v15, v{V_LANE}, 4, 1')
    I(f'v_lshl_add_u32 v13, v15, 5, v13')
    I(f'v_and_b32 v15, 3, v{V_LANE}')
    I(f'v_lshl_add_u32 v13, v15, 3, v13')
    I(f'v_add_u32 v13, {WG_ + 16384}, v13')
    I(f'ds_read_b64_tr_b16 v[28:29], v13')
    I(f'ds_read_b64_tr_b16 v[30:31], v13 offset:64')
    I(f's_mov_b32 s{S_T+4}, 0x{f2u(-LOG2E):x}')
    I(f'v_cmp_lt_u32 vcc, 31, v{V_LANE}')
    I('s_waitcnt lgkmcnt(0)')
    for m in range(4):
        I(f'v_lshlrev_b32 v{32+2*m}, 16, v{28+m}')
        I(f'v_and_b32 v{33+2*m}, 0xffff0000, v{28+m}')
    for j in range(8):
        I(f'v_mul_f32 v{32+j}, s{S_T+4}, v{32+j}')
    for m in range(4):
        dst = B5[m >> 1] + (m & 1)
        I(f'v_cvt_pk_bf16_f32 v{28+m}, v{32+2*m}, v{33+2*m}')
        I(f'v_lshlrev_b32 v12, 16, v{28+m}')
        I(f'v_and_b32 v13, 0xffff0000, v{28+m}')
        I(f'v_sub_f32 v12, v{32+2*m}, v12')
        I(f'v_sub_f32 v13, v{33+2*m}, v13')
        I(f'v_cvt_pk_bf16_f32 v12, v12, v13')
        I(f'v_cndmask_b32 v{dst}, v{28+m}, v12, vcc')
    I(f'v_bfe_u32 v12, v{V_LANE}, 2, 1')
    I(f'v_lshrrev_b32 v13, 5, v{V_LANE}')
    I(f'v_xor_b32 v12, v12, v13')
    I(f'v_and_b32 v13, 1, v{V_LANE}')
    I(f'v_lshl_or_b32 v12, v12, 1, v13')
    I(f'v_mov_b32 v13, 0x3f803f80')
    I(f'v_cmp_eq_u32 vcc, 0, v12')
    I(f'v_cmp_eq_u32 {sp(S_T)}, 1, v12')
    I('s_nop 1')
    I(f'v_cndmask_b32 v{A5+2}, 0, v13, vcc')
    I(f'v_cndmask_b32 v{A5+3}, 0, v13, {sp(S_T)}')
    I(f'v_lshlrev_b32 v{X}, 4, v{V_TID}')
    I('s_waitcnt lgkmcnt(0)')
    I('s_barrier')
    stamp(3)
    I(f'v_mov_b32 v12, {TAGL}')
    I(f'ds_read_b128 v[{X+2}:{X+5}], v{X} offset:{NTI}')
    I(f'ds_read_b32 v12, v12')
    I(f's_mov_b32 s{S_T}, -{NB}')
    I(f'v_mov_b32 v{X+1}, 4')
    I('s_waitcnt lgkmcnt(0)')
    I(f'v_readfirstlane_b32 s{S_TAG}, v12')
    I(f'buffer_store_dwordx4 v[{X+2}:{X+5}], v{X}, {sr4(S_NTS)}, 0 offen' + SC)
    for k in range(4):
        I(f's_waitcnt vmcnt({12 + NT2 - k})')
        I(f's_mov_b64 exec, {sp(S_MASK+2*k)}')
        if k == 3:
            I('s_cbranch_execz L_B1')
        I(f'v_mul_u32_u24 v{80+k}, 21400, v{64+k}')
        I(f'v_lshrrev_b32 v{80+k}, 20, v{80+k}')
        I(f'v_mad_i32_i24 v{84+k}, v{80+k}, s{S_T}, v{64+k}')
        I(f'v_lshlrev_b32 v{80+k}, 2, v{80+k}')
        I(f'ds_add_rtn_u32 v{88+k}, v{80+k}, v{X+1} offset:{HIST}')
        I(f'v_lshlrev_b32 v{84+k}, 26, v{84+k}')
    L('L_B1')
    I('s_mov_b64 exec, -1')
    stamp(4)
    I('s_waitcnt lgkmcnt(0)')
    I('s_barrier')
    stamp(5)
    I(f's_mul_i32 s{S_TAG2}, s{S_TAG}, 0x9e3779b1')
    I(f's_and_b32 s{S_TAG2}, s{S_TAG2}, 0x{TAGM:x}')
    I(f's_cmp_lg_u32 s{S_W}, 0')
    I('s_cbranch_scc1 L_NOSCAN')
    I(f'ds_read_b128 v[96:99], v{X} offset:{HIST}')
    I('s_waitcnt lgkmcnt(0)')
    I('v_add_u32 v101, v96, v97')
    I('v_add_u32 v102, v101, v98')
    I('v_add_u32 v103, v102, v99')
    I('v_mov_b32 v104, v103')
    wave_scan(104)
    I('v_sub_u32 v104, v104, v103')
    I('v_add_u32 v105, v104, v96')
    I('v_add_u32 v106, v104, v101')
    I('v_add_u32 v107, v104, v102')
    I(f'ds_write_b128 v{X}, v[104:107] offset:{HBASE}')
    for k in range(4):
        I(f'v_lshl_or_b32 v{112+2*k}, v{96+k}, 16, v{104+k}')
        I(f'v_or_b32 v{112+2*k}, s{S_TAG2}, v{112+2*k}')
        I(f'v_mov_b32 v{113+2*k}, s{S_TAG}')
    L('L_NOSCAN')
    fill_words()
    I(f's_waitcnt vmcnt({5 + NT2})')
    for k in range(4):
        I(f'v_lshl_or_b32 v{84+k}, v{68+k}, 3, v{84+k}')
    I('s_waitcnt lgkmcnt(0)')
    I('s_barrier')
    stamp(6)
    for k in range(4):
        I(f's_mov_b64 exec, {sp(S_MASK+2*k)}')
        I(f'ds_read_b32 v{80+k}, v{80+k} offset:{HBASE}')
    I(f's_mov_b32 s{S_T}, {STGW}')
    I(f's_mov_b32 s{S_T+1}, {STGE}')
    I(f's_waitcnt vmcnt({1 + NT2})')
    for k in range(4):
        I(f's_mov_b64 exec, {sp(S_MASK+2*k)}')
        if k == 3:
            I('s_cbranch_execz L_B2')
        I(f's_waitcnt lgkmcnt({3 - k + 2*k})')
        I(f'v_add3_u32 v{88+k}, v{80+k}, v{88+k}, s{S_T}')
        I(f'v_add_u32 v{80+k}, v{88+k}, v{88+k}')
        I(f'ds_write_b32 v{88+k}, v{84+k}')
        I(f'v_add_u32 v{80+k}, {(STGE - 2*STGW) & 0xffffffff}, v{80+k}')
        I(f'ds_write_b64 v{80+k}, v[{72+2*k}:{73+2*k}]')
    L('L_B2')
    I('s_mov_b64 exec, -1')
    I(f'v_lshlrev_b32 v{X}, 4, v{V_TID}')
    I(f'v_add_u32 v{X+1}, {STGW}, v{X}')
    I(f'v_add_u32 v{X+2}, 16384, v{X}')
    I('s_waitcnt lgkmcnt(0)')
    I('s_barrier')
    stamp(7)
    I(f'ds_read_b128 v[64:67], v{X+1}')
    I(f'ds_read_b128 v[68:71], v{X+1} offset:{STGE-STGW}')
    I(f'ds_read_b128 v[72:75], v{X+1} offset:{STGE-STGW+16384}')
    I('s_waitcnt lgkmcnt(2)')
    I(f'buffer_store_dwordx4 v[64:67], v{X}, {sr4(S_RW)}, 0 offen' + SC)
    I('s_waitcnt lgkmcnt(1)')
    I(f'buffer_store_dwordx4 v[68:71], v{X}, {sr4(S_RE)}, 0 offen' + SC)
    I('s_waitcnt lgkmcnt(0)')
    I(f'buffer_store_dwordx4 v[72:75], v{X+2}, {sr4(S_RE)}, 0 offen' + SC)
    srd_off(S_DST, S_WSP, S_WSP + 1, '0x%x' % WS_RW, NWG * CH * 4)
    srd_off(S_SRC, S_WSP, S_WSP + 1, '0x%x' % WS_RE, NWG * CH * 8)
    srd_off(S_EA, S_WSP, S_WSP + 1, '0x%x' % WS_TAB, NWG * 2048)
    I(f'v_lshrrev_b32 v{X}, 4, v{V_LANE}')
    I(f's_lshl_b32 s{S_T}, s{S_W}, 15')
    I(f's_lshl_b32 s{S_T+1}, s3, 3')
    I(f's_add_u32 s{S_T}, s{S_T}, s{S_T+1}')
    I(f'v_lshlrev_b32 v{X}, 11, v{X}')
    I(f'v_add_u32 v{X}, s{S_T}, v{X}')
    for r in range(1, 4):
        I(f'v_add_u32 v{X+r}, {8192*r}, v{X}')
    I(f'v_lshlrev_b32 v{X+4}, 5, v{V_LANE}')
    I(f's_mov_b32 s{S_T}, 0x40000')
    I(f's_mov_b32 s{S_T+1}, 0x{TAGM:x}')
    I('s_waitcnt vmcnt(0)')
    stamp(8)
    I('s_barrier')
    I(f's_cmp_lg_u32 s{S_W}, 0')
    I('s_cbranch_scc1 L_POLL')
    I(f'buffer_store_dwordx4 v[112:115], v{X+4}, {sr4(S_TAB)}, 0 offen' + SC)
    I(f'buffer_store_dwordx4 v[116:119], v{X+4}, {sr4(S_TAB)}, 0 offen offset:16' + SC)
    L('L_POLL')
    for r in range(4):
        I(f'buffer_load_dwordx2 {p(64+2*r)}, v{X+r}, {sr4(S_EA)}, 0 offen' + LSC)
    I('s_waitcnt vmcnt(0)')
    for r in range(4):
        I(f'v_xor_b32 v{V_TAB+r}, s{S_TAG2}, v{64+2*r}')
        I(f'v_xor_b32 v{65+2*r}, s{S_TAG}, v{65+2*r}')
        I(f'v_and_or_b32 v{65+2*r}, v{V_TAB+r}, s{S_T+1}, v{65+2*r}')
    I('v_or3_b32 v65, v65, v67, v69')
    I('v_or_b32 v65, v65, v71')
    I('v_cmp_ne_u32 vcc, 0, v65')
    I(f's_sub_u32 s{S_T}, s{S_T}, 1')
    I('s_cbranch_scc1 L_END')
    I('s_cbranch_vccz L_POLLED')
    I(f's_sleep {opt("sleep", 2)}')
    I('s_branch L_POLL')
    L('L_POLLED')
    stamp(10)
    REC = 64
    A4, A8 = X, X + 4
    L('L_PASS')
    I(f'v_add_u32 v{X+8}, s{S_JB}, v{V_J4}')
    I(f'v_add_u32 v{X+9}, 64, v{X+8}')
    I(f'v_add_u32 v{X+10}, s{S_JB}, v{V_CB4}')
    I(f's_cmp_eq_u32 s{S_WID}, 128')
    I(f's_cselect_b64 {sp(S_T+4)}, -1, 0')
    for r in range(4):
        I(f'v_add_u32_sdwa v{A4+r}, v{V_TAB+r}, v{X+10} dst_sel:DWORD dst_unused:UNUSED_PAD src0_sel:WORD_0 src1_sel:DWORD')
        I(f'v_cmp_lt_u32_sdwa {sp(S_MASK+4*r)}, v{X+8}, v{V_TAB+r} src0_sel:DWORD src1_sel:WORD_1')
        if r:
            I(f'v_add_u32 v{A4+r}, {r*4*CH*4}, v{A4+r}')
        I(f'v_cmp_lt_u32_sdwa vcc, v{X+9}, v{V_TAB+r} src0_sel:DWORD src1_sel:WORD_1')
        I(f'v_add_u32 v{A8+r}, v{A4+r}, v{A4+r}')
        I(f's_and_b64 {sp(S_MASK+4*r+2)}, vcc, {sp(S_T+4)}')
        I(f's_mov_b64 exec, {sp(S_MASK+4*r)}')
        I(f'buffer_load_dword v{REC+8*r+2}, v{A4+r}, {sr4(S_DST)}, 0 offen' + LSC)
        I(f'buffer_load_dwordx2 {p(REC+8*r)}, v{A8+r}, {sr4(S_SRC)}, 0 offen' + LSC)
        I('s_mov_b64 exec, -1')
    for r in range(4):
        I(f's_mov_b64 exec, {sp(S_MASK+4*r+2)}')
        I(f'buffer_load_dword v{REC+8*r+6}, v{A4+r}, {sr4(S_DST)}, 0 offen offset:64' + LSC)
        I(f'buffer_load_dwordx2 {p(REC+8*r+4)}, v{A8+r}, {sr4(S_SRC)}, 0 offen offset:128' + LSC)
    I('s_mov_b64 exec, -1')
    I(f'v_max3_u32 v{X+8}, v{V_TAB}, v{V_TAB+1}, v{V_TAB+2}')
    I(f'v_max_u32 v{X+8}, v{X+8}, v{V_TAB+3}')
    I(f'v_lshrrev_b32 v{X+8}, 16, v{X+8}')
    I(f's_add_u32 s{S_T}, s{S_JB}, s{S_WID}')
    I(f'v_cmp_lt_u32 vcc, s{S_T}, v{X+8}')
    I(f'v_mov_b32 v{X+8}, 4')
    I(f's_cbranch_vccz L_NOMORE')
    I(f'v_mov_b32 v{X+9}, {MISC}')
    I(f'ds_write_b32 v{X+9}, v{X+8}')
    L('L_NOMORE')
    stamp(11)
    for r in range(4):
        I(f's_waitcnt vmcnt({15 - 2*r})')
        I(f's_mov_b64 exec, {sp(S_MASK+4*r)}')
        I(f'v_lshrrev_b32 v{A4+r}, 24, v{REC+8*r+2}')
        I(f'ds_add_rtn_u32 v{REC+8*r+3}, v{A4+r}, v{X+8} offset:{CNT}')
    for r in range(4):
        I(f's_mov_b64 exec, {sp(S_MASK+4*r+2)}')
        I(f's_cbranch_execz L_C{r}')
        I(f's_waitcnt vmcnt({7 - 2*r})')
        I(f'v_lshrrev_b32 v{A8+r}, 24, v{REC+8*r+6}')
        I(f'ds_add_rtn_u32 v{REC+8*r+7}, v{A8+r}, v{X+8} offset:{CNT}')
        L(f'L_C{r}')
    I('s_mov_b64 exec, -1')
    I(f'v_lshlrev_b32 v{X+8}, 2, v{V_LANE}')
    I(f'v_mov_b32 v{X+9}, {MISC}')
    I(f's_mov_b32 s{S_T+2}, 0x1fff8')
    I('s_waitcnt lgkmcnt(0)')
    I('s_barrier')
    stamp(12)
    NG, GS, MI = X + 10, X + 11, X + 12
    I(f'ds_read_b32 v{NG}, v{X+8} offset:{CNT}')
    I(f'ds_read_b32 v{X+9}, v{X+9}')
    I('s_waitcnt lgkmcnt(1)')
    I(f'v_add_u32 v{NG}, 28, v{NG}')
    I(f'v_and_b32 v{NG}, 0xffffffe0, v{NG}')
    I(f'v_mov_b32 v{GS}, v{NG}')
    wave_scan(GS)
    I(f'v_readlane_b32 s{S_T}, v{GS}, 63')
    I(f'v_sub_u32 v{GS}, v{GS}, v{NG}')
    I(f'ds_write_b32 v{X+8}, v{GS} offset:{BASET}')
    for r in range(4):
        I(f's_mov_b64 exec, {sp(S_MASK+4*r)}')
        I(f'ds_read_b32 v{A4+r}, v{A4+r} offset:{BASET}')
    for r in range(4):
        I(f's_mov_b64 exec, {sp(S_MASK+4*r+2)}')
        I(f'ds_read_b32 v{A8+r}, v{A8+r} offset:{BASET}')
    I('s_mov_b64 exec, -1')
    I(f'v_readfirstlane_b32 s{S_MORE}, v{X+9}')
    out.insert(len(out) - 1, '    s_waitcnt lgkmcnt(9)')
    I(f's_lshr_b32 s{S_T}, s{S_T}, 5')
    I(f's_cmp_eq_u32 s{S_WID}, 128')
    I(f's_cselect_b32 s{S_T+1}, {MAXG}, -1')
    I(f's_cmp_gt_u32 s{S_T}, s{S_T+1}')
    I('s_cbranch_scc1 L_OVERFLOW')
    I(f's_add_u32 s{S_L}, s{S_T}, 63')
    I(f's_lshr_b32 s{S_L}, s{S_L}, 6')
    I(f'v_cvt_f32_u32 v{MI}, s{S_L}')
    I(f'v_rcp_f32 v{MI}, v{MI}')
    I(f'v_lshrrev_b32 v{GS}, 5, v{GS}')
    I(f'v_mul_f32 v{MI}, 0x47800000, v{MI}')
    I(f'v_cvt_u32_f32 v{MI}, v{MI}')
    I(f'v_lshrrev_b32 v{NG}, 5, v{NG}')
    I(f'v_add_u32 v{MI}, 2, v{MI}')
    I('s_waitcnt vmcnt(0)')
    for r in range(4):
        I(f's_waitcnt lgkmcnt({7 - r + 2*r})')
        I(f's_mov_b64 exec, {sp(S_MASK+4*r)}')
        I(f'v_add_u32 v{A4+r}, v{A4+r}, v{REC+8*r+3}')
        I(f'v_and_b32 v{REC+8*r+2}, s{S_T+2}, v{REC+8*r+2}')
        I(f'v_add_u32 v{REC+8*r+3}, v{A4+r}, v{A4+r}')
        I(f'ds_write_b32 v{A4+r}, v{REC+8*r+2} offset:{LS}')
        I(f'ds_write_b64 v{REC+8*r+3}, {p(REC+8*r)} offset:{LE}')
    I('s_waitcnt lgkmcnt(8)')
    for r in range(4):
        I(f's_mov_b64 exec, {sp(S_MASK+4*r+2)}')
        I(f's_cbranch_execz L_P{r}')
        I(f'v_add_u32 v{A8+r}, v{A8+r}, v{REC+8*r+7}')
        I(f'v_and_b32 v{REC+8*r+6}, s{S_T+2}, v{REC+8*r+6}')
        I(f'v_add_u32 v{REC+8*r+7}, v{A8+r}, v{A8+r}')
        I(f'ds_write_b32 v{A8+r}, v{REC+8*r+6} offset:{LS}')
        I(f'ds_write_b64 v{REC+8*r+7}, {p(REC+8*r+4)} offset:{LE}')
        L(f'L_P{r}')
    I('s_mov_b64 exec, -1')
    stamp(13)
    SA_, SB_ = X, X + 1
    I(f'v_mul_u32_u24 v{SA_}, v{GS}, v{MI}')
    I(f'v_max_u32 v{SB_}, 1, v{NG}')
    I(f'v_lshrrev_b32 v{SA_}, 16, v{SA_}')
    I(f'v_add3_u32 v{SB_}, v{SB_}, v{GS}, -1')
    I(f'v_mul_u32_u24 v{SB_}, v{SB_}, v{MI}')
    I(f'v_lshlrev_b32 v{X+2}, 3, v{V_LANE}')
    I(f'v_lshrrev_b32 v{SB_}, 16, v{SB_}')
    I(f'v_lshlrev_b32 v{X+3}, 8, v{V_LANE}')
    I(f'ds_write_b64 v{X+2}, {p(SA_)} offset:{NINFO}')
    I(f'v_add_u32 v{X+4}, {ACCN}, v{X+3}')
    I(f's_mov_b32 s{S_T}, s{S_W}')
    I(f's_sub_u32 s{S_T+1}, 0, s{S_L}')
    L('L_DLOOP')
    I(f'v_cmp_lt_u32 vcc, s{S_T}, v{NG}')
    I('s_and_b64 exec, exec, vcc')
    I('s_cbranch_execz L_DEND')
    I(f'v_add_u32 v{X+5}, s{S_T}, v{GS}')
    I(f'v_mul_u32_u24 v{X+6}, v{X+5}, v{MI}')
    I(f'v_lshrrev_b32 v{X+6}, 16, v{X+6}')
    I(f'v_mad_i32_i24 v{X+5}, v{X+6}, s{S_T+1}, v{X+5}')
    I(f'v_cmp_eq_u32 vcc, v{X+6}, v{SA_}')
    I(f'v_lshl_add_u32 v{X+5}, v{X+5}, 6, v{X+6}')
    I(f'v_lshlrev_b32 v{X+6}, 8, v{X+6}')
    I(f'v_lshlrev_b32 v{X+5}, 2, v{X+5}')
    I(f'v_add_u32 v{X+6}, {EXTRA}, v{X+6}')
    I(f'v_add_u32 v{X+7}, {DESCA}, v{X+5}')
    I(f'v_cndmask_b32 v{X+6}, v{X+6}, v{X+4}, vcc')
    I(f'ds_write_b32 v{X+5}, v{X+3} offset:{DESCP}')
    I(f'ds_write_b32 v{X+7}, v{X+6}')
    I(f's_add_u32 s{S_T}, s{S_T}, 16')
    I('s_branch L_DLOOP')
    L('L_DEND')
    I('s_mov_b64 exec, -1')
    I(f's_lshl_b32 s{S_T}, s{S_W}, 2')
    I(f's_lshl_b32 s{S_T+1}, s{S_L}, 5')
    I(f'v_lshrrev_b32 v{X}, 5, v{V_LANE}')
    I(f'v_lshl_add_u32 v{X+1}, v{X}, 1, s{S_T}')
    I(f'v_mul_u32_u24 v{V_PS0}, s{S_T+1}, v{X+1}')
    I(f'v_lshlrev_b32 v{V_PD}, 2, v{X+1}')
    I(f'v_add_u32 v{V_PS1}, s{S_T+1}, v{V_PS0}')
    I(f'v_add_u32 v{V_PD}, {DESCP}, v{V_PD}')
    I(f'v_bfe_u32 v{X}, v{V_LANE}, 2, 1')
    I(f'v_and_b32 v{X+1}, 1, v{V_LANE}')
    I(f'v_lshl_or_b32 v{X}, v{X}, 1, v{X+1}')
    I(f'v_add_u32 v{X}, s{S_T}, v{X}')
    I(f's_lshl_b32 s{S_T+1}, s{S_L}, 6')
    I(f'v_mul_u32_u24 v{V_PE}, s{S_T+1}, v{X}')
    I(f'v_bfe_u32 v{X}, v{V_LANE}, 3, 2')
    I(f'v_bfe_u32 v{X+1}, v{V_LANE}, 1, 1')
    I(f'v_lshl_or_b32 v{X}, v{X}, 1, v{X+1}')
    I(f'v_lshl_add_u32 v{V_PE}, v{X}, 3, v{V_PE}')
    I(f'v_add_u32 v{V_PE}, {LE}, v{V_PE}')
    I(f's_mov_b32 s{S_CNT}, s{S_L}')
    I('s_waitcnt lgkmcnt(0)')
    I('s_barrier')
    stamp(14)
    I(f's_cmp_eq_u32 s{S_L}, 0')
    I('s_cbranch_scc1 L_FOLD')
    lg = Lg()
    s_reads(lg, 0)
    lg.op('dP', f'ds_read_b64 {p(V_VAP)}, v{V_PD}')
    lg.op('dA', f'ds_read_b64 {p(V_VAA[0])}, v{V_PD} offset:{DESCA-DESCP}')
    lg.op('e', f'ds_read_b64 {p(A5)}, v{V_PE}')
    lg.need('S0', 'S1', 'S2', 'S3')
    for n in range(2):
        for i in range(16):
            I(gload(n, i))
    s_reads(lg, 1)
    lg.need('dP', 'dA')
    I(f'v_add_u32 v{V_VAP}, v{V_VAP}, v{V_CHP}')
    I(f'v_add_u32 v{V_VAP+1}, v{V_VAP+1}, v{V_CHP}')
    I(f'v_add_u32 v{V_VAA[0]}, v{V_VAA[0]}, v{V_CH8}')
    I(f'v_add_u32 v{V_VAA[0]+1}, v{V_VAA[0]+1}, v{V_CH8}')
    lg.op('P0a', f'ds_read_b32 v{B5[0]+2}, v{V_VAP}')
    lg.op('P0b', f'ds_read_b32 v{B5[0]+3}, v{V_VAP+1}')
    lg.op('P1a', f'ds_read_b32 v{B5[1]+2}, v{V_VAP} offset:4')
    lg.op('P1b', f'ds_read_b32 v{B5[1]+3}, v{V_VAP+1} offset:4')
    I(f's_cmp_eq_u32 s{S_CNT}, 1')
    I(f's_cselect_b64 {sp(S_LDX)}, 0, {LDXV}')
    I('s_waitcnt lgkmcnt(0)')
    lg.q = []
    if opt('prio', 0):
        I('s_setprio 3')
    stamp(15)
    rstamp(28)
    half(lg, 0, 0, 0, False)
    state0 = list(lg.q)
    def step(par, uo):
        half(lg, 1, par, uo)
        I(f's_sub_u32 s{S_CNT}, s{S_CNT}, 1')
        I(f's_cmp_eq_u32 s{S_CNT}, 0')
        I(f's_cbranch_scc1 L_FIN{par}')
        I(f's_cmp_eq_u32 s{S_CNT}, 1')
        I(f's_cselect_b64 {sp(S_LDX)}, 0, {LDXV}')
        prio(f'{par}')
        half(lg, 0, par ^ 1, uo + 1)
    def loop_body():
        step(0, 0)
        step(1, 1)
        I(f'v_add_u32 v{V_PS0}, 64, v{V_PS0}')
        I(f'v_add_u32 v{V_PS1}, 64, v{V_PS1}')
        I(f'v_add_u32 v{V_PE}, 128, v{V_PE}')
        I(f'v_add_u32 v{V_PD}, 512, v{V_PD}')
        I('s_branch L_LOOP')
    mark = len(out)
    loop_body()
    del out[mark:]
    qb = list(lg.q)
    n = min(len(qb), len(state0))
    assert qb[len(qb)-n:] == state0[len(state0)-n:], (state0, qb)
    lg.q = list(qb if len(qb) >= len(state0) else state0)
    e('.p2align 3')
    L('L_LOOP')
    loop_body()
    assert lg.q == qb, (lg.q, qb)
    print('loop entry queue', state0, 'back edge queue', qb, file=sys.stderr)
    for pr in range(2):
        L(f'L_FIN{pr}')
        for op in tail_ops(1):
            I(op)
        I(f'ds_write_b64 v{V_VAA[pr]}, {p(V_MA)}')
        I(f'ds_write_b64 v{V_VAA[pr]+1}, {p(V_MB)}')
        if pr == 0:
            I('s_branch L_FOLD')
    L('L_FOLD')
    stamp(16)
    I(f'v_lshrrev_b32 v{X}, 3, v{V_TID}')
    I(f'v_and_b32 v{X+1}, 7, v{V_TID}')
    I(f'v_lshlrev_b32 v{X+6}, 3, v{X+1}')
    I(f'v_lshlrev_b32 v{X+1}, 5, v{X+1}')
    I(f'v_lshl_add_u32 v{X+2}, v{X}, 8, v{X+1}')
    I(f'v_add_u32 v{X+2}, {ACCN}, v{X+2}')
    I(f'v_add_u32 v{X+1}, {EXTRA}, v{X+1}')
    I(f'v_lshlrev_b32 v{X+3}, 3, v{X}')
    I(f's_mul_i32 s{S_T+4}, s3, {NB*128}')
    I(f'v_lshl_add_u32 v{X+6}, v{X}, 7, v{X+6}')
    I(f'v_add_u32 v{X+6}, s{S_T+4}, v{X+6}')
    I(f'v_mov_b32 v{X+7}, 0')
    I('s_waitcnt vmcnt(0) lgkmcnt(0)')
    I('s_barrier')
    stamp(17)
    rstamp(29)
    if PROF:
        I(f'v_writelane_b32 v{V_PROF}, s{S_L}, 27')
    I(f'v_cmp_gt_u32 vcc, {NB*8}, v{V_TID}')
    I(f's_and_saveexec_b64 {sp(S_EX)}, vcc')
    I('s_cbranch_execz L_FDONE')
    I(f'ds_read_b64 {p(X+4)}, v{X+3} offset:{NINFO}')
    I(f'ds_read_b128 v[64:67], v{X+2}')
    I(f'ds_read_b128 v[68:71], v{X+2} offset:16')
    I(f's_mov_b64 {sp(S_T)}, exec')
    I('s_waitcnt lgkmcnt(0)')
    L('L_FLOOP')
    I(f'v_cmp_lt_u32 vcc, v{X+4}, v{X+5}')
    I('s_and_b64 exec, exec, vcc')
    I('s_cbranch_execz L_FLEND')
    I(f'v_add_u32 v{X+4}, 1, v{X+4}')
    I(f'v_lshl_add_u32 v{X+7}, v{X+4}, 8, v{X+1}')
    I(f'ds_read_b128 v[72:75], v{X+7}')
    I(f'ds_read_b128 v[76:79], v{X+7} offset:16')
    I('s_waitcnt lgkmcnt(0)')
    for k in range(8):
        I(f'v_add_f32 v{64+k}, v{64+k}, v{72+k}')
    I('s_branch L_FLOOP')
    L('L_FLEND')
    I(f's_mov_b64 exec, {sp(S_T)}')
    I(f's_cmp_lg_u32 s{S_MORE}, 0')
    I('s_cbranch_scc1 L_WB')
    I(f's_mov_b32 s{S_T+2}, 0x{f2u(2.0**-(SV+KEXP)):x}')
    I(f's_mov_b32 s{S_T+3}, 0x{f2u(-LOG2E):x}')
    for k in range(8):
        I(f'v_mul_f32 v{64+k}, s{S_T+2}, v{64+k}')
    for k in range(8):
        I(f'v_mul_f32 v{72+k}, s{S_T+3}, v{64+k}')
    for k in range(8):
        I(f'v_exp_f32 v{72+k}, v{72+k}')
    for k in range(8):
        I(f'v_add_f32 v{72+k}, 1.0, v{72+k}')
    for k in range(8):
        I(f'v_rcp_f32 v{72+k}, v{72+k}')
    for k in range(8):
        I(f'v_mul_f32 v{64+k}, v{64+k}, v{72+k}')
    I('v_cvt_pk_bf16_f32 v80, v64, v66')
    I('v_cvt_pk_bf16_f32 v81, v68, v70')
    I('v_cvt_pk_bf16_f32 v82, v65, v67')
    I('v_cvt_pk_bf16_f32 v83, v69, v71')
    I(f'buffer_store_dwordx2 v[80:81], v{X+6}, {sr4(S_OUT)}, 0 offen')
    I(f'buffer_store_dwordx2 v[82:83], v{X+6}, {sr4(S_OUT)}, 0 offen offset:64')
    stamp(18)
    prof_store()
    I('s_endpgm')
    L('L_WB')
    I(f'ds_write_b128 v{X+2}, v[64:67]')
    I(f'ds_write_b128 v{X+2}, v[68:71] offset:16')
    L('L_FDONE')
    I('s_mov_b64 exec, -1')
    I(f's_cmp_eq_u32 s{S_MORE}, 0')
    I('s_cbranch_scc1 L_QUIT')
    I(f's_add_u32 s{S_JB}, s{S_JB}, s{S_WID}')
    I('s_branch L_REFILL')
    L('L_OVERFLOW')
    I(f's_mov_b32 s{S_WID}, 64')
    L('L_REFILL')
    I('s_waitcnt vmcnt(0) lgkmcnt(0)')
    I('s_barrier')
    fill_zero()
    fill_words()
    I('s_waitcnt lgkmcnt(0)')
    I('s_barrier')
    I('s_branch L_PASS')
    L('L_QUIT')
    prof_store()
    L('L_END')
    I('s_endpgm')

hdr = open('standalone__edge_featured_mpnn_egc__graph.s.ref').read().split('\n')
for line in hdr:
    if line.startswith('; Override'):
        break
    e(line)
e(f'; @launch grid=({NWG},1,1) block=(1024,1,1) lds={LDS_BYTES}')
e('.amdgcn_target "amdgcn-amd-amdhsa--gfx950"')
e('.text')
gen()
e('.section .rodata,"a"')
e('.p2align 6')
e(f'.amdhsa_kernel {KNAME}')
e('  .amdhsa_next_free_vgpr 128')
e('  .amdhsa_next_free_sgpr 102')
e('  .amdhsa_accum_offset 128')
e('  .amdhsa_group_segment_fixed_size 0')
e('  .amdhsa_kernarg_size 80')
e('  .amdhsa_user_sgpr_count 2')
e('  .amdhsa_user_sgpr_kernarg_segment_ptr 1')
e('  .amdhsa_system_sgpr_workgroup_id_x 1')
e('  .amdhsa_float_denorm_mode_32 3')
e('.end_amdhsa_kernel')
open(sys.argv[1], 'w').write('\n'.join(x for x in out if x is not None) + '\n')
```

```python
import sys, struct

OPT = dict(a.split('=') for a in sys.argv[2:] if '=' in a)
def opt(name, default):
    return type(default)(OPT.get(name, default))

KNAME = 'standalone__edge_featured_mpnn_egc__graph_kernel'
N_NODES = 12500
E_EDGES = 800000
NB = 49
NWG = 256
CH = 3136
WS_RW = 0
WS_RE = 0x00400000
WS_TAB = 0x00B00000
WS_NT = 0x00C00000
WS_PROF = 0x01000000
KEXP = 31
SV = 30
LOG2E = 1.4426950408889634
SC = opt('sc', 'sc1')
SC = (' ' + SC.replace('+', ' ')) if SC != 'none' else ''
LSC = opt('lsc', 'sc1')
LSC = (' ' + LSC.replace('+', ' ')) if LSC != 'none' else ''
GSC = opt('gsc', 'sc1')
GSC = (' ' + GSC.replace('+', ' ')) if GSC != 'none' else ''
ELD = opt('eld', 'none')
ELD = (' ' + ELD.replace('+', ' ')) if ELD != 'none' else ''

def f2u(x):
    return struct.unpack('<I', struct.pack('<f', x))[0]

out = []
def e(s=''):
    out.append(s)
def I(s):
    out.append('    ' + s)
def L(name):
    out.append(name + ':')
def vr(a, n):
    return f'v[{a}:{a+n-1}]' if n > 1 else f'v{a}'
def sr4(a):
    return f's[{a}:{a+3}]'
def sp(a):
    return f's[{a}:{a+1}]'
def p(r):
    return f'v[{r}:{r+1}]'

def srd(d, lo, hi, nrec):
    I(f's_mov_b32 s{d}, s{lo}')
    I(f's_mov_b32 s{d+1}, s{hi}')
    I(f's_mov_b32 s{d+2}, {nrec}')
    I(f's_mov_b32 s{d+3}, 0x00020000')

def srd_off(d, lo, hi, off, nrec):
    I(f's_add_u32 s{d}, s{lo}, {off}')
    I(f's_addc_u32 s{d+1}, s{hi}, 0')
    I(f's_mov_b32 s{d+2}, {nrec}')
    I(f's_mov_b32 s{d+3}, 0x00020000')

def wave_scan(v):
    for sh in (1, 2, 4, 8):
        I('s_nop 1')
        I(f'v_add_u32_dpp v{v}, v{v}, v{v} row_shr:{sh} row_mask:0xf bank_mask:0xf')
    I('s_nop 1')
    I(f'v_add_u32_dpp v{v}, v{v}, v{v} row_bcast:15 row_mask:0xa bank_mask:0xf')
    I('s_nop 1')
    I(f'v_add_u32_dpp v{v}, v{v}, v{v} row_bcast:31 row_mask:0xc bank_mask:0xf')
    I('s_nop 1')

LS = 0
ZR = 18688
LE = 18688
CNT = 56064
MISC = 56320
BASET = 56576
NINFO = 56832
HIST = 57344
HBASE = 58368
DESCP = 59392
EXTRA = 67840
DESCA = 84224
PT = 86784
ACCN = 99328
WRAW = 111872
WG_, WV_, WU_ = WRAW, WRAW + 17408, WRAW + 25600
XOWN = WRAW + 33792
LDS_BYTES = XOWN + 8192
STGW = WRAW
STGE = WRAW + CH * 4
NTI = 0
MAXG = 576
assert STGE + 2048 * 16 <= LDS_BYTES + 8192

V_TID, V_LANE = 0, 1
V_MA, V_MB = 2, 4
V_VAA = (6, 8)
V_VAP = 10
V_PS0, V_PS1, V_PE, V_PD, V_CH8, V_CHP = 12, 13, 14, 15, 16, 17
V_PROF = 18
V_TAB = 20
V_J4, V_CB4 = 24, 25
V_X = 26
V_T01D, V_T01N, V_T23D, V_T23N = 40, 42, 44, 46
B5 = (48, 52)
A5 = 56
V_TT = (60, 62)
G = (64, 80)
Z = 96
S = 112

S_XS, S_WS, S_DST, S_SRC, S_EA, S_RW, S_RE, S_TAB, S_NTS, S_NTG, S_OUT = 12, 16, 20, 24, 28, 32, 36, 40, 44, 48, 52
S_MASK = 56
S_W, S_L, S_CNT, S_JB, S_WID, S_MORE = 72, 73, 74, 75, 76, 77
S_C = 78
S_EX = 80
S_LDX = 82
S_T = 84
S_WSP = 94
S_DBG = 96
S_TAG, S_TAG2 = 100, 101
TAGM = 0xC003C003
TAGL = MISC + 64

NT2 = 2 if opt('touch', 0) else 0
LDXV = 0 if opt('noload', 0) else -1
PROF = opt('prof', 0)
def stamp(i):
    if not PROF:
        return
    I('s_memtime s[98:99]')
    I('s_waitcnt lgkmcnt(0)')
    I(f'v_writelane_b32 v{V_PROF}, s98, {i}')
def rstamp(i):
    if not PROF:
        return
    I('s_memrealtime s[98:99]')
    I('s_waitcnt lgkmcnt(0)')
    I(f'v_writelane_b32 v{V_PROF}, s98, {i}')
def prof_store():
    if not PROF:
        return
    rstamp(31)
    if PROF == 3:
        I(f's_lshl_b32 s98, s2, 4')
        I(f's_add_u32 s98, s98, s{S_W}')
        I(f's_cmp_lg_u32 s98, {opt("pwave", 80)}')
        I('s_cbranch_scc1 L_END')
        I('s_mov_b64 exec, -1')
        I(f'v_readlane_b32 s98, v{V_PROF}, 0')
        I(f'v_readlane_b32 s99, v{V_PROF}, 30')
        I(f'v_readlane_b32 s{S_T}, v{V_PROF}, 31')
        I('s_nop 3')
        I(f's_sub_u32 s{S_T}, s{S_T}, s99')
        I(f's_add_u32 s{S_T}, s{S_T}, s98')
        I(f'v_writelane_b32 v{V_PROF}, s{S_T}, 9')
        I(f'v_subrev_u32 v{V_PROF}, s98, v{V_PROF}')
        I(f'v_mbcnt_lo_u32_b32 v{V_PROF+1}, -1, 0')
        I(f'v_lshlrev_b32 v{V_PROF+1}, 2, v{V_PROF+1}')
        I(f'v_add_u32 v{V_PROF+1}, -8, v{V_PROF+1}')
        I('s_mov_b64 exec, 0x3fff8')
        I(f'global_store_dword v{V_PROF+1}, v{V_PROF}, {sp(S_DBG)}')
        return
    I('s_mov_b64 exec, 0xffffffff')
    I(f's_add_u32 s{S_T}, s{S_WSP}, 0x{WS_PROF:x}')
    I(f's_addc_u32 s{S_T+1}, s{S_WSP+1}, 0')
    I(f'v_mbcnt_lo_u32_b32 v{V_PROF+1}, -1, 0')
    I(f'v_lshlrev_b32 v{V_PROF+1}, 2, v{V_PROF+1}')
    I(f's_lshl_b32 s98, s2, 4')
    I(f's_add_u32 s98, s98, s{S_W}')
    I(f's_lshl_b32 s98, s98, 7')
    I(f'v_add_u32 v{V_PROF+1}, s98, v{V_PROF+1}')
    I(f'global_store_dword v{V_PROF+1}, v{V_PROF}, {sp(S_T)}')

class Lg:
    def __init__(self):
        self.q = []
    def op(self, tag, text):
        I(text)
        self.q.append(tag)
    def need(self, *tags):
        idx = -1
        for t in tags:
            for i in range(len(self.q) - 1, -1, -1):
                if self.q[i] == t:
                    idx = max(idx, i)
                    break
        if idx < 0:
            return
        n = len(self.q) - 1 - idx
        assert n <= 15, (tags, n)
        I(f's_waitcnt lgkmcnt({n})')
        self.q = self.q[idx + 1:]

X = V_X

def fill_zero():
    I(f'v_lshlrev_b32 v{X}, 4, v{V_TID}')
    I(f'v_add_u32 v{X+1}, {ZR}, v{X}')
    for k in range(4):
        I(f'v_mov_b32 v{X+2+k}, 0')
    for k in range(4):
        I(f'ds_write_b128 v{X+1}, v[{X+2}:{X+5}] offset:{k*16384}')
    I(f'v_and_b32 v{X+6}, 15, v{V_TID}')
    I(f'v_lshlrev_b32 v{X+6}, 10, v{X+6}')
    I(f'v_add_u32 v{X+6}, {EXTRA}, v{X+6}')
    for k in range(1, 4):
        I(f'v_add_u32 v{X+6+k}, {256*k}, v{X+6}')
    I(f'v_add_u32 v{X+1}, {DESCA}, v{X}')
    I(f'v_cmp_gt_u32 vcc, 160, v{V_TID}')
    I(f's_and_saveexec_b64 {sp(S_EX)}, vcc')
    I(f'ds_write_b128 v{X+1}, v[{X+6}:{X+9}]')
    I(f's_mov_b64 exec, {sp(S_EX)}')

def fill_words():
    I(f'v_lshlrev_b32 v{X}, 4, v{V_TID}')
    I(f'v_and_b32 v{X+2}, 7, v{V_TID}')
    I(f'v_lshlrev_b32 v{X+2}, 5, v{X+2}')
    I(f'v_add_u32 v{X+2}, {N_NODES*8}, v{X+2}')
    for k in range(1, 4):
        I(f'v_add_u32 v{X+2+k}, {8*k}, v{X+2}')
    I(f'ds_write_b128 v{X}, v[{X+2}:{X+5}] offset:{LS}')
    I(f'v_cmp_gt_u32 vcc, 144, v{V_TID}')
    I(f's_and_saveexec_b64 {sp(S_EX)}, vcc')
    I(f'ds_write_b128 v{X}, v[{X+2}:{X+5}] offset:{LS+16384}')
    I(f's_mov_b64 exec, {sp(S_EX)}')

def tail_ops(n):
    return [f'v_rcp_f32 v{V_T01D}, v{V_T01D}',
            f'v_rcp_f32 v{V_T01D+1}, v{V_T01D+1}',
            f'v_rcp_f32 v{V_T23D}, v{V_T23D}',
            f'v_rcp_f32 v{V_T23D+1}, v{V_T23D+1}',
            f'v_fmac_f32 v{V_MA+n}, v{V_T01N}, v{V_T01D}',
            f'v_fmac_f32 v{V_MB+n}, v{V_T01N+1}, v{V_T01D+1}',
            f'v_fmac_f32 v{V_MA+n}, v{V_T23N}, v{V_T23D}',
            f'v_fmac_f32 v{V_MB+n}, v{V_T23N+1}, v{V_T23D+1}']

def gload(n, i):
    return f'buffer_load_dword v{G[n]+i}, v{S + (i & 1) * 8 + (i >> 1)}, {sr4(S_NTG)}, 0 offen offset:{4*n}' + GSC

def s_reads(lg, uo):
    lg.op('S0', f'ds_read_b128 {vr(S,4)}, v{V_PS0} offset:{uo*32}')
    lg.op('S1', f'ds_read_b128 {vr(S+4,4)}, v{V_PS0} offset:{uo*32+16}')
    lg.op('S2', f'ds_read_b128 {vr(S+8,4)}, v{V_PS1} offset:{uo*32}')
    lg.op('S3', f'ds_read_b128 {vr(S+12,4)}, v{V_PS1} offset:{uo*32+16}')

def half(lg, n, par, uo, with_tail=True):
    g = G[n]
    I('s_waitcnt vmcnt(16)')
    if n == 0:
        lg.need('P0a', 'P0b', 'e')
    else:
        lg.need('P1a', 'P1b')
    I(f'v_mfma_f32_32x32x16_bf16 {vr(Z,16)}, {vr(A5,4)}, {vr(B5[n],4)}, {vr(g,16)}')
    t = tail_ops(n ^ 1)
    va_prev, va_cur, va_nxt = V_VAA[par ^ 1], V_VAA[par], V_VAA[par ^ 1]
    if with_tail:
        for op in t[:4]:
            I(op)
        if n == 1:
            lg.need('Ra', 'Rb')
        for op in t[4:]:
            I(op)
    else:
        I('s_nop 7')
    if n == 0:
        if with_tail:
            lg.op('Wa', f'ds_write_b64 v{va_prev}, {p(V_MA)}')
            lg.op('Wb', f'ds_write_b64 v{va_prev+1}, {p(V_MB)}')
        lg.op('Ra', f'ds_read_b64 {p(V_MA)}, v{va_cur}')
        lg.op('Rb', f'ds_read_b64 {p(V_MB)}, v{va_cur+1}')
        lg.op('dP', f'ds_read_b64 {p(V_VAP)}, v{V_PD} offset:{(uo+1)*256}')
        lg.op('dA', f'ds_read_b64 {p(va_nxt)}, v{V_PD} offset:{(uo+1)*256 + DESCA - DESCP}')
    else:
        lg.op('e', f'ds_read_b64 {p(A5)}, v{V_PE} offset:{(uo+1)*64}')
        lg.op('P1a', f'ds_read_b32 v{B5[1]+2}, v{V_VAP} offset:4')
        lg.op('P1b', f'ds_read_b32 v{B5[1]+3}, v{V_VAP+1} offset:4')
    sh = [f'v_lshlrev_b32 v{g+i}, 16, v{g+i}' for i in range(16)]
    ex = [f'v_exp_f32 v{Z+i}, v{Z+i} clamp' for i in range(16)]
    for op in sh[:4]:
        I(op)
    for i in range(12):
        I(ex[i])
        I(sh[4 + i])
        if n == 0 and i == 7:
            lg.need('dP', 'dA')
            I(f'v_add_u32 v{V_VAP}, v{V_VAP}, v{V_CHP}')
            I(f'v_add_u32 v{V_VAP+1}, v{V_VAP+1}, v{V_CHP}')
            I(f'v_add_u32 v{va_nxt}, v{va_nxt}, v{V_CH8}')
            I(f'v_add_u32 v{va_nxt+1}, v{va_nxt+1}, v{V_CH8}')
            lg.op('P0a', f'ds_read_b32 v{B5[0]+2}, v{V_VAP}')
            lg.op('P0b', f'ds_read_b32 v{B5[0]+3}, v{V_VAP+1}')
    for op in ex[12:]:
        I(op)
    for i in range(0, 16, 2):
        I(f'v_pk_add_f32 {p(Z+i)}, {p(Z+i)}, {sp(S_C)}')
    def T(k): return f'v_pk_mul_f32 {p(V_TT[k&1])}, {p(g+4*k)}, {p(Z+4*k+2)}'
    def DD(k): return f'v_pk_mul_f32 {p(Z+4*k+2)}, {p(Z+4*k)}, {p(Z+4*k+2)}'
    def NN(k): return f'v_pk_fma_f32 {p(Z+4*k)}, {p(g+4*k+2)}, {p(Z+4*k)}, {p(V_TT[k&1])}'
    for k0 in (0, 2):
        for op in (T(k0), T(k0 + 1), DD(k0), DD(k0 + 1), NN(k0), NN(k0 + 1)):
            I(op)
        if n == 0 and k0 == 0:
            lg.need('S0', 'S1', 'S2', 'S3')
        I(f's_mov_b64 exec, {sp(S_LDX)}')
        for i in range(4 * k0, 4 * k0 + 8):
            I(gload(n, i))
        I('s_mov_b64 exec, -1')
    if n == 1:
        s_reads(lg, uo + 2)
    I(f'v_pk_mul_f32 {p(V_T01N)}, {p(Z)}, {p(Z+6)}')
    I(f'v_pk_mul_f32 {p(V_T23N)}, {p(Z+8)}, {p(Z+14)}')
    I(f'v_pk_mul_f32 {p(V_T01D)}, {p(Z+2)}, {p(Z+6)}')
    I(f'v_pk_mul_f32 {p(V_T23D)}, {p(Z+10)}, {p(Z+14)}')
    I(f'v_pk_fma_f32 {p(V_T01N)}, {p(Z+4)}, {p(Z+2)}, {p(V_T01N)}')
    I(f'v_pk_fma_f32 {p(V_T23N)}, {p(Z+12)}, {p(Z+10)}, {p(V_T23N)}')

def prio(tag):
    pr = opt('prio', 0)
    if not pr:
        return
    th = {1: (4, 2, 1), 2: (5, 3, 1), 3: (3, 2, 1), 4: (6, 4, 2)}[pr]
    for lvl, t in zip((2, 1, 0), th):
        I(f's_cmp_eq_u32 s{S_CNT}, {t}')
        I(f's_cbranch_scc0 L_PR{tag}_{lvl}')
        I(f's_setprio {lvl}')
        L(f'L_PR{tag}_{lvl}')

def split_hilo(a, b, t0, t1):
    I(f'v_cvt_pk_bf16_f32 v{t0}, v{a}, v{b}')
    I(f'v_lshlrev_b32 v{t1}, 16, v{t0}')
    I(f'v_and_b32 v{t0}, 0xffff0000, v{t0}')
    I(f'v_sub_f32 v{a}, v{a}, v{t1}')
    I(f'v_sub_f32 v{b}, v{b}, v{t0}')
    I(f'v_cvt_pk_bf16_f32 v{a}, v{t1}, v{a}')
    I(f'v_cvt_pk_bf16_f32 v{b}, v{t0}, v{b}')

def gen():
    e(f'.globl {KNAME}')
    e('.p2align 8')
    e(f'.type {KNAME},@function')
    L(KNAME)
    I(f's_cmp_ge_u32 s2, {NWG}')
    I('s_cbranch_scc1 L_END')
    I('s_load_dwordx8 s[84:91], s[0:1], 0')
    if opt('xmap', 1):
        I('s_and_b32 s3, s2, 7')
        I('s_lshl_b32 s3, s3, 5')
        I('s_lshr_b32 s60, s2, 3')
        I('s_add_u32 s3, s3, s60')
    else:
        I('s_mov_b32 s3, s2')
    I('s_load_dwordx4 s[4:7], s[0:1], 32')
    I('s_load_dwordx4 s[8:11], s[0:1], 48')
    I('s_load_dwordx4 s[56:59], s[0:1], 64')
    if PROF:
        I(f'v_mov_b32 v{V_PROF}, 0')
    rstamp(30)
    stamp(0)
    I(f'v_lshrrev_b32 v{X}, 6, v{V_TID}')
    I(f'v_and_b32 v{V_LANE}, 63, v{V_TID}')
    I(f'v_readfirstlane_b32 s{S_W}, v{X}')
    I(f'v_lshlrev_b32 v{X+1}, 4, v{V_LANE}')
    I(f'v_lshrrev_b32 v{X+3}, 3, v{V_TID}')
    I(f'v_bfe_u32 v{X+4}, v{X+3}, 1, 3')
    I(f'v_and_b32 v{X+5}, 7, v{V_TID}')
    I(f'v_xor_b32 v{X+4}, v{X+4}, v{X+5}')
    I(f'v_lshlrev_b32 v{X+4}, 4, v{X+4}')
    I(f'v_lshl_add_u32 v{X+4}, v{X+3}, 7, v{X+4}')
    I(f's_mul_i32 s60, s3, {NB*128}')
    I(f'v_add_u32 v{X+4}, s60, v{X+4}')
    I(f'v_lshlrev_b32 v{X+6}, 2, v{V_TID}')
    I(f'v_lshlrev_b32 v{X+7}, 3, v{V_TID}')
    I(f's_mul_i32 s61, s2, {CH*4}')
    I(f's_mul_i32 s62, s2, {CH*8}')
    I(f's_mul_i32 s63, s2, {CH}')
    I(f's_sub_u32 s63, {E_EDGES}, s63')
    I(f's_min_u32 s63, s63, {CH}')
    I(f's_lshl_b32 s64, s63, 2')
    I(f's_lshl_b32 s65, s63, 3')
    I(f's_lshl_b32 s66, s{S_W}, 10')
    I(f'v_add_u32 v{X+2}, s66, v{X+1}')
    I('s_waitcnt lgkmcnt(0)')
    I(f's_mov_b64 {sp(S_DBG)}, s[56:57]')
    I(f's_mov_b64 {sp(S_WSP)}, s[58:59]')
    I(f's_or_b32 s67, s2, s{S_W}')
    I('s_cmp_lg_u32 s67, 0')
    I('s_cbranch_scc1 L_NOTAG')
    I('s_memrealtime s[68:69]')
    I(f'v_mov_b32 v{X+8}, 0')
    I('s_waitcnt lgkmcnt(0)')
    I('s_or_b32 s68, s68, 1')
    I(f'v_mov_b32 v{X+9}, s68')
    I('s_mov_b64 exec, 1')
    I(f'global_store_dword v{X+8}, v{X+9}, {sp(S_DBG)} sc1')
    I('s_mov_b64 exec, -1')
    L('L_NOTAG')
    srd(S_WS, 8, 9, 132 * 128)
    I(f's_add_u32 m0, s66, {WG_}')
    srd(S_XS, 84, 85, N_NODES * 128)
    I(f'buffer_load_dwordx4 v{X+2}, {sr4(S_WS)}, 0 offen lds')
    I(f's_cmp_lt_u32 s{S_W}, 8')
    I(f's_cselect_b32 s{S_RW}, s6, s4')
    I(f's_cselect_b32 s{S_RW+1}, s7, s5')
    I(f's_mov_b32 s{S_RW+2}, {64*128}')
    I(f's_mov_b32 s{S_RW+3}, 0x00020000')
    I(f'v_and_b32 v{X+8}, 0x1fff, v{X+2}')
    I(f's_add_u32 m0, s66, {WV_}')
    I('s_nop 0')
    I(f'buffer_load_dwordx4 v{X+8}, {sr4(S_RW)}, 0 offen lds')
    I(f's_cmp_lt_u32 s{S_W}, 8')
    I('s_cbranch_scc0 L_D3B')
    I(f's_add_u32 m0, s66, {XOWN}')
    I('s_nop 0')
    I(f'buffer_load_dwordx4 v{X+4}, {sr4(S_XS)}, 0 offen lds')
    I('s_branch L_D3C')
    L('L_D3B')
    I(f'v_add_u32 v{X+8}, 16384, v{X+1}')
    I(f's_mov_b32 m0, {WG_ + 16384}')
    I('s_nop 0')
    I(f'buffer_load_dwordx4 v{X+8}, {sr4(S_WS)}, 0 offen lds')
    L('L_D3C')
    srd_off(S_DST, 90, 91, 's61', 's64')
    I(f'buffer_load_dword v64, v{X+6}, {sr4(S_DST)}, 0 offen' + ELD)
    I(f'v_add_u32 v{X+8}, 4096, v{X+6}')
    I(f'v_add_u32 v{X+9}, 8192, v{X+6}')
    I(f'v_add_u32 v{X+10}, 12288, v{X+6}')
    for k in range(1, 4):
        I(f'buffer_load_dword v{64+k}, v{X+7+k}, {sr4(S_DST)}, 0 offen' + ELD)
    srd_off(S_SRC, 88, 89, 's61', 's64')
    I(f'buffer_load_dword v68, v{X+6}, {sr4(S_SRC)}, 0 offen' + ELD)
    for k in range(1, 4):
        I(f'buffer_load_dword v{68+k}, v{X+7+k}, {sr4(S_SRC)}, 0 offen' + ELD)
    srd_off(S_EA, 86, 87, 's62', 's65')
    I(f'buffer_load_dwordx2 v[72:73], v{X+7}, {sr4(S_EA)}, 0 offen' + ELD)
    for k in range(1, 4):
        I(f'v_add_u32 v{X+7+k}, {8192*k}, v{X+7}')
        I(f'buffer_load_dwordx2 v[{72+2*k}:{73+2*k}], v{X+7+k}, {sr4(S_EA)}, 0 offen' + ELD)
    if opt('touch', 0):
        I(f'v_and_b32 v{X+8}, 15, v{V_LANE}')
        I(f'v_lshlrev_b32 v{X+8}, 20, v{X+8}')
        I(f'v_mov_b32 v{X+9}, 0')
        I(f'global_load_dword v60, v{X+8}, {sp(S_WSP)}')
        I(f'global_load_dword v61, v{X+9}, s[10:11]')
    stamp(1)
    srd(S_OUT, 10, 11, N_NODES * 128)
    I(f's_add_u32 s{S_T}, s61, 0x{WS_RW:x}')
    srd_off(S_RW, S_WSP, S_WSP + 1, f's{S_T}', CH * 4)
    I(f's_add_u32 s{S_T}, s62, 0x{WS_RE:x}')
    srd_off(S_RE, S_WSP, S_WSP + 1, f's{S_T}', CH * 8)
    I(f's_lshl_b32 s{S_T}, s2, 11')
    I(f's_add_u32 s{S_T}, s{S_T}, 0x{WS_TAB:x}')
    srd_off(S_TAB, S_WSP, S_WSP + 1, f's{S_T}', 2048)
    I(f's_mul_i32 s{S_T}, s3, {NB*256}')
    I(f's_add_u32 s{S_T}, s{S_T}, 0x{WS_NT:x}')
    srd_off(S_NTS, S_WSP, S_WSP + 1, f's{S_T}', NB * 256)
    I(f's_add_u32 s{S_NTG}, s{S_WSP}, 0x{WS_NT:x}')
    I(f's_addc_u32 s{S_NTG+1}, s{S_WSP+1}, 0')
    I(f's_or_b32 s{S_NTG+1}, s{S_NTG+1}, 0x80000000')
    I(f's_mov_b32 s{S_NTG+2}, 0x400000')
    I(f's_mov_b32 s{S_NTG+3}, 0x00c00000')
    for k in range(4):
        I(f'v_add_u32 v{X}, {1024*k}, v{V_TID}')
        I(f'v_cmp_gt_u32 {sp(S_MASK+2*k)}, s63, v{X}')
    I(f's_mov_b32 s{S_C}, 0x{f2u(2.0**-KEXP):x}')
    I(f's_mov_b32 s{S_C+1}, 0x{f2u(2.0**-KEXP):x}')
    I(f's_mov_b32 s{S_JB}, 0')
    I(f's_mov_b32 s{S_WID}, 128')
    I(f'v_and_b32 v{V_J4}, 15, v{V_LANE}')
    I(f'v_lshlrev_b32 v{V_J4}, 2, v{V_J4}')
    I(f'v_lshrrev_b32 v{X}, 4, v{V_LANE}')
    I(f's_lshl_b32 s{S_T}, s{S_W}, 4')
    I(f'v_add_u32 v{X}, s{S_T}, v{X}')
    I(f'v_mul_u32_u24 v{V_CB4}, {CH*4}, v{X}')
    I(f'v_add_u32 v{V_CB4}, v{V_CB4}, v{V_J4}')
    I(f'v_and_b32 v{V_CH8}, 31, v{V_LANE}')
    I(f'v_lshlrev_b32 v{V_CH8}, 3, v{V_CH8}')
    I(f'v_add_u32 v{V_CHP}, {PT}, v{V_CH8}')
    fill_zero()
    I(f's_waitcnt vmcnt({12 + NT2}) lgkmcnt(0)')
    I('s_barrier')
    stamp(2)
    SA, SB1, SD1, SB2, SD2 = 80, 96, 112, 44, 28
    I(f's_cmp_lg_u32 s{S_W}, 15')
    I('s_cbranch_scc1 L_P0GO')
    I(f'v_mov_b32 v12, 0')
    I(f's_mov_b32 s{S_T}, 0x40000')
    L('L_TAGP')
    I(f'global_load_dword v13, v12, {sp(S_DBG)} sc1')
    I('s_waitcnt vmcnt(0)')
    I(f'v_readfirstlane_b32 s{S_T+1}, v13')
    I(f's_sub_u32 s{S_T}, s{S_T}, 1')
    I(f's_cselect_b32 s{S_T+1}, 1, s{S_T+1}')
    I(f's_cmp_eq_u32 s{S_T+1}, 0')
    I('s_cbranch_scc0 L_TAGD')
    I('s_sleep 4')
    I('s_branch L_TAGP')
    L('L_TAGD')
    I(f'v_mov_b32 v12, {TAGL}')
    I(f'ds_write_b32 v12, v13')
    L('L_P0GO')
    I(f's_cmp_ge_u32 s{S_W}, 12')
    I('s_cbranch_scc1 L_P0END')
    I(f's_and_b32 s{S_T}, s{S_W}, 1')
    I(f's_bfe_u32 s{S_T+1}, s{S_W}, 0x10001')
    I(f's_lshr_b32 s{S_T+2}, s{S_W}, 2')
    I(f'v_and_b32 v12, 31, v{V_LANE}')
    I(f'v_bfe_u32 v13, v{V_LANE}, 1, 3')
    I(f'v_lshrrev_b32 v14, 5, v{V_LANE}')
    I(f'v_xor_b32 v13, v13, v14')
    I(f'v_lshlrev_b32 v13, 4, v13')
    I(f'v_lshl_or_b32 v13, v12, 7, v13')
    I(f's_lshl_b32 s{S_T+3}, s{S_T}, 12')
    I(f's_add_u32 s{S_T+3}, s{S_T+3}, {XOWN}')
    for sg in range(4):
        I(f'v_xor_b32 v15, {sg*32}, v13')
        I(f'v_add_u32 v15, s{S_T+3}, v15')
        I(f'ds_read_b128 {vr(SA+4*sg,4)}, v15')
    I(f'v_bfe_u32 v13, v{V_LANE}, 2, 2')
    I(f'v_lshl_add_u32 v13, v14, 3, v13')
    I(f'v_lshlrev_b32 v13, 7, v13')
    I(f'v_bfe_u32 v15, v{V_LANE}, 4, 1')
    I(f'v_lshl_add_u32 v13, v15, 5, v13')
    I(f'v_and_b32 v15, 3, v{V_LANE}')
    I(f'v_lshl_add_u32 v13, v15, 3, v13')
    I(f's_lshl_b32 s{S_T+3}, s{S_T+1}, 6')
    I(f's_mov_b32 s{S_T+4}, {WG_}')
    I(f's_cmp_eq_u32 s{S_T+2}, 0')
    I(f's_cselect_b32 s{S_T+4}, {WG_ + 8192}, s{S_T+4}')
    I(f's_cmp_eq_u32 s{S_T+2}, 2')
    I(f's_cselect_b32 s{S_T+4}, {WU_}, s{S_T+4}')
    I(f's_add_u32 s{S_T+4}, s{S_T+4}, s{S_T+3}')
    I(f'v_add_u32 v15, s{S_T+4}, v13')
    for sg in range(4):
        for pp in range(2):
            I(f'ds_read_b64_tr_b16 {vr(SB1+4*sg+2*pp,2)}, v15 offset:{sg*2048+pp*512}')
    I(f's_lshl_b32 s{S_T+5}, s{S_T}, 13')
    I(f'v_lshlrev_b32 v14, 10, v14')
    I(f'v_add_u32 v14, s{S_T+5}, v14')
    I('s_waitcnt lgkmcnt(0)')
    for sg in range(4):
        I(f'v_mfma_f32_32x32x16_bf16 {vr(SD1,16)}, {vr(SA+4*sg,4)}, {vr(SB1+4*sg,4)}, ' + ('0' if sg == 0 else vr(SD1, 16)))
    I(f's_cmp_lg_u32 s{S_T+2}, 0')
    I('s_cbranch_scc1 L_P0PU')
    I(f's_add_u32 s{S_T+4}, s{S_T+3}, {WV_}')
    I(f'v_add_u32 v15, s{S_T+4}, v13')
    for sg in range(4):
        for pp in range(2):
            I(f'ds_read_b64_tr_b16 {vr(SB2+4*sg+2*pp,2)}, v15 offset:{sg*2048+pp*512}')
    I(f's_lshl_b32 s{S_T+3}, s{S_T+1}, 7')
    I(f'v_lshl_add_u32 v14, v12, 2, v14')
    I(f'v_add_u32 v14, s{S_T+3}, v14')
    I(f's_mov_b32 s{S_T+4}, 0x{f2u(-LOG2E):x}')
    I(f's_mov_b32 s{S_T+5}, 0x{f2u(2.0**SV):x}')
    I(f's_mov_b32 s{S_T+6}, 0x7fffffff')
    I(f's_mov_b32 s{S_T+7}, 0xffff0000')
    I('s_waitcnt lgkmcnt(0)')
    for sg in range(4):
        I(f'v_mfma_f32_32x32x16_bf16 {vr(SD2,16)}, {vr(SA+4*sg,4)}, {vr(SB2+4*sg,4)}, ' + ('0' if sg == 0 else vr(SD2, 16)))
    for i in range(16):
        I(f'v_mul_f32 v{SD1+i}, s{S_T+4}, v{SD1+i}')
    for i in range(16):
        I(f'v_mul_f32 v{SD2+i}, s{S_T+5}, v{SD2+i}')
    for i in range(16):
        q, h = SD1 + i, SD2 + i
        I(f'v_cvt_pk_bf16_f32 v{h}, v{h}, v{h}')
        I(f'v_and_b32 v13, s{S_T+6}, v{q}')
        I(f'v_and_b32 v{h}, 0xffff, v{h}')
        I(f'v_add_u32 v13, 0x8000, v13')
        I(f'v_sub_u32 v13, v13, v{h} clamp')
        I(f'v_and_or_b32 v13, v13, s{S_T+7}, v{h}')
        I(f'v_bfi_b32 v{q}, s{S_T+6}, v13, v{q}')
    I('s_branch L_P0WR')
    L('L_P0PU')
    I(f's_lshl_b32 s{S_T+3}, s{S_T+1}, 2')
    I(f'v_add_u32 v14, v14, v{V_CH8}')
    I(f'v_add_u32 v14, s{S_T+3}, v14')
    I('s_nop 7')
    I(f's_cmp_eq_u32 s{S_T+2}, 2')
    I('s_cbranch_scc1 L_P0U')
    I(f'v_add_u32 v14, {PT}, v14')
    I(f's_mov_b32 s{S_T+4}, 0x{f2u(-LOG2E):x}')
    I(f'v_mov_b32 v13, 0x{f2u(-float(KEXP)):x}')
    for i in range(16):
        I(f'v_fma_f32 v{SD1+i}, v{SD1+i}, s{S_T+4}, v13')
    for i in range(0, 16, 2):
        split_hilo(SD1 + i, SD1 + i + 1, 12, 13)
    I('s_branch L_P0WR')
    L('L_P0U')
    I(f'v_add_u32 v14, {ACCN}, v14')
    I(f's_mov_b32 s{S_T+4}, 0x{f2u(2.0**(SV+KEXP)):x}')
    for i in range(16):
        I(f'v_mul_f32 v{SD1+i}, s{S_T+4}, v{SD1+i}')
    L('L_P0WR')
    for i in range(8):
        I(f'ds_write_b32 v14, v{SD1+i} offset:{((i&3)+8*(i>>2))*256}')
    I(f's_cmp_eq_u32 s{S_T}, 0')
    I('s_cbranch_scc1 L_P0W0')
    I('s_mov_b64 exec, 0xffffffff')
    I(f'ds_write_b32 v14, v{SD1+8} offset:{16*256}')
    I('s_mov_b64 exec, -1')
    I('s_branch L_P0END')
    L('L_P0W0')
    for i in range(8, 16):
        I(f'ds_write_b32 v14, v{SD1+i} offset:{((i&3)+8*(i>>2))*256}')
    L('L_P0END')
    I(f'v_bfe_u32 v13, v{V_LANE}, 2, 2')
    I(f'v_lshlrev_b32 v13, 7, v13')
    I(f'v_bfe_u32 v15, v{V_LANE}, 4, 1')
    I(f'v_lshl_add_u32 v13, v15, 5, v13')
    I(f'v_and_b32 v15, 3, v{V_LANE}')
    I(f'v_lshl_add_u32 v13, v15, 3, v13')
    I(f'v_add_u32 v13, {WG_ + 16384}, v13')
    I(f'ds_read_b64_tr_b16 v[28:29], v13')
    I(f'ds_read_b64_tr_b16 v[30:31], v13 offset:64')
    I(f's_mov_b32 s{S_T+4}, 0x{f2u(-LOG2E):x}')
    I(f'v_cmp_lt_u32 vcc, 31, v{V_LANE}')
    I('s_waitcnt lgkmcnt(0)')
    for m in range(4):
        I(f'v_lshlrev_b32 v{32+2*m}, 16, v{28+m}')
        I(f'v_and_b32 v{33+2*m}, 0xffff0000, v{28+m}')
    for j in range(8):
        I(f'v_mul_f32 v{32+j}, s{S_T+4}, v{32+j}')
    for m in range(4):
        dst = B5[m >> 1] + (m & 1)
        I(f'v_cvt_pk_bf16_f32 v{28+m}, v{32+2*m}, v{33+2*m}')
        I(f'v_lshlrev_b32 v12, 16, v{28+m}')
        I(f'v_and_b32 v13, 0xffff0000, v{28+m}')
        I(f'v_sub_f32 v12, v{32+2*m}, v12')
        I(f'v_sub_f32 v13, v{33+2*m}, v13')
        I(f'v_cvt_pk_bf16_f32 v12, v12, v13')
        I(f'v_cndmask_b32 v{dst}, v{28+m}, v12, vcc')
    I(f'v_bfe_u32 v12, v{V_LANE}, 2, 1')
    I(f'v_lshrrev_b32 v13, 5, v{V_LANE}')
    I(f'v_xor_b32 v12, v12, v13')
    I(f'v_and_b32 v13, 1, v{V_LANE}')
    I(f'v_lshl_or_b32 v12, v12, 1, v13')
    I(f'v_mov_b32 v13, 0x3f803f80')
    I(f'v_cmp_eq_u32 vcc, 0, v12')
    I(f'v_cmp_eq_u32 {sp(S_T)}, 1, v12')
    I('s_nop 1')
    I(f'v_cndmask_b32 v{A5+2}, 0, v13, vcc')
    I(f'v_cndmask_b32 v{A5+3}, 0, v13, {sp(S_T)}')
    I(f'v_lshlrev_b32 v{X}, 4, v{V_TID}')
    I('s_waitcnt lgkmcnt(0)')
    I('s_barrier')
    stamp(3)
    I(f'v_mov_b32 v12, {TAGL}')
    I(f'ds_read_b128 v[{X+2}:{X+5}], v{X} offset:{NTI}')
    I(f'ds_read_b32 v12, v12')
    I(f's_mov_b32 s{S_T}, -{NB}')
    I(f'v_mov_b32 v{X+1}, 4')
    I('s_waitcnt lgkmcnt(0)')
    I(f'v_readfirstlane_b32 s{S_TAG}, v12')
    I(f'buffer_store_dwordx4 v[{X+2}:{X+5}], v{X}, {sr4(S_NTS)}, 0 offen' + SC)
    for k in range(4):
        I(f's_waitcnt vmcnt({12 + NT2 - k})')
        I(f's_mov_b64 exec, {sp(S_MASK+2*k)}')
        if k == 3:
            I('s_cbranch_execz L_B1')
        I(f'v_mul_u32_u24 v{80+k}, 21400, v{64+k}')
        I(f'v_lshrrev_b32 v{80+k}, 20, v{80+k}')
        I(f'v_mad_i32_i24 v{84+k}, v{80+k}, s{S_T}, v{64+k}')
        I(f'v_lshlrev_b32 v{80+k}, 2, v{80+k}')
        I(f'ds_add_rtn_u32 v{88+k}, v{80+k}, v{X+1} offset:{HIST}')
        I(f'v_lshlrev_b32 v{84+k}, 26, v{84+k}')
    L('L_B1')
    I('s_mov_b64 exec, -1')
    stamp(4)
    I('s_waitcnt lgkmcnt(0)')
    I('s_barrier')
    stamp(5)
    I(f's_mul_i32 s{S_TAG2}, s{S_TAG}, 0x9e3779b1')
    I(f's_and_b32 s{S_TAG2}, s{S_TAG2}, 0x{TAGM:x}')
    I(f's_cmp_lg_u32 s{S_W}, 0')
    I('s_cbranch_scc1 L_NOSCAN')
    I(f'ds_read_b128 v[96:99], v{X} offset:{HIST}')
    I('s_waitcnt lgkmcnt(0)')
    I('v_add_u32 v101, v96, v97')
    I('v_add_u32 v102, v101, v98')
    I('v_add_u32 v103, v102, v99')
    I('v_mov_b32 v104, v103')
    wave_scan(104)
    I('v_sub_u32 v104, v104, v103')
    I('v_add_u32 v105, v104, v96')
    I('v_add_u32 v106, v104, v101')
    I('v_add_u32 v107, v104, v102')
    I(f'ds_write_b128 v{X}, v[104:107] offset:{HBASE}')
    for k in range(4):
        I(f'v_lshl_or_b32 v{112+2*k}, v{96+k}, 16, v{104+k}')
        I(f'v_or_b32 v{112+2*k}, s{S_TAG2}, v{112+2*k}')
        I(f'v_mov_b32 v{113+2*k}, s{S_TAG}')
    L('L_NOSCAN')
    fill_words()
    I(f's_waitcnt vmcnt({5 + NT2})')
    for k in range(4):
        I(f'v_lshl_or_b32 v{84+k}, v{68+k}, 3, v{84+k}')
    I('s_waitcnt lgkmcnt(0)')
    I('s_barrier')
    stamp(6)
    for k in range(4):
        I(f's_mov_b64 exec, {sp(S_MASK+2*k)}')
        I(f'ds_read_b32 v{80+k}, v{80+k} offset:{HBASE}')
    I(f's_mov_b32 s{S_T}, {STGW}')
    I(f's_mov_b32 s{S_T+1}, {STGE}')
    I(f's_waitcnt vmcnt({1 + NT2})')
    for k in range(4):
        I(f's_mov_b64 exec, {sp(S_MASK+2*k)}')
        if k == 3:
            I('s_cbranch_execz L_B2')
        I(f's_waitcnt lgkmcnt({3 - k + 2*k})')
        I(f'v_add3_u32 v{88+k}, v{80+k}, v{88+k}, s{S_T}')
        I(f'v_add_u32 v{80+k}, v{88+k}, v{88+k}')
        I(f'ds_write_b32 v{88+k}, v{84+k}')
        I(f'v_add_u32 v{80+k}, {(STGE - 2*STGW) & 0xffffffff}, v{80+k}')
        I(f'ds_write_b64 v{80+k}, v[{72+2*k}:{73+2*k}]')
    L('L_B2')
    I('s_mov_b64 exec, -1')
    I(f'v_lshlrev_b32 v{X}, 4, v{V_TID}')
    I(f'v_add_u32 v{X+1}, {STGW}, v{X}')
    I(f'v_add_u32 v{X+2}, 16384, v{X}')
    I('s_waitcnt lgkmcnt(0)')
    I('s_barrier')
    stamp(7)
    I(f'ds_read_b128 v[64:67], v{X+1}')
    I(f'ds_read_b128 v[68:71], v{X+1} offset:{STGE-STGW}')
    I(f'ds_read_b128 v[72:75], v{X+1} offset:{STGE-STGW+16384}')
    I('s_waitcnt lgkmcnt(2)')
    I(f'buffer_store_dwordx4 v[64:67], v{X}, {sr4(S_RW)}, 0 offen' + SC)
    I('s_waitcnt lgkmcnt(1)')
    I(f'buffer_store_dwordx4 v[68:71], v{X}, {sr4(S_RE)}, 0 offen' + SC)
    I('s_waitcnt lgkmcnt(0)')
    I(f'buffer_store_dwordx4 v[72:75], v{X+2}, {sr4(S_RE)}, 0 offen' + SC)
    srd_off(S_DST, S_WSP, S_WSP + 1, '0x%x' % WS_RW, NWG * CH * 4)
    srd_off(S_SRC, S_WSP, S_WSP + 1, '0x%x' % WS_RE, NWG * CH * 8)
    srd_off(S_EA, S_WSP, S_WSP + 1, '0x%x' % WS_TAB, NWG * 2048)
    I(f'v_lshrrev_b32 v{X}, 4, v{V_LANE}')
    I(f's_lshl_b32 s{S_T}, s{S_W}, 15')
    I(f's_lshl_b32 s{S_T+1}, s3, 3')
    I(f's_add_u32 s{S_T}, s{S_T}, s{S_T+1}')
    I(f'v_lshlrev_b32 v{X}, 11, v{X}')
    I(f'v_add_u32 v{X}, s{S_T}, v{X}')
    for r in range(1, 4):
        I(f'v_add_u32 v{X+r}, {8192*r}, v{X}')
    I(f'v_lshlrev_b32 v{X+4}, 5, v{V_LANE}')
    I(f's_mov_b32 s{S_T}, 0x40000')
    I(f's_mov_b32 s{S_T+1}, 0x{TAGM:x}')
    I('s_waitcnt vmcnt(0)')
    stamp(8)
    I('s_barrier')
    I(f's_cmp_lg_u32 s{S_W}, 0')
    I('s_cbranch_scc1 L_POLL')
    I(f'buffer_store_dwordx4 v[112:115], v{X+4}, {sr4(S_TAB)}, 0 offen' + SC)
    I(f'buffer_store_dwordx4 v[116:119], v{X+4}, {sr4(S_TAB)}, 0 offen offset:16' + SC)
    L('L_POLL')
    for r in range(4):
        I(f'buffer_load_dwordx2 {p(64+2*r)}, v{X+r}, {sr4(S_EA)}, 0 offen' + LSC)
    I('s_waitcnt vmcnt(0)')
    for r in range(4):
        I(f'v_xor_b32 v{V_TAB+r}, s{S_TAG2}, v{64+2*r}')
        I(f'v_xor_b32 v{65+2*r}, s{S_TAG}, v{65+2*r}')
        I(f'v_and_or_b32 v{65+2*r}, v{V_TAB+r}, s{S_T+1}, v{65+2*r}')
    I('v_or3_b32 v65, v65, v67, v69')
    I('v_or_b32 v65, v65, v71')
    I('v_cmp_ne_u32 vcc, 0, v65')
    I(f's_sub_u32 s{S_T}, s{S_T}, 1')
    I('s_cbranch_scc1 L_END')
    I('s_cbranch_vccz L_POLLED')
    I(f's_sleep {opt("sleep", 2)}')
    I('s_branch L_POLL')
    L('L_POLLED')
    stamp(10)
    REC = 64
    A4, A8 = X, X + 4
    L('L_PASS')
    I(f'v_add_u32 v{X+8}, s{S_JB}, v{V_J4}')
    I(f'v_add_u32 v{X+9}, 64, v{X+8}')
    I(f'v_add_u32 v{X+10}, s{S_JB}, v{V_CB4}')
    I(f's_cmp_eq_u32 s{S_WID}, 128')
    I(f's_cselect_b64 {sp(S_T+4)}, -1, 0')
    for r in range(4):
        I(f'v_add_u32_sdwa v{A4+r}, v{V_TAB+r}, v{X+10} dst_sel:DWORD dst_unused:UNUSED_PAD src0_sel:WORD_0 src1_sel:DWORD')
        I(f'v_cmp_lt_u32_sdwa {sp(S_MASK+4*r)}, v{X+8}, v{V_TAB+r} src0_sel:DWORD src1_sel:WORD_1')
        if r:
            I(f'v_add_u32 v{A4+r}, {r*4*CH*4}, v{A4+r}')
        I(f'v_cmp_lt_u32_sdwa vcc, v{X+9}, v{V_TAB+r} src0_sel:DWORD src1_sel:WORD_1')
        I(f'v_add_u32 v{A8+r}, v{A4+r}, v{A4+r}')
        I(f's_and_b64 {sp(S_MASK+4*r+2)}, vcc, {sp(S_T+4)}')
        I(f's_mov_b64 exec, {sp(S_MASK+4*r)}')
        I(f'buffer_load_dword v{REC+8*r+2}, v{A4+r}, {sr4(S_DST)}, 0 offen' + LSC)
        I(f'buffer_load_dwordx2 {p(REC+8*r)}, v{A8+r}, {sr4(S_SRC)}, 0 offen' + LSC)
        I('s_mov_b64 exec, -1')
    for r in range(4):
        I(f's_mov_b64 exec, {sp(S_MASK+4*r+2)}')
        I(f'buffer_load_dword v{REC+8*r+6}, v{A4+r}, {sr4(S_DST)}, 0 offen offset:64' + LSC)
        I(f'buffer_load_dwordx2 {p(REC+8*r+4)}, v{A8+r}, {sr4(S_SRC)}, 0 offen offset:128' + LSC)
    I('s_mov_b64 exec, -1')
    I(f'v_max3_u32 v{X+8}, v{V_TAB}, v{V_TAB+1}, v{V_TAB+2}')
    I(f'v_max_u32 v{X+8}, v{X+8}, v{V_TAB+3}')
    I(f'v_lshrrev_b32 v{X+8}, 16, v{X+8}')
    I(f's_add_u32 s{S_T}, s{S_JB}, s{S_WID}')
    I(f'v_cmp_lt_u32 vcc, s{S_T}, v{X+8}')
    I(f'v_mov_b32 v{X+8}, 4')
    I(f's_cbranch_vccz L_NOMORE')
    I(f'v_mov_b32 v{X+9}, {MISC}')
    I(f'ds_write_b32 v{X+9}, v{X+8}')
    L('L_NOMORE')
    stamp(11)
    for r in range(4):
        I(f's_waitcnt vmcnt({15 - 2*r})')
        I(f's_mov_b64 exec, {sp(S_MASK+4*r)}')
        I(f'v_lshrrev_b32 v{A4+r}, 24, v{REC+8*r+2}')
        I(f'ds_add_rtn_u32 v{REC+8*r+3}, v{A4+r}, v{X+8} offset:{CNT}')
    for r in range(4):
        I(f's_mov_b64 exec, {sp(S_MASK+4*r+2)}')
        I(f's_cbranch_execz L_C{r}')
        I(f's_waitcnt vmcnt({7 - 2*r})')
        I(f'v_lshrrev_b32 v{A8+r}, 24, v{REC+8*r+6}')
        I(f'ds_add_rtn_u32 v{REC+8*r+7}, v{A8+r}, v{X+8} offset:{CNT}')
        L(f'L_C{r}')
    I('s_mov_b64 exec, -1')
    I(f'v_lshlrev_b32 v{X+8}, 2, v{V_LANE}')
    I(f'v_mov_b32 v{X+9}, {MISC}')
    I(f's_mov_b32 s{S_T+2}, 0x1fff8')
    I('s_waitcnt lgkmcnt(0)')
    I('s_barrier')
    stamp(12)
    NG, GS, MI = X + 10, X + 11, X + 12
    I(f'ds_read_b32 v{NG}, v{X+8} offset:{CNT}')
    I(f'ds_read_b32 v{X+9}, v{X+9}')
    I('s_waitcnt lgkmcnt(1)')
    I(f'v_add_u32 v{NG}, 28, v{NG}')
    I(f'v_and_b32 v{NG}, 0xffffffe0, v{NG}')
    I(f'v_mov_b32 v{GS}, v{NG}')
    wave_scan(GS)
    I(f'v_readlane_b32 s{S_T}, v{GS}, 63')
    I(f'v_sub_u32 v{GS}, v{GS}, v{NG}')
    I(f'ds_write_b32 v{X+8}, v{GS} offset:{BASET}')
    for r in range(4):
        I(f's_mov_b64 exec, {sp(S_MASK+4*r)}')
        I(f'ds_read_b32 v{A4+r}, v{A4+r} offset:{BASET}')
    for r in range(4):
        I(f's_mov_b64 exec, {sp(S_MASK+4*r+2)}')
        I(f'ds_read_b32 v{A8+r}, v{A8+r} offset:{BASET}')
    I('s_mov_b64 exec, -1')
    I(f'v_readfirstlane_b32 s{S_MORE}, v{X+9}')
    out.insert(len(out) - 1, '    s_waitcnt lgkmcnt(9)')
    I(f's_lshr_b32 s{S_T}, s{S_T}, 5')
    I(f's_cmp_eq_u32 s{S_WID}, 128')
    I(f's_cselect_b32 s{S_T+1}, {MAXG}, -1')
    I(f's_cmp_gt_u32 s{S_T}, s{S_T+1}')
    I('s_cbranch_scc1 L_OVERFLOW')
    I(f's_add_u32 s{S_L}, s{S_T}, 63')
    I(f's_lshr_b32 s{S_L}, s{S_L}, 6')
    I(f'v_cvt_f32_u32 v{MI}, s{S_L}')
    I(f'v_rcp_f32 v{MI}, v{MI}')
    I(f'v_lshrrev_b32 v{GS}, 5, v{GS}')
    I(f'v_mul_f32 v{MI}, 0x47800000, v{MI}')
    I(f'v_cvt_u32_f32 v{MI}, v{MI}')
    I(f'v_lshrrev_b32 v{NG}, 5, v{NG}')
    I(f'v_add_u32 v{MI}, 2, v{MI}')
    I('s_waitcnt vmcnt(0)')
    for r in range(4):
        I(f's_waitcnt lgkmcnt({7 - r + 2*r})')
        I(f's_mov_b64 exec, {sp(S_MASK+4*r)}')
        I(f'v_add_u32 v{A4+r}, v{A4+r}, v{REC+8*r+3}')
        I(f'v_and_b32 v{REC+8*r+2}, s{S_T+2}, v{REC+8*r+2}')
        I(f'v_add_u32 v{REC+8*r+3}, v{A4+r}, v{A4+r}')
        I(f'ds_write_b32 v{A4+r}, v{REC+8*r+2} offset:{LS}')
        I(f'ds_write_b64 v{REC+8*r+3}, {p(REC+8*r)} offset:{LE}')
    I('s_waitcnt lgkmcnt(8)')
    for r in range(4):
        I(f's_mov_b64 exec, {sp(S_MASK+4*r+2)}')
        I(f's_cbranch_execz L_P{r}')
        I(f'v_add_u32 v{A8+r}, v{A8+r}, v{REC+8*r+7}')
        I(f'v_and_b32 v{REC+8*r+6}, s{S_T+2}, v{REC+8*r+6}')
        I(f'v_add_u32 v{REC+8*r+7}, v{A8+r}, v{A8+r}')
        I(f'ds_write_b32 v{A8+r}, v{REC+8*r+6} offset:{LS}')
        I(f'ds_write_b64 v{REC+8*r+7}, {p(REC+8*r+4)} offset:{LE}')
        L(f'L_P{r}')
    I('s_mov_b64 exec, -1')
    stamp(13)
    SA_, SB_ = X, X + 1
    I(f'v_mul_u32_u24 v{SA_}, v{GS}, v{MI}')
    I(f'v_max_u32 v{SB_}, 1, v{NG}')
    I(f'v_lshrrev_b32 v{SA_}, 16, v{SA_}')
    I(f'v_add3_u32 v{SB_}, v{SB_}, v{GS}, -1')
    I(f'v_mul_u32_u24 v{SB_}, v{SB_}, v{MI}')
    I(f'v_lshlrev_b32 v{X+2}, 3, v{V_LANE}')
    I(f'v_lshrrev_b32 v{SB_}, 16, v{SB_}')
    I(f'v_lshlrev_b32 v{X+3}, 8, v{V_LANE}')
    I(f'ds_write_b64 v{X+2}, {p(SA_)} offset:{NINFO}')
    I(f'v_add_u32 v{X+4}, {ACCN}, v{X+3}')
    I(f's_mov_b32 s{S_T}, s{S_W}')
    I(f's_sub_u32 s{S_T+1}, 0, s{S_L}')
    L('L_DLOOP')
    I(f'v_cmp_lt_u32 vcc, s{S_T}, v{NG}')
    I('s_and_b64 exec, exec, vcc')
    I('s_cbranch_execz L_DEND')
    I(f'v_add_u32 v{X+5}, s{S_T}, v{GS}')
    I(f'v_mul_u32_u24 v{X+6}, v{X+5}, v{MI}')
    I(f'v_lshrrev_b32 v{X+6}, 16, v{X+6}')
    I(f'v_mad_i32_i24 v{X+5}, v{X+6}, s{S_T+1}, v{X+5}')
    I(f'v_cmp_eq_u32 vcc, v{X+6}, v{SA_}')
    I(f'v_lshl_add_u32 v{X+5}, v{X+5}, 6, v{X+6}')
    I(f'v_lshlrev_b32 v{X+6}, 8, v{X+6}')
    I(f'v_lshlrev_b32 v{X+5}, 2, v{X+5}')
    I(f'v_add_u32 v{X+6}, {EXTRA}, v{X+6}')
    I(f'v_add_u32 v{X+7}, {DESCA}, v{X+5}')
    I(f'v_cndmask_b32 v{X+6}, v{X+6}, v{X+4}, vcc')
    I(f'ds_write_b32 v{X+5}, v{X+3} offset:{DESCP}')
    I(f'ds_write_b32 v{X+7}, v{X+6}')
    I(f's_add_u32 s{S_T}, s{S_T}, 16')
    I('s_branch L_DLOOP')
    L('L_DEND')
    I('s_mov_b64 exec, -1')
    I(f's_lshl_b32 s{S_T}, s{S_W}, 2')
    I(f's_lshl_b32 s{S_T+1}, s{S_L}, 5')
    I(f'v_lshrrev_b32 v{X}, 5, v{V_LANE}')
    I(f'v_lshl_add_u32 v{X+1}, v{X}, 1, s{S_T}')
    I(f'v_mul_u32_u24 v{V_PS0}, s{S_T+1}, v{X+1}')
    I(f'v_lshlrev_b32 v{V_PD}, 2, v{X+1}')
    I(f'v_add_u32 v{V_PS1}, s{S_T+1}, v{V_PS0}')
    I(f'v_add_u32 v{V_PD}, {DESCP}, v{V_PD}')
    I(f'v_bfe_u32 v{X}, v{V_LANE}, 2, 1')
    I(f'v_and_b32 v{X+1}, 1, v{V_LANE}')
    I(f'v_lshl_or_b32 v{X}, v{X}, 1, v{X+1}')
    I(f'v_add_u32 v{X}, s{S_T}, v{X}')
    I(f's_lshl_b32 s{S_T+1}, s{S_L}, 6')
    I(f'v_mul_u32_u24 v{V_PE}, s{S_T+1}, v{X}')
    I(f'v_bfe_u32 v{X}, v{V_LANE}, 3, 2')
    I(f'v_bfe_u32 v{X+1}, v{V_LANE}, 1, 1')
    I(f'v_lshl_or_b32 v{X}, v{X}, 1, v{X+1}')
    I(f'v_lshl_add_u32 v{V_PE}, v{X}, 3, v{V_PE}')
    I(f'v_add_u32 v{V_PE}, {LE}, v{V_PE}')
    I(f's_mov_b32 s{S_CNT}, s{S_L}')
    I('s_waitcnt lgkmcnt(0)')
    I('s_barrier')
    stamp(14)
    I(f's_cmp_eq_u32 s{S_L}, 0')
    I('s_cbranch_scc1 L_FOLD')
    lg = Lg()
    s_reads(lg, 0)
    lg.op('dP', f'ds_read_b64 {p(V_VAP)}, v{V_PD}')
    lg.op('dA', f'ds_read_b64 {p(V_VAA[0])}, v{V_PD} offset:{DESCA-DESCP}')
    lg.op('e', f'ds_read_b64 {p(A5)}, v{V_PE}')
    lg.need('S0', 'S1', 'S2', 'S3')
    for n in range(2):
        for i in range(16):
            I(gload(n, i))
    s_reads(lg, 1)
    lg.need('dP', 'dA')
    I(f'v_add_u32 v{V_VAP}, v{V_VAP}, v{V_CHP}')
    I(f'v_add_u32 v{V_VAP+1}, v{V_VAP+1}, v{V_CHP}')
    I(f'v_add_u32 v{V_VAA[0]}, v{V_VAA[0]}, v{V_CH8}')
    I(f'v_add_u32 v{V_VAA[0]+1}, v{V_VAA[0]+1}, v{V_CH8}')
    lg.op('P0a', f'ds_read_b32 v{B5[0]+2}, v{V_VAP}')
    lg.op('P0b', f'ds_read_b32 v{B5[0]+3}, v{V_VAP+1}')
    lg.op('P1a', f'ds_read_b32 v{B5[1]+2}, v{V_VAP} offset:4')
    lg.op('P1b', f'ds_read_b32 v{B5[1]+3}, v{V_VAP+1} offset:4')
    I(f's_cmp_eq_u32 s{S_CNT}, 1')
    I(f's_cselect_b64 {sp(S_LDX)}, 0, {LDXV}')
    I('s_waitcnt lgkmcnt(0)')
    lg.q = []
    if opt('prio', 0):
        I('s_setprio 3')
    stamp(15)
    rstamp(28)
    half(lg, 0, 0, 0, False)
    state0 = list(lg.q)
    def step(par, uo):
        half(lg, 1, par, uo)
        I(f's_sub_u32 s{S_CNT}, s{S_CNT}, 1')
        I(f's_cmp_eq_u32 s{S_CNT}, 0')
        I(f's_cbranch_scc1 L_FIN{par}')
        I(f's_cmp_eq_u32 s{S_CNT}, 1')
        I(f's_cselect_b64 {sp(S_LDX)}, 0, {LDXV}')
        prio(f'{par}')
        half(lg, 0, par ^ 1, uo + 1)
    def loop_body():
        step(0, 0)
        step(1, 1)
        I(f'v_add_u32 v{V_PS0}, 64, v{V_PS0}')
        I(f'v_add_u32 v{V_PS1}, 64, v{V_PS1}')
        I(f'v_add_u32 v{V_PE}, 128, v{V_PE}')
        I(f'v_add_u32 v{V_PD}, 512, v{V_PD}')
        I('s_branch L_LOOP')
    mark = len(out)
    loop_body()
    del out[mark:]
    qb = list(lg.q)
    n = min(len(qb), len(state0))
    assert qb[len(qb)-n:] == state0[len(state0)-n:], (state0, qb)
    lg.q = list(qb if len(qb) >= len(state0) else state0)
    e('.p2align 3')
    L('L_LOOP')
    loop_body()
    assert lg.q == qb, (lg.q, qb)
    print('loop entry queue', state0, 'back edge queue', qb, file=sys.stderr)
    for pr in range(2):
        L(f'L_FIN{pr}')
        for op in tail_ops(1):
            I(op)
        I(f'ds_write_b64 v{V_VAA[pr]}, {p(V_MA)}')
        I(f'ds_write_b64 v{V_VAA[pr]+1}, {p(V_MB)}')
        if pr == 0:
            I('s_branch L_FOLD')
    L('L_FOLD')
    stamp(16)
    I(f'v_lshrrev_b32 v{X}, 3, v{V_TID}')
    I(f'v_and_b32 v{X+1}, 7, v{V_TID}')
    I(f'v_lshlrev_b32 v{X+6}, 3, v{X+1}')
    I(f'v_lshlrev_b32 v{X+1}, 5, v{X+1}')
    I(f'v_lshl_add_u32 v{X+2}, v{X}, 8, v{X+1}')
    I(f'v_add_u32 v{X+2}, {ACCN}, v{X+2}')
    I(f'v_add_u32 v{X+1}, {EXTRA}, v{X+1}')
    I(f'v_lshlrev_b32 v{X+3}, 3, v{X}')
    I(f's_mul_i32 s{S_T+4}, s3, {NB*128}')
    I(f'v_lshl_add_u32 v{X+6}, v{X}, 7, v{X+6}')
    I(f'v_add_u32 v{X+6}, s{S_T+4}, v{X+6}')
    I(f'v_mov_b32 v{X+7}, 0')
    I('s_waitcnt vmcnt(0) lgkmcnt(0)')
    I('s_barrier')
    stamp(17)
    rstamp(29)
    if PROF:
        I(f'v_writelane_b32 v{V_PROF}, s{S_L}, 27')
    I(f'v_cmp_gt_u32 vcc, {NB*8}, v{V_TID}')
    I(f's_and_saveexec_b64 {sp(S_EX)}, vcc')
    I('s_cbranch_execz L_FDONE')
    I(f'ds_read_b64 {p(X+4)}, v{X+3} offset:{NINFO}')
    I(f'ds_read_b128 v[64:67], v{X+2}')
    I(f'ds_read_b128 v[68:71], v{X+2} offset:16')
    I(f's_mov_b64 {sp(S_T)}, exec')
    I('s_waitcnt lgkmcnt(0)')
    L('L_FLOOP')
    I(f'v_cmp_lt_u32 vcc, v{X+4}, v{X+5}')
    I('s_and_b64 exec, exec, vcc')
    I('s_cbranch_execz L_FLEND')
    I(f'v_add_u32 v{X+4}, 1, v{X+4}')
    I(f'v_lshl_add_u32 v{X+7}, v{X+4}, 8, v{X+1}')
    I(f'ds_read_b128 v[72:75], v{X+7}')
    I(f'ds_read_b128 v[76:79], v{X+7} offset:16')
    I('s_waitcnt lgkmcnt(0)')
    for k in range(8):
        I(f'v_add_f32 v{64+k}, v{64+k}, v{72+k}')
    I('s_branch L_FLOOP')
    L('L_FLEND')
    I(f's_mov_b64 exec, {sp(S_T)}')
    I(f's_cmp_lg_u32 s{S_MORE}, 0')
    I('s_cbranch_scc1 L_WB')
    I(f's_mov_b32 s{S_T+2}, 0x{f2u(2.0**-(SV+KEXP)):x}')
    I(f's_mov_b32 s{S_T+3}, 0x{f2u(-LOG2E):x}')
    for k in range(8):
        I(f'v_mul_f32 v{64+k}, s{S_T+2}, v{64+k}')
    for k in range(8):
        I(f'v_mul_f32 v{72+k}, s{S_T+3}, v{64+k}')
    for k in range(8):
        I(f'v_exp_f32 v{72+k}, v{72+k}')
    for k in range(8):
        I(f'v_add_f32 v{72+k}, 1.0, v{72+k}')
    for k in range(8):
        I(f'v_rcp_f32 v{72+k}, v{72+k}')
    for k in range(8):
        I(f'v_mul_f32 v{64+k}, v{64+k}, v{72+k}')
    I('v_cvt_pk_bf16_f32 v80, v64, v66')
    I('v_cvt_pk_bf16_f32 v81, v68, v70')
    I('v_cvt_pk_bf16_f32 v82, v65, v67')
    I('v_cvt_pk_bf16_f32 v83, v69, v71')
    I(f'buffer_store_dwordx2 v[80:81], v{X+6}, {sr4(S_OUT)}, 0 offen')
    I(f'buffer_store_dwordx2 v[82:83], v{X+6}, {sr4(S_OUT)}, 0 offen offset:64')
    stamp(18)
    prof_store()
    I('s_endpgm')
    L('L_WB')
    I(f'ds_write_b128 v{X+2}, v[64:67]')
    I(f'ds_write_b128 v{X+2}, v[68:71] offset:16')
    L('L_FDONE')
    I('s_mov_b64 exec, -1')
    I(f's_cmp_eq_u32 s{S_MORE}, 0')
    I('s_cbranch_scc1 L_QUIT')
    I(f's_add_u32 s{S_JB}, s{S_JB}, s{S_WID}')
    I('s_branch L_REFILL')
    L('L_OVERFLOW')
    I(f's_mov_b32 s{S_WID}, 64')
    L('L_REFILL')
    I('s_waitcnt vmcnt(0) lgkmcnt(0)')
    I('s_barrier')
    fill_zero()
    fill_words()
    I('s_waitcnt lgkmcnt(0)')
    I('s_barrier')
    I('s_branch L_PASS')
    L('L_QUIT')
    prof_store()
    L('L_END')
    I('s_endpgm')

hdr = open('standalone__edge_featured_mpnn_egc__graph.s.ref').read().split('\n')
for line in hdr:
    if line.startswith('; Override'):
        break
    e(line)
e(f'; @launch grid=({NWG},1,1) block=(1024,1,1) lds={LDS_BYTES}')
e('.amdgcn_target "amdgcn-amd-amdhsa--gfx950"')
e('.text')
gen()
e('.section .rodata,"a"')
e('.p2align 6')
e(f'.amdhsa_kernel {KNAME}')
e('  .amdhsa_next_free_vgpr 128')
e('  .amdhsa_next_free_sgpr 102')
e('  .amdhsa_accum_offset 128')
e('  .amdhsa_group_segment_fixed_size 0')
e('  .amdhsa_kernarg_size 80')
e('  .amdhsa_user_sgpr_count 2')
e('  .amdhsa_user_sgpr_kernarg_segment_ptr 1')
e('  .amdhsa_system_sgpr_workgroup_id_x 1')
e('  .amdhsa_float_denorm_mode_32 3')
e('.end_amdhsa_kernel')
open(sys.argv[1], 'w').write('\n'.join(x for x in out if x is not None) + '\n')
```

```python
import sys, struct

OPT = dict(a.split('=') for a in sys.argv[2:] if '=' in a)
def opt(name, default):
    return type(default)(OPT.get(name, default))

KNAME = 'standalone__edge_featured_mpnn_egc__graph_kernel'
N_NODES = 12500
E_EDGES = 800000
NB = 49
NWG = 256
CH = 3136
WS_RW = 0
WS_RE = 0x00400000
WS_TAB = 0x00B00000
WS_NT = 0x00C00000
WS_PROF = 0x01000000
KEXP = 31
SV = 30
LOG2E = 1.4426950408889634
SC = opt('sc', 'sc1')
SC = (' ' + SC.replace('+', ' ')) if SC != 'none' else ''
LSC = opt('lsc', 'sc1')
LSC = (' ' + LSC.replace('+', ' ')) if LSC != 'none' else ''
GSC = opt('gsc', 'sc1')
GSC = (' ' + GSC.replace('+', ' ')) if GSC != 'none' else ''
ELD = opt('eld', 'nt')
ELD = (' ' + ELD.replace('+', ' ')) if ELD != 'none' else ''

def f2u(x):
    return struct.unpack('<I', struct.pack('<f', x))[0]

out = []
def e(s=''):
    out.append(s)
def I(s):
    out.append('    ' + s)
def L(name):
    out.append(name + ':')
def vr(a, n):
    return f'v[{a}:{a+n-1}]' if n > 1 else f'v{a}'
def sr4(a):
    return f's[{a}:{a+3}]'
def sp(a):
    return f's[{a}:{a+1}]'
def p(r):
    return f'v[{r}:{r+1}]'

def srd(d, lo, hi, nrec):
    I(f's_mov_b32 s{d}, s{lo}')
    I(f's_mov_b32 s{d+1}, s{hi}')
    I(f's_mov_b32 s{d+2}, {nrec}')
    I(f's_mov_b32 s{d+3}, 0x00020000')

def srd_off(d, lo, hi, off, nrec):
    I(f's_add_u32 s{d}, s{lo}, {off}')
    I(f's_addc_u32 s{d+1}, s{hi}, 0')
    I(f's_mov_b32 s{d+2}, {nrec}')
    I(f's_mov_b32 s{d+3}, 0x00020000')

def wave_scan(v):
    for sh in (1, 2, 4, 8):
        I('s_nop 1')
        I(f'v_add_u32_dpp v{v}, v{v}, v{v} row_shr:{sh} row_mask:0xf bank_mask:0xf')
    I('s_nop 1')
    I(f'v_add_u32_dpp v{v}, v{v}, v{v} row_bcast:15 row_mask:0xa bank_mask:0xf')
    I('s_nop 1')
    I(f'v_add_u32_dpp v{v}, v{v}, v{v} row_bcast:31 row_mask:0xc bank_mask:0xf')
    I('s_nop 1')

LS = 0
ZR = 18688
LE = 18688
CNT = 56064
MISC = 56320
BASET = 56576
NINFO = 56832
HIST = 57344
HBASE = 58368
DESCP = 59392
EXTRA = 67840
DESCA = 84224
PT = 86784
ACCN = 99328
WRAW = 111872
WG_, WV_, WU_ = WRAW, WRAW + 17408, WRAW + 25600
XOWN = WRAW + 33792
LDS_BYTES = XOWN + 8192
STGW = 0
STGE = CH * 4
NTI = EXTRA
MAXG = 576
assert STGE + CH * 8 <= CNT

V_TID, V_LANE = 0, 1
V_MA, V_MB = 2, 4
V_VAA = (6, 8)
V_VAP = 10
V_PS0, V_PS1, V_PE, V_PD, V_CH8, V_CHP = 12, 13, 14, 15, 16, 17
V_PROF = 18
V_TAB = 20
V_J4, V_CB4 = 24, 25
V_X = 26
V_T01D, V_T01N, V_T23D, V_T23N = 40, 42, 44, 46
B5 = (48, 52)
A5 = 56
V_TT = (60, 62)
G = (64, 80)
Z = 96
S = 112

S_XS, S_WS, S_DST, S_SRC, S_EA, S_RW, S_RE, S_TAB, S_NTS, S_NTG, S_OUT = 12, 16, 20, 24, 28, 32, 36, 40, 44, 48, 52
S_MASK = 56
S_W, S_L, S_CNT, S_JB, S_WID, S_MORE = 72, 73, 74, 75, 76, 77
S_C = 78
S_EX = 80
S_LDX = 82
S_T = 84
S_WSP = 94
S_DBG = 96
S_TAG, S_TAG2 = 100, 101
TAGM = 0xC003C003
TAGL = MISC + 64

NT2 = 2 if opt('touch', 0) else 0
LDXV = 0 if opt('noload', 0) else -1
NPFM = opt('npf', 2)
NPF = 7 if NPFM else 0
NPF1 = 7 if NPFM == 1 else 0
WSB = opt('wsb', 0) << 20
PROF = opt('prof', 0)
def stamp(i):
    if not PROF:
        return
    I('s_memtime s[98:99]')
    I('s_waitcnt lgkmcnt(0)')
    I(f'v_writelane_b32 v{V_PROF}, s98, {i}')
def rstamp(i):
    if not PROF:
        return
    I('s_memrealtime s[98:99]')
    I('s_waitcnt lgkmcnt(0)')
    I(f'v_writelane_b32 v{V_PROF}, s98, {i}')
def prof_store():
    if not PROF:
        return
    rstamp(31)
    if PROF == 3:
        I(f's_lshl_b32 s98, s2, 4')
        I(f's_add_u32 s98, s98, s{S_W}')
        I(f's_cmp_lg_u32 s98, {opt("pwave", 80)}')
        I('s_cbranch_scc1 L_END')
        I('s_mov_b64 exec, -1')
        I(f'v_readlane_b32 s98, v{V_PROF}, 0')
        I(f'v_readlane_b32 s99, v{V_PROF}, 30')
        I(f'v_readlane_b32 s{S_T}, v{V_PROF}, 31')
        I('s_nop 3')
        I(f's_sub_u32 s{S_T}, s{S_T}, s99')
        I(f's_add_u32 s{S_T}, s{S_T}, s98')
        I(f'v_writelane_b32 v{V_PROF}, s{S_T}, 9')
        I(f'v_subrev_u32 v{V_PROF}, s98, v{V_PROF}')
        I(f'v_mbcnt_lo_u32_b32 v{V_PROF+1}, -1, 0')
        I(f'v_lshlrev_b32 v{V_PROF+1}, 2, v{V_PROF+1}')
        I(f'v_add_u32 v{V_PROF+1}, -8, v{V_PROF+1}')
        I('s_mov_b64 exec, 0x3fff8')
        I(f'global_store_dword v{V_PROF+1}, v{V_PROF}, {sp(S_DBG)}')
        return
    I('s_mov_b64 exec, 0xffffffff')
    I(f's_add_u32 s{S_T}, s{S_WSP}, 0x{WS_PROF:x}')
    I(f's_addc_u32 s{S_T+1}, s{S_WSP+1}, 0')
    I(f'v_mbcnt_lo_u32_b32 v{V_PROF+1}, -1, 0')
    I(f'v_lshlrev_b32 v{V_PROF+1}, 2, v{V_PROF+1}')
    I(f's_lshl_b32 s98, s2, 4')
    I(f's_add_u32 s98, s98, s{S_W}')
    I(f's_lshl_b32 s98, s98, 7')
    I(f'v_add_u32 v{V_PROF+1}, s98, v{V_PROF+1}')
    I(f'global_store_dword v{V_PROF+1}, v{V_PROF}, {sp(S_T)}')

class Lg:
    def __init__(self):
        self.q = []
    def op(self, tag, text):
        I(text)
        self.q.append(tag)
    def need(self, *tags):
        idx = -1
        for t in tags:
            for i in range(len(self.q) - 1, -1, -1):
                if self.q[i] == t:
                    idx = max(idx, i)
                    break
        if idx < 0:
            return
        n = len(self.q) - 1 - idx
        assert n <= 15, (tags, n)
        I(f's_waitcnt lgkmcnt({n})')
        self.q = self.q[idx + 1:]

X = V_X

def zero_range(a, nbytes, zr, ad):
    k = 0
    base = a if a + nbytes <= 65536 + 16384 and a < 65536 - 3 * 16384 else None
    off = 0
    areg = ad
    if a + ((nbytes - 1) // 16384) * 16384 > 65535:
        I(f'v_add_u32 v{X+1}, {a}, v{ad}')
        areg = X + 1
        a0 = 0
    else:
        a0 = a
    while off < nbytes:
        n = min(16384, nbytes - off)
        if n < 16384:
            I(f'v_cmp_gt_u32 vcc, {n // 16}, v{V_TID}')
            I(f's_and_saveexec_b64 {sp(S_EX)}, vcc')
        I(f'ds_write_b128 v{areg}, v[{zr}:{zr+3}] offset:{a0 + off}')
        if n < 16384:
            I(f's_mov_b64 exec, {sp(S_EX)}')
        off += n

def zregs():
    I(f'v_lshlrev_b32 v{X}, 4, v{V_TID}')
    for k in range(4):
        I(f'v_mov_b32 v{X+2+k}, 0')

def fill_desca():
    I(f'v_and_b32 v{X+6}, 15, v{V_TID}')
    I(f'v_lshlrev_b32 v{X+6}, 10, v{X+6}')
    I(f'v_add_u32 v{X+6}, {EXTRA}, v{X+6}')
    for k in range(1, 4):
        I(f'v_add_u32 v{X+6+k}, {256*k}, v{X+6}')
    I(f'v_add_u32 v{X+1}, {DESCA}, v{X}')
    I(f'v_cmp_gt_u32 vcc, 160, v{V_TID}')
    I(f's_and_saveexec_b64 {sp(S_EX)}, vcc')
    I(f'ds_write_b128 v{X+1}, v[{X+6}:{X+9}]')
    I(f's_mov_b64 exec, {sp(S_EX)}')

def fill_zero():
    zregs()
    zero_range(ZR, 65536, X + 2, X)
    fill_desca()

def fill_words():
    I(f'v_lshlrev_b32 v{X}, 4, v{V_TID}')
    I(f'v_and_b32 v{X+2}, 7, v{V_TID}')
    I(f'v_lshlrev_b32 v{X+2}, 5, v{X+2}')
    I(f'v_add_u32 v{X+2}, {N_NODES*8}, v{X+2}')
    for k in range(1, 4):
        I(f'v_add_u32 v{X+2+k}, {8*k}, v{X+2}')
    I(f'ds_write_b128 v{X}, v[{X+2}:{X+5}] offset:{LS}')
    I(f'v_cmp_gt_u32 vcc, 144, v{V_TID}')
    I(f's_and_saveexec_b64 {sp(S_EX)}, vcc')
    I(f'ds_write_b128 v{X}, v[{X+2}:{X+5}] offset:{LS+16384}')
    I(f's_mov_b64 exec, {sp(S_EX)}')

def tail_ops(n):
    return [f'v_rcp_f32 v{V_T01D}, v{V_T01D}',
            f'v_rcp_f32 v{V_T01D+1}, v{V_T01D+1}',
            f'v_rcp_f32 v{V_T23D}, v{V_T23D}',
            f'v_rcp_f32 v{V_T23D+1}, v{V_T23D+1}',
            f'v_fmac_f32 v{V_MA+n}, v{V_T01N}, v{V_T01D}',
            f'v_fmac_f32 v{V_MB+n}, v{V_T01N+1}, v{V_T01D+1}',
            f'v_fmac_f32 v{V_MA+n}, v{V_T23N}, v{V_T23D}',
            f'v_fmac_f32 v{V_MB+n}, v{V_T23N+1}, v{V_T23D+1}']

def gload(n, i):
    return f'buffer_load_dword v{G[n]+i}, v{S + (i & 1) * 8 + (i >> 1)}, {sr4(S_NTG)}, 0 offen offset:{4*n}' + GSC

def s_reads(lg, uo):
    lg.op('S0', f'ds_read_b128 {vr(S,4)}, v{V_PS0} offset:{uo*32}')
    lg.op('S1', f'ds_read_b128 {vr(S+4,4)}, v{V_PS0} offset:{uo*32+16}')
    lg.op('S2', f'ds_read_b128 {vr(S+8,4)}, v{V_PS1} offset:{uo*32}')
    lg.op('S3', f'ds_read_b128 {vr(S+12,4)}, v{V_PS1} offset:{uo*32+16}')

def half(lg, n, par, uo, with_tail=True):
    g = G[n]
    I('s_waitcnt vmcnt(16)')
    if n == 0:
        lg.need('P0a', 'P0b', 'e')
    else:
        lg.need('P1a', 'P1b')
    I(f'v_mfma_f32_32x32x16_bf16 {vr(Z,16)}, {vr(A5,4)}, {vr(B5[n],4)}, {vr(g,16)}')
    t = tail_ops(n ^ 1)
    va_prev, va_cur, va_nxt = V_VAA[par ^ 1], V_VAA[par], V_VAA[par ^ 1]
    if with_tail:
        for op in t[:4]:
            I(op)
        if n == 1:
            lg.need('Ra', 'Rb')
        for op in t[4:]:
            I(op)
    else:
        I('s_nop 7')
    if n == 0:
        if with_tail:
            lg.op('Wa', f'ds_write_b64 v{va_prev}, {p(V_MA)}')
            lg.op('Wb', f'ds_write_b64 v{va_prev+1}, {p(V_MB)}')
        lg.op('Ra', f'ds_read_b64 {p(V_MA)}, v{va_cur}')
        lg.op('Rb', f'ds_read_b64 {p(V_MB)}, v{va_cur+1}')
        lg.op('dP', f'ds_read_b64 {p(V_VAP)}, v{V_PD} offset:{(uo+1)*256}')
        lg.op('dA', f'ds_read_b64 {p(va_nxt)}, v{V_PD} offset:{(uo+1)*256 + DESCA - DESCP}')
    else:
        lg.op('e', f'ds_read_b64 {p(A5)}, v{V_PE} offset:{(uo+1)*64}')
        lg.op('P1a', f'ds_read_b32 v{B5[1]+2}, v{V_VAP} offset:4')
        lg.op('P1b', f'ds_read_b32 v{B5[1]+3}, v{V_VAP+1} offset:4')
    sh = [f'v_lshlrev_b32 v{g+i}, 16, v{g+i}' for i in range(16)]
    ex = [f'v_exp_f32 v{Z+i}, v{Z+i} clamp' for i in range(16)]
    for op in sh[:4]:
        I(op)
    for i in range(12):
        I(ex[i])
        I(sh[4 + i])
        if n == 0 and i == 7:
            lg.need('dP', 'dA')
            I(f'v_add_u32 v{V_VAP}, v{V_VAP}, v{V_CHP}')
            I(f'v_add_u32 v{V_VAP+1}, v{V_VAP+1}, v{V_CHP}')
            I(f'v_add_u32 v{va_nxt}, v{va_nxt}, v{V_CH8}')
            I(f'v_add_u32 v{va_nxt+1}, v{va_nxt+1}, v{V_CH8}')
            lg.op('P0a', f'ds_read_b32 v{B5[0]+2}, v{V_VAP}')
            lg.op('P0b', f'ds_read_b32 v{B5[0]+3}, v{V_VAP+1}')
    for op in ex[12:]:
        I(op)
    for i in range(0, 16, 2):
        I(f'v_pk_add_f32 {p(Z+i)}, {p(Z+i)}, {sp(S_C)}')
    def T(k): return f'v_pk_mul_f32 {p(V_TT[k&1])}, {p(g+4*k)}, {p(Z+4*k+2)}'
    def DD(k): return f'v_pk_mul_f32 {p(Z+4*k+2)}, {p(Z+4*k)}, {p(Z+4*k+2)}'
    def NN(k): return f'v_pk_fma_f32 {p(Z+4*k)}, {p(g+4*k+2)}, {p(Z+4*k)}, {p(V_TT[k&1])}'
    for k0 in (0, 2):
        for op in (T(k0), T(k0 + 1), DD(k0), DD(k0 + 1), NN(k0), NN(k0 + 1)):
            I(op)
        if n == 0 and k0 == 0:
            lg.need('S0', 'S1', 'S2', 'S3')
        I(f's_mov_b64 exec, {sp(S_LDX)}')
        for i in range(4 * k0, 4 * k0 + 8):
            I(gload(n, i))
        I('s_mov_b64 exec, -1')
    if n == 1:
        s_reads(lg, uo + 2)
    I(f'v_pk_mul_f32 {p(V_T01N)}, {p(Z)}, {p(Z+6)}')
    I(f'v_pk_mul_f32 {p(V_T23N)}, {p(Z+8)}, {p(Z+14)}')
    I(f'v_pk_mul_f32 {p(V_T01D)}, {p(Z+2)}, {p(Z+6)}')
    I(f'v_pk_mul_f32 {p(V_T23D)}, {p(Z+10)}, {p(Z+14)}')
    I(f'v_pk_fma_f32 {p(V_T01N)}, {p(Z+4)}, {p(Z+2)}, {p(V_T01N)}')
    I(f'v_pk_fma_f32 {p(V_T23N)}, {p(Z+12)}, {p(Z+10)}, {p(V_T23N)}')

def prio(tag):
    pr = opt('prio', 3)
    if not pr:
        return
    th = {1: (4, 2, 1), 2: (5, 3, 1), 3: (3, 2, 1), 4: (6, 4, 2)}[pr]
    for lvl, t in zip((2, 1, 0), th):
        I(f's_cmp_eq_u32 s{S_CNT}, {t}')
        I(f's_cbranch_scc0 L_PR{tag}_{lvl}')
        I(f's_setprio {lvl}')
        L(f'L_PR{tag}_{lvl}')

def split_hilo(a, b, t0, t1):
    I(f'v_cvt_pk_bf16_f32 v{t0}, v{a}, v{b}')
    I(f'v_lshlrev_b32 v{t1}, 16, v{t0}')
    I(f'v_and_b32 v{t0}, 0xffff0000, v{t0}')
    I(f'v_sub_f32 v{a}, v{a}, v{t1}')
    I(f'v_sub_f32 v{b}, v{b}, v{t0}')
    I(f'v_cvt_pk_bf16_f32 v{a}, v{t1}, v{a}')
    I(f'v_cvt_pk_bf16_f32 v{b}, v{t0}, v{b}')

V_AA, V_AB, V_AD, V_AP = 6, 7, 8, 9
SA, SB, SD = 80, 96, 112

def phase0_addr():
    I(f's_and_b32 s{S_T}, s{S_W}, 3')
    I(f's_lshr_b32 s{S_T+1}, s{S_W}, 2')
    I(f'v_and_b32 v12, 15, v{V_LANE}')
    I(f'v_lshrrev_b32 v13, 4, v{V_LANE}')
    I(f'v_bfe_u32 v14, v{V_LANE}, 1, 3')
    I(f'v_xor_b32 v14, v14, v13')
    I(f'v_lshlrev_b32 v14, 4, v14')
    I(f'v_lshl_or_b32 v14, v12, 7, v14')
    I(f's_lshl_b32 s{S_T+2}, s{S_T}, 11')
    I(f'v_add_u32 v{V_AA}, s{S_T+2}, v14')
    I(f'v_bfe_u32 v14, v{V_LANE}, 2, 2')
    I(f'v_lshl_add_u32 v14, v13, 3, v14')
    I(f'v_lshlrev_b32 v14, 7, v14')
    I(f'v_and_b32 v15, 3, v{V_LANE}')
    I(f'v_lshl_add_u32 v14, v15, 3, v14')
    I(f's_lshl_b32 s{S_T+2}, s{S_T+1}, 5')
    I(f's_add_u32 s{S_T+2}, s{S_T+2}, {WRAW}')
    I(f'v_add_u32 v{V_AB}, s{S_T+2}, v14')
    I(f's_lshl_b32 s{S_T+2}, s{S_T}, 12')
    I(f'v_lshlrev_b32 v13, 10, v13')
    I(f'v_add_u32 v13, s{S_T+2}, v13')
    I(f's_lshl_b32 s{S_T+2}, s{S_T+1}, 6')
    I(f's_add_u32 s{S_T+2}, s{S_T+2}, {NTI}')
    I(f'v_lshl_add_u32 v{V_AD}, v12, 2, v13')
    I(f'v_add_u32 v{V_AD}, s{S_T+2}, v{V_AD}')
    I(f's_and_b32 s{S_T+2}, s{S_T+1}, 1')
    I(f's_lshl_b32 s{S_T+2}, s{S_T+2}, 7')
    I(f's_lshr_b32 s{S_T+3}, s{S_T+1}, 1')
    I(f's_lshl_b32 s{S_T+3}, s{S_T+3}, 2')
    I(f's_add_u32 s{S_T+2}, s{S_T+2}, s{S_T+3}')
    I(f's_add_u32 s{S_T+2}, s{S_T+2}, {PT}')
    I(f'v_lshl_add_u32 v{V_AP}, v12, 3, v13')
    I(f'v_add_u32 v{V_AP}, s{S_T+2}, v{V_AP}')

def b_reads(dst, off):
    for sg in range(2):
        for pp in range(2):
            I(f'ds_read_b64_tr_b16 {vr(dst+4*sg+2*pp,2)}, v{V_AB} offset:{off+sg*4096+pp*512}')

def mm16(d, b):
    I(f'v_mfma_f32_16x16x32_bf16 {vr(d,4)}, {vr(SA,4)}, {vr(b,4)}, 0')
    I(f'v_mfma_f32_16x16x32_bf16 {vr(d,4)}, {vr(SA+4,4)}, {vr(b+4,4)}, {vr(d,4)}')

def phase0a():
    I(f'v_add_u32 v12, {XOWN}, v{V_AA}')
    I(f'v_xor_b32 v13, 64, v{V_AA}')
    I(f'v_add_u32 v13, {XOWN}, v13')
    I(f'ds_read_b128 {vr(SA,4)}, v12')
    I(f'ds_read_b128 {vr(SA+4,4)}, v13')
    b_reads(SB, 8192)
    b_reads(SB + 8, WV_ - WRAW)
    I(f's_mov_b32 s{S_T+4}, 0x{f2u(-LOG2E):x}')
    I(f's_mov_b32 s{S_T+5}, 0x{f2u(2.0**SV):x}')
    I(f's_mov_b32 s{S_T+6}, 0x7fffffff')
    I(f's_mov_b32 s{S_T+7}, 0xffff0000')
    I('s_waitcnt lgkmcnt(4)')
    mm16(SD, SB)
    I('s_waitcnt lgkmcnt(0)')
    mm16(SD + 4, SB + 8)
    I('s_nop 4')
    for i in range(4):
        I(f'v_mul_f32 v{SD+i}, s{S_T+4}, v{SD+i}')
    for i in range(4):
        I(f'v_and_b32 v{SD+8+i}, s{S_T+6}, v{SD+i}')
    for i in range(4):
        I(f'v_mul_f32 v{SD+4+i}, s{S_T+5}, v{SD+4+i}')
        I(f'v_add_u32 v{SD+8+i}, 0x8000, v{SD+8+i}')
    I(f'v_cvt_pk_bf16_f32 v{SD+4}, v{SD+4}, v{SD+5}')
    I(f'v_cvt_pk_bf16_f32 v{SD+6}, v{SD+6}, v{SD+7}')
    I(f'v_lshrrev_b32 v{SD+5}, 16, v{SD+4}')
    I(f'v_lshrrev_b32 v{SD+7}, 16, v{SD+6}')
    I(f'v_and_b32 v{SD+4}, 0xffff, v{SD+4}')
    I(f'v_and_b32 v{SD+6}, 0xffff, v{SD+6}')
    for i in range(4):
        I(f'v_sub_u32 v{SD+8+i}, v{SD+8+i}, v{SD+4+i} clamp')
    for i in range(4):
        I(f'v_and_or_b32 v{SD+8+i}, v{SD+8+i}, s{S_T+7}, v{SD+4+i}')
    for i in range(4):
        I(f'v_bfi_b32 v{SD+i}, s{S_T+6}, v{SD+8+i}, v{SD+i}')
        I(f'ds_write_b32 v{V_AD}, v{SD+i} offset:{i*256}')

def phase0b():
    b_reads(SB, 0)
    b_reads(SB + 8, WU_ - WRAW)
    I(f's_mov_b32 s{S_T+4}, 0x{f2u(-LOG2E):x}')
    I(f's_mov_b32 s{S_T+5}, 0x{f2u(2.0**(SV+KEXP)):x}')
    I(f'v_mov_b32 v13, 0x{f2u(-float(KEXP)):x}')
    I(f's_and_b32 s{S_T+6}, s{S_W}, 3')
    I('s_waitcnt lgkmcnt(4)')
    mm16(SD, SB)
    I('s_waitcnt lgkmcnt(0)')
    mm16(SD + 4, SB + 8)
    I('s_nop 4')
    for i in range(4):
        I(f'v_fma_f32 v{SD+i}, v{SD+i}, s{S_T+4}, v13')
    split_hilo(SD, SD + 1, 12, 13)
    split_hilo(SD + 2, SD + 3, 12, 13)
    for i in range(4):
        I(f'v_mul_f32 v{SD+4+i}, s{S_T+5}, v{SD+4+i}')
    I(f's_cmp_eq_u32 s{S_T+6}, 3')
    I(f's_cselect_b64 exec, 0xffff, -1')
    I(f'ds_write_b32 v{V_AP}, v{SD}')
    I(f'ds_write_b32 v{V_AP}, v{SD+4} offset:{ACCN-PT}')
    I(f's_cselect_b64 exec, 0, -1')
    for i in range(1, 4):
        I(f'ds_write_b32 v{V_AP}, v{SD+i} offset:{i*256}')
        I(f'ds_write_b32 v{V_AP}, v{SD+4+i} offset:{ACCN-PT+i*256}')
    I('s_mov_b64 exec, -1')

def phase0c():
    I(f'v_bfe_u32 v13, v{V_LANE}, 2, 2')
    I(f'v_lshlrev_b32 v13, 7, v13')
    I(f'v_bfe_u32 v15, v{V_LANE}, 4, 1')
    I(f'v_lshl_add_u32 v13, v15, 5, v13')
    I(f'v_and_b32 v15, 3, v{V_LANE}')
    I(f'v_lshl_add_u32 v13, v15, 3, v13')
    I(f'v_add_u32 v13, {WG_ + 16384}, v13')
    I(f'ds_read_b64_tr_b16 v[96:97], v13')
    I(f'ds_read_b64_tr_b16 v[98:99], v13 offset:64')
    I(f's_mov_b32 s{S_T+4}, 0x{f2u(-LOG2E):x}')
    I(f'v_cmp_lt_u32 vcc, 31, v{V_LANE}')
    I('s_waitcnt lgkmcnt(0)')
    for m in range(4):
        I(f'v_lshlrev_b32 v{100+2*m}, 16, v{96+m}')
        I(f'v_and_b32 v{101+2*m}, 0xffff0000, v{96+m}')
    for j in range(8):
        I(f'v_mul_f32 v{100+j}, s{S_T+4}, v{100+j}')
    for m in range(4):
        dst = B5[m >> 1] + (m & 1)
        I(f'v_cvt_pk_bf16_f32 v{96+m}, v{100+2*m}, v{101+2*m}')
        I(f'v_lshlrev_b32 v12, 16, v{96+m}')
        I(f'v_and_b32 v13, 0xffff0000, v{96+m}')
        I(f'v_sub_f32 v12, v{100+2*m}, v12')
        I(f'v_sub_f32 v13, v{101+2*m}, v13')
        I(f'v_cvt_pk_bf16_f32 v12, v12, v13')
        I(f'v_cndmask_b32 v{dst}, v{96+m}, v12, vcc')

def a5_const():
    I(f'v_bfe_u32 v12, v{V_LANE}, 2, 1')
    I(f'v_lshrrev_b32 v13, 5, v{V_LANE}')
    I(f'v_xor_b32 v12, v12, v13')
    I(f'v_and_b32 v13, 1, v{V_LANE}')
    I(f'v_lshl_or_b32 v12, v12, 1, v13')
    I(f'v_mov_b32 v13, 0x3f803f80')
    I(f'v_cmp_eq_u32 vcc, 0, v12')
    I(f'v_cmp_eq_u32 {sp(S_T)}, 1, v12')
    I('s_nop 1')
    I(f'v_cndmask_b32 v{A5+2}, 0, v13, vcc')
    I(f'v_cndmask_b32 v{A5+3}, 0, v13, {sp(S_T)}')

def nt_prefetch(vt):
    I(f's_lshr_b32 s{S_T}, s2, 4')
    I(f's_lshl_b32 s{S_T+1}, s{S_W}, 4')
    I(f's_add_u32 s{S_T}, s{S_T}, s{S_T+1}')
    I(f's_and_b32 s{S_T+1}, s{S_T}, 7')
    I(f's_lshl_b32 s{S_T+1}, s{S_T+1}, 5')
    I(f's_lshr_b32 s{S_T}, s{S_T}, 3')
    I(f's_add_u32 s{S_T}, s{S_T}, s{S_T+1}')
    I(f's_lshl_b32 s{S_T}, s{S_T}, 1')
    I(f's_bfe_u32 s{S_T+1}, s2, 0x10003')
    I(f's_add_u32 s{S_T}, s{S_T}, s{S_T+1}')
    I(f's_mul_i32 s{S_T}, s{S_T}, {NB*128}')
    I(f's_add_u32 s{S_T}, s{S_T}, 0x{WS_NT:x}')
    srd_off(S_NTS, S_WSP, S_WSP + 1, f's{S_T}', NB * 128)
    I(f'v_lshlrev_b32 v{vt}, 4, v{V_LANE}')
    I(f'v_add_u32 v{vt+1}, 4096, v{vt}')
    for k in range(NPF):
        I(f'buffer_load_dwordx4 {vr(96+4*k,4)}, v{vt+(k>>2)}, {sr4(S_NTS)}, 0 offen offset:{(k&3)*1024}' + LSC)

def gen():
    e(f'.globl {KNAME}')
    e('.p2align 8')
    e(f'.type {KNAME},@function')
    L(KNAME)
    I(f's_cmp_ge_u32 s2, {NWG}')
    I('s_cbranch_scc1 L_END')
    I('s_load_dwordx8 s[84:91], s[0:1], 0')
    I('s_load_dwordx4 s[4:7], s[0:1], 32')
    I('s_load_dwordx4 s[8:11], s[0:1], 48')
    I('s_load_dwordx4 s[56:59], s[0:1], 64')
    if PROF:
        I(f'v_mov_b32 v{V_PROF}, 0')
    rstamp(30)
    stamp(0)
    zregs()
    zero_range(CNT, DESCP + 2560 - CNT, X + 2, X)
    I(f'v_lshlrev_b32 v{X+6}, 2, v{V_TID}')
    I(f's_mul_i32 s61, s2, {CH*4}')
    I(f's_mul_i32 s63, s2, {CH}')
    I(f's_sub_u32 s63, {E_EDGES}, s63')
    I(f's_min_u32 s63, s63, {CH}')
    I(f's_lshl_b32 s64, s63, 2')
    I(f'v_add_u32 v{X+8}, 4096, v{X+6}')
    I(f'v_add_u32 v{X+9}, 8192, v{X+6}')
    I(f'v_add_u32 v{X+10}, 12288, v{X+6}')
    I(f'v_lshrrev_b32 v{X}, 6, v{V_TID}')
    I(f'v_and_b32 v{V_LANE}, 63, v{V_TID}')
    I(f'v_readfirstlane_b32 s{S_W}, v{X}')
    I('s_and_b32 s3, s2, 7')
    I('s_lshl_b32 s3, s3, 5')
    I('s_lshr_b32 s60, s2, 3')
    I('s_add_u32 s3, s3, s60')
    I(f's_mul_i32 s62, s2, {CH*8}')
    I(f's_lshl_b32 s65, s63, 3')
    I(f'v_lshlrev_b32 v{X+7}, 3, v{V_TID}')
    I('s_waitcnt lgkmcnt(0)')
    I(f's_or_b32 s67, s2, s{S_W}')
    I('s_cmp_lg_u32 s67, 0')
    I('s_cbranch_scc1 L_NOTAG')
    I('s_memrealtime s[68:69]')
    I(f'v_mov_b32 v{X+2}, 0')
    I('s_waitcnt lgkmcnt(0)')
    I('s_or_b32 s68, s68, 1')
    I(f'v_mov_b32 v{X+3}, s68')
    I('s_mov_b64 exec, 1')
    I(f'global_store_dword v{X+2}, v{X+3}, s[56:57] sc1')
    I('s_mov_b64 exec, -1')
    L('L_NOTAG')
    srd_off(S_DST, 90, 91, 's61', 's64')
    for k in range(4):
        I(f'buffer_load_dword v{64+k}, v{X+6 if k == 0 else X+7+k}, {sr4(S_DST)}, 0 offen' + ELD)
    I('s_barrier')
    srd_off(S_SRC, 88, 89, 's61', 's64')
    for k in range(4):
        I(f'buffer_load_dword v{68+k}, v{X+6 if k == 0 else X+7+k}, {sr4(S_SRC)}, 0 offen' + ELD)
    srd_off(S_EA, 86, 87, 's62', 's65')
    I(f'buffer_load_dwordx2 v[72:73], v{X+7}, {sr4(S_EA)}, 0 offen' + ELD)
    for k in range(1, 4):
        I(f'v_add_u32 v{X+7+k}, {8192*k}, v{X+7}')
        I(f'buffer_load_dwordx2 v[{72+2*k}:{73+2*k}], v{X+7+k}, {sr4(S_EA)}, 0 offen' + ELD)
    I(f's_mov_b64 {sp(S_DBG)}, s[56:57]')
    I(f's_add_u32 s{S_WSP}, s58, 0x{WSB:x}')
    I(f's_addc_u32 s{S_WSP+1}, s59, 0')
    srd(S_WS, 8, 9, 132 * 128)
    srd(S_XS, 84, 85, N_NODES * 128)
    stamp(1)
    srd(S_OUT, 10, 11, N_NODES * 128)
    I(f's_add_u32 s{S_T}, s61, 0x{WS_RW:x}')
    srd_off(S_RW, S_WSP, S_WSP + 1, f's{S_T}', CH * 4)
    I(f's_add_u32 s{S_T}, s62, 0x{WS_RE:x}')
    srd_off(S_RE, S_WSP, S_WSP + 1, f's{S_T}', CH * 8)
    I(f's_lshl_b32 s{S_T}, s2, 11')
    I(f's_add_u32 s{S_T}, s{S_T}, 0x{WS_TAB:x}')
    srd_off(S_TAB, S_WSP, S_WSP + 1, f's{S_T}', 2048)
    I(f's_add_u32 s{S_NTG}, s{S_WSP}, 0x{WS_NT:x}')
    I(f's_addc_u32 s{S_NTG+1}, s{S_WSP+1}, 0')
    I(f's_or_b32 s{S_NTG+1}, s{S_NTG+1}, 0x80000000')
    I(f's_mov_b32 s{S_NTG+2}, 0x400000')
    I(f's_mov_b32 s{S_NTG+3}, 0x00c00000')
    srd_off(S_DST, S_WSP, S_WSP + 1, '0x%x' % WS_RW, NWG * CH * 4)
    srd_off(S_SRC, S_WSP, S_WSP + 1, '0x%x' % WS_RE, NWG * CH * 8)
    srd_off(S_EA, S_WSP, S_WSP + 1, '0x%x' % WS_TAB, NWG * 2048)
    for k in range(4):
        I(f'v_add_u32 v{X}, {1024*k}, v{V_TID}')
        I(f'v_cmp_gt_u32 {sp(S_MASK+2*k)}, s63, v{X}')
    I(f's_mov_b32 s{S_C}, 0x{f2u(2.0**-KEXP):x}')
    I(f's_mov_b32 s{S_C+1}, 0x{f2u(2.0**-KEXP):x}')
    I(f's_mov_b32 s{S_JB}, 0')
    I(f's_mov_b32 s{S_WID}, 128')
    I(f'v_and_b32 v{V_J4}, 15, v{V_LANE}')
    I(f'v_lshlrev_b32 v{V_J4}, 2, v{V_J4}')
    I(f'v_lshrrev_b32 v{X}, 4, v{V_LANE}')
    I(f's_lshl_b32 s{S_T}, s{S_W}, 4')
    I(f'v_add_u32 v{X}, s{S_T}, v{X}')
    I(f'v_mul_u32_u24 v{V_CB4}, {CH*4}, v{X}')
    I(f'v_add_u32 v{V_CB4}, v{V_CB4}, v{V_J4}')
    I(f'v_and_b32 v{V_CH8}, 31, v{V_LANE}')
    I(f'v_lshlrev_b32 v{V_CH8}, 3, v{V_CH8}')
    I(f'v_add_u32 v{V_CHP}, {PT}, v{V_CH8}')
    phase0_addr()
    a5_const()
    I(f'v_lshlrev_b32 v{X}, 4, v{V_TID}')
    I(f's_mov_b32 s{S_T}, -{NB}')
    I(f'v_mov_b32 v{X+1}, 4')
    stamp(2)
    for k in range(4):
        I(f's_waitcnt vmcnt({11 - k})')
        I(f's_mov_b64 exec, {sp(S_MASK+2*k)}')
        if k == 3:
            I('s_cbranch_execz L_B1')
        I(f'v_mul_u32_u24 v{80+k}, 21400, v{64+k}')
        I(f'v_lshrrev_b32 v{80+k}, 20, v{80+k}')
        I(f'v_mad_i32_i24 v{84+k}, v{80+k}, s{S_T}, v{64+k}')
        I(f'v_lshlrev_b32 v{80+k}, 2, v{80+k}')
        I(f'ds_add_rtn_u32 v{88+k}, v{80+k}, v{X+1} offset:{HIST}')
        I(f'v_lshlrev_b32 v{84+k}, 26, v{84+k}')
    L('L_B1')
    I('s_mov_b64 exec, -1')
    I(f'v_lshlrev_b32 v96, 4, v{V_LANE}')
    I(f's_lshl_b32 s92, s{S_W}, 10')
    I(f'v_add_u32 v97, s92, v96')
    I(f's_add_u32 m0, s92, {WG_}')
    I('s_nop 0')
    I(f'buffer_load_dwordx4 v97, {sr4(S_WS)}, 0 offen lds')
    I(f's_cmp_lt_u32 s{S_W}, 8')
    I(f's_cselect_b32 s{S_NTS}, s6, s4')
    I(f's_cselect_b32 s{S_NTS+1}, s7, s5')
    I(f's_mov_b32 s{S_NTS+2}, {64*128}')
    I(f's_mov_b32 s{S_NTS+3}, 0x00020000')
    I(f'v_and_b32 v101, 0x1fff, v97')
    I(f's_add_u32 m0, s92, {WV_}')
    I(f'v_lshrrev_b32 v98, 3, v{V_TID}')
    I(f'buffer_load_dwordx4 v101, {sr4(S_NTS)}, 0 offen lds')
    I(f'v_bfe_u32 v99, v98, 1, 3')
    I(f'v_and_b32 v100, 7, v{V_TID}')
    I(f'v_xor_b32 v99, v99, v100')
    I(f'v_lshlrev_b32 v99, 4, v99')
    I(f'v_lshl_add_u32 v99, v98, 7, v99')
    I(f's_mul_i32 s93, s3, {NB*128}')
    I(f'v_add_u32 v99, s93, v99')
    I(f'v_add_u32 v101, 16384, v96')
    I(f's_cmp_lt_u32 s{S_W}, 8')
    I('s_cbranch_scc0 L_D3B')
    I(f's_add_u32 m0, s92, {XOWN}')
    I('s_nop 0')
    I(f'buffer_load_dwordx4 v99, {sr4(S_XS)}, 0 offen lds' + '')
    I('s_branch L_D3C')
    L('L_D3B')
    I(f's_mov_b32 m0, {WG_ + 16384}')
    I('s_nop 0')
    I(f'buffer_load_dwordx4 v101, {sr4(S_WS)}, 0 offen lds')
    L('L_D3C')
    I(f's_mul_i32 s{S_T}, s3, {NB*256}')
    I(f's_add_u32 s{S_T}, s{S_T}, 0x{WS_NT:x}')
    srd_off(S_NTS, S_WSP, S_WSP + 1, f's{S_T}', NB * 256)
    stamp(3)
    I('s_waitcnt lgkmcnt(0)')
    I('s_barrier')
    stamp(4)
    I(f's_cmp_lg_u32 s{S_W}, 0')
    I('s_cbranch_scc1 L_NOSCAN')
    I(f'ds_read_b128 v[96:99], v{X} offset:{HIST}')
    I('s_waitcnt lgkmcnt(0)')
    I('v_add_u32 v101, v96, v97')
    I('v_add_u32 v102, v101, v98')
    I('v_add_u32 v103, v102, v99')
    I('v_mov_b32 v104, v103')
    wave_scan(104)
    I('v_sub_u32 v104, v104, v103')
    I('v_add_u32 v105, v104, v96')
    I('v_add_u32 v106, v104, v101')
    I('v_add_u32 v107, v104, v102')
    I(f'ds_write_b128 v{X}, v[104:107] offset:{HBASE}')
    for k in range(4):
        I(f'v_lshl_or_b32 v{108+k}, v{96+k}, 16, v{104+k}')
    I(f'ds_write_b128 v{X}, v[108:111] offset:{HIST}')
    L('L_NOSCAN')
    I(f's_cmp_lg_u32 s{S_W}, 15')
    I('s_cbranch_scc1 L_NOTAGP')
    I(f'v_mov_b32 v12, 0')
    I(f's_mov_b32 s{S_T}, 0x40000')
    L('L_TAGP')
    I(f'global_load_dword v13, v12, {sp(S_DBG)} sc1')
    I('s_waitcnt vmcnt(0)')
    I(f'v_readfirstlane_b32 s{S_T+1}, v13')
    I(f's_sub_u32 s{S_T}, s{S_T}, 1')
    I(f's_cselect_b32 s{S_T+1}, 1, s{S_T+1}')
    I(f's_cmp_eq_u32 s{S_T+1}, 0')
    I('s_cbranch_scc0 L_TAGD')
    I('s_sleep 4')
    I('s_branch L_TAGP')
    L('L_TAGD')
    I(f'v_mov_b32 v12, {TAGL}')
    I(f'ds_write_b32 v12, v13')
    L('L_NOTAGP')
    I('s_waitcnt vmcnt(7)')
    for k in range(4):
        I(f'v_lshl_or_b32 v{84+k}, v{68+k}, 3, v{84+k}')
    I(f'v_mov_b32 v12, {TAGL}')
    I('s_waitcnt lgkmcnt(0)')
    I('s_barrier')
    stamp(5)
    for k in range(4):
        I(f's_mov_b64 exec, {sp(S_MASK+2*k)}')
        I(f'ds_read_b32 v{80+k}, v{80+k} offset:{HBASE}')
    I('s_waitcnt vmcnt(3)')
    for k in range(4):
        I(f's_mov_b64 exec, {sp(S_MASK+2*k)}')
        if k == 3:
            I('s_cbranch_execz L_B2')
        I(f's_waitcnt lgkmcnt({3 - k + 2*k})')
        I(f'v_add_u32 v{88+k}, v{80+k}, v{88+k}')
        I(f'v_add_u32 v{80+k}, v{88+k}, v{88+k}')
        I(f'ds_write_b32 v{88+k}, v{84+k} offset:{STGW}')
        I(f'ds_write_b64 v{80+k}, v[{72+2*k}:{73+2*k}] offset:{STGE}')
    L('L_B2')
    I('s_mov_b64 exec, -1')
    I(f'ds_read_b32 v12, v12')
    I(f'v_add_u32 v{X+2}, 16384, v{X}')
    I('s_waitcnt vmcnt(0) lgkmcnt(0)')
    I('s_barrier')
    stamp(6)
    I(f'ds_read_b128 v[64:67], v{X} offset:{STGW}')
    I(f'ds_read_b128 v[68:71], v{X} offset:{STGE}')
    I(f'ds_read_b128 v[72:75], v{X} offset:{STGE+16384}')
    I(f'v_readfirstlane_b32 s{S_TAG}, v12')
    I('s_waitcnt lgkmcnt(2)')
    I(f'buffer_store_dwordx4 v[64:67], v{X}, {sr4(S_RW)}, 0 offen' + SC)
    I('s_waitcnt lgkmcnt(1)')
    I(f'buffer_store_dwordx4 v[68:71], v{X}, {sr4(S_RE)}, 0 offen' + SC)
    I('s_waitcnt lgkmcnt(0)')
    I(f'buffer_store_dwordx4 v[72:75], v{X+2}, {sr4(S_RE)}, 0 offen' + SC)
    I(f's_mul_i32 s{S_TAG2}, s{S_TAG}, 0x9e3779b1')
    I(f's_and_b32 s{S_TAG2}, s{S_TAG2}, 0x{TAGM:x}')
    phase0a()
    I(f'v_add_u32 v{X+1}, {NTI}, v{X}')
    I(f'v_lshlrev_b32 v12, 3, v{V_LANE}')
    I('s_waitcnt lgkmcnt(0)')
    I('s_barrier')
    stamp(7)
    I(f'ds_read_b128 v[64:67], v{X+1}')
    I(f'ds_read_b64 v[68:69], v12 offset:{HIST}')
    I(f'ds_read_b64 v[70:71], v12 offset:{HIST+512}')
    I('s_waitcnt lgkmcnt(2)')
    I(f'buffer_store_dwordx4 v[64:67], v{X}, {sr4(S_NTS)}, 0 offen' + SC)
    I('s_waitcnt lgkmcnt(0)')
    for k in range(4):
        I(f'v_or_b32 v{120+2*k}, s{S_TAG2}, v{68+k}')
        I(f'v_mov_b32 v{121+2*k}, s{S_TAG}')
    pre = opt('pre', 'fb')
    def piece(c):
        if c == 'f':
            fill_words()
            zregs()
            zero_range(LE, CNT - LE, X + 2, X)
            fill_desca()
        elif c == 'b':
            phase0b()
        elif c == 'c':
            phase0c()
    for c in pre:
        piece(c)
    I(f'v_lshrrev_b32 v76, 4, v{V_LANE}')
    I(f's_lshl_b32 s{S_T}, s{S_W}, 15')
    I(f's_lshl_b32 s{S_T+1}, s3, 3')
    I(f's_add_u32 s{S_T}, s{S_T}, s{S_T+1}')
    I(f'v_lshlrev_b32 v76, 11, v76')
    I(f'v_add_u32 v76, s{S_T}, v76')
    for r in range(1, 4):
        I(f'v_add_u32 v{76+r}, {8192*r}, v76')
    I(f'v_lshlrev_b32 v75, 4, v{V_LANE}')
    for r in range(4):
        I(f's_mov_b64 {sp(S_MASK+2*r)}, -1')
    I('s_waitcnt vmcnt(0)')
    stamp(8)
    I('s_barrier')
    stamp(9)
    I(f's_cmp_lg_u32 s{S_W}, 0')
    I('s_cbranch_scc1 L_POLL0')
    I(f'buffer_store_dwordx4 v[120:123], v75, {sr4(S_TAB)}, 0 offen' + SC)
    I(f'buffer_store_dwordx4 v[124:127], v75, {sr4(S_TAB)}, 0 offen offset:1024' + SC)
    L('L_POLL0')
    for c in 'fbc':
        if c not in pre:
            piece(c)
    zregs()
    zero_range(EXTRA, 16384, X + 2, X)
    I(f's_mov_b32 s{S_T}, 0x40000')
    I(f's_mov_b32 s{S_T+1}, 0x{TAGM:x}')
    L('L_POLL')
    for r in range(4):
        I(f's_mov_b64 exec, {sp(S_MASK+2*r)}')
        I(f'buffer_load_dwordx2 {p(64+2*r)}, v{76+r}, {sr4(S_EA)}, 0 offen' + LSC)
    for r in range(4):
        I(f's_waitcnt vmcnt({3-r})')
        I(f's_mov_b64 exec, {sp(S_MASK+2*r)}')
        I(f'v_xor_b32 v{V_TAB+r}, s{S_TAG2}, v{64+2*r}')
        I(f'v_xor_b32 v{65+2*r}, s{S_TAG}, v{65+2*r}')
        I(f'v_and_or_b32 v{65+2*r}, v{V_TAB+r}, s{S_T+1}, v{65+2*r}')
        I(f'v_cmp_ne_u32 {sp(S_MASK+2*r)}, 0, v{65+2*r}')
    I(f's_or_b64 {sp(S_T+2)}, {sp(S_MASK)}, {sp(S_MASK+2)}')
    I(f's_or_b64 {sp(S_T+4)}, {sp(S_MASK+4)}, {sp(S_MASK+6)}')
    I(f's_or_b64 {sp(S_T+2)}, {sp(S_T+2)}, {sp(S_T+4)}')
    I('s_cbranch_scc0 L_POLLED')
    I(f's_sub_u32 s{S_T}, s{S_T}, 1')
    I('s_cbranch_scc1 L_END')
    if opt('sleep', 1):
        I(f's_sleep {opt("sleep", 1)}')
    I('s_branch L_POLL')
    L('L_POLLED')
    I('s_mov_b64 exec, -1')
    if opt('pbar', 0):
        I('s_barrier')
    stamp(10)
    REC = 64
    A4, A8 = X, X + 4
    L('L_PASS')
    I(f'v_add_u32 v{X+8}, s{S_JB}, v{V_J4}')
    I(f'v_add_u32 v{X+9}, 64, v{X+8}')
    I(f'v_add_u32 v{X+10}, s{S_JB}, v{V_CB4}')
    I(f's_cmp_eq_u32 s{S_WID}, 128')
    I(f's_cselect_b64 {sp(S_T+4)}, -1, 0')
    for r in range(4):
        I(f'v_add_u32_sdwa v{A4+r}, v{V_TAB+r}, v{X+10} dst_sel:DWORD dst_unused:UNUSED_PAD src0_sel:WORD_0 src1_sel:DWORD')
        I(f'v_cmp_lt_u32_sdwa {sp(S_MASK+4*r)}, v{X+8}, v{V_TAB+r} src0_sel:DWORD src1_sel:WORD_1')
        if r:
            I(f'v_add_u32 v{A4+r}, {r*4*CH*4}, v{A4+r}')
        I(f'v_cmp_lt_u32_sdwa vcc, v{X+9}, v{V_TAB+r} src0_sel:DWORD src1_sel:WORD_1')
        I(f'v_add_u32 v{A8+r}, v{A4+r}, v{A4+r}')
        I(f's_and_b64 {sp(S_MASK+4*r+2)}, vcc, {sp(S_T+4)}')
        I(f's_mov_b64 exec, {sp(S_MASK+4*r)}')
        I(f'buffer_load_dword v{REC+8*r+2}, v{A4+r}, {sr4(S_DST)}, 0 offen' + LSC)
        I(f'buffer_load_dwordx2 {p(REC+8*r)}, v{A8+r}, {sr4(S_SRC)}, 0 offen' + LSC)
        I('s_mov_b64 exec, -1')
    for r in range(4):
        I(f's_mov_b64 exec, {sp(S_MASK+4*r+2)}')
        I(f'buffer_load_dword v{REC+8*r+6}, v{A4+r}, {sr4(S_DST)}, 0 offen offset:64' + LSC)
        I(f'buffer_load_dwordx2 {p(REC+8*r+4)}, v{A8+r}, {sr4(S_SRC)}, 0 offen offset:128' + LSC)
    I('s_mov_b64 exec, -1')
    if NPFM == 1:
        nt_prefetch(X + 8)
    I(f'v_max3_u32 v{X+8}, v{V_TAB}, v{V_TAB+1}, v{V_TAB+2}')
    I(f'v_max_u32 v{X+8}, v{X+8}, v{V_TAB+3}')
    I(f'v_lshrrev_b32 v{X+8}, 16, v{X+8}')
    I(f's_add_u32 s{S_T}, s{S_JB}, s{S_WID}')
    I(f'v_cmp_lt_u32 vcc, s{S_T}, v{X+8}')
    I(f'v_mov_b32 v{X+8}, 4')
    I(f's_cbranch_vccz L_NOMORE')
    I(f'v_mov_b32 v{X+9}, {MISC}')
    I(f'ds_write_b32 v{X+9}, v{X+8}')
    L('L_NOMORE')
    stamp(11)
    for r in range(4):
        I(f's_waitcnt vmcnt({15 + NPF1 - 2*r})')
        I(f's_mov_b64 exec, {sp(S_MASK+4*r)}')
        I(f'v_lshrrev_b32 v{A4+r}, 24, v{REC+8*r+2}')
        I(f'ds_add_rtn_u32 v{REC+8*r+3}, v{A4+r}, v{X+8} offset:{CNT}')
    for r in range(4):
        I(f's_mov_b64 exec, {sp(S_MASK+4*r+2)}')
        I(f's_cbranch_execz L_C{r}')
        I(f's_waitcnt vmcnt({7 + NPF1 - 2*r})')
        I(f'v_lshrrev_b32 v{A8+r}, 24, v{REC+8*r+6}')
        I(f'ds_add_rtn_u32 v{REC+8*r+7}, v{A8+r}, v{X+8} offset:{CNT}')
        L(f'L_C{r}')
    I('s_mov_b64 exec, -1')
    I(f'v_lshlrev_b32 v{X+8}, 2, v{V_LANE}')
    I(f'v_mov_b32 v{X+9}, {MISC}')
    I(f's_mov_b32 s{S_T+2}, 0x1fff8')
    I('s_waitcnt lgkmcnt(0)')
    I('s_barrier')
    stamp(12)
    if NPFM == 2:
        nt_prefetch(12)
        I(f's_mov_b32 s{S_T+2}, 0x1fff8')
    NG, GS, MI = X + 10, X + 11, X + 12
    I(f'ds_read_b32 v{NG}, v{X+8} offset:{CNT}')
    I(f'ds_read_b32 v{X+9}, v{X+9}')
    I('s_waitcnt lgkmcnt(1)')
    I(f'v_add_u32 v{NG}, 28, v{NG}')
    I(f'v_and_b32 v{NG}, 0xffffffe0, v{NG}')
    I(f'v_mov_b32 v{GS}, v{NG}')
    wave_scan(GS)
    I(f'v_readlane_b32 s{S_T}, v{GS}, 63')
    I(f'v_sub_u32 v{GS}, v{GS}, v{NG}')
    I(f'ds_write_b32 v{X+8}, v{GS} offset:{BASET}')
    for r in range(4):
        I(f's_mov_b64 exec, {sp(S_MASK+4*r)}')
        I(f'ds_read_b32 v{A4+r}, v{A4+r} offset:{BASET}')
    for r in range(4):
        I(f's_mov_b64 exec, {sp(S_MASK+4*r+2)}')
        I(f'ds_read_b32 v{A8+r}, v{A8+r} offset:{BASET}')
    I('s_mov_b64 exec, -1')
    I(f'v_readfirstlane_b32 s{S_MORE}, v{X+9}')
    out.insert(len(out) - 1, '    s_waitcnt lgkmcnt(9)')
    I(f's_lshr_b32 s{S_T}, s{S_T}, 5')
    I(f's_cmp_eq_u32 s{S_WID}, 128')
    I(f's_cselect_b32 s{S_T+1}, {MAXG}, -1')
    I(f's_cmp_gt_u32 s{S_T}, s{S_T+1}')
    I('s_cbranch_scc1 L_OVERFLOW')
    I(f's_add_u32 s{S_L}, s{S_T}, 63')
    I(f's_lshr_b32 s{S_L}, s{S_L}, 6')
    I(f'v_cvt_f32_u32 v{MI}, s{S_L}')
    I(f'v_rcp_f32 v{MI}, v{MI}')
    I(f'v_lshrrev_b32 v{GS}, 5, v{GS}')
    I(f'v_mul_f32 v{MI}, 0x47800000, v{MI}')
    I(f'v_cvt_u32_f32 v{MI}, v{MI}')
    I(f'v_lshrrev_b32 v{NG}, 5, v{NG}')
    I(f'v_add_u32 v{MI}, 2, v{MI}')
    I(f's_waitcnt vmcnt({NPF})')
    for r in range(4):
        I(f's_waitcnt lgkmcnt({7 - r + 2*r})')
        I(f's_mov_b64 exec, {sp(S_MASK+4*r)}')
        I(f'v_add_u32 v{A4+r}, v{A4+r}, v{REC+8*r+3}')
        I(f'v_and_b32 v{REC+8*r+2}, s{S_T+2}, v{REC+8*r+2}')
        I(f'v_add_u32 v{REC+8*r+3}, v{A4+r}, v{A4+r}')
        I(f'ds_write_b32 v{A4+r}, v{REC+8*r+2} offset:{LS}')
        I(f'ds_write_b64 v{REC+8*r+3}, {p(REC+8*r)} offset:{LE}')
    I('s_waitcnt lgkmcnt(8)')
    for r in range(4):
        I(f's_mov_b64 exec, {sp(S_MASK+4*r+2)}')
        I(f's_cbranch_execz L_P{r}')
        I(f'v_add_u32 v{A8+r}, v{A8+r}, v{REC+8*r+7}')
        I(f'v_and_b32 v{REC+8*r+6}, s{S_T+2}, v{REC+8*r+6}')
        I(f'v_add_u32 v{REC+8*r+7}, v{A8+r}, v{A8+r}')
        I(f'ds_write_b32 v{A8+r}, v{REC+8*r+6} offset:{LS}')
        I(f'ds_write_b64 v{REC+8*r+7}, {p(REC+8*r+4)} offset:{LE}')
        L(f'L_P{r}')
    I('s_mov_b64 exec, -1')
    stamp(13)
    SA_, SB_ = X, X + 1
    I(f'v_mul_u32_u24 v{SA_}, v{GS}, v{MI}')
    I(f'v_max_u32 v{SB_}, 1, v{NG}')
    I(f'v_lshrrev_b32 v{SA_}, 16, v{SA_}')
    I(f'v_add3_u32 v{SB_}, v{SB_}, v{GS}, -1')
    I(f'v_mul_u32_u24 v{SB_}, v{SB_}, v{MI}')
    I(f'v_lshlrev_b32 v{X+2}, 3, v{V_LANE}')
    I(f'v_lshrrev_b32 v{SB_}, 16, v{SB_}')
    I(f'v_lshlrev_b32 v{X+3}, 8, v{V_LANE}')
    I(f'ds_write_b64 v{X+2}, {p(SA_)} offset:{NINFO}')
    I(f'v_add_u32 v{X+4}, {ACCN}, v{X+3}')
    I(f's_mov_b32 s{S_T}, s{S_W}')
    I(f's_sub_u32 s{S_T+1}, 0, s{S_L}')
    L('L_DLOOP')
    I(f'v_cmp_lt_u32 vcc, s{S_T}, v{NG}')
    I('s_and_b64 exec, exec, vcc')
    I('s_cbranch_execz L_DEND')
    I(f'v_add_u32 v{X+5}, s{S_T}, v{GS}')
    I(f'v_mul_u32_u24 v{X+6}, v{X+5}, v{MI}')
    I(f'v_lshrrev_b32 v{X+6}, 16, v{X+6}')
    I(f'v_mad_i32_i24 v{X+5}, v{X+6}, s{S_T+1}, v{X+5}')
    I(f'v_cmp_eq_u32 vcc, v{X+6}, v{SA_}')
    I(f'v_lshl_add_u32 v{X+5}, v{X+5}, 6, v{X+6}')
    I(f'v_lshlrev_b32 v{X+6}, 8, v{X+6}')
    I(f'v_lshlrev_b32 v{X+5}, 2, v{X+5}')
    I(f'v_add_u32 v{X+6}, {EXTRA}, v{X+6}')
    I(f'v_add_u32 v{X+7}, {DESCA}, v{X+5}')
    I(f'v_cndmask_b32 v{X+6}, v{X+6}, v{X+4}, vcc')
    I(f'ds_write_b32 v{X+5}, v{X+3} offset:{DESCP}')
    I(f'ds_write_b32 v{X+7}, v{X+6}')
    I(f's_add_u32 s{S_T}, s{S_T}, 16')
    I('s_branch L_DLOOP')
    L('L_DEND')
    I('s_mov_b64 exec, -1')
    I(f's_lshl_b32 s{S_T}, s{S_W}, 2')
    I(f's_lshl_b32 s{S_T+1}, s{S_L}, 5')
    I(f'v_lshrrev_b32 v{X}, 5, v{V_LANE}')
    I(f'v_lshl_add_u32 v{X+1}, v{X}, 1, s{S_T}')
    I(f'v_mul_u32_u24 v{V_PS0}, s{S_T+1}, v{X+1}')
    I(f'v_lshlrev_b32 v{V_PD}, 2, v{X+1}')
    I(f'v_add_u32 v{V_PS1}, s{S_T+1}, v{V_PS0}')
    I(f'v_add_u32 v{V_PD}, {DESCP}, v{V_PD}')
    I(f'v_bfe_u32 v{X}, v{V_LANE}, 2, 1')
    I(f'v_and_b32 v{X+1}, 1, v{V_LANE}')
    I(f'v_lshl_or_b32 v{X}, v{X}, 1, v{X+1}')
    I(f'v_add_u32 v{X}, s{S_T}, v{X}')
    I(f's_lshl_b32 s{S_T+1}, s{S_L}, 6')
    I(f'v_mul_u32_u24 v{V_PE}, s{S_T+1}, v{X}')
    I(f'v_bfe_u32 v{X}, v{V_LANE}, 3, 2')
    I(f'v_bfe_u32 v{X+1}, v{V_LANE}, 1, 1')
    I(f'v_lshl_or_b32 v{X}, v{X}, 1, v{X+1}')
    I(f'v_lshl_add_u32 v{V_PE}, v{X}, 3, v{V_PE}')
    I(f'v_add_u32 v{V_PE}, {LE}, v{V_PE}')
    I(f's_mov_b32 s{S_CNT}, s{S_L}')
    I('s_waitcnt lgkmcnt(0)')
    I('s_barrier')
    stamp(14)
    I(f's_cmp_eq_u32 s{S_L}, 0')
    I('s_cbranch_scc1 L_FOLD')
    lg = Lg()
    if NPF:
        I('s_waitcnt vmcnt(0)')
    s_reads(lg, 0)
    lg.op('dP', f'ds_read_b64 {p(V_VAP)}, v{V_PD}')
    lg.op('dA', f'ds_read_b64 {p(V_VAA[0])}, v{V_PD} offset:{DESCA-DESCP}')
    lg.op('e', f'ds_read_b64 {p(A5)}, v{V_PE}')
    lg.need('S0', 'S1', 'S2', 'S3')
    for n in range(2):
        for i in range(16):
            I(gload(n, i))
    s_reads(lg, 1)
    lg.need('dP', 'dA')
    I(f'v_add_u32 v{V_VAP}, v{V_VAP}, v{V_CHP}')
    I(f'v_add_u32 v{V_VAP+1}, v{V_VAP+1}, v{V_CHP}')
    I(f'v_add_u32 v{V_VAA[0]}, v{V_VAA[0]}, v{V_CH8}')
    I(f'v_add_u32 v{V_VAA[0]+1}, v{V_VAA[0]+1}, v{V_CH8}')
    lg.op('P0a', f'ds_read_b32 v{B5[0]+2}, v{V_VAP}')
    lg.op('P0b', f'ds_read_b32 v{B5[0]+3}, v{V_VAP+1}')
    lg.op('P1a', f'ds_read_b32 v{B5[1]+2}, v{V_VAP} offset:4')
    lg.op('P1b', f'ds_read_b32 v{B5[1]+3}, v{V_VAP+1} offset:4')
    I(f's_cmp_eq_u32 s{S_CNT}, 1')
    I(f's_cselect_b64 {sp(S_LDX)}, 0, {LDXV}')
    I('s_waitcnt lgkmcnt(0)')
    lg.q = []
    if opt('prio', 3):
        I('s_setprio 3')
    stamp(15)
    rstamp(28)
    half(lg, 0, 0, 0, False)
    state0 = list(lg.q)
    def step(par, uo):
        half(lg, 1, par, uo)
        I(f's_sub_u32 s{S_CNT}, s{S_CNT}, 1')
        I(f's_cmp_eq_u32 s{S_CNT}, 0')
        I(f's_cbranch_scc1 L_FIN{par}')
        I(f's_cmp_eq_u32 s{S_CNT}, 1')
        I(f's_cselect_b64 {sp(S_LDX)}, 0, {LDXV}')
        prio(f'{par}')
        half(lg, 0, par ^ 1, uo + 1)
    def loop_body():
        step(0, 0)
        step(1, 1)
        I(f'v_add_u32 v{V_PS0}, 64, v{V_PS0}')
        I(f'v_add_u32 v{V_PS1}, 64, v{V_PS1}')
        I(f'v_add_u32 v{V_PE}, 128, v{V_PE}')
        I(f'v_add_u32 v{V_PD}, 512, v{V_PD}')
        I('s_branch L_LOOP')
    mark = len(out)
    loop_body()
    del out[mark:]
    qb = list(lg.q)
    n = min(len(qb), len(state0))
    assert qb[len(qb)-n:] == state0[len(state0)-n:], (state0, qb)
    lg.q = list(qb if len(qb) >= len(state0) else state0)
    e('.p2align 3')
    L('L_LOOP')
    loop_body()
    assert lg.q == qb, (lg.q, qb)
    print('loop entry queue', state0, 'back edge queue', qb, file=sys.stderr)
    for pr in range(2):
        L(f'L_FIN{pr}')
        for op in tail_ops(1):
            I(op)
        I(f'ds_write_b64 v{V_VAA[pr]}, {p(V_MA)}')
        I(f'ds_write_b64 v{V_VAA[pr]+1}, {p(V_MB)}')
        if pr == 0:
            I('s_branch L_FOLD')
    L('L_FOLD')
    stamp(16)
    I(f'v_lshrrev_b32 v{X}, 3, v{V_TID}')
    I(f'v_and_b32 v{X+1}, 7, v{V_TID}')
    I(f'v_lshlrev_b32 v{X+6}, 3, v{X+1}')
    I(f'v_lshlrev_b32 v{X+1}, 5, v{X+1}')
    I(f'v_lshl_add_u32 v{X+2}, v{X}, 8, v{X+1}')
    I(f'v_add_u32 v{X+2}, {ACCN}, v{X+2}')
    I(f'v_add_u32 v{X+1}, {EXTRA}, v{X+1}')
    I(f'v_lshlrev_b32 v{X+3}, 3, v{X}')
    I(f's_mul_i32 s{S_T+4}, s3, {NB*128}')
    I(f'v_lshl_add_u32 v{X+6}, v{X}, 7, v{X+6}')
    I(f'v_add_u32 v{X+6}, s{S_T+4}, v{X+6}')
    I(f'v_mov_b32 v{X+7}, 0')
    I('s_waitcnt vmcnt(0) lgkmcnt(0)')
    I('s_barrier')
    stamp(17)
    rstamp(29)
    if PROF:
        I(f'v_writelane_b32 v{V_PROF}, s{S_L}, 27')
    I(f'v_cmp_gt_u32 vcc, {NB*8}, v{V_TID}')
    I(f's_and_saveexec_b64 {sp(S_EX)}, vcc')
    I('s_cbranch_execz L_FDONE')
    I(f'ds_read_b64 {p(X+4)}, v{X+3} offset:{NINFO}')
    I(f'ds_read_b128 v[64:67], v{X+2}')
    I(f'ds_read_b128 v[68:71], v{X+2} offset:16')
    I(f's_mov_b64 {sp(S_T)}, exec')
    I('s_waitcnt lgkmcnt(0)')
    L('L_FLOOP')
    I(f'v_cmp_lt_u32 vcc, v{X+4}, v{X+5}')
    I('s_and_b64 exec, exec, vcc')
    I('s_cbranch_execz L_FLEND')
    I(f'v_add_u32 v{X+4}, 1, v{X+4}')
    I(f'v_lshl_add_u32 v{X+7}, v{X+4}, 8, v{X+1}')
    I(f'ds_read_b128 v[72:75], v{X+7}')
    I(f'ds_read_b128 v[76:79], v{X+7} offset:16')
    I('s_waitcnt lgkmcnt(0)')
    for k in range(8):
        I(f'v_add_f32 v{64+k}, v{64+k}, v{72+k}')
    I('s_branch L_FLOOP')
    L('L_FLEND')
    I(f's_mov_b64 exec, {sp(S_T)}')
    I(f's_cmp_lg_u32 s{S_MORE}, 0')
    I('s_cbranch_scc1 L_WB')
    I(f's_mov_b32 s{S_T+2}, 0x{f2u(2.0**-(SV+KEXP)):x}')
    I(f's_mov_b32 s{S_T+3}, 0x{f2u(-LOG2E):x}')
    for k in range(8):
        I(f'v_mul_f32 v{64+k}, s{S_T+2}, v{64+k}')
    for k in range(8):
        I(f'v_mul_f32 v{72+k}, s{S_T+3}, v{64+k}')
    for k in range(8):
        I(f'v_exp_f32 v{72+k}, v{72+k}')
    for k in range(8):
        I(f'v_add_f32 v{72+k}, 1.0, v{72+k}')
    for k in range(8):
        I(f'v_rcp_f32 v{72+k}, v{72+k}')
    for k in range(8):
        I(f'v_mul_f32 v{64+k}, v{64+k}, v{72+k}')
    I('v_cvt_pk_bf16_f32 v80, v64, v66')
    I('v_cvt_pk_bf16_f32 v81, v68, v70')
    I('v_cvt_pk_bf16_f32 v82, v65, v67')
    I('v_cvt_pk_bf16_f32 v83, v69, v71')
    I(f'buffer_store_dwordx2 v[80:81], v{X+6}, {sr4(S_OUT)}, 0 offen')
    I(f'buffer_store_dwordx2 v[82:83], v{X+6}, {sr4(S_OUT)}, 0 offen offset:64')
    stamp(18)
    prof_store()
    I('s_endpgm')
    L('L_WB')
    I(f'ds_write_b128 v{X+2}, v[64:67]')
    I(f'ds_write_b128 v{X+2}, v[68:71] offset:16')
    L('L_FDONE')
    I('s_mov_b64 exec, -1')
    I(f's_cmp_eq_u32 s{S_MORE}, 0')
    I('s_cbranch_scc1 L_QUIT')
    I(f's_add_u32 s{S_JB}, s{S_JB}, s{S_WID}')
    I('s_branch L_REFILL')
    L('L_OVERFLOW')
    I(f's_mov_b32 s{S_WID}, 64')
    L('L_REFILL')
    I('s_waitcnt vmcnt(0) lgkmcnt(0)')
    I('s_barrier')
    fill_zero()
    fill_words()
    I('s_waitcnt lgkmcnt(0)')
    I('s_barrier')
    I('s_branch L_PASS')
    L('L_QUIT')
    prof_store()
    L('L_END')
    I('s_endpgm')

hdr = open('standalone__edge_featured_mpnn_egc__graph.s.ref').read().split('\n')
for line in hdr:
    if line.startswith('; Override'):
        break
    e(line)
e(f'; @launch grid=({NWG},1,1) block=(1024,1,1) lds={LDS_BYTES}')
e('.amdgcn_target "amdgcn-amd-amdhsa--gfx950"')
e('.text')
gen()
e('.section .rodata,"a"')
e('.p2align 6')
e(f'.amdhsa_kernel {KNAME}')
e('  .amdhsa_next_free_vgpr 128')
e('  .amdhsa_next_free_sgpr 102')
e('  .amdhsa_accum_offset 128')
e('  .amdhsa_group_segment_fixed_size 0')
e('  .amdhsa_kernarg_size 80')
e('  .amdhsa_user_sgpr_count 2')
e('  .amdhsa_user_sgpr_kernarg_segment_ptr 1')
e('  .amdhsa_system_sgpr_workgroup_id_x 1')
e('  .amdhsa_float_denorm_mode_32 3')
e('.end_amdhsa_kernel')
open(sys.argv[1], 'w').write('\n'.join(x for x in out if x is not None) + '\n')
```

```python
import sys, struct

OPT = dict(a.split('=') for a in sys.argv[2:] if '=' in a)
def opt(name, default):
    return type(default)(OPT.get(name, default))

KNAME = 'standalone__edge_featured_mpnn_egc__graph_kernel'
N_NODES = 12500
E_EDGES = 800000
NB = 49
NWG = 256
CH = 3136
WS_RW = 0
WS_RE = 0x00400000
WS_TAB = 0x00B00000
WS_NT = 0x00C00000
WS_PROF = 0x01000000
KEXP = 31
SV = 30
LOG2E = 1.4426950408889634
SC = opt('sc', 'sc1')
SC = (' ' + SC.replace('+', ' ')) if SC != 'none' else ''
LSC = opt('lsc', 'sc1')
LSC = (' ' + LSC.replace('+', ' ')) if LSC != 'none' else ''
GSC = opt('gsc', 'sc1')
GSC = (' ' + GSC.replace('+', ' ')) if GSC != 'none' else ''
ELD = opt('eld', 'nt')
ELD = (' ' + ELD.replace('+', ' ')) if ELD != 'none' else ''

def f2u(x):
    return struct.unpack('<I', struct.pack('<f', x))[0]

out = []
def e(s=''):
    out.append(s)
def I(s):
    out.append('    ' + s)
def L(name):
    out.append(name + ':')
def vr(a, n):
    return f'v[{a}:{a+n-1}]' if n > 1 else f'v{a}'
def sr4(a):
    return f's[{a}:{a+3}]'
def sp(a):
    return f's[{a}:{a+1}]'
def p(r):
    return f'v[{r}:{r+1}]'

def srd(d, lo, hi, nrec):
    I(f's_mov_b32 s{d}, s{lo}')
    I(f's_mov_b32 s{d+1}, s{hi}')
    I(f's_mov_b32 s{d+2}, {nrec}')
    I(f's_mov_b32 s{d+3}, 0x00020000')

def srd_off(d, lo, hi, off, nrec):
    I(f's_add_u32 s{d}, s{lo}, {off}')
    I(f's_addc_u32 s{d+1}, s{hi}, 0')
    I(f's_mov_b32 s{d+2}, {nrec}')
    I(f's_mov_b32 s{d+3}, 0x00020000')

def wave_scan(v):
    for sh in (1, 2, 4, 8):
        I('s_nop 1')
        I(f'v_add_u32_dpp v{v}, v{v}, v{v} row_shr:{sh} row_mask:0xf bank_mask:0xf')
    I('s_nop 1')
    I(f'v_add_u32_dpp v{v}, v{v}, v{v} row_bcast:15 row_mask:0xa bank_mask:0xf')
    I('s_nop 1')
    I(f'v_add_u32_dpp v{v}, v{v}, v{v} row_bcast:31 row_mask:0xc bank_mask:0xf')
    I('s_nop 1')

LS = 0
ZR = 18688
LE = 18688
CNT = 56064
MISC = 56320
BASET = 56576
NINFO = 56832
HIST = 57344
HBASE = 58368
DESCP = 59392
EXTRA = 67840
DESCA = 84224
PT = 86784
ACCN = 99328
WRAW = 111872
WG_, WV_, WU_ = WRAW, WRAW + 17408, WRAW + 25600
XOWN = WRAW + 33792
LDS_BYTES = XOWN + 8192
STGW = 0
STGE = CH * 4
NTI = EXTRA
MAXG = 576
assert STGE + CH * 8 <= CNT

V_TID, V_LANE = 0, 1
V_MA, V_MB = 2, 4
V_VAA = (6, 8)
V_VAP = 10
V_PS0, V_PS1, V_PE, V_PD, V_CH8, V_CHP = 12, 13, 14, 15, 16, 17
V_PROF = 18
V_TAB = 20
V_J4, V_CB4 = 24, 25
V_X = 26
V_T01D, V_T01N, V_T23D, V_T23N = 40, 42, 44, 46
B5 = (48, 52)
A5 = 56
V_TT = (60, 62)
G = (64, 80)
Z = 96
S = 112

S_XS, S_WS, S_DST, S_SRC, S_EA, S_RW, S_RE, S_TAB, S_NTS, S_NTG, S_OUT = 12, 16, 20, 24, 28, 32, 36, 40, 44, 48, 52
S_MASK = 56
S_W, S_L, S_CNT, S_JB, S_WID, S_MORE = 72, 73, 74, 75, 76, 77
S_C = 78
S_EX = 80
S_LDX = 82
S_T = 84
S_WSP = 94
S_DBG = 96
S_TAG, S_TAG2 = 100, 101
TAGM = 0xC003C003
TAGL = MISC + 64

NT2 = 2 if opt('touch', 0) else 0
LDXV = 0 if opt('noload', 0) else -1
NPFM = opt('npf', 0)
NPF = 7 if NPFM else 0
NPF1 = 7 if NPFM == 1 else 0
WSB = opt('wsb', 0) << 20
PROF = opt('prof', 0)
def stamp(i):
    if not PROF:
        return
    I('s_memtime s[98:99]')
    I('s_waitcnt lgkmcnt(0)')
    I(f'v_writelane_b32 v{V_PROF}, s98, {i}')
def rstamp(i):
    if not PROF:
        return
    I('s_memrealtime s[98:99]')
    I('s_waitcnt lgkmcnt(0)')
    I(f'v_writelane_b32 v{V_PROF}, s98, {i}')
def prof_store():
    if not PROF:
        return
    rstamp(31)
    if PROF == 3:
        I(f's_lshl_b32 s98, s2, 4')
        I(f's_add_u32 s98, s98, s{S_W}')
        I(f's_cmp_lg_u32 s98, {opt("pwave", 80)}')
        I('s_cbranch_scc1 L_END')
        I('s_mov_b64 exec, -1')
        I(f'v_readlane_b32 s98, v{V_PROF}, 0')
        I(f'v_readlane_b32 s99, v{V_PROF}, 30')
        I(f'v_readlane_b32 s{S_T}, v{V_PROF}, 31')
        I('s_nop 3')
        I(f's_sub_u32 s{S_T}, s{S_T}, s99')
        I(f's_add_u32 s{S_T}, s{S_T}, s98')
        I(f'v_writelane_b32 v{V_PROF}, s{S_T}, 9')
        I(f'v_subrev_u32 v{V_PROF}, s98, v{V_PROF}')
        I(f'v_mbcnt_lo_u32_b32 v{V_PROF+1}, -1, 0')
        I(f'v_lshlrev_b32 v{V_PROF+1}, 2, v{V_PROF+1}')
        I(f'v_add_u32 v{V_PROF+1}, -8, v{V_PROF+1}')
        I('s_mov_b64 exec, 0x3fff8')
        I(f'global_store_dword v{V_PROF+1}, v{V_PROF}, {sp(S_DBG)}')
        return
    I('s_mov_b64 exec, 0xffffffff')
    I(f's_add_u32 s{S_T}, s{S_WSP}, 0x{WS_PROF:x}')
    I(f's_addc_u32 s{S_T+1}, s{S_WSP+1}, 0')
    I(f'v_mbcnt_lo_u32_b32 v{V_PROF+1}, -1, 0')
    I(f'v_lshlrev_b32 v{V_PROF+1}, 2, v{V_PROF+1}')
    I(f's_lshl_b32 s98, s2, 4')
    I(f's_add_u32 s98, s98, s{S_W}')
    I(f's_lshl_b32 s98, s98, 7')
    I(f'v_add_u32 v{V_PROF+1}, s98, v{V_PROF+1}')
    I(f'global_store_dword v{V_PROF+1}, v{V_PROF}, {sp(S_T)}')

class Lg:
    def __init__(self):
        self.q = []
    def op(self, tag, text):
        I(text)
        self.q.append(tag)
    def need(self, *tags):
        idx = -1
        for t in tags:
            for i in range(len(self.q) - 1, -1, -1):
                if self.q[i] == t:
                    idx = max(idx, i)
                    break
        if idx < 0:
            return
        n = len(self.q) - 1 - idx
        assert n <= 15, (tags, n)
        I(f's_waitcnt lgkmcnt({n})')
        self.q = self.q[idx + 1:]

X = V_X

def zero_range(a, nbytes, zr, ad):
    k = 0
    base = a if a + nbytes <= 65536 + 16384 and a < 65536 - 3 * 16384 else None
    off = 0
    areg = ad
    if a + ((nbytes - 1) // 16384) * 16384 > 65535:
        I(f'v_add_u32 v{X+1}, {a}, v{ad}')
        areg = X + 1
        a0 = 0
    else:
        a0 = a
    while off < nbytes:
        n = min(16384, nbytes - off)
        if n < 16384:
            I(f'v_cmp_gt_u32 vcc, {n // 16}, v{V_TID}')
            I(f's_and_saveexec_b64 {sp(S_EX)}, vcc')
        I(f'ds_write_b128 v{areg}, v[{zr}:{zr+3}] offset:{a0 + off}')
        if n < 16384:
            I(f's_mov_b64 exec, {sp(S_EX)}')
        off += n

def zregs():
    I(f'v_lshlrev_b32 v{X}, 4, v{V_TID}')
    for k in range(4):
        I(f'v_mov_b32 v{X+2+k}, 0')

def fill_desca():
    I(f'v_and_b32 v{X+6}, 15, v{V_TID}')
    I(f'v_lshlrev_b32 v{X+6}, 10, v{X+6}')
    I(f'v_add_u32 v{X+6}, {EXTRA}, v{X+6}')
    for k in range(1, 4):
        I(f'v_add_u32 v{X+6+k}, {256*k}, v{X+6}')
    I(f'v_add_u32 v{X+1}, {DESCA}, v{X}')
    I(f'v_cmp_gt_u32 vcc, 160, v{V_TID}')
    I(f's_and_saveexec_b64 {sp(S_EX)}, vcc')
    I(f'ds_write_b128 v{X+1}, v[{X+6}:{X+9}]')
    I(f's_mov_b64 exec, {sp(S_EX)}')

def fill_zero():
    zregs()
    zero_range(ZR, 65536, X + 2, X)
    fill_desca()

def fill_words():
    I(f'v_lshlrev_b32 v{X}, 4, v{V_TID}')
    I(f'v_and_b32 v{X+2}, 7, v{V_TID}')
    I(f'v_lshlrev_b32 v{X+2}, 5, v{X+2}')
    I(f'v_add_u32 v{X+2}, {N_NODES*8}, v{X+2}')
    for k in range(1, 4):
        I(f'v_add_u32 v{X+2+k}, {8*k}, v{X+2}')
    I(f'ds_write_b128 v{X}, v[{X+2}:{X+5}] offset:{LS}')
    I(f'v_cmp_gt_u32 vcc, 144, v{V_TID}')
    I(f's_and_saveexec_b64 {sp(S_EX)}, vcc')
    I(f'ds_write_b128 v{X}, v[{X+2}:{X+5}] offset:{LS+16384}')
    I(f's_mov_b64 exec, {sp(S_EX)}')

def tail_ops(n):
    return [f'v_rcp_f32 v{V_T01D}, v{V_T01D}',
            f'v_rcp_f32 v{V_T01D+1}, v{V_T01D+1}',
            f'v_rcp_f32 v{V_T23D}, v{V_T23D}',
            f'v_rcp_f32 v{V_T23D+1}, v{V_T23D+1}',
            f'v_fmac_f32 v{V_MA+n}, v{V_T01N}, v{V_T01D}',
            f'v_fmac_f32 v{V_MB+n}, v{V_T01N+1}, v{V_T01D+1}',
            f'v_fmac_f32 v{V_MA+n}, v{V_T23N}, v{V_T23D}',
            f'v_fmac_f32 v{V_MB+n}, v{V_T23N+1}, v{V_T23D+1}']

def gload(n, i):
    return f'buffer_load_dword v{G[n]+i}, v{S + (i & 1) * 8 + (i >> 1)}, {sr4(S_NTG)}, 0 offen offset:{4*n}' + GSC

def s_reads(lg, uo):
    lg.op('S0', f'ds_read_b128 {vr(S,4)}, v{V_PS0} offset:{uo*32}')
    lg.op('S1', f'ds_read_b128 {vr(S+4,4)}, v{V_PS0} offset:{uo*32+16}')
    lg.op('S2', f'ds_read_b128 {vr(S+8,4)}, v{V_PS1} offset:{uo*32}')
    lg.op('S3', f'ds_read_b128 {vr(S+12,4)}, v{V_PS1} offset:{uo*32+16}')

def half(lg, n, par, uo, with_tail=True):
    g = G[n]
    I('s_waitcnt vmcnt(16)')
    if n == 0:
        lg.need('P0a', 'P0b', 'e')
    else:
        lg.need('P1a', 'P1b')
    I(f'v_mfma_f32_32x32x16_bf16 {vr(Z,16)}, {vr(A5,4)}, {vr(B5[n],4)}, {vr(g,16)}')
    t = tail_ops(n ^ 1)
    va_prev, va_cur, va_nxt = V_VAA[par ^ 1], V_VAA[par], V_VAA[par ^ 1]
    if with_tail:
        for op in t[:4]:
            I(op)
        if n == 1:
            lg.need('Ra', 'Rb')
        for op in t[4:]:
            I(op)
    else:
        I('s_nop 7')
    if n == 0:
        if with_tail:
            lg.op('Wa', f'ds_write_b64 v{va_prev}, {p(V_MA)}')
            lg.op('Wb', f'ds_write_b64 v{va_prev+1}, {p(V_MB)}')
        lg.op('Ra', f'ds_read_b64 {p(V_MA)}, v{va_cur}')
        lg.op('Rb', f'ds_read_b64 {p(V_MB)}, v{va_cur+1}')
        lg.op('dP', f'ds_read_b64 {p(V_VAP)}, v{V_PD} offset:{(uo+1)*256}')
        lg.op('dA', f'ds_read_b64 {p(va_nxt)}, v{V_PD} offset:{(uo+1)*256 + DESCA - DESCP}')
    else:
        lg.op('e', f'ds_read_b64 {p(A5)}, v{V_PE} offset:{(uo+1)*64}')
        lg.op('P1a', f'ds_read_b32 v{B5[1]+2}, v{V_VAP} offset:4')
        lg.op('P1b', f'ds_read_b32 v{B5[1]+3}, v{V_VAP+1} offset:4')
    sh = [f'v_lshlrev_b32 v{g+i}, 16, v{g+i}' for i in range(16)]
    ex = [f'v_exp_f32 v{Z+i}, v{Z+i} clamp' for i in range(16)]
    for op in sh[:4]:
        I(op)
    for i in range(12):
        I(ex[i])
        I(sh[4 + i])
        if n == 0 and i == 7:
            lg.need('dP', 'dA')
            I(f'v_add_u32 v{V_VAP}, v{V_VAP}, v{V_CHP}')
            I(f'v_add_u32 v{V_VAP+1}, v{V_VAP+1}, v{V_CHP}')
            I(f'v_add_u32 v{va_nxt}, v{va_nxt}, v{V_CH8}')
            I(f'v_add_u32 v{va_nxt+1}, v{va_nxt+1}, v{V_CH8}')
            lg.op('P0a', f'ds_read_b32 v{B5[0]+2}, v{V_VAP}')
            lg.op('P0b', f'ds_read_b32 v{B5[0]+3}, v{V_VAP+1}')
    for op in ex[12:]:
        I(op)
    for i in range(0, 16, 2):
        I(f'v_pk_add_f32 {p(Z+i)}, {p(Z+i)}, {sp(S_C)}')
    def T(k): return f'v_pk_mul_f32 {p(V_TT[k&1])}, {p(g+4*k)}, {p(Z+4*k+2)}'
    def DD(k): return f'v_pk_mul_f32 {p(Z+4*k+2)}, {p(Z+4*k)}, {p(Z+4*k+2)}'
    def NN(k): return f'v_pk_fma_f32 {p(Z+4*k)}, {p(g+4*k+2)}, {p(Z+4*k)}, {p(V_TT[k&1])}'
    for k0 in (0, 2):
        for op in (T(k0), T(k0 + 1), DD(k0), DD(k0 + 1), NN(k0), NN(k0 + 1)):
            I(op)
        if n == 0 and k0 == 0:
            lg.need('S0', 'S1', 'S2', 'S3')
        I(f's_mov_b64 exec, {sp(S_LDX)}')
        for i in range(4 * k0, 4 * k0 + 8):
            I(gload(n, i))
        I('s_mov_b64 exec, -1')
    if n == 1:
        s_reads(lg, uo + 2)
    I(f'v_pk_mul_f32 {p(V_T01N)}, {p(Z)}, {p(Z+6)}')
    I(f'v_pk_mul_f32 {p(V_T23N)}, {p(Z+8)}, {p(Z+14)}')
    I(f'v_pk_mul_f32 {p(V_T01D)}, {p(Z+2)}, {p(Z+6)}')
    I(f'v_pk_mul_f32 {p(V_T23D)}, {p(Z+10)}, {p(Z+14)}')
    I(f'v_pk_fma_f32 {p(V_T01N)}, {p(Z+4)}, {p(Z+2)}, {p(V_T01N)}')
    I(f'v_pk_fma_f32 {p(V_T23N)}, {p(Z+12)}, {p(Z+10)}, {p(V_T23N)}')

def prio(tag):
    pr = opt('prio', 3)
    if not pr:
        return
    th = {1: (4, 2, 1), 2: (5, 3, 1), 3: (3, 2, 1), 4: (6, 4, 2)}[pr]
    for lvl, t in zip((2, 1, 0), th):
        I(f's_cmp_eq_u32 s{S_CNT}, {t}')
        I(f's_cbranch_scc0 L_PR{tag}_{lvl}')
        I(f's_setprio {lvl}')
        L(f'L_PR{tag}_{lvl}')

def split_hilo(a, b, t0, t1):
    I(f'v_cvt_pk_bf16_f32 v{t0}, v{a}, v{b}')
    I(f'v_lshlrev_b32 v{t1}, 16, v{t0}')
    I(f'v_and_b32 v{t0}, 0xffff0000, v{t0}')
    I(f'v_sub_f32 v{a}, v{a}, v{t1}')
    I(f'v_sub_f32 v{b}, v{b}, v{t0}')
    I(f'v_cvt_pk_bf16_f32 v{a}, v{t1}, v{a}')
    I(f'v_cvt_pk_bf16_f32 v{b}, v{t0}, v{b}')

V_AA, V_AB, V_AD, V_AP = 6, 7, 8, 9
SA, SB, SD = 80, 96, 112

def phase0_addr():
    I(f's_and_b32 s{S_T}, s{S_W}, 3')
    I(f's_lshr_b32 s{S_T+1}, s{S_W}, 2')
    I(f'v_and_b32 v12, 15, v{V_LANE}')
    I(f'v_lshrrev_b32 v13, 4, v{V_LANE}')
    I(f'v_bfe_u32 v14, v{V_LANE}, 1, 3')
    I(f'v_xor_b32 v14, v14, v13')
    I(f'v_lshlrev_b32 v14, 4, v14')
    I(f'v_lshl_or_b32 v14, v12, 7, v14')
    I(f's_lshl_b32 s{S_T+2}, s{S_T}, 11')
    I(f'v_add_u32 v{V_AA}, s{S_T+2}, v14')
    I(f'v_bfe_u32 v14, v{V_LANE}, 2, 2')
    I(f'v_lshl_add_u32 v14, v13, 3, v14')
    I(f'v_lshlrev_b32 v14, 7, v14')
    I(f'v_and_b32 v15, 3, v{V_LANE}')
    I(f'v_lshl_add_u32 v14, v15, 3, v14')
    I(f's_lshl_b32 s{S_T+2}, s{S_T+1}, 5')
    I(f'v_or_b32 v14, s{S_T+2}, v14')
    I(f'v_and_b32 v15, 24, v{V_LANE}')
    I(f'v_lshlrev_b32 v15, 2, v15')
    I(f'v_xor_b32 v14, v14, v15')
    I(f'v_add_u32 v{V_AB}, {WRAW}, v14')
    I(f's_lshl_b32 s{S_T+2}, s{S_T}, 12')
    I(f'v_lshlrev_b32 v13, 10, v13')
    I(f'v_add_u32 v13, s{S_T+2}, v13')
    I(f's_lshl_b32 s{S_T+2}, s{S_T+1}, 6')
    I(f's_add_u32 s{S_T+2}, s{S_T+2}, {NTI}')
    I(f'v_lshl_add_u32 v{V_AD}, v12, 2, v13')
    I(f'v_add_u32 v{V_AD}, s{S_T+2}, v{V_AD}')
    I(f's_and_b32 s{S_T+2}, s{S_T+1}, 1')
    I(f's_lshl_b32 s{S_T+2}, s{S_T+2}, 7')
    I(f's_lshr_b32 s{S_T+3}, s{S_T+1}, 1')
    I(f's_lshl_b32 s{S_T+3}, s{S_T+3}, 2')
    I(f's_add_u32 s{S_T+2}, s{S_T+2}, s{S_T+3}')
    I(f's_add_u32 s{S_T+2}, s{S_T+2}, {PT}')
    I(f'v_lshl_add_u32 v{V_AP}, v12, 3, v13')
    I(f'v_add_u32 v{V_AP}, s{S_T+2}, v{V_AP}')

def b_reads(dst, off):
    for sg in range(2):
        for pp in range(2):
            I(f'ds_read_b64_tr_b16 {vr(dst+4*sg+2*pp,2)}, v{V_AB} offset:{off+sg*4096+pp*512}')

def mm16(d, b):
    I(f'v_mfma_f32_16x16x32_bf16 {vr(d,4)}, {vr(SA,4)}, {vr(b,4)}, 0')
    I(f'v_mfma_f32_16x16x32_bf16 {vr(d,4)}, {vr(SA+4,4)}, {vr(b+4,4)}, {vr(d,4)}')

def phase0a():
    I(f'v_add_u32 v12, {XOWN}, v{V_AA}')
    I(f'v_xor_b32 v13, 64, v{V_AA}')
    I(f'v_add_u32 v13, {XOWN}, v13')
    I(f'ds_read_b128 {vr(SA,4)}, v12')
    I(f'ds_read_b128 {vr(SA+4,4)}, v13')
    b_reads(SB, 8192)
    b_reads(SB + 8, WV_ - WRAW)
    I(f's_mov_b32 s{S_T+4}, 0x{f2u(-LOG2E):x}')
    I(f's_mov_b32 s{S_T+5}, 0x{f2u(2.0**SV):x}')
    I(f's_mov_b32 s{S_T+6}, 0x7fffffff')
    I(f's_mov_b32 s{S_T+7}, 0xffff0000')
    I('s_waitcnt lgkmcnt(4)')
    mm16(SD, SB)
    I('s_waitcnt lgkmcnt(0)')
    mm16(SD + 4, SB + 8)
    I('s_nop 4')
    for i in range(4):
        I(f'v_mul_f32 v{SD+i}, s{S_T+4}, v{SD+i}')
    for i in range(4):
        I(f'v_and_b32 v{SD+8+i}, s{S_T+6}, v{SD+i}')
    for i in range(4):
        I(f'v_mul_f32 v{SD+4+i}, s{S_T+5}, v{SD+4+i}')
        I(f'v_add_u32 v{SD+8+i}, 0x8000, v{SD+8+i}')
    I(f'v_cvt_pk_bf16_f32 v{SD+4}, v{SD+4}, v{SD+5}')
    I(f'v_cvt_pk_bf16_f32 v{SD+6}, v{SD+6}, v{SD+7}')
    I(f'v_lshrrev_b32 v{SD+5}, 16, v{SD+4}')
    I(f'v_lshrrev_b32 v{SD+7}, 16, v{SD+6}')
    I(f'v_and_b32 v{SD+4}, 0xffff, v{SD+4}')
    I(f'v_and_b32 v{SD+6}, 0xffff, v{SD+6}')
    for i in range(4):
        I(f'v_sub_u32 v{SD+8+i}, v{SD+8+i}, v{SD+4+i} clamp')
    for i in range(4):
        I(f'v_and_or_b32 v{SD+8+i}, v{SD+8+i}, s{S_T+7}, v{SD+4+i}')
    for i in range(4):
        I(f'v_bfi_b32 v{SD+i}, s{S_T+6}, v{SD+8+i}, v{SD+i}')
        I(f'ds_write_b32 v{V_AD}, v{SD+i} offset:{i*256}')

def phase0b():
    b_reads(SB, 0)
    b_reads(SB + 8, WU_ - WRAW)
    I(f's_mov_b32 s{S_T+4}, 0x{f2u(-LOG2E):x}')
    I(f's_mov_b32 s{S_T+5}, 0x{f2u(2.0**(SV+KEXP)):x}')
    I(f'v_mov_b32 v13, 0x{f2u(-float(KEXP)):x}')
    I(f's_and_b32 s{S_T+6}, s{S_W}, 3')
    I('s_waitcnt lgkmcnt(4)')
    mm16(SD, SB)
    I('s_waitcnt lgkmcnt(0)')
    mm16(SD + 4, SB + 8)
    I('s_nop 4')
    for i in range(4):
        I(f'v_fma_f32 v{SD+i}, v{SD+i}, s{S_T+4}, v13')
    split_hilo(SD, SD + 1, 12, 13)
    split_hilo(SD + 2, SD + 3, 12, 13)
    for i in range(4):
        I(f'v_mul_f32 v{SD+4+i}, s{S_T+5}, v{SD+4+i}')
    I(f's_cmp_eq_u32 s{S_T+6}, 3')
    I(f's_cselect_b64 exec, 0xffff, -1')
    I(f'ds_write_b32 v{V_AP}, v{SD}')
    I(f'ds_write_b32 v{V_AP}, v{SD+4} offset:{ACCN-PT}')
    I(f's_cselect_b64 exec, 0, -1')
    for i in range(1, 4):
        I(f'ds_write_b32 v{V_AP}, v{SD+i} offset:{i*256}')
        I(f'ds_write_b32 v{V_AP}, v{SD+4+i} offset:{ACCN-PT+i*256}')
    I('s_mov_b64 exec, -1')

def phase0c():
    I(f'v_bfe_u32 v13, v{V_LANE}, 2, 2')
    I(f'v_lshlrev_b32 v13, 7, v13')
    I(f'v_bfe_u32 v15, v{V_LANE}, 4, 1')
    I(f'v_lshl_add_u32 v13, v15, 5, v13')
    I(f'v_and_b32 v15, 3, v{V_LANE}')
    I(f'v_lshl_add_u32 v13, v15, 3, v13')
    I(f'v_and_b32 v15, 8, v{V_LANE}')
    I(f'v_lshlrev_b32 v15, 2, v15')
    I(f'v_xor_b32 v13, v13, v15')
    I(f'v_add_u32 v13, {WG_ + 16384}, v13')
    I(f'ds_read_b64_tr_b16 v[96:97], v13')
    I(f'ds_read_b64_tr_b16 v[98:99], v13 offset:64')
    I(f's_mov_b32 s{S_T+4}, 0x{f2u(-LOG2E):x}')
    I(f'v_cmp_lt_u32 vcc, 31, v{V_LANE}')
    I('s_waitcnt lgkmcnt(0)')
    for m in range(4):
        I(f'v_lshlrev_b32 v{100+2*m}, 16, v{96+m}')
        I(f'v_and_b32 v{101+2*m}, 0xffff0000, v{96+m}')
    for j in range(8):
        I(f'v_mul_f32 v{100+j}, s{S_T+4}, v{100+j}')
    for m in range(4):
        dst = B5[m >> 1] + (m & 1)
        I(f'v_cvt_pk_bf16_f32 v{96+m}, v{100+2*m}, v{101+2*m}')
        I(f'v_lshlrev_b32 v12, 16, v{96+m}')
        I(f'v_and_b32 v13, 0xffff0000, v{96+m}')
        I(f'v_sub_f32 v12, v{100+2*m}, v12')
        I(f'v_sub_f32 v13, v{101+2*m}, v13')
        I(f'v_cvt_pk_bf16_f32 v12, v12, v13')
        I(f'v_cndmask_b32 v{dst}, v{96+m}, v12, vcc')

def a5_const():
    I(f'v_bfe_u32 v12, v{V_LANE}, 2, 1')
    I(f'v_lshrrev_b32 v13, 5, v{V_LANE}')
    I(f'v_xor_b32 v12, v12, v13')
    I(f'v_and_b32 v13, 1, v{V_LANE}')
    I(f'v_lshl_or_b32 v12, v12, 1, v13')
    I(f'v_mov_b32 v13, 0x3f803f80')
    I(f'v_cmp_eq_u32 vcc, 0, v12')
    I(f'v_cmp_eq_u32 {sp(S_T)}, 1, v12')
    I('s_nop 1')
    I(f'v_cndmask_b32 v{A5+2}, 0, v13, vcc')
    I(f'v_cndmask_b32 v{A5+3}, 0, v13, {sp(S_T)}')

def nt_prefetch(vt):
    I(f's_lshr_b32 s{S_T}, s2, 4')
    I(f's_lshl_b32 s{S_T+1}, s{S_W}, 4')
    I(f's_add_u32 s{S_T}, s{S_T}, s{S_T+1}')
    I(f's_and_b32 s{S_T+1}, s{S_T}, 7')
    I(f's_lshl_b32 s{S_T+1}, s{S_T+1}, 5')
    I(f's_lshr_b32 s{S_T}, s{S_T}, 3')
    I(f's_add_u32 s{S_T}, s{S_T}, s{S_T+1}')
    I(f's_lshl_b32 s{S_T}, s{S_T}, 1')
    I(f's_bfe_u32 s{S_T+1}, s2, 0x10003')
    I(f's_add_u32 s{S_T}, s{S_T}, s{S_T+1}')
    I(f's_mul_i32 s{S_T}, s{S_T}, {NB*128}')
    I(f's_add_u32 s{S_T}, s{S_T}, 0x{WS_NT:x}')
    srd_off(S_NTS, S_WSP, S_WSP + 1, f's{S_T}', NB * 128)
    I(f'v_lshlrev_b32 v{vt}, 4, v{V_LANE}')
    I(f'v_add_u32 v{vt+1}, 4096, v{vt}')
    for k in range(NPF):
        I(f'buffer_load_dwordx4 {vr(96+4*k,4)}, v{vt+(k>>2)}, {sr4(S_NTS)}, 0 offen offset:{(k&3)*1024}' + LSC)

def gen():
    e(f'.globl {KNAME}')
    e('.p2align 8')
    e(f'.type {KNAME},@function')
    L(KNAME)
    I(f's_cmp_ge_u32 s2, {NWG}')
    I('s_cbranch_scc1 L_END')
    I('s_load_dwordx8 s[84:91], s[0:1], 0')
    I('s_load_dwordx4 s[4:7], s[0:1], 32')
    I('s_load_dwordx4 s[8:11], s[0:1], 48')
    I('s_load_dwordx4 s[56:59], s[0:1], 64')
    if PROF:
        I(f'v_mov_b32 v{V_PROF}, 0')
    rstamp(30)
    stamp(0)
    zregs()
    zero_range(CNT, DESCP + 2560 - CNT, X + 2, X)
    I(f'v_lshlrev_b32 v{X+6}, 2, v{V_TID}')
    I(f's_mul_i32 s61, s2, {CH*4}')
    I(f's_mul_i32 s63, s2, {CH}')
    I(f's_sub_u32 s63, {E_EDGES}, s63')
    I(f's_min_u32 s63, s63, {CH}')
    I(f's_lshl_b32 s64, s63, 2')
    I(f'v_add_u32 v{X+8}, 4096, v{X+6}')
    I(f'v_add_u32 v{X+9}, 8192, v{X+6}')
    I(f'v_add_u32 v{X+10}, 12288, v{X+6}')
    I(f'v_lshrrev_b32 v{X+1}, 6, v{V_TID}')
    I(f'v_and_b32 v{V_LANE}, 63, v{V_TID}')
    I(f'v_readfirstlane_b32 s{S_W}, v{X+1}')
    I('s_and_b32 s3, s2, 7')
    I('s_lshl_b32 s3, s3, 5')
    I('s_lshr_b32 s60, s2, 3')
    I('s_add_u32 s3, s3, s60')
    I(f's_mul_i32 s62, s2, {CH*8}')
    I(f's_lshl_b32 s65, s63, 3')
    I(f'v_and_b32 v97, 0x50, v{V_TID}')
    I(f'v_lshlrev_b32 v96, 1, v97')
    I(f'v_or_b32 v97, v97, v96')
    I(f'v_and_b32 v97, 0x60, v97')
    I(f'v_xor_b32 v97, v97, v{X}')
    I(f'v_and_b32 v96, 0x20, v96')
    I(f'v_lshlrev_b32 v98, 4, v{V_LANE}')
    I(f'v_xor_b32 v96, v96, v98')
    I(f's_lshl_b32 s66, s{S_W}, 10')
    I(f'v_and_b32 v101, 0x1fff, v97')
    I(f'v_lshrrev_b32 v98, 3, v{V_TID}')
    I(f'v_bfe_u32 v99, v98, 1, 3')
    I(f'v_and_b32 v100, 7, v{V_TID}')
    I(f'v_xor_b32 v99, v99, v100')
    I(f'v_lshlrev_b32 v99, 4, v99')
    I(f'v_lshl_add_u32 v99, v98, 7, v99')
    I(f's_mul_i32 s60, s3, {NB*128}')
    I(f'v_add_u32 v99, s60, v99')
    I(f'v_add_u32 v96, 16384, v96')
    I('s_waitcnt lgkmcnt(0)')
    I(f's_or_b32 s67, s2, s{S_W}')
    I('s_cmp_lg_u32 s67, 0')
    I('s_cbranch_scc1 L_NOTAG')
    I('s_memrealtime s[68:69]')
    I(f'v_mov_b32 v{X+2}, 0')
    I('s_waitcnt lgkmcnt(0)')
    I('s_or_b32 s68, s68, 1')
    I(f'v_mov_b32 v{X+3}, s68')
    I('s_mov_b64 exec, 1')
    I(f'global_store_dword v{X+2}, v{X+3}, s[56:57] sc1')
    I('s_mov_b64 exec, -1')
    L('L_NOTAG')
    def dst_loads():
        srd_off(S_DST, 90, 91, 's61', 's64')
        for k in range(4):
            I(f'buffer_load_dword v{64+k}, v{X+6 if k == 0 else X+7+k}, {sr4(S_DST)}, 0 offen' + ELD)
    def dma_loads():
        srd(S_WS, 8, 9, 132 * 128)
        I(f's_add_u32 m0, s66, {WG_}')
        srd(S_XS, 84, 85, N_NODES * 128)
        I(f'buffer_load_dwordx4 v97, {sr4(S_WS)}, 0 offen lds')
        I(f's_cmp_lt_u32 s{S_W}, 8')
        I(f's_cselect_b32 s{S_NTS}, s6, s4')
        I(f's_cselect_b32 s{S_NTS+1}, s7, s5')
        I(f's_mov_b32 s{S_NTS+2}, {64*128}')
        I(f's_mov_b32 s{S_NTS+3}, 0x00020000')
        I(f's_add_u32 m0, s66, {WV_}')
        I('s_nop 0')
        I(f'buffer_load_dwordx4 v101, {sr4(S_NTS)}, 0 offen lds')
        I(f's_cmp_lt_u32 s{S_W}, 8')
        I('s_cbranch_scc0 L_D3B')
        I(f's_add_u32 m0, s66, {XOWN}')
        I('s_nop 0')
        I(f'buffer_load_dwordx4 v99, {sr4(S_XS)}, 0 offen lds')
        I('s_branch L_D3C')
        L('L_D3B')
        I(f's_mov_b32 m0, {WG_ + 16384}')
        I('s_nop 0')
        I(f'buffer_load_dwordx4 v96, {sr4(S_WS)}, 0 offen lds')
        L('L_D3C')
    dma_loads()
    dst_loads()
    srd_off(S_SRC, 88, 89, 's61', 's64')
    for k in range(4):
        I(f'buffer_load_dword v{68+k}, v{X+6 if k == 0 else X+7+k}, {sr4(S_SRC)}, 0 offen' + ELD)
    srd_off(S_EA, 86, 87, 's62', 's65')
    I(f'v_lshlrev_b32 v92, 3, v{V_TID}')
    for k in range(1, 4):
        I(f'v_add_u32 v{92+k}, {8192*k}, v92')
    def e_load(k):
        I(f'buffer_load_dwordx2 v[{72+2*k}:{73+2*k}], v{92+k}, {sr4(S_EA)}, 0 offen' + ELD)
    I(f's_mov_b64 {sp(S_DBG)}, s[56:57]')
    I(f's_add_u32 s{S_WSP}, s58, 0x{WSB:x}')
    I(f's_addc_u32 s{S_WSP+1}, s59, 0')
    stamp(1)
    srd(S_OUT, 10, 11, N_NODES * 128)
    I(f's_add_u32 s{S_T}, s61, 0x{WS_RW:x}')
    srd_off(S_RW, S_WSP, S_WSP + 1, f's{S_T}', CH * 4)
    I(f's_add_u32 s{S_T}, s62, 0x{WS_RE:x}')
    srd_off(S_RE, S_WSP, S_WSP + 1, f's{S_T}', CH * 8)
    I(f's_lshl_b32 s{S_T}, s2, 11')
    I(f's_add_u32 s{S_T}, s{S_T}, 0x{WS_TAB:x}')
    srd_off(S_TAB, S_WSP, S_WSP + 1, f's{S_T}', 2048)
    I(f's_mul_i32 s{S_T}, s3, {NB*256}')
    I(f's_add_u32 s{S_T}, s{S_T}, 0x{WS_NT:x}')
    srd_off(S_NTS, S_WSP, S_WSP + 1, f's{S_T}', NB * 256)
    I(f's_add_u32 s{S_NTG}, s{S_WSP}, 0x{WS_NT:x}')
    I(f's_addc_u32 s{S_NTG+1}, s{S_WSP+1}, 0')
    I(f's_or_b32 s{S_NTG+1}, s{S_NTG+1}, 0x80000000')
    I(f's_mov_b32 s{S_NTG+2}, 0x400000')
    I(f's_mov_b32 s{S_NTG+3}, 0x00c00000')
    srd_off(S_DST, S_WSP, S_WSP + 1, '0x%x' % WS_RW, NWG * CH * 4)
    srd_off(S_SRC, S_WSP, S_WSP + 1, '0x%x' % WS_RE, NWG * CH * 8)
    for k in range(4):
        I(f'v_add_u32 v{X+1}, {1024*k}, v{V_TID}')
        I(f'v_cmp_gt_u32 {sp(S_MASK+2*k)}, s63, v{X+1}')
    I(f's_mov_b32 s{S_C}, 0x{f2u(2.0**-KEXP):x}')
    I(f's_mov_b32 s{S_C+1}, 0x{f2u(2.0**-KEXP):x}')
    I(f's_mov_b32 s{S_JB}, 0')
    I(f's_mov_b32 s{S_WID}, 128')
    I(f'v_and_b32 v{V_J4}, 15, v{V_LANE}')
    I(f'v_lshlrev_b32 v{V_J4}, 2, v{V_J4}')
    I(f'v_lshrrev_b32 v{X+1}, 4, v{V_LANE}')
    I(f's_lshl_b32 s{S_T}, s{S_W}, 4')
    I(f'v_add_u32 v{X+1}, s{S_T}, v{X+1}')
    I(f'v_mul_u32_u24 v{V_CB4}, {CH*4}, v{X+1}')
    I(f'v_add_u32 v{V_CB4}, v{V_CB4}, v{V_J4}')
    I(f'v_and_b32 v{V_CH8}, 31, v{V_LANE}')
    I(f'v_lshlrev_b32 v{V_CH8}, 3, v{V_CH8}')
    I(f'v_add_u32 v{V_CHP}, {PT}, v{V_CH8}')
    phase0_addr()
    a5_const()
    I('s_waitcnt vmcnt(8)')
    I('s_barrier')
    stamp(2)
    for k in range(4):
        e_load(k)
    I(f'v_mov_b32 v12, 0')
    I(f'global_load_dword v10, v12, {sp(S_DBG)} sc1')
    srd_off(S_EA, S_WSP, S_WSP + 1, '0x%x' % WS_TAB, NWG * 2048)
    phase0a()
    I(f's_mov_b32 s{S_T}, -{NB}')
    I(f'v_mov_b32 v{X+1}, 4')
    BN, WD, RK = 28, 32, 36
    for k in range(4):
        I(f's_waitcnt vmcnt({12 - k})')
        I(f's_mov_b64 exec, {sp(S_MASK+2*k)}')
        if k == 3:
            I('s_cbranch_execz L_B1')
        I(f'v_mul_u32_u24 v{BN+k}, 21400, v{64+k}')
        I(f'v_lshrrev_b32 v{BN+k}, 20, v{BN+k}')
        I(f'v_mad_i32_i24 v{WD+k}, v{BN+k}, s{S_T}, v{64+k}')
        I(f'v_lshlrev_b32 v{BN+k}, 2, v{BN+k}')
        I(f'ds_add_rtn_u32 v{RK+k}, v{BN+k}, v{X+1} offset:{HIST}')
        I(f'v_lshlrev_b32 v{WD+k}, 26, v{WD+k}')
    L('L_B1')
    I('s_mov_b64 exec, -1')
    I(f'v_add_u32 v{X+1}, {NTI}, v{X}')
    stamp(3)
    I(f's_waitcnt lgkmcnt(0)')
    I('s_barrier')
    stamp(4)
    I(f'ds_read_b128 v[112:115], v{X+1}')
    I(f's_cmp_lg_u32 s{S_W}, 0')
    I('s_cbranch_scc1 L_NOSCAN')
    I(f'ds_read_b128 v[96:99], v{X} offset:{HIST}')
    I('s_waitcnt lgkmcnt(0)')
    I('v_add_u32 v101, v96, v97')
    I('v_add_u32 v102, v101, v98')
    I('v_add_u32 v103, v102, v99')
    I('v_mov_b32 v104, v103')
    wave_scan(104)
    I('v_sub_u32 v104, v104, v103')
    I('v_add_u32 v105, v104, v96')
    I('v_add_u32 v106, v104, v101')
    I('v_add_u32 v107, v104, v102')
    I(f'ds_write_b128 v{X}, v[104:107] offset:{HBASE}')
    for k in range(4):
        I(f'v_lshl_or_b32 v{108+k}, v{96+k}, 16, v{104+k}')
    I(f'ds_write_b128 v{X}, v[108:111] offset:{HIST}')
    L('L_NOSCAN')
    I('s_waitcnt lgkmcnt(0)')
    I(f'buffer_store_dwordx4 v[112:115], v{X}, {sr4(S_NTS)}, 0 offen' + SC)
    I('s_waitcnt vmcnt(6)')
    for k in range(4):
        I(f'v_lshl_or_b32 v{WD+k}, v{68+k}, 3, v{WD+k}')
    I('s_barrier')
    stamp(5)
    for k in range(4):
        I(f's_mov_b64 exec, {sp(S_MASK+2*k)}')
        I(f'ds_read_b32 v{BN+k}, v{BN+k} offset:{HBASE}')
    I('s_waitcnt vmcnt(1)')
    I(f'v_readfirstlane_b32 s{S_TAG}, v10')
    for k in range(4):
        I(f's_mov_b64 exec, {sp(S_MASK+2*k)}')
        if k == 3:
            I('s_cbranch_execz L_B2')
        I(f's_waitcnt lgkmcnt({3 - k + 2*k})')
        I(f'v_add_u32 v{RK+k}, v{BN+k}, v{RK+k}')
        I(f'v_add_u32 v{BN+k}, v{RK+k}, v{RK+k}')
        I(f'ds_write_b32 v{RK+k}, v{WD+k} offset:{STGW}')
        I(f'ds_write_b64 v{BN+k}, v[{72+2*k}:{73+2*k}] offset:{STGE}')
    L('L_B2')
    I('s_mov_b64 exec, -1')
    I(f's_mov_b32 s{S_T}, 0x40000')
    L('L_TAGP')
    I(f's_cmp_lg_u32 s{S_TAG}, 0')
    I('s_cbranch_scc1 L_TAGD')
    I(f'v_mov_b32 v12, 0')
    I(f'global_load_dword v10, v12, {sp(S_DBG)} sc1')
    I('s_waitcnt vmcnt(0)')
    I(f'v_readfirstlane_b32 s{S_TAG}, v10')
    I(f's_sub_u32 s{S_T}, s{S_T}, 1')
    I('s_cbranch_scc1 L_END')
    I('s_branch L_TAGP')
    L('L_TAGD')
    I(f'v_add_u32 v{X+2}, 16384, v{X}')
    I(f'v_lshlrev_b32 v12, 3, v{V_LANE}')
    I(f's_mul_i32 s{S_TAG2}, s{S_TAG}, 0x9e3779b1')
    I(f's_and_b32 s{S_TAG2}, s{S_TAG2}, 0x{TAGM:x}')
    I('s_waitcnt lgkmcnt(0)')
    I('s_barrier')
    stamp(6)
    I(f'ds_read_b128 v[64:67], v{X} offset:{STGW}')
    I(f'ds_read_b128 v[68:71], v{X} offset:{STGE}')
    I(f'ds_read_b128 v[72:75], v{X} offset:{STGE+16384}')
    I(f'ds_read_b64 v[92:93], v12 offset:{HIST}')
    I(f'ds_read_b64 v[94:95], v12 offset:{HIST+512}')
    I('s_waitcnt lgkmcnt(4)')
    I(f'buffer_store_dwordx4 v[64:67], v{X}, {sr4(S_RW)}, 0 offen' + SC)
    I('s_waitcnt lgkmcnt(3)')
    I(f'buffer_store_dwordx4 v[68:71], v{X}, {sr4(S_RE)}, 0 offen' + SC)
    I('s_waitcnt lgkmcnt(2)')
    I(f'buffer_store_dwordx4 v[72:75], v{X+2}, {sr4(S_RE)}, 0 offen' + SC)
    I('s_waitcnt lgkmcnt(0)')
    for k in range(4):
        I(f'v_or_b32 v{120+2*k}, s{S_TAG2}, v{92+k}')
        I(f'v_mov_b32 v{121+2*k}, s{S_TAG}')
    pre = opt('pre', 'x')
    def piece(c):
        if c == 'x':
            zregs()
            zero_range(EXTRA, 16384, X + 2, X)
            fill_desca()
        elif c == 'b':
            phase0b()
        elif c == 'c':
            phase0c()
    for c in pre:
        piece(c)
    stamp(7)
    I(f'v_lshrrev_b32 v76, 4, v{V_LANE}')
    I(f's_lshl_b32 s{S_T}, s{S_W}, 15')
    I(f's_lshl_b32 s{S_T+1}, s3, 3')
    I(f's_add_u32 s{S_T}, s{S_T}, s{S_T+1}')
    I(f'v_lshlrev_b32 v76, 11, v76')
    I(f'v_add_u32 v76, s{S_T}, v76')
    for r in range(1, 4):
        I(f'v_add_u32 v{76+r}, {8192*r}, v76')
    I(f'v_lshlrev_b32 v60, 4, v{V_LANE}')
    for r in range(4):
        I(f's_mov_b64 {sp(S_MASK+2*r)}, -1')
    I('s_waitcnt vmcnt(0)')
    stamp(8)
    I('s_barrier')
    stamp(9)
    I(f's_cmp_lg_u32 s{S_W}, 0')
    I('s_cbranch_scc1 L_POLL0')
    I(f'buffer_store_dwordx4 v[120:123], v60, {sr4(S_TAB)}, 0 offen' + SC)
    I(f'buffer_store_dwordx4 v[124:127], v60, {sr4(S_TAB)}, 0 offen offset:1024' + SC)
    L('L_POLL0')
    for c in 'xbc':
        if c not in pre:
            piece(c)
    fill_words()
    zregs()
    zero_range(LE, CNT - LE, X + 2, X)
    I(f's_mov_b32 s{S_T}, 0x40000')
    I(f's_mov_b32 s{S_T+1}, 0x{TAGM:x}')
    L('L_POLL')
    for r in range(4):
        I(f's_mov_b64 exec, {sp(S_MASK+2*r)}')
        I(f'buffer_load_dwordx2 {p(64+2*r)}, v{76+r}, {sr4(S_EA)}, 0 offen' + LSC)
    for r in range(4):
        I(f's_waitcnt vmcnt({3-r})')
        I(f's_mov_b64 exec, {sp(S_MASK+2*r)}')
        I(f'v_xor_b32 v{V_TAB+r}, s{S_TAG2}, v{64+2*r}')
        I(f'v_xor_b32 v{65+2*r}, s{S_TAG}, v{65+2*r}')
        I(f'v_and_or_b32 v{65+2*r}, v{V_TAB+r}, s{S_T+1}, v{65+2*r}')
        I(f'v_cmp_ne_u32 {sp(S_MASK+2*r)}, 0, v{65+2*r}')
    I(f's_or_b64 {sp(S_T+2)}, {sp(S_MASK)}, {sp(S_MASK+2)}')
    I(f's_or_b64 {sp(S_T+4)}, {sp(S_MASK+4)}, {sp(S_MASK+6)}')
    I(f's_or_b64 {sp(S_T+2)}, {sp(S_T+2)}, {sp(S_T+4)}')
    I('s_cbranch_scc0 L_POLLED')
    I(f's_sub_u32 s{S_T}, s{S_T}, 1')
    I('s_cbranch_scc1 L_END')
    if opt('sleep', 1):
        I(f's_sleep {opt("sleep", 1)}')
    I('s_branch L_POLL')
    L('L_POLLED')
    I('s_mov_b64 exec, -1')
    if opt('pbar', 0):
        I('s_barrier')
    stamp(10)
    REC = 64
    A4, A8 = X, X + 4
    L('L_PASS')
    I(f'v_add_u32 v{X+8}, s{S_JB}, v{V_J4}')
    I(f'v_add_u32 v{X+9}, 64, v{X+8}')
    I(f'v_add_u32 v{X+10}, s{S_JB}, v{V_CB4}')
    I(f's_cmp_eq_u32 s{S_WID}, 128')
    I(f's_cselect_b64 {sp(S_T+4)}, -1, 0')
    for r in range(4):
        I(f'v_add_u32_sdwa v{A4+r}, v{V_TAB+r}, v{X+10} dst_sel:DWORD dst_unused:UNUSED_PAD src0_sel:WORD_0 src1_sel:DWORD')
        I(f'v_cmp_lt_u32_sdwa {sp(S_MASK+4*r)}, v{X+8}, v{V_TAB+r} src0_sel:DWORD src1_sel:WORD_1')
        if r:
            I(f'v_add_u32 v{A4+r}, {r*4*CH*4}, v{A4+r}')
        I(f'v_cmp_lt_u32_sdwa vcc, v{X+9}, v{V_TAB+r} src0_sel:DWORD src1_sel:WORD_1')
        I(f'v_add_u32 v{A8+r}, v{A4+r}, v{A4+r}')
        I(f's_and_b64 {sp(S_MASK+4*r+2)}, vcc, {sp(S_T+4)}')
        I(f's_mov_b64 exec, {sp(S_MASK+4*r)}')
        I(f'buffer_load_dword v{REC+8*r+2}, v{A4+r}, {sr4(S_DST)}, 0 offen' + LSC)
        I(f'buffer_load_dwordx2 {p(REC+8*r)}, v{A8+r}, {sr4(S_SRC)}, 0 offen' + LSC)
        I('s_mov_b64 exec, -1')
    for r in range(4):
        I(f's_mov_b64 exec, {sp(S_MASK+4*r+2)}')
        I(f'buffer_load_dword v{REC+8*r+6}, v{A4+r}, {sr4(S_DST)}, 0 offen offset:64' + LSC)
        I(f'buffer_load_dwordx2 {p(REC+8*r+4)}, v{A8+r}, {sr4(S_SRC)}, 0 offen offset:128' + LSC)
    I('s_mov_b64 exec, -1')
    if NPFM == 1:
        nt_prefetch(X + 8)
    I(f'v_max3_u32 v{X+8}, v{V_TAB}, v{V_TAB+1}, v{V_TAB+2}')
    I(f'v_max_u32 v{X+8}, v{X+8}, v{V_TAB+3}')
    I(f'v_lshrrev_b32 v{X+8}, 16, v{X+8}')
    I(f's_add_u32 s{S_T}, s{S_JB}, s{S_WID}')
    I(f'v_cmp_lt_u32 vcc, s{S_T}, v{X+8}')
    I(f'v_mov_b32 v{X+8}, 4')
    I(f's_cbranch_vccz L_NOMORE')
    I(f'v_mov_b32 v{X+9}, {MISC}')
    I(f'ds_write_b32 v{X+9}, v{X+8}')
    L('L_NOMORE')
    stamp(11)
    for r in range(4):
        I(f's_waitcnt vmcnt({15 + NPF1 - 2*r})')
        I(f's_mov_b64 exec, {sp(S_MASK+4*r)}')
        I(f'v_lshrrev_b32 v{A4+r}, 24, v{REC+8*r+2}')
        I(f'ds_add_rtn_u32 v{REC+8*r+3}, v{A4+r}, v{X+8} offset:{CNT}')
    for r in range(4):
        I(f's_mov_b64 exec, {sp(S_MASK+4*r+2)}')
        I(f's_cbranch_execz L_C{r}')
        I(f's_waitcnt vmcnt({7 + NPF1 - 2*r})')
        I(f'v_lshrrev_b32 v{A8+r}, 24, v{REC+8*r+6}')
        I(f'ds_add_rtn_u32 v{REC+8*r+7}, v{A8+r}, v{X+8} offset:{CNT}')
        L(f'L_C{r}')
    I('s_mov_b64 exec, -1')
    I(f'v_lshlrev_b32 v{X+8}, 2, v{V_LANE}')
    I(f'v_mov_b32 v{X+9}, {MISC}')
    I(f's_mov_b32 s{S_T+2}, 0x1fff8')
    I('s_waitcnt lgkmcnt(0)')
    I('s_barrier')
    stamp(12)
    if NPFM == 2:
        nt_prefetch(12)
        I(f's_mov_b32 s{S_T+2}, 0x1fff8')
    NG, GS, MI = X + 10, X + 11, X + 12
    I(f'ds_read_b32 v{NG}, v{X+8} offset:{CNT}')
    I(f'ds_read_b32 v{X+9}, v{X+9}')
    I('s_waitcnt lgkmcnt(1)')
    I(f'v_add_u32 v{NG}, 28, v{NG}')
    I(f'v_and_b32 v{NG}, 0xffffffe0, v{NG}')
    I(f'v_mov_b32 v{GS}, v{NG}')
    wave_scan(GS)
    I(f'v_readlane_b32 s{S_T}, v{GS}, 63')
    I(f'v_sub_u32 v{GS}, v{GS}, v{NG}')
    I(f'ds_write_b32 v{X+8}, v{GS} offset:{BASET}')
    for r in range(4):
        I(f's_mov_b64 exec, {sp(S_MASK+4*r)}')
        I(f'ds_read_b32 v{A4+r}, v{A4+r} offset:{BASET}')
    for r in range(4):
        I(f's_mov_b64 exec, {sp(S_MASK+4*r+2)}')
        I(f'ds_read_b32 v{A8+r}, v{A8+r} offset:{BASET}')
    I('s_mov_b64 exec, -1')
    I(f'v_readfirstlane_b32 s{S_MORE}, v{X+9}')
    out.insert(len(out) - 1, '    s_waitcnt lgkmcnt(9)')
    I(f's_lshr_b32 s{S_T}, s{S_T}, 5')
    I(f's_cmp_eq_u32 s{S_WID}, 128')
    I(f's_cselect_b32 s{S_T+1}, {MAXG}, -1')
    I(f's_cmp_gt_u32 s{S_T}, s{S_T+1}')
    I('s_cbranch_scc1 L_OVERFLOW')
    I(f's_add_u32 s{S_L}, s{S_T}, 63')
    I(f's_lshr_b32 s{S_L}, s{S_L}, 6')
    I(f'v_cvt_f32_u32 v{MI}, s{S_L}')
    I(f'v_rcp_f32 v{MI}, v{MI}')
    I(f'v_lshrrev_b32 v{GS}, 5, v{GS}')
    I(f'v_mul_f32 v{MI}, 0x47800000, v{MI}')
    I(f'v_cvt_u32_f32 v{MI}, v{MI}')
    I(f'v_lshrrev_b32 v{NG}, 5, v{NG}')
    I(f'v_add_u32 v{MI}, 2, v{MI}')
    I(f's_waitcnt vmcnt({NPF})')
    for r in range(4):
        I(f's_waitcnt lgkmcnt({7 - r + 2*r})')
        I(f's_mov_b64 exec, {sp(S_MASK+4*r)}')
        I(f'v_add_u32 v{A4+r}, v{A4+r}, v{REC+8*r+3}')
        I(f'v_and_b32 v{REC+8*r+2}, s{S_T+2}, v{REC+8*r+2}')
        I(f'v_add_u32 v{REC+8*r+3}, v{A4+r}, v{A4+r}')
        I(f'ds_write_b32 v{A4+r}, v{REC+8*r+2} offset:{LS}')
        I(f'ds_write_b64 v{REC+8*r+3}, {p(REC+8*r)} offset:{LE}')
    I('s_waitcnt lgkmcnt(8)')
    for r in range(4):
        I(f's_mov_b64 exec, {sp(S_MASK+4*r+2)}')
        I(f's_cbranch_execz L_P{r}')
        I(f'v_add_u32 v{A8+r}, v{A8+r}, v{REC+8*r+7}')
        I(f'v_and_b32 v{REC+8*r+6}, s{S_T+2}, v{REC+8*r+6}')
        I(f'v_add_u32 v{REC+8*r+7}, v{A8+r}, v{A8+r}')
        I(f'ds_write_b32 v{A8+r}, v{REC+8*r+6} offset:{LS}')
        I(f'ds_write_b64 v{REC+8*r+7}, {p(REC+8*r+4)} offset:{LE}')
        L(f'L_P{r}')
    I('s_mov_b64 exec, -1')
    stamp(13)
    SA_, SB_ = X, X + 1
    I(f'v_mul_u32_u24 v{SA_}, v{GS}, v{MI}')
    I(f'v_max_u32 v{SB_}, 1, v{NG}')
    I(f'v_lshrrev_b32 v{SA_}, 16, v{SA_}')
    I(f'v_add3_u32 v{SB_}, v{SB_}, v{GS}, -1')
    I(f'v_mul_u32_u24 v{SB_}, v{SB_}, v{MI}')
    I(f'v_lshlrev_b32 v{X+2}, 3, v{V_LANE}')
    I(f'v_lshrrev_b32 v{SB_}, 16, v{SB_}')
    I(f'v_lshlrev_b32 v{X+3}, 8, v{V_LANE}')
    I(f'ds_write_b64 v{X+2}, {p(SA_)} offset:{NINFO}')
    I(f'v_add_u32 v{X+4}, {ACCN}, v{X+3}')
    I(f's_mov_b32 s{S_T}, s{S_W}')
    I(f's_sub_u32 s{S_T+1}, 0, s{S_L}')
    L('L_DLOOP')
    I(f'v_cmp_lt_u32 vcc, s{S_T}, v{NG}')
    I('s_and_b64 exec, exec, vcc')
    I('s_cbranch_execz L_DEND')
    I(f'v_add_u32 v{X+5}, s{S_T}, v{GS}')
    I(f'v_mul_u32_u24 v{X+6}, v{X+5}, v{MI}')
    I(f'v_lshrrev_b32 v{X+6}, 16, v{X+6}')
    I(f'v_mad_i32_i24 v{X+5}, v{X+6}, s{S_T+1}, v{X+5}')
    I(f'v_cmp_eq_u32 vcc, v{X+6}, v{SA_}')
    I(f'v_lshl_add_u32 v{X+5}, v{X+5}, 6, v{X+6}')
    I(f'v_lshlrev_b32 v{X+6}, 8, v{X+6}')
    I(f'v_lshlrev_b32 v{X+5}, 2, v{X+5}')
    I(f'v_add_u32 v{X+6}, {EXTRA}, v{X+6}')
    I(f'v_add_u32 v{X+7}, {DESCA}, v{X+5}')
    I(f'v_cndmask_b32 v{X+6}, v{X+6}, v{X+4}, vcc')
    I(f'ds_write_b32 v{X+5}, v{X+3} offset:{DESCP}')
    I(f'ds_write_b32 v{X+7}, v{X+6}')
    I(f's_add_u32 s{S_T}, s{S_T}, 16')
    I('s_branch L_DLOOP')
    L('L_DEND')
    I('s_mov_b64 exec, -1')
    I(f's_lshl_b32 s{S_T}, s{S_W}, 2')
    I(f's_lshl_b32 s{S_T+1}, s{S_L}, 5')
    I(f'v_lshrrev_b32 v{X}, 5, v{V_LANE}')
    I(f'v_lshl_add_u32 v{X+1}, v{X}, 1, s{S_T}')
    I(f'v_mul_u32_u24 v{V_PS0}, s{S_T+1}, v{X+1}')
    I(f'v_lshlrev_b32 v{V_PD}, 2, v{X+1}')
    I(f'v_add_u32 v{V_PS1}, s{S_T+1}, v{V_PS0}')
    I(f'v_add_u32 v{V_PD}, {DESCP}, v{V_PD}')
    I(f'v_bfe_u32 v{X}, v{V_LANE}, 2, 1')
    I(f'v_and_b32 v{X+1}, 1, v{V_LANE}')
    I(f'v_lshl_or_b32 v{X}, v{X}, 1, v{X+1}')
    I(f'v_add_u32 v{X}, s{S_T}, v{X}')
    I(f's_lshl_b32 s{S_T+1}, s{S_L}, 6')
    I(f'v_mul_u32_u24 v{V_PE}, s{S_T+1}, v{X}')
    I(f'v_bfe_u32 v{X}, v{V_LANE}, 3, 2')
    I(f'v_bfe_u32 v{X+1}, v{V_LANE}, 1, 1')
    I(f'v_lshl_or_b32 v{X}, v{X}, 1, v{X+1}')
    I(f'v_lshl_add_u32 v{V_PE}, v{X}, 3, v{V_PE}')
    I(f'v_add_u32 v{V_PE}, {LE}, v{V_PE}')
    I(f's_mov_b32 s{S_CNT}, s{S_L}')
    I('s_waitcnt lgkmcnt(0)')
    I('s_barrier')
    stamp(14)
    I(f's_cmp_eq_u32 s{S_L}, 0')
    I('s_cbranch_scc1 L_FOLD')
    lg = Lg()
    if NPF:
        I('s_waitcnt vmcnt(0)')
    s_reads(lg, 0)
    lg.op('dP', f'ds_read_b64 {p(V_VAP)}, v{V_PD}')
    lg.op('dA', f'ds_read_b64 {p(V_VAA[0])}, v{V_PD} offset:{DESCA-DESCP}')
    lg.op('e', f'ds_read_b64 {p(A5)}, v{V_PE}')
    lg.need('S0', 'S1', 'S2', 'S3')
    for n in range(2):
        for i in range(16):
            I(gload(n, i))
    s_reads(lg, 1)
    lg.need('dP', 'dA')
    I(f'v_add_u32 v{V_VAP}, v{V_VAP}, v{V_CHP}')
    I(f'v_add_u32 v{V_VAP+1}, v{V_VAP+1}, v{V_CHP}')
    I(f'v_add_u32 v{V_VAA[0]}, v{V_VAA[0]}, v{V_CH8}')
    I(f'v_add_u32 v{V_VAA[0]+1}, v{V_VAA[0]+1}, v{V_CH8}')
    lg.op('P0a', f'ds_read_b32 v{B5[0]+2}, v{V_VAP}')
    lg.op('P0b', f'ds_read_b32 v{B5[0]+3}, v{V_VAP+1}')
    lg.op('P1a', f'ds_read_b32 v{B5[1]+2}, v{V_VAP} offset:4')
    lg.op('P1b', f'ds_read_b32 v{B5[1]+3}, v{V_VAP+1} offset:4')
    I(f's_cmp_eq_u32 s{S_CNT}, 1')
    I(f's_cselect_b64 {sp(S_LDX)}, 0, {LDXV}')
    I('s_waitcnt lgkmcnt(0)')
    lg.q = []
    if opt('prio', 3):
        I('s_setprio 3')
    stamp(15)
    rstamp(28)
    half(lg, 0, 0, 0, False)
    state0 = list(lg.q)
    def step(par, uo):
        half(lg, 1, par, uo)
        I(f's_sub_u32 s{S_CNT}, s{S_CNT}, 1')
        I(f's_cmp_eq_u32 s{S_CNT}, 0')
        I(f's_cbranch_scc1 L_FIN{par}')
        I(f's_cmp_eq_u32 s{S_CNT}, 1')
        I(f's_cselect_b64 {sp(S_LDX)}, 0, {LDXV}')
        prio(f'{par}')
        half(lg, 0, par ^ 1, uo + 1)
    def loop_body():
        step(0, 0)
        step(1, 1)
        I(f'v_add_u32 v{V_PS0}, 64, v{V_PS0}')
        I(f'v_add_u32 v{V_PS1}, 64, v{V_PS1}')
        I(f'v_add_u32 v{V_PE}, 128, v{V_PE}')
        I(f'v_add_u32 v{V_PD}, 512, v{V_PD}')
        I('s_branch L_LOOP')
    mark = len(out)
    loop_body()
    del out[mark:]
    qb = list(lg.q)
    n = min(len(qb), len(state0))
    assert qb[len(qb)-n:] == state0[len(state0)-n:], (state0, qb)
    lg.q = list(qb if len(qb) >= len(state0) else state0)
    e('.p2align 3')
    L('L_LOOP')
    loop_body()
    assert lg.q == qb, (lg.q, qb)
    print('loop entry queue', state0, 'back edge queue', qb, file=sys.stderr)
    for pr in range(2):
        L(f'L_FIN{pr}')
        for op in tail_ops(1):
            I(op)
        I(f'ds_write_b64 v{V_VAA[pr]}, {p(V_MA)}')
        I(f'ds_write_b64 v{V_VAA[pr]+1}, {p(V_MB)}')
        if pr == 0:
            I('s_branch L_FOLD')
    L('L_FOLD')
    stamp(16)
    I(f'v_lshrrev_b32 v{X}, 3, v{V_TID}')
    I(f'v_and_b32 v{X+1}, 7, v{V_TID}')
    I(f'v_lshlrev_b32 v{X+6}, 3, v{X+1}')
    I(f'v_lshlrev_b32 v{X+1}, 5, v{X+1}')
    I(f'v_lshl_add_u32 v{X+2}, v{X}, 8, v{X+1}')
    I(f'v_add_u32 v{X+2}, {ACCN}, v{X+2}')
    I(f'v_add_u32 v{X+1}, {EXTRA}, v{X+1}')
    I(f'v_lshlrev_b32 v{X+3}, 3, v{X}')
    I(f's_mul_i32 s{S_T+4}, s3, {NB*128}')
    I(f'v_lshl_add_u32 v{X+6}, v{X}, 7, v{X+6}')
    I(f'v_add_u32 v{X+6}, s{S_T+4}, v{X+6}')
    I(f'v_mov_b32 v{X+7}, 0')
    I('s_waitcnt vmcnt(0) lgkmcnt(0)')
    I('s_barrier')
    stamp(17)
    rstamp(29)
    if PROF:
        I(f'v_writelane_b32 v{V_PROF}, s{S_L}, 27')
    I(f'v_cmp_gt_u32 vcc, {NB*8}, v{V_TID}')
    I(f's_and_saveexec_b64 {sp(S_EX)}, vcc')
    I('s_cbranch_execz L_FDONE')
    I(f'ds_read_b64 {p(X+4)}, v{X+3} offset:{NINFO}')
    I(f'ds_read_b128 v[64:67], v{X+2}')
    I(f'ds_read_b128 v[68:71], v{X+2} offset:16')
    I(f's_mov_b64 {sp(S_T)}, exec')
    I('s_waitcnt lgkmcnt(0)')
    L('L_FLOOP')
    I(f'v_cmp_lt_u32 vcc, v{X+4}, v{X+5}')
    I('s_and_b64 exec, exec, vcc')
    I('s_cbranch_execz L_FLEND')
    I(f'v_add_u32 v{X+4}, 1, v{X+4}')
    I(f'v_lshl_add_u32 v{X+7}, v{X+4}, 8, v{X+1}')
    I(f'ds_read_b128 v[72:75], v{X+7}')
    I(f'ds_read_b128 v[76:79], v{X+7} offset:16')
    I('s_waitcnt lgkmcnt(0)')
    for k in range(8):
        I(f'v_add_f32 v{64+k}, v{64+k}, v{72+k}')
    I('s_branch L_FLOOP')
    L('L_FLEND')
    I(f's_mov_b64 exec, {sp(S_T)}')
    I(f's_cmp_lg_u32 s{S_MORE}, 0')
    I('s_cbranch_scc1 L_WB')
    I(f's_mov_b32 s{S_T+2}, 0x{f2u(2.0**-(SV+KEXP)):x}')
    I(f's_mov_b32 s{S_T+3}, 0x{f2u(-LOG2E):x}')
    for k in range(8):
        I(f'v_mul_f32 v{64+k}, s{S_T+2}, v{64+k}')
    for k in range(8):
        I(f'v_mul_f32 v{72+k}, s{S_T+3}, v{64+k}')
    for k in range(8):
        I(f'v_exp_f32 v{72+k}, v{72+k}')
    for k in range(8):
        I(f'v_add_f32 v{72+k}, 1.0, v{72+k}')
    for k in range(8):
        I(f'v_rcp_f32 v{72+k}, v{72+k}')
    for k in range(8):
        I(f'v_mul_f32 v{64+k}, v{64+k}, v{72+k}')
    I('v_cvt_pk_bf16_f32 v80, v64, v66')
    I('v_cvt_pk_bf16_f32 v81, v68, v70')
    I('v_cvt_pk_bf16_f32 v82, v65, v67')
    I('v_cvt_pk_bf16_f32 v83, v69, v71')
    I(f'buffer_store_dwordx2 v[80:81], v{X+6}, {sr4(S_OUT)}, 0 offen')
    I(f'buffer_store_dwordx2 v[82:83], v{X+6}, {sr4(S_OUT)}, 0 offen offset:64')
    stamp(18)
    prof_store()
    I('s_endpgm')
    L('L_WB')
    I(f'ds_write_b128 v{X+2}, v[64:67]')
    I(f'ds_write_b128 v{X+2}, v[68:71] offset:16')
    L('L_FDONE')
    I('s_mov_b64 exec, -1')
    I(f's_cmp_eq_u32 s{S_MORE}, 0')
    I('s_cbranch_scc1 L_QUIT')
    I(f's_add_u32 s{S_JB}, s{S_JB}, s{S_WID}')
    I('s_branch L_REFILL')
    L('L_OVERFLOW')
    I(f's_mov_b32 s{S_WID}, 64')
    L('L_REFILL')
    I('s_waitcnt vmcnt(0) lgkmcnt(0)')
    I('s_barrier')
    fill_zero()
    fill_words()
    I('s_waitcnt lgkmcnt(0)')
    I('s_barrier')
    I('s_branch L_PASS')
    L('L_QUIT')
    prof_store()
    L('L_END')
    I('s_endpgm')

hdr = open('standalone__edge_featured_mpnn_egc__graph.s.ref').read().split('\n')
for line in hdr:
    if line.startswith('; Override'):
        break
    e(line)
e(f'; @launch grid=({NWG},1,1) block=(1024,1,1) lds={LDS_BYTES}')
e('.amdgcn_target "amdgcn-amd-amdhsa--gfx950"')
e('.text')
gen()
e('.section .rodata,"a"')
e('.p2align 6')
e(f'.amdhsa_kernel {KNAME}')
e('  .amdhsa_next_free_vgpr 128')
e('  .amdhsa_next_free_sgpr 102')
e('  .amdhsa_accum_offset 128')
e('  .amdhsa_group_segment_fixed_size 0')
e('  .amdhsa_kernarg_size 80')
e('  .amdhsa_user_sgpr_count 2')
e('  .amdhsa_user_sgpr_kernarg_segment_ptr 1')
e('  .amdhsa_system_sgpr_workgroup_id_x 1')
e('  .amdhsa_float_denorm_mode_32 3')
e('.end_amdhsa_kernel')
open(sys.argv[1], 'w').write('\n'.join(x for x in out if x is not None) + '\n')
```

```python
import sys, struct

OPT = dict(a.split('=') for a in sys.argv[2:] if '=' in a)
def opt(name, default):
    return type(default)(OPT.get(name, default))

KNAME = 'standalone__edge_featured_mpnn_egc__graph_kernel'
N_NODES = 12500
E_EDGES = 800000
NB = 49
NWG = 256
CH = 3136
WS_RW = 0
WS_RE = 0x00400000
WS_TAB = 0x00B00000
WS_NT = 0x00C00000
WS_PROF = 0x01000000
KEXP = 31
SV = 30
LOG2E = 1.4426950408889634
SC = opt('sc', 'sc1')
SC = (' ' + SC.replace('+', ' ')) if SC != 'none' else ''
LSC = opt('lsc', 'sc1')
LSC = (' ' + LSC.replace('+', ' ')) if LSC != 'none' else ''
GSC = opt('gsc', 'sc1')
GSC = (' ' + GSC.replace('+', ' ')) if GSC != 'none' else ''
ELD = opt('eld', 'nt')
ELD = (' ' + ELD.replace('+', ' ')) if ELD != 'none' else ''

def f2u(x):
    return struct.unpack('<I', struct.pack('<f', x))[0]

out = []
def e(s=''):
    out.append(s)
def I(s):
    out.append('    ' + s)
def L(name):
    out.append(name + ':')
def vr(a, n):
    return f'v[{a}:{a+n-1}]' if n > 1 else f'v{a}'
def sr4(a):
    return f's[{a}:{a+3}]'
def sp(a):
    return f's[{a}:{a+1}]'
def p(r):
    return f'v[{r}:{r+1}]'

def srd(d, lo, hi, nrec):
    I(f's_mov_b32 s{d}, s{lo}')
    I(f's_mov_b32 s{d+1}, s{hi}')
    I(f's_mov_b32 s{d+2}, {nrec}')
    I(f's_mov_b32 s{d+3}, 0x00020000')

def srd_off(d, lo, hi, off, nrec):
    I(f's_add_u32 s{d}, s{lo}, {off}')
    I(f's_addc_u32 s{d+1}, s{hi}, 0')
    I(f's_mov_b32 s{d+2}, {nrec}')
    I(f's_mov_b32 s{d+3}, 0x00020000')

def wave_scan(v):
    for sh in (1, 2, 4, 8):
        I('s_nop 1')
        I(f'v_add_u32_dpp v{v}, v{v}, v{v} row_shr:{sh} row_mask:0xf bank_mask:0xf')
    I('s_nop 1')
    I(f'v_add_u32_dpp v{v}, v{v}, v{v} row_bcast:15 row_mask:0xa bank_mask:0xf')
    I('s_nop 1')
    I(f'v_add_u32_dpp v{v}, v{v}, v{v} row_bcast:31 row_mask:0xc bank_mask:0xf')
    I('s_nop 1')

LS = 0
ZR = 18688
LE = 18688
CNT = 56064
MISC = 56320
BASET = 56576
NINFO = 56832
HIST = 57344
HBASE = 58368
DESCP = 59392
EXTRA = 67840
DESCA = 84224
PT = 86784
ACCN = 99328
WRAW = 111872
WG_, WV_, WU_ = WRAW, WRAW + 17408, WRAW + 25600
XOWN = WRAW + 33792
LDS_BYTES = XOWN + 8192
STGW = 0
STGE = CH * 4
NTI = EXTRA
MAXG = 576
assert STGE + CH * 8 <= CNT

V_TID, V_LANE = 0, 1
V_MA, V_MB = 2, 4
V_VAA = (6, 8)
V_VAP = 10
V_PS0, V_PS1, V_PE, V_PD, V_CH8, V_CHP = 12, 13, 14, 15, 16, 17
V_PROF = 18
V_TAB = 20
V_J4, V_CB4 = 24, 25
V_X = 26
V_T01D, V_T01N, V_T23D, V_T23N = 40, 42, 44, 46
B5 = (48, 52)
A5 = 56
V_TT = (60, 62)
G = (64, 80)
Z = 96
S = 112

S_XS, S_WS, S_DST, S_SRC, S_EA, S_RW, S_RE, S_TAB, S_NTS, S_NTG, S_OUT = 12, 16, 20, 24, 28, 32, 36, 40, 44, 48, 52
S_MASK = 56
S_W, S_L, S_CNT, S_JB, S_WID, S_MORE = 72, 73, 74, 75, 76, 77
S_C = 78
S_EX = 80
S_LDX = 82
S_T = 84
S_WSP = 94
S_DBG = 96
S_TAG, S_TAG2 = 100, 101
TAGM = 0xC003C003
TAGL = MISC + 64

NT2 = 2 if opt('touch', 0) else 0
LDXV = 0 if opt('noload', 0) else -1
NPFM = opt('npf', 0)
NPF = 7 if NPFM else 0
NPF1 = 7 if NPFM == 1 else 0
WSB = opt('wsb', 0) << 20
TCH = 4 if opt('touch', 0) else 0
PROF = opt('prof', 0)
DIAG = opt('diag', -1)
def diag_end():
    if DIAG < 0:
        return
    I('s_memrealtime s[98:99]')
    I('s_waitcnt lgkmcnt(0)')
    I('v_readlane_b32 s92, v18, 1')
    I('v_readlane_b32 s93, v18, 0')
    I('s_nop 3')
    I('s_sub_u32 s92, s92, s93')
    I('s_lshl_b32 s92, s92, 2')
    I('s_mov_b32 s93, s98')
    lbl = f'L_DG{len(out)}'
    L(lbl)
    I('s_memrealtime s[98:99]')
    I('s_waitcnt lgkmcnt(0)')
    I('s_sub_u32 s98, s98, s93')
    I('s_cmp_lt_u32 s98, s92')
    I(f's_cbranch_scc1 {lbl}')
def stamp(i):
    if DIAG >= 0 and i in (0, DIAG):
        I('s_memrealtime s[98:99]')
        I('s_waitcnt lgkmcnt(0)')
        if i == 0:
            I('v_writelane_b32 v18, s98, 0')
        if i == DIAG:
            I('v_writelane_b32 v18, s98, 1')
    if not PROF:
        return
    I('s_memtime s[98:99]')
    I('s_waitcnt lgkmcnt(0)')
    I(f'v_writelane_b32 v{V_PROF}, s98, {i}')
def rstamp(i):
    if not PROF:
        return
    I('s_memrealtime s[98:99]')
    I('s_waitcnt lgkmcnt(0)')
    I(f'v_writelane_b32 v{V_PROF}, s98, {i}')
def prof_store():
    if not PROF:
        return
    rstamp(31)
    if PROF == 3:
        I(f's_lshl_b32 s98, s2, 4')
        I(f's_add_u32 s98, s98, s{S_W}')
        I(f's_cmp_lg_u32 s98, {opt("pwave", 80)}')
        I('s_cbranch_scc1 L_END')
        I('s_mov_b64 exec, -1')
        I(f'v_readlane_b32 s98, v{V_PROF}, 0')
        I(f'v_readlane_b32 s99, v{V_PROF}, 30')
        I(f'v_readlane_b32 s{S_T}, v{V_PROF}, 31')
        I('s_nop 3')
        I(f's_sub_u32 s{S_T}, s{S_T}, s99')
        I(f's_add_u32 s{S_T}, s{S_T}, s98')
        I(f'v_writelane_b32 v{V_PROF}, s{S_T}, 9')
        I(f'v_subrev_u32 v{V_PROF}, s98, v{V_PROF}')
        I(f'v_mbcnt_lo_u32_b32 v{V_PROF+1}, -1, 0')
        I(f'v_lshlrev_b32 v{V_PROF+1}, 2, v{V_PROF+1}')
        I(f'v_add_u32 v{V_PROF+1}, -8, v{V_PROF+1}')
        I('s_mov_b64 exec, 0x3fff8')
        I(f'global_store_dword v{V_PROF+1}, v{V_PROF}, {sp(S_DBG)}')
        return
    I('s_mov_b64 exec, 0xffffffff')
    I(f's_add_u32 s{S_T}, s{S_WSP}, 0x{WS_PROF:x}')
    I(f's_addc_u32 s{S_T+1}, s{S_WSP+1}, 0')
    I(f'v_mbcnt_lo_u32_b32 v{V_PROF+1}, -1, 0')
    I(f'v_lshlrev_b32 v{V_PROF+1}, 2, v{V_PROF+1}')
    I(f's_lshl_b32 s98, s2, 4')
    I(f's_add_u32 s98, s98, s{S_W}')
    I(f's_lshl_b32 s98, s98, 7')
    I(f'v_add_u32 v{V_PROF+1}, s98, v{V_PROF+1}')
    I(f'global_store_dword v{V_PROF+1}, v{V_PROF}, {sp(S_T)}')

class Lg:
    def __init__(self):
        self.q = []
    def op(self, tag, text):
        I(text)
        self.q.append(tag)
    def need(self, *tags):
        idx = -1
        for t in tags:
            for i in range(len(self.q) - 1, -1, -1):
                if self.q[i] == t:
                    idx = max(idx, i)
                    break
        if idx < 0:
            return
        n = len(self.q) - 1 - idx
        assert n <= 15, (tags, n)
        I(f's_waitcnt lgkmcnt({n})')
        self.q = self.q[idx + 1:]

X = V_X

def zero_range(a, nbytes, zr, ad):
    k = 0
    base = a if a + nbytes <= 65536 + 16384 and a < 65536 - 3 * 16384 else None
    off = 0
    areg = ad
    if a + ((nbytes - 1) // 16384) * 16384 > 65535:
        I(f'v_add_u32 v{X+1}, {a}, v{ad}')
        areg = X + 1
        a0 = 0
    else:
        a0 = a
    while off < nbytes:
        n = min(16384, nbytes - off)
        if n < 16384:
            I(f'v_cmp_gt_u32 vcc, {n // 16}, v{V_TID}')
            I(f's_and_saveexec_b64 {sp(S_EX)}, vcc')
        I(f'ds_write_b128 v{areg}, v[{zr}:{zr+3}] offset:{a0 + off}')
        if n < 16384:
            I(f's_mov_b64 exec, {sp(S_EX)}')
        off += n

def zregs():
    I(f'v_lshlrev_b32 v{X}, 4, v{V_TID}')
    for k in range(4):
        I(f'v_mov_b32 v{X+2+k}, 0')

def fill_desca():
    I(f'v_and_b32 v{X+6}, 15, v{V_TID}')
    I(f'v_lshlrev_b32 v{X+6}, 10, v{X+6}')
    I(f'v_add_u32 v{X+6}, {EXTRA}, v{X+6}')
    for k in range(1, 4):
        I(f'v_add_u32 v{X+6+k}, {256*k}, v{X+6}')
    I(f'v_add_u32 v{X+1}, {DESCA}, v{X}')
    I(f'v_cmp_gt_u32 vcc, 160, v{V_TID}')
    I(f's_and_saveexec_b64 {sp(S_EX)}, vcc')
    I(f'ds_write_b128 v{X+1}, v[{X+6}:{X+9}]')
    I(f's_mov_b64 exec, {sp(S_EX)}')

def fill_zero():
    zregs()
    zero_range(ZR, 65536, X + 2, X)
    fill_desca()

def fill_words():
    I(f'v_lshlrev_b32 v{X}, 4, v{V_TID}')
    I(f'v_and_b32 v{X+2}, 7, v{V_TID}')
    I(f'v_lshlrev_b32 v{X+2}, 5, v{X+2}')
    I(f'v_add_u32 v{X+2}, {N_NODES*8}, v{X+2}')
    for k in range(1, 4):
        I(f'v_add_u32 v{X+2+k}, {8*k}, v{X+2}')
    I(f'ds_write_b128 v{X}, v[{X+2}:{X+5}] offset:{LS}')
    I(f'v_cmp_gt_u32 vcc, 144, v{V_TID}')
    I(f's_and_saveexec_b64 {sp(S_EX)}, vcc')
    I(f'ds_write_b128 v{X}, v[{X+2}:{X+5}] offset:{LS+16384}')
    I(f's_mov_b64 exec, {sp(S_EX)}')

def tail_ops(n):
    return [f'v_rcp_f32 v{V_T01D}, v{V_T01D}',
            f'v_rcp_f32 v{V_T01D+1}, v{V_T01D+1}',
            f'v_rcp_f32 v{V_T23D}, v{V_T23D}',
            f'v_rcp_f32 v{V_T23D+1}, v{V_T23D+1}',
            f'v_fmac_f32 v{V_MA+n}, v{V_T01N}, v{V_T01D}',
            f'v_fmac_f32 v{V_MB+n}, v{V_T01N+1}, v{V_T01D+1}',
            f'v_fmac_f32 v{V_MA+n}, v{V_T23N}, v{V_T23D}',
            f'v_fmac_f32 v{V_MB+n}, v{V_T23N+1}, v{V_T23D+1}']

def gload(n, i):
    return f'buffer_load_dword v{G[n]+i}, v{S + (i & 1) * 8 + (i >> 1)}, {sr4(S_NTG)}, 0 offen offset:{4*n}' + GSC

def s_reads(lg, uo):
    lg.op('S0', f'ds_read_b128 {vr(S,4)}, v{V_PS0} offset:{uo*32}')
    lg.op('S1', f'ds_read_b128 {vr(S+4,4)}, v{V_PS0} offset:{uo*32+16}')
    lg.op('S2', f'ds_read_b128 {vr(S+8,4)}, v{V_PS1} offset:{uo*32}')
    lg.op('S3', f'ds_read_b128 {vr(S+12,4)}, v{V_PS1} offset:{uo*32+16}')

def half(lg, n, par, uo, with_tail=True):
    g = G[n]
    I('s_waitcnt vmcnt(16)')
    if n == 0:
        lg.need('P0a', 'P0b', 'e')
    else:
        lg.need('P1a', 'P1b')
    I(f'v_mfma_f32_32x32x16_bf16 {vr(Z,16)}, {vr(A5,4)}, {vr(B5[n],4)}, {vr(g,16)}')
    t = tail_ops(n ^ 1)
    va_prev, va_cur, va_nxt = V_VAA[par ^ 1], V_VAA[par], V_VAA[par ^ 1]
    if with_tail:
        for op in t[:4]:
            I(op)
        if n == 1:
            lg.need('Ra', 'Rb')
        for op in t[4:]:
            I(op)
    else:
        I('s_nop 7')
    if n == 0:
        if with_tail:
            lg.op('Wa', f'ds_write_b64 v{va_prev}, {p(V_MA)}')
            lg.op('Wb', f'ds_write_b64 v{va_prev+1}, {p(V_MB)}')
        lg.op('Ra', f'ds_read_b64 {p(V_MA)}, v{va_cur}')
        lg.op('Rb', f'ds_read_b64 {p(V_MB)}, v{va_cur+1}')
        lg.op('dP', f'ds_read_b64 {p(V_VAP)}, v{V_PD} offset:{(uo+1)*256}')
        lg.op('dA', f'ds_read_b64 {p(va_nxt)}, v{V_PD} offset:{(uo+1)*256 + DESCA - DESCP}')
    else:
        lg.op('e', f'ds_read_b64 {p(A5)}, v{V_PE} offset:{(uo+1)*64}')
        lg.op('P1a', f'ds_read_b32 v{B5[1]+2}, v{V_VAP} offset:4')
        lg.op('P1b', f'ds_read_b32 v{B5[1]+3}, v{V_VAP+1} offset:4')
    sh = [f'v_lshlrev_b32 v{g+i}, 16, v{g+i}' for i in range(16)]
    ex = [f'v_exp_f32 v{Z+i}, v{Z+i} clamp' for i in range(16)]
    for op in sh[:4]:
        I(op)
    for i in range(12):
        I(ex[i])
        I(sh[4 + i])
        if n == 0 and i == 7:
            lg.need('dP', 'dA')
            I(f'v_add_u32 v{V_VAP}, v{V_VAP}, v{V_CHP}')
            I(f'v_add_u32 v{V_VAP+1}, v{V_VAP+1}, v{V_CHP}')
            I(f'v_add_u32 v{va_nxt}, v{va_nxt}, v{V_CH8}')
            I(f'v_add_u32 v{va_nxt+1}, v{va_nxt+1}, v{V_CH8}')
            lg.op('P0a', f'ds_read_b32 v{B5[0]+2}, v{V_VAP}')
            lg.op('P0b', f'ds_read_b32 v{B5[0]+3}, v{V_VAP+1}')
    for op in ex[12:]:
        I(op)
    for i in range(0, 16, 2):
        I(f'v_pk_add_f32 {p(Z+i)}, {p(Z+i)}, {sp(S_C)}')
    def T(k): return f'v_pk_mul_f32 {p(V_TT[k&1])}, {p(g+4*k)}, {p(Z+4*k+2)}'
    def DD(k): return f'v_pk_mul_f32 {p(Z+4*k+2)}, {p(Z+4*k)}, {p(Z+4*k+2)}'
    def NN(k): return f'v_pk_fma_f32 {p(Z+4*k)}, {p(g+4*k+2)}, {p(Z+4*k)}, {p(V_TT[k&1])}'
    for k0 in (0, 2):
        for op in (T(k0), T(k0 + 1), DD(k0), DD(k0 + 1), NN(k0), NN(k0 + 1)):
            I(op)
        if n == 0 and k0 == 0:
            lg.need('S0', 'S1', 'S2', 'S3')
        I(f's_mov_b64 exec, {sp(S_LDX)}')
        for i in range(4 * k0, 4 * k0 + 8):
            I(gload(n, i))
        I('s_mov_b64 exec, -1')
    if n == 1:
        s_reads(lg, uo + 2)
    I(f'v_pk_mul_f32 {p(V_T01N)}, {p(Z)}, {p(Z+6)}')
    I(f'v_pk_mul_f32 {p(V_T23N)}, {p(Z+8)}, {p(Z+14)}')
    I(f'v_pk_mul_f32 {p(V_T01D)}, {p(Z+2)}, {p(Z+6)}')
    I(f'v_pk_mul_f32 {p(V_T23D)}, {p(Z+10)}, {p(Z+14)}')
    I(f'v_pk_fma_f32 {p(V_T01N)}, {p(Z+4)}, {p(Z+2)}, {p(V_T01N)}')
    I(f'v_pk_fma_f32 {p(V_T23N)}, {p(Z+12)}, {p(Z+10)}, {p(V_T23N)}')

def prio(tag):
    pr = opt('prio', 3)
    if not pr:
        return
    th = {1: (4, 2, 1), 2: (5, 3, 1), 3: (3, 2, 1), 4: (6, 4, 2)}[pr]
    for lvl, t in zip((2, 1, 0), th):
        I(f's_cmp_eq_u32 s{S_CNT}, {t}')
        I(f's_cbranch_scc0 L_PR{tag}_{lvl}')
        I(f's_setprio {lvl}')
        L(f'L_PR{tag}_{lvl}')

def split_hilo(a, b, t0, t1):
    I(f'v_cvt_pk_bf16_f32 v{t0}, v{a}, v{b}')
    I(f'v_lshlrev_b32 v{t1}, 16, v{t0}')
    I(f'v_and_b32 v{t0}, 0xffff0000, v{t0}')
    I(f'v_sub_f32 v{a}, v{a}, v{t1}')
    I(f'v_sub_f32 v{b}, v{b}, v{t0}')
    I(f'v_cvt_pk_bf16_f32 v{a}, v{t1}, v{a}')
    I(f'v_cvt_pk_bf16_f32 v{b}, v{t0}, v{b}')

V_AA, V_AB, V_AD, V_AP = 6, 7, 8, 9
SA, SB, SD = 80, 96, 112

def phase0_addr():
    I(f's_and_b32 s{S_T}, s{S_W}, 3')
    I(f's_lshr_b32 s{S_T+1}, s{S_W}, 2')
    I(f'v_and_b32 v12, 15, v{V_LANE}')
    I(f'v_lshrrev_b32 v13, 4, v{V_LANE}')
    I(f'v_bfe_u32 v14, v{V_LANE}, 1, 3')
    I(f'v_xor_b32 v14, v14, v13')
    I(f'v_lshlrev_b32 v14, 4, v14')
    I(f'v_lshl_or_b32 v14, v12, 7, v14')
    I(f's_lshl_b32 s{S_T+2}, s{S_T}, 11')
    I(f'v_add_u32 v{V_AA}, s{S_T+2}, v14')
    I(f'v_bfe_u32 v14, v{V_LANE}, 2, 2')
    I(f'v_lshl_add_u32 v14, v13, 3, v14')
    I(f'v_lshlrev_b32 v14, 7, v14')
    I(f'v_and_b32 v15, 3, v{V_LANE}')
    I(f'v_lshl_add_u32 v14, v15, 3, v14')
    I(f's_lshl_b32 s{S_T+2}, s{S_T+1}, 5')
    I(f'v_or_b32 v14, s{S_T+2}, v14')
    I(f'v_and_b32 v15, 24, v{V_LANE}')
    I(f'v_lshlrev_b32 v15, 2, v15')
    I(f'v_xor_b32 v14, v14, v15')
    I(f'v_add_u32 v{V_AB}, {WRAW}, v14')
    I(f's_lshl_b32 s{S_T+2}, s{S_T}, 12')
    I(f'v_lshlrev_b32 v13, 10, v13')
    I(f'v_add_u32 v13, s{S_T+2}, v13')
    I(f's_lshl_b32 s{S_T+2}, s{S_T+1}, 6')
    I(f's_add_u32 s{S_T+2}, s{S_T+2}, {NTI}')
    I(f'v_lshl_add_u32 v{V_AD}, v12, 2, v13')
    I(f'v_add_u32 v{V_AD}, s{S_T+2}, v{V_AD}')
    I(f's_and_b32 s{S_T+2}, s{S_T+1}, 1')
    I(f's_lshl_b32 s{S_T+2}, s{S_T+2}, 7')
    I(f's_lshr_b32 s{S_T+3}, s{S_T+1}, 1')
    I(f's_lshl_b32 s{S_T+3}, s{S_T+3}, 2')
    I(f's_add_u32 s{S_T+2}, s{S_T+2}, s{S_T+3}')
    I(f's_add_u32 s{S_T+2}, s{S_T+2}, {PT}')
    I(f'v_lshl_add_u32 v{V_AP}, v12, 3, v13')
    I(f'v_add_u32 v{V_AP}, s{S_T+2}, v{V_AP}')

def b_reads(dst, off):
    for sg in range(2):
        for pp in range(2):
            I(f'ds_read_b64_tr_b16 {vr(dst+4*sg+2*pp,2)}, v{V_AB} offset:{off+sg*4096+pp*512}')

def mm16(d, b):
    I(f'v_mfma_f32_16x16x32_bf16 {vr(d,4)}, {vr(SA,4)}, {vr(b,4)}, 0')
    I(f'v_mfma_f32_16x16x32_bf16 {vr(d,4)}, {vr(SA+4,4)}, {vr(b+4,4)}, {vr(d,4)}')

def phase0a():
    I(f'v_add_u32 v12, {XOWN}, v{V_AA}')
    I(f'v_xor_b32 v13, 64, v{V_AA}')
    I(f'v_add_u32 v13, {XOWN}, v13')
    I(f'ds_read_b128 {vr(SA,4)}, v12')
    I(f'ds_read_b128 {vr(SA+4,4)}, v13')
    b_reads(SB, 8192)
    b_reads(SB + 8, WV_ - WRAW)
    I(f's_mov_b32 s{S_T+4}, 0x{f2u(-LOG2E):x}')
    I(f's_mov_b32 s{S_T+5}, 0x{f2u(2.0**SV):x}')
    I(f's_mov_b32 s{S_T+6}, 0x7fffffff')
    I(f's_mov_b32 s{S_T+7}, 0xffff0000')
    I('s_waitcnt lgkmcnt(4)')
    mm16(SD, SB)
    I('s_waitcnt lgkmcnt(0)')
    mm16(SD + 4, SB + 8)
    I('s_nop 4')
    for i in range(4):
        I(f'v_mul_f32 v{SD+i}, s{S_T+4}, v{SD+i}')
    for i in range(4):
        I(f'v_and_b32 v{SD+8+i}, s{S_T+6}, v{SD+i}')
    for i in range(4):
        I(f'v_mul_f32 v{SD+4+i}, s{S_T+5}, v{SD+4+i}')
        I(f'v_add_u32 v{SD+8+i}, 0x8000, v{SD+8+i}')
    I(f'v_cvt_pk_bf16_f32 v{SD+4}, v{SD+4}, v{SD+5}')
    I(f'v_cvt_pk_bf16_f32 v{SD+6}, v{SD+6}, v{SD+7}')
    I(f'v_lshrrev_b32 v{SD+5}, 16, v{SD+4}')
    I(f'v_lshrrev_b32 v{SD+7}, 16, v{SD+6}')
    I(f'v_and_b32 v{SD+4}, 0xffff, v{SD+4}')
    I(f'v_and_b32 v{SD+6}, 0xffff, v{SD+6}')
    for i in range(4):
        I(f'v_sub_u32 v{SD+8+i}, v{SD+8+i}, v{SD+4+i} clamp')
    for i in range(4):
        I(f'v_and_or_b32 v{SD+8+i}, v{SD+8+i}, s{S_T+7}, v{SD+4+i}')
    for i in range(4):
        I(f'v_bfi_b32 v{SD+i}, s{S_T+6}, v{SD+8+i}, v{SD+i}')
        I(f'ds_write_b32 v{V_AD}, v{SD+i} offset:{i*256}')

def phase0b():
    b_reads(SB, 0)
    b_reads(SB + 8, WU_ - WRAW)
    I(f's_mov_b32 s{S_T+4}, 0x{f2u(-LOG2E):x}')
    I(f's_mov_b32 s{S_T+5}, 0x{f2u(2.0**(SV+KEXP)):x}')
    I(f'v_mov_b32 v13, 0x{f2u(-float(KEXP)):x}')
    I(f's_and_b32 s{S_T+6}, s{S_W}, 3')
    I('s_waitcnt lgkmcnt(4)')
    mm16(SD, SB)
    I('s_waitcnt lgkmcnt(0)')
    mm16(SD + 4, SB + 8)
    I('s_nop 4')
    for i in range(4):
        I(f'v_fma_f32 v{SD+i}, v{SD+i}, s{S_T+4}, v13')
    split_hilo(SD, SD + 1, 12, 13)
    split_hilo(SD + 2, SD + 3, 12, 13)
    for i in range(4):
        I(f'v_mul_f32 v{SD+4+i}, s{S_T+5}, v{SD+4+i}')
    I(f's_cmp_eq_u32 s{S_T+6}, 3')
    I(f's_cselect_b64 exec, 0xffff, -1')
    I(f'ds_write_b32 v{V_AP}, v{SD}')
    I(f'ds_write_b32 v{V_AP}, v{SD+4} offset:{ACCN-PT}')
    I(f's_cselect_b64 exec, 0, -1')
    for i in range(1, 4):
        I(f'ds_write_b32 v{V_AP}, v{SD+i} offset:{i*256}')
        I(f'ds_write_b32 v{V_AP}, v{SD+4+i} offset:{ACCN-PT+i*256}')
    I('s_mov_b64 exec, -1')

def phase0c():
    I(f'v_bfe_u32 v13, v{V_LANE}, 2, 2')
    I(f'v_lshlrev_b32 v13, 7, v13')
    I(f'v_bfe_u32 v15, v{V_LANE}, 4, 1')
    I(f'v_lshl_add_u32 v13, v15, 5, v13')
    I(f'v_and_b32 v15, 3, v{V_LANE}')
    I(f'v_lshl_add_u32 v13, v15, 3, v13')
    I(f'v_and_b32 v15, 8, v{V_LANE}')
    I(f'v_lshlrev_b32 v15, 2, v15')
    I(f'v_xor_b32 v13, v13, v15')
    I(f'v_add_u32 v13, {WG_ + 16384}, v13')
    I(f'ds_read_b64_tr_b16 v[96:97], v13')
    I(f'ds_read_b64_tr_b16 v[98:99], v13 offset:64')
    I(f's_mov_b32 s{S_T+4}, 0x{f2u(-LOG2E):x}')
    I(f'v_cmp_lt_u32 vcc, 31, v{V_LANE}')
    I('s_waitcnt lgkmcnt(0)')
    for m in range(4):
        I(f'v_lshlrev_b32 v{100+2*m}, 16, v{96+m}')
        I(f'v_and_b32 v{101+2*m}, 0xffff0000, v{96+m}')
    for j in range(8):
        I(f'v_mul_f32 v{100+j}, s{S_T+4}, v{100+j}')
    for m in range(4):
        dst = B5[m >> 1] + (m & 1)
        I(f'v_cvt_pk_bf16_f32 v{96+m}, v{100+2*m}, v{101+2*m}')
        I(f'v_lshlrev_b32 v12, 16, v{96+m}')
        I(f'v_and_b32 v13, 0xffff0000, v{96+m}')
        I(f'v_sub_f32 v12, v{100+2*m}, v12')
        I(f'v_sub_f32 v13, v{101+2*m}, v13')
        I(f'v_cvt_pk_bf16_f32 v12, v12, v13')
        I(f'v_cndmask_b32 v{dst}, v{96+m}, v12, vcc')

def a5_const():
    I(f'v_bfe_u32 v12, v{V_LANE}, 2, 1')
    I(f'v_lshrrev_b32 v13, 5, v{V_LANE}')
    I(f'v_xor_b32 v12, v12, v13')
    I(f'v_and_b32 v13, 1, v{V_LANE}')
    I(f'v_lshl_or_b32 v12, v12, 1, v13')
    I(f'v_mov_b32 v13, 0x3f803f80')
    I(f'v_cmp_eq_u32 vcc, 0, v12')
    I(f'v_cmp_eq_u32 {sp(S_T)}, 1, v12')
    I('s_nop 1')
    I(f'v_cndmask_b32 v{A5+2}, 0, v13, vcc')
    I(f'v_cndmask_b32 v{A5+3}, 0, v13, {sp(S_T)}')

def nt_prefetch(vt):
    I(f's_lshr_b32 s{S_T}, s2, 4')
    I(f's_lshl_b32 s{S_T+1}, s{S_W}, 4')
    I(f's_add_u32 s{S_T}, s{S_T}, s{S_T+1}')
    I(f's_and_b32 s{S_T+1}, s{S_T}, 7')
    I(f's_lshl_b32 s{S_T+1}, s{S_T+1}, 5')
    I(f's_lshr_b32 s{S_T}, s{S_T}, 3')
    I(f's_add_u32 s{S_T}, s{S_T}, s{S_T+1}')
    I(f's_lshl_b32 s{S_T}, s{S_T}, 1')
    I(f's_bfe_u32 s{S_T+1}, s2, 0x10003')
    I(f's_add_u32 s{S_T}, s{S_T}, s{S_T+1}')
    I(f's_mul_i32 s{S_T}, s{S_T}, {NB*128}')
    I(f's_add_u32 s{S_T}, s{S_T}, 0x{WS_NT:x}')
    srd_off(S_NTS, S_WSP, S_WSP + 1, f's{S_T}', NB * 128)
    I(f'v_lshlrev_b32 v{vt}, 4, v{V_LANE}')
    I(f'v_add_u32 v{vt+1}, 4096, v{vt}')
    for k in range(NPF):
        I(f'buffer_load_dwordx4 {vr(96+4*k,4)}, v{vt+(k>>2)}, {sr4(S_NTS)}, 0 offen offset:{(k&3)*1024}' + LSC)

def gen():
    e(f'.globl {KNAME}')
    e('.p2align 8')
    e(f'.type {KNAME},@function')
    L(KNAME)
    I(f's_cmp_ge_u32 s2, {NWG}')
    I('s_cbranch_scc1 L_END')
    I('s_load_dwordx8 s[84:91], s[0:1], 0')
    I('s_load_dwordx4 s[4:7], s[0:1], 32')
    I('s_load_dwordx4 s[8:11], s[0:1], 48')
    I('s_load_dwordx4 s[56:59], s[0:1], 64')
    if PROF:
        I(f'v_mov_b32 v{V_PROF}, 0')
    rstamp(30)
    stamp(0)
    zregs()
    zero_range(CNT, DESCP + 2560 - CNT, X + 2, X)
    I(f'v_lshlrev_b32 v{X+6}, 2, v{V_TID}')
    I(f's_mul_i32 s61, s2, {CH*4}')
    I(f's_mul_i32 s63, s2, {CH}')
    I(f's_sub_u32 s63, {E_EDGES}, s63')
    I(f's_min_u32 s63, s63, {CH}')
    I(f's_lshl_b32 s64, s63, 2')
    I(f'v_add_u32 v{X+8}, 4096, v{X+6}')
    I(f'v_add_u32 v{X+9}, 8192, v{X+6}')
    I(f'v_add_u32 v{X+10}, 12288, v{X+6}')
    I(f'v_lshrrev_b32 v{X+1}, 6, v{V_TID}')
    I(f'v_and_b32 v{V_LANE}, 63, v{V_TID}')
    I(f'v_readfirstlane_b32 s{S_W}, v{X+1}')
    I('s_and_b32 s3, s2, 7')
    I('s_lshl_b32 s3, s3, 5')
    I('s_lshr_b32 s60, s2, 3')
    I('s_add_u32 s3, s3, s60')
    I(f's_mul_i32 s62, s2, {CH*8}')
    I(f's_lshl_b32 s65, s63, 3')
    I(f'v_and_b32 v97, 0x50, v{V_TID}')
    I(f'v_lshlrev_b32 v96, 1, v97')
    I(f'v_or_b32 v97, v97, v96')
    I(f'v_and_b32 v97, 0x60, v97')
    I(f'v_xor_b32 v97, v97, v{X}')
    I(f'v_and_b32 v96, 0x20, v96')
    I(f'v_lshlrev_b32 v98, 4, v{V_LANE}')
    I(f'v_xor_b32 v96, v96, v98')
    I(f's_lshl_b32 s66, s{S_W}, 10')
    I(f'v_and_b32 v101, 0x1fff, v97')
    I(f'v_lshrrev_b32 v98, 3, v{V_TID}')
    I(f'v_bfe_u32 v99, v98, 1, 3')
    I(f'v_and_b32 v100, 7, v{V_TID}')
    I(f'v_xor_b32 v99, v99, v100')
    I(f'v_lshlrev_b32 v99, 4, v99')
    I(f'v_lshl_add_u32 v99, v98, 7, v99')
    I(f's_mul_i32 s60, s3, {NB*128}')
    I(f'v_add_u32 v99, s60, v99')
    I(f'v_add_u32 v96, 16384, v96')
    I('s_waitcnt lgkmcnt(0)')
    I(f's_or_b32 s67, s2, s{S_W}')
    I('s_cmp_lg_u32 s67, 0')
    I('s_cbranch_scc1 L_NOTAG')
    I('s_memrealtime s[68:69]')
    I(f'v_mov_b32 v{X+2}, 0')
    I('s_waitcnt lgkmcnt(0)')
    I('s_or_b32 s68, s68, 1')
    I(f'v_mov_b32 v{X+3}, s68')
    I('s_mov_b64 exec, 1')
    I(f'global_store_dword v{X+2}, v{X+3}, s[56:57] sc1')
    I('s_mov_b64 exec, -1')
    L('L_NOTAG')
    def dst_loads():
        srd_off(S_DST, 90, 91, 's61', 's64')
        for k in range(4):
            I(f'buffer_load_dword v{64+k}, v{X+6 if k == 0 else X+7+k}, {sr4(S_DST)}, 0 offen' + ELD)
    def dma_loads():
        srd(S_WS, 8, 9, 132 * 128)
        I(f's_add_u32 m0, s66, {WG_}')
        srd(S_XS, 84, 85, N_NODES * 128)
        I(f'buffer_load_dwordx4 v97, {sr4(S_WS)}, 0 offen lds')
        I(f's_cmp_lt_u32 s{S_W}, 8')
        I(f's_cselect_b32 s{S_NTS}, s6, s4')
        I(f's_cselect_b32 s{S_NTS+1}, s7, s5')
        I(f's_mov_b32 s{S_NTS+2}, {64*128}')
        I(f's_mov_b32 s{S_NTS+3}, 0x00020000')
        I(f's_add_u32 m0, s66, {WV_}')
        I('s_nop 0')
        I(f'buffer_load_dwordx4 v101, {sr4(S_NTS)}, 0 offen lds')
        I(f's_cmp_lt_u32 s{S_W}, 8')
        I('s_cbranch_scc0 L_D3B')
        I(f's_add_u32 m0, s66, {XOWN}')
        I('s_nop 0')
        I(f'buffer_load_dwordx4 v99, {sr4(S_XS)}, 0 offen lds')
        I('s_branch L_D3C')
        L('L_D3B')
        I(f's_mov_b32 m0, {WG_ + 16384}')
        I('s_nop 0')
        I(f'buffer_load_dwordx4 v96, {sr4(S_WS)}, 0 offen lds')
        L('L_D3C')
    dma_loads()
    dst_loads()
    srd_off(S_SRC, 88, 89, 's61', 's64')
    for k in range(4):
        I(f'buffer_load_dword v{68+k}, v{X+6 if k == 0 else X+7+k}, {sr4(S_SRC)}, 0 offen' + ELD)
    srd_off(S_EA, 86, 87, 's62', 's65')
    I(f'v_lshlrev_b32 v92, 3, v{V_TID}')
    for k in range(1, 4):
        I(f'v_add_u32 v{92+k}, {8192*k}, v92')
    def e_load(k):
        I(f'buffer_load_dwordx2 v[{72+2*k}:{73+2*k}], v{92+k}, {sr4(S_EA)}, 0 offen' + ELD)
    I(f's_mov_b64 {sp(S_DBG)}, s[56:57]')
    I(f's_add_u32 s{S_WSP}, s58, 0x{WSB:x}')
    I(f's_addc_u32 s{S_WSP+1}, s59, 0')
    stamp(1)
    srd(S_OUT, 10, 11, N_NODES * 128)
    I(f's_add_u32 s{S_T}, s61, 0x{WS_RW:x}')
    srd_off(S_RW, S_WSP, S_WSP + 1, f's{S_T}', CH * 4)
    I(f's_add_u32 s{S_T}, s62, 0x{WS_RE:x}')
    srd_off(S_RE, S_WSP, S_WSP + 1, f's{S_T}', CH * 8)
    I(f's_lshl_b32 s{S_T}, s2, 11')
    I(f's_add_u32 s{S_T}, s{S_T}, 0x{WS_TAB:x}')
    srd_off(S_TAB, S_WSP, S_WSP + 1, f's{S_T}', 2048)
    I(f's_mul_i32 s{S_T}, s3, {NB*256}')
    I(f's_add_u32 s{S_T}, s{S_T}, 0x{WS_NT:x}')
    srd_off(S_NTS, S_WSP, S_WSP + 1, f's{S_T}', NB * 256)
    I(f's_add_u32 s{S_NTG}, s{S_WSP}, 0x{WS_NT:x}')
    I(f's_addc_u32 s{S_NTG+1}, s{S_WSP+1}, 0')
    I(f's_or_b32 s{S_NTG+1}, s{S_NTG+1}, 0x80000000')
    I(f's_mov_b32 s{S_NTG+2}, 0x400000')
    I(f's_mov_b32 s{S_NTG+3}, 0x00c00000')
    srd_off(S_DST, S_WSP, S_WSP + 1, '0x%x' % WS_RW, NWG * CH * 4)
    srd_off(S_SRC, S_WSP, S_WSP + 1, '0x%x' % WS_RE, NWG * CH * 8)
    for k in range(4):
        I(f'v_add_u32 v{X+1}, {1024*k}, v{V_TID}')
        I(f'v_cmp_gt_u32 {sp(S_MASK+2*k)}, s63, v{X+1}')
    I(f's_mov_b32 s{S_C}, 0x{f2u(2.0**-KEXP):x}')
    I(f's_mov_b32 s{S_C+1}, 0x{f2u(2.0**-KEXP):x}')
    I(f's_mov_b32 s{S_JB}, 0')
    I(f's_mov_b32 s{S_WID}, 128')
    I(f'v_and_b32 v{V_J4}, 15, v{V_LANE}')
    I(f'v_lshlrev_b32 v{V_J4}, 2, v{V_J4}')
    I(f'v_lshrrev_b32 v{X+1}, 4, v{V_LANE}')
    I(f's_lshl_b32 s{S_T}, s{S_W}, 4')
    I(f'v_add_u32 v{X+1}, s{S_T}, v{X+1}')
    I(f'v_mul_u32_u24 v{V_CB4}, {CH*4}, v{X+1}')
    I(f'v_add_u32 v{V_CB4}, v{V_CB4}, v{V_J4}')
    I(f'v_and_b32 v{V_CH8}, 31, v{V_LANE}')
    I(f'v_lshlrev_b32 v{V_CH8}, 3, v{V_CH8}')
    I(f'v_add_u32 v{V_CHP}, {PT}, v{V_CH8}')
    phase0_addr()
    a5_const()
    I('s_waitcnt vmcnt(8)')
    I('s_barrier')
    stamp(2)
    for k in range(4):
        e_load(k)
    I(f'v_mov_b32 v12, 0')
    I(f'global_load_dword v10, v12, {sp(S_DBG)} sc1')
    if TCH:
        I(f'v_lshlrev_b32 v13, 10, v{V_LANE}')
        I(f'buffer_load_dword v60, v13, {sr4(S_RW)}, 0 offen')
        I(f'buffer_load_dword v61, v13, {sr4(S_RE)}, 0 offen')
        I(f'buffer_load_dword v62, v13, {sr4(S_TAB)}, 0 offen')
        I(f'buffer_load_dword v63, v13, {sr4(S_NTS)}, 0 offen')
    srd_off(S_EA, S_WSP, S_WSP + 1, '0x%x' % WS_TAB, NWG * 2048)
    phase0a()
    I(f's_mov_b32 s{S_T}, -{NB}')
    I(f'v_mov_b32 v{X+1}, 4')
    BN, WD, RK = 28, 32, 36
    for k in range(4):
        I(f's_waitcnt vmcnt({12 + TCH - k})')
        I(f's_mov_b64 exec, {sp(S_MASK+2*k)}')
        if k == 3:
            I('s_cbranch_execz L_B1')
        I(f'v_mul_u32_u24 v{BN+k}, 21400, v{64+k}')
        I(f'v_lshrrev_b32 v{BN+k}, 20, v{BN+k}')
        I(f'v_mad_i32_i24 v{WD+k}, v{BN+k}, s{S_T}, v{64+k}')
        I(f'v_lshlrev_b32 v{BN+k}, 2, v{BN+k}')
        I(f'ds_add_rtn_u32 v{RK+k}, v{BN+k}, v{X+1} offset:{HIST}')
        I(f'v_lshlrev_b32 v{WD+k}, 26, v{WD+k}')
    L('L_B1')
    I('s_mov_b64 exec, -1')
    I(f'v_add_u32 v{X+1}, {NTI}, v{X}')
    stamp(3)
    I(f's_waitcnt lgkmcnt(0)')
    I('s_barrier')
    stamp(4)
    I(f'ds_read_b128 v[112:115], v{X+1}')
    I(f's_cmp_lg_u32 s{S_W}, 0')
    I('s_cbranch_scc1 L_NOSCAN')
    I(f'ds_read_b128 v[96:99], v{X} offset:{HIST}')
    I('s_waitcnt lgkmcnt(0)')
    I('v_add_u32 v101, v96, v97')
    I('v_add_u32 v102, v101, v98')
    I('v_add_u32 v103, v102, v99')
    I('v_mov_b32 v104, v103')
    wave_scan(104)
    I('v_sub_u32 v104, v104, v103')
    I('v_add_u32 v105, v104, v96')
    I('v_add_u32 v106, v104, v101')
    I('v_add_u32 v107, v104, v102')
    I(f'ds_write_b128 v{X}, v[104:107] offset:{HBASE}')
    for k in range(4):
        I(f'v_lshl_or_b32 v{108+k}, v{96+k}, 16, v{104+k}')
    I(f'ds_write_b128 v{X}, v[108:111] offset:{HIST}')
    L('L_NOSCAN')
    I('s_waitcnt lgkmcnt(0)')
    I(f'buffer_store_dwordx4 v[112:115], v{X}, {sr4(S_NTS)}, 0 offen' + SC)
    I(f's_waitcnt vmcnt({6 + TCH})')
    for k in range(4):
        I(f'v_lshl_or_b32 v{WD+k}, v{68+k}, 3, v{WD+k}')
    I('s_barrier')
    stamp(5)
    for k in range(4):
        I(f's_mov_b64 exec, {sp(S_MASK+2*k)}')
        I(f'ds_read_b32 v{BN+k}, v{BN+k} offset:{HBASE}')
    I(f's_waitcnt vmcnt({1 + TCH})')
    I(f'v_readfirstlane_b32 s{S_TAG}, v10')
    for k in range(4):
        I(f's_mov_b64 exec, {sp(S_MASK+2*k)}')
        if k == 3:
            I('s_cbranch_execz L_B2')
        I(f's_waitcnt lgkmcnt({3 - k + 2*k})')
        I(f'v_add_u32 v{RK+k}, v{BN+k}, v{RK+k}')
        I(f'v_add_u32 v{BN+k}, v{RK+k}, v{RK+k}')
        I(f'ds_write_b32 v{RK+k}, v{WD+k} offset:{STGW}')
        I(f'ds_write_b64 v{BN+k}, v[{72+2*k}:{73+2*k}] offset:{STGE}')
    L('L_B2')
    I('s_mov_b64 exec, -1')
    I(f's_mov_b32 s{S_T}, 0x40000')
    L('L_TAGP')
    I(f's_cmp_lg_u32 s{S_TAG}, 0')
    I('s_cbranch_scc1 L_TAGD')
    I(f'v_mov_b32 v12, 0')
    I(f'global_load_dword v10, v12, {sp(S_DBG)} sc1')
    I('s_waitcnt vmcnt(0)')
    I(f'v_readfirstlane_b32 s{S_TAG}, v10')
    I(f's_sub_u32 s{S_T}, s{S_T}, 1')
    I('s_cbranch_scc1 L_END')
    I('s_branch L_TAGP')
    L('L_TAGD')
    I(f'v_add_u32 v{X+2}, 16384, v{X}')
    I(f'v_lshlrev_b32 v12, 3, v{V_LANE}')
    I(f's_mul_i32 s{S_TAG2}, s{S_TAG}, 0x9e3779b1')
    I(f's_and_b32 s{S_TAG2}, s{S_TAG2}, 0x{TAGM:x}')
    I('s_waitcnt lgkmcnt(0)')
    I('s_barrier')
    stamp(6)
    I(f'ds_read_b128 v[64:67], v{X} offset:{STGW}')
    I(f'ds_read_b128 v[68:71], v{X} offset:{STGE}')
    I(f'ds_read_b128 v[72:75], v{X} offset:{STGE+16384}')
    I(f'ds_read_b64 v[92:93], v12 offset:{HIST}')
    I(f'ds_read_b64 v[94:95], v12 offset:{HIST+512}')
    I('s_waitcnt lgkmcnt(4)')
    I(f'buffer_store_dwordx4 v[64:67], v{X}, {sr4(S_RW)}, 0 offen' + SC)
    I('s_waitcnt lgkmcnt(3)')
    I(f'buffer_store_dwordx4 v[68:71], v{X}, {sr4(S_RE)}, 0 offen' + SC)
    I('s_waitcnt lgkmcnt(2)')
    I(f'buffer_store_dwordx4 v[72:75], v{X+2}, {sr4(S_RE)}, 0 offen' + SC)
    I('s_waitcnt lgkmcnt(0)')
    for k in range(4):
        I(f'v_or_b32 v{120+2*k}, s{S_TAG2}, v{92+k}')
        I(f'v_mov_b32 v{121+2*k}, s{S_TAG}')
    pre = opt('pre', 'xbc')
    def piece(c):
        if c == 'x':
            zregs()
            zero_range(EXTRA, 16384, X + 2, X)
            fill_desca()
        elif c == 'b':
            phase0b()
        elif c == 'c':
            phase0c()
    for c in pre:
        piece(c)
    stamp(7)
    I(f'v_lshrrev_b32 v76, 4, v{V_LANE}')
    I(f's_lshl_b32 s{S_T}, s{S_W}, 15')
    I(f's_lshl_b32 s{S_T+1}, s3, 3')
    I(f's_add_u32 s{S_T}, s{S_T}, s{S_T+1}')
    I(f'v_lshlrev_b32 v76, 11, v76')
    I(f'v_add_u32 v76, s{S_T}, v76')
    for r in range(1, 4):
        I(f'v_add_u32 v{76+r}, {8192*r}, v76')
    I(f'v_lshlrev_b32 v60, 4, v{V_LANE}')
    for r in range(4):
        I(f's_mov_b64 {sp(S_MASK+2*r)}, -1')
    I('s_waitcnt vmcnt(0)')
    stamp(8)
    I('s_barrier')
    stamp(9)
    I(f's_cmp_lg_u32 s{S_W}, 0')
    I('s_cbranch_scc1 L_POLL0')
    I(f'buffer_store_dwordx4 v[120:123], v60, {sr4(S_TAB)}, 0 offen' + SC)
    I(f'buffer_store_dwordx4 v[124:127], v60, {sr4(S_TAB)}, 0 offen offset:1024' + SC)
    L('L_POLL0')
    for c in 'xbc':
        if c not in pre:
            piece(c)
    fill_words()
    zregs()
    zero_range(LE, CNT - LE, X + 2, X)
    I(f's_mov_b32 s{S_T}, 0x40000')
    I(f's_mov_b32 s{S_T+1}, 0x{TAGM:x}')
    L('L_POLL')
    for r in range(4):
        I(f's_mov_b64 exec, {sp(S_MASK+2*r)}')
        I(f'buffer_load_dwordx2 {p(64+2*r)}, v{76+r}, {sr4(S_EA)}, 0 offen' + LSC)
    for r in range(4):
        I(f's_waitcnt vmcnt({3-r})')
        I(f's_mov_b64 exec, {sp(S_MASK+2*r)}')
        I(f'v_xor_b32 v{V_TAB+r}, s{S_TAG2}, v{64+2*r}')
        I(f'v_xor_b32 v{65+2*r}, s{S_TAG}, v{65+2*r}')
        I(f'v_and_or_b32 v{65+2*r}, v{V_TAB+r}, s{S_T+1}, v{65+2*r}')
        I(f'v_cmp_ne_u32 {sp(S_MASK+2*r)}, 0, v{65+2*r}')
    I(f's_or_b64 {sp(S_T+2)}, {sp(S_MASK)}, {sp(S_MASK+2)}')
    I(f's_or_b64 {sp(S_T+4)}, {sp(S_MASK+4)}, {sp(S_MASK+6)}')
    I(f's_or_b64 {sp(S_T+2)}, {sp(S_T+2)}, {sp(S_T+4)}')
    I('s_cbranch_scc0 L_POLLED')
    I(f's_sub_u32 s{S_T}, s{S_T}, 1')
    I('s_cbranch_scc1 L_END')
    if opt('sleep', 1):
        I(f's_sleep {opt("sleep", 1)}')
    I('s_branch L_POLL')
    L('L_POLLED')
    I('s_mov_b64 exec, -1')
    if opt('pbar', 0):
        I('s_barrier')
    stamp(10)
    REC = 64
    A4, A8 = X, X + 4
    L('L_PASS')
    I(f'v_add_u32 v{X+8}, s{S_JB}, v{V_J4}')
    I(f'v_add_u32 v{X+9}, 64, v{X+8}')
    I(f'v_add_u32 v{X+10}, s{S_JB}, v{V_CB4}')
    I(f's_cmp_eq_u32 s{S_WID}, 128')
    I(f's_cselect_b64 {sp(S_T+4)}, -1, 0')
    for r in range(4):
        I(f'v_add_u32_sdwa v{A4+r}, v{V_TAB+r}, v{X+10} dst_sel:DWORD dst_unused:UNUSED_PAD src0_sel:WORD_0 src1_sel:DWORD')
        I(f'v_cmp_lt_u32_sdwa {sp(S_MASK+4*r)}, v{X+8}, v{V_TAB+r} src0_sel:DWORD src1_sel:WORD_1')
        if r:
            I(f'v_add_u32 v{A4+r}, {r*4*CH*4}, v{A4+r}')
        I(f'v_cmp_lt_u32_sdwa vcc, v{X+9}, v{V_TAB+r} src0_sel:DWORD src1_sel:WORD_1')
        I(f'v_add_u32 v{A8+r}, v{A4+r}, v{A4+r}')
        I(f's_and_b64 {sp(S_MASK+4*r+2)}, vcc, {sp(S_T+4)}')
        I(f's_mov_b64 exec, {sp(S_MASK+4*r)}')
        I(f'buffer_load_dword v{REC+8*r+2}, v{A4+r}, {sr4(S_DST)}, 0 offen' + LSC)
        I(f'buffer_load_dwordx2 {p(REC+8*r)}, v{A8+r}, {sr4(S_SRC)}, 0 offen' + LSC)
        I('s_mov_b64 exec, -1')
    for r in range(4):
        I(f's_mov_b64 exec, {sp(S_MASK+4*r+2)}')
        I(f'buffer_load_dword v{REC+8*r+6}, v{A4+r}, {sr4(S_DST)}, 0 offen offset:64' + LSC)
        I(f'buffer_load_dwordx2 {p(REC+8*r+4)}, v{A8+r}, {sr4(S_SRC)}, 0 offen offset:128' + LSC)
    I('s_mov_b64 exec, -1')
    if NPFM == 1:
        nt_prefetch(X + 8)
    I(f'v_max3_u32 v{X+8}, v{V_TAB}, v{V_TAB+1}, v{V_TAB+2}')
    I(f'v_max_u32 v{X+8}, v{X+8}, v{V_TAB+3}')
    I(f'v_lshrrev_b32 v{X+8}, 16, v{X+8}')
    I(f's_add_u32 s{S_T}, s{S_JB}, s{S_WID}')
    I(f'v_cmp_lt_u32 vcc, s{S_T}, v{X+8}')
    I(f'v_mov_b32 v{X+8}, 4')
    I(f's_cbranch_vccz L_NOMORE')
    I(f'v_mov_b32 v{X+9}, {MISC}')
    I(f'ds_write_b32 v{X+9}, v{X+8}')
    L('L_NOMORE')
    stamp(11)
    for r in range(4):
        I(f's_waitcnt vmcnt({15 + NPF1 - 2*r})')
        I(f's_mov_b64 exec, {sp(S_MASK+4*r)}')
        I(f'v_lshrrev_b32 v{A4+r}, 24, v{REC+8*r+2}')
        I(f'ds_add_rtn_u32 v{REC+8*r+3}, v{A4+r}, v{X+8} offset:{CNT}')
    for r in range(4):
        I(f's_mov_b64 exec, {sp(S_MASK+4*r+2)}')
        I(f's_cbranch_execz L_C{r}')
        I(f's_waitcnt vmcnt({7 + NPF1 - 2*r})')
        I(f'v_lshrrev_b32 v{A8+r}, 24, v{REC+8*r+6}')
        I(f'ds_add_rtn_u32 v{REC+8*r+7}, v{A8+r}, v{X+8} offset:{CNT}')
        L(f'L_C{r}')
    I('s_mov_b64 exec, -1')
    I(f'v_lshlrev_b32 v{X+8}, 2, v{V_LANE}')
    I(f'v_mov_b32 v{X+9}, {MISC}')
    I(f's_mov_b32 s{S_T+2}, 0x1fff8')
    I('s_waitcnt lgkmcnt(0)')
    I('s_barrier')
    stamp(12)
    if NPFM == 2:
        nt_prefetch(12)
        I(f's_mov_b32 s{S_T+2}, 0x1fff8')
    NG, GS, MI = X + 10, X + 11, X + 12
    I(f'ds_read_b32 v{NG}, v{X+8} offset:{CNT}')
    I(f'ds_read_b32 v{X+9}, v{X+9}')
    I('s_waitcnt lgkmcnt(1)')
    I(f'v_add_u32 v{NG}, 28, v{NG}')
    I(f'v_and_b32 v{NG}, 0xffffffe0, v{NG}')
    I(f'v_mov_b32 v{GS}, v{NG}')
    wave_scan(GS)
    I(f'v_readlane_b32 s{S_T}, v{GS}, 63')
    I(f'v_sub_u32 v{GS}, v{GS}, v{NG}')
    I(f'ds_write_b32 v{X+8}, v{GS} offset:{BASET}')
    for r in range(4):
        I(f's_mov_b64 exec, {sp(S_MASK+4*r)}')
        I(f'ds_read_b32 v{A4+r}, v{A4+r} offset:{BASET}')
    for r in range(4):
        I(f's_mov_b64 exec, {sp(S_MASK+4*r+2)}')
        I(f'ds_read_b32 v{A8+r}, v{A8+r} offset:{BASET}')
    I('s_mov_b64 exec, -1')
    I(f'v_readfirstlane_b32 s{S_MORE}, v{X+9}')
    out.insert(len(out) - 1, '    s_waitcnt lgkmcnt(9)')
    I(f's_lshr_b32 s{S_T}, s{S_T}, 5')
    I(f's_cmp_eq_u32 s{S_WID}, 128')
    I(f's_cselect_b32 s{S_T+1}, {MAXG}, -1')
    I(f's_cmp_gt_u32 s{S_T}, s{S_T+1}')
    I('s_cbranch_scc1 L_OVERFLOW')
    I(f's_add_u32 s{S_L}, s{S_T}, 63')
    I(f's_lshr_b32 s{S_L}, s{S_L}, 6')
    I(f'v_cvt_f32_u32 v{MI}, s{S_L}')
    I(f'v_rcp_f32 v{MI}, v{MI}')
    I(f'v_lshrrev_b32 v{GS}, 5, v{GS}')
    I(f'v_mul_f32 v{MI}, 0x47800000, v{MI}')
    I(f'v_cvt_u32_f32 v{MI}, v{MI}')
    I(f'v_lshrrev_b32 v{NG}, 5, v{NG}')
    I(f'v_add_u32 v{MI}, 2, v{MI}')
    I(f's_waitcnt vmcnt({NPF})')
    for r in range(4):
        I(f's_waitcnt lgkmcnt({7 - r + 2*r})')
        I(f's_mov_b64 exec, {sp(S_MASK+4*r)}')
        I(f'v_add_u32 v{A4+r}, v{A4+r}, v{REC+8*r+3}')
        I(f'v_and_b32 v{REC+8*r+2}, s{S_T+2}, v{REC+8*r+2}')
        I(f'v_add_u32 v{REC+8*r+3}, v{A4+r}, v{A4+r}')
        I(f'ds_write_b32 v{A4+r}, v{REC+8*r+2} offset:{LS}')
        I(f'ds_write_b64 v{REC+8*r+3}, {p(REC+8*r)} offset:{LE}')
    I('s_waitcnt lgkmcnt(8)')
    for r in range(4):
        I(f's_mov_b64 exec, {sp(S_MASK+4*r+2)}')
        I(f's_cbranch_execz L_P{r}')
        I(f'v_add_u32 v{A8+r}, v{A8+r}, v{REC+8*r+7}')
        I(f'v_and_b32 v{REC+8*r+6}, s{S_T+2}, v{REC+8*r+6}')
        I(f'v_add_u32 v{REC+8*r+7}, v{A8+r}, v{A8+r}')
        I(f'ds_write_b32 v{A8+r}, v{REC+8*r+6} offset:{LS}')
        I(f'ds_write_b64 v{REC+8*r+7}, {p(REC+8*r+4)} offset:{LE}')
        L(f'L_P{r}')
    I('s_mov_b64 exec, -1')
    stamp(13)
    SA_, SB_ = X, X + 1
    I(f'v_mul_u32_u24 v{SA_}, v{GS}, v{MI}')
    I(f'v_max_u32 v{SB_}, 1, v{NG}')
    I(f'v_lshrrev_b32 v{SA_}, 16, v{SA_}')
    I(f'v_add3_u32 v{SB_}, v{SB_}, v{GS}, -1')
    I(f'v_mul_u32_u24 v{SB_}, v{SB_}, v{MI}')
    I(f'v_lshlrev_b32 v{X+2}, 3, v{V_LANE}')
    I(f'v_lshrrev_b32 v{SB_}, 16, v{SB_}')
    I(f'v_lshlrev_b32 v{X+3}, 8, v{V_LANE}')
    I(f'ds_write_b64 v{X+2}, {p(SA_)} offset:{NINFO}')
    I(f'v_add_u32 v{X+4}, {ACCN}, v{X+3}')
    I(f's_mov_b32 s{S_T}, s{S_W}')
    I(f's_sub_u32 s{S_T+1}, 0, s{S_L}')
    L('L_DLOOP')
    I(f'v_cmp_lt_u32 vcc, s{S_T}, v{NG}')
    I('s_and_b64 exec, exec, vcc')
    I('s_cbranch_execz L_DEND')
    I(f'v_add_u32 v{X+5}, s{S_T}, v{GS}')
    I(f'v_mul_u32_u24 v{X+6}, v{X+5}, v{MI}')
    I(f'v_lshrrev_b32 v{X+6}, 16, v{X+6}')
    I(f'v_mad_i32_i24 v{X+5}, v{X+6}, s{S_T+1}, v{X+5}')
    I(f'v_cmp_eq_u32 vcc, v{X+6}, v{SA_}')
    I(f'v_lshl_add_u32 v{X+5}, v{X+5}, 6, v{X+6}')
    I(f'v_lshlrev_b32 v{X+6}, 8, v{X+6}')
    I(f'v_lshlrev_b32 v{X+5}, 2, v{X+5}')
    I(f'v_add_u32 v{X+6}, {EXTRA}, v{X+6}')
    I(f'v_add_u32 v{X+7}, {DESCA}, v{X+5}')
    I(f'v_cndmask_b32 v{X+6}, v{X+6}, v{X+4}, vcc')
    I(f'ds_write_b32 v{X+5}, v{X+3} offset:{DESCP}')
    I(f'ds_write_b32 v{X+7}, v{X+6}')
    I(f's_add_u32 s{S_T}, s{S_T}, 16')
    I('s_branch L_DLOOP')
    L('L_DEND')
    I('s_mov_b64 exec, -1')
    I(f's_lshl_b32 s{S_T}, s{S_W}, 2')
    I(f's_lshl_b32 s{S_T+1}, s{S_L}, 5')
    I(f'v_lshrrev_b32 v{X}, 5, v{V_LANE}')
    I(f'v_lshl_add_u32 v{X+1}, v{X}, 1, s{S_T}')
    I(f'v_mul_u32_u24 v{V_PS0}, s{S_T+1}, v{X+1}')
    I(f'v_lshlrev_b32 v{V_PD}, 2, v{X+1}')
    I(f'v_add_u32 v{V_PS1}, s{S_T+1}, v{V_PS0}')
    I(f'v_add_u32 v{V_PD}, {DESCP}, v{V_PD}')
    I(f'v_bfe_u32 v{X}, v{V_LANE}, 2, 1')
    I(f'v_and_b32 v{X+1}, 1, v{V_LANE}')
    I(f'v_lshl_or_b32 v{X}, v{X}, 1, v{X+1}')
    I(f'v_add_u32 v{X}, s{S_T}, v{X}')
    I(f's_lshl_b32 s{S_T+1}, s{S_L}, 6')
    I(f'v_mul_u32_u24 v{V_PE}, s{S_T+1}, v{X}')
    I(f'v_bfe_u32 v{X}, v{V_LANE}, 3, 2')
    I(f'v_bfe_u32 v{X+1}, v{V_LANE}, 1, 1')
    I(f'v_lshl_or_b32 v{X}, v{X}, 1, v{X+1}')
    I(f'v_lshl_add_u32 v{V_PE}, v{X}, 3, v{V_PE}')
    I(f'v_add_u32 v{V_PE}, {LE}, v{V_PE}')
    I(f's_mov_b32 s{S_CNT}, s{S_L}')
    I('s_waitcnt lgkmcnt(0)')
    I('s_barrier')
    stamp(14)
    I(f's_cmp_eq_u32 s{S_L}, 0')
    I('s_cbranch_scc1 L_FOLD')
    lg = Lg()
    if NPF:
        I('s_waitcnt vmcnt(0)')
    s_reads(lg, 0)
    lg.op('dP', f'ds_read_b64 {p(V_VAP)}, v{V_PD}')
    lg.op('dA', f'ds_read_b64 {p(V_VAA[0])}, v{V_PD} offset:{DESCA-DESCP}')
    lg.op('e', f'ds_read_b64 {p(A5)}, v{V_PE}')
    lg.need('S0', 'S1', 'S2', 'S3')
    for n in range(2):
        for i in range(16):
            I(gload(n, i))
    s_reads(lg, 1)
    lg.need('dP', 'dA')
    I(f'v_add_u32 v{V_VAP}, v{V_VAP}, v{V_CHP}')
    I(f'v_add_u32 v{V_VAP+1}, v{V_VAP+1}, v{V_CHP}')
    I(f'v_add_u32 v{V_VAA[0]}, v{V_VAA[0]}, v{V_CH8}')
    I(f'v_add_u32 v{V_VAA[0]+1}, v{V_VAA[0]+1}, v{V_CH8}')
    lg.op('P0a', f'ds_read_b32 v{B5[0]+2}, v{V_VAP}')
    lg.op('P0b', f'ds_read_b32 v{B5[0]+3}, v{V_VAP+1}')
    lg.op('P1a', f'ds_read_b32 v{B5[1]+2}, v{V_VAP} offset:4')
    lg.op('P1b', f'ds_read_b32 v{B5[1]+3}, v{V_VAP+1} offset:4')
    I(f's_cmp_eq_u32 s{S_CNT}, 1')
    I(f's_cselect_b64 {sp(S_LDX)}, 0, {LDXV}')
    I('s_waitcnt lgkmcnt(0)')
    lg.q = []
    if opt('prio', 3):
        I('s_setprio 3')
    stamp(15)
    rstamp(28)
    half(lg, 0, 0, 0, False)
    state0 = list(lg.q)
    def step(par, uo):
        half(lg, 1, par, uo)
        I(f's_sub_u32 s{S_CNT}, s{S_CNT}, 1')
        I(f's_cmp_eq_u32 s{S_CNT}, 0')
        I(f's_cbranch_scc1 L_FIN{par}')
        I(f's_cmp_eq_u32 s{S_CNT}, 1')
        I(f's_cselect_b64 {sp(S_LDX)}, 0, {LDXV}')
        prio(f'{par}')
        half(lg, 0, par ^ 1, uo + 1)
    def loop_body():
        step(0, 0)
        step(1, 1)
        I(f'v_add_u32 v{V_PS0}, 64, v{V_PS0}')
        I(f'v_add_u32 v{V_PS1}, 64, v{V_PS1}')
        I(f'v_add_u32 v{V_PE}, 128, v{V_PE}')
        I(f'v_add_u32 v{V_PD}, 512, v{V_PD}')
        I('s_branch L_LOOP')
    mark = len(out)
    loop_body()
    del out[mark:]
    qb = list(lg.q)
    n = min(len(qb), len(state0))
    assert qb[len(qb)-n:] == state0[len(state0)-n:], (state0, qb)
    lg.q = list(qb if len(qb) >= len(state0) else state0)
    e('.p2align 3')
    L('L_LOOP')
    loop_body()
    assert lg.q == qb, (lg.q, qb)
    print('loop entry queue', state0, 'back edge queue', qb, file=sys.stderr)
    for pr in range(2):
        L(f'L_FIN{pr}')
        for op in tail_ops(1):
            I(op)
        I(f'ds_write_b64 v{V_VAA[pr]}, {p(V_MA)}')
        I(f'ds_write_b64 v{V_VAA[pr]+1}, {p(V_MB)}')
        if pr == 0:
            I('s_branch L_FOLD')
    L('L_FOLD')
    stamp(16)
    I(f'v_lshrrev_b32 v{X}, 3, v{V_TID}')
    I(f'v_and_b32 v{X+1}, 7, v{V_TID}')
    I(f'v_lshlrev_b32 v{X+6}, 3, v{X+1}')
    I(f'v_lshlrev_b32 v{X+1}, 5, v{X+1}')
    I(f'v_lshl_add_u32 v{X+2}, v{X}, 8, v{X+1}')
    I(f'v_add_u32 v{X+2}, {ACCN}, v{X+2}')
    I(f'v_add_u32 v{X+1}, {EXTRA}, v{X+1}')
    I(f'v_lshlrev_b32 v{X+3}, 3, v{X}')
    I(f's_mul_i32 s{S_T+4}, s3, {NB*128}')
    I(f'v_lshl_add_u32 v{X+6}, v{X}, 7, v{X+6}')
    I(f'v_add_u32 v{X+6}, s{S_T+4}, v{X+6}')
    I(f'v_mov_b32 v{X+7}, 0')
    I('s_waitcnt vmcnt(0) lgkmcnt(0)')
    I('s_barrier')
    stamp(17)
    rstamp(29)
    if PROF:
        I(f'v_writelane_b32 v{V_PROF}, s{S_L}, 27')
    I(f'v_cmp_gt_u32 vcc, {NB*8}, v{V_TID}')
    I(f's_and_saveexec_b64 {sp(S_EX)}, vcc')
    I('s_cbranch_execz L_FDONE')
    I(f'ds_read_b64 {p(X+4)}, v{X+3} offset:{NINFO}')
    I(f'ds_read_b128 v[64:67], v{X+2}')
    I(f'ds_read_b128 v[68:71], v{X+2} offset:16')
    I(f's_mov_b64 {sp(S_T)}, exec')
    I('s_waitcnt lgkmcnt(0)')
    L('L_FLOOP')
    I(f'v_cmp_lt_u32 vcc, v{X+4}, v{X+5}')
    I('s_and_b64 exec, exec, vcc')
    I('s_cbranch_execz L_FLEND')
    I(f'v_add_u32 v{X+4}, 1, v{X+4}')
    I(f'v_lshl_add_u32 v{X+7}, v{X+4}, 8, v{X+1}')
    I(f'ds_read_b128 v[72:75], v{X+7}')
    I(f'ds_read_b128 v[76:79], v{X+7} offset:16')
    I('s_waitcnt lgkmcnt(0)')
    for k in range(8):
        I(f'v_add_f32 v{64+k}, v{64+k}, v{72+k}')
    I('s_branch L_FLOOP')
    L('L_FLEND')
    I(f's_mov_b64 exec, {sp(S_T)}')
    I(f's_cmp_lg_u32 s{S_MORE}, 0')
    I('s_cbranch_scc1 L_WB')
    I(f's_mov_b32 s{S_T+2}, 0x{f2u(2.0**-(SV+KEXP)):x}')
    I(f's_mov_b32 s{S_T+3}, 0x{f2u(-LOG2E):x}')
    for k in range(8):
        I(f'v_mul_f32 v{64+k}, s{S_T+2}, v{64+k}')
    for k in range(8):
        I(f'v_mul_f32 v{72+k}, s{S_T+3}, v{64+k}')
    for k in range(8):
        I(f'v_exp_f32 v{72+k}, v{72+k}')
    for k in range(8):
        I(f'v_add_f32 v{72+k}, 1.0, v{72+k}')
    for k in range(8):
        I(f'v_rcp_f32 v{72+k}, v{72+k}')
    for k in range(8):
        I(f'v_mul_f32 v{64+k}, v{64+k}, v{72+k}')
    I('v_cvt_pk_bf16_f32 v80, v64, v66')
    I('v_cvt_pk_bf16_f32 v81, v68, v70')
    I('v_cvt_pk_bf16_f32 v82, v65, v67')
    I('v_cvt_pk_bf16_f32 v83, v69, v71')
    I(f'buffer_store_dwordx2 v[80:81], v{X+6}, {sr4(S_OUT)}, 0 offen')
    I(f'buffer_store_dwordx2 v[82:83], v{X+6}, {sr4(S_OUT)}, 0 offen offset:64')
    stamp(18)
    prof_store()
    diag_end()
    I('s_endpgm')
    L('L_WB')
    I(f'ds_write_b128 v{X+2}, v[64:67]')
    I(f'ds_write_b128 v{X+2}, v[68:71] offset:16')
    L('L_FDONE')
    I('s_mov_b64 exec, -1')
    I(f's_cmp_eq_u32 s{S_MORE}, 0')
    I('s_cbranch_scc1 L_QUIT')
    I(f's_add_u32 s{S_JB}, s{S_JB}, s{S_WID}')
    I('s_branch L_REFILL')
    L('L_OVERFLOW')
    I(f's_mov_b32 s{S_WID}, 64')
    L('L_REFILL')
    I('s_waitcnt vmcnt(0) lgkmcnt(0)')
    I('s_barrier')
    fill_zero()
    fill_words()
    I('s_waitcnt lgkmcnt(0)')
    I('s_barrier')
    I('s_branch L_PASS')
    L('L_QUIT')
    prof_store()
    L('L_END')
    I('s_endpgm')

hdr = open('standalone__edge_featured_mpnn_egc__graph.s.ref').read().split('\n')
for line in hdr:
    if line.startswith('; Override'):
        break
    e(line)
e(f'; @launch grid=({NWG},1,1) block=(1024,1,1) lds={LDS_BYTES}')
e('.amdgcn_target "amdgcn-amd-amdhsa--gfx950"')
e('.text')
gen()
e('.section .rodata,"a"')
e('.p2align 6')
e(f'.amdhsa_kernel {KNAME}')
e('  .amdhsa_next_free_vgpr 128')
e('  .amdhsa_next_free_sgpr 102')
e('  .amdhsa_accum_offset 128')
e('  .amdhsa_group_segment_fixed_size 0')
e('  .amdhsa_kernarg_size 80')
e('  .amdhsa_user_sgpr_count 2')
e('  .amdhsa_user_sgpr_kernarg_segment_ptr 1')
e('  .amdhsa_system_sgpr_workgroup_id_x 1')
e('  .amdhsa_float_denorm_mode_32 3')
e('.end_amdhsa_kernel')
open(sys.argv[1], 'w').write('\n'.join(x for x in out if x is not None) + '\n')
```

```python
import sys, struct

OPT = dict(a.split('=') for a in sys.argv[2:] if '=' in a)
def opt(name, default):
    return type(default)(OPT.get(name, default))

KNAME = 'standalone__edge_featured_mpnn_egc__graph_kernel'
N_NODES = 12500
E_EDGES = 800000
NB = 49
NWG = 256
CH = 3136
WS_RW = 0
WS_RE = 0x00400000
WS_TAB = 0x00B00000
WS_NT = 0x00C00000
WS_PROF = 0x01000000
KEXP = 31
SV = 30
LOG2E = 1.4426950408889634
SC = opt('sc', 'sc1')
SC = (' ' + SC.replace('+', ' ')) if SC != 'none' else ''
LSC = opt('lsc', 'sc1')
LSC = (' ' + LSC.replace('+', ' ')) if LSC != 'none' else ''
GSC = opt('gsc', 'sc1')
GSC = (' ' + GSC.replace('+', ' ')) if GSC != 'none' else ''
ELD = opt('eld', 'none')
ELD = (' ' + ELD.replace('+', ' ')) if ELD != 'none' else ''

def f2u(x):
    return struct.unpack('<I', struct.pack('<f', x))[0]

out = []
def e(s=''):
    out.append(s)
def I(s):
    out.append('    ' + s)
def L(name):
    out.append(name + ':')
def vr(a, n):
    return f'v[{a}:{a+n-1}]' if n > 1 else f'v{a}'
def sr4(a):
    return f's[{a}:{a+3}]'
def sp(a):
    return f's[{a}:{a+1}]'
def p(r):
    return f'v[{r}:{r+1}]'

def srd(d, lo, hi, nrec):
    I(f's_mov_b32 s{d}, s{lo}')
    I(f's_mov_b32 s{d+1}, s{hi}')
    I(f's_mov_b32 s{d+2}, {nrec}')
    I(f's_mov_b32 s{d+3}, 0x00020000')

def srd_off(d, lo, hi, off, nrec):
    I(f's_add_u32 s{d}, s{lo}, {off}')
    I(f's_addc_u32 s{d+1}, s{hi}, 0')
    I(f's_mov_b32 s{d+2}, {nrec}')
    I(f's_mov_b32 s{d+3}, 0x00020000')

def wave_scan(v):
    for sh in (1, 2, 4, 8):
        I('s_nop 1')
        I(f'v_add_u32_dpp v{v}, v{v}, v{v} row_shr:{sh} row_mask:0xf bank_mask:0xf')
    I('s_nop 1')
    I(f'v_add_u32_dpp v{v}, v{v}, v{v} row_bcast:15 row_mask:0xa bank_mask:0xf')
    I('s_nop 1')
    I(f'v_add_u32_dpp v{v}, v{v}, v{v} row_bcast:31 row_mask:0xc bank_mask:0xf')
    I('s_nop 1')

LS = 0
ZR = 18688
LE = 18688
CNT = 56064
MISC = 56320
BASET = 56576
NINFO = 56832
HIST = 57344
HBASE = 58368
DESCP = 59392
EXTRA = 67840
DESCA = 84224
PT = 86784
ACCN = 99328
WRAW = 111872
WG_, WV_, WU_ = WRAW, WRAW + 17408, WRAW + 25600
XOWN = WRAW + 33792
LDS_BYTES = XOWN + 8192
STGW = 0
STGE = CH * 4
NTI = EXTRA
MAXG = 576
assert STGE + CH * 8 <= CNT

V_TID, V_LANE = 0, 1
V_MA, V_MB = 2, 4
V_VAA = (6, 8)
V_VAP = 10
V_PS0, V_PS1, V_PE, V_PD, V_CH8, V_CHP = 12, 13, 14, 15, 16, 17
V_PROF = 18
V_TAB = 20
V_J4, V_CB4 = 24, 25
V_X = 26
V_T01D, V_T01N, V_T23D, V_T23N = 40, 42, 44, 46
B5 = (48, 52)
A5 = 56
V_TT = (60, 62)
G = (64, 80)
Z = 96
S = 112

S_XS, S_WS, S_DST, S_SRC, S_EA, S_RW, S_RE, S_TAB, S_NTS, S_NTG, S_OUT = 12, 16, 20, 24, 28, 32, 36, 40, 44, 48, 52
S_MASK = 56
S_W, S_L, S_CNT, S_JB, S_WID, S_MORE = 72, 73, 74, 75, 76, 77
S_C = 78
S_EX = 80
S_LDX = 82
S_T = 84
S_WSP = 94
S_DBG = 96
S_TAG, S_TAG2 = 100, 101
TAGM = 0xC003C003
TAGL = MISC + 64

NT2 = 2 if opt('touch', 0) else 0
LDXV = 0 if opt('noload', 0) else -1
NPFM = opt('npf', 0)
NPF = 7 if NPFM else 0
NPF1 = 7 if NPFM == 1 else 0
WSB = opt('wsb', 0) << 20
TCH = 4 if opt('touch', 0) else 0
PROF = opt('prof', 0)
DIAG = opt('diag', -1)
def diag_end():
    if DIAG < 0:
        return
    I('s_memrealtime s[98:99]')
    I('s_waitcnt lgkmcnt(0)')
    I('v_readlane_b32 s92, v18, 1')
    I('v_readlane_b32 s93, v18, 0')
    I('s_nop 3')
    I('s_sub_u32 s92, s92, s93')
    I('s_lshl_b32 s92, s92, 2')
    I('s_mov_b32 s93, s98')
    lbl = f'L_DG{len(out)}'
    L(lbl)
    I('s_memrealtime s[98:99]')
    I('s_waitcnt lgkmcnt(0)')
    I('s_sub_u32 s98, s98, s93')
    I('s_cmp_lt_u32 s98, s92')
    I(f's_cbranch_scc1 {lbl}')
def stamp(i):
    if DIAG >= 0 and i in (0, DIAG):
        I('s_memrealtime s[98:99]')
        I('s_waitcnt lgkmcnt(0)')
        if i == 0:
            I('v_writelane_b32 v18, s98, 0')
        if i == DIAG:
            I('v_writelane_b32 v18, s98, 1')
    if not PROF:
        return
    I('s_memtime s[98:99]')
    I('s_waitcnt lgkmcnt(0)')
    I(f'v_writelane_b32 v{V_PROF}, s98, {i}')
def rstamp(i):
    if not PROF:
        return
    I('s_memrealtime s[98:99]')
    I('s_waitcnt lgkmcnt(0)')
    I(f'v_writelane_b32 v{V_PROF}, s98, {i}')
def prof_store():
    if not PROF:
        return
    rstamp(31)
    if PROF == 3:
        I(f's_lshl_b32 s98, s2, 4')
        I(f's_add_u32 s98, s98, s{S_W}')
        I(f's_cmp_lg_u32 s98, {opt("pwave", 80)}')
        I('s_cbranch_scc1 L_END')
        I('s_mov_b64 exec, -1')
        I(f'v_readlane_b32 s98, v{V_PROF}, 0')
        I(f'v_readlane_b32 s99, v{V_PROF}, 30')
        I(f'v_readlane_b32 s{S_T}, v{V_PROF}, 31')
        I('s_nop 3')
        I(f's_sub_u32 s{S_T}, s{S_T}, s99')
        I(f's_add_u32 s{S_T}, s{S_T}, s98')
        I(f'v_writelane_b32 v{V_PROF}, s{S_T}, 9')
        I(f'v_subrev_u32 v{V_PROF}, s98, v{V_PROF}')
        I(f'v_mbcnt_lo_u32_b32 v{V_PROF+1}, -1, 0')
        I(f'v_lshlrev_b32 v{V_PROF+1}, 2, v{V_PROF+1}')
        I(f'v_add_u32 v{V_PROF+1}, -8, v{V_PROF+1}')
        I('s_mov_b64 exec, 0x3fff8')
        I(f'global_store_dword v{V_PROF+1}, v{V_PROF}, {sp(S_DBG)}')
        return
    I('s_mov_b64 exec, 0xffffffff')
    I(f's_add_u32 s{S_T}, s{S_WSP}, 0x{WS_PROF:x}')
    I(f's_addc_u32 s{S_T+1}, s{S_WSP+1}, 0')
    I(f'v_mbcnt_lo_u32_b32 v{V_PROF+1}, -1, 0')
    I(f'v_lshlrev_b32 v{V_PROF+1}, 2, v{V_PROF+1}')
    I(f's_lshl_b32 s98, s2, 4')
    I(f's_add_u32 s98, s98, s{S_W}')
    I(f's_lshl_b32 s98, s98, 7')
    I(f'v_add_u32 v{V_PROF+1}, s98, v{V_PROF+1}')
    I(f'global_store_dword v{V_PROF+1}, v{V_PROF}, {sp(S_T)}')

class Lg:
    def __init__(self):
        self.q = []
    def op(self, tag, text):
        I(text)
        self.q.append(tag)
    def need(self, *tags):
        idx = -1
        for t in tags:
            for i in range(len(self.q) - 1, -1, -1):
                if self.q[i] == t:
                    idx = max(idx, i)
                    break
        if idx < 0:
            return
        n = len(self.q) - 1 - idx
        assert n <= 15, (tags, n)
        I(f's_waitcnt lgkmcnt({n})')
        self.q = self.q[idx + 1:]

X = V_X

def zero_range(a, nbytes, zr, ad):
    k = 0
    base = a if a + nbytes <= 65536 + 16384 and a < 65536 - 3 * 16384 else None
    off = 0
    areg = ad
    if a + ((nbytes - 1) // 16384) * 16384 > 65535:
        I(f'v_add_u32 v{X+1}, {a}, v{ad}')
        areg = X + 1
        a0 = 0
    else:
        a0 = a
    while off < nbytes:
        n = min(16384, nbytes - off)
        if n < 16384:
            I(f'v_cmp_gt_u32 vcc, {n // 16}, v{V_TID}')
            I(f's_and_saveexec_b64 {sp(S_EX)}, vcc')
        I(f'ds_write_b128 v{areg}, v[{zr}:{zr+3}] offset:{a0 + off}')
        if n < 16384:
            I(f's_mov_b64 exec, {sp(S_EX)}')
        off += n

def zregs():
    I(f'v_lshlrev_b32 v{X}, 4, v{V_TID}')
    for k in range(4):
        I(f'v_mov_b32 v{X+2+k}, 0')

def fill_desca():
    I(f'v_and_b32 v{X+6}, 15, v{V_TID}')
    I(f'v_lshlrev_b32 v{X+6}, 10, v{X+6}')
    I(f'v_add_u32 v{X+6}, {EXTRA}, v{X+6}')
    for k in range(1, 4):
        I(f'v_add_u32 v{X+6+k}, {256*k}, v{X+6}')
    I(f'v_add_u32 v{X+1}, {DESCA}, v{X}')
    I(f'v_cmp_gt_u32 vcc, 160, v{V_TID}')
    I(f's_and_saveexec_b64 {sp(S_EX)}, vcc')
    I(f'ds_write_b128 v{X+1}, v[{X+6}:{X+9}]')
    I(f's_mov_b64 exec, {sp(S_EX)}')

def fill_zero():
    zregs()
    zero_range(ZR, 65536, X + 2, X)
    fill_desca()

def fill_words():
    I(f'v_lshlrev_b32 v{X}, 4, v{V_TID}')
    I(f'v_and_b32 v{X+2}, 7, v{V_TID}')
    I(f'v_lshlrev_b32 v{X+2}, 5, v{X+2}')
    I(f'v_add_u32 v{X+2}, {N_NODES*8}, v{X+2}')
    for k in range(1, 4):
        I(f'v_add_u32 v{X+2+k}, {8*k}, v{X+2}')
    I(f'ds_write_b128 v{X}, v[{X+2}:{X+5}] offset:{LS}')
    I(f'v_cmp_gt_u32 vcc, 144, v{V_TID}')
    I(f's_and_saveexec_b64 {sp(S_EX)}, vcc')
    I(f'ds_write_b128 v{X}, v[{X+2}:{X+5}] offset:{LS+16384}')
    I(f's_mov_b64 exec, {sp(S_EX)}')

def tail_ops(n):
    return [f'v_rcp_f32 v{V_T01D}, v{V_T01D}',
            f'v_rcp_f32 v{V_T01D+1}, v{V_T01D+1}',
            f'v_rcp_f32 v{V_T23D}, v{V_T23D}',
            f'v_rcp_f32 v{V_T23D+1}, v{V_T23D+1}',
            f'v_fmac_f32 v{V_MA+n}, v{V_T01N}, v{V_T01D}',
            f'v_fmac_f32 v{V_MB+n}, v{V_T01N+1}, v{V_T01D+1}',
            f'v_fmac_f32 v{V_MA+n}, v{V_T23N}, v{V_T23D}',
            f'v_fmac_f32 v{V_MB+n}, v{V_T23N+1}, v{V_T23D+1}']

def gload(n, i):
    return f'buffer_load_dword v{G[n]+i}, v{S + (i & 1) * 8 + (i >> 1)}, {sr4(S_NTG)}, 0 offen offset:{4*n}' + GSC

def s_reads(lg, uo):
    lg.op('S0', f'ds_read_b128 {vr(S,4)}, v{V_PS0} offset:{uo*32}')
    lg.op('S1', f'ds_read_b128 {vr(S+4,4)}, v{V_PS0} offset:{uo*32+16}')
    lg.op('S2', f'ds_read_b128 {vr(S+8,4)}, v{V_PS1} offset:{uo*32}')
    lg.op('S3', f'ds_read_b128 {vr(S+12,4)}, v{V_PS1} offset:{uo*32+16}')

def half(lg, n, par, uo, with_tail=True):
    g = G[n]
    I('s_waitcnt vmcnt(16)')
    if n == 0:
        lg.need('P0a', 'P0b', 'e')
    else:
        lg.need('P1a', 'P1b')
    I(f'v_mfma_f32_32x32x16_bf16 {vr(Z,16)}, {vr(A5,4)}, {vr(B5[n],4)}, {vr(g,16)}')
    t = tail_ops(n ^ 1)
    va_prev, va_cur, va_nxt = V_VAA[par ^ 1], V_VAA[par], V_VAA[par ^ 1]
    if with_tail:
        for op in t[:4]:
            I(op)
        if n == 1:
            lg.need('Ra', 'Rb')
        for op in t[4:]:
            I(op)
    else:
        I('s_nop 7')
    if n == 0:
        if with_tail:
            lg.op('Wa', f'ds_write_b64 v{va_prev}, {p(V_MA)}')
            lg.op('Wb', f'ds_write_b64 v{va_prev+1}, {p(V_MB)}')
        lg.op('Ra', f'ds_read_b64 {p(V_MA)}, v{va_cur}')
        lg.op('Rb', f'ds_read_b64 {p(V_MB)}, v{va_cur+1}')
        lg.op('dP', f'ds_read_b64 {p(V_VAP)}, v{V_PD} offset:{(uo+1)*256}')
        lg.op('dA', f'ds_read_b64 {p(va_nxt)}, v{V_PD} offset:{(uo+1)*256 + DESCA - DESCP}')
    else:
        lg.op('e', f'ds_read_b64 {p(A5)}, v{V_PE} offset:{(uo+1)*64}')
        lg.op('P1a', f'ds_read_b32 v{B5[1]+2}, v{V_VAP} offset:4')
        lg.op('P1b', f'ds_read_b32 v{B5[1]+3}, v{V_VAP+1} offset:4')
    sh = [f'v_lshlrev_b32 v{g+i}, 16, v{g+i}' for i in range(16)]
    ex = [f'v_exp_f32 v{Z+i}, v{Z+i} clamp' for i in range(16)]
    for op in sh[:4]:
        I(op)
    for i in range(12):
        I(ex[i])
        I(sh[4 + i])
        if n == 0 and i == 7:
            lg.need('dP', 'dA')
            I(f'v_add_u32 v{V_VAP}, v{V_VAP}, v{V_CHP}')
            I(f'v_add_u32 v{V_VAP+1}, v{V_VAP+1}, v{V_CHP}')
            I(f'v_add_u32 v{va_nxt}, v{va_nxt}, v{V_CH8}')
            I(f'v_add_u32 v{va_nxt+1}, v{va_nxt+1}, v{V_CH8}')
            lg.op('P0a', f'ds_read_b32 v{B5[0]+2}, v{V_VAP}')
            lg.op('P0b', f'ds_read_b32 v{B5[0]+3}, v{V_VAP+1}')
    for op in ex[12:]:
        I(op)
    for i in range(0, 16, 2):
        I(f'v_pk_add_f32 {p(Z+i)}, {p(Z+i)}, {sp(S_C)}')
    def T(k): return f'v_pk_mul_f32 {p(V_TT[k&1])}, {p(g+4*k)}, {p(Z+4*k+2)}'
    def DD(k): return f'v_pk_mul_f32 {p(Z+4*k+2)}, {p(Z+4*k)}, {p(Z+4*k+2)}'
    def NN(k): return f'v_pk_fma_f32 {p(Z+4*k)}, {p(g+4*k+2)}, {p(Z+4*k)}, {p(V_TT[k&1])}'
    for k0 in (0, 2):
        for op in (T(k0), T(k0 + 1), DD(k0), DD(k0 + 1), NN(k0), NN(k0 + 1)):
            I(op)
        if n == 0 and k0 == 0:
            lg.need('S0', 'S1', 'S2', 'S3')
        I(f's_mov_b64 exec, {sp(S_LDX)}')
        for i in range(4 * k0, 4 * k0 + 8):
            I(gload(n, i))
        I('s_mov_b64 exec, -1')
    if n == 1:
        s_reads(lg, uo + 2)
    I(f'v_pk_mul_f32 {p(V_T01N)}, {p(Z)}, {p(Z+6)}')
    I(f'v_pk_mul_f32 {p(V_T23N)}, {p(Z+8)}, {p(Z+14)}')
    I(f'v_pk_mul_f32 {p(V_T01D)}, {p(Z+2)}, {p(Z+6)}')
    I(f'v_pk_mul_f32 {p(V_T23D)}, {p(Z+10)}, {p(Z+14)}')
    I(f'v_pk_fma_f32 {p(V_T01N)}, {p(Z+4)}, {p(Z+2)}, {p(V_T01N)}')
    I(f'v_pk_fma_f32 {p(V_T23N)}, {p(Z+12)}, {p(Z+10)}, {p(V_T23N)}')

def prio(tag):
    pr = opt('prio', 3)
    if not pr:
        return
    th = {1: (4, 2, 1), 2: (5, 3, 1), 3: (3, 2, 1), 4: (6, 4, 2)}[pr]
    for lvl, t in zip((2, 1, 0), th):
        I(f's_cmp_eq_u32 s{S_CNT}, {t}')
        I(f's_cbranch_scc0 L_PR{tag}_{lvl}')
        I(f's_setprio {lvl}')
        L(f'L_PR{tag}_{lvl}')

def split_hilo(a, b, t0, t1):
    I(f'v_cvt_pk_bf16_f32 v{t0}, v{a}, v{b}')
    I(f'v_lshlrev_b32 v{t1}, 16, v{t0}')
    I(f'v_and_b32 v{t0}, 0xffff0000, v{t0}')
    I(f'v_sub_f32 v{a}, v{a}, v{t1}')
    I(f'v_sub_f32 v{b}, v{b}, v{t0}')
    I(f'v_cvt_pk_bf16_f32 v{a}, v{t1}, v{a}')
    I(f'v_cvt_pk_bf16_f32 v{b}, v{t0}, v{b}')

V_AA, V_AB, V_AD, V_AP = 6, 7, 8, 9
SA, SB, SD = 80, 96, 112

def phase0_addr():
    I(f's_and_b32 s{S_T}, s{S_W}, 3')
    I(f's_lshr_b32 s{S_T+1}, s{S_W}, 2')
    I(f'v_and_b32 v12, 15, v{V_LANE}')
    I(f'v_lshrrev_b32 v13, 4, v{V_LANE}')
    I(f'v_bfe_u32 v14, v{V_LANE}, 1, 3')
    I(f'v_xor_b32 v14, v14, v13')
    I(f'v_lshlrev_b32 v14, 4, v14')
    I(f'v_lshl_or_b32 v14, v12, 7, v14')
    I(f's_lshl_b32 s{S_T+2}, s{S_T}, 11')
    I(f'v_add_u32 v{V_AA}, s{S_T+2}, v14')
    I(f'v_bfe_u32 v14, v{V_LANE}, 2, 2')
    I(f'v_lshl_add_u32 v14, v13, 3, v14')
    I(f'v_lshlrev_b32 v14, 7, v14')
    I(f'v_and_b32 v15, 3, v{V_LANE}')
    I(f'v_lshl_add_u32 v14, v15, 3, v14')
    I(f's_lshl_b32 s{S_T+2}, s{S_T+1}, 5')
    I(f'v_or_b32 v14, s{S_T+2}, v14')
    I(f'v_and_b32 v15, 24, v{V_LANE}')
    I(f'v_lshlrev_b32 v15, 2, v15')
    I(f'v_xor_b32 v14, v14, v15')
    I(f'v_add_u32 v{V_AB}, {WRAW}, v14')
    I(f's_lshl_b32 s{S_T+2}, s{S_T}, 12')
    I(f'v_lshlrev_b32 v13, 10, v13')
    I(f'v_add_u32 v13, s{S_T+2}, v13')
    I(f's_lshl_b32 s{S_T+2}, s{S_T+1}, 6')
    I(f's_add_u32 s{S_T+2}, s{S_T+2}, {NTI}')
    I(f'v_lshl_add_u32 v{V_AD}, v12, 2, v13')
    I(f'v_add_u32 v{V_AD}, s{S_T+2}, v{V_AD}')
    I(f's_and_b32 s{S_T+2}, s{S_T+1}, 1')
    I(f's_lshl_b32 s{S_T+2}, s{S_T+2}, 7')
    I(f's_lshr_b32 s{S_T+3}, s{S_T+1}, 1')
    I(f's_lshl_b32 s{S_T+3}, s{S_T+3}, 2')
    I(f's_add_u32 s{S_T+2}, s{S_T+2}, s{S_T+3}')
    I(f's_add_u32 s{S_T+2}, s{S_T+2}, {PT}')
    I(f'v_lshl_add_u32 v{V_AP}, v12, 3, v13')
    I(f'v_add_u32 v{V_AP}, s{S_T+2}, v{V_AP}')

def b_reads(dst, off):
    for sg in range(2):
        for pp in range(2):
            I(f'ds_read_b64_tr_b16 {vr(dst+4*sg+2*pp,2)}, v{V_AB} offset:{off+sg*4096+pp*512}')

def mm16(d, b):
    I(f'v_mfma_f32_16x16x32_bf16 {vr(d,4)}, {vr(SA,4)}, {vr(b,4)}, 0')
    I(f'v_mfma_f32_16x16x32_bf16 {vr(d,4)}, {vr(SA+4,4)}, {vr(b+4,4)}, {vr(d,4)}')

def phase0a():
    I(f'v_add_u32 v12, {XOWN}, v{V_AA}')
    I(f'v_xor_b32 v13, 64, v{V_AA}')
    I(f'v_add_u32 v13, {XOWN}, v13')
    I(f'ds_read_b128 {vr(SA,4)}, v12')
    I(f'ds_read_b128 {vr(SA+4,4)}, v13')
    b_reads(SB, 8192)
    b_reads(SB + 8, WV_ - WRAW)
    I(f's_mov_b32 s{S_T+4}, 0x{f2u(-LOG2E):x}')
    I(f's_mov_b32 s{S_T+5}, 0x{f2u(2.0**SV):x}')
    I(f's_mov_b32 s{S_T+6}, 0x7fffffff')
    I(f's_mov_b32 s{S_T+7}, 0xffff0000')
    I('s_waitcnt lgkmcnt(4)')
    mm16(SD, SB)
    I('s_waitcnt lgkmcnt(0)')
    mm16(SD + 4, SB + 8)
    I('s_nop 4')
    for i in range(4):
        I(f'v_mul_f32 v{SD+i}, s{S_T+4}, v{SD+i}')
    for i in range(4):
        I(f'v_and_b32 v{SD+8+i}, s{S_T+6}, v{SD+i}')
    for i in range(4):
        I(f'v_mul_f32 v{SD+4+i}, s{S_T+5}, v{SD+4+i}')
        I(f'v_add_u32 v{SD+8+i}, 0x8000, v{SD+8+i}')
    I(f'v_cvt_pk_bf16_f32 v{SD+4}, v{SD+4}, v{SD+5}')
    I(f'v_cvt_pk_bf16_f32 v{SD+6}, v{SD+6}, v{SD+7}')
    I(f'v_lshrrev_b32 v{SD+5}, 16, v{SD+4}')
    I(f'v_lshrrev_b32 v{SD+7}, 16, v{SD+6}')
    I(f'v_and_b32 v{SD+4}, 0xffff, v{SD+4}')
    I(f'v_and_b32 v{SD+6}, 0xffff, v{SD+6}')
    for i in range(4):
        I(f'v_sub_u32 v{SD+8+i}, v{SD+8+i}, v{SD+4+i} clamp')
    for i in range(4):
        I(f'v_and_or_b32 v{SD+8+i}, v{SD+8+i}, s{S_T+7}, v{SD+4+i}')
    for i in range(4):
        I(f'v_bfi_b32 v{SD+i}, s{S_T+6}, v{SD+8+i}, v{SD+i}')
        I(f'ds_write_b32 v{V_AD}, v{SD+i} offset:{i*256}')

def phase0b():
    b_reads(SB, 0)
    b_reads(SB + 8, WU_ - WRAW)
    I(f's_mov_b32 s{S_T+4}, 0x{f2u(-LOG2E):x}')
    I(f's_mov_b32 s{S_T+5}, 0x{f2u(2.0**(SV+KEXP)):x}')
    I(f'v_mov_b32 v13, 0x{f2u(-float(KEXP)):x}')
    I(f's_and_b32 s{S_T+6}, s{S_W}, 3')
    I('s_waitcnt lgkmcnt(4)')
    mm16(SD, SB)
    I('s_waitcnt lgkmcnt(0)')
    mm16(SD + 4, SB + 8)
    I('s_nop 4')
    for i in range(4):
        I(f'v_fma_f32 v{SD+i}, v{SD+i}, s{S_T+4}, v13')
    split_hilo(SD, SD + 1, 12, 13)
    split_hilo(SD + 2, SD + 3, 12, 13)
    for i in range(4):
        I(f'v_mul_f32 v{SD+4+i}, s{S_T+5}, v{SD+4+i}')
    I(f's_cmp_eq_u32 s{S_T+6}, 3')
    I(f's_cselect_b64 exec, 0xffff, -1')
    I(f'ds_write_b32 v{V_AP}, v{SD}')
    I(f'ds_write_b32 v{V_AP}, v{SD+4} offset:{ACCN-PT}')
    I(f's_cselect_b64 exec, 0, -1')
    for i in range(1, 4):
        I(f'ds_write_b32 v{V_AP}, v{SD+i} offset:{i*256}')
        I(f'ds_write_b32 v{V_AP}, v{SD+4+i} offset:{ACCN-PT+i*256}')
    I('s_mov_b64 exec, -1')

def phase0c():
    I(f'v_bfe_u32 v13, v{V_LANE}, 2, 2')
    I(f'v_lshlrev_b32 v13, 7, v13')
    I(f'v_bfe_u32 v15, v{V_LANE}, 4, 1')
    I(f'v_lshl_add_u32 v13, v15, 5, v13')
    I(f'v_and_b32 v15, 3, v{V_LANE}')
    I(f'v_lshl_add_u32 v13, v15, 3, v13')
    I(f'v_and_b32 v15, 8, v{V_LANE}')
    I(f'v_lshlrev_b32 v15, 2, v15')
    I(f'v_xor_b32 v13, v13, v15')
    I(f'v_add_u32 v13, {WG_ + 16384}, v13')
    I(f'ds_read_b64_tr_b16 v[96:97], v13')
    I(f'ds_read_b64_tr_b16 v[98:99], v13 offset:64')
    I(f's_mov_b32 s{S_T+4}, 0x{f2u(-LOG2E):x}')
    I(f'v_cmp_lt_u32 vcc, 31, v{V_LANE}')
    I('s_waitcnt lgkmcnt(0)')
    for m in range(4):
        I(f'v_lshlrev_b32 v{100+2*m}, 16, v{96+m}')
        I(f'v_and_b32 v{101+2*m}, 0xffff0000, v{96+m}')
    for j in range(8):
        I(f'v_mul_f32 v{100+j}, s{S_T+4}, v{100+j}')
    for m in range(4):
        dst = B5[m >> 1] + (m & 1)
        I(f'v_cvt_pk_bf16_f32 v{96+m}, v{100+2*m}, v{101+2*m}')
        I(f'v_lshlrev_b32 v12, 16, v{96+m}')
        I(f'v_and_b32 v13, 0xffff0000, v{96+m}')
        I(f'v_sub_f32 v12, v{100+2*m}, v12')
        I(f'v_sub_f32 v13, v{101+2*m}, v13')
        I(f'v_cvt_pk_bf16_f32 v12, v12, v13')
        I(f'v_cndmask_b32 v{dst}, v{96+m}, v12, vcc')

def a5_const():
    I(f'v_bfe_u32 v12, v{V_LANE}, 2, 1')
    I(f'v_lshrrev_b32 v13, 5, v{V_LANE}')
    I(f'v_xor_b32 v12, v12, v13')
    I(f'v_and_b32 v13, 1, v{V_LANE}')
    I(f'v_lshl_or_b32 v12, v12, 1, v13')
    I(f'v_mov_b32 v13, 0x3f803f80')
    I(f'v_cmp_eq_u32 vcc, 0, v12')
    I(f'v_cmp_eq_u32 {sp(S_T)}, 1, v12')
    I('s_nop 1')
    I(f'v_cndmask_b32 v{A5+2}, 0, v13, vcc')
    I(f'v_cndmask_b32 v{A5+3}, 0, v13, {sp(S_T)}')

def nt_prefetch(vt):
    I(f's_lshr_b32 s{S_T}, s2, 4')
    I(f's_lshl_b32 s{S_T+1}, s{S_W}, 4')
    I(f's_add_u32 s{S_T}, s{S_T}, s{S_T+1}')
    I(f's_and_b32 s{S_T+1}, s{S_T}, 7')
    I(f's_lshl_b32 s{S_T+1}, s{S_T+1}, 5')
    I(f's_lshr_b32 s{S_T}, s{S_T}, 3')
    I(f's_add_u32 s{S_T}, s{S_T}, s{S_T+1}')
    I(f's_lshl_b32 s{S_T}, s{S_T}, 1')
    I(f's_bfe_u32 s{S_T+1}, s2, 0x10003')
    I(f's_add_u32 s{S_T}, s{S_T}, s{S_T+1}')
    I(f's_mul_i32 s{S_T}, s{S_T}, {NB*128}')
    I(f's_add_u32 s{S_T}, s{S_T}, 0x{WS_NT:x}')
    srd_off(S_NTS, S_WSP, S_WSP + 1, f's{S_T}', NB * 128)
    I(f'v_lshlrev_b32 v{vt}, 4, v{V_LANE}')
    I(f'v_add_u32 v{vt+1}, 4096, v{vt}')
    for k in range(NPF):
        I(f'buffer_load_dwordx4 {vr(96+4*k,4)}, v{vt+(k>>2)}, {sr4(S_NTS)}, 0 offen offset:{(k&3)*1024}' + LSC)

def gen():
    e(f'.globl {KNAME}')
    e('.p2align 8')
    e(f'.type {KNAME},@function')
    L(KNAME)
    I(f's_cmp_ge_u32 s2, {NWG}')
    I('s_cbranch_scc1 L_END')
    I('s_load_dwordx8 s[84:91], s[0:1], 0')
    I('s_load_dwordx4 s[4:7], s[0:1], 32')
    I('s_load_dwordx4 s[8:11], s[0:1], 48')
    I('s_load_dwordx4 s[56:59], s[0:1], 64')
    if PROF:
        I(f'v_mov_b32 v{V_PROF}, 0')
    rstamp(30)
    stamp(0)
    zregs()
    zero_range(CNT, DESCP + 2560 - CNT, X + 2, X)
    I(f'v_lshlrev_b32 v{X+6}, 2, v{V_TID}')
    I(f's_mul_i32 s61, s2, {CH*4}')
    I(f's_mul_i32 s63, s2, {CH}')
    I(f's_sub_u32 s63, {E_EDGES}, s63')
    I(f's_min_u32 s63, s63, {CH}')
    I(f's_lshl_b32 s64, s63, 2')
    I(f'v_add_u32 v{X+8}, 4096, v{X+6}')
    I(f'v_add_u32 v{X+9}, 8192, v{X+6}')
    I(f'v_add_u32 v{X+10}, 12288, v{X+6}')
    I(f'v_lshrrev_b32 v{X+1}, 6, v{V_TID}')
    I(f'v_and_b32 v{V_LANE}, 63, v{V_TID}')
    I(f'v_readfirstlane_b32 s{S_W}, v{X+1}')
    I('s_and_b32 s3, s2, 7')
    I('s_lshl_b32 s3, s3, 5')
    I('s_lshr_b32 s60, s2, 3')
    I('s_add_u32 s3, s3, s60')
    I(f's_mul_i32 s62, s2, {CH*8}')
    I(f's_lshl_b32 s65, s63, 3')
    I(f'v_and_b32 v97, 0x50, v{V_TID}')
    I(f'v_lshlrev_b32 v96, 1, v97')
    I(f'v_or_b32 v97, v97, v96')
    I(f'v_and_b32 v97, 0x60, v97')
    I(f'v_xor_b32 v97, v97, v{X}')
    I(f'v_and_b32 v96, 0x20, v96')
    I(f'v_lshlrev_b32 v98, 4, v{V_LANE}')
    I(f'v_xor_b32 v96, v96, v98')
    I(f's_lshl_b32 s66, s{S_W}, 10')
    I(f'v_and_b32 v101, 0x1fff, v97')
    I(f'v_lshrrev_b32 v98, 3, v{V_TID}')
    I(f'v_bfe_u32 v99, v98, 1, 3')
    I(f'v_and_b32 v100, 7, v{V_TID}')
    I(f'v_xor_b32 v99, v99, v100')
    I(f'v_lshlrev_b32 v99, 4, v99')
    I(f'v_lshl_add_u32 v99, v98, 7, v99')
    I(f's_mul_i32 s60, s3, {NB*128}')
    I(f'v_add_u32 v99, s60, v99')
    I(f'v_add_u32 v96, 16384, v96')
    I('s_waitcnt lgkmcnt(0)')
    I(f's_or_b32 s67, s2, s{S_W}')
    I('s_cmp_lg_u32 s67, 0')
    I('s_cbranch_scc1 L_NOTAG')
    I('s_memrealtime s[68:69]')
    I(f'v_mov_b32 v{X+2}, 0')
    I('s_waitcnt lgkmcnt(0)')
    I('s_or_b32 s68, s68, 1')
    I(f'v_mov_b32 v{X+3}, s68')
    I('s_mov_b64 exec, 1')
    I(f'global_store_dword v{X+2}, v{X+3}, s[56:57] sc1')
    I('s_mov_b64 exec, -1')
    L('L_NOTAG')
    def dst_loads():
        srd_off(S_DST, 90, 91, 's61', 's64')
        for k in range(4):
            I(f'buffer_load_dword v{64+k}, v{X+6 if k == 0 else X+7+k}, {sr4(S_DST)}, 0 offen' + ELD)
    def dma_loads():
        srd(S_WS, 8, 9, 132 * 128)
        I(f's_add_u32 m0, s66, {WG_}')
        srd(S_XS, 84, 85, N_NODES * 128)
        I(f'buffer_load_dwordx4 v97, {sr4(S_WS)}, 0 offen lds')
        I(f's_cmp_lt_u32 s{S_W}, 8')
        I(f's_cselect_b32 s{S_NTS}, s6, s4')
        I(f's_cselect_b32 s{S_NTS+1}, s7, s5')
        I(f's_mov_b32 s{S_NTS+2}, {64*128}')
        I(f's_mov_b32 s{S_NTS+3}, 0x00020000')
        I(f's_add_u32 m0, s66, {WV_}')
        I('s_nop 0')
        I(f'buffer_load_dwordx4 v101, {sr4(S_NTS)}, 0 offen lds')
        I(f's_cmp_lt_u32 s{S_W}, 8')
        I('s_cbranch_scc0 L_D3B')
        I(f's_add_u32 m0, s66, {XOWN}')
        I('s_nop 0')
        I(f'buffer_load_dwordx4 v99, {sr4(S_XS)}, 0 offen lds')
        I('s_branch L_D3C')
        L('L_D3B')
        I(f's_mov_b32 m0, {WG_ + 16384}')
        I('s_nop 0')
        I(f'buffer_load_dwordx4 v96, {sr4(S_WS)}, 0 offen lds')
        L('L_D3C')
    if opt('t0', 0):
        I(f'v_and_b32 v60, 15, v{V_LANE}')
        I(f'v_lshlrev_b32 v60, 20, v60')
        I(f'v_and_b32 v61, 1, v{V_LANE}')
        I(f'v_lshlrev_b32 v61, 20, v61')
        I(f'global_load_dword v62, v60, s[58:59]')
        I(f'global_load_dword v63, v61, s[10:11]')
    ORDER = opt('order', 0)
    if ORDER == 0:
        dma_loads()
    dst_loads()
    srd_off(S_SRC, 88, 89, 's61', 's64')
    for k in range(4):
        I(f'buffer_load_dword v{68+k}, v{X+6 if k == 0 else X+7+k}, {sr4(S_SRC)}, 0 offen' + ELD)
    srd_off(S_EA, 86, 87, 's62', 's65')
    I(f'v_lshlrev_b32 v92, 3, v{V_TID}')
    for k in range(1, 4):
        I(f'v_add_u32 v{92+k}, {8192*k}, v92')
    def e_load(k):
        I(f'buffer_load_dwordx2 v[{72+2*k}:{73+2*k}], v{92+k}, {sr4(S_EA)}, 0 offen' + ELD)
    NEE = opt('nee', 4)
    for k in range(NEE):
        e_load(k)
    if ORDER == 1:
        dma_loads()
    I(f's_mov_b64 {sp(S_DBG)}, s[56:57]')
    I(f's_add_u32 s{S_WSP}, s58, 0x{WSB:x}')
    I(f's_addc_u32 s{S_WSP+1}, s59, 0')
    stamp(1)
    srd(S_OUT, 10, 11, N_NODES * 128)
    I(f's_add_u32 s{S_T}, s61, 0x{WS_RW:x}')
    srd_off(S_RW, S_WSP, S_WSP + 1, f's{S_T}', CH * 4)
    I(f's_add_u32 s{S_T}, s62, 0x{WS_RE:x}')
    srd_off(S_RE, S_WSP, S_WSP + 1, f's{S_T}', CH * 8)
    I(f's_lshl_b32 s{S_T}, s2, 11')
    I(f's_add_u32 s{S_T}, s{S_T}, 0x{WS_TAB:x}')
    srd_off(S_TAB, S_WSP, S_WSP + 1, f's{S_T}', 2048)
    I(f's_mul_i32 s{S_T}, s3, {NB*256}')
    I(f's_add_u32 s{S_T}, s{S_T}, 0x{WS_NT:x}')
    srd_off(S_NTS, S_WSP, S_WSP + 1, f's{S_T}', NB * 256)
    I(f's_add_u32 s{S_NTG}, s{S_WSP}, 0x{WS_NT:x}')
    I(f's_addc_u32 s{S_NTG+1}, s{S_WSP+1}, 0')
    I(f's_or_b32 s{S_NTG+1}, s{S_NTG+1}, 0x80000000')
    I(f's_mov_b32 s{S_NTG+2}, 0x400000')
    I(f's_mov_b32 s{S_NTG+3}, 0x00c00000')
    srd_off(S_DST, S_WSP, S_WSP + 1, '0x%x' % WS_RW, NWG * CH * 4)
    srd_off(S_SRC, S_WSP, S_WSP + 1, '0x%x' % WS_RE, NWG * CH * 8)
    for k in range(4):
        I(f'v_add_u32 v{X+1}, {1024*k}, v{V_TID}')
        I(f'v_cmp_gt_u32 {sp(S_MASK+2*k)}, s63, v{X+1}')
    I(f's_mov_b32 s{S_C}, 0x{f2u(2.0**-KEXP):x}')
    I(f's_mov_b32 s{S_C+1}, 0x{f2u(2.0**-KEXP):x}')
    I(f's_mov_b32 s{S_JB}, 0')
    I(f's_mov_b32 s{S_WID}, 128')
    I(f'v_and_b32 v{V_J4}, 15, v{V_LANE}')
    I(f'v_lshlrev_b32 v{V_J4}, 2, v{V_J4}')
    I(f'v_lshrrev_b32 v{X+1}, 4, v{V_LANE}')
    I(f's_lshl_b32 s{S_T}, s{S_W}, 4')
    I(f'v_add_u32 v{X+1}, s{S_T}, v{X+1}')
    I(f'v_mul_u32_u24 v{V_CB4}, {CH*4}, v{X+1}')
    I(f'v_add_u32 v{V_CB4}, v{V_CB4}, v{V_J4}')
    I(f'v_and_b32 v{V_CH8}, 31, v{V_LANE}')
    I(f'v_lshlrev_b32 v{V_CH8}, 3, v{V_CH8}')
    I(f'v_add_u32 v{V_CHP}, {PT}, v{V_CH8}')
    phase0_addr()
    a5_const()
    I(f's_waitcnt vmcnt({8 + NEE if ORDER == 0 else 0})')
    I('s_barrier')
    stamp(2)
    for k in range(NEE, 4):
        e_load(k)
    I(f'v_mov_b32 v12, 0')
    I(f'global_load_dword v10, v12, {sp(S_DBG)} sc1')
    if TCH:
        I(f'v_lshlrev_b32 v13, 10, v{V_LANE}')
        I(f'buffer_load_dword v60, v13, {sr4(S_RW)}, 0 offen')
        I(f'buffer_load_dword v61, v13, {sr4(S_RE)}, 0 offen')
        I(f'buffer_load_dword v62, v13, {sr4(S_TAB)}, 0 offen')
        I(f'buffer_load_dword v63, v13, {sr4(S_NTS)}, 0 offen')
    srd_off(S_EA, S_WSP, S_WSP + 1, '0x%x' % WS_TAB, NWG * 2048)
    phase0a()
    I(f's_mov_b32 s{S_T}, -{NB}')
    I(f'v_mov_b32 v{X+1}, 4')
    BN, WD, RK = 28, 32, 36
    for k in range(4):
        I(f's_waitcnt vmcnt({12 + TCH - k})')
        I(f's_mov_b64 exec, {sp(S_MASK+2*k)}')
        if k == 3:
            I('s_cbranch_execz L_B1')
        I(f'v_mul_u32_u24 v{BN+k}, 21400, v{64+k}')
        I(f'v_lshrrev_b32 v{BN+k}, 20, v{BN+k}')
        I(f'v_mad_i32_i24 v{WD+k}, v{BN+k}, s{S_T}, v{64+k}')
        I(f'v_lshlrev_b32 v{BN+k}, 2, v{BN+k}')
        I(f'ds_add_rtn_u32 v{RK+k}, v{BN+k}, v{X+1} offset:{HIST}')
        I(f'v_lshlrev_b32 v{WD+k}, 26, v{WD+k}')
    L('L_B1')
    I('s_mov_b64 exec, -1')
    I(f'v_add_u32 v{X+1}, {NTI}, v{X}')
    stamp(3)
    I(f's_waitcnt lgkmcnt(0)')
    I('s_barrier')
    stamp(4)
    I(f'ds_read_b128 v[112:115], v{X+1}')
    I(f's_cmp_lg_u32 s{S_W}, 0')
    I('s_cbranch_scc1 L_NOSCAN')
    I(f'ds_read_b128 v[96:99], v{X} offset:{HIST}')
    I('s_waitcnt lgkmcnt(0)')
    I('v_add_u32 v101, v96, v97')
    I('v_add_u32 v102, v101, v98')
    I('v_add_u32 v103, v102, v99')
    I('v_mov_b32 v104, v103')
    wave_scan(104)
    I('v_sub_u32 v104, v104, v103')
    I('v_add_u32 v105, v104, v96')
    I('v_add_u32 v106, v104, v101')
    I('v_add_u32 v107, v104, v102')
    I(f'ds_write_b128 v{X}, v[104:107] offset:{HBASE}')
    for k in range(4):
        I(f'v_lshl_or_b32 v{108+k}, v{96+k}, 16, v{104+k}')
    I(f'ds_write_b128 v{X}, v[108:111] offset:{HIST}')
    L('L_NOSCAN')
    I('s_waitcnt lgkmcnt(0)')
    I(f'buffer_store_dwordx4 v[112:115], v{X}, {sr4(S_NTS)}, 0 offen' + SC)
    I(f's_waitcnt vmcnt({6 + TCH})')
    for k in range(4):
        I(f'v_lshl_or_b32 v{WD+k}, v{68+k}, 3, v{WD+k}')
    I('s_barrier')
    stamp(5)
    for k in range(4):
        I(f's_mov_b64 exec, {sp(S_MASK+2*k)}')
        I(f'ds_read_b32 v{BN+k}, v{BN+k} offset:{HBASE}')
    I(f's_waitcnt vmcnt({1 + TCH})')
    I(f'v_readfirstlane_b32 s{S_TAG}, v10')
    for k in range(4):
        I(f's_mov_b64 exec, {sp(S_MASK+2*k)}')
        if k == 3:
            I('s_cbranch_execz L_B2')
        I(f's_waitcnt lgkmcnt({3 - k + 2*k})')
        I(f'v_add_u32 v{RK+k}, v{BN+k}, v{RK+k}')
        I(f'v_add_u32 v{BN+k}, v{RK+k}, v{RK+k}')
        I(f'ds_write_b32 v{RK+k}, v{WD+k} offset:{STGW}')
        I(f'ds_write_b64 v{BN+k}, v[{72+2*k}:{73+2*k}] offset:{STGE}')
    L('L_B2')
    I('s_mov_b64 exec, -1')
    I(f's_mov_b32 s{S_T}, 0x40000')
    L('L_TAGP')
    I(f's_cmp_lg_u32 s{S_TAG}, 0')
    I('s_cbranch_scc1 L_TAGD')
    I(f'v_mov_b32 v12, 0')
    I(f'global_load_dword v10, v12, {sp(S_DBG)} sc1')
    I('s_waitcnt vmcnt(0)')
    I(f'v_readfirstlane_b32 s{S_TAG}, v10')
    I(f's_sub_u32 s{S_T}, s{S_T}, 1')
    I('s_cbranch_scc1 L_END')
    I('s_branch L_TAGP')
    L('L_TAGD')
    I(f'v_add_u32 v{X+2}, 16384, v{X}')
    I(f'v_lshlrev_b32 v12, 3, v{V_LANE}')
    I(f's_mul_i32 s{S_TAG2}, s{S_TAG}, 0x9e3779b1')
    I(f's_and_b32 s{S_TAG2}, s{S_TAG2}, 0x{TAGM:x}')
    I('s_waitcnt lgkmcnt(0)')
    I('s_barrier')
    stamp(6)
    I(f'ds_read_b128 v[64:67], v{X} offset:{STGW}')
    I(f'ds_read_b128 v[68:71], v{X} offset:{STGE}')
    I(f'ds_read_b128 v[72:75], v{X} offset:{STGE+16384}')
    I(f'ds_read_b64 v[92:93], v12 offset:{HIST}')
    I(f'ds_read_b64 v[94:95], v12 offset:{HIST+512}')
    I('s_waitcnt lgkmcnt(4)')
    I(f'buffer_store_dwordx4 v[64:67], v{X}, {sr4(S_RW)}, 0 offen' + SC)
    I('s_waitcnt lgkmcnt(3)')
    I(f'buffer_store_dwordx4 v[68:71], v{X}, {sr4(S_RE)}, 0 offen' + SC)
    I('s_waitcnt lgkmcnt(2)')
    I(f'buffer_store_dwordx4 v[72:75], v{X+2}, {sr4(S_RE)}, 0 offen' + SC)
    I('s_waitcnt lgkmcnt(0)')
    for k in range(4):
        I(f'v_or_b32 v{120+2*k}, s{S_TAG2}, v{92+k}')
        I(f'v_mov_b32 v{121+2*k}, s{S_TAG}')
    pre = opt('pre', 'xbc')
    def piece(c):
        if c == 'x':
            zregs()
            zero_range(EXTRA, 16384, X + 2, X)
            fill_desca()
        elif c == 'b':
            phase0b()
        elif c == 'c':
            phase0c()
    for c in pre:
        piece(c)
    stamp(7)
    I(f'v_lshrrev_b32 v76, 4, v{V_LANE}')
    I(f's_lshl_b32 s{S_T}, s{S_W}, 15')
    I(f's_lshl_b32 s{S_T+1}, s3, 3')
    I(f's_add_u32 s{S_T}, s{S_T}, s{S_T+1}')
    I(f'v_lshlrev_b32 v76, 11, v76')
    I(f'v_add_u32 v76, s{S_T}, v76')
    for r in range(1, 4):
        I(f'v_add_u32 v{76+r}, {8192*r}, v76')
    I(f'v_lshlrev_b32 v60, 4, v{V_LANE}')
    for r in range(4):
        I(f's_mov_b64 {sp(S_MASK+2*r)}, -1')
    I('s_waitcnt vmcnt(0)')
    stamp(8)
    I('s_barrier')
    stamp(9)
    I(f's_cmp_lg_u32 s{S_W}, 0')
    I('s_cbranch_scc1 L_POLL0')
    I(f'buffer_store_dwordx4 v[120:123], v60, {sr4(S_TAB)}, 0 offen' + SC)
    I(f'buffer_store_dwordx4 v[124:127], v60, {sr4(S_TAB)}, 0 offen offset:1024' + SC)
    L('L_POLL0')
    for c in 'xbc':
        if c not in pre:
            piece(c)
    fill_words()
    zregs()
    zero_range(LE, CNT - LE, X + 2, X)
    I(f's_mov_b32 s{S_T}, 0x40000')
    I(f's_mov_b32 s{S_T+1}, 0x{TAGM:x}')
    L('L_POLL')
    for r in range(4):
        I(f's_mov_b64 exec, {sp(S_MASK+2*r)}')
        I(f'buffer_load_dwordx2 {p(64+2*r)}, v{76+r}, {sr4(S_EA)}, 0 offen' + LSC)
    for r in range(4):
        I(f's_waitcnt vmcnt({3-r})')
        I(f's_mov_b64 exec, {sp(S_MASK+2*r)}')
        I(f'v_xor_b32 v{V_TAB+r}, s{S_TAG2}, v{64+2*r}')
        I(f'v_xor_b32 v{65+2*r}, s{S_TAG}, v{65+2*r}')
        I(f'v_and_or_b32 v{65+2*r}, v{V_TAB+r}, s{S_T+1}, v{65+2*r}')
        I(f'v_cmp_ne_u32 {sp(S_MASK+2*r)}, 0, v{65+2*r}')
    I(f's_or_b64 {sp(S_T+2)}, {sp(S_MASK)}, {sp(S_MASK+2)}')
    I(f's_or_b64 {sp(S_T+4)}, {sp(S_MASK+4)}, {sp(S_MASK+6)}')
    I(f's_or_b64 {sp(S_T+2)}, {sp(S_T+2)}, {sp(S_T+4)}')
    I('s_cbranch_scc0 L_POLLED')
    I(f's_sub_u32 s{S_T}, s{S_T}, 1')
    I('s_cbranch_scc1 L_END')
    if opt('sleep', 1):
        I(f's_sleep {opt("sleep", 1)}')
    I('s_branch L_POLL')
    L('L_POLLED')
    I('s_mov_b64 exec, -1')
    if opt('pbar', 0):
        I('s_barrier')
    stamp(10)
    REC = 64
    A4, A8 = X, X + 4
    L('L_PASS')
    I(f'v_add_u32 v{X+8}, s{S_JB}, v{V_J4}')
    I(f'v_add_u32 v{X+9}, 64, v{X+8}')
    I(f'v_add_u32 v{X+10}, s{S_JB}, v{V_CB4}')
    I(f's_cmp_eq_u32 s{S_WID}, 128')
    I(f's_cselect_b64 {sp(S_T+4)}, -1, 0')
    for r in range(4):
        I(f'v_add_u32_sdwa v{A4+r}, v{V_TAB+r}, v{X+10} dst_sel:DWORD dst_unused:UNUSED_PAD src0_sel:WORD_0 src1_sel:DWORD')
        I(f'v_cmp_lt_u32_sdwa {sp(S_MASK+4*r)}, v{X+8}, v{V_TAB+r} src0_sel:DWORD src1_sel:WORD_1')
        if r:
            I(f'v_add_u32 v{A4+r}, {r*4*CH*4}, v{A4+r}')
        I(f'v_cmp_lt_u32_sdwa vcc, v{X+9}, v{V_TAB+r} src0_sel:DWORD src1_sel:WORD_1')
        I(f'v_add_u32 v{A8+r}, v{A4+r}, v{A4+r}')
        I(f's_and_b64 {sp(S_MASK+4*r+2)}, vcc, {sp(S_T+4)}')
        I(f's_mov_b64 exec, {sp(S_MASK+4*r)}')
        I(f'buffer_load_dword v{REC+8*r+2}, v{A4+r}, {sr4(S_DST)}, 0 offen' + LSC)
        I(f'buffer_load_dwordx2 {p(REC+8*r)}, v{A8+r}, {sr4(S_SRC)}, 0 offen' + LSC)
        I('s_mov_b64 exec, -1')
    for r in range(4):
        I(f's_mov_b64 exec, {sp(S_MASK+4*r+2)}')
        I(f'buffer_load_dword v{REC+8*r+6}, v{A4+r}, {sr4(S_DST)}, 0 offen offset:64' + LSC)
        I(f'buffer_load_dwordx2 {p(REC+8*r+4)}, v{A8+r}, {sr4(S_SRC)}, 0 offen offset:128' + LSC)
    I('s_mov_b64 exec, -1')
    if NPFM == 1:
        nt_prefetch(X + 8)
    I(f'v_max3_u32 v{X+8}, v{V_TAB}, v{V_TAB+1}, v{V_TAB+2}')
    I(f'v_max_u32 v{X+8}, v{X+8}, v{V_TAB+3}')
    I(f'v_lshrrev_b32 v{X+8}, 16, v{X+8}')
    I(f's_add_u32 s{S_T}, s{S_JB}, s{S_WID}')
    I(f'v_cmp_lt_u32 vcc, s{S_T}, v{X+8}')
    I(f'v_mov_b32 v{X+8}, 4')
    I(f's_cbranch_vccz L_NOMORE')
    I(f'v_mov_b32 v{X+9}, {MISC}')
    I(f'ds_write_b32 v{X+9}, v{X+8}')
    L('L_NOMORE')
    stamp(11)
    for r in range(4):
        I(f's_waitcnt vmcnt({15 + NPF1 - 2*r})')
        I(f's_mov_b64 exec, {sp(S_MASK+4*r)}')
        I(f'v_lshrrev_b32 v{A4+r}, 24, v{REC+8*r+2}')
        I(f'ds_add_rtn_u32 v{REC+8*r+3}, v{A4+r}, v{X+8} offset:{CNT}')
    for r in range(4):
        I(f's_mov_b64 exec, {sp(S_MASK+4*r+2)}')
        I(f's_cbranch_execz L_C{r}')
        I(f's_waitcnt vmcnt({7 + NPF1 - 2*r})')
        I(f'v_lshrrev_b32 v{A8+r}, 24, v{REC+8*r+6}')
        I(f'ds_add_rtn_u32 v{REC+8*r+7}, v{A8+r}, v{X+8} offset:{CNT}')
        L(f'L_C{r}')
    I('s_mov_b64 exec, -1')
    I(f'v_lshlrev_b32 v{X+8}, 2, v{V_LANE}')
    I(f'v_mov_b32 v{X+9}, {MISC}')
    I(f's_mov_b32 s{S_T+2}, 0x1fff8')
    I('s_waitcnt lgkmcnt(0)')
    I('s_barrier')
    stamp(12)
    if NPFM == 2:
        nt_prefetch(12)
        I(f's_mov_b32 s{S_T+2}, 0x1fff8')
    NG, GS, MI = X + 10, X + 11, X + 12
    I(f'ds_read_b32 v{NG}, v{X+8} offset:{CNT}')
    I(f'ds_read_b32 v{X+9}, v{X+9}')
    I('s_waitcnt lgkmcnt(1)')
    I(f'v_add_u32 v{NG}, 28, v{NG}')
    I(f'v_and_b32 v{NG}, 0xffffffe0, v{NG}')
    I(f'v_mov_b32 v{GS}, v{NG}')
    wave_scan(GS)
    I(f'v_readlane_b32 s{S_T}, v{GS}, 63')
    I(f'v_sub_u32 v{GS}, v{GS}, v{NG}')
    I(f'ds_write_b32 v{X+8}, v{GS} offset:{BASET}')
    for r in range(4):
        I(f's_mov_b64 exec, {sp(S_MASK+4*r)}')
        I(f'ds_read_b32 v{A4+r}, v{A4+r} offset:{BASET}')
    for r in range(4):
        I(f's_mov_b64 exec, {sp(S_MASK+4*r+2)}')
        I(f'ds_read_b32 v{A8+r}, v{A8+r} offset:{BASET}')
    I('s_mov_b64 exec, -1')
    I(f'v_readfirstlane_b32 s{S_MORE}, v{X+9}')
    out.insert(len(out) - 1, '    s_waitcnt lgkmcnt(9)')
    I(f's_lshr_b32 s{S_T}, s{S_T}, 5')
    I(f's_cmp_eq_u32 s{S_WID}, 128')
    I(f's_cselect_b32 s{S_T+1}, {MAXG}, -1')
    I(f's_cmp_gt_u32 s{S_T}, s{S_T+1}')
    I('s_cbranch_scc1 L_OVERFLOW')
    I(f's_add_u32 s{S_L}, s{S_T}, 63')
    I(f's_lshr_b32 s{S_L}, s{S_L}, 6')
    I(f'v_cvt_f32_u32 v{MI}, s{S_L}')
    I(f'v_rcp_f32 v{MI}, v{MI}')
    I(f'v_lshrrev_b32 v{GS}, 5, v{GS}')
    I(f'v_mul_f32 v{MI}, 0x47800000, v{MI}')
    I(f'v_cvt_u32_f32 v{MI}, v{MI}')
    I(f'v_lshrrev_b32 v{NG}, 5, v{NG}')
    I(f'v_add_u32 v{MI}, 2, v{MI}')
    I(f's_waitcnt vmcnt({NPF})')
    for r in range(4):
        I(f's_waitcnt lgkmcnt({7 - r + 2*r})')
        I(f's_mov_b64 exec, {sp(S_MASK+4*r)}')
        I(f'v_add_u32 v{A4+r}, v{A4+r}, v{REC+8*r+3}')
        I(f'v_and_b32 v{REC+8*r+2}, s{S_T+2}, v{REC+8*r+2}')
        I(f'v_add_u32 v{REC+8*r+3}, v{A4+r}, v{A4+r}')
        I(f'ds_write_b32 v{A4+r}, v{REC+8*r+2} offset:{LS}')
        I(f'ds_write_b64 v{REC+8*r+3}, {p(REC+8*r)} offset:{LE}')
    I('s_waitcnt lgkmcnt(8)')
    for r in range(4):
        I(f's_mov_b64 exec, {sp(S_MASK+4*r+2)}')
        I(f's_cbranch_execz L_P{r}')
        I(f'v_add_u32 v{A8+r}, v{A8+r}, v{REC+8*r+7}')
        I(f'v_and_b32 v{REC+8*r+6}, s{S_T+2}, v{REC+8*r+6}')
        I(f'v_add_u32 v{REC+8*r+7}, v{A8+r}, v{A8+r}')
        I(f'ds_write_b32 v{A8+r}, v{REC+8*r+6} offset:{LS}')
        I(f'ds_write_b64 v{REC+8*r+7}, {p(REC+8*r+4)} offset:{LE}')
        L(f'L_P{r}')
    I('s_mov_b64 exec, -1')
    stamp(13)
    SA_, SB_ = X, X + 1
    I(f'v_mul_u32_u24 v{SA_}, v{GS}, v{MI}')
    I(f'v_max_u32 v{SB_}, 1, v{NG}')
    I(f'v_lshrrev_b32 v{SA_}, 16, v{SA_}')
    I(f'v_add3_u32 v{SB_}, v{SB_}, v{GS}, -1')
    I(f'v_mul_u32_u24 v{SB_}, v{SB_}, v{MI}')
    I(f'v_lshlrev_b32 v{X+2}, 3, v{V_LANE}')
    I(f'v_lshrrev_b32 v{SB_}, 16, v{SB_}')
    I(f'v_lshlrev_b32 v{X+3}, 8, v{V_LANE}')
    I(f'ds_write_b64 v{X+2}, {p(SA_)} offset:{NINFO}')
    I(f'v_add_u32 v{X+4}, {ACCN}, v{X+3}')
    I(f's_mov_b32 s{S_T}, s{S_W}')
    I(f's_sub_u32 s{S_T+1}, 0, s{S_L}')
    L('L_DLOOP')
    I(f'v_cmp_lt_u32 vcc, s{S_T}, v{NG}')
    I('s_and_b64 exec, exec, vcc')
    I('s_cbranch_execz L_DEND')
    I(f'v_add_u32 v{X+5}, s{S_T}, v{GS}')
    I(f'v_mul_u32_u24 v{X+6}, v{X+5}, v{MI}')
    I(f'v_lshrrev_b32 v{X+6}, 16, v{X+6}')
    I(f'v_mad_i32_i24 v{X+5}, v{X+6}, s{S_T+1}, v{X+5}')
    I(f'v_cmp_eq_u32 vcc, v{X+6}, v{SA_}')
    I(f'v_lshl_add_u32 v{X+5}, v{X+5}, 6, v{X+6}')
    I(f'v_lshlrev_b32 v{X+6}, 8, v{X+6}')
    I(f'v_lshlrev_b32 v{X+5}, 2, v{X+5}')
    I(f'v_add_u32 v{X+6}, {EXTRA}, v{X+6}')
    I(f'v_add_u32 v{X+7}, {DESCA}, v{X+5}')
    I(f'v_cndmask_b32 v{X+6}, v{X+6}, v{X+4}, vcc')
    I(f'ds_write_b32 v{X+5}, v{X+3} offset:{DESCP}')
    I(f'ds_write_b32 v{X+7}, v{X+6}')
    I(f's_add_u32 s{S_T}, s{S_T}, 16')
    I('s_branch L_DLOOP')
    L('L_DEND')
    I('s_mov_b64 exec, -1')
    I(f's_lshl_b32 s{S_T}, s{S_W}, 2')
    I(f's_lshl_b32 s{S_T+1}, s{S_L}, 5')
    I(f'v_lshrrev_b32 v{X}, 5, v{V_LANE}')
    I(f'v_lshl_add_u32 v{X+1}, v{X}, 1, s{S_T}')
    I(f'v_mul_u32_u24 v{V_PS0}, s{S_T+1}, v{X+1}')
    I(f'v_lshlrev_b32 v{V_PD}, 2, v{X+1}')
    I(f'v_add_u32 v{V_PS1}, s{S_T+1}, v{V_PS0}')
    I(f'v_add_u32 v{V_PD}, {DESCP}, v{V_PD}')
    I(f'v_bfe_u32 v{X}, v{V_LANE}, 2, 1')
    I(f'v_and_b32 v{X+1}, 1, v{V_LANE}')
    I(f'v_lshl_or_b32 v{X}, v{X}, 1, v{X+1}')
    I(f'v_add_u32 v{X}, s{S_T}, v{X}')
    I(f's_lshl_b32 s{S_T+1}, s{S_L}, 6')
    I(f'v_mul_u32_u24 v{V_PE}, s{S_T+1}, v{X}')
    I(f'v_bfe_u32 v{X}, v{V_LANE}, 3, 2')
    I(f'v_bfe_u32 v{X+1}, v{V_LANE}, 1, 1')
    I(f'v_lshl_or_b32 v{X}, v{X}, 1, v{X+1}')
    I(f'v_lshl_add_u32 v{V_PE}, v{X}, 3, v{V_PE}')
    I(f'v_add_u32 v{V_PE}, {LE}, v{V_PE}')
    I(f's_mov_b32 s{S_CNT}, s{S_L}')
    I('s_waitcnt lgkmcnt(0)')
    I('s_barrier')
    stamp(14)
    I(f's_cmp_eq_u32 s{S_L}, 0')
    I('s_cbranch_scc1 L_FOLD')
    lg = Lg()
    if NPF:
        I('s_waitcnt vmcnt(0)')
    s_reads(lg, 0)
    lg.op('dP', f'ds_read_b64 {p(V_VAP)}, v{V_PD}')
    lg.op('dA', f'ds_read_b64 {p(V_VAA[0])}, v{V_PD} offset:{DESCA-DESCP}')
    lg.op('e', f'ds_read_b64 {p(A5)}, v{V_PE}')
    lg.need('S0', 'S1', 'S2', 'S3')
    for n in range(2):
        for i in range(16):
            I(gload(n, i))
    s_reads(lg, 1)
    lg.need('dP', 'dA')
    I(f'v_add_u32 v{V_VAP}, v{V_VAP}, v{V_CHP}')
    I(f'v_add_u32 v{V_VAP+1}, v{V_VAP+1}, v{V_CHP}')
    I(f'v_add_u32 v{V_VAA[0]}, v{V_VAA[0]}, v{V_CH8}')
    I(f'v_add_u32 v{V_VAA[0]+1}, v{V_VAA[0]+1}, v{V_CH8}')
    lg.op('P0a', f'ds_read_b32 v{B5[0]+2}, v{V_VAP}')
    lg.op('P0b', f'ds_read_b32 v{B5[0]+3}, v{V_VAP+1}')
    lg.op('P1a', f'ds_read_b32 v{B5[1]+2}, v{V_VAP} offset:4')
    lg.op('P1b', f'ds_read_b32 v{B5[1]+3}, v{V_VAP+1} offset:4')
    I(f's_cmp_eq_u32 s{S_CNT}, 1')
    I(f's_cselect_b64 {sp(S_LDX)}, 0, {LDXV}')
    I('s_waitcnt lgkmcnt(0)')
    lg.q = []
    if opt('prio', 3):
        I('s_setprio 3')
    stamp(15)
    rstamp(28)
    half(lg, 0, 0, 0, False)
    state0 = list(lg.q)
    def step(par, uo):
        half(lg, 1, par, uo)
        I(f's_sub_u32 s{S_CNT}, s{S_CNT}, 1')
        I(f's_cmp_eq_u32 s{S_CNT}, 0')
        I(f's_cbranch_scc1 L_FIN{par}')
        I(f's_cmp_eq_u32 s{S_CNT}, 1')
        I(f's_cselect_b64 {sp(S_LDX)}, 0, {LDXV}')
        prio(f'{par}')
        half(lg, 0, par ^ 1, uo + 1)
    def loop_body():
        step(0, 0)
        step(1, 1)
        I(f'v_add_u32 v{V_PS0}, 64, v{V_PS0}')
        I(f'v_add_u32 v{V_PS1}, 64, v{V_PS1}')
        I(f'v_add_u32 v{V_PE}, 128, v{V_PE}')
        I(f'v_add_u32 v{V_PD}, 512, v{V_PD}')
        I('s_branch L_LOOP')
    mark = len(out)
    loop_body()
    del out[mark:]
    qb = list(lg.q)
    n = min(len(qb), len(state0))
    assert qb[len(qb)-n:] == state0[len(state0)-n:], (state0, qb)
    lg.q = list(qb if len(qb) >= len(state0) else state0)
    e('.p2align 3')
    L('L_LOOP')
    loop_body()
    assert lg.q == qb, (lg.q, qb)
    print('loop entry queue', state0, 'back edge queue', qb, file=sys.stderr)
    for pr in range(2):
        L(f'L_FIN{pr}')
        for op in tail_ops(1):
            I(op)
        I(f'ds_write_b64 v{V_VAA[pr]}, {p(V_MA)}')
        I(f'ds_write_b64 v{V_VAA[pr]+1}, {p(V_MB)}')
        if pr == 0:
            I('s_branch L_FOLD')
    L('L_FOLD')
    stamp(16)
    I(f'v_lshrrev_b32 v{X}, 3, v{V_TID}')
    I(f'v_and_b32 v{X+1}, 7, v{V_TID}')
    I(f'v_lshlrev_b32 v{X+6}, 3, v{X+1}')
    I(f'v_lshlrev_b32 v{X+1}, 5, v{X+1}')
    I(f'v_lshl_add_u32 v{X+2}, v{X}, 8, v{X+1}')
    I(f'v_add_u32 v{X+2}, {ACCN}, v{X+2}')
    I(f'v_add_u32 v{X+1}, {EXTRA}, v{X+1}')
    I(f'v_lshlrev_b32 v{X+3}, 3, v{X}')
    I(f's_mul_i32 s{S_T+4}, s3, {NB*128}')
    I(f'v_lshl_add_u32 v{X+6}, v{X}, 7, v{X+6}')
    I(f'v_add_u32 v{X+6}, s{S_T+4}, v{X+6}')
    I(f'v_mov_b32 v{X+7}, 0')
    I('s_waitcnt vmcnt(0) lgkmcnt(0)')
    I('s_barrier')
    stamp(17)
    rstamp(29)
    if PROF:
        I(f'v_writelane_b32 v{V_PROF}, s{S_L}, 27')
    I(f'v_cmp_gt_u32 vcc, {NB*8}, v{V_TID}')
    I(f's_and_saveexec_b64 {sp(S_EX)}, vcc')
    I('s_cbranch_execz L_FDONE')
    I(f'ds_read_b64 {p(X+4)}, v{X+3} offset:{NINFO}')
    I(f'ds_read_b128 v[64:67], v{X+2}')
    I(f'ds_read_b128 v[68:71], v{X+2} offset:16')
    I(f's_mov_b64 {sp(S_T)}, exec')
    I('s_waitcnt lgkmcnt(0)')
    L('L_FLOOP')
    I(f'v_cmp_lt_u32 vcc, v{X+4}, v{X+5}')
    I('s_and_b64 exec, exec, vcc')
    I('s_cbranch_execz L_FLEND')
    I(f'v_add_u32 v{X+4}, 1, v{X+4}')
    I(f'v_lshl_add_u32 v{X+7}, v{X+4}, 8, v{X+1}')
    I(f'ds_read_b128 v[72:75], v{X+7}')
    I(f'ds_read_b128 v[76:79], v{X+7} offset:16')
    I('s_waitcnt lgkmcnt(0)')
    for k in range(8):
        I(f'v_add_f32 v{64+k}, v{64+k}, v{72+k}')
    I('s_branch L_FLOOP')
    L('L_FLEND')
    I(f's_mov_b64 exec, {sp(S_T)}')
    I(f's_cmp_lg_u32 s{S_MORE}, 0')
    I('s_cbranch_scc1 L_WB')
    I(f's_mov_b32 s{S_T+2}, 0x{f2u(2.0**-(SV+KEXP)):x}')
    I(f's_mov_b32 s{S_T+3}, 0x{f2u(-LOG2E):x}')
    for k in range(8):
        I(f'v_mul_f32 v{64+k}, s{S_T+2}, v{64+k}')
    for k in range(8):
        I(f'v_mul_f32 v{72+k}, s{S_T+3}, v{64+k}')
    for k in range(8):
        I(f'v_exp_f32 v{72+k}, v{72+k}')
    for k in range(8):
        I(f'v_add_f32 v{72+k}, 1.0, v{72+k}')
    for k in range(8):
        I(f'v_rcp_f32 v{72+k}, v{72+k}')
    for k in range(8):
        I(f'v_mul_f32 v{64+k}, v{64+k}, v{72+k}')
    I('v_cvt_pk_bf16_f32 v80, v64, v66')
    I('v_cvt_pk_bf16_f32 v81, v68, v70')
    I('v_cvt_pk_bf16_f32 v82, v65, v67')
    I('v_cvt_pk_bf16_f32 v83, v69, v71')
    I(f'buffer_store_dwordx2 v[80:81], v{X+6}, {sr4(S_OUT)}, 0 offen')
    I(f'buffer_store_dwordx2 v[82:83], v{X+6}, {sr4(S_OUT)}, 0 offen offset:64')
    stamp(18)
    prof_store()
    diag_end()
    I('s_endpgm')
    L('L_WB')
    I(f'ds_write_b128 v{X+2}, v[64:67]')
    I(f'ds_write_b128 v{X+2}, v[68:71] offset:16')
    L('L_FDONE')
    I('s_mov_b64 exec, -1')
    I(f's_cmp_eq_u32 s{S_MORE}, 0')
    I('s_cbranch_scc1 L_QUIT')
    I(f's_add_u32 s{S_JB}, s{S_JB}, s{S_WID}')
    I('s_branch L_REFILL')
    L('L_OVERFLOW')
    I(f's_mov_b32 s{S_WID}, 64')
    L('L_REFILL')
    I('s_waitcnt vmcnt(0) lgkmcnt(0)')
    I('s_barrier')
    fill_zero()
    fill_words()
    I('s_waitcnt lgkmcnt(0)')
    I('s_barrier')
    I('s_branch L_PASS')
    L('L_QUIT')
    prof_store()
    L('L_END')
    I('s_endpgm')

hdr = open('standalone__edge_featured_mpnn_egc__graph.s.ref').read().split('\n')
for line in hdr:
    if line.startswith('; Override'):
        break
    e(line)
e(f'; @launch grid=({NWG},1,1) block=(1024,1,1) lds={LDS_BYTES}')
e('.amdgcn_target "amdgcn-amd-amdhsa--gfx950"')
e('.text')
gen()
e('.section .rodata,"a"')
e('.p2align 6')
e(f'.amdhsa_kernel {KNAME}')
e('  .amdhsa_next_free_vgpr 128')
e('  .amdhsa_next_free_sgpr 102')
e('  .amdhsa_accum_offset 128')
e('  .amdhsa_group_segment_fixed_size 0')
e('  .amdhsa_kernarg_size 80')
e('  .amdhsa_user_sgpr_count 2')
e('  .amdhsa_user_sgpr_kernarg_segment_ptr 1')
e('  .amdhsa_system_sgpr_workgroup_id_x 1')
e('  .amdhsa_float_denorm_mode_32 3')
e('.end_amdhsa_kernel')
open(sys.argv[1], 'w').write('\n'.join(x for x in out if x is not None) + '\n')
```

```python
import sys, struct

OPT = dict(a.split('=') for a in sys.argv[2:] if '=' in a)
def opt(name, default):
    return type(default)(OPT.get(name, default))

KNAME = 'standalone__edge_featured_mpnn_egc__graph_kernel'
N_NODES = 12500
E_EDGES = 800000
NB = 49
NWG = 256
CH = 3136
WS_RW = 0
WS_RE = 0x00400000
WS_TAB = 0x00B00000
WS_NT = 0x00C00000
WS_PROF = 0x01000000
KEXP = 31
SV = 30
LOG2E = 1.4426950408889634
SC = opt('sc', 'sc1')
SC = (' ' + SC.replace('+', ' ')) if SC != 'none' else ''
LSC = opt('lsc', 'sc1')
LSC = (' ' + LSC.replace('+', ' ')) if LSC != 'none' else ''
GSC = opt('gsc', 'sc1')
GSC = (' ' + GSC.replace('+', ' ')) if GSC != 'none' else ''
ELD = opt('eld', 'none')
ELD = (' ' + ELD.replace('+', ' ')) if ELD != 'none' else ''

def f2u(x):
    return struct.unpack('<I', struct.pack('<f', x))[0]

out = []
def e(s=''):
    out.append(s)
def I(s):
    out.append('    ' + s)
def L(name):
    out.append(name + ':')
def vr(a, n):
    return f'v[{a}:{a+n-1}]' if n > 1 else f'v{a}'
def sr4(a):
    return f's[{a}:{a+3}]'
def sp(a):
    return f's[{a}:{a+1}]'
def p(r):
    return f'v[{r}:{r+1}]'

def srd(d, lo, hi, nrec):
    I(f's_mov_b32 s{d}, s{lo}')
    I(f's_mov_b32 s{d+1}, s{hi}')
    I(f's_mov_b32 s{d+2}, {nrec}')
    I(f's_mov_b32 s{d+3}, 0x00020000')

def srd_off(d, lo, hi, off, nrec):
    I(f's_add_u32 s{d}, s{lo}, {off}')
    I(f's_addc_u32 s{d+1}, s{hi}, 0')
    I(f's_mov_b32 s{d+2}, {nrec}')
    I(f's_mov_b32 s{d+3}, 0x00020000')

def wave_scan(v):
    for sh in (1, 2, 4, 8):
        I('s_nop 1')
        I(f'v_add_u32_dpp v{v}, v{v}, v{v} row_shr:{sh} row_mask:0xf bank_mask:0xf')
    I('s_nop 1')
    I(f'v_add_u32_dpp v{v}, v{v}, v{v} row_bcast:15 row_mask:0xa bank_mask:0xf')
    I('s_nop 1')
    I(f'v_add_u32_dpp v{v}, v{v}, v{v} row_bcast:31 row_mask:0xc bank_mask:0xf')
    I('s_nop 1')

LS = 0
ZR = 18688
LE = 18688
CNT = 56064
MISC = 56320
BASET = 56576
NINFO = 56832
HIST = 57344
HBASE = 58368
DESCP = 59392
EXTRA = 67840
DESCA = 84224
PT = 86784
ACCN = 99328
WRAW = 111872
WG_, WV_, WU_ = WRAW, WRAW + 17408, WRAW + 25600
XOWN = WRAW + 33792
LDS_BYTES = XOWN + 8192
STGW = 0
STGE = CH * 4
NTI = EXTRA
MAXG = 576
assert STGE + CH * 8 <= CNT

V_TID, V_LANE = 0, 1
V_MA, V_MB = 2, 4
V_VAA = (6, 8)
V_VAP = 10
V_PS0, V_PS1, V_PE, V_PD, V_CH8, V_CHP = 12, 13, 14, 15, 16, 17
V_PROF = 18
V_TAB = 20
V_J4, V_CB4 = 24, 25
V_X = 26
V_T01D, V_T01N, V_T23D, V_T23N = 40, 42, 44, 46
B5 = (48, 52)
A5 = 56
V_TT = (60, 62)
G = (64, 80)
Z = 96
S = 112

S_XS, S_WS, S_DST, S_SRC, S_EA, S_RW, S_RE, S_TAB, S_NTS, S_NTG, S_OUT = 12, 16, 20, 24, 28, 32, 36, 40, 44, 48, 52
S_MASK = 56
S_W, S_L, S_CNT, S_JB, S_WID, S_MORE = 72, 73, 74, 75, 76, 77
S_C = 78
S_EX = 80
S_LDX = 82
S_T = 84
S_WSP = 94
S_DBG = 96
S_TAG, S_TAG2 = 100, 101
TAGM = 0xC003C003
TAGL = MISC + 64

NT2 = 2 if opt('touch', 0) else 0
LDXV = 0 if opt('noload', 0) else -1
NPFM = opt('npf', 0)
NPF = 7 if NPFM else 0
NPF1 = 7 if NPFM == 1 else 0
WSB = opt('wsb', 0) << 20
TCH = 4 if opt('touch', 0) else 0
T1 = opt('t1', 0)
OSC = opt('osc', 'none')
OSC = (' ' + OSC.replace('+', ' ')) if OSC != 'none' else ''
PROF = opt('prof', 0)
DIAG = opt('diag', -1)
def diag_end():
    if DIAG < 0:
        return
    I('s_memrealtime s[98:99]')
    I('s_waitcnt lgkmcnt(0)')
    I('v_readlane_b32 s92, v18, 1')
    I('v_readlane_b32 s93, v18, 0')
    I('s_nop 3')
    I('s_sub_u32 s92, s92, s93')
    I('s_lshl_b32 s92, s92, 2')
    I('s_mov_b32 s93, s98')
    lbl = f'L_DG{len(out)}'
    L(lbl)
    I('s_memrealtime s[98:99]')
    I('s_waitcnt lgkmcnt(0)')
    I('s_sub_u32 s98, s98, s93')
    I('s_cmp_lt_u32 s98, s92')
    I(f's_cbranch_scc1 {lbl}')
def stamp(i):
    if DIAG >= 0 and i in (0, DIAG):
        I('s_memrealtime s[98:99]')
        I('s_waitcnt lgkmcnt(0)')
        if i == 0:
            I('v_writelane_b32 v18, s98, 0')
        if i == DIAG:
            I('v_writelane_b32 v18, s98, 1')
    if not PROF:
        return
    I('s_memtime s[98:99]')
    I('s_waitcnt lgkmcnt(0)')
    I(f'v_writelane_b32 v{V_PROF}, s98, {i}')
def rstamp(i):
    if not PROF:
        return
    I('s_memrealtime s[98:99]')
    I('s_waitcnt lgkmcnt(0)')
    I(f'v_writelane_b32 v{V_PROF}, s98, {i}')
def prof_store():
    if not PROF:
        return
    rstamp(31)
    if PROF == 3:
        I(f's_lshl_b32 s98, s2, 4')
        I(f's_add_u32 s98, s98, s{S_W}')
        I(f's_cmp_lg_u32 s98, {opt("pwave", 80)}')
        I('s_cbranch_scc1 L_END')
        I('s_mov_b64 exec, -1')
        I(f'v_readlane_b32 s98, v{V_PROF}, 0')
        I(f'v_readlane_b32 s99, v{V_PROF}, 30')
        I(f'v_readlane_b32 s{S_T}, v{V_PROF}, 31')
        I('s_nop 3')
        I(f's_sub_u32 s{S_T}, s{S_T}, s99')
        I(f's_add_u32 s{S_T}, s{S_T}, s98')
        I(f'v_writelane_b32 v{V_PROF}, s{S_T}, 9')
        I(f'v_subrev_u32 v{V_PROF}, s98, v{V_PROF}')
        I(f'v_mbcnt_lo_u32_b32 v{V_PROF+1}, -1, 0')
        I(f'v_lshlrev_b32 v{V_PROF+1}, 2, v{V_PROF+1}')
        I(f'v_add_u32 v{V_PROF+1}, -8, v{V_PROF+1}')
        I('s_mov_b64 exec, 0x3fff8')
        I(f'global_store_dword v{V_PROF+1}, v{V_PROF}, {sp(S_DBG)}')
        return
    I('s_mov_b64 exec, 0xffffffff')
    I(f's_add_u32 s{S_T}, s{S_WSP}, 0x{WS_PROF:x}')
    I(f's_addc_u32 s{S_T+1}, s{S_WSP+1}, 0')
    I(f'v_mbcnt_lo_u32_b32 v{V_PROF+1}, -1, 0')
    I(f'v_lshlrev_b32 v{V_PROF+1}, 2, v{V_PROF+1}')
    I(f's_lshl_b32 s98, s2, 4')
    I(f's_add_u32 s98, s98, s{S_W}')
    I(f's_lshl_b32 s98, s98, 7')
    I(f'v_add_u32 v{V_PROF+1}, s98, v{V_PROF+1}')
    I(f'global_store_dword v{V_PROF+1}, v{V_PROF}, {sp(S_T)}')

class Lg:
    def __init__(self):
        self.q = []
    def op(self, tag, text):
        I(text)
        self.q.append(tag)
    def need(self, *tags):
        idx = -1
        for t in tags:
            for i in range(len(self.q) - 1, -1, -1):
                if self.q[i] == t:
                    idx = max(idx, i)
                    break
        if idx < 0:
            return
        n = len(self.q) - 1 - idx
        assert n <= 15, (tags, n)
        I(f's_waitcnt lgkmcnt({n})')
        self.q = self.q[idx + 1:]

X = V_X

def zero_range(a, nbytes, zr, ad):
    k = 0
    base = a if a + nbytes <= 65536 + 16384 and a < 65536 - 3 * 16384 else None
    off = 0
    areg = ad
    if a + ((nbytes - 1) // 16384) * 16384 > 65535:
        I(f'v_add_u32 v{X+1}, {a}, v{ad}')
        areg = X + 1
        a0 = 0
    else:
        a0 = a
    while off < nbytes:
        n = min(16384, nbytes - off)
        if n < 16384:
            I(f'v_cmp_gt_u32 vcc, {n // 16}, v{V_TID}')
            I(f's_and_saveexec_b64 {sp(S_EX)}, vcc')
        I(f'ds_write_b128 v{areg}, v[{zr}:{zr+3}] offset:{a0 + off}')
        if n < 16384:
            I(f's_mov_b64 exec, {sp(S_EX)}')
        off += n

def zregs():
    I(f'v_lshlrev_b32 v{X}, 4, v{V_TID}')
    for k in range(4):
        I(f'v_mov_b32 v{X+2+k}, 0')

def fill_desca():
    I(f'v_and_b32 v{X+6}, 15, v{V_TID}')
    I(f'v_lshlrev_b32 v{X+6}, 10, v{X+6}')
    I(f'v_add_u32 v{X+6}, {EXTRA}, v{X+6}')
    for k in range(1, 4):
        I(f'v_add_u32 v{X+6+k}, {256*k}, v{X+6}')
    I(f'v_add_u32 v{X+1}, {DESCA}, v{X}')
    I(f'v_cmp_gt_u32 vcc, 160, v{V_TID}')
    I(f's_and_saveexec_b64 {sp(S_EX)}, vcc')
    I(f'ds_write_b128 v{X+1}, v[{X+6}:{X+9}]')
    I(f's_mov_b64 exec, {sp(S_EX)}')

def fill_zero():
    zregs()
    zero_range(ZR, 65536, X + 2, X)
    fill_desca()

def fill_words():
    I(f'v_lshlrev_b32 v{X}, 4, v{V_TID}')
    I(f'v_and_b32 v{X+2}, 7, v{V_TID}')
    I(f'v_lshlrev_b32 v{X+2}, 5, v{X+2}')
    I(f'v_add_u32 v{X+2}, {N_NODES*8}, v{X+2}')
    for k in range(1, 4):
        I(f'v_add_u32 v{X+2+k}, {8*k}, v{X+2}')
    I(f'ds_write_b128 v{X}, v[{X+2}:{X+5}] offset:{LS}')
    I(f'v_cmp_gt_u32 vcc, 144, v{V_TID}')
    I(f's_and_saveexec_b64 {sp(S_EX)}, vcc')
    I(f'ds_write_b128 v{X}, v[{X+2}:{X+5}] offset:{LS+16384}')
    I(f's_mov_b64 exec, {sp(S_EX)}')

def tail_ops(n):
    return [f'v_rcp_f32 v{V_T01D}, v{V_T01D}',
            f'v_rcp_f32 v{V_T01D+1}, v{V_T01D+1}',
            f'v_rcp_f32 v{V_T23D}, v{V_T23D}',
            f'v_rcp_f32 v{V_T23D+1}, v{V_T23D+1}',
            f'v_fmac_f32 v{V_MA+n}, v{V_T01N}, v{V_T01D}',
            f'v_fmac_f32 v{V_MB+n}, v{V_T01N+1}, v{V_T01D+1}',
            f'v_fmac_f32 v{V_MA+n}, v{V_T23N}, v{V_T23D}',
            f'v_fmac_f32 v{V_MB+n}, v{V_T23N+1}, v{V_T23D+1}']

def gload(n, i):
    return f'buffer_load_dword v{G[n]+i}, v{S + (i & 1) * 8 + (i >> 1)}, {sr4(S_NTG)}, 0 offen offset:{4*n}' + GSC

def s_reads(lg, uo):
    lg.op('S0', f'ds_read_b128 {vr(S,4)}, v{V_PS0} offset:{uo*32}')
    lg.op('S1', f'ds_read_b128 {vr(S+4,4)}, v{V_PS0} offset:{uo*32+16}')
    lg.op('S2', f'ds_read_b128 {vr(S+8,4)}, v{V_PS1} offset:{uo*32}')
    lg.op('S3', f'ds_read_b128 {vr(S+12,4)}, v{V_PS1} offset:{uo*32+16}')

def half(lg, n, par, uo, with_tail=True):
    g = G[n]
    I('s_waitcnt vmcnt(16)')
    if n == 0:
        lg.need('P0a', 'P0b', 'e')
    else:
        lg.need('P1a', 'P1b')
    I(f'v_mfma_f32_32x32x16_bf16 {vr(Z,16)}, {vr(A5,4)}, {vr(B5[n],4)}, {vr(g,16)}')
    t = tail_ops(n ^ 1)
    va_prev, va_cur, va_nxt = V_VAA[par ^ 1], V_VAA[par], V_VAA[par ^ 1]
    if with_tail:
        for op in t[:4]:
            I(op)
        if n == 1:
            lg.need('Ra', 'Rb')
        for op in t[4:]:
            I(op)
    else:
        I('s_nop 7')
    if n == 0:
        if with_tail:
            lg.op('Wa', f'ds_write_b64 v{va_prev}, {p(V_MA)}')
            lg.op('Wb', f'ds_write_b64 v{va_prev+1}, {p(V_MB)}')
        lg.op('Ra', f'ds_read_b64 {p(V_MA)}, v{va_cur}')
        lg.op('Rb', f'ds_read_b64 {p(V_MB)}, v{va_cur+1}')
        lg.op('dP', f'ds_read_b64 {p(V_VAP)}, v{V_PD} offset:{(uo+1)*256}')
        lg.op('dA', f'ds_read_b64 {p(va_nxt)}, v{V_PD} offset:{(uo+1)*256 + DESCA - DESCP}')
    else:
        lg.op('e', f'ds_read_b64 {p(A5)}, v{V_PE} offset:{(uo+1)*64}')
        lg.op('P1a', f'ds_read_b32 v{B5[1]+2}, v{V_VAP} offset:4')
        lg.op('P1b', f'ds_read_b32 v{B5[1]+3}, v{V_VAP+1} offset:4')
    sh = [f'v_lshlrev_b32 v{g+i}, 16, v{g+i}' for i in range(16)]
    ex = [f'v_exp_f32 v{Z+i}, v{Z+i} clamp' for i in range(16)]
    for op in sh[:4]:
        I(op)
    for i in range(12):
        I(ex[i])
        I(sh[4 + i])
        if n == 0 and i == 7:
            lg.need('dP', 'dA')
            I(f'v_add_u32 v{V_VAP}, v{V_VAP}, v{V_CHP}')
            I(f'v_add_u32 v{V_VAP+1}, v{V_VAP+1}, v{V_CHP}')
            I(f'v_add_u32 v{va_nxt}, v{va_nxt}, v{V_CH8}')
            I(f'v_add_u32 v{va_nxt+1}, v{va_nxt+1}, v{V_CH8}')
            lg.op('P0a', f'ds_read_b32 v{B5[0]+2}, v{V_VAP}')
            lg.op('P0b', f'ds_read_b32 v{B5[0]+3}, v{V_VAP+1}')
    for op in ex[12:]:
        I(op)
    for i in range(0, 16, 2):
        I(f'v_pk_add_f32 {p(Z+i)}, {p(Z+i)}, {sp(S_C)}')
    def T(k): return f'v_pk_mul_f32 {p(V_TT[k&1])}, {p(g+4*k)}, {p(Z+4*k+2)}'
    def DD(k): return f'v_pk_mul_f32 {p(Z+4*k+2)}, {p(Z+4*k)}, {p(Z+4*k+2)}'
    def NN(k): return f'v_pk_fma_f32 {p(Z+4*k)}, {p(g+4*k+2)}, {p(Z+4*k)}, {p(V_TT[k&1])}'
    for k0 in (0, 2):
        for op in (T(k0), T(k0 + 1), DD(k0), DD(k0 + 1), NN(k0), NN(k0 + 1)):
            I(op)
        if n == 0 and k0 == 0:
            lg.need('S0', 'S1', 'S2', 'S3')
        I(f's_mov_b64 exec, {sp(S_LDX)}')
        for i in range(4 * k0, 4 * k0 + 8):
            I(gload(n, i))
        I('s_mov_b64 exec, -1')
    if n == 1:
        s_reads(lg, uo + 2)
    I(f'v_pk_mul_f32 {p(V_T01N)}, {p(Z)}, {p(Z+6)}')
    I(f'v_pk_mul_f32 {p(V_T23N)}, {p(Z+8)}, {p(Z+14)}')
    I(f'v_pk_mul_f32 {p(V_T01D)}, {p(Z+2)}, {p(Z+6)}')
    I(f'v_pk_mul_f32 {p(V_T23D)}, {p(Z+10)}, {p(Z+14)}')
    I(f'v_pk_fma_f32 {p(V_T01N)}, {p(Z+4)}, {p(Z+2)}, {p(V_T01N)}')
    I(f'v_pk_fma_f32 {p(V_T23N)}, {p(Z+12)}, {p(Z+10)}, {p(V_T23N)}')

def prio(tag):
    pr = opt('prio', 3)
    if not pr:
        return
    th = {1: (4, 2, 1), 2: (5, 3, 1), 3: (3, 2, 1), 4: (6, 4, 2)}[pr]
    for lvl, t in zip((2, 1, 0), th):
        I(f's_cmp_eq_u32 s{S_CNT}, {t}')
        I(f's_cbranch_scc0 L_PR{tag}_{lvl}')
        I(f's_setprio {lvl}')
        L(f'L_PR{tag}_{lvl}')

def split_hilo(a, b, t0, t1):
    I(f'v_cvt_pk_bf16_f32 v{t0}, v{a}, v{b}')
    I(f'v_lshlrev_b32 v{t1}, 16, v{t0}')
    I(f'v_and_b32 v{t0}, 0xffff0000, v{t0}')
    I(f'v_sub_f32 v{a}, v{a}, v{t1}')
    I(f'v_sub_f32 v{b}, v{b}, v{t0}')
    I(f'v_cvt_pk_bf16_f32 v{a}, v{t1}, v{a}')
    I(f'v_cvt_pk_bf16_f32 v{b}, v{t0}, v{b}')

V_AA, V_AB, V_AD, V_AP = 6, 7, 8, 9
SA, SB, SD = 80, 96, 112

def phase0_addr():
    I(f's_and_b32 s{S_T}, s{S_W}, 3')
    I(f's_lshr_b32 s{S_T+1}, s{S_W}, 2')
    I(f'v_and_b32 v12, 15, v{V_LANE}')
    I(f'v_lshrrev_b32 v13, 4, v{V_LANE}')
    I(f'v_bfe_u32 v14, v{V_LANE}, 1, 3')
    I(f'v_xor_b32 v14, v14, v13')
    I(f'v_lshlrev_b32 v14, 4, v14')
    I(f'v_lshl_or_b32 v14, v12, 7, v14')
    I(f's_lshl_b32 s{S_T+2}, s{S_T}, 11')
    I(f'v_add_u32 v{V_AA}, s{S_T+2}, v14')
    I(f'v_bfe_u32 v14, v{V_LANE}, 2, 2')
    I(f'v_lshl_add_u32 v14, v13, 3, v14')
    I(f'v_lshlrev_b32 v14, 7, v14')
    I(f'v_and_b32 v15, 3, v{V_LANE}')
    I(f'v_lshl_add_u32 v14, v15, 3, v14')
    I(f's_lshl_b32 s{S_T+2}, s{S_T+1}, 5')
    I(f'v_or_b32 v14, s{S_T+2}, v14')
    I(f'v_and_b32 v15, 24, v{V_LANE}')
    I(f'v_lshlrev_b32 v15, 2, v15')
    I(f'v_xor_b32 v14, v14, v15')
    I(f'v_add_u32 v{V_AB}, {WRAW}, v14')
    I(f's_lshl_b32 s{S_T+2}, s{S_T}, 12')
    I(f'v_lshlrev_b32 v13, 10, v13')
    I(f'v_add_u32 v13, s{S_T+2}, v13')
    I(f's_lshl_b32 s{S_T+2}, s{S_T+1}, 6')
    I(f's_add_u32 s{S_T+2}, s{S_T+2}, {NTI}')
    I(f'v_lshl_add_u32 v{V_AD}, v12, 2, v13')
    I(f'v_add_u32 v{V_AD}, s{S_T+2}, v{V_AD}')
    I(f's_and_b32 s{S_T+2}, s{S_T+1}, 1')
    I(f's_lshl_b32 s{S_T+2}, s{S_T+2}, 7')
    I(f's_lshr_b32 s{S_T+3}, s{S_T+1}, 1')
    I(f's_lshl_b32 s{S_T+3}, s{S_T+3}, 2')
    I(f's_add_u32 s{S_T+2}, s{S_T+2}, s{S_T+3}')
    I(f's_add_u32 s{S_T+2}, s{S_T+2}, {PT}')
    I(f'v_lshl_add_u32 v{V_AP}, v12, 3, v13')
    I(f'v_add_u32 v{V_AP}, s{S_T+2}, v{V_AP}')

def b_reads(dst, off):
    for sg in range(2):
        for pp in range(2):
            I(f'ds_read_b64_tr_b16 {vr(dst+4*sg+2*pp,2)}, v{V_AB} offset:{off+sg*4096+pp*512}')

def mm16(d, b):
    I(f'v_mfma_f32_16x16x32_bf16 {vr(d,4)}, {vr(SA,4)}, {vr(b,4)}, 0')
    I(f'v_mfma_f32_16x16x32_bf16 {vr(d,4)}, {vr(SA+4,4)}, {vr(b+4,4)}, {vr(d,4)}')

def phase0a():
    I(f'v_add_u32 v12, {XOWN}, v{V_AA}')
    I(f'v_xor_b32 v13, 64, v{V_AA}')
    I(f'v_add_u32 v13, {XOWN}, v13')
    I(f'ds_read_b128 {vr(SA,4)}, v12')
    I(f'ds_read_b128 {vr(SA+4,4)}, v13')
    b_reads(SB, 8192)
    b_reads(SB + 8, WV_ - WRAW)
    I(f's_mov_b32 s{S_T+4}, 0x{f2u(-LOG2E):x}')
    I(f's_mov_b32 s{S_T+5}, 0x{f2u(2.0**SV):x}')
    I(f's_mov_b32 s{S_T+6}, 0x7fffffff')
    I(f's_mov_b32 s{S_T+7}, 0xffff0000')
    I('s_waitcnt lgkmcnt(4)')
    mm16(SD, SB)
    I('s_waitcnt lgkmcnt(0)')
    mm16(SD + 4, SB + 8)
    I('s_nop 4')
    for i in range(4):
        I(f'v_mul_f32 v{SD+i}, s{S_T+4}, v{SD+i}')
    for i in range(4):
        I(f'v_and_b32 v{SD+8+i}, s{S_T+6}, v{SD+i}')
    for i in range(4):
        I(f'v_mul_f32 v{SD+4+i}, s{S_T+5}, v{SD+4+i}')
        I(f'v_add_u32 v{SD+8+i}, 0x8000, v{SD+8+i}')
    I(f'v_cvt_pk_bf16_f32 v{SD+4}, v{SD+4}, v{SD+5}')
    I(f'v_cvt_pk_bf16_f32 v{SD+6}, v{SD+6}, v{SD+7}')
    I(f'v_lshrrev_b32 v{SD+5}, 16, v{SD+4}')
    I(f'v_lshrrev_b32 v{SD+7}, 16, v{SD+6}')
    I(f'v_and_b32 v{SD+4}, 0xffff, v{SD+4}')
    I(f'v_and_b32 v{SD+6}, 0xffff, v{SD+6}')
    for i in range(4):
        I(f'v_sub_u32 v{SD+8+i}, v{SD+8+i}, v{SD+4+i} clamp')
    for i in range(4):
        I(f'v_and_or_b32 v{SD+8+i}, v{SD+8+i}, s{S_T+7}, v{SD+4+i}')
    for i in range(4):
        I(f'v_bfi_b32 v{SD+i}, s{S_T+6}, v{SD+8+i}, v{SD+i}')
        I(f'ds_write_b32 v{V_AD}, v{SD+i} offset:{i*256}')

def phase0b():
    b_reads(SB, 0)
    b_reads(SB + 8, WU_ - WRAW)
    I(f's_mov_b32 s{S_T+4}, 0x{f2u(-LOG2E):x}')
    I(f's_mov_b32 s{S_T+5}, 0x{f2u(2.0**(SV+KEXP)):x}')
    I(f'v_mov_b32 v13, 0x{f2u(-float(KEXP)):x}')
    I(f's_and_b32 s{S_T+6}, s{S_W}, 3')
    I('s_waitcnt lgkmcnt(4)')
    mm16(SD, SB)
    I('s_waitcnt lgkmcnt(0)')
    mm16(SD + 4, SB + 8)
    I('s_nop 4')
    for i in range(4):
        I(f'v_fma_f32 v{SD+i}, v{SD+i}, s{S_T+4}, v13')
    split_hilo(SD, SD + 1, 12, 13)
    split_hilo(SD + 2, SD + 3, 12, 13)
    for i in range(4):
        I(f'v_mul_f32 v{SD+4+i}, s{S_T+5}, v{SD+4+i}')
    I(f's_cmp_eq_u32 s{S_T+6}, 3')
    I(f's_cselect_b64 exec, 0xffff, -1')
    I(f'ds_write_b32 v{V_AP}, v{SD}')
    I(f'ds_write_b32 v{V_AP}, v{SD+4} offset:{ACCN-PT}')
    I(f's_cselect_b64 exec, 0, -1')
    for i in range(1, 4):
        I(f'ds_write_b32 v{V_AP}, v{SD+i} offset:{i*256}')
        I(f'ds_write_b32 v{V_AP}, v{SD+4+i} offset:{ACCN-PT+i*256}')
    I('s_mov_b64 exec, -1')

def phase0c():
    I(f'v_bfe_u32 v13, v{V_LANE}, 2, 2')
    I(f'v_lshlrev_b32 v13, 7, v13')
    I(f'v_bfe_u32 v15, v{V_LANE}, 4, 1')
    I(f'v_lshl_add_u32 v13, v15, 5, v13')
    I(f'v_and_b32 v15, 3, v{V_LANE}')
    I(f'v_lshl_add_u32 v13, v15, 3, v13')
    I(f'v_and_b32 v15, 8, v{V_LANE}')
    I(f'v_lshlrev_b32 v15, 2, v15')
    I(f'v_xor_b32 v13, v13, v15')
    I(f'v_add_u32 v13, {WG_ + 16384}, v13')
    I(f'ds_read_b64_tr_b16 v[96:97], v13')
    I(f'ds_read_b64_tr_b16 v[98:99], v13 offset:64')
    I(f's_mov_b32 s{S_T+4}, 0x{f2u(-LOG2E):x}')
    I(f'v_cmp_lt_u32 vcc, 31, v{V_LANE}')
    I('s_waitcnt lgkmcnt(0)')
    for m in range(4):
        I(f'v_lshlrev_b32 v{100+2*m}, 16, v{96+m}')
        I(f'v_and_b32 v{101+2*m}, 0xffff0000, v{96+m}')
    for j in range(8):
        I(f'v_mul_f32 v{100+j}, s{S_T+4}, v{100+j}')
    for m in range(4):
        dst = B5[m >> 1] + (m & 1)
        I(f'v_cvt_pk_bf16_f32 v{96+m}, v{100+2*m}, v{101+2*m}')
        I(f'v_lshlrev_b32 v12, 16, v{96+m}')
        I(f'v_and_b32 v13, 0xffff0000, v{96+m}')
        I(f'v_sub_f32 v12, v{100+2*m}, v12')
        I(f'v_sub_f32 v13, v{101+2*m}, v13')
        I(f'v_cvt_pk_bf16_f32 v12, v12, v13')
        I(f'v_cndmask_b32 v{dst}, v{96+m}, v12, vcc')

def a5_const():
    I(f'v_bfe_u32 v12, v{V_LANE}, 2, 1')
    I(f'v_lshrrev_b32 v13, 5, v{V_LANE}')
    I(f'v_xor_b32 v12, v12, v13')
    I(f'v_and_b32 v13, 1, v{V_LANE}')
    I(f'v_lshl_or_b32 v12, v12, 1, v13')
    I(f'v_mov_b32 v13, 0x3f803f80')
    I(f'v_cmp_eq_u32 vcc, 0, v12')
    I(f'v_cmp_eq_u32 {sp(S_T)}, 1, v12')
    I('s_nop 1')
    I(f'v_cndmask_b32 v{A5+2}, 0, v13, vcc')
    I(f'v_cndmask_b32 v{A5+3}, 0, v13, {sp(S_T)}')

def nt_prefetch(vt):
    I(f's_lshr_b32 s{S_T}, s2, 4')
    I(f's_lshl_b32 s{S_T+1}, s{S_W}, 4')
    I(f's_add_u32 s{S_T}, s{S_T}, s{S_T+1}')
    I(f's_and_b32 s{S_T+1}, s{S_T}, 7')
    I(f's_lshl_b32 s{S_T+1}, s{S_T+1}, 5')
    I(f's_lshr_b32 s{S_T}, s{S_T}, 3')
    I(f's_add_u32 s{S_T}, s{S_T}, s{S_T+1}')
    I(f's_lshl_b32 s{S_T}, s{S_T}, 1')
    I(f's_bfe_u32 s{S_T+1}, s2, 0x10003')
    I(f's_add_u32 s{S_T}, s{S_T}, s{S_T+1}')
    I(f's_mul_i32 s{S_T}, s{S_T}, {NB*128}')
    I(f's_add_u32 s{S_T}, s{S_T}, 0x{WS_NT:x}')
    srd_off(S_NTS, S_WSP, S_WSP + 1, f's{S_T}', NB * 128)
    I(f'v_lshlrev_b32 v{vt}, 4, v{V_LANE}')
    I(f'v_add_u32 v{vt+1}, 4096, v{vt}')
    for k in range(NPF):
        I(f'buffer_load_dwordx4 {vr(96+4*k,4)}, v{vt+(k>>2)}, {sr4(S_NTS)}, 0 offen offset:{(k&3)*1024}' + LSC)

def gen():
    e(f'.globl {KNAME}')
    e('.p2align 8')
    e(f'.type {KNAME},@function')
    L(KNAME)
    I(f's_cmp_ge_u32 s2, {NWG}')
    I('s_cbranch_scc1 L_END')
    I('s_load_dwordx8 s[84:91], s[0:1], 0')
    I('s_load_dwordx4 s[4:7], s[0:1], 32')
    I('s_load_dwordx4 s[8:11], s[0:1], 48')
    I('s_load_dwordx4 s[56:59], s[0:1], 64')
    if PROF:
        I(f'v_mov_b32 v{V_PROF}, 0')
    rstamp(30)
    stamp(0)
    zregs()
    zero_range(CNT, DESCP + 2560 - CNT, X + 2, X)
    I(f'v_lshlrev_b32 v{X+6}, 2, v{V_TID}')
    I(f's_mul_i32 s61, s2, {CH*4}')
    I(f's_mul_i32 s63, s2, {CH}')
    I(f's_sub_u32 s63, {E_EDGES}, s63')
    I(f's_min_u32 s63, s63, {CH}')
    I(f's_lshl_b32 s64, s63, 2')
    I(f'v_add_u32 v{X+8}, 4096, v{X+6}')
    I(f'v_add_u32 v{X+9}, 8192, v{X+6}')
    I(f'v_add_u32 v{X+10}, 12288, v{X+6}')
    I(f'v_lshrrev_b32 v{X+1}, 6, v{V_TID}')
    I(f'v_and_b32 v{V_LANE}, 63, v{V_TID}')
    I(f'v_readfirstlane_b32 s{S_W}, v{X+1}')
    I('s_and_b32 s3, s2, 7')
    I('s_lshl_b32 s3, s3, 5')
    I('s_lshr_b32 s60, s2, 3')
    I('s_add_u32 s3, s3, s60')
    I(f's_mul_i32 s62, s2, {CH*8}')
    I(f's_lshl_b32 s65, s63, 3')
    I(f'v_and_b32 v97, 0x50, v{V_TID}')
    I(f'v_lshlrev_b32 v96, 1, v97')
    I(f'v_or_b32 v97, v97, v96')
    I(f'v_and_b32 v97, 0x60, v97')
    I(f'v_xor_b32 v97, v97, v{X}')
    I(f'v_and_b32 v96, 0x20, v96')
    I(f'v_lshlrev_b32 v98, 4, v{V_LANE}')
    I(f'v_xor_b32 v96, v96, v98')
    I(f's_lshl_b32 s66, s{S_W}, 10')
    I(f'v_and_b32 v101, 0x1fff, v97')
    I(f'v_lshrrev_b32 v98, 3, v{V_TID}')
    I(f'v_bfe_u32 v99, v98, 1, 3')
    I(f'v_and_b32 v100, 7, v{V_TID}')
    I(f'v_xor_b32 v99, v99, v100')
    I(f'v_lshlrev_b32 v99, 4, v99')
    I(f'v_lshl_add_u32 v99, v98, 7, v99')
    I(f's_mul_i32 s60, s3, {NB*128}')
    I(f'v_add_u32 v99, s60, v99')
    I(f'v_add_u32 v96, 16384, v96')
    I('s_waitcnt lgkmcnt(0)')
    I(f's_or_b32 s67, s2, s{S_W}')
    I('s_cmp_lg_u32 s67, 0')
    I('s_cbranch_scc1 L_NOTAG')
    I('s_memrealtime s[68:69]')
    I(f'v_mov_b32 v{X+2}, 0')
    I('s_waitcnt lgkmcnt(0)')
    I('s_or_b32 s68, s68, 1')
    I(f'v_mov_b32 v{X+3}, s68')
    I('s_mov_b64 exec, 1')
    I(f'global_store_dword v{X+2}, v{X+3}, s[56:57] sc1')
    I('s_mov_b64 exec, -1')
    L('L_NOTAG')
    def dst_loads():
        srd_off(S_DST, 90, 91, 's61', 's64')
        for k in range(4):
            I(f'buffer_load_dword v{64+k}, v{X+6 if k == 0 else X+7+k}, {sr4(S_DST)}, 0 offen' + ELD)
    def dma_loads():
        srd(S_WS, 8, 9, 132 * 128)
        I(f's_add_u32 m0, s66, {WG_}')
        srd(S_XS, 84, 85, N_NODES * 128)
        I(f'buffer_load_dwordx4 v97, {sr4(S_WS)}, 0 offen lds')
        I(f's_cmp_lt_u32 s{S_W}, 8')
        I(f's_cselect_b32 s{S_NTS}, s6, s4')
        I(f's_cselect_b32 s{S_NTS+1}, s7, s5')
        I(f's_mov_b32 s{S_NTS+2}, {64*128}')
        I(f's_mov_b32 s{S_NTS+3}, 0x00020000')
        I(f's_add_u32 m0, s66, {WV_}')
        I('s_nop 0')
        I(f'buffer_load_dwordx4 v101, {sr4(S_NTS)}, 0 offen lds')
        I(f's_cmp_lt_u32 s{S_W}, 8')
        I('s_cbranch_scc0 L_D3B')
        I(f's_add_u32 m0, s66, {XOWN}')
        I('s_nop 0')
        I(f'buffer_load_dwordx4 v99, {sr4(S_XS)}, 0 offen lds')
        I('s_branch L_D3C')
        L('L_D3B')
        I(f's_mov_b32 m0, {WG_ + 16384}')
        I('s_nop 0')
        I(f'buffer_load_dwordx4 v96, {sr4(S_WS)}, 0 offen lds')
        L('L_D3C')
    if opt('t0', 0):
        I(f'v_and_b32 v60, 15, v{V_LANE}')
        I(f'v_lshlrev_b32 v60, 20, v60')
        I(f'v_and_b32 v61, 1, v{V_LANE}')
        I(f'v_lshlrev_b32 v61, 20, v61')
        I(f'global_load_dword v62, v60, s[58:59]')
        I(f'global_load_dword v63, v61, s[10:11]')
    ORDER = opt('order', 0)
    if ORDER == 0:
        dma_loads()
    dst_loads()
    srd_off(S_SRC, 88, 89, 's61', 's64')
    for k in range(4):
        I(f'buffer_load_dword v{68+k}, v{X+6 if k == 0 else X+7+k}, {sr4(S_SRC)}, 0 offen' + ELD)
    srd_off(S_EA, 86, 87, 's62', 's65')
    I(f'v_lshlrev_b32 v92, 3, v{V_TID}')
    for k in range(1, 4):
        I(f'v_add_u32 v{92+k}, {8192*k}, v92')
    def e_load(k):
        I(f'buffer_load_dwordx2 v[{72+2*k}:{73+2*k}], v{92+k}, {sr4(S_EA)}, 0 offen' + ELD)
    NEE = opt('nee', 4)
    for k in range(NEE):
        e_load(k)
    if ORDER == 1:
        dma_loads()
    I(f's_mov_b64 {sp(S_DBG)}, s[56:57]')
    I(f's_add_u32 s{S_WSP}, s58, 0x{WSB:x}')
    I(f's_addc_u32 s{S_WSP+1}, s59, 0')
    stamp(1)
    srd(S_OUT, 10, 11, N_NODES * 128)
    I(f's_add_u32 s{S_T}, s61, 0x{WS_RW:x}')
    srd_off(S_RW, S_WSP, S_WSP + 1, f's{S_T}', CH * 4)
    I(f's_add_u32 s{S_T}, s62, 0x{WS_RE:x}')
    srd_off(S_RE, S_WSP, S_WSP + 1, f's{S_T}', CH * 8)
    I(f's_lshl_b32 s{S_T}, s2, 11')
    I(f's_add_u32 s{S_T}, s{S_T}, 0x{WS_TAB:x}')
    srd_off(S_TAB, S_WSP, S_WSP + 1, f's{S_T}', 2048)
    I(f's_mul_i32 s{S_T}, s3, {NB*256}')
    I(f's_add_u32 s{S_T}, s{S_T}, 0x{WS_NT:x}')
    srd_off(S_NTS, S_WSP, S_WSP + 1, f's{S_T}', NB * 256)
    I(f's_add_u32 s{S_NTG}, s{S_WSP}, 0x{WS_NT:x}')
    I(f's_addc_u32 s{S_NTG+1}, s{S_WSP+1}, 0')
    I(f's_or_b32 s{S_NTG+1}, s{S_NTG+1}, 0x80000000')
    I(f's_mov_b32 s{S_NTG+2}, 0x400000')
    I(f's_mov_b32 s{S_NTG+3}, 0x00c00000')
    srd_off(S_DST, S_WSP, S_WSP + 1, '0x%x' % WS_RW, NWG * CH * 4)
    srd_off(S_SRC, S_WSP, S_WSP + 1, '0x%x' % WS_RE, NWG * CH * 8)
    for k in range(4):
        I(f'v_add_u32 v{X+1}, {1024*k}, v{V_TID}')
        I(f'v_cmp_gt_u32 {sp(S_MASK+2*k)}, s63, v{X+1}')
    I(f's_mov_b32 s{S_C}, 0x{f2u(2.0**-KEXP):x}')
    I(f's_mov_b32 s{S_C+1}, 0x{f2u(2.0**-KEXP):x}')
    I(f's_mov_b32 s{S_JB}, 0')
    I(f's_mov_b32 s{S_WID}, 128')
    I(f'v_and_b32 v{V_J4}, 15, v{V_LANE}')
    I(f'v_lshlrev_b32 v{V_J4}, 2, v{V_J4}')
    I(f'v_lshrrev_b32 v{X+1}, 4, v{V_LANE}')
    I(f's_lshl_b32 s{S_T}, s{S_W}, 4')
    I(f'v_add_u32 v{X+1}, s{S_T}, v{X+1}')
    I(f'v_mul_u32_u24 v{V_CB4}, {CH*4}, v{X+1}')
    I(f'v_add_u32 v{V_CB4}, v{V_CB4}, v{V_J4}')
    I(f'v_and_b32 v{V_CH8}, 31, v{V_LANE}')
    I(f'v_lshlrev_b32 v{V_CH8}, 3, v{V_CH8}')
    I(f'v_add_u32 v{V_CHP}, {PT}, v{V_CH8}')
    phase0_addr()
    a5_const()
    I(f's_waitcnt vmcnt({8 + NEE if ORDER == 0 else 0})')
    I('s_barrier')
    stamp(2)
    for k in range(NEE, 4):
        e_load(k)
    I(f'v_mov_b32 v12, 0')
    I(f'global_load_dword v10, v12, {sp(S_DBG)} sc1')
    if TCH:
        I(f'v_lshlrev_b32 v13, 10, v{V_LANE}')
        I(f'buffer_load_dword v60, v13, {sr4(S_RW)}, 0 offen')
        I(f'buffer_load_dword v61, v13, {sr4(S_RE)}, 0 offen')
        I(f'buffer_load_dword v62, v13, {sr4(S_TAB)}, 0 offen')
        I(f'buffer_load_dword v63, v13, {sr4(S_NTS)}, 0 offen')
    srd_off(S_EA, S_WSP, S_WSP + 1, '0x%x' % WS_TAB, NWG * 2048)
    phase0a()
    I(f's_mov_b32 s{S_T}, -{NB}')
    I(f'v_mov_b32 v{X+1}, 4')
    BN, WD, RK = 28, 32, 36
    for k in range(4):
        I(f's_waitcnt vmcnt({12 + TCH - k})')
        I(f's_mov_b64 exec, {sp(S_MASK+2*k)}')
        if k == 3:
            I('s_cbranch_execz L_B1')
        I(f'v_mul_u32_u24 v{BN+k}, 21400, v{64+k}')
        I(f'v_lshrrev_b32 v{BN+k}, 20, v{BN+k}')
        I(f'v_mad_i32_i24 v{WD+k}, v{BN+k}, s{S_T}, v{64+k}')
        I(f'v_lshlrev_b32 v{BN+k}, 2, v{BN+k}')
        I(f'ds_add_rtn_u32 v{RK+k}, v{BN+k}, v{X+1} offset:{HIST}')
        I(f'v_lshlrev_b32 v{WD+k}, 26, v{WD+k}')
    L('L_B1')
    I('s_mov_b64 exec, -1')
    I(f'v_add_u32 v{X+1}, {NTI}, v{X}')
    stamp(3)
    I(f's_waitcnt lgkmcnt(0)')
    I('s_barrier')
    stamp(4)
    I(f'ds_read_b128 v[112:115], v{X+1}')
    I(f's_cmp_lg_u32 s{S_W}, 0')
    I('s_cbranch_scc1 L_NOSCAN')
    I(f'ds_read_b128 v[96:99], v{X} offset:{HIST}')
    I('s_waitcnt lgkmcnt(0)')
    I('v_add_u32 v101, v96, v97')
    I('v_add_u32 v102, v101, v98')
    I('v_add_u32 v103, v102, v99')
    I('v_mov_b32 v104, v103')
    wave_scan(104)
    I('v_sub_u32 v104, v104, v103')
    I('v_add_u32 v105, v104, v96')
    I('v_add_u32 v106, v104, v101')
    I('v_add_u32 v107, v104, v102')
    I(f'ds_write_b128 v{X}, v[104:107] offset:{HBASE}')
    for k in range(4):
        I(f'v_lshl_or_b32 v{108+k}, v{96+k}, 16, v{104+k}')
    I(f'ds_write_b128 v{X}, v[108:111] offset:{HIST}')
    L('L_NOSCAN')
    I('s_waitcnt lgkmcnt(0)')
    I(f'buffer_store_dwordx4 v[112:115], v{X}, {sr4(S_NTS)}, 0 offen' + SC)
    if T1:
        I(f's_mul_i32 s{S_T+4}, s3, {NB*128}')
        I(f'v_mov_b32 v60, s{S_T+4}')
        I(f'buffer_load_dword v61, v60, {sr4(S_OUT)}, 0 offen')
    I(f's_waitcnt vmcnt({6 + TCH + T1})')
    for k in range(4):
        I(f'v_lshl_or_b32 v{WD+k}, v{68+k}, 3, v{WD+k}')
    I('s_barrier')
    stamp(5)
    for k in range(4):
        I(f's_mov_b64 exec, {sp(S_MASK+2*k)}')
        I(f'ds_read_b32 v{BN+k}, v{BN+k} offset:{HBASE}')
    I(f's_waitcnt vmcnt({1 + TCH + T1})')
    I(f'v_readfirstlane_b32 s{S_TAG}, v10')
    for k in range(4):
        I(f's_mov_b64 exec, {sp(S_MASK+2*k)}')
        if k == 3:
            I('s_cbranch_execz L_B2')
        I(f's_waitcnt lgkmcnt({3 - k + 2*k})')
        I(f'v_add_u32 v{RK+k}, v{BN+k}, v{RK+k}')
        I(f'v_add_u32 v{BN+k}, v{RK+k}, v{RK+k}')
        I(f'ds_write_b32 v{RK+k}, v{WD+k} offset:{STGW}')
        I(f'ds_write_b64 v{BN+k}, v[{72+2*k}:{73+2*k}] offset:{STGE}')
    L('L_B2')
    I('s_mov_b64 exec, -1')
    I(f's_mov_b32 s{S_T}, 0x40000')
    L('L_TAGP')
    I(f's_cmp_lg_u32 s{S_TAG}, 0')
    I('s_cbranch_scc1 L_TAGD')
    I(f'v_mov_b32 v12, 0')
    I(f'global_load_dword v10, v12, {sp(S_DBG)} sc1')
    I('s_waitcnt vmcnt(0)')
    I(f'v_readfirstlane_b32 s{S_TAG}, v10')
    I(f's_sub_u32 s{S_T}, s{S_T}, 1')
    I('s_cbranch_scc1 L_END')
    I('s_branch L_TAGP')
    L('L_TAGD')
    I(f'v_add_u32 v{X+2}, 16384, v{X}')
    I(f'v_lshlrev_b32 v12, 3, v{V_LANE}')
    I(f's_mul_i32 s{S_TAG2}, s{S_TAG}, 0x9e3779b1')
    I(f's_and_b32 s{S_TAG2}, s{S_TAG2}, 0x{TAGM:x}')
    I('s_waitcnt lgkmcnt(0)')
    I('s_barrier')
    stamp(6)
    I(f'ds_read_b128 v[64:67], v{X} offset:{STGW}')
    I(f'ds_read_b128 v[68:71], v{X} offset:{STGE}')
    I(f'ds_read_b128 v[72:75], v{X} offset:{STGE+16384}')
    I(f'ds_read_b64 v[92:93], v12 offset:{HIST}')
    I(f'ds_read_b64 v[94:95], v12 offset:{HIST+512}')
    I('s_waitcnt lgkmcnt(4)')
    I(f'buffer_store_dwordx4 v[64:67], v{X}, {sr4(S_RW)}, 0 offen' + SC)
    I('s_waitcnt lgkmcnt(3)')
    I(f'buffer_store_dwordx4 v[68:71], v{X}, {sr4(S_RE)}, 0 offen' + SC)
    I('s_waitcnt lgkmcnt(2)')
    I(f'buffer_store_dwordx4 v[72:75], v{X+2}, {sr4(S_RE)}, 0 offen' + SC)
    I('s_waitcnt lgkmcnt(0)')
    for k in range(4):
        I(f'v_or_b32 v{120+2*k}, s{S_TAG2}, v{92+k}')
        I(f'v_mov_b32 v{121+2*k}, s{S_TAG}')
    pre = opt('pre', 'xbc')
    def piece(c):
        if c == 'x':
            zregs()
            zero_range(EXTRA, 16384, X + 2, X)
            fill_desca()
        elif c == 'b':
            phase0b()
        elif c == 'c':
            phase0c()
    for c in pre:
        piece(c)
    stamp(7)
    I(f'v_lshrrev_b32 v76, 4, v{V_LANE}')
    I(f's_lshl_b32 s{S_T}, s{S_W}, 15')
    I(f's_lshl_b32 s{S_T+1}, s3, 3')
    I(f's_add_u32 s{S_T}, s{S_T}, s{S_T+1}')
    I(f'v_lshlrev_b32 v76, 11, v76')
    I(f'v_add_u32 v76, s{S_T}, v76')
    for r in range(1, 4):
        I(f'v_add_u32 v{76+r}, {8192*r}, v76')
    I(f'v_lshlrev_b32 v60, 4, v{V_LANE}')
    for r in range(4):
        I(f's_mov_b64 {sp(S_MASK+2*r)}, -1')
    I('s_waitcnt vmcnt(0)')
    stamp(8)
    I('s_barrier')
    stamp(9)
    I(f's_cmp_lg_u32 s{S_W}, 0')
    I('s_cbranch_scc1 L_POLL0')
    I(f'buffer_store_dwordx4 v[120:123], v60, {sr4(S_TAB)}, 0 offen' + SC)
    I(f'buffer_store_dwordx4 v[124:127], v60, {sr4(S_TAB)}, 0 offen offset:1024' + SC)
    L('L_POLL0')
    for c in 'xbc':
        if c not in pre:
            piece(c)
    fill_words()
    zregs()
    zero_range(LE, CNT - LE, X + 2, X)
    I(f's_mov_b32 s{S_T}, 0x40000')
    I(f's_mov_b32 s{S_T+1}, 0x{TAGM:x}')
    L('L_POLL')
    for r in range(4):
        I(f's_mov_b64 exec, {sp(S_MASK+2*r)}')
        I(f'buffer_load_dwordx2 {p(64+2*r)}, v{76+r}, {sr4(S_EA)}, 0 offen' + LSC)
    for r in range(4):
        I(f's_waitcnt vmcnt({3-r})')
        I(f's_mov_b64 exec, {sp(S_MASK+2*r)}')
        I(f'v_xor_b32 v{V_TAB+r}, s{S_TAG2}, v{64+2*r}')
        I(f'v_xor_b32 v{65+2*r}, s{S_TAG}, v{65+2*r}')
        I(f'v_and_or_b32 v{65+2*r}, v{V_TAB+r}, s{S_T+1}, v{65+2*r}')
        I(f'v_cmp_ne_u32 {sp(S_MASK+2*r)}, 0, v{65+2*r}')
    I(f's_or_b64 {sp(S_T+2)}, {sp(S_MASK)}, {sp(S_MASK+2)}')
    I(f's_or_b64 {sp(S_T+4)}, {sp(S_MASK+4)}, {sp(S_MASK+6)}')
    I(f's_or_b64 {sp(S_T+2)}, {sp(S_T+2)}, {sp(S_T+4)}')
    I('s_cbranch_scc0 L_POLLED')
    I(f's_sub_u32 s{S_T}, s{S_T}, 1')
    I('s_cbranch_scc1 L_END')
    if opt('sleep', 1):
        I(f's_sleep {opt("sleep", 1)}')
    I('s_branch L_POLL')
    L('L_POLLED')
    I('s_mov_b64 exec, -1')
    if opt('pbar', 0):
        I('s_barrier')
    stamp(10)
    REC = 64
    A4, A8 = X, X + 4
    L('L_PASS')
    I(f'v_add_u32 v{X+8}, s{S_JB}, v{V_J4}')
    I(f'v_add_u32 v{X+9}, 64, v{X+8}')
    I(f'v_add_u32 v{X+10}, s{S_JB}, v{V_CB4}')
    I(f's_cmp_eq_u32 s{S_WID}, 128')
    I(f's_cselect_b64 {sp(S_T+4)}, -1, 0')
    for r in range(4):
        I(f'v_add_u32_sdwa v{A4+r}, v{V_TAB+r}, v{X+10} dst_sel:DWORD dst_unused:UNUSED_PAD src0_sel:WORD_0 src1_sel:DWORD')
        I(f'v_cmp_lt_u32_sdwa {sp(S_MASK+4*r)}, v{X+8}, v{V_TAB+r} src0_sel:DWORD src1_sel:WORD_1')
        if r:
            I(f'v_add_u32 v{A4+r}, {r*4*CH*4}, v{A4+r}')
        I(f'v_cmp_lt_u32_sdwa vcc, v{X+9}, v{V_TAB+r} src0_sel:DWORD src1_sel:WORD_1')
        I(f'v_add_u32 v{A8+r}, v{A4+r}, v{A4+r}')
        I(f's_and_b64 {sp(S_MASK+4*r+2)}, vcc, {sp(S_T+4)}')
        I(f's_mov_b64 exec, {sp(S_MASK+4*r)}')
        I(f'buffer_load_dword v{REC+8*r+2}, v{A4+r}, {sr4(S_DST)}, 0 offen' + LSC)
        I(f'buffer_load_dwordx2 {p(REC+8*r)}, v{A8+r}, {sr4(S_SRC)}, 0 offen' + LSC)
        I('s_mov_b64 exec, -1')
    for r in range(4):
        I(f's_mov_b64 exec, {sp(S_MASK+4*r+2)}')
        I(f'buffer_load_dword v{REC+8*r+6}, v{A4+r}, {sr4(S_DST)}, 0 offen offset:64' + LSC)
        I(f'buffer_load_dwordx2 {p(REC+8*r+4)}, v{A8+r}, {sr4(S_SRC)}, 0 offen offset:128' + LSC)
    I('s_mov_b64 exec, -1')
    if NPFM == 1:
        nt_prefetch(X + 8)
    I(f'v_max3_u32 v{X+8}, v{V_TAB}, v{V_TAB+1}, v{V_TAB+2}')
    I(f'v_max_u32 v{X+8}, v{X+8}, v{V_TAB+3}')
    I(f'v_lshrrev_b32 v{X+8}, 16, v{X+8}')
    I(f's_add_u32 s{S_T}, s{S_JB}, s{S_WID}')
    I(f'v_cmp_lt_u32 vcc, s{S_T}, v{X+8}')
    I(f'v_mov_b32 v{X+8}, 4')
    I(f's_cbranch_vccz L_NOMORE')
    I(f'v_mov_b32 v{X+9}, {MISC}')
    I(f'ds_write_b32 v{X+9}, v{X+8}')
    L('L_NOMORE')
    stamp(11)
    for r in range(4):
        I(f's_waitcnt vmcnt({15 + NPF1 - 2*r})')
        I(f's_mov_b64 exec, {sp(S_MASK+4*r)}')
        I(f'v_lshrrev_b32 v{A4+r}, 24, v{REC+8*r+2}')
        I(f'ds_add_rtn_u32 v{REC+8*r+3}, v{A4+r}, v{X+8} offset:{CNT}')
    for r in range(4):
        I(f's_mov_b64 exec, {sp(S_MASK+4*r+2)}')
        I(f's_cbranch_execz L_C{r}')
        I(f's_waitcnt vmcnt({7 + NPF1 - 2*r})')
        I(f'v_lshrrev_b32 v{A8+r}, 24, v{REC+8*r+6}')
        I(f'ds_add_rtn_u32 v{REC+8*r+7}, v{A8+r}, v{X+8} offset:{CNT}')
        L(f'L_C{r}')
    I('s_mov_b64 exec, -1')
    I(f'v_lshlrev_b32 v{X+8}, 2, v{V_LANE}')
    I(f'v_mov_b32 v{X+9}, {MISC}')
    I(f's_mov_b32 s{S_T+2}, 0x1fff8')
    I('s_waitcnt lgkmcnt(0)')
    I('s_barrier')
    stamp(12)
    if NPFM == 2:
        nt_prefetch(12)
        I(f's_mov_b32 s{S_T+2}, 0x1fff8')
    NG, GS, MI = X + 10, X + 11, X + 12
    I(f'ds_read_b32 v{NG}, v{X+8} offset:{CNT}')
    I(f'ds_read_b32 v{X+9}, v{X+9}')
    I('s_waitcnt lgkmcnt(1)')
    I(f'v_add_u32 v{NG}, 28, v{NG}')
    I(f'v_and_b32 v{NG}, 0xffffffe0, v{NG}')
    I(f'v_mov_b32 v{GS}, v{NG}')
    wave_scan(GS)
    I(f'v_readlane_b32 s{S_T}, v{GS}, 63')
    I(f'v_sub_u32 v{GS}, v{GS}, v{NG}')
    I(f'ds_write_b32 v{X+8}, v{GS} offset:{BASET}')
    for r in range(4):
        I(f's_mov_b64 exec, {sp(S_MASK+4*r)}')
        I(f'ds_read_b32 v{A4+r}, v{A4+r} offset:{BASET}')
    for r in range(4):
        I(f's_mov_b64 exec, {sp(S_MASK+4*r+2)}')
        I(f'ds_read_b32 v{A8+r}, v{A8+r} offset:{BASET}')
    I('s_mov_b64 exec, -1')
    I(f'v_readfirstlane_b32 s{S_MORE}, v{X+9}')
    out.insert(len(out) - 1, '    s_waitcnt lgkmcnt(9)')
    I(f's_lshr_b32 s{S_T}, s{S_T}, 5')
    I(f's_cmp_eq_u32 s{S_WID}, 128')
    I(f's_cselect_b32 s{S_T+1}, {MAXG}, -1')
    I(f's_cmp_gt_u32 s{S_T}, s{S_T+1}')
    I('s_cbranch_scc1 L_OVERFLOW')
    I(f's_add_u32 s{S_L}, s{S_T}, 63')
    I(f's_lshr_b32 s{S_L}, s{S_L}, 6')
    I(f'v_cvt_f32_u32 v{MI}, s{S_L}')
    I(f'v_rcp_f32 v{MI}, v{MI}')
    I(f'v_lshrrev_b32 v{GS}, 5, v{GS}')
    I(f'v_mul_f32 v{MI}, 0x47800000, v{MI}')
    I(f'v_cvt_u32_f32 v{MI}, v{MI}')
    I(f'v_lshrrev_b32 v{NG}, 5, v{NG}')
    I(f'v_add_u32 v{MI}, 2, v{MI}')
    I(f's_waitcnt vmcnt({NPF})')
    for r in range(4):
        I(f's_waitcnt lgkmcnt({7 - r + 2*r})')
        I(f's_mov_b64 exec, {sp(S_MASK+4*r)}')
        I(f'v_add_u32 v{A4+r}, v{A4+r}, v{REC+8*r+3}')
        I(f'v_and_b32 v{REC+8*r+2}, s{S_T+2}, v{REC+8*r+2}')
        I(f'v_add_u32 v{REC+8*r+3}, v{A4+r}, v{A4+r}')
        I(f'ds_write_b32 v{A4+r}, v{REC+8*r+2} offset:{LS}')
        I(f'ds_write_b64 v{REC+8*r+3}, {p(REC+8*r)} offset:{LE}')
    I('s_waitcnt lgkmcnt(8)')
    for r in range(4):
        I(f's_mov_b64 exec, {sp(S_MASK+4*r+2)}')
        I(f's_cbranch_execz L_P{r}')
        I(f'v_add_u32 v{A8+r}, v{A8+r}, v{REC+8*r+7}')
        I(f'v_and_b32 v{REC+8*r+6}, s{S_T+2}, v{REC+8*r+6}')
        I(f'v_add_u32 v{REC+8*r+7}, v{A8+r}, v{A8+r}')
        I(f'ds_write_b32 v{A8+r}, v{REC+8*r+6} offset:{LS}')
        I(f'ds_write_b64 v{REC+8*r+7}, {p(REC+8*r+4)} offset:{LE}')
        L(f'L_P{r}')
    I('s_mov_b64 exec, -1')
    stamp(13)
    SA_, SB_ = X, X + 1
    I(f'v_mul_u32_u24 v{SA_}, v{GS}, v{MI}')
    I(f'v_max_u32 v{SB_}, 1, v{NG}')
    I(f'v_lshrrev_b32 v{SA_}, 16, v{SA_}')
    I(f'v_add3_u32 v{SB_}, v{SB_}, v{GS}, -1')
    I(f'v_mul_u32_u24 v{SB_}, v{SB_}, v{MI}')
    I(f'v_lshlrev_b32 v{X+2}, 3, v{V_LANE}')
    I(f'v_lshrrev_b32 v{SB_}, 16, v{SB_}')
    I(f'v_lshlrev_b32 v{X+3}, 8, v{V_LANE}')
    I(f'ds_write_b64 v{X+2}, {p(SA_)} offset:{NINFO}')
    I(f'v_add_u32 v{X+4}, {ACCN}, v{X+3}')
    I(f's_mov_b32 s{S_T}, s{S_W}')
    I(f's_sub_u32 s{S_T+1}, 0, s{S_L}')
    L('L_DLOOP')
    I(f'v_cmp_lt_u32 vcc, s{S_T}, v{NG}')
    I('s_and_b64 exec, exec, vcc')
    I('s_cbranch_execz L_DEND')
    I(f'v_add_u32 v{X+5}, s{S_T}, v{GS}')
    I(f'v_mul_u32_u24 v{X+6}, v{X+5}, v{MI}')
    I(f'v_lshrrev_b32 v{X+6}, 16, v{X+6}')
    I(f'v_mad_i32_i24 v{X+5}, v{X+6}, s{S_T+1}, v{X+5}')
    I(f'v_cmp_eq_u32 vcc, v{X+6}, v{SA_}')
    I(f'v_lshl_add_u32 v{X+5}, v{X+5}, 6, v{X+6}')
    I(f'v_lshlrev_b32 v{X+6}, 8, v{X+6}')
    I(f'v_lshlrev_b32 v{X+5}, 2, v{X+5}')
    I(f'v_add_u32 v{X+6}, {EXTRA}, v{X+6}')
    I(f'v_add_u32 v{X+7}, {DESCA}, v{X+5}')
    I(f'v_cndmask_b32 v{X+6}, v{X+6}, v{X+4}, vcc')
    I(f'ds_write_b32 v{X+5}, v{X+3} offset:{DESCP}')
    I(f'ds_write_b32 v{X+7}, v{X+6}')
    I(f's_add_u32 s{S_T}, s{S_T}, 16')
    I('s_branch L_DLOOP')
    L('L_DEND')
    I('s_mov_b64 exec, -1')
    I(f's_lshl_b32 s{S_T}, s{S_W}, 2')
    I(f's_lshl_b32 s{S_T+1}, s{S_L}, 5')
    I(f'v_lshrrev_b32 v{X}, 5, v{V_LANE}')
    I(f'v_lshl_add_u32 v{X+1}, v{X}, 1, s{S_T}')
    I(f'v_mul_u32_u24 v{V_PS0}, s{S_T+1}, v{X+1}')
    I(f'v_lshlrev_b32 v{V_PD}, 2, v{X+1}')
    I(f'v_add_u32 v{V_PS1}, s{S_T+1}, v{V_PS0}')
    I(f'v_add_u32 v{V_PD}, {DESCP}, v{V_PD}')
    I(f'v_bfe_u32 v{X}, v{V_LANE}, 2, 1')
    I(f'v_and_b32 v{X+1}, 1, v{V_LANE}')
    I(f'v_lshl_or_b32 v{X}, v{X}, 1, v{X+1}')
    I(f'v_add_u32 v{X}, s{S_T}, v{X}')
    I(f's_lshl_b32 s{S_T+1}, s{S_L}, 6')
    I(f'v_mul_u32_u24 v{V_PE}, s{S_T+1}, v{X}')
    I(f'v_bfe_u32 v{X}, v{V_LANE}, 3, 2')
    I(f'v_bfe_u32 v{X+1}, v{V_LANE}, 1, 1')
    I(f'v_lshl_or_b32 v{X}, v{X}, 1, v{X+1}')
    I(f'v_lshl_add_u32 v{V_PE}, v{X}, 3, v{V_PE}')
    I(f'v_add_u32 v{V_PE}, {LE}, v{V_PE}')
    I(f's_mov_b32 s{S_CNT}, s{S_L}')
    I('s_waitcnt lgkmcnt(0)')
    I('s_barrier')
    stamp(14)
    I(f's_cmp_eq_u32 s{S_L}, 0')
    I('s_cbranch_scc1 L_FOLD')
    lg = Lg()
    if NPF:
        I('s_waitcnt vmcnt(0)')
    s_reads(lg, 0)
    lg.op('dP', f'ds_read_b64 {p(V_VAP)}, v{V_PD}')
    lg.op('dA', f'ds_read_b64 {p(V_VAA[0])}, v{V_PD} offset:{DESCA-DESCP}')
    lg.op('e', f'ds_read_b64 {p(A5)}, v{V_PE}')
    lg.need('S0', 'S1', 'S2', 'S3')
    for n in range(2):
        for i in range(16):
            I(gload(n, i))
    s_reads(lg, 1)
    lg.need('dP', 'dA')
    I(f'v_add_u32 v{V_VAP}, v{V_VAP}, v{V_CHP}')
    I(f'v_add_u32 v{V_VAP+1}, v{V_VAP+1}, v{V_CHP}')
    I(f'v_add_u32 v{V_VAA[0]}, v{V_VAA[0]}, v{V_CH8}')
    I(f'v_add_u32 v{V_VAA[0]+1}, v{V_VAA[0]+1}, v{V_CH8}')
    lg.op('P0a', f'ds_read_b32 v{B5[0]+2}, v{V_VAP}')
    lg.op('P0b', f'ds_read_b32 v{B5[0]+3}, v{V_VAP+1}')
    lg.op('P1a', f'ds_read_b32 v{B5[1]+2}, v{V_VAP} offset:4')
    lg.op('P1b', f'ds_read_b32 v{B5[1]+3}, v{V_VAP+1} offset:4')
    I(f's_cmp_eq_u32 s{S_CNT}, 1')
    I(f's_cselect_b64 {sp(S_LDX)}, 0, {LDXV}')
    I('s_waitcnt lgkmcnt(0)')
    lg.q = []
    if opt('prio', 3):
        I('s_setprio 3')
    stamp(15)
    rstamp(28)
    half(lg, 0, 0, 0, False)
    state0 = list(lg.q)
    def step(par, uo):
        half(lg, 1, par, uo)
        I(f's_sub_u32 s{S_CNT}, s{S_CNT}, 1')
        I(f's_cmp_eq_u32 s{S_CNT}, 0')
        I(f's_cbranch_scc1 L_FIN{par}')
        I(f's_cmp_eq_u32 s{S_CNT}, 1')
        I(f's_cselect_b64 {sp(S_LDX)}, 0, {LDXV}')
        prio(f'{par}')
        half(lg, 0, par ^ 1, uo + 1)
    def loop_body():
        step(0, 0)
        step(1, 1)
        I(f'v_add_u32 v{V_PS0}, 64, v{V_PS0}')
        I(f'v_add_u32 v{V_PS1}, 64, v{V_PS1}')
        I(f'v_add_u32 v{V_PE}, 128, v{V_PE}')
        I(f'v_add_u32 v{V_PD}, 512, v{V_PD}')
        I('s_branch L_LOOP')
    mark = len(out)
    loop_body()
    del out[mark:]
    qb = list(lg.q)
    n = min(len(qb), len(state0))
    assert qb[len(qb)-n:] == state0[len(state0)-n:], (state0, qb)
    lg.q = list(qb if len(qb) >= len(state0) else state0)
    e('.p2align 3')
    L('L_LOOP')
    loop_body()
    assert lg.q == qb, (lg.q, qb)
    print('loop entry queue', state0, 'back edge queue', qb, file=sys.stderr)
    for pr in range(2):
        L(f'L_FIN{pr}')
        for op in tail_ops(1):
            I(op)
        I(f'ds_write_b64 v{V_VAA[pr]}, {p(V_MA)}')
        I(f'ds_write_b64 v{V_VAA[pr]+1}, {p(V_MB)}')
        if pr == 0:
            I('s_branch L_FOLD')
    L('L_FOLD')
    stamp(16)
    I(f'v_lshrrev_b32 v{X}, 3, v{V_TID}')
    I(f'v_and_b32 v{X+1}, 7, v{V_TID}')
    I(f'v_lshlrev_b32 v{X+6}, 3, v{X+1}')
    I(f'v_lshlrev_b32 v{X+1}, 5, v{X+1}')
    I(f'v_lshl_add_u32 v{X+2}, v{X}, 8, v{X+1}')
    I(f'v_add_u32 v{X+2}, {ACCN}, v{X+2}')
    I(f'v_add_u32 v{X+1}, {EXTRA}, v{X+1}')
    I(f'v_lshlrev_b32 v{X+3}, 3, v{X}')
    I(f's_mul_i32 s{S_T+4}, s3, {NB*128}')
    I(f'v_lshl_add_u32 v{X+6}, v{X}, 7, v{X+6}')
    I(f'v_add_u32 v{X+6}, s{S_T+4}, v{X+6}')
    I(f'v_mov_b32 v{X+7}, 0')
    I('s_waitcnt vmcnt(0) lgkmcnt(0)')
    I('s_barrier')
    stamp(17)
    rstamp(29)
    if PROF:
        I(f'v_writelane_b32 v{V_PROF}, s{S_L}, 27')
    I(f'v_cmp_gt_u32 vcc, {NB*8}, v{V_TID}')
    I(f's_and_saveexec_b64 {sp(S_EX)}, vcc')
    I('s_cbranch_execz L_FDONE')
    I(f'ds_read_b64 {p(X+4)}, v{X+3} offset:{NINFO}')
    I(f'ds_read_b128 v[64:67], v{X+2}')
    I(f'ds_read_b128 v[68:71], v{X+2} offset:16')
    I(f's_mov_b64 {sp(S_T)}, exec')
    I('s_waitcnt lgkmcnt(0)')
    L('L_FLOOP')
    I(f'v_cmp_lt_u32 vcc, v{X+4}, v{X+5}')
    I('s_and_b64 exec, exec, vcc')
    I('s_cbranch_execz L_FLEND')
    I(f'v_add_u32 v{X+4}, 1, v{X+4}')
    I(f'v_lshl_add_u32 v{X+7}, v{X+4}, 8, v{X+1}')
    I(f'ds_read_b128 v[72:75], v{X+7}')
    I(f'ds_read_b128 v[76:79], v{X+7} offset:16')
    I('s_waitcnt lgkmcnt(0)')
    for k in range(8):
        I(f'v_add_f32 v{64+k}, v{64+k}, v{72+k}')
    I('s_branch L_FLOOP')
    L('L_FLEND')
    I(f's_mov_b64 exec, {sp(S_T)}')
    I(f's_cmp_lg_u32 s{S_MORE}, 0')
    I('s_cbranch_scc1 L_WB')
    I(f's_mov_b32 s{S_T+2}, 0x{f2u(2.0**-(SV+KEXP)):x}')
    I(f's_mov_b32 s{S_T+3}, 0x{f2u(-LOG2E):x}')
    for k in range(8):
        I(f'v_mul_f32 v{64+k}, s{S_T+2}, v{64+k}')
    for k in range(8):
        I(f'v_mul_f32 v{72+k}, s{S_T+3}, v{64+k}')
    for k in range(8):
        I(f'v_exp_f32 v{72+k}, v{72+k}')
    for k in range(8):
        I(f'v_add_f32 v{72+k}, 1.0, v{72+k}')
    for k in range(8):
        I(f'v_rcp_f32 v{72+k}, v{72+k}')
    for k in range(8):
        I(f'v_mul_f32 v{64+k}, v{64+k}, v{72+k}')
    I('v_cvt_pk_bf16_f32 v80, v64, v66')
    I('v_cvt_pk_bf16_f32 v81, v68, v70')
    I('v_cvt_pk_bf16_f32 v82, v65, v67')
    I('v_cvt_pk_bf16_f32 v83, v69, v71')
    I(f'buffer_store_dwordx2 v[80:81], v{X+6}, {sr4(S_OUT)}, 0 offen' + OSC)
    I(f'buffer_store_dwordx2 v[82:83], v{X+6}, {sr4(S_OUT)}, 0 offen offset:64' + OSC)
    stamp(18)
    prof_store()
    diag_end()
    I('s_endpgm')
    L('L_WB')
    I(f'ds_write_b128 v{X+2}, v[64:67]')
    I(f'ds_write_b128 v{X+2}, v[68:71] offset:16')
    L('L_FDONE')
    I('s_mov_b64 exec, -1')
    I(f's_cmp_eq_u32 s{S_MORE}, 0')
    I('s_cbranch_scc1 L_QUIT')
    I(f's_add_u32 s{S_JB}, s{S_JB}, s{S_WID}')
    I('s_branch L_REFILL')
    L('L_OVERFLOW')
    I(f's_mov_b32 s{S_WID}, 64')
    L('L_REFILL')
    I('s_waitcnt vmcnt(0) lgkmcnt(0)')
    I('s_barrier')
    fill_zero()
    fill_words()
    I('s_waitcnt lgkmcnt(0)')
    I('s_barrier')
    I('s_branch L_PASS')
    L('L_QUIT')
    prof_store()
    L('L_END')
    I('s_endpgm')

hdr = open('standalone__edge_featured_mpnn_egc__graph.s.ref').read().split('\n')
for line in hdr:
    if line.startswith('; Override'):
        break
    e(line)
e(f'; @launch grid=({NWG},1,1) block=(1024,1,1) lds={LDS_BYTES}')
e('.amdgcn_target "amdgcn-amd-amdhsa--gfx950"')
e('.text')
gen()
e('.section .rodata,"a"')
e('.p2align 6')
e(f'.amdhsa_kernel {KNAME}')
e('  .amdhsa_next_free_vgpr 128')
e('  .amdhsa_next_free_sgpr 102')
e('  .amdhsa_accum_offset 128')
e('  .amdhsa_group_segment_fixed_size 0')
e('  .amdhsa_kernarg_size 80')
e('  .amdhsa_user_sgpr_count 2')
e('  .amdhsa_user_sgpr_kernarg_segment_ptr 1')
e('  .amdhsa_system_sgpr_workgroup_id_x 1')
e('  .amdhsa_float_denorm_mode_32 3')
e('.end_amdhsa_kernel')
open(sys.argv[1], 'w').write('\n'.join(x for x in out if x is not None) + '\n')
```

```python
import sys, struct

OPT = dict(a.split('=') for a in sys.argv[2:] if '=' in a)
def opt(name, default):
    return type(default)(OPT.get(name, default))

KNAME = 'standalone__edge_featured_mpnn_egc__graph_kernel'
N_NODES = 12500
E_EDGES = 800000
NB = 49
NWG = 256
CH = 3136
WS_RW = 0
WS_RE = 0x00400000
WS_TAB = 0x00A80000
WS_NT = 0x00C00000
WS_PROF = 0x01000000
KEXP = 31
SV = 30
LOG2E = 1.4426950408889634
SC = opt('sc', 'sc1')
SC = (' ' + SC.replace('+', ' ')) if SC != 'none' else ''
LSC = opt('lsc', 'sc1')
LSC = (' ' + LSC.replace('+', ' ')) if LSC != 'none' else ''
GSC = opt('gsc', 'sc1')
GSC = (' ' + GSC.replace('+', ' ')) if GSC != 'none' else ''
ELD = opt('eld', 'none')
ELD = (' ' + ELD.replace('+', ' ')) if ELD != 'none' else ''

def f2u(x):
    return struct.unpack('<I', struct.pack('<f', x))[0]

out = []
def e(s=''):
    out.append(s)
def I(s):
    out.append('    ' + s)
def L(name):
    out.append(name + ':')
def vr(a, n):
    return f'v[{a}:{a+n-1}]' if n > 1 else f'v{a}'
def sr4(a):
    return f's[{a}:{a+3}]'
def sp(a):
    return f's[{a}:{a+1}]'
def p(r):
    return f'v[{r}:{r+1}]'

def srd(d, lo, hi, nrec):
    I(f's_mov_b32 s{d}, s{lo}')
    I(f's_mov_b32 s{d+1}, s{hi}')
    I(f's_mov_b32 s{d+2}, {nrec}')
    I(f's_mov_b32 s{d+3}, 0x00020000')

def srd_off(d, lo, hi, off, nrec):
    I(f's_add_u32 s{d}, s{lo}, {off}')
    I(f's_addc_u32 s{d+1}, s{hi}, 0')
    I(f's_mov_b32 s{d+2}, {nrec}')
    I(f's_mov_b32 s{d+3}, 0x00020000')

def wave_scan(v):
    for sh in (1, 2, 4, 8):
        I('s_nop 1')
        I(f'v_add_u32_dpp v{v}, v{v}, v{v} row_shr:{sh} row_mask:0xf bank_mask:0xf')
    I('s_nop 1')
    I(f'v_add_u32_dpp v{v}, v{v}, v{v} row_bcast:15 row_mask:0xa bank_mask:0xf')
    I('s_nop 1')
    I(f'v_add_u32_dpp v{v}, v{v}, v{v} row_bcast:31 row_mask:0xc bank_mask:0xf')
    I('s_nop 1')

LS = 0
ZR = 18688
LE = 18688
CNT = 56064
MISC = 56320
BASET = 56576
NINFO = 56832
HIST = 57344
HBASE = 58368
DESCP = 59392
EXTRA = 67840
DESCA = 84224
PT = 86784
ACCN = 99328
WRAW = 111872
WG_, WV_, WU_ = WRAW, WRAW + 17408, WRAW + 25600
XOWN = WRAW + 33792
LDS_BYTES = XOWN + 8192
STGW = 0
STGE = CH * 4
NTI = EXTRA
MAXG = 576
assert STGE + CH * 8 <= CNT

V_TID, V_LANE = 0, 1
V_MA, V_MB = 2, 4
V_VAA = (6, 8)
V_VAP = 10
V_PS0, V_PS1, V_PE, V_PD, V_CH8, V_CHP = 12, 13, 14, 15, 16, 17
V_PROF = 18
V_TAB = 20
V_J4, V_CB4 = 24, 25
V_X = 26
V_T01D, V_T01N, V_T23D, V_T23N = 40, 42, 44, 46
B5 = (48, 52)
A5 = 56
V_TT = (60, 62)
G = (64, 80)
Z = 96
S = 112

S_XS, S_WS, S_DST, S_SRC, S_EA, S_RW, S_RE, S_TAB, S_NTS, S_NTG, S_OUT = 12, 16, 20, 24, 28, 32, 36, 40, 44, 48, 52
S_MASK = 56
S_W, S_L, S_CNT, S_JB, S_WID, S_MORE = 72, 73, 74, 75, 76, 77
S_C = 78
S_EX = 80
S_LDX = 82
S_T = 84
S_WSP = 94
S_DBG = 96
S_TAG, S_TAG2 = 100, 101
TAGM = 0xC003C003
TAGL = MISC + 64

NT2 = 2 if opt('touch', 0) else 0
LDXV = 0 if opt('noload', 0) else -1
NPFM = opt('npf', 4)
NPF = {0: 0, 1: 7, 2: 7, 3: 2, 4: 1, 5: 1}[NPFM]
NPF1 = NPF if NPFM in (1, 5) else 0
WSB = opt('wsb', 0) << 20
TCH = 4 if opt('touch', 0) else 0
T1 = opt('t1', 0)
OSC = opt('osc', 'nt')
OSC = (' ' + OSC.replace('+', ' ')) if OSC != 'none' else ''
KREP = opt('krep', 1)
assert KREP <= 3
PROF = opt('prof', 0)
DIAG = opt('diag', -1)
def diag_end():
    if DIAG < 0:
        return
    I('s_memrealtime s[98:99]')
    I('s_waitcnt lgkmcnt(0)')
    I('v_readlane_b32 s92, v18, 1')
    I('v_readlane_b32 s93, v18, 0')
    I('s_nop 3')
    I('s_sub_u32 s92, s92, s93')
    I('s_lshl_b32 s92, s92, 2')
    I('s_mov_b32 s93, s98')
    lbl = f'L_DG{len(out)}'
    L(lbl)
    I('s_memrealtime s[98:99]')
    I('s_waitcnt lgkmcnt(0)')
    I('s_sub_u32 s98, s98, s93')
    I('s_cmp_lt_u32 s98, s92')
    I(f's_cbranch_scc1 {lbl}')
def stamp(i):
    if DIAG >= 0 and i in (0, DIAG):
        I('s_memrealtime s[98:99]')
        I('s_waitcnt lgkmcnt(0)')
        if i == 0:
            I('v_writelane_b32 v18, s98, 0')
        if i == DIAG:
            I('v_writelane_b32 v18, s98, 1')
    if not PROF:
        return
    I('s_memtime s[98:99]')
    I('s_waitcnt lgkmcnt(0)')
    I(f'v_writelane_b32 v{V_PROF}, s98, {i}')
def rstamp(i):
    if not PROF:
        return
    I('s_memrealtime s[98:99]')
    I('s_waitcnt lgkmcnt(0)')
    I(f'v_writelane_b32 v{V_PROF}, s98, {i}')
def prof_store():
    if not PROF:
        return
    rstamp(31)
    if PROF == 3:
        I(f's_lshl_b32 s98, s2, 4')
        I(f's_add_u32 s98, s98, s{S_W}')
        I(f's_cmp_lg_u32 s98, {opt("pwave", 80)}')
        I('s_cbranch_scc1 L_END')
        I('s_mov_b64 exec, -1')
        I(f'v_readlane_b32 s98, v{V_PROF}, 0')
        I(f'v_readlane_b32 s99, v{V_PROF}, 30')
        I(f'v_readlane_b32 s{S_T}, v{V_PROF}, 31')
        I('s_nop 3')
        I(f's_sub_u32 s{S_T}, s{S_T}, s99')
        I(f's_add_u32 s{S_T}, s{S_T}, s98')
        I(f'v_writelane_b32 v{V_PROF}, s{S_T}, 9')
        I(f'v_subrev_u32 v{V_PROF}, s98, v{V_PROF}')
        I(f'v_mbcnt_lo_u32_b32 v{V_PROF+1}, -1, 0')
        I(f'v_lshlrev_b32 v{V_PROF+1}, 2, v{V_PROF+1}')
        I(f'v_add_u32 v{V_PROF+1}, -8, v{V_PROF+1}')
        I('s_mov_b64 exec, 0x3fff8')
        I(f'global_store_dword v{V_PROF+1}, v{V_PROF}, {sp(S_DBG)}')
        return
    I('s_mov_b64 exec, 0xffffffff')
    I(f's_add_u32 s{S_T}, s{S_WSP}, 0x{WS_PROF:x}')
    I(f's_addc_u32 s{S_T+1}, s{S_WSP+1}, 0')
    I(f'v_mbcnt_lo_u32_b32 v{V_PROF+1}, -1, 0')
    I(f'v_lshlrev_b32 v{V_PROF+1}, 2, v{V_PROF+1}')
    I(f's_lshl_b32 s98, s2, 4')
    I(f's_add_u32 s98, s98, s{S_W}')
    I(f's_lshl_b32 s98, s98, 7')
    I(f'v_add_u32 v{V_PROF+1}, s98, v{V_PROF+1}')
    I(f'global_store_dword v{V_PROF+1}, v{V_PROF}, {sp(S_T)}')

class Lg:
    def __init__(self):
        self.q = []
    def op(self, tag, text):
        I(text)
        self.q.append(tag)
    def need(self, *tags):
        idx = -1
        for t in tags:
            for i in range(len(self.q) - 1, -1, -1):
                if self.q[i] == t:
                    idx = max(idx, i)
                    break
        if idx < 0:
            return
        n = len(self.q) - 1 - idx
        assert n <= 15, (tags, n)
        I(f's_waitcnt lgkmcnt({n})')
        self.q = self.q[idx + 1:]

X = V_X

def zero_range(a, nbytes, zr, ad):
    k = 0
    base = a if a + nbytes <= 65536 + 16384 and a < 65536 - 3 * 16384 else None
    off = 0
    areg = ad
    if a + ((nbytes - 1) // 16384) * 16384 > 65535:
        I(f'v_add_u32 v{X+1}, {a}, v{ad}')
        areg = X + 1
        a0 = 0
    else:
        a0 = a
    while off < nbytes:
        n = min(16384, nbytes - off)
        if n < 16384:
            I(f'v_cmp_gt_u32 vcc, {n // 16}, v{V_TID}')
            I(f's_and_saveexec_b64 {sp(S_EX)}, vcc')
        I(f'ds_write_b128 v{areg}, v[{zr}:{zr+3}] offset:{a0 + off}')
        if n < 16384:
            I(f's_mov_b64 exec, {sp(S_EX)}')
        off += n

def zregs():
    I(f'v_lshlrev_b32 v{X}, 4, v{V_TID}')
    for k in range(4):
        I(f'v_mov_b32 v{X+2+k}, 0')

def fill_desca():
    I(f'v_and_b32 v{X+6}, 15, v{V_TID}')
    I(f'v_lshlrev_b32 v{X+6}, 10, v{X+6}')
    I(f'v_add_u32 v{X+6}, {EXTRA}, v{X+6}')
    for k in range(1, 4):
        I(f'v_add_u32 v{X+6+k}, {256*k}, v{X+6}')
    I(f'v_add_u32 v{X+1}, {DESCA}, v{X}')
    I(f'v_cmp_gt_u32 vcc, 160, v{V_TID}')
    I(f's_and_saveexec_b64 {sp(S_EX)}, vcc')
    I(f'ds_write_b128 v{X+1}, v[{X+6}:{X+9}]')
    I(f's_mov_b64 exec, {sp(S_EX)}')

def fill_zero():
    zregs()
    zero_range(ZR, 65536, X + 2, X)
    fill_desca()

def fill_words():
    I(f'v_lshlrev_b32 v{X}, 4, v{V_TID}')
    I(f'v_and_b32 v{X+2}, 7, v{V_TID}')
    I(f'v_lshlrev_b32 v{X+2}, 5, v{X+2}')
    I(f'v_add_u32 v{X+2}, {N_NODES*8}, v{X+2}')
    for k in range(1, 4):
        I(f'v_add_u32 v{X+2+k}, {8*k}, v{X+2}')
    I(f'ds_write_b128 v{X}, v[{X+2}:{X+5}] offset:{LS}')
    I(f'v_cmp_gt_u32 vcc, 144, v{V_TID}')
    I(f's_and_saveexec_b64 {sp(S_EX)}, vcc')
    I(f'ds_write_b128 v{X}, v[{X+2}:{X+5}] offset:{LS+16384}')
    I(f's_mov_b64 exec, {sp(S_EX)}')

V_C8P, V_CPP = 26, 28
S_BP0, S_BP1 = 88, 90

def tail_ops(n):
    M = (V_MA, V_MB)[n]
    return [f'v_rcp_f32 v{V_T01D}, v{V_T01D}',
            f'v_rcp_f32 v{V_T01D+1}, v{V_T01D+1}',
            f'v_rcp_f32 v{V_T23D}, v{V_T23D}',
            f'v_rcp_f32 v{V_T23D+1}, v{V_T23D+1}',
            f'v_pk_fma_f32 {p(M)}, {p(V_T01N)}, {p(V_T01D)}, {p(M)}',
            f'v_pk_fma_f32 {p(M)}, {p(V_T23N)}, {p(V_T23D)}, {p(M)}']

def acc_write(lg, va):
    lg.op('Wa', f'ds_write2_b32 v{va}, v{V_MA}, v{V_MB} offset0:0 offset1:1')
    lg.op('Wb', f'ds_write2_b32 v{va+1}, v{V_MA+1}, v{V_MB+1} offset0:0 offset1:1')

def acc_read(lg, va):
    lg.op('Ra', f'ds_read_b32 v{V_MA}, v{va}')
    lg.op('Rb', f'ds_read_b32 v{V_MA+1}, v{va+1}')
    lg.op('Rc', f'ds_read_b32 v{V_MB}, v{va} offset:4')
    lg.op('Rd', f'ds_read_b32 v{V_MB+1}, v{va+1} offset:4')

def va_add(vap, vaa):
    I(f'v_lshl_add_u64 {p(vap)}, {p(vap)}, 0, {p(V_CPP)}')
    I(f'v_lshl_add_u64 {p(vaa)}, {p(vaa)}, 0, {p(V_C8P)}')

def gload(n, i):
    return f'buffer_load_dword v{G[n]+i}, v{S + (i & 1) * 8 + (i >> 1)}, {sr4(S_NTG)}, 0 offen offset:{4*n}' + GSC

def s_reads(lg, uo):
    lg.op('S0', f'ds_read_b128 {vr(S,4)}, v{V_PS0} offset:{uo*32}')
    lg.op('S1', f'ds_read_b128 {vr(S+4,4)}, v{V_PS0} offset:{uo*32+16}')
    lg.op('S2', f'ds_read_b128 {vr(S+8,4)}, v{V_PS1} offset:{uo*32}')
    lg.op('S3', f'ds_read_b128 {vr(S+12,4)}, v{V_PS1} offset:{uo*32+16}')

def half(lg, n, par, uo, with_tail=True):
    g = G[n]
    I('s_waitcnt vmcnt(16)')
    if n == 0:
        lg.need('P0a', 'P0b', 'e')
    else:
        lg.need('P1a', 'P1b')
    I(f'v_mfma_f32_32x32x16_bf16 {vr(Z,16)}, {vr(A5,4)}, {vr(B5[n],4)}, {vr(g,16)}')
    t = tail_ops(n ^ 1)
    va_prev, va_cur, va_nxt = V_VAA[par ^ 1], V_VAA[par], V_VAA[par ^ 1]
    sh = [f'v_lshlrev_b32 v{g+i}, 16, v{g+i}' for i in range(16)]
    ex = [f'v_exp_f32 v{Z+i}, v{Z+i} clamp' for i in range(16)]
    if with_tail:
        for op in t[:4]:
            I(op)
    else:
        I('s_nop 3')
    if n == 1:
        lg.op('e', f'ds_read_b64 {p(A5)}, v{V_PE} offset:{(uo+1)*64}')
        lg.op('P1a', f'ds_read_b32 v{B5[1]+2}, v{V_VAP} offset:4')
        lg.op('P1b', f'ds_read_b32 v{B5[1]+3}, v{V_VAP+1} offset:4')
    else:
        lg.op('dP', f'ds_read_b64 {p(V_VAP)}, v{V_PD} offset:{(uo+1)*256}')
        I('s_nop 1')
    for op in sh[:6]:
        I(op)
    if with_tail:
        lg.need('Ra', 'Rb', 'Rc', 'Rd')
        I(t[4])
        I(ex[0])
        I(t[5])
    else:
        I(ex[0])
    I(sh[6])
    if n == 0:
        if with_tail:
            acc_write(lg, va_prev)
        acc_read(lg, va_cur)
        lg.op('dA', f'ds_read_b64 {p(va_nxt)}, v{V_PD} offset:{(uo+1)*256 + DESCA - DESCP}')
    for i in range(1, 12):
        I(ex[i])
        if 6 + i < 16:
            I(sh[6 + i])
        if n == 0 and i == 9:
            lg.need('dP', 'dA')
            va_add(V_VAP, va_nxt)
            lg.op('P0a', f'ds_read_b32 v{B5[0]+2}, v{V_VAP}')
            lg.op('P0b', f'ds_read_b32 v{B5[0]+3}, v{V_VAP+1}')
    for op in ex[12:]:
        I(op)
    for i in range(0, 16, 2):
        I(f'v_pk_add_f32 {p(Z+i)}, {p(Z+i)}, {sp(S_C)}')
    def T(k): return f'v_pk_mul_f32 {p(V_TT[k&1])}, {p(g+4*k)}, {p(Z+4*k+2)}'
    def DD(k): return f'v_pk_mul_f32 {p(Z+4*k+2)}, {p(Z+4*k)}, {p(Z+4*k+2)}'
    def NN(k): return f'v_pk_fma_f32 {p(Z+4*k)}, {p(g+4*k+2)}, {p(Z+4*k)}, {p(V_TT[k&1])}'
    for k0 in (0, 2):
        for op in (T(k0), T(k0 + 1), DD(k0), DD(k0 + 1), NN(k0), NN(k0 + 1)):
            I(op)
        if n == 0 and k0 == 0:
            lg.need('S0', 'S1', 'S2', 'S3')
        I(f's_mov_b64 exec, {sp(S_LDX)}')
        for i in range(4 * k0, 4 * k0 + 8):
            I(gload(n, i))
        I('s_mov_b64 exec, -1')
    if n == 1:
        s_reads(lg, uo + 2)
    I(f'v_pk_mul_f32 {p(V_T01N)}, {p(Z)}, {p(Z+6)}')
    I(f'v_pk_mul_f32 {p(V_T23N)}, {p(Z+8)}, {p(Z+14)}')
    I(f'v_pk_mul_f32 {p(V_T01D)}, {p(Z+2)}, {p(Z+6)}')
    I(f'v_pk_mul_f32 {p(V_T23D)}, {p(Z+10)}, {p(Z+14)}')
    I(f'v_pk_fma_f32 {p(V_T01N)}, {p(Z+4)}, {p(Z+2)}, {p(V_T01N)}')
    I(f'v_pk_fma_f32 {p(V_T23N)}, {p(Z+12)}, {p(Z+10)}, {p(V_T23N)}')

def prio(tag):
    pr = opt('prio', 3)
    if not pr:
        return
    th = {1: (4, 2, 1), 2: (5, 3, 1), 3: (3, 2, 1), 4: (6, 4, 2)}[pr]
    for lvl, t in zip((2, 1, 0), th):
        I(f's_cmp_eq_u32 s{S_CNT}, {t}')
        I(f's_cbranch_scc0 L_PR{tag}_{lvl}')
        I(f's_setprio {lvl}')
        L(f'L_PR{tag}_{lvl}')

def split_hilo(a, b, t0, t1):
    I(f'v_cvt_pk_bf16_f32 v{t0}, v{a}, v{b}')
    I(f'v_lshlrev_b32 v{t1}, 16, v{t0}')
    I(f'v_and_b32 v{t0}, 0xffff0000, v{t0}')
    I(f'v_sub_f32 v{a}, v{a}, v{t1}')
    I(f'v_sub_f32 v{b}, v{b}, v{t0}')
    I(f'v_cvt_pk_bf16_f32 v{a}, v{t1}, v{a}')
    I(f'v_cvt_pk_bf16_f32 v{b}, v{t0}, v{b}')

V_AA, V_AB, V_AD, V_AP = 6, 7, 8, 9
SA, SB, SD = 80, 96, 112

def phase0_addr():
    I(f's_and_b32 s{S_T}, s{S_W}, 3')
    I(f's_lshr_b32 s{S_T+1}, s{S_W}, 2')
    I(f'v_and_b32 v12, 15, v{V_LANE}')
    I(f'v_lshrrev_b32 v13, 4, v{V_LANE}')
    I(f'v_bfe_u32 v14, v{V_LANE}, 1, 3')
    I(f'v_xor_b32 v14, v14, v13')
    I(f'v_lshlrev_b32 v14, 4, v14')
    I(f'v_lshl_or_b32 v14, v12, 7, v14')
    I(f's_lshl_b32 s{S_T+2}, s{S_T}, 11')
    I(f'v_add_u32 v{V_AA}, s{S_T+2}, v14')
    I(f'v_bfe_u32 v14, v{V_LANE}, 2, 2')
    I(f'v_lshl_add_u32 v14, v13, 3, v14')
    I(f'v_lshlrev_b32 v14, 7, v14')
    I(f'v_and_b32 v15, 3, v{V_LANE}')
    I(f'v_lshl_add_u32 v14, v15, 3, v14')
    I(f's_lshl_b32 s{S_T+2}, s{S_T+1}, 5')
    I(f'v_or_b32 v14, s{S_T+2}, v14')
    I(f'v_and_b32 v15, 24, v{V_LANE}')
    I(f'v_lshlrev_b32 v15, 2, v15')
    I(f'v_xor_b32 v14, v14, v15')
    I(f'v_add_u32 v{V_AB}, {WRAW}, v14')
    I(f's_lshl_b32 s{S_T+2}, s{S_T}, 12')
    I(f'v_lshlrev_b32 v13, 10, v13')
    I(f'v_add_u32 v13, s{S_T+2}, v13')
    I(f's_lshl_b32 s{S_T+2}, s{S_T+1}, 6')
    I(f's_add_u32 s{S_T+2}, s{S_T+2}, {NTI}')
    I(f'v_lshl_add_u32 v{V_AD}, v12, 2, v13')
    I(f'v_add_u32 v{V_AD}, s{S_T+2}, v{V_AD}')
    I(f's_and_b32 s{S_T+2}, s{S_T+1}, 1')
    I(f's_lshl_b32 s{S_T+2}, s{S_T+2}, 7')
    I(f's_lshr_b32 s{S_T+3}, s{S_T+1}, 1')
    I(f's_lshl_b32 s{S_T+3}, s{S_T+3}, 2')
    I(f's_add_u32 s{S_T+2}, s{S_T+2}, s{S_T+3}')
    I(f's_add_u32 s{S_T+2}, s{S_T+2}, {PT}')
    I(f'v_lshl_add_u32 v{V_AP}, v12, 3, v13')
    I(f'v_add_u32 v{V_AP}, s{S_T+2}, v{V_AP}')

def b_reads(dst, off):
    for sg in range(2):
        for pp in range(2):
            I(f'ds_read_b64_tr_b16 {vr(dst+4*sg+2*pp,2)}, v{V_AB} offset:{off+sg*4096+pp*512}')

def mm16(d, b):
    I(f'v_mfma_f32_16x16x32_bf16 {vr(d,4)}, {vr(SA,4)}, {vr(b,4)}, 0')
    I(f'v_mfma_f32_16x16x32_bf16 {vr(d,4)}, {vr(SA+4,4)}, {vr(b+4,4)}, {vr(d,4)}')

def phase0a():
    I(f'v_add_u32 v12, {XOWN}, v{V_AA}')
    I(f'v_xor_b32 v13, 64, v{V_AA}')
    I(f'v_add_u32 v13, {XOWN}, v13')
    I(f'ds_read_b128 {vr(SA,4)}, v12')
    I(f'ds_read_b128 {vr(SA+4,4)}, v13')
    b_reads(SB, 8192)
    b_reads(SB + 8, WV_ - WRAW)
    I(f's_mov_b32 s{S_T+4}, 0x{f2u(-LOG2E):x}')
    I(f's_mov_b32 s{S_T+5}, 0x{f2u(2.0**SV):x}')
    I(f's_mov_b32 s{S_T+6}, 0x7fffffff')
    I(f's_mov_b32 s{S_T+7}, 0xffff0000')
    I('s_waitcnt lgkmcnt(4)')
    mm16(SD, SB)
    I('s_waitcnt lgkmcnt(0)')
    mm16(SD + 4, SB + 8)
    I('s_nop 4')
    for i in range(4):
        I(f'v_mul_f32 v{SD+i}, s{S_T+4}, v{SD+i}')
    for i in range(4):
        I(f'v_and_b32 v{SD+8+i}, s{S_T+6}, v{SD+i}')
    for i in range(4):
        I(f'v_mul_f32 v{SD+4+i}, s{S_T+5}, v{SD+4+i}')
        I(f'v_add_u32 v{SD+8+i}, 0x8000, v{SD+8+i}')
    I(f'v_cvt_pk_bf16_f32 v{SD+4}, v{SD+4}, v{SD+5}')
    I(f'v_cvt_pk_bf16_f32 v{SD+6}, v{SD+6}, v{SD+7}')
    I(f'v_lshrrev_b32 v{SD+5}, 16, v{SD+4}')
    I(f'v_lshrrev_b32 v{SD+7}, 16, v{SD+6}')
    I(f'v_and_b32 v{SD+4}, 0xffff, v{SD+4}')
    I(f'v_and_b32 v{SD+6}, 0xffff, v{SD+6}')
    for i in range(4):
        I(f'v_sub_u32 v{SD+8+i}, v{SD+8+i}, v{SD+4+i} clamp')
    for i in range(4):
        I(f'v_and_or_b32 v{SD+8+i}, v{SD+8+i}, s{S_T+7}, v{SD+4+i}')
    for i in range(4):
        I(f'v_bfi_b32 v{SD+i}, s{S_T+6}, v{SD+8+i}, v{SD+i}')
        I(f'ds_write_b32 v{V_AD}, v{SD+i} offset:{i*256}')

def phase0b():
    b_reads(SB, 0)
    b_reads(SB + 8, WU_ - WRAW)
    I(f's_mov_b32 s{S_T+4}, 0x{f2u(-LOG2E):x}')
    I(f's_mov_b32 s{S_T+5}, 0x{f2u(2.0**(SV+KEXP)):x}')
    I(f'v_mov_b32 v13, 0x{f2u(-float(KEXP)):x}')
    I(f's_and_b32 s{S_T+6}, s{S_W}, 3')
    I('s_waitcnt lgkmcnt(4)')
    mm16(SD, SB)
    I('s_waitcnt lgkmcnt(0)')
    mm16(SD + 4, SB + 8)
    I('s_nop 4')
    for i in range(4):
        I(f'v_fma_f32 v{SD+i}, v{SD+i}, s{S_T+4}, v13')
    split_hilo(SD, SD + 1, 12, 13)
    split_hilo(SD + 2, SD + 3, 12, 13)
    for i in range(4):
        I(f'v_mul_f32 v{SD+4+i}, s{S_T+5}, v{SD+4+i}')
    I(f's_cmp_eq_u32 s{S_T+6}, 3')
    I(f's_cselect_b64 exec, 0xffff, -1')
    I(f'ds_write_b32 v{V_AP}, v{SD}')
    I(f'ds_write_b32 v{V_AP}, v{SD+4} offset:{ACCN-PT}')
    I(f's_cselect_b64 exec, 0, -1')
    for i in range(1, 4):
        I(f'ds_write_b32 v{V_AP}, v{SD+i} offset:{i*256}')
        I(f'ds_write_b32 v{V_AP}, v{SD+4+i} offset:{ACCN-PT+i*256}')
    I('s_mov_b64 exec, -1')

def phase0c():
    I(f'v_bfe_u32 v13, v{V_LANE}, 2, 2')
    I(f'v_lshlrev_b32 v13, 7, v13')
    I(f'v_bfe_u32 v15, v{V_LANE}, 4, 1')
    I(f'v_lshl_add_u32 v13, v15, 5, v13')
    I(f'v_and_b32 v15, 3, v{V_LANE}')
    I(f'v_lshl_add_u32 v13, v15, 3, v13')
    I(f'v_and_b32 v15, 8, v{V_LANE}')
    I(f'v_lshlrev_b32 v15, 2, v15')
    I(f'v_xor_b32 v13, v13, v15')
    I(f'v_add_u32 v13, {WG_ + 16384}, v13')
    I(f'ds_read_b64_tr_b16 v[96:97], v13')
    I(f'ds_read_b64_tr_b16 v[98:99], v13 offset:64')
    I(f's_mov_b32 s{S_T+4}, 0x{f2u(-LOG2E):x}')
    I(f'v_cmp_lt_u32 vcc, 31, v{V_LANE}')
    I('s_waitcnt lgkmcnt(0)')
    for m in range(4):
        I(f'v_lshlrev_b32 v{100+2*m}, 16, v{96+m}')
        I(f'v_and_b32 v{101+2*m}, 0xffff0000, v{96+m}')
    for j in range(8):
        I(f'v_mul_f32 v{100+j}, s{S_T+4}, v{100+j}')
    for m in range(4):
        dst = B5[m >> 1] + (m & 1)
        I(f'v_cvt_pk_bf16_f32 v{96+m}, v{100+2*m}, v{101+2*m}')
        I(f'v_lshlrev_b32 v12, 16, v{96+m}')
        I(f'v_and_b32 v13, 0xffff0000, v{96+m}')
        I(f'v_sub_f32 v12, v{100+2*m}, v12')
        I(f'v_sub_f32 v13, v{101+2*m}, v13')
        I(f'v_cvt_pk_bf16_f32 v12, v12, v13')
        I(f'v_cndmask_b32 v{dst}, v{96+m}, v12, vcc')

def a5_const():
    I(f'v_bfe_u32 v12, v{V_LANE}, 2, 1')
    I(f'v_lshrrev_b32 v13, 5, v{V_LANE}')
    I(f'v_xor_b32 v12, v12, v13')
    I(f'v_and_b32 v13, 1, v{V_LANE}')
    I(f'v_lshl_or_b32 v12, v12, 1, v13')
    I(f'v_mov_b32 v13, 0x3f803f80')
    I(f'v_cmp_eq_u32 vcc, 0, v12')
    I(f'v_cmp_eq_u32 {sp(S_T)}, 1, v12')
    I('s_nop 1')
    I(f'v_cndmask_b32 v{A5+2}, 0, v13, vcc')
    I(f'v_cndmask_b32 v{A5+3}, 0, v13, {sp(S_T)}')

def nt_prefetch(vt, first=0, nl=None, dst=96):
    I(f's_lshr_b32 s{S_T}, s2, 4')
    I(f's_lshl_b32 s{S_T+1}, s{S_W}, 4')
    I(f's_add_u32 s{S_T}, s{S_T}, s{S_T+1}')
    I(f's_and_b32 s{S_T+1}, s{S_T}, 7')
    I(f's_lshl_b32 s{S_T+1}, s{S_T+1}, 5')
    I(f's_lshr_b32 s{S_T}, s{S_T}, 3')
    I(f's_add_u32 s{S_T}, s{S_T}, s{S_T+1}')
    I(f's_lshl_b32 s{S_T}, s{S_T}, 1')
    I(f's_bfe_u32 s{S_T+1}, s2, 0x10003')
    I(f's_add_u32 s{S_T}, s{S_T}, s{S_T+1}')
    I(f's_mul_i32 s{S_T}, s{S_T}, {NB*128}')
    I(f's_add_u32 s{S_T}, s{S_T}, 0x{WS_NT:x}')
    srd_off(S_NTS, S_WSP, S_WSP + 1, f's{S_T}', NB * 128)
    if NPFM >= 3:
        I(f'v_lshlrev_b32 v{vt}, {7 if NPFM >= 4 else 6}, v{V_LANE}')
        I(f'v_add_u32 v{vt+1}, 4096, v{vt}')
        nl = opt("pfl", 20) if nl is None else nl
        I(f's_mov_b32 exec_lo, 0x{(((1 << nl) - 1) << first) & 0xffffffff:x}')
        I(f's_mov_b32 exec_hi, 0x{(((1 << nl) - 1) << first) >> 32:x}')
        for k in range(NPF):
            I(f'buffer_load_dword v{dst+k}, v{vt+k}, {sr4(S_NTS)}, 0 offen' + LSC)
        I('s_mov_b64 exec, -1')
        return
    I(f'v_lshlrev_b32 v{vt}, 4, v{V_LANE}')
    I(f'v_add_u32 v{vt+1}, 4096, v{vt}')
    for k in range(NPF):
        I(f'buffer_load_dwordx4 {vr(96+4*k,4)}, v{vt+(k>>2)}, {sr4(S_NTS)}, 0 offen offset:{(k&3)*1024}' + LSC)

def ptr_consts():
    I(f'v_lshrrev_b32 v{V_PS1}, 5, v{V_LANE}')
    I(f's_lshl_b32 s{S_T}, s{S_W}, 4')
    I(f's_add_u32 s{S_T}, s{S_T}, {DESCP}')
    I(f'v_lshlrev_b32 v{V_PD}, 3, v{V_PS1}')
    I(f'v_add_u32 v{V_PS1}, v{V_PS1}, v{V_PS1}')
    I(f'v_add_u32 v{V_PD}, s{S_T}, v{V_PD}')
    I(f'v_bfe_u32 v{V_VAP}, v{V_LANE}, 2, 1')
    I(f'v_and_b32 v{V_PE}, 1, v{V_LANE}')
    I(f'v_lshl_or_b32 v{V_VAP}, v{V_VAP}, 1, v{V_PE}')
    I(f'v_bfe_u32 v{V_PE}, v{V_LANE}, 3, 2')
    I(f'v_bfe_u32 v{V_PS0}, v{V_LANE}, 1, 1')
    I(f'v_lshl_or_b32 v{V_PE}, v{V_PE}, 1, v{V_PS0}')
    I(f'v_lshlrev_b32 v{V_PE}, 3, v{V_PE}')
    I(f'v_add_u32 v{V_PE}, {LE}, v{V_PE}')

def gen():
    e(f'.globl {KNAME}')
    e('.p2align 8')
    e(f'.type {KNAME},@function')
    L(KNAME)
    I(f's_cmp_ge_u32 s2, {NWG}')
    I('s_cbranch_scc1 L_END')
    I('s_load_dwordx8 s[84:91], s[0:1], 0')
    I('s_load_dwordx4 s[4:7], s[0:1], 32')
    I('s_load_dwordx4 s[8:11], s[0:1], 48')
    I('s_load_dwordx4 s[56:59], s[0:1], 64')
    if PROF:
        I(f'v_mov_b32 v{V_PROF}, 0')
    rstamp(30)
    stamp(0)
    zregs()
    zero_range(CNT, DESCP + 2560 - CNT, X + 2, X)
    I(f'v_lshlrev_b32 v{X+6}, 2, v{V_TID}')
    I(f's_mul_i32 s61, s2, {CH*4}')
    I(f's_mul_i32 s63, s2, {CH}')
    I(f's_sub_u32 s63, {E_EDGES}, s63')
    I(f's_min_u32 s63, s63, {CH}')
    I(f's_lshl_b32 s64, s63, 2')
    I(f'v_add_u32 v{X+8}, 4096, v{X+6}')
    I(f'v_add_u32 v{X+9}, 8192, v{X+6}')
    I(f'v_add_u32 v{X+10}, 12288, v{X+6}')
    I(f'v_lshrrev_b32 v{X+1}, 6, v{V_TID}')
    I(f'v_and_b32 v{V_LANE}, 63, v{V_TID}')
    I(f'v_readfirstlane_b32 s{S_W}, v{X+1}')
    I('s_and_b32 s3, s2, 7')
    I('s_lshl_b32 s3, s3, 5')
    I('s_lshr_b32 s60, s2, 3')
    I('s_add_u32 s3, s3, s60')
    I(f's_mul_i32 s62, s2, {CH*8}')
    I(f's_lshl_b32 s65, s63, 3')
    I(f'v_and_b32 v97, 0x50, v{V_TID}')
    I(f'v_lshlrev_b32 v96, 1, v97')
    I(f'v_or_b32 v97, v97, v96')
    I(f'v_and_b32 v97, 0x60, v97')
    I(f'v_xor_b32 v97, v97, v{X}')
    I(f'v_and_b32 v96, 0x20, v96')
    I(f'v_lshlrev_b32 v98, 4, v{V_LANE}')
    I(f'v_xor_b32 v96, v96, v98')
    I(f's_lshl_b32 s66, s{S_W}, 10')
    I(f'v_and_b32 v101, 0x1fff, v97')
    I(f'v_lshrrev_b32 v98, 3, v{V_TID}')
    I(f'v_bfe_u32 v99, v98, 1, 3')
    I(f'v_and_b32 v100, 7, v{V_TID}')
    I(f'v_xor_b32 v99, v99, v100')
    I(f'v_lshlrev_b32 v99, 4, v99')
    I(f'v_lshl_add_u32 v99, v98, 7, v99')
    I(f's_mul_i32 s60, s3, {NB*128}')
    I(f'v_add_u32 v99, s60, v99')
    I(f'v_add_u32 v96, 16384, v96')
    I('s_waitcnt lgkmcnt(0)')
    I(f's_or_b32 s67, s2, s{S_W}')
    I('s_cmp_lg_u32 s67, 0')
    I('s_cbranch_scc1 L_NOTAG')
    I('s_memrealtime s[68:69]')
    I(f'v_mov_b32 v{X+2}, 0')
    I('s_waitcnt lgkmcnt(0)')
    I('s_or_b32 s68, s68, 1')
    I(f'v_mov_b32 v{X+3}, s68')
    I('s_mov_b64 exec, 1')
    I(f'global_store_dword v{X+2}, v{X+3}, s[56:57] sc1')
    I('s_mov_b64 exec, -1')
    L('L_NOTAG')
    def dst_loads():
        srd_off(S_DST, 90, 91, 's61', 's64')
        for k in range(4):
            I(f'buffer_load_dword v{64+k}, v{X+6 if k == 0 else X+7+k}, {sr4(S_DST)}, 0 offen' + ELD)
    def dma_loads():
        srd(S_WS, 8, 9, 132 * 128)
        I(f's_add_u32 m0, s66, {WG_}')
        srd(S_XS, 84, 85, N_NODES * 128)
        I(f'buffer_load_dwordx4 v97, {sr4(S_WS)}, 0 offen lds')
        I(f's_cmp_lt_u32 s{S_W}, 8')
        I(f's_cselect_b32 s{S_NTS}, s6, s4')
        I(f's_cselect_b32 s{S_NTS+1}, s7, s5')
        I(f's_mov_b32 s{S_NTS+2}, {64*128}')
        I(f's_mov_b32 s{S_NTS+3}, 0x00020000')
        I(f's_add_u32 m0, s66, {WV_}')
        I('s_nop 0')
        I(f'buffer_load_dwordx4 v101, {sr4(S_NTS)}, 0 offen lds')
        I(f's_cmp_lt_u32 s{S_W}, 8')
        I('s_cbranch_scc0 L_D3B')
        I(f's_add_u32 m0, s66, {XOWN}')
        I('s_nop 0')
        I(f'buffer_load_dwordx4 v99, {sr4(S_XS)}, 0 offen lds')
        I('s_branch L_D3C')
        L('L_D3B')
        I(f's_mov_b32 m0, {WG_ + 16384}')
        I('s_nop 0')
        I(f'buffer_load_dwordx4 v96, {sr4(S_WS)}, 0 offen lds')
        L('L_D3C')
    if opt('t0', 0):
        I(f'v_and_b32 v60, 15, v{V_LANE}')
        I(f'v_lshlrev_b32 v60, 20, v60')
        I(f'v_and_b32 v61, 1, v{V_LANE}')
        I(f'v_lshlrev_b32 v61, 20, v61')
        I(f'global_load_dword v62, v60, s[58:59]')
        I(f'global_load_dword v63, v61, s[10:11]')
    ORDER = opt('order', 0)
    if ORDER == 0:
        dma_loads()
    dst_loads()
    F1 = opt('f1', 1)
    if F1:
        I('s_barrier')
    srd_off(S_SRC, 88, 89, 's61', 's64')
    for k in range(4):
        I(f'buffer_load_dword v{68+k}, v{X+6 if k == 0 else X+7+k}, {sr4(S_SRC)}, 0 offen' + ELD)
    srd_off(S_EA, 86, 87, 's62', 's65')
    I(f'v_lshlrev_b32 v92, 3, v{V_TID}')
    for k in range(1, 4):
        I(f'v_add_u32 v{92+k}, {8192*k}, v92')
    def e_load(k):
        I(f'buffer_load_dwordx2 v[{72+2*k}:{73+2*k}], v{92+k}, {sr4(S_EA)}, 0 offen' + ELD)
    NEE = opt('nee', 4)
    for k in range(NEE):
        e_load(k)
    if ORDER == 1:
        dma_loads()
    I(f's_mov_b64 {sp(S_DBG)}, s[56:57]')
    I(f's_add_u32 s{S_WSP}, s58, 0x{WSB:x}')
    I(f's_addc_u32 s{S_WSP+1}, s59, 0')
    stamp(1)
    srd(S_OUT, 10, 11, N_NODES * 128)
    I(f's_add_u32 s{S_T}, s61, 0x{WS_RW:x}')
    srd_off(S_RW, S_WSP, S_WSP + 1, f's{S_T}', CH * 4)
    I(f's_add_u32 s{S_T}, s62, 0x{WS_RE:x}')
    srd_off(S_RE, S_WSP, S_WSP + 1, f's{S_T}', CH * 8)
    I(f's_lshl_b32 s{S_T}, s2, 11')
    I(f's_add_u32 s{S_T}, s{S_T}, 0x{WS_TAB:x}')
    srd_off(S_TAB, S_WSP, S_WSP + 1, f's{S_T}', (KREP - 1) * 0x80000 + 2048)
    I(f's_mul_i32 s{S_T}, s3, {NB*256}')
    I(f's_add_u32 s{S_T}, s{S_T}, 0x{WS_NT:x}')
    srd_off(S_NTS, S_WSP, S_WSP + 1, f's{S_T}', NB * 256)
    I(f's_add_u32 s{S_NTG}, s{S_WSP}, 0x{WS_NT:x}')
    I(f's_addc_u32 s{S_NTG+1}, s{S_WSP+1}, 0')
    I(f's_or_b32 s{S_NTG+1}, s{S_NTG+1}, 0x80000000')
    I(f's_mov_b32 s{S_NTG+2}, 0x400000')
    I(f's_mov_b32 s{S_NTG+3}, 0x00c00000')
    srd_off(S_DST, S_WSP, S_WSP + 1, '0x%x' % WS_RW, NWG * CH * 4)
    srd_off(S_SRC, S_WSP, S_WSP + 1, '0x%x' % WS_RE, NWG * CH * 8)
    for k in range(4):
        I(f'v_add_u32 v{X+1}, {1024*k}, v{V_TID}')
        I(f'v_cmp_gt_u32 {sp(S_MASK+2*k)}, s63, v{X+1}')
    I(f's_mov_b32 s{S_C}, 0x{f2u(2.0**-KEXP):x}')
    I(f's_mov_b32 s{S_C+1}, 0x{f2u(2.0**-KEXP):x}')
    I(f's_mov_b32 s{S_JB}, 0')
    I(f's_mov_b32 s{S_WID}, 128')
    I(f'v_and_b32 v{V_J4}, 15, v{V_LANE}')
    I(f'v_lshlrev_b32 v{V_J4}, 2, v{V_J4}')
    I(f'v_lshrrev_b32 v{X+1}, 4, v{V_LANE}')
    I(f's_lshl_b32 s{S_T}, s{S_W}, 4')
    I(f'v_add_u32 v{X+1}, s{S_T}, v{X+1}')
    I(f'v_mul_u32_u24 v{V_CB4}, {CH*4}, v{X+1}')
    I(f'v_add_u32 v{V_CB4}, v{V_CB4}, v{V_J4}')
    I(f'v_and_b32 v{V_CH8}, 31, v{V_LANE}')
    I(f'v_lshlrev_b32 v{V_CH8}, 3, v{V_CH8}')
    I(f'v_add_u32 v{V_CHP}, {PT}, v{V_CH8}')
    phase0_addr()
    a5_const()
    if not F1:
        I(f's_waitcnt vmcnt({8 + NEE if ORDER == 0 else 0})')
        I('s_barrier')
    stamp(2)
    for k in range(NEE, 4):
        e_load(k)
    I(f'v_mov_b32 v12, 0')
    I(f'global_load_dword v10, v12, {sp(S_DBG)} sc1')
    if TCH:
        I(f'v_lshlrev_b32 v13, 10, v{V_LANE}')
        I(f'buffer_load_dword v60, v13, {sr4(S_RW)}, 0 offen')
        I(f'buffer_load_dword v61, v13, {sr4(S_RE)}, 0 offen')
        I(f'buffer_load_dword v62, v13, {sr4(S_TAB)}, 0 offen')
        I(f'buffer_load_dword v63, v13, {sr4(S_NTS)}, 0 offen')
    srd_off(S_EA, S_WSP, S_WSP + 1, '0x%x' % WS_TAB, KREP * 0x80000)
    if not F1:
        phase0a()
    I(f's_mov_b32 s{S_T}, -{NB}')
    I(f'v_mov_b32 v{X+1}, 4')
    BN, WD, RK = 28, 32, 36
    for k in range(4):
        I(f's_waitcnt vmcnt({12 + TCH - k})')
        I(f's_mov_b64 exec, {sp(S_MASK+2*k)}')
        if k == 3:
            I('s_cbranch_execz L_B1')
        I(f'v_mul_u32_u24 v{BN+k}, 21400, v{64+k}')
        I(f'v_lshrrev_b32 v{BN+k}, 20, v{BN+k}')
        I(f'v_mad_i32_i24 v{WD+k}, v{BN+k}, s{S_T}, v{64+k}')
        I(f'v_lshlrev_b32 v{BN+k}, 2, v{BN+k}')
        I(f'ds_add_rtn_u32 v{RK+k}, v{BN+k}, v{X+1} offset:{HIST}')
        I(f'v_lshlrev_b32 v{WD+k}, 26, v{WD+k}')
    L('L_B1')
    I('s_mov_b64 exec, -1')
    I(f'v_add_u32 v{X+1}, {NTI}, v{X}')
    stamp(3)
    I(f's_waitcnt lgkmcnt(0)')
    I('s_barrier')
    stamp(4)
    if not F1:
        I(f'ds_read_b128 v[112:115], v{X+1}')
    I(f's_cmp_lg_u32 s{S_W}, 0')
    I('s_cbranch_scc1 L_NOSCAN')
    I(f'ds_read_b128 v[96:99], v{X} offset:{HIST}')
    I('s_waitcnt lgkmcnt(0)')
    I('v_add_u32 v101, v96, v97')
    I('v_add_u32 v102, v101, v98')
    I('v_add_u32 v103, v102, v99')
    I('v_mov_b32 v104, v103')
    wave_scan(104)
    I('v_sub_u32 v104, v104, v103')
    I('v_add_u32 v105, v104, v96')
    I('v_add_u32 v106, v104, v101')
    I('v_add_u32 v107, v104, v102')
    I(f'ds_write_b128 v{X}, v[104:107] offset:{HBASE}')
    for k in range(4):
        I(f'v_lshl_or_b32 v{108+k}, v{96+k}, 16, v{104+k}')
    I(f'ds_write_b128 v{X}, v[108:111] offset:{HIST}')
    L('L_NOSCAN')
    if F1:
        phase0a()
    I('s_waitcnt lgkmcnt(0)')
    if not F1:
        I(f'buffer_store_dwordx4 v[112:115], v{X}, {sr4(S_NTS)}, 0 offen' + SC)
    if T1:
        I(f's_mul_i32 s{S_T+4}, s3, {NB*128}')
        I(f'v_mov_b32 v60, s{S_T+4}')
        I(f'buffer_load_dword v61, v60, {sr4(S_OUT)}, 0 offen')
    I(f's_waitcnt vmcnt({6 - F1 + TCH + T1})')
    for k in range(4):
        I(f'v_lshl_or_b32 v{WD+k}, v{68+k}, 3, v{WD+k}')
    I('s_barrier')
    stamp(5)
    if F1:
        I(f'ds_read_b128 v[112:115], v{X+1}')
    for k in range(4):
        I(f's_mov_b64 exec, {sp(S_MASK+2*k)}')
        I(f'ds_read_b32 v{BN+k}, v{BN+k} offset:{HBASE}')
    if F1:
        I('s_mov_b64 exec, -1')
        I('s_waitcnt lgkmcnt(4)')
        I(f'buffer_store_dwordx4 v[112:115], v{X}, {sr4(S_NTS)}, 0 offen' + SC)
    I(f's_waitcnt vmcnt({1 + TCH + T1})')
    I(f'v_readfirstlane_b32 s{S_TAG}, v10')
    for k in range(4):
        I(f's_mov_b64 exec, {sp(S_MASK+2*k)}')
        if k == 3:
            I('s_cbranch_execz L_B2')
        I(f's_waitcnt lgkmcnt({3 - k + 2*k})')
        I(f'v_add_u32 v{RK+k}, v{BN+k}, v{RK+k}')
        I(f'v_add_u32 v{BN+k}, v{RK+k}, v{RK+k}')
        I(f'ds_write_b32 v{RK+k}, v{WD+k} offset:{STGW}')
        I(f'ds_write_b64 v{BN+k}, v[{72+2*k}:{73+2*k}] offset:{STGE}')
    L('L_B2')
    I('s_mov_b64 exec, -1')
    I(f's_mov_b32 s{S_T}, 0x40000')
    L('L_TAGP')
    I(f's_cmp_lg_u32 s{S_TAG}, 0')
    I('s_cbranch_scc1 L_TAGD')
    I(f'v_mov_b32 v12, 0')
    I(f'global_load_dword v10, v12, {sp(S_DBG)} sc1')
    I('s_waitcnt vmcnt(0)')
    I(f'v_readfirstlane_b32 s{S_TAG}, v10')
    I(f's_sub_u32 s{S_T}, s{S_T}, 1')
    I('s_cbranch_scc1 L_END')
    I('s_branch L_TAGP')
    L('L_TAGD')
    I(f'v_add_u32 v{X+2}, 16384, v{X}')
    I(f'v_lshlrev_b32 v12, 3, v{V_LANE}')
    I(f's_mul_i32 s{S_TAG2}, s{S_TAG}, 0x9e3779b1')
    I(f's_and_b32 s{S_TAG2}, s{S_TAG2}, 0x{TAGM:x}')
    I('s_waitcnt lgkmcnt(0)')
    I('s_barrier')
    stamp(6)
    I(f'ds_read_b128 v[64:67], v{X} offset:{STGW}')
    I(f'ds_read_b128 v[68:71], v{X} offset:{STGE}')
    I(f'ds_read_b128 v[72:75], v{X} offset:{STGE+16384}')
    I(f'ds_read_b64 v[92:93], v12 offset:{HIST}')
    I(f'ds_read_b64 v[94:95], v12 offset:{HIST+512}')
    I('s_waitcnt lgkmcnt(4)')
    I(f'buffer_store_dwordx4 v[64:67], v{X}, {sr4(S_RW)}, 0 offen' + SC)
    I('s_waitcnt lgkmcnt(3)')
    I(f'buffer_store_dwordx4 v[68:71], v{X}, {sr4(S_RE)}, 0 offen' + SC)
    I('s_waitcnt lgkmcnt(2)')
    I(f'buffer_store_dwordx4 v[72:75], v{X+2}, {sr4(S_RE)}, 0 offen' + SC)
    I('s_waitcnt lgkmcnt(0)')
    for k in range(4):
        I(f'v_or_b32 v{120+2*k}, s{S_TAG2}, v{92+k}')
        I(f'v_mov_b32 v{121+2*k}, s{S_TAG}')
    PF1 = opt('pf1', 0)
    if PF1:
        nt_prefetch(12, 49 - PF1, PF1, 61)
    pre = opt('pre', 'xbc')
    def piece(c):
        if c == 'x':
            zregs()
            zero_range(EXTRA, 16384, X + 2, X)
            fill_desca()
        elif c == 'b':
            phase0b()
        elif c == 'c':
            phase0c()
    for c in pre:
        piece(c)
    stamp(7)
    I(f'v_lshrrev_b32 v76, 4, v{V_LANE}')
    I(f's_lshl_b32 s{S_T}, s{S_W}, 15')
    I(f's_lshl_b32 s{S_T+1}, s3, 3')
    I(f's_add_u32 s{S_T}, s{S_T}, s{S_T+1}')
    I(f'v_lshlrev_b32 v76, 11, v76')
    I(f'v_add_u32 v76, s{S_T}, v76')
    for r in range(1, 4):
        I(f'v_add_u32 v{76+r}, {8192*r}, v76')
    I(f'v_lshlrev_b32 v60, 4, v{V_LANE}')
    for r in range(4):
        I(f's_mov_b64 {sp(S_MASK+2*r)}, -1')
    I(f's_waitcnt vmcnt({1 if PF1 else 0})')
    stamp(8)
    I('s_barrier')
    stamp(9)
    I(f's_cmp_lg_u32 s{S_W}, 0')
    I('s_cbranch_scc1 L_POLL0')
    for k in range(KREP - 1, -1, -1):
        I(f's_mov_b32 s{S_T}, 0x{k*0x80000:x}')
        I(f'buffer_store_dwordx4 v[120:123], v60, {sr4(S_TAB)}, s{S_T} offen' + SC)
        I(f'buffer_store_dwordx4 v[124:127], v60, {sr4(S_TAB)}, s{S_T} offen offset:1024' + SC)
    L('L_POLL0')
    for c in 'xbc':
        if c not in pre:
            piece(c)
    fill_words()
    zregs()
    zero_range(LE, CNT - LE, X + 2, X)
    ptr_consts()
    I(f's_mov_b32 s{S_T}, 0x40000')
    I(f's_mov_b32 s{S_T+1}, 0x{TAGM:x}')
    I(f's_mov_b32 s{S_T+6}, 0')
    L('L_POLL')
    for r in range(4):
        I(f's_mov_b64 exec, {sp(S_MASK+2*r)}')
        I(f'buffer_load_dwordx2 {p(64+2*r)}, v{76+r}, {sr4(S_EA)}, s{S_T+6} offen' + LSC)
    for r in range(4):
        I(f's_waitcnt vmcnt({3-r})')
        I(f's_mov_b64 exec, {sp(S_MASK+2*r)}')
        I(f'v_xor_b32 v{V_TAB+r}, s{S_TAG2}, v{64+2*r}')
        I(f'v_xor_b32 v{65+2*r}, s{S_TAG}, v{65+2*r}')
        I(f'v_and_or_b32 v{65+2*r}, v{V_TAB+r}, s{S_T+1}, v{65+2*r}')
        I(f'v_cmp_ne_u32 {sp(S_MASK+2*r)}, 0, v{65+2*r}')
    I(f's_or_b64 {sp(S_T+2)}, {sp(S_MASK)}, {sp(S_MASK+2)}')
    I(f's_or_b64 {sp(S_T+4)}, {sp(S_MASK+4)}, {sp(S_MASK+6)}')
    I(f's_or_b64 {sp(S_T+2)}, {sp(S_T+2)}, {sp(S_T+4)}')
    I('s_cbranch_scc0 L_POLLED')
    I(f's_sub_u32 s{S_T}, s{S_T}, 1')
    I('s_cbranch_scc1 L_END')
    I(f's_add_u32 s{S_T+6}, s{S_T+6}, 0x80000')
    I(f's_min_u32 s{S_T+6}, s{S_T+6}, 0x{(KREP-1)*0x80000:x}')
    if opt('sleep', 1):
        I(f's_sleep {opt("sleep", 1)}')
    I('s_branch L_POLL')
    L('L_POLLED')
    I('s_mov_b64 exec, -1')
    if opt('pbar', 0):
        I('s_barrier')
    stamp(10)
    REC = 64
    A4, A8 = X, X + 4
    L('L_PASS')
    I(f'v_add_u32 v{X+8}, s{S_JB}, v{V_J4}')
    I(f'v_add_u32 v{X+9}, 64, v{X+8}')
    I(f'v_add_u32 v{X+10}, s{S_JB}, v{V_CB4}')
    I(f's_cmp_eq_u32 s{S_WID}, 128')
    I(f's_cselect_b64 {sp(S_T+4)}, -1, 0')
    for r in range(4):
        I(f'v_add_u32_sdwa v{A4+r}, v{V_TAB+r}, v{X+10} dst_sel:DWORD dst_unused:UNUSED_PAD src0_sel:WORD_0 src1_sel:DWORD')
        I(f'v_cmp_lt_u32_sdwa {sp(S_MASK+4*r)}, v{X+8}, v{V_TAB+r} src0_sel:DWORD src1_sel:WORD_1')
        if r:
            I(f'v_add_u32 v{A4+r}, {r*4*CH*4}, v{A4+r}')
        I(f'v_cmp_lt_u32_sdwa vcc, v{X+9}, v{V_TAB+r} src0_sel:DWORD src1_sel:WORD_1')
        I(f'v_add_u32 v{A8+r}, v{A4+r}, v{A4+r}')
        I(f's_and_b64 {sp(S_MASK+4*r+2)}, vcc, {sp(S_T+4)}')
        I(f's_mov_b64 exec, {sp(S_MASK+4*r)}')
        I(f'buffer_load_dword v{REC+8*r+2}, v{A4+r}, {sr4(S_DST)}, 0 offen' + LSC)
        I(f'buffer_load_dwordx2 {p(REC+8*r)}, v{A8+r}, {sr4(S_SRC)}, 0 offen' + LSC)
        I('s_mov_b64 exec, -1')
    for r in range(4):
        I(f's_mov_b64 exec, {sp(S_MASK+4*r+2)}')
        I(f'buffer_load_dword v{REC+8*r+6}, v{A4+r}, {sr4(S_DST)}, 0 offen offset:64' + LSC)
        I(f'buffer_load_dwordx2 {p(REC+8*r+4)}, v{A8+r}, {sr4(S_SRC)}, 0 offen offset:128' + LSC)
    I('s_mov_b64 exec, -1')
    if NPFM == 1 or NPFM == 5:
        nt_prefetch(X + 8)
    I(f'v_max3_u32 v{X+8}, v{V_TAB}, v{V_TAB+1}, v{V_TAB+2}')
    I(f'v_max_u32 v{X+8}, v{X+8}, v{V_TAB+3}')
    I(f'v_lshrrev_b32 v{X+8}, 16, v{X+8}')
    I(f's_add_u32 s{S_T}, s{S_JB}, s{S_WID}')
    I(f'v_cmp_lt_u32 vcc, s{S_T}, v{X+8}')
    I(f'v_mov_b32 v{X+8}, 4')
    I(f's_cbranch_vccz L_NOMORE')
    I(f'v_mov_b32 v{X+9}, {MISC}')
    I(f'ds_write_b32 v{X+9}, v{X+8}')
    L('L_NOMORE')
    stamp(11)
    for r in range(4):
        I(f's_waitcnt vmcnt({15 + NPF1 - 2*r})')
        I(f's_mov_b64 exec, {sp(S_MASK+4*r)}')
        I(f'v_lshrrev_b32 v{A4+r}, 24, v{REC+8*r+2}')
        I(f'ds_add_rtn_u32 v{REC+8*r+3}, v{A4+r}, v{X+8} offset:{CNT}')
    for r in range(4):
        I(f's_mov_b64 exec, {sp(S_MASK+4*r+2)}')
        I(f's_cbranch_execz L_C{r}')
        I(f's_waitcnt vmcnt({7 + NPF1 - 2*r})')
        I(f'v_lshrrev_b32 v{A8+r}, 24, v{REC+8*r+6}')
        I(f'ds_add_rtn_u32 v{REC+8*r+7}, v{A8+r}, v{X+8} offset:{CNT}')
        L(f'L_C{r}')
    I('s_mov_b64 exec, -1')
    I(f'v_lshlrev_b32 v{X+8}, 2, v{V_LANE}')
    I(f'v_mov_b32 v{X+9}, {MISC}')
    I(f's_mov_b32 s{S_T+2}, 0x1fff8')
    I('s_waitcnt lgkmcnt(0)')
    I('s_barrier')
    stamp(12)
    if NPFM in (2, 3, 4):
        nt_prefetch(60, dst=62)
        I(f's_mov_b32 s{S_T+2}, 0x1fff8')
    NG, GS, MI = X + 10, X + 11, X + 12
    I(f'ds_read_b32 v{NG}, v{X+8} offset:{CNT}')
    I(f'ds_read_b32 v{X+9}, v{X+9}')
    I('s_waitcnt lgkmcnt(1)')
    I(f'v_add_u32 v{NG}, 28, v{NG}')
    I(f'v_and_b32 v{NG}, 0xffffffe0, v{NG}')
    I(f'v_mov_b32 v{GS}, v{NG}')
    wave_scan(GS)
    I(f'v_readlane_b32 s{S_T}, v{GS}, 63')
    I(f'v_sub_u32 v{GS}, v{GS}, v{NG}')
    I(f'ds_write_b32 v{X+8}, v{GS} offset:{BASET}')
    for r in range(4):
        I(f's_mov_b64 exec, {sp(S_MASK+4*r)}')
        I(f'ds_read_b32 v{A4+r}, v{A4+r} offset:{BASET}')
    for r in range(4):
        I(f's_mov_b64 exec, {sp(S_MASK+4*r+2)}')
        I(f'ds_read_b32 v{A8+r}, v{A8+r} offset:{BASET}')
    I('s_mov_b64 exec, -1')
    I(f'v_readfirstlane_b32 s{S_MORE}, v{X+9}')
    out.insert(len(out) - 1, '    s_waitcnt lgkmcnt(9)')
    I(f's_lshr_b32 s{S_T}, s{S_T}, 5')
    I(f's_cmp_eq_u32 s{S_WID}, 128')
    I(f's_cselect_b32 s{S_T+1}, {MAXG}, -1')
    I(f's_cmp_gt_u32 s{S_T}, s{S_T+1}')
    I('s_cbranch_scc1 L_OVERFLOW')
    SB_, SR_, SG0 = S_T + 4, S_T + 5, S_T + 6
    I(f's_add_u32 s{S_T}, s{S_T}, 3')
    I(f's_lshr_b32 s{S_T}, s{S_T}, 2')
    I(f's_lshr_b32 s{SB_}, s{S_T}, 4')
    I(f's_and_b32 s{SR_}, s{S_T}, 15')
    I(f's_add_u32 s{S_T+1}, s{SB_}, 1')
    I(f'v_cvt_f32_u32 v{MI}, s{S_T+1}')
    I(f'v_cvt_f32_u32 v{MI+1}, s{SB_}')
    I(f'v_rcp_f32 v{MI}, v{MI}')
    I(f'v_rcp_f32 v{MI+1}, v{MI+1}')
    I(f's_mul_i32 s{SG0}, s{SR_}, s{S_T+1}')
    I(f's_lshl_b32 s{SG0}, s{SG0}, 2')
    I(f'v_lshrrev_b32 v{GS}, 5, v{GS}')
    I(f'v_mul_f32 v{MI}, 0x47800000, v{MI}')
    I(f'v_mul_f32 v{MI+1}, 0x47800000, v{MI+1}')
    I(f'v_lshrrev_b32 v{NG}, 5, v{NG}')
    I(f'v_cvt_u32_f32 v{MI}, v{MI}')
    I(f'v_cvt_u32_f32 v{MI+1}, v{MI+1}')
    I(f's_cmp_lt_u32 s{S_W}, s{SR_}')
    I(f's_cselect_b32 s{S_L}, s{S_T+1}, s{SB_}')
    I(f'v_add_u32 v{MI}, 2, v{MI}')
    I(f'v_add_u32 v{MI+1}, 2, v{MI+1}')
    I(f's_min_u32 s{S_T}, s{S_W}, s{SR_}')
    I(f's_mul_i32 s{S_T+3}, s{S_W}, s{SB_}')
    I(f's_add_u32 s{S_T+3}, s{S_T+3}, s{S_T}')
    I(f's_sub_u32 s{S_T+1}, 0, s{S_T+1}')
    I(f's_sub_u32 s{SB_}, 0, s{SB_}')
    I(f's_lshl_b32 s{SR_}, s{SR_}, 2')
    D0, D1, D2, D3, NR = 96, 97, 98, 99, 100
    I(f'v_lshlrev_b32 v{NR}, 8, v{V_LANE}')
    I(f'v_add_u32 v{NR+1}, {ACCN}, v{NR}')
    I(f's_mov_b32 s{S_T}, s{S_W}')
    L('L_DLOOP')
    I(f'v_cmp_lt_u32 vcc, s{S_T}, v{NG}')
    I('s_and_b64 exec, exec, vcc')
    I('s_cbranch_execz L_DEND')
    I(f'v_add_u32 v{D0}, s{S_T}, v{GS}')
    I(f'v_subrev_u32 v{D1}, s{SG0}, v{D0}')
    I(f'v_cmp_gt_u32 vcc, s{SG0}, v{D0}')
    I(f'v_mul_u32_u24 v{D2}, v{D0}, v{MI}')
    I(f'v_mul_u32_u24 v{D3}, v{D1}, v{MI+1}')
    I(f'v_lshrrev_b32 v{D2}, 16, v{D2}')
    I(f'v_lshrrev_b32 v{D3}, 16, v{D3}')
    I(f'v_mad_i32_i24 v{D0}, v{D2}, s{S_T+1}, v{D0}')
    I(f'v_mad_i32_i24 v{D1}, v{D3}, s{SB_}, v{D1}')
    I(f'v_add_u32 v{D3}, s{SR_}, v{D3}')
    I(f'v_cndmask_b32 v{D0}, v{D1}, v{D0}, vcc')
    I(f'v_cndmask_b32 v{D2}, v{D3}, v{D2}, vcc')
    I(f'v_cmp_le_u32 vcc, s{S_T}, v{D0}')
    I(f'v_lshl_add_u32 v{D0}, v{D0}, 6, v{D2}')
    I(f'v_lshlrev_b32 v{D1}, 8, v{D2}')
    I(f'v_lshlrev_b32 v{D0}, 2, v{D0}')
    I(f'v_add_u32 v{D1}, {EXTRA}, v{D1}')
    I(f'v_add_u32 v{D3}, {DESCA}, v{D0}')
    I(f'v_cndmask_b32 v{D1}, v{D1}, v{NR+1}, vcc')
    I(f'ds_write_b32 v{D0}, v{NR} offset:{DESCP}')
    I(f'ds_write_b32 v{D3}, v{D1}')
    I(f's_add_u32 s{S_T+7}, s{S_T}, 1')
    I(f'v_cmp_eq_u32 vcc, s{S_T+7}, v{NG}')
    I(f's_and_saveexec_b64 {sp(S_EX)}, vcc')
    I(f'ds_write_b32 v{X+8}, v{D2} offset:{NINFO+256}')
    I(f's_mov_b64 exec, {sp(S_EX)}')
    I(f's_cmp_lg_u32 s{S_T}, 0')
    I('s_cbranch_scc1 L_DNF')
    I(f'ds_write_b32 v{X+8}, v{D2} offset:{NINFO}')
    L('L_DNF')
    I(f's_add_u32 s{S_T}, s{S_T}, 16')
    I('s_branch L_DLOOP')
    L('L_DEND')
    I('s_mov_b64 exec, -1')
    I(f's_lshl_b32 s{S_T}, s{S_T+3}, 7')
    I(f's_lshl_b32 s{S_T+1}, s{S_L}, 5')
    I(f'v_mov_b32 v{D0}, s{S_T}')
    I(f'v_mad_u32_u24 v{V_PS0}, v{V_PS1}, s{S_T+1}, v{D0}')
    I(f'v_add_u32 v{D0}, v{D0}, v{D0}')
    I(f'v_add_u32 v{V_PS1}, s{S_T+1}, v{V_PS0}')
    I(f'v_add_u32 v{V_PE}, v{V_PE}, v{D0}')
    I(f's_lshl_b32 s{S_T+1}, s{S_L}, 6')
    I(f'v_mad_u32_u24 v{V_PE}, v{V_VAP}, s{S_T+1}, v{V_PE}')
    I(f's_mov_b32 s{S_CNT}, s{S_L}')
    I('s_waitcnt lgkmcnt(0)')
    I(f's_waitcnt vmcnt({NPF})')
    for r in range(4):
        I(f's_mov_b64 exec, {sp(S_MASK+4*r)}')
        I(f'v_add_u32 v{A4+r}, v{A4+r}, v{REC+8*r+3}')
        I(f'v_and_b32 v{REC+8*r+2}, s{S_T+2}, v{REC+8*r+2}')
        I(f'v_add_u32 v{REC+8*r+3}, v{A4+r}, v{A4+r}')
        I(f'ds_write_b32 v{A4+r}, v{REC+8*r+2} offset:{LS}')
        I(f'ds_write_b64 v{REC+8*r+3}, {p(REC+8*r)} offset:{LE}')
    for r in range(4):
        I(f's_mov_b64 exec, {sp(S_MASK+4*r+2)}')
        I(f's_cbranch_execz L_P{r}')
        I(f'v_add_u32 v{A8+r}, v{A8+r}, v{REC+8*r+7}')
        I(f'v_and_b32 v{REC+8*r+6}, s{S_T+2}, v{REC+8*r+6}')
        I(f'v_add_u32 v{REC+8*r+7}, v{A8+r}, v{A8+r}')
        I(f'ds_write_b32 v{A8+r}, v{REC+8*r+6} offset:{LS}')
        I(f'ds_write_b64 v{REC+8*r+7}, {p(REC+8*r+4)} offset:{LE}')
        L(f'L_P{r}')
    I('s_mov_b64 exec, -1')
    stamp(13)
    I('s_waitcnt lgkmcnt(0)')
    I('s_barrier')
    stamp(14)
    I(f's_cmp_eq_u32 s{S_L}, 0')
    I('s_cbranch_scc1 L_FOLD')
    lg = Lg()
    s_reads(lg, 0)
    lg.op('dP', f'ds_read_b64 {p(V_VAP)}, v{V_PD}')
    lg.op('dA', f'ds_read_b64 {p(V_VAA[0])}, v{V_PD} offset:{DESCA-DESCP}')
    lg.op('e', f'ds_read_b64 {p(A5)}, v{V_PE}')
    lg.need('S0', 'S1', 'S2', 'S3')
    for n in range(2):
        for i in range(16):
            I(gload(n, i))
    s_reads(lg, 1)
    I(f'v_mov_b32 v{V_C8P}, v{V_CH8}')
    I(f'v_mov_b32 v{V_C8P+1}, v{V_CH8}')
    I(f'v_mov_b32 v{V_CPP}, v{V_CHP}')
    I(f'v_mov_b32 v{V_CPP+1}, v{V_CHP}')
    I(f's_mov_b32 s{S_BP0}, 64')
    I(f's_mov_b32 s{S_BP0+1}, 64')
    I(f's_mov_b32 s{S_BP1}, 128')
    I(f's_mov_b32 s{S_BP1+1}, 512')
    lg.need('dP', 'dA')
    va_add(V_VAP, V_VAA[0])
    lg.op('P0a', f'ds_read_b32 v{B5[0]+2}, v{V_VAP}')
    lg.op('P0b', f'ds_read_b32 v{B5[0]+3}, v{V_VAP+1}')
    lg.op('P1a', f'ds_read_b32 v{B5[1]+2}, v{V_VAP} offset:4')
    lg.op('P1b', f'ds_read_b32 v{B5[1]+3}, v{V_VAP+1} offset:4')
    I(f's_cmp_eq_u32 s{S_CNT}, 1')
    I(f's_cselect_b64 {sp(S_LDX)}, 0, {LDXV}')
    I('s_waitcnt lgkmcnt(0)')
    lg.q = []
    if opt('prio', 3):
        I('s_setprio 3')
    stamp(15)
    rstamp(28)
    half(lg, 0, 0, 0, False)
    state0 = list(lg.q)
    def step(par, uo):
        half(lg, 1, par, uo)
        I(f's_sub_u32 s{S_CNT}, s{S_CNT}, 1')
        I(f's_cmp_eq_u32 s{S_CNT}, 0')
        I(f's_cbranch_scc1 L_FIN{par}')
        I(f's_cmp_eq_u32 s{S_CNT}, 1')
        I(f's_cselect_b64 {sp(S_LDX)}, 0, {LDXV}')
        prio(f'{par}')
        half(lg, 0, par ^ 1, uo + 1)
    def loop_body():
        step(0, 0)
        step(1, 1)
        I(f'v_lshl_add_u64 {p(V_PS0)}, {p(V_PS0)}, 0, {sp(S_BP0)}')
        I(f'v_lshl_add_u64 {p(V_PE)}, {p(V_PE)}, 0, {sp(S_BP1)}')
        I('s_branch L_LOOP')
    mark = len(out)
    loop_body()
    del out[mark:]
    qb = list(lg.q)
    n = min(len(qb), len(state0))
    assert qb[len(qb)-n:] == state0[len(state0)-n:], (state0, qb)
    lg.q = list(qb if len(qb) >= len(state0) else state0)
    e('.p2align 3')
    L('L_LOOP')
    loop_body()
    assert lg.q == qb, (lg.q, qb)
    print('loop entry queue', state0, 'back edge queue', qb, file=sys.stderr)
    for pr in range(2):
        L(f'L_FIN{pr}')
        t = tail_ops(1)
        for op in t[:4]:
            I(op)
        I('s_waitcnt lgkmcnt(0)')
        for op in t[4:]:
            I(op)
        acc_write(Lg(), V_VAA[pr])
        if pr == 0:
            I('s_branch L_FOLD')
    L('L_FOLD')
    stamp(16)
    I(f'v_lshrrev_b32 v{X}, 3, v{V_TID}')
    I(f'v_and_b32 v{X+1}, 7, v{V_TID}')
    I(f'v_lshlrev_b32 v{X+6}, 3, v{X+1}')
    I(f'v_lshlrev_b32 v{X+1}, 5, v{X+1}')
    I(f'v_lshl_add_u32 v{X+2}, v{X}, 8, v{X+1}')
    I(f'v_add_u32 v{X+2}, {ACCN}, v{X+2}')
    I(f'v_add_u32 v{X+1}, {EXTRA}, v{X+1}')
    I(f'v_lshlrev_b32 v{X+3}, 2, v{X}')
    I(f's_mul_i32 s{S_T+4}, s3, {NB*128}')
    I(f'v_lshl_add_u32 v{X+6}, v{X}, 7, v{X+6}')
    I(f'v_add_u32 v{X+6}, s{S_T+4}, v{X+6}')
    I(f'v_mov_b32 v{X+7}, 0')
    I('s_waitcnt vmcnt(0) lgkmcnt(0)')
    I('s_barrier')
    stamp(17)
    rstamp(29)
    if PROF:
        I(f'v_writelane_b32 v{V_PROF}, s{S_L}, 27')
    I(f'v_cmp_gt_u32 vcc, {NB*8}, v{V_TID}')
    I(f's_and_saveexec_b64 {sp(S_EX)}, vcc')
    I('s_cbranch_execz L_FDONE')
    I(f'ds_read_b32 v{X+4}, v{X+3} offset:{NINFO}')
    I(f'ds_read_b32 v{X+5}, v{X+3} offset:{NINFO+256}')
    I(f'ds_read_b128 v[64:67], v{X+2}')
    I(f'ds_read_b128 v[68:71], v{X+2} offset:16')
    I(f's_mov_b64 {sp(S_T)}, exec')
    I('s_waitcnt lgkmcnt(0)')
    L('L_FLOOP')
    I(f'v_cmp_lt_u32 vcc, v{X+4}, v{X+5}')
    I('s_and_b64 exec, exec, vcc')
    I('s_cbranch_execz L_FLEND')
    I(f'v_add_u32 v{X+4}, 1, v{X+4}')
    I(f'v_lshl_add_u32 v{X+7}, v{X+4}, 8, v{X+1}')
    I(f'ds_read_b128 v[72:75], v{X+7}')
    I(f'ds_read_b128 v[76:79], v{X+7} offset:16')
    I('s_waitcnt lgkmcnt(0)')
    for k in range(8):
        I(f'v_add_f32 v{64+k}, v{64+k}, v{72+k}')
    I('s_branch L_FLOOP')
    L('L_FLEND')
    I(f's_mov_b64 exec, {sp(S_T)}')
    I(f's_cmp_lg_u32 s{S_MORE}, 0')
    I('s_cbranch_scc1 L_WB')
    I(f's_mov_b32 s{S_T+2}, 0x{f2u(2.0**-(SV+KEXP)):x}')
    I(f's_mov_b32 s{S_T+3}, 0x{f2u(-LOG2E):x}')
    for k in range(8):
        I(f'v_mul_f32 v{64+k}, s{S_T+2}, v{64+k}')
    for k in range(8):
        I(f'v_mul_f32 v{72+k}, s{S_T+3}, v{64+k}')
    for k in range(8):
        I(f'v_exp_f32 v{72+k}, v{72+k}')
    for k in range(8):
        I(f'v_add_f32 v{72+k}, 1.0, v{72+k}')
    for k in range(8):
        I(f'v_rcp_f32 v{72+k}, v{72+k}')
    for k in range(8):
        I(f'v_mul_f32 v{64+k}, v{64+k}, v{72+k}')
    I('v_cvt_pk_bf16_f32 v80, v64, v66')
    I('v_cvt_pk_bf16_f32 v81, v68, v70')
    I('v_cvt_pk_bf16_f32 v82, v65, v67')
    I('v_cvt_pk_bf16_f32 v83, v69, v71')
    I(f'buffer_store_dwordx2 v[80:81], v{X+6}, {sr4(S_OUT)}, 0 offen' + OSC)
    I(f'buffer_store_dwordx2 v[82:83], v{X+6}, {sr4(S_OUT)}, 0 offen offset:64' + OSC)
    stamp(18)
    prof_store()
    diag_end()
    I('s_endpgm')
    L('L_WB')
    I(f'ds_write_b128 v{X+2}, v[64:67]')
    I(f'ds_write_b128 v{X+2}, v[68:71] offset:16')
    L('L_FDONE')
    I('s_mov_b64 exec, -1')
    I(f's_cmp_eq_u32 s{S_MORE}, 0')
    I('s_cbranch_scc1 L_QUIT')
    I(f's_add_u32 s{S_JB}, s{S_JB}, s{S_WID}')
    I('s_branch L_REFILL')
    L('L_OVERFLOW')
    I(f's_mov_b32 s{S_WID}, 64')
    L('L_REFILL')
    I('s_waitcnt vmcnt(0) lgkmcnt(0)')
    I('s_barrier')
    fill_zero()
    fill_words()
    ptr_consts()
    I('s_waitcnt lgkmcnt(0)')
    I('s_barrier')
    I('s_branch L_PASS')
    L('L_QUIT')
    prof_store()
    L('L_END')
    I('s_endpgm')

hdr = open('standalone__edge_featured_mpnn_egc__graph.s.ref').read().split('\n')
for line in hdr:
    if line.startswith('; Override'):
        break
    e(line)
e(f'; @launch grid=({NWG},1,1) block=(1024,1,1) lds={LDS_BYTES}')
e('.amdgcn_target "amdgcn-amd-amdhsa--gfx950"')
e('.text')
gen()
e('.section .rodata,"a"')
e('.p2align 6')
e(f'.amdhsa_kernel {KNAME}')
e('  .amdhsa_next_free_vgpr 128')
e('  .amdhsa_next_free_sgpr 102')
e('  .amdhsa_accum_offset 128')
e('  .amdhsa_group_segment_fixed_size 0')
e('  .amdhsa_kernarg_size 80')
e('  .amdhsa_user_sgpr_count 2')
e('  .amdhsa_user_sgpr_kernarg_segment_ptr 1')
e('  .amdhsa_system_sgpr_workgroup_id_x 1')
e('  .amdhsa_float_denorm_mode_32 3')
e('.end_amdhsa_kernel')
open(sys.argv[1], 'w').write('\n'.join(x for x in out if x is not None) + '\n')
```

```python
import sys, struct

OPT = dict(a.split('=') for a in sys.argv[2:] if '=' in a)
def opt(name, default):
    return type(default)(OPT.get(name, default))

KNAME = 'standalone__edge_featured_mpnn_egc__graph_kernel'
N_NODES = 12500
E_EDGES = 800000
NB = 49
NWG = 256
CH = 3136
WS_RW = 0
WS_RE = 0x00400000
WS_TAB = 0x00A80000
WS_NT = 0x00C00000
WS_PROF = 0x01000000
KEXP = 31
SV = 30
LOG2E = 1.4426950408889634
SC = opt('sc', 'sc1')
SC = (' ' + SC.replace('+', ' ')) if SC != 'none' else ''
LSC = opt('lsc', 'sc1')
LSC = (' ' + LSC.replace('+', ' ')) if LSC != 'none' else ''
GSC = opt('gsc', 'sc1')
GSC = (' ' + GSC.replace('+', ' ')) if GSC != 'none' else ''
ELD = opt('eld', 'none')
ELD = (' ' + ELD.replace('+', ' ')) if ELD != 'none' else ''

def f2u(x):
    return struct.unpack('<I', struct.pack('<f', x))[0]

out = []
def e(s=''):
    out.append(s)
def I(s):
    out.append('    ' + s)
def L(name):
    out.append(name + ':')
def vr(a, n):
    return f'v[{a}:{a+n-1}]' if n > 1 else f'v{a}'
def sr4(a):
    return f's[{a}:{a+3}]'
def sp(a):
    return f's[{a}:{a+1}]'
def p(r):
    return f'v[{r}:{r+1}]'

def srd(d, lo, hi, nrec):
    I(f's_mov_b32 s{d}, s{lo}')
    I(f's_mov_b32 s{d+1}, s{hi}')
    I(f's_mov_b32 s{d+2}, {nrec}')
    I(f's_mov_b32 s{d+3}, 0x00020000')

def srd_off(d, lo, hi, off, nrec):
    I(f's_add_u32 s{d}, s{lo}, {off}')
    I(f's_addc_u32 s{d+1}, s{hi}, 0')
    I(f's_mov_b32 s{d+2}, {nrec}')
    I(f's_mov_b32 s{d+3}, 0x00020000')

def wave_scan(v):
    for sh in (1, 2, 4, 8):
        I('s_nop 1')
        I(f'v_add_u32_dpp v{v}, v{v}, v{v} row_shr:{sh} row_mask:0xf bank_mask:0xf')
    I('s_nop 1')
    I(f'v_add_u32_dpp v{v}, v{v}, v{v} row_bcast:15 row_mask:0xa bank_mask:0xf')
    I('s_nop 1')
    I(f'v_add_u32_dpp v{v}, v{v}, v{v} row_bcast:31 row_mask:0xc bank_mask:0xf')
    I('s_nop 1')

LS = 0
ZR = 18688
LE = 18688
CNT = 56064
MISC = 56320
BASET = 56576
NINFO = 56832
HIST = 57344
HBASE = 58368
DESCP = 59392
EXTRA = 67840
DESCA = 84224
PT = 86784
ACCN = 99328
WRAW = 111872
WG_, WV_, WU_ = WRAW, WRAW + 17408, WRAW + 25600
XOWN = WRAW + 33792
LDS_BYTES = XOWN + 8192
STGW = 0
STGE = CH * 4
NTI = EXTRA
MAXG = 576
assert STGE + CH * 8 <= CNT

V_TID, V_LANE = 0, 1
V_MA, V_MB = 2, 4
V_VAA = (6, 8)
V_VAP = 10
V_PS0, V_PS1, V_PE, V_PD, V_CH8, V_CHP = 12, 13, 14, 15, 16, 17
V_PROF = 18
V_TAB = 20
V_J4, V_CB4 = 24, 25
V_X = 26
V_T01D, V_T01N, V_T23D, V_T23N = 40, 42, 44, 46
B5 = (48, 52)
A5 = 56
V_TT = (60, 62)
G = (64, 80)
Z = 96
S = 112

S_XS, S_WS, S_DST, S_SRC, S_EA, S_RW, S_RE, S_TAB, S_NTS, S_NTG, S_OUT = 12, 16, 20, 24, 28, 32, 36, 40, 44, 48, 52
S_MASK = 56
S_W, S_L, S_CNT, S_JB, S_WID, S_MORE = 72, 73, 74, 75, 76, 77
S_C = 78
S_EX = 80
S_LDX = 82
S_T = 84
S_WSP = 94
S_DBG = 96
S_TAG, S_TAG2 = 100, 101
TAGM = 0xC003C003
TAGL = MISC + 64

NT2 = 2 if opt('touch', 0) else 0
LDXV = 0 if opt('noload', 0) else -1
NPFM = opt('npf', 4)
NPF = {0: 0, 1: 7, 2: 7, 3: 2, 4: 1, 5: 1}[NPFM]
NPF1 = NPF if NPFM in (1, 5) else 0
WSB = opt('wsb', 0) << 20
TCH = 4 if opt('touch', 0) else 0
T1 = opt('t1', 0)
OSC = opt('osc', 'nt')
OSC = (' ' + OSC.replace('+', ' ')) if OSC != 'none' else ''
KREP = opt('krep', 1)
assert KREP <= 3
PROF = opt('prof', 0)
DIAG = opt('diag', -1)
def diag_end():
    if DIAG < 0:
        return
    I('s_memrealtime s[98:99]')
    I('s_waitcnt lgkmcnt(0)')
    I('v_readlane_b32 s92, v18, 1')
    I('v_readlane_b32 s93, v18, 0')
    I('s_nop 3')
    I('s_sub_u32 s92, s92, s93')
    I('s_lshl_b32 s92, s92, 2')
    I('s_mov_b32 s93, s98')
    lbl = f'L_DG{len(out)}'
    L(lbl)
    I('s_memrealtime s[98:99]')
    I('s_waitcnt lgkmcnt(0)')
    I('s_sub_u32 s98, s98, s93')
    I('s_cmp_lt_u32 s98, s92')
    I(f's_cbranch_scc1 {lbl}')
def stamp(i):
    if DIAG >= 0 and i in (0, DIAG):
        I('s_memrealtime s[98:99]')
        I('s_waitcnt lgkmcnt(0)')
        if i == 0:
            I('v_writelane_b32 v18, s98, 0')
        if i == DIAG:
            I('v_writelane_b32 v18, s98, 1')
    if not PROF:
        return
    I('s_memtime s[98:99]')
    I('s_waitcnt lgkmcnt(0)')
    I(f'v_writelane_b32 v{V_PROF}, s98, {i}')
def rstamp(i):
    if not PROF:
        return
    I('s_memrealtime s[98:99]')
    I('s_waitcnt lgkmcnt(0)')
    I(f'v_writelane_b32 v{V_PROF}, s98, {i}')
def prof_store():
    if not PROF:
        return
    rstamp(31)
    if PROF == 3:
        I(f's_lshl_b32 s98, s2, 4')
        I(f's_add_u32 s98, s98, s{S_W}')
        I(f's_cmp_lg_u32 s98, {opt("pwave", 80)}')
        I('s_cbranch_scc1 L_END')
        I('s_mov_b64 exec, -1')
        I(f'v_readlane_b32 s98, v{V_PROF}, 0')
        I(f'v_readlane_b32 s99, v{V_PROF}, 30')
        I(f'v_readlane_b32 s{S_T}, v{V_PROF}, 31')
        I('s_nop 3')
        I(f's_sub_u32 s{S_T}, s{S_T}, s99')
        I(f's_add_u32 s{S_T}, s{S_T}, s98')
        I(f'v_writelane_b32 v{V_PROF}, s{S_T}, 9')
        I(f'v_subrev_u32 v{V_PROF}, s98, v{V_PROF}')
        I(f'v_mbcnt_lo_u32_b32 v{V_PROF+1}, -1, 0')
        I(f'v_lshlrev_b32 v{V_PROF+1}, 2, v{V_PROF+1}')
        I(f'v_add_u32 v{V_PROF+1}, -8, v{V_PROF+1}')
        I('s_mov_b64 exec, 0x3fff8')
        I(f'global_store_dword v{V_PROF+1}, v{V_PROF}, {sp(S_DBG)}')
        return
    I('s_mov_b64 exec, 0xffffffff')
    I(f's_add_u32 s{S_T}, s{S_WSP}, 0x{WS_PROF:x}')
    I(f's_addc_u32 s{S_T+1}, s{S_WSP+1}, 0')
    I(f'v_mbcnt_lo_u32_b32 v{V_PROF+1}, -1, 0')
    I(f'v_lshlrev_b32 v{V_PROF+1}, 2, v{V_PROF+1}')
    I(f's_lshl_b32 s98, s2, 4')
    I(f's_add_u32 s98, s98, s{S_W}')
    I(f's_lshl_b32 s98, s98, 7')
    I(f'v_add_u32 v{V_PROF+1}, s98, v{V_PROF+1}')
    I(f'global_store_dword v{V_PROF+1}, v{V_PROF}, {sp(S_T)}')

class Lg:
    def __init__(self):
        self.q = []
    def op(self, tag, text):
        I(text)
        self.q.append(tag)
    def need(self, *tags):
        idx = -1
        for t in tags:
            for i in range(len(self.q) - 1, -1, -1):
                if self.q[i] == t:
                    idx = max(idx, i)
                    break
        if idx < 0:
            return
        n = len(self.q) - 1 - idx
        assert n <= 15, (tags, n)
        I(f's_waitcnt lgkmcnt({n})')
        self.q = self.q[idx + 1:]

X = V_X

def zero_range(a, nbytes, zr, ad):
    k = 0
    base = a if a + nbytes <= 65536 + 16384 and a < 65536 - 3 * 16384 else None
    off = 0
    areg = ad
    if a + ((nbytes - 1) // 16384) * 16384 > 65535:
        I(f'v_add_u32 v{X+1}, {a}, v{ad}')
        areg = X + 1
        a0 = 0
    else:
        a0 = a
    while off < nbytes:
        n = min(16384, nbytes - off)
        if n < 16384:
            I(f'v_cmp_gt_u32 vcc, {n // 16}, v{V_TID}')
            I(f's_and_saveexec_b64 {sp(S_EX)}, vcc')
        I(f'ds_write_b128 v{areg}, v[{zr}:{zr+3}] offset:{a0 + off}')
        if n < 16384:
            I(f's_mov_b64 exec, {sp(S_EX)}')
        off += n

def zregs():
    I(f'v_lshlrev_b32 v{X}, 4, v{V_TID}')
    for k in range(4):
        I(f'v_mov_b32 v{X+2+k}, 0')

def fill_desca():
    I(f'v_and_b32 v{X+6}, 15, v{V_TID}')
    I(f'v_lshlrev_b32 v{X+6}, 10, v{X+6}')
    I(f'v_add_u32 v{X+6}, {EXTRA}, v{X+6}')
    for k in range(1, 4):
        I(f'v_add_u32 v{X+6+k}, {256*k}, v{X+6}')
    I(f'v_add_u32 v{X+1}, {DESCA}, v{X}')
    I(f'v_cmp_gt_u32 vcc, 160, v{V_TID}')
    I(f's_and_saveexec_b64 {sp(S_EX)}, vcc')
    I(f'ds_write_b128 v{X+1}, v[{X+6}:{X+9}]')
    I(f's_mov_b64 exec, {sp(S_EX)}')

def fill_zero():
    zregs()
    zero_range(ZR, 65536, X + 2, X)
    fill_desca()

def fill_words():
    I(f'v_lshlrev_b32 v{X}, 4, v{V_TID}')
    I(f'v_and_b32 v{X+2}, 7, v{V_TID}')
    I(f'v_lshlrev_b32 v{X+2}, 5, v{X+2}')
    I(f'v_add_u32 v{X+2}, {N_NODES*8}, v{X+2}')
    for k in range(1, 4):
        I(f'v_add_u32 v{X+2+k}, {8*k}, v{X+2}')
    I(f'ds_write_b128 v{X}, v[{X+2}:{X+5}] offset:{LS}')
    I(f'v_cmp_gt_u32 vcc, 144, v{V_TID}')
    I(f's_and_saveexec_b64 {sp(S_EX)}, vcc')
    I(f'ds_write_b128 v{X}, v[{X+2}:{X+5}] offset:{LS+16384}')
    I(f's_mov_b64 exec, {sp(S_EX)}')

V_C8P, V_CPP = 26, 28
S_BP0, S_BP1 = 88, 90

def tail_ops(n):
    M = (V_MA, V_MB)[n]
    return [f'v_rcp_f32 v{V_T01D}, v{V_T01D}',
            f'v_rcp_f32 v{V_T01D+1}, v{V_T01D+1}',
            f'v_rcp_f32 v{V_T23D}, v{V_T23D}',
            f'v_rcp_f32 v{V_T23D+1}, v{V_T23D+1}',
            f'v_pk_fma_f32 {p(M)}, {p(V_T01N)}, {p(V_T01D)}, {p(M)}',
            f'v_pk_fma_f32 {p(M)}, {p(V_T23N)}, {p(V_T23D)}, {p(M)}']

def acc_write(lg, va):
    lg.op('Wa', f'ds_write2_b32 v{va}, v{V_MA}, v{V_MB} offset0:0 offset1:1')
    lg.op('Wb', f'ds_write2_b32 v{va+1}, v{V_MA+1}, v{V_MB+1} offset0:0 offset1:1')

def acc_read(lg, va):
    lg.op('Ra', f'ds_read_b32 v{V_MA}, v{va}')
    lg.op('Rb', f'ds_read_b32 v{V_MA+1}, v{va+1}')
    lg.op('Rc', f'ds_read_b32 v{V_MB}, v{va} offset:4')
    lg.op('Rd', f'ds_read_b32 v{V_MB+1}, v{va+1} offset:4')

def va_add(vap, vaa):
    I(f'v_lshl_add_u64 {p(vap)}, {p(vap)}, 0, {p(V_CPP)}')
    I(f'v_lshl_add_u64 {p(vaa)}, {p(vaa)}, 0, {p(V_C8P)}')

def gload(n, i):
    return f'buffer_load_dword v{G[n]+i}, v{S + (i & 1) * 8 + (i >> 1)}, {sr4(S_NTG)}, 0 offen offset:{4*n}' + GSC

def s_reads(lg, uo):
    lg.op('S0', f'ds_read_b128 {vr(S,4)}, v{V_PS0} offset:{uo*32}')
    lg.op('S1', f'ds_read_b128 {vr(S+4,4)}, v{V_PS0} offset:{uo*32+16}')
    lg.op('S2', f'ds_read_b128 {vr(S+8,4)}, v{V_PS1} offset:{uo*32}')
    lg.op('S3', f'ds_read_b128 {vr(S+12,4)}, v{V_PS1} offset:{uo*32+16}')

def half(lg, n, par, uo, with_tail=True):
    g = G[n]
    I('s_waitcnt vmcnt(16)')
    if n == 0:
        lg.need('P0a', 'P0b', 'e')
    else:
        lg.need('P1a', 'P1b')
    I(f'v_mfma_f32_32x32x16_bf16 {vr(Z,16)}, {vr(A5,4)}, {vr(B5[n],4)}, {vr(g,16)}')
    t = tail_ops(n ^ 1)
    va_prev, va_cur, va_nxt = V_VAA[par ^ 1], V_VAA[par], V_VAA[par ^ 1]
    sh = [f'v_lshlrev_b32 v{g+i}, 16, v{g+i}' for i in range(16)]
    ex = [f'v_exp_f32 v{Z+i}, v{Z+i} clamp' for i in range(16)]
    if with_tail:
        for op in t[:4]:
            I(op)
    else:
        I('s_nop 3')
    if n == 1:
        lg.op('e', f'ds_read_b64 {p(A5)}, v{V_PE} offset:{(uo+1)*64}')
        lg.op('P1a', f'ds_read_b32 v{B5[1]+2}, v{V_VAP} offset:4')
        lg.op('P1b', f'ds_read_b32 v{B5[1]+3}, v{V_VAP+1} offset:4')
    else:
        lg.op('dP', f'ds_read_b64 {p(V_VAP)}, v{V_PD} offset:{(uo+1)*256}')
        I('s_nop 1')
    for op in sh[:6]:
        I(op)
    if with_tail:
        lg.need('Ra', 'Rb', 'Rc', 'Rd')
        I(t[4])
        I(ex[0])
        I(t[5])
    else:
        I(ex[0])
    I(sh[6])
    if n == 0:
        if with_tail:
            acc_write(lg, va_prev)
        acc_read(lg, va_cur)
        lg.op('dA', f'ds_read_b64 {p(va_nxt)}, v{V_PD} offset:{(uo+1)*256 + DESCA - DESCP}')
    for i in range(1, 12):
        I(ex[i])
        if 6 + i < 16:
            I(sh[6 + i])
        if n == 0 and i == 9:
            lg.need('dP', 'dA')
            va_add(V_VAP, va_nxt)
            lg.op('P0a', f'ds_read_b32 v{B5[0]+2}, v{V_VAP}')
            lg.op('P0b', f'ds_read_b32 v{B5[0]+3}, v{V_VAP+1}')
    for op in ex[12:]:
        I(op)
    for i in range(0, 16, 2):
        I(f'v_pk_add_f32 {p(Z+i)}, {p(Z+i)}, {sp(S_C)}')
    def T(k): return f'v_pk_mul_f32 {p(V_TT[k&1])}, {p(g+4*k)}, {p(Z+4*k+2)}'
    def DD(k): return f'v_pk_mul_f32 {p(Z+4*k+2)}, {p(Z+4*k)}, {p(Z+4*k+2)}'
    def NN(k): return f'v_pk_fma_f32 {p(Z+4*k)}, {p(g+4*k+2)}, {p(Z+4*k)}, {p(V_TT[k&1])}'
    for k0 in (0, 2):
        for op in (T(k0), T(k0 + 1), DD(k0), DD(k0 + 1), NN(k0), NN(k0 + 1)):
            I(op)
        if n == 0 and k0 == 0:
            lg.need('S0', 'S1', 'S2', 'S3')
        I(f's_mov_b64 exec, {sp(S_LDX)}')
        for i in range(4 * k0, 4 * k0 + 8):
            I(gload(n, i))
        I('s_mov_b64 exec, -1')
    if n == 1:
        s_reads(lg, uo + 2)
    I(f'v_pk_mul_f32 {p(V_T01N)}, {p(Z)}, {p(Z+6)}')
    I(f'v_pk_mul_f32 {p(V_T23N)}, {p(Z+8)}, {p(Z+14)}')
    I(f'v_pk_mul_f32 {p(V_T01D)}, {p(Z+2)}, {p(Z+6)}')
    I(f'v_pk_mul_f32 {p(V_T23D)}, {p(Z+10)}, {p(Z+14)}')
    I(f'v_pk_fma_f32 {p(V_T01N)}, {p(Z+4)}, {p(Z+2)}, {p(V_T01N)}')
    I(f'v_pk_fma_f32 {p(V_T23N)}, {p(Z+12)}, {p(Z+10)}, {p(V_T23N)}')

def prio(tag):
    pr = opt('prio', 3)
    if not pr:
        return
    th = {1: (4, 2, 1), 2: (5, 3, 1), 3: (3, 2, 1), 4: (6, 4, 2)}[pr]
    for lvl, t in zip((2, 1, 0), th):
        I(f's_cmp_eq_u32 s{S_CNT}, {t}')
        I(f's_cbranch_scc0 L_PR{tag}_{lvl}')
        I(f's_setprio {lvl}')
        L(f'L_PR{tag}_{lvl}')

def split_hilo(a, b, t0, t1):
    I(f'v_cvt_pk_bf16_f32 v{t0}, v{a}, v{b}')
    I(f'v_lshlrev_b32 v{t1}, 16, v{t0}')
    I(f'v_and_b32 v{t0}, 0xffff0000, v{t0}')
    I(f'v_sub_f32 v{a}, v{a}, v{t1}')
    I(f'v_sub_f32 v{b}, v{b}, v{t0}')
    I(f'v_cvt_pk_bf16_f32 v{a}, v{t1}, v{a}')
    I(f'v_cvt_pk_bf16_f32 v{b}, v{t0}, v{b}')

V_AA, V_AB, V_AD, V_AP = 6, 7, 8, 9
SA, SB, SD = 80, 96, 112

def phase0_addr():
    I(f's_and_b32 s{S_T}, s{S_W}, 3')
    I(f's_lshr_b32 s{S_T+1}, s{S_W}, 2')
    I(f'v_and_b32 v12, 15, v{V_LANE}')
    I(f'v_lshrrev_b32 v13, 4, v{V_LANE}')
    I(f'v_bfe_u32 v14, v{V_LANE}, 1, 3')
    I(f'v_xor_b32 v14, v14, v13')
    I(f'v_lshlrev_b32 v14, 4, v14')
    I(f'v_lshl_or_b32 v14, v12, 7, v14')
    I(f's_lshl_b32 s{S_T+2}, s{S_T}, 11')
    I(f'v_add_u32 v{V_AA}, s{S_T+2}, v14')
    I(f'v_bfe_u32 v14, v{V_LANE}, 2, 2')
    I(f'v_lshl_add_u32 v14, v13, 3, v14')
    I(f'v_lshlrev_b32 v14, 7, v14')
    I(f'v_and_b32 v15, 3, v{V_LANE}')
    I(f'v_lshl_add_u32 v14, v15, 3, v14')
    I(f's_lshl_b32 s{S_T+2}, s{S_T+1}, 5')
    I(f'v_or_b32 v14, s{S_T+2}, v14')
    I(f'v_and_b32 v15, 24, v{V_LANE}')
    I(f'v_lshlrev_b32 v15, 2, v15')
    I(f'v_xor_b32 v14, v14, v15')
    I(f'v_add_u32 v{V_AB}, {WRAW}, v14')
    I(f's_lshl_b32 s{S_T+2}, s{S_T}, 12')
    I(f'v_lshlrev_b32 v13, 10, v13')
    I(f'v_add_u32 v13, s{S_T+2}, v13')
    I(f's_lshl_b32 s{S_T+2}, s{S_T+1}, 6')
    I(f's_add_u32 s{S_T+2}, s{S_T+2}, {NTI}')
    I(f'v_lshl_add_u32 v{V_AD}, v12, 2, v13')
    I(f'v_add_u32 v{V_AD}, s{S_T+2}, v{V_AD}')
    I(f's_and_b32 s{S_T+2}, s{S_T+1}, 1')
    I(f's_lshl_b32 s{S_T+2}, s{S_T+2}, 7')
    I(f's_lshr_b32 s{S_T+3}, s{S_T+1}, 1')
    I(f's_lshl_b32 s{S_T+3}, s{S_T+3}, 2')
    I(f's_add_u32 s{S_T+2}, s{S_T+2}, s{S_T+3}')
    I(f's_add_u32 s{S_T+2}, s{S_T+2}, {PT}')
    I(f'v_lshl_add_u32 v{V_AP}, v12, 3, v13')
    I(f'v_add_u32 v{V_AP}, s{S_T+2}, v{V_AP}')

def b_reads(dst, off):
    for sg in range(2):
        for pp in range(2):
            I(f'ds_read_b64_tr_b16 {vr(dst+4*sg+2*pp,2)}, v{V_AB} offset:{off+sg*4096+pp*512}')

def mm16(d, b):
    I(f'v_mfma_f32_16x16x32_bf16 {vr(d,4)}, {vr(SA,4)}, {vr(b,4)}, 0')
    I(f'v_mfma_f32_16x16x32_bf16 {vr(d,4)}, {vr(SA+4,4)}, {vr(b+4,4)}, {vr(d,4)}')

def phase0a():
    I(f'v_add_u32 v12, {XOWN}, v{V_AA}')
    I(f'v_xor_b32 v13, 64, v{V_AA}')
    I(f'v_add_u32 v13, {XOWN}, v13')
    I(f'ds_read_b128 {vr(SA,4)}, v12')
    I(f'ds_read_b128 {vr(SA+4,4)}, v13')
    b_reads(SB, 8192)
    b_reads(SB + 8, WV_ - WRAW)
    I(f's_mov_b32 s{S_T+4}, 0x{f2u(-LOG2E):x}')
    I(f's_mov_b32 s{S_T+5}, 0x{f2u(2.0**SV):x}')
    I(f's_mov_b32 s{S_T+6}, 0x7fffffff')
    I(f's_mov_b32 s{S_T+7}, 0xffff0000')
    I('s_waitcnt lgkmcnt(4)')
    mm16(SD, SB)
    I('s_waitcnt lgkmcnt(0)')
    mm16(SD + 4, SB + 8)
    I('s_nop 4')
    for i in range(4):
        I(f'v_mul_f32 v{SD+i}, s{S_T+4}, v{SD+i}')
    for i in range(4):
        I(f'v_and_b32 v{SD+8+i}, s{S_T+6}, v{SD+i}')
    for i in range(4):
        I(f'v_mul_f32 v{SD+4+i}, s{S_T+5}, v{SD+4+i}')
        I(f'v_add_u32 v{SD+8+i}, 0x8000, v{SD+8+i}')
    I(f'v_cvt_pk_bf16_f32 v{SD+4}, v{SD+4}, v{SD+5}')
    I(f'v_cvt_pk_bf16_f32 v{SD+6}, v{SD+6}, v{SD+7}')
    I(f'v_lshrrev_b32 v{SD+5}, 16, v{SD+4}')
    I(f'v_lshrrev_b32 v{SD+7}, 16, v{SD+6}')
    I(f'v_and_b32 v{SD+4}, 0xffff, v{SD+4}')
    I(f'v_and_b32 v{SD+6}, 0xffff, v{SD+6}')
    for i in range(4):
        I(f'v_sub_u32 v{SD+8+i}, v{SD+8+i}, v{SD+4+i} clamp')
    for i in range(4):
        I(f'v_and_or_b32 v{SD+8+i}, v{SD+8+i}, s{S_T+7}, v{SD+4+i}')
    for i in range(4):
        I(f'v_bfi_b32 v{SD+i}, s{S_T+6}, v{SD+8+i}, v{SD+i}')
        I(f'ds_write_b32 v{V_AD}, v{SD+i} offset:{i*256}')

def phase0b():
    b_reads(SB, 0)
    b_reads(SB + 8, WU_ - WRAW)
    I(f's_mov_b32 s{S_T+4}, 0x{f2u(-LOG2E):x}')
    I(f's_mov_b32 s{S_T+5}, 0x{f2u(2.0**(SV+KEXP)):x}')
    I(f'v_mov_b32 v13, 0x{f2u(-float(KEXP)):x}')
    I(f's_and_b32 s{S_T+6}, s{S_W}, 3')
    I('s_waitcnt lgkmcnt(4)')
    mm16(SD, SB)
    I('s_waitcnt lgkmcnt(0)')
    mm16(SD + 4, SB + 8)
    I('s_nop 4')
    for i in range(4):
        I(f'v_fma_f32 v{SD+i}, v{SD+i}, s{S_T+4}, v13')
    split_hilo(SD, SD + 1, 12, 13)
    split_hilo(SD + 2, SD + 3, 12, 13)
    for i in range(4):
        I(f'v_mul_f32 v{SD+4+i}, s{S_T+5}, v{SD+4+i}')
    I(f's_cmp_eq_u32 s{S_T+6}, 3')
    I(f's_cselect_b64 exec, 0xffff, -1')
    I(f'ds_write_b32 v{V_AP}, v{SD}')
    I(f'ds_write_b32 v{V_AP}, v{SD+4} offset:{ACCN-PT}')
    I(f's_cselect_b64 exec, 0, -1')
    for i in range(1, 4):
        I(f'ds_write_b32 v{V_AP}, v{SD+i} offset:{i*256}')
        I(f'ds_write_b32 v{V_AP}, v{SD+4+i} offset:{ACCN-PT+i*256}')
    I('s_mov_b64 exec, -1')

def phase0c():
    I(f'v_bfe_u32 v13, v{V_LANE}, 2, 2')
    I(f'v_lshlrev_b32 v13, 7, v13')
    I(f'v_bfe_u32 v15, v{V_LANE}, 4, 1')
    I(f'v_lshl_add_u32 v13, v15, 5, v13')
    I(f'v_and_b32 v15, 3, v{V_LANE}')
    I(f'v_lshl_add_u32 v13, v15, 3, v13')
    I(f'v_and_b32 v15, 8, v{V_LANE}')
    I(f'v_lshlrev_b32 v15, 2, v15')
    I(f'v_xor_b32 v13, v13, v15')
    I(f'v_add_u32 v13, {WG_ + 16384}, v13')
    I(f'ds_read_b64_tr_b16 v[96:97], v13')
    I(f'ds_read_b64_tr_b16 v[98:99], v13 offset:64')
    I(f's_mov_b32 s{S_T+4}, 0x{f2u(-LOG2E):x}')
    I(f'v_cmp_lt_u32 vcc, 31, v{V_LANE}')
    I('s_waitcnt lgkmcnt(0)')
    for m in range(4):
        I(f'v_lshlrev_b32 v{100+2*m}, 16, v{96+m}')
        I(f'v_and_b32 v{101+2*m}, 0xffff0000, v{96+m}')
    for j in range(8):
        I(f'v_mul_f32 v{100+j}, s{S_T+4}, v{100+j}')
    for m in range(4):
        dst = B5[m >> 1] + (m & 1)
        I(f'v_cvt_pk_bf16_f32 v{96+m}, v{100+2*m}, v{101+2*m}')
        I(f'v_lshlrev_b32 v12, 16, v{96+m}')
        I(f'v_and_b32 v13, 0xffff0000, v{96+m}')
        I(f'v_sub_f32 v12, v{100+2*m}, v12')
        I(f'v_sub_f32 v13, v{101+2*m}, v13')
        I(f'v_cvt_pk_bf16_f32 v12, v12, v13')
        I(f'v_cndmask_b32 v{dst}, v{96+m}, v12, vcc')

def a5_const():
    I(f'v_bfe_u32 v12, v{V_LANE}, 2, 1')
    I(f'v_lshrrev_b32 v13, 5, v{V_LANE}')
    I(f'v_xor_b32 v12, v12, v13')
    I(f'v_and_b32 v13, 1, v{V_LANE}')
    I(f'v_lshl_or_b32 v12, v12, 1, v13')
    I(f'v_mov_b32 v13, 0x3f803f80')
    I(f'v_cmp_eq_u32 vcc, 0, v12')
    I(f'v_cmp_eq_u32 {sp(S_T)}, 1, v12')
    I('s_nop 1')
    I(f'v_cndmask_b32 v{A5+2}, 0, v13, vcc')
    I(f'v_cndmask_b32 v{A5+3}, 0, v13, {sp(S_T)}')

def nt_prefetch(vt, first=0, nl=None, dst=96):
    I(f's_lshr_b32 s{S_T}, s2, 4')
    I(f's_lshl_b32 s{S_T+1}, s{S_W}, 4')
    I(f's_add_u32 s{S_T}, s{S_T}, s{S_T+1}')
    I(f's_and_b32 s{S_T+1}, s{S_T}, 7')
    I(f's_lshl_b32 s{S_T+1}, s{S_T+1}, 5')
    I(f's_lshr_b32 s{S_T}, s{S_T}, 3')
    I(f's_add_u32 s{S_T}, s{S_T}, s{S_T+1}')
    I(f's_lshl_b32 s{S_T}, s{S_T}, 1')
    I(f's_bfe_u32 s{S_T+1}, s2, 0x10003')
    I(f's_add_u32 s{S_T}, s{S_T}, s{S_T+1}')
    I(f's_mul_i32 s{S_T}, s{S_T}, {NB*128}')
    I(f's_add_u32 s{S_T}, s{S_T}, 0x{WS_NT:x}')
    srd_off(S_NTS, S_WSP, S_WSP + 1, f's{S_T}', NB * 128)
    if NPFM >= 3:
        I(f'v_lshlrev_b32 v{vt}, {7 if NPFM >= 4 else 6}, v{V_LANE}')
        I(f'v_add_u32 v{vt+1}, 4096, v{vt}')
        nl = opt("pfl", 20) if nl is None else nl
        I(f's_mov_b32 exec_lo, 0x{(((1 << nl) - 1) << first) & 0xffffffff:x}')
        I(f's_mov_b32 exec_hi, 0x{(((1 << nl) - 1) << first) >> 32:x}')
        for k in range(NPF):
            I(f'buffer_load_dword v{dst+k}, v{vt+k}, {sr4(S_NTS)}, 0 offen' + LSC)
        I('s_mov_b64 exec, -1')
        return
    I(f'v_lshlrev_b32 v{vt}, 4, v{V_LANE}')
    I(f'v_add_u32 v{vt+1}, 4096, v{vt}')
    for k in range(NPF):
        I(f'buffer_load_dwordx4 {vr(96+4*k,4)}, v{vt+(k>>2)}, {sr4(S_NTS)}, 0 offen offset:{(k&3)*1024}' + LSC)

def ptr_consts():
    I(f'v_lshrrev_b32 v{V_PS1}, 5, v{V_LANE}')
    I(f's_lshl_b32 s{S_T}, s{S_W}, 4')
    I(f's_add_u32 s{S_T}, s{S_T}, {DESCP}')
    I(f'v_lshlrev_b32 v{V_PD}, 3, v{V_PS1}')
    I(f'v_add_u32 v{V_PS1}, v{V_PS1}, v{V_PS1}')
    I(f'v_add_u32 v{V_PD}, s{S_T}, v{V_PD}')
    I(f'v_bfe_u32 v{V_VAP}, v{V_LANE}, 2, 1')
    I(f'v_and_b32 v{V_PE}, 1, v{V_LANE}')
    I(f'v_lshl_or_b32 v{V_VAP}, v{V_VAP}, 1, v{V_PE}')
    I(f'v_bfe_u32 v{V_PE}, v{V_LANE}, 3, 2')
    I(f'v_bfe_u32 v{V_PS0}, v{V_LANE}, 1, 1')
    I(f'v_lshl_or_b32 v{V_PE}, v{V_PE}, 1, v{V_PS0}')
    I(f'v_lshlrev_b32 v{V_PE}, 3, v{V_PE}')
    I(f'v_add_u32 v{V_PE}, {LE}, v{V_PE}')

def gen():
    e(f'.globl {KNAME}')
    e('.p2align 8')
    e(f'.type {KNAME},@function')
    L(KNAME)
    I(f's_cmp_ge_u32 s2, {NWG}')
    I('s_cbranch_scc1 L_END')
    I('s_load_dwordx8 s[84:91], s[0:1], 0')
    I('s_load_dwordx4 s[4:7], s[0:1], 32')
    I('s_load_dwordx4 s[8:11], s[0:1], 48')
    I('s_load_dwordx4 s[56:59], s[0:1], 64')
    if PROF:
        I(f'v_mov_b32 v{V_PROF}, 0')
    rstamp(30)
    stamp(0)
    zregs()
    zero_range(CNT, DESCP + 2560 - CNT, X + 2, X)
    I(f'v_lshlrev_b32 v{X+6}, 2, v{V_TID}')
    I(f's_mul_i32 s61, s2, {CH*4}')
    I(f's_mul_i32 s63, s2, {CH}')
    I(f's_sub_u32 s63, {E_EDGES}, s63')
    I(f's_min_u32 s63, s63, {CH}')
    I(f's_lshl_b32 s64, s63, 2')
    I(f'v_add_u32 v{X+8}, 4096, v{X+6}')
    I(f'v_add_u32 v{X+9}, 8192, v{X+6}')
    I(f'v_add_u32 v{X+10}, 12288, v{X+6}')
    I(f'v_lshrrev_b32 v{X+1}, 6, v{V_TID}')
    I(f'v_and_b32 v{V_LANE}, 63, v{V_TID}')
    I(f'v_readfirstlane_b32 s{S_W}, v{X+1}')
    I('s_and_b32 s3, s2, 7')
    I('s_lshl_b32 s3, s3, 5')
    I('s_lshr_b32 s60, s2, 3')
    I('s_add_u32 s3, s3, s60')
    I(f's_mul_i32 s62, s2, {CH*8}')
    I(f's_lshl_b32 s65, s63, 3')
    I(f'v_and_b32 v97, 0x50, v{V_TID}')
    I(f'v_lshlrev_b32 v96, 1, v97')
    I(f'v_or_b32 v97, v97, v96')
    I(f'v_and_b32 v97, 0x60, v97')
    I(f'v_xor_b32 v97, v97, v{X}')
    I(f'v_and_b32 v96, 0x20, v96')
    I(f'v_lshlrev_b32 v98, 4, v{V_LANE}')
    I(f'v_xor_b32 v96, v96, v98')
    I(f's_lshl_b32 s66, s{S_W}, 10')
    I(f'v_and_b32 v101, 0x1fff, v97')
    I(f'v_lshrrev_b32 v98, 3, v{V_TID}')
    I(f'v_bfe_u32 v99, v98, 1, 3')
    I(f'v_and_b32 v100, 7, v{V_TID}')
    I(f'v_xor_b32 v99, v99, v100')
    I(f'v_lshlrev_b32 v99, 4, v99')
    I(f'v_lshl_add_u32 v99, v98, 7, v99')
    I(f's_mul_i32 s60, s3, {NB*128}')
    I(f'v_add_u32 v99, s60, v99')
    I(f'v_add_u32 v96, 16384, v96')
    I('s_waitcnt lgkmcnt(0)')
    I(f's_or_b32 s67, s2, s{S_W}')
    I('s_cmp_lg_u32 s67, 0')
    I('s_cbranch_scc1 L_NOTAG')
    I('s_memrealtime s[68:69]')
    I(f'v_mov_b32 v{X+2}, 0')
    I('s_waitcnt lgkmcnt(0)')
    I('s_or_b32 s68, s68, 1')
    I(f'v_mov_b32 v{X+3}, s68')
    I('s_mov_b64 exec, 1')
    I(f'global_store_dword v{X+2}, v{X+3}, s[56:57] sc1')
    I('s_mov_b64 exec, -1')
    L('L_NOTAG')
    def dst_loads():
        srd_off(S_DST, 90, 91, 's61', 's64')
        for k in range(4):
            I(f'buffer_load_dword v{64+k}, v{X+6 if k == 0 else X+7+k}, {sr4(S_DST)}, 0 offen' + ELD)
    def dma_loads():
        srd(S_WS, 8, 9, 132 * 128)
        I(f's_add_u32 m0, s66, {WG_}')
        srd(S_XS, 84, 85, N_NODES * 128)
        I(f'buffer_load_dwordx4 v97, {sr4(S_WS)}, 0 offen lds')
        I(f's_cmp_lt_u32 s{S_W}, 8')
        I(f's_cselect_b32 s{S_NTS}, s6, s4')
        I(f's_cselect_b32 s{S_NTS+1}, s7, s5')
        I(f's_mov_b32 s{S_NTS+2}, {64*128}')
        I(f's_mov_b32 s{S_NTS+3}, 0x00020000')
        I(f's_add_u32 m0, s66, {WV_}')
        I('s_nop 0')
        I(f'buffer_load_dwordx4 v101, {sr4(S_NTS)}, 0 offen lds')
        I(f's_cmp_lt_u32 s{S_W}, 8')
        I('s_cbranch_scc0 L_D3B')
        I(f's_add_u32 m0, s66, {XOWN}')
        I('s_nop 0')
        I(f'buffer_load_dwordx4 v99, {sr4(S_XS)}, 0 offen lds')
        I('s_branch L_D3C')
        L('L_D3B')
        I(f's_mov_b32 m0, {WG_ + 16384}')
        I('s_nop 0')
        I(f'buffer_load_dwordx4 v96, {sr4(S_WS)}, 0 offen lds')
        L('L_D3C')
    if opt('t0', 0):
        I(f'v_and_b32 v60, 15, v{V_LANE}')
        I(f'v_lshlrev_b32 v60, 20, v60')
        I(f'v_and_b32 v61, 1, v{V_LANE}')
        I(f'v_lshlrev_b32 v61, 20, v61')
        I(f'global_load_dword v62, v60, s[58:59]')
        I(f'global_load_dword v63, v61, s[10:11]')
    ORDER = opt('order', 0)
    if ORDER == 0:
        dma_loads()
    dst_loads()
    if ORDER == 2:
        dma_loads()
    F1 = opt('f1', 1)
    if F1:
        I('s_barrier')
    srd_off(S_SRC, 88, 89, 's61', 's64')
    for k in range(4):
        I(f'buffer_load_dword v{68+k}, v{X+6 if k == 0 else X+7+k}, {sr4(S_SRC)}, 0 offen' + ELD)
    srd_off(S_EA, 86, 87, 's62', 's65')
    I(f'v_lshlrev_b32 v92, 3, v{V_TID}')
    for k in range(1, 4):
        I(f'v_add_u32 v{92+k}, {8192*k}, v92')
    def e_load(k):
        I(f'buffer_load_dwordx2 v[{72+2*k}:{73+2*k}], v{92+k}, {sr4(S_EA)}, 0 offen' + ELD)
    NEE = opt('nee', 4)
    for k in range(NEE):
        e_load(k)
    if ORDER == 1:
        dma_loads()
    I(f's_mov_b64 {sp(S_DBG)}, s[56:57]')
    I(f's_add_u32 s{S_WSP}, s58, 0x{WSB:x}')
    I(f's_addc_u32 s{S_WSP+1}, s59, 0')
    stamp(1)
    srd(S_OUT, 10, 11, N_NODES * 128)
    I(f's_add_u32 s{S_T}, s61, 0x{WS_RW:x}')
    srd_off(S_RW, S_WSP, S_WSP + 1, f's{S_T}', CH * 4)
    I(f's_add_u32 s{S_T}, s62, 0x{WS_RE:x}')
    srd_off(S_RE, S_WSP, S_WSP + 1, f's{S_T}', CH * 8)
    I(f's_lshl_b32 s{S_T}, s2, 11')
    I(f's_add_u32 s{S_T}, s{S_T}, 0x{WS_TAB:x}')
    srd_off(S_TAB, S_WSP, S_WSP + 1, f's{S_T}', (KREP - 1) * 0x80000 + 2048)
    I(f's_mul_i32 s{S_T}, s3, {NB*256}')
    I(f's_add_u32 s{S_T}, s{S_T}, 0x{WS_NT:x}')
    srd_off(S_NTS, S_WSP, S_WSP + 1, f's{S_T}', NB * 256)
    I(f's_add_u32 s{S_NTG}, s{S_WSP}, 0x{WS_NT:x}')
    I(f's_addc_u32 s{S_NTG+1}, s{S_WSP+1}, 0')
    I(f's_or_b32 s{S_NTG+1}, s{S_NTG+1}, 0x80000000')
    I(f's_mov_b32 s{S_NTG+2}, 0x400000')
    I(f's_mov_b32 s{S_NTG+3}, 0x00c00000')
    srd_off(S_DST, S_WSP, S_WSP + 1, '0x%x' % WS_RW, NWG * CH * 4)
    srd_off(S_SRC, S_WSP, S_WSP + 1, '0x%x' % WS_RE, NWG * CH * 8)
    for k in range(4):
        I(f'v_add_u32 v{X+1}, {1024*k}, v{V_TID}')
        I(f'v_cmp_gt_u32 {sp(S_MASK+2*k)}, s63, v{X+1}')
    I(f's_mov_b32 s{S_C}, 0x{f2u(2.0**-KEXP):x}')
    I(f's_mov_b32 s{S_C+1}, 0x{f2u(2.0**-KEXP):x}')
    I(f's_mov_b32 s{S_JB}, 0')
    I(f's_mov_b32 s{S_WID}, 128')
    I(f'v_and_b32 v{V_J4}, 15, v{V_LANE}')
    I(f'v_lshlrev_b32 v{V_J4}, 2, v{V_J4}')
    I(f'v_lshrrev_b32 v{X+1}, 4, v{V_LANE}')
    I(f's_lshl_b32 s{S_T}, s{S_W}, 4')
    I(f'v_add_u32 v{X+1}, s{S_T}, v{X+1}')
    I(f'v_mul_u32_u24 v{V_CB4}, {CH*4}, v{X+1}')
    I(f'v_add_u32 v{V_CB4}, v{V_CB4}, v{V_J4}')
    I(f'v_and_b32 v{V_CH8}, 31, v{V_LANE}')
    I(f'v_lshlrev_b32 v{V_CH8}, 3, v{V_CH8}')
    I(f'v_add_u32 v{V_CHP}, {PT}, v{V_CH8}')
    phase0_addr()
    a5_const()
    if not F1:
        I(f's_waitcnt vmcnt({8 + NEE if ORDER == 0 else 0})')
        I('s_barrier')
    stamp(2)
    for k in range(NEE, 4):
        e_load(k)
    I(f'v_mov_b32 v12, 0')
    I(f'global_load_dword v10, v12, {sp(S_DBG)} sc1')
    if TCH:
        I(f'v_lshlrev_b32 v13, 10, v{V_LANE}')
        I(f'buffer_load_dword v60, v13, {sr4(S_RW)}, 0 offen')
        I(f'buffer_load_dword v61, v13, {sr4(S_RE)}, 0 offen')
        I(f'buffer_load_dword v62, v13, {sr4(S_TAB)}, 0 offen')
        I(f'buffer_load_dword v63, v13, {sr4(S_NTS)}, 0 offen')
    srd_off(S_EA, S_WSP, S_WSP + 1, '0x%x' % WS_TAB, KREP * 0x80000)
    if not F1:
        phase0a()
    I(f's_mov_b32 s{S_T}, -{NB}')
    I(f'v_mov_b32 v{X+1}, 4')
    BN, WD, RK = 28, 32, 36
    for k in range(4):
        I(f's_waitcnt vmcnt({(12 if ORDER == 0 else 15) + TCH - k})')
        I(f's_mov_b64 exec, {sp(S_MASK+2*k)}')
        if k == 3:
            I('s_cbranch_execz L_B1')
        I(f'v_mul_u32_u24 v{BN+k}, 21400, v{64+k}')
        I(f'v_lshrrev_b32 v{BN+k}, 20, v{BN+k}')
        I(f'v_mad_i32_i24 v{WD+k}, v{BN+k}, s{S_T}, v{64+k}')
        I(f'v_lshlrev_b32 v{BN+k}, 2, v{BN+k}')
        I(f'ds_add_rtn_u32 v{RK+k}, v{BN+k}, v{X+1} offset:{HIST}')
        I(f'v_lshlrev_b32 v{WD+k}, 26, v{WD+k}')
    L('L_B1')
    I('s_mov_b64 exec, -1')
    I(f'v_add_u32 v{X+1}, {NTI}, v{X}')
    stamp(3)
    I({0: 's_waitcnt lgkmcnt(0)', 1: 's_waitcnt vmcnt(1) lgkmcnt(0)', 2: 's_waitcnt vmcnt(9) lgkmcnt(0)'}[ORDER])
    I('s_barrier')
    stamp(4)
    if not F1:
        I(f'ds_read_b128 v[112:115], v{X+1}')
    I(f's_cmp_lg_u32 s{S_W}, 0')
    I('s_cbranch_scc1 L_NOSCAN')
    I(f'ds_read_b128 v[96:99], v{X} offset:{HIST}')
    I('s_waitcnt lgkmcnt(0)')
    I('v_add_u32 v101, v96, v97')
    I('v_add_u32 v102, v101, v98')
    I('v_add_u32 v103, v102, v99')
    I('v_mov_b32 v104, v103')
    wave_scan(104)
    I('v_sub_u32 v104, v104, v103')
    I('v_add_u32 v105, v104, v96')
    I('v_add_u32 v106, v104, v101')
    I('v_add_u32 v107, v104, v102')
    I(f'ds_write_b128 v{X}, v[104:107] offset:{HBASE}')
    for k in range(4):
        I(f'v_lshl_or_b32 v{108+k}, v{96+k}, 16, v{104+k}')
    I(f'ds_write_b128 v{X}, v[108:111] offset:{HIST}')
    L('L_NOSCAN')
    if F1:
        phase0a()
    I('s_waitcnt lgkmcnt(0)')
    if not F1:
        I(f'buffer_store_dwordx4 v[112:115], v{X}, {sr4(S_NTS)}, 0 offen' + SC)
    if T1:
        I(f's_mul_i32 s{S_T+4}, s3, {NB*128}')
        I(f'v_mov_b32 v60, s{S_T+4}')
        I(f'buffer_load_dword v61, v60, {sr4(S_OUT)}, 0 offen')
    I(f's_waitcnt vmcnt({6 - F1 + TCH + T1})')
    for k in range(4):
        I(f'v_lshl_or_b32 v{WD+k}, v{68+k}, 3, v{WD+k}')
    I('s_barrier')
    stamp(5)
    if F1:
        I(f'ds_read_b128 v[112:115], v{X+1}')
    for k in range(4):
        I(f's_mov_b64 exec, {sp(S_MASK+2*k)}')
        I(f'ds_read_b32 v{BN+k}, v{BN+k} offset:{HBASE}')
    if F1:
        I('s_mov_b64 exec, -1')
        I('s_waitcnt lgkmcnt(4)')
        I(f'buffer_store_dwordx4 v[112:115], v{X}, {sr4(S_NTS)}, 0 offen' + SC)
    I(f's_waitcnt vmcnt({1 + TCH + T1})')
    I(f'v_readfirstlane_b32 s{S_TAG}, v10')
    for k in range(4):
        I(f's_mov_b64 exec, {sp(S_MASK+2*k)}')
        if k == 3:
            I('s_cbranch_execz L_B2')
        I(f's_waitcnt lgkmcnt({3 - k + 2*k})')
        I(f'v_add_u32 v{RK+k}, v{BN+k}, v{RK+k}')
        I(f'v_add_u32 v{BN+k}, v{RK+k}, v{RK+k}')
        I(f'ds_write_b32 v{RK+k}, v{WD+k} offset:{STGW}')
        I(f'ds_write_b64 v{BN+k}, v[{72+2*k}:{73+2*k}] offset:{STGE}')
    L('L_B2')
    I('s_mov_b64 exec, -1')
    I(f's_mov_b32 s{S_T}, 0x40000')
    L('L_TAGP')
    I(f's_cmp_lg_u32 s{S_TAG}, 0')
    I('s_cbranch_scc1 L_TAGD')
    I(f'v_mov_b32 v12, 0')
    I(f'global_load_dword v10, v12, {sp(S_DBG)} sc1')
    I('s_waitcnt vmcnt(0)')
    I(f'v_readfirstlane_b32 s{S_TAG}, v10')
    I(f's_sub_u32 s{S_T}, s{S_T}, 1')
    I('s_cbranch_scc1 L_END')
    I('s_branch L_TAGP')
    L('L_TAGD')
    I(f'v_add_u32 v{X+2}, 16384, v{X}')
    I(f'v_lshlrev_b32 v12, 3, v{V_LANE}')
    I(f's_mul_i32 s{S_TAG2}, s{S_TAG}, 0x9e3779b1')
    I(f's_and_b32 s{S_TAG2}, s{S_TAG2}, 0x{TAGM:x}')
    I('s_waitcnt lgkmcnt(0)')
    I('s_barrier')
    stamp(6)
    I(f'ds_read_b128 v[64:67], v{X} offset:{STGW}')
    I(f'ds_read_b128 v[68:71], v{X} offset:{STGE}')
    I(f'ds_read_b128 v[72:75], v{X} offset:{STGE+16384}')
    I(f'ds_read_b64 v[92:93], v12 offset:{HIST}')
    I(f'ds_read_b64 v[94:95], v12 offset:{HIST+512}')
    I('s_waitcnt lgkmcnt(4)')
    I(f'buffer_store_dwordx4 v[64:67], v{X}, {sr4(S_RW)}, 0 offen' + SC)
    I('s_waitcnt lgkmcnt(3)')
    I(f'buffer_store_dwordx4 v[68:71], v{X}, {sr4(S_RE)}, 0 offen' + SC)
    I('s_waitcnt lgkmcnt(2)')
    I(f'buffer_store_dwordx4 v[72:75], v{X+2}, {sr4(S_RE)}, 0 offen' + SC)
    I('s_waitcnt lgkmcnt(0)')
    for k in range(4):
        I(f'v_or_b32 v{120+2*k}, s{S_TAG2}, v{92+k}')
        I(f'v_mov_b32 v{121+2*k}, s{S_TAG}')
    PF1 = opt('pf1', 0)
    if PF1:
        nt_prefetch(12, 49 - PF1, PF1, 61)
    pre = opt('pre', 'xbc')
    def piece(c):
        if c == 'x':
            zregs()
            zero_range(EXTRA, 16384, X + 2, X)
            fill_desca()
        elif c == 'b':
            phase0b()
        elif c == 'c':
            phase0c()
    for c in pre:
        piece(c)
    stamp(7)
    I(f'v_lshrrev_b32 v76, 4, v{V_LANE}')
    I(f's_lshl_b32 s{S_T}, s{S_W}, 15')
    I(f's_lshl_b32 s{S_T+1}, s3, 3')
    I(f's_add_u32 s{S_T}, s{S_T}, s{S_T+1}')
    I(f'v_lshlrev_b32 v76, 11, v76')
    I(f'v_add_u32 v76, s{S_T}, v76')
    for r in range(1, 4):
        I(f'v_add_u32 v{76+r}, {8192*r}, v76')
    I(f'v_lshlrev_b32 v60, 4, v{V_LANE}')
    for r in range(4):
        I(f's_mov_b64 {sp(S_MASK+2*r)}, -1')
    I(f's_waitcnt vmcnt({1 if PF1 else 0})')
    stamp(8)
    I('s_barrier')
    stamp(9)
    I(f's_cmp_lg_u32 s{S_W}, 0')
    I('s_cbranch_scc1 L_POLL0')
    for k in range(KREP - 1, -1, -1):
        I(f's_mov_b32 s{S_T}, 0x{k*0x80000:x}')
        I(f'buffer_store_dwordx4 v[120:123], v60, {sr4(S_TAB)}, s{S_T} offen' + SC)
        I(f'buffer_store_dwordx4 v[124:127], v60, {sr4(S_TAB)}, s{S_T} offen offset:1024' + SC)
    L('L_POLL0')
    for c in 'xbc':
        if c not in pre:
            piece(c)
    fill_words()
    zregs()
    zero_range(LE, CNT - LE, X + 2, X)
    ptr_consts()
    I(f's_mov_b32 s{S_T}, 0x40000')
    I(f's_mov_b32 s{S_T+1}, 0x{TAGM:x}')
    I(f's_mov_b32 s{S_T+6}, 0')
    L('L_POLL')
    for r in range(4):
        I(f's_mov_b64 exec, {sp(S_MASK+2*r)}')
        I(f'buffer_load_dwordx2 {p(64+2*r)}, v{76+r}, {sr4(S_EA)}, s{S_T+6} offen' + LSC)
    for r in range(4):
        I(f's_waitcnt vmcnt({3-r})')
        I(f's_mov_b64 exec, {sp(S_MASK+2*r)}')
        I(f'v_xor_b32 v{V_TAB+r}, s{S_TAG2}, v{64+2*r}')
        I(f'v_xor_b32 v{65+2*r}, s{S_TAG}, v{65+2*r}')
        I(f'v_and_or_b32 v{65+2*r}, v{V_TAB+r}, s{S_T+1}, v{65+2*r}')
        I(f'v_cmp_ne_u32 {sp(S_MASK+2*r)}, 0, v{65+2*r}')
    I(f's_or_b64 {sp(S_T+2)}, {sp(S_MASK)}, {sp(S_MASK+2)}')
    I(f's_or_b64 {sp(S_T+4)}, {sp(S_MASK+4)}, {sp(S_MASK+6)}')
    I(f's_or_b64 {sp(S_T+2)}, {sp(S_T+2)}, {sp(S_T+4)}')
    I('s_cbranch_scc0 L_POLLED')
    I(f's_sub_u32 s{S_T}, s{S_T}, 1')
    I('s_cbranch_scc1 L_END')
    I(f's_add_u32 s{S_T+6}, s{S_T+6}, 0x80000')
    I(f's_min_u32 s{S_T+6}, s{S_T+6}, 0x{(KREP-1)*0x80000:x}')
    if opt('sleep', 1):
        I(f's_sleep {opt("sleep", 1)}')
    I('s_branch L_POLL')
    L('L_POLLED')
    I('s_mov_b64 exec, -1')
    if opt('pbar', 0):
        I('s_barrier')
    stamp(10)
    REC = 64
    A4, A8 = X, X + 4
    L('L_PASS')
    I(f'v_add_u32 v{X+8}, s{S_JB}, v{V_J4}')
    I(f'v_add_u32 v{X+9}, 64, v{X+8}')
    I(f'v_add_u32 v{X+10}, s{S_JB}, v{V_CB4}')
    I(f's_cmp_eq_u32 s{S_WID}, 128')
    I(f's_cselect_b64 {sp(S_T+4)}, -1, 0')
    for r in range(4):
        I(f'v_add_u32_sdwa v{A4+r}, v{V_TAB+r}, v{X+10} dst_sel:DWORD dst_unused:UNUSED_PAD src0_sel:WORD_0 src1_sel:DWORD')
        I(f'v_cmp_lt_u32_sdwa {sp(S_MASK+4*r)}, v{X+8}, v{V_TAB+r} src0_sel:DWORD src1_sel:WORD_1')
        if r:
            I(f'v_add_u32 v{A4+r}, {r*4*CH*4}, v{A4+r}')
        I(f'v_cmp_lt_u32_sdwa vcc, v{X+9}, v{V_TAB+r} src0_sel:DWORD src1_sel:WORD_1')
        I(f'v_add_u32 v{A8+r}, v{A4+r}, v{A4+r}')
        I(f's_and_b64 {sp(S_MASK+4*r+2)}, vcc, {sp(S_T+4)}')
        I(f's_mov_b64 exec, {sp(S_MASK+4*r)}')
        I(f'buffer_load_dword v{REC+8*r+2}, v{A4+r}, {sr4(S_DST)}, 0 offen' + LSC)
        I(f'buffer_load_dwordx2 {p(REC+8*r)}, v{A8+r}, {sr4(S_SRC)}, 0 offen' + LSC)
        I('s_mov_b64 exec, -1')
    for r in range(4):
        I(f's_mov_b64 exec, {sp(S_MASK+4*r+2)}')
        I(f'buffer_load_dword v{REC+8*r+6}, v{A4+r}, {sr4(S_DST)}, 0 offen offset:64' + LSC)
        I(f'buffer_load_dwordx2 {p(REC+8*r+4)}, v{A8+r}, {sr4(S_SRC)}, 0 offen offset:128' + LSC)
    I('s_mov_b64 exec, -1')
    if NPFM == 1 or NPFM == 5:
        nt_prefetch(X + 8)
    I(f'v_max3_u32 v{X+8}, v{V_TAB}, v{V_TAB+1}, v{V_TAB+2}')
    I(f'v_max_u32 v{X+8}, v{X+8}, v{V_TAB+3}')
    I(f'v_lshrrev_b32 v{X+8}, 16, v{X+8}')
    I(f's_add_u32 s{S_T}, s{S_JB}, s{S_WID}')
    I(f'v_cmp_lt_u32 vcc, s{S_T}, v{X+8}')
    I(f'v_mov_b32 v{X+8}, 4')
    I(f's_cbranch_vccz L_NOMORE')
    I(f'v_mov_b32 v{X+9}, {MISC}')
    I(f'ds_write_b32 v{X+9}, v{X+8}')
    L('L_NOMORE')
    stamp(11)
    for r in range(4):
        I(f's_waitcnt vmcnt({15 + NPF1 - 2*r})')
        I(f's_mov_b64 exec, {sp(S_MASK+4*r)}')
        I(f'v_lshrrev_b32 v{A4+r}, 24, v{REC+8*r+2}')
        I(f'ds_add_rtn_u32 v{REC+8*r+3}, v{A4+r}, v{X+8} offset:{CNT}')
    for r in range(4):
        I(f's_mov_b64 exec, {sp(S_MASK+4*r+2)}')
        I(f's_cbranch_execz L_C{r}')
        I(f's_waitcnt vmcnt({7 + NPF1 - 2*r})')
        I(f'v_lshrrev_b32 v{A8+r}, 24, v{REC+8*r+6}')
        I(f'ds_add_rtn_u32 v{REC+8*r+7}, v{A8+r}, v{X+8} offset:{CNT}')
        L(f'L_C{r}')
    I('s_mov_b64 exec, -1')
    I(f'v_lshlrev_b32 v{X+8}, 2, v{V_LANE}')
    I(f'v_mov_b32 v{X+9}, {MISC}')
    I(f's_mov_b32 s{S_T+2}, 0x1fff8')
    I('s_waitcnt lgkmcnt(0)')
    I('s_barrier')
    stamp(12)
    if NPFM in (2, 3, 4):
        nt_prefetch(60, dst=62)
        I(f's_mov_b32 s{S_T+2}, 0x1fff8')
    NG, GS, MI = X + 10, X + 11, X + 12
    I(f'ds_read_b32 v{NG}, v{X+8} offset:{CNT}')
    I(f'ds_read_b32 v{X+9}, v{X+9}')
    I('s_waitcnt lgkmcnt(1)')
    I(f'v_add_u32 v{NG}, 28, v{NG}')
    I(f'v_and_b32 v{NG}, 0xffffffe0, v{NG}')
    I(f'v_mov_b32 v{GS}, v{NG}')
    wave_scan(GS)
    I(f'v_readlane_b32 s{S_T}, v{GS}, 63')
    I(f'v_sub_u32 v{GS}, v{GS}, v{NG}')
    I(f'ds_write_b32 v{X+8}, v{GS} offset:{BASET}')
    for r in range(4):
        I(f's_mov_b64 exec, {sp(S_MASK+4*r)}')
        I(f'ds_read_b32 v{A4+r}, v{A4+r} offset:{BASET}')
    for r in range(4):
        I(f's_mov_b64 exec, {sp(S_MASK+4*r+2)}')
        I(f'ds_read_b32 v{A8+r}, v{A8+r} offset:{BASET}')
    I('s_mov_b64 exec, -1')
    I(f'v_readfirstlane_b32 s{S_MORE}, v{X+9}')
    out.insert(len(out) - 1, '    s_waitcnt lgkmcnt(9)')
    I(f's_lshr_b32 s{S_T}, s{S_T}, 5')
    I(f's_cmp_eq_u32 s{S_WID}, 128')
    I(f's_cselect_b32 s{S_T+1}, {MAXG}, -1')
    I(f's_cmp_gt_u32 s{S_T}, s{S_T+1}')
    I('s_cbranch_scc1 L_OVERFLOW')
    SB_, SR_, SG0 = S_T + 4, S_T + 5, S_T + 6
    I(f's_add_u32 s{S_T}, s{S_T}, 3')
    I(f's_lshr_b32 s{S_T}, s{S_T}, 2')
    I(f's_lshr_b32 s{SB_}, s{S_T}, 4')
    I(f's_and_b32 s{SR_}, s{S_T}, 15')
    I(f's_add_u32 s{S_T+1}, s{SB_}, 1')
    I(f'v_cvt_f32_u32 v{MI}, s{S_T+1}')
    I(f'v_cvt_f32_u32 v{MI+1}, s{SB_}')
    I(f'v_rcp_f32 v{MI}, v{MI}')
    I(f'v_rcp_f32 v{MI+1}, v{MI+1}')
    I(f's_mul_i32 s{SG0}, s{SR_}, s{S_T+1}')
    I(f's_lshl_b32 s{SG0}, s{SG0}, 2')
    I(f'v_lshrrev_b32 v{GS}, 5, v{GS}')
    I(f'v_mul_f32 v{MI}, 0x47800000, v{MI}')
    I(f'v_mul_f32 v{MI+1}, 0x47800000, v{MI+1}')
    I(f'v_lshrrev_b32 v{NG}, 5, v{NG}')
    I(f'v_cvt_u32_f32 v{MI}, v{MI}')
    I(f'v_cvt_u32_f32 v{MI+1}, v{MI+1}')
    I(f's_cmp_lt_u32 s{S_W}, s{SR_}')
    I(f's_cselect_b32 s{S_L}, s{S_T+1}, s{SB_}')
    I(f'v_add_u32 v{MI}, 2, v{MI}')
    I(f'v_add_u32 v{MI+1}, 2, v{MI+1}')
    I(f's_min_u32 s{S_T}, s{S_W}, s{SR_}')
    I(f's_mul_i32 s{S_T+3}, s{S_W}, s{SB_}')
    I(f's_add_u32 s{S_T+3}, s{S_T+3}, s{S_T}')
    I(f's_sub_u32 s{S_T+1}, 0, s{S_T+1}')
    I(f's_sub_u32 s{SB_}, 0, s{SB_}')
    I(f's_lshl_b32 s{SR_}, s{SR_}, 2')
    D0, D1, D2, D3, NR = 96, 97, 98, 99, 100
    I(f'v_lshlrev_b32 v{NR}, 8, v{V_LANE}')
    I(f'v_add_u32 v{NR+1}, {ACCN}, v{NR}')
    I(f's_mov_b32 s{S_T}, s{S_W}')
    L('L_DLOOP')
    I(f'v_cmp_lt_u32 vcc, s{S_T}, v{NG}')
    I('s_and_b64 exec, exec, vcc')
    I('s_cbranch_execz L_DEND')
    I(f'v_add_u32 v{D0}, s{S_T}, v{GS}')
    I(f'v_subrev_u32 v{D1}, s{SG0}, v{D0}')
    I(f'v_cmp_gt_u32 vcc, s{SG0}, v{D0}')
    I(f'v_mul_u32_u24 v{D2}, v{D0}, v{MI}')
    I(f'v_mul_u32_u24 v{D3}, v{D1}, v{MI+1}')
    I(f'v_lshrrev_b32 v{D2}, 16, v{D2}')
    I(f'v_lshrrev_b32 v{D3}, 16, v{D3}')
    I(f'v_mad_i32_i24 v{D0}, v{D2}, s{S_T+1}, v{D0}')
    I(f'v_mad_i32_i24 v{D1}, v{D3}, s{SB_}, v{D1}')
    I(f'v_add_u32 v{D3}, s{SR_}, v{D3}')
    I(f'v_cndmask_b32 v{D0}, v{D1}, v{D0}, vcc')
    I(f'v_cndmask_b32 v{D2}, v{D3}, v{D2}, vcc')
    I(f'v_cmp_le_u32 vcc, s{S_T}, v{D0}')
    I(f'v_lshl_add_u32 v{D0}, v{D0}, 6, v{D2}')
    I(f'v_lshlrev_b32 v{D1}, 8, v{D2}')
    I(f'v_lshlrev_b32 v{D0}, 2, v{D0}')
    I(f'v_add_u32 v{D1}, {EXTRA}, v{D1}')
    I(f'v_add_u32 v{D3}, {DESCA}, v{D0}')
    I(f'v_cndmask_b32 v{D1}, v{D1}, v{NR+1}, vcc')
    I(f'ds_write_b32 v{D0}, v{NR} offset:{DESCP}')
    I(f'ds_write_b32 v{D3}, v{D1}')
    I(f's_add_u32 s{S_T+7}, s{S_T}, 1')
    I(f'v_cmp_eq_u32 vcc, s{S_T+7}, v{NG}')
    I(f's_and_saveexec_b64 {sp(S_EX)}, vcc')
    I(f'ds_write_b32 v{X+8}, v{D2} offset:{NINFO+256}')
    I(f's_mov_b64 exec, {sp(S_EX)}')
    I(f's_cmp_lg_u32 s{S_T}, 0')
    I('s_cbranch_scc1 L_DNF')
    I(f'ds_write_b32 v{X+8}, v{D2} offset:{NINFO}')
    L('L_DNF')
    I(f's_add_u32 s{S_T}, s{S_T}, 16')
    I('s_branch L_DLOOP')
    L('L_DEND')
    I('s_mov_b64 exec, -1')
    I(f's_lshl_b32 s{S_T}, s{S_T+3}, 7')
    I(f's_lshl_b32 s{S_T+1}, s{S_L}, 5')
    I(f'v_mov_b32 v{D0}, s{S_T}')
    I(f'v_mad_u32_u24 v{V_PS0}, v{V_PS1}, s{S_T+1}, v{D0}')
    I(f'v_add_u32 v{D0}, v{D0}, v{D0}')
    I(f'v_add_u32 v{V_PS1}, s{S_T+1}, v{V_PS0}')
    I(f'v_add_u32 v{V_PE}, v{V_PE}, v{D0}')
    I(f's_lshl_b32 s{S_T+1}, s{S_L}, 6')
    I(f'v_mad_u32_u24 v{V_PE}, v{V_VAP}, s{S_T+1}, v{V_PE}')
    I(f's_mov_b32 s{S_CNT}, s{S_L}')
    I('s_waitcnt lgkmcnt(0)')
    I(f's_waitcnt vmcnt({NPF})')
    for r in range(4):
        I(f's_mov_b64 exec, {sp(S_MASK+4*r)}')
        I(f'v_add_u32 v{A4+r}, v{A4+r}, v{REC+8*r+3}')
        I(f'v_and_b32 v{REC+8*r+2}, s{S_T+2}, v{REC+8*r+2}')
        I(f'v_add_u32 v{REC+8*r+3}, v{A4+r}, v{A4+r}')
        I(f'ds_write_b32 v{A4+r}, v{REC+8*r+2} offset:{LS}')
        I(f'ds_write_b64 v{REC+8*r+3}, {p(REC+8*r)} offset:{LE}')
    for r in range(4):
        I(f's_mov_b64 exec, {sp(S_MASK+4*r+2)}')
        I(f's_cbranch_execz L_P{r}')
        I(f'v_add_u32 v{A8+r}, v{A8+r}, v{REC+8*r+7}')
        I(f'v_and_b32 v{REC+8*r+6}, s{S_T+2}, v{REC+8*r+6}')
        I(f'v_add_u32 v{REC+8*r+7}, v{A8+r}, v{A8+r}')
        I(f'ds_write_b32 v{A8+r}, v{REC+8*r+6} offset:{LS}')
        I(f'ds_write_b64 v{REC+8*r+7}, {p(REC+8*r+4)} offset:{LE}')
        L(f'L_P{r}')
    I('s_mov_b64 exec, -1')
    stamp(13)
    I('s_waitcnt lgkmcnt(0)')
    I('s_barrier')
    stamp(14)
    I(f's_cmp_eq_u32 s{S_L}, 0')
    I('s_cbranch_scc1 L_FOLD')
    lg = Lg()
    s_reads(lg, 0)
    lg.op('dP', f'ds_read_b64 {p(V_VAP)}, v{V_PD}')
    lg.op('dA', f'ds_read_b64 {p(V_VAA[0])}, v{V_PD} offset:{DESCA-DESCP}')
    lg.op('e', f'ds_read_b64 {p(A5)}, v{V_PE}')
    lg.need('S0', 'S1', 'S2', 'S3')
    for n in range(2):
        for i in range(16):
            I(gload(n, i))
    s_reads(lg, 1)
    I(f'v_mov_b32 v{V_C8P}, v{V_CH8}')
    I(f'v_mov_b32 v{V_C8P+1}, v{V_CH8}')
    I(f'v_mov_b32 v{V_CPP}, v{V_CHP}')
    I(f'v_mov_b32 v{V_CPP+1}, v{V_CHP}')
    I(f's_mov_b32 s{S_BP0}, 64')
    I(f's_mov_b32 s{S_BP0+1}, 64')
    I(f's_mov_b32 s{S_BP1}, 128')
    I(f's_mov_b32 s{S_BP1+1}, 512')
    lg.need('dP', 'dA')
    va_add(V_VAP, V_VAA[0])
    lg.op('P0a', f'ds_read_b32 v{B5[0]+2}, v{V_VAP}')
    lg.op('P0b', f'ds_read_b32 v{B5[0]+3}, v{V_VAP+1}')
    lg.op('P1a', f'ds_read_b32 v{B5[1]+2}, v{V_VAP} offset:4')
    lg.op('P1b', f'ds_read_b32 v{B5[1]+3}, v{V_VAP+1} offset:4')
    I(f's_cmp_eq_u32 s{S_CNT}, 1')
    I(f's_cselect_b64 {sp(S_LDX)}, 0, {LDXV}')
    I('s_waitcnt lgkmcnt(0)')
    lg.q = []
    if opt('prio', 3):
        I('s_setprio 3')
    stamp(15)
    rstamp(28)
    half(lg, 0, 0, 0, False)
    state0 = list(lg.q)
    def step(par, uo):
        half(lg, 1, par, uo)
        I(f's_sub_u32 s{S_CNT}, s{S_CNT}, 1')
        I(f's_cmp_eq_u32 s{S_CNT}, 0')
        I(f's_cbranch_scc1 L_FIN{par}')
        I(f's_cmp_eq_u32 s{S_CNT}, 1')
        I(f's_cselect_b64 {sp(S_LDX)}, 0, {LDXV}')
        prio(f'{par}')
        half(lg, 0, par ^ 1, uo + 1)
    def loop_body():
        step(0, 0)
        step(1, 1)
        I(f'v_lshl_add_u64 {p(V_PS0)}, {p(V_PS0)}, 0, {sp(S_BP0)}')
        I(f'v_lshl_add_u64 {p(V_PE)}, {p(V_PE)}, 0, {sp(S_BP1)}')
        I('s_branch L_LOOP')
    mark = len(out)
    loop_body()
    del out[mark:]
    qb = list(lg.q)
    n = min(len(qb), len(state0))
    assert qb[len(qb)-n:] == state0[len(state0)-n:], (state0, qb)
    lg.q = list(qb if len(qb) >= len(state0) else state0)
    e('.p2align 3')
    L('L_LOOP')
    loop_body()
    assert lg.q == qb, (lg.q, qb)
    print('loop entry queue', state0, 'back edge queue', qb, file=sys.stderr)
    for pr in range(2):
        L(f'L_FIN{pr}')
        t = tail_ops(1)
        for op in t[:4]:
            I(op)
        I('s_waitcnt lgkmcnt(0)')
        for op in t[4:]:
            I(op)
        acc_write(Lg(), V_VAA[pr])
        if pr == 0:
            I('s_branch L_FOLD')
    L('L_FOLD')
    stamp(16)
    I(f'v_lshrrev_b32 v{X}, 3, v{V_TID}')
    I(f'v_and_b32 v{X+1}, 7, v{V_TID}')
    I(f'v_lshlrev_b32 v{X+6}, 3, v{X+1}')
    I(f'v_lshlrev_b32 v{X+1}, 5, v{X+1}')
    I(f'v_lshl_add_u32 v{X+2}, v{X}, 8, v{X+1}')
    I(f'v_add_u32 v{X+2}, {ACCN}, v{X+2}')
    I(f'v_add_u32 v{X+1}, {EXTRA}, v{X+1}')
    I(f'v_lshlrev_b32 v{X+3}, 2, v{X}')
    I(f's_mul_i32 s{S_T+4}, s3, {NB*128}')
    I(f'v_lshl_add_u32 v{X+6}, v{X}, 7, v{X+6}')
    I(f'v_add_u32 v{X+6}, s{S_T+4}, v{X+6}')
    I(f'v_mov_b32 v{X+7}, 0')
    I('s_waitcnt vmcnt(0) lgkmcnt(0)')
    I('s_barrier')
    stamp(17)
    rstamp(29)
    if PROF:
        I(f'v_writelane_b32 v{V_PROF}, s{S_L}, 27')
    I(f'v_cmp_gt_u32 vcc, {NB*8}, v{V_TID}')
    I(f's_and_saveexec_b64 {sp(S_EX)}, vcc')
    I('s_cbranch_execz L_FDONE')
    I(f'ds_read_b32 v{X+4}, v{X+3} offset:{NINFO}')
    I(f'ds_read_b32 v{X+5}, v{X+3} offset:{NINFO+256}')
    I(f'ds_read_b128 v[64:67], v{X+2}')
    I(f'ds_read_b128 v[68:71], v{X+2} offset:16')
    I(f's_mov_b64 {sp(S_T)}, exec')
    I('s_waitcnt lgkmcnt(0)')
    L('L_FLOOP')
    I(f'v_cmp_lt_u32 vcc, v{X+4}, v{X+5}')
    I('s_and_b64 exec, exec, vcc')
    I('s_cbranch_execz L_FLEND')
    I(f'v_add_u32 v{X+4}, 1, v{X+4}')
    I(f'v_lshl_add_u32 v{X+7}, v{X+4}, 8, v{X+1}')
    I(f'ds_read_b128 v[72:75], v{X+7}')
    I(f'ds_read_b128 v[76:79], v{X+7} offset:16')
    I('s_waitcnt lgkmcnt(0)')
    for k in range(8):
        I(f'v_add_f32 v{64+k}, v{64+k}, v{72+k}')
    I('s_branch L_FLOOP')
    L('L_FLEND')
    I(f's_mov_b64 exec, {sp(S_T)}')
    I(f's_cmp_lg_u32 s{S_MORE}, 0')
    I('s_cbranch_scc1 L_WB')
    I(f's_mov_b32 s{S_T+2}, 0x{f2u(2.0**-(SV+KEXP)):x}')
    I(f's_mov_b32 s{S_T+3}, 0x{f2u(-LOG2E):x}')
    for k in range(8):
        I(f'v_mul_f32 v{64+k}, s{S_T+2}, v{64+k}')
    for k in range(8):
        I(f'v_mul_f32 v{72+k}, s{S_T+3}, v{64+k}')
    for k in range(8):
        I(f'v_exp_f32 v{72+k}, v{72+k}')
    for k in range(8):
        I(f'v_add_f32 v{72+k}, 1.0, v{72+k}')
    for k in range(8):
        I(f'v_rcp_f32 v{72+k}, v{72+k}')
    for k in range(8):
        I(f'v_mul_f32 v{64+k}, v{64+k}, v{72+k}')
    I('v_cvt_pk_bf16_f32 v80, v64, v66')
    I('v_cvt_pk_bf16_f32 v81, v68, v70')
    I('v_cvt_pk_bf16_f32 v82, v65, v67')
    I('v_cvt_pk_bf16_f32 v83, v69, v71')
    I(f'buffer_store_dwordx2 v[80:81], v{X+6}, {sr4(S_OUT)}, 0 offen' + OSC)
    I(f'buffer_store_dwordx2 v[82:83], v{X+6}, {sr4(S_OUT)}, 0 offen offset:64' + OSC)
    stamp(18)
    prof_store()
    diag_end()
    I('s_endpgm')
    L('L_WB')
    I(f'ds_write_b128 v{X+2}, v[64:67]')
    I(f'ds_write_b128 v{X+2}, v[68:71] offset:16')
    L('L_FDONE')
    I('s_mov_b64 exec, -1')
    I(f's_cmp_eq_u32 s{S_MORE}, 0')
    I('s_cbranch_scc1 L_QUIT')
    I(f's_add_u32 s{S_JB}, s{S_JB}, s{S_WID}')
    I('s_branch L_REFILL')
    L('L_OVERFLOW')
    I(f's_mov_b32 s{S_WID}, 64')
    L('L_REFILL')
    I('s_waitcnt vmcnt(0) lgkmcnt(0)')
    I('s_barrier')
    fill_zero()
    fill_words()
    ptr_consts()
    I('s_waitcnt lgkmcnt(0)')
    I('s_barrier')
    I('s_branch L_PASS')
    L('L_QUIT')
    prof_store()
    L('L_END')
    I('s_endpgm')

hdr = open('standalone__edge_featured_mpnn_egc__graph.s.ref').read().split('\n')
for line in hdr:
    if line.startswith('; Override'):
        break
    e(line)
e(f'; @launch grid=({NWG},1,1) block=(1024,1,1) lds={LDS_BYTES}')
e('.amdgcn_target "amdgcn-amd-amdhsa--gfx950"')
e('.text')
gen()
e('.section .rodata,"a"')
e('.p2align 6')
e(f'.amdhsa_kernel {KNAME}')
e('  .amdhsa_next_free_vgpr 128')
e('  .amdhsa_next_free_sgpr 102')
e('  .amdhsa_accum_offset 128')
e('  .amdhsa_group_segment_fixed_size 0')
e('  .amdhsa_kernarg_size 80')
e('  .amdhsa_user_sgpr_count 2')
e('  .amdhsa_user_sgpr_kernarg_segment_ptr 1')
e('  .amdhsa_system_sgpr_workgroup_id_x 1')
e('  .amdhsa_float_denorm_mode_32 3')
e('.end_amdhsa_kernel')
open(sys.argv[1], 'w').write('\n'.join(x for x in out if x is not None) + '\n')
```

```python
import sys, struct

OPT = dict(a.split('=') for a in sys.argv[2:] if '=' in a)
def opt(name, default):
    return type(default)(OPT.get(name, default))

KNAME = 'standalone__edge_featured_mpnn_egc__graph_kernel'
N_NODES = 12500
E_EDGES = 800000
NB = 49
NWG = 256
CH = 3136
WS_RW = 0
WS_RE = 0x00400000
CAP = CH + 256
WS_TAB = 0x00B00000
WS_NT = 0x00C00000
WS_PROF = 0x01000000
M8 = opt('m8', 0)
if M8:
    KH, KEXP, SV = 13, 26, 0
else:
    KH, KEXP, SV = 31, 31, 30
LOG2E = 1.4426950408889634
SC = opt('sc', 'sc1')
SC = (' ' + SC.replace('+', ' ')) if SC != 'none' else ''
LSC = opt('lsc', 'sc1')
LSC = (' ' + LSC.replace('+', ' ')) if LSC != 'none' else ''
GSC = opt('gsc', 'sc1')
GSC = (' ' + GSC.replace('+', ' ')) if GSC != 'none' else ''
ELD = opt('eld', 'none')
ELD = (' ' + ELD.replace('+', ' ')) if ELD != 'none' else ''

def f2u(x):
    return struct.unpack('<I', struct.pack('<f', x))[0]

out = []
def e(s=''):
    out.append(s)
def I(s):
    out.append('    ' + s)
def L(name):
    out.append(name + ':')
def vr(a, n):
    return f'v[{a}:{a+n-1}]' if n > 1 else f'v{a}'
def sr4(a):
    return f's[{a}:{a+3}]'
def sp(a):
    return f's[{a}:{a+1}]'
def p(r):
    return f'v[{r}:{r+1}]'

def srd(d, lo, hi, nrec):
    I(f's_mov_b32 s{d}, s{lo}')
    I(f's_mov_b32 s{d+1}, s{hi}')
    I(f's_mov_b32 s{d+2}, {nrec}')
    I(f's_mov_b32 s{d+3}, 0x00020000')

def srd_off(d, lo, hi, off, nrec):
    I(f's_add_u32 s{d}, s{lo}, {off}')
    I(f's_addc_u32 s{d+1}, s{hi}, 0')
    I(f's_mov_b32 s{d+2}, {nrec}')
    I(f's_mov_b32 s{d+3}, 0x00020000')

def wave_scan(v):
    for sh in (1, 2, 4, 8):
        I('s_nop 1')
        I(f'v_add_u32_dpp v{v}, v{v}, v{v} row_shr:{sh} row_mask:0xf bank_mask:0xf')
    I('s_nop 1')
    I(f'v_add_u32_dpp v{v}, v{v}, v{v} row_bcast:15 row_mask:0xa bank_mask:0xf')
    I('s_nop 1')
    I(f'v_add_u32_dpp v{v}, v{v}, v{v} row_bcast:31 row_mask:0xc bank_mask:0xf')
    I('s_nop 1')

LS = 0
ZR = 18688
LE = 18688
CNT = 56064
MISC = 56320
BASET = 56576
NINFO = 56832
HIST = 57344
HBASE = 58368
DESCP = 59392
EXTRA = 67840
DESCA = 84224
PT = 86784
ACCN = 99328
WRAW = 111872
WG_, WV_, WU_ = WRAW, WRAW + 17408, WRAW + 25600
XOWN = WRAW + 33792
LDS_BYTES = XOWN + 8192
STGW = 0
STGE = CAP * 4
NTI = EXTRA
MAXG = 576
assert STGE + CAP * 8 <= CNT

V_TID, V_LANE = 0, 1
V_MA, V_MB = 2, 4
V_VAA = (6, 8)
V_VAP = 10
V_PS0, V_PS1, V_PE, V_PD, V_CH8, V_CHP = 12, 13, 14, 15, 16, 17
V_PROF = 18
V_TAB = 20
V_J4, V_CB4 = 24, 25
V_X = 26
V_T01D, V_T01N, V_T23D, V_T23N = 40, 42, 44, 46
B5 = (48, 52)
A5 = 56
V_TT = (60, 62)
G = (64, 80)
Z = 96
S = 112

S_XS, S_WS, S_DST, S_SRC, S_EA, S_RW, S_RE, S_TAB, S_NTS, S_NTG, S_OUT = 12, 16, 20, 24, 28, 32, 36, 40, 44, 48, 52
S_MASK = 56
S_W, S_L, S_CNT, S_JB, S_WID, S_MORE = 72, 73, 74, 75, 76, 77
S_C = 78
S_EX = 80
S_LDX = 82
S_T = 84
S_WSP = 94
S_DBG = 96
S_TAG, S_TAG2 = 100, 101
TAGM = 0xC003C003
TAGL = MISC + 64

NT2 = 2 if opt('touch', 0) else 0
LDXV = 0 if opt('noload', 0) else -1
NPFM = opt('npf', 4)
NPF = {0: 0, 1: 7, 2: 7, 3: 2, 4: 1, 5: 1}[NPFM]
NPF1 = NPF if NPFM in (1, 5) else 0
WSB = opt('wsb', 0) << 20
TCH = 4 if opt('touch', 0) else 0
T1 = opt('t1', 0)
OSC = opt('osc', 'nt')
OSC = (' ' + OSC.replace('+', ' ')) if OSC != 'none' else ''
KREP = opt('krep', 1)
assert KREP == 1
PROF = opt('prof', 0)
DIAG = opt('diag', -1)
def diag_end():
    if DIAG < 0:
        return
    I('s_memrealtime s[98:99]')
    I('s_waitcnt lgkmcnt(0)')
    I('v_readlane_b32 s92, v18, 1')
    I('v_readlane_b32 s93, v18, 0')
    I('s_nop 3')
    I('s_sub_u32 s92, s92, s93')
    I('s_lshl_b32 s92, s92, 2')
    I('s_mov_b32 s93, s98')
    lbl = f'L_DG{len(out)}'
    L(lbl)
    I('s_memrealtime s[98:99]')
    I('s_waitcnt lgkmcnt(0)')
    I('s_sub_u32 s98, s98, s93')
    I('s_cmp_lt_u32 s98, s92')
    I(f's_cbranch_scc1 {lbl}')
def stamp(i):
    if DIAG >= 0 and i in (0, DIAG):
        I('s_memrealtime s[98:99]')
        I('s_waitcnt lgkmcnt(0)')
        if i == 0:
            I('v_writelane_b32 v18, s98, 0')
        if i == DIAG:
            I('v_writelane_b32 v18, s98, 1')
    if not PROF:
        return
    I('s_memtime s[98:99]')
    I('s_waitcnt lgkmcnt(0)')
    I(f'v_writelane_b32 v{V_PROF}, s98, {i}')
def rstamp(i):
    if not PROF:
        return
    I('s_memrealtime s[98:99]')
    I('s_waitcnt lgkmcnt(0)')
    I(f'v_writelane_b32 v{V_PROF}, s98, {i}')
def prof_store():
    if not PROF:
        return
    rstamp(31)
    if PROF == 3:
        I(f's_lshl_b32 s98, s2, 4')
        I(f's_add_u32 s98, s98, s{S_W}')
        I(f's_cmp_lg_u32 s98, {opt("pwave", 80)}')
        I('s_cbranch_scc1 L_END')
        I('s_mov_b64 exec, -1')
        I(f'v_readlane_b32 s98, v{V_PROF}, 0')
        I(f'v_readlane_b32 s99, v{V_PROF}, 30')
        I(f'v_readlane_b32 s{S_T}, v{V_PROF}, 31')
        I('s_nop 3')
        I(f's_sub_u32 s{S_T}, s{S_T}, s99')
        I(f's_add_u32 s{S_T}, s{S_T}, s98')
        I(f'v_writelane_b32 v{V_PROF}, s{S_T}, 9')
        I(f'v_subrev_u32 v{V_PROF}, s98, v{V_PROF}')
        I(f'v_mbcnt_lo_u32_b32 v{V_PROF+1}, -1, 0')
        I(f'v_lshlrev_b32 v{V_PROF+1}, 2, v{V_PROF+1}')
        I(f'v_add_u32 v{V_PROF+1}, -8, v{V_PROF+1}')
        I('s_mov_b64 exec, 0x3fff8')
        I(f'global_store_dword v{V_PROF+1}, v{V_PROF}, {sp(S_DBG)}')
        return
    I('s_mov_b64 exec, 0xffffffff')
    I(f's_add_u32 s{S_T}, s{S_WSP}, 0x{WS_PROF:x}')
    I(f's_addc_u32 s{S_T+1}, s{S_WSP+1}, 0')
    I(f'v_mbcnt_lo_u32_b32 v{V_PROF+1}, -1, 0')
    I(f'v_lshlrev_b32 v{V_PROF+1}, 2, v{V_PROF+1}')
    I(f's_lshl_b32 s98, s2, 4')
    I(f's_add_u32 s98, s98, s{S_W}')
    I(f's_lshl_b32 s98, s98, 7')
    I(f'v_add_u32 v{V_PROF+1}, s98, v{V_PROF+1}')
    I(f'global_store_dword v{V_PROF+1}, v{V_PROF}, {sp(S_T)}')

class Lg:
    def __init__(self):
        self.q = []
    def op(self, tag, text):
        I(text)
        self.q.append(tag)
    def need(self, *tags):
        idx = -1
        for t in tags:
            for i in range(len(self.q) - 1, -1, -1):
                if self.q[i] == t:
                    idx = max(idx, i)
                    break
        if idx < 0:
            return
        n = len(self.q) - 1 - idx
        assert n <= 15, (tags, n)
        I(f's_waitcnt lgkmcnt({n})')
        self.q = self.q[idx + 1:]

X = V_X

def zero_range(a, nbytes, zr, ad):
    k = 0
    base = a if a + nbytes <= 65536 + 16384 and a < 65536 - 3 * 16384 else None
    off = 0
    areg = ad
    if a + ((nbytes - 1) // 16384) * 16384 > 65535:
        I(f'v_add_u32 v{X+1}, {a}, v{ad}')
        areg = X + 1
        a0 = 0
    else:
        a0 = a
    while off < nbytes:
        n = min(16384, nbytes - off)
        if n < 16384:
            I(f'v_cmp_gt_u32 vcc, {n // 16}, v{V_TID}')
            I(f's_and_saveexec_b64 {sp(S_EX)}, vcc')
        I(f'ds_write_b128 v{areg}, v[{zr}:{zr+3}] offset:{a0 + off}')
        if n < 16384:
            I(f's_mov_b64 exec, {sp(S_EX)}')
        off += n

def zregs():
    I(f'v_lshlrev_b32 v{X}, 4, v{V_TID}')
    for k in range(4):
        I(f'v_mov_b32 v{X+2+k}, 0')

def fill_desca():
    I(f'v_and_b32 v{X+6}, 15, v{V_TID}')
    I(f'v_lshlrev_b32 v{X+6}, 10, v{X+6}')
    I(f'v_add_u32 v{X+6}, {EXTRA}, v{X+6}')
    for k in range(1, 4):
        I(f'v_add_u32 v{X+6+k}, {256*k}, v{X+6}')
    I(f'v_add_u32 v{X+1}, {DESCA}, v{X}')
    I(f'v_cmp_gt_u32 vcc, 160, v{V_TID}')
    I(f's_and_saveexec_b64 {sp(S_EX)}, vcc')
    I(f'ds_write_b128 v{X+1}, v[{X+6}:{X+9}]')
    I(f's_mov_b64 exec, {sp(S_EX)}')

def fill_zero():
    zregs()
    zero_range(ZR, 65536, X + 2, X)
    fill_desca()

def fill_words():
    I(f'v_lshlrev_b32 v{X}, 4, v{V_TID}')
    I(f'v_and_b32 v{X+2}, 7, v{V_TID}')
    I(f'v_lshlrev_b32 v{X+2}, 5, v{X+2}')
    I(f'v_add_u32 v{X+2}, {N_NODES*8}, v{X+2}')
    for k in range(1, 4):
        I(f'v_add_u32 v{X+2+k}, {8*k}, v{X+2}')
    I(f'ds_write_b128 v{X}, v[{X+2}:{X+5}] offset:{LS}')
    I(f'v_cmp_gt_u32 vcc, 144, v{V_TID}')
    I(f's_and_saveexec_b64 {sp(S_EX)}, vcc')
    I(f'ds_write_b128 v{X}, v[{X+2}:{X+5}] offset:{LS+16384}')
    I(f's_mov_b64 exec, {sp(S_EX)}')

V_C8P, V_CPP, V_SCP = 26, 28, 30
S_BP0, S_BP1 = 88, 90

def tail_ops(n):
    M = (V_MA, V_MB)[n]
    return [f'v_rcp_f32 v{V_T01D}, v{V_T01D}',
            f'v_rcp_f32 v{V_T01D+1}, v{V_T01D+1}',
            f'v_pk_fma_f32 {p(M)}, {p(V_T01N)}, {p(V_T01D)}, {p(M)}']

def acc_write(lg, va):
    lg.op('Wa', f'ds_write2_b32 v{va}, v{V_MA}, v{V_MB} offset0:0 offset1:1')
    lg.op('Wb', f'ds_write2_b32 v{va+1}, v{V_MA+1}, v{V_MB+1} offset0:0 offset1:1')

def acc_read(lg, va):
    lg.op('Ra', f'ds_read_b32 v{V_MA}, v{va}')
    lg.op('Rb', f'ds_read_b32 v{V_MA+1}, v{va+1}')
    lg.op('Rc', f'ds_read_b32 v{V_MB}, v{va} offset:4')
    lg.op('Rd', f'ds_read_b32 v{V_MB+1}, v{va+1} offset:4')

def va_add(vap, vaa):
    I(f'v_lshl_add_u64 {p(vap)}, {p(vap)}, 0, {p(V_CPP)}')
    I(f'v_lshl_add_u64 {p(vaa)}, {p(vaa)}, 0, {p(V_C8P)}')

def gload(n, i):
    return f'buffer_load_dword v{G[n]+i}, v{S + (i & 1) * 8 + (i >> 1)}, {sr4(S_NTG)}, 0 offen offset:{4*n}' + GSC

def s_safe():
    if opt('safe', 0):
        for i in range(16):
            I(f'v_and_b32 v{S+i}, 0x1fff8, v{S+i}')

def s_reads(lg, uo):
    lg.op('S0', f'ds_read_b128 {vr(S,4)}, v{V_PS0} offset:{uo*32}')
    lg.op('S1', f'ds_read_b128 {vr(S+4,4)}, v{V_PS0} offset:{uo*32+16}')
    lg.op('S2', f'ds_read_b128 {vr(S+8,4)}, v{V_PS1} offset:{uo*32}')
    lg.op('S3', f'ds_read_b128 {vr(S+12,4)}, v{V_PS1} offset:{uo*32+16}')

def half(lg, n, par, uo, with_tail=True):
    g = G[n]
    I('s_waitcnt vmcnt(16)')
    if n == 0:
        lg.need('P0a', 'P0b', 'e')
    else:
        lg.need('P1a', 'P1b')
    I(f'v_mfma_f32_32x32x16_bf16 {vr(Z,16)}, {vr(A5,4)}, {vr(B5[n],4)}, {vr(g,16)}')
    t = tail_ops(n ^ 1)
    va_prev, va_cur, va_nxt = V_VAA[par ^ 1], V_VAA[par], V_VAA[par ^ 1]
    sh = [f'v_lshlrev_b32 v{g+i}, 16, v{g+i}' for i in range(16)]
    ex = [f'v_exp_f32 v{Z+i}, v{Z+i} clamp' for i in range(16)]
    l3 = [f'v_pk_mul_f32 {p(V_T01N)}, {p(V_T01N)}, {p(V_T23D)}',
          f'v_pk_mul_f32 {p(V_T23D)}, {p(V_T01D)}, {p(V_T23D)}',
          f'v_pk_fma_f32 {p(V_T01N)}, {p(V_T23N)}, {p(V_T01D)}, {p(V_T01N)}',
          f'v_rcp_f32 v{V_T23D}, v{V_T23D}',
          f'v_rcp_f32 v{V_T23D+1}, v{V_T23D+1}',
          f'v_pk_fma_f32 {p((V_MA, V_MB)[n ^ 1])}, {p(V_T01N)}, {p(V_T23D)}, {p((V_MA, V_MB)[n ^ 1])}']
    if with_tail and not M8:
        for r_ in (V_T01D, V_T01D + 1, V_T23D, V_T23D + 1):
            I(f'v_rcp_f32 v{r_}, v{r_}')
    else:
        I('s_nop 3')
    if n == 1:
        lg.op('e', f'ds_read_b64 {p(A5)}, v{V_PE} offset:{(uo+1)*64}')
        lg.op('P1a', f'ds_read_b32 v{B5[1]+2}, v{V_VAP} offset:4')
        lg.op('P1b', f'ds_read_b32 v{B5[1]+3}, v{V_VAP+1} offset:4')
    else:
        lg.op('dP', f'ds_read_b64 {p(V_VAP)}, v{V_PD} offset:{(uo+1)*256}')
        I('s_nop 1')
    for op in sh[:8]:
        I(op)
    seq = []
    if with_tail and not M8:
        Mp = p((V_MA, V_MB)[n ^ 1])
        seq = ['NEED', f'v_pk_fma_f32 {Mp}, {p(V_T01N)}, {p(V_T01D)}, {Mp}', ex[0],
               f'v_pk_fma_f32 {Mp}, {p(V_T23N)}, {p(V_T23D)}, {Mp}', sh[8], 'ACC', ex[1], sh[9]]
    elif with_tail:
        seq = [l3[0], l3[1], ex[0], l3[2], l3[3], sh[8], l3[4], ex[1], sh[9], 'NEED', l3[5], 'ACC']
    else:
        seq = [ex[0], sh[8], ex[1], sh[9], 'ACC']
    for op in seq:
        if op == 'NEED':
            lg.need('Ra', 'Rb', 'Rc', 'Rd')
        elif op == 'ACC':
            if n == 0:
                if with_tail:
                    acc_write(lg, va_prev)
                acc_read(lg, va_cur)
                lg.op('dA', f'ds_read_b64 {p(va_nxt)}, v{V_PD} offset:{(uo+1)*256 + DESCA - DESCP}')
        else:
            I(op)
    for i in range(2, 12):
        I(ex[i])
        if 8 + i < 16:
            I(sh[8 + i])
        if n == 0 and i == 11:
            lg.need('dP', 'dA')
            va_add(V_VAP, va_nxt)
            lg.op('P0a', f'ds_read_b32 v{B5[0]+2}, v{V_VAP}')
            lg.op('P0b', f'ds_read_b32 v{B5[0]+3}, v{V_VAP+1}')
    for op in ex[12:]:
        I(op)
    for i in range(0, 16, 2):
        if M8:
            I(f'v_pk_fma_f32 {p(Z+i)}, {p(Z+i)}, {p(V_SCP)}, {sp(S_C)}')
        else:
            I(f'v_pk_add_f32 {p(Z+i)}, {p(Z+i)}, {sp(S_C)}')
    def T(k): return f'v_pk_mul_f32 {p(V_TT[k&1])}, {p(g+4*k)}, {p(Z+4*k+2)}'
    def DD(k): return f'v_pk_mul_f32 {p(Z+4*k+2)}, {p(Z+4*k)}, {p(Z+4*k+2)}'
    def NN(k): return f'v_pk_fma_f32 {p(Z+4*k)}, {p(g+4*k+2)}, {p(Z+4*k)}, {p(V_TT[k&1])}'
    for k0 in (0, 2):
        for op in (T(k0), T(k0 + 1), DD(k0), DD(k0 + 1), NN(k0), NN(k0 + 1)):
            I(op)
        if n == 0 and k0 == 0:
            lg.need('S0', 'S1', 'S2', 'S3')
            s_safe()
        I(f's_mov_b64 exec, {sp(S_LDX)}')
        for i in range(4 * k0, 4 * k0 + 8):
            I(gload(n, i))
        I('s_mov_b64 exec, -1')
    if n == 1:
        s_reads(lg, uo + 2)
    I(f'v_pk_mul_f32 {p(V_T01N)}, {p(Z)}, {p(Z+6)}')
    I(f'v_pk_mul_f32 {p(V_T23N)}, {p(Z+8)}, {p(Z+14)}')
    I(f'v_pk_mul_f32 {p(V_T01D)}, {p(Z+2)}, {p(Z+6)}')
    I(f'v_pk_mul_f32 {p(V_T23D)}, {p(Z+10)}, {p(Z+14)}')
    I(f'v_pk_fma_f32 {p(V_T01N)}, {p(Z+4)}, {p(Z+2)}, {p(V_T01N)}')
    I(f'v_pk_fma_f32 {p(V_T23N)}, {p(Z+12)}, {p(Z+10)}, {p(V_T23N)}')

PRIO = {
    3: {(3, 0): 2, (2, 0): 1, (1, 0): 0},
    5: {(2, 0): 2, (1, 0): 1, (1, 1): 0},
    6: {(3, 0): 2, (1, 0): 1, (1, 1): 0},
    7: {(2, 1): 2, (1, 0): 1, (1, 1): 0},
    8: {(4, 0): 2, (2, 0): 1, (1, 1): 0},
    9: {(3, 0): 2, (2, 1): 1, (1, 1): 0},
    0: {},
}[opt('prio', 9)]
def prio(tag, phase=0):
    for (t, ph), lvl in PRIO.items():
        if ph != phase:
            continue
        I(f's_cmp_eq_u32 s{S_CNT}, {t}')
        I(f's_cbranch_scc0 L_PR{tag}_{lvl}')
        I(f's_setprio {lvl}')
        L(f'L_PR{tag}_{lvl}')

def split_hilo(a, b, t0, t1):
    I(f'v_cvt_pk_bf16_f32 v{t0}, v{a}, v{b}')
    I(f'v_lshlrev_b32 v{t1}, 16, v{t0}')
    I(f'v_and_b32 v{t0}, 0xffff0000, v{t0}')
    I(f'v_sub_f32 v{a}, v{a}, v{t1}')
    I(f'v_sub_f32 v{b}, v{b}, v{t0}')
    I(f'v_cvt_pk_bf16_f32 v{a}, v{t1}, v{a}')
    I(f'v_cvt_pk_bf16_f32 v{b}, v{t0}, v{b}')

V_AA, V_AB, V_AD, V_AP = 6, 7, 8, 9
SA, SB, SD = 80, 96, 112

def phase0_addr():
    I(f's_and_b32 s{S_T}, s{S_W}, 3')
    I(f's_lshr_b32 s{S_T+1}, s{S_W}, 2')
    I(f'v_and_b32 v12, 15, v{V_LANE}')
    I(f'v_lshrrev_b32 v13, 4, v{V_LANE}')
    I(f'v_bfe_u32 v14, v{V_LANE}, 1, 3')
    I(f'v_xor_b32 v14, v14, v13')
    I(f'v_lshlrev_b32 v14, 4, v14')
    I(f'v_lshl_or_b32 v14, v12, 7, v14')
    I(f's_lshl_b32 s{S_T+2}, s{S_T}, 11')
    I(f'v_add_u32 v{V_AA}, s{S_T+2}, v14')
    I(f'v_bfe_u32 v14, v{V_LANE}, 2, 2')
    I(f'v_lshl_add_u32 v14, v13, 3, v14')
    I(f'v_lshlrev_b32 v14, 7, v14')
    I(f'v_and_b32 v15, 3, v{V_LANE}')
    I(f'v_lshl_add_u32 v14, v15, 3, v14')
    I(f's_lshl_b32 s{S_T+2}, s{S_T+1}, 5')
    I(f'v_or_b32 v14, s{S_T+2}, v14')
    I(f'v_and_b32 v15, 24, v{V_LANE}')
    I(f'v_lshlrev_b32 v15, 2, v15')
    I(f'v_xor_b32 v14, v14, v15')
    I(f'v_add_u32 v{V_AB}, {WRAW}, v14')
    I(f's_lshl_b32 s{S_T+2}, s{S_T}, 12')
    I(f'v_lshlrev_b32 v13, 10, v13')
    I(f'v_add_u32 v13, s{S_T+2}, v13')
    I(f's_lshl_b32 s{S_T+2}, s{S_T+1}, 6')
    I(f's_add_u32 s{S_T+2}, s{S_T+2}, {NTI}')
    I(f'v_lshl_add_u32 v{V_AD}, v12, 2, v13')
    I(f'v_add_u32 v{V_AD}, s{S_T+2}, v{V_AD}')
    I(f's_and_b32 s{S_T+2}, s{S_T+1}, 1')
    I(f's_lshl_b32 s{S_T+2}, s{S_T+2}, 7')
    I(f's_lshr_b32 s{S_T+3}, s{S_T+1}, 1')
    I(f's_lshl_b32 s{S_T+3}, s{S_T+3}, 2')
    I(f's_add_u32 s{S_T+2}, s{S_T+2}, s{S_T+3}')
    I(f's_add_u32 s{S_T+2}, s{S_T+2}, {PT}')
    I(f'v_lshl_add_u32 v{V_AP}, v12, 3, v13')
    I(f'v_add_u32 v{V_AP}, s{S_T+2}, v{V_AP}')

def b_reads(dst, off):
    for sg in range(2):
        for pp in range(2):
            I(f'ds_read_b64_tr_b16 {vr(dst+4*sg+2*pp,2)}, v{V_AB} offset:{off+sg*4096+pp*512}')

def mm16(d, b):
    I(f'v_mfma_f32_16x16x32_bf16 {vr(d,4)}, {vr(SA,4)}, {vr(b,4)}, 0')
    I(f'v_mfma_f32_16x16x32_bf16 {vr(d,4)}, {vr(SA+4,4)}, {vr(b+4,4)}, {vr(d,4)}')

def phase0a():
    I(f'v_add_u32 v12, {XOWN}, v{V_AA}')
    I(f'v_xor_b32 v13, 64, v{V_AA}')
    I(f'v_add_u32 v13, {XOWN}, v13')
    I(f'ds_read_b128 {vr(SA,4)}, v12')
    I(f'ds_read_b128 {vr(SA+4,4)}, v13')
    b_reads(SB, 8192)
    b_reads(SB + 8, WV_ - WRAW)
    I(f's_mov_b32 s{S_T+4}, 0x{f2u(-LOG2E):x}')
    I(f's_mov_b32 s{S_T+6}, 0x7fffffff')
    I(f's_mov_b32 s{S_T+7}, 0xffff0000')
    I('s_waitcnt lgkmcnt(4)')
    mm16(SD, SB)
    I('s_waitcnt lgkmcnt(0)')
    mm16(SD + 4, SB + 8)
    I('s_nop 4')
    for i in range(4):
        I(f'v_mul_f32 v{SD+i}, s{S_T+4}, v{SD+i}')
    for i in range(4):
        I(f'v_and_b32 v{SD+8+i}, s{S_T+6}, v{SD+i}')
    for i in range(4):
        if SV:
            I(f'v_mul_f32 v{SD+4+i}, 0x{f2u(2.0**SV):x}, v{SD+4+i}')
        I(f'v_add_u32 v{SD+8+i}, 0x8000, v{SD+8+i}')
    I(f'v_cvt_pk_bf16_f32 v{SD+4}, v{SD+4}, v{SD+5}')
    I(f'v_cvt_pk_bf16_f32 v{SD+6}, v{SD+6}, v{SD+7}')
    I(f'v_lshrrev_b32 v{SD+5}, 16, v{SD+4}')
    I(f'v_lshrrev_b32 v{SD+7}, 16, v{SD+6}')
    I(f'v_and_b32 v{SD+4}, 0xffff, v{SD+4}')
    I(f'v_and_b32 v{SD+6}, 0xffff, v{SD+6}')
    for i in range(4):
        I(f'v_sub_u32 v{SD+8+i}, v{SD+8+i}, v{SD+4+i} clamp')
    for i in range(4):
        I(f'v_and_or_b32 v{SD+8+i}, v{SD+8+i}, s{S_T+7}, v{SD+4+i}')
    for i in range(4):
        I(f'v_bfi_b32 v{SD+i}, s{S_T+6}, v{SD+8+i}, v{SD+i}')
        I(f'ds_write_b32 v{V_AD}, v{SD+i} offset:{i*256}')

def phase0b():
    b_reads(SB, 0)
    b_reads(SB + 8, WU_ - WRAW)
    I(f's_mov_b32 s{S_T+4}, 0x{f2u(-LOG2E):x}')
    I(f's_mov_b32 s{S_T+5}, 0x{f2u(2.0**(SV+KH)):x}')
    I(f'v_mov_b32 v13, 0x{f2u(-float(KEXP)):x}')
    I(f's_and_b32 s{S_T+6}, s{S_W}, 3')
    I('s_waitcnt lgkmcnt(4)')
    mm16(SD, SB)
    I('s_waitcnt lgkmcnt(0)')
    mm16(SD + 4, SB + 8)
    I('s_nop 4')
    for i in range(4):
        I(f'v_fma_f32 v{SD+i}, v{SD+i}, s{S_T+4}, v13')
    split_hilo(SD, SD + 1, 12, 13)
    split_hilo(SD + 2, SD + 3, 12, 13)
    for i in range(4):
        I(f'v_mul_f32 v{SD+4+i}, s{S_T+5}, v{SD+4+i}')
    I(f's_cmp_eq_u32 s{S_T+6}, 3')
    I(f's_cselect_b64 exec, 0xffff, -1')
    I(f'ds_write_b32 v{V_AP}, v{SD}')
    I(f'ds_write_b32 v{V_AP}, v{SD+4} offset:{ACCN-PT}')
    I(f's_cselect_b64 exec, 0, -1')
    for i in range(1, 4):
        I(f'ds_write_b32 v{V_AP}, v{SD+i} offset:{i*256}')
        I(f'ds_write_b32 v{V_AP}, v{SD+4+i} offset:{ACCN-PT+i*256}')
    I('s_mov_b64 exec, -1')

def phase0c():
    I(f'v_bfe_u32 v13, v{V_LANE}, 2, 2')
    I(f'v_lshlrev_b32 v13, 7, v13')
    I(f'v_bfe_u32 v15, v{V_LANE}, 4, 1')
    I(f'v_lshl_add_u32 v13, v15, 5, v13')
    I(f'v_and_b32 v15, 3, v{V_LANE}')
    I(f'v_lshl_add_u32 v13, v15, 3, v13')
    I(f'v_and_b32 v15, 8, v{V_LANE}')
    I(f'v_lshlrev_b32 v15, 2, v15')
    I(f'v_xor_b32 v13, v13, v15')
    I(f'v_add_u32 v13, {WG_ + 16384}, v13')
    I(f'ds_read_b64_tr_b16 v[96:97], v13')
    I(f'ds_read_b64_tr_b16 v[98:99], v13 offset:64')
    I(f's_mov_b32 s{S_T+4}, 0x{f2u(-LOG2E):x}')
    I(f'v_cmp_lt_u32 vcc, 31, v{V_LANE}')
    I('s_waitcnt lgkmcnt(0)')
    for m in range(4):
        I(f'v_lshlrev_b32 v{100+2*m}, 16, v{96+m}')
        I(f'v_and_b32 v{101+2*m}, 0xffff0000, v{96+m}')
    for j in range(8):
        I(f'v_mul_f32 v{100+j}, s{S_T+4}, v{100+j}')
    for m in range(4):
        dst = B5[m >> 1] + (m & 1)
        I(f'v_cvt_pk_bf16_f32 v{96+m}, v{100+2*m}, v{101+2*m}')
        I(f'v_lshlrev_b32 v12, 16, v{96+m}')
        I(f'v_and_b32 v13, 0xffff0000, v{96+m}')
        I(f'v_sub_f32 v12, v{100+2*m}, v12')
        I(f'v_sub_f32 v13, v{101+2*m}, v13')
        I(f'v_cvt_pk_bf16_f32 v12, v12, v13')
        I(f'v_cndmask_b32 v{dst}, v{96+m}, v12, vcc')

def a5_const():
    I(f'v_bfe_u32 v12, v{V_LANE}, 2, 1')
    I(f'v_lshrrev_b32 v13, 5, v{V_LANE}')
    I(f'v_xor_b32 v12, v12, v13')
    I(f'v_and_b32 v13, 1, v{V_LANE}')
    I(f'v_lshl_or_b32 v12, v12, 1, v13')
    I(f'v_mov_b32 v13, 0x3f803f80')
    I(f'v_cmp_eq_u32 vcc, 0, v12')
    I(f'v_cmp_eq_u32 {sp(S_T)}, 1, v12')
    I('s_nop 1')
    I(f'v_cndmask_b32 v{A5+2}, 0, v13, vcc')
    I(f'v_cndmask_b32 v{A5+3}, 0, v13, {sp(S_T)}')

def nt_prefetch(vt, first=0, nl=None, dst=96):
    I(f's_lshr_b32 s{S_T}, s2, 4')
    I(f's_lshl_b32 s{S_T+1}, s{S_W}, 4')
    I(f's_add_u32 s{S_T}, s{S_T}, s{S_T+1}')
    I(f's_and_b32 s{S_T+1}, s{S_T}, 7')
    I(f's_lshl_b32 s{S_T+1}, s{S_T+1}, 5')
    I(f's_lshr_b32 s{S_T}, s{S_T}, 3')
    I(f's_add_u32 s{S_T}, s{S_T}, s{S_T+1}')
    I(f's_lshl_b32 s{S_T}, s{S_T}, 1')
    I(f's_bfe_u32 s{S_T+1}, s2, 0x10003')
    I(f's_add_u32 s{S_T}, s{S_T}, s{S_T+1}')
    I(f's_mul_i32 s{S_T}, s{S_T}, {NB*128}')
    I(f's_add_u32 s{S_T}, s{S_T}, 0x{WS_NT:x}')
    srd_off(S_NTS, S_WSP, S_WSP + 1, f's{S_T}', NB * 128)
    if NPFM >= 3:
        I(f'v_lshlrev_b32 v{vt}, {7 if NPFM >= 4 else 6}, v{V_LANE}')
        I(f'v_add_u32 v{vt+1}, 4096, v{vt}')
        nl = opt("pfl", 20) if nl is None else nl
        I(f's_mov_b32 exec_lo, 0x{(((1 << nl) - 1) << first) & 0xffffffff:x}')
        I(f's_mov_b32 exec_hi, 0x{(((1 << nl) - 1) << first) >> 32:x}')
        for k in range(NPF):
            I(f'buffer_load_dword v{dst+k}, v{vt+k}, {sr4(S_NTS)}, 0 offen' + (LSC if opt('pfsc', 1) else ''))
        I('s_mov_b64 exec, -1')
        return
    I(f'v_lshlrev_b32 v{vt}, 4, v{V_LANE}')
    I(f'v_add_u32 v{vt+1}, 4096, v{vt}')
    for k in range(NPF):
        I(f'buffer_load_dwordx4 {vr(96+4*k,4)}, v{vt+(k>>2)}, {sr4(S_NTS)}, 0 offen offset:{(k&3)*1024}' + LSC)

def ptr_consts():
    I(f'v_lshrrev_b32 v{V_PS1}, 5, v{V_LANE}')
    I(f's_lshl_b32 s{S_T}, s{S_W}, 4')
    I(f's_add_u32 s{S_T}, s{S_T}, {DESCP}')
    I(f'v_lshlrev_b32 v{V_PD}, 3, v{V_PS1}')
    I(f'v_add_u32 v{V_PS1}, v{V_PS1}, v{V_PS1}')
    I(f'v_add_u32 v{V_PD}, s{S_T}, v{V_PD}')
    I(f'v_bfe_u32 v{V_VAP}, v{V_LANE}, 2, 1')
    I(f'v_and_b32 v{V_PE}, 1, v{V_LANE}')
    I(f'v_lshl_or_b32 v{V_VAP}, v{V_VAP}, 1, v{V_PE}')
    I(f'v_bfe_u32 v{V_PE}, v{V_LANE}, 3, 2')
    I(f'v_bfe_u32 v{V_PS0}, v{V_LANE}, 1, 1')
    I(f'v_lshl_or_b32 v{V_PE}, v{V_PE}, 1, v{V_PS0}')
    I(f'v_lshlrev_b32 v{V_PE}, 3, v{V_PE}')
    I(f'v_add_u32 v{V_PE}, {LE}, v{V_PE}')

def gen():
    e(f'.globl {KNAME}')
    e('.p2align 8')
    e(f'.type {KNAME},@function')
    L(KNAME)
    I(f's_cmp_ge_u32 s2, {NWG}')
    I('s_cbranch_scc1 L_END')
    I('s_load_dwordx8 s[84:91], s[0:1], 0')
    I('s_load_dwordx4 s[4:7], s[0:1], 32')
    I('s_load_dwordx4 s[8:11], s[0:1], 48')
    I('s_load_dwordx4 s[56:59], s[0:1], 64')
    if PROF:
        I(f'v_mov_b32 v{V_PROF}, 0')
    rstamp(30)
    stamp(0)
    zregs()
    zero_range(CNT, DESCP + 2560 - CNT, X + 2, X)
    I(f'v_lshlrev_b32 v{X+6}, 2, v{V_TID}')
    I(f's_mul_i32 s61, s2, {CH*4}')
    I(f's_mul_i32 s63, s2, {CH}')
    I(f's_sub_u32 s63, {E_EDGES}, s63')
    I(f's_min_u32 s63, s63, {CH}')
    I(f's_lshl_b32 s64, s63, 2')
    I(f'v_add_u32 v{X+8}, 4096, v{X+6}')
    I(f'v_add_u32 v{X+9}, 8192, v{X+6}')
    I(f'v_add_u32 v{X+10}, 12288, v{X+6}')
    I(f'v_lshrrev_b32 v{X+1}, 6, v{V_TID}')
    I(f'v_and_b32 v{V_LANE}, 63, v{V_TID}')
    I(f'v_readfirstlane_b32 s{S_W}, v{X+1}')
    I('s_and_b32 s3, s2, 7')
    I('s_lshl_b32 s3, s3, 5')
    I('s_lshr_b32 s60, s2, 3')
    I('s_add_u32 s3, s3, s60')
    I(f's_mul_i32 s62, s2, {CH*8}')
    I(f's_lshl_b32 s65, s63, 3')
    I(f'v_and_b32 v97, 0x50, v{V_TID}')
    I(f'v_lshlrev_b32 v96, 1, v97')
    I(f'v_or_b32 v97, v97, v96')
    I(f'v_and_b32 v97, 0x60, v97')
    I(f'v_xor_b32 v97, v97, v{X}')
    I(f'v_and_b32 v96, 0x20, v96')
    I(f'v_lshlrev_b32 v98, 4, v{V_LANE}')
    I(f'v_xor_b32 v96, v96, v98')
    I(f's_lshl_b32 s66, s{S_W}, 10')
    I(f'v_and_b32 v101, 0x1fff, v97')
    I(f'v_lshrrev_b32 v98, 3, v{V_TID}')
    I(f'v_bfe_u32 v99, v98, 1, 3')
    I(f'v_and_b32 v100, 7, v{V_TID}')
    I(f'v_xor_b32 v99, v99, v100')
    I(f'v_lshlrev_b32 v99, 4, v99')
    I(f'v_lshl_add_u32 v99, v98, 7, v99')
    I(f's_mul_i32 s60, s3, {NB*128}')
    I(f'v_add_u32 v99, s60, v99')
    I(f'v_add_u32 v96, 16384, v96')
    I('s_waitcnt lgkmcnt(0)')
    I(f's_or_b32 s67, s2, s{S_W}')
    I('s_cmp_lg_u32 s67, 0')
    I('s_cbranch_scc1 L_NOTAG')
    I('s_memrealtime s[68:69]')
    I(f'v_mov_b32 v{X+2}, 0')
    I('s_waitcnt lgkmcnt(0)')
    I('s_or_b32 s68, s68, 1')
    I(f'v_mov_b32 v{X+3}, s68')
    I('s_mov_b64 exec, 1')
    I(f'global_store_dword v{X+2}, v{X+3}, s[56:57] sc1')
    I('s_mov_b64 exec, -1')
    L('L_NOTAG')
    def dst_loads():
        srd_off(S_DST, 90, 91, 's61', 's64')
        for k in range(4):
            I(f'buffer_load_dword v{64+k}, v{X+6 if k == 0 else X+7+k}, {sr4(S_DST)}, 0 offen' + ELD)
    def dma_loads():
        srd(S_WS, 8, 9, 132 * 128)
        I(f's_add_u32 m0, s66, {WG_}')
        srd(S_XS, 84, 85, N_NODES * 128)
        I(f'buffer_load_dwordx4 v97, {sr4(S_WS)}, 0 offen lds')
        I(f's_cmp_lt_u32 s{S_W}, 8')
        I(f's_cselect_b32 s{S_NTS}, s6, s4')
        I(f's_cselect_b32 s{S_NTS+1}, s7, s5')
        I(f's_mov_b32 s{S_NTS+2}, {64*128}')
        I(f's_mov_b32 s{S_NTS+3}, 0x00020000')
        I(f's_add_u32 m0, s66, {WV_}')
        I('s_nop 0')
        I(f'buffer_load_dwordx4 v101, {sr4(S_NTS)}, 0 offen lds')
        I(f's_cmp_lt_u32 s{S_W}, 8')
        I('s_cbranch_scc0 L_D3B')
        I(f's_add_u32 m0, s66, {XOWN}')
        I('s_nop 0')
        I(f'buffer_load_dwordx4 v99, {sr4(S_XS)}, 0 offen lds')
        I('s_branch L_D3C')
        L('L_D3B')
        I(f's_mov_b32 m0, {WG_ + 16384}')
        I('s_nop 0')
        I(f'buffer_load_dwordx4 v96, {sr4(S_WS)}, 0 offen lds')
        L('L_D3C')
    if opt('t0', 0):
        I(f'v_and_b32 v60, 15, v{V_LANE}')
        I(f'v_lshlrev_b32 v60, 20, v60')
        I(f'v_and_b32 v61, 1, v{V_LANE}')
        I(f'v_lshlrev_b32 v61, 20, v61')
        I(f'global_load_dword v62, v60, s[58:59]')
        I(f'global_load_dword v63, v61, s[10:11]')
    ORDER = opt('order', 0)
    if ORDER == 0:
        dma_loads()
    dst_loads()
    if ORDER == 2:
        dma_loads()
    F1 = opt('f1', 1)
    if F1:
        I('s_barrier')
    srd_off(S_SRC, 88, 89, 's61', 's64')
    for k in range(4):
        I(f'buffer_load_dword v{68+k}, v{X+6 if k == 0 else X+7+k}, {sr4(S_SRC)}, 0 offen' + ELD)
    srd_off(S_EA, 86, 87, 's62', 's65')
    I(f'v_lshlrev_b32 v92, 3, v{V_TID}')
    for k in range(1, 4):
        I(f'v_add_u32 v{92+k}, {8192*k}, v92')
    def e_load(k):
        I(f'buffer_load_dwordx2 v[{72+2*k}:{73+2*k}], v{92+k}, {sr4(S_EA)}, 0 offen' + ELD)
    NEE = opt('nee', 4)
    for k in range(NEE):
        e_load(k)
    if ORDER == 1:
        dma_loads()
    I(f's_mov_b64 {sp(S_DBG)}, s[56:57]')
    I(f's_add_u32 s{S_WSP}, s58, 0x{WSB:x}')
    I(f's_addc_u32 s{S_WSP+1}, s59, 0')
    stamp(1)
    srd(S_OUT, 10, 11, N_NODES * 128)
    I(f's_mul_i32 s{S_T}, s2, {CAP*4}')
    srd_off(S_RW, S_WSP, S_WSP + 1, f's{S_T}', CAP * 4)
    I(f's_lshl_b32 s{S_T}, s{S_T}, 1')
    I(f's_add_u32 s{S_T}, s{S_T}, 0x{WS_RE:x}')
    srd_off(S_RE, S_WSP, S_WSP + 1, f's{S_T}', CAP * 8)
    I(f's_lshl_b32 s{S_T}, s2, 11')
    I(f's_add_u32 s{S_T}, s{S_T}, 0x{WS_TAB:x}')
    srd_off(S_TAB, S_WSP, S_WSP + 1, f's{S_T}', (KREP - 1) * 0x80000 + 2048)
    I(f's_mul_i32 s{S_T}, s3, {NB*256}')
    I(f's_add_u32 s{S_T}, s{S_T}, 0x{WS_NT:x}')
    srd_off(S_NTS, S_WSP, S_WSP + 1, f's{S_T}', NB * 256)
    I(f's_add_u32 s{S_NTG}, s{S_WSP}, 0x{WS_NT:x}')
    I(f's_addc_u32 s{S_NTG+1}, s{S_WSP+1}, 0')
    I(f's_or_b32 s{S_NTG+1}, s{S_NTG+1}, 0x80000000')
    I(f's_mov_b32 s{S_NTG+2}, 0x400000')
    I(f's_mov_b32 s{S_NTG+3}, 0x00c00000')
    srd_off(S_DST, S_WSP, S_WSP + 1, '0x%x' % WS_RW, NWG * CAP * 4)
    srd_off(S_SRC, S_WSP, S_WSP + 1, '0x%x' % WS_RE, NWG * CAP * 8)
    for k in range(4):
        I(f'v_add_u32 v{X+1}, {1024*k}, v{V_TID}')
        I(f'v_cmp_gt_u32 {sp(S_MASK+2*k)}, s63, v{X+1}')
    I(f's_mov_b32 s{S_C}, 0x{f2u(2.0**-KH):x}')
    I(f's_mov_b32 s{S_C+1}, 0x{f2u(2.0**-KH):x}')
    I(f's_mov_b32 s{S_JB}, 0')
    I(f's_mov_b32 s{S_WID}, 128')
    I(f'v_and_b32 v{V_J4}, 7, v{V_LANE}')
    I(f'v_lshlrev_b32 v{V_J4}, 3, v{V_J4}')
    I(f'v_lshrrev_b32 v{X+1}, 3, v{V_LANE}')
    I(f's_lshl_b32 s{S_T}, s{S_W}, 4')
    I(f'v_add_u32 v{X+1}, s{S_T}, v{X+1}')
    I(f'v_mul_u32_u24 v{V_CB4}, {CAP*4}, v{X+1}')
    I(f'v_add_u32 v{V_CB4}, v{V_CB4}, v{V_J4}')
    I(f'v_and_b32 v{V_CH8}, 31, v{V_LANE}')
    I(f'v_lshlrev_b32 v{V_CH8}, 3, v{V_CH8}')
    I(f'v_add_u32 v{V_CHP}, {PT}, v{V_CH8}')
    phase0_addr()
    a5_const()
    if not F1:
        I(f's_waitcnt vmcnt({8 + NEE if ORDER == 0 else 0})')
        I('s_barrier')
    stamp(2)
    for k in range(NEE, 4):
        e_load(k)
    I(f'v_mov_b32 v12, 0')
    I(f'global_load_dword v10, v12, {sp(S_DBG)} sc1')
    if TCH:
        I(f'v_lshlrev_b32 v13, 10, v{V_LANE}')
        I(f'buffer_load_dword v60, v13, {sr4(S_RW)}, 0 offen')
        I(f'buffer_load_dword v61, v13, {sr4(S_RE)}, 0 offen')
        I(f'buffer_load_dword v62, v13, {sr4(S_TAB)}, 0 offen')
        I(f'buffer_load_dword v63, v13, {sr4(S_NTS)}, 0 offen')
    srd_off(S_EA, S_WSP, S_WSP + 1, '0x%x' % WS_TAB, KREP * 0x80000)
    if not F1:
        phase0a()
    I(f's_mov_b32 s{S_T}, -{NB}')
    I(f'v_mov_b32 v{X+1}, 4')
    BN, WD, RK = 28, 32, 36
    for k in range(4):
        I(f's_waitcnt vmcnt({(12 if ORDER == 0 else 15) + TCH - k})')
        I(f's_mov_b64 exec, {sp(S_MASK+2*k)}')
        if k == 3:
            I('s_cbranch_execz L_B1')
        I(f'v_mul_u32_u24 v{BN+k}, 21400, v{64+k}')
        I(f'v_lshrrev_b32 v{BN+k}, 20, v{BN+k}')
        I(f'v_mad_i32_i24 v{WD+k}, v{BN+k}, s{S_T}, v{64+k}')
        I(f'v_lshlrev_b32 v{BN+k}, 2, v{BN+k}')
        I(f'ds_add_rtn_u32 v{RK+k}, v{BN+k}, v{X+1} offset:{HIST}')
        I(f'v_lshlrev_b32 v{WD+k}, 26, v{WD+k}')
    L('L_B1')
    I('s_mov_b64 exec, -1')
    I(f'v_add_u32 v{X+1}, {NTI}, v{X}')
    stamp(3)
    I({0: 's_waitcnt lgkmcnt(0)', 1: 's_waitcnt vmcnt(1) lgkmcnt(0)', 2: 's_waitcnt vmcnt(9) lgkmcnt(0)'}[ORDER])
    I('s_barrier')
    stamp(4)
    if not F1:
        I(f'ds_read_b128 v[112:115], v{X+1}')
    I(f's_cmp_lg_u32 s{S_W}, 0')
    I('s_cbranch_scc1 L_NOSCAN')
    I(f'ds_read_b128 v[96:99], v{X} offset:{HIST}')
    I('s_waitcnt lgkmcnt(0)')
    for k in range(4):
        I(f'v_add_u32 v{108+k}, 4, v{96+k}')
        I(f'v_and_b32 v{108+k}, -8, v{108+k}')
    I('v_add_u32 v101, v108, v109')
    I('v_add_u32 v102, v101, v110')
    I('v_add_u32 v103, v102, v111')
    I('v_mov_b32 v104, v103')
    wave_scan(104)
    I(f'v_readlane_b32 s{S_T+4}, v104, 63')
    I('v_sub_u32 v104, v104, v103')
    I(f'v_mov_b32 v100, {MISC+8}')
    I(f'v_mov_b32 v105, s{S_T+4}')
    I('ds_write_b32 v100, v105')
    I('v_add_u32 v105, v104, v108')
    I('v_add_u32 v106, v104, v101')
    I('v_add_u32 v107, v104, v102')
    I(f'ds_write_b128 v{X}, v[104:107] offset:{HBASE}')
    for k in range(4):
        I(f'v_lshl_or_b32 v{108+k}, v{96+k}, 16, v{104+k}')
    I(f'ds_write_b128 v{X}, v[108:111] offset:{HIST}')
    L('L_NOSCAN')
    if F1:
        phase0a()
    I('s_waitcnt lgkmcnt(0)')
    if not F1:
        I(f'buffer_store_dwordx4 v[112:115], v{X}, {sr4(S_NTS)}, 0 offen' + SC)
    if T1:
        I(f's_mul_i32 s{S_T+4}, s3, {NB*128}')
        I(f'v_mov_b32 v60, s{S_T+4}')
        I(f'buffer_load_dword v61, v60, {sr4(S_OUT)}, 0 offen')
    I(f's_waitcnt vmcnt({6 - F1 + TCH + T1})')
    for k in range(4):
        I(f'v_lshl_or_b32 v{WD+k}, v{68+k}, 3, v{WD+k}')
    I('s_barrier')
    stamp(5)
    if F1:
        I(f'ds_read_b128 v[112:115], v{X+1}')
    for k in range(4):
        I(f's_mov_b64 exec, {sp(S_MASK+2*k)}')
        I(f'ds_read_b32 v{BN+k}, v{BN+k} offset:{HBASE}')
    if F1:
        I('s_mov_b64 exec, -1')
        I('s_waitcnt lgkmcnt(4)')
        I(f'buffer_store_dwordx4 v[112:115], v{X}, {sr4(S_NTS)}, 0 offen' + SC)
    I(f's_waitcnt vmcnt({1 + TCH + T1})')
    I(f'v_readfirstlane_b32 s{S_TAG}, v10')
    for k in range(4):
        I(f's_mov_b64 exec, {sp(S_MASK+2*k)}')
        if k == 3:
            I('s_cbranch_execz L_B2')
        I(f's_waitcnt lgkmcnt({3 - k + 2*k})')
        I(f'v_add_u32 v{RK+k}, v{BN+k}, v{RK+k}')
        I(f'v_add_u32 v{BN+k}, v{RK+k}, v{RK+k}')
        I(f'ds_write_b32 v{RK+k}, v{WD+k} offset:{STGW}')
        I(f'ds_write_b64 v{BN+k}, v[{72+2*k}:{73+2*k}] offset:{STGE}')
    L('L_B2')
    I('s_mov_b64 exec, -1')
    I(f'v_mov_b32 v13, {MISC+8}')
    I(f'ds_read_b32 v13, v13')
    I(f's_mov_b32 s{S_T}, 0x40000')
    L('L_TAGP')
    I(f's_cmp_lg_u32 s{S_TAG}, 0')
    I('s_cbranch_scc1 L_TAGD')
    I(f'v_mov_b32 v12, 0')
    I(f'global_load_dword v10, v12, {sp(S_DBG)} sc1')
    I('s_waitcnt vmcnt(0)')
    I(f'v_readfirstlane_b32 s{S_TAG}, v10')
    I(f's_sub_u32 s{S_T}, s{S_T}, 1')
    I('s_cbranch_scc1 L_END')
    I('s_branch L_TAGP')
    L('L_TAGD')
    I(f'v_add_u32 v{X+2}, 16384, v{X}')
    I(f'v_lshlrev_b32 v12, 3, v{V_LANE}')
    I(f's_mul_i32 s{S_TAG2}, s{S_TAG}, 0x9e3779b1')
    I(f's_and_b32 s{S_TAG2}, s{S_TAG2}, 0x{TAGM:x}')
    I('s_waitcnt lgkmcnt(0)')
    I(f'v_readfirstlane_b32 s{S_T}, v13')
    I('s_barrier')
    I(f's_add_u32 s{S_T}, s{S_T}, 12')
    I(f's_and_b32 s{S_RW+2}, s{S_T}, -16')
    I(f's_lshl_b32 s{S_RE+2}, s{S_RW+2}, 1')
    stamp(6)
    if opt('early', 0):
        I(f'ds_read_b64 v[92:93], v12 offset:{HIST}')
        I(f'ds_read_b64 v[94:95], v12 offset:{HIST+512}')
        I(f'v_lshlrev_b32 v60, 4, v{V_LANE}')
        I('s_waitcnt lgkmcnt(0)')
        for k in range(4):
            I(f'v_or_b32 v{120+2*k}, s{S_TAG2}, v{92+k}')
            I(f'v_mov_b32 v{121+2*k}, s{S_TAG}')
        I(f's_cmp_lg_u32 s{S_W}, 0')
        I('s_cbranch_scc1 L_EARLY')
        I(f'buffer_store_dwordx4 v[120:123], v60, {sr4(S_TAB)}, 0 offen' + SC)
        I(f'buffer_store_dwordx4 v[124:127], v60, {sr4(S_TAB)}, 0 offen offset:1024' + SC)
        L('L_EARLY')
    I(f'ds_read_b128 v[64:67], v{X} offset:{STGW}')
    I(f'ds_read_b128 v[68:71], v{X} offset:{STGE}')
    I(f'ds_read_b128 v[72:75], v{X} offset:{STGE+16384}')
    I(f'ds_read_b64 v[92:93], v12 offset:{HIST}')
    I(f'ds_read_b64 v[94:95], v12 offset:{HIST+512}')
    I('s_waitcnt lgkmcnt(4)')
    I(f'buffer_store_dwordx4 v[64:67], v{X}, {sr4(S_RW)}, 0 offen' + SC)
    I('s_waitcnt lgkmcnt(3)')
    I(f'buffer_store_dwordx4 v[68:71], v{X}, {sr4(S_RE)}, 0 offen' + SC)
    I('s_waitcnt lgkmcnt(2)')
    I(f'buffer_store_dwordx4 v[72:75], v{X+2}, {sr4(S_RE)}, 0 offen' + SC)
    I('s_waitcnt lgkmcnt(0)')
    for k in range(4):
        I(f'v_or_b32 v{120+2*k}, s{S_TAG2}, v{92+k}')
        I(f'v_mov_b32 v{121+2*k}, s{S_TAG}')
    PF1 = opt('pf1', 0)
    if PF1:
        nt_prefetch(12, 49 - PF1, PF1, 61)
    pre = opt('pre', 'xbc').replace('0', '')
    def piece(c):
        if c == 'x':
            zregs()
            zero_range(EXTRA, 16384, X + 2, X)
            fill_desca()
        elif c == 'b':
            phase0b()
        elif c == 'c':
            phase0c()
    for c in pre:
        piece(c)
    stamp(7)
    I(f'v_lshrrev_b32 v76, 3, v{V_LANE}')
    I(f's_lshl_b32 s{S_T}, s{S_W}, 15')
    I(f's_lshl_b32 s{S_T+1}, s3, 3')
    I(f's_add_u32 s{S_T}, s{S_T}, s{S_T+1}')
    I(f'v_lshlrev_b32 v76, 11, v76')
    I(f'v_add_u32 v76, s{S_T}, v76')
    I(f'v_add_u32 v77, 16384, v76')
    I(f'v_lshlrev_b32 v60, 4, v{V_LANE}')
    for r in range(2):
        I(f's_mov_b64 {sp(S_MASK+2*r)}, -1')
    I(f's_waitcnt vmcnt({1 if PF1 else 0})')
    stamp(8)
    I('s_barrier')
    stamp(9)
    I(f's_cmp_lg_u32 s{S_W}, {99 if opt("early", 0) else 0}')
    I('s_cbranch_scc1 L_POLL0')
    for k in range(KREP - 1, -1, -1):
        I(f's_mov_b32 s{S_T}, 0x{k*0x80000:x}')
        I(f'buffer_store_dwordx4 v[120:123], v60, {sr4(S_TAB)}, s{S_T} offen' + SC)
        I(f'buffer_store_dwordx4 v[124:127], v60, {sr4(S_TAB)}, s{S_T} offen offset:1024' + SC)
    L('L_POLL0')
    PF2 = opt('pf2', 0)
    if PF2:
        nt_prefetch(61, 49 - PF2, PF2, 63)
    EP = opt('ep', 0)
    for r in range(2 if EP else 0):
        I(f'buffer_load_dwordx2 {p(64+2*r)}, v{76+r}, {sr4(S_EA)}, 0 offen' + LSC)
    for c in 'xbc':
        if c not in pre:
            piece(c)
    fill_words()
    zregs()
    zero_range(LE, CNT - LE, X + 2, X)
    ptr_consts()
    I(f's_mov_b32 s{S_T}, 0x40000')
    I(f's_mov_b32 s{S_T+1}, 0x{TAGM:x}')
    if opt('ps', 0):
        I(f's_sleep {opt("ps", 0)}')
    if EP:
        I('s_branch L_POLLC')
    L('L_POLL')
    for r in range(2):
        I(f's_mov_b64 exec, {sp(S_MASK+2*r)}')
        I(f'buffer_load_dwordx2 {p(64+2*r)}, v{76+r}, {sr4(S_EA)}, 0 offen' + LSC)
    L('L_POLLC')
    for r in range(2):
        I(f's_waitcnt vmcnt({1-r})')
        I(f's_mov_b64 exec, {sp(S_MASK+2*r)}')
        I(f'v_xor_b32 v{V_TAB+r}, s{S_TAG2}, v{64+2*r}')
        I(f'v_xor_b32 v{65+2*r}, s{S_TAG}, v{65+2*r}')
        I(f'v_and_or_b32 v{65+2*r}, v{V_TAB+r}, s{S_T+1}, v{65+2*r}')
        I(f'v_cmp_ne_u32 {sp(S_MASK+2*r)}, 0, v{65+2*r}')
    I(f's_or_b64 {sp(S_T+2)}, {sp(S_MASK)}, {sp(S_MASK+2)}')
    I('s_cbranch_scc0 L_POLLED')
    I(f's_sub_u32 s{S_T}, s{S_T}, 1')
    I('s_cbranch_scc1 L_END')
    if opt('sleep', 1):
        I(f's_sleep {opt("sleep", 1)}')
    I('s_branch L_POLL')
    L('L_POLLED')
    I('s_mov_b64 exec, -1')
    stamp(10)
    def RB(s_): return 64 + 8 * (s_ >> 1)
    def MK(s_): return sp(S_MASK + 2 * s_)
    AD = X
    L('L_PASS')
    I(f'v_add_u32 v{X+10}, s{S_JB}, v{V_CB4}')
    I(f'v_add_u32 v{X+8}, s{S_JB}, v{V_J4}')
    SDW = 'src0_sel:DWORD src1_sel:WORD_1'
    for r in range(2):
        I(f'v_add_u32_sdwa v{X+r}, v{V_TAB+r}, v{X+10} dst_sel:DWORD dst_unused:UNUSED_PAD src0_sel:WORD_0 src1_sel:DWORD')
        I(f'v_cmp_lt_u32_sdwa {MK(2*r)}, v{X+8}, v{V_TAB+r} {SDW}')
        if r:
            I(f'v_add_u32 v{X+r}, {8*CAP*4}, v{X+r}')
        I(f'v_add_u32 v{X+2+r}, v{X+r}, v{X+r}')
        I(f's_mov_b64 exec, {MK(2*r)}')
        I(f'buffer_load_dwordx2 {p(RB(2*r)+4)}, v{X+r}, {sr4(S_DST)}, 0 offen' + LSC)
        I(f'buffer_load_dwordx4 {vr(RB(2*r),4)}, v{X+2+r}, {sr4(S_SRC)}, 0 offen' + LSC)
        I('s_mov_b64 exec, -1')
    I(f'v_add_u32 v{X+9}, s{S_WID}, v{X+8}')
    I(f'v_add_u32 v{X+10}, 4, v{X+8}')
    I(f's_cmp_eq_u32 s{S_WID}, 128')
    I(f's_cselect_b32 s{S_T}, 64, 0x10000')
    I(f'v_add_u32 v{X+8}, s{S_T}, v{X+8}')
    for r in range(2):
        I(f'v_cmp_lt_u32_sdwa {MK(4+2*r)}, v{X+8}, v{V_TAB+r} {SDW}')
        I(f'v_cmp_lt_u32_sdwa {MK(2*r+1)}, v{X+10}, v{V_TAB+r} {SDW}')
    I(f'v_add_u32 v{X+8}, 4, v{X+8}')
    for r in range(2):
        I(f's_mov_b64 exec, {MK(4+2*r)}')
        I(f'buffer_load_dwordx2 {p(RB(4+2*r)+4)}, v{X+r}, {sr4(S_DST)}, 0 offen offset:64' + LSC)
        I(f'buffer_load_dwordx4 {vr(RB(4+2*r),4)}, v{X+2+r}, {sr4(S_SRC)}, 0 offen offset:128' + LSC)
    I('s_mov_b64 exec, -1')
    for r in range(2):
        I(f'v_cmp_lt_u32_sdwa {MK(5+2*r)}, v{X+8}, v{V_TAB+r} {SDW}')
    I(f'v_cmp_lt_u32_sdwa vcc, v{X+9}, v{V_TAB} {SDW}')
    I(f'v_cmp_lt_u32_sdwa {sp(S_T)}, v{X+9}, v{V_TAB+1} {SDW}')
    I(f'v_mov_b32 v{X+8}, 4')
    I(f's_or_b64 vcc, vcc, {sp(S_T)}')
    I(f's_cbranch_scc0 L_NOMORE')
    I(f'v_mov_b32 v{X+9}, {MISC}')
    I(f'ds_write_b32 v{X+9}, v{X+8}')
    L('L_NOMORE')
    stamp(11)
    for s_ in range(8):
        if s_ >= 4:
            I(f's_mov_b64 exec, {MK(s_)}')
            I(f's_cbranch_execz L_C{s_}')
        if s_ % 2 == 0:
            I(f's_waitcnt vmcnt({7 - s_})')
        if s_ < 4:
            I(f's_mov_b64 exec, {MK(s_)}')
        I(f'v_lshrrev_b32 v{AD+s_}, 24, v{RB(s_)+4+(s_&1)}')
        if opt('safe', 0):
            I(f'v_and_b32 v{AD+s_}, 0xfc, v{AD+s_}')
        I(f'ds_add_rtn_u32 v{RB(s_)+6+(s_&1)}, v{AD+s_}, v{X+8} offset:{CNT}')
        if s_ >= 4:
            L(f'L_C{s_}')
    I('s_mov_b64 exec, -1')
    I(f'v_lshlrev_b32 v{X+8}, 2, v{V_LANE}')
    I(f'v_mov_b32 v{X+9}, {MISC}')
    I(f's_mov_b32 s{S_T+2}, 0x1fff8')
    I('s_waitcnt lgkmcnt(0)')
    I('s_barrier')
    stamp(12)
    if NPFM in (2, 3, 4):
        nt_prefetch(60, dst=62)
        I(f's_mov_b32 s{S_T+2}, 0x1fff8')
    NG, GS, MI = X + 10, X + 11, X + 12
    I(f'ds_read_b32 v{NG}, v{X+8} offset:{CNT}')
    I(f'ds_read_b32 v{X+9}, v{X+9}')
    I('s_waitcnt lgkmcnt(1)')
    I(f'v_add_u32 v{NG}, 28, v{NG}')
    I(f'v_and_b32 v{NG}, 0xffffffe0, v{NG}')
    I(f'v_mov_b32 v{GS}, v{NG}')
    wave_scan(GS)
    I(f'v_readlane_b32 s{S_T}, v{GS}, 63')
    I(f'v_sub_u32 v{GS}, v{GS}, v{NG}')
    I(f'ds_write_b32 v{X+8}, v{GS} offset:{BASET}')
    for s_ in range(8):
        I(f's_mov_b64 exec, {MK(s_)}')
        I(f'ds_read_b32 v{AD+s_}, v{AD+s_} offset:{BASET}')
    I('s_mov_b64 exec, -1')
    I(f'v_readfirstlane_b32 s{S_MORE}, v{X+9}')
    out.insert(len(out) - 1, '    s_waitcnt lgkmcnt(9)')
    I(f's_lshr_b32 s{S_T}, s{S_T}, 5')
    I(f's_cmp_eq_u32 s{S_WID}, 128')
    I(f's_cselect_b32 s{S_T+1}, {MAXG}, -1')
    I(f's_cmp_gt_u32 s{S_T}, s{S_T+1}')
    I('s_cbranch_scc1 L_OVERFLOW')
    SB_, SR_, SG0 = S_T + 4, S_T + 5, S_T + 6
    I(f's_add_u32 s{S_T}, s{S_T}, 3')
    I(f's_lshr_b32 s{S_T}, s{S_T}, 2')
    I(f's_lshr_b32 s{SB_}, s{S_T}, 4')
    I(f's_and_b32 s{SR_}, s{S_T}, 15')
    I(f's_add_u32 s{S_T+1}, s{SB_}, 1')
    I(f'v_cvt_f32_u32 v{MI}, s{S_T+1}')
    I(f'v_cvt_f32_u32 v{MI+1}, s{SB_}')
    I(f'v_rcp_f32 v{MI}, v{MI}')
    I(f'v_rcp_f32 v{MI+1}, v{MI+1}')
    I(f's_mul_i32 s{SG0}, s{SR_}, s{S_T+1}')
    I(f's_lshl_b32 s{SG0}, s{SG0}, 2')
    I(f'v_lshrrev_b32 v{GS}, 5, v{GS}')
    I(f'v_mul_f32 v{MI}, 0x47800000, v{MI}')
    I(f'v_mul_f32 v{MI+1}, 0x47800000, v{MI+1}')
    I(f'v_lshrrev_b32 v{NG}, 5, v{NG}')
    I(f'v_cvt_u32_f32 v{MI}, v{MI}')
    I(f'v_cvt_u32_f32 v{MI+1}, v{MI+1}')
    I(f's_cmp_lt_u32 s{S_W}, s{SR_}')
    I(f's_cselect_b32 s{S_L}, s{S_T+1}, s{SB_}')
    I(f'v_add_u32 v{MI}, 2, v{MI}')
    I(f'v_add_u32 v{MI+1}, 2, v{MI+1}')
    I(f's_min_u32 s{S_T}, s{S_W}, s{SR_}')
    I(f's_mul_i32 s{S_T+3}, s{S_W}, s{SB_}')
    I(f's_add_u32 s{S_T+3}, s{S_T+3}, s{S_T}')
    I(f's_sub_u32 s{S_T+1}, 0, s{S_T+1}')
    I(f's_sub_u32 s{SB_}, 0, s{SB_}')
    I(f's_lshl_b32 s{SR_}, s{SR_}, 2')
    D0, D1, D2, D3, NR = 96, 97, 98, 99, 100
    I(f'v_lshlrev_b32 v{NR}, 8, v{V_LANE}')
    I(f'v_add_u32 v{NR+1}, {ACCN}, v{NR}')
    I(f's_mov_b32 s{S_T}, s{S_W}')
    L('L_DLOOP')
    I(f'v_cmp_lt_u32 vcc, s{S_T}, v{NG}')
    I('s_and_b64 exec, exec, vcc')
    I('s_cbranch_execz L_DEND')
    I(f'v_add_u32 v{D0}, s{S_T}, v{GS}')
    I(f'v_subrev_u32 v{D1}, s{SG0}, v{D0}')
    I(f'v_cmp_gt_u32 vcc, s{SG0}, v{D0}')
    I(f'v_mul_u32_u24 v{D2}, v{D0}, v{MI}')
    I(f'v_mul_u32_u24 v{D3}, v{D1}, v{MI+1}')
    I(f'v_lshrrev_b32 v{D2}, 16, v{D2}')
    I(f'v_lshrrev_b32 v{D3}, 16, v{D3}')
    I(f'v_mad_i32_i24 v{D0}, v{D2}, s{S_T+1}, v{D0}')
    I(f'v_mad_i32_i24 v{D1}, v{D3}, s{SB_}, v{D1}')
    I(f'v_add_u32 v{D3}, s{SR_}, v{D3}')
    I(f'v_cndmask_b32 v{D0}, v{D1}, v{D0}, vcc')
    I(f'v_cndmask_b32 v{D2}, v{D3}, v{D2}, vcc')
    I(f'v_cmp_le_u32 vcc, s{S_T}, v{D0}')
    I(f'v_lshl_add_u32 v{D0}, v{D0}, 6, v{D2}')
    I(f'v_lshlrev_b32 v{D1}, 8, v{D2}')
    I(f'v_lshlrev_b32 v{D0}, 2, v{D0}')
    I(f'v_add_u32 v{D1}, {EXTRA}, v{D1}')
    I(f'v_add_u32 v{D3}, {DESCA}, v{D0}')
    I(f'v_cndmask_b32 v{D1}, v{D1}, v{NR+1}, vcc')
    I(f'ds_write_b32 v{D0}, v{NR} offset:{DESCP}')
    I(f'ds_write_b32 v{D3}, v{D1}')
    I(f's_add_u32 s{S_T+7}, s{S_T}, 1')
    I(f'v_cmp_eq_u32 vcc, s{S_T+7}, v{NG}')
    I(f's_and_saveexec_b64 {sp(S_EX)}, vcc')
    I(f'ds_write_b32 v{X+8}, v{D2} offset:{NINFO+256}')
    I(f's_mov_b64 exec, {sp(S_EX)}')
    I(f's_cmp_lg_u32 s{S_T}, 0')
    I('s_cbranch_scc1 L_DNF')
    I(f'ds_write_b32 v{X+8}, v{D2} offset:{NINFO}')
    L('L_DNF')
    I(f's_add_u32 s{S_T}, s{S_T}, 16')
    I('s_branch L_DLOOP')
    L('L_DEND')
    I('s_mov_b64 exec, -1')
    I(f's_lshl_b32 s{S_T}, s{S_T+3}, 7')
    I(f's_lshl_b32 s{S_T+1}, s{S_L}, 5')
    I(f'v_mov_b32 v{D0}, s{S_T}')
    I(f'v_mad_u32_u24 v{V_PS0}, v{V_PS1}, s{S_T+1}, v{D0}')
    I(f'v_add_u32 v{D0}, v{D0}, v{D0}')
    I(f'v_add_u32 v{V_PS1}, s{S_T+1}, v{V_PS0}')
    I(f'v_add_u32 v{V_PE}, v{V_PE}, v{D0}')
    I(f's_lshl_b32 s{S_T+1}, s{S_L}, 6')
    I(f'v_mad_u32_u24 v{V_PE}, v{V_VAP}, s{S_T+1}, v{V_PE}')
    if opt('safe', 0):
        I(f's_min_u32 s{S_L}, s{S_L}, 9')
        I(f's_mov_b32 s{S_MORE}, 0')
    I(f's_mov_b32 s{S_CNT}, s{S_L}')
    I('s_waitcnt lgkmcnt(0)')
    I(f's_waitcnt vmcnt({NPF})')
    for s_ in range(8):
        wd, rk, ee = RB(s_) + 4 + (s_ & 1), RB(s_) + 6 + (s_ & 1), RB(s_) + 2 * (s_ & 1)
        I(f's_mov_b64 exec, {MK(s_)}')
        if s_ >= 4:
            I(f's_cbranch_execz L_P{s_}')
        I(f'v_add_u32 v{AD+s_}, v{AD+s_}, v{rk}')
        I(f'v_and_b32 v{wd}, s{S_T+2}, v{wd}')
        I(f'v_add_u32 v{rk}, v{AD+s_}, v{AD+s_}')
        I(f'ds_write_b32 v{AD+s_}, v{wd} offset:{LS}')
        I(f'ds_write_b64 v{rk}, {p(ee)} offset:{LE}')
        if s_ >= 4:
            L(f'L_P{s_}')
    I('s_mov_b64 exec, -1')
    stamp(13)
    I('s_waitcnt lgkmcnt(0)')
    I('s_barrier')
    stamp(14)
    I(f's_cmp_eq_u32 s{S_L}, 0')
    I('s_cbranch_scc1 L_FOLD')
    lg = Lg()
    FP = opt('fp', 0)
    if FP:
        for lvl in (3, 2, 1):
            I(f's_cmp_lt_u32 s{S_W}, {4 * (4 - lvl)}')
            I(f's_cbranch_scc0 L_FP{lvl}')
            I(f's_setprio {lvl}')
            I('s_branch L_FPD')
            L(f'L_FP{lvl}')
        L('L_FPD')
    s_reads(lg, 0)
    lg.op('dP', f'ds_read_b64 {p(V_VAP)}, v{V_PD}')
    lg.op('dA', f'ds_read_b64 {p(V_VAA[0])}, v{V_PD} offset:{DESCA-DESCP}')
    lg.op('e', f'ds_read_b64 {p(A5)}, v{V_PE}')
    lg.need('S0', 'S1', 'S2', 'S3')
    s_safe()
    STG_ = [int(x) for x in opt('stag', '0,0,0').split(',')]
    for gi, d in enumerate(STG_):
        if d:
            I(f's_cmp_ge_u32 s{S_W}, {4 * (gi + 1)}')
            I(f's_cbranch_scc0 L_ST{gi}')
            I(f's_sleep {d}')
            L(f'L_ST{gi}')
    for n in range(2):
        for i in range(16):
            I(gload(n, i))
        if n == 0 and FP == 2:
            I('s_setprio 0')
    s_reads(lg, 1)
    I(f'v_mov_b32 v{V_C8P}, v{V_CH8}')
    I(f'v_mov_b32 v{V_C8P+1}, v{V_CH8}')
    I(f'v_mov_b32 v{V_CPP}, v{V_CHP}')
    I(f'v_mov_b32 v{V_CPP+1}, v{V_CHP}')
    if M8:
        I(f'v_mov_b32 v{V_SCP}, 0x{f2u(2.0**KH):x}')
        I(f'v_mov_b32 v{V_SCP+1}, 0x{f2u(2.0**KH):x}')
    I(f's_mov_b32 s{S_BP0}, 64')
    I(f's_mov_b32 s{S_BP0+1}, 64')
    I(f's_mov_b32 s{S_BP1}, 128')
    I(f's_mov_b32 s{S_BP1+1}, 512')
    lg.need('dP', 'dA')
    va_add(V_VAP, V_VAA[0])
    lg.op('P0a', f'ds_read_b32 v{B5[0]+2}, v{V_VAP}')
    lg.op('P0b', f'ds_read_b32 v{B5[0]+3}, v{V_VAP+1}')
    lg.op('P1a', f'ds_read_b32 v{B5[1]+2}, v{V_VAP} offset:4')
    lg.op('P1b', f'ds_read_b32 v{B5[1]+3}, v{V_VAP+1} offset:4')
    I(f's_cmp_eq_u32 s{S_CNT}, 1')
    I(f's_cselect_b64 {sp(S_LDX)}, 0, {LDXV}')
    I('s_waitcnt lgkmcnt(0)')
    lg.q = []
    if opt('prio', 3):
        I('s_setprio 3')
    stamp(15)
    rstamp(28)
    half(lg, 0, 0, 0, False)
    if PROF == 4:
        stamp(19)
        lg.q = []
    state0 = list(lg.q)
    def step(par, uo):
        prio(f'm{par}', 1)
        half(lg, 1, par, uo)
        if PROF == 4:
            I('s_memtime s[98:99]')
            I(f's_sub_u32 s92, s{S_L}, s{S_CNT}')
            I(f's_add_u32 m0, s92, 20')
            I('s_waitcnt lgkmcnt(0)')
            I(f'v_writelane_b32 v{V_PROF}, s98, m0')
        I(f's_sub_u32 s{S_CNT}, s{S_CNT}, 1')
        I(f's_cmp_eq_u32 s{S_CNT}, 0')
        I(f's_cbranch_scc1 L_FIN{par}')
        I(f's_cmp_eq_u32 s{S_CNT}, 1')
        I(f's_cselect_b64 {sp(S_LDX)}, 0, {LDXV}')
        prio(f'{par}')
        half(lg, 0, par ^ 1, uo + 1)
    def loop_body():
        step(0, 0)
        step(1, 1)
        I(f'v_lshl_add_u64 {p(V_PS0)}, {p(V_PS0)}, 0, {sp(S_BP0)}')
        I(f'v_lshl_add_u64 {p(V_PE)}, {p(V_PE)}, 0, {sp(S_BP1)}')
        I('s_branch L_LOOP')
    mark = len(out)
    loop_body()
    del out[mark:]
    qb = list(lg.q)
    n = min(len(qb), len(state0))
    assert PROF == 4 or qb[len(qb)-n:] == state0[len(state0)-n:], (state0, qb)
    lg.q = list(qb if len(qb) >= len(state0) else state0)
    e('.p2align 3')
    L('L_LOOP')
    mark = len(out)
    loop_body()
    drop = opt('drop', '')
    if drop:
        body = out[mark:]
        keep = []
        for l in body:
            t = l.strip()
            if 'v' in drop and (t.startswith('buffer_load') or t.startswith('s_mov_b64 exec') or 'vmcnt' in t):
                continue
            if 'l' in drop and (t.startswith('ds_') or 'lgkmcnt' in t):
                continue
            if 'm' in drop and t.startswith('v_mfma'):
                continue
            if 'n' in drop and t.startswith('s_nop'):
                continue
            keep.append(l)
        out[mark:] = keep
    assert lg.q == qb, (lg.q, qb)
    print('loop entry queue', state0, 'back edge queue', qb, file=sys.stderr)
    for pr in range(2):
        L(f'L_FIN{pr}')
        if M8:
            I(f'v_pk_mul_f32 {p(V_T01N)}, {p(V_T01N)}, {p(V_T23D)}')
            I(f'v_pk_mul_f32 {p(V_T23D)}, {p(V_T01D)}, {p(V_T23D)}')
            I(f'v_pk_fma_f32 {p(V_T01N)}, {p(V_T23N)}, {p(V_T01D)}, {p(V_T01N)}')
            I(f'v_rcp_f32 v{V_T23D}, v{V_T23D}')
            I(f'v_rcp_f32 v{V_T23D+1}, v{V_T23D+1}')
            I('s_waitcnt lgkmcnt(0)')
            I(f'v_pk_fma_f32 {p(V_MB)}, {p(V_T01N)}, {p(V_T23D)}, {p(V_MB)}')
        else:
            for r_ in (V_T01D, V_T01D + 1, V_T23D, V_T23D + 1):
                I(f'v_rcp_f32 v{r_}, v{r_}')
            I('s_waitcnt lgkmcnt(0)')
            I(f'v_pk_fma_f32 {p(V_MB)}, {p(V_T01N)}, {p(V_T01D)}, {p(V_MB)}')
            I(f'v_pk_fma_f32 {p(V_MB)}, {p(V_T23N)}, {p(V_T23D)}, {p(V_MB)}')
        acc_write(Lg(), V_VAA[pr])
        if pr == 0:
            I('s_branch L_FOLD')
    L('L_FOLD')
    stamp(16)
    I(f'v_lshrrev_b32 v{X}, 4, v{V_TID}')
    I(f'v_and_b32 v{X+1}, 15, v{V_TID}')
    I(f'v_lshlrev_b32 v{X+6}, 2, v{X+1}')
    I(f'v_lshlrev_b32 v{X+1}, 4, v{X+1}')
    I(f'v_lshl_add_u32 v{X+2}, v{X}, 8, v{X+1}')
    I(f'v_add_u32 v{X+2}, {ACCN}, v{X+2}')
    I(f'v_add_u32 v{X+1}, {EXTRA}, v{X+1}')
    I(f'v_lshlrev_b32 v{X+3}, 2, v{X}')
    I(f's_mul_i32 s{S_T+4}, s3, {NB*128}')
    I(f'v_lshl_add_u32 v{X+6}, v{X}, 7, v{X+6}')
    I(f'v_add_u32 v{X+6}, s{S_T+4}, v{X+6}')
    I(f'v_mov_b32 v{X+7}, 0')
    I(f'ds_read_b32 v{X+4}, v{X+3} offset:{NINFO}')
    I(f'ds_read_b32 v{X+5}, v{X+3} offset:{NINFO+256}')
    I(f's_mov_b32 s{S_T+2}, 0x{f2u(2.0**-(SV+KH)):x}')
    I(f's_mov_b32 s{S_T+3}, 0x{f2u(-LOG2E * 2.0**-(SV+KH)):x}')
    I(f'v_cmp_gt_u32 vcc, {NB*16}, v{V_TID}')
    I('s_waitcnt vmcnt(0) lgkmcnt(0)')
    I('s_barrier')
    stamp(17)
    rstamp(29)
    if PROF:
        I(f'v_writelane_b32 v{V_PROF}, s{S_L}, 27')
    I(f's_and_saveexec_b64 {sp(S_EX)}, vcc')
    I('s_cbranch_execz L_FDONE')
    I(f'ds_read_b128 v[64:67], v{X+2}')
    I(f's_mov_b64 {sp(S_T)}, exec')
    L('L_FLOOP')
    I(f'v_cmp_lt_u32 vcc, v{X+4}, v{X+5}')
    I('s_and_b64 exec, exec, vcc')
    I('s_cbranch_execz L_FLEND')
    I(f'v_add_u32 v{X+4}, 1, v{X+4}')
    I(f'v_lshl_add_u32 v{X+7}, v{X+4}, 8, v{X+1}')
    I(f'ds_read_b128 v[72:75], v{X+7}')
    I('s_waitcnt lgkmcnt(0)')
    for k in range(4):
        I(f'v_add_f32 v{64+k}, v{64+k}, v{72+k}')
    I('s_branch L_FLOOP')
    L('L_FLEND')
    I(f's_mov_b64 exec, {sp(S_T)}')
    I('s_waitcnt lgkmcnt(0)')
    I(f's_cmp_lg_u32 s{S_MORE}, 0')
    I('s_cbranch_scc1 L_WB')
    for k in range(4):
        I(f'v_mul_f32 v{72+k}, s{S_T+3}, v{64+k}')
    for k in range(4):
        I(f'v_exp_f32 v{72+k}, v{72+k}')
    for k in range(4):
        I(f'v_mul_f32 v{64+k}, s{S_T+2}, v{64+k}')
    for k in range(4):
        I(f'v_add_f32 v{72+k}, 1.0, v{72+k}')
    for k in range(4):
        I(f'v_rcp_f32 v{72+k}, v{72+k}')
    I('s_nop 0')
    for k in range(4):
        I(f'v_mul_f32 v{64+k}, v{64+k}, v{72+k}')
    I('v_cvt_pk_bf16_f32 v80, v64, v66')
    I('v_cvt_pk_bf16_f32 v81, v65, v67')
    I(f'buffer_store_dword v80, v{X+6}, {sr4(S_OUT)}, 0 offen' + OSC)
    I(f'buffer_store_dword v81, v{X+6}, {sr4(S_OUT)}, 0 offen offset:64' + OSC)
    stamp(18)
    prof_store()
    diag_end()
    I('s_endpgm')
    L('L_WB')
    I(f'ds_write_b128 v{X+2}, v[64:67]')
    L('L_FDONE')
    I('s_mov_b64 exec, -1')
    I(f's_cmp_eq_u32 s{S_MORE}, 0')
    I('s_cbranch_scc1 L_QUIT')
    I(f's_add_u32 s{S_JB}, s{S_JB}, s{S_WID}')
    I('s_branch L_REFILL')
    L('L_OVERFLOW')
    I(f's_mov_b32 s{S_WID}, 64')
    L('L_REFILL')
    I('s_waitcnt vmcnt(0) lgkmcnt(0)')
    I('s_barrier')
    fill_zero()
    fill_words()
    ptr_consts()
    I('s_waitcnt lgkmcnt(0)')
    I('s_barrier')
    I('s_branch L_PASS')
    L('L_QUIT')
    prof_store()
    L('L_END')
    I('s_endpgm')

hdr = open('standalone__edge_featured_mpnn_egc__graph.s.ref').read().split('\n')
for line in hdr:
    if line.startswith('; Override'):
        break
    e(line)
e(f'; @launch grid=({NWG},1,1) block=(1024,1,1) lds={LDS_BYTES}')
e('.amdgcn_target "amdgcn-amd-amdhsa--gfx950"')
e('.text')
gen()
e('.section .rodata,"a"')
e('.p2align 6')
e(f'.amdhsa_kernel {KNAME}')
e('  .amdhsa_next_free_vgpr 128')
e('  .amdhsa_next_free_sgpr 102')
e('  .amdhsa_accum_offset 128')
e('  .amdhsa_group_segment_fixed_size 0')
e('  .amdhsa_kernarg_size 80')
e('  .amdhsa_user_sgpr_count 2')
e('  .amdhsa_user_sgpr_kernarg_segment_ptr 1')
e('  .amdhsa_system_sgpr_workgroup_id_x 1')
e('  .amdhsa_float_denorm_mode_32 3')
e('.end_amdhsa_kernel')
open(sys.argv[1], 'w').write('\n'.join(x for x in out if x is not None) + '\n')
```

```python
import sys, struct

OPT = dict(a.split('=') for a in sys.argv[2:] if '=' in a)
def opt(name, default):
    return type(default)(OPT.get(name, default))

KNAME = 'standalone__edge_featured_mpnn_egc__graph_kernel'
N_NODES = 12500
E_EDGES = 800000
NB = 49
NWG = 256
CH = 3136
WS_RW = 0
WS_RE = 0x00400000
CAP = CH + 256
WS_TAB = 0x00B00000
WS_NT = 0x00C00000
WS_PROF = 0x01000000
M8 = opt('m8', 0)
if M8:
    KH, KEXP, SV = 13, 26, 0
else:
    KH, KEXP, SV = 31, 31, 30
LOG2E = 1.4426950408889634
SC = opt('sc', 'sc1')
SC = (' ' + SC.replace('+', ' ')) if SC != 'none' else ''
LSC = opt('lsc', 'sc1')
LSC = (' ' + LSC.replace('+', ' ')) if LSC != 'none' else ''
GSC = opt('gsc', 'sc1')
GSC = (' ' + GSC.replace('+', ' ')) if GSC != 'none' else ''
ELD = opt('eld', 'none')
ELD = (' ' + ELD.replace('+', ' ')) if ELD != 'none' else ''

def f2u(x):
    return struct.unpack('<I', struct.pack('<f', x))[0]

out = []
def e(s=''):
    out.append(s)
def I(s):
    out.append('    ' + s)
def L(name):
    out.append(name + ':')
def vr(a, n):
    return f'v[{a}:{a+n-1}]' if n > 1 else f'v{a}'
def sr4(a):
    return f's[{a}:{a+3}]'
def sp(a):
    return f's[{a}:{a+1}]'
def p(r):
    return f'v[{r}:{r+1}]'

def srd(d, lo, hi, nrec):
    I(f's_mov_b32 s{d}, s{lo}')
    I(f's_mov_b32 s{d+1}, s{hi}')
    I(f's_mov_b32 s{d+2}, {nrec}')
    I(f's_mov_b32 s{d+3}, 0x00020000')

def srd_off(d, lo, hi, off, nrec):
    I(f's_add_u32 s{d}, s{lo}, {off}')
    I(f's_addc_u32 s{d+1}, s{hi}, 0')
    I(f's_mov_b32 s{d+2}, {nrec}')
    I(f's_mov_b32 s{d+3}, 0x00020000')

def wave_scan(v):
    for sh in (1, 2, 4, 8):
        I('s_nop 1')
        I(f'v_add_u32_dpp v{v}, v{v}, v{v} row_shr:{sh} row_mask:0xf bank_mask:0xf')
    I('s_nop 1')
    I(f'v_add_u32_dpp v{v}, v{v}, v{v} row_bcast:15 row_mask:0xa bank_mask:0xf')
    I('s_nop 1')
    I(f'v_add_u32_dpp v{v}, v{v}, v{v} row_bcast:31 row_mask:0xc bank_mask:0xf')
    I('s_nop 1')

LS = 0
ZR = 18688
LE = 18688
CNT = 56064
MISC = 56320
BASET = 56576
NINFO = 56832
HIST = 57344
HBASE = 58368
DESCP = 59392
EXTRA = 67840
DESCA = 84224
PT = 86784
ACCN = 99328
WRAW = 111872
WG_, WV_, WU_ = WRAW, WRAW + 17408, WRAW + 25600
XOWN = WRAW + 33792
LDS_BYTES = XOWN + 8192
STGW = 0
STGE = CAP * 4
NTI = EXTRA
MAXG = 576
assert STGE + CAP * 8 <= CNT

V_TID, V_LANE = 0, 1
V_MA, V_MB = 2, 4
V_VAA = (6, 8)
V_VAP = 10
V_PS0, V_PS1, V_PE, V_PD, V_CH8, V_CHP = 12, 13, 14, 15, 16, 17
V_PROF = 18
V_TAB = 20
V_J4, V_CB4 = 24, 25
V_X = 26
V_T01D, V_T01N, V_T23D, V_T23N = 40, 42, 44, 46
B5 = (48, 52)
A5 = 56
V_TT = (60, 62)
G = (64, 80)
Z = 96
S = 112

S_XS, S_WS, S_DST, S_SRC, S_EA, S_RW, S_RE, S_TAB, S_NTS, S_NTG, S_OUT = 12, 16, 20, 24, 28, 32, 36, 40, 44, 48, 52
S_MASK = 56
S_W, S_L, S_CNT, S_JB, S_WID, S_MORE = 72, 73, 74, 75, 76, 77
S_C = 78
S_EX = 80
S_LDX = 82
S_T = 84
S_WSP = 94
S_DBG = 96
S_TAG, S_TAG2 = 100, 101
TAGM = 0xC003C003
TAGL = MISC + 64

NT2 = 2 if opt('touch', 0) else 0
LDXV = 0 if opt('noload', 0) else -1
NPFM = opt('npf', 4)
NPF = {0: 0, 1: 7, 2: 7, 3: 2, 4: 1, 5: 1}[NPFM]
NPF1 = NPF if NPFM in (1, 5) else 0
WSB = opt('wsb', 0) << 20
TCH = 4 if opt('touch', 0) else 0
T1 = opt('t1', 0)
OSC = opt('osc', 'nt')
OSC = (' ' + OSC.replace('+', ' ')) if OSC != 'none' else ''
KREP = opt('krep', 1)
assert KREP == 1
PROF = opt('prof', 0)
DIAG = opt('diag', -1)
def diag_end():
    if DIAG < 0:
        return
    I('s_memrealtime s[98:99]')
    I('s_waitcnt lgkmcnt(0)')
    I('v_readlane_b32 s92, v18, 1')
    I('v_readlane_b32 s93, v18, 0')
    I('s_nop 3')
    I('s_sub_u32 s92, s92, s93')
    I('s_lshl_b32 s92, s92, 2')
    I('s_mov_b32 s93, s98')
    lbl = f'L_DG{len(out)}'
    L(lbl)
    I('s_memrealtime s[98:99]')
    I('s_waitcnt lgkmcnt(0)')
    I('s_sub_u32 s98, s98, s93')
    I('s_cmp_lt_u32 s98, s92')
    I(f's_cbranch_scc1 {lbl}')
def stamp(i):
    if DIAG >= 0 and i in (0, DIAG):
        I('s_memrealtime s[98:99]')
        I('s_waitcnt lgkmcnt(0)')
        if i == 0:
            I('v_writelane_b32 v18, s98, 0')
        if i == DIAG:
            I('v_writelane_b32 v18, s98, 1')
    if not PROF:
        return
    I('s_memtime s[98:99]')
    I('s_waitcnt lgkmcnt(0)')
    I(f'v_writelane_b32 v{V_PROF}, s98, {i}')
def rstamp(i):
    if not PROF:
        return
    I('s_memrealtime s[98:99]')
    I('s_waitcnt lgkmcnt(0)')
    I(f'v_writelane_b32 v{V_PROF}, s98, {i}')
def prof_store():
    if not PROF:
        return
    rstamp(31)
    if PROF == 3:
        I(f's_lshl_b32 s98, s2, 4')
        I(f's_add_u32 s98, s98, s{S_W}')
        I(f's_cmp_lg_u32 s98, {opt("pwave", 80)}')
        I('s_cbranch_scc1 L_END')
        I('s_mov_b64 exec, -1')
        I(f'v_readlane_b32 s98, v{V_PROF}, 0')
        I(f'v_readlane_b32 s99, v{V_PROF}, 30')
        I(f'v_readlane_b32 s{S_T}, v{V_PROF}, 31')
        I('s_nop 3')
        I(f's_sub_u32 s{S_T}, s{S_T}, s99')
        I(f's_add_u32 s{S_T}, s{S_T}, s98')
        I(f'v_writelane_b32 v{V_PROF}, s{S_T}, 9')
        I(f'v_subrev_u32 v{V_PROF}, s98, v{V_PROF}')
        I(f'v_mbcnt_lo_u32_b32 v{V_PROF+1}, -1, 0')
        I(f'v_lshlrev_b32 v{V_PROF+1}, 2, v{V_PROF+1}')
        I(f'v_add_u32 v{V_PROF+1}, -8, v{V_PROF+1}')
        I('s_mov_b64 exec, 0x3fff8')
        I(f'global_store_dword v{V_PROF+1}, v{V_PROF}, {sp(S_DBG)}')
        return
    I('s_mov_b64 exec, 0xffffffff')
    I(f's_add_u32 s{S_T}, s{S_WSP}, 0x{WS_PROF:x}')
    I(f's_addc_u32 s{S_T+1}, s{S_WSP+1}, 0')
    I(f'v_mbcnt_lo_u32_b32 v{V_PROF+1}, -1, 0')
    I(f'v_lshlrev_b32 v{V_PROF+1}, 2, v{V_PROF+1}')
    I(f's_lshl_b32 s98, s2, 4')
    I(f's_add_u32 s98, s98, s{S_W}')
    I(f's_lshl_b32 s98, s98, 7')
    I(f'v_add_u32 v{V_PROF+1}, s98, v{V_PROF+1}')
    I(f'global_store_dword v{V_PROF+1}, v{V_PROF}, {sp(S_T)}')

class Lg:
    def __init__(self):
        self.q = []
    def op(self, tag, text):
        I(text)
        self.q.append(tag)
    def need(self, *tags):
        idx = -1
        for t in tags:
            for i in range(len(self.q) - 1, -1, -1):
                if self.q[i] == t:
                    idx = max(idx, i)
                    break
        if idx < 0:
            return
        n = len(self.q) - 1 - idx
        assert n <= 15, (tags, n)
        I(f's_waitcnt lgkmcnt({n})')
        self.q = self.q[idx + 1:]

X = V_X

def zero_range(a, nbytes, zr, ad):
    k = 0
    base = a if a + nbytes <= 65536 + 16384 and a < 65536 - 3 * 16384 else None
    off = 0
    areg = ad
    if a + ((nbytes - 1) // 16384) * 16384 > 65535:
        I(f'v_add_u32 v{X+1}, {a}, v{ad}')
        areg = X + 1
        a0 = 0
    else:
        a0 = a
    while off < nbytes:
        n = min(16384, nbytes - off)
        if n < 16384:
            I(f'v_cmp_gt_u32 vcc, {n // 16}, v{V_TID}')
            I(f's_and_saveexec_b64 {sp(S_EX)}, vcc')
        I(f'ds_write_b128 v{areg}, v[{zr}:{zr+3}] offset:{a0 + off}')
        if n < 16384:
            I(f's_mov_b64 exec, {sp(S_EX)}')
        off += n

def zregs():
    I(f'v_lshlrev_b32 v{X}, 4, v{V_TID}')
    for k in range(4):
        I(f'v_mov_b32 v{X+2+k}, 0')

def fill_desca():
    I(f'v_and_b32 v{X+6}, 15, v{V_TID}')
    I(f'v_lshlrev_b32 v{X+6}, 10, v{X+6}')
    I(f'v_add_u32 v{X+6}, {EXTRA}, v{X+6}')
    for k in range(1, 4):
        I(f'v_add_u32 v{X+6+k}, {256*k}, v{X+6}')
    I(f'v_add_u32 v{X+1}, {DESCA}, v{X}')
    I(f'v_cmp_gt_u32 vcc, 160, v{V_TID}')
    I(f's_and_saveexec_b64 {sp(S_EX)}, vcc')
    I(f'ds_write_b128 v{X+1}, v[{X+6}:{X+9}]')
    I(f's_mov_b64 exec, {sp(S_EX)}')

def fill_zero():
    zregs()
    zero_range(ZR, 65536, X + 2, X)
    fill_desca()

def fill_words():
    I(f'v_lshlrev_b32 v{X}, 4, v{V_TID}')
    I(f'v_and_b32 v{X+2}, 7, v{V_TID}')
    I(f'v_lshlrev_b32 v{X+2}, 5, v{X+2}')
    I(f'v_add_u32 v{X+2}, {N_NODES*8}, v{X+2}')
    for k in range(1, 4):
        I(f'v_add_u32 v{X+2+k}, {8*k}, v{X+2}')
    I(f'ds_write_b128 v{X}, v[{X+2}:{X+5}] offset:{LS}')
    I(f'v_cmp_gt_u32 vcc, 144, v{V_TID}')
    I(f's_and_saveexec_b64 {sp(S_EX)}, vcc')
    I(f'ds_write_b128 v{X}, v[{X+2}:{X+5}] offset:{LS+16384}')
    I(f's_mov_b64 exec, {sp(S_EX)}')

V_C8P, V_CPP, V_SCP = 26, 28, 30
S_BP0, S_BP1 = 88, 90

def tail_ops(n):
    M = (V_MA, V_MB)[n]
    return [f'v_rcp_f32 v{V_T01D}, v{V_T01D}',
            f'v_rcp_f32 v{V_T01D+1}, v{V_T01D+1}',
            f'v_pk_fma_f32 {p(M)}, {p(V_T01N)}, {p(V_T01D)}, {p(M)}']

def acc_write(lg, va):
    lg.op('Wa', f'ds_write2_b32 v{va}, v{V_MA}, v{V_MB} offset0:0 offset1:1')
    lg.op('Wb', f'ds_write2_b32 v{va+1}, v{V_MA+1}, v{V_MB+1} offset0:0 offset1:1')

def acc_read(lg, va):
    lg.op('Ra', f'ds_read_b32 v{V_MA}, v{va}')
    lg.op('Rb', f'ds_read_b32 v{V_MA+1}, v{va+1}')
    lg.op('Rc', f'ds_read_b32 v{V_MB}, v{va} offset:4')
    lg.op('Rd', f'ds_read_b32 v{V_MB+1}, v{va+1} offset:4')

def va_add(vap, vaa):
    I(f'v_lshl_add_u64 {p(vap)}, {p(vap)}, 0, {p(V_CPP)}')
    I(f'v_lshl_add_u64 {p(vaa)}, {p(vaa)}, 0, {p(V_C8P)}')

def gload(n, i):
    return f'buffer_load_dword v{G[n]+i}, v{S + (i & 1) * 8 + (i >> 1)}, {sr4(S_NTG)}, 0 offen offset:{4*n}' + GSC

def s_safe():
    if opt('safe', 0):
        for i in range(16):
            I(f'v_and_b32 v{S+i}, 0x1fff8, v{S+i}')

def s_reads(lg, uo):
    lg.op('S0', f'ds_read_b128 {vr(S,4)}, v{V_PS0} offset:{uo*32}')
    lg.op('S1', f'ds_read_b128 {vr(S+4,4)}, v{V_PS0} offset:{uo*32+16}')
    lg.op('S2', f'ds_read_b128 {vr(S+8,4)}, v{V_PS1} offset:{uo*32}')
    lg.op('S3', f'ds_read_b128 {vr(S+12,4)}, v{V_PS1} offset:{uo*32+16}')

def half(lg, n, par, uo, with_tail=True):
    g = G[n]
    I('s_waitcnt vmcnt(16)')
    if n == 0:
        lg.need('P0a', 'P0b', 'e')
    else:
        lg.need('P1a', 'P1b')
    I(f'v_mfma_f32_32x32x16_bf16 {vr(Z,16)}, {vr(A5,4)}, {vr(B5[n],4)}, {vr(g,16)}')
    t = tail_ops(n ^ 1)
    va_prev, va_cur, va_nxt = V_VAA[par ^ 1], V_VAA[par], V_VAA[par ^ 1]
    sh = [f'v_lshlrev_b32 v{g+i}, 16, v{g+i}' for i in range(16)]
    ex = [f'v_exp_f32 v{Z+i}, v{Z+i} clamp' for i in range(16)]
    l3 = [f'v_pk_mul_f32 {p(V_T01N)}, {p(V_T01N)}, {p(V_T23D)}',
          f'v_pk_mul_f32 {p(V_T23D)}, {p(V_T01D)}, {p(V_T23D)}',
          f'v_pk_fma_f32 {p(V_T01N)}, {p(V_T23N)}, {p(V_T01D)}, {p(V_T01N)}',
          f'v_rcp_f32 v{V_T23D}, v{V_T23D}',
          f'v_rcp_f32 v{V_T23D+1}, v{V_T23D+1}',
          f'v_pk_fma_f32 {p((V_MA, V_MB)[n ^ 1])}, {p(V_T01N)}, {p(V_T23D)}, {p((V_MA, V_MB)[n ^ 1])}']
    if with_tail and not M8:
        for r_ in (V_T01D, V_T01D + 1, V_T23D, V_T23D + 1):
            I(f'v_rcp_f32 v{r_}, v{r_}')
    else:
        I('s_nop 3')
    if n == 1:
        lg.op('e', f'ds_read_b64 {p(A5)}, v{V_PE} offset:{(uo+1)*64}')
        lg.op('P1a', f'ds_read_b32 v{B5[1]+2}, v{V_VAP} offset:4')
        lg.op('P1b', f'ds_read_b32 v{B5[1]+3}, v{V_VAP+1} offset:4')
    else:
        lg.op('dP', f'ds_read_b64 {p(V_VAP)}, v{V_PD} offset:{(uo+1)*256}')
        I('s_nop 1')
    for op in sh[:8]:
        I(op)
    seq = []
    if with_tail and not M8:
        Mp = p((V_MA, V_MB)[n ^ 1])
        seq = ['NEED', f'v_pk_fma_f32 {Mp}, {p(V_T01N)}, {p(V_T01D)}, {Mp}', ex[0],
               f'v_pk_fma_f32 {Mp}, {p(V_T23N)}, {p(V_T23D)}, {Mp}', sh[8], 'ACC', ex[1], sh[9]]
    elif with_tail:
        seq = [l3[0], l3[1], ex[0], l3[2], l3[3], sh[8], l3[4], ex[1], sh[9], 'NEED', l3[5], 'ACC']
    else:
        seq = [ex[0], sh[8], ex[1], sh[9], 'ACC']
    for op in seq:
        if op == 'NEED':
            lg.need('Ra', 'Rb', 'Rc', 'Rd')
        elif op == 'ACC':
            if n == 0:
                if with_tail:
                    acc_write(lg, va_prev)
                acc_read(lg, va_cur)
                lg.op('dA', f'ds_read_b64 {p(va_nxt)}, v{V_PD} offset:{(uo+1)*256 + DESCA - DESCP}')
        else:
            I(op)
    for i in range(2, 12):
        I(ex[i])
        if 8 + i < 16:
            I(sh[8 + i])
        if n == 0 and i == 11:
            lg.need('dP', 'dA')
            va_add(V_VAP, va_nxt)
            lg.op('P0a', f'ds_read_b32 v{B5[0]+2}, v{V_VAP}')
            lg.op('P0b', f'ds_read_b32 v{B5[0]+3}, v{V_VAP+1}')
    for op in ex[12:]:
        I(op)
    for i in range(0, 16, 2):
        if M8:
            I(f'v_pk_fma_f32 {p(Z+i)}, {p(Z+i)}, {p(V_SCP)}, {sp(S_C)}')
        else:
            I(f'v_pk_add_f32 {p(Z+i)}, {p(Z+i)}, {sp(S_C)}')
    def T(k): return f'v_pk_mul_f32 {p(V_TT[k&1])}, {p(g+4*k)}, {p(Z+4*k+2)}'
    def DD(k): return f'v_pk_mul_f32 {p(Z+4*k+2)}, {p(Z+4*k)}, {p(Z+4*k+2)}'
    def NN(k): return f'v_pk_fma_f32 {p(Z+4*k)}, {p(g+4*k+2)}, {p(Z+4*k)}, {p(V_TT[k&1])}'
    for k0 in (0, 2):
        for op in (T(k0), T(k0 + 1), DD(k0), DD(k0 + 1), NN(k0), NN(k0 + 1)):
            I(op)
        if n == 0 and k0 == 0:
            lg.need('S0', 'S1', 'S2', 'S3')
            s_safe()
        I(f's_mov_b64 exec, {sp(S_LDX)}')
        for i in range(4 * k0, 4 * k0 + 8):
            I(gload(n, i))
        I('s_mov_b64 exec, -1')
    if n == 1:
        s_reads(lg, uo + 2)
    I(f'v_pk_mul_f32 {p(V_T01N)}, {p(Z)}, {p(Z+6)}')
    I(f'v_pk_mul_f32 {p(V_T23N)}, {p(Z+8)}, {p(Z+14)}')
    I(f'v_pk_mul_f32 {p(V_T01D)}, {p(Z+2)}, {p(Z+6)}')
    I(f'v_pk_mul_f32 {p(V_T23D)}, {p(Z+10)}, {p(Z+14)}')
    I(f'v_pk_fma_f32 {p(V_T01N)}, {p(Z+4)}, {p(Z+2)}, {p(V_T01N)}')
    I(f'v_pk_fma_f32 {p(V_T23N)}, {p(Z+12)}, {p(Z+10)}, {p(V_T23N)}')

PRIO = {
    3: {(3, 0): 2, (2, 0): 1, (1, 0): 0},
    5: {(2, 0): 2, (1, 0): 1, (1, 1): 0},
    6: {(3, 0): 2, (1, 0): 1, (1, 1): 0},
    7: {(2, 1): 2, (1, 0): 1, (1, 1): 0},
    8: {(4, 0): 2, (2, 0): 1, (1, 1): 0},
    9: {(3, 0): 2, (2, 1): 1, (1, 1): 0},
    0: {},
}[opt('prio', 9)]
def prio(tag, phase=0):
    for (t, ph), lvl in PRIO.items():
        if ph != phase:
            continue
        I(f's_cmp_eq_u32 s{S_CNT}, {t}')
        I(f's_cbranch_scc0 L_PR{tag}_{lvl}')
        I(f's_setprio {lvl}')
        L(f'L_PR{tag}_{lvl}')

def split_hilo(a, b, t0, t1):
    I(f'v_cvt_pk_bf16_f32 v{t0}, v{a}, v{b}')
    I(f'v_lshlrev_b32 v{t1}, 16, v{t0}')
    I(f'v_and_b32 v{t0}, 0xffff0000, v{t0}')
    I(f'v_sub_f32 v{a}, v{a}, v{t1}')
    I(f'v_sub_f32 v{b}, v{b}, v{t0}')
    I(f'v_cvt_pk_bf16_f32 v{a}, v{t1}, v{a}')
    I(f'v_cvt_pk_bf16_f32 v{b}, v{t0}, v{b}')

V_AA, V_AB, V_AD, V_AP = 6, 7, 8, 9
SA, SB, SD = 80, 96, 112

def phase0_addr():
    I(f's_and_b32 s{S_T}, s{S_W}, 3')
    I(f's_lshr_b32 s{S_T+1}, s{S_W}, 2')
    I(f'v_and_b32 v12, 15, v{V_LANE}')
    I(f'v_lshrrev_b32 v13, 4, v{V_LANE}')
    I(f'v_bfe_u32 v14, v{V_LANE}, 1, 3')
    I(f'v_xor_b32 v14, v14, v13')
    I(f'v_lshlrev_b32 v14, 4, v14')
    I(f'v_lshl_or_b32 v14, v12, 7, v14')
    I(f's_lshl_b32 s{S_T+2}, s{S_T}, 11')
    I(f'v_add_u32 v{V_AA}, s{S_T+2}, v14')
    I(f'v_bfe_u32 v14, v{V_LANE}, 2, 2')
    I(f'v_lshl_add_u32 v14, v13, 3, v14')
    I(f'v_lshlrev_b32 v14, 7, v14')
    I(f'v_and_b32 v15, 3, v{V_LANE}')
    I(f'v_lshl_add_u32 v14, v15, 3, v14')
    I(f's_lshl_b32 s{S_T+2}, s{S_T+1}, 5')
    I(f'v_or_b32 v14, s{S_T+2}, v14')
    I(f'v_and_b32 v15, 24, v{V_LANE}')
    I(f'v_lshlrev_b32 v15, 2, v15')
    I(f'v_xor_b32 v14, v14, v15')
    I(f'v_add_u32 v{V_AB}, {WRAW}, v14')
    I(f's_lshl_b32 s{S_T+2}, s{S_T}, 12')
    I(f'v_lshlrev_b32 v13, 10, v13')
    I(f'v_add_u32 v13, s{S_T+2}, v13')
    I(f's_lshl_b32 s{S_T+2}, s{S_T+1}, 6')
    I(f's_add_u32 s{S_T+2}, s{S_T+2}, {NTI}')
    I(f'v_lshl_add_u32 v{V_AD}, v12, 2, v13')
    I(f'v_add_u32 v{V_AD}, s{S_T+2}, v{V_AD}')
    I(f's_and_b32 s{S_T+2}, s{S_T+1}, 1')
    I(f's_lshl_b32 s{S_T+2}, s{S_T+2}, 7')
    I(f's_lshr_b32 s{S_T+3}, s{S_T+1}, 1')
    I(f's_lshl_b32 s{S_T+3}, s{S_T+3}, 2')
    I(f's_add_u32 s{S_T+2}, s{S_T+2}, s{S_T+3}')
    I(f's_add_u32 s{S_T+2}, s{S_T+2}, {PT}')
    I(f'v_lshl_add_u32 v{V_AP}, v12, 3, v13')
    I(f'v_add_u32 v{V_AP}, s{S_T+2}, v{V_AP}')

def b_reads(dst, off):
    for sg in range(2):
        for pp in range(2):
            I(f'ds_read_b64_tr_b16 {vr(dst+4*sg+2*pp,2)}, v{V_AB} offset:{off+sg*4096+pp*512}')

def mm16(d, b):
    I(f'v_mfma_f32_16x16x32_bf16 {vr(d,4)}, {vr(SA,4)}, {vr(b,4)}, 0')
    I(f'v_mfma_f32_16x16x32_bf16 {vr(d,4)}, {vr(SA+4,4)}, {vr(b+4,4)}, {vr(d,4)}')

def phase0a():
    I(f'v_add_u32 v12, {XOWN}, v{V_AA}')
    I(f'v_xor_b32 v13, 64, v{V_AA}')
    I(f'v_add_u32 v13, {XOWN}, v13')
    I(f'ds_read_b128 {vr(SA,4)}, v12')
    I(f'ds_read_b128 {vr(SA+4,4)}, v13')
    b_reads(SB, 8192)
    b_reads(SB + 8, WV_ - WRAW)
    I(f's_mov_b32 s{S_T+4}, 0x{f2u(-LOG2E):x}')
    I(f's_mov_b32 s{S_T+6}, 0x7fffffff')
    I(f's_mov_b32 s{S_T+7}, 0xffff0000')
    I('s_waitcnt lgkmcnt(4)')
    mm16(SD, SB)
    I('s_waitcnt lgkmcnt(0)')
    mm16(SD + 4, SB + 8)
    I('s_nop 4')
    for i in range(4):
        I(f'v_mul_f32 v{SD+i}, s{S_T+4}, v{SD+i}')
    for i in range(4):
        I(f'v_and_b32 v{SD+8+i}, s{S_T+6}, v{SD+i}')
    for i in range(4):
        if SV:
            I(f'v_mul_f32 v{SD+4+i}, 0x{f2u(2.0**SV):x}, v{SD+4+i}')
        I(f'v_add_u32 v{SD+8+i}, 0x8000, v{SD+8+i}')
    I(f'v_cvt_pk_bf16_f32 v{SD+4}, v{SD+4}, v{SD+5}')
    I(f'v_cvt_pk_bf16_f32 v{SD+6}, v{SD+6}, v{SD+7}')
    I(f'v_lshrrev_b32 v{SD+5}, 16, v{SD+4}')
    I(f'v_lshrrev_b32 v{SD+7}, 16, v{SD+6}')
    I(f'v_and_b32 v{SD+4}, 0xffff, v{SD+4}')
    I(f'v_and_b32 v{SD+6}, 0xffff, v{SD+6}')
    for i in range(4):
        I(f'v_sub_u32 v{SD+8+i}, v{SD+8+i}, v{SD+4+i} clamp')
    for i in range(4):
        I(f'v_and_or_b32 v{SD+8+i}, v{SD+8+i}, s{S_T+7}, v{SD+4+i}')
    for i in range(4):
        I(f'v_bfi_b32 v{SD+i}, s{S_T+6}, v{SD+8+i}, v{SD+i}')
        I(f'ds_write_b32 v{V_AD}, v{SD+i} offset:{i*256}')

def phase0b():
    b_reads(SB, 0)
    b_reads(SB + 8, WU_ - WRAW)
    I(f's_mov_b32 s{S_T+4}, 0x{f2u(-LOG2E):x}')
    I(f's_mov_b32 s{S_T+5}, 0x{f2u(2.0**(SV+KH)):x}')
    I(f'v_mov_b32 v13, 0x{f2u(-float(KEXP)):x}')
    I(f's_and_b32 s{S_T+6}, s{S_W}, 3')
    I('s_waitcnt lgkmcnt(4)')
    mm16(SD, SB)
    I('s_waitcnt lgkmcnt(0)')
    mm16(SD + 4, SB + 8)
    I('s_nop 4')
    for i in range(4):
        I(f'v_fma_f32 v{SD+i}, v{SD+i}, s{S_T+4}, v13')
    split_hilo(SD, SD + 1, 12, 13)
    split_hilo(SD + 2, SD + 3, 12, 13)
    for i in range(4):
        I(f'v_mul_f32 v{SD+4+i}, s{S_T+5}, v{SD+4+i}')
    I(f's_cmp_eq_u32 s{S_T+6}, 3')
    I(f's_cselect_b64 exec, 0xffff, -1')
    I(f'ds_write_b32 v{V_AP}, v{SD}')
    I(f'ds_write_b32 v{V_AP}, v{SD+4} offset:{ACCN-PT}')
    I(f's_cselect_b64 exec, 0, -1')
    for i in range(1, 4):
        I(f'ds_write_b32 v{V_AP}, v{SD+i} offset:{i*256}')
        I(f'ds_write_b32 v{V_AP}, v{SD+4+i} offset:{ACCN-PT+i*256}')
    I('s_mov_b64 exec, -1')

def phase0c():
    I(f'v_bfe_u32 v13, v{V_LANE}, 2, 2')
    I(f'v_lshlrev_b32 v13, 7, v13')
    I(f'v_bfe_u32 v15, v{V_LANE}, 4, 1')
    I(f'v_lshl_add_u32 v13, v15, 5, v13')
    I(f'v_and_b32 v15, 3, v{V_LANE}')
    I(f'v_lshl_add_u32 v13, v15, 3, v13')
    I(f'v_and_b32 v15, 8, v{V_LANE}')
    I(f'v_lshlrev_b32 v15, 2, v15')
    I(f'v_xor_b32 v13, v13, v15')
    I(f'v_add_u32 v13, {WG_ + 16384}, v13')
    I(f'ds_read_b64_tr_b16 v[96:97], v13')
    I(f'ds_read_b64_tr_b16 v[98:99], v13 offset:64')
    I(f's_mov_b32 s{S_T+4}, 0x{f2u(-LOG2E):x}')
    I(f'v_cmp_lt_u32 vcc, 31, v{V_LANE}')
    I('s_waitcnt lgkmcnt(0)')
    for m in range(4):
        I(f'v_lshlrev_b32 v{100+2*m}, 16, v{96+m}')
        I(f'v_and_b32 v{101+2*m}, 0xffff0000, v{96+m}')
    for j in range(8):
        I(f'v_mul_f32 v{100+j}, s{S_T+4}, v{100+j}')
    for m in range(4):
        dst = B5[m >> 1] + (m & 1)
        I(f'v_cvt_pk_bf16_f32 v{96+m}, v{100+2*m}, v{101+2*m}')
        I(f'v_lshlrev_b32 v12, 16, v{96+m}')
        I(f'v_and_b32 v13, 0xffff0000, v{96+m}')
        I(f'v_sub_f32 v12, v{100+2*m}, v12')
        I(f'v_sub_f32 v13, v{101+2*m}, v13')
        I(f'v_cvt_pk_bf16_f32 v12, v12, v13')
        I(f'v_cndmask_b32 v{dst}, v{96+m}, v12, vcc')

def a5_const():
    I(f'v_bfe_u32 v12, v{V_LANE}, 2, 1')
    I(f'v_lshrrev_b32 v13, 5, v{V_LANE}')
    I(f'v_xor_b32 v12, v12, v13')
    I(f'v_and_b32 v13, 1, v{V_LANE}')
    I(f'v_lshl_or_b32 v12, v12, 1, v13')
    I(f'v_mov_b32 v13, 0x3f803f80')
    I(f'v_cmp_eq_u32 vcc, 0, v12')
    I(f'v_cmp_eq_u32 {sp(S_T)}, 1, v12')
    I('s_nop 1')
    I(f'v_cndmask_b32 v{A5+2}, 0, v13, vcc')
    I(f'v_cndmask_b32 v{A5+3}, 0, v13, {sp(S_T)}')

def nt_prefetch(vt, first=0, nl=None, dst=96):
    I(f's_lshr_b32 s{S_T}, s2, 4')
    I(f's_lshl_b32 s{S_T+1}, s{S_W}, 4')
    I(f's_add_u32 s{S_T}, s{S_T}, s{S_T+1}')
    I(f's_and_b32 s{S_T+1}, s{S_T}, 7')
    I(f's_lshl_b32 s{S_T+1}, s{S_T+1}, 5')
    I(f's_lshr_b32 s{S_T}, s{S_T}, 3')
    I(f's_add_u32 s{S_T}, s{S_T}, s{S_T+1}')
    I(f's_lshl_b32 s{S_T}, s{S_T}, 1')
    I(f's_bfe_u32 s{S_T+1}, s2, 0x10003')
    I(f's_add_u32 s{S_T}, s{S_T}, s{S_T+1}')
    I(f's_mul_i32 s{S_T}, s{S_T}, {NB*128}')
    I(f's_add_u32 s{S_T}, s{S_T}, 0x{WS_NT:x}')
    srd_off(S_NTS, S_WSP, S_WSP + 1, f's{S_T}', NB * 128)
    if NPFM >= 3:
        I(f'v_lshlrev_b32 v{vt}, {7 if NPFM >= 4 else 6}, v{V_LANE}')
        I(f'v_add_u32 v{vt+1}, 4096, v{vt}')
        nl = opt("pfl", 20) if nl is None else nl
        I(f's_mov_b32 exec_lo, 0x{(((1 << nl) - 1) << first) & 0xffffffff:x}')
        I(f's_mov_b32 exec_hi, 0x{(((1 << nl) - 1) << first) >> 32:x}')
        for k in range(NPF):
            I(f'buffer_load_dword v{dst+k}, v{vt+k}, {sr4(S_NTS)}, 0 offen' + (LSC if opt('pfsc', 1) else ''))
        I('s_mov_b64 exec, -1')
        return
    I(f'v_lshlrev_b32 v{vt}, 4, v{V_LANE}')
    I(f'v_add_u32 v{vt+1}, 4096, v{vt}')
    for k in range(NPF):
        I(f'buffer_load_dwordx4 {vr(96+4*k,4)}, v{vt+(k>>2)}, {sr4(S_NTS)}, 0 offen offset:{(k&3)*1024}' + LSC)

def ptr_consts():
    I(f'v_lshrrev_b32 v{V_PS1}, 5, v{V_LANE}')
    I(f's_lshl_b32 s{S_T}, s{S_W}, 4')
    I(f's_add_u32 s{S_T}, s{S_T}, {DESCP}')
    I(f'v_lshlrev_b32 v{V_PD}, 3, v{V_PS1}')
    I(f'v_add_u32 v{V_PS1}, v{V_PS1}, v{V_PS1}')
    I(f'v_add_u32 v{V_PD}, s{S_T}, v{V_PD}')
    I(f'v_bfe_u32 v{V_VAP}, v{V_LANE}, 2, 1')
    I(f'v_and_b32 v{V_PE}, 1, v{V_LANE}')
    I(f'v_lshl_or_b32 v{V_VAP}, v{V_VAP}, 1, v{V_PE}')
    I(f'v_bfe_u32 v{V_PE}, v{V_LANE}, 3, 2')
    I(f'v_bfe_u32 v{V_PS0}, v{V_LANE}, 1, 1')
    I(f'v_lshl_or_b32 v{V_PE}, v{V_PE}, 1, v{V_PS0}')
    I(f'v_lshlrev_b32 v{V_PE}, 3, v{V_PE}')
    I(f'v_add_u32 v{V_PE}, {LE}, v{V_PE}')

def gen():
    e(f'.globl {KNAME}')
    e('.p2align 8')
    e(f'.type {KNAME},@function')
    L(KNAME)
    I(f's_cmp_ge_u32 s2, {NWG}')
    I('s_cbranch_scc1 L_END')
    I('s_load_dwordx8 s[84:91], s[0:1], 0')
    I('s_load_dwordx4 s[4:7], s[0:1], 32')
    I('s_load_dwordx4 s[8:11], s[0:1], 48')
    I('s_load_dwordx4 s[56:59], s[0:1], 64')
    if PROF:
        I(f'v_mov_b32 v{V_PROF}, 0')
    rstamp(30)
    stamp(0)
    zregs()
    zero_range(CNT, DESCP + 2560 - CNT, X + 2, X)
    I(f'v_lshlrev_b32 v{X+6}, 2, v{V_TID}')
    I(f's_mul_i32 s61, s2, {CH*4}')
    I(f's_mul_i32 s63, s2, {CH}')
    I(f's_sub_u32 s63, {E_EDGES}, s63')
    I(f's_min_u32 s63, s63, {CH}')
    I(f's_lshl_b32 s64, s63, 2')
    I(f'v_add_u32 v{X+8}, 4096, v{X+6}')
    I(f'v_add_u32 v{X+9}, 8192, v{X+6}')
    I(f'v_add_u32 v{X+10}, 12288, v{X+6}')
    I(f'v_lshrrev_b32 v{X+1}, 6, v{V_TID}')
    I(f'v_and_b32 v{V_LANE}, 63, v{V_TID}')
    I(f'v_readfirstlane_b32 s{S_W}, v{X+1}')
    I('s_and_b32 s3, s2, 7')
    I('s_lshl_b32 s3, s3, 5')
    I('s_lshr_b32 s60, s2, 3')
    I('s_add_u32 s3, s3, s60')
    I(f's_mul_i32 s62, s2, {CH*8}')
    I(f's_lshl_b32 s65, s63, 3')
    I(f'v_and_b32 v97, 0x50, v{V_TID}')
    I(f'v_lshlrev_b32 v96, 1, v97')
    I(f'v_or_b32 v97, v97, v96')
    I(f'v_and_b32 v97, 0x60, v97')
    I(f'v_xor_b32 v97, v97, v{X}')
    I(f'v_and_b32 v96, 0x20, v96')
    I(f'v_lshlrev_b32 v98, 4, v{V_LANE}')
    I(f'v_xor_b32 v96, v96, v98')
    I(f's_lshl_b32 s66, s{S_W}, 10')
    I(f'v_and_b32 v101, 0x1fff, v97')
    I(f'v_lshrrev_b32 v98, 3, v{V_TID}')
    I(f'v_bfe_u32 v99, v98, 1, 3')
    I(f'v_and_b32 v100, 7, v{V_TID}')
    I(f'v_xor_b32 v99, v99, v100')
    I(f'v_lshlrev_b32 v99, 4, v99')
    I(f'v_lshl_add_u32 v99, v98, 7, v99')
    I(f's_mul_i32 s60, s3, {NB*128}')
    I(f'v_add_u32 v99, s60, v99')
    I(f'v_add_u32 v96, 16384, v96')
    I('s_waitcnt lgkmcnt(0)')
    I(f's_or_b32 s67, s2, s{S_W}')
    I('s_cmp_lg_u32 s67, 0')
    I('s_cbranch_scc1 L_NOTAG')
    I('s_memrealtime s[68:69]')
    I(f'v_mov_b32 v{X+2}, 0')
    I('s_waitcnt lgkmcnt(0)')
    I('s_or_b32 s68, s68, 1')
    I(f'v_mov_b32 v{X+3}, s68')
    I('s_mov_b64 exec, 1')
    I(f'global_store_dword v{X+2}, v{X+3}, s[56:57] sc1')
    I('s_mov_b64 exec, -1')
    L('L_NOTAG')
    def dst_loads():
        srd_off(S_DST, 90, 91, 's61', 's64')
        for k in range(4):
            I(f'buffer_load_dword v{64+k}, v{X+6 if k == 0 else X+7+k}, {sr4(S_DST)}, 0 offen' + ELD)
    def dma_loads():
        srd(S_WS, 8, 9, 132 * 128)
        I(f's_add_u32 m0, s66, {WG_}')
        srd(S_XS, 84, 85, N_NODES * 128)
        I(f'buffer_load_dwordx4 v97, {sr4(S_WS)}, 0 offen lds')
        I(f's_cmp_lt_u32 s{S_W}, 8')
        I(f's_cselect_b32 s{S_NTS}, s6, s4')
        I(f's_cselect_b32 s{S_NTS+1}, s7, s5')
        I(f's_mov_b32 s{S_NTS+2}, {64*128}')
        I(f's_mov_b32 s{S_NTS+3}, 0x00020000')
        I(f's_add_u32 m0, s66, {WV_}')
        I('s_nop 0')
        I(f'buffer_load_dwordx4 v101, {sr4(S_NTS)}, 0 offen lds')
        I(f's_cmp_lt_u32 s{S_W}, 8')
        I('s_cbranch_scc0 L_D3B')
        I(f's_add_u32 m0, s66, {XOWN}')
        I('s_nop 0')
        I(f'buffer_load_dwordx4 v99, {sr4(S_XS)}, 0 offen lds')
        I('s_branch L_D3C')
        L('L_D3B')
        I(f's_mov_b32 m0, {WG_ + 16384}')
        I('s_nop 0')
        I(f'buffer_load_dwordx4 v96, {sr4(S_WS)}, 0 offen lds')
        L('L_D3C')
    if opt('t0', 0):
        I(f'v_and_b32 v60, 15, v{V_LANE}')
        I(f'v_lshlrev_b32 v60, 20, v60')
        I(f'v_and_b32 v61, 1, v{V_LANE}')
        I(f'v_lshlrev_b32 v61, 20, v61')
        I(f'global_load_dword v62, v60, s[58:59]')
        I(f'global_load_dword v63, v61, s[10:11]')
    ORDER = opt('order', 0)
    if ORDER == 0:
        dma_loads()
    dst_loads()
    if ORDER == 2:
        dma_loads()
    F1 = opt('f1', 1)
    if F1:
        I('s_barrier')
    srd_off(S_SRC, 88, 89, 's61', 's64')
    LATE = opt('late', 1)
    def src_load(k):
        I(f'buffer_load_dword v{68+k}, v{X+6 if k == 0 else 43+k}, {sr4(S_SRC)}, 0 offen' + ELD)
    for k in range(1, 4):
        I(f'v_mov_b32 v{43+k}, v{X+7+k}')
    for k in range(1 if LATE else 4):
        src_load(k)
    srd_off(S_EA, 86, 87, 's62', 's65')
    I(f'v_lshlrev_b32 v92, 3, v{V_TID}')
    for k in range(1, 4):
        I(f'v_add_u32 v{92+k}, {8192*k}, v92')
    def e_load(k):
        I(f'buffer_load_dwordx2 v[{72+2*k}:{73+2*k}], v{92+k}, {sr4(S_EA)}, 0 offen' + ELD)
    NEE = 1 if LATE else opt('nee', 4)
    for k in range(NEE):
        e_load(k)
    if ORDER == 1:
        dma_loads()
    I(f's_mov_b64 {sp(S_DBG)}, s[56:57]')
    I(f's_add_u32 s{S_WSP}, s58, 0x{WSB:x}')
    I(f's_addc_u32 s{S_WSP+1}, s59, 0')
    stamp(1)
    srd(S_OUT, 10, 11, N_NODES * 128)
    I(f's_mul_i32 s{S_T}, s2, {CAP*4}')
    srd_off(S_RW, S_WSP, S_WSP + 1, f's{S_T}', CAP * 4)
    I(f's_lshl_b32 s{S_T}, s{S_T}, 1')
    I(f's_add_u32 s{S_T}, s{S_T}, 0x{WS_RE:x}')
    srd_off(S_RE, S_WSP, S_WSP + 1, f's{S_T}', CAP * 8)
    I(f's_lshl_b32 s{S_T}, s2, 11')
    I(f's_add_u32 s{S_T}, s{S_T}, 0x{WS_TAB:x}')
    srd_off(S_TAB, S_WSP, S_WSP + 1, f's{S_T}', (KREP - 1) * 0x80000 + 2048)
    I(f's_mul_i32 s{S_T}, s3, {NB*256}')
    I(f's_add_u32 s{S_T}, s{S_T}, 0x{WS_NT:x}')
    srd_off(S_NTS, S_WSP, S_WSP + 1, f's{S_T}', NB * 256)
    I(f's_add_u32 s{S_NTG}, s{S_WSP}, 0x{WS_NT:x}')
    I(f's_addc_u32 s{S_NTG+1}, s{S_WSP+1}, 0')
    I(f's_or_b32 s{S_NTG+1}, s{S_NTG+1}, 0x80000000')
    I(f's_mov_b32 s{S_NTG+2}, 0x400000')
    I(f's_mov_b32 s{S_NTG+3}, 0x00c00000')
    srd_off(S_DST, S_WSP, S_WSP + 1, '0x%x' % WS_RW, NWG * CAP * 4)
    if not LATE:
        srd_off(S_SRC, S_WSP, S_WSP + 1, '0x%x' % WS_RE, NWG * CAP * 8)
    for k in range(4):
        I(f'v_add_u32 v{X+1}, {1024*k}, v{V_TID}')
        I(f'v_cmp_gt_u32 {sp(S_MASK+2*k)}, s63, v{X+1}')
    I(f's_mov_b32 s{S_C}, 0x{f2u(2.0**-KH):x}')
    I(f's_mov_b32 s{S_C+1}, 0x{f2u(2.0**-KH):x}')
    I(f's_mov_b32 s{S_JB}, 0')
    I(f's_mov_b32 s{S_WID}, 128')
    I(f'v_and_b32 v{V_J4}, 7, v{V_LANE}')
    I(f'v_lshlrev_b32 v{V_J4}, 3, v{V_J4}')
    I(f'v_lshrrev_b32 v{X+1}, 3, v{V_LANE}')
    I(f's_lshl_b32 s{S_T}, s{S_W}, 4')
    I(f'v_add_u32 v{X+1}, s{S_T}, v{X+1}')
    I(f'v_mul_u32_u24 v{V_CB4}, {CAP*4}, v{X+1}')
    I(f'v_add_u32 v{V_CB4}, v{V_CB4}, v{V_J4}')
    I(f'v_and_b32 v{V_CH8}, 31, v{V_LANE}')
    I(f'v_lshlrev_b32 v{V_CH8}, 3, v{V_CH8}')
    I(f'v_add_u32 v{V_CHP}, {PT}, v{V_CH8}')
    phase0_addr()
    a5_const()
    if not F1:
        I(f's_waitcnt vmcnt({8 + NEE if ORDER == 0 else 0})')
        I('s_barrier')
    stamp(2)
    def late_loads():
        if LATE:
            for k in range(1, 4):
                src_load(k)
        for k in range(NEE, 4):
            e_load(k)
        I(f'v_mov_b32 v12, 0')
        I(f'global_load_dword v10, v12, {sp(S_DBG)} sc1')
        if TCH:
            I(f'v_lshlrev_b32 v13, 10, v{V_LANE}')
            I(f'buffer_load_dword v60, v13, {sr4(S_RW)}, 0 offen')
            I(f'buffer_load_dword v61, v13, {sr4(S_RE)}, 0 offen')
            I(f'buffer_load_dword v62, v13, {sr4(S_TAB)}, 0 offen')
            I(f'buffer_load_dword v63, v13, {sr4(S_NTS)}, 0 offen')
        srd_off(S_EA, S_WSP, S_WSP + 1, '0x%x' % WS_TAB, KREP * 0x80000)
        if LATE:
            srd_off(S_SRC, S_WSP, S_WSP + 1, '0x%x' % WS_RE, NWG * CAP * 8)
    if not LATE:
        late_loads()
    if not F1:
        phase0a()
    I(f's_mov_b32 s{S_T}, -{NB}')
    I(f'v_mov_b32 v{X+1}, 4')
    BN, WD, RK = 28, 32, 36
    for k in range(4):
        I(f's_waitcnt vmcnt({((5 if ORDER == 0 else 8) if LATE else (12 if ORDER == 0 else 15) + TCH) - k})')
        I(f's_mov_b64 exec, {sp(S_MASK+2*k)}')
        if k == 3:
            I('s_cbranch_execz L_B1')
        I(f'v_mul_u32_u24 v{BN+k}, 21400, v{64+k}')
        I(f'v_lshrrev_b32 v{BN+k}, 20, v{BN+k}')
        I(f'v_mad_i32_i24 v{WD+k}, v{BN+k}, s{S_T}, v{64+k}')
        I(f'v_lshlrev_b32 v{BN+k}, 2, v{BN+k}')
        I(f'ds_add_rtn_u32 v{RK+k}, v{BN+k}, v{X+1} offset:{HIST}')
        I(f'v_lshlrev_b32 v{WD+k}, 26, v{WD+k}')
    L('L_B1')
    I('s_mov_b64 exec, -1')
    if LATE:
        late_loads()
    I(f'v_add_u32 v{X+1}, {NTI}, v{X}')
    stamp(3)
    I({0: 's_waitcnt lgkmcnt(0)', 1: 's_waitcnt vmcnt(1) lgkmcnt(0)', 2: 's_waitcnt vmcnt(9) lgkmcnt(0)'}[ORDER])
    I('s_barrier')
    stamp(4)
    if not F1:
        I(f'ds_read_b128 v[112:115], v{X+1}')
    I(f's_cmp_lg_u32 s{S_W}, 0')
    I('s_cbranch_scc1 L_NOSCAN')
    I(f'ds_read_b128 v[96:99], v{X} offset:{HIST}')
    I('s_waitcnt lgkmcnt(0)')
    for k in range(4):
        I(f'v_add_u32 v{108+k}, 4, v{96+k}')
        I(f'v_and_b32 v{108+k}, -8, v{108+k}')
    I('v_add_u32 v101, v108, v109')
    I('v_add_u32 v102, v101, v110')
    I('v_add_u32 v103, v102, v111')
    I('v_mov_b32 v104, v103')
    wave_scan(104)
    I(f'v_readlane_b32 s{S_T+4}, v104, 63')
    I('v_sub_u32 v104, v104, v103')
    I(f'v_mov_b32 v100, {MISC+8}')
    I(f'v_mov_b32 v105, s{S_T+4}')
    I('ds_write_b32 v100, v105')
    I('v_add_u32 v105, v104, v108')
    I('v_add_u32 v106, v104, v101')
    I('v_add_u32 v107, v104, v102')
    I(f'ds_write_b128 v{X}, v[104:107] offset:{HBASE}')
    for k in range(4):
        I(f'v_lshl_or_b32 v{108+k}, v{96+k}, 16, v{104+k}')
    I(f'ds_write_b128 v{X}, v[108:111] offset:{HIST}')
    L('L_NOSCAN')
    if F1:
        phase0a()
    I('s_waitcnt lgkmcnt(0)')
    if not F1:
        I(f'buffer_store_dwordx4 v[112:115], v{X}, {sr4(S_NTS)}, 0 offen' + SC)
    if T1:
        I(f's_mul_i32 s{S_T+4}, s3, {NB*128}')
        I(f'v_mov_b32 v60, s{S_T+4}')
        I(f'buffer_load_dword v61, v60, {sr4(S_OUT)}, 0 offen')
    I(f's_waitcnt vmcnt({4 if LATE else 6 - F1 + TCH + T1})')
    for k in range(4):
        I(f'v_lshl_or_b32 v{WD+k}, v{68+k}, 3, v{WD+k}')
    I('s_barrier')
    stamp(5)
    if F1:
        I(f'ds_read_b128 v[112:115], v{X+1}')
    for k in range(4):
        I(f's_mov_b64 exec, {sp(S_MASK+2*k)}')
        I(f'ds_read_b32 v{BN+k}, v{BN+k} offset:{HBASE}')
    if F1:
        I('s_mov_b64 exec, -1')
        I('s_waitcnt lgkmcnt(4)')
        I(f'buffer_store_dwordx4 v[112:115], v{X}, {sr4(S_NTS)}, 0 offen' + SC)
    I(f's_waitcnt vmcnt({1 + TCH + T1})')
    I(f'v_readfirstlane_b32 s{S_TAG}, v10')
    for k in range(4):
        I(f's_mov_b64 exec, {sp(S_MASK+2*k)}')
        if k == 3:
            I('s_cbranch_execz L_B2')
        I(f's_waitcnt lgkmcnt({3 - k + 2*k})')
        I(f'v_add_u32 v{RK+k}, v{BN+k}, v{RK+k}')
        I(f'v_add_u32 v{BN+k}, v{RK+k}, v{RK+k}')
        I(f'ds_write_b32 v{RK+k}, v{WD+k} offset:{STGW}')
        I(f'ds_write_b64 v{BN+k}, v[{72+2*k}:{73+2*k}] offset:{STGE}')
    L('L_B2')
    I('s_mov_b64 exec, -1')
    I(f'v_mov_b32 v13, {MISC+8}')
    I(f'ds_read_b32 v13, v13')
    I(f's_mov_b32 s{S_T}, 0x40000')
    L('L_TAGP')
    I(f's_cmp_lg_u32 s{S_TAG}, 0')
    I('s_cbranch_scc1 L_TAGD')
    I(f'v_mov_b32 v12, 0')
    I(f'global_load_dword v10, v12, {sp(S_DBG)} sc1')
    I('s_waitcnt vmcnt(0)')
    I(f'v_readfirstlane_b32 s{S_TAG}, v10')
    I(f's_sub_u32 s{S_T}, s{S_T}, 1')
    I('s_cbranch_scc1 L_END')
    I('s_branch L_TAGP')
    L('L_TAGD')
    I(f'v_add_u32 v{X+2}, 16384, v{X}')
    I(f'v_lshlrev_b32 v12, 3, v{V_LANE}')
    I(f's_mul_i32 s{S_TAG2}, s{S_TAG}, 0x9e3779b1')
    I(f's_and_b32 s{S_TAG2}, s{S_TAG2}, 0x{TAGM:x}')
    I('s_waitcnt lgkmcnt(0)')
    I(f'v_readfirstlane_b32 s{S_T}, v13')
    I('s_barrier')
    I(f's_add_u32 s{S_T}, s{S_T}, 12')
    I(f's_and_b32 s{S_RW+2}, s{S_T}, -16')
    I(f's_lshl_b32 s{S_RE+2}, s{S_RW+2}, 1')
    stamp(6)
    if opt('early', 0):
        I(f'ds_read_b64 v[92:93], v12 offset:{HIST}')
        I(f'ds_read_b64 v[94:95], v12 offset:{HIST+512}')
        I(f'v_lshlrev_b32 v60, 4, v{V_LANE}')
        I('s_waitcnt lgkmcnt(0)')
        for k in range(4):
            I(f'v_or_b32 v{120+2*k}, s{S_TAG2}, v{92+k}')
            I(f'v_mov_b32 v{121+2*k}, s{S_TAG}')
        I(f's_cmp_lg_u32 s{S_W}, 0')
        I('s_cbranch_scc1 L_EARLY')
        I(f'buffer_store_dwordx4 v[120:123], v60, {sr4(S_TAB)}, 0 offen' + SC)
        I(f'buffer_store_dwordx4 v[124:127], v60, {sr4(S_TAB)}, 0 offen offset:1024' + SC)
        L('L_EARLY')
    I(f'ds_read_b128 v[64:67], v{X} offset:{STGW}')
    I(f'ds_read_b128 v[68:71], v{X} offset:{STGE}')
    I(f'ds_read_b128 v[72:75], v{X} offset:{STGE+16384}')
    I(f'ds_read_b64 v[92:93], v12 offset:{HIST}')
    I(f'ds_read_b64 v[94:95], v12 offset:{HIST+512}')
    I('s_waitcnt lgkmcnt(4)')
    I(f'buffer_store_dwordx4 v[64:67], v{X}, {sr4(S_RW)}, 0 offen' + SC)
    I('s_waitcnt lgkmcnt(3)')
    I(f'buffer_store_dwordx4 v[68:71], v{X}, {sr4(S_RE)}, 0 offen' + SC)
    I('s_waitcnt lgkmcnt(2)')
    I(f'buffer_store_dwordx4 v[72:75], v{X+2}, {sr4(S_RE)}, 0 offen' + SC)
    I('s_waitcnt lgkmcnt(0)')
    for k in range(4):
        I(f'v_or_b32 v{120+2*k}, s{S_TAG2}, v{92+k}')
        I(f'v_mov_b32 v{121+2*k}, s{S_TAG}')
    PF1 = opt('pf1', 0)
    if PF1:
        nt_prefetch(12, 49 - PF1, PF1, 61)
    pre = opt('pre', 'xbc').replace('0', '')
    def piece(c):
        if c == 'x':
            zregs()
            zero_range(EXTRA, 16384, X + 2, X)
            fill_desca()
        elif c == 'b':
            phase0b()
        elif c == 'c':
            phase0c()
    for c in pre:
        piece(c)
    stamp(7)
    I(f'v_lshrrev_b32 v76, 3, v{V_LANE}')
    I(f's_lshl_b32 s{S_T}, s{S_W}, 15')
    I(f's_lshl_b32 s{S_T+1}, s3, 3')
    I(f's_add_u32 s{S_T}, s{S_T}, s{S_T+1}')
    I(f'v_lshlrev_b32 v76, 11, v76')
    I(f'v_add_u32 v76, s{S_T}, v76')
    I(f'v_add_u32 v77, 16384, v76')
    I(f'v_lshlrev_b32 v60, 4, v{V_LANE}')
    for r in range(2):
        I(f's_mov_b64 {sp(S_MASK+2*r)}, -1')
    I(f's_waitcnt vmcnt({1 if PF1 else 0})')
    stamp(8)
    I('s_barrier')
    stamp(9)
    I(f's_cmp_lg_u32 s{S_W}, {99 if opt("early", 0) else 0}')
    I('s_cbranch_scc1 L_POLL0')
    for k in range(KREP - 1, -1, -1):
        I(f's_mov_b32 s{S_T}, 0x{k*0x80000:x}')
        I(f'buffer_store_dwordx4 v[120:123], v60, {sr4(S_TAB)}, s{S_T} offen' + SC)
        I(f'buffer_store_dwordx4 v[124:127], v60, {sr4(S_TAB)}, s{S_T} offen offset:1024' + SC)
    L('L_POLL0')
    PF2 = opt('pf2', 0)
    if PF2:
        nt_prefetch(61, 49 - PF2, PF2, 63)
    EP = opt('ep', 0)
    for r in range(2 if EP else 0):
        I(f'buffer_load_dwordx2 {p(64+2*r)}, v{76+r}, {sr4(S_EA)}, 0 offen' + LSC)
    for c in 'xbc':
        if c not in pre:
            piece(c)
    fill_words()
    zregs()
    zero_range(LE, CNT - LE, X + 2, X)
    ptr_consts()
    I(f's_mov_b32 s{S_T}, 0x40000')
    I(f's_mov_b32 s{S_T+1}, 0x{TAGM:x}')
    if opt('ps', 0):
        I(f's_sleep {opt("ps", 0)}')
    if EP:
        I('s_branch L_POLLC')
    L('L_POLL')
    for r in range(2):
        I(f's_mov_b64 exec, {sp(S_MASK+2*r)}')
        I(f'buffer_load_dwordx2 {p(64+2*r)}, v{76+r}, {sr4(S_EA)}, 0 offen' + LSC)
    L('L_POLLC')
    for r in range(2):
        I(f's_waitcnt vmcnt({1-r})')
        I(f's_mov_b64 exec, {sp(S_MASK+2*r)}')
        I(f'v_xor_b32 v{V_TAB+r}, s{S_TAG2}, v{64+2*r}')
        I(f'v_xor_b32 v{65+2*r}, s{S_TAG}, v{65+2*r}')
        I(f'v_and_or_b32 v{65+2*r}, v{V_TAB+r}, s{S_T+1}, v{65+2*r}')
        I(f'v_cmp_ne_u32 {sp(S_MASK+2*r)}, 0, v{65+2*r}')
    I(f's_or_b64 {sp(S_T+2)}, {sp(S_MASK)}, {sp(S_MASK+2)}')
    I('s_cbranch_scc0 L_POLLED')
    I(f's_sub_u32 s{S_T}, s{S_T}, 1')
    I('s_cbranch_scc1 L_END')
    if opt('sleep', 1):
        I(f's_sleep {opt("sleep", 1)}')
    I('s_branch L_POLL')
    L('L_POLLED')
    I('s_mov_b64 exec, -1')
    stamp(10)
    def RB(s_): return 64 + 8 * (s_ >> 1)
    def MK(s_): return sp(S_MASK + 2 * s_)
    AD = X
    L('L_PASS')
    I(f'v_add_u32 v{X+10}, s{S_JB}, v{V_CB4}')
    I(f'v_add_u32 v{X+8}, s{S_JB}, v{V_J4}')
    SDW = 'src0_sel:DWORD src1_sel:WORD_1'
    for r in range(2):
        I(f'v_add_u32_sdwa v{X+r}, v{V_TAB+r}, v{X+10} dst_sel:DWORD dst_unused:UNUSED_PAD src0_sel:WORD_0 src1_sel:DWORD')
        I(f'v_cmp_lt_u32_sdwa {MK(2*r)}, v{X+8}, v{V_TAB+r} {SDW}')
        if r:
            I(f'v_add_u32 v{X+r}, {8*CAP*4}, v{X+r}')
        I(f'v_add_u32 v{X+2+r}, v{X+r}, v{X+r}')
        I(f's_mov_b64 exec, {MK(2*r)}')
        I(f'buffer_load_dwordx2 {p(RB(2*r)+4)}, v{X+r}, {sr4(S_DST)}, 0 offen' + LSC)
        I(f'buffer_load_dwordx4 {vr(RB(2*r),4)}, v{X+2+r}, {sr4(S_SRC)}, 0 offen' + LSC)
        I('s_mov_b64 exec, -1')
    I(f'v_add_u32 v{X+9}, s{S_WID}, v{X+8}')
    I(f'v_add_u32 v{X+10}, 4, v{X+8}')
    I(f's_cmp_eq_u32 s{S_WID}, 128')
    I(f's_cselect_b32 s{S_T}, 64, 0x10000')
    I(f'v_add_u32 v{X+8}, s{S_T}, v{X+8}')
    for r in range(2):
        I(f'v_cmp_lt_u32_sdwa {MK(4+2*r)}, v{X+8}, v{V_TAB+r} {SDW}')
        I(f'v_cmp_lt_u32_sdwa {MK(2*r+1)}, v{X+10}, v{V_TAB+r} {SDW}')
    I(f'v_add_u32 v{X+8}, 4, v{X+8}')
    for r in range(2):
        I(f's_mov_b64 exec, {MK(4+2*r)}')
        I(f'buffer_load_dwordx2 {p(RB(4+2*r)+4)}, v{X+r}, {sr4(S_DST)}, 0 offen offset:64' + LSC)
        I(f'buffer_load_dwordx4 {vr(RB(4+2*r),4)}, v{X+2+r}, {sr4(S_SRC)}, 0 offen offset:128' + LSC)
    I('s_mov_b64 exec, -1')
    for r in range(2):
        I(f'v_cmp_lt_u32_sdwa {MK(5+2*r)}, v{X+8}, v{V_TAB+r} {SDW}')
    I(f'v_cmp_lt_u32_sdwa vcc, v{X+9}, v{V_TAB} {SDW}')
    I(f'v_cmp_lt_u32_sdwa {sp(S_T)}, v{X+9}, v{V_TAB+1} {SDW}')
    I(f'v_mov_b32 v{X+8}, 4')
    I(f's_or_b64 vcc, vcc, {sp(S_T)}')
    I(f's_cbranch_scc0 L_NOMORE')
    I(f'v_mov_b32 v{X+9}, {MISC}')
    I(f'ds_write_b32 v{X+9}, v{X+8}')
    L('L_NOMORE')
    stamp(11)
    for s_ in range(8):
        if s_ >= 4:
            I(f's_mov_b64 exec, {MK(s_)}')
            I(f's_cbranch_execz L_C{s_}')
        if s_ % 2 == 0:
            I(f's_waitcnt vmcnt({7 - s_})')
        if s_ < 4:
            I(f's_mov_b64 exec, {MK(s_)}')
        I(f'v_lshrrev_b32 v{AD+s_}, 24, v{RB(s_)+4+(s_&1)}')
        if opt('safe', 0):
            I(f'v_and_b32 v{AD+s_}, 0xfc, v{AD+s_}')
        I(f'ds_add_rtn_u32 v{RB(s_)+6+(s_&1)}, v{AD+s_}, v{X+8} offset:{CNT}')
        if s_ >= 4:
            L(f'L_C{s_}')
    I('s_mov_b64 exec, -1')
    I(f'v_lshlrev_b32 v{X+8}, 2, v{V_LANE}')
    I(f'v_mov_b32 v{X+9}, {MISC}')
    I(f's_mov_b32 s{S_T+2}, 0x1fff8')
    I('s_waitcnt lgkmcnt(0)')
    I('s_barrier')
    stamp(12)
    if NPFM in (2, 3, 4):
        nt_prefetch(60, dst=62)
        I(f's_mov_b32 s{S_T+2}, 0x1fff8')
    NG, GS, MI = X + 10, X + 11, X + 12
    I(f'ds_read_b32 v{NG}, v{X+8} offset:{CNT}')
    I(f'ds_read_b32 v{X+9}, v{X+9}')
    I('s_waitcnt lgkmcnt(1)')
    I(f'v_add_u32 v{NG}, 28, v{NG}')
    I(f'v_and_b32 v{NG}, 0xffffffe0, v{NG}')
    I(f'v_mov_b32 v{GS}, v{NG}')
    wave_scan(GS)
    I(f'v_readlane_b32 s{S_T}, v{GS}, 63')
    I(f'v_sub_u32 v{GS}, v{GS}, v{NG}')
    I(f'ds_write_b32 v{X+8}, v{GS} offset:{BASET}')
    for s_ in range(8):
        I(f's_mov_b64 exec, {MK(s_)}')
        I(f'ds_read_b32 v{AD+s_}, v{AD+s_} offset:{BASET}')
    I('s_mov_b64 exec, -1')
    I(f'v_readfirstlane_b32 s{S_MORE}, v{X+9}')
    out.insert(len(out) - 1, '    s_waitcnt lgkmcnt(9)')
    I(f's_lshr_b32 s{S_T}, s{S_T}, 5')
    I(f's_cmp_eq_u32 s{S_WID}, 128')
    I(f's_cselect_b32 s{S_T+1}, {MAXG}, -1')
    I(f's_cmp_gt_u32 s{S_T}, s{S_T+1}')
    I('s_cbranch_scc1 L_OVERFLOW')
    SB_, SR_, SG0 = S_T + 4, S_T + 5, S_T + 6
    I(f's_add_u32 s{S_T}, s{S_T}, 3')
    I(f's_lshr_b32 s{S_T}, s{S_T}, 2')
    I(f's_lshr_b32 s{SB_}, s{S_T}, 4')
    I(f's_and_b32 s{SR_}, s{S_T}, 15')
    I(f's_add_u32 s{S_T+1}, s{SB_}, 1')
    I(f'v_cvt_f32_u32 v{MI}, s{S_T+1}')
    I(f'v_cvt_f32_u32 v{MI+1}, s{SB_}')
    I(f'v_rcp_f32 v{MI}, v{MI}')
    I(f'v_rcp_f32 v{MI+1}, v{MI+1}')
    I(f's_mul_i32 s{SG0}, s{SR_}, s{S_T+1}')
    I(f's_lshl_b32 s{SG0}, s{SG0}, 2')
    I(f'v_lshrrev_b32 v{GS}, 5, v{GS}')
    I(f'v_mul_f32 v{MI}, 0x47800000, v{MI}')
    I(f'v_mul_f32 v{MI+1}, 0x47800000, v{MI+1}')
    I(f'v_lshrrev_b32 v{NG}, 5, v{NG}')
    I(f'v_cvt_u32_f32 v{MI}, v{MI}')
    I(f'v_cvt_u32_f32 v{MI+1}, v{MI+1}')
    I(f's_cmp_lt_u32 s{S_W}, s{SR_}')
    I(f's_cselect_b32 s{S_L}, s{S_T+1}, s{SB_}')
    I(f'v_add_u32 v{MI}, 2, v{MI}')
    I(f'v_add_u32 v{MI+1}, 2, v{MI+1}')
    I(f's_min_u32 s{S_T}, s{S_W}, s{SR_}')
    I(f's_mul_i32 s{S_T+3}, s{S_W}, s{SB_}')
    I(f's_add_u32 s{S_T+3}, s{S_T+3}, s{S_T}')
    I(f's_sub_u32 s{S_T+1}, 0, s{S_T+1}')
    I(f's_sub_u32 s{SB_}, 0, s{SB_}')
    I(f's_lshl_b32 s{SR_}, s{SR_}, 2')
    D0, D1, D2, D3, NR = 96, 97, 98, 99, 100
    I(f'v_lshlrev_b32 v{NR}, 8, v{V_LANE}')
    I(f'v_add_u32 v{NR+1}, {ACCN}, v{NR}')
    I(f's_mov_b32 s{S_T}, s{S_W}')
    L('L_DLOOP')
    I(f'v_cmp_lt_u32 vcc, s{S_T}, v{NG}')
    I('s_and_b64 exec, exec, vcc')
    I('s_cbranch_execz L_DEND')
    I(f'v_add_u32 v{D0}, s{S_T}, v{GS}')
    I(f'v_subrev_u32 v{D1}, s{SG0}, v{D0}')
    I(f'v_cmp_gt_u32 vcc, s{SG0}, v{D0}')
    I(f'v_mul_u32_u24 v{D2}, v{D0}, v{MI}')
    I(f'v_mul_u32_u24 v{D3}, v{D1}, v{MI+1}')
    I(f'v_lshrrev_b32 v{D2}, 16, v{D2}')
    I(f'v_lshrrev_b32 v{D3}, 16, v{D3}')
    I(f'v_mad_i32_i24 v{D0}, v{D2}, s{S_T+1}, v{D0}')
    I(f'v_mad_i32_i24 v{D1}, v{D3}, s{SB_}, v{D1}')
    I(f'v_add_u32 v{D3}, s{SR_}, v{D3}')
    I(f'v_cndmask_b32 v{D0}, v{D1}, v{D0}, vcc')
    I(f'v_cndmask_b32 v{D2}, v{D3}, v{D2}, vcc')
    I(f'v_cmp_le_u32 vcc, s{S_T}, v{D0}')
    I(f'v_lshl_add_u32 v{D0}, v{D0}, 6, v{D2}')
    I(f'v_lshlrev_b32 v{D1}, 8, v{D2}')
    I(f'v_lshlrev_b32 v{D0}, 2, v{D0}')
    I(f'v_add_u32 v{D1}, {EXTRA}, v{D1}')
    I(f'v_add_u32 v{D3}, {DESCA}, v{D0}')
    I(f'v_cndmask_b32 v{D1}, v{D1}, v{NR+1}, vcc')
    I(f'ds_write_b32 v{D0}, v{NR} offset:{DESCP}')
    I(f'ds_write_b32 v{D3}, v{D1}')
    I(f's_add_u32 s{S_T+7}, s{S_T}, 1')
    I(f'v_cmp_eq_u32 vcc, s{S_T+7}, v{NG}')
    I(f's_and_saveexec_b64 {sp(S_EX)}, vcc')
    I(f'ds_write_b32 v{X+8}, v{D2} offset:{NINFO+256}')
    I(f's_mov_b64 exec, {sp(S_EX)}')
    I(f's_cmp_lg_u32 s{S_T}, 0')
    I('s_cbranch_scc1 L_DNF')
    I(f'ds_write_b32 v{X+8}, v{D2} offset:{NINFO}')
    L('L_DNF')
    I(f's_add_u32 s{S_T}, s{S_T}, 16')
    I('s_branch L_DLOOP')
    L('L_DEND')
    I('s_mov_b64 exec, -1')
    I(f's_lshl_b32 s{S_T}, s{S_T+3}, 7')
    I(f's_lshl_b32 s{S_T+1}, s{S_L}, 5')
    I(f'v_mov_b32 v{D0}, s{S_T}')
    I(f'v_mad_u32_u24 v{V_PS0}, v{V_PS1}, s{S_T+1}, v{D0}')
    I(f'v_add_u32 v{D0}, v{D0}, v{D0}')
    I(f'v_add_u32 v{V_PS1}, s{S_T+1}, v{V_PS0}')
    I(f'v_add_u32 v{V_PE}, v{V_PE}, v{D0}')
    I(f's_lshl_b32 s{S_T+1}, s{S_L}, 6')
    I(f'v_mad_u32_u24 v{V_PE}, v{V_VAP}, s{S_T+1}, v{V_PE}')
    if opt('safe', 0):
        I(f's_min_u32 s{S_L}, s{S_L}, 9')
        I(f's_mov_b32 s{S_MORE}, 0')
    I(f's_mov_b32 s{S_CNT}, s{S_L}')
    I('s_waitcnt lgkmcnt(0)')
    I(f's_waitcnt vmcnt({NPF})')
    for s_ in range(8):
        wd, rk, ee = RB(s_) + 4 + (s_ & 1), RB(s_) + 6 + (s_ & 1), RB(s_) + 2 * (s_ & 1)
        I(f's_mov_b64 exec, {MK(s_)}')
        if s_ >= 4:
            I(f's_cbranch_execz L_P{s_}')
        I(f'v_add_u32 v{AD+s_}, v{AD+s_}, v{rk}')
        I(f'v_and_b32 v{wd}, s{S_T+2}, v{wd}')
        I(f'v_add_u32 v{rk}, v{AD+s_}, v{AD+s_}')
        I(f'ds_write_b32 v{AD+s_}, v{wd} offset:{LS}')
        I(f'ds_write_b64 v{rk}, {p(ee)} offset:{LE}')
        if s_ >= 4:
            L(f'L_P{s_}')
    I('s_mov_b64 exec, -1')
    stamp(13)
    I('s_waitcnt lgkmcnt(0)')
    I('s_barrier')
    stamp(14)
    I(f's_cmp_eq_u32 s{S_L}, 0')
    I('s_cbranch_scc1 L_FOLD')
    lg = Lg()
    FP = opt('fp', 0)
    if FP:
        for lvl in (3, 2, 1):
            I(f's_cmp_lt_u32 s{S_W}, {4 * (4 - lvl)}')
            I(f's_cbranch_scc0 L_FP{lvl}')
            I(f's_setprio {lvl}')
            I('s_branch L_FPD')
            L(f'L_FP{lvl}')
        L('L_FPD')
    s_reads(lg, 0)
    lg.op('dP', f'ds_read_b64 {p(V_VAP)}, v{V_PD}')
    lg.op('dA', f'ds_read_b64 {p(V_VAA[0])}, v{V_PD} offset:{DESCA-DESCP}')
    lg.op('e', f'ds_read_b64 {p(A5)}, v{V_PE}')
    lg.need('S0', 'S1', 'S2', 'S3')
    s_safe()
    STG_ = [int(x) for x in opt('stag', '0,0,0').split(',')]
    for gi, d in enumerate(STG_):
        if d:
            I(f's_cmp_ge_u32 s{S_W}, {4 * (gi + 1)}')
            I(f's_cbranch_scc0 L_ST{gi}')
            I(f's_sleep {d}')
            L(f'L_ST{gi}')
    for n in range(2):
        for i in range(16):
            I(gload(n, i))
        if n == 0 and FP == 2:
            I('s_setprio 0')
    s_reads(lg, 1)
    I(f'v_mov_b32 v{V_C8P}, v{V_CH8}')
    I(f'v_mov_b32 v{V_C8P+1}, v{V_CH8}')
    I(f'v_mov_b32 v{V_CPP}, v{V_CHP}')
    I(f'v_mov_b32 v{V_CPP+1}, v{V_CHP}')
    if M8:
        I(f'v_mov_b32 v{V_SCP}, 0x{f2u(2.0**KH):x}')
        I(f'v_mov_b32 v{V_SCP+1}, 0x{f2u(2.0**KH):x}')
    I(f's_mov_b32 s{S_BP0}, 64')
    I(f's_mov_b32 s{S_BP0+1}, 64')
    I(f's_mov_b32 s{S_BP1}, 128')
    I(f's_mov_b32 s{S_BP1+1}, 512')
    lg.need('dP', 'dA')
    va_add(V_VAP, V_VAA[0])
    lg.op('P0a', f'ds_read_b32 v{B5[0]+2}, v{V_VAP}')
    lg.op('P0b', f'ds_read_b32 v{B5[0]+3}, v{V_VAP+1}')
    lg.op('P1a', f'ds_read_b32 v{B5[1]+2}, v{V_VAP} offset:4')
    lg.op('P1b', f'ds_read_b32 v{B5[1]+3}, v{V_VAP+1} offset:4')
    I(f's_cmp_eq_u32 s{S_CNT}, 1')
    I(f's_cselect_b64 {sp(S_LDX)}, 0, {LDXV}')
    I('s_waitcnt lgkmcnt(0)')
    lg.q = []
    if opt('prio', 3):
        I('s_setprio 3')
    stamp(15)
    rstamp(28)
    half(lg, 0, 0, 0, False)
    if PROF == 4:
        stamp(19)
        lg.q = []
    state0 = list(lg.q)
    def step(par, uo):
        prio(f'm{par}', 1)
        half(lg, 1, par, uo)
        if PROF == 4:
            I('s_memtime s[98:99]')
            I(f's_sub_u32 s92, s{S_L}, s{S_CNT}')
            I(f's_add_u32 m0, s92, 20')
            I('s_waitcnt lgkmcnt(0)')
            I(f'v_writelane_b32 v{V_PROF}, s98, m0')
        I(f's_sub_u32 s{S_CNT}, s{S_CNT}, 1')
        I(f's_cmp_eq_u32 s{S_CNT}, 0')
        I(f's_cbranch_scc1 L_FIN{par}')
        I(f's_cmp_eq_u32 s{S_CNT}, 1')
        I(f's_cselect_b64 {sp(S_LDX)}, 0, {LDXV}')
        prio(f'{par}')
        half(lg, 0, par ^ 1, uo + 1)
    def loop_body():
        step(0, 0)
        step(1, 1)
        I(f'v_lshl_add_u64 {p(V_PS0)}, {p(V_PS0)}, 0, {sp(S_BP0)}')
        I(f'v_lshl_add_u64 {p(V_PE)}, {p(V_PE)}, 0, {sp(S_BP1)}')
        I('s_branch L_LOOP')
    mark = len(out)
    loop_body()
    del out[mark:]
    qb = list(lg.q)
    n = min(len(qb), len(state0))
    assert PROF == 4 or qb[len(qb)-n:] == state0[len(state0)-n:], (state0, qb)
    lg.q = list(qb if len(qb) >= len(state0) else state0)
    e('.p2align 3')
    L('L_LOOP')
    mark = len(out)
    loop_body()
    drop = opt('drop', '')
    if drop:
        body = out[mark:]
        keep = []
        for l in body:
            t = l.strip()
            if 'v' in drop and (t.startswith('buffer_load') or t.startswith('s_mov_b64 exec') or 'vmcnt' in t):
                continue
            if 'l' in drop and (t.startswith('ds_') or 'lgkmcnt' in t):
                continue
            if 'm' in drop and t.startswith('v_mfma'):
                continue
            if 'n' in drop and t.startswith('s_nop'):
                continue
            keep.append(l)
        out[mark:] = keep
    assert lg.q == qb, (lg.q, qb)
    print('loop entry queue', state0, 'back edge queue', qb, file=sys.stderr)
    for pr in range(2):
        L(f'L_FIN{pr}')
        if M8:
            I(f'v_pk_mul_f32 {p(V_T01N)}, {p(V_T01N)}, {p(V_T23D)}')
            I(f'v_pk_mul_f32 {p(V_T23D)}, {p(V_T01D)}, {p(V_T23D)}')
            I(f'v_pk_fma_f32 {p(V_T01N)}, {p(V_T23N)}, {p(V_T01D)}, {p(V_T01N)}')
            I(f'v_rcp_f32 v{V_T23D}, v{V_T23D}')
            I(f'v_rcp_f32 v{V_T23D+1}, v{V_T23D+1}')
            I('s_waitcnt lgkmcnt(0)')
            I(f'v_pk_fma_f32 {p(V_MB)}, {p(V_T01N)}, {p(V_T23D)}, {p(V_MB)}')
        else:
            for r_ in (V_T01D, V_T01D + 1, V_T23D, V_T23D + 1):
                I(f'v_rcp_f32 v{r_}, v{r_}')
            I('s_waitcnt lgkmcnt(0)')
            I(f'v_pk_fma_f32 {p(V_MB)}, {p(V_T01N)}, {p(V_T01D)}, {p(V_MB)}')
            I(f'v_pk_fma_f32 {p(V_MB)}, {p(V_T23N)}, {p(V_T23D)}, {p(V_MB)}')
        acc_write(Lg(), V_VAA[pr])
        if pr == 0:
            I('s_branch L_FOLD')
    L('L_FOLD')
    stamp(16)
    I(f'v_lshrrev_b32 v{X}, 4, v{V_TID}')
    I(f'v_and_b32 v{X+1}, 15, v{V_TID}')
    I(f'v_lshlrev_b32 v{X+6}, 2, v{X+1}')
    I(f'v_lshlrev_b32 v{X+1}, 4, v{X+1}')
    I(f'v_lshl_add_u32 v{X+2}, v{X}, 8, v{X+1}')
    I(f'v_add_u32 v{X+2}, {ACCN}, v{X+2}')
    I(f'v_add_u32 v{X+1}, {EXTRA}, v{X+1}')
    I(f'v_lshlrev_b32 v{X+3}, 2, v{X}')
    I(f's_mul_i32 s{S_T+4}, s3, {NB*128}')
    I(f'v_lshl_add_u32 v{X+6}, v{X}, 7, v{X+6}')
    I(f'v_add_u32 v{X+6}, s{S_T+4}, v{X+6}')
    I(f'v_mov_b32 v{X+7}, 0')
    I(f'ds_read_b32 v{X+4}, v{X+3} offset:{NINFO}')
    I(f'ds_read_b32 v{X+5}, v{X+3} offset:{NINFO+256}')
    I(f's_mov_b32 s{S_T+2}, 0x{f2u(2.0**-(SV+KH)):x}')
    I(f's_mov_b32 s{S_T+3}, 0x{f2u(-LOG2E * 2.0**-(SV+KH)):x}')
    I(f'v_cmp_gt_u32 vcc, {NB*16}, v{V_TID}')
    I('s_waitcnt vmcnt(0) lgkmcnt(0)')
    I('s_barrier')
    stamp(17)
    rstamp(29)
    if PROF:
        I(f'v_writelane_b32 v{V_PROF}, s{S_L}, 27')
    I(f's_and_saveexec_b64 {sp(S_EX)}, vcc')
    I('s_cbranch_execz L_FDONE')
    I(f'ds_read_b128 v[64:67], v{X+2}')
    I(f's_mov_b64 {sp(S_T)}, exec')
    L('L_FLOOP')
    I(f'v_cmp_lt_u32 vcc, v{X+4}, v{X+5}')
    I('s_and_b64 exec, exec, vcc')
    I('s_cbranch_execz L_FLEND')
    I(f'v_add_u32 v{X+4}, 1, v{X+4}')
    I(f'v_lshl_add_u32 v{X+7}, v{X+4}, 8, v{X+1}')
    I(f'ds_read_b128 v[72:75], v{X+7}')
    I('s_waitcnt lgkmcnt(0)')
    for k in range(4):
        I(f'v_add_f32 v{64+k}, v{64+k}, v{72+k}')
    I('s_branch L_FLOOP')
    L('L_FLEND')
    I(f's_mov_b64 exec, {sp(S_T)}')
    I('s_waitcnt lgkmcnt(0)')
    I(f's_cmp_lg_u32 s{S_MORE}, 0')
    I('s_cbranch_scc1 L_WB')
    for k in range(4):
        I(f'v_mul_f32 v{72+k}, s{S_T+3}, v{64+k}')
    for k in range(4):
        I(f'v_exp_f32 v{72+k}, v{72+k}')
    for k in range(4):
        I(f'v_mul_f32 v{64+k}, s{S_T+2}, v{64+k}')
    for k in range(4):
        I(f'v_add_f32 v{72+k}, 1.0, v{72+k}')
    for k in range(4):
        I(f'v_rcp_f32 v{72+k}, v{72+k}')
    I('s_nop 0')
    for k in range(4):
        I(f'v_mul_f32 v{64+k}, v{64+k}, v{72+k}')
    I('v_cvt_pk_bf16_f32 v80, v64, v66')
    I('v_cvt_pk_bf16_f32 v81, v65, v67')
    I(f'buffer_store_dword v80, v{X+6}, {sr4(S_OUT)}, 0 offen' + OSC)
    I(f'buffer_store_dword v81, v{X+6}, {sr4(S_OUT)}, 0 offen offset:64' + OSC)
    stamp(18)
    prof_store()
    diag_end()
    I('s_endpgm')
    L('L_WB')
    I(f'ds_write_b128 v{X+2}, v[64:67]')
    L('L_FDONE')
    I('s_mov_b64 exec, -1')
    I(f's_cmp_eq_u32 s{S_MORE}, 0')
    I('s_cbranch_scc1 L_QUIT')
    I(f's_add_u32 s{S_JB}, s{S_JB}, s{S_WID}')
    I('s_branch L_REFILL')
    L('L_OVERFLOW')
    I(f's_mov_b32 s{S_WID}, 64')
    L('L_REFILL')
    I('s_waitcnt vmcnt(0) lgkmcnt(0)')
    I('s_barrier')
    fill_zero()
    fill_words()
    ptr_consts()
    I('s_waitcnt lgkmcnt(0)')
    I('s_barrier')
    I('s_branch L_PASS')
    L('L_QUIT')
    prof_store()
    L('L_END')
    I('s_endpgm')

hdr = open('standalone__edge_featured_mpnn_egc__graph.s.ref').read().split('\n')
for line in hdr:
    if line.startswith('; Override'):
        break
    e(line)
e(f'; @launch grid=({NWG},1,1) block=(1024,1,1) lds={LDS_BYTES}')
e('.amdgcn_target "amdgcn-amd-amdhsa--gfx950"')
e('.text')
gen()
e('.section .rodata,"a"')
e('.p2align 6')
e(f'.amdhsa_kernel {KNAME}')
e('  .amdhsa_next_free_vgpr 128')
e('  .amdhsa_next_free_sgpr 102')
e('  .amdhsa_accum_offset 128')
e('  .amdhsa_group_segment_fixed_size 0')
e('  .amdhsa_kernarg_size 80')
e('  .amdhsa_user_sgpr_count 2')
e('  .amdhsa_user_sgpr_kernarg_segment_ptr 1')
e('  .amdhsa_system_sgpr_workgroup_id_x 1')
e('  .amdhsa_float_denorm_mode_32 3')
e('.end_amdhsa_kernel')
open(sys.argv[1], 'w').write('\n'.join(x for x in out if x is not None) + '\n')
```

```python
import sys, struct

OPT = dict(a.split('=') for a in sys.argv[2:] if '=' in a)
def opt(name, default):
    return type(default)(OPT.get(name, default))

KNAME = 'standalone__edge_featured_mpnn_egc__graph_kernel'
N_NODES = 12500
E_EDGES = 800000
NB = 49
NWG = 256
CH = 3136
WS_RW = 0
WS_RE = 0x00400000
CAP = CH + 256
WS_TAB = 0x00B00000
WS_NT = 0x00C00000
WS_PROF = 0x01000000
M8 = opt('m8', 0)
if M8:
    KH, KEXP, SV = 13, 26, 0
else:
    KH, KEXP, SV = 31, 31, 30
LOG2E = 1.4426950408889634
SC = opt('sc', 'sc1')
SC = (' ' + SC.replace('+', ' ')) if SC != 'none' else ''
LSC = opt('lsc', 'sc1')
LSC = (' ' + LSC.replace('+', ' ')) if LSC != 'none' else ''
GSC = opt('gsc', 'sc1')
GSC = (' ' + GSC.replace('+', ' ')) if GSC != 'none' else ''
ELD = opt('eld', 'none')
ELD = (' ' + ELD.replace('+', ' ')) if ELD != 'none' else ''

def f2u(x):
    return struct.unpack('<I', struct.pack('<f', x))[0]

out = []
def e(s=''):
    out.append(s)
def I(s):
    out.append('    ' + s)
def L(name):
    out.append(name + ':')
def vr(a, n):
    return f'v[{a}:{a+n-1}]' if n > 1 else f'v{a}'
def sr4(a):
    return f's[{a}:{a+3}]'
def sp(a):
    return f's[{a}:{a+1}]'
def p(r):
    return f'v[{r}:{r+1}]'

def srd(d, lo, hi, nrec):
    I(f's_mov_b32 s{d}, s{lo}')
    I(f's_mov_b32 s{d+1}, s{hi}')
    I(f's_mov_b32 s{d+2}, {nrec}')
    I(f's_mov_b32 s{d+3}, 0x00020000')

def srd_off(d, lo, hi, off, nrec):
    I(f's_add_u32 s{d}, s{lo}, {off}')
    I(f's_addc_u32 s{d+1}, s{hi}, 0')
    I(f's_mov_b32 s{d+2}, {nrec}')
    I(f's_mov_b32 s{d+3}, 0x00020000')

def wave_scan(v):
    for sh in (1, 2, 4, 8):
        I('s_nop 1')
        I(f'v_add_u32_dpp v{v}, v{v}, v{v} row_shr:{sh} row_mask:0xf bank_mask:0xf')
    I('s_nop 1')
    I(f'v_add_u32_dpp v{v}, v{v}, v{v} row_bcast:15 row_mask:0xa bank_mask:0xf')
    I('s_nop 1')
    I(f'v_add_u32_dpp v{v}, v{v}, v{v} row_bcast:31 row_mask:0xc bank_mask:0xf')
    I('s_nop 1')

LS = 0
ZR = 18688
LE = 18688
CNT = 56064
MISC = 56320
BASET = 56576
NINFO = 56832
HIST = 57344
HBASE = 58368
DESCP = 59392
EXTRA = 67840
DESCA = 84224
PT = 86784
ACCN = 99328
WRAW = 111872
WG_, WV_, WU_ = WRAW, WRAW + 17408, WRAW + 25600
XOWN = WRAW + 33792
LDS_BYTES = XOWN + 8192
STGW = 0
STGE = CAP * 4
NTI = EXTRA
MAXG = 576
assert STGE + CAP * 8 <= CNT

V_TID, V_LANE = 0, 1
V_MA, V_MB = 2, 4
V_VAA = (6, 8)
V_VAP = 10
V_PS0, V_PS1, V_PE, V_PD, V_CH8, V_CHP = 12, 13, 14, 15, 16, 17
V_PROF = 18
V_TAB = 20
V_J4, V_CB4 = 24, 25
V_X = 26
V_T01D, V_T01N, V_T23D, V_T23N = 40, 42, 44, 46
B5 = (48, 52)
A5 = 56
V_TT = (60, 62)
G = (64, 80)
Z = 96
S = 112

S_XS, S_WS, S_DST, S_SRC, S_EA, S_RW, S_RE, S_TAB, S_NTS, S_NTG, S_OUT = 12, 16, 20, 24, 28, 32, 36, 40, 44, 48, 52
S_MASK = 56
S_W, S_L, S_CNT, S_JB, S_WID, S_MORE = 72, 73, 74, 75, 76, 77
S_C = 78
S_EX = 80
S_LDX = 82
S_T = 84
S_WSP = 94
S_DBG = 96
S_TAG, S_TAG2 = 100, 101
TAGM = 0xC003C003
TAGL = MISC + 64

NT2 = 2 if opt('touch', 0) else 0
LDXV = 0 if opt('noload', 0) else -1
NPFM = opt('npf', 4)
NPF = {0: 0, 1: 7, 2: 7, 3: 2, 4: 1, 5: 1}[NPFM]
NPF1 = NPF if NPFM in (1, 5) else 0
WSB = opt('wsb', 0) << 20
TCH = 4 if opt('touch', 0) else 0
T1 = opt('t1', 0)
OSC = opt('osc', 'nt')
OSC = (' ' + OSC.replace('+', ' ')) if OSC != 'none' else ''
KREP = opt('krep', 1)
assert KREP == 1
PROF = opt('prof', 0)
DIAG = opt('diag', -1)
def diag_end():
    if DIAG < 0:
        return
    I('s_memrealtime s[98:99]')
    I('s_waitcnt lgkmcnt(0)')
    I('v_readlane_b32 s92, v18, 1')
    I('v_readlane_b32 s93, v18, 0')
    I('s_nop 3')
    I('s_sub_u32 s92, s92, s93')
    I('s_lshl_b32 s92, s92, 2')
    I('s_mov_b32 s93, s98')
    lbl = f'L_DG{len(out)}'
    L(lbl)
    I('s_memrealtime s[98:99]')
    I('s_waitcnt lgkmcnt(0)')
    I('s_sub_u32 s98, s98, s93')
    I('s_cmp_lt_u32 s98, s92')
    I(f's_cbranch_scc1 {lbl}')
def stamp(i):
    if DIAG >= 0 and i in (0, DIAG):
        I('s_memrealtime s[98:99]')
        I('s_waitcnt lgkmcnt(0)')
        if i == 0:
            I('v_writelane_b32 v18, s98, 0')
        if i == DIAG:
            I('v_writelane_b32 v18, s98, 1')
    if not PROF:
        return
    I('s_memtime s[98:99]')
    I('s_waitcnt lgkmcnt(0)')
    I(f'v_writelane_b32 v{V_PROF}, s98, {i}')
def rstamp(i):
    if not PROF:
        return
    I('s_memrealtime s[98:99]')
    I('s_waitcnt lgkmcnt(0)')
    I(f'v_writelane_b32 v{V_PROF}, s98, {i}')
def prof_store():
    if not PROF:
        return
    rstamp(31)
    if PROF == 3:
        I(f's_lshl_b32 s98, s2, 4')
        I(f's_add_u32 s98, s98, s{S_W}')
        I(f's_cmp_lg_u32 s98, {opt("pwave", 80)}')
        I('s_cbranch_scc1 L_END')
        I('s_mov_b64 exec, -1')
        I(f'v_readlane_b32 s98, v{V_PROF}, 0')
        I(f'v_readlane_b32 s99, v{V_PROF}, 30')
        I(f'v_readlane_b32 s{S_T}, v{V_PROF}, 31')
        I('s_nop 3')
        I(f's_sub_u32 s{S_T}, s{S_T}, s99')
        I(f's_add_u32 s{S_T}, s{S_T}, s98')
        I(f'v_writelane_b32 v{V_PROF}, s{S_T}, 9')
        I(f'v_subrev_u32 v{V_PROF}, s98, v{V_PROF}')
        I(f'v_mbcnt_lo_u32_b32 v{V_PROF+1}, -1, 0')
        I(f'v_lshlrev_b32 v{V_PROF+1}, 2, v{V_PROF+1}')
        I(f'v_add_u32 v{V_PROF+1}, -8, v{V_PROF+1}')
        I('s_mov_b64 exec, 0x3fff8')
        I(f'global_store_dword v{V_PROF+1}, v{V_PROF}, {sp(S_DBG)}')
        return
    I('s_mov_b64 exec, 0xffffffff')
    I(f's_add_u32 s{S_T}, s{S_WSP}, 0x{WS_PROF:x}')
    I(f's_addc_u32 s{S_T+1}, s{S_WSP+1}, 0')
    I(f'v_mbcnt_lo_u32_b32 v{V_PROF+1}, -1, 0')
    I(f'v_lshlrev_b32 v{V_PROF+1}, 2, v{V_PROF+1}')
    I(f's_lshl_b32 s98, s2, 4')
    I(f's_add_u32 s98, s98, s{S_W}')
    I(f's_lshl_b32 s98, s98, 7')
    I(f'v_add_u32 v{V_PROF+1}, s98, v{V_PROF+1}')
    I(f'global_store_dword v{V_PROF+1}, v{V_PROF}, {sp(S_T)}')

class Lg:
    def __init__(self):
        self.q = []
    def op(self, tag, text):
        I(text)
        self.q.append(tag)
    def need(self, *tags):
        idx = -1
        for t in tags:
            for i in range(len(self.q) - 1, -1, -1):
                if self.q[i] == t:
                    idx = max(idx, i)
                    break
        if idx < 0:
            return
        n = len(self.q) - 1 - idx
        assert n <= 15, (tags, n)
        I(f's_waitcnt lgkmcnt({n})')
        self.q = self.q[idx + 1:]

X = V_X

def zero_range(a, nbytes, zr, ad):
    k = 0
    base = a if a + nbytes <= 65536 + 16384 and a < 65536 - 3 * 16384 else None
    off = 0
    areg = ad
    if a + ((nbytes - 1) // 16384) * 16384 > 65535:
        I(f'v_add_u32 v{X+1}, {a}, v{ad}')
        areg = X + 1
        a0 = 0
    else:
        a0 = a
    while off < nbytes:
        n = min(16384, nbytes - off)
        if n < 16384:
            I(f'v_cmp_gt_u32 vcc, {n // 16}, v{V_TID}')
            I(f's_and_saveexec_b64 {sp(S_EX)}, vcc')
        I(f'ds_write_b128 v{areg}, v[{zr}:{zr+3}] offset:{a0 + off}')
        if n < 16384:
            I(f's_mov_b64 exec, {sp(S_EX)}')
        off += n

def zregs():
    I(f'v_lshlrev_b32 v{X}, 4, v{V_TID}')
    for k in range(4):
        I(f'v_mov_b32 v{X+2+k}, 0')

def fill_desca():
    I(f'v_and_b32 v{X+6}, 15, v{V_TID}')
    I(f'v_lshlrev_b32 v{X+6}, 10, v{X+6}')
    I(f'v_add_u32 v{X+6}, {EXTRA}, v{X+6}')
    for k in range(1, 4):
        I(f'v_add_u32 v{X+6+k}, {256*k}, v{X+6}')
    I(f'v_add_u32 v{X+1}, {DESCA}, v{X}')
    I(f'v_cmp_gt_u32 vcc, 160, v{V_TID}')
    I(f's_and_saveexec_b64 {sp(S_EX)}, vcc')
    I(f'ds_write_b128 v{X+1}, v[{X+6}:{X+9}]')
    I(f's_mov_b64 exec, {sp(S_EX)}')

def fill_zero():
    zregs()
    zero_range(ZR, 65536, X + 2, X)
    fill_desca()

def fill_words():
    I(f'v_lshlrev_b32 v{X}, 4, v{V_TID}')
    I(f'v_and_b32 v{X+2}, 7, v{V_TID}')
    I(f'v_lshlrev_b32 v{X+2}, 5, v{X+2}')
    I(f'v_add_u32 v{X+2}, {N_NODES*8}, v{X+2}')
    for k in range(1, 4):
        I(f'v_add_u32 v{X+2+k}, {8*k}, v{X+2}')
    I(f'ds_write_b128 v{X}, v[{X+2}:{X+5}] offset:{LS}')
    I(f'v_cmp_gt_u32 vcc, 144, v{V_TID}')
    I(f's_and_saveexec_b64 {sp(S_EX)}, vcc')
    I(f'ds_write_b128 v{X}, v[{X+2}:{X+5}] offset:{LS+16384}')
    I(f's_mov_b64 exec, {sp(S_EX)}')

V_C8P, V_CPP, V_SCP = 26, 28, 30
S_BP0, S_BP1 = 88, 90

def tail_ops(n):
    M = (V_MA, V_MB)[n]
    return [f'v_rcp_f32 v{V_T01D}, v{V_T01D}',
            f'v_rcp_f32 v{V_T01D+1}, v{V_T01D+1}',
            f'v_pk_fma_f32 {p(M)}, {p(V_T01N)}, {p(V_T01D)}, {p(M)}']

def acc_write(lg, va):
    lg.op('Wa', f'ds_write2_b32 v{va}, v{V_MA}, v{V_MB} offset0:0 offset1:1')
    lg.op('Wb', f'ds_write2_b32 v{va+1}, v{V_MA+1}, v{V_MB+1} offset0:0 offset1:1')

def acc_read(lg, va):
    lg.op('Ra', f'ds_read_b32 v{V_MA}, v{va}')
    lg.op('Rb', f'ds_read_b32 v{V_MA+1}, v{va+1}')
    lg.op('Rc', f'ds_read_b32 v{V_MB}, v{va} offset:4')
    lg.op('Rd', f'ds_read_b32 v{V_MB+1}, v{va+1} offset:4')

def va_add(vap, vaa):
    I(f'v_lshl_add_u64 {p(vap)}, {p(vap)}, 0, {p(V_CPP)}')
    I(f'v_lshl_add_u64 {p(vaa)}, {p(vaa)}, 0, {p(V_C8P)}')

def gload(n, i):
    return f'buffer_load_dword v{G[n]+i}, v{S + (i & 1) * 8 + (i >> 1)}, {sr4(S_NTG)}, 0 offen offset:{4*n}' + GSC

def s_safe():
    if opt('safe', 0):
        for i in range(16):
            I(f'v_and_b32 v{S+i}, 0x1fff8, v{S+i}')

def s_reads(lg, uo):
    lg.op('S0', f'ds_read_b128 {vr(S,4)}, v{V_PS0} offset:{uo*32}')
    lg.op('S1', f'ds_read_b128 {vr(S+4,4)}, v{V_PS0} offset:{uo*32+16}')
    lg.op('S2', f'ds_read_b128 {vr(S+8,4)}, v{V_PS1} offset:{uo*32}')
    lg.op('S3', f'ds_read_b128 {vr(S+12,4)}, v{V_PS1} offset:{uo*32+16}')

def half(lg, n, par, uo, with_tail=True):
    g = G[n]
    I('s_waitcnt vmcnt(16)')
    if n == 0:
        lg.need('P0a', 'P0b', 'e')
    else:
        lg.need('P1a', 'P1b')
    I(f'v_mfma_f32_32x32x16_bf16 {vr(Z,16)}, {vr(A5,4)}, {vr(B5[n],4)}, {vr(g,16)}')
    t = tail_ops(n ^ 1)
    va_prev, va_cur, va_nxt = V_VAA[par ^ 1], V_VAA[par], V_VAA[par ^ 1]
    sh = [f'v_lshlrev_b32 v{g+i}, 16, v{g+i}' for i in range(16)]
    ex = [f'v_exp_f32 v{Z+i}, v{Z+i} clamp' for i in range(16)]
    l3 = [f'v_pk_mul_f32 {p(V_T01N)}, {p(V_T01N)}, {p(V_T23D)}',
          f'v_pk_mul_f32 {p(V_T23D)}, {p(V_T01D)}, {p(V_T23D)}',
          f'v_pk_fma_f32 {p(V_T01N)}, {p(V_T23N)}, {p(V_T01D)}, {p(V_T01N)}',
          f'v_rcp_f32 v{V_T23D}, v{V_T23D}',
          f'v_rcp_f32 v{V_T23D+1}, v{V_T23D+1}',
          f'v_pk_fma_f32 {p((V_MA, V_MB)[n ^ 1])}, {p(V_T01N)}, {p(V_T23D)}, {p((V_MA, V_MB)[n ^ 1])}']
    if with_tail and not M8:
        for r_ in (V_T01D, V_T01D + 1, V_T23D, V_T23D + 1):
            I(f'v_rcp_f32 v{r_}, v{r_}')
    else:
        I('s_nop 3')
    if n == 1:
        lg.op('e', f'ds_read_b64 {p(A5)}, v{V_PE} offset:{(uo+1)*64}')
        lg.op('P1a', f'ds_read_b32 v{B5[1]+2}, v{V_VAP} offset:4')
        lg.op('P1b', f'ds_read_b32 v{B5[1]+3}, v{V_VAP+1} offset:4')
    else:
        lg.op('dP', f'ds_read_b64 {p(V_VAP)}, v{V_PD} offset:{(uo+1)*256}')
        I('s_nop 1')
    for op in sh[:8]:
        I(op)
    seq = []
    if with_tail and not M8:
        Mp = p((V_MA, V_MB)[n ^ 1])
        seq = ['NEED', f'v_pk_fma_f32 {Mp}, {p(V_T01N)}, {p(V_T01D)}, {Mp}', ex[0],
               f'v_pk_fma_f32 {Mp}, {p(V_T23N)}, {p(V_T23D)}, {Mp}', sh[8], 'ACC', ex[1], sh[9]]
    elif with_tail:
        seq = [l3[0], l3[1], ex[0], l3[2], l3[3], sh[8], l3[4], ex[1], sh[9], 'NEED', l3[5], 'ACC']
    else:
        seq = [ex[0], sh[8], ex[1], sh[9], 'ACC']
    for op in seq:
        if op == 'NEED':
            lg.need('Ra', 'Rb', 'Rc', 'Rd')
        elif op == 'ACC':
            if n == 0:
                if with_tail:
                    acc_write(lg, va_prev)
                acc_read(lg, va_cur)
                lg.op('dA', f'ds_read_b64 {p(va_nxt)}, v{V_PD} offset:{(uo+1)*256 + DESCA - DESCP}')
        else:
            I(op)
    for i in range(2, 12):
        I(ex[i])
        if 8 + i < 16:
            I(sh[8 + i])
        if n == 0 and i == 11:
            lg.need('dP', 'dA')
            va_add(V_VAP, va_nxt)
            lg.op('P0a', f'ds_read_b32 v{B5[0]+2}, v{V_VAP}')
            lg.op('P0b', f'ds_read_b32 v{B5[0]+3}, v{V_VAP+1}')
    for op in ex[12:]:
        I(op)
    for i in range(0, 16, 2):
        if M8:
            I(f'v_pk_fma_f32 {p(Z+i)}, {p(Z+i)}, {p(V_SCP)}, {sp(S_C)}')
        else:
            I(f'v_pk_add_f32 {p(Z+i)}, {p(Z+i)}, {sp(S_C)}')
    def T(k): return f'v_pk_mul_f32 {p(V_TT[k&1])}, {p(g+4*k)}, {p(Z+4*k+2)}'
    def DD(k): return f'v_pk_mul_f32 {p(Z+4*k+2)}, {p(Z+4*k)}, {p(Z+4*k+2)}'
    def NN(k): return f'v_pk_fma_f32 {p(Z+4*k)}, {p(g+4*k+2)}, {p(Z+4*k)}, {p(V_TT[k&1])}'
    for k0 in (0, 2):
        for op in (T(k0), T(k0 + 1), DD(k0), DD(k0 + 1), NN(k0), NN(k0 + 1)):
            I(op)
        if n == 0 and k0 == 0:
            lg.need('S0', 'S1', 'S2', 'S3')
            s_safe()
        I(f's_mov_b64 exec, {sp(S_LDX)}')
        for i in range(4 * k0, 4 * k0 + 8):
            I(gload(n, i))
        I('s_mov_b64 exec, -1')
    if n == 1:
        s_reads(lg, uo + 2)
    I(f'v_pk_mul_f32 {p(V_T01N)}, {p(Z)}, {p(Z+6)}')
    I(f'v_pk_mul_f32 {p(V_T23N)}, {p(Z+8)}, {p(Z+14)}')
    I(f'v_pk_mul_f32 {p(V_T01D)}, {p(Z+2)}, {p(Z+6)}')
    I(f'v_pk_mul_f32 {p(V_T23D)}, {p(Z+10)}, {p(Z+14)}')
    I(f'v_pk_fma_f32 {p(V_T01N)}, {p(Z+4)}, {p(Z+2)}, {p(V_T01N)}')
    I(f'v_pk_fma_f32 {p(V_T23N)}, {p(Z+12)}, {p(Z+10)}, {p(V_T23N)}')

PRIO = {
    3: {(3, 0): 2, (2, 0): 1, (1, 0): 0},
    5: {(2, 0): 2, (1, 0): 1, (1, 1): 0},
    6: {(3, 0): 2, (1, 0): 1, (1, 1): 0},
    7: {(2, 1): 2, (1, 0): 1, (1, 1): 0},
    8: {(4, 0): 2, (2, 0): 1, (1, 1): 0},
    9: {(3, 0): 2, (2, 1): 1, (1, 1): 0},
    0: {},
}[opt('prio', 9)]
def prio(tag, phase=0):
    for (t, ph), lvl in PRIO.items():
        if ph != phase:
            continue
        I(f's_cmp_eq_u32 s{S_CNT}, {t}')
        I(f's_cbranch_scc0 L_PR{tag}_{lvl}')
        I(f's_setprio {lvl}')
        L(f'L_PR{tag}_{lvl}')

def split_hilo(a, b, t0, t1):
    I(f'v_cvt_pk_bf16_f32 v{t0}, v{a}, v{b}')
    I(f'v_lshlrev_b32 v{t1}, 16, v{t0}')
    I(f'v_and_b32 v{t0}, 0xffff0000, v{t0}')
    I(f'v_sub_f32 v{a}, v{a}, v{t1}')
    I(f'v_sub_f32 v{b}, v{b}, v{t0}')
    I(f'v_cvt_pk_bf16_f32 v{a}, v{t1}, v{a}')
    I(f'v_cvt_pk_bf16_f32 v{b}, v{t0}, v{b}')

V_AA, V_AB, V_AD, V_AP = 6, 7, 8, 9
SA, SB, SD = 80, 96, 112

def phase0_addr():
    I(f's_and_b32 s{S_T}, s{S_W}, 3')
    I(f's_lshr_b32 s{S_T+1}, s{S_W}, 2')
    I(f'v_and_b32 v12, 15, v{V_LANE}')
    I(f'v_lshrrev_b32 v13, 4, v{V_LANE}')
    I(f'v_bfe_u32 v14, v{V_LANE}, 1, 3')
    I(f'v_xor_b32 v14, v14, v13')
    I(f'v_lshlrev_b32 v14, 4, v14')
    I(f'v_lshl_or_b32 v14, v12, 7, v14')
    I(f's_lshl_b32 s{S_T+2}, s{S_T}, 11')
    I(f'v_add_u32 v{V_AA}, s{S_T+2}, v14')
    I(f'v_bfe_u32 v14, v{V_LANE}, 2, 2')
    I(f'v_lshl_add_u32 v14, v13, 3, v14')
    I(f'v_lshlrev_b32 v14, 7, v14')
    I(f'v_and_b32 v15, 3, v{V_LANE}')
    I(f'v_lshl_add_u32 v14, v15, 3, v14')
    I(f's_lshl_b32 s{S_T+2}, s{S_T+1}, 5')
    I(f'v_or_b32 v14, s{S_T+2}, v14')
    I(f'v_and_b32 v15, 24, v{V_LANE}')
    I(f'v_lshlrev_b32 v15, 2, v15')
    I(f'v_xor_b32 v14, v14, v15')
    I(f'v_add_u32 v{V_AB}, {WRAW}, v14')
    I(f's_lshl_b32 s{S_T+2}, s{S_T}, 12')
    I(f'v_lshlrev_b32 v13, 10, v13')
    I(f'v_add_u32 v13, s{S_T+2}, v13')
    I(f's_lshl_b32 s{S_T+2}, s{S_T+1}, 6')
    I(f's_add_u32 s{S_T+2}, s{S_T+2}, {NTI}')
    I(f'v_lshl_add_u32 v{V_AD}, v12, 2, v13')
    I(f'v_add_u32 v{V_AD}, s{S_T+2}, v{V_AD}')
    I(f's_and_b32 s{S_T+2}, s{S_T+1}, 1')
    I(f's_lshl_b32 s{S_T+2}, s{S_T+2}, 7')
    I(f's_lshr_b32 s{S_T+3}, s{S_T+1}, 1')
    I(f's_lshl_b32 s{S_T+3}, s{S_T+3}, 2')
    I(f's_add_u32 s{S_T+2}, s{S_T+2}, s{S_T+3}')
    I(f's_add_u32 s{S_T+2}, s{S_T+2}, {PT}')
    I(f'v_lshl_add_u32 v{V_AP}, v12, 3, v13')
    I(f'v_add_u32 v{V_AP}, s{S_T+2}, v{V_AP}')

def b_reads(dst, off):
    for sg in range(2):
        for pp in range(2):
            I(f'ds_read_b64_tr_b16 {vr(dst+4*sg+2*pp,2)}, v{V_AB} offset:{off+sg*4096+pp*512}')

def mm16(d, b):
    I(f'v_mfma_f32_16x16x32_bf16 {vr(d,4)}, {vr(SA,4)}, {vr(b,4)}, 0')
    I(f'v_mfma_f32_16x16x32_bf16 {vr(d,4)}, {vr(SA+4,4)}, {vr(b+4,4)}, {vr(d,4)}')

def phase0a():
    I(f'v_add_u32 v12, {XOWN}, v{V_AA}')
    I(f'v_xor_b32 v13, 64, v{V_AA}')
    I(f'v_add_u32 v13, {XOWN}, v13')
    I(f'ds_read_b128 {vr(SA,4)}, v12')
    I(f'ds_read_b128 {vr(SA+4,4)}, v13')
    b_reads(SB, 8192)
    b_reads(SB + 8, WV_ - WRAW)
    I(f's_mov_b32 s{S_T+4}, 0x{f2u(-LOG2E):x}')
    I(f's_mov_b32 s{S_T+6}, 0x7fffffff')
    I(f's_mov_b32 s{S_T+7}, 0xffff0000')
    I('s_waitcnt lgkmcnt(4)')
    mm16(SD, SB)
    I('s_waitcnt lgkmcnt(0)')
    mm16(SD + 4, SB + 8)
    I('s_nop 4')
    for i in range(4):
        I(f'v_mul_f32 v{SD+i}, s{S_T+4}, v{SD+i}')
    for i in range(4):
        I(f'v_and_b32 v{SD+8+i}, s{S_T+6}, v{SD+i}')
    for i in range(4):
        if SV:
            I(f'v_mul_f32 v{SD+4+i}, 0x{f2u(2.0**SV):x}, v{SD+4+i}')
        I(f'v_add_u32 v{SD+8+i}, 0x8000, v{SD+8+i}')
    I(f'v_cvt_pk_bf16_f32 v{SD+4}, v{SD+4}, v{SD+5}')
    I(f'v_cvt_pk_bf16_f32 v{SD+6}, v{SD+6}, v{SD+7}')
    I(f'v_lshrrev_b32 v{SD+5}, 16, v{SD+4}')
    I(f'v_lshrrev_b32 v{SD+7}, 16, v{SD+6}')
    I(f'v_and_b32 v{SD+4}, 0xffff, v{SD+4}')
    I(f'v_and_b32 v{SD+6}, 0xffff, v{SD+6}')
    for i in range(4):
        I(f'v_sub_u32 v{SD+8+i}, v{SD+8+i}, v{SD+4+i} clamp')
    for i in range(4):
        I(f'v_and_or_b32 v{SD+8+i}, v{SD+8+i}, s{S_T+7}, v{SD+4+i}')
    for i in range(4):
        I(f'v_bfi_b32 v{SD+i}, s{S_T+6}, v{SD+8+i}, v{SD+i}')
        I(f'ds_write_b32 v{V_AD}, v{SD+i} offset:{i*256}')

def phase0b():
    b_reads(SB, 0)
    b_reads(SB + 8, WU_ - WRAW)
    I(f's_mov_b32 s{S_T+4}, 0x{f2u(-LOG2E):x}')
    I(f's_mov_b32 s{S_T+5}, 0x{f2u(2.0**(SV+KH)):x}')
    I(f'v_mov_b32 v13, 0x{f2u(-float(KEXP)):x}')
    I(f's_and_b32 s{S_T+6}, s{S_W}, 3')
    I('s_waitcnt lgkmcnt(4)')
    mm16(SD, SB)
    I('s_waitcnt lgkmcnt(0)')
    mm16(SD + 4, SB + 8)
    I('s_nop 4')
    for i in range(4):
        I(f'v_fma_f32 v{SD+i}, v{SD+i}, s{S_T+4}, v13')
    split_hilo(SD, SD + 1, 12, 13)
    split_hilo(SD + 2, SD + 3, 12, 13)
    for i in range(4):
        I(f'v_mul_f32 v{SD+4+i}, s{S_T+5}, v{SD+4+i}')
    I(f's_cmp_eq_u32 s{S_T+6}, 3')
    I(f's_cselect_b64 exec, 0xffff, -1')
    I(f'ds_write_b32 v{V_AP}, v{SD}')
    I(f'ds_write_b32 v{V_AP}, v{SD+4} offset:{ACCN-PT}')
    I(f's_cselect_b64 exec, 0, -1')
    for i in range(1, 4):
        I(f'ds_write_b32 v{V_AP}, v{SD+i} offset:{i*256}')
        I(f'ds_write_b32 v{V_AP}, v{SD+4+i} offset:{ACCN-PT+i*256}')
    I('s_mov_b64 exec, -1')

def phase0c():
    I(f'v_bfe_u32 v13, v{V_LANE}, 2, 2')
    I(f'v_lshlrev_b32 v13, 7, v13')
    I(f'v_bfe_u32 v15, v{V_LANE}, 4, 1')
    I(f'v_lshl_add_u32 v13, v15, 5, v13')
    I(f'v_and_b32 v15, 3, v{V_LANE}')
    I(f'v_lshl_add_u32 v13, v15, 3, v13')
    I(f'v_and_b32 v15, 8, v{V_LANE}')
    I(f'v_lshlrev_b32 v15, 2, v15')
    I(f'v_xor_b32 v13, v13, v15')
    I(f'v_add_u32 v13, {WG_ + 16384}, v13')
    I(f'ds_read_b64_tr_b16 v[96:97], v13')
    I(f'ds_read_b64_tr_b16 v[98:99], v13 offset:64')
    I(f's_mov_b32 s{S_T+4}, 0x{f2u(-LOG2E):x}')
    I(f'v_cmp_lt_u32 vcc, 31, v{V_LANE}')
    I('s_waitcnt lgkmcnt(0)')
    for m in range(4):
        I(f'v_lshlrev_b32 v{100+2*m}, 16, v{96+m}')
        I(f'v_and_b32 v{101+2*m}, 0xffff0000, v{96+m}')
    for j in range(8):
        I(f'v_mul_f32 v{100+j}, s{S_T+4}, v{100+j}')
    for m in range(4):
        dst = B5[m >> 1] + (m & 1)
        I(f'v_cvt_pk_bf16_f32 v{96+m}, v{100+2*m}, v{101+2*m}')
        I(f'v_lshlrev_b32 v12, 16, v{96+m}')
        I(f'v_and_b32 v13, 0xffff0000, v{96+m}')
        I(f'v_sub_f32 v12, v{100+2*m}, v12')
        I(f'v_sub_f32 v13, v{101+2*m}, v13')
        I(f'v_cvt_pk_bf16_f32 v12, v12, v13')
        I(f'v_cndmask_b32 v{dst}, v{96+m}, v12, vcc')

def a5_const():
    I(f'v_bfe_u32 v12, v{V_LANE}, 2, 1')
    I(f'v_lshrrev_b32 v13, 5, v{V_LANE}')
    I(f'v_xor_b32 v12, v12, v13')
    I(f'v_and_b32 v13, 1, v{V_LANE}')
    I(f'v_lshl_or_b32 v12, v12, 1, v13')
    I(f'v_mov_b32 v13, 0x3f803f80')
    I(f'v_cmp_eq_u32 vcc, 0, v12')
    I(f'v_cmp_eq_u32 {sp(S_T)}, 1, v12')
    I('s_nop 1')
    I(f'v_cndmask_b32 v{A5+2}, 0, v13, vcc')
    I(f'v_cndmask_b32 v{A5+3}, 0, v13, {sp(S_T)}')

def nt_prefetch(vt, first=0, nl=None, dst=96):
    I(f's_lshr_b32 s{S_T}, s2, 4')
    I(f's_lshl_b32 s{S_T+1}, s{S_W}, 4')
    I(f's_add_u32 s{S_T}, s{S_T}, s{S_T+1}')
    I(f's_and_b32 s{S_T+1}, s{S_T}, 7')
    I(f's_lshl_b32 s{S_T+1}, s{S_T+1}, 5')
    I(f's_lshr_b32 s{S_T}, s{S_T}, 3')
    I(f's_add_u32 s{S_T}, s{S_T}, s{S_T+1}')
    if not opt('xmap', 1):
        I(f's_lshr_b32 s{S_T}, s2, 4')
        I(f's_lshl_b32 s{S_T+1}, s{S_W}, 4')
        I(f's_add_u32 s{S_T}, s{S_T}, s{S_T+1}')
    I(f's_lshl_b32 s{S_T}, s{S_T}, 1')
    I(f's_bfe_u32 s{S_T+1}, s2, 0x10003')
    I(f's_add_u32 s{S_T}, s{S_T}, s{S_T+1}')
    I(f's_mul_i32 s{S_T}, s{S_T}, {NB*128}')
    I(f's_add_u32 s{S_T}, s{S_T}, 0x{WS_NT:x}')
    srd_off(S_NTS, S_WSP, S_WSP + 1, f's{S_T}', NB * 128)
    if NPFM >= 3:
        I(f'v_lshlrev_b32 v{vt}, {7 if NPFM >= 4 else 6}, v{V_LANE}')
        I(f'v_add_u32 v{vt+1}, 4096, v{vt}')
        nl = opt("pfl", 20) if nl is None else nl
        I(f's_mov_b32 exec_lo, 0x{(((1 << nl) - 1) << first) & 0xffffffff:x}')
        I(f's_mov_b32 exec_hi, 0x{(((1 << nl) - 1) << first) >> 32:x}')
        for k in range(NPF):
            I(f'buffer_load_dword v{dst+k}, v{vt+k}, {sr4(S_NTS)}, 0 offen' + (LSC if opt('pfsc', 1) else ''))
        I('s_mov_b64 exec, -1')
        return
    I(f'v_lshlrev_b32 v{vt}, 4, v{V_LANE}')
    I(f'v_add_u32 v{vt+1}, 4096, v{vt}')
    for k in range(NPF):
        I(f'buffer_load_dwordx4 {vr(96+4*k,4)}, v{vt+(k>>2)}, {sr4(S_NTS)}, 0 offen offset:{(k&3)*1024}' + LSC)

def ptr_consts():
    I(f'v_lshrrev_b32 v{V_PS1}, 5, v{V_LANE}')
    I(f's_lshl_b32 s{S_T}, s{S_W}, 4')
    I(f's_add_u32 s{S_T}, s{S_T}, {DESCP}')
    I(f'v_lshlrev_b32 v{V_PD}, 3, v{V_PS1}')
    I(f'v_add_u32 v{V_PS1}, v{V_PS1}, v{V_PS1}')
    I(f'v_add_u32 v{V_PD}, s{S_T}, v{V_PD}')
    I(f'v_bfe_u32 v{V_VAP}, v{V_LANE}, 2, 1')
    I(f'v_and_b32 v{V_PE}, 1, v{V_LANE}')
    I(f'v_lshl_or_b32 v{V_VAP}, v{V_VAP}, 1, v{V_PE}')
    I(f'v_bfe_u32 v{V_PE}, v{V_LANE}, 3, 2')
    I(f'v_bfe_u32 v{V_PS0}, v{V_LANE}, 1, 1')
    I(f'v_lshl_or_b32 v{V_PE}, v{V_PE}, 1, v{V_PS0}')
    I(f'v_lshlrev_b32 v{V_PE}, 3, v{V_PE}')
    I(f'v_add_u32 v{V_PE}, {LE}, v{V_PE}')

def gen():
    e(f'.globl {KNAME}')
    e('.p2align 8')
    e(f'.type {KNAME},@function')
    L(KNAME)
    I(f's_cmp_ge_u32 s2, {NWG}')
    I('s_cbranch_scc1 L_END')
    I('s_load_dwordx8 s[84:91], s[0:1], 0')
    I('s_load_dwordx4 s[4:7], s[0:1], 32')
    I('s_load_dwordx4 s[8:11], s[0:1], 48')
    I('s_load_dwordx4 s[56:59], s[0:1], 64')
    if PROF:
        I(f'v_mov_b32 v{V_PROF}, 0')
    rstamp(30)
    stamp(0)
    zregs()
    zero_range(CNT, DESCP + 2560 - CNT, X + 2, X)
    I(f'v_lshlrev_b32 v{X+6}, 2, v{V_TID}')
    I(f's_mul_i32 s61, s2, {CH*4}')
    I(f's_mul_i32 s63, s2, {CH}')
    I(f's_sub_u32 s63, {E_EDGES}, s63')
    I(f's_min_u32 s63, s63, {CH}')
    I(f's_lshl_b32 s64, s63, 2')
    I(f'v_add_u32 v{X+8}, 4096, v{X+6}')
    I(f'v_add_u32 v{X+9}, 8192, v{X+6}')
    I(f'v_add_u32 v{X+10}, 12288, v{X+6}')
    I(f'v_lshrrev_b32 v{X+1}, 6, v{V_TID}')
    I(f'v_and_b32 v{V_LANE}, 63, v{V_TID}')
    I(f'v_readfirstlane_b32 s{S_W}, v{X+1}')
    I('s_and_b32 s3, s2, 7')
    I('s_lshl_b32 s3, s3, 5')
    I('s_lshr_b32 s60, s2, 3')
    I('s_add_u32 s3, s3, s60')
    if not opt('xmap', 1):
        I('s_mov_b32 s3, s2')
    I(f's_mul_i32 s62, s2, {CH*8}')
    I(f's_lshl_b32 s65, s63, 3')
    I(f'v_and_b32 v97, 0x50, v{V_TID}')
    I(f'v_lshlrev_b32 v96, 1, v97')
    I(f'v_or_b32 v97, v97, v96')
    I(f'v_and_b32 v97, 0x60, v97')
    I(f'v_xor_b32 v97, v97, v{X}')
    I(f'v_and_b32 v96, 0x20, v96')
    I(f'v_lshlrev_b32 v98, 4, v{V_LANE}')
    I(f'v_xor_b32 v96, v96, v98')
    I(f's_lshl_b32 s66, s{S_W}, 10')
    I(f'v_and_b32 v101, 0x1fff, v97')
    I(f'v_lshrrev_b32 v98, 3, v{V_TID}')
    I(f'v_bfe_u32 v99, v98, 1, 3')
    I(f'v_and_b32 v100, 7, v{V_TID}')
    I(f'v_xor_b32 v99, v99, v100')
    I(f'v_lshlrev_b32 v99, 4, v99')
    I(f'v_lshl_add_u32 v99, v98, 7, v99')
    I(f's_mul_i32 s60, s3, {NB*128}')
    I(f'v_add_u32 v99, s60, v99')
    I(f'v_add_u32 v96, 16384, v96')
    I('s_waitcnt lgkmcnt(0)')
    I(f's_or_b32 s67, s2, s{S_W}')
    I('s_cmp_lg_u32 s67, 0')
    I('s_cbranch_scc1 L_NOTAG')
    I('s_memrealtime s[68:69]')
    I(f'v_mov_b32 v{X+2}, 0')
    I('s_waitcnt lgkmcnt(0)')
    I('s_or_b32 s68, s68, 1')
    I(f'v_mov_b32 v{X+3}, s68')
    I('s_mov_b64 exec, 1')
    I(f'global_store_dword v{X+2}, v{X+3}, s[56:57] sc1')
    I('s_mov_b64 exec, -1')
    L('L_NOTAG')
    def dst_loads():
        srd_off(S_DST, 90, 91, 's61', 's64')
        for k in range(4):
            I(f'buffer_load_dword v{64+k}, v{X+6 if k == 0 else X+7+k}, {sr4(S_DST)}, 0 offen' + ELD)
    def dma_loads():
        srd(S_WS, 8, 9, 132 * 128)
        I(f's_add_u32 m0, s66, {WG_}')
        srd(S_XS, 84, 85, N_NODES * 128)
        I(f'buffer_load_dwordx4 v97, {sr4(S_WS)}, 0 offen lds')
        I(f's_cmp_lt_u32 s{S_W}, 8')
        I(f's_cselect_b32 s{S_NTS}, s6, s4')
        I(f's_cselect_b32 s{S_NTS+1}, s7, s5')
        I(f's_mov_b32 s{S_NTS+2}, {64*128}')
        I(f's_mov_b32 s{S_NTS+3}, 0x00020000')
        I(f's_add_u32 m0, s66, {WV_}')
        I('s_nop 0')
        I(f'buffer_load_dwordx4 v101, {sr4(S_NTS)}, 0 offen lds')
        I(f's_cmp_lt_u32 s{S_W}, 8')
        I('s_cbranch_scc0 L_D3B')
        I(f's_add_u32 m0, s66, {XOWN}')
        I('s_nop 0')
        I(f'buffer_load_dwordx4 v99, {sr4(S_XS)}, 0 offen lds')
        I('s_branch L_D3C')
        L('L_D3B')
        I(f's_mov_b32 m0, {WG_ + 16384}')
        I('s_nop 0')
        I(f'buffer_load_dwordx4 v96, {sr4(S_WS)}, 0 offen lds')
        L('L_D3C')
    if opt('t0', 0):
        I(f'v_and_b32 v60, 15, v{V_LANE}')
        I(f'v_lshlrev_b32 v60, 20, v60')
        I(f'v_and_b32 v61, 1, v{V_LANE}')
        I(f'v_lshlrev_b32 v61, 20, v61')
        I(f'global_load_dword v62, v60, s[58:59]')
        I(f'global_load_dword v63, v61, s[10:11]')
    ORDER = opt('order', 0)
    if ORDER == 0:
        dma_loads()
    dst_loads()
    if ORDER == 2:
        dma_loads()
    F1 = opt('f1', 1)
    if F1:
        I('s_barrier')
    srd_off(S_SRC, 88, 89, 's61', 's64')
    LATE = opt('late', 1)
    def src_load(k):
        I(f'buffer_load_dword v{68+k}, v{X+6 if k == 0 else 43+k}, {sr4(S_SRC)}, 0 offen' + ELD)
    for k in range(1, 4):
        I(f'v_mov_b32 v{43+k}, v{X+7+k}')
    for k in range(1 if LATE else 4):
        src_load(k)
    srd_off(S_EA, 86, 87, 's62', 's65')
    I(f'v_lshlrev_b32 v92, 3, v{V_TID}')
    for k in range(1, 4):
        I(f'v_add_u32 v{92+k}, {8192*k}, v92')
    def e_load(k):
        I(f'buffer_load_dwordx2 v[{72+2*k}:{73+2*k}], v{92+k}, {sr4(S_EA)}, 0 offen' + ELD)
    NEE = 1 if LATE else opt('nee', 4)
    for k in range(NEE):
        e_load(k)
    if ORDER == 1:
        dma_loads()
    I(f's_mov_b64 {sp(S_DBG)}, s[56:57]')
    I(f's_add_u32 s{S_WSP}, s58, 0x{WSB:x}')
    I(f's_addc_u32 s{S_WSP+1}, s59, 0')
    stamp(1)
    srd(S_OUT, 10, 11, N_NODES * 128)
    I(f's_mul_i32 s{S_T}, s2, {CAP*4}')
    srd_off(S_RW, S_WSP, S_WSP + 1, f's{S_T}', CAP * 4)
    I(f's_lshl_b32 s{S_T}, s{S_T}, 1')
    I(f's_add_u32 s{S_T}, s{S_T}, 0x{WS_RE:x}')
    srd_off(S_RE, S_WSP, S_WSP + 1, f's{S_T}', CAP * 8)
    I(f's_lshl_b32 s{S_T}, s2, 11')
    I(f's_add_u32 s{S_T}, s{S_T}, 0x{WS_TAB:x}')
    srd_off(S_TAB, S_WSP, S_WSP + 1, f's{S_T}', (KREP - 1) * 0x80000 + 2048)
    I(f's_mul_i32 s{S_T}, s3, {NB*256}')
    I(f's_add_u32 s{S_T}, s{S_T}, 0x{WS_NT:x}')
    srd_off(S_NTS, S_WSP, S_WSP + 1, f's{S_T}', NB * 256)
    I(f's_add_u32 s{S_NTG}, s{S_WSP}, 0x{WS_NT:x}')
    I(f's_addc_u32 s{S_NTG+1}, s{S_WSP+1}, 0')
    I(f's_or_b32 s{S_NTG+1}, s{S_NTG+1}, 0x80000000')
    I(f's_mov_b32 s{S_NTG+2}, 0x400000')
    I(f's_mov_b32 s{S_NTG+3}, 0x00c00000')
    srd_off(S_DST, S_WSP, S_WSP + 1, '0x%x' % WS_RW, NWG * CAP * 4)
    if not LATE:
        srd_off(S_SRC, S_WSP, S_WSP + 1, '0x%x' % WS_RE, NWG * CAP * 8)
    for k in range(4):
        I(f'v_add_u32 v{X+1}, {1024*k}, v{V_TID}')
        I(f'v_cmp_gt_u32 {sp(S_MASK+2*k)}, s63, v{X+1}')
    I(f's_mov_b32 s{S_C}, 0x{f2u(2.0**-KH):x}')
    I(f's_mov_b32 s{S_C+1}, 0x{f2u(2.0**-KH):x}')
    I(f's_mov_b32 s{S_JB}, 0')
    I(f's_mov_b32 s{S_WID}, 128')
    I(f'v_and_b32 v{V_J4}, 7, v{V_LANE}')
    I(f'v_lshlrev_b32 v{V_J4}, 3, v{V_J4}')
    I(f'v_lshrrev_b32 v{X+1}, 3, v{V_LANE}')
    I(f's_lshl_b32 s{S_T}, s{S_W}, 4')
    I(f'v_add_u32 v{X+1}, s{S_T}, v{X+1}')
    I(f'v_mul_u32_u24 v{V_CB4}, {CAP*4}, v{X+1}')
    I(f'v_add_u32 v{V_CB4}, v{V_CB4}, v{V_J4}')
    I(f'v_and_b32 v{V_CH8}, 31, v{V_LANE}')
    I(f'v_lshlrev_b32 v{V_CH8}, 3, v{V_CH8}')
    I(f'v_add_u32 v{V_CHP}, {PT}, v{V_CH8}')
    phase0_addr()
    a5_const()
    if not F1:
        I(f's_waitcnt vmcnt({8 + NEE if ORDER == 0 else 0})')
        I('s_barrier')
    stamp(2)
    def late_loads():
        if LATE:
            for k in range(1, 4):
                src_load(k)
        for k in range(NEE, 4):
            e_load(k)
        I(f'v_mov_b32 v12, 0')
        I(f'global_load_dword v10, v12, {sp(S_DBG)} sc1')
        if TCH:
            I(f'v_lshlrev_b32 v13, 10, v{V_LANE}')
            I(f'buffer_load_dword v60, v13, {sr4(S_RW)}, 0 offen')
            I(f'buffer_load_dword v61, v13, {sr4(S_RE)}, 0 offen')
            I(f'buffer_load_dword v62, v13, {sr4(S_TAB)}, 0 offen')
            I(f'buffer_load_dword v63, v13, {sr4(S_NTS)}, 0 offen')
        srd_off(S_EA, S_WSP, S_WSP + 1, '0x%x' % WS_TAB, KREP * 0x80000)
        if LATE:
            srd_off(S_SRC, S_WSP, S_WSP + 1, '0x%x' % WS_RE, NWG * CAP * 8)
    if not LATE:
        late_loads()
    if not F1:
        phase0a()
    I(f's_mov_b32 s{S_T}, -{NB}')
    I(f'v_mov_b32 v{X+1}, 4')
    BN, WD, RK = 28, 32, 36
    for k in range(4):
        I(f's_waitcnt vmcnt({((5 if ORDER == 0 else 8) if LATE else (12 if ORDER == 0 else 15) + TCH) - k})')
        I(f's_mov_b64 exec, {sp(S_MASK+2*k)}')
        if k == 3:
            I('s_cbranch_execz L_B1')
        I(f'v_mul_u32_u24 v{BN+k}, 21400, v{64+k}')
        I(f'v_lshrrev_b32 v{BN+k}, 20, v{BN+k}')
        I(f'v_mad_i32_i24 v{WD+k}, v{BN+k}, s{S_T}, v{64+k}')
        I(f'v_lshlrev_b32 v{BN+k}, 2, v{BN+k}')
        I(f'ds_add_rtn_u32 v{RK+k}, v{BN+k}, v{X+1} offset:{HIST}')
        I(f'v_lshlrev_b32 v{WD+k}, 26, v{WD+k}')
    L('L_B1')
    I('s_mov_b64 exec, -1')
    if LATE:
        late_loads()
    I(f'v_add_u32 v{X+1}, {NTI}, v{X}')
    stamp(3)
    I({0: 's_waitcnt lgkmcnt(0)', 1: 's_waitcnt vmcnt(1) lgkmcnt(0)', 2: 's_waitcnt vmcnt(9) lgkmcnt(0)'}[ORDER])
    I('s_barrier')
    stamp(4)
    if not F1:
        I(f'ds_read_b128 v[112:115], v{X+1}')
    I(f's_cmp_lg_u32 s{S_W}, 0')
    I('s_cbranch_scc1 L_NOSCAN')
    I(f'ds_read_b128 v[96:99], v{X} offset:{HIST}')
    I('s_waitcnt lgkmcnt(0)')
    for k in range(4):
        I(f'v_add_u32 v{108+k}, 4, v{96+k}')
        I(f'v_and_b32 v{108+k}, -8, v{108+k}')
    I('v_add_u32 v101, v108, v109')
    I('v_add_u32 v102, v101, v110')
    I('v_add_u32 v103, v102, v111')
    I('v_mov_b32 v104, v103')
    wave_scan(104)
    I(f'v_readlane_b32 s{S_T+4}, v104, 63')
    I('v_sub_u32 v104, v104, v103')
    I(f'v_mov_b32 v100, {MISC+8}')
    I(f'v_mov_b32 v105, s{S_T+4}')
    I('ds_write_b32 v100, v105')
    I('v_add_u32 v105, v104, v108')
    I('v_add_u32 v106, v104, v101')
    I('v_add_u32 v107, v104, v102')
    I(f'ds_write_b128 v{X}, v[104:107] offset:{HBASE}')
    for k in range(4):
        I(f'v_lshl_or_b32 v{108+k}, v{96+k}, 16, v{104+k}')
    I(f'ds_write_b128 v{X}, v[108:111] offset:{HIST}')
    L('L_NOSCAN')
    if F1:
        phase0a()
    I('s_waitcnt lgkmcnt(0)')
    if not F1:
        I(f'buffer_store_dwordx4 v[112:115], v{X}, {sr4(S_NTS)}, 0 offen' + SC)
    if T1:
        I(f's_mul_i32 s{S_T+4}, s3, {NB*128}')
        I(f'v_mov_b32 v60, s{S_T+4}')
        I(f'buffer_load_dword v61, v60, {sr4(S_OUT)}, 0 offen')
    I(f's_waitcnt vmcnt({4 if LATE else 6 - F1 + TCH + T1})')
    for k in range(4):
        I(f'v_lshl_or_b32 v{WD+k}, v{68+k}, 3, v{WD+k}')
    I('s_barrier')
    stamp(5)
    if F1:
        I(f'ds_read_b128 v[112:115], v{X+1}')
    for k in range(4):
        I(f's_mov_b64 exec, {sp(S_MASK+2*k)}')
        I(f'ds_read_b32 v{BN+k}, v{BN+k} offset:{HBASE}')
    if F1:
        I('s_mov_b64 exec, -1')
        I('s_waitcnt lgkmcnt(4)')
        I(f'buffer_store_dwordx4 v[112:115], v{X}, {sr4(S_NTS)}, 0 offen' + SC)
    I(f's_waitcnt vmcnt({1 + TCH + T1})')
    I(f'v_readfirstlane_b32 s{S_TAG}, v10')
    for k in range(4):
        I(f's_mov_b64 exec, {sp(S_MASK+2*k)}')
        if k == 3:
            I('s_cbranch_execz L_B2')
        I(f's_waitcnt lgkmcnt({3 - k + 2*k})')
        I(f'v_add_u32 v{RK+k}, v{BN+k}, v{RK+k}')
        I(f'v_add_u32 v{BN+k}, v{RK+k}, v{RK+k}')
        I(f'ds_write_b32 v{RK+k}, v{WD+k} offset:{STGW}')
        I(f'ds_write_b64 v{BN+k}, v[{72+2*k}:{73+2*k}] offset:{STGE}')
    L('L_B2')
    I('s_mov_b64 exec, -1')
    I(f'v_mov_b32 v13, {MISC+8}')
    I(f'ds_read_b32 v13, v13')
    I(f's_mov_b32 s{S_T}, 0x40000')
    L('L_TAGP')
    I(f's_cmp_lg_u32 s{S_TAG}, 0')
    I('s_cbranch_scc1 L_TAGD')
    I(f'v_mov_b32 v12, 0')
    I(f'global_load_dword v10, v12, {sp(S_DBG)} sc1')
    I('s_waitcnt vmcnt(0)')
    I(f'v_readfirstlane_b32 s{S_TAG}, v10')
    I(f's_sub_u32 s{S_T}, s{S_T}, 1')
    I('s_cbranch_scc1 L_END')
    I('s_branch L_TAGP')
    L('L_TAGD')
    I(f'v_add_u32 v{X+2}, 16384, v{X}')
    I(f'v_lshlrev_b32 v12, 3, v{V_LANE}')
    I(f's_mul_i32 s{S_TAG2}, s{S_TAG}, 0x9e3779b1')
    I(f's_and_b32 s{S_TAG2}, s{S_TAG2}, 0x{TAGM:x}')
    I('s_waitcnt lgkmcnt(0)')
    I(f'v_readfirstlane_b32 s{S_T}, v13')
    I('s_barrier')
    I(f's_add_u32 s{S_T}, s{S_T}, 12')
    I(f's_and_b32 s{S_RW+2}, s{S_T}, -16')
    I(f's_lshl_b32 s{S_RE+2}, s{S_RW+2}, 1')
    stamp(6)
    if opt('early', 0):
        I(f'ds_read_b64 v[92:93], v12 offset:{HIST}')
        I(f'ds_read_b64 v[94:95], v12 offset:{HIST+512}')
        I(f'v_lshlrev_b32 v60, 4, v{V_LANE}')
        I('s_waitcnt lgkmcnt(0)')
        for k in range(4):
            I(f'v_or_b32 v{120+2*k}, s{S_TAG2}, v{92+k}')
            I(f'v_mov_b32 v{121+2*k}, s{S_TAG}')
        I(f's_cmp_lg_u32 s{S_W}, 0')
        I('s_cbranch_scc1 L_EARLY')
        I(f'buffer_store_dwordx4 v[120:123], v60, {sr4(S_TAB)}, 0 offen' + SC)
        I(f'buffer_store_dwordx4 v[124:127], v60, {sr4(S_TAB)}, 0 offen offset:1024' + SC)
        L('L_EARLY')
    I(f'ds_read_b128 v[64:67], v{X} offset:{STGW}')
    I(f'ds_read_b128 v[68:71], v{X} offset:{STGE}')
    I(f'ds_read_b128 v[72:75], v{X} offset:{STGE+16384}')
    I(f'ds_read_b64 v[92:93], v12 offset:{HIST}')
    I(f'ds_read_b64 v[94:95], v12 offset:{HIST+512}')
    I('s_waitcnt lgkmcnt(4)')
    I(f'buffer_store_dwordx4 v[64:67], v{X}, {sr4(S_RW)}, 0 offen' + SC)
    I('s_waitcnt lgkmcnt(3)')
    I(f'buffer_store_dwordx4 v[68:71], v{X}, {sr4(S_RE)}, 0 offen' + SC)
    I('s_waitcnt lgkmcnt(2)')
    I(f'buffer_store_dwordx4 v[72:75], v{X+2}, {sr4(S_RE)}, 0 offen' + SC)
    I('s_waitcnt lgkmcnt(0)')
    for k in range(4):
        I(f'v_or_b32 v{120+2*k}, s{S_TAG2}, v{92+k}')
        I(f'v_mov_b32 v{121+2*k}, s{S_TAG}')
    PF1 = opt('pf1', 0)
    if PF1:
        nt_prefetch(12, 49 - PF1, PF1, 61)
    pre = opt('pre', 'xbc').replace('0', '')
    def piece(c):
        if c == 'x':
            zregs()
            zero_range(EXTRA, 16384, X + 2, X)
            fill_desca()
        elif c == 'b':
            phase0b()
        elif c == 'c':
            phase0c()
    for c in pre:
        piece(c)
    stamp(7)
    I(f'v_lshrrev_b32 v76, 3, v{V_LANE}')
    I(f's_lshl_b32 s{S_T}, s{S_W}, 15')
    I(f's_lshl_b32 s{S_T+1}, s3, 3')
    I(f's_add_u32 s{S_T}, s{S_T}, s{S_T+1}')
    I(f'v_lshlrev_b32 v76, 11, v76')
    I(f'v_add_u32 v76, s{S_T}, v76')
    I(f'v_add_u32 v77, 16384, v76')
    I(f'v_lshlrev_b32 v60, 4, v{V_LANE}')
    for r in range(2):
        I(f's_mov_b64 {sp(S_MASK+2*r)}, -1')
    I(f's_waitcnt vmcnt({1 if PF1 else 0})')
    stamp(8)
    I('s_barrier')
    stamp(9)
    I(f's_cmp_lg_u32 s{S_W}, {99 if opt("early", 0) else 0}')
    I('s_cbranch_scc1 L_POLL0')
    for k in range(KREP - 1, -1, -1):
        I(f's_mov_b32 s{S_T}, 0x{k*0x80000:x}')
        I(f'buffer_store_dwordx4 v[120:123], v60, {sr4(S_TAB)}, s{S_T} offen' + SC)
        I(f'buffer_store_dwordx4 v[124:127], v60, {sr4(S_TAB)}, s{S_T} offen offset:1024' + SC)
    L('L_POLL0')
    PF2 = opt('pf2', 0)
    if PF2:
        nt_prefetch(61, 49 - PF2, PF2, 63)
    EP = opt('ep', 0)
    for r in range(2 if EP else 0):
        I(f'buffer_load_dwordx2 {p(64+2*r)}, v{76+r}, {sr4(S_EA)}, 0 offen' + LSC)
    for c in 'xbc':
        if c not in pre:
            piece(c)
    fill_words()
    zregs()
    zero_range(LE, CNT - LE, X + 2, X)
    ptr_consts()
    I(f's_mov_b32 s{S_T}, 0x40000')
    I(f's_mov_b32 s{S_T+1}, 0x{TAGM:x}')
    if opt('ps', 0):
        I(f's_sleep {opt("ps", 0)}')
    if EP:
        I('s_branch L_POLLC')
    L('L_POLL')
    for r in range(2):
        I(f's_mov_b64 exec, {sp(S_MASK+2*r)}')
        I(f'buffer_load_dwordx2 {p(64+2*r)}, v{76+r}, {sr4(S_EA)}, 0 offen' + LSC)
    L('L_POLLC')
    for r in range(2):
        I(f's_waitcnt vmcnt({1-r})')
        I(f's_mov_b64 exec, {sp(S_MASK+2*r)}')
        I(f'v_xor_b32 v{V_TAB+r}, s{S_TAG2}, v{64+2*r}')
        I(f'v_xor_b32 v{65+2*r}, s{S_TAG}, v{65+2*r}')
        I(f'v_and_or_b32 v{65+2*r}, v{V_TAB+r}, s{S_T+1}, v{65+2*r}')
        I(f'v_cmp_ne_u32 {sp(S_MASK+2*r)}, 0, v{65+2*r}')
    I(f's_or_b64 {sp(S_T+2)}, {sp(S_MASK)}, {sp(S_MASK+2)}')
    I('s_cbranch_scc0 L_POLLED')
    I(f's_sub_u32 s{S_T}, s{S_T}, 1')
    I('s_cbranch_scc1 L_END')
    if opt('sleep', 1):
        I(f's_sleep {opt("sleep", 1)}')
    I('s_branch L_POLL')
    L('L_POLLED')
    I('s_mov_b64 exec, -1')
    stamp(10)
    def RB(s_): return 64 + 8 * (s_ >> 1)
    def MK(s_): return sp(S_MASK + 2 * s_)
    AD = X
    L('L_PASS')
    I(f'v_add_u32 v{X+10}, s{S_JB}, v{V_CB4}')
    I(f'v_add_u32 v{X+8}, s{S_JB}, v{V_J4}')
    SDW = 'src0_sel:DWORD src1_sel:WORD_1'
    for r in range(2):
        I(f'v_add_u32_sdwa v{X+r}, v{V_TAB+r}, v{X+10} dst_sel:DWORD dst_unused:UNUSED_PAD src0_sel:WORD_0 src1_sel:DWORD')
        I(f'v_cmp_lt_u32_sdwa {MK(2*r)}, v{X+8}, v{V_TAB+r} {SDW}')
        if r:
            I(f'v_add_u32 v{X+r}, {8*CAP*4}, v{X+r}')
        I(f'v_add_u32 v{X+2+r}, v{X+r}, v{X+r}')
        I(f's_mov_b64 exec, {MK(2*r)}')
        I(f'buffer_load_dwordx2 {p(RB(2*r)+4)}, v{X+r}, {sr4(S_DST)}, 0 offen' + LSC)
        I(f'buffer_load_dwordx4 {vr(RB(2*r),4)}, v{X+2+r}, {sr4(S_SRC)}, 0 offen' + LSC)
        I('s_mov_b64 exec, -1')
    I(f'v_add_u32 v{X+9}, s{S_WID}, v{X+8}')
    I(f'v_add_u32 v{X+10}, 4, v{X+8}')
    I(f's_cmp_eq_u32 s{S_WID}, 128')
    I(f's_cselect_b32 s{S_T}, 64, 0x10000')
    I(f'v_add_u32 v{X+8}, s{S_T}, v{X+8}')
    for r in range(2):
        I(f'v_cmp_lt_u32_sdwa {MK(4+2*r)}, v{X+8}, v{V_TAB+r} {SDW}')
        I(f'v_cmp_lt_u32_sdwa {MK(2*r+1)}, v{X+10}, v{V_TAB+r} {SDW}')
    I(f'v_add_u32 v{X+8}, 4, v{X+8}')
    for r in range(2):
        I(f's_mov_b64 exec, {MK(4+2*r)}')
        I(f'buffer_load_dwordx2 {p(RB(4+2*r)+4)}, v{X+r}, {sr4(S_DST)}, 0 offen offset:64' + LSC)
        I(f'buffer_load_dwordx4 {vr(RB(4+2*r),4)}, v{X+2+r}, {sr4(S_SRC)}, 0 offen offset:128' + LSC)
    I('s_mov_b64 exec, -1')
    for r in range(2):
        I(f'v_cmp_lt_u32_sdwa {MK(5+2*r)}, v{X+8}, v{V_TAB+r} {SDW}')
    I(f'v_cmp_lt_u32_sdwa vcc, v{X+9}, v{V_TAB} {SDW}')
    I(f'v_cmp_lt_u32_sdwa {sp(S_T)}, v{X+9}, v{V_TAB+1} {SDW}')
    I(f'v_mov_b32 v{X+8}, 4')
    I(f's_or_b64 vcc, vcc, {sp(S_T)}')
    I(f's_cbranch_scc0 L_NOMORE')
    I(f'v_mov_b32 v{X+9}, {MISC}')
    I(f'ds_write_b32 v{X+9}, v{X+8}')
    L('L_NOMORE')
    stamp(11)
    for s_ in range(8):
        if s_ >= 4:
            I(f's_mov_b64 exec, {MK(s_)}')
            I(f's_cbranch_execz L_C{s_}')
        if s_ % 2 == 0:
            I(f's_waitcnt vmcnt({7 - s_})')
        if s_ < 4:
            I(f's_mov_b64 exec, {MK(s_)}')
        I(f'v_lshrrev_b32 v{AD+s_}, 24, v{RB(s_)+4+(s_&1)}')
        if opt('safe', 0):
            I(f'v_and_b32 v{AD+s_}, 0xfc, v{AD+s_}')
        I(f'ds_add_rtn_u32 v{RB(s_)+6+(s_&1)}, v{AD+s_}, v{X+8} offset:{CNT}')
        if s_ >= 4:
            L(f'L_C{s_}')
    I('s_mov_b64 exec, -1')
    I(f'v_lshlrev_b32 v{X+8}, 2, v{V_LANE}')
    I(f'v_mov_b32 v{X+9}, {MISC}')
    I(f's_mov_b32 s{S_T+2}, 0x1fff8')
    I('s_waitcnt lgkmcnt(0)')
    I('s_barrier')
    stamp(12)
    if NPFM in (2, 3, 4):
        nt_prefetch(60, dst=62)
        I(f's_mov_b32 s{S_T+2}, 0x1fff8')
    NG, GS, MI = X + 10, X + 11, X + 12
    I(f'ds_read_b32 v{NG}, v{X+8} offset:{CNT}')
    I(f'ds_read_b32 v{X+9}, v{X+9}')
    I('s_waitcnt lgkmcnt(1)')
    I(f'v_add_u32 v{NG}, 28, v{NG}')
    I(f'v_and_b32 v{NG}, 0xffffffe0, v{NG}')
    I(f'v_mov_b32 v{GS}, v{NG}')
    wave_scan(GS)
    I(f'v_readlane_b32 s{S_T}, v{GS}, 63')
    I(f'v_sub_u32 v{GS}, v{GS}, v{NG}')
    I(f'ds_write_b32 v{X+8}, v{GS} offset:{BASET}')
    for s_ in range(8):
        I(f's_mov_b64 exec, {MK(s_)}')
        I(f'ds_read_b32 v{AD+s_}, v{AD+s_} offset:{BASET}')
    I('s_mov_b64 exec, -1')
    I(f'v_readfirstlane_b32 s{S_MORE}, v{X+9}')
    out.insert(len(out) - 1, '    s_waitcnt lgkmcnt(9)')
    I(f's_lshr_b32 s{S_T}, s{S_T}, 5')
    I(f's_cmp_eq_u32 s{S_WID}, 128')
    I(f's_cselect_b32 s{S_T+1}, {MAXG}, -1')
    I(f's_cmp_gt_u32 s{S_T}, s{S_T+1}')
    I('s_cbranch_scc1 L_OVERFLOW')
    SB_, SR_, SG0 = S_T + 4, S_T + 5, S_T + 6
    I(f's_add_u32 s{S_T}, s{S_T}, 3')
    I(f's_lshr_b32 s{S_T}, s{S_T}, 2')
    I(f's_lshr_b32 s{SB_}, s{S_T}, 4')
    I(f's_and_b32 s{SR_}, s{S_T}, 15')
    I(f's_add_u32 s{S_T+1}, s{SB_}, 1')
    I(f'v_cvt_f32_u32 v{MI}, s{S_T+1}')
    I(f'v_cvt_f32_u32 v{MI+1}, s{SB_}')
    I(f'v_rcp_f32 v{MI}, v{MI}')
    I(f'v_rcp_f32 v{MI+1}, v{MI+1}')
    I(f's_mul_i32 s{SG0}, s{SR_}, s{S_T+1}')
    I(f's_lshl_b32 s{SG0}, s{SG0}, 2')
    I(f'v_lshrrev_b32 v{GS}, 5, v{GS}')
    I(f'v_mul_f32 v{MI}, 0x47800000, v{MI}')
    I(f'v_mul_f32 v{MI+1}, 0x47800000, v{MI+1}')
    I(f'v_lshrrev_b32 v{NG}, 5, v{NG}')
    I(f'v_cvt_u32_f32 v{MI}, v{MI}')
    I(f'v_cvt_u32_f32 v{MI+1}, v{MI+1}')
    I(f's_cmp_lt_u32 s{S_W}, s{SR_}')
    I(f's_cselect_b32 s{S_L}, s{S_T+1}, s{SB_}')
    I(f'v_add_u32 v{MI}, 2, v{MI}')
    I(f'v_add_u32 v{MI+1}, 2, v{MI+1}')
    I(f's_min_u32 s{S_T}, s{S_W}, s{SR_}')
    I(f's_mul_i32 s{S_T+3}, s{S_W}, s{SB_}')
    I(f's_add_u32 s{S_T+3}, s{S_T+3}, s{S_T}')
    I(f's_sub_u32 s{S_T+1}, 0, s{S_T+1}')
    I(f's_sub_u32 s{SB_}, 0, s{SB_}')
    I(f's_lshl_b32 s{SR_}, s{SR_}, 2')
    D0, D1, D2, D3, NR = 96, 97, 98, 99, 100
    I(f'v_lshlrev_b32 v{NR}, 8, v{V_LANE}')
    I(f'v_add_u32 v{NR+1}, {ACCN}, v{NR}')
    I(f's_mov_b32 s{S_T}, s{S_W}')
    L('L_DLOOP')
    I(f'v_cmp_lt_u32 vcc, s{S_T}, v{NG}')
    I('s_and_b64 exec, exec, vcc')
    I('s_cbranch_execz L_DEND')
    I(f'v_add_u32 v{D0}, s{S_T}, v{GS}')
    I(f'v_subrev_u32 v{D1}, s{SG0}, v{D0}')
    I(f'v_cmp_gt_u32 vcc, s{SG0}, v{D0}')
    I(f'v_mul_u32_u24 v{D2}, v{D0}, v{MI}')
    I(f'v_mul_u32_u24 v{D3}, v{D1}, v{MI+1}')
    I(f'v_lshrrev_b32 v{D2}, 16, v{D2}')
    I(f'v_lshrrev_b32 v{D3}, 16, v{D3}')
    I(f'v_mad_i32_i24 v{D0}, v{D2}, s{S_T+1}, v{D0}')
    I(f'v_mad_i32_i24 v{D1}, v{D3}, s{SB_}, v{D1}')
    I(f'v_add_u32 v{D3}, s{SR_}, v{D3}')
    I(f'v_cndmask_b32 v{D0}, v{D1}, v{D0}, vcc')
    I(f'v_cndmask_b32 v{D2}, v{D3}, v{D2}, vcc')
    I(f'v_cmp_le_u32 vcc, s{S_T}, v{D0}')
    I(f'v_lshl_add_u32 v{D0}, v{D0}, 6, v{D2}')
    I(f'v_lshlrev_b32 v{D1}, 8, v{D2}')
    I(f'v_lshlrev_b32 v{D0}, 2, v{D0}')
    I(f'v_add_u32 v{D1}, {EXTRA}, v{D1}')
    I(f'v_add_u32 v{D3}, {DESCA}, v{D0}')
    I(f'v_cndmask_b32 v{D1}, v{D1}, v{NR+1}, vcc')
    I(f'ds_write_b32 v{D0}, v{NR} offset:{DESCP}')
    I(f'ds_write_b32 v{D3}, v{D1}')
    I(f's_add_u32 s{S_T+7}, s{S_T}, 1')
    I(f'v_cmp_eq_u32 vcc, s{S_T+7}, v{NG}')
    I(f's_and_saveexec_b64 {sp(S_EX)}, vcc')
    I(f'ds_write_b32 v{X+8}, v{D2} offset:{NINFO+256}')
    I(f's_mov_b64 exec, {sp(S_EX)}')
    I(f's_cmp_lg_u32 s{S_T}, 0')
    I('s_cbranch_scc1 L_DNF')
    I(f'ds_write_b32 v{X+8}, v{D2} offset:{NINFO}')
    L('L_DNF')
    I(f's_add_u32 s{S_T}, s{S_T}, 16')
    I('s_branch L_DLOOP')
    L('L_DEND')
    I('s_mov_b64 exec, -1')
    I(f's_lshl_b32 s{S_T}, s{S_T+3}, 7')
    I(f's_lshl_b32 s{S_T+1}, s{S_L}, 5')
    I(f'v_mov_b32 v{D0}, s{S_T}')
    I(f'v_mad_u32_u24 v{V_PS0}, v{V_PS1}, s{S_T+1}, v{D0}')
    I(f'v_add_u32 v{D0}, v{D0}, v{D0}')
    I(f'v_add_u32 v{V_PS1}, s{S_T+1}, v{V_PS0}')
    I(f'v_add_u32 v{V_PE}, v{V_PE}, v{D0}')
    I(f's_lshl_b32 s{S_T+1}, s{S_L}, 6')
    I(f'v_mad_u32_u24 v{V_PE}, v{V_VAP}, s{S_T+1}, v{V_PE}')
    if opt('safe', 0):
        I(f's_min_u32 s{S_L}, s{S_L}, 9')
        I(f's_mov_b32 s{S_MORE}, 0')
    I(f's_mov_b32 s{S_CNT}, s{S_L}')
    I('s_waitcnt lgkmcnt(0)')
    I(f's_waitcnt vmcnt({NPF})')
    for s_ in range(8):
        wd, rk, ee = RB(s_) + 4 + (s_ & 1), RB(s_) + 6 + (s_ & 1), RB(s_) + 2 * (s_ & 1)
        I(f's_mov_b64 exec, {MK(s_)}')
        if s_ >= 4:
            I(f's_cbranch_execz L_P{s_}')
        I(f'v_add_u32 v{AD+s_}, v{AD+s_}, v{rk}')
        I(f'v_and_b32 v{wd}, s{S_T+2}, v{wd}')
        I(f'v_add_u32 v{rk}, v{AD+s_}, v{AD+s_}')
        I(f'ds_write_b32 v{AD+s_}, v{wd} offset:{LS}')
        I(f'ds_write_b64 v{rk}, {p(ee)} offset:{LE}')
        if s_ >= 4:
            L(f'L_P{s_}')
    I('s_mov_b64 exec, -1')
    stamp(13)
    I('s_waitcnt lgkmcnt(0)')
    I('s_barrier')
    stamp(14)
    I(f's_cmp_eq_u32 s{S_L}, 0')
    I('s_cbranch_scc1 L_FOLD')
    lg = Lg()
    FP = opt('fp', 0)
    if FP:
        for lvl in (3, 2, 1):
            I(f's_cmp_lt_u32 s{S_W}, {4 * (4 - lvl)}')
            I(f's_cbranch_scc0 L_FP{lvl}')
            I(f's_setprio {lvl}')
            I('s_branch L_FPD')
            L(f'L_FP{lvl}')
        L('L_FPD')
    s_reads(lg, 0)
    lg.op('dP', f'ds_read_b64 {p(V_VAP)}, v{V_PD}')
    lg.op('dA', f'ds_read_b64 {p(V_VAA[0])}, v{V_PD} offset:{DESCA-DESCP}')
    lg.op('e', f'ds_read_b64 {p(A5)}, v{V_PE}')
    lg.need('S0', 'S1', 'S2', 'S3')
    s_safe()
    STG_ = [int(x) for x in opt('stag', '0,0,0').split(',')]
    for gi, d in enumerate(STG_):
        if d:
            I(f's_cmp_ge_u32 s{S_W}, {4 * (gi + 1)}')
            I(f's_cbranch_scc0 L_ST{gi}')
            I(f's_sleep {d}')
            L(f'L_ST{gi}')
    for n in range(2):
        for i in range(16):
            I(gload(n, i))
        if n == 0 and FP == 2:
            I('s_setprio 0')
    s_reads(lg, 1)
    I(f'v_mov_b32 v{V_C8P}, v{V_CH8}')
    I(f'v_mov_b32 v{V_C8P+1}, v{V_CH8}')
    I(f'v_mov_b32 v{V_CPP}, v{V_CHP}')
    I(f'v_mov_b32 v{V_CPP+1}, v{V_CHP}')
    if M8:
        I(f'v_mov_b32 v{V_SCP}, 0x{f2u(2.0**KH):x}')
        I(f'v_mov_b32 v{V_SCP+1}, 0x{f2u(2.0**KH):x}')
    I(f's_mov_b32 s{S_BP0}, 64')
    I(f's_mov_b32 s{S_BP0+1}, 64')
    I(f's_mov_b32 s{S_BP1}, 128')
    I(f's_mov_b32 s{S_BP1+1}, 512')
    lg.need('dP', 'dA')
    va_add(V_VAP, V_VAA[0])
    lg.op('P0a', f'ds_read_b32 v{B5[0]+2}, v{V_VAP}')
    lg.op('P0b', f'ds_read_b32 v{B5[0]+3}, v{V_VAP+1}')
    lg.op('P1a', f'ds_read_b32 v{B5[1]+2}, v{V_VAP} offset:4')
    lg.op('P1b', f'ds_read_b32 v{B5[1]+3}, v{V_VAP+1} offset:4')
    I(f's_cmp_eq_u32 s{S_CNT}, 1')
    I(f's_cselect_b64 {sp(S_LDX)}, 0, {LDXV}')
    I('s_waitcnt lgkmcnt(0)')
    lg.q = []
    if opt('prio', 3):
        I('s_setprio 3')
    stamp(15)
    rstamp(28)
    half(lg, 0, 0, 0, False)
    if PROF == 4:
        stamp(19)
        lg.q = []
    state0 = list(lg.q)
    def step(par, uo):
        prio(f'm{par}', 1)
        half(lg, 1, par, uo)
        if PROF == 4:
            I('s_memtime s[98:99]')
            I(f's_sub_u32 s92, s{S_L}, s{S_CNT}')
            I(f's_add_u32 m0, s92, 20')
            I('s_waitcnt lgkmcnt(0)')
            I(f'v_writelane_b32 v{V_PROF}, s98, m0')
        I(f's_sub_u32 s{S_CNT}, s{S_CNT}, 1')
        I(f's_cmp_eq_u32 s{S_CNT}, 0')
        I(f's_cbranch_scc1 L_FIN{par}')
        I(f's_cmp_eq_u32 s{S_CNT}, 1')
        I(f's_cselect_b64 {sp(S_LDX)}, 0, {LDXV}')
        prio(f'{par}')
        half(lg, 0, par ^ 1, uo + 1)
    def loop_body():
        step(0, 0)
        step(1, 1)
        I(f'v_lshl_add_u64 {p(V_PS0)}, {p(V_PS0)}, 0, {sp(S_BP0)}')
        I(f'v_lshl_add_u64 {p(V_PE)}, {p(V_PE)}, 0, {sp(S_BP1)}')
        I('s_branch L_LOOP')
    mark = len(out)
    loop_body()
    del out[mark:]
    qb = list(lg.q)
    n = min(len(qb), len(state0))
    assert PROF == 4 or qb[len(qb)-n:] == state0[len(state0)-n:], (state0, qb)
    lg.q = list(qb if len(qb) >= len(state0) else state0)
    e('.p2align 3')
    L('L_LOOP')
    mark = len(out)
    loop_body()
    drop = opt('drop', '')
    if drop:
        body = out[mark:]
        keep = []
        for l in body:
            t = l.strip()
            if 'v' in drop and (t.startswith('buffer_load') or t.startswith('s_mov_b64 exec') or 'vmcnt' in t):
                continue
            if 'l' in drop and (t.startswith('ds_') or 'lgkmcnt' in t):
                continue
            if 'm' in drop and t.startswith('v_mfma'):
                continue
            if 'n' in drop and t.startswith('s_nop'):
                continue
            keep.append(l)
        out[mark:] = keep
    assert lg.q == qb, (lg.q, qb)
    print('loop entry queue', state0, 'back edge queue', qb, file=sys.stderr)
    for pr in range(2):
        L(f'L_FIN{pr}')
        if M8:
            I(f'v_pk_mul_f32 {p(V_T01N)}, {p(V_T01N)}, {p(V_T23D)}')
            I(f'v_pk_mul_f32 {p(V_T23D)}, {p(V_T01D)}, {p(V_T23D)}')
            I(f'v_pk_fma_f32 {p(V_T01N)}, {p(V_T23N)}, {p(V_T01D)}, {p(V_T01N)}')
            I(f'v_rcp_f32 v{V_T23D}, v{V_T23D}')
            I(f'v_rcp_f32 v{V_T23D+1}, v{V_T23D+1}')
            I('s_waitcnt lgkmcnt(0)')
            I(f'v_pk_fma_f32 {p(V_MB)}, {p(V_T01N)}, {p(V_T23D)}, {p(V_MB)}')
        else:
            for r_ in (V_T01D, V_T01D + 1, V_T23D, V_T23D + 1):
                I(f'v_rcp_f32 v{r_}, v{r_}')
            I('s_waitcnt lgkmcnt(0)')
            I(f'v_pk_fma_f32 {p(V_MB)}, {p(V_T01N)}, {p(V_T01D)}, {p(V_MB)}')
            I(f'v_pk_fma_f32 {p(V_MB)}, {p(V_T23N)}, {p(V_T23D)}, {p(V_MB)}')
        acc_write(Lg(), V_VAA[pr])
        if pr == 0:
            I('s_branch L_FOLD')
    L('L_FOLD')
    stamp(16)
    I(f'v_lshrrev_b32 v{X}, 4, v{V_TID}')
    I(f'v_and_b32 v{X+1}, 15, v{V_TID}')
    I(f'v_lshlrev_b32 v{X+6}, 2, v{X+1}')
    I(f'v_lshlrev_b32 v{X+1}, 4, v{X+1}')
    I(f'v_lshl_add_u32 v{X+2}, v{X}, 8, v{X+1}')
    I(f'v_add_u32 v{X+2}, {ACCN}, v{X+2}')
    I(f'v_add_u32 v{X+1}, {EXTRA}, v{X+1}')
    I(f'v_lshlrev_b32 v{X+3}, 2, v{X}')
    I(f's_mul_i32 s{S_T+4}, s3, {NB*128}')
    I(f'v_lshl_add_u32 v{X+6}, v{X}, 7, v{X+6}')
    I(f'v_add_u32 v{X+6}, s{S_T+4}, v{X+6}')
    I(f'v_mov_b32 v{X+7}, 0')
    I(f'ds_read_b32 v{X+4}, v{X+3} offset:{NINFO}')
    I(f'ds_read_b32 v{X+5}, v{X+3} offset:{NINFO+256}')
    I(f's_mov_b32 s{S_T+2}, 0x{f2u(2.0**-(SV+KH)):x}')
    I(f's_mov_b32 s{S_T+3}, 0x{f2u(-LOG2E * 2.0**-(SV+KH)):x}')
    I(f'v_cmp_gt_u32 vcc, {NB*16}, v{V_TID}')
    I('s_waitcnt vmcnt(0) lgkmcnt(0)')
    I('s_barrier')
    stamp(17)
    rstamp(29)
    if PROF:
        I(f'v_writelane_b32 v{V_PROF}, s{S_L}, 27')
    I(f's_and_saveexec_b64 {sp(S_EX)}, vcc')
    I('s_cbranch_execz L_FDONE')
    I(f'ds_read_b128 v[64:67], v{X+2}')
    I(f's_mov_b64 {sp(S_T)}, exec')
    L('L_FLOOP')
    I(f'v_cmp_lt_u32 vcc, v{X+4}, v{X+5}')
    I('s_and_b64 exec, exec, vcc')
    I('s_cbranch_execz L_FLEND')
    I(f'v_add_u32 v{X+4}, 1, v{X+4}')
    I(f'v_lshl_add_u32 v{X+7}, v{X+4}, 8, v{X+1}')
    I(f'ds_read_b128 v[72:75], v{X+7}')
    I('s_waitcnt lgkmcnt(0)')
    for k in range(4):
        I(f'v_add_f32 v{64+k}, v{64+k}, v{72+k}')
    I('s_branch L_FLOOP')
    L('L_FLEND')
    I(f's_mov_b64 exec, {sp(S_T)}')
    I('s_waitcnt lgkmcnt(0)')
    I(f's_cmp_lg_u32 s{S_MORE}, 0')
    I('s_cbranch_scc1 L_WB')
    for k in range(4):
        I(f'v_mul_f32 v{72+k}, s{S_T+3}, v{64+k}')
    for k in range(4):
        I(f'v_exp_f32 v{72+k}, v{72+k}')
    for k in range(4):
        I(f'v_mul_f32 v{64+k}, s{S_T+2}, v{64+k}')
    for k in range(4):
        I(f'v_add_f32 v{72+k}, 1.0, v{72+k}')
    for k in range(4):
        I(f'v_rcp_f32 v{72+k}, v{72+k}')
    I('s_nop 0')
    for k in range(4):
        I(f'v_mul_f32 v{64+k}, v{64+k}, v{72+k}')
    I('v_cvt_pk_bf16_f32 v80, v64, v66')
    I('v_cvt_pk_bf16_f32 v81, v65, v67')
    I(f'buffer_store_dword v80, v{X+6}, {sr4(S_OUT)}, 0 offen' + OSC)
    I(f'buffer_store_dword v81, v{X+6}, {sr4(S_OUT)}, 0 offen offset:64' + OSC)
    stamp(18)
    prof_store()
    diag_end()
    I('s_endpgm')
    L('L_WB')
    I(f'ds_write_b128 v{X+2}, v[64:67]')
    L('L_FDONE')
    I('s_mov_b64 exec, -1')
    I(f's_cmp_eq_u32 s{S_MORE}, 0')
    I('s_cbranch_scc1 L_QUIT')
    I(f's_add_u32 s{S_JB}, s{S_JB}, s{S_WID}')
    I('s_branch L_REFILL')
    L('L_OVERFLOW')
    I(f's_mov_b32 s{S_WID}, 64')
    L('L_REFILL')
    I('s_waitcnt vmcnt(0) lgkmcnt(0)')
    I('s_barrier')
    fill_zero()
    fill_words()
    ptr_consts()
    I('s_waitcnt lgkmcnt(0)')
    I('s_barrier')
    I('s_branch L_PASS')
    L('L_QUIT')
    prof_store()
    L('L_END')
    I('s_endpgm')

hdr = open('standalone__edge_featured_mpnn_egc__graph.s.ref').read().split('\n')
for line in hdr:
    if line.startswith('; Override'):
        break
    e(line)
e(f'; @launch grid=({NWG},1,1) block=(1024,1,1) lds={LDS_BYTES}')
e('.amdgcn_target "amdgcn-amd-amdhsa--gfx950"')
e('.text')
gen()
e('.section .rodata,"a"')
e('.p2align 6')
e(f'.amdhsa_kernel {KNAME}')
e('  .amdhsa_next_free_vgpr 128')
e('  .amdhsa_next_free_sgpr 102')
e('  .amdhsa_accum_offset 128')
e('  .amdhsa_group_segment_fixed_size 0')
e('  .amdhsa_kernarg_size 80')
e('  .amdhsa_user_sgpr_count 2')
e('  .amdhsa_user_sgpr_kernarg_segment_ptr 1')
e('  .amdhsa_system_sgpr_workgroup_id_x 1')
e('  .amdhsa_float_denorm_mode_32 3')
e('.end_amdhsa_kernel')
open(sys.argv[1], 'w').write('\n'.join(x for x in out if x is not None) + '\n')
```

```python
import sys, struct

OPT = dict(a.split('=') for a in sys.argv[2:] if '=' in a)
def opt(name, default):
    return type(default)(OPT.get(name, default))

KNAME = 'standalone__edge_featured_mpnn_egc__graph_kernel'
N_NODES = 12500
E_EDGES = 800000
NB = 49
NWG = 256
CH = 3136
WS_RW = 0
WS_RE = 0x00400000
CAP = CH + 256
WS_TAB = 0x00B00000
WS_NT = 0x00C00000
WS_PROF = 0x01000000
M8 = opt('m8', 0)
if M8:
    KH, KEXP, SV = 13, 26, 0
else:
    KH, KEXP, SV = 31, 31, 30
LOG2E = 1.4426950408889634
SC = opt('sc', 'sc1')
SC = (' ' + SC.replace('+', ' ')) if SC != 'none' else ''
LSC = opt('lsc', 'sc1')
LSC = (' ' + LSC.replace('+', ' ')) if LSC != 'none' else ''
GSC = opt('gsc', 'sc1')
GSC = (' ' + GSC.replace('+', ' ')) if GSC != 'none' else ''
ELD = opt('eld', 'none')
ELD = (' ' + ELD.replace('+', ' ')) if ELD != 'none' else ''

def f2u(x):
    return struct.unpack('<I', struct.pack('<f', x))[0]

out = []
def e(s=''):
    out.append(s)
def I(s):
    out.append('    ' + s)
def L(name):
    out.append(name + ':')
def vr(a, n):
    return f'v[{a}:{a+n-1}]' if n > 1 else f'v{a}'
def sr4(a):
    return f's[{a}:{a+3}]'
def sp(a):
    return f's[{a}:{a+1}]'
def p(r):
    return f'v[{r}:{r+1}]'

def srd(d, lo, hi, nrec):
    I(f's_mov_b32 s{d}, s{lo}')
    I(f's_mov_b32 s{d+1}, s{hi}')
    I(f's_mov_b32 s{d+2}, {nrec}')
    I(f's_mov_b32 s{d+3}, 0x00020000')

def srd_off(d, lo, hi, off, nrec):
    I(f's_add_u32 s{d}, s{lo}, {off}')
    I(f's_addc_u32 s{d+1}, s{hi}, 0')
    I(f's_mov_b32 s{d+2}, {nrec}')
    I(f's_mov_b32 s{d+3}, 0x00020000')

def wave_scan(v):
    for sh in (1, 2, 4, 8):
        I('s_nop 1')
        I(f'v_add_u32_dpp v{v}, v{v}, v{v} row_shr:{sh} row_mask:0xf bank_mask:0xf')
    I('s_nop 1')
    I(f'v_add_u32_dpp v{v}, v{v}, v{v} row_bcast:15 row_mask:0xa bank_mask:0xf')
    I('s_nop 1')
    I(f'v_add_u32_dpp v{v}, v{v}, v{v} row_bcast:31 row_mask:0xc bank_mask:0xf')
    I('s_nop 1')

LS = 0
ZR = 18688
LE = 18688
CNT = 56064
MISC = 56320
BASET = 56576
NINFO = 56832
HIST = 57344
HBASE = 58368
DESCP = 59392
EXTRA = 67840
DESCA = 84224
PT = 86784
ACCN = 99328
WRAW = 111872
WG_, WV_, WU_ = WRAW, WRAW + 17408, WRAW + 25600
XOWN = WRAW + 33792
LDS_BYTES = XOWN + 8192
STGW = 0
STGE = CAP * 4
NTI = EXTRA
MAXG = 576
assert STGE + CAP * 8 <= CNT

V_TID, V_LANE = 0, 1
V_MA, V_MB = 2, 4
V_VAA = (6, 8)
V_VAP = 10
V_PS0, V_PS1, V_PE, V_PD, V_CH8, V_CHP = 12, 13, 14, 15, 16, 17
V_PROF = 18
V_TAB = 20
V_J4, V_CB4 = 24, 25
V_X = 26
V_T01D, V_T01N, V_T23D, V_T23N = 40, 42, 44, 46
B5 = (48, 52)
A5 = 56
V_TT = (60, 62)
G = (64, 80)
Z = 96
S = 112

S_XS, S_WS, S_DST, S_SRC, S_EA, S_RW, S_RE, S_TAB, S_NTS, S_NTG, S_OUT = 12, 16, 20, 24, 28, 32, 36, 40, 44, 48, 52
S_MASK = 56
S_W, S_L, S_CNT, S_JB, S_WID, S_MORE = 72, 73, 74, 75, 76, 77
S_C = 78
S_EX = 80
S_LDX = 82
S_T = 84
S_WSP = 94
S_DBG = 96
S_TAG, S_TAG2 = 100, 101
TAGM = 0xC003C003
TAGL = MISC + 64

NT2 = 2 if opt('touch', 0) else 0
LDXV = 0 if opt('noload', 0) else -1
NPFM = opt('npf', 4)
NPF = {0: 0, 1: 7, 2: 7, 3: 2, 4: 1, 5: 1}[NPFM]
NPF1 = NPF if NPFM in (1, 5) else 0
WSB = opt('wsb', 0) << 20
TCH = 4 if opt('touch', 0) else 0
T1 = opt('t1', 0)
OSC = opt('osc', 'nt')
OSC = (' ' + OSC.replace('+', ' ')) if OSC != 'none' else ''
KREP = opt('krep', 1)
assert KREP == 1
CM = opt('cm', 1)
RSTEP = 64 if CM else 8
PROF = opt('prof', 0)
DIAG = opt('diag', -1)
def diag_end():
    if DIAG < 0:
        return
    I('s_memrealtime s[98:99]')
    I('s_waitcnt lgkmcnt(0)')
    I('v_readlane_b32 s92, v18, 1')
    I('v_readlane_b32 s93, v18, 0')
    I('s_nop 3')
    I('s_sub_u32 s92, s92, s93')
    I('s_lshl_b32 s92, s92, 2')
    I('s_mov_b32 s93, s98')
    lbl = f'L_DG{len(out)}'
    L(lbl)
    I('s_memrealtime s[98:99]')
    I('s_waitcnt lgkmcnt(0)')
    I('s_sub_u32 s98, s98, s93')
    I('s_cmp_lt_u32 s98, s92')
    I(f's_cbranch_scc1 {lbl}')
def stamp(i):
    if DIAG >= 0 and i in (0, DIAG):
        I('s_memrealtime s[98:99]')
        I('s_waitcnt lgkmcnt(0)')
        if i == 0:
            I('v_writelane_b32 v18, s98, 0')
        if i == DIAG:
            I('v_writelane_b32 v18, s98, 1')
    if not PROF:
        return
    I('s_memtime s[98:99]')
    I('s_waitcnt lgkmcnt(0)')
    I(f'v_writelane_b32 v{V_PROF}, s98, {i}')
def rstamp(i):
    if not PROF:
        return
    I('s_memrealtime s[98:99]')
    I('s_waitcnt lgkmcnt(0)')
    I(f'v_writelane_b32 v{V_PROF}, s98, {i}')
def prof_store():
    if not PROF:
        return
    rstamp(31)
    if PROF == 3:
        I(f's_lshl_b32 s98, s2, 4')
        I(f's_add_u32 s98, s98, s{S_W}')
        I(f's_cmp_lg_u32 s98, {opt("pwave", 80)}')
        I('s_cbranch_scc1 L_END')
        I('s_mov_b64 exec, -1')
        I(f'v_readlane_b32 s98, v{V_PROF}, 0')
        I(f'v_readlane_b32 s99, v{V_PROF}, 30')
        I(f'v_readlane_b32 s{S_T}, v{V_PROF}, 31')
        I('s_nop 3')
        I(f's_sub_u32 s{S_T}, s{S_T}, s99')
        I(f's_add_u32 s{S_T}, s{S_T}, s98')
        I(f'v_writelane_b32 v{V_PROF}, s{S_T}, 9')
        I(f'v_subrev_u32 v{V_PROF}, s98, v{V_PROF}')
        I(f'v_mbcnt_lo_u32_b32 v{V_PROF+1}, -1, 0')
        I(f'v_lshlrev_b32 v{V_PROF+1}, 2, v{V_PROF+1}')
        I(f'v_add_u32 v{V_PROF+1}, -8, v{V_PROF+1}')
        I('s_mov_b64 exec, 0x3fff8')
        I(f'global_store_dword v{V_PROF+1}, v{V_PROF}, {sp(S_DBG)}')
        return
    I('s_mov_b64 exec, 0xffffffff')
    I(f's_add_u32 s{S_T}, s{S_WSP}, 0x{WS_PROF:x}')
    I(f's_addc_u32 s{S_T+1}, s{S_WSP+1}, 0')
    I(f'v_mbcnt_lo_u32_b32 v{V_PROF+1}, -1, 0')
    I(f'v_lshlrev_b32 v{V_PROF+1}, 2, v{V_PROF+1}')
    I(f's_lshl_b32 s98, s2, 4')
    I(f's_add_u32 s98, s98, s{S_W}')
    I(f's_lshl_b32 s98, s98, 7')
    I(f'v_add_u32 v{V_PROF+1}, s98, v{V_PROF+1}')
    I(f'global_store_dword v{V_PROF+1}, v{V_PROF}, {sp(S_T)}')

class Lg:
    def __init__(self):
        self.q = []
    def op(self, tag, text):
        I(text)
        self.q.append(tag)
    def need(self, *tags):
        idx = -1
        for t in tags:
            for i in range(len(self.q) - 1, -1, -1):
                if self.q[i] == t:
                    idx = max(idx, i)
                    break
        if idx < 0:
            return
        n = len(self.q) - 1 - idx
        assert n <= 15, (tags, n)
        I(f's_waitcnt lgkmcnt({n})')
        self.q = self.q[idx + 1:]

X = V_X

def zero_range(a, nbytes, zr, ad):
    k = 0
    base = a if a + nbytes <= 65536 + 16384 and a < 65536 - 3 * 16384 else None
    off = 0
    areg = ad
    if a + ((nbytes - 1) // 16384) * 16384 > 65535:
        I(f'v_add_u32 v{X+1}, {a}, v{ad}')
        areg = X + 1
        a0 = 0
    else:
        a0 = a
    while off < nbytes:
        n = min(16384, nbytes - off)
        if n < 16384:
            I(f'v_cmp_gt_u32 vcc, {n // 16}, v{V_TID}')
            I(f's_and_saveexec_b64 {sp(S_EX)}, vcc')
        I(f'ds_write_b128 v{areg}, v[{zr}:{zr+3}] offset:{a0 + off}')
        if n < 16384:
            I(f's_mov_b64 exec, {sp(S_EX)}')
        off += n

def zregs():
    I(f'v_lshlrev_b32 v{X}, 4, v{V_TID}')
    for k in range(4):
        I(f'v_mov_b32 v{X+2+k}, 0')

def fill_desca():
    I(f'v_and_b32 v{X+6}, 15, v{V_TID}')
    I(f'v_lshlrev_b32 v{X+6}, 10, v{X+6}')
    I(f'v_add_u32 v{X+6}, {EXTRA}, v{X+6}')
    for k in range(1, 4):
        I(f'v_add_u32 v{X+6+k}, {256*k}, v{X+6}')
    I(f'v_add_u32 v{X+1}, {DESCA}, v{X}')
    I(f'v_cmp_gt_u32 vcc, 160, v{V_TID}')
    I(f's_and_saveexec_b64 {sp(S_EX)}, vcc')
    I(f'ds_write_b128 v{X+1}, v[{X+6}:{X+9}]')
    I(f's_mov_b64 exec, {sp(S_EX)}')

def fill_zero():
    zregs()
    zero_range(ZR, 65536, X + 2, X)
    fill_desca()

def fill_words():
    I(f'v_lshlrev_b32 v{X}, 4, v{V_TID}')
    I(f'v_and_b32 v{X+2}, 7, v{V_TID}')
    I(f'v_lshlrev_b32 v{X+2}, 5, v{X+2}')
    I(f'v_add_u32 v{X+2}, {N_NODES*8}, v{X+2}')
    for k in range(1, 4):
        I(f'v_add_u32 v{X+2+k}, {8*k}, v{X+2}')
    I(f'ds_write_b128 v{X}, v[{X+2}:{X+5}] offset:{LS}')
    I(f'v_cmp_gt_u32 vcc, 144, v{V_TID}')
    I(f's_and_saveexec_b64 {sp(S_EX)}, vcc')
    I(f'ds_write_b128 v{X}, v[{X+2}:{X+5}] offset:{LS+16384}')
    I(f's_mov_b64 exec, {sp(S_EX)}')

V_C8P, V_CPP, V_SCP = 26, 28, 30
S_BP0, S_BP1 = 88, 90

def tail_ops(n):
    M = (V_MA, V_MB)[n]
    return [f'v_rcp_f32 v{V_T01D}, v{V_T01D}',
            f'v_rcp_f32 v{V_T01D+1}, v{V_T01D+1}',
            f'v_pk_fma_f32 {p(M)}, {p(V_T01N)}, {p(V_T01D)}, {p(M)}']

def acc_write(lg, va):
    lg.op('Wa', f'ds_write2_b32 v{va}, v{V_MA}, v{V_MB} offset0:0 offset1:1')
    lg.op('Wb', f'ds_write2_b32 v{va+1}, v{V_MA+1}, v{V_MB+1} offset0:0 offset1:1')

def acc_read(lg, va):
    lg.op('Ra', f'ds_read_b32 v{V_MA}, v{va}')
    lg.op('Rb', f'ds_read_b32 v{V_MA+1}, v{va+1}')
    lg.op('Rc', f'ds_read_b32 v{V_MB}, v{va} offset:4')
    lg.op('Rd', f'ds_read_b32 v{V_MB+1}, v{va+1} offset:4')

def va_add(vap, vaa):
    I(f'v_lshl_add_u64 {p(vap)}, {p(vap)}, 0, {p(V_CPP)}')
    I(f'v_lshl_add_u64 {p(vaa)}, {p(vaa)}, 0, {p(V_C8P)}')

def gload(n, i):
    return f'buffer_load_dword v{G[n]+i}, v{S + (i & 1) * 8 + (i >> 1)}, {sr4(S_NTG)}, 0 offen offset:{4*n}' + GSC

def s_safe():
    if opt('safe', 0):
        for i in range(16):
            I(f'v_and_b32 v{S+i}, 0x1fff8, v{S+i}')

def s_reads(lg, uo):
    lg.op('S0', f'ds_read_b128 {vr(S,4)}, v{V_PS0} offset:{uo*32}')
    lg.op('S1', f'ds_read_b128 {vr(S+4,4)}, v{V_PS0} offset:{uo*32+16}')
    lg.op('S2', f'ds_read_b128 {vr(S+8,4)}, v{V_PS1} offset:{uo*32}')
    lg.op('S3', f'ds_read_b128 {vr(S+12,4)}, v{V_PS1} offset:{uo*32+16}')

def half(lg, n, par, uo, with_tail=True):
    g = G[n]
    I('s_waitcnt vmcnt(16)')
    if n == 0:
        lg.need('P0a', 'P0b', 'e')
    else:
        lg.need('P1a', 'P1b')
    I(f'v_mfma_f32_32x32x16_bf16 {vr(Z,16)}, {vr(A5,4)}, {vr(B5[n],4)}, {vr(g,16)}')
    t = tail_ops(n ^ 1)
    va_prev, va_cur, va_nxt = V_VAA[par ^ 1], V_VAA[par], V_VAA[par ^ 1]
    sh = [f'v_lshlrev_b32 v{g+i}, 16, v{g+i}' for i in range(16)]
    ex = [f'v_exp_f32 v{Z+i}, v{Z+i} clamp' for i in range(16)]
    l3 = [f'v_pk_mul_f32 {p(V_T01N)}, {p(V_T01N)}, {p(V_T23D)}',
          f'v_pk_mul_f32 {p(V_T23D)}, {p(V_T01D)}, {p(V_T23D)}',
          f'v_pk_fma_f32 {p(V_T01N)}, {p(V_T23N)}, {p(V_T01D)}, {p(V_T01N)}',
          f'v_rcp_f32 v{V_T23D}, v{V_T23D}',
          f'v_rcp_f32 v{V_T23D+1}, v{V_T23D+1}',
          f'v_pk_fma_f32 {p((V_MA, V_MB)[n ^ 1])}, {p(V_T01N)}, {p(V_T23D)}, {p((V_MA, V_MB)[n ^ 1])}']
    if with_tail and not M8:
        for r_ in (V_T01D, V_T01D + 1, V_T23D, V_T23D + 1):
            I(f'v_rcp_f32 v{r_}, v{r_}')
    else:
        I('s_nop 3')
    if n == 1:
        lg.op('e', f'ds_read_b64 {p(A5)}, v{V_PE} offset:{(uo+1)*64}')
        lg.op('P1a', f'ds_read_b32 v{B5[1]+2}, v{V_VAP} offset:4')
        lg.op('P1b', f'ds_read_b32 v{B5[1]+3}, v{V_VAP+1} offset:4')
    else:
        lg.op('dP', f'ds_read_b64 {p(V_VAP)}, v{V_PD} offset:{(uo+1)*256}')
        I('s_nop 1')
    for op in sh[:8]:
        I(op)
    seq = []
    if with_tail and not M8:
        Mp = p((V_MA, V_MB)[n ^ 1])
        seq = ['NEED', f'v_pk_fma_f32 {Mp}, {p(V_T01N)}, {p(V_T01D)}, {Mp}', ex[0],
               f'v_pk_fma_f32 {Mp}, {p(V_T23N)}, {p(V_T23D)}, {Mp}', sh[8], 'ACC', ex[1], sh[9]]
    elif with_tail:
        seq = [l3[0], l3[1], ex[0], l3[2], l3[3], sh[8], l3[4], ex[1], sh[9], 'NEED', l3[5], 'ACC']
    else:
        seq = [ex[0], sh[8], ex[1], sh[9], 'ACC']
    for op in seq:
        if op == 'NEED':
            lg.need('Ra', 'Rb', 'Rc', 'Rd')
        elif op == 'ACC':
            if n == 0:
                if with_tail:
                    acc_write(lg, va_prev)
                acc_read(lg, va_cur)
                lg.op('dA', f'ds_read_b64 {p(va_nxt)}, v{V_PD} offset:{(uo+1)*256 + DESCA - DESCP}')
        else:
            I(op)
    for i in range(2, 12):
        I(ex[i])
        if 8 + i < 16:
            I(sh[8 + i])
        if n == 0 and i == 11:
            lg.need('dP', 'dA')
            va_add(V_VAP, va_nxt)
            lg.op('P0a', f'ds_read_b32 v{B5[0]+2}, v{V_VAP}')
            lg.op('P0b', f'ds_read_b32 v{B5[0]+3}, v{V_VAP+1}')
    for op in ex[12:]:
        I(op)
    for i in range(0, 16, 2):
        if M8:
            I(f'v_pk_fma_f32 {p(Z+i)}, {p(Z+i)}, {p(V_SCP)}, {sp(S_C)}')
        else:
            I(f'v_pk_add_f32 {p(Z+i)}, {p(Z+i)}, {sp(S_C)}')
    def T(k): return f'v_pk_mul_f32 {p(V_TT[k&1])}, {p(g+4*k)}, {p(Z+4*k+2)}'
    def DD(k): return f'v_pk_mul_f32 {p(Z+4*k+2)}, {p(Z+4*k)}, {p(Z+4*k+2)}'
    def NN(k): return f'v_pk_fma_f32 {p(Z+4*k)}, {p(g+4*k+2)}, {p(Z+4*k)}, {p(V_TT[k&1])}'
    for k0 in (0, 2):
        for op in (T(k0), T(k0 + 1), DD(k0), DD(k0 + 1), NN(k0), NN(k0 + 1)):
            I(op)
        if n == 0 and k0 == 0:
            lg.need('S0', 'S1', 'S2', 'S3')
            s_safe()
        I(f's_mov_b64 exec, {sp(S_LDX)}')
        for i in range(4 * k0, 4 * k0 + 8):
            I(gload(n, i))
        I('s_mov_b64 exec, -1')
    if n == 1:
        s_reads(lg, uo + 2)
    I(f'v_pk_mul_f32 {p(V_T01N)}, {p(Z)}, {p(Z+6)}')
    I(f'v_pk_mul_f32 {p(V_T23N)}, {p(Z+8)}, {p(Z+14)}')
    I(f'v_pk_mul_f32 {p(V_T01D)}, {p(Z+2)}, {p(Z+6)}')
    I(f'v_pk_mul_f32 {p(V_T23D)}, {p(Z+10)}, {p(Z+14)}')
    I(f'v_pk_fma_f32 {p(V_T01N)}, {p(Z+4)}, {p(Z+2)}, {p(V_T01N)}')
    I(f'v_pk_fma_f32 {p(V_T23N)}, {p(Z+12)}, {p(Z+10)}, {p(V_T23N)}')

PRIO = {
    3: {(3, 0): 2, (2, 0): 1, (1, 0): 0},
    5: {(2, 0): 2, (1, 0): 1, (1, 1): 0},
    6: {(3, 0): 2, (1, 0): 1, (1, 1): 0},
    7: {(2, 1): 2, (1, 0): 1, (1, 1): 0},
    8: {(4, 0): 2, (2, 0): 1, (1, 1): 0},
    9: {(3, 0): 2, (2, 1): 1, (1, 1): 0},
    0: {},
}[opt('prio', 9)]
def prio(tag, phase=0):
    for (t, ph), lvl in PRIO.items():
        if ph != phase:
            continue
        I(f's_cmp_eq_u32 s{S_CNT}, {t}')
        I(f's_cbranch_scc0 L_PR{tag}_{lvl}')
        I(f's_setprio {lvl}')
        L(f'L_PR{tag}_{lvl}')

def split_hilo(a, b, t0, t1):
    I(f'v_cvt_pk_bf16_f32 v{t0}, v{a}, v{b}')
    I(f'v_lshlrev_b32 v{t1}, 16, v{t0}')
    I(f'v_and_b32 v{t0}, 0xffff0000, v{t0}')
    I(f'v_sub_f32 v{a}, v{a}, v{t1}')
    I(f'v_sub_f32 v{b}, v{b}, v{t0}')
    I(f'v_cvt_pk_bf16_f32 v{a}, v{t1}, v{a}')
    I(f'v_cvt_pk_bf16_f32 v{b}, v{t0}, v{b}')

V_AA, V_AB, V_AD, V_AP = 6, 7, 8, 9
SA, SB, SD = 80, 96, 112

def phase0_addr():
    I(f's_and_b32 s{S_T}, s{S_W}, 3')
    I(f's_lshr_b32 s{S_T+1}, s{S_W}, 2')
    I(f'v_and_b32 v12, 15, v{V_LANE}')
    I(f'v_lshrrev_b32 v13, 4, v{V_LANE}')
    I(f'v_bfe_u32 v14, v{V_LANE}, 1, 3')
    I(f'v_xor_b32 v14, v14, v13')
    I(f'v_lshlrev_b32 v14, 4, v14')
    I(f'v_lshl_or_b32 v14, v12, 7, v14')
    I(f's_lshl_b32 s{S_T+2}, s{S_T}, 11')
    I(f'v_add_u32 v{V_AA}, s{S_T+2}, v14')
    I(f'v_bfe_u32 v14, v{V_LANE}, 2, 2')
    I(f'v_lshl_add_u32 v14, v13, 3, v14')
    I(f'v_lshlrev_b32 v14, 7, v14')
    I(f'v_and_b32 v15, 3, v{V_LANE}')
    I(f'v_lshl_add_u32 v14, v15, 3, v14')
    I(f's_lshl_b32 s{S_T+2}, s{S_T+1}, 5')
    I(f'v_or_b32 v14, s{S_T+2}, v14')
    I(f'v_and_b32 v15, 24, v{V_LANE}')
    I(f'v_lshlrev_b32 v15, 2, v15')
    I(f'v_xor_b32 v14, v14, v15')
    I(f'v_add_u32 v{V_AB}, {WRAW}, v14')
    I(f's_lshl_b32 s{S_T+2}, s{S_T}, 12')
    I(f'v_lshlrev_b32 v13, 10, v13')
    I(f'v_add_u32 v13, s{S_T+2}, v13')
    I(f's_lshl_b32 s{S_T+2}, s{S_T+1}, 6')
    I(f's_add_u32 s{S_T+2}, s{S_T+2}, {NTI}')
    I(f'v_lshl_add_u32 v{V_AD}, v12, 2, v13')
    I(f'v_add_u32 v{V_AD}, s{S_T+2}, v{V_AD}')
    I(f's_and_b32 s{S_T+2}, s{S_T+1}, 1')
    I(f's_lshl_b32 s{S_T+2}, s{S_T+2}, 7')
    I(f's_lshr_b32 s{S_T+3}, s{S_T+1}, 1')
    I(f's_lshl_b32 s{S_T+3}, s{S_T+3}, 2')
    I(f's_add_u32 s{S_T+2}, s{S_T+2}, s{S_T+3}')
    I(f's_add_u32 s{S_T+2}, s{S_T+2}, {PT}')
    I(f'v_lshl_add_u32 v{V_AP}, v12, 3, v13')
    I(f'v_add_u32 v{V_AP}, s{S_T+2}, v{V_AP}')

def b_reads(dst, off):
    for sg in range(2):
        for pp in range(2):
            I(f'ds_read_b64_tr_b16 {vr(dst+4*sg+2*pp,2)}, v{V_AB} offset:{off+sg*4096+pp*512}')

def mm16(d, b):
    I(f'v_mfma_f32_16x16x32_bf16 {vr(d,4)}, {vr(SA,4)}, {vr(b,4)}, 0')
    I(f'v_mfma_f32_16x16x32_bf16 {vr(d,4)}, {vr(SA+4,4)}, {vr(b+4,4)}, {vr(d,4)}')

def phase0a():
    I(f'v_add_u32 v12, {XOWN}, v{V_AA}')
    I(f'v_xor_b32 v13, 64, v{V_AA}')
    I(f'v_add_u32 v13, {XOWN}, v13')
    I(f'ds_read_b128 {vr(SA,4)}, v12')
    I(f'ds_read_b128 {vr(SA+4,4)}, v13')
    b_reads(SB, 8192)
    b_reads(SB + 8, WV_ - WRAW)
    I(f's_mov_b32 s{S_T+4}, 0x{f2u(-LOG2E):x}')
    I(f's_mov_b32 s{S_T+6}, 0x7fffffff')
    I(f's_mov_b32 s{S_T+7}, 0xffff0000')
    I('s_waitcnt lgkmcnt(4)')
    mm16(SD, SB)
    I('s_waitcnt lgkmcnt(0)')
    mm16(SD + 4, SB + 8)
    I('s_nop 4')
    for i in range(4):
        I(f'v_mul_f32 v{SD+i}, s{S_T+4}, v{SD+i}')
    for i in range(4):
        I(f'v_and_b32 v{SD+8+i}, s{S_T+6}, v{SD+i}')
    for i in range(4):
        if SV:
            I(f'v_mul_f32 v{SD+4+i}, 0x{f2u(2.0**SV):x}, v{SD+4+i}')
        I(f'v_add_u32 v{SD+8+i}, 0x8000, v{SD+8+i}')
    I(f'v_cvt_pk_bf16_f32 v{SD+4}, v{SD+4}, v{SD+5}')
    I(f'v_cvt_pk_bf16_f32 v{SD+6}, v{SD+6}, v{SD+7}')
    I(f'v_lshrrev_b32 v{SD+5}, 16, v{SD+4}')
    I(f'v_lshrrev_b32 v{SD+7}, 16, v{SD+6}')
    I(f'v_and_b32 v{SD+4}, 0xffff, v{SD+4}')
    I(f'v_and_b32 v{SD+6}, 0xffff, v{SD+6}')
    for i in range(4):
        I(f'v_sub_u32 v{SD+8+i}, v{SD+8+i}, v{SD+4+i} clamp')
    for i in range(4):
        I(f'v_and_or_b32 v{SD+8+i}, v{SD+8+i}, s{S_T+7}, v{SD+4+i}')
    for i in range(4):
        I(f'v_bfi_b32 v{SD+i}, s{S_T+6}, v{SD+8+i}, v{SD+i}')
        I(f'ds_write_b32 v{V_AD}, v{SD+i} offset:{i*256}')

def phase0b():
    b_reads(SB, 0)
    b_reads(SB + 8, WU_ - WRAW)
    I(f's_mov_b32 s{S_T+4}, 0x{f2u(-LOG2E):x}')
    I(f's_mov_b32 s{S_T+5}, 0x{f2u(2.0**(SV+KH)):x}')
    I(f'v_mov_b32 v13, 0x{f2u(-float(KEXP)):x}')
    I(f's_and_b32 s{S_T+6}, s{S_W}, 3')
    I('s_waitcnt lgkmcnt(4)')
    mm16(SD, SB)
    I('s_waitcnt lgkmcnt(0)')
    mm16(SD + 4, SB + 8)
    I('s_nop 4')
    for i in range(4):
        I(f'v_fma_f32 v{SD+i}, v{SD+i}, s{S_T+4}, v13')
    split_hilo(SD, SD + 1, 12, 13)
    split_hilo(SD + 2, SD + 3, 12, 13)
    for i in range(4):
        I(f'v_mul_f32 v{SD+4+i}, s{S_T+5}, v{SD+4+i}')
    I(f's_cmp_eq_u32 s{S_T+6}, 3')
    I(f's_cselect_b64 exec, 0xffff, -1')
    I(f'ds_write_b32 v{V_AP}, v{SD}')
    I(f'ds_write_b32 v{V_AP}, v{SD+4} offset:{ACCN-PT}')
    I(f's_cselect_b64 exec, 0, -1')
    for i in range(1, 4):
        I(f'ds_write_b32 v{V_AP}, v{SD+i} offset:{i*256}')
        I(f'ds_write_b32 v{V_AP}, v{SD+4+i} offset:{ACCN-PT+i*256}')
    I('s_mov_b64 exec, -1')

def phase0c():
    I(f'v_bfe_u32 v13, v{V_LANE}, 2, 2')
    I(f'v_lshlrev_b32 v13, 7, v13')
    I(f'v_bfe_u32 v15, v{V_LANE}, 4, 1')
    I(f'v_lshl_add_u32 v13, v15, 5, v13')
    I(f'v_and_b32 v15, 3, v{V_LANE}')
    I(f'v_lshl_add_u32 v13, v15, 3, v13')
    I(f'v_and_b32 v15, 8, v{V_LANE}')
    I(f'v_lshlrev_b32 v15, 2, v15')
    I(f'v_xor_b32 v13, v13, v15')
    I(f'v_add_u32 v13, {WG_ + 16384}, v13')
    I(f'ds_read_b64_tr_b16 v[96:97], v13')
    I(f'ds_read_b64_tr_b16 v[98:99], v13 offset:64')
    I(f's_mov_b32 s{S_T+4}, 0x{f2u(-LOG2E):x}')
    I(f'v_cmp_lt_u32 vcc, 31, v{V_LANE}')
    I('s_waitcnt lgkmcnt(0)')
    for m in range(4):
        I(f'v_lshlrev_b32 v{100+2*m}, 16, v{96+m}')
        I(f'v_and_b32 v{101+2*m}, 0xffff0000, v{96+m}')
    for j in range(8):
        I(f'v_mul_f32 v{100+j}, s{S_T+4}, v{100+j}')
    for m in range(4):
        dst = B5[m >> 1] + (m & 1)
        I(f'v_cvt_pk_bf16_f32 v{96+m}, v{100+2*m}, v{101+2*m}')
        I(f'v_lshlrev_b32 v12, 16, v{96+m}')
        I(f'v_and_b32 v13, 0xffff0000, v{96+m}')
        I(f'v_sub_f32 v12, v{100+2*m}, v12')
        I(f'v_sub_f32 v13, v{101+2*m}, v13')
        I(f'v_cvt_pk_bf16_f32 v12, v12, v13')
        I(f'v_cndmask_b32 v{dst}, v{96+m}, v12, vcc')

def a5_const():
    I(f'v_bfe_u32 v12, v{V_LANE}, 2, 1')
    I(f'v_lshrrev_b32 v13, 5, v{V_LANE}')
    I(f'v_xor_b32 v12, v12, v13')
    I(f'v_and_b32 v13, 1, v{V_LANE}')
    I(f'v_lshl_or_b32 v12, v12, 1, v13')
    I(f'v_mov_b32 v13, 0x3f803f80')
    I(f'v_cmp_eq_u32 vcc, 0, v12')
    I(f'v_cmp_eq_u32 {sp(S_T)}, 1, v12')
    I('s_nop 1')
    I(f'v_cndmask_b32 v{A5+2}, 0, v13, vcc')
    I(f'v_cndmask_b32 v{A5+3}, 0, v13, {sp(S_T)}')

def nt_prefetch(vt, first=0, nl=None, dst=96):
    I(f's_lshr_b32 s{S_T}, s2, 4')
    I(f's_lshl_b32 s{S_T+1}, s{S_W}, 4')
    I(f's_add_u32 s{S_T}, s{S_T}, s{S_T+1}')
    I(f's_and_b32 s{S_T+1}, s{S_T}, 7')
    I(f's_lshl_b32 s{S_T+1}, s{S_T+1}, 5')
    I(f's_lshr_b32 s{S_T}, s{S_T}, 3')
    I(f's_add_u32 s{S_T}, s{S_T}, s{S_T+1}')
    if not opt('xmap', 1):
        I(f's_lshr_b32 s{S_T}, s2, 4')
        I(f's_lshl_b32 s{S_T+1}, s{S_W}, 4')
        I(f's_add_u32 s{S_T}, s{S_T}, s{S_T+1}')
    I(f's_lshl_b32 s{S_T}, s{S_T}, 1')
    I(f's_bfe_u32 s{S_T+1}, s2, 0x10003')
    I(f's_add_u32 s{S_T}, s{S_T}, s{S_T+1}')
    I(f's_mul_i32 s{S_T}, s{S_T}, {NB*128}')
    I(f's_add_u32 s{S_T}, s{S_T}, 0x{WS_NT:x}')
    srd_off(S_NTS, S_WSP, S_WSP + 1, f's{S_T}', NB * 128)
    if NPFM >= 3:
        I(f'v_lshlrev_b32 v{vt}, {7 if NPFM >= 4 else 6}, v{V_LANE}')
        I(f'v_add_u32 v{vt+1}, 4096, v{vt}')
        nl = opt("pfl", 20) if nl is None else nl
        I(f's_mov_b32 exec_lo, 0x{(((1 << nl) - 1) << first) & 0xffffffff:x}')
        I(f's_mov_b32 exec_hi, 0x{(((1 << nl) - 1) << first) >> 32:x}')
        for k in range(NPF):
            I(f'buffer_load_dword v{dst+k}, v{vt+k}, {sr4(S_NTS)}, 0 offen' + (LSC if opt('pfsc', 1) else ''))
        I('s_mov_b64 exec, -1')
        return
    I(f'v_lshlrev_b32 v{vt}, 4, v{V_LANE}')
    I(f'v_add_u32 v{vt+1}, 4096, v{vt}')
    for k in range(NPF):
        I(f'buffer_load_dwordx4 {vr(96+4*k,4)}, v{vt+(k>>2)}, {sr4(S_NTS)}, 0 offen offset:{(k&3)*1024}' + LSC)

def ptr_consts():
    I(f'v_lshrrev_b32 v{V_PS1}, 5, v{V_LANE}')
    I(f's_lshl_b32 s{S_T}, s{S_W}, 4')
    I(f's_add_u32 s{S_T}, s{S_T}, {DESCP}')
    I(f'v_lshlrev_b32 v{V_PD}, 3, v{V_PS1}')
    I(f'v_add_u32 v{V_PS1}, v{V_PS1}, v{V_PS1}')
    I(f'v_add_u32 v{V_PD}, s{S_T}, v{V_PD}')
    I(f'v_bfe_u32 v{V_VAP}, v{V_LANE}, 2, 1')
    I(f'v_and_b32 v{V_PE}, 1, v{V_LANE}')
    I(f'v_lshl_or_b32 v{V_VAP}, v{V_VAP}, 1, v{V_PE}')
    I(f'v_bfe_u32 v{V_PE}, v{V_LANE}, 3, 2')
    I(f'v_bfe_u32 v{V_PS0}, v{V_LANE}, 1, 1')
    I(f'v_lshl_or_b32 v{V_PE}, v{V_PE}, 1, v{V_PS0}')
    I(f'v_lshlrev_b32 v{V_PE}, 3, v{V_PE}')
    I(f'v_add_u32 v{V_PE}, {LE}, v{V_PE}')

def gen():
    e(f'.globl {KNAME}')
    e('.p2align 8')
    e(f'.type {KNAME},@function')
    L(KNAME)
    I(f's_cmp_ge_u32 s2, {NWG}')
    I('s_cbranch_scc1 L_END')
    I('s_load_dwordx8 s[84:91], s[0:1], 0')
    I('s_load_dwordx4 s[4:7], s[0:1], 32')
    I('s_load_dwordx4 s[8:11], s[0:1], 48')
    I('s_load_dwordx4 s[56:59], s[0:1], 64')
    if PROF:
        I(f'v_mov_b32 v{V_PROF}, 0')
    rstamp(30)
    stamp(0)
    zregs()
    zero_range(CNT, DESCP + 2560 - CNT, X + 2, X)
    I(f'v_lshlrev_b32 v{X+6}, 2, v{V_TID}')
    I(f's_mul_i32 s61, s2, {CH*4}')
    I(f's_mul_i32 s63, s2, {CH}')
    I(f's_sub_u32 s63, {E_EDGES}, s63')
    I(f's_min_u32 s63, s63, {CH}')
    I(f's_lshl_b32 s64, s63, 2')
    I(f'v_add_u32 v{X+8}, 4096, v{X+6}')
    I(f'v_add_u32 v{X+9}, 8192, v{X+6}')
    I(f'v_add_u32 v{X+10}, 12288, v{X+6}')
    I(f'v_lshrrev_b32 v{X+1}, 6, v{V_TID}')
    I(f'v_and_b32 v{V_LANE}, 63, v{V_TID}')
    I(f'v_readfirstlane_b32 s{S_W}, v{X+1}')
    I('s_and_b32 s3, s2, 7')
    I('s_lshl_b32 s3, s3, 5')
    I('s_lshr_b32 s60, s2, 3')
    I('s_add_u32 s3, s3, s60')
    if not opt('xmap', 1):
        I('s_mov_b32 s3, s2')
    I(f's_mul_i32 s62, s2, {CH*8}')
    I(f's_lshl_b32 s65, s63, 3')
    I(f'v_and_b32 v97, 0x50, v{V_TID}')
    I(f'v_lshlrev_b32 v96, 1, v97')
    I(f'v_or_b32 v97, v97, v96')
    I(f'v_and_b32 v97, 0x60, v97')
    I(f'v_xor_b32 v97, v97, v{X}')
    I(f'v_and_b32 v96, 0x20, v96')
    I(f'v_lshlrev_b32 v98, 4, v{V_LANE}')
    I(f'v_xor_b32 v96, v96, v98')
    I(f's_lshl_b32 s66, s{S_W}, 10')
    I(f'v_and_b32 v101, 0x1fff, v97')
    I(f'v_lshrrev_b32 v98, 3, v{V_TID}')
    I(f'v_bfe_u32 v99, v98, 1, 3')
    I(f'v_and_b32 v100, 7, v{V_TID}')
    I(f'v_xor_b32 v99, v99, v100')
    I(f'v_lshlrev_b32 v99, 4, v99')
    I(f'v_lshl_add_u32 v99, v98, 7, v99')
    I(f's_mul_i32 s60, s3, {NB*128}')
    I(f'v_add_u32 v99, s60, v99')
    I(f'v_add_u32 v96, 16384, v96')
    I('s_waitcnt lgkmcnt(0)')
    I(f's_or_b32 s67, s2, s{S_W}')
    I('s_cmp_lg_u32 s67, 0')
    I('s_cbranch_scc1 L_NOTAG')
    I('s_memrealtime s[68:69]')
    I(f'v_mov_b32 v{X+2}, 0')
    I('s_waitcnt lgkmcnt(0)')
    I('s_or_b32 s68, s68, 1')
    I(f'v_mov_b32 v{X+3}, s68')
    I('s_mov_b64 exec, 1')
    I(f'global_store_dword v{X+2}, v{X+3}, s[56:57] sc1')
    I('s_mov_b64 exec, -1')
    L('L_NOTAG')
    def dst_loads():
        srd_off(S_DST, 90, 91, 's61', 's64')
        for k in range(4):
            I(f'buffer_load_dword v{64+k}, v{X+6 if k == 0 else X+7+k}, {sr4(S_DST)}, 0 offen' + ELD)
    def dma_loads():
        srd(S_WS, 8, 9, 132 * 128)
        I(f's_add_u32 m0, s66, {WG_}')
        srd(S_XS, 84, 85, N_NODES * 128)
        I(f'buffer_load_dwordx4 v97, {sr4(S_WS)}, 0 offen lds')
        I(f's_cmp_lt_u32 s{S_W}, 8')
        I(f's_cselect_b32 s{S_NTS}, s6, s4')
        I(f's_cselect_b32 s{S_NTS+1}, s7, s5')
        I(f's_mov_b32 s{S_NTS+2}, {64*128}')
        I(f's_mov_b32 s{S_NTS+3}, 0x00020000')
        I(f's_add_u32 m0, s66, {WV_}')
        I('s_nop 0')
        I(f'buffer_load_dwordx4 v101, {sr4(S_NTS)}, 0 offen lds')
        I(f's_cmp_lt_u32 s{S_W}, 8')
        I('s_cbranch_scc0 L_D3B')
        I(f's_add_u32 m0, s66, {XOWN}')
        I('s_nop 0')
        I(f'buffer_load_dwordx4 v99, {sr4(S_XS)}, 0 offen lds')
        I('s_branch L_D3C')
        L('L_D3B')
        I(f's_mov_b32 m0, {WG_ + 16384}')
        I('s_nop 0')
        I(f'buffer_load_dwordx4 v96, {sr4(S_WS)}, 0 offen lds')
        L('L_D3C')
    if opt('t0', 0):
        I(f'v_and_b32 v60, 15, v{V_LANE}')
        I(f'v_lshlrev_b32 v60, 20, v60')
        I(f'v_and_b32 v61, 1, v{V_LANE}')
        I(f'v_lshlrev_b32 v61, 20, v61')
        I(f'global_load_dword v62, v60, s[58:59]')
        I(f'global_load_dword v63, v61, s[10:11]')
    ORDER = opt('order', 0)
    if ORDER == 0:
        dma_loads()
    dst_loads()
    if ORDER == 2:
        dma_loads()
    F1 = opt('f1', 1)
    if F1:
        I('s_barrier')
    srd_off(S_SRC, 88, 89, 's61', 's64')
    LATE = opt('late', 1)
    def src_load(k):
        I(f'buffer_load_dword v{68+k}, v{X+6 if k == 0 else 43+k}, {sr4(S_SRC)}, 0 offen' + ELD)
    for k in range(1, 4):
        I(f'v_mov_b32 v{43+k}, v{X+7+k}')
    for k in range(1 if LATE else 4):
        src_load(k)
    srd_off(S_EA, 86, 87, 's62', 's65')
    I(f'v_lshlrev_b32 v92, 3, v{V_TID}')
    for k in range(1, 4):
        I(f'v_add_u32 v{92+k}, {8192*k}, v92')
    def e_load(k):
        I(f'buffer_load_dwordx2 v[{72+2*k}:{73+2*k}], v{92+k}, {sr4(S_EA)}, 0 offen' + ELD)
    NEE = 1 if LATE else opt('nee', 4)
    for k in range(NEE):
        e_load(k)
    if ORDER == 1:
        dma_loads()
    I(f's_mov_b64 {sp(S_DBG)}, s[56:57]')
    I(f's_add_u32 s{S_WSP}, s58, 0x{WSB:x}')
    I(f's_addc_u32 s{S_WSP+1}, s59, 0')
    stamp(1)
    srd(S_OUT, 10, 11, N_NODES * 128)
    I(f's_mul_i32 s{S_T}, s2, {CAP*4}')
    srd_off(S_RW, S_WSP, S_WSP + 1, f's{S_T}', CAP * 4)
    I(f's_lshl_b32 s{S_T}, s{S_T}, 1')
    I(f's_add_u32 s{S_T}, s{S_T}, 0x{WS_RE:x}')
    srd_off(S_RE, S_WSP, S_WSP + 1, f's{S_T}', CAP * 8)
    I(f's_lshl_b32 s{S_T}, s2, 11')
    I(f's_add_u32 s{S_T}, s{S_T}, 0x{WS_TAB:x}')
    srd_off(S_TAB, S_WSP, S_WSP + 1, f's{S_T}', (KREP - 1) * 0x80000 + 2048)
    I(f's_mul_i32 s{S_T}, s3, {NB*256}')
    I(f's_add_u32 s{S_T}, s{S_T}, 0x{WS_NT:x}')
    srd_off(S_NTS, S_WSP, S_WSP + 1, f's{S_T}', NB * 256)
    I(f's_add_u32 s{S_NTG}, s{S_WSP}, 0x{WS_NT:x}')
    I(f's_addc_u32 s{S_NTG+1}, s{S_WSP+1}, 0')
    I(f's_or_b32 s{S_NTG+1}, s{S_NTG+1}, 0x80000000')
    I(f's_mov_b32 s{S_NTG+2}, 0x400000')
    I(f's_mov_b32 s{S_NTG+3}, 0x00c00000')
    srd_off(S_DST, S_WSP, S_WSP + 1, '0x%x' % WS_RW, NWG * CAP * 4)
    if not LATE:
        srd_off(S_SRC, S_WSP, S_WSP + 1, '0x%x' % WS_RE, NWG * CAP * 8)
    for k in range(4):
        I(f'v_add_u32 v{X+1}, {1024*k}, v{V_TID}')
        I(f'v_cmp_gt_u32 {sp(S_MASK+2*k)}, s63, v{X+1}')
    I(f's_mov_b32 s{S_C}, 0x{f2u(2.0**-KH):x}')
    I(f's_mov_b32 s{S_C+1}, 0x{f2u(2.0**-KH):x}')
    I(f's_mov_b32 s{S_JB}, 0')
    I(f's_mov_b32 s{S_WID}, 128')
    I(f'v_and_b32 v{V_J4}, 7, v{V_LANE}')
    I(f'v_lshlrev_b32 v{V_J4}, 3, v{V_J4}')
    if CM:
        I(f'v_and_b32 v{X+1}, 56, v{V_LANE}')
        I(f's_and_b32 s{S_T}, s{S_W}, 1')
        I(f's_lshl_b32 s{S_T}, s{S_T}, 7')
        I(f's_lshr_b32 s{S_T+1}, s{S_W}, 1')
        I(f's_add_u32 s{S_T}, s{S_T}, s{S_T+1}')
    else:
        I(f'v_lshrrev_b32 v{X+1}, 3, v{V_LANE}')
        I(f's_lshl_b32 s{S_T}, s{S_W}, 4')
    I(f'v_add_u32 v{X+1}, s{S_T}, v{X+1}')
    I(f'v_lshlrev_b32 v{V_TAB+2}, 11, v{X+1}')
    I(f'v_mul_u32_u24 v{V_CB4}, {CAP*4}, v{X+1}')
    I(f'v_add_u32 v{V_CB4}, v{V_CB4}, v{V_J4}')
    I(f'v_and_b32 v{V_CH8}, 31, v{V_LANE}')
    I(f'v_lshlrev_b32 v{V_CH8}, 3, v{V_CH8}')
    I(f'v_add_u32 v{V_CHP}, {PT}, v{V_CH8}')
    phase0_addr()
    a5_const()
    if not F1:
        I(f's_waitcnt vmcnt({8 + NEE if ORDER == 0 else 0})')
        I('s_barrier')
    stamp(2)
    def late_loads():
        if LATE:
            for k in range(1, 4):
                src_load(k)
        for k in range(NEE, 4):
            e_load(k)
        I(f'v_mov_b32 v12, 0')
        I(f'global_load_dword v10, v12, {sp(S_DBG)} sc1')
        if TCH:
            I(f'v_lshlrev_b32 v13, 10, v{V_LANE}')
            I(f'buffer_load_dword v60, v13, {sr4(S_RW)}, 0 offen')
            I(f'buffer_load_dword v61, v13, {sr4(S_RE)}, 0 offen')
            I(f'buffer_load_dword v62, v13, {sr4(S_TAB)}, 0 offen')
            I(f'buffer_load_dword v63, v13, {sr4(S_NTS)}, 0 offen')
        srd_off(S_EA, S_WSP, S_WSP + 1, '0x%x' % WS_TAB, KREP * 0x80000)
        if LATE:
            srd_off(S_SRC, S_WSP, S_WSP + 1, '0x%x' % WS_RE, NWG * CAP * 8)
    if not LATE:
        late_loads()
    if not F1:
        phase0a()
    I(f's_mov_b32 s{S_T}, -{NB}')
    I(f'v_mov_b32 v{X+1}, 4')
    BN, WD, RK = 28, 32, 36
    for k in range(4):
        I(f's_waitcnt vmcnt({((5 if ORDER == 0 else 8) if LATE else (12 if ORDER == 0 else 15) + TCH) - k})')
        I(f's_mov_b64 exec, {sp(S_MASK+2*k)}')
        if k == 3:
            I('s_cbranch_execz L_B1')
        I(f'v_mul_u32_u24 v{BN+k}, 21400, v{64+k}')
        I(f'v_lshrrev_b32 v{BN+k}, 20, v{BN+k}')
        I(f'v_mad_i32_i24 v{WD+k}, v{BN+k}, s{S_T}, v{64+k}')
        I(f'v_lshlrev_b32 v{BN+k}, 2, v{BN+k}')
        I(f'ds_add_rtn_u32 v{RK+k}, v{BN+k}, v{X+1} offset:{HIST}')
        I(f'v_lshlrev_b32 v{WD+k}, 26, v{WD+k}')
    L('L_B1')
    I('s_mov_b64 exec, -1')
    if LATE:
        late_loads()
    I(f'v_add_u32 v{X+1}, {NTI}, v{X}')
    stamp(3)
    I({0: 's_waitcnt lgkmcnt(0)', 1: 's_waitcnt vmcnt(1) lgkmcnt(0)', 2: 's_waitcnt vmcnt(9) lgkmcnt(0)'}[ORDER])
    I('s_barrier')
    stamp(4)
    if not F1:
        I(f'ds_read_b128 v[112:115], v{X+1}')
    I(f's_cmp_lg_u32 s{S_W}, 0')
    I('s_cbranch_scc1 L_NOSCAN')
    I(f'ds_read_b128 v[96:99], v{X} offset:{HIST}')
    I('s_waitcnt lgkmcnt(0)')
    for k in range(4):
        I(f'v_add_u32 v{108+k}, 4, v{96+k}')
        I(f'v_and_b32 v{108+k}, -8, v{108+k}')
    I('v_add_u32 v101, v108, v109')
    I('v_add_u32 v102, v101, v110')
    I('v_add_u32 v103, v102, v111')
    I('v_mov_b32 v104, v103')
    wave_scan(104)
    I(f'v_readlane_b32 s{S_T+4}, v104, 63')
    I('v_sub_u32 v104, v104, v103')
    I(f'v_mov_b32 v100, {MISC+8}')
    I(f'v_mov_b32 v105, s{S_T+4}')
    I('ds_write_b32 v100, v105')
    I('v_add_u32 v105, v104, v108')
    I('v_add_u32 v106, v104, v101')
    I('v_add_u32 v107, v104, v102')
    I(f'ds_write_b128 v{X}, v[104:107] offset:{HBASE}')
    for k in range(4):
        I(f'v_lshl_or_b32 v{108+k}, v{96+k}, 16, v{104+k}')
    I(f'ds_write_b128 v{X}, v[108:111] offset:{HIST}')
    L('L_NOSCAN')
    if F1:
        phase0a()
    I('s_waitcnt lgkmcnt(0)')
    if not F1:
        I(f'buffer_store_dwordx4 v[112:115], v{X}, {sr4(S_NTS)}, 0 offen' + SC)
    if T1:
        I(f's_mul_i32 s{S_T+4}, s3, {NB*128}')
        I(f'v_mov_b32 v60, s{S_T+4}')
        I(f'buffer_load_dword v61, v60, {sr4(S_OUT)}, 0 offen')
    I(f's_waitcnt vmcnt({4 if LATE else 6 - F1 + TCH + T1})')
    for k in range(4):
        I(f'v_lshl_or_b32 v{WD+k}, v{68+k}, 3, v{WD+k}')
    I('s_barrier')
    stamp(5)
    if F1:
        I(f'ds_read_b128 v[112:115], v{X+1}')
    for k in range(4):
        I(f's_mov_b64 exec, {sp(S_MASK+2*k)}')
        I(f'ds_read_b32 v{BN+k}, v{BN+k} offset:{HBASE}')
    if F1:
        I('s_mov_b64 exec, -1')
        I('s_waitcnt lgkmcnt(4)')
        I(f'buffer_store_dwordx4 v[112:115], v{X}, {sr4(S_NTS)}, 0 offen' + SC)
    I(f's_waitcnt vmcnt({1 + TCH + T1})')
    I(f'v_readfirstlane_b32 s{S_TAG}, v10')
    for k in range(4):
        I(f's_mov_b64 exec, {sp(S_MASK+2*k)}')
        if k == 3:
            I('s_cbranch_execz L_B2')
        I(f's_waitcnt lgkmcnt({3 - k + 2*k})')
        I(f'v_add_u32 v{RK+k}, v{BN+k}, v{RK+k}')
        I(f'v_add_u32 v{BN+k}, v{RK+k}, v{RK+k}')
        I(f'ds_write_b32 v{RK+k}, v{WD+k} offset:{STGW}')
        I(f'ds_write_b64 v{BN+k}, v[{72+2*k}:{73+2*k}] offset:{STGE}')
    L('L_B2')
    I('s_mov_b64 exec, -1')
    I(f'v_mov_b32 v13, {MISC+8}')
    I(f'ds_read_b32 v13, v13')
    I(f's_mov_b32 s{S_T}, 0x40000')
    L('L_TAGP')
    I(f's_cmp_lg_u32 s{S_TAG}, 0')
    I('s_cbranch_scc1 L_TAGD')
    I(f'v_mov_b32 v12, 0')
    I(f'global_load_dword v10, v12, {sp(S_DBG)} sc1')
    I('s_waitcnt vmcnt(0)')
    I(f'v_readfirstlane_b32 s{S_TAG}, v10')
    I(f's_sub_u32 s{S_T}, s{S_T}, 1')
    I('s_cbranch_scc1 L_END')
    I('s_branch L_TAGP')
    L('L_TAGD')
    I(f'v_add_u32 v{X+2}, 16384, v{X}')
    I(f'v_lshlrev_b32 v12, 3, v{V_LANE}')
    I(f's_mul_i32 s{S_TAG2}, s{S_TAG}, 0x9e3779b1')
    I(f's_and_b32 s{S_TAG2}, s{S_TAG2}, 0x{TAGM:x}')
    I('s_waitcnt lgkmcnt(0)')
    I(f'v_readfirstlane_b32 s{S_T}, v13')
    I('s_barrier')
    I(f's_add_u32 s{S_T}, s{S_T}, 127')
    I(f's_and_b32 s{S_RW+2}, s{S_T}, -128')
    I(f's_lshl_b32 s{S_RE+2}, s{S_RW+2}, 1')
    stamp(6)
    if opt('early', 0):
        I(f'ds_read_b64 v[92:93], v12 offset:{HIST}')
        I(f'ds_read_b64 v[94:95], v12 offset:{HIST+512}')
        I(f'v_lshlrev_b32 v60, 4, v{V_LANE}')
        I('s_waitcnt lgkmcnt(0)')
        for k in range(4):
            I(f'v_or_b32 v{120+2*k}, s{S_TAG2}, v{92+k}')
            I(f'v_mov_b32 v{121+2*k}, s{S_TAG}')
        I(f's_cmp_lg_u32 s{S_W}, 0')
        I('s_cbranch_scc1 L_EARLY')
        I(f'buffer_store_dwordx4 v[120:123], v60, {sr4(S_TAB)}, 0 offen' + SC)
        I(f'buffer_store_dwordx4 v[124:127], v60, {sr4(S_TAB)}, 0 offen offset:1024' + SC)
        L('L_EARLY')
    I(f'ds_read_b128 v[64:67], v{X} offset:{STGW}')
    I(f'ds_read_b128 v[68:71], v{X} offset:{STGE}')
    I(f'ds_read_b128 v[72:75], v{X} offset:{STGE+16384}')
    I(f'ds_read_b64 v[92:93], v12 offset:{HIST}')
    I(f'ds_read_b64 v[94:95], v12 offset:{HIST+512}')
    I('s_waitcnt lgkmcnt(4)')
    I(f'buffer_store_dwordx4 v[64:67], v{X}, {sr4(S_RW)}, 0 offen' + SC)
    I('s_waitcnt lgkmcnt(3)')
    I(f'buffer_store_dwordx4 v[68:71], v{X}, {sr4(S_RE)}, 0 offen' + SC)
    I('s_waitcnt lgkmcnt(2)')
    I(f'buffer_store_dwordx4 v[72:75], v{X+2}, {sr4(S_RE)}, 0 offen' + SC)
    I('s_waitcnt lgkmcnt(0)')
    for k in range(4):
        I(f'v_or_b32 v{120+2*k}, s{S_TAG2}, v{92+k}')
        I(f'v_mov_b32 v{121+2*k}, s{S_TAG}')
    PF1 = opt('pf1', 0)
    if PF1:
        nt_prefetch(12, 49 - PF1, PF1, 61)
    pre = opt('pre', 'xbc').replace('0', '')
    def piece(c):
        if c == 'x':
            zregs()
            zero_range(EXTRA, 16384, X + 2, X)
            fill_desca()
        elif c == 'b':
            phase0b()
        elif c == 'c':
            phase0c()
    for c in pre:
        piece(c)
    stamp(7)
    I(f's_lshl_b32 s{S_T+1}, s3, 3')
    I(f'v_add_u32 v76, s{S_T+1}, v{V_TAB+2}')
    I(f'v_add_u32 v77, {RSTEP*2048}, v76')
    I(f'v_lshlrev_b32 v60, 4, v{V_LANE}')
    for r in range(2):
        I(f's_mov_b64 {sp(S_MASK+2*r)}, -1')
    I(f's_waitcnt vmcnt({1 if PF1 else 0})')
    stamp(8)
    I('s_barrier')
    stamp(9)
    I(f's_cmp_lg_u32 s{S_W}, {99 if opt("early", 0) else 0}')
    I('s_cbranch_scc1 L_POLL0')
    for k in range(KREP - 1, -1, -1):
        I(f's_mov_b32 s{S_T}, 0x{k*0x80000:x}')
        I(f'buffer_store_dwordx4 v[120:123], v60, {sr4(S_TAB)}, s{S_T} offen' + SC)
        I(f'buffer_store_dwordx4 v[124:127], v60, {sr4(S_TAB)}, s{S_T} offen offset:1024' + SC)
    L('L_POLL0')
    PF2 = opt('pf2', 0)
    if PF2:
        nt_prefetch(61, 49 - PF2, PF2, 63)
    EP = opt('ep', 0)
    for r in range(2 if EP else 0):
        I(f'buffer_load_dwordx2 {p(64+2*r)}, v{76+r}, {sr4(S_EA)}, 0 offen' + LSC)
    for c in 'xbc':
        if c not in pre:
            piece(c)
    fill_words()
    zregs()
    zero_range(LE, CNT - LE, X + 2, X)
    ptr_consts()
    I(f's_mov_b32 s{S_T}, 0x40000')
    I(f's_mov_b32 s{S_T+1}, 0x{TAGM:x}')
    if opt('ps', 0):
        I(f's_sleep {opt("ps", 0)}')
    if EP:
        I('s_branch L_POLLC')
    L('L_POLL')
    for r in range(2):
        I(f's_mov_b64 exec, {sp(S_MASK+2*r)}')
        I(f'buffer_load_dwordx2 {p(64+2*r)}, v{76+r}, {sr4(S_EA)}, 0 offen' + LSC)
    L('L_POLLC')
    for r in range(2):
        I(f's_waitcnt vmcnt({1-r})')
        I(f's_mov_b64 exec, {sp(S_MASK+2*r)}')
        I(f'v_xor_b32 v{V_TAB+r}, s{S_TAG2}, v{64+2*r}')
        I(f'v_xor_b32 v{65+2*r}, s{S_TAG}, v{65+2*r}')
        I(f'v_and_or_b32 v{65+2*r}, v{V_TAB+r}, s{S_T+1}, v{65+2*r}')
        I(f'v_cmp_ne_u32 {sp(S_MASK+2*r)}, 0, v{65+2*r}')
    I(f's_or_b64 {sp(S_T+2)}, {sp(S_MASK)}, {sp(S_MASK+2)}')
    I('s_cbranch_scc0 L_POLLED')
    I(f's_sub_u32 s{S_T}, s{S_T}, 1')
    I('s_cbranch_scc1 L_END')
    if opt('sleep', 1):
        I(f's_sleep {opt("sleep", 1)}')
    I('s_branch L_POLL')
    L('L_POLLED')
    I('s_mov_b64 exec, -1')
    stamp(10)
    def RB(s_): return 64 + 8 * (s_ >> 1)
    def MK(s_): return sp(S_MASK + 2 * s_)
    AD = X
    L('L_PASS')
    I(f'v_add_u32 v{X+10}, s{S_JB}, v{V_CB4}')
    I(f'v_add_u32 v{X+8}, s{S_JB}, v{V_J4}')
    SDW = 'src0_sel:DWORD src1_sel:WORD_1'
    for r in range(2):
        I(f'v_add_u32_sdwa v{X+r}, v{V_TAB+r}, v{X+10} dst_sel:DWORD dst_unused:UNUSED_PAD src0_sel:WORD_0 src1_sel:DWORD')
        I(f'v_cmp_lt_u32_sdwa {MK(2*r)}, v{X+8}, v{V_TAB+r} {SDW}')
        if r:
            I(f'v_add_u32 v{X+r}, {RSTEP*CAP*4}, v{X+r}')
        I(f'v_add_u32 v{X+2+r}, v{X+r}, v{X+r}')
        I(f's_mov_b64 exec, {MK(2*r)}')
        I(f'buffer_load_dwordx2 {p(RB(2*r)+4)}, v{X+r}, {sr4(S_DST)}, 0 offen' + LSC)
        I(f'buffer_load_dwordx4 {vr(RB(2*r),4)}, v{X+2+r}, {sr4(S_SRC)}, 0 offen' + LSC)
        I('s_mov_b64 exec, -1')
    I(f'v_add_u32 v{X+9}, s{S_WID}, v{X+8}')
    I(f'v_add_u32 v{X+10}, 4, v{X+8}')
    I(f's_cmp_eq_u32 s{S_WID}, 128')
    I(f's_cselect_b32 s{S_T}, 64, 0x10000')
    I(f'v_add_u32 v{X+8}, s{S_T}, v{X+8}')
    for r in range(2):
        I(f'v_cmp_lt_u32_sdwa {MK(4+2*r)}, v{X+8}, v{V_TAB+r} {SDW}')
        I(f'v_cmp_lt_u32_sdwa {MK(2*r+1)}, v{X+10}, v{V_TAB+r} {SDW}')
    I(f'v_add_u32 v{X+8}, 4, v{X+8}')
    for r in range(2):
        I(f's_mov_b64 exec, {MK(4+2*r)}')
        I(f'buffer_load_dwordx2 {p(RB(4+2*r)+4)}, v{X+r}, {sr4(S_DST)}, 0 offen offset:64' + LSC)
        I(f'buffer_load_dwordx4 {vr(RB(4+2*r),4)}, v{X+2+r}, {sr4(S_SRC)}, 0 offen offset:128' + LSC)
    I('s_mov_b64 exec, -1')
    for r in range(2):
        I(f'v_cmp_lt_u32_sdwa {MK(5+2*r)}, v{X+8}, v{V_TAB+r} {SDW}')
    I(f'v_cmp_lt_u32_sdwa vcc, v{X+9}, v{V_TAB} {SDW}')
    I(f'v_cmp_lt_u32_sdwa {sp(S_T)}, v{X+9}, v{V_TAB+1} {SDW}')
    I(f'v_mov_b32 v{X+8}, 4')
    I(f's_or_b64 vcc, vcc, {sp(S_T)}')
    I(f's_cbranch_scc0 L_NOMORE')
    I(f'v_mov_b32 v{X+9}, {MISC}')
    I(f'ds_write_b32 v{X+9}, v{X+8}')
    L('L_NOMORE')
    stamp(11)
    for s_ in range(8):
        if s_ >= 4:
            I(f's_mov_b64 exec, {MK(s_)}')
            I(f's_cbranch_execz L_C{s_}')
        if s_ % 2 == 0:
            I(f's_waitcnt vmcnt({7 - s_})')
        if s_ < 4:
            I(f's_mov_b64 exec, {MK(s_)}')
        I(f'v_lshrrev_b32 v{AD+s_}, 24, v{RB(s_)+4+(s_&1)}')
        if opt('safe', 0):
            I(f'v_and_b32 v{AD+s_}, 0xfc, v{AD+s_}')
        I(f'ds_add_rtn_u32 v{RB(s_)+6+(s_&1)}, v{AD+s_}, v{X+8} offset:{CNT}')
        if s_ >= 4:
            L(f'L_C{s_}')
    I('s_mov_b64 exec, -1')
    I(f'v_lshlrev_b32 v{X+8}, 2, v{V_LANE}')
    I(f'v_mov_b32 v{X+9}, {MISC}')
    I(f's_mov_b32 s{S_T+2}, 0x1fff8')
    I('s_waitcnt lgkmcnt(0)')
    I('s_barrier')
    stamp(12)
    if NPFM in (2, 3, 4):
        nt_prefetch(60, dst=62)
        I(f's_mov_b32 s{S_T+2}, 0x1fff8')
    NG, GS, MI = X + 10, X + 11, X + 12
    I(f'ds_read_b32 v{NG}, v{X+8} offset:{CNT}')
    I(f'ds_read_b32 v{X+9}, v{X+9}')
    I('s_waitcnt lgkmcnt(1)')
    I(f'v_add_u32 v{NG}, 28, v{NG}')
    I(f'v_and_b32 v{NG}, 0xffffffe0, v{NG}')
    I(f'v_mov_b32 v{GS}, v{NG}')
    wave_scan(GS)
    I(f'v_readlane_b32 s{S_T}, v{GS}, 63')
    I(f'v_sub_u32 v{GS}, v{GS}, v{NG}')
    I(f'ds_write_b32 v{X+8}, v{GS} offset:{BASET}')
    for s_ in range(8):
        I(f's_mov_b64 exec, {MK(s_)}')
        I(f'ds_read_b32 v{AD+s_}, v{AD+s_} offset:{BASET}')
    I('s_mov_b64 exec, -1')
    I(f'v_readfirstlane_b32 s{S_MORE}, v{X+9}')
    out.insert(len(out) - 1, '    s_waitcnt lgkmcnt(9)')
    I(f's_lshr_b32 s{S_T}, s{S_T}, 5')
    I(f's_cmp_eq_u32 s{S_WID}, 128')
    I(f's_cselect_b32 s{S_T+1}, {MAXG}, -1')
    I(f's_cmp_gt_u32 s{S_T}, s{S_T+1}')
    I('s_cbranch_scc1 L_OVERFLOW')
    SB_, SR_, SG0 = S_T + 4, S_T + 5, S_T + 6
    I(f's_add_u32 s{S_T}, s{S_T}, 3')
    I(f's_lshr_b32 s{S_T}, s{S_T}, 2')
    I(f's_lshr_b32 s{SB_}, s{S_T}, 4')
    I(f's_and_b32 s{SR_}, s{S_T}, 15')
    I(f's_add_u32 s{S_T+1}, s{SB_}, 1')
    I(f'v_cvt_f32_u32 v{MI}, s{S_T+1}')
    I(f'v_cvt_f32_u32 v{MI+1}, s{SB_}')
    I(f'v_rcp_f32 v{MI}, v{MI}')
    I(f'v_rcp_f32 v{MI+1}, v{MI+1}')
    I(f's_mul_i32 s{SG0}, s{SR_}, s{S_T+1}')
    I(f's_lshl_b32 s{SG0}, s{SG0}, 2')
    I(f'v_lshrrev_b32 v{GS}, 5, v{GS}')
    I(f'v_mul_f32 v{MI}, 0x47800000, v{MI}')
    I(f'v_mul_f32 v{MI+1}, 0x47800000, v{MI+1}')
    I(f'v_lshrrev_b32 v{NG}, 5, v{NG}')
    I(f'v_cvt_u32_f32 v{MI}, v{MI}')
    I(f'v_cvt_u32_f32 v{MI+1}, v{MI+1}')
    I(f's_cmp_lt_u32 s{S_W}, s{SR_}')
    I(f's_cselect_b32 s{S_L}, s{S_T+1}, s{SB_}')
    I(f'v_add_u32 v{MI}, 2, v{MI}')
    I(f'v_add_u32 v{MI+1}, 2, v{MI+1}')
    I(f's_min_u32 s{S_T}, s{S_W}, s{SR_}')
    I(f's_mul_i32 s{S_T+3}, s{S_W}, s{SB_}')
    I(f's_add_u32 s{S_T+3}, s{S_T+3}, s{S_T}')
    I(f's_sub_u32 s{S_T+1}, 0, s{S_T+1}')
    I(f's_sub_u32 s{SB_}, 0, s{SB_}')
    I(f's_lshl_b32 s{SR_}, s{SR_}, 2')
    D0, D1, D2, D3, NR = 96, 97, 98, 99, 100
    I(f'v_lshlrev_b32 v{NR}, 8, v{V_LANE}')
    I(f'v_add_u32 v{NR+1}, {ACCN}, v{NR}')
    I(f's_mov_b32 s{S_T}, s{S_W}')
    L('L_DLOOP')
    I(f'v_cmp_lt_u32 vcc, s{S_T}, v{NG}')
    I('s_and_b64 exec, exec, vcc')
    I('s_cbranch_execz L_DEND')
    I(f'v_add_u32 v{D0}, s{S_T}, v{GS}')
    I(f'v_subrev_u32 v{D1}, s{SG0}, v{D0}')
    I(f'v_cmp_gt_u32 vcc, s{SG0}, v{D0}')
    I(f'v_mul_u32_u24 v{D2}, v{D0}, v{MI}')
    I(f'v_mul_u32_u24 v{D3}, v{D1}, v{MI+1}')
    I(f'v_lshrrev_b32 v{D2}, 16, v{D2}')
    I(f'v_lshrrev_b32 v{D3}, 16, v{D3}')
    I(f'v_mad_i32_i24 v{D0}, v{D2}, s{S_T+1}, v{D0}')
    I(f'v_mad_i32_i24 v{D1}, v{D3}, s{SB_}, v{D1}')
    I(f'v_add_u32 v{D3}, s{SR_}, v{D3}')
    I(f'v_cndmask_b32 v{D0}, v{D1}, v{D0}, vcc')
    I(f'v_cndmask_b32 v{D2}, v{D3}, v{D2}, vcc')
    I(f'v_cmp_le_u32 vcc, s{S_T}, v{D0}')
    I(f'v_lshl_add_u32 v{D0}, v{D0}, 6, v{D2}')
    I(f'v_lshlrev_b32 v{D1}, 8, v{D2}')
    I(f'v_lshlrev_b32 v{D0}, 2, v{D0}')
    I(f'v_add_u32 v{D1}, {EXTRA}, v{D1}')
    I(f'v_add_u32 v{D3}, {DESCA}, v{D0}')
    I(f'v_cndmask_b32 v{D1}, v{D1}, v{NR+1}, vcc')
    I(f'ds_write_b32 v{D0}, v{NR} offset:{DESCP}')
    I(f'ds_write_b32 v{D3}, v{D1}')
    I(f's_add_u32 s{S_T+7}, s{S_T}, 1')
    I(f'v_cmp_eq_u32 vcc, s{S_T+7}, v{NG}')
    I(f's_and_saveexec_b64 {sp(S_EX)}, vcc')
    I(f'ds_write_b32 v{X+8}, v{D2} offset:{NINFO+256}')
    I(f's_mov_b64 exec, {sp(S_EX)}')
    I(f's_cmp_lg_u32 s{S_T}, 0')
    I('s_cbranch_scc1 L_DNF')
    I(f'ds_write_b32 v{X+8}, v{D2} offset:{NINFO}')
    L('L_DNF')
    I(f's_add_u32 s{S_T}, s{S_T}, 16')
    I('s_branch L_DLOOP')
    L('L_DEND')
    I('s_mov_b64 exec, -1')
    I(f's_lshl_b32 s{S_T}, s{S_T+3}, 7')
    I(f's_lshl_b32 s{S_T+1}, s{S_L}, 5')
    I(f'v_mov_b32 v{D0}, s{S_T}')
    I(f'v_mad_u32_u24 v{V_PS0}, v{V_PS1}, s{S_T+1}, v{D0}')
    I(f'v_add_u32 v{D0}, v{D0}, v{D0}')
    I(f'v_add_u32 v{V_PS1}, s{S_T+1}, v{V_PS0}')
    I(f'v_add_u32 v{V_PE}, v{V_PE}, v{D0}')
    I(f's_lshl_b32 s{S_T+1}, s{S_L}, 6')
    I(f'v_mad_u32_u24 v{V_PE}, v{V_VAP}, s{S_T+1}, v{V_PE}')
    if opt('safe', 0):
        I(f's_min_u32 s{S_L}, s{S_L}, 9')
        I(f's_mov_b32 s{S_MORE}, 0')
    I(f's_mov_b32 s{S_CNT}, s{S_L}')
    I('s_waitcnt lgkmcnt(0)')
    I(f's_waitcnt vmcnt({NPF})')
    for s_ in range(8):
        wd, rk, ee = RB(s_) + 4 + (s_ & 1), RB(s_) + 6 + (s_ & 1), RB(s_) + 2 * (s_ & 1)
        I(f's_mov_b64 exec, {MK(s_)}')
        if s_ >= 4:
            I(f's_cbranch_execz L_P{s_}')
        I(f'v_add_u32 v{AD+s_}, v{AD+s_}, v{rk}')
        I(f'v_and_b32 v{wd}, s{S_T+2}, v{wd}')
        I(f'v_add_u32 v{rk}, v{AD+s_}, v{AD+s_}')
        I(f'ds_write_b32 v{AD+s_}, v{wd} offset:{LS}')
        I(f'ds_write_b64 v{rk}, {p(ee)} offset:{LE}')
        if s_ >= 4:
            L(f'L_P{s_}')
    I('s_mov_b64 exec, -1')
    stamp(13)
    I('s_waitcnt lgkmcnt(0)')
    I('s_barrier')
    stamp(14)
    I(f's_cmp_eq_u32 s{S_L}, 0')
    I('s_cbranch_scc1 L_FOLD')
    lg = Lg()
    FP = opt('fp', 0)
    if FP:
        for lvl in (3, 2, 1):
            I(f's_cmp_lt_u32 s{S_W}, {4 * (4 - lvl)}')
            I(f's_cbranch_scc0 L_FP{lvl}')
            I(f's_setprio {lvl}')
            I('s_branch L_FPD')
            L(f'L_FP{lvl}')
        L('L_FPD')
    s_reads(lg, 0)
    lg.op('dP', f'ds_read_b64 {p(V_VAP)}, v{V_PD}')
    lg.op('dA', f'ds_read_b64 {p(V_VAA[0])}, v{V_PD} offset:{DESCA-DESCP}')
    lg.op('e', f'ds_read_b64 {p(A5)}, v{V_PE}')
    lg.need('S0', 'S1', 'S2', 'S3')
    s_safe()
    STG_ = [int(x) for x in opt('stag', '0,0,0').split(',')]
    for gi, d in enumerate(STG_):
        if d:
            I(f's_cmp_ge_u32 s{S_W}, {4 * (gi + 1)}')
            I(f's_cbranch_scc0 L_ST{gi}')
            I(f's_sleep {d}')
            L(f'L_ST{gi}')
    for n in range(2):
        for i in range(16):
            I(gload(n, i))
        if n == 0 and FP == 2:
            I('s_setprio 0')
    s_reads(lg, 1)
    I(f'v_mov_b32 v{V_C8P}, v{V_CH8}')
    I(f'v_mov_b32 v{V_C8P+1}, v{V_CH8}')
    I(f'v_mov_b32 v{V_CPP}, v{V_CHP}')
    I(f'v_mov_b32 v{V_CPP+1}, v{V_CHP}')
    if M8:
        I(f'v_mov_b32 v{V_SCP}, 0x{f2u(2.0**KH):x}')
        I(f'v_mov_b32 v{V_SCP+1}, 0x{f2u(2.0**KH):x}')
    I(f's_mov_b32 s{S_BP0}, 64')
    I(f's_mov_b32 s{S_BP0+1}, 64')
    I(f's_mov_b32 s{S_BP1}, 128')
    I(f's_mov_b32 s{S_BP1+1}, 512')
    lg.need('dP', 'dA')
    va_add(V_VAP, V_VAA[0])
    lg.op('P0a', f'ds_read_b32 v{B5[0]+2}, v{V_VAP}')
    lg.op('P0b', f'ds_read_b32 v{B5[0]+3}, v{V_VAP+1}')
    lg.op('P1a', f'ds_read_b32 v{B5[1]+2}, v{V_VAP} offset:4')
    lg.op('P1b', f'ds_read_b32 v{B5[1]+3}, v{V_VAP+1} offset:4')
    I(f's_cmp_eq_u32 s{S_CNT}, 1')
    I(f's_cselect_b64 {sp(S_LDX)}, 0, {LDXV}')
    I('s_waitcnt lgkmcnt(0)')
    lg.q = []
    if opt('prio', 3):
        I('s_setprio 3')
    stamp(15)
    rstamp(28)
    half(lg, 0, 0, 0, False)
    if PROF == 4:
        stamp(19)
        lg.q = []
    state0 = list(lg.q)
    def step(par, uo):
        prio(f'm{par}', 1)
        half(lg, 1, par, uo)
        if PROF == 4:
            I('s_memtime s[98:99]')
            I(f's_sub_u32 s92, s{S_L}, s{S_CNT}')
            I(f's_add_u32 m0, s92, 20')
            I('s_waitcnt lgkmcnt(0)')
            I(f'v_writelane_b32 v{V_PROF}, s98, m0')
        I(f's_sub_u32 s{S_CNT}, s{S_CNT}, 1')
        I(f's_cmp_eq_u32 s{S_CNT}, 0')
        I(f's_cbranch_scc1 L_FIN{par}')
        I(f's_cmp_eq_u32 s{S_CNT}, 1')
        I(f's_cselect_b64 {sp(S_LDX)}, 0, {LDXV}')
        prio(f'{par}')
        half(lg, 0, par ^ 1, uo + 1)
    def loop_body():
        step(0, 0)
        step(1, 1)
        I(f'v_lshl_add_u64 {p(V_PS0)}, {p(V_PS0)}, 0, {sp(S_BP0)}')
        I(f'v_lshl_add_u64 {p(V_PE)}, {p(V_PE)}, 0, {sp(S_BP1)}')
        I('s_branch L_LOOP')
    mark = len(out)
    loop_body()
    del out[mark:]
    qb = list(lg.q)
    n = min(len(qb), len(state0))
    assert PROF == 4 or qb[len(qb)-n:] == state0[len(state0)-n:], (state0, qb)
    lg.q = list(qb if len(qb) >= len(state0) else state0)
    e('.p2align 3')
    L('L_LOOP')
    mark = len(out)
    loop_body()
    drop = opt('drop', '')
    if drop:
        body = out[mark:]
        keep = []
        for l in body:
            t = l.strip()
            if 'v' in drop and (t.startswith('buffer_load') or t.startswith('s_mov_b64 exec') or 'vmcnt' in t):
                continue
            if 'l' in drop and (t.startswith('ds_') or 'lgkmcnt' in t):
                continue
            if 'm' in drop and t.startswith('v_mfma'):
                continue
            if 'n' in drop and t.startswith('s_nop'):
                continue
            keep.append(l)
        out[mark:] = keep
    assert lg.q == qb, (lg.q, qb)
    print('loop entry queue', state0, 'back edge queue', qb, file=sys.stderr)
    for pr in range(2):
        L(f'L_FIN{pr}')
        if M8:
            I(f'v_pk_mul_f32 {p(V_T01N)}, {p(V_T01N)}, {p(V_T23D)}')
            I(f'v_pk_mul_f32 {p(V_T23D)}, {p(V_T01D)}, {p(V_T23D)}')
            I(f'v_pk_fma_f32 {p(V_T01N)}, {p(V_T23N)}, {p(V_T01D)}, {p(V_T01N)}')
            I(f'v_rcp_f32 v{V_T23D}, v{V_T23D}')
            I(f'v_rcp_f32 v{V_T23D+1}, v{V_T23D+1}')
            I('s_waitcnt lgkmcnt(0)')
            I(f'v_pk_fma_f32 {p(V_MB)}, {p(V_T01N)}, {p(V_T23D)}, {p(V_MB)}')
        else:
            for r_ in (V_T01D, V_T01D + 1, V_T23D, V_T23D + 1):
                I(f'v_rcp_f32 v{r_}, v{r_}')
            I('s_waitcnt lgkmcnt(0)')
            I(f'v_pk_fma_f32 {p(V_MB)}, {p(V_T01N)}, {p(V_T01D)}, {p(V_MB)}')
            I(f'v_pk_fma_f32 {p(V_MB)}, {p(V_T23N)}, {p(V_T23D)}, {p(V_MB)}')
        acc_write(Lg(), V_VAA[pr])
        if pr == 0:
            I('s_branch L_FOLD')
    L('L_FOLD')
    stamp(16)
    I(f'v_lshrrev_b32 v{X}, 4, v{V_TID}')
    I(f'v_and_b32 v{X+1}, 15, v{V_TID}')
    I(f'v_lshlrev_b32 v{X+6}, 2, v{X+1}')
    I(f'v_lshlrev_b32 v{X+1}, 4, v{X+1}')
    I(f'v_lshl_add_u32 v{X+2}, v{X}, 8, v{X+1}')
    I(f'v_add_u32 v{X+2}, {ACCN}, v{X+2}')
    I(f'v_add_u32 v{X+1}, {EXTRA}, v{X+1}')
    I(f'v_lshlrev_b32 v{X+3}, 2, v{X}')
    I(f's_mul_i32 s{S_T+4}, s3, {NB*128}')
    I(f'v_lshl_add_u32 v{X+6}, v{X}, 7, v{X+6}')
    I(f'v_add_u32 v{X+6}, s{S_T+4}, v{X+6}')
    I(f'v_mov_b32 v{X+7}, 0')
    I(f'ds_read_b32 v{X+4}, v{X+3} offset:{NINFO}')
    I(f'ds_read_b32 v{X+5}, v{X+3} offset:{NINFO+256}')
    I(f's_mov_b32 s{S_T+2}, 0x{f2u(2.0**-(SV+KH)):x}')
    I(f's_mov_b32 s{S_T+3}, 0x{f2u(-LOG2E * 2.0**-(SV+KH)):x}')
    I(f'v_cmp_gt_u32 vcc, {NB*16}, v{V_TID}')
    I('s_waitcnt vmcnt(0) lgkmcnt(0)')
    I('s_barrier')
    stamp(17)
    rstamp(29)
    if PROF:
        I(f'v_writelane_b32 v{V_PROF}, s{S_L}, 27')
    I(f's_and_saveexec_b64 {sp(S_EX)}, vcc')
    I('s_cbranch_execz L_FDONE')
    I(f'ds_read_b128 v[64:67], v{X+2}')
    I(f's_mov_b64 {sp(S_T)}, exec')
    L('L_FLOOP')
    I(f'v_cmp_lt_u32 vcc, v{X+4}, v{X+5}')
    I('s_and_b64 exec, exec, vcc')
    I('s_cbranch_execz L_FLEND')
    I(f'v_add_u32 v{X+4}, 1, v{X+4}')
    I(f'v_lshl_add_u32 v{X+7}, v{X+4}, 8, v{X+1}')
    I(f'ds_read_b128 v[72:75], v{X+7}')
    I('s_waitcnt lgkmcnt(0)')
    for k in range(4):
        I(f'v_add_f32 v{64+k}, v{64+k}, v{72+k}')
    I('s_branch L_FLOOP')
    L('L_FLEND')
    I(f's_mov_b64 exec, {sp(S_T)}')
    I('s_waitcnt lgkmcnt(0)')
    I(f's_cmp_lg_u32 s{S_MORE}, 0')
    I('s_cbranch_scc1 L_WB')
    for k in range(4):
        I(f'v_mul_f32 v{72+k}, s{S_T+3}, v{64+k}')
    for k in range(4):
        I(f'v_exp_f32 v{72+k}, v{72+k}')
    for k in range(4):
        I(f'v_mul_f32 v{64+k}, s{S_T+2}, v{64+k}')
    for k in range(4):
        I(f'v_add_f32 v{72+k}, 1.0, v{72+k}')
    for k in range(4):
        I(f'v_rcp_f32 v{72+k}, v{72+k}')
    I('s_nop 0')
    for k in range(4):
        I(f'v_mul_f32 v{64+k}, v{64+k}, v{72+k}')
    I('v_cvt_pk_bf16_f32 v80, v64, v66')
    I('v_cvt_pk_bf16_f32 v81, v65, v67')
    I(f'buffer_store_dword v80, v{X+6}, {sr4(S_OUT)}, 0 offen' + OSC)
    I(f'buffer_store_dword v81, v{X+6}, {sr4(S_OUT)}, 0 offen offset:64' + OSC)
    stamp(18)
    prof_store()
    diag_end()
    I('s_endpgm')
    L('L_WB')
    I(f'ds_write_b128 v{X+2}, v[64:67]')
    L('L_FDONE')
    I('s_mov_b64 exec, -1')
    I(f's_cmp_eq_u32 s{S_MORE}, 0')
    I('s_cbranch_scc1 L_QUIT')
    I(f's_add_u32 s{S_JB}, s{S_JB}, s{S_WID}')
    I('s_branch L_REFILL')
    L('L_OVERFLOW')
    I(f's_mov_b32 s{S_WID}, 64')
    L('L_REFILL')
    I('s_waitcnt vmcnt(0) lgkmcnt(0)')
    I('s_barrier')
    fill_zero()
    fill_words()
    ptr_consts()
    I('s_waitcnt lgkmcnt(0)')
    I('s_barrier')
    I('s_branch L_PASS')
    L('L_QUIT')
    prof_store()
    L('L_END')
    I('s_endpgm')

hdr = open('standalone__edge_featured_mpnn_egc__graph.s.ref').read().split('\n')
for line in hdr:
    if line.startswith('; Override'):
        break
    e(line)
e(f'; @launch grid=({NWG},1,1) block=(1024,1,1) lds={LDS_BYTES}')
e('.amdgcn_target "amdgcn-amd-amdhsa--gfx950"')
e('.text')
gen()
e('.section .rodata,"a"')
e('.p2align 6')
e(f'.amdhsa_kernel {KNAME}')
e('  .amdhsa_next_free_vgpr 128')
e('  .amdhsa_next_free_sgpr 102')
e('  .amdhsa_accum_offset 128')
e('  .amdhsa_group_segment_fixed_size 0')
e('  .amdhsa_kernarg_size 80')
e('  .amdhsa_user_sgpr_count 2')
e('  .amdhsa_user_sgpr_kernarg_segment_ptr 1')
e('  .amdhsa_system_sgpr_workgroup_id_x 1')
e('  .amdhsa_float_denorm_mode_32 3')
e('.end_amdhsa_kernel')
open(sys.argv[1], 'w').write('\n'.join(x for x in out if x is not None) + '\n')
```

```python
import sys, struct

OPT = dict(a.split('=') for a in sys.argv[2:] if '=' in a)
def opt(name, default):
    return type(default)(OPT.get(name, default))

KNAME = 'standalone__edge_featured_mpnn_egc__graph_kernel'
N_NODES = 12500
E_EDGES = 800000
NB = 49
NWG = 256
CH = 3136
WS_RW = 0
WS_RE = 0x00400000
CAP = CH + 256
WS_TAB = 0x00B00000
WS_NT = 0x00C00000
WS_PROF = 0x01000000
M8 = opt('m8', 0)
if M8:
    KH, KEXP, SV = 13, 26, 0
else:
    KH, KEXP, SV = 31, 31, 30
LOG2E = 1.4426950408889634
SC = opt('sc', 'sc1')
SC = (' ' + SC.replace('+', ' ')) if SC != 'none' else ''
LSC = opt('lsc', 'sc1')
LSC = (' ' + LSC.replace('+', ' ')) if LSC != 'none' else ''
GSC = opt('gsc', 'sc1')
GSC = (' ' + GSC.replace('+', ' ')) if GSC != 'none' else ''
ELD = opt('eld', 'none')
ELD = (' ' + ELD.replace('+', ' ')) if ELD != 'none' else ''

def f2u(x):
    return struct.unpack('<I', struct.pack('<f', x))[0]

out = []
def e(s=''):
    out.append(s)
def I(s):
    out.append('    ' + s)
def L(name):
    out.append(name + ':')
def vr(a, n):
    return f'v[{a}:{a+n-1}]' if n > 1 else f'v{a}'
def sr4(a):
    return f's[{a}:{a+3}]'
def sp(a):
    return f's[{a}:{a+1}]'
def p(r):
    return f'v[{r}:{r+1}]'

def srd(d, lo, hi, nrec):
    I(f's_mov_b32 s{d}, s{lo}')
    I(f's_mov_b32 s{d+1}, s{hi}')
    I(f's_mov_b32 s{d+2}, {nrec}')
    I(f's_mov_b32 s{d+3}, 0x00020000')

def srd_off(d, lo, hi, off, nrec):
    I(f's_add_u32 s{d}, s{lo}, {off}')
    I(f's_addc_u32 s{d+1}, s{hi}, 0')
    I(f's_mov_b32 s{d+2}, {nrec}')
    I(f's_mov_b32 s{d+3}, 0x00020000')

def wave_scan(v):
    for sh in (1, 2, 4, 8):
        I('s_nop 1')
        I(f'v_add_u32_dpp v{v}, v{v}, v{v} row_shr:{sh} row_mask:0xf bank_mask:0xf')
    I('s_nop 1')
    I(f'v_add_u32_dpp v{v}, v{v}, v{v} row_bcast:15 row_mask:0xa bank_mask:0xf')
    I('s_nop 1')
    I(f'v_add_u32_dpp v{v}, v{v}, v{v} row_bcast:31 row_mask:0xc bank_mask:0xf')
    I('s_nop 1')

LS = 0
ZR = 18688
LE = 18688
CNT = 56064
MISC = 56320
BASET = 56576
NINFO = 56832
HIST = 57344
HBASE = 58368
DESCP = 59392
EXTRA = 67840
DESCA = 84224
PT = 86784
ACCN = 99328
WRAW = 111872
WG_, WV_, WU_ = WRAW, WRAW + 17408, WRAW + 25600
XOWN = WRAW + 33792
LDS_BYTES = XOWN + 8192
STGW = 0
STGE = CAP * 4
NTI = EXTRA
MAXG = 576
assert STGE + CAP * 8 <= CNT

V_TID, V_LANE = 0, 1
V_MA, V_MB = 2, 4
V_VAA = (6, 8)
V_VAP = 10
V_PS0, V_PS1, V_PE, V_PD, V_CH8, V_CHP = 12, 13, 14, 15, 16, 17
V_PROF = 18
V_TAB = 20
V_J4, V_CB4 = 24, 25
V_X = 26
V_T01D, V_T01N, V_T23D, V_T23N = 40, 42, 44, 46
B5 = (48, 52)
A5 = 56
V_TT = (60, 62)
G = (64, 80)
Z = 96
S = 112

S_XS, S_WS, S_DST, S_SRC, S_EA, S_RW, S_RE, S_TAB, S_NTS, S_NTG, S_OUT = 12, 16, 20, 24, 28, 32, 36, 40, 44, 48, 52
S_MASK = 56
S_W, S_L, S_CNT, S_JB, S_WID, S_MORE = 72, 73, 74, 75, 76, 77
S_C = 78
S_EX = 80
S_LDX = 82
S_T = 84
S_WSP = 94
S_DBG = 96
S_TAG, S_TAG2 = 100, 101
TAGM = 0xC003C003
TAGL = MISC + 64

NT2 = 2 if opt('touch', 0) else 0
LDXV = 0 if opt('noload', 0) else -1
NPFM = opt('npf', 4)
NPF = {0: 0, 1: 7, 2: 7, 3: 2, 4: 1, 5: 1}[NPFM]
NPF1 = NPF if NPFM in (1, 5) else 0
WSB = opt('wsb', 0) << 20
TCH = 4 if opt('touch', 0) else 0
T1 = opt('t1', 0)
OSC = opt('osc', 'nt')
OSC = (' ' + OSC.replace('+', ' ')) if OSC != 'none' else ''
KREP = opt('krep', 1)
assert KREP == 1
CM = opt('cm', 1)
RSTEP = 64 if CM else 8
PROF = opt('prof', 0)
DIAG = opt('diag', -1)
def diag_end():
    if DIAG < 0:
        return
    I('s_memrealtime s[98:99]')
    I('s_waitcnt lgkmcnt(0)')
    I('v_readlane_b32 s92, v18, 1')
    I('v_readlane_b32 s93, v18, 0')
    I('s_nop 3')
    I('s_sub_u32 s92, s92, s93')
    I('s_lshl_b32 s92, s92, 2')
    I('s_mov_b32 s93, s98')
    lbl = f'L_DG{len(out)}'
    L(lbl)
    I('s_memrealtime s[98:99]')
    I('s_waitcnt lgkmcnt(0)')
    I('s_sub_u32 s98, s98, s93')
    I('s_cmp_lt_u32 s98, s92')
    I(f's_cbranch_scc1 {lbl}')
def stamp(i):
    if DIAG >= 0 and i in (0, DIAG):
        I('s_memrealtime s[98:99]')
        I('s_waitcnt lgkmcnt(0)')
        if i == 0:
            I('v_writelane_b32 v18, s98, 0')
        if i == DIAG:
            I('v_writelane_b32 v18, s98, 1')
    if not PROF:
        return
    I('s_memtime s[98:99]')
    I('s_waitcnt lgkmcnt(0)')
    I(f'v_writelane_b32 v{V_PROF}, s98, {i}')
def rstamp(i):
    if not PROF:
        return
    I('s_memrealtime s[98:99]')
    I('s_waitcnt lgkmcnt(0)')
    I(f'v_writelane_b32 v{V_PROF}, s98, {i}')
def prof_store():
    if not PROF:
        return
    rstamp(31)
    if PROF == 3:
        I(f's_lshl_b32 s98, s2, 4')
        I(f's_add_u32 s98, s98, s{S_W}')
        I(f's_cmp_lg_u32 s98, {opt("pwave", 80)}')
        I('s_cbranch_scc1 L_END')
        I('s_mov_b64 exec, -1')
        I(f'v_readlane_b32 s98, v{V_PROF}, 0')
        I(f'v_readlane_b32 s99, v{V_PROF}, 30')
        I(f'v_readlane_b32 s{S_T}, v{V_PROF}, 31')
        I('s_nop 3')
        I(f's_sub_u32 s{S_T}, s{S_T}, s99')
        I(f's_add_u32 s{S_T}, s{S_T}, s98')
        I(f'v_writelane_b32 v{V_PROF}, s{S_T}, 9')
        I(f'v_subrev_u32 v{V_PROF}, s98, v{V_PROF}')
        I(f'v_mbcnt_lo_u32_b32 v{V_PROF+1}, -1, 0')
        I(f'v_lshlrev_b32 v{V_PROF+1}, 2, v{V_PROF+1}')
        I(f'v_add_u32 v{V_PROF+1}, -8, v{V_PROF+1}')
        I('s_mov_b64 exec, 0x3fff8')
        I(f'global_store_dword v{V_PROF+1}, v{V_PROF}, {sp(S_DBG)}')
        return
    I('s_mov_b64 exec, 0xffffffff')
    I(f's_add_u32 s{S_T}, s{S_WSP}, 0x{WS_PROF:x}')
    I(f's_addc_u32 s{S_T+1}, s{S_WSP+1}, 0')
    I(f'v_mbcnt_lo_u32_b32 v{V_PROF+1}, -1, 0')
    I(f'v_lshlrev_b32 v{V_PROF+1}, 2, v{V_PROF+1}')
    I(f's_lshl_b32 s98, s2, 4')
    I(f's_add_u32 s98, s98, s{S_W}')
    I(f's_lshl_b32 s98, s98, 7')
    I(f'v_add_u32 v{V_PROF+1}, s98, v{V_PROF+1}')
    I(f'global_store_dword v{V_PROF+1}, v{V_PROF}, {sp(S_T)}')

class Lg:
    def __init__(self):
        self.q = []
    def op(self, tag, text):
        I(text)
        self.q.append(tag)
    def need(self, *tags):
        idx = -1
        for t in tags:
            for i in range(len(self.q) - 1, -1, -1):
                if self.q[i] == t:
                    idx = max(idx, i)
                    break
        if idx < 0:
            return
        n = len(self.q) - 1 - idx
        assert n <= 15, (tags, n)
        I(f's_waitcnt lgkmcnt({n})')
        self.q = self.q[idx + 1:]

X = V_X

def zero_range(a, nbytes, zr, ad):
    k = 0
    base = a if a + nbytes <= 65536 + 16384 and a < 65536 - 3 * 16384 else None
    off = 0
    areg = ad
    if a + ((nbytes - 1) // 16384) * 16384 > 65535:
        I(f'v_add_u32 v{X+1}, {a}, v{ad}')
        areg = X + 1
        a0 = 0
    else:
        a0 = a
    while off < nbytes:
        n = min(16384, nbytes - off)
        if n < 16384:
            I(f'v_cmp_gt_u32 vcc, {n // 16}, v{V_TID}')
            I(f's_and_saveexec_b64 {sp(S_EX)}, vcc')
        I(f'ds_write_b128 v{areg}, v[{zr}:{zr+3}] offset:{a0 + off}')
        if n < 16384:
            I(f's_mov_b64 exec, {sp(S_EX)}')
        off += n

def zregs():
    I(f'v_lshlrev_b32 v{X}, 4, v{V_TID}')
    for k in range(4):
        I(f'v_mov_b32 v{X+2+k}, 0')

def fill_desca():
    I(f'v_and_b32 v{X+6}, 15, v{V_TID}')
    I(f'v_lshlrev_b32 v{X+6}, 10, v{X+6}')
    I(f'v_add_u32 v{X+6}, {EXTRA}, v{X+6}')
    for k in range(1, 4):
        I(f'v_add_u32 v{X+6+k}, {256*k}, v{X+6}')
    I(f'v_add_u32 v{X+1}, {DESCA}, v{X}')
    I(f'v_cmp_gt_u32 vcc, 160, v{V_TID}')
    I(f's_and_saveexec_b64 {sp(S_EX)}, vcc')
    I(f'ds_write_b128 v{X+1}, v[{X+6}:{X+9}]')
    I(f's_mov_b64 exec, {sp(S_EX)}')

def fill_zero():
    zregs()
    zero_range(ZR, 65536, X + 2, X)
    fill_desca()

def fill_words():
    I(f'v_lshlrev_b32 v{X}, 4, v{V_TID}')
    I(f'v_and_b32 v{X+2}, 7, v{V_TID}')
    I(f'v_lshlrev_b32 v{X+2}, 5, v{X+2}')
    I(f'v_add_u32 v{X+2}, {N_NODES*8}, v{X+2}')
    for k in range(1, 4):
        I(f'v_add_u32 v{X+2+k}, {8*k}, v{X+2}')
    I(f'ds_write_b128 v{X}, v[{X+2}:{X+5}] offset:{LS}')
    I(f'v_cmp_gt_u32 vcc, 144, v{V_TID}')
    I(f's_and_saveexec_b64 {sp(S_EX)}, vcc')
    I(f'ds_write_b128 v{X}, v[{X+2}:{X+5}] offset:{LS+16384}')
    I(f's_mov_b64 exec, {sp(S_EX)}')

V_C8P, V_CPP, V_SCP = 26, 28, 30
S_BP0, S_BP1 = 88, 90

def tail_ops(n):
    M = (V_MA, V_MB)[n]
    return [f'v_rcp_f32 v{V_T01D}, v{V_T01D}',
            f'v_rcp_f32 v{V_T01D+1}, v{V_T01D+1}',
            f'v_pk_fma_f32 {p(M)}, {p(V_T01N)}, {p(V_T01D)}, {p(M)}']

def acc_write(lg, va):
    lg.op('Wa', f'ds_write2_b32 v{va}, v{V_MA}, v{V_MB} offset0:0 offset1:1')
    lg.op('Wb', f'ds_write2_b32 v{va+1}, v{V_MA+1}, v{V_MB+1} offset0:0 offset1:1')

def acc_read(lg, va):
    lg.op('Ra', f'ds_read_b32 v{V_MA}, v{va}')
    lg.op('Rb', f'ds_read_b32 v{V_MA+1}, v{va+1}')
    lg.op('Rc', f'ds_read_b32 v{V_MB}, v{va} offset:4')
    lg.op('Rd', f'ds_read_b32 v{V_MB+1}, v{va+1} offset:4')

def va_add(vap, vaa):
    I(f'v_lshl_add_u64 {p(vap)}, {p(vap)}, 0, {p(V_CPP)}')
    I(f'v_lshl_add_u64 {p(vaa)}, {p(vaa)}, 0, {p(V_C8P)}')

def gload(n, i):
    return f'buffer_load_dword v{G[n]+i}, v{S + (i & 1) * 8 + (i >> 1)}, {sr4(S_NTG)}, 0 offen offset:{4*n}' + GSC

def s_safe():
    if opt('safe', 0):
        for i in range(16):
            I(f'v_and_b32 v{S+i}, 0x1fff8, v{S+i}')

def s_reads(lg, uo):
    lg.op('S0', f'ds_read_b128 {vr(S,4)}, v{V_PS0} offset:{uo*32}')
    lg.op('S1', f'ds_read_b128 {vr(S+4,4)}, v{V_PS0} offset:{uo*32+16}')
    lg.op('S2', f'ds_read_b128 {vr(S+8,4)}, v{V_PS1} offset:{uo*32}')
    lg.op('S3', f'ds_read_b128 {vr(S+12,4)}, v{V_PS1} offset:{uo*32+16}')

def half(lg, n, par, uo, with_tail=True):
    g = G[n]
    I('s_waitcnt vmcnt(16)')
    if n == 0:
        lg.need('P0a', 'P0b', 'e')
    else:
        lg.need('P1a', 'P1b')
    I(f'v_mfma_f32_32x32x16_bf16 {vr(Z,16)}, {vr(A5,4)}, {vr(B5[n],4)}, {vr(g,16)}')
    t = tail_ops(n ^ 1)
    va_prev, va_cur, va_nxt = V_VAA[par ^ 1], V_VAA[par], V_VAA[par ^ 1]
    sh = [f'v_lshlrev_b32 v{g+i}, 16, v{g+i}' for i in range(16)]
    ex = [f'v_exp_f32 v{Z+i}, v{Z+i} clamp' for i in range(16)]
    l3 = [f'v_pk_mul_f32 {p(V_T01N)}, {p(V_T01N)}, {p(V_T23D)}',
          f'v_pk_mul_f32 {p(V_T23D)}, {p(V_T01D)}, {p(V_T23D)}',
          f'v_pk_fma_f32 {p(V_T01N)}, {p(V_T23N)}, {p(V_T01D)}, {p(V_T01N)}',
          f'v_rcp_f32 v{V_T23D}, v{V_T23D}',
          f'v_rcp_f32 v{V_T23D+1}, v{V_T23D+1}',
          f'v_pk_fma_f32 {p((V_MA, V_MB)[n ^ 1])}, {p(V_T01N)}, {p(V_T23D)}, {p((V_MA, V_MB)[n ^ 1])}']
    if with_tail and not M8:
        for r_ in (V_T01D, V_T01D + 1, V_T23D, V_T23D + 1):
            I(f'v_rcp_f32 v{r_}, v{r_}')
    else:
        I('s_nop 3')
    if n == 1:
        lg.op('e', f'ds_read_b64 {p(A5)}, v{V_PE} offset:{(uo+1)*64}')
        lg.op('P1a', f'ds_read_b32 v{B5[1]+2}, v{V_VAP} offset:4')
        lg.op('P1b', f'ds_read_b32 v{B5[1]+3}, v{V_VAP+1} offset:4')
    else:
        lg.op('dP', f'ds_read_b64 {p(V_VAP)}, v{V_PD} offset:{(uo+1)*256}')
        I('s_nop 1')
    for op in sh[:8]:
        I(op)
    seq = []
    if with_tail and not M8:
        Mp = p((V_MA, V_MB)[n ^ 1])
        seq = ['NEED', f'v_pk_fma_f32 {Mp}, {p(V_T01N)}, {p(V_T01D)}, {Mp}', ex[0],
               f'v_pk_fma_f32 {Mp}, {p(V_T23N)}, {p(V_T23D)}, {Mp}', sh[8], 'ACC', ex[1], sh[9]]
    elif with_tail:
        seq = [l3[0], l3[1], ex[0], l3[2], l3[3], sh[8], l3[4], ex[1], sh[9], 'NEED', l3[5], 'ACC']
    else:
        seq = [ex[0], sh[8], ex[1], sh[9], 'ACC']
    for op in seq:
        if op == 'NEED':
            lg.need('Ra', 'Rb', 'Rc', 'Rd')
        elif op == 'ACC':
            if n == 0:
                if with_tail:
                    acc_write(lg, va_prev)
                acc_read(lg, va_cur)
                lg.op('dA', f'ds_read_b64 {p(va_nxt)}, v{V_PD} offset:{(uo+1)*256 + DESCA - DESCP}')
        else:
            I(op)
    for i in range(2, 12):
        I(ex[i])
        if 8 + i < 16:
            I(sh[8 + i])
        if n == 0 and i == 11:
            lg.need('dP', 'dA')
            va_add(V_VAP, va_nxt)
            lg.op('P0a', f'ds_read_b32 v{B5[0]+2}, v{V_VAP}')
            lg.op('P0b', f'ds_read_b32 v{B5[0]+3}, v{V_VAP+1}')
    for op in ex[12:]:
        I(op)
    for i in range(0, 16, 2):
        if M8:
            I(f'v_pk_fma_f32 {p(Z+i)}, {p(Z+i)}, {p(V_SCP)}, {sp(S_C)}')
        else:
            I(f'v_pk_add_f32 {p(Z+i)}, {p(Z+i)}, {sp(S_C)}')
    def T(k): return f'v_pk_mul_f32 {p(V_TT[k&1])}, {p(g+4*k)}, {p(Z+4*k+2)}'
    def DD(k): return f'v_pk_mul_f32 {p(Z+4*k+2)}, {p(Z+4*k)}, {p(Z+4*k+2)}'
    def NN(k): return f'v_pk_fma_f32 {p(Z+4*k)}, {p(g+4*k+2)}, {p(Z+4*k)}, {p(V_TT[k&1])}'
    for k0 in (0, 2):
        for op in (T(k0), T(k0 + 1), DD(k0), DD(k0 + 1), NN(k0), NN(k0 + 1)):
            I(op)
        if n == 0 and k0 == 0:
            lg.need('S0', 'S1', 'S2', 'S3')
            s_safe()
        I(f's_mov_b64 exec, {sp(S_LDX)}')
        for i in range(4 * k0, 4 * k0 + 8):
            I(gload(n, i))
        I('s_mov_b64 exec, -1')
    if n == 1:
        s_reads(lg, uo + 2)
    I(f'v_pk_mul_f32 {p(V_T01N)}, {p(Z)}, {p(Z+6)}')
    I(f'v_pk_mul_f32 {p(V_T23N)}, {p(Z+8)}, {p(Z+14)}')
    I(f'v_pk_mul_f32 {p(V_T01D)}, {p(Z+2)}, {p(Z+6)}')
    I(f'v_pk_mul_f32 {p(V_T23D)}, {p(Z+10)}, {p(Z+14)}')
    I(f'v_pk_fma_f32 {p(V_T01N)}, {p(Z+4)}, {p(Z+2)}, {p(V_T01N)}')
    I(f'v_pk_fma_f32 {p(V_T23N)}, {p(Z+12)}, {p(Z+10)}, {p(V_T23N)}')

PRIO = {
    3: {(3, 0): 2, (2, 0): 1, (1, 0): 0},
    5: {(2, 0): 2, (1, 0): 1, (1, 1): 0},
    6: {(3, 0): 2, (1, 0): 1, (1, 1): 0},
    7: {(2, 1): 2, (1, 0): 1, (1, 1): 0},
    8: {(4, 0): 2, (2, 0): 1, (1, 1): 0},
    9: {(3, 0): 2, (2, 1): 1, (1, 1): 0},
    0: {},
}[opt('prio', 9)]
def prio(tag, phase=0):
    for (t, ph), lvl in PRIO.items():
        if ph != phase:
            continue
        I(f's_cmp_eq_u32 s{S_CNT}, {t}')
        I(f's_cbranch_scc0 L_PR{tag}_{lvl}')
        I(f's_setprio {lvl}')
        L(f'L_PR{tag}_{lvl}')

def split_hilo(a, b, t0, t1):
    I(f'v_cvt_pk_bf16_f32 v{t0}, v{a}, v{b}')
    I(f'v_lshlrev_b32 v{t1}, 16, v{t0}')
    I(f'v_and_b32 v{t0}, 0xffff0000, v{t0}')
    I(f'v_sub_f32 v{a}, v{a}, v{t1}')
    I(f'v_sub_f32 v{b}, v{b}, v{t0}')
    I(f'v_cvt_pk_bf16_f32 v{a}, v{t1}, v{a}')
    I(f'v_cvt_pk_bf16_f32 v{b}, v{t0}, v{b}')

V_AA, V_AB, V_AD, V_AP = 6, 7, 8, 9
SA, SB, SD = 80, 96, 112

def phase0_addr():
    I(f's_and_b32 s{S_T}, s{S_W}, 3')
    I(f's_lshr_b32 s{S_T+1}, s{S_W}, 2')
    I(f'v_and_b32 v12, 15, v{V_LANE}')
    I(f'v_lshrrev_b32 v13, 4, v{V_LANE}')
    I(f'v_bfe_u32 v14, v{V_LANE}, 1, 3')
    I(f'v_xor_b32 v14, v14, v13')
    I(f'v_lshlrev_b32 v14, 4, v14')
    I(f'v_lshl_or_b32 v14, v12, 7, v14')
    I(f's_lshl_b32 s{S_T+2}, s{S_T}, 11')
    I(f'v_add_u32 v{V_AA}, s{S_T+2}, v14')
    I(f'v_bfe_u32 v14, v{V_LANE}, 2, 2')
    I(f'v_lshl_add_u32 v14, v13, 3, v14')
    I(f'v_lshlrev_b32 v14, 7, v14')
    I(f'v_and_b32 v15, 3, v{V_LANE}')
    I(f'v_lshl_add_u32 v14, v15, 3, v14')
    I(f's_lshl_b32 s{S_T+2}, s{S_T+1}, 5')
    I(f'v_or_b32 v14, s{S_T+2}, v14')
    I(f'v_and_b32 v15, 24, v{V_LANE}')
    I(f'v_lshlrev_b32 v15, 2, v15')
    I(f'v_xor_b32 v14, v14, v15')
    I(f'v_add_u32 v{V_AB}, {WRAW}, v14')
    I(f's_lshl_b32 s{S_T+2}, s{S_T}, 12')
    I(f'v_lshlrev_b32 v13, 10, v13')
    I(f'v_add_u32 v13, s{S_T+2}, v13')
    I(f's_lshl_b32 s{S_T+2}, s{S_T+1}, 6')
    I(f's_add_u32 s{S_T+2}, s{S_T+2}, {NTI}')
    I(f'v_lshl_add_u32 v{V_AD}, v12, 2, v13')
    I(f'v_add_u32 v{V_AD}, s{S_T+2}, v{V_AD}')
    I(f's_and_b32 s{S_T+2}, s{S_T+1}, 1')
    I(f's_lshl_b32 s{S_T+2}, s{S_T+2}, 7')
    I(f's_lshr_b32 s{S_T+3}, s{S_T+1}, 1')
    I(f's_lshl_b32 s{S_T+3}, s{S_T+3}, 2')
    I(f's_add_u32 s{S_T+2}, s{S_T+2}, s{S_T+3}')
    I(f's_add_u32 s{S_T+2}, s{S_T+2}, {PT}')
    I(f'v_lshl_add_u32 v{V_AP}, v12, 3, v13')
    I(f'v_add_u32 v{V_AP}, s{S_T+2}, v{V_AP}')

def b_reads(dst, off):
    for sg in range(2):
        for pp in range(2):
            I(f'ds_read_b64_tr_b16 {vr(dst+4*sg+2*pp,2)}, v{V_AB} offset:{off+sg*4096+pp*512}')

def mm16(d, b):
    I(f'v_mfma_f32_16x16x32_bf16 {vr(d,4)}, {vr(SA,4)}, {vr(b,4)}, 0')
    I(f'v_mfma_f32_16x16x32_bf16 {vr(d,4)}, {vr(SA+4,4)}, {vr(b+4,4)}, {vr(d,4)}')

def phase0a():
    I(f'v_add_u32 v12, {XOWN}, v{V_AA}')
    I(f'v_xor_b32 v13, 64, v{V_AA}')
    I(f'v_add_u32 v13, {XOWN}, v13')
    I(f'ds_read_b128 {vr(SA,4)}, v12')
    I(f'ds_read_b128 {vr(SA+4,4)}, v13')
    b_reads(SB, 8192)
    b_reads(SB + 8, WV_ - WRAW)
    I(f's_mov_b32 s{S_T+4}, 0x{f2u(-LOG2E):x}')
    I(f's_mov_b32 s{S_T+6}, 0x7fffffff')
    I(f's_mov_b32 s{S_T+7}, 0xffff0000')
    I('s_waitcnt lgkmcnt(4)')
    mm16(SD, SB)
    I('s_waitcnt lgkmcnt(0)')
    mm16(SD + 4, SB + 8)
    I('s_nop 4')
    for i in range(4):
        I(f'v_mul_f32 v{SD+i}, s{S_T+4}, v{SD+i}')
    for i in range(4):
        I(f'v_and_b32 v{SD+8+i}, s{S_T+6}, v{SD+i}')
    for i in range(4):
        if SV:
            I(f'v_mul_f32 v{SD+4+i}, 0x{f2u(2.0**SV):x}, v{SD+4+i}')
        I(f'v_add_u32 v{SD+8+i}, 0x8000, v{SD+8+i}')
    I(f'v_cvt_pk_bf16_f32 v{SD+4}, v{SD+4}, v{SD+5}')
    I(f'v_cvt_pk_bf16_f32 v{SD+6}, v{SD+6}, v{SD+7}')
    I(f'v_lshrrev_b32 v{SD+5}, 16, v{SD+4}')
    I(f'v_lshrrev_b32 v{SD+7}, 16, v{SD+6}')
    I(f'v_and_b32 v{SD+4}, 0xffff, v{SD+4}')
    I(f'v_and_b32 v{SD+6}, 0xffff, v{SD+6}')
    for i in range(4):
        I(f'v_sub_u32 v{SD+8+i}, v{SD+8+i}, v{SD+4+i} clamp')
    for i in range(4):
        I(f'v_and_or_b32 v{SD+8+i}, v{SD+8+i}, s{S_T+7}, v{SD+4+i}')
    for i in range(4):
        I(f'v_bfi_b32 v{SD+i}, s{S_T+6}, v{SD+8+i}, v{SD+i}')
        I(f'ds_write_b32 v{V_AD}, v{SD+i} offset:{i*256}')

def phase0b():
    b_reads(SB, 0)
    b_reads(SB + 8, WU_ - WRAW)
    I(f's_mov_b32 s{S_T+4}, 0x{f2u(-LOG2E):x}')
    I(f's_mov_b32 s{S_T+5}, 0x{f2u(2.0**(SV+KH)):x}')
    I(f'v_mov_b32 v13, 0x{f2u(-float(KEXP)):x}')
    I(f's_and_b32 s{S_T+6}, s{S_W}, 3')
    I('s_waitcnt lgkmcnt(4)')
    mm16(SD, SB)
    I('s_waitcnt lgkmcnt(0)')
    mm16(SD + 4, SB + 8)
    I('s_nop 4')
    for i in range(4):
        I(f'v_fma_f32 v{SD+i}, v{SD+i}, s{S_T+4}, v13')
    split_hilo(SD, SD + 1, 12, 13)
    split_hilo(SD + 2, SD + 3, 12, 13)
    for i in range(4):
        I(f'v_mul_f32 v{SD+4+i}, s{S_T+5}, v{SD+4+i}')
    I(f's_cmp_eq_u32 s{S_T+6}, 3')
    I(f's_cselect_b64 exec, 0xffff, -1')
    I(f'ds_write_b32 v{V_AP}, v{SD}')
    I(f'ds_write_b32 v{V_AP}, v{SD+4} offset:{ACCN-PT}')
    I(f's_cselect_b64 exec, 0, -1')
    for i in range(1, 4):
        I(f'ds_write_b32 v{V_AP}, v{SD+i} offset:{i*256}')
        I(f'ds_write_b32 v{V_AP}, v{SD+4+i} offset:{ACCN-PT+i*256}')
    I('s_mov_b64 exec, -1')

def phase0c():
    I(f'v_bfe_u32 v13, v{V_LANE}, 2, 2')
    I(f'v_lshlrev_b32 v13, 7, v13')
    I(f'v_bfe_u32 v15, v{V_LANE}, 4, 1')
    I(f'v_lshl_add_u32 v13, v15, 5, v13')
    I(f'v_and_b32 v15, 3, v{V_LANE}')
    I(f'v_lshl_add_u32 v13, v15, 3, v13')
    I(f'v_and_b32 v15, 8, v{V_LANE}')
    I(f'v_lshlrev_b32 v15, 2, v15')
    I(f'v_xor_b32 v13, v13, v15')
    I(f'v_add_u32 v13, {WG_ + 16384}, v13')
    I(f'ds_read_b64_tr_b16 v[96:97], v13')
    I(f'ds_read_b64_tr_b16 v[98:99], v13 offset:64')
    I(f's_mov_b32 s{S_T+4}, 0x{f2u(-LOG2E):x}')
    I(f'v_cmp_lt_u32 vcc, 31, v{V_LANE}')
    I('s_waitcnt lgkmcnt(0)')
    for m in range(4):
        I(f'v_lshlrev_b32 v{100+2*m}, 16, v{96+m}')
        I(f'v_and_b32 v{101+2*m}, 0xffff0000, v{96+m}')
    for j in range(8):
        I(f'v_mul_f32 v{100+j}, s{S_T+4}, v{100+j}')
    for m in range(4):
        dst = B5[m >> 1] + (m & 1)
        I(f'v_cvt_pk_bf16_f32 v{96+m}, v{100+2*m}, v{101+2*m}')
        I(f'v_lshlrev_b32 v12, 16, v{96+m}')
        I(f'v_and_b32 v13, 0xffff0000, v{96+m}')
        I(f'v_sub_f32 v12, v{100+2*m}, v12')
        I(f'v_sub_f32 v13, v{101+2*m}, v13')
        I(f'v_cvt_pk_bf16_f32 v12, v12, v13')
        I(f'v_cndmask_b32 v{dst}, v{96+m}, v12, vcc')

def a5_const():
    I(f'v_bfe_u32 v12, v{V_LANE}, 2, 1')
    I(f'v_lshrrev_b32 v13, 5, v{V_LANE}')
    I(f'v_xor_b32 v12, v12, v13')
    I(f'v_and_b32 v13, 1, v{V_LANE}')
    I(f'v_lshl_or_b32 v12, v12, 1, v13')
    I(f'v_mov_b32 v13, 0x3f803f80')
    I(f'v_cmp_eq_u32 vcc, 0, v12')
    I(f'v_cmp_eq_u32 {sp(S_T)}, 1, v12')
    I('s_nop 1')
    I(f'v_cndmask_b32 v{A5+2}, 0, v13, vcc')
    I(f'v_cndmask_b32 v{A5+3}, 0, v13, {sp(S_T)}')

def nt_prefetch(vt, first=0, nl=None, dst=96):
    I(f's_lshr_b32 s{S_T}, s2, 4')
    I(f's_lshl_b32 s{S_T+1}, s{S_W}, 4')
    I(f's_add_u32 s{S_T}, s{S_T}, s{S_T+1}')
    I(f's_and_b32 s{S_T+1}, s{S_T}, 7')
    I(f's_lshl_b32 s{S_T+1}, s{S_T+1}, 5')
    I(f's_lshr_b32 s{S_T}, s{S_T}, 3')
    I(f's_add_u32 s{S_T}, s{S_T}, s{S_T+1}')
    if not opt('xmap', 1):
        I(f's_lshr_b32 s{S_T}, s2, 4')
        I(f's_lshl_b32 s{S_T+1}, s{S_W}, 4')
        I(f's_add_u32 s{S_T}, s{S_T}, s{S_T+1}')
    I(f's_lshl_b32 s{S_T}, s{S_T}, 1')
    I(f's_bfe_u32 s{S_T+1}, s2, 0x10003')
    I(f's_add_u32 s{S_T}, s{S_T}, s{S_T+1}')
    I(f's_mul_i32 s{S_T}, s{S_T}, {NB*128}')
    I(f's_add_u32 s{S_T}, s{S_T}, 0x{WS_NT:x}')
    srd_off(S_NTS, S_WSP, S_WSP + 1, f's{S_T}', NB * 128)
    if NPFM >= 3:
        I(f'v_lshlrev_b32 v{vt}, {7 if NPFM >= 4 else 6}, v{V_LANE}')
        I(f'v_add_u32 v{vt+1}, 4096, v{vt}')
        nl = opt("pfl", 20) if nl is None else nl
        I(f's_mov_b32 exec_lo, 0x{(((1 << nl) - 1) << first) & 0xffffffff:x}')
        I(f's_mov_b32 exec_hi, 0x{(((1 << nl) - 1) << first) >> 32:x}')
        for k in range(NPF):
            I(f'buffer_load_dword v{dst+k}, v{vt+k}, {sr4(S_NTS)}, 0 offen' + (LSC if opt('pfsc', 1) else ''))
        I('s_mov_b64 exec, -1')
        return
    I(f'v_lshlrev_b32 v{vt}, 4, v{V_LANE}')
    I(f'v_add_u32 v{vt+1}, 4096, v{vt}')
    for k in range(NPF):
        I(f'buffer_load_dwordx4 {vr(96+4*k,4)}, v{vt+(k>>2)}, {sr4(S_NTS)}, 0 offen offset:{(k&3)*1024}' + LSC)

def ptr_consts():
    I(f'v_lshrrev_b32 v{V_PS1}, 5, v{V_LANE}')
    I(f's_lshl_b32 s{S_T}, s{S_W}, 4')
    I(f's_add_u32 s{S_T}, s{S_T}, {DESCP}')
    I(f'v_lshlrev_b32 v{V_PD}, 3, v{V_PS1}')
    I(f'v_add_u32 v{V_PS1}, v{V_PS1}, v{V_PS1}')
    I(f'v_add_u32 v{V_PD}, s{S_T}, v{V_PD}')
    I(f'v_bfe_u32 v{V_VAP}, v{V_LANE}, 2, 1')
    I(f'v_and_b32 v{V_PE}, 1, v{V_LANE}')
    I(f'v_lshl_or_b32 v{V_VAP}, v{V_VAP}, 1, v{V_PE}')
    I(f'v_bfe_u32 v{V_PE}, v{V_LANE}, 3, 2')
    I(f'v_bfe_u32 v{V_PS0}, v{V_LANE}, 1, 1')
    I(f'v_lshl_or_b32 v{V_PE}, v{V_PE}, 1, v{V_PS0}')
    I(f'v_lshlrev_b32 v{V_PE}, 3, v{V_PE}')
    I(f'v_add_u32 v{V_PE}, {LE}, v{V_PE}')

def gen():
    e(f'.globl {KNAME}')
    e('.p2align 8')
    e(f'.type {KNAME},@function')
    L(KNAME)
    I(f's_cmp_ge_u32 s2, {NWG}')
    I('s_cbranch_scc1 L_END')
    I('s_load_dwordx8 s[84:91], s[0:1], 0')
    I('s_load_dwordx4 s[4:7], s[0:1], 32')
    I('s_load_dwordx4 s[8:11], s[0:1], 48')
    I('s_load_dwordx4 s[56:59], s[0:1], 64')
    if PROF:
        I(f'v_mov_b32 v{V_PROF}, 0')
    rstamp(30)
    stamp(0)
    zregs()
    zero_range(CNT, DESCP + 2560 - CNT, X + 2, X)
    I(f'v_lshlrev_b32 v{X+6}, 2, v{V_TID}')
    I(f's_mul_i32 s61, s2, {CH*4}')
    I(f's_mul_i32 s63, s2, {CH}')
    I(f's_sub_u32 s63, {E_EDGES}, s63')
    I(f's_min_u32 s63, s63, {CH}')
    I(f's_lshl_b32 s64, s63, 2')
    I(f'v_add_u32 v{X+8}, 4096, v{X+6}')
    I(f'v_add_u32 v{X+9}, 8192, v{X+6}')
    I(f'v_add_u32 v{X+10}, 12288, v{X+6}')
    I(f'v_lshrrev_b32 v{X+1}, 6, v{V_TID}')
    I(f'v_and_b32 v{V_LANE}, 63, v{V_TID}')
    I(f'v_readfirstlane_b32 s{S_W}, v{X+1}')
    I('s_and_b32 s3, s2, 7')
    I('s_lshl_b32 s3, s3, 5')
    I('s_lshr_b32 s60, s2, 3')
    I('s_add_u32 s3, s3, s60')
    if not opt('xmap', 1):
        I('s_mov_b32 s3, s2')
    I(f's_mul_i32 s62, s2, {CH*8}')
    I(f's_lshl_b32 s65, s63, 3')
    I(f'v_and_b32 v97, 0x50, v{V_TID}')
    I(f'v_lshlrev_b32 v96, 1, v97')
    I(f'v_or_b32 v97, v97, v96')
    I(f'v_and_b32 v97, 0x60, v97')
    I(f'v_xor_b32 v97, v97, v{X}')
    I(f'v_and_b32 v96, 0x20, v96')
    I(f'v_lshlrev_b32 v98, 4, v{V_LANE}')
    I(f'v_xor_b32 v96, v96, v98')
    I(f's_lshl_b32 s66, s{S_W}, 10')
    I(f'v_and_b32 v101, 0x1fff, v97')
    I(f'v_lshrrev_b32 v98, 3, v{V_TID}')
    I(f'v_bfe_u32 v99, v98, 1, 3')
    I(f'v_and_b32 v100, 7, v{V_TID}')
    I(f'v_xor_b32 v99, v99, v100')
    I(f'v_lshlrev_b32 v99, 4, v99')
    I(f'v_lshl_add_u32 v99, v98, 7, v99')
    I(f's_mul_i32 s60, s3, {NB*128}')
    I(f'v_add_u32 v99, s60, v99')
    I(f'v_add_u32 v96, 16384, v96')
    I('s_waitcnt lgkmcnt(0)')
    I(f's_or_b32 s67, s2, s{S_W}')
    I('s_cmp_lg_u32 s67, 0')
    I('s_cbranch_scc1 L_NOTAG')
    I('s_memrealtime s[68:69]')
    I(f'v_mov_b32 v{X+2}, 0')
    I('s_waitcnt lgkmcnt(0)')
    I('s_or_b32 s68, s68, 1')
    I(f'v_mov_b32 v{X+3}, s68')
    I('s_mov_b64 exec, 1')
    I(f'global_store_dword v{X+2}, v{X+3}, s[56:57] sc1')
    I('s_mov_b64 exec, -1')
    L('L_NOTAG')
    def dst_loads():
        srd_off(S_DST, 90, 91, 's61', 's64')
        for k in range(4):
            I(f'buffer_load_dword v{64+k}, v{X+6 if k == 0 else X+7+k}, {sr4(S_DST)}, 0 offen' + ELD)
    def dma_loads():
        srd(S_WS, 8, 9, 132 * 128)
        I(f's_add_u32 m0, s66, {WG_}')
        srd(S_XS, 84, 85, N_NODES * 128)
        I(f'buffer_load_dwordx4 v97, {sr4(S_WS)}, 0 offen lds')
        I(f's_cmp_lt_u32 s{S_W}, 8')
        I(f's_cselect_b32 s{S_NTS}, s6, s4')
        I(f's_cselect_b32 s{S_NTS+1}, s7, s5')
        I(f's_mov_b32 s{S_NTS+2}, {64*128}')
        I(f's_mov_b32 s{S_NTS+3}, 0x00020000')
        I(f's_add_u32 m0, s66, {WV_}')
        I('s_nop 0')
        I(f'buffer_load_dwordx4 v101, {sr4(S_NTS)}, 0 offen lds')
        I(f's_cmp_lt_u32 s{S_W}, 8')
        I('s_cbranch_scc0 L_D3B')
        I(f's_add_u32 m0, s66, {XOWN}')
        I('s_nop 0')
        I(f'buffer_load_dwordx4 v99, {sr4(S_XS)}, 0 offen lds')
        I('s_branch L_D3C')
        L('L_D3B')
        I(f's_mov_b32 m0, {WG_ + 16384}')
        I('s_nop 0')
        I(f'buffer_load_dwordx4 v96, {sr4(S_WS)}, 0 offen lds')
        L('L_D3C')
    if opt('t0', 0):
        I(f'v_and_b32 v60, 15, v{V_LANE}')
        I(f'v_lshlrev_b32 v60, 20, v60')
        I(f'v_and_b32 v61, 1, v{V_LANE}')
        I(f'v_lshlrev_b32 v61, 20, v61')
        I(f'global_load_dword v62, v60, s[58:59]')
        I(f'global_load_dword v63, v61, s[10:11]')
    ORDER = opt('order', 0)
    if ORDER == 0:
        dma_loads()
    dst_loads()
    if ORDER == 2:
        dma_loads()
    F1 = opt('f1', 1)
    if F1:
        I('s_barrier')
    srd_off(S_SRC, 88, 89, 's61', 's64')
    LATE = opt('late', 1)
    def src_load(k):
        I(f'buffer_load_dword v{68+k}, v{X+6 if k == 0 else 43+k}, {sr4(S_SRC)}, 0 offen' + ELD)
    for k in range(1, 4):
        I(f'v_mov_b32 v{43+k}, v{X+7+k}')
    for k in range(1 if LATE else 4):
        src_load(k)
    srd_off(S_EA, 86, 87, 's62', 's65')
    I(f'v_lshlrev_b32 v92, 3, v{V_TID}')
    for k in range(1, 4):
        I(f'v_add_u32 v{92+k}, {8192*k}, v92')
    def e_load(k):
        I(f'buffer_load_dwordx2 v[{72+2*k}:{73+2*k}], v{92+k}, {sr4(S_EA)}, 0 offen' + ELD)
    NEE = 1 if LATE else opt('nee', 4)
    for k in range(NEE):
        e_load(k)
    if ORDER == 1:
        dma_loads()
    I(f's_mov_b64 {sp(S_DBG)}, s[56:57]')
    I(f's_add_u32 s{S_WSP}, s58, 0x{WSB:x}')
    I(f's_addc_u32 s{S_WSP+1}, s59, 0')
    stamp(1)
    srd(S_OUT, 10, 11, N_NODES * 128)
    I(f's_mul_i32 s{S_T}, s2, {CAP*4}')
    srd_off(S_RW, S_WSP, S_WSP + 1, f's{S_T}', CAP * 4)
    I(f's_lshl_b32 s{S_T}, s{S_T}, 1')
    I(f's_add_u32 s{S_T}, s{S_T}, 0x{WS_RE:x}')
    srd_off(S_RE, S_WSP, S_WSP + 1, f's{S_T}', CAP * 8)
    I(f's_lshl_b32 s{S_T}, s2, 11')
    I(f's_add_u32 s{S_T}, s{S_T}, 0x{WS_TAB:x}')
    srd_off(S_TAB, S_WSP, S_WSP + 1, f's{S_T}', (KREP - 1) * 0x80000 + 2048)
    I(f's_mul_i32 s{S_T}, s3, {NB*256}')
    I(f's_add_u32 s{S_T}, s{S_T}, 0x{WS_NT:x}')
    srd_off(S_NTS, S_WSP, S_WSP + 1, f's{S_T}', NB * 256)
    I(f's_add_u32 s{S_NTG}, s{S_WSP}, 0x{WS_NT:x}')
    I(f's_addc_u32 s{S_NTG+1}, s{S_WSP+1}, 0')
    I(f's_or_b32 s{S_NTG+1}, s{S_NTG+1}, 0x80000000')
    I(f's_mov_b32 s{S_NTG+2}, 0x400000')
    I(f's_mov_b32 s{S_NTG+3}, 0x00c00000')
    srd_off(S_DST, S_WSP, S_WSP + 1, '0x%x' % WS_RW, NWG * CAP * 4)
    if not LATE:
        srd_off(S_SRC, S_WSP, S_WSP + 1, '0x%x' % WS_RE, NWG * CAP * 8)
    for k in range(4):
        I(f'v_add_u32 v{X+1}, {1024*k}, v{V_TID}')
        I(f'v_cmp_gt_u32 {sp(S_MASK+2*k)}, s63, v{X+1}')
    I(f's_mov_b32 s{S_C}, 0x{f2u(2.0**-KH):x}')
    I(f's_mov_b32 s{S_C+1}, 0x{f2u(2.0**-KH):x}')
    I(f's_mov_b32 s{S_JB}, 0')
    I(f's_mov_b32 s{S_WID}, 128')
    I(f'v_and_b32 v{V_J4}, 7, v{V_LANE}')
    I(f'v_lshlrev_b32 v{V_J4}, 3, v{V_J4}')
    if CM:
        I(f'v_and_b32 v{X+1}, 56, v{V_LANE}')
        I(f's_and_b32 s{S_T}, s{S_W}, 1')
        I(f's_lshl_b32 s{S_T}, s{S_T}, 7')
        I(f's_lshr_b32 s{S_T+1}, s{S_W}, 1')
        I(f's_add_u32 s{S_T}, s{S_T}, s{S_T+1}')
    else:
        I(f'v_lshrrev_b32 v{X+1}, 3, v{V_LANE}')
        I(f's_lshl_b32 s{S_T}, s{S_W}, 4')
    I(f'v_add_u32 v{X+1}, s{S_T}, v{X+1}')
    I(f'v_lshlrev_b32 v{V_TAB+2}, 11, v{X+1}')
    I(f'v_mul_u32_u24 v{V_CB4}, {CAP*4}, v{X+1}')
    I(f'v_add_u32 v{V_CB4}, v{V_CB4}, v{V_J4}')
    I(f'v_and_b32 v{V_CH8}, 31, v{V_LANE}')
    I(f'v_lshlrev_b32 v{V_CH8}, 3, v{V_CH8}')
    I(f'v_add_u32 v{V_CHP}, {PT}, v{V_CH8}')
    phase0_addr()
    a5_const()
    if not F1:
        I(f's_waitcnt vmcnt({8 + NEE if ORDER == 0 else 0})')
        I('s_barrier')
    stamp(2)
    def late_loads():
        if LATE:
            for k in range(1, 4):
                src_load(k)
        for k in range(NEE, 4):
            e_load(k)
        I(f'v_mov_b32 v12, 0')
        I(f'global_load_dword v10, v12, {sp(S_DBG)} sc1')
        if TCH:
            I(f'v_lshlrev_b32 v13, 10, v{V_LANE}')
            I(f'buffer_load_dword v60, v13, {sr4(S_RW)}, 0 offen')
            I(f'buffer_load_dword v61, v13, {sr4(S_RE)}, 0 offen')
            I(f'buffer_load_dword v62, v13, {sr4(S_TAB)}, 0 offen')
            I(f'buffer_load_dword v63, v13, {sr4(S_NTS)}, 0 offen')
        srd_off(S_EA, S_WSP, S_WSP + 1, '0x%x' % WS_TAB, KREP * 0x80000)
        if LATE:
            srd_off(S_SRC, S_WSP, S_WSP + 1, '0x%x' % WS_RE, NWG * CAP * 8)
    if not LATE:
        late_loads()
    if not F1:
        phase0a()
    I(f's_mov_b32 s{S_T}, -{NB}')
    I(f'v_mov_b32 v{X+1}, 4')
    BN, WD, RK = 28, 32, 36
    for k in range(4):
        I(f's_waitcnt vmcnt({((5 if ORDER == 0 else 8) if LATE else (12 if ORDER == 0 else 15) + TCH) - k})')
        I(f's_mov_b64 exec, {sp(S_MASK+2*k)}')
        if k == 3:
            I('s_cbranch_execz L_B1')
        I(f'v_mul_u32_u24 v{BN+k}, 21400, v{64+k}')
        I(f'v_lshrrev_b32 v{BN+k}, 20, v{BN+k}')
        I(f'v_mad_i32_i24 v{WD+k}, v{BN+k}, s{S_T}, v{64+k}')
        I(f'v_lshlrev_b32 v{BN+k}, 2, v{BN+k}')
        I(f'ds_add_rtn_u32 v{RK+k}, v{BN+k}, v{X+1} offset:{HIST}')
        I(f'v_lshlrev_b32 v{WD+k}, 26, v{WD+k}')
    L('L_B1')
    I('s_mov_b64 exec, -1')
    if LATE:
        late_loads()
    I(f'v_add_u32 v{X+1}, {NTI}, v{X}')
    stamp(3)
    I({0: 's_waitcnt lgkmcnt(0)', 1: 's_waitcnt vmcnt(1) lgkmcnt(0)', 2: 's_waitcnt vmcnt(9) lgkmcnt(0)'}[ORDER])
    I('s_barrier')
    stamp(4)
    if not F1:
        I(f'ds_read_b128 v[112:115], v{X+1}')
    I(f's_cmp_lg_u32 s{S_W}, 0')
    I('s_cbranch_scc1 L_NOSCAN')
    I(f'ds_read_b128 v[96:99], v{X} offset:{HIST}')
    I('s_waitcnt lgkmcnt(0)')
    for k in range(4):
        I(f'v_add_u32 v{108+k}, 4, v{96+k}')
        I(f'v_and_b32 v{108+k}, -8, v{108+k}')
    I('v_add_u32 v101, v108, v109')
    I('v_add_u32 v102, v101, v110')
    I('v_add_u32 v103, v102, v111')
    I('v_mov_b32 v104, v103')
    wave_scan(104)
    I(f'v_readlane_b32 s{S_T+4}, v104, 63')
    I('v_sub_u32 v104, v104, v103')
    I(f'v_mov_b32 v100, {MISC+8}')
    I(f'v_mov_b32 v105, s{S_T+4}')
    I('ds_write_b32 v100, v105')
    I('v_add_u32 v105, v104, v108')
    I('v_add_u32 v106, v104, v101')
    I('v_add_u32 v107, v104, v102')
    I(f'ds_write_b128 v{X}, v[104:107] offset:{HBASE}')
    for k in range(4):
        I(f'v_lshl_or_b32 v{108+k}, v{96+k}, 16, v{104+k}')
    I(f'ds_write_b128 v{X}, v[108:111] offset:{HIST}')
    L('L_NOSCAN')
    if F1:
        phase0a()
    I('s_waitcnt lgkmcnt(0)')
    if not F1:
        I(f'buffer_store_dwordx4 v[112:115], v{X}, {sr4(S_NTS)}, 0 offen' + SC)
    if T1:
        I(f's_mul_i32 s{S_T+4}, s3, {NB*128}')
        I(f'v_mov_b32 v60, s{S_T+4}')
        I(f'buffer_load_dword v61, v60, {sr4(S_OUT)}, 0 offen')
    I(f's_waitcnt vmcnt({4 if LATE else 6 - F1 + TCH + T1})')
    for k in range(4):
        I(f'v_lshl_or_b32 v{WD+k}, v{68+k}, 3, v{WD+k}')
    I('s_barrier')
    stamp(5)
    if F1:
        I(f'ds_read_b128 v[112:115], v{X+1}')
    for k in range(4):
        I(f's_mov_b64 exec, {sp(S_MASK+2*k)}')
        I(f'ds_read_b32 v{BN+k}, v{BN+k} offset:{HBASE}')
    if F1:
        I('s_mov_b64 exec, -1')
        I('s_waitcnt lgkmcnt(4)')
        I(f'buffer_store_dwordx4 v[112:115], v{X}, {sr4(S_NTS)}, 0 offen' + SC)
    I(f's_waitcnt vmcnt({1 + TCH + T1})')
    I(f'v_readfirstlane_b32 s{S_TAG}, v10')
    for k in range(4):
        I(f's_mov_b64 exec, {sp(S_MASK+2*k)}')
        if k == 3:
            I('s_cbranch_execz L_B2')
        I(f's_waitcnt lgkmcnt({3 - k + 2*k})')
        I(f'v_add_u32 v{RK+k}, v{BN+k}, v{RK+k}')
        I(f'v_add_u32 v{BN+k}, v{RK+k}, v{RK+k}')
        I(f'ds_write_b32 v{RK+k}, v{WD+k} offset:{STGW}')
        I(f'ds_write_b64 v{BN+k}, v[{72+2*k}:{73+2*k}] offset:{STGE}')
    L('L_B2')
    I('s_mov_b64 exec, -1')
    I(f'v_mov_b32 v13, {MISC+8}')
    I(f'ds_read_b32 v13, v13')
    I(f's_mov_b32 s{S_T}, 0x40000')
    L('L_TAGP')
    I(f's_cmp_lg_u32 s{S_TAG}, 0')
    I('s_cbranch_scc1 L_TAGD')
    I(f'v_mov_b32 v12, 0')
    I(f'global_load_dword v10, v12, {sp(S_DBG)} sc1')
    I('s_waitcnt vmcnt(0)')
    I(f'v_readfirstlane_b32 s{S_TAG}, v10')
    I(f's_sub_u32 s{S_T}, s{S_T}, 1')
    I('s_cbranch_scc1 L_END')
    I('s_branch L_TAGP')
    L('L_TAGD')
    I(f'v_add_u32 v{X+2}, 16384, v{X}')
    I(f'v_lshlrev_b32 v12, 3, v{V_LANE}')
    I(f's_mul_i32 s{S_TAG2}, s{S_TAG}, 0x9e3779b1')
    I(f's_and_b32 s{S_TAG2}, s{S_TAG2}, 0x{TAGM:x}')
    I('s_waitcnt lgkmcnt(0)')
    I(f'v_readfirstlane_b32 s{S_T}, v13')
    I('s_barrier')
    I(f's_add_u32 s{S_T}, s{S_T}, 127')
    I(f's_and_b32 s{S_RW+2}, s{S_T}, -128')
    I(f's_lshl_b32 s{S_RE+2}, s{S_RW+2}, 1')
    stamp(6)
    if opt('early', 0):
        I(f'ds_read_b64 v[92:93], v12 offset:{HIST}')
        I(f'ds_read_b64 v[94:95], v12 offset:{HIST+512}')
        I(f'v_lshlrev_b32 v60, 4, v{V_LANE}')
        I('s_waitcnt lgkmcnt(0)')
        for k in range(4):
            I(f'v_or_b32 v{120+2*k}, s{S_TAG2}, v{92+k}')
            I(f'v_mov_b32 v{121+2*k}, s{S_TAG}')
        I(f's_cmp_lg_u32 s{S_W}, 0')
        I('s_cbranch_scc1 L_EARLY')
        I(f'buffer_store_dwordx4 v[120:123], v60, {sr4(S_TAB)}, 0 offen' + SC)
        I(f'buffer_store_dwordx4 v[124:127], v60, {sr4(S_TAB)}, 0 offen offset:1024' + SC)
        L('L_EARLY')
    I(f'ds_read_b128 v[64:67], v{X} offset:{STGW}')
    I(f'ds_read_b128 v[68:71], v{X} offset:{STGE}')
    I(f'ds_read_b128 v[72:75], v{X} offset:{STGE+16384}')
    I(f'ds_read_b64 v[92:93], v12 offset:{HIST}')
    I(f'ds_read_b64 v[94:95], v12 offset:{HIST+512}')
    I('s_waitcnt lgkmcnt(4)')
    I(f'buffer_store_dwordx4 v[64:67], v{X}, {sr4(S_RW)}, 0 offen' + SC)
    I('s_waitcnt lgkmcnt(3)')
    I(f'buffer_store_dwordx4 v[68:71], v{X}, {sr4(S_RE)}, 0 offen' + SC)
    I('s_waitcnt lgkmcnt(2)')
    I(f'buffer_store_dwordx4 v[72:75], v{X+2}, {sr4(S_RE)}, 0 offen' + SC)
    I('s_waitcnt lgkmcnt(0)')
    for k in range(4):
        I(f'v_or_b32 v{120+2*k}, s{S_TAG2}, v{92+k}')
        I(f'v_mov_b32 v{121+2*k}, s{S_TAG}')
    PF1 = opt('pf1', 0)
    if PF1:
        nt_prefetch(12, 49 - PF1, PF1, 61)
    pre = opt('pre', 'xbc').replace('0', '')
    def piece(c):
        if c == 'x':
            zregs()
            zero_range(EXTRA, 16384, X + 2, X)
            fill_desca()
        elif c == 'b':
            phase0b()
        elif c == 'c':
            phase0c()
    for c in pre:
        piece(c)
    stamp(7)
    I(f's_lshl_b32 s{S_T+1}, s3, 3')
    I(f'v_add_u32 v76, s{S_T+1}, v{V_TAB+2}')
    I(f'v_add_u32 v77, {RSTEP*2048}, v76')
    I(f'v_lshlrev_b32 v60, 4, v{V_LANE}')
    for r in range(2):
        I(f's_mov_b64 {sp(S_MASK+2*r)}, -1')
    I(f's_waitcnt vmcnt({1 if PF1 else 0})')
    stamp(8)
    I('s_barrier')
    stamp(9)
    I(f's_cmp_lg_u32 s{S_W}, {99 if opt("early", 0) else 0}')
    I('s_cbranch_scc1 L_POLL0')
    for k in range(KREP - 1, -1, -1):
        I(f's_mov_b32 s{S_T}, 0x{k*0x80000:x}')
        I(f'buffer_store_dwordx4 v[120:123], v60, {sr4(S_TAB)}, s{S_T} offen' + SC)
        I(f'buffer_store_dwordx4 v[124:127], v60, {sr4(S_TAB)}, s{S_T} offen offset:1024' + SC)
    L('L_POLL0')
    PF2 = opt('pf2', 0)
    if PF2:
        nt_prefetch(61, 49 - PF2, PF2, 63)
    EP = opt('ep', 0)
    for r in range(2 if EP else 0):
        I(f'buffer_load_dwordx2 {p(64+2*r)}, v{76+r}, {sr4(S_EA)}, 0 offen' + LSC)
    for c in 'xbc':
        if c not in pre:
            piece(c)
    fill_words()
    zregs()
    zero_range(LE, CNT - LE, X + 2, X)
    ptr_consts()
    I(f's_mov_b32 s{S_T}, 0x40000')
    I(f's_mov_b32 s{S_T+1}, 0x{TAGM:x}')
    if opt('ps', 0):
        I(f's_sleep {opt("ps", 0)}')
    if EP:
        I('s_branch L_POLLC')
    L('L_POLL')
    for r in range(2):
        I(f's_mov_b64 exec, {sp(S_MASK+2*r)}')
        I(f'buffer_load_dwordx2 {p(64+2*r)}, v{76+r}, {sr4(S_EA)}, 0 offen' + LSC)
    L('L_POLLC')
    for r in range(2):
        I(f's_waitcnt vmcnt({1-r})')
        I(f's_mov_b64 exec, {sp(S_MASK+2*r)}')
        I(f'v_xor_b32 v{V_TAB+r}, s{S_TAG2}, v{64+2*r}')
        I(f'v_xor_b32 v{65+2*r}, s{S_TAG}, v{65+2*r}')
        I(f'v_and_or_b32 v{65+2*r}, v{V_TAB+r}, s{S_T+1}, v{65+2*r}')
        I(f'v_cmp_ne_u32 {sp(S_MASK+2*r)}, 0, v{65+2*r}')
    I(f's_or_b64 {sp(S_T+2)}, {sp(S_MASK)}, {sp(S_MASK+2)}')
    I('s_cbranch_scc0 L_POLLED')
    I(f's_sub_u32 s{S_T}, s{S_T}, 1')
    I('s_cbranch_scc1 L_END')
    if opt('sleep', 1):
        I(f's_sleep {opt("sleep", 1)}')
    I('s_branch L_POLL')
    L('L_POLLED')
    I('s_mov_b64 exec, -1')
    stamp(10)
    def RB(s_): return 64 + 8 * (s_ >> 1)
    def MK(s_): return sp(S_MASK + 2 * s_)
    AD = X
    L('L_PASS')
    I(f'v_add_u32 v{X+10}, s{S_JB}, v{V_CB4}')
    I(f'v_add_u32 v{X+8}, s{S_JB}, v{V_J4}')
    SDW = 'src0_sel:DWORD src1_sel:WORD_1'
    for r in range(2):
        I(f'v_add_u32_sdwa v{X+r}, v{V_TAB+r}, v{X+10} dst_sel:DWORD dst_unused:UNUSED_PAD src0_sel:WORD_0 src1_sel:DWORD')
        I(f'v_cmp_lt_u32_sdwa {MK(2*r)}, v{X+8}, v{V_TAB+r} {SDW}')
        if r:
            I(f'v_add_u32 v{X+r}, {RSTEP*CAP*4}, v{X+r}')
        I(f'v_add_u32 v{X+2+r}, v{X+r}, v{X+r}')
        I(f's_mov_b64 exec, {MK(2*r)}')
        I(f'buffer_load_dwordx2 {p(RB(2*r)+4)}, v{X+r}, {sr4(S_DST)}, 0 offen' + LSC)
        I(f'buffer_load_dwordx4 {vr(RB(2*r),4)}, v{X+2+r}, {sr4(S_SRC)}, 0 offen' + LSC)
        I('s_mov_b64 exec, -1')
    I(f'v_add_u32 v{X+9}, s{S_WID}, v{X+8}')
    I(f'v_add_u32 v{X+10}, 4, v{X+8}')
    I(f's_cmp_eq_u32 s{S_WID}, 128')
    I(f's_cselect_b32 s{S_T}, 64, 0x10000')
    I(f'v_add_u32 v{X+8}, s{S_T}, v{X+8}')
    for r in range(2):
        I(f'v_cmp_lt_u32_sdwa {MK(4+2*r)}, v{X+8}, v{V_TAB+r} {SDW}')
        I(f'v_cmp_lt_u32_sdwa {MK(2*r+1)}, v{X+10}, v{V_TAB+r} {SDW}')
    I(f'v_add_u32 v{X+8}, 4, v{X+8}')
    for r in range(2):
        I(f's_mov_b64 exec, {MK(4+2*r)}')
        I(f'buffer_load_dwordx2 {p(RB(4+2*r)+4)}, v{X+r}, {sr4(S_DST)}, 0 offen offset:64' + LSC)
        I(f'buffer_load_dwordx4 {vr(RB(4+2*r),4)}, v{X+2+r}, {sr4(S_SRC)}, 0 offen offset:128' + LSC)
    I('s_mov_b64 exec, -1')
    for r in range(2):
        I(f'v_cmp_lt_u32_sdwa {MK(5+2*r)}, v{X+8}, v{V_TAB+r} {SDW}')
    I(f'v_cmp_lt_u32_sdwa vcc, v{X+9}, v{V_TAB} {SDW}')
    I(f'v_cmp_lt_u32_sdwa {sp(S_T)}, v{X+9}, v{V_TAB+1} {SDW}')
    I(f'v_mov_b32 v{X+8}, 4')
    I(f's_or_b64 vcc, vcc, {sp(S_T)}')
    I(f's_cbranch_scc0 L_NOMORE')
    I(f'v_mov_b32 v{X+9}, {MISC}')
    I(f'ds_write_b32 v{X+9}, v{X+8}')
    L('L_NOMORE')
    stamp(11)
    for s_ in range(8):
        if s_ >= 4:
            I(f's_mov_b64 exec, {MK(s_)}')
            I(f's_cbranch_execz L_C{s_}')
        if s_ % 2 == 0:
            I(f's_waitcnt vmcnt({7 - s_})')
        if s_ < 4:
            I(f's_mov_b64 exec, {MK(s_)}')
        I(f'v_lshrrev_b32 v{AD+s_}, 24, v{RB(s_)+4+(s_&1)}')
        if opt('safe', 0):
            I(f'v_and_b32 v{AD+s_}, 0xfc, v{AD+s_}')
        I(f'ds_add_rtn_u32 v{RB(s_)+6+(s_&1)}, v{AD+s_}, v{X+8} offset:{CNT}')
        if s_ >= 4:
            L(f'L_C{s_}')
    I('s_mov_b64 exec, -1')
    I(f'v_lshlrev_b32 v{X+8}, 2, v{V_LANE}')
    I(f'v_mov_b32 v{X+9}, {MISC}')
    I(f's_mov_b32 s{S_T+2}, 0x1fff8')
    I('s_waitcnt lgkmcnt(0)')
    I('s_barrier')
    stamp(12)
    if NPFM in (2, 3, 4):
        nt_prefetch(60, dst=62)
        I(f's_mov_b32 s{S_T+2}, 0x1fff8')
    NG, GS, MI = X + 10, X + 11, X + 12
    I(f'ds_read_b32 v{NG}, v{X+8} offset:{CNT}')
    I(f'ds_read_b32 v{X+9}, v{X+9}')
    I('s_waitcnt lgkmcnt(1)')
    I(f'v_add_u32 v{NG}, 28, v{NG}')
    I(f'v_and_b32 v{NG}, 0xffffffe0, v{NG}')
    I(f'v_mov_b32 v{GS}, v{NG}')
    wave_scan(GS)
    I(f'v_readlane_b32 s{S_T}, v{GS}, 63')
    I(f'v_sub_u32 v{GS}, v{GS}, v{NG}')
    if PROF == 5:
        stamp(19)
    I(f'ds_write_b32 v{X+8}, v{GS} offset:{BASET}')
    for s_ in range(8):
        I(f's_mov_b64 exec, {MK(s_)}')
        I(f'ds_read_b32 v{AD+s_}, v{AD+s_} offset:{BASET}')
    I('s_mov_b64 exec, -1')
    I(f'v_readfirstlane_b32 s{S_MORE}, v{X+9}')
    out.insert(len(out) - 1, '    s_waitcnt lgkmcnt(9)')
    I(f's_lshr_b32 s{S_T}, s{S_T}, 5')
    I(f's_cmp_eq_u32 s{S_WID}, 128')
    I(f's_cselect_b32 s{S_T+1}, {MAXG}, -1')
    I(f's_cmp_gt_u32 s{S_T}, s{S_T+1}')
    I('s_cbranch_scc1 L_OVERFLOW')
    def place(tag):
        I(f's_waitcnt vmcnt({NPF}) lgkmcnt(0)')
        for s_ in range(8):
            wd, rk, ee = RB(s_) + 4 + (s_ & 1), RB(s_) + 6 + (s_ & 1), RB(s_) + 2 * (s_ & 1)
            I(f's_mov_b64 exec, {MK(s_)}')
            if s_ >= 4:
                I(f's_cbranch_execz L_P{tag}{s_}')
            I(f'v_add_u32 v{AD+s_}, v{AD+s_}, v{rk}')
            I(f'v_and_b32 v{wd}, s{S_T+2}, v{wd}')
            I(f'v_add_u32 v{rk}, v{AD+s_}, v{AD+s_}')
            I(f'ds_write_b32 v{AD+s_}, v{wd} offset:{LS}')
            I(f'ds_write_b64 v{rk}, {p(ee)} offset:{LE}')
            if s_ >= 4:
                L(f'L_P{tag}{s_}')
        I('s_mov_b64 exec, -1')
    if PROF == 5:
        stamp(20)
    SWAP = opt('swap', 0)
    if SWAP:
        I(f's_bitcmp1_b32 s{S_W}, {SWAP}')
        I('s_cbranch_scc0 L_DFIRST')
        place('a')
        L('L_DFIRST')
    SB_, SR_, SG0 = S_T + 4, S_T + 5, S_T + 6
    I(f's_add_u32 s{S_T}, s{S_T}, 3')
    I(f's_lshr_b32 s{S_T}, s{S_T}, 2')
    I(f's_lshr_b32 s{SB_}, s{S_T}, 4')
    I(f's_and_b32 s{SR_}, s{S_T}, 15')
    I(f's_add_u32 s{S_T+1}, s{SB_}, 1')
    I(f'v_cvt_f32_u32 v{MI}, s{S_T+1}')
    I(f'v_cvt_f32_u32 v{MI+1}, s{SB_}')
    I(f'v_rcp_f32 v{MI}, v{MI}')
    I(f'v_rcp_f32 v{MI+1}, v{MI+1}')
    I(f's_mul_i32 s{SG0}, s{SR_}, s{S_T+1}')
    I(f's_lshl_b32 s{SG0}, s{SG0}, 2')
    I(f'v_lshrrev_b32 v{GS}, 5, v{GS}')
    I(f'v_mul_f32 v{MI}, 0x47800000, v{MI}')
    I(f'v_mul_f32 v{MI+1}, 0x47800000, v{MI+1}')
    I(f'v_lshrrev_b32 v{NG}, 5, v{NG}')
    I(f'v_cvt_u32_f32 v{MI}, v{MI}')
    I(f'v_cvt_u32_f32 v{MI+1}, v{MI+1}')
    I(f's_cmp_lt_u32 s{S_W}, s{SR_}')
    I(f's_cselect_b32 s{S_L}, s{S_T+1}, s{SB_}')
    I(f'v_add_u32 v{MI}, 2, v{MI}')
    I(f'v_add_u32 v{MI+1}, 2, v{MI+1}')
    I(f's_min_u32 s{S_T}, s{S_W}, s{SR_}')
    I(f's_mul_i32 s{S_T+3}, s{S_W}, s{SB_}')
    I(f's_add_u32 s{S_T+3}, s{S_T+3}, s{S_T}')
    I(f's_sub_u32 s{S_T+1}, 0, s{S_T+1}')
    I(f's_sub_u32 s{SB_}, 0, s{SB_}')
    I(f's_lshl_b32 s{SR_}, s{SR_}, 2')
    D0, D1, D2, D3, NR = 96, 97, 98, 99, 100
    I(f'v_lshlrev_b32 v{NR}, 8, v{V_LANE}')
    I(f'v_add_u32 v{NR+1}, {ACCN}, v{NR}')
    I(f's_mov_b32 s{S_T}, s{S_W}')
    L('L_DLOOP')
    I(f'v_cmp_lt_u32 vcc, s{S_T}, v{NG}')
    I('s_and_b64 exec, exec, vcc')
    I('s_cbranch_execz L_DEND')
    I(f'v_add_u32 v{D0}, s{S_T}, v{GS}')
    I(f'v_subrev_u32 v{D1}, s{SG0}, v{D0}')
    I(f'v_cmp_gt_u32 vcc, s{SG0}, v{D0}')
    I(f'v_mul_u32_u24 v{D2}, v{D0}, v{MI}')
    I(f'v_mul_u32_u24 v{D3}, v{D1}, v{MI+1}')
    I(f'v_lshrrev_b32 v{D2}, 16, v{D2}')
    I(f'v_lshrrev_b32 v{D3}, 16, v{D3}')
    I(f'v_mad_i32_i24 v{D0}, v{D2}, s{S_T+1}, v{D0}')
    I(f'v_mad_i32_i24 v{D1}, v{D3}, s{SB_}, v{D1}')
    I(f'v_add_u32 v{D3}, s{SR_}, v{D3}')
    I(f'v_cndmask_b32 v{D0}, v{D1}, v{D0}, vcc')
    I(f'v_cndmask_b32 v{D2}, v{D3}, v{D2}, vcc')
    I(f'v_cmp_le_u32 vcc, s{S_T}, v{D0}')
    I(f'v_lshl_add_u32 v{D0}, v{D0}, 6, v{D2}')
    I(f'v_lshlrev_b32 v{D1}, 8, v{D2}')
    I(f'v_lshlrev_b32 v{D0}, 2, v{D0}')
    I(f'v_add_u32 v{D1}, {EXTRA}, v{D1}')
    I(f'v_add_u32 v{D3}, {DESCA}, v{D0}')
    I(f'v_cndmask_b32 v{D1}, v{D1}, v{NR+1}, vcc')
    I(f'ds_write_b32 v{D0}, v{NR} offset:{DESCP}')
    I(f'ds_write_b32 v{D3}, v{D1}')
    I(f's_add_u32 s{S_T+7}, s{S_T}, 1')
    I(f'v_cmp_eq_u32 vcc, s{S_T+7}, v{NG}')
    I(f's_and_saveexec_b64 {sp(S_EX)}, vcc')
    I(f'ds_write_b32 v{X+8}, v{D2} offset:{NINFO+256}')
    I(f's_mov_b64 exec, {sp(S_EX)}')
    I(f's_cmp_lg_u32 s{S_T}, 0')
    I('s_cbranch_scc1 L_DNF')
    I(f'ds_write_b32 v{X+8}, v{D2} offset:{NINFO}')
    L('L_DNF')
    I(f's_add_u32 s{S_T}, s{S_T}, 16')
    I('s_branch L_DLOOP')
    L('L_DEND')
    I('s_mov_b64 exec, -1')
    I(f's_lshl_b32 s{S_T}, s{S_T+3}, 7')
    I(f's_lshl_b32 s{S_T+1}, s{S_L}, 5')
    I(f'v_mov_b32 v{D0}, s{S_T}')
    I(f'v_mad_u32_u24 v{V_PS0}, v{V_PS1}, s{S_T+1}, v{D0}')
    I(f'v_add_u32 v{D0}, v{D0}, v{D0}')
    I(f'v_add_u32 v{V_PS1}, s{S_T+1}, v{V_PS0}')
    I(f'v_add_u32 v{V_PE}, v{V_PE}, v{D0}')
    I(f's_lshl_b32 s{S_T+1}, s{S_L}, 6')
    I(f'v_mad_u32_u24 v{V_PE}, v{V_VAP}, s{S_T+1}, v{V_PE}')
    if opt('safe', 0):
        I(f's_min_u32 s{S_L}, s{S_L}, 9')
        I(f's_mov_b32 s{S_MORE}, 0')
    I(f's_mov_b32 s{S_CNT}, s{S_L}')
    if SWAP:
        I(f's_bitcmp1_b32 s{S_W}, {SWAP}')
        I('s_cbranch_scc1 L_PDONE')
    if PROF == 5:
        stamp(21)
    place('b')
    L('L_PDONE')
    stamp(13)
    I('s_waitcnt lgkmcnt(0)')
    I('s_barrier')
    stamp(14)
    I(f's_cmp_eq_u32 s{S_L}, 0')
    I('s_cbranch_scc1 L_FOLD')
    lg = Lg()
    FP = opt('fp', 0)
    if FP:
        for lvl in (3, 2, 1):
            I(f's_cmp_lt_u32 s{S_W}, {4 * (4 - lvl)}')
            I(f's_cbranch_scc0 L_FP{lvl}')
            I(f's_setprio {lvl}')
            I('s_branch L_FPD')
            L(f'L_FP{lvl}')
        L('L_FPD')
    s_reads(lg, 0)
    lg.op('dP', f'ds_read_b64 {p(V_VAP)}, v{V_PD}')
    lg.op('dA', f'ds_read_b64 {p(V_VAA[0])}, v{V_PD} offset:{DESCA-DESCP}')
    lg.op('e', f'ds_read_b64 {p(A5)}, v{V_PE}')
    lg.need('S0', 'S1', 'S2', 'S3')
    s_safe()
    STG_ = [int(x) for x in opt('stag', '0,0,0').split(',')]
    for gi, d in enumerate(STG_):
        if d:
            I(f's_cmp_ge_u32 s{S_W}, {4 * (gi + 1)}')
            I(f's_cbranch_scc0 L_ST{gi}')
            I(f's_sleep {d}')
            L(f'L_ST{gi}')
    for n in range(2):
        for i in range(16):
            I(gload(n, i))
        if n == 0 and FP == 2:
            I('s_setprio 0')
    s_reads(lg, 1)
    I(f'v_mov_b32 v{V_C8P}, v{V_CH8}')
    I(f'v_mov_b32 v{V_C8P+1}, v{V_CH8}')
    I(f'v_mov_b32 v{V_CPP}, v{V_CHP}')
    I(f'v_mov_b32 v{V_CPP+1}, v{V_CHP}')
    if M8:
        I(f'v_mov_b32 v{V_SCP}, 0x{f2u(2.0**KH):x}')
        I(f'v_mov_b32 v{V_SCP+1}, 0x{f2u(2.0**KH):x}')
    I(f's_mov_b32 s{S_BP0}, 64')
    I(f's_mov_b32 s{S_BP0+1}, 64')
    I(f's_mov_b32 s{S_BP1}, 128')
    I(f's_mov_b32 s{S_BP1+1}, 512')
    lg.need('dP', 'dA')
    va_add(V_VAP, V_VAA[0])
    lg.op('P0a', f'ds_read_b32 v{B5[0]+2}, v{V_VAP}')
    lg.op('P0b', f'ds_read_b32 v{B5[0]+3}, v{V_VAP+1}')
    lg.op('P1a', f'ds_read_b32 v{B5[1]+2}, v{V_VAP} offset:4')
    lg.op('P1b', f'ds_read_b32 v{B5[1]+3}, v{V_VAP+1} offset:4')
    I(f's_cmp_eq_u32 s{S_CNT}, 1')
    I(f's_cselect_b64 {sp(S_LDX)}, 0, {LDXV}')
    I('s_waitcnt lgkmcnt(0)')
    lg.q = []
    if opt('prio', 3):
        I('s_setprio 3')
    stamp(15)
    rstamp(28)
    half(lg, 0, 0, 0, False)
    if PROF == 4:
        stamp(19)
        lg.q = []
    state0 = list(lg.q)
    def step(par, uo):
        prio(f'm{par}', 1)
        half(lg, 1, par, uo)
        if PROF == 4:
            I('s_memtime s[98:99]')
            I(f's_sub_u32 s92, s{S_L}, s{S_CNT}')
            I(f's_add_u32 m0, s92, 20')
            I('s_waitcnt lgkmcnt(0)')
            I(f'v_writelane_b32 v{V_PROF}, s98, m0')
        I(f's_sub_u32 s{S_CNT}, s{S_CNT}, 1')
        I(f's_cmp_eq_u32 s{S_CNT}, 0')
        I(f's_cbranch_scc1 L_FIN{par}')
        I(f's_cmp_eq_u32 s{S_CNT}, 1')
        I(f's_cselect_b64 {sp(S_LDX)}, 0, {LDXV}')
        prio(f'{par}')
        half(lg, 0, par ^ 1, uo + 1)
    def loop_body():
        step(0, 0)
        step(1, 1)
        I(f'v_lshl_add_u64 {p(V_PS0)}, {p(V_PS0)}, 0, {sp(S_BP0)}')
        I(f'v_lshl_add_u64 {p(V_PE)}, {p(V_PE)}, 0, {sp(S_BP1)}')
        I('s_branch L_LOOP')
    mark = len(out)
    loop_body()
    del out[mark:]
    qb = list(lg.q)
    n = min(len(qb), len(state0))
    assert PROF == 4 or qb[len(qb)-n:] == state0[len(state0)-n:], (state0, qb)
    lg.q = list(qb if len(qb) >= len(state0) else state0)
    e('.p2align 3')
    L('L_LOOP')
    mark = len(out)
    loop_body()
    drop = opt('drop', '')
    if drop:
        body = out[mark:]
        keep = []
        for l in body:
            t = l.strip()
            if 'v' in drop and (t.startswith('buffer_load') or t.startswith('s_mov_b64 exec') or 'vmcnt' in t):
                continue
            if 'l' in drop and (t.startswith('ds_') or 'lgkmcnt' in t):
                continue
            if 'm' in drop and t.startswith('v_mfma'):
                continue
            if 'n' in drop and t.startswith('s_nop'):
                continue
            keep.append(l)
        out[mark:] = keep
    assert lg.q == qb, (lg.q, qb)
    print('loop entry queue', state0, 'back edge queue', qb, file=sys.stderr)
    for pr in range(2):
        L(f'L_FIN{pr}')
        if M8:
            I(f'v_pk_mul_f32 {p(V_T01N)}, {p(V_T01N)}, {p(V_T23D)}')
            I(f'v_pk_mul_f32 {p(V_T23D)}, {p(V_T01D)}, {p(V_T23D)}')
            I(f'v_pk_fma_f32 {p(V_T01N)}, {p(V_T23N)}, {p(V_T01D)}, {p(V_T01N)}')
            I(f'v_rcp_f32 v{V_T23D}, v{V_T23D}')
            I(f'v_rcp_f32 v{V_T23D+1}, v{V_T23D+1}')
            I('s_waitcnt lgkmcnt(0)')
            I(f'v_pk_fma_f32 {p(V_MB)}, {p(V_T01N)}, {p(V_T23D)}, {p(V_MB)}')
        else:
            for r_ in (V_T01D, V_T01D + 1, V_T23D, V_T23D + 1):
                I(f'v_rcp_f32 v{r_}, v{r_}')
            I('s_waitcnt lgkmcnt(0)')
            I(f'v_pk_fma_f32 {p(V_MB)}, {p(V_T01N)}, {p(V_T01D)}, {p(V_MB)}')
            I(f'v_pk_fma_f32 {p(V_MB)}, {p(V_T23N)}, {p(V_T23D)}, {p(V_MB)}')
        acc_write(Lg(), V_VAA[pr])
        if pr == 0:
            I('s_branch L_FOLD')
    L('L_FOLD')
    stamp(16)
    FL = opt('fl', 0)
    I(f'v_lshrrev_b32 v{X}, 4, v{V_TID}')
    I(f'v_and_b32 v{X+1}, 15, v{V_TID}')
    if FL:
        I(f'v_lshlrev_b32 v{X+6}, 3, v{X+1}')
        I(f'v_lshrrev_b32 v{X+2}, 3, v{X+1}')
        I(f'v_and_b32 v{X+1}, 7, v{X+1}')
        I(f'v_lshlrev_b32 v{X+1}, 5, v{X+1}')
        I(f'v_lshl_add_u32 v{X+1}, v{X+2}, 2, v{X+1}')
    else:
        I(f'v_lshlrev_b32 v{X+6}, 2, v{X+1}')
        I(f'v_lshlrev_b32 v{X+1}, 4, v{X+1}')
    I(f'v_lshl_add_u32 v{X+2}, v{X}, 8, v{X+1}')
    I(f'v_add_u32 v{X+2}, {ACCN}, v{X+2}')
    I(f'v_add_u32 v{X+1}, {EXTRA}, v{X+1}')
    def rd4(dst, ad):
        if FL:
            I(f'ds_read2_b32 v[{dst}:{dst+1}], v{ad} offset0:0 offset1:2')
            I(f'ds_read2_b32 v[{dst+2}:{dst+3}], v{ad} offset0:4 offset1:6')
        else:
            I(f'ds_read_b128 v[{dst}:{dst+3}], v{ad}')
    I(f'v_lshlrev_b32 v{X+3}, 2, v{X}')
    I(f's_mul_i32 s{S_T+4}, s3, {NB*128}')
    I(f'v_lshl_add_u32 v{X+6}, v{X}, 7, v{X+6}')
    I(f'v_add_u32 v{X+6}, s{S_T+4}, v{X+6}')
    I(f'v_mov_b32 v{X+7}, 0')
    I(f'ds_read_b32 v{X+4}, v{X+3} offset:{NINFO}')
    I(f'ds_read_b32 v{X+5}, v{X+3} offset:{NINFO+256}')
    I(f's_mov_b32 s{S_T+2}, 0x{f2u(2.0**-(SV+KH)):x}')
    I(f's_mov_b32 s{S_T+3}, 0x{f2u(-LOG2E * 2.0**-(SV+KH)):x}')
    I(f'v_cmp_gt_u32 vcc, {NB*16}, v{V_TID}')
    I('s_waitcnt vmcnt(0) lgkmcnt(0)')
    I('s_barrier')
    stamp(17)
    rstamp(29)
    if PROF:
        I(f'v_writelane_b32 v{V_PROF}, s{S_L}, 27')
    I(f's_and_saveexec_b64 {sp(S_EX)}, vcc')
    I('s_cbranch_execz L_FDONE')
    rd4(64, X + 2)
    I(f's_mov_b64 {sp(S_T)}, exec')
    L('L_FLOOP')
    I(f'v_cmp_lt_u32 vcc, v{X+4}, v{X+5}')
    I('s_and_b64 exec, exec, vcc')
    I('s_cbranch_execz L_FLEND')
    I(f'v_add_u32 v{X+4}, 1, v{X+4}')
    I(f'v_lshl_add_u32 v{X+7}, v{X+4}, 8, v{X+1}')
    rd4(72, X + 7)
    I('s_waitcnt lgkmcnt(0)')
    for k in range(4):
        I(f'v_add_f32 v{64+k}, v{64+k}, v{72+k}')
    I('s_branch L_FLOOP')
    L('L_FLEND')
    I(f's_mov_b64 exec, {sp(S_T)}')
    I('s_waitcnt lgkmcnt(0)')
    I(f's_cmp_lg_u32 s{S_MORE}, 0')
    I('s_cbranch_scc1 L_WB')
    for k in range(4):
        I(f'v_mul_f32 v{72+k}, s{S_T+3}, v{64+k}')
    for k in range(4):
        I(f'v_exp_f32 v{72+k}, v{72+k}')
    for k in range(4):
        I(f'v_mul_f32 v{64+k}, s{S_T+2}, v{64+k}')
    for k in range(4):
        I(f'v_add_f32 v{72+k}, 1.0, v{72+k}')
    for k in range(4):
        I(f'v_rcp_f32 v{72+k}, v{72+k}')
    I('s_nop 0')
    for k in range(4):
        I(f'v_mul_f32 v{64+k}, v{64+k}, v{72+k}')
    if FL:
        I('v_cvt_pk_bf16_f32 v80, v64, v65')
        I('v_cvt_pk_bf16_f32 v81, v66, v67')
        I(f'buffer_store_dwordx2 v[80:81], v{X+6}, {sr4(S_OUT)}, 0 offen' + OSC)
    else:
        I('v_cvt_pk_bf16_f32 v80, v64, v66')
        I('v_cvt_pk_bf16_f32 v81, v65, v67')
        I(f'buffer_store_dword v80, v{X+6}, {sr4(S_OUT)}, 0 offen' + OSC)
        I(f'buffer_store_dword v81, v{X+6}, {sr4(S_OUT)}, 0 offen offset:64' + OSC)
    stamp(18)
    prof_store()
    diag_end()
    I('s_endpgm')
    L('L_WB')
    if FL:
        I(f'ds_write2_b32 v{X+2}, v64, v65 offset0:0 offset1:2')
        I(f'ds_write2_b32 v{X+2}, v66, v67 offset0:4 offset1:6')
    else:
        I(f'ds_write_b128 v{X+2}, v[64:67]')
    L('L_FDONE')
    I('s_mov_b64 exec, -1')
    I(f's_cmp_eq_u32 s{S_MORE}, 0')
    I('s_cbranch_scc1 L_QUIT')
    I(f's_add_u32 s{S_JB}, s{S_JB}, s{S_WID}')
    I('s_branch L_REFILL')
    L('L_OVERFLOW')
    I(f's_mov_b32 s{S_WID}, 64')
    L('L_REFILL')
    I('s_waitcnt vmcnt(0) lgkmcnt(0)')
    I('s_barrier')
    fill_zero()
    fill_words()
    ptr_consts()
    I('s_waitcnt lgkmcnt(0)')
    I('s_barrier')
    I('s_branch L_PASS')
    L('L_QUIT')
    prof_store()
    L('L_END')
    I('s_endpgm')

hdr = open('standalone__edge_featured_mpnn_egc__graph.s.ref').read().split('\n')
for line in hdr:
    if line.startswith('; Override'):
        break
    e(line)
e(f'; @launch grid=({NWG},1,1) block=(1024,1,1) lds={LDS_BYTES}')
e('.amdgcn_target "amdgcn-amd-amdhsa--gfx950"')
e('.text')
gen()
e('.section .rodata,"a"')
e('.p2align 6')
e(f'.amdhsa_kernel {KNAME}')
e('  .amdhsa_next_free_vgpr 128')
e('  .amdhsa_next_free_sgpr 102')
e('  .amdhsa_accum_offset 128')
e('  .amdhsa_group_segment_fixed_size 0')
e('  .amdhsa_kernarg_size 80')
e('  .amdhsa_user_sgpr_count 2')
e('  .amdhsa_user_sgpr_kernarg_segment_ptr 1')
e('  .amdhsa_system_sgpr_workgroup_id_x 1')
e('  .amdhsa_float_denorm_mode_32 3')
e('.end_amdhsa_kernel')
open(sys.argv[1], 'w').write('\n'.join(x for x in out if x is not None) + '\n')
```

```python
import sys, struct

OPT = dict(a.split('=') for a in sys.argv[2:] if '=' in a)
def opt(name, default):
    return type(default)(OPT.get(name, default))

KNAME = 'standalone__edge_featured_mpnn_egc__graph_kernel'
N_NODES = 12500
E_EDGES = 800000
NB = 49
NWG = 256
CH = 3136
WS_RW = 0
WS_RE = 0x00400000
CAP = CH + 256
WS_TAB = 0x00B00000
WS_NT = 0x00C00000
WS_PROF = 0x01000000
M8 = opt('m8', 0)
if M8:
    KH, KEXP, SV = 13, 26, 0
else:
    KH, KEXP, SV = 31, 31, 30
LOG2E = 1.4426950408889634
SC = opt('sc', 'sc1')
SC = (' ' + SC.replace('+', ' ')) if SC != 'none' else ''
LSC = opt('lsc', 'sc1')
LSC = (' ' + LSC.replace('+', ' ')) if LSC != 'none' else ''
GSC = opt('gsc', 'sc1')
GSC = (' ' + GSC.replace('+', ' ')) if GSC != 'none' else ''
ELD = opt('eld', 'none')
ELD = (' ' + ELD.replace('+', ' ')) if ELD != 'none' else ''

def f2u(x):
    return struct.unpack('<I', struct.pack('<f', x))[0]

out = []
def e(s=''):
    out.append(s)
def I(s):
    out.append('    ' + s)
def L(name):
    out.append(name + ':')
def vr(a, n):
    return f'v[{a}:{a+n-1}]' if n > 1 else f'v{a}'
def sr4(a):
    return f's[{a}:{a+3}]'
def sp(a):
    return f's[{a}:{a+1}]'
def p(r):
    return f'v[{r}:{r+1}]'

def srd(d, lo, hi, nrec):
    I(f's_mov_b32 s{d}, s{lo}')
    I(f's_mov_b32 s{d+1}, s{hi}')
    I(f's_mov_b32 s{d+2}, {nrec}')
    I(f's_mov_b32 s{d+3}, 0x00020000')

def srd_off(d, lo, hi, off, nrec):
    I(f's_add_u32 s{d}, s{lo}, {off}')
    I(f's_addc_u32 s{d+1}, s{hi}, 0')
    I(f's_mov_b32 s{d+2}, {nrec}')
    I(f's_mov_b32 s{d+3}, 0x00020000')

def wave_scan(v):
    for sh in (1, 2, 4, 8):
        I('s_nop 1')
        I(f'v_add_u32_dpp v{v}, v{v}, v{v} row_shr:{sh} row_mask:0xf bank_mask:0xf')
    I('s_nop 1')
    I(f'v_add_u32_dpp v{v}, v{v}, v{v} row_bcast:15 row_mask:0xa bank_mask:0xf')
    I('s_nop 1')
    I(f'v_add_u32_dpp v{v}, v{v}, v{v} row_bcast:31 row_mask:0xc bank_mask:0xf')
    I('s_nop 1')

LS = 0
ZR = 18688
LE = 18688
CNT = 56064
MISC = 56320
BASET = 56576
NINFO = 56832
HIST = 57344
HBASE = 58368
DESCP = 59392
EXTRA = 67840
DESCA = 84224
PT = 86784
ACCN = 99328
WRAW = 111872
WG_, WV_, WU_ = WRAW, WRAW + 17408, WRAW + 25600
XOWN = WRAW + 33792
LDS_BYTES = XOWN + 8192
STGW = 0
STGE = CAP * 4
NTI = EXTRA
MAXG = 576
assert STGE + CAP * 8 <= CNT

V_TID, V_LANE = 0, 1
V_MA, V_MB = 2, 4
V_VAA = (6, 8)
V_VAP = 10
V_PS0, V_PS1, V_PE, V_PD, V_CH8, V_CHP = 12, 13, 14, 15, 16, 17
V_PROF = 18
V_TAB = 20
V_J4, V_CB4 = 24, 25
V_X = 26
V_T01D, V_T01N, V_T23D, V_T23N = 40, 42, 44, 46
B5 = (48, 52)
A5 = 56
V_TT = (60, 62)
G = (64, 80)
Z = 96
S = 112

S_XS, S_WS, S_DST, S_SRC, S_EA, S_RW, S_RE, S_TAB, S_NTS, S_NTG, S_OUT = 12, 16, 20, 24, 28, 32, 36, 40, 44, 48, 52
S_MASK = 56
S_W, S_L, S_CNT, S_JB, S_WID, S_MORE = 72, 73, 74, 75, 76, 77
S_C = 78
S_EX = 80
S_LDX = 82
S_T = 84
S_WSP = 94
S_DBG = 96
S_TAG, S_TAG2 = 100, 101
TAGM = 0xC003C003
TAGL = MISC + 64

NT2 = 2 if opt('touch', 0) else 0
LDXV = 0 if opt('noload', 0) else -1
NPFM = opt('npf', 4)
NPF = {0: 0, 1: 7, 2: 7, 3: 2, 4: 1, 5: 1}[NPFM]
NPF1 = NPF if NPFM in (1, 5) else 0
WSB = opt('wsb', 0) << 20
TCH = 4 if opt('touch', 0) else 0
T1 = opt('t1', 0)
OSC = opt('osc', 'nt')
OSC = (' ' + OSC.replace('+', ' ')) if OSC != 'none' else ''
KREP = opt('krep', 1)
assert KREP == 1
CM = opt('cm', 1)
RSTEP = 64 if CM else 8
PROF = opt('prof', 0)
DIAG = opt('diag', -1)
def diag_end():
    if DIAG < 0:
        return
    I('s_memrealtime s[98:99]')
    I('s_waitcnt lgkmcnt(0)')
    I('v_readlane_b32 s92, v18, 1')
    I('v_readlane_b32 s93, v18, 0')
    I('s_nop 3')
    I('s_sub_u32 s92, s92, s93')
    I('s_lshl_b32 s92, s92, 2')
    I('s_mov_b32 s93, s98')
    lbl = f'L_DG{len(out)}'
    L(lbl)
    I('s_memrealtime s[98:99]')
    I('s_waitcnt lgkmcnt(0)')
    I('s_sub_u32 s98, s98, s93')
    I('s_cmp_lt_u32 s98, s92')
    I(f's_cbranch_scc1 {lbl}')
def stamp(i):
    if DIAG >= 0 and i in (0, DIAG):
        I('s_memrealtime s[98:99]')
        I('s_waitcnt lgkmcnt(0)')
        if i == 0:
            I('v_writelane_b32 v18, s98, 0')
        if i == DIAG:
            I('v_writelane_b32 v18, s98, 1')
    if not PROF:
        return
    I('s_memtime s[98:99]')
    I('s_waitcnt lgkmcnt(0)')
    I(f'v_writelane_b32 v{V_PROF}, s98, {i}')
def rstamp(i):
    if not PROF:
        return
    I('s_memrealtime s[98:99]')
    I('s_waitcnt lgkmcnt(0)')
    I(f'v_writelane_b32 v{V_PROF}, s98, {i}')
def prof_store():
    if not PROF:
        return
    rstamp(31)
    if PROF == 3:
        I(f's_lshl_b32 s98, s2, 4')
        I(f's_add_u32 s98, s98, s{S_W}')
        I(f's_cmp_lg_u32 s98, {opt("pwave", 80)}')
        I('s_cbranch_scc1 L_END')
        I('s_mov_b64 exec, -1')
        I(f'v_readlane_b32 s98, v{V_PROF}, 0')
        I(f'v_readlane_b32 s99, v{V_PROF}, 30')
        I(f'v_readlane_b32 s{S_T}, v{V_PROF}, 31')
        I('s_nop 3')
        I(f's_sub_u32 s{S_T}, s{S_T}, s99')
        I(f's_add_u32 s{S_T}, s{S_T}, s98')
        I(f'v_writelane_b32 v{V_PROF}, s{S_T}, 9')
        I(f'v_subrev_u32 v{V_PROF}, s98, v{V_PROF}')
        I(f'v_mbcnt_lo_u32_b32 v{V_PROF+1}, -1, 0')
        I(f'v_lshlrev_b32 v{V_PROF+1}, 2, v{V_PROF+1}')
        I(f'v_add_u32 v{V_PROF+1}, -8, v{V_PROF+1}')
        I('s_mov_b64 exec, 0x3fff8')
        I(f'global_store_dword v{V_PROF+1}, v{V_PROF}, {sp(S_DBG)}')
        return
    I('s_mov_b64 exec, 0xffffffff')
    I(f's_add_u32 s{S_T}, s{S_WSP}, 0x{WS_PROF:x}')
    I(f's_addc_u32 s{S_T+1}, s{S_WSP+1}, 0')
    I(f'v_mbcnt_lo_u32_b32 v{V_PROF+1}, -1, 0')
    I(f'v_lshlrev_b32 v{V_PROF+1}, 2, v{V_PROF+1}')
    I(f's_lshl_b32 s98, s2, 4')
    I(f's_add_u32 s98, s98, s{S_W}')
    I(f's_lshl_b32 s98, s98, 7')
    I(f'v_add_u32 v{V_PROF+1}, s98, v{V_PROF+1}')
    I(f'global_store_dword v{V_PROF+1}, v{V_PROF}, {sp(S_T)}')

class Lg:
    def __init__(self):
        self.q = []
    def op(self, tag, text):
        I(text)
        self.q.append(tag)
    def need(self, *tags):
        idx = -1
        for t in tags:
            for i in range(len(self.q) - 1, -1, -1):
                if self.q[i] == t:
                    idx = max(idx, i)
                    break
        if idx < 0:
            return
        n = len(self.q) - 1 - idx
        assert n <= 15, (tags, n)
        I(f's_waitcnt lgkmcnt({n})')
        self.q = self.q[idx + 1:]

X = V_X

def zero_range(a, nbytes, zr, ad):
    k = 0
    base = a if a + nbytes <= 65536 + 16384 and a < 65536 - 3 * 16384 else None
    off = 0
    areg = ad
    if a + ((nbytes - 1) // 16384) * 16384 > 65535:
        I(f'v_add_u32 v{X+1}, {a}, v{ad}')
        areg = X + 1
        a0 = 0
    else:
        a0 = a
    while off < nbytes:
        n = min(16384, nbytes - off)
        if n < 16384:
            I(f'v_cmp_gt_u32 vcc, {n // 16}, v{V_TID}')
            I(f's_and_saveexec_b64 {sp(S_EX)}, vcc')
        I(f'ds_write_b128 v{areg}, v[{zr}:{zr+3}] offset:{a0 + off}')
        if n < 16384:
            I(f's_mov_b64 exec, {sp(S_EX)}')
        off += n

def zregs():
    I(f'v_lshlrev_b32 v{X}, 4, v{V_TID}')
    for k in range(4):
        I(f'v_mov_b32 v{X+2+k}, 0')

def fill_desca():
    I(f'v_and_b32 v{X+6}, 15, v{V_TID}')
    I(f'v_lshlrev_b32 v{X+6}, 10, v{X+6}')
    I(f'v_add_u32 v{X+6}, {EXTRA}, v{X+6}')
    for k in range(1, 4):
        I(f'v_add_u32 v{X+6+k}, {256*k}, v{X+6}')
    I(f'v_add_u32 v{X+1}, {DESCA}, v{X}')
    I(f'v_cmp_gt_u32 vcc, 160, v{V_TID}')
    I(f's_and_saveexec_b64 {sp(S_EX)}, vcc')
    I(f'ds_write_b128 v{X+1}, v[{X+6}:{X+9}]')
    I(f's_mov_b64 exec, {sp(S_EX)}')

def fill_zero():
    zregs()
    zero_range(ZR, 65536, X + 2, X)
    fill_desca()

def fill_words():
    I(f'v_lshlrev_b32 v{X}, 4, v{V_TID}')
    I(f'v_and_b32 v{X+2}, 7, v{V_TID}')
    I(f'v_lshlrev_b32 v{X+2}, 5, v{X+2}')
    I(f'v_add_u32 v{X+2}, {N_NODES*8}, v{X+2}')
    for k in range(1, 4):
        I(f'v_add_u32 v{X+2+k}, {8*k}, v{X+2}')
    I(f'ds_write_b128 v{X}, v[{X+2}:{X+5}] offset:{LS}')
    I(f'v_cmp_gt_u32 vcc, 144, v{V_TID}')
    I(f's_and_saveexec_b64 {sp(S_EX)}, vcc')
    I(f'ds_write_b128 v{X}, v[{X+2}:{X+5}] offset:{LS+16384}')
    I(f's_mov_b64 exec, {sp(S_EX)}')

V_C8P, V_CPP, V_SCP = 26, 28, 30
S_BP0, S_BP1 = 88, 90

def tail_ops(n):
    M = (V_MA, V_MB)[n]
    return [f'v_rcp_f32 v{V_T01D}, v{V_T01D}',
            f'v_rcp_f32 v{V_T01D+1}, v{V_T01D+1}',
            f'v_pk_fma_f32 {p(M)}, {p(V_T01N)}, {p(V_T01D)}, {p(M)}']

def acc_write(lg, va):
    lg.op('Wa', f'ds_write2_b32 v{va}, v{V_MA}, v{V_MB} offset0:0 offset1:1')
    lg.op('Wb', f'ds_write2_b32 v{va+1}, v{V_MA+1}, v{V_MB+1} offset0:0 offset1:1')

def acc_read(lg, va):
    lg.op('Ra', f'ds_read_b32 v{V_MA}, v{va}')
    lg.op('Rb', f'ds_read_b32 v{V_MA+1}, v{va+1}')
    lg.op('Rc', f'ds_read_b32 v{V_MB}, v{va} offset:4')
    lg.op('Rd', f'ds_read_b32 v{V_MB+1}, v{va+1} offset:4')

def va_add(vap, vaa):
    I(f'v_lshl_add_u64 {p(vap)}, {p(vap)}, 0, {p(V_CPP)}')
    I(f'v_lshl_add_u64 {p(vaa)}, {p(vaa)}, 0, {p(V_C8P)}')

def gload(n, i):
    return f'buffer_load_dword v{G[n]+i}, v{S + (i & 1) * 8 + (i >> 1)}, {sr4(S_NTG)}, 0 offen offset:{4*n}' + GSC

def s_safe():
    if opt('safe', 0):
        for i in range(16):
            I(f'v_and_b32 v{S+i}, 0x1fff8, v{S+i}')

def s_reads(lg, uo):
    lg.op('S0', f'ds_read_b128 {vr(S,4)}, v{V_PS0} offset:{uo*32}')
    lg.op('S1', f'ds_read_b128 {vr(S+4,4)}, v{V_PS0} offset:{uo*32+16}')
    lg.op('S2', f'ds_read_b128 {vr(S+8,4)}, v{V_PS1} offset:{uo*32}')
    lg.op('S3', f'ds_read_b128 {vr(S+12,4)}, v{V_PS1} offset:{uo*32+16}')

def half(lg, n, par, uo, with_tail=True):
    g = G[n]
    I('s_waitcnt vmcnt(16)')
    if n == 0:
        lg.need('P0a', 'P0b', 'e')
    else:
        lg.need('P1a', 'P1b')
    I(f'v_mfma_f32_32x32x16_bf16 {vr(Z,16)}, {vr(A5,4)}, {vr(B5[n],4)}, {vr(g,16)}')
    t = tail_ops(n ^ 1)
    va_prev, va_cur, va_nxt = V_VAA[par ^ 1], V_VAA[par], V_VAA[par ^ 1]
    sh = [f'v_lshlrev_b32 v{g+i}, 16, v{g+i}' for i in range(16)]
    ex = [f'v_exp_f32 v{Z+i}, v{Z+i} clamp' for i in range(16)]
    l3 = [f'v_pk_mul_f32 {p(V_T01N)}, {p(V_T01N)}, {p(V_T23D)}',
          f'v_pk_mul_f32 {p(V_T23D)}, {p(V_T01D)}, {p(V_T23D)}',
          f'v_pk_fma_f32 {p(V_T01N)}, {p(V_T23N)}, {p(V_T01D)}, {p(V_T01N)}',
          f'v_rcp_f32 v{V_T23D}, v{V_T23D}',
          f'v_rcp_f32 v{V_T23D+1}, v{V_T23D+1}',
          f'v_pk_fma_f32 {p((V_MA, V_MB)[n ^ 1])}, {p(V_T01N)}, {p(V_T23D)}, {p((V_MA, V_MB)[n ^ 1])}']
    if with_tail and not M8:
        for r_ in (V_T01D, V_T01D + 1, V_T23D, V_T23D + 1):
            I(f'v_rcp_f32 v{r_}, v{r_}')
    else:
        I('s_nop 3')
    if n == 1:
        lg.op('e', f'ds_read_b64 {p(A5)}, v{V_PE} offset:{(uo+1)*64}')
        lg.op('P1a', f'ds_read_b32 v{B5[1]+2}, v{V_VAP} offset:4')
        lg.op('P1b', f'ds_read_b32 v{B5[1]+3}, v{V_VAP+1} offset:4')
    else:
        lg.op('dP', f'ds_read_b64 {p(V_VAP)}, v{V_PD} offset:{(uo+1)*256}')
        I('s_nop 1')
    for op in sh[:8]:
        I(op)
    seq = []
    if with_tail and not M8:
        Mp = p((V_MA, V_MB)[n ^ 1])
        seq = ['NEED', f'v_pk_fma_f32 {Mp}, {p(V_T01N)}, {p(V_T01D)}, {Mp}', ex[0],
               f'v_pk_fma_f32 {Mp}, {p(V_T23N)}, {p(V_T23D)}, {Mp}', sh[8], 'ACC', ex[1], sh[9]]
    elif with_tail:
        seq = [l3[0], l3[1], ex[0], l3[2], l3[3], sh[8], l3[4], ex[1], sh[9], 'NEED', l3[5], 'ACC']
    else:
        seq = [ex[0], sh[8], ex[1], sh[9], 'ACC']
    for op in seq:
        if op == 'NEED':
            lg.need('Ra', 'Rb', 'Rc', 'Rd')
        elif op == 'ACC':
            if n == 0:
                if with_tail:
                    acc_write(lg, va_prev)
                acc_read(lg, va_cur)
                lg.op('dA', f'ds_read_b64 {p(va_nxt)}, v{V_PD} offset:{(uo+1)*256 + DESCA - DESCP}')
        else:
            I(op)
    for i in range(2, 12):
        I(ex[i])
        if 8 + i < 16:
            I(sh[8 + i])
        if n == 0 and i == 11:
            lg.need('dP', 'dA')
            va_add(V_VAP, va_nxt)
            lg.op('P0a', f'ds_read_b32 v{B5[0]+2}, v{V_VAP}')
            lg.op('P0b', f'ds_read_b32 v{B5[0]+3}, v{V_VAP+1}')
    for op in ex[12:]:
        I(op)
    for i in range(0, 16, 2):
        if M8:
            I(f'v_pk_fma_f32 {p(Z+i)}, {p(Z+i)}, {p(V_SCP)}, {sp(S_C)}')
        else:
            I(f'v_pk_add_f32 {p(Z+i)}, {p(Z+i)}, {sp(S_C)}')
    def T(k): return f'v_pk_mul_f32 {p(V_TT[k&1])}, {p(g+4*k)}, {p(Z+4*k+2)}'
    def DD(k): return f'v_pk_mul_f32 {p(Z+4*k+2)}, {p(Z+4*k)}, {p(Z+4*k+2)}'
    def NN(k): return f'v_pk_fma_f32 {p(Z+4*k)}, {p(g+4*k+2)}, {p(Z+4*k)}, {p(V_TT[k&1])}'
    for k0 in (0, 2):
        for op in (T(k0), T(k0 + 1), DD(k0), DD(k0 + 1), NN(k0), NN(k0 + 1)):
            I(op)
        if n == 0 and k0 == 0:
            lg.need('S0', 'S1', 'S2', 'S3')
            s_safe()
        I(f's_mov_b64 exec, {sp(S_LDX)}')
        for i in range(4 * k0, 4 * k0 + 8):
            I(gload(n, i))
        I('s_mov_b64 exec, -1')
    if n == 1:
        s_reads(lg, uo + 2)
    I(f'v_pk_mul_f32 {p(V_T01N)}, {p(Z)}, {p(Z+6)}')
    I(f'v_pk_mul_f32 {p(V_T23N)}, {p(Z+8)}, {p(Z+14)}')
    I(f'v_pk_mul_f32 {p(V_T01D)}, {p(Z+2)}, {p(Z+6)}')
    I(f'v_pk_mul_f32 {p(V_T23D)}, {p(Z+10)}, {p(Z+14)}')
    I(f'v_pk_fma_f32 {p(V_T01N)}, {p(Z+4)}, {p(Z+2)}, {p(V_T01N)}')
    I(f'v_pk_fma_f32 {p(V_T23N)}, {p(Z+12)}, {p(Z+10)}, {p(V_T23N)}')

PRIO = {
    3: {(3, 0): 2, (2, 0): 1, (1, 0): 0},
    5: {(2, 0): 2, (1, 0): 1, (1, 1): 0},
    6: {(3, 0): 2, (1, 0): 1, (1, 1): 0},
    7: {(2, 1): 2, (1, 0): 1, (1, 1): 0},
    8: {(4, 0): 2, (2, 0): 1, (1, 1): 0},
    9: {(3, 0): 2, (2, 1): 1, (1, 1): 0},
    0: {},
}[opt('prio', 9)]
def prio(tag, phase=0):
    for (t, ph), lvl in PRIO.items():
        if ph != phase:
            continue
        I(f's_cmp_eq_u32 s{S_CNT}, {t}')
        I(f's_cbranch_scc0 L_PR{tag}_{lvl}')
        I(f's_setprio {lvl}')
        L(f'L_PR{tag}_{lvl}')

def split_hilo(a, b, t0, t1):
    I(f'v_cvt_pk_bf16_f32 v{t0}, v{a}, v{b}')
    I(f'v_lshlrev_b32 v{t1}, 16, v{t0}')
    I(f'v_and_b32 v{t0}, 0xffff0000, v{t0}')
    I(f'v_sub_f32 v{a}, v{a}, v{t1}')
    I(f'v_sub_f32 v{b}, v{b}, v{t0}')
    I(f'v_cvt_pk_bf16_f32 v{a}, v{t1}, v{a}')
    I(f'v_cvt_pk_bf16_f32 v{b}, v{t0}, v{b}')

V_AA, V_AB, V_AD, V_AP = 6, 7, 8, 9
SA, SB, SD = 80, 96, 112

def phase0_addr():
    I(f's_and_b32 s{S_T}, s{S_W}, 3')
    I(f's_lshr_b32 s{S_T+1}, s{S_W}, 2')
    I(f'v_and_b32 v12, 15, v{V_LANE}')
    I(f'v_lshrrev_b32 v13, 4, v{V_LANE}')
    I(f'v_bfe_u32 v14, v{V_LANE}, 1, 3')
    I(f'v_xor_b32 v14, v14, v13')
    I(f'v_lshlrev_b32 v14, 4, v14')
    I(f'v_lshl_or_b32 v14, v12, 7, v14')
    I(f's_lshl_b32 s{S_T+2}, s{S_T}, 11')
    I(f'v_add_u32 v{V_AA}, s{S_T+2}, v14')
    I(f'v_bfe_u32 v14, v{V_LANE}, 2, 2')
    I(f'v_lshl_add_u32 v14, v13, 3, v14')
    I(f'v_lshlrev_b32 v14, 7, v14')
    I(f'v_and_b32 v15, 3, v{V_LANE}')
    I(f'v_lshl_add_u32 v14, v15, 3, v14')
    I(f's_lshl_b32 s{S_T+2}, s{S_T+1}, 5')
    I(f'v_or_b32 v14, s{S_T+2}, v14')
    I(f'v_and_b32 v15, 24, v{V_LANE}')
    I(f'v_lshlrev_b32 v15, 2, v15')
    I(f'v_xor_b32 v14, v14, v15')
    I(f'v_add_u32 v{V_AB}, {WRAW}, v14')
    I(f's_lshl_b32 s{S_T+2}, s{S_T}, 12')
    I(f'v_lshlrev_b32 v13, 10, v13')
    I(f'v_add_u32 v13, s{S_T+2}, v13')
    I(f's_lshl_b32 s{S_T+2}, s{S_T+1}, 6')
    I(f's_add_u32 s{S_T+2}, s{S_T+2}, {NTI}')
    I(f'v_lshl_add_u32 v{V_AD}, v12, 2, v13')
    I(f'v_add_u32 v{V_AD}, s{S_T+2}, v{V_AD}')
    I(f's_and_b32 s{S_T+2}, s{S_T+1}, 1')
    I(f's_lshl_b32 s{S_T+2}, s{S_T+2}, 7')
    I(f's_lshr_b32 s{S_T+3}, s{S_T+1}, 1')
    I(f's_lshl_b32 s{S_T+3}, s{S_T+3}, 2')
    I(f's_add_u32 s{S_T+2}, s{S_T+2}, s{S_T+3}')
    I(f's_add_u32 s{S_T+2}, s{S_T+2}, {PT}')
    I(f'v_lshl_add_u32 v{V_AP}, v12, 3, v13')
    I(f'v_add_u32 v{V_AP}, s{S_T+2}, v{V_AP}')

def b_reads(dst, off):
    for sg in range(2):
        for pp in range(2):
            I(f'ds_read_b64_tr_b16 {vr(dst+4*sg+2*pp,2)}, v{V_AB} offset:{off+sg*4096+pp*512}')

def mm16(d, b):
    I(f'v_mfma_f32_16x16x32_bf16 {vr(d,4)}, {vr(SA,4)}, {vr(b,4)}, 0')
    I(f'v_mfma_f32_16x16x32_bf16 {vr(d,4)}, {vr(SA+4,4)}, {vr(b+4,4)}, {vr(d,4)}')

def phase0a():
    I(f'v_add_u32 v12, {XOWN}, v{V_AA}')
    I(f'v_xor_b32 v13, 64, v{V_AA}')
    I(f'v_add_u32 v13, {XOWN}, v13')
    I(f'ds_read_b128 {vr(SA,4)}, v12')
    I(f'ds_read_b128 {vr(SA+4,4)}, v13')
    b_reads(SB, 8192)
    b_reads(SB + 8, WV_ - WRAW)
    I(f's_mov_b32 s{S_T+4}, 0x{f2u(-LOG2E):x}')
    I(f's_mov_b32 s{S_T+6}, 0x7fffffff')
    I(f's_mov_b32 s{S_T+7}, 0xffff0000')
    I('s_waitcnt lgkmcnt(4)')
    mm16(SD, SB)
    I('s_waitcnt lgkmcnt(0)')
    mm16(SD + 4, SB + 8)
    I('s_nop 4')
    for i in range(4):
        I(f'v_mul_f32 v{SD+i}, s{S_T+4}, v{SD+i}')
    for i in range(4):
        I(f'v_and_b32 v{SD+8+i}, s{S_T+6}, v{SD+i}')
    for i in range(4):
        if SV:
            I(f'v_mul_f32 v{SD+4+i}, 0x{f2u(2.0**SV):x}, v{SD+4+i}')
        I(f'v_add_u32 v{SD+8+i}, 0x8000, v{SD+8+i}')
    I(f'v_cvt_pk_bf16_f32 v{SD+4}, v{SD+4}, v{SD+5}')
    I(f'v_cvt_pk_bf16_f32 v{SD+6}, v{SD+6}, v{SD+7}')
    I(f'v_lshrrev_b32 v{SD+5}, 16, v{SD+4}')
    I(f'v_lshrrev_b32 v{SD+7}, 16, v{SD+6}')
    I(f'v_and_b32 v{SD+4}, 0xffff, v{SD+4}')
    I(f'v_and_b32 v{SD+6}, 0xffff, v{SD+6}')
    for i in range(4):
        I(f'v_sub_u32 v{SD+8+i}, v{SD+8+i}, v{SD+4+i} clamp')
    for i in range(4):
        I(f'v_and_or_b32 v{SD+8+i}, v{SD+8+i}, s{S_T+7}, v{SD+4+i}')
    for i in range(4):
        I(f'v_bfi_b32 v{SD+i}, s{S_T+6}, v{SD+8+i}, v{SD+i}')
        I(f'ds_write_b32 v{V_AD}, v{SD+i} offset:{i*256}')

def phase0b():
    b_reads(SB, 0)
    b_reads(SB + 8, WU_ - WRAW)
    I(f's_mov_b32 s{S_T+4}, 0x{f2u(-LOG2E):x}')
    I(f's_mov_b32 s{S_T+5}, 0x{f2u(2.0**(SV+KH)):x}')
    I(f'v_mov_b32 v13, 0x{f2u(-float(KEXP)):x}')
    I(f's_and_b32 s{S_T+6}, s{S_W}, 3')
    I('s_waitcnt lgkmcnt(4)')
    mm16(SD, SB)
    I('s_waitcnt lgkmcnt(0)')
    mm16(SD + 4, SB + 8)
    I('s_nop 4')
    for i in range(4):
        I(f'v_fma_f32 v{SD+i}, v{SD+i}, s{S_T+4}, v13')
    split_hilo(SD, SD + 1, 12, 13)
    split_hilo(SD + 2, SD + 3, 12, 13)
    for i in range(4):
        I(f'v_mul_f32 v{SD+4+i}, s{S_T+5}, v{SD+4+i}')
    I(f's_cmp_eq_u32 s{S_T+6}, 3')
    I(f's_cselect_b64 exec, 0xffff, -1')
    I(f'ds_write_b32 v{V_AP}, v{SD}')
    I(f'ds_write_b32 v{V_AP}, v{SD+4} offset:{ACCN-PT}')
    I(f's_cselect_b64 exec, 0, -1')
    for i in range(1, 4):
        I(f'ds_write_b32 v{V_AP}, v{SD+i} offset:{i*256}')
        I(f'ds_write_b32 v{V_AP}, v{SD+4+i} offset:{ACCN-PT+i*256}')
    I('s_mov_b64 exec, -1')

def phase0c():
    I(f'v_bfe_u32 v13, v{V_LANE}, 2, 2')
    I(f'v_lshlrev_b32 v13, 7, v13')
    I(f'v_bfe_u32 v15, v{V_LANE}, 4, 1')
    I(f'v_lshl_add_u32 v13, v15, 5, v13')
    I(f'v_and_b32 v15, 3, v{V_LANE}')
    I(f'v_lshl_add_u32 v13, v15, 3, v13')
    I(f'v_and_b32 v15, 8, v{V_LANE}')
    I(f'v_lshlrev_b32 v15, 2, v15')
    I(f'v_xor_b32 v13, v13, v15')
    I(f'v_add_u32 v13, {WG_ + 16384}, v13')
    I(f'ds_read_b64_tr_b16 v[96:97], v13')
    I(f'ds_read_b64_tr_b16 v[98:99], v13 offset:64')
    I(f's_mov_b32 s{S_T+4}, 0x{f2u(-LOG2E):x}')
    I(f'v_cmp_lt_u32 vcc, 31, v{V_LANE}')
    I('s_waitcnt lgkmcnt(0)')
    for m in range(4):
        I(f'v_lshlrev_b32 v{100+2*m}, 16, v{96+m}')
        I(f'v_and_b32 v{101+2*m}, 0xffff0000, v{96+m}')
    for j in range(8):
        I(f'v_mul_f32 v{100+j}, s{S_T+4}, v{100+j}')
    for m in range(4):
        dst = B5[m >> 1] + (m & 1)
        I(f'v_cvt_pk_bf16_f32 v{96+m}, v{100+2*m}, v{101+2*m}')
        I(f'v_lshlrev_b32 v12, 16, v{96+m}')
        I(f'v_and_b32 v13, 0xffff0000, v{96+m}')
        I(f'v_sub_f32 v12, v{100+2*m}, v12')
        I(f'v_sub_f32 v13, v{101+2*m}, v13')
        I(f'v_cvt_pk_bf16_f32 v12, v12, v13')
        I(f'v_cndmask_b32 v{dst}, v{96+m}, v12, vcc')

def a5_const():
    I(f'v_bfe_u32 v12, v{V_LANE}, 2, 1')
    I(f'v_lshrrev_b32 v13, 5, v{V_LANE}')
    I(f'v_xor_b32 v12, v12, v13')
    I(f'v_and_b32 v13, 1, v{V_LANE}')
    I(f'v_lshl_or_b32 v12, v12, 1, v13')
    I(f'v_mov_b32 v13, 0x3f803f80')
    I(f'v_cmp_eq_u32 vcc, 0, v12')
    I(f'v_cmp_eq_u32 {sp(S_T)}, 1, v12')
    I('s_nop 1')
    I(f'v_cndmask_b32 v{A5+2}, 0, v13, vcc')
    I(f'v_cndmask_b32 v{A5+3}, 0, v13, {sp(S_T)}')

def nt_prefetch(vt, first=0, nl=None, dst=96):
    I(f's_lshr_b32 s{S_T}, s2, 4')
    I(f's_lshl_b32 s{S_T+1}, s{S_W}, 4')
    I(f's_add_u32 s{S_T}, s{S_T}, s{S_T+1}')
    I(f's_and_b32 s{S_T+1}, s{S_T}, 7')
    I(f's_lshl_b32 s{S_T+1}, s{S_T+1}, 5')
    I(f's_lshr_b32 s{S_T}, s{S_T}, 3')
    I(f's_add_u32 s{S_T}, s{S_T}, s{S_T+1}')
    if not opt('xmap', 1):
        I(f's_lshr_b32 s{S_T}, s2, 4')
        I(f's_lshl_b32 s{S_T+1}, s{S_W}, 4')
        I(f's_add_u32 s{S_T}, s{S_T}, s{S_T+1}')
    I(f's_lshl_b32 s{S_T}, s{S_T}, 1')
    I(f's_bfe_u32 s{S_T+1}, s2, 0x10003')
    I(f's_add_u32 s{S_T}, s{S_T}, s{S_T+1}')
    I(f's_mul_i32 s{S_T}, s{S_T}, {NB*128}')
    I(f's_add_u32 s{S_T}, s{S_T}, 0x{WS_NT:x}')
    srd_off(S_NTS, S_WSP, S_WSP + 1, f's{S_T}', NB * 128)
    if NPFM >= 3:
        I(f'v_lshlrev_b32 v{vt}, {7 if NPFM >= 4 else 6}, v{V_LANE}')
        I(f'v_add_u32 v{vt+1}, 4096, v{vt}')
        nl = opt("pfl", 20) if nl is None else nl
        I(f's_mov_b32 exec_lo, 0x{(((1 << nl) - 1) << first) & 0xffffffff:x}')
        I(f's_mov_b32 exec_hi, 0x{(((1 << nl) - 1) << first) >> 32:x}')
        for k in range(NPF):
            I(f'buffer_load_dword v{dst+k}, v{vt+k}, {sr4(S_NTS)}, 0 offen' + (LSC if opt('pfsc', 1) else ''))
        I('s_mov_b64 exec, -1')
        return
    I(f'v_lshlrev_b32 v{vt}, 4, v{V_LANE}')
    I(f'v_add_u32 v{vt+1}, 4096, v{vt}')
    for k in range(NPF):
        I(f'buffer_load_dwordx4 {vr(96+4*k,4)}, v{vt+(k>>2)}, {sr4(S_NTS)}, 0 offen offset:{(k&3)*1024}' + LSC)

def ptr_consts():
    I(f'v_lshrrev_b32 v{V_PS1}, 5, v{V_LANE}')
    I(f's_lshl_b32 s{S_T}, s{S_W}, 4')
    I(f's_add_u32 s{S_T}, s{S_T}, {DESCP}')
    I(f'v_lshlrev_b32 v{V_PD}, 3, v{V_PS1}')
    I(f'v_add_u32 v{V_PS1}, v{V_PS1}, v{V_PS1}')
    I(f'v_add_u32 v{V_PD}, s{S_T}, v{V_PD}')
    I(f'v_bfe_u32 v{V_VAP}, v{V_LANE}, 2, 1')
    I(f'v_and_b32 v{V_PE}, 1, v{V_LANE}')
    I(f'v_lshl_or_b32 v{V_VAP}, v{V_VAP}, 1, v{V_PE}')
    I(f'v_bfe_u32 v{V_PE}, v{V_LANE}, 3, 2')
    I(f'v_bfe_u32 v{V_PS0}, v{V_LANE}, 1, 1')
    I(f'v_lshl_or_b32 v{V_PE}, v{V_PE}, 1, v{V_PS0}')
    I(f'v_lshlrev_b32 v{V_PE}, 3, v{V_PE}')
    I(f'v_add_u32 v{V_PE}, {LE}, v{V_PE}')

def gen():
    e(f'.globl {KNAME}')
    e('.p2align 8')
    e(f'.type {KNAME},@function')
    L(KNAME)
    I(f's_cmp_ge_u32 s2, {NWG}')
    I('s_cbranch_scc1 L_END')
    I('s_load_dwordx8 s[84:91], s[0:1], 0')
    I('s_load_dwordx4 s[4:7], s[0:1], 32')
    I('s_load_dwordx4 s[8:11], s[0:1], 48')
    I('s_load_dwordx4 s[56:59], s[0:1], 64')
    if PROF:
        I(f'v_mov_b32 v{V_PROF}, 0')
    rstamp(30)
    stamp(0)
    zregs()
    zero_range(CNT, DESCP + 2560 - CNT, X + 2, X)
    I(f'v_lshlrev_b32 v{X+6}, 2, v{V_TID}')
    I(f's_mul_i32 s61, s2, {CH*4}')
    I(f's_mul_i32 s63, s2, {CH}')
    I(f's_sub_u32 s63, {E_EDGES}, s63')
    I(f's_min_u32 s63, s63, {CH}')
    I(f's_lshl_b32 s64, s63, 2')
    I(f'v_add_u32 v{X+8}, 4096, v{X+6}')
    I(f'v_add_u32 v{X+9}, 8192, v{X+6}')
    I(f'v_add_u32 v{X+10}, 12288, v{X+6}')
    I(f'v_lshrrev_b32 v{X+1}, 6, v{V_TID}')
    I(f'v_and_b32 v{V_LANE}, 63, v{V_TID}')
    I(f'v_readfirstlane_b32 s{S_W}, v{X+1}')
    I('s_and_b32 s3, s2, 7')
    I('s_lshl_b32 s3, s3, 5')
    I('s_lshr_b32 s60, s2, 3')
    I('s_add_u32 s3, s3, s60')
    if not opt('xmap', 1):
        I('s_mov_b32 s3, s2')
    I(f's_mul_i32 s62, s2, {CH*8}')
    I(f's_lshl_b32 s65, s63, 3')
    I(f'v_and_b32 v97, 0x50, v{V_TID}')
    I(f'v_lshlrev_b32 v96, 1, v97')
    I(f'v_or_b32 v97, v97, v96')
    I(f'v_and_b32 v97, 0x60, v97')
    I(f'v_xor_b32 v97, v97, v{X}')
    I(f'v_and_b32 v96, 0x20, v96')
    I(f'v_lshlrev_b32 v98, 4, v{V_LANE}')
    I(f'v_xor_b32 v96, v96, v98')
    I(f's_lshl_b32 s66, s{S_W}, 10')
    I(f'v_and_b32 v101, 0x1fff, v97')
    I(f'v_lshrrev_b32 v98, 3, v{V_TID}')
    I(f'v_bfe_u32 v99, v98, 1, 3')
    I(f'v_and_b32 v100, 7, v{V_TID}')
    I(f'v_xor_b32 v99, v99, v100')
    I(f'v_lshlrev_b32 v99, 4, v99')
    I(f'v_lshl_add_u32 v99, v98, 7, v99')
    I(f's_mul_i32 s60, s3, {NB*128}')
    I(f'v_add_u32 v99, s60, v99')
    I(f'v_add_u32 v96, 16384, v96')
    I('s_waitcnt lgkmcnt(0)')
    I(f's_or_b32 s67, s2, s{S_W}')
    I('s_cmp_lg_u32 s67, 0')
    I('s_cbranch_scc1 L_NOTAG')
    I('s_memrealtime s[68:69]')
    I(f'v_mov_b32 v{X+2}, 0')
    I('s_waitcnt lgkmcnt(0)')
    I('s_or_b32 s68, s68, 1')
    I(f'v_mov_b32 v{X+3}, s68')
    I('s_mov_b64 exec, 1')
    I(f'global_store_dword v{X+2}, v{X+3}, s[56:57] sc1')
    I('s_mov_b64 exec, -1')
    L('L_NOTAG')
    def dst_loads():
        srd_off(S_DST, 90, 91, 's61', 's64')
        for k in range(4):
            I(f'buffer_load_dword v{64+k}, v{X+6 if k == 0 else X+7+k}, {sr4(S_DST)}, 0 offen' + ELD)
    def dma_loads():
        srd(S_WS, 8, 9, 132 * 128)
        I(f's_add_u32 m0, s66, {WG_}')
        srd(S_XS, 84, 85, N_NODES * 128)
        I(f'buffer_load_dwordx4 v97, {sr4(S_WS)}, 0 offen lds')
        I(f's_cmp_lt_u32 s{S_W}, 8')
        I(f's_cselect_b32 s{S_NTS}, s6, s4')
        I(f's_cselect_b32 s{S_NTS+1}, s7, s5')
        I(f's_mov_b32 s{S_NTS+2}, {64*128}')
        I(f's_mov_b32 s{S_NTS+3}, 0x00020000')
        I(f's_add_u32 m0, s66, {WV_}')
        I('s_nop 0')
        I(f'buffer_load_dwordx4 v101, {sr4(S_NTS)}, 0 offen lds')
        I(f's_cmp_lt_u32 s{S_W}, 8')
        I('s_cbranch_scc0 L_D3B')
        I(f's_add_u32 m0, s66, {XOWN}')
        I('s_nop 0')
        I(f'buffer_load_dwordx4 v99, {sr4(S_XS)}, 0 offen lds')
        I('s_branch L_D3C')
        L('L_D3B')
        I(f's_mov_b32 m0, {WG_ + 16384}')
        I('s_nop 0')
        I(f'buffer_load_dwordx4 v96, {sr4(S_WS)}, 0 offen lds')
        L('L_D3C')
    if opt('t0', 0):
        I(f'v_and_b32 v60, 15, v{V_LANE}')
        I(f'v_lshlrev_b32 v60, 20, v60')
        I(f'v_and_b32 v61, 1, v{V_LANE}')
        I(f'v_lshlrev_b32 v61, 20, v61')
        I(f'global_load_dword v62, v60, s[58:59]')
        I(f'global_load_dword v63, v61, s[10:11]')
    ORDER = opt('order', 2)
    if ORDER == 0:
        dma_loads()
    dst_loads()
    if ORDER == 2:
        dma_loads()
    F1 = opt('f1', 1)
    if F1:
        I('s_barrier')
    srd_off(S_SRC, 88, 89, 's61', 's64')
    LATE = opt('late', 1)
    def src_load(k):
        I(f'buffer_load_dword v{68+k}, v{X+6 if k == 0 else 43+k}, {sr4(S_SRC)}, 0 offen' + ELD)
    for k in range(1, 4):
        I(f'v_mov_b32 v{43+k}, v{X+7+k}')
    for k in range(1 if LATE else 4):
        src_load(k)
    srd_off(S_EA, 86, 87, 's62', 's65')
    I(f'v_lshlrev_b32 v92, 3, v{V_TID}')
    for k in range(1, 4):
        I(f'v_add_u32 v{92+k}, {8192*k}, v92')
    def e_load(k):
        I(f'buffer_load_dwordx2 v[{72+2*k}:{73+2*k}], v{92+k}, {sr4(S_EA)}, 0 offen' + ELD)
    NEE = 1 if LATE else opt('nee', 4)
    for k in range(NEE):
        e_load(k)
    if ORDER == 1:
        dma_loads()
    I(f's_mov_b64 {sp(S_DBG)}, s[56:57]')
    I(f's_add_u32 s{S_WSP}, s58, 0x{WSB:x}')
    I(f's_addc_u32 s{S_WSP+1}, s59, 0')
    stamp(1)
    srd(S_OUT, 10, 11, N_NODES * 128)
    I(f's_mul_i32 s{S_T}, s2, {CAP*4}')
    srd_off(S_RW, S_WSP, S_WSP + 1, f's{S_T}', CAP * 4)
    I(f's_lshl_b32 s{S_T}, s{S_T}, 1')
    I(f's_add_u32 s{S_T}, s{S_T}, 0x{WS_RE:x}')
    srd_off(S_RE, S_WSP, S_WSP + 1, f's{S_T}', CAP * 8)
    I(f's_lshl_b32 s{S_T}, s2, 11')
    I(f's_add_u32 s{S_T}, s{S_T}, 0x{WS_TAB:x}')
    srd_off(S_TAB, S_WSP, S_WSP + 1, f's{S_T}', (KREP - 1) * 0x80000 + 2048)
    I(f's_mul_i32 s{S_T}, s3, {NB*256}')
    I(f's_add_u32 s{S_T}, s{S_T}, 0x{WS_NT:x}')
    srd_off(S_NTS, S_WSP, S_WSP + 1, f's{S_T}', NB * 256)
    I(f's_add_u32 s{S_NTG}, s{S_WSP}, 0x{WS_NT:x}')
    I(f's_addc_u32 s{S_NTG+1}, s{S_WSP+1}, 0')
    I(f's_or_b32 s{S_NTG+1}, s{S_NTG+1}, 0x80000000')
    I(f's_mov_b32 s{S_NTG+2}, 0x400000')
    I(f's_mov_b32 s{S_NTG+3}, 0x00c00000')
    srd_off(S_DST, S_WSP, S_WSP + 1, '0x%x' % WS_RW, NWG * CAP * 4)
    if not LATE:
        srd_off(S_SRC, S_WSP, S_WSP + 1, '0x%x' % WS_RE, NWG * CAP * 8)
    for k in range(4):
        I(f'v_add_u32 v{X+1}, {1024*k}, v{V_TID}')
        I(f'v_cmp_gt_u32 {sp(S_MASK+2*k)}, s63, v{X+1}')
    I(f's_mov_b32 s{S_C}, 0x{f2u(2.0**-KH):x}')
    I(f's_mov_b32 s{S_C+1}, 0x{f2u(2.0**-KH):x}')
    I(f's_mov_b32 s{S_JB}, 0')
    I(f's_mov_b32 s{S_WID}, 128')
    I(f'v_and_b32 v{V_J4}, 7, v{V_LANE}')
    I(f'v_lshlrev_b32 v{V_J4}, 3, v{V_J4}')
    if CM:
        I(f'v_and_b32 v{X+1}, 56, v{V_LANE}')
        I(f's_and_b32 s{S_T}, s{S_W}, 1')
        I(f's_lshl_b32 s{S_T}, s{S_T}, 7')
        I(f's_lshr_b32 s{S_T+1}, s{S_W}, 1')
        I(f's_add_u32 s{S_T}, s{S_T}, s{S_T+1}')
    else:
        I(f'v_lshrrev_b32 v{X+1}, 3, v{V_LANE}')
        I(f's_lshl_b32 s{S_T}, s{S_W}, 4')
    I(f'v_add_u32 v{X+1}, s{S_T}, v{X+1}')
    I(f'v_lshlrev_b32 v{V_TAB+2}, 11, v{X+1}')
    I(f'v_mul_u32_u24 v{V_CB4}, {CAP*4}, v{X+1}')
    I(f'v_add_u32 v{V_CB4}, v{V_CB4}, v{V_J4}')
    I(f'v_and_b32 v{V_CH8}, 31, v{V_LANE}')
    I(f'v_lshlrev_b32 v{V_CH8}, 3, v{V_CH8}')
    I(f'v_add_u32 v{V_CHP}, {PT}, v{V_CH8}')
    phase0_addr()
    a5_const()
    if not F1:
        I(f's_waitcnt vmcnt({8 + NEE if ORDER == 0 else 0})')
        I('s_barrier')
    stamp(2)
    def late_loads():
        if LATE:
            for k in range(1, 4):
                src_load(k)
        for k in range(NEE, 4):
            e_load(k)
        I(f'v_mov_b32 v12, 0')
        I(f'global_load_dword v10, v12, {sp(S_DBG)} sc1')
        if TCH:
            I(f'v_lshlrev_b32 v13, 13, v{V_LANE}')
            I(f'buffer_load_dword v60, v13, {sr4(S_RW)}, 0 offen')
            I(f'buffer_load_dword v61, v13, {sr4(S_RE)}, 0 offen')
            I(f'buffer_load_dword v62, v13, {sr4(S_TAB)}, 0 offen')
            I(f'buffer_load_dword v63, v13, {sr4(S_NTS)}, 0 offen')
        srd_off(S_EA, S_WSP, S_WSP + 1, '0x%x' % WS_TAB, KREP * 0x80000)
        if LATE:
            srd_off(S_SRC, S_WSP, S_WSP + 1, '0x%x' % WS_RE, NWG * CAP * 8)
    if not LATE:
        late_loads()
    if not F1:
        phase0a()
    I(f's_mov_b32 s{S_T}, -{NB}')
    I(f'v_mov_b32 v{X+1}, 4')
    BN, WD, RK = 28, 32, 36
    for k in range(4):
        I(f's_waitcnt vmcnt({((5 if ORDER == 0 else 8) if LATE else (12 if ORDER == 0 else 15) + TCH) - k})')
        I(f's_mov_b64 exec, {sp(S_MASK+2*k)}')
        if k == 3:
            I('s_cbranch_execz L_B1')
        I(f'v_mul_u32_u24 v{BN+k}, 21400, v{64+k}')
        I(f'v_lshrrev_b32 v{BN+k}, 20, v{BN+k}')
        I(f'v_mad_i32_i24 v{WD+k}, v{BN+k}, s{S_T}, v{64+k}')
        I(f'v_lshlrev_b32 v{BN+k}, 2, v{BN+k}')
        I(f'ds_add_rtn_u32 v{RK+k}, v{BN+k}, v{X+1} offset:{HIST}')
        I(f'v_lshlrev_b32 v{WD+k}, 26, v{WD+k}')
    L('L_B1')
    I('s_mov_b64 exec, -1')
    if LATE:
        late_loads()
    I(f'v_add_u32 v{X+1}, {NTI}, v{X}')
    stamp(3)
    I({0: 's_waitcnt lgkmcnt(0)', 1: 's_waitcnt vmcnt(1) lgkmcnt(0)', 2: f's_waitcnt vmcnt({9 + TCH}) lgkmcnt(0)'}[ORDER])
    I('s_barrier')
    stamp(4)
    if not F1:
        I(f'ds_read_b128 v[112:115], v{X+1}')
    I(f's_cmp_lg_u32 s{S_W}, 0')
    I('s_cbranch_scc1 L_NOSCAN')
    I(f'ds_read_b128 v[96:99], v{X} offset:{HIST}')
    I('s_waitcnt lgkmcnt(0)')
    for k in range(4):
        I(f'v_add_u32 v{108+k}, 4, v{96+k}')
        I(f'v_and_b32 v{108+k}, -8, v{108+k}')
    I('v_add_u32 v101, v108, v109')
    I('v_add_u32 v102, v101, v110')
    I('v_add_u32 v103, v102, v111')
    I('v_mov_b32 v104, v103')
    wave_scan(104)
    I(f'v_readlane_b32 s{S_T+4}, v104, 63')
    I('v_sub_u32 v104, v104, v103')
    I(f'v_mov_b32 v100, {MISC+8}')
    I(f'v_mov_b32 v105, s{S_T+4}')
    I('ds_write_b32 v100, v105')
    I('v_add_u32 v105, v104, v108')
    I('v_add_u32 v106, v104, v101')
    I('v_add_u32 v107, v104, v102')
    I(f'ds_write_b128 v{X}, v[104:107] offset:{HBASE}')
    for k in range(4):
        I(f'v_lshl_or_b32 v{108+k}, v{96+k}, 16, v{104+k}')
    I(f'ds_write_b128 v{X}, v[108:111] offset:{HIST}')
    L('L_NOSCAN')
    if F1:
        phase0a()
    I('s_waitcnt lgkmcnt(0)')
    if not F1:
        I(f'buffer_store_dwordx4 v[112:115], v{X}, {sr4(S_NTS)}, 0 offen' + SC)
    if T1:
        I(f's_mul_i32 s{S_T+4}, s3, {NB*128}')
        I(f'v_mov_b32 v60, s{S_T+4}')
        I(f'buffer_load_dword v61, v60, {sr4(S_OUT)}, 0 offen')
    I(f's_waitcnt vmcnt({4 + TCH + T1 if LATE else 6 - F1 + TCH + T1})')
    for k in range(4):
        I(f'v_lshl_or_b32 v{WD+k}, v{68+k}, 3, v{WD+k}')
    I('s_barrier')
    stamp(5)
    if F1:
        I(f'ds_read_b128 v[112:115], v{X+1}')
    for k in range(4):
        I(f's_mov_b64 exec, {sp(S_MASK+2*k)}')
        I(f'ds_read_b32 v{BN+k}, v{BN+k} offset:{HBASE}')
    if F1:
        I('s_mov_b64 exec, -1')
        I('s_waitcnt lgkmcnt(4)')
        I(f'buffer_store_dwordx4 v[112:115], v{X}, {sr4(S_NTS)}, 0 offen' + SC)
    I(f's_waitcnt vmcnt({1 + TCH + T1})')
    I(f'v_readfirstlane_b32 s{S_TAG}, v10')
    for k in range(4):
        I(f's_mov_b64 exec, {sp(S_MASK+2*k)}')
        if k == 3:
            I('s_cbranch_execz L_B2')
        I(f's_waitcnt lgkmcnt({3 - k + 2*k})')
        I(f'v_add_u32 v{RK+k}, v{BN+k}, v{RK+k}')
        I(f'v_add_u32 v{BN+k}, v{RK+k}, v{RK+k}')
        I(f'ds_write_b32 v{RK+k}, v{WD+k} offset:{STGW}')
        I(f'ds_write_b64 v{BN+k}, v[{72+2*k}:{73+2*k}] offset:{STGE}')
    L('L_B2')
    I('s_mov_b64 exec, -1')
    I(f'v_mov_b32 v13, {MISC+8}')
    I(f'ds_read_b32 v13, v13')
    I(f's_mov_b32 s{S_T}, 0x40000')
    L('L_TAGP')
    I(f's_cmp_lg_u32 s{S_TAG}, 0')
    I('s_cbranch_scc1 L_TAGD')
    I(f'v_mov_b32 v12, 0')
    I(f'global_load_dword v10, v12, {sp(S_DBG)} sc1')
    I('s_waitcnt vmcnt(0)')
    I(f'v_readfirstlane_b32 s{S_TAG}, v10')
    I(f's_sub_u32 s{S_T}, s{S_T}, 1')
    I('s_cbranch_scc1 L_END')
    I('s_branch L_TAGP')
    L('L_TAGD')
    I(f'v_add_u32 v{X+2}, 16384, v{X}')
    I(f'v_lshlrev_b32 v12, 3, v{V_LANE}')
    I(f's_mul_i32 s{S_TAG2}, s{S_TAG}, 0x9e3779b1')
    I(f's_and_b32 s{S_TAG2}, s{S_TAG2}, 0x{TAGM:x}')
    I('s_waitcnt lgkmcnt(0)')
    I(f'v_readfirstlane_b32 s{S_T}, v13')
    I('s_barrier')
    I(f's_add_u32 s{S_T}, s{S_T}, 127')
    I(f's_and_b32 s{S_RW+2}, s{S_T}, -128')
    I(f's_lshl_b32 s{S_RE+2}, s{S_RW+2}, 1')
    stamp(6)
    if opt('early', 0):
        I(f'ds_read_b64 v[92:93], v12 offset:{HIST}')
        I(f'ds_read_b64 v[94:95], v12 offset:{HIST+512}')
        I(f'v_lshlrev_b32 v60, 4, v{V_LANE}')
        I('s_waitcnt lgkmcnt(0)')
        for k in range(4):
            I(f'v_or_b32 v{120+2*k}, s{S_TAG2}, v{92+k}')
            I(f'v_mov_b32 v{121+2*k}, s{S_TAG}')
        I(f's_cmp_lg_u32 s{S_W}, 0')
        I('s_cbranch_scc1 L_EARLY')
        I(f'buffer_store_dwordx4 v[120:123], v60, {sr4(S_TAB)}, 0 offen' + SC)
        I(f'buffer_store_dwordx4 v[124:127], v60, {sr4(S_TAB)}, 0 offen offset:1024' + SC)
        L('L_EARLY')
    I(f'ds_read_b128 v[64:67], v{X} offset:{STGW}')
    I(f'ds_read_b128 v[68:71], v{X} offset:{STGE}')
    I(f'ds_read_b128 v[72:75], v{X} offset:{STGE+16384}')
    I(f'ds_read_b64 v[92:93], v12 offset:{HIST}')
    I(f'ds_read_b64 v[94:95], v12 offset:{HIST+512}')
    I('s_waitcnt lgkmcnt(4)')
    I(f'buffer_store_dwordx4 v[64:67], v{X}, {sr4(S_RW)}, 0 offen' + SC)
    I('s_waitcnt lgkmcnt(3)')
    I(f'buffer_store_dwordx4 v[68:71], v{X}, {sr4(S_RE)}, 0 offen' + SC)
    I('s_waitcnt lgkmcnt(2)')
    I(f'buffer_store_dwordx4 v[72:75], v{X+2}, {sr4(S_RE)}, 0 offen' + SC)
    I('s_waitcnt lgkmcnt(0)')
    for k in range(4):
        I(f'v_or_b32 v{120+2*k}, s{S_TAG2}, v{92+k}')
        I(f'v_mov_b32 v{121+2*k}, s{S_TAG}')
    PF1 = opt('pf1', 0)
    if PF1:
        nt_prefetch(12, 49 - PF1, PF1, 61)
    pre = opt('pre', 'xbc').replace('0', '')
    def piece(c):
        if c == 'x':
            zregs()
            zero_range(EXTRA, 16384, X + 2, X)
            fill_desca()
        elif c == 'b':
            phase0b()
        elif c == 'c':
            phase0c()
    for c in pre:
        piece(c)
    stamp(7)
    I(f's_lshl_b32 s{S_T+1}, s3, 3')
    I(f'v_add_u32 v76, s{S_T+1}, v{V_TAB+2}')
    I(f'v_add_u32 v77, {RSTEP*2048}, v76')
    I(f'v_lshlrev_b32 v60, 4, v{V_LANE}')
    for r in range(2):
        I(f's_mov_b64 {sp(S_MASK+2*r)}, -1')
    I(f's_waitcnt vmcnt({1 if PF1 else 0})')
    stamp(8)
    I('s_barrier')
    stamp(9)
    I(f's_cmp_lg_u32 s{S_W}, {99 if opt("early", 0) else 0}')
    I('s_cbranch_scc1 L_POLL0')
    for k in range(KREP - 1, -1, -1):
        I(f's_mov_b32 s{S_T}, 0x{k*0x80000:x}')
        I(f'buffer_store_dwordx4 v[120:123], v60, {sr4(S_TAB)}, s{S_T} offen' + SC)
        I(f'buffer_store_dwordx4 v[124:127], v60, {sr4(S_TAB)}, s{S_T} offen offset:1024' + SC)
    L('L_POLL0')
    PF2 = opt('pf2', 0)
    if PF2:
        nt_prefetch(61, 49 - PF2, PF2, 63)
    EP = opt('ep', 0)
    for r in range(2 if EP else 0):
        I(f'buffer_load_dwordx2 {p(64+2*r)}, v{76+r}, {sr4(S_EA)}, 0 offen' + LSC)
    for c in 'xbc':
        if c not in pre:
            piece(c)
    fill_words()
    zregs()
    zero_range(LE, CNT - LE, X + 2, X)
    ptr_consts()
    I(f's_mov_b32 s{S_T}, 0x40000')
    I(f's_mov_b32 s{S_T+1}, 0x{TAGM:x}')
    if opt('ps', 0):
        I(f's_sleep {opt("ps", 0)}')
    if EP:
        I('s_branch L_POLLC')
    L('L_POLL')
    for r in range(2):
        I(f's_mov_b64 exec, {sp(S_MASK+2*r)}')
        I(f'buffer_load_dwordx2 {p(64+2*r)}, v{76+r}, {sr4(S_EA)}, 0 offen' + LSC)
    L('L_POLLC')
    for r in range(2):
        I(f's_waitcnt vmcnt({1-r})')
        I(f's_mov_b64 exec, {sp(S_MASK+2*r)}')
        I(f'v_xor_b32 v{V_TAB+r}, s{S_TAG2}, v{64+2*r}')
        I(f'v_xor_b32 v{65+2*r}, s{S_TAG}, v{65+2*r}')
        I(f'v_and_or_b32 v{65+2*r}, v{V_TAB+r}, s{S_T+1}, v{65+2*r}')
        I(f'v_cmp_ne_u32 {sp(S_MASK+2*r)}, 0, v{65+2*r}')
    I(f's_or_b64 {sp(S_T+2)}, {sp(S_MASK)}, {sp(S_MASK+2)}')
    I('s_cbranch_scc0 L_POLLED')
    I(f's_sub_u32 s{S_T}, s{S_T}, 1')
    I('s_cbranch_scc1 L_END')
    if opt('sleep', 0):
        I(f's_sleep {opt("sleep", 0)}')
    I('s_branch L_POLL')
    L('L_POLLED')
    I('s_mov_b64 exec, -1')
    stamp(10)
    def RB(s_): return 64 + 8 * (s_ >> 1)
    def MK(s_): return sp(S_MASK + 2 * s_)
    AD = X
    L('L_PASS')
    I(f'v_add_u32 v{X+10}, s{S_JB}, v{V_CB4}')
    I(f'v_add_u32 v{X+8}, s{S_JB}, v{V_J4}')
    SDW = 'src0_sel:DWORD src1_sel:WORD_1'
    for r in range(2):
        I(f'v_add_u32_sdwa v{X+r}, v{V_TAB+r}, v{X+10} dst_sel:DWORD dst_unused:UNUSED_PAD src0_sel:WORD_0 src1_sel:DWORD')
        I(f'v_cmp_lt_u32_sdwa {MK(2*r)}, v{X+8}, v{V_TAB+r} {SDW}')
        if r:
            I(f'v_add_u32 v{X+r}, {RSTEP*CAP*4}, v{X+r}')
        I(f'v_add_u32 v{X+2+r}, v{X+r}, v{X+r}')
        I(f's_mov_b64 exec, {MK(2*r)}')
        I(f'buffer_load_dwordx2 {p(RB(2*r)+4)}, v{X+r}, {sr4(S_DST)}, 0 offen' + LSC)
        I(f'buffer_load_dwordx4 {vr(RB(2*r),4)}, v{X+2+r}, {sr4(S_SRC)}, 0 offen' + LSC)
        I('s_mov_b64 exec, -1')
    I(f'v_add_u32 v{X+9}, s{S_WID}, v{X+8}')
    I(f'v_add_u32 v{X+10}, 4, v{X+8}')
    I(f's_cmp_eq_u32 s{S_WID}, 128')
    I(f's_cselect_b32 s{S_T}, 64, 0x10000')
    I(f'v_add_u32 v{X+8}, s{S_T}, v{X+8}')
    for r in range(2):
        I(f'v_cmp_lt_u32_sdwa {MK(4+2*r)}, v{X+8}, v{V_TAB+r} {SDW}')
        I(f'v_cmp_lt_u32_sdwa {MK(2*r+1)}, v{X+10}, v{V_TAB+r} {SDW}')
    I(f'v_add_u32 v{X+8}, 4, v{X+8}')
    for r in range(2):
        I(f's_mov_b64 exec, {MK(4+2*r)}')
        I(f'buffer_load_dwordx2 {p(RB(4+2*r)+4)}, v{X+r}, {sr4(S_DST)}, 0 offen offset:64' + LSC)
        I(f'buffer_load_dwordx4 {vr(RB(4+2*r),4)}, v{X+2+r}, {sr4(S_SRC)}, 0 offen offset:128' + LSC)
    I('s_mov_b64 exec, -1')
    for r in range(2):
        I(f'v_cmp_lt_u32_sdwa {MK(5+2*r)}, v{X+8}, v{V_TAB+r} {SDW}')
    I(f'v_cmp_lt_u32_sdwa vcc, v{X+9}, v{V_TAB} {SDW}')
    I(f'v_cmp_lt_u32_sdwa {sp(S_T)}, v{X+9}, v{V_TAB+1} {SDW}')
    I(f'v_mov_b32 v{X+8}, 4')
    I(f's_or_b64 vcc, vcc, {sp(S_T)}')
    I(f's_cbranch_scc0 L_NOMORE')
    I(f'v_mov_b32 v{X+9}, {MISC}')
    I(f'ds_write_b32 v{X+9}, v{X+8}')
    L('L_NOMORE')
    stamp(11)
    for s_ in range(8):
        if s_ >= 4:
            I(f's_mov_b64 exec, {MK(s_)}')
            I(f's_cbranch_execz L_C{s_}')
        if s_ % 2 == 0:
            I(f's_waitcnt vmcnt({7 - s_})')
        if s_ < 4:
            I(f's_mov_b64 exec, {MK(s_)}')
        I(f'v_lshrrev_b32 v{AD+s_}, 24, v{RB(s_)+4+(s_&1)}')
        if opt('safe', 0):
            I(f'v_and_b32 v{AD+s_}, 0xfc, v{AD+s_}')
        I(f'ds_add_rtn_u32 v{RB(s_)+6+(s_&1)}, v{AD+s_}, v{X+8} offset:{CNT}')
        if s_ >= 4:
            L(f'L_C{s_}')
    I('s_mov_b64 exec, -1')
    I(f'v_lshlrev_b32 v{X+8}, 2, v{V_LANE}')
    I(f'v_mov_b32 v{X+9}, {MISC}')
    I(f's_mov_b32 s{S_T+2}, 0x1fff8')
    I('s_waitcnt lgkmcnt(0)')
    I('s_barrier')
    stamp(12)
    if NPFM in (2, 3, 4):
        nt_prefetch(60, dst=62)
        I(f's_mov_b32 s{S_T+2}, 0x1fff8')
    NG, GS, MI = X + 10, X + 11, X + 12
    I(f'ds_read_b32 v{NG}, v{X+8} offset:{CNT}')
    I(f'ds_read_b32 v{X+9}, v{X+9}')
    I('s_waitcnt lgkmcnt(1)')
    I(f'v_add_u32 v{NG}, 28, v{NG}')
    I(f'v_and_b32 v{NG}, 0xffffffe0, v{NG}')
    I(f'v_mov_b32 v{GS}, v{NG}')
    wave_scan(GS)
    I(f'v_readlane_b32 s{S_T}, v{GS}, 63')
    I(f'v_sub_u32 v{GS}, v{GS}, v{NG}')
    if PROF == 5:
        stamp(19)
    I(f'ds_write_b32 v{X+8}, v{GS} offset:{BASET}')
    for s_ in range(8):
        I(f's_mov_b64 exec, {MK(s_)}')
        I(f'ds_read_b32 v{AD+s_}, v{AD+s_} offset:{BASET}')
    I('s_mov_b64 exec, -1')
    I(f'v_readfirstlane_b32 s{S_MORE}, v{X+9}')
    out.insert(len(out) - 1, '    s_waitcnt lgkmcnt(9)')
    I(f's_lshr_b32 s{S_T}, s{S_T}, 5')
    I(f's_cmp_eq_u32 s{S_WID}, 128')
    I(f's_cselect_b32 s{S_T+1}, {MAXG}, -1')
    I(f's_cmp_gt_u32 s{S_T}, s{S_T+1}')
    I('s_cbranch_scc1 L_OVERFLOW')
    def place(tag):
        I(f's_waitcnt vmcnt({NPF}) lgkmcnt(0)')
        for s_ in range(8):
            wd, rk, ee = RB(s_) + 4 + (s_ & 1), RB(s_) + 6 + (s_ & 1), RB(s_) + 2 * (s_ & 1)
            I(f's_mov_b64 exec, {MK(s_)}')
            if s_ >= 4:
                I(f's_cbranch_execz L_P{tag}{s_}')
            I(f'v_add_u32 v{AD+s_}, v{AD+s_}, v{rk}')
            I(f'v_and_b32 v{wd}, s{S_T+2}, v{wd}')
            I(f'v_add_u32 v{rk}, v{AD+s_}, v{AD+s_}')
            I(f'ds_write_b32 v{AD+s_}, v{wd} offset:{LS}')
            I(f'ds_write_b64 v{rk}, {p(ee)} offset:{LE}')
            if s_ >= 4:
                L(f'L_P{tag}{s_}')
        I('s_mov_b64 exec, -1')
    if PROF == 5:
        stamp(20)
    SWAP = opt('swap', 0)
    if SWAP:
        I(f's_bitcmp1_b32 s{S_W}, {SWAP}')
        I('s_cbranch_scc0 L_DFIRST')
        place('a')
        L('L_DFIRST')
    SB_, SR_, SG0 = S_T + 4, S_T + 5, S_T + 6
    I(f's_add_u32 s{S_T}, s{S_T}, 3')
    I(f's_lshr_b32 s{S_T}, s{S_T}, 2')
    I(f's_lshr_b32 s{SB_}, s{S_T}, 4')
    I(f's_and_b32 s{SR_}, s{S_T}, 15')
    I(f's_add_u32 s{S_T+1}, s{SB_}, 1')
    I(f'v_cvt_f32_u32 v{MI}, s{S_T+1}')
    I(f'v_cvt_f32_u32 v{MI+1}, s{SB_}')
    I(f'v_rcp_f32 v{MI}, v{MI}')
    I(f'v_rcp_f32 v{MI+1}, v{MI+1}')
    I(f's_mul_i32 s{SG0}, s{SR_}, s{S_T+1}')
    I(f's_lshl_b32 s{SG0}, s{SG0}, 2')
    I(f'v_lshrrev_b32 v{GS}, 5, v{GS}')
    I(f'v_mul_f32 v{MI}, 0x47800000, v{MI}')
    I(f'v_mul_f32 v{MI+1}, 0x47800000, v{MI+1}')
    I(f'v_lshrrev_b32 v{NG}, 5, v{NG}')
    I(f'v_cvt_u32_f32 v{MI}, v{MI}')
    I(f'v_cvt_u32_f32 v{MI+1}, v{MI+1}')
    I(f's_cmp_lt_u32 s{S_W}, s{SR_}')
    I(f's_cselect_b32 s{S_L}, s{S_T+1}, s{SB_}')
    I(f'v_add_u32 v{MI}, 2, v{MI}')
    I(f'v_add_u32 v{MI+1}, 2, v{MI+1}')
    I(f's_min_u32 s{S_T}, s{S_W}, s{SR_}')
    I(f's_mul_i32 s{S_T+3}, s{S_W}, s{SB_}')
    I(f's_add_u32 s{S_T+3}, s{S_T+3}, s{S_T}')
    I(f's_sub_u32 s{S_T+1}, 0, s{S_T+1}')
    I(f's_sub_u32 s{SB_}, 0, s{SB_}')
    I(f's_lshl_b32 s{SR_}, s{SR_}, 2')
    D0, D1, D2, D3, NR = 96, 97, 98, 99, 100
    I(f'v_lshlrev_b32 v{NR}, 8, v{V_LANE}')
    I(f'v_add_u32 v{NR+1}, {ACCN}, v{NR}')
    I(f's_mov_b32 s{S_T}, s{S_W}')
    L('L_DLOOP')
    I(f'v_cmp_lt_u32 vcc, s{S_T}, v{NG}')
    I('s_and_b64 exec, exec, vcc')
    I('s_cbranch_execz L_DEND')
    I(f'v_add_u32 v{D0}, s{S_T}, v{GS}')
    I(f'v_subrev_u32 v{D1}, s{SG0}, v{D0}')
    I(f'v_cmp_gt_u32 vcc, s{SG0}, v{D0}')
    I(f'v_mul_u32_u24 v{D2}, v{D0}, v{MI}')
    I(f'v_mul_u32_u24 v{D3}, v{D1}, v{MI+1}')
    I(f'v_lshrrev_b32 v{D2}, 16, v{D2}')
    I(f'v_lshrrev_b32 v{D3}, 16, v{D3}')
    I(f'v_mad_i32_i24 v{D0}, v{D2}, s{S_T+1}, v{D0}')
    I(f'v_mad_i32_i24 v{D1}, v{D3}, s{SB_}, v{D1}')
    I(f'v_add_u32 v{D3}, s{SR_}, v{D3}')
    I(f'v_cndmask_b32 v{D0}, v{D1}, v{D0}, vcc')
    I(f'v_cndmask_b32 v{D2}, v{D3}, v{D2}, vcc')
    I(f'v_cmp_le_u32 vcc, s{S_T}, v{D0}')
    I(f'v_lshl_add_u32 v{D0}, v{D0}, 6, v{D2}')
    I(f'v_lshlrev_b32 v{D1}, 8, v{D2}')
    I(f'v_lshlrev_b32 v{D0}, 2, v{D0}')
    I(f'v_add_u32 v{D1}, {EXTRA}, v{D1}')
    I(f'v_add_u32 v{D3}, {DESCA}, v{D0}')
    I(f'v_cndmask_b32 v{D1}, v{D1}, v{NR+1}, vcc')
    I(f'ds_write_b32 v{D0}, v{NR} offset:{DESCP}')
    I(f'ds_write_b32 v{D3}, v{D1}')
    I(f's_add_u32 s{S_T+7}, s{S_T}, 1')
    I(f'v_cmp_eq_u32 vcc, s{S_T+7}, v{NG}')
    I(f's_and_saveexec_b64 {sp(S_EX)}, vcc')
    I(f'ds_write_b32 v{X+8}, v{D2} offset:{NINFO+256}')
    I(f's_mov_b64 exec, {sp(S_EX)}')
    I(f's_cmp_lg_u32 s{S_T}, 0')
    I('s_cbranch_scc1 L_DNF')
    I(f'ds_write_b32 v{X+8}, v{D2} offset:{NINFO}')
    L('L_DNF')
    I(f's_add_u32 s{S_T}, s{S_T}, 16')
    I('s_branch L_DLOOP')
    L('L_DEND')
    I('s_mov_b64 exec, -1')
    I(f's_lshl_b32 s{S_T}, s{S_T+3}, 7')
    I(f's_lshl_b32 s{S_T+1}, s{S_L}, 5')
    I(f'v_mov_b32 v{D0}, s{S_T}')
    I(f'v_mad_u32_u24 v{V_PS0}, v{V_PS1}, s{S_T+1}, v{D0}')
    I(f'v_add_u32 v{D0}, v{D0}, v{D0}')
    I(f'v_add_u32 v{V_PS1}, s{S_T+1}, v{V_PS0}')
    I(f'v_add_u32 v{V_PE}, v{V_PE}, v{D0}')
    I(f's_lshl_b32 s{S_T+1}, s{S_L}, 6')
    I(f'v_mad_u32_u24 v{V_PE}, v{V_VAP}, s{S_T+1}, v{V_PE}')
    if opt('safe', 0):
        I(f's_min_u32 s{S_L}, s{S_L}, 9')
        I(f's_mov_b32 s{S_MORE}, 0')
    I(f's_mov_b32 s{S_CNT}, s{S_L}')
    if SWAP:
        I(f's_bitcmp1_b32 s{S_W}, {SWAP}')
        I('s_cbranch_scc1 L_PDONE')
    if PROF == 5:
        stamp(21)
    place('b')
    L('L_PDONE')
    stamp(13)
    I('s_waitcnt lgkmcnt(0)')
    I('s_barrier')
    stamp(14)
    I(f's_cmp_eq_u32 s{S_L}, 0')
    I('s_cbranch_scc1 L_FOLD')
    lg = Lg()
    FP = opt('fp', 0)
    if FP:
        for lvl in (3, 2, 1):
            I(f's_cmp_lt_u32 s{S_W}, {4 * (4 - lvl)}')
            I(f's_cbranch_scc0 L_FP{lvl}')
            I(f's_setprio {lvl}')
            I('s_branch L_FPD')
            L(f'L_FP{lvl}')
        L('L_FPD')
    s_reads(lg, 0)
    lg.op('dP', f'ds_read_b64 {p(V_VAP)}, v{V_PD}')
    lg.op('dA', f'ds_read_b64 {p(V_VAA[0])}, v{V_PD} offset:{DESCA-DESCP}')
    lg.op('e', f'ds_read_b64 {p(A5)}, v{V_PE}')
    lg.need('S0', 'S1', 'S2', 'S3')
    s_safe()
    STG_ = [int(x) for x in opt('stag', '0,0,0').split(',')]
    for gi, d in enumerate(STG_):
        if d:
            I(f's_cmp_ge_u32 s{S_W}, {4 * (gi + 1)}')
            I(f's_cbranch_scc0 L_ST{gi}')
            I(f's_sleep {d}')
            L(f'L_ST{gi}')
    for n in range(2):
        for i in range(16):
            I(gload(n, i))
        if n == 0 and FP == 2:
            I('s_setprio 0')
    s_reads(lg, 1)
    I(f'v_mov_b32 v{V_C8P}, v{V_CH8}')
    I(f'v_mov_b32 v{V_C8P+1}, v{V_CH8}')
    I(f'v_mov_b32 v{V_CPP}, v{V_CHP}')
    I(f'v_mov_b32 v{V_CPP+1}, v{V_CHP}')
    if M8:
        I(f'v_mov_b32 v{V_SCP}, 0x{f2u(2.0**KH):x}')
        I(f'v_mov_b32 v{V_SCP+1}, 0x{f2u(2.0**KH):x}')
    I(f's_mov_b32 s{S_BP0}, 64')
    I(f's_mov_b32 s{S_BP0+1}, 64')
    I(f's_mov_b32 s{S_BP1}, 128')
    I(f's_mov_b32 s{S_BP1+1}, 512')
    lg.need('dP', 'dA')
    va_add(V_VAP, V_VAA[0])
    lg.op('P0a', f'ds_read_b32 v{B5[0]+2}, v{V_VAP}')
    lg.op('P0b', f'ds_read_b32 v{B5[0]+3}, v{V_VAP+1}')
    lg.op('P1a', f'ds_read_b32 v{B5[1]+2}, v{V_VAP} offset:4')
    lg.op('P1b', f'ds_read_b32 v{B5[1]+3}, v{V_VAP+1} offset:4')
    I(f's_cmp_eq_u32 s{S_CNT}, 1')
    I(f's_cselect_b64 {sp(S_LDX)}, 0, {LDXV}')
    I('s_waitcnt lgkmcnt(0)')
    lg.q = []
    if opt('prio', 3):
        I('s_setprio 3')
    stamp(15)
    rstamp(28)
    half(lg, 0, 0, 0, False)
    if PROF == 4:
        stamp(19)
        lg.q = []
    state0 = list(lg.q)
    def step(par, uo):
        prio(f'm{par}', 1)
        half(lg, 1, par, uo)
        if PROF == 4:
            I('s_memtime s[98:99]')
            I(f's_sub_u32 s92, s{S_L}, s{S_CNT}')
            I(f's_add_u32 m0, s92, 20')
            I('s_waitcnt lgkmcnt(0)')
            I(f'v_writelane_b32 v{V_PROF}, s98, m0')
        I(f's_sub_u32 s{S_CNT}, s{S_CNT}, 1')
        I(f's_cmp_eq_u32 s{S_CNT}, 0')
        I(f's_cbranch_scc1 L_FIN{par}')
        I(f's_cmp_eq_u32 s{S_CNT}, 1')
        I(f's_cselect_b64 {sp(S_LDX)}, 0, {LDXV}')
        prio(f'{par}')
        half(lg, 0, par ^ 1, uo + 1)
    def loop_body():
        step(0, 0)
        step(1, 1)
        I(f'v_lshl_add_u64 {p(V_PS0)}, {p(V_PS0)}, 0, {sp(S_BP0)}')
        I(f'v_lshl_add_u64 {p(V_PE)}, {p(V_PE)}, 0, {sp(S_BP1)}')
        I('s_branch L_LOOP')
    mark = len(out)
    loop_body()
    del out[mark:]
    qb = list(lg.q)
    n = min(len(qb), len(state0))
    assert PROF == 4 or qb[len(qb)-n:] == state0[len(state0)-n:], (state0, qb)
    lg.q = list(qb if len(qb) >= len(state0) else state0)
    e('.p2align 3')
    L('L_LOOP')
    mark = len(out)
    loop_body()
    drop = opt('drop', '')
    if drop:
        body = out[mark:]
        keep = []
        for l in body:
            t = l.strip()
            if 'v' in drop and (t.startswith('buffer_load') or t.startswith('s_mov_b64 exec') or 'vmcnt' in t):
                continue
            if 'l' in drop and (t.startswith('ds_') or 'lgkmcnt' in t):
                continue
            if 'm' in drop and t.startswith('v_mfma'):
                continue
            if 'n' in drop and t.startswith('s_nop'):
                continue
            keep.append(l)
        out[mark:] = keep
    assert lg.q == qb, (lg.q, qb)
    print('loop entry queue', state0, 'back edge queue', qb, file=sys.stderr)
    for pr in range(2):
        L(f'L_FIN{pr}')
        if M8:
            I(f'v_pk_mul_f32 {p(V_T01N)}, {p(V_T01N)}, {p(V_T23D)}')
            I(f'v_pk_mul_f32 {p(V_T23D)}, {p(V_T01D)}, {p(V_T23D)}')
            I(f'v_pk_fma_f32 {p(V_T01N)}, {p(V_T23N)}, {p(V_T01D)}, {p(V_T01N)}')
            I(f'v_rcp_f32 v{V_T23D}, v{V_T23D}')
            I(f'v_rcp_f32 v{V_T23D+1}, v{V_T23D+1}')
            I('s_waitcnt lgkmcnt(0)')
            I(f'v_pk_fma_f32 {p(V_MB)}, {p(V_T01N)}, {p(V_T23D)}, {p(V_MB)}')
        else:
            for r_ in (V_T01D, V_T01D + 1, V_T23D, V_T23D + 1):
                I(f'v_rcp_f32 v{r_}, v{r_}')
            I('s_waitcnt lgkmcnt(0)')
            I(f'v_pk_fma_f32 {p(V_MB)}, {p(V_T01N)}, {p(V_T01D)}, {p(V_MB)}')
            I(f'v_pk_fma_f32 {p(V_MB)}, {p(V_T23N)}, {p(V_T23D)}, {p(V_MB)}')
        acc_write(Lg(), V_VAA[pr])
        if pr == 0:
            I('s_branch L_FOLD')
    L('L_FOLD')
    stamp(16)
    FL = opt('fl', 0)
    I(f'v_lshrrev_b32 v{X}, 4, v{V_TID}')
    I(f'v_and_b32 v{X+1}, 15, v{V_TID}')
    if FL:
        I(f'v_lshlrev_b32 v{X+6}, 3, v{X+1}')
        I(f'v_lshrrev_b32 v{X+2}, 3, v{X+1}')
        I(f'v_and_b32 v{X+1}, 7, v{X+1}')
        I(f'v_lshlrev_b32 v{X+1}, 5, v{X+1}')
        I(f'v_lshl_add_u32 v{X+1}, v{X+2}, 2, v{X+1}')
    else:
        I(f'v_lshlrev_b32 v{X+6}, 2, v{X+1}')
        I(f'v_lshlrev_b32 v{X+1}, 4, v{X+1}')
    I(f'v_lshl_add_u32 v{X+2}, v{X}, 8, v{X+1}')
    I(f'v_add_u32 v{X+2}, {ACCN}, v{X+2}')
    I(f'v_add_u32 v{X+1}, {EXTRA}, v{X+1}')
    def rd4(dst, ad):
        if FL:
            I(f'ds_read2_b32 v[{dst}:{dst+1}], v{ad} offset0:0 offset1:2')
            I(f'ds_read2_b32 v[{dst+2}:{dst+3}], v{ad} offset0:4 offset1:6')
        else:
            I(f'ds_read_b128 v[{dst}:{dst+3}], v{ad}')
    I(f'v_lshlrev_b32 v{X+3}, 2, v{X}')
    I(f's_mul_i32 s{S_T+4}, s3, {NB*128}')
    I(f'v_lshl_add_u32 v{X+6}, v{X}, 7, v{X+6}')
    I(f'v_add_u32 v{X+6}, s{S_T+4}, v{X+6}')
    I(f'v_mov_b32 v{X+7}, 0')
    I(f'ds_read_b32 v{X+4}, v{X+3} offset:{NINFO}')
    I(f'ds_read_b32 v{X+5}, v{X+3} offset:{NINFO+256}')
    I(f's_mov_b32 s{S_T+2}, 0x{f2u(2.0**-(SV+KH)):x}')
    I(f's_mov_b32 s{S_T+3}, 0x{f2u(-LOG2E * 2.0**-(SV+KH)):x}')
    I(f'v_cmp_gt_u32 vcc, {NB*16}, v{V_TID}')
    I('s_waitcnt vmcnt(0) lgkmcnt(0)')
    I('s_barrier')
    stamp(17)
    rstamp(29)
    if PROF:
        I(f'v_writelane_b32 v{V_PROF}, s{S_L}, 27')
    I(f's_and_saveexec_b64 {sp(S_EX)}, vcc')
    I('s_cbranch_execz L_FDONE')
    rd4(64, X + 2)
    I(f's_mov_b64 {sp(S_T)}, exec')
    L('L_FLOOP')
    I(f'v_cmp_lt_u32 vcc, v{X+4}, v{X+5}')
    I('s_and_b64 exec, exec, vcc')
    I('s_cbranch_execz L_FLEND')
    I(f'v_add_u32 v{X+4}, 1, v{X+4}')
    I(f'v_lshl_add_u32 v{X+7}, v{X+4}, 8, v{X+1}')
    rd4(72, X + 7)
    I('s_waitcnt lgkmcnt(0)')
    for k in range(4):
        I(f'v_add_f32 v{64+k}, v{64+k}, v{72+k}')
    I('s_branch L_FLOOP')
    L('L_FLEND')
    I(f's_mov_b64 exec, {sp(S_T)}')
    I('s_waitcnt lgkmcnt(0)')
    I(f's_cmp_lg_u32 s{S_MORE}, 0')
    I('s_cbranch_scc1 L_WB')
    for k in range(4):
        I(f'v_mul_f32 v{72+k}, s{S_T+3}, v{64+k}')
    for k in range(4):
        I(f'v_exp_f32 v{72+k}, v{72+k}')
    for k in range(4):
        I(f'v_mul_f32 v{64+k}, s{S_T+2}, v{64+k}')
    for k in range(4):
        I(f'v_add_f32 v{72+k}, 1.0, v{72+k}')
    for k in range(4):
        I(f'v_rcp_f32 v{72+k}, v{72+k}')
    I('s_nop 0')
    for k in range(4):
        I(f'v_mul_f32 v{64+k}, v{64+k}, v{72+k}')
    if FL:
        I('v_cvt_pk_bf16_f32 v80, v64, v65')
        I('v_cvt_pk_bf16_f32 v81, v66, v67')
        I(f'buffer_store_dwordx2 v[80:81], v{X+6}, {sr4(S_OUT)}, 0 offen' + OSC)
    else:
        I('v_cvt_pk_bf16_f32 v80, v64, v66')
        I('v_cvt_pk_bf16_f32 v81, v65, v67')
        I(f'buffer_store_dword v80, v{X+6}, {sr4(S_OUT)}, 0 offen' + OSC)
        I(f'buffer_store_dword v81, v{X+6}, {sr4(S_OUT)}, 0 offen offset:64' + OSC)
    stamp(18)
    prof_store()
    diag_end()
    I('s_endpgm')
    L('L_WB')
    if FL:
        I(f'ds_write2_b32 v{X+2}, v64, v65 offset0:0 offset1:2')
        I(f'ds_write2_b32 v{X+2}, v66, v67 offset0:4 offset1:6')
    else:
        I(f'ds_write_b128 v{X+2}, v[64:67]')
    L('L_FDONE')
    I('s_mov_b64 exec, -1')
    I(f's_cmp_eq_u32 s{S_MORE}, 0')
    I('s_cbranch_scc1 L_QUIT')
    I(f's_add_u32 s{S_JB}, s{S_JB}, s{S_WID}')
    I('s_branch L_REFILL')
    L('L_OVERFLOW')
    I(f's_mov_b32 s{S_WID}, 64')
    L('L_REFILL')
    I('s_waitcnt vmcnt(0) lgkmcnt(0)')
    I('s_barrier')
    fill_zero()
    fill_words()
    ptr_consts()
    I('s_waitcnt lgkmcnt(0)')
    I('s_barrier')
    I('s_branch L_PASS')
    L('L_QUIT')
    prof_store()
    L('L_END')
    I('s_endpgm')

hdr = open('standalone__edge_featured_mpnn_egc__graph.s.ref').read().split('\n')
for line in hdr:
    if line.startswith('; Override'):
        break
    e(line)
e(f'; @launch grid=({NWG},1,1) block=(1024,1,1) lds={LDS_BYTES}')
e('.amdgcn_target "amdgcn-amd-amdhsa--gfx950"')
e('.text')
gen()
e('.section .rodata,"a"')
e('.p2align 6')
e(f'.amdhsa_kernel {KNAME}')
e('  .amdhsa_next_free_vgpr 128')
e('  .amdhsa_next_free_sgpr 102')
e('  .amdhsa_accum_offset 128')
e('  .amdhsa_group_segment_fixed_size 0')
e('  .amdhsa_kernarg_size 80')
e('  .amdhsa_user_sgpr_count 2')
e('  .amdhsa_user_sgpr_kernarg_segment_ptr 1')
e('  .amdhsa_system_sgpr_workgroup_id_x 1')
e('  .amdhsa_float_denorm_mode_32 3')
e('.end_amdhsa_kernel')
open(sys.argv[1], 'w').write('\n'.join(x for x in out if x is not None) + '\n')
```

```python
import sys, struct

OPT = dict(a.split('=') for a in sys.argv[2:] if '=' in a)
def opt(name, default):
    return type(default)(OPT.get(name, default))

KNAME = 'standalone__edge_featured_mpnn_egc__graph_kernel'
N_NODES = 12500
E_EDGES = 800000
NB = 49
NWG = 256
CH = 3136
WS_RW = 0
WS_RE = 0x00400000
CAP = CH + 256
WS_TAB = 0x00B00000
WS_NT = 0x00C00000
WS_PROF = 0x01000000
M8 = opt('m8', 0)
if M8:
    KH, KEXP, SV = 13, 26, 0
else:
    KH, KEXP, SV = 31, 31, 30
LOG2E = 1.4426950408889634
SC = opt('sc', 'sc1')
SC = (' ' + SC.replace('+', ' ')) if SC != 'none' else ''
LSC = opt('lsc', 'sc1')
LSC = (' ' + LSC.replace('+', ' ')) if LSC != 'none' else ''
GSC = opt('gsc', 'sc1')
GSC = (' ' + GSC.replace('+', ' ')) if GSC != 'none' else ''
ELD = opt('eld', 'none')
ELD = (' ' + ELD.replace('+', ' ')) if ELD != 'none' else ''

def f2u(x):
    return struct.unpack('<I', struct.pack('<f', x))[0]

out = []
def e(s=''):
    out.append(s)
def I(s):
    out.append('    ' + s)
def L(name):
    out.append(name + ':')
def vr(a, n):
    return f'v[{a}:{a+n-1}]' if n > 1 else f'v{a}'
def sr4(a):
    return f's[{a}:{a+3}]'
def sp(a):
    return f's[{a}:{a+1}]'
def p(r):
    return f'v[{r}:{r+1}]'

def srd(d, lo, hi, nrec):
    I(f's_mov_b32 s{d}, s{lo}')
    I(f's_mov_b32 s{d+1}, s{hi}')
    I(f's_mov_b32 s{d+2}, {nrec}')
    I(f's_mov_b32 s{d+3}, 0x00020000')

def srd_off(d, lo, hi, off, nrec):
    I(f's_add_u32 s{d}, s{lo}, {off}')
    I(f's_addc_u32 s{d+1}, s{hi}, 0')
    I(f's_mov_b32 s{d+2}, {nrec}')
    I(f's_mov_b32 s{d+3}, 0x00020000')

def wave_scan(v):
    for sh in (1, 2, 4, 8):
        I('s_nop 1')
        I(f'v_add_u32_dpp v{v}, v{v}, v{v} row_shr:{sh} row_mask:0xf bank_mask:0xf')
    I('s_nop 1')
    I(f'v_add_u32_dpp v{v}, v{v}, v{v} row_bcast:15 row_mask:0xa bank_mask:0xf')
    I('s_nop 1')
    I(f'v_add_u32_dpp v{v}, v{v}, v{v} row_bcast:31 row_mask:0xc bank_mask:0xf')
    I('s_nop 1')

LS = 0
ZR = 18688
LE = 18688
CNT = 56064
MISC = 56320
BASET = 56576
NINFO = 56832
HIST = 57344
HBASE = 58368
DESCP = 59392
EXTRA = 67840
DESCA = 84224
PT = 86784
ACCN = 99328
WRAW = 111872
WG_, WV_, WU_ = WRAW, WRAW + 17408, WRAW + 25600
XOWN = WRAW + 33792
LDS_BYTES = XOWN + 8192
STGW = 0
STGE = CAP * 4
NTI = EXTRA
MAXG = 576
assert STGE + CAP * 8 <= CNT

V_TID, V_LANE = 0, 1
V_MA, V_MB = 2, 4
V_VAA = (6, 8)
V_VAP = 10
V_PS0, V_PS1, V_PE, V_PD, V_CH8, V_CHP = 12, 13, 14, 15, 16, 17
V_PROF = 18
V_TAB = 20
V_J4, V_CB4 = 24, 25
V_X = 26
V_T01D, V_T01N, V_T23D, V_T23N = 40, 42, 44, 46
B5 = (48, 52)
A5 = 56
V_TT = (60, 62)
G = (64, 80)
Z = 96
S = 112

S_XS, S_WS, S_DST, S_SRC, S_EA, S_RW, S_RE, S_TAB, S_NTS, S_NTG, S_OUT = 12, 16, 20, 24, 28, 32, 36, 40, 44, 48, 52
S_MASK = 56
S_W, S_L, S_CNT, S_JB, S_WID, S_MORE = 72, 73, 74, 75, 76, 77
S_C = 78
S_EX = 80
S_LDX = 82
S_T = 84
S_WSP = 94
S_DBG = 96
S_TAG, S_TAG2 = 100, 101
TAGM = 0xC003C003
TAGL = MISC + 64

NT2 = 2 if opt('touch', 0) else 0
LDXV = 0 if opt('noload', 0) else -1
NPFM = opt('npf', 4)
NPF = {0: 0, 1: 7, 2: 7, 3: 2, 4: 1, 5: 1}[NPFM]
NPF1 = NPF if NPFM in (1, 5) else 0
WSB = opt('wsb', 0) << 20
TCH = 4 if opt('touch', 0) else 0
T1 = opt('t1', 0)
OSC = opt('osc', 'nt')
OSC = (' ' + OSC.replace('+', ' ')) if OSC != 'none' else ''
KREP = opt('krep', 1)
assert KREP == 1
CM = opt('cm', 1)
RSTEP = 64 if CM else 8
SRCL = opt('srcl', 1)
PROF = opt('prof', 0)
DIAG = opt('diag', -1)
def diag_end():
    if DIAG < 0:
        return
    I('s_memrealtime s[98:99]')
    I('s_waitcnt lgkmcnt(0)')
    I('v_readlane_b32 s92, v18, 1')
    I('v_readlane_b32 s93, v18, 0')
    I('s_nop 3')
    I('s_sub_u32 s92, s92, s93')
    I('s_lshl_b32 s92, s92, 2')
    I('s_mov_b32 s93, s98')
    lbl = f'L_DG{len(out)}'
    L(lbl)
    I('s_memrealtime s[98:99]')
    I('s_waitcnt lgkmcnt(0)')
    I('s_sub_u32 s98, s98, s93')
    I('s_cmp_lt_u32 s98, s92')
    I(f's_cbranch_scc1 {lbl}')
def stamp(i):
    if DIAG >= 0 and i in (0, DIAG):
        I('s_memrealtime s[98:99]')
        I('s_waitcnt lgkmcnt(0)')
        if i == 0:
            I('v_writelane_b32 v18, s98, 0')
        if i == DIAG:
            I('v_writelane_b32 v18, s98, 1')
    if not PROF:
        return
    I('s_memtime s[98:99]')
    I('s_waitcnt lgkmcnt(0)')
    I(f'v_writelane_b32 v{V_PROF}, s98, {i}')
def rstamp(i):
    if not PROF:
        return
    I('s_memrealtime s[98:99]')
    I('s_waitcnt lgkmcnt(0)')
    I(f'v_writelane_b32 v{V_PROF}, s98, {i}')
def prof_store():
    if not PROF:
        return
    rstamp(31)
    if PROF == 3:
        I(f's_lshl_b32 s98, s2, 4')
        I(f's_add_u32 s98, s98, s{S_W}')
        I(f's_cmp_lg_u32 s98, {opt("pwave", 80)}')
        I('s_cbranch_scc1 L_END')
        I('s_mov_b64 exec, -1')
        I(f'v_readlane_b32 s98, v{V_PROF}, 0')
        I(f'v_readlane_b32 s99, v{V_PROF}, 30')
        I(f'v_readlane_b32 s{S_T}, v{V_PROF}, 31')
        I('s_nop 3')
        I(f's_sub_u32 s{S_T}, s{S_T}, s99')
        I(f's_add_u32 s{S_T}, s{S_T}, s98')
        I(f'v_writelane_b32 v{V_PROF}, s{S_T}, 9')
        I(f'v_subrev_u32 v{V_PROF}, s98, v{V_PROF}')
        I(f'v_mbcnt_lo_u32_b32 v{V_PROF+1}, -1, 0')
        I(f'v_lshlrev_b32 v{V_PROF+1}, 2, v{V_PROF+1}')
        I(f'v_add_u32 v{V_PROF+1}, -8, v{V_PROF+1}')
        I('s_mov_b64 exec, 0x3fff8')
        I(f'global_store_dword v{V_PROF+1}, v{V_PROF}, {sp(S_DBG)}')
        return
    I('s_mov_b64 exec, 0xffffffff')
    I(f's_add_u32 s{S_T}, s{S_WSP}, 0x{WS_PROF:x}')
    I(f's_addc_u32 s{S_T+1}, s{S_WSP+1}, 0')
    I(f'v_mbcnt_lo_u32_b32 v{V_PROF+1}, -1, 0')
    I(f'v_lshlrev_b32 v{V_PROF+1}, 2, v{V_PROF+1}')
    I(f's_lshl_b32 s98, s2, 4')
    I(f's_add_u32 s98, s98, s{S_W}')
    I(f's_lshl_b32 s98, s98, 7')
    I(f'v_add_u32 v{V_PROF+1}, s98, v{V_PROF+1}')
    I(f'global_store_dword v{V_PROF+1}, v{V_PROF}, {sp(S_T)}')

class Lg:
    def __init__(self):
        self.q = []
    def op(self, tag, text):
        I(text)
        self.q.append(tag)
    def need(self, *tags):
        idx = -1
        for t in tags:
            for i in range(len(self.q) - 1, -1, -1):
                if self.q[i] == t:
                    idx = max(idx, i)
                    break
        if idx < 0:
            return
        n = len(self.q) - 1 - idx
        assert n <= 15, (tags, n)
        I(f's_waitcnt lgkmcnt({n})')
        self.q = self.q[idx + 1:]

X = V_X

def zero_range(a, nbytes, zr, ad):
    k = 0
    base = a if a + nbytes <= 65536 + 16384 and a < 65536 - 3 * 16384 else None
    off = 0
    areg = ad
    if a + ((nbytes - 1) // 16384) * 16384 > 65535:
        I(f'v_add_u32 v{X+1}, {a}, v{ad}')
        areg = X + 1
        a0 = 0
    else:
        a0 = a
    while off < nbytes:
        n = min(16384, nbytes - off)
        if n < 16384:
            I(f'v_cmp_gt_u32 vcc, {n // 16}, v{V_TID}')
            I(f's_and_saveexec_b64 {sp(S_EX)}, vcc')
        I(f'ds_write_b128 v{areg}, v[{zr}:{zr+3}] offset:{a0 + off}')
        if n < 16384:
            I(f's_mov_b64 exec, {sp(S_EX)}')
        off += n

def zregs():
    I(f'v_lshlrev_b32 v{X}, 4, v{V_TID}')
    for k in range(4):
        I(f'v_mov_b32 v{X+2+k}, 0')

def fill_desca():
    I(f'v_and_b32 v{X+6}, 15, v{V_TID}')
    I(f'v_lshlrev_b32 v{X+6}, 10, v{X+6}')
    I(f'v_add_u32 v{X+6}, {EXTRA}, v{X+6}')
    for k in range(1, 4):
        I(f'v_add_u32 v{X+6+k}, {256*k}, v{X+6}')
    I(f'v_add_u32 v{X+1}, {DESCA}, v{X}')
    I(f'v_cmp_gt_u32 vcc, 160, v{V_TID}')
    I(f's_and_saveexec_b64 {sp(S_EX)}, vcc')
    I(f'ds_write_b128 v{X+1}, v[{X+6}:{X+9}]')
    I(f's_mov_b64 exec, {sp(S_EX)}')

def fill_zero():
    zregs()
    zero_range(ZR, 65536, X + 2, X)
    fill_desca()

def fill_words():
    I(f'v_lshlrev_b32 v{X}, 4, v{V_TID}')
    I(f'v_and_b32 v{X+2}, 7, v{V_TID}')
    I(f'v_lshlrev_b32 v{X+2}, 5, v{X+2}')
    I(f'v_add_u32 v{X+2}, {N_NODES*8}, v{X+2}')
    for k in range(1, 4):
        I(f'v_add_u32 v{X+2+k}, {8*k}, v{X+2}')
    I(f'ds_write_b128 v{X}, v[{X+2}:{X+5}] offset:{LS}')
    I(f'v_cmp_gt_u32 vcc, 144, v{V_TID}')
    I(f's_and_saveexec_b64 {sp(S_EX)}, vcc')
    I(f'ds_write_b128 v{X}, v[{X+2}:{X+5}] offset:{LS+16384}')
    I(f's_mov_b64 exec, {sp(S_EX)}')

V_C8P, V_CPP, V_SCP = 26, 28, 30
S_BP0, S_BP1 = 88, 90

def tail_ops(n):
    M = (V_MA, V_MB)[n]
    return [f'v_rcp_f32 v{V_T01D}, v{V_T01D}',
            f'v_rcp_f32 v{V_T01D+1}, v{V_T01D+1}',
            f'v_pk_fma_f32 {p(M)}, {p(V_T01N)}, {p(V_T01D)}, {p(M)}']

def acc_write(lg, va):
    lg.op('Wa', f'ds_write2_b32 v{va}, v{V_MA}, v{V_MB} offset0:0 offset1:1')
    lg.op('Wb', f'ds_write2_b32 v{va+1}, v{V_MA+1}, v{V_MB+1} offset0:0 offset1:1')

def acc_read(lg, va):
    lg.op('Ra', f'ds_read_b32 v{V_MA}, v{va}')
    lg.op('Rb', f'ds_read_b32 v{V_MA+1}, v{va+1}')
    lg.op('Rc', f'ds_read_b32 v{V_MB}, v{va} offset:4')
    lg.op('Rd', f'ds_read_b32 v{V_MB+1}, v{va+1} offset:4')

def va_add(vap, vaa):
    I(f'v_lshl_add_u64 {p(vap)}, {p(vap)}, 0, {p(V_CPP)}')
    I(f'v_lshl_add_u64 {p(vaa)}, {p(vaa)}, 0, {p(V_C8P)}')

def gload(n, i):
    return f'buffer_load_dword v{G[n]+i}, v{S + (i & 1) * 8 + (i >> 1)}, {sr4(S_NTG)}, 0 offen offset:{4*n}' + GSC

def s_safe():
    if opt('safe', 0):
        for i in range(16):
            I(f'v_and_b32 v{S+i}, 0x1fff8, v{S+i}')

def s_reads(lg, uo):
    lg.op('S0', f'ds_read_b128 {vr(S,4)}, v{V_PS0} offset:{uo*32}')
    lg.op('S1', f'ds_read_b128 {vr(S+4,4)}, v{V_PS0} offset:{uo*32+16}')
    lg.op('S2', f'ds_read_b128 {vr(S+8,4)}, v{V_PS1} offset:{uo*32}')
    lg.op('S3', f'ds_read_b128 {vr(S+12,4)}, v{V_PS1} offset:{uo*32+16}')

def half(lg, n, par, uo, with_tail=True):
    g = G[n]
    I('s_waitcnt vmcnt(16)')
    if n == 0:
        lg.need('P0a', 'P0b', 'e')
    else:
        lg.need('P1a', 'P1b')
    I(f'v_mfma_f32_32x32x16_bf16 {vr(Z,16)}, {vr(A5,4)}, {vr(B5[n],4)}, {vr(g,16)}')
    t = tail_ops(n ^ 1)
    va_prev, va_cur, va_nxt = V_VAA[par ^ 1], V_VAA[par], V_VAA[par ^ 1]
    sh = [f'v_lshlrev_b32 v{g+i}, 16, v{g+i}' for i in range(16)]
    ex = [f'v_exp_f32 v{Z+i}, v{Z+i} clamp' for i in range(16)]
    l3 = [f'v_pk_mul_f32 {p(V_T01N)}, {p(V_T01N)}, {p(V_T23D)}',
          f'v_pk_mul_f32 {p(V_T23D)}, {p(V_T01D)}, {p(V_T23D)}',
          f'v_pk_fma_f32 {p(V_T01N)}, {p(V_T23N)}, {p(V_T01D)}, {p(V_T01N)}',
          f'v_rcp_f32 v{V_T23D}, v{V_T23D}',
          f'v_rcp_f32 v{V_T23D+1}, v{V_T23D+1}',
          f'v_pk_fma_f32 {p((V_MA, V_MB)[n ^ 1])}, {p(V_T01N)}, {p(V_T23D)}, {p((V_MA, V_MB)[n ^ 1])}']
    if with_tail and not M8:
        for r_ in (V_T01D, V_T01D + 1, V_T23D, V_T23D + 1):
            I(f'v_rcp_f32 v{r_}, v{r_}')
    else:
        I('s_nop 3')
    if n == 1:
        lg.op('e', f'ds_read_b64 {p(A5)}, v{V_PE} offset:{(uo+1)*64}')
        lg.op('P1a', f'ds_read_b32 v{B5[1]+2}, v{V_VAP} offset:4')
        lg.op('P1b', f'ds_read_b32 v{B5[1]+3}, v{V_VAP+1} offset:4')
    else:
        lg.op('dP', f'ds_read_b64 {p(V_VAP)}, v{V_PD} offset:{(uo+1)*256}')
        I('s_nop 1')
    for op in sh[:8]:
        I(op)
    seq = []
    if with_tail and not M8:
        Mp = p((V_MA, V_MB)[n ^ 1])
        seq = ['NEED', f'v_pk_fma_f32 {Mp}, {p(V_T01N)}, {p(V_T01D)}, {Mp}', ex[0],
               f'v_pk_fma_f32 {Mp}, {p(V_T23N)}, {p(V_T23D)}, {Mp}', sh[8], 'ACC', ex[1], sh[9]]
    elif with_tail:
        seq = [l3[0], l3[1], ex[0], l3[2], l3[3], sh[8], l3[4], ex[1], sh[9], 'NEED', l3[5], 'ACC']
    else:
        seq = [ex[0], sh[8], ex[1], sh[9], 'ACC']
    for op in seq:
        if op == 'NEED':
            lg.need('Ra', 'Rb', 'Rc', 'Rd')
        elif op == 'ACC':
            if n == 0:
                if with_tail:
                    acc_write(lg, va_prev)
                acc_read(lg, va_cur)
                lg.op('dA', f'ds_read_b64 {p(va_nxt)}, v{V_PD} offset:{(uo+1)*256 + DESCA - DESCP}')
        else:
            I(op)
    for i in range(2, 12):
        I(ex[i])
        if 8 + i < 16:
            I(sh[8 + i])
        if n == 0 and i == 11:
            lg.need('dP', 'dA')
            va_add(V_VAP, va_nxt)
            lg.op('P0a', f'ds_read_b32 v{B5[0]+2}, v{V_VAP}')
            lg.op('P0b', f'ds_read_b32 v{B5[0]+3}, v{V_VAP+1}')
    for op in ex[12:]:
        I(op)
    for i in range(0, 16, 2):
        if M8:
            I(f'v_pk_fma_f32 {p(Z+i)}, {p(Z+i)}, {p(V_SCP)}, {sp(S_C)}')
        else:
            I(f'v_pk_add_f32 {p(Z+i)}, {p(Z+i)}, {sp(S_C)}')
    def T(k): return f'v_pk_mul_f32 {p(V_TT[k&1])}, {p(g+4*k)}, {p(Z+4*k+2)}'
    def DD(k): return f'v_pk_mul_f32 {p(Z+4*k+2)}, {p(Z+4*k)}, {p(Z+4*k+2)}'
    def NN(k): return f'v_pk_fma_f32 {p(Z+4*k)}, {p(g+4*k+2)}, {p(Z+4*k)}, {p(V_TT[k&1])}'
    for k0 in (0, 2):
        for op in (T(k0), T(k0 + 1), DD(k0), DD(k0 + 1), NN(k0), NN(k0 + 1)):
            I(op)
        if n == 0 and k0 == 0:
            lg.need('S0', 'S1', 'S2', 'S3')
            s_safe()
        I(f's_mov_b64 exec, {sp(S_LDX)}')
        for i in range(4 * k0, 4 * k0 + 8):
            I(gload(n, i))
        I('s_mov_b64 exec, -1')
    if n == 1:
        s_reads(lg, uo + 2)
    I(f'v_pk_mul_f32 {p(V_T01N)}, {p(Z)}, {p(Z+6)}')
    I(f'v_pk_mul_f32 {p(V_T23N)}, {p(Z+8)}, {p(Z+14)}')
    I(f'v_pk_mul_f32 {p(V_T01D)}, {p(Z+2)}, {p(Z+6)}')
    I(f'v_pk_mul_f32 {p(V_T23D)}, {p(Z+10)}, {p(Z+14)}')
    I(f'v_pk_fma_f32 {p(V_T01N)}, {p(Z+4)}, {p(Z+2)}, {p(V_T01N)}')
    I(f'v_pk_fma_f32 {p(V_T23N)}, {p(Z+12)}, {p(Z+10)}, {p(V_T23N)}')

PRIO = {
    3: {(3, 0): 2, (2, 0): 1, (1, 0): 0},
    5: {(2, 0): 2, (1, 0): 1, (1, 1): 0},
    6: {(3, 0): 2, (1, 0): 1, (1, 1): 0},
    7: {(2, 1): 2, (1, 0): 1, (1, 1): 0},
    8: {(4, 0): 2, (2, 0): 1, (1, 1): 0},
    9: {(3, 0): 2, (2, 1): 1, (1, 1): 0},
    0: {},
}[opt('prio', 9)]
def prio(tag, phase=0):
    for (t, ph), lvl in PRIO.items():
        if ph != phase:
            continue
        I(f's_cmp_eq_u32 s{S_CNT}, {t}')
        I(f's_cbranch_scc0 L_PR{tag}_{lvl}')
        I(f's_setprio {lvl}')
        L(f'L_PR{tag}_{lvl}')

def split_hilo(a, b, t0, t1):
    I(f'v_cvt_pk_bf16_f32 v{t0}, v{a}, v{b}')
    I(f'v_lshlrev_b32 v{t1}, 16, v{t0}')
    I(f'v_and_b32 v{t0}, 0xffff0000, v{t0}')
    I(f'v_sub_f32 v{a}, v{a}, v{t1}')
    I(f'v_sub_f32 v{b}, v{b}, v{t0}')
    I(f'v_cvt_pk_bf16_f32 v{a}, v{t1}, v{a}')
    I(f'v_cvt_pk_bf16_f32 v{b}, v{t0}, v{b}')

V_AA, V_AB, V_AD, V_AP = 6, 7, 8, 9
SA, SB, SD = 80, 96, 112

def phase0_addr():
    I(f's_and_b32 s{S_T}, s{S_W}, 3')
    I(f's_lshr_b32 s{S_T+1}, s{S_W}, 2')
    I(f'v_and_b32 v12, 15, v{V_LANE}')
    I(f'v_lshrrev_b32 v13, 4, v{V_LANE}')
    I(f'v_bfe_u32 v14, v{V_LANE}, 1, 3')
    I(f'v_xor_b32 v14, v14, v13')
    I(f'v_lshlrev_b32 v14, 4, v14')
    I(f'v_lshl_or_b32 v14, v12, 7, v14')
    I(f's_lshl_b32 s{S_T+2}, s{S_T}, 11')
    I(f'v_add_u32 v{V_AA}, s{S_T+2}, v14')
    I(f'v_bfe_u32 v14, v{V_LANE}, 2, 2')
    I(f'v_lshl_add_u32 v14, v13, 3, v14')
    I(f'v_lshlrev_b32 v14, 7, v14')
    I(f'v_and_b32 v15, 3, v{V_LANE}')
    I(f'v_lshl_add_u32 v14, v15, 3, v14')
    I(f's_lshl_b32 s{S_T+2}, s{S_T+1}, 5')
    I(f'v_or_b32 v14, s{S_T+2}, v14')
    I(f'v_and_b32 v15, 24, v{V_LANE}')
    I(f'v_lshlrev_b32 v15, 2, v15')
    I(f'v_xor_b32 v14, v14, v15')
    I(f'v_add_u32 v{V_AB}, {WRAW}, v14')
    I(f's_lshl_b32 s{S_T+2}, s{S_T}, 12')
    I(f'v_lshlrev_b32 v13, 10, v13')
    I(f'v_add_u32 v13, s{S_T+2}, v13')
    I(f's_lshl_b32 s{S_T+2}, s{S_T+1}, 6')
    I(f's_add_u32 s{S_T+2}, s{S_T+2}, {NTI}')
    I(f'v_lshl_add_u32 v{V_AD}, v12, 2, v13')
    I(f'v_add_u32 v{V_AD}, s{S_T+2}, v{V_AD}')
    I(f's_and_b32 s{S_T+2}, s{S_T+1}, 1')
    I(f's_lshl_b32 s{S_T+2}, s{S_T+2}, 7')
    I(f's_lshr_b32 s{S_T+3}, s{S_T+1}, 1')
    I(f's_lshl_b32 s{S_T+3}, s{S_T+3}, 2')
    I(f's_add_u32 s{S_T+2}, s{S_T+2}, s{S_T+3}')
    I(f's_add_u32 s{S_T+2}, s{S_T+2}, {PT}')
    I(f'v_lshl_add_u32 v{V_AP}, v12, 3, v13')
    I(f'v_add_u32 v{V_AP}, s{S_T+2}, v{V_AP}')

def b_reads(dst, off):
    for sg in range(2):
        for pp in range(2):
            I(f'ds_read_b64_tr_b16 {vr(dst+4*sg+2*pp,2)}, v{V_AB} offset:{off+sg*4096+pp*512}')

def mm16(d, b):
    I(f'v_mfma_f32_16x16x32_bf16 {vr(d,4)}, {vr(SA,4)}, {vr(b,4)}, 0')
    I(f'v_mfma_f32_16x16x32_bf16 {vr(d,4)}, {vr(SA+4,4)}, {vr(b+4,4)}, {vr(d,4)}')

def phase0a():
    I(f'v_add_u32 v12, {XOWN}, v{V_AA}')
    I(f'v_xor_b32 v13, 64, v{V_AA}')
    I(f'v_add_u32 v13, {XOWN}, v13')
    I(f'ds_read_b128 {vr(SA,4)}, v12')
    I(f'ds_read_b128 {vr(SA+4,4)}, v13')
    b_reads(SB, 8192)
    b_reads(SB + 8, WV_ - WRAW)
    I(f's_mov_b32 s{S_T+4}, 0x{f2u(-LOG2E):x}')
    I(f's_mov_b32 s{S_T+6}, 0x7fffffff')
    I(f's_mov_b32 s{S_T+7}, 0xffff0000')
    I('s_waitcnt lgkmcnt(4)')
    mm16(SD, SB)
    I('s_waitcnt lgkmcnt(0)')
    mm16(SD + 4, SB + 8)
    I('s_nop 4')
    for i in range(4):
        I(f'v_mul_f32 v{SD+i}, s{S_T+4}, v{SD+i}')
    for i in range(4):
        I(f'v_and_b32 v{SD+8+i}, s{S_T+6}, v{SD+i}')
    for i in range(4):
        if SV:
            I(f'v_mul_f32 v{SD+4+i}, 0x{f2u(2.0**SV):x}, v{SD+4+i}')
        I(f'v_add_u32 v{SD+8+i}, 0x8000, v{SD+8+i}')
    I(f'v_cvt_pk_bf16_f32 v{SD+4}, v{SD+4}, v{SD+5}')
    I(f'v_cvt_pk_bf16_f32 v{SD+6}, v{SD+6}, v{SD+7}')
    I(f'v_lshrrev_b32 v{SD+5}, 16, v{SD+4}')
    I(f'v_lshrrev_b32 v{SD+7}, 16, v{SD+6}')
    I(f'v_and_b32 v{SD+4}, 0xffff, v{SD+4}')
    I(f'v_and_b32 v{SD+6}, 0xffff, v{SD+6}')
    for i in range(4):
        I(f'v_sub_u32 v{SD+8+i}, v{SD+8+i}, v{SD+4+i} clamp')
    for i in range(4):
        I(f'v_and_or_b32 v{SD+8+i}, v{SD+8+i}, s{S_T+7}, v{SD+4+i}')
    for i in range(4):
        I(f'v_bfi_b32 v{SD+i}, s{S_T+6}, v{SD+8+i}, v{SD+i}')
        I(f'ds_write_b32 v{V_AD}, v{SD+i} offset:{i*256}')

def phase0b():
    b_reads(SB, 0)
    b_reads(SB + 8, WU_ - WRAW)
    I(f's_mov_b32 s{S_T+4}, 0x{f2u(-LOG2E):x}')
    I(f's_mov_b32 s{S_T+5}, 0x{f2u(2.0**(SV+KH)):x}')
    I(f'v_mov_b32 v13, 0x{f2u(-float(KEXP)):x}')
    I(f's_and_b32 s{S_T+6}, s{S_W}, 3')
    I('s_waitcnt lgkmcnt(4)')
    mm16(SD, SB)
    I('s_waitcnt lgkmcnt(0)')
    mm16(SD + 4, SB + 8)
    I('s_nop 4')
    for i in range(4):
        I(f'v_fma_f32 v{SD+i}, v{SD+i}, s{S_T+4}, v13')
    split_hilo(SD, SD + 1, 12, 13)
    split_hilo(SD + 2, SD + 3, 12, 13)
    for i in range(4):
        I(f'v_mul_f32 v{SD+4+i}, s{S_T+5}, v{SD+4+i}')
    I(f's_cmp_eq_u32 s{S_T+6}, 3')
    I(f's_cselect_b64 exec, 0xffff, -1')
    I(f'ds_write_b32 v{V_AP}, v{SD}')
    I(f'ds_write_b32 v{V_AP}, v{SD+4} offset:{ACCN-PT}')
    I(f's_cselect_b64 exec, 0, -1')
    for i in range(1, 4):
        I(f'ds_write_b32 v{V_AP}, v{SD+i} offset:{i*256}')
        I(f'ds_write_b32 v{V_AP}, v{SD+4+i} offset:{ACCN-PT+i*256}')
    I('s_mov_b64 exec, -1')

def phase0c():
    I(f'v_bfe_u32 v13, v{V_LANE}, 2, 2')
    I(f'v_lshlrev_b32 v13, 7, v13')
    I(f'v_bfe_u32 v15, v{V_LANE}, 4, 1')
    I(f'v_lshl_add_u32 v13, v15, 5, v13')
    I(f'v_and_b32 v15, 3, v{V_LANE}')
    I(f'v_lshl_add_u32 v13, v15, 3, v13')
    I(f'v_and_b32 v15, 8, v{V_LANE}')
    I(f'v_lshlrev_b32 v15, 2, v15')
    I(f'v_xor_b32 v13, v13, v15')
    I(f'v_add_u32 v13, {WG_ + 16384}, v13')
    I(f'ds_read_b64_tr_b16 v[96:97], v13')
    I(f'ds_read_b64_tr_b16 v[98:99], v13 offset:64')
    I(f's_mov_b32 s{S_T+4}, 0x{f2u(-LOG2E):x}')
    I(f'v_cmp_lt_u32 vcc, 31, v{V_LANE}')
    I('s_waitcnt lgkmcnt(0)')
    for m in range(4):
        I(f'v_lshlrev_b32 v{100+2*m}, 16, v{96+m}')
        I(f'v_and_b32 v{101+2*m}, 0xffff0000, v{96+m}')
    for j in range(8):
        I(f'v_mul_f32 v{100+j}, s{S_T+4}, v{100+j}')
    for m in range(4):
        dst = B5[m >> 1] + (m & 1)
        I(f'v_cvt_pk_bf16_f32 v{96+m}, v{100+2*m}, v{101+2*m}')
        I(f'v_lshlrev_b32 v12, 16, v{96+m}')
        I(f'v_and_b32 v13, 0xffff0000, v{96+m}')
        I(f'v_sub_f32 v12, v{100+2*m}, v12')
        I(f'v_sub_f32 v13, v{101+2*m}, v13')
        I(f'v_cvt_pk_bf16_f32 v12, v12, v13')
        I(f'v_cndmask_b32 v{dst}, v{96+m}, v12, vcc')

def a5_const():
    I(f'v_bfe_u32 v12, v{V_LANE}, 2, 1')
    I(f'v_lshrrev_b32 v13, 5, v{V_LANE}')
    I(f'v_xor_b32 v12, v12, v13')
    I(f'v_and_b32 v13, 1, v{V_LANE}')
    I(f'v_lshl_or_b32 v12, v12, 1, v13')
    I(f'v_mov_b32 v13, 0x3f803f80')
    I(f'v_cmp_eq_u32 vcc, 0, v12')
    I(f'v_cmp_eq_u32 {sp(S_T)}, 1, v12')
    I('s_nop 1')
    I(f'v_cndmask_b32 v{A5+2}, 0, v13, vcc')
    I(f'v_cndmask_b32 v{A5+3}, 0, v13, {sp(S_T)}')

def nt_prefetch(vt, first=0, nl=None, dst=96):
    I(f's_lshr_b32 s{S_T}, s2, 4')
    I(f's_lshl_b32 s{S_T+1}, s{S_W}, 4')
    I(f's_add_u32 s{S_T}, s{S_T}, s{S_T+1}')
    I(f's_and_b32 s{S_T+1}, s{S_T}, 7')
    I(f's_lshl_b32 s{S_T+1}, s{S_T+1}, 5')
    I(f's_lshr_b32 s{S_T}, s{S_T}, 3')
    I(f's_add_u32 s{S_T}, s{S_T}, s{S_T+1}')
    if not opt('xmap', 1):
        I(f's_lshr_b32 s{S_T}, s2, 4')
        I(f's_lshl_b32 s{S_T+1}, s{S_W}, 4')
        I(f's_add_u32 s{S_T}, s{S_T}, s{S_T+1}')
    I(f's_lshl_b32 s{S_T}, s{S_T}, 1')
    I(f's_bfe_u32 s{S_T+1}, s2, 0x10003')
    I(f's_add_u32 s{S_T}, s{S_T}, s{S_T+1}')
    I(f's_mul_i32 s{S_T}, s{S_T}, {NB*128}')
    I(f's_add_u32 s{S_T}, s{S_T}, 0x{WS_NT:x}')
    srd_off(S_NTS, S_WSP, S_WSP + 1, f's{S_T}', NB * 128)
    if NPFM >= 3:
        I(f'v_lshlrev_b32 v{vt}, {7 if NPFM >= 4 else 6}, v{V_LANE}')
        I(f'v_add_u32 v{vt+1}, 4096, v{vt}')
        nl = opt("pfl", 20) if nl is None else nl
        I(f's_mov_b32 exec_lo, 0x{(((1 << nl) - 1) << first) & 0xffffffff:x}')
        I(f's_mov_b32 exec_hi, 0x{(((1 << nl) - 1) << first) >> 32:x}')
        for k in range(NPF):
            I(f'buffer_load_dword v{dst+k}, v{vt+k}, {sr4(S_NTS)}, 0 offen' + (LSC if opt('pfsc', 1) else ''))
        I('s_mov_b64 exec, -1')
        return
    I(f'v_lshlrev_b32 v{vt}, 4, v{V_LANE}')
    I(f'v_add_u32 v{vt+1}, 4096, v{vt}')
    for k in range(NPF):
        I(f'buffer_load_dwordx4 {vr(96+4*k,4)}, v{vt+(k>>2)}, {sr4(S_NTS)}, 0 offen offset:{(k&3)*1024}' + LSC)

def ptr_consts():
    I(f'v_lshrrev_b32 v{V_PS1}, 5, v{V_LANE}')
    I(f's_lshl_b32 s{S_T}, s{S_W}, 4')
    I(f's_add_u32 s{S_T}, s{S_T}, {DESCP}')
    I(f'v_lshlrev_b32 v{V_PD}, 3, v{V_PS1}')
    I(f'v_add_u32 v{V_PS1}, v{V_PS1}, v{V_PS1}')
    I(f'v_add_u32 v{V_PD}, s{S_T}, v{V_PD}')
    I(f'v_bfe_u32 v{V_VAP}, v{V_LANE}, 2, 1')
    I(f'v_and_b32 v{V_PE}, 1, v{V_LANE}')
    I(f'v_lshl_or_b32 v{V_VAP}, v{V_VAP}, 1, v{V_PE}')
    I(f'v_bfe_u32 v{V_PE}, v{V_LANE}, 3, 2')
    I(f'v_bfe_u32 v{V_PS0}, v{V_LANE}, 1, 1')
    I(f'v_lshl_or_b32 v{V_PE}, v{V_PE}, 1, v{V_PS0}')
    I(f'v_lshlrev_b32 v{V_PE}, 3, v{V_PE}')
    I(f'v_add_u32 v{V_PE}, {LE}, v{V_PE}')

def gen():
    e(f'.globl {KNAME}')
    e('.p2align 8')
    e(f'.type {KNAME},@function')
    L(KNAME)
    I(f's_cmp_ge_u32 s2, {NWG}')
    I('s_cbranch_scc1 L_END')
    I('s_load_dwordx8 s[84:91], s[0:1], 0')
    I('s_load_dwordx4 s[4:7], s[0:1], 32')
    I('s_load_dwordx4 s[8:11], s[0:1], 48')
    I('s_load_dwordx4 s[56:59], s[0:1], 64')
    if PROF:
        I(f'v_mov_b32 v{V_PROF}, 0')
    rstamp(30)
    stamp(0)
    zregs()
    zero_range(CNT, DESCP + 2560 - CNT, X + 2, X)
    I(f'v_lshlrev_b32 v{X+6}, 2, v{V_TID}')
    I(f's_mul_i32 s61, s2, {CH*4}')
    I(f's_mul_i32 s63, s2, {CH}')
    I(f's_sub_u32 s63, {E_EDGES}, s63')
    I(f's_min_u32 s63, s63, {CH}')
    I(f's_lshl_b32 s64, s63, 2')
    I(f'v_add_u32 v{X+8}, 4096, v{X+6}')
    I(f'v_add_u32 v{X+9}, 8192, v{X+6}')
    I(f'v_add_u32 v{X+10}, 12288, v{X+6}')
    I(f'v_lshrrev_b32 v{X+1}, 6, v{V_TID}')
    I(f'v_and_b32 v{V_LANE}, 63, v{V_TID}')
    I(f'v_readfirstlane_b32 s{S_W}, v{X+1}')
    I('s_and_b32 s3, s2, 7')
    I('s_lshl_b32 s3, s3, 5')
    I('s_lshr_b32 s60, s2, 3')
    I('s_add_u32 s3, s3, s60')
    if not opt('xmap', 1):
        I('s_mov_b32 s3, s2')
    I(f's_mul_i32 s62, s2, {CH*8}')
    I(f's_lshl_b32 s65, s63, 3')
    I(f'v_and_b32 v97, 0x50, v{V_TID}')
    I(f'v_lshlrev_b32 v96, 1, v97')
    I(f'v_or_b32 v97, v97, v96')
    I(f'v_and_b32 v97, 0x60, v97')
    I(f'v_xor_b32 v97, v97, v{X}')
    I(f'v_and_b32 v96, 0x20, v96')
    I(f'v_lshlrev_b32 v98, 4, v{V_LANE}')
    I(f'v_xor_b32 v96, v96, v98')
    I(f's_lshl_b32 s66, s{S_W}, 10')
    I(f'v_and_b32 v101, 0x1fff, v97')
    I(f'v_lshrrev_b32 v98, 3, v{V_TID}')
    I(f'v_bfe_u32 v99, v98, 1, 3')
    I(f'v_and_b32 v100, 7, v{V_TID}')
    I(f'v_xor_b32 v99, v99, v100')
    I(f'v_lshlrev_b32 v99, 4, v99')
    I(f'v_lshl_add_u32 v99, v98, 7, v99')
    I(f's_mul_i32 s60, s3, {NB*128}')
    I(f'v_add_u32 v99, s60, v99')
    I(f'v_add_u32 v96, 16384, v96')
    I('s_waitcnt lgkmcnt(0)')
    I(f's_or_b32 s67, s2, s{S_W}')
    I('s_cmp_lg_u32 s67, 0')
    I('s_cbranch_scc1 L_NOTAG')
    I('s_memrealtime s[68:69]')
    I(f'v_mov_b32 v{X+2}, 0')
    I('s_waitcnt lgkmcnt(0)')
    I('s_or_b32 s68, s68, 1')
    I(f'v_mov_b32 v{X+3}, s68')
    I('s_mov_b64 exec, 1')
    I(f'global_store_dword v{X+2}, v{X+3}, s[56:57] sc1')
    I('s_mov_b64 exec, -1')
    L('L_NOTAG')
    def dst_loads():
        srd_off(S_DST, 90, 91, 's61', 's64')
        for k in range(4):
            I(f'buffer_load_dword v{64+k}, v{X+6 if k == 0 else X+7+k}, {sr4(S_DST)}, 0 offen' + ELD)
    def dma_loads():
        srd(S_WS, 8, 9, 132 * 128)
        I(f's_add_u32 m0, s66, {WG_}')
        srd(S_XS, 84, 85, N_NODES * 128)
        I(f'buffer_load_dwordx4 v97, {sr4(S_WS)}, 0 offen lds')
        I(f's_cmp_lt_u32 s{S_W}, 8')
        I(f's_cselect_b32 s{S_NTS}, s6, s4')
        I(f's_cselect_b32 s{S_NTS+1}, s7, s5')
        I(f's_mov_b32 s{S_NTS+2}, {64*128}')
        I(f's_mov_b32 s{S_NTS+3}, 0x00020000')
        I(f's_add_u32 m0, s66, {WV_}')
        I('s_nop 0')
        I(f'buffer_load_dwordx4 v101, {sr4(S_NTS)}, 0 offen lds')
        I(f's_cmp_lt_u32 s{S_W}, 8')
        I('s_cbranch_scc0 L_D3B')
        I(f's_add_u32 m0, s66, {XOWN}')
        I('s_nop 0')
        I(f'buffer_load_dwordx4 v99, {sr4(S_XS)}, 0 offen lds')
        I('s_branch L_D3C')
        L('L_D3B')
        I(f's_mov_b32 m0, {WG_ + 16384}')
        I('s_nop 0')
        I(f'buffer_load_dwordx4 v96, {sr4(S_WS)}, 0 offen lds')
        L('L_D3C')
    if opt('t0', 0):
        I(f'v_and_b32 v60, 15, v{V_LANE}')
        I(f'v_lshlrev_b32 v60, 20, v60')
        I(f'v_and_b32 v61, 1, v{V_LANE}')
        I(f'v_lshlrev_b32 v61, 20, v61')
        I(f'global_load_dword v62, v60, s[58:59]')
        I(f'global_load_dword v63, v61, s[10:11]')
    ORDER = opt('order', 2)
    if ORDER == 0:
        dma_loads()
    dst_loads()
    if ORDER == 2:
        dma_loads()
    F1 = opt('f1', 1)
    if F1:
        I('s_barrier')
    srd_off(S_SRC, 88, 89, 's61', 's64')
    LATE = opt('late', 1)
    def src_load(k):
        I(f'buffer_load_dword v{68+k}, v{X+6 if k == 0 else 43+k}, {sr4(S_SRC)}, 0 offen' + ELD)
    for k in range(1, 4):
        I(f'v_mov_b32 v{43+k}, v{X+7+k}')
    for k in range(1 if LATE else 4):
        src_load(k)
    srd_off(S_EA, 86, 87, 's62', 's65')
    I(f'v_lshlrev_b32 v92, 3, v{V_TID}')
    for k in range(1, 4):
        I(f'v_add_u32 v{92+k}, {8192*k}, v92')
    def e_load(k):
        I(f'buffer_load_dwordx2 v[{72+2*k}:{73+2*k}], v{92+k}, {sr4(S_EA)}, 0 offen' + ELD)
    NEE = 1 if LATE else opt('nee', 4)
    for k in range(NEE):
        e_load(k)
    if ORDER == 1:
        dma_loads()
    I(f's_mov_b64 {sp(S_DBG)}, s[56:57]')
    I(f's_add_u32 s{S_WSP}, s58, 0x{WSB:x}')
    I(f's_addc_u32 s{S_WSP+1}, s59, 0')
    stamp(1)
    srd(S_OUT, 10, 11, N_NODES * 128)
    I(f's_mul_i32 s{S_T}, s2, {CAP*4}')
    srd_off(S_RW, S_WSP, S_WSP + 1, f's{S_T}', CAP * 4)
    I(f's_lshl_b32 s{S_T}, s{S_T}, 1')
    I(f's_add_u32 s{S_T}, s{S_T}, 0x{WS_RE:x}')
    srd_off(S_RE, S_WSP, S_WSP + 1, f's{S_T}', CAP * 8)
    I(f's_lshl_b32 s{S_T}, s2, 11')
    I(f's_add_u32 s{S_T}, s{S_T}, 0x{WS_TAB:x}')
    srd_off(S_TAB, S_WSP, S_WSP + 1, f's{S_T}', (KREP - 1) * 0x80000 + 2048)
    I(f's_mul_i32 s{S_T}, s3, {NB*256}')
    I(f's_add_u32 s{S_T}, s{S_T}, 0x{WS_NT:x}')
    srd_off(S_NTS, S_WSP, S_WSP + 1, f's{S_T}', NB * 256)
    I(f's_add_u32 s{S_NTG}, s{S_WSP}, 0x{WS_NT:x}')
    I(f's_addc_u32 s{S_NTG+1}, s{S_WSP+1}, 0')
    I(f's_or_b32 s{S_NTG+1}, s{S_NTG+1}, 0x80000000')
    I(f's_mov_b32 s{S_NTG+2}, 0x400000')
    I(f's_mov_b32 s{S_NTG+3}, 0x00c00000')
    srd_off(S_DST, S_WSP, S_WSP + 1, '0x%x' % WS_RW, NWG * CAP * 4)
    if not LATE:
        srd_off(S_SRC, S_WSP, S_WSP + 1, '0x%x' % WS_RE, NWG * CAP * 8)
    for k in range(4):
        I(f'v_add_u32 v{X+1}, {1024*k}, v{V_TID}')
        I(f'v_cmp_gt_u32 {sp(S_MASK+2*k)}, s63, v{X+1}')
    I(f's_mov_b32 s{S_C}, 0x{f2u(2.0**-KH):x}')
    I(f's_mov_b32 s{S_C+1}, 0x{f2u(2.0**-KH):x}')
    I(f's_mov_b32 s{S_JB}, 0')
    I(f's_mov_b32 s{S_WID}, 128')
    I(f'v_and_b32 v{V_J4}, 7, v{V_LANE}')
    I(f'v_lshlrev_b32 v{V_J4}, 3, v{V_J4}')
    if CM:
        I(f'v_and_b32 v{X+1}, 56, v{V_LANE}')
        I(f's_and_b32 s{S_T}, s{S_W}, 1')
        I(f's_lshl_b32 s{S_T}, s{S_T}, 7')
        I(f's_lshr_b32 s{S_T+1}, s{S_W}, 1')
        I(f's_add_u32 s{S_T}, s{S_T}, s{S_T+1}')
    else:
        I(f'v_lshrrev_b32 v{X+1}, 3, v{V_LANE}')
        I(f's_lshl_b32 s{S_T}, s{S_W}, 4')
    I(f'v_add_u32 v{X+1}, s{S_T}, v{X+1}')
    I(f'v_lshlrev_b32 v{V_TAB+2}, 11, v{X+1}')
    I(f'v_mul_u32_u24 v{V_CB4}, {CAP*4}, v{X+1}')
    I(f'v_add_u32 v{V_CB4}, v{V_CB4}, v{V_J4}')
    I(f'v_and_b32 v{V_CH8}, 31, v{V_LANE}')
    I(f'v_lshlrev_b32 v{V_CH8}, 3, v{V_CH8}')
    I(f'v_add_u32 v{V_CHP}, {PT}, v{V_CH8}')
    phase0_addr()
    a5_const()
    if not F1:
        I(f's_waitcnt vmcnt({8 + NEE if ORDER == 0 else 0})')
        I('s_barrier')
    stamp(2)
    def late_loads():
        if LATE:
            for k in range(1, 4):
                src_load(k)
        for k in range(NEE, 4):
            e_load(k)
        I(f'v_mov_b32 v12, 0')
        I(f'global_load_dword v10, v12, {sp(S_DBG)} sc1')
        if TCH:
            I(f'v_lshlrev_b32 v13, 13, v{V_LANE}')
            I(f'buffer_load_dword v60, v13, {sr4(S_RW)}, 0 offen')
            I(f'buffer_load_dword v61, v13, {sr4(S_RE)}, 0 offen')
            I(f'buffer_load_dword v62, v13, {sr4(S_TAB)}, 0 offen')
            I(f'buffer_load_dword v63, v13, {sr4(S_NTS)}, 0 offen')
        srd_off(S_EA, S_WSP, S_WSP + 1, '0x%x' % WS_TAB, KREP * 0x80000)
        if LATE:
            srd_off(S_SRC, S_WSP, S_WSP + 1, '0x%x' % WS_RE, NWG * CAP * 8)
    if not LATE:
        late_loads()
    if not F1:
        phase0a()
    I(f's_mov_b32 s{S_T}, -{NB}')
    I(f'v_mov_b32 v{X+1}, 4')
    BN, WD, RK = 28, 32, 36
    for k in range(4):
        I(f's_waitcnt vmcnt({((5 if ORDER == 0 else 8) if LATE else (12 if ORDER == 0 else 15) + TCH) - k})')
        I(f's_mov_b64 exec, {sp(S_MASK+2*k)}')
        if k == 3:
            I('s_cbranch_execz L_B1')
        I(f'v_mul_u32_u24 v{BN+k}, 21400, v{64+k}')
        I(f'v_lshrrev_b32 v{BN+k}, 20, v{BN+k}')
        I(f'v_mad_i32_i24 v{WD+k}, v{BN+k}, s{S_T}, v{64+k}')
        I(f'v_lshlrev_b32 v{BN+k}, 2, v{BN+k}')
        I(f'ds_add_rtn_u32 v{RK+k}, v{BN+k}, v{X+1} offset:{HIST}')
        I(f'v_lshlrev_b32 v{WD+k}, 26, v{WD+k}')
    L('L_B1')
    I('s_mov_b64 exec, -1')
    if LATE:
        late_loads()
    I(f'v_add_u32 v{X+1}, {NTI}, v{X}')
    stamp(3)
    I({0: 's_waitcnt lgkmcnt(0)', 1: 's_waitcnt vmcnt(1) lgkmcnt(0)', 2: f's_waitcnt vmcnt({9 + TCH}) lgkmcnt(0)'}[ORDER])
    I('s_barrier')
    stamp(4)
    if not F1:
        I(f'ds_read_b128 v[112:115], v{X+1}')
    I(f's_cmp_lg_u32 s{S_W}, 0')
    I('s_cbranch_scc1 L_NOSCAN')
    I(f'ds_read_b128 v[96:99], v{X} offset:{HIST}')
    I('s_waitcnt lgkmcnt(0)')
    for k in range(4):
        I(f'v_add_u32 v{108+k}, 4, v{96+k}')
        I(f'v_and_b32 v{108+k}, -8, v{108+k}')
    I('v_add_u32 v101, v108, v109')
    I('v_add_u32 v102, v101, v110')
    I('v_add_u32 v103, v102, v111')
    I('v_mov_b32 v104, v103')
    wave_scan(104)
    I(f'v_readlane_b32 s{S_T+4}, v104, 63')
    I('v_sub_u32 v104, v104, v103')
    I(f'v_mov_b32 v100, {MISC+8}')
    I(f'v_mov_b32 v105, s{S_T+4}')
    I('ds_write_b32 v100, v105')
    I('v_add_u32 v105, v104, v108')
    I('v_add_u32 v106, v104, v101')
    I('v_add_u32 v107, v104, v102')
    I(f'ds_write_b128 v{X}, v[104:107] offset:{HBASE}')
    for k in range(4):
        I(f'v_lshl_or_b32 v{108+k}, v{96+k}, 16, v{104+k}')
    I(f'ds_write_b128 v{X}, v[108:111] offset:{HIST}')
    L('L_NOSCAN')
    if F1:
        phase0a()
    I('s_waitcnt lgkmcnt(0)')
    if not F1:
        I(f'buffer_store_dwordx4 v[112:115], v{X}, {sr4(S_NTS)}, 0 offen' + SC)
    if T1:
        I(f's_mul_i32 s{S_T+4}, s3, {NB*128}')
        I(f'v_mov_b32 v60, s{S_T+4}')
        I(f'buffer_load_dword v61, v60, {sr4(S_OUT)}, 0 offen')
    if not SRCL:
        I(f's_waitcnt vmcnt({4 + TCH + T1 if LATE else 6 - F1 + TCH + T1})')
        for k in range(4):
            I(f'v_lshl_or_b32 v{WD+k}, v{68+k}, 3, v{WD+k}')
    I('s_barrier')
    stamp(5)
    if F1:
        I(f'ds_read_b128 v[112:115], v{X+1}')
    for k in range(4):
        I(f's_mov_b64 exec, {sp(S_MASK+2*k)}')
        I(f'ds_read_b32 v{BN+k}, v{BN+k} offset:{HBASE}')
    if F1:
        I('s_mov_b64 exec, -1')
        I('s_waitcnt lgkmcnt(4)')
        I(f'buffer_store_dwordx4 v[112:115], v{X}, {sr4(S_NTS)}, 0 offen' + SC)
    if SRCL == 1:
        I(f's_waitcnt vmcnt({5 + TCH + T1})')
        for k in range(4):
            I(f'v_lshl_or_b32 v{WD+k}, v{68+k}, 3, v{WD+k}')
    if SRCL < 2:
        I(f's_waitcnt vmcnt({1 + TCH + T1})')
        I(f'v_readfirstlane_b32 s{S_TAG}, v10')
    for k in range(4):
        I(f's_mov_b64 exec, {sp(S_MASK+2*k)}')
        if k == 3:
            I('s_cbranch_execz L_B2')
        if SRCL == 2:
            assert LATE and not TCH and not T1
            I(f's_waitcnt vmcnt({(8, 4, 3, 2)[k]}) lgkmcnt({3 - k + 2*k})')
            I(f'v_lshl_or_b32 v{WD+k}, v{68+k}, 3, v{WD+k}')
        else:
            I(f's_waitcnt lgkmcnt({3 - k + 2*k})')
        I(f'v_add_u32 v{RK+k}, v{BN+k}, v{RK+k}')
        I(f'v_add_u32 v{BN+k}, v{RK+k}, v{RK+k}')
        I(f'ds_write_b32 v{RK+k}, v{WD+k} offset:{STGW}')
        I(f'ds_write_b64 v{BN+k}, v[{72+2*k}:{73+2*k}] offset:{STGE}')
    L('L_B2')
    I('s_mov_b64 exec, -1')
    if SRCL == 2:
        I('s_waitcnt vmcnt(1)')
        I(f'v_readfirstlane_b32 s{S_TAG}, v10')
    I(f'v_mov_b32 v13, {MISC+8}')
    I(f'ds_read_b32 v13, v13')
    I(f's_mov_b32 s{S_T}, 0x40000')
    L('L_TAGP')
    I(f's_cmp_lg_u32 s{S_TAG}, 0')
    I('s_cbranch_scc1 L_TAGD')
    I(f'v_mov_b32 v12, 0')
    I(f'global_load_dword v10, v12, {sp(S_DBG)} sc1')
    I('s_waitcnt vmcnt(0)')
    I(f'v_readfirstlane_b32 s{S_TAG}, v10')
    I(f's_sub_u32 s{S_T}, s{S_T}, 1')
    I('s_cbranch_scc1 L_END')
    I('s_branch L_TAGP')
    L('L_TAGD')
    I(f'v_add_u32 v{X+2}, 16384, v{X}')
    I(f'v_lshlrev_b32 v12, 3, v{V_LANE}')
    I(f's_mul_i32 s{S_TAG2}, s{S_TAG}, 0x9e3779b1')
    I(f's_and_b32 s{S_TAG2}, s{S_TAG2}, 0x{TAGM:x}')
    I('s_waitcnt lgkmcnt(0)')
    I(f'v_readfirstlane_b32 s{S_T}, v13')
    I('s_barrier')
    I(f's_add_u32 s{S_T}, s{S_T}, 127')
    I(f's_and_b32 s{S_RW+2}, s{S_T}, -128')
    I(f's_lshl_b32 s{S_RE+2}, s{S_RW+2}, 1')
    stamp(6)
    if opt('early', 0):
        I(f'ds_read_b64 v[92:93], v12 offset:{HIST}')
        I(f'ds_read_b64 v[94:95], v12 offset:{HIST+512}')
        I(f'v_lshlrev_b32 v60, 4, v{V_LANE}')
        I('s_waitcnt lgkmcnt(0)')
        for k in range(4):
            I(f'v_or_b32 v{120+2*k}, s{S_TAG2}, v{92+k}')
            I(f'v_mov_b32 v{121+2*k}, s{S_TAG}')
        I(f's_cmp_lg_u32 s{S_W}, 0')
        I('s_cbranch_scc1 L_EARLY')
        I(f'buffer_store_dwordx4 v[120:123], v60, {sr4(S_TAB)}, 0 offen' + SC)
        I(f'buffer_store_dwordx4 v[124:127], v60, {sr4(S_TAB)}, 0 offen offset:1024' + SC)
        L('L_EARLY')
    I(f'ds_read_b128 v[64:67], v{X} offset:{STGW}')
    I(f'ds_read_b128 v[68:71], v{X} offset:{STGE}')
    I(f'ds_read_b128 v[72:75], v{X} offset:{STGE+16384}')
    I(f'ds_read_b64 v[92:93], v12 offset:{HIST}')
    I(f'ds_read_b64 v[94:95], v12 offset:{HIST+512}')
    I('s_waitcnt lgkmcnt(4)')
    I(f'buffer_store_dwordx4 v[64:67], v{X}, {sr4(S_RW)}, 0 offen' + SC)
    I('s_waitcnt lgkmcnt(3)')
    I(f'buffer_store_dwordx4 v[68:71], v{X}, {sr4(S_RE)}, 0 offen' + SC)
    I('s_waitcnt lgkmcnt(2)')
    I(f'buffer_store_dwordx4 v[72:75], v{X+2}, {sr4(S_RE)}, 0 offen' + SC)
    I('s_waitcnt lgkmcnt(0)')
    for k in range(4):
        I(f'v_or_b32 v{120+2*k}, s{S_TAG2}, v{92+k}')
        I(f'v_mov_b32 v{121+2*k}, s{S_TAG}')
    PF1 = opt('pf1', 0)
    if PF1:
        nt_prefetch(12, 49 - PF1, PF1, 61)
    pre = opt('pre', 'xbc').replace('0', '')
    def piece(c):
        if c == 'x':
            zregs()
            zero_range(EXTRA, 16384, X + 2, X)
            fill_desca()
        elif c == 'b':
            phase0b()
        elif c == 'c':
            phase0c()
    for c in pre:
        piece(c)
    stamp(7)
    I(f's_lshl_b32 s{S_T+1}, s3, 3')
    I(f'v_add_u32 v76, s{S_T+1}, v{V_TAB+2}')
    I(f'v_add_u32 v77, {RSTEP*2048}, v76')
    I(f'v_lshlrev_b32 v60, 4, v{V_LANE}')
    for r in range(2):
        I(f's_mov_b64 {sp(S_MASK+2*r)}, -1')
    I(f's_waitcnt vmcnt({1 if PF1 else 0})')
    stamp(8)
    I('s_barrier')
    stamp(9)
    I(f's_cmp_lg_u32 s{S_W}, {99 if opt("early", 0) else 0}')
    I('s_cbranch_scc1 L_POLL0')
    for k in range(KREP - 1, -1, -1):
        I(f's_mov_b32 s{S_T}, 0x{k*0x80000:x}')
        I(f'buffer_store_dwordx4 v[120:123], v60, {sr4(S_TAB)}, s{S_T} offen' + SC)
        I(f'buffer_store_dwordx4 v[124:127], v60, {sr4(S_TAB)}, s{S_T} offen offset:1024' + SC)
    L('L_POLL0')
    PF2 = opt('pf2', 0)
    if PF2:
        nt_prefetch(61, 49 - PF2, PF2, 63)
    EP = opt('ep', 0)
    for r in range(2 if EP else 0):
        I(f'buffer_load_dwordx2 {p(64+2*r)}, v{76+r}, {sr4(S_EA)}, 0 offen' + LSC)
    for c in 'xbc':
        if c not in pre:
            piece(c)
    fill_words()
    zregs()
    zero_range(LE, CNT - LE, X + 2, X)
    ptr_consts()
    I(f's_mov_b32 s{S_T}, 0x40000')
    I(f's_mov_b32 s{S_T+1}, 0x{TAGM:x}')
    if opt('ps', 0):
        I(f's_sleep {opt("ps", 0)}')
    if EP:
        I('s_branch L_POLLC')
    L('L_POLL')
    for r in range(2):
        I(f's_mov_b64 exec, {sp(S_MASK+2*r)}')
        I(f'buffer_load_dwordx2 {p(64+2*r)}, v{76+r}, {sr4(S_EA)}, 0 offen' + LSC)
    L('L_POLLC')
    for r in range(2):
        I(f's_waitcnt vmcnt({1-r})')
        I(f's_mov_b64 exec, {sp(S_MASK+2*r)}')
        I(f'v_xor_b32 v{V_TAB+r}, s{S_TAG2}, v{64+2*r}')
        I(f'v_xor_b32 v{65+2*r}, s{S_TAG}, v{65+2*r}')
        I(f'v_and_or_b32 v{65+2*r}, v{V_TAB+r}, s{S_T+1}, v{65+2*r}')
        I(f'v_cmp_ne_u32 {sp(S_MASK+2*r)}, 0, v{65+2*r}')
    I(f's_or_b64 {sp(S_T+2)}, {sp(S_MASK)}, {sp(S_MASK+2)}')
    I('s_cbranch_scc0 L_POLLED')
    I(f's_sub_u32 s{S_T}, s{S_T}, 1')
    I('s_cbranch_scc1 L_END')
    if opt('sleep', 0):
        I(f's_sleep {opt("sleep", 0)}')
    I('s_branch L_POLL')
    L('L_POLLED')
    I('s_mov_b64 exec, -1')
    stamp(10)
    def RB(s_): return 64 + 8 * (s_ >> 1)
    def MK(s_): return sp(S_MASK + 2 * s_)
    AD = X
    L('L_PASS')
    I(f'v_add_u32 v{X+10}, s{S_JB}, v{V_CB4}')
    I(f'v_add_u32 v{X+8}, s{S_JB}, v{V_J4}')
    SDW = 'src0_sel:DWORD src1_sel:WORD_1'
    for r in range(2):
        I(f'v_add_u32_sdwa v{X+r}, v{V_TAB+r}, v{X+10} dst_sel:DWORD dst_unused:UNUSED_PAD src0_sel:WORD_0 src1_sel:DWORD')
        I(f'v_cmp_lt_u32_sdwa {MK(2*r)}, v{X+8}, v{V_TAB+r} {SDW}')
        if r:
            I(f'v_add_u32 v{X+r}, {RSTEP*CAP*4}, v{X+r}')
        I(f'v_add_u32 v{X+2+r}, v{X+r}, v{X+r}')
        I(f's_mov_b64 exec, {MK(2*r)}')
        I(f'buffer_load_dwordx2 {p(RB(2*r)+4)}, v{X+r}, {sr4(S_DST)}, 0 offen' + LSC)
        I(f'buffer_load_dwordx4 {vr(RB(2*r),4)}, v{X+2+r}, {sr4(S_SRC)}, 0 offen' + LSC)
        I('s_mov_b64 exec, -1')
    I(f'v_add_u32 v{X+9}, s{S_WID}, v{X+8}')
    I(f'v_add_u32 v{X+10}, 4, v{X+8}')
    I(f's_cmp_eq_u32 s{S_WID}, 128')
    I(f's_cselect_b32 s{S_T}, 64, 0x10000')
    I(f'v_add_u32 v{X+8}, s{S_T}, v{X+8}')
    for r in range(2):
        I(f'v_cmp_lt_u32_sdwa {MK(4+2*r)}, v{X+8}, v{V_TAB+r} {SDW}')
        I(f'v_cmp_lt_u32_sdwa {MK(2*r+1)}, v{X+10}, v{V_TAB+r} {SDW}')
    I(f'v_add_u32 v{X+8}, 4, v{X+8}')
    for r in range(2):
        I(f's_mov_b64 exec, {MK(4+2*r)}')
        I(f'buffer_load_dwordx2 {p(RB(4+2*r)+4)}, v{X+r}, {sr4(S_DST)}, 0 offen offset:64' + LSC)
        I(f'buffer_load_dwordx4 {vr(RB(4+2*r),4)}, v{X+2+r}, {sr4(S_SRC)}, 0 offen offset:128' + LSC)
    I('s_mov_b64 exec, -1')
    for r in range(2):
        I(f'v_cmp_lt_u32_sdwa {MK(5+2*r)}, v{X+8}, v{V_TAB+r} {SDW}')
    I(f'v_cmp_lt_u32_sdwa vcc, v{X+9}, v{V_TAB} {SDW}')
    I(f'v_cmp_lt_u32_sdwa {sp(S_T)}, v{X+9}, v{V_TAB+1} {SDW}')
    I(f'v_mov_b32 v{X+8}, 4')
    I(f's_or_b64 vcc, vcc, {sp(S_T)}')
    I(f's_cbranch_scc0 L_NOMORE')
    I(f'v_mov_b32 v{X+9}, {MISC}')
    I(f'ds_write_b32 v{X+9}, v{X+8}')
    L('L_NOMORE')
    stamp(11)
    for s_ in range(8):
        if s_ >= 4:
            I(f's_mov_b64 exec, {MK(s_)}')
            I(f's_cbranch_execz L_C{s_}')
        if s_ % 2 == 0:
            I(f's_waitcnt vmcnt({7 - s_})')
        if s_ < 4:
            I(f's_mov_b64 exec, {MK(s_)}')
        I(f'v_lshrrev_b32 v{AD+s_}, 24, v{RB(s_)+4+(s_&1)}')
        if opt('safe', 0):
            I(f'v_and_b32 v{AD+s_}, 0xfc, v{AD+s_}')
        I(f'ds_add_rtn_u32 v{RB(s_)+6+(s_&1)}, v{AD+s_}, v{X+8} offset:{CNT}')
        if s_ >= 4:
            L(f'L_C{s_}')
    I('s_mov_b64 exec, -1')
    I(f'v_lshlrev_b32 v{X+8}, 2, v{V_LANE}')
    I(f'v_mov_b32 v{X+9}, {MISC}')
    I(f's_mov_b32 s{S_T+2}, 0x1fff8')
    I('s_waitcnt lgkmcnt(0)')
    I('s_barrier')
    stamp(12)
    if NPFM in (2, 3, 4):
        nt_prefetch(60, dst=62)
        I(f's_mov_b32 s{S_T+2}, 0x1fff8')
    NG, GS, MI = X + 10, X + 11, X + 12
    I(f'ds_read_b32 v{NG}, v{X+8} offset:{CNT}')
    I(f'ds_read_b32 v{X+9}, v{X+9}')
    I('s_waitcnt lgkmcnt(1)')
    I(f'v_add_u32 v{NG}, 28, v{NG}')
    I(f'v_and_b32 v{NG}, 0xffffffe0, v{NG}')
    I(f'v_mov_b32 v{GS}, v{NG}')
    wave_scan(GS)
    I(f'v_readlane_b32 s{S_T}, v{GS}, 63')
    I(f'v_sub_u32 v{GS}, v{GS}, v{NG}')
    if PROF == 5:
        stamp(19)
    I(f'ds_write_b32 v{X+8}, v{GS} offset:{BASET}')
    for s_ in range(8):
        I(f's_mov_b64 exec, {MK(s_)}')
        I(f'ds_read_b32 v{AD+s_}, v{AD+s_} offset:{BASET}')
    I('s_mov_b64 exec, -1')
    I(f'v_readfirstlane_b32 s{S_MORE}, v{X+9}')
    out.insert(len(out) - 1, '    s_waitcnt lgkmcnt(9)')
    I(f's_lshr_b32 s{S_T}, s{S_T}, 5')
    I(f's_cmp_eq_u32 s{S_WID}, 128')
    I(f's_cselect_b32 s{S_T+1}, {MAXG}, -1')
    I(f's_cmp_gt_u32 s{S_T}, s{S_T+1}')
    I('s_cbranch_scc1 L_OVERFLOW')
    def place(tag):
        I(f's_waitcnt vmcnt({NPF}) lgkmcnt(0)')
        for s_ in range(8):
            wd, rk, ee = RB(s_) + 4 + (s_ & 1), RB(s_) + 6 + (s_ & 1), RB(s_) + 2 * (s_ & 1)
            I(f's_mov_b64 exec, {MK(s_)}')
            if s_ >= 4:
                I(f's_cbranch_execz L_P{tag}{s_}')
            I(f'v_add_u32 v{AD+s_}, v{AD+s_}, v{rk}')
            I(f'v_and_b32 v{wd}, s{S_T+2}, v{wd}')
            I(f'v_add_u32 v{rk}, v{AD+s_}, v{AD+s_}')
            I(f'ds_write_b32 v{AD+s_}, v{wd} offset:{LS}')
            I(f'ds_write_b64 v{rk}, {p(ee)} offset:{LE}')
            if s_ >= 4:
                L(f'L_P{tag}{s_}')
        I('s_mov_b64 exec, -1')
    if PROF == 5:
        stamp(20)
    SWAP = opt('swap', 0)
    if SWAP:
        I(f's_bitcmp1_b32 s{S_W}, {SWAP}')
        I('s_cbranch_scc0 L_DFIRST')
        place('a')
        L('L_DFIRST')
    SB_, SR_, SG0 = S_T + 4, S_T + 5, S_T + 6
    I(f's_add_u32 s{S_T}, s{S_T}, 3')
    I(f's_lshr_b32 s{S_T}, s{S_T}, 2')
    I(f's_lshr_b32 s{SB_}, s{S_T}, 4')
    I(f's_and_b32 s{SR_}, s{S_T}, 15')
    I(f's_add_u32 s{S_T+1}, s{SB_}, 1')
    I(f'v_cvt_f32_u32 v{MI}, s{S_T+1}')
    I(f'v_cvt_f32_u32 v{MI+1}, s{SB_}')
    I(f'v_rcp_f32 v{MI}, v{MI}')
    I(f'v_rcp_f32 v{MI+1}, v{MI+1}')
    I(f's_mul_i32 s{SG0}, s{SR_}, s{S_T+1}')
    I(f's_lshl_b32 s{SG0}, s{SG0}, 2')
    I(f'v_lshrrev_b32 v{GS}, 5, v{GS}')
    I(f'v_mul_f32 v{MI}, 0x47800000, v{MI}')
    I(f'v_mul_f32 v{MI+1}, 0x47800000, v{MI+1}')
    I(f'v_lshrrev_b32 v{NG}, 5, v{NG}')
    I(f'v_cvt_u32_f32 v{MI}, v{MI}')
    I(f'v_cvt_u32_f32 v{MI+1}, v{MI+1}')
    I(f's_cmp_lt_u32 s{S_W}, s{SR_}')
    I(f's_cselect_b32 s{S_L}, s{S_T+1}, s{SB_}')
    I(f'v_add_u32 v{MI}, 2, v{MI}')
    I(f'v_add_u32 v{MI+1}, 2, v{MI+1}')
    I(f's_min_u32 s{S_T}, s{S_W}, s{SR_}')
    I(f's_mul_i32 s{S_T+3}, s{S_W}, s{SB_}')
    I(f's_add_u32 s{S_T+3}, s{S_T+3}, s{S_T}')
    I(f's_sub_u32 s{S_T+1}, 0, s{S_T+1}')
    I(f's_sub_u32 s{SB_}, 0, s{SB_}')
    I(f's_lshl_b32 s{SR_}, s{SR_}, 2')
    D0, D1, D2, D3, NR = 96, 97, 98, 99, 100
    I(f'v_lshlrev_b32 v{NR}, 8, v{V_LANE}')
    I(f'v_add_u32 v{NR+1}, {ACCN}, v{NR}')
    I(f's_mov_b32 s{S_T}, s{S_W}')
    L('L_DLOOP')
    I(f'v_cmp_lt_u32 vcc, s{S_T}, v{NG}')
    I('s_and_b64 exec, exec, vcc')
    I('s_cbranch_execz L_DEND')
    I(f'v_add_u32 v{D0}, s{S_T}, v{GS}')
    I(f'v_subrev_u32 v{D1}, s{SG0}, v{D0}')
    I(f'v_cmp_gt_u32 vcc, s{SG0}, v{D0}')
    I(f'v_mul_u32_u24 v{D2}, v{D0}, v{MI}')
    I(f'v_mul_u32_u24 v{D3}, v{D1}, v{MI+1}')
    I(f'v_lshrrev_b32 v{D2}, 16, v{D2}')
    I(f'v_lshrrev_b32 v{D3}, 16, v{D3}')
    I(f'v_mad_i32_i24 v{D0}, v{D2}, s{S_T+1}, v{D0}')
    I(f'v_mad_i32_i24 v{D1}, v{D3}, s{SB_}, v{D1}')
    I(f'v_add_u32 v{D3}, s{SR_}, v{D3}')
    I(f'v_cndmask_b32 v{D0}, v{D1}, v{D0}, vcc')
    I(f'v_cndmask_b32 v{D2}, v{D3}, v{D2}, vcc')
    I(f'v_cmp_le_u32 vcc, s{S_T}, v{D0}')
    I(f'v_lshl_add_u32 v{D0}, v{D0}, 6, v{D2}')
    I(f'v_lshlrev_b32 v{D1}, 8, v{D2}')
    I(f'v_lshlrev_b32 v{D0}, 2, v{D0}')
    I(f'v_add_u32 v{D1}, {EXTRA}, v{D1}')
    I(f'v_add_u32 v{D3}, {DESCA}, v{D0}')
    I(f'v_cndmask_b32 v{D1}, v{D1}, v{NR+1}, vcc')
    I(f'ds_write_b32 v{D0}, v{NR} offset:{DESCP}')
    I(f'ds_write_b32 v{D3}, v{D1}')
    I(f's_add_u32 s{S_T+7}, s{S_T}, 1')
    I(f'v_cmp_eq_u32 vcc, s{S_T+7}, v{NG}')
    I(f's_and_saveexec_b64 {sp(S_EX)}, vcc')
    I(f'ds_write_b32 v{X+8}, v{D2} offset:{NINFO+256}')
    I(f's_mov_b64 exec, {sp(S_EX)}')
    I(f's_cmp_lg_u32 s{S_T}, 0')
    I('s_cbranch_scc1 L_DNF')
    I(f'ds_write_b32 v{X+8}, v{D2} offset:{NINFO}')
    L('L_DNF')
    I(f's_add_u32 s{S_T}, s{S_T}, 16')
    I('s_branch L_DLOOP')
    L('L_DEND')
    I('s_mov_b64 exec, -1')
    I(f's_lshl_b32 s{S_T}, s{S_T+3}, 7')
    I(f's_lshl_b32 s{S_T+1}, s{S_L}, 5')
    I(f'v_mov_b32 v{D0}, s{S_T}')
    I(f'v_mad_u32_u24 v{V_PS0}, v{V_PS1}, s{S_T+1}, v{D0}')
    I(f'v_add_u32 v{D0}, v{D0}, v{D0}')
    I(f'v_add_u32 v{V_PS1}, s{S_T+1}, v{V_PS0}')
    I(f'v_add_u32 v{V_PE}, v{V_PE}, v{D0}')
    I(f's_lshl_b32 s{S_T+1}, s{S_L}, 6')
    I(f'v_mad_u32_u24 v{V_PE}, v{V_VAP}, s{S_T+1}, v{V_PE}')
    if opt('safe', 0):
        I(f's_min_u32 s{S_L}, s{S_L}, 9')
        I(f's_mov_b32 s{S_MORE}, 0')
    I(f's_mov_b32 s{S_CNT}, s{S_L}')
    if SWAP:
        I(f's_bitcmp1_b32 s{S_W}, {SWAP}')
        I('s_cbranch_scc1 L_PDONE')
    if PROF == 5:
        stamp(21)
    place('b')
    L('L_PDONE')
    stamp(13)
    I('s_waitcnt lgkmcnt(0)')
    I('s_barrier')
    stamp(14)
    I(f's_cmp_eq_u32 s{S_L}, 0')
    I('s_cbranch_scc1 L_FOLD')
    lg = Lg()
    FP = opt('fp', 0)
    if FP:
        for lvl in (3, 2, 1):
            I(f's_cmp_lt_u32 s{S_W}, {4 * (4 - lvl)}')
            I(f's_cbranch_scc0 L_FP{lvl}')
            I(f's_setprio {lvl}')
            I('s_branch L_FPD')
            L(f'L_FP{lvl}')
        L('L_FPD')
    s_reads(lg, 0)
    lg.op('dP', f'ds_read_b64 {p(V_VAP)}, v{V_PD}')
    lg.op('dA', f'ds_read_b64 {p(V_VAA[0])}, v{V_PD} offset:{DESCA-DESCP}')
    lg.op('e', f'ds_read_b64 {p(A5)}, v{V_PE}')
    lg.need('S0', 'S1', 'S2', 'S3')
    s_safe()
    STG_ = [int(x) for x in opt('stag', '0,0,0').split(',')]
    for gi, d in enumerate(STG_):
        if d:
            I(f's_cmp_ge_u32 s{S_W}, {4 * (gi + 1)}')
            I(f's_cbranch_scc0 L_ST{gi}')
            I(f's_sleep {d}')
            L(f'L_ST{gi}')
    for n in range(2):
        for i in range(16):
            I(gload(n, i))
        if n == 0 and FP == 2:
            I('s_setprio 0')
    s_reads(lg, 1)
    I(f'v_mov_b32 v{V_C8P}, v{V_CH8}')
    I(f'v_mov_b32 v{V_C8P+1}, v{V_CH8}')
    I(f'v_mov_b32 v{V_CPP}, v{V_CHP}')
    I(f'v_mov_b32 v{V_CPP+1}, v{V_CHP}')
    if M8:
        I(f'v_mov_b32 v{V_SCP}, 0x{f2u(2.0**KH):x}')
        I(f'v_mov_b32 v{V_SCP+1}, 0x{f2u(2.0**KH):x}')
    I(f's_mov_b32 s{S_BP0}, 64')
    I(f's_mov_b32 s{S_BP0+1}, 64')
    I(f's_mov_b32 s{S_BP1}, 128')
    I(f's_mov_b32 s{S_BP1+1}, 512')
    lg.need('dP', 'dA')
    va_add(V_VAP, V_VAA[0])
    lg.op('P0a', f'ds_read_b32 v{B5[0]+2}, v{V_VAP}')
    lg.op('P0b', f'ds_read_b32 v{B5[0]+3}, v{V_VAP+1}')
    lg.op('P1a', f'ds_read_b32 v{B5[1]+2}, v{V_VAP} offset:4')
    lg.op('P1b', f'ds_read_b32 v{B5[1]+3}, v{V_VAP+1} offset:4')
    I(f's_cmp_eq_u32 s{S_CNT}, 1')
    I(f's_cselect_b64 {sp(S_LDX)}, 0, {LDXV}')
    I('s_waitcnt lgkmcnt(0)')
    lg.q = []
    if opt('prio', 3):
        I('s_setprio 3')
    stamp(15)
    rstamp(28)
    half(lg, 0, 0, 0, False)
    if PROF == 4:
        stamp(19)
        lg.q = []
    state0 = list(lg.q)
    def step(par, uo):
        prio(f'm{par}', 1)
        half(lg, 1, par, uo)
        if PROF == 4:
            I('s_memtime s[98:99]')
            I(f's_sub_u32 s92, s{S_L}, s{S_CNT}')
            I(f's_add_u32 m0, s92, 20')
            I('s_waitcnt lgkmcnt(0)')
            I(f'v_writelane_b32 v{V_PROF}, s98, m0')
        I(f's_sub_u32 s{S_CNT}, s{S_CNT}, 1')
        I(f's_cmp_eq_u32 s{S_CNT}, 0')
        I(f's_cbranch_scc1 L_FIN{par}')
        I(f's_cmp_eq_u32 s{S_CNT}, 1')
        I(f's_cselect_b64 {sp(S_LDX)}, 0, {LDXV}')
        prio(f'{par}')
        half(lg, 0, par ^ 1, uo + 1)
    def loop_body():
        step(0, 0)
        step(1, 1)
        I(f'v_lshl_add_u64 {p(V_PS0)}, {p(V_PS0)}, 0, {sp(S_BP0)}')
        I(f'v_lshl_add_u64 {p(V_PE)}, {p(V_PE)}, 0, {sp(S_BP1)}')
        I('s_branch L_LOOP')
    mark = len(out)
    loop_body()
    del out[mark:]
    qb = list(lg.q)
    n = min(len(qb), len(state0))
    assert PROF == 4 or qb[len(qb)-n:] == state0[len(state0)-n:], (state0, qb)
    lg.q = list(qb if len(qb) >= len(state0) else state0)
    e('.p2align 3')
    L('L_LOOP')
    mark = len(out)
    loop_body()
    drop = opt('drop', '')
    if drop:
        body = out[mark:]
        keep = []
        for l in body:
            t = l.strip()
            if 'v' in drop and (t.startswith('buffer_load') or t.startswith('s_mov_b64 exec') or 'vmcnt' in t):
                continue
            if 'l' in drop and (t.startswith('ds_') or 'lgkmcnt' in t):
                continue
            if 'm' in drop and t.startswith('v_mfma'):
                continue
            if 'n' in drop and t.startswith('s_nop'):
                continue
            keep.append(l)
        out[mark:] = keep
    assert lg.q == qb, (lg.q, qb)
    print('loop entry queue', state0, 'back edge queue', qb, file=sys.stderr)
    for pr in range(2):
        L(f'L_FIN{pr}')
        if M8:
            I(f'v_pk_mul_f32 {p(V_T01N)}, {p(V_T01N)}, {p(V_T23D)}')
            I(f'v_pk_mul_f32 {p(V_T23D)}, {p(V_T01D)}, {p(V_T23D)}')
            I(f'v_pk_fma_f32 {p(V_T01N)}, {p(V_T23N)}, {p(V_T01D)}, {p(V_T01N)}')
            I(f'v_rcp_f32 v{V_T23D}, v{V_T23D}')
            I(f'v_rcp_f32 v{V_T23D+1}, v{V_T23D+1}')
            I('s_waitcnt lgkmcnt(0)')
            I(f'v_pk_fma_f32 {p(V_MB)}, {p(V_T01N)}, {p(V_T23D)}, {p(V_MB)}')
        else:
            for r_ in (V_T01D, V_T01D + 1, V_T23D, V_T23D + 1):
                I(f'v_rcp_f32 v{r_}, v{r_}')
            I('s_waitcnt lgkmcnt(0)')
            I(f'v_pk_fma_f32 {p(V_MB)}, {p(V_T01N)}, {p(V_T01D)}, {p(V_MB)}')
            I(f'v_pk_fma_f32 {p(V_MB)}, {p(V_T23N)}, {p(V_T23D)}, {p(V_MB)}')
        acc_write(Lg(), V_VAA[pr])
        if pr == 0:
            I('s_branch L_FOLD')
    L('L_FOLD')
    stamp(16)
    FL = opt('fl', 0)
    I(f'v_lshrrev_b32 v{X}, 4, v{V_TID}')
    I(f'v_and_b32 v{X+1}, 15, v{V_TID}')
    if FL:
        I(f'v_lshlrev_b32 v{X+6}, 3, v{X+1}')
        I(f'v_lshrrev_b32 v{X+2}, 3, v{X+1}')
        I(f'v_and_b32 v{X+1}, 7, v{X+1}')
        I(f'v_lshlrev_b32 v{X+1}, 5, v{X+1}')
        I(f'v_lshl_add_u32 v{X+1}, v{X+2}, 2, v{X+1}')
    else:
        I(f'v_lshlrev_b32 v{X+6}, 2, v{X+1}')
        I(f'v_lshlrev_b32 v{X+1}, 4, v{X+1}')
    I(f'v_lshl_add_u32 v{X+2}, v{X}, 8, v{X+1}')
    I(f'v_add_u32 v{X+2}, {ACCN}, v{X+2}')
    I(f'v_add_u32 v{X+1}, {EXTRA}, v{X+1}')
    def rd4(dst, ad):
        if FL:
            I(f'ds_read2_b32 v[{dst}:{dst+1}], v{ad} offset0:0 offset1:2')
            I(f'ds_read2_b32 v[{dst+2}:{dst+3}], v{ad} offset0:4 offset1:6')
        else:
            I(f'ds_read_b128 v[{dst}:{dst+3}], v{ad}')
    I(f'v_lshlrev_b32 v{X+3}, 2, v{X}')
    I(f's_mul_i32 s{S_T+4}, s3, {NB*128}')
    I(f'v_lshl_add_u32 v{X+6}, v{X}, 7, v{X+6}')
    I(f'v_add_u32 v{X+6}, s{S_T+4}, v{X+6}')
    I(f'v_mov_b32 v{X+7}, 0')
    I(f'ds_read_b32 v{X+4}, v{X+3} offset:{NINFO}')
    I(f'ds_read_b32 v{X+5}, v{X+3} offset:{NINFO+256}')
    I(f's_mov_b32 s{S_T+2}, 0x{f2u(2.0**-(SV+KH)):x}')
    I(f's_mov_b32 s{S_T+3}, 0x{f2u(-LOG2E * 2.0**-(SV+KH)):x}')
    I(f'v_cmp_gt_u32 vcc, {NB*16}, v{V_TID}')
    I('s_waitcnt vmcnt(0) lgkmcnt(0)')
    I('s_barrier')
    stamp(17)
    rstamp(29)
    if PROF:
        I(f'v_writelane_b32 v{V_PROF}, s{S_L}, 27')
    I(f's_and_saveexec_b64 {sp(S_EX)}, vcc')
    I('s_cbranch_execz L_FDONE')
    rd4(64, X + 2)
    I(f's_mov_b64 {sp(S_T)}, exec')
    L('L_FLOOP')
    I(f'v_cmp_lt_u32 vcc, v{X+4}, v{X+5}')
    I('s_and_b64 exec, exec, vcc')
    I('s_cbranch_execz L_FLEND')
    I(f'v_add_u32 v{X+4}, 1, v{X+4}')
    I(f'v_lshl_add_u32 v{X+7}, v{X+4}, 8, v{X+1}')
    rd4(72, X + 7)
    I('s_waitcnt lgkmcnt(0)')
    for k in range(4):
        I(f'v_add_f32 v{64+k}, v{64+k}, v{72+k}')
    I('s_branch L_FLOOP')
    L('L_FLEND')
    I(f's_mov_b64 exec, {sp(S_T)}')
    I('s_waitcnt lgkmcnt(0)')
    I(f's_cmp_lg_u32 s{S_MORE}, 0')
    I('s_cbranch_scc1 L_WB')
    for k in range(4):
        I(f'v_mul_f32 v{72+k}, s{S_T+3}, v{64+k}')
    for k in range(4):
        I(f'v_exp_f32 v{72+k}, v{72+k}')
    for k in range(4):
        I(f'v_mul_f32 v{64+k}, s{S_T+2}, v{64+k}')
    for k in range(4):
        I(f'v_add_f32 v{72+k}, 1.0, v{72+k}')
    for k in range(4):
        I(f'v_rcp_f32 v{72+k}, v{72+k}')
    I('s_nop 0')
    for k in range(4):
        I(f'v_mul_f32 v{64+k}, v{64+k}, v{72+k}')
    if FL:
        I('v_cvt_pk_bf16_f32 v80, v64, v65')
        I('v_cvt_pk_bf16_f32 v81, v66, v67')
        I(f'buffer_store_dwordx2 v[80:81], v{X+6}, {sr4(S_OUT)}, 0 offen' + OSC)
    else:
        I('v_cvt_pk_bf16_f32 v80, v64, v66')
        I('v_cvt_pk_bf16_f32 v81, v65, v67')
        I(f'buffer_store_dword v80, v{X+6}, {sr4(S_OUT)}, 0 offen' + OSC)
        I(f'buffer_store_dword v81, v{X+6}, {sr4(S_OUT)}, 0 offen offset:64' + OSC)
    stamp(18)
    prof_store()
    diag_end()
    I('s_endpgm')
    L('L_WB')
    if FL:
        I(f'ds_write2_b32 v{X+2}, v64, v65 offset0:0 offset1:2')
        I(f'ds_write2_b32 v{X+2}, v66, v67 offset0:4 offset1:6')
    else:
        I(f'ds_write_b128 v{X+2}, v[64:67]')
    L('L_FDONE')
    I('s_mov_b64 exec, -1')
    I(f's_cmp_eq_u32 s{S_MORE}, 0')
    I('s_cbranch_scc1 L_QUIT')
    I(f's_add_u32 s{S_JB}, s{S_JB}, s{S_WID}')
    I('s_branch L_REFILL')
    L('L_OVERFLOW')
    I(f's_mov_b32 s{S_WID}, 64')
    L('L_REFILL')
    I('s_waitcnt vmcnt(0) lgkmcnt(0)')
    I('s_barrier')
    fill_zero()
    fill_words()
    ptr_consts()
    I('s_waitcnt lgkmcnt(0)')
    I('s_barrier')
    I('s_branch L_PASS')
    L('L_QUIT')
    prof_store()
    L('L_END')
    I('s_endpgm')

hdr = open('standalone__edge_featured_mpnn_egc__graph.s.ref').read().split('\n')
for line in hdr:
    if line.startswith('; Override'):
        break
    e(line)
e(f'; @launch grid=({NWG},1,1) block=(1024,1,1) lds={LDS_BYTES}')
e('.amdgcn_target "amdgcn-amd-amdhsa--gfx950"')
e('.text')
gen()
e('.section .rodata,"a"')
e('.p2align 6')
e(f'.amdhsa_kernel {KNAME}')
e('  .amdhsa_next_free_vgpr 128')
e('  .amdhsa_next_free_sgpr 102')
e('  .amdhsa_accum_offset 128')
e('  .amdhsa_group_segment_fixed_size 0')
e('  .amdhsa_kernarg_size 80')
e('  .amdhsa_user_sgpr_count 2')
e('  .amdhsa_user_sgpr_kernarg_segment_ptr 1')
e('  .amdhsa_system_sgpr_workgroup_id_x 1')
e('  .amdhsa_float_denorm_mode_32 3')
e('.end_amdhsa_kernel')
open(sys.argv[1], 'w').write('\n'.join(x for x in out if x is not None) + '\n')
```

```python
import sys, struct

OPT = dict(a.split('=') for a in sys.argv[2:] if '=' in a)
def opt(name, default):
    return type(default)(OPT.get(name, default))

KNAME = 'standalone__edge_featured_mpnn_egc__graph_kernel'
N_NODES = 12500
E_EDGES = 800000
NB = 49
NWG = 256
CH = 3136
WS_RW = 0
WS_RE = 0x00400000
CAP = CH + 256
WS_TAB = 0x00B00000
WS_NT = 0x00C00000
WS_PROF = 0x01000000
M8 = opt('m8', 0)
if M8:
    KH, KEXP, SV = 13, 26, 0
else:
    KH, KEXP, SV = 31, 31, 30
LOG2E = 1.4426950408889634
SC = opt('sc', 'sc1')
SC = (' ' + SC.replace('+', ' ')) if SC != 'none' else ''
LSC = opt('lsc', 'sc1')
LSC = (' ' + LSC.replace('+', ' ')) if LSC != 'none' else ''
GSC = opt('gsc', 'sc1')
GSC = (' ' + GSC.replace('+', ' ')) if GSC != 'none' else ''
ELD = opt('eld', 'none')
ELD = (' ' + ELD.replace('+', ' ')) if ELD != 'none' else ''

def f2u(x):
    return struct.unpack('<I', struct.pack('<f', x))[0]

out = []
def e(s=''):
    out.append(s)
def I(s):
    out.append('    ' + s)
def L(name):
    out.append(name + ':')
def vr(a, n):
    return f'v[{a}:{a+n-1}]' if n > 1 else f'v{a}'
def sr4(a):
    return f's[{a}:{a+3}]'
def sp(a):
    return f's[{a}:{a+1}]'
def p(r):
    return f'v[{r}:{r+1}]'

def srd(d, lo, hi, nrec):
    I(f's_mov_b32 s{d}, s{lo}')
    I(f's_mov_b32 s{d+1}, s{hi}')
    I(f's_mov_b32 s{d+2}, {nrec}')
    I(f's_mov_b32 s{d+3}, 0x00020000')

def srd_off(d, lo, hi, off, nrec):
    I(f's_add_u32 s{d}, s{lo}, {off}')
    I(f's_addc_u32 s{d+1}, s{hi}, 0')
    I(f's_mov_b32 s{d+2}, {nrec}')
    I(f's_mov_b32 s{d+3}, 0x00020000')

def wave_scan(v):
    for sh in (1, 2, 4, 8):
        I('s_nop 1')
        I(f'v_add_u32_dpp v{v}, v{v}, v{v} row_shr:{sh} row_mask:0xf bank_mask:0xf')
    I('s_nop 1')
    I(f'v_add_u32_dpp v{v}, v{v}, v{v} row_bcast:15 row_mask:0xa bank_mask:0xf')
    I('s_nop 1')
    I(f'v_add_u32_dpp v{v}, v{v}, v{v} row_bcast:31 row_mask:0xc bank_mask:0xf')
    I('s_nop 1')

LS = 0
ZR = 18688
LE = 18688
CNT = 56064
MISC = 56320
BASET = 56576
NINFO = 56832
HIST = 57344
HBASE = 58368
DESCP = 59392
EXTRA = 67840
DESCA = 84224
PT = 86784
ACCN = 99328
WRAW = 111872
WG_, WV_, WU_ = WRAW, WRAW + 17408, WRAW + 25600
XOWN = WRAW + 33792
LDS_BYTES = XOWN + 8192
STGW = 0
STGE = CAP * 4
NTI = EXTRA
MAXG = 576
assert STGE + CAP * 8 <= CNT

V_TID, V_LANE = 0, 1
V_MA, V_MB = 2, 4
V_VAA = (6, 8)
V_VAP = 10
V_PS0, V_PS1, V_PE, V_PD, V_CH8, V_CHP = 12, 13, 14, 15, 16, 17
V_PROF = 18
V_TAB = 20
V_J4, V_CB4 = 24, 25
V_X = 26
V_T01D, V_T01N, V_T23D, V_T23N = 40, 42, 44, 46
B5 = (48, 52)
A5 = 56
V_TT = (60, 62)
G = (64, 80)
Z = 96
S = 112

S_XS, S_WS, S_DST, S_SRC, S_EA, S_RW, S_RE, S_TAB, S_NTS, S_NTG, S_OUT = 12, 16, 20, 24, 28, 32, 36, 40, 44, 48, 52
S_MASK = 56
S_W, S_L, S_CNT, S_JB, S_WID, S_MORE = 72, 73, 74, 75, 76, 77
S_C = 78
S_EX = 80
S_LDX = 82
S_T = 84
S_WSP = 94
S_DBG = 96
S_TAG, S_TAG2 = 100, 101
TAGM = 0xC003C003
TAGL = MISC + 64

NT2 = 2 if opt('touch', 0) else 0
LDXV = 0 if opt('noload', 0) else -1
NPFM = opt('npf', 4)
NPF = {0: 0, 1: 7, 2: 7, 3: 2, 4: 1, 5: 1}[NPFM]
NPF1 = NPF if NPFM in (1, 5) else 0
WSB = opt('wsb', 0) << 20
TCH = 4 if opt('touch', 0) else 0
T1 = opt('t1', 0)
OSC = opt('osc', 'nt')
OSC = (' ' + OSC.replace('+', ' ')) if OSC != 'none' else ''
KREP = opt('krep', 1)
assert KREP == 1
CM = opt('cm', 1)
RSTEP = 64 if CM else 8
SRCL = opt('srcl', 2)
PROF = opt('prof', 0)
DIAG = opt('diag', -1)
def diag_end():
    if DIAG < 0:
        return
    I('s_memrealtime s[98:99]')
    I('s_waitcnt lgkmcnt(0)')
    I('v_readlane_b32 s92, v18, 1')
    I('v_readlane_b32 s93, v18, 0')
    I('s_nop 3')
    I('s_sub_u32 s92, s92, s93')
    I('s_lshl_b32 s92, s92, 2')
    I('s_mov_b32 s93, s98')
    lbl = f'L_DG{len(out)}'
    L(lbl)
    I('s_memrealtime s[98:99]')
    I('s_waitcnt lgkmcnt(0)')
    I('s_sub_u32 s98, s98, s93')
    I('s_cmp_lt_u32 s98, s92')
    I(f's_cbranch_scc1 {lbl}')
def stamp(i):
    if DIAG >= 0 and i in (0, DIAG):
        I('s_memrealtime s[98:99]')
        I('s_waitcnt lgkmcnt(0)')
        if i == 0:
            I('v_writelane_b32 v18, s98, 0')
        if i == DIAG:
            I('v_writelane_b32 v18, s98, 1')
    if not PROF:
        return
    I('s_memtime s[98:99]')
    I('s_waitcnt lgkmcnt(0)')
    I(f'v_writelane_b32 v{V_PROF}, s98, {i}')
def rstamp(i):
    if not PROF:
        return
    I('s_memrealtime s[98:99]')
    I('s_waitcnt lgkmcnt(0)')
    I(f'v_writelane_b32 v{V_PROF}, s98, {i}')
def prof_store():
    if not PROF:
        return
    rstamp(31)
    if PROF == 3:
        I(f's_lshl_b32 s98, s2, 4')
        I(f's_add_u32 s98, s98, s{S_W}')
        I(f's_cmp_lg_u32 s98, {opt("pwave", 80)}')
        I('s_cbranch_scc1 L_END')
        I('s_mov_b64 exec, -1')
        I(f'v_readlane_b32 s98, v{V_PROF}, 0')
        I(f'v_readlane_b32 s99, v{V_PROF}, 30')
        I(f'v_readlane_b32 s{S_T}, v{V_PROF}, 31')
        I('s_nop 3')
        I(f's_sub_u32 s{S_T}, s{S_T}, s99')
        I(f's_add_u32 s{S_T}, s{S_T}, s98')
        I(f'v_writelane_b32 v{V_PROF}, s{S_T}, 9')
        I(f'v_subrev_u32 v{V_PROF}, s98, v{V_PROF}')
        I(f'v_mbcnt_lo_u32_b32 v{V_PROF+1}, -1, 0')
        I(f'v_lshlrev_b32 v{V_PROF+1}, 2, v{V_PROF+1}')
        I(f'v_add_u32 v{V_PROF+1}, -8, v{V_PROF+1}')
        I('s_mov_b64 exec, 0x3fff8')
        I(f'global_store_dword v{V_PROF+1}, v{V_PROF}, {sp(S_DBG)}')
        return
    I('s_mov_b64 exec, 0xffffffff')
    I(f's_add_u32 s{S_T}, s{S_WSP}, 0x{WS_PROF:x}')
    I(f's_addc_u32 s{S_T+1}, s{S_WSP+1}, 0')
    I(f'v_mbcnt_lo_u32_b32 v{V_PROF+1}, -1, 0')
    I(f'v_lshlrev_b32 v{V_PROF+1}, 2, v{V_PROF+1}')
    I(f's_lshl_b32 s98, s2, 4')
    I(f's_add_u32 s98, s98, s{S_W}')
    I(f's_lshl_b32 s98, s98, 7')
    I(f'v_add_u32 v{V_PROF+1}, s98, v{V_PROF+1}')
    I(f'global_store_dword v{V_PROF+1}, v{V_PROF}, {sp(S_T)}')

class Lg:
    def __init__(self):
        self.q = []
    def op(self, tag, text):
        I(text)
        self.q.append(tag)
    def need(self, *tags):
        idx = -1
        for t in tags:
            for i in range(len(self.q) - 1, -1, -1):
                if self.q[i] == t:
                    idx = max(idx, i)
                    break
        if idx < 0:
            return
        n = len(self.q) - 1 - idx
        assert n <= 15, (tags, n)
        I(f's_waitcnt lgkmcnt({n})')
        self.q = self.q[idx + 1:]

X = V_X

def zero_range(a, nbytes, zr, ad):
    k = 0
    base = a if a + nbytes <= 65536 + 16384 and a < 65536 - 3 * 16384 else None
    off = 0
    areg = ad
    if a + ((nbytes - 1) // 16384) * 16384 > 65535:
        I(f'v_add_u32 v{X+1}, {a}, v{ad}')
        areg = X + 1
        a0 = 0
    else:
        a0 = a
    while off < nbytes:
        n = min(16384, nbytes - off)
        if n < 16384:
            I(f'v_cmp_gt_u32 vcc, {n // 16}, v{V_TID}')
            I(f's_and_saveexec_b64 {sp(S_EX)}, vcc')
        I(f'ds_write_b128 v{areg}, v[{zr}:{zr+3}] offset:{a0 + off}')
        if n < 16384:
            I(f's_mov_b64 exec, {sp(S_EX)}')
        off += n

def zregs():
    I(f'v_lshlrev_b32 v{X}, 4, v{V_TID}')
    for k in range(4):
        I(f'v_mov_b32 v{X+2+k}, 0')

def fill_desca():
    I(f'v_and_b32 v{X+6}, 15, v{V_TID}')
    I(f'v_lshlrev_b32 v{X+6}, 10, v{X+6}')
    I(f'v_add_u32 v{X+6}, {EXTRA}, v{X+6}')
    for k in range(1, 4):
        I(f'v_add_u32 v{X+6+k}, {256*k}, v{X+6}')
    I(f'v_add_u32 v{X+1}, {DESCA}, v{X}')
    I(f'v_cmp_gt_u32 vcc, 160, v{V_TID}')
    I(f's_and_saveexec_b64 {sp(S_EX)}, vcc')
    I(f'ds_write_b128 v{X+1}, v[{X+6}:{X+9}]')
    I(f's_mov_b64 exec, {sp(S_EX)}')

def fill_zero():
    zregs()
    zero_range(ZR, 65536, X + 2, X)
    fill_desca()

def fill_words():
    I(f'v_lshlrev_b32 v{X}, 4, v{V_TID}')
    I(f'v_and_b32 v{X+2}, 7, v{V_TID}')
    I(f'v_lshlrev_b32 v{X+2}, 5, v{X+2}')
    I(f'v_add_u32 v{X+2}, {N_NODES*8}, v{X+2}')
    for k in range(1, 4):
        I(f'v_add_u32 v{X+2+k}, {8*k}, v{X+2}')
    I(f'ds_write_b128 v{X}, v[{X+2}:{X+5}] offset:{LS}')
    I(f'v_cmp_gt_u32 vcc, 144, v{V_TID}')
    I(f's_and_saveexec_b64 {sp(S_EX)}, vcc')
    I(f'ds_write_b128 v{X}, v[{X+2}:{X+5}] offset:{LS+16384}')
    I(f's_mov_b64 exec, {sp(S_EX)}')

V_C8P, V_CPP, V_SCP = 26, 28, 30
S_BP0, S_BP1 = 88, 90

def tail_ops(n):
    M = (V_MA, V_MB)[n]
    return [f'v_rcp_f32 v{V_T01D}, v{V_T01D}',
            f'v_rcp_f32 v{V_T01D+1}, v{V_T01D+1}',
            f'v_pk_fma_f32 {p(M)}, {p(V_T01N)}, {p(V_T01D)}, {p(M)}']

def acc_write(lg, va):
    lg.op('Wa', f'ds_write2_b32 v{va}, v{V_MA}, v{V_MB} offset0:0 offset1:1')
    lg.op('Wb', f'ds_write2_b32 v{va+1}, v{V_MA+1}, v{V_MB+1} offset0:0 offset1:1')

def acc_read(lg, va):
    lg.op('Ra', f'ds_read_b32 v{V_MA}, v{va}')
    lg.op('Rb', f'ds_read_b32 v{V_MA+1}, v{va+1}')
    lg.op('Rc', f'ds_read_b32 v{V_MB}, v{va} offset:4')
    lg.op('Rd', f'ds_read_b32 v{V_MB+1}, v{va+1} offset:4')

def va_add(vap, vaa):
    I(f'v_lshl_add_u64 {p(vap)}, {p(vap)}, 0, {p(V_CPP)}')
    I(f'v_lshl_add_u64 {p(vaa)}, {p(vaa)}, 0, {p(V_C8P)}')

def gload(n, i):
    return f'buffer_load_dword v{G[n]+i}, v{S + (i & 1) * 8 + (i >> 1)}, {sr4(S_NTG)}, 0 offen offset:{4*n}' + GSC

def s_safe():
    if opt('safe', 0):
        for i in range(16):
            I(f'v_and_b32 v{S+i}, 0x1fff8, v{S+i}')

def s_reads(lg, uo):
    lg.op('S0', f'ds_read_b128 {vr(S,4)}, v{V_PS0} offset:{uo*32}')
    lg.op('S1', f'ds_read_b128 {vr(S+4,4)}, v{V_PS0} offset:{uo*32+16}')
    lg.op('S2', f'ds_read_b128 {vr(S+8,4)}, v{V_PS1} offset:{uo*32}')
    lg.op('S3', f'ds_read_b128 {vr(S+12,4)}, v{V_PS1} offset:{uo*32+16}')

def half(lg, n, par, uo, with_tail=True):
    g = G[n]
    I('s_waitcnt vmcnt(16)')
    if n == 0:
        lg.need('P0a', 'P0b', 'e')
    else:
        lg.need('P1a', 'P1b')
    I(f'v_mfma_f32_32x32x16_bf16 {vr(Z,16)}, {vr(A5,4)}, {vr(B5[n],4)}, {vr(g,16)}')
    t = tail_ops(n ^ 1)
    va_prev, va_cur, va_nxt = V_VAA[par ^ 1], V_VAA[par], V_VAA[par ^ 1]
    sh = [f'v_lshlrev_b32 v{g+i}, 16, v{g+i}' for i in range(16)]
    ex = [f'v_exp_f32 v{Z+i}, v{Z+i} clamp' for i in range(16)]
    l3 = [f'v_pk_mul_f32 {p(V_T01N)}, {p(V_T01N)}, {p(V_T23D)}',
          f'v_pk_mul_f32 {p(V_T23D)}, {p(V_T01D)}, {p(V_T23D)}',
          f'v_pk_fma_f32 {p(V_T01N)}, {p(V_T23N)}, {p(V_T01D)}, {p(V_T01N)}',
          f'v_rcp_f32 v{V_T23D}, v{V_T23D}',
          f'v_rcp_f32 v{V_T23D+1}, v{V_T23D+1}',
          f'v_pk_fma_f32 {p((V_MA, V_MB)[n ^ 1])}, {p(V_T01N)}, {p(V_T23D)}, {p((V_MA, V_MB)[n ^ 1])}']
    if with_tail and not M8:
        for r_ in (V_T01D, V_T01D + 1, V_T23D, V_T23D + 1):
            I(f'v_rcp_f32 v{r_}, v{r_}')
    else:
        I('s_nop 3')
    if n == 1:
        lg.op('e', f'ds_read_b64 {p(A5)}, v{V_PE} offset:{(uo+1)*64}')
        lg.op('P1a', f'ds_read_b32 v{B5[1]+2}, v{V_VAP} offset:4')
        lg.op('P1b', f'ds_read_b32 v{B5[1]+3}, v{V_VAP+1} offset:4')
    else:
        lg.op('dP', f'ds_read_b64 {p(V_VAP)}, v{V_PD} offset:{(uo+1)*256}')
        I('s_nop 1')
    for op in sh[:8]:
        I(op)
    seq = []
    if with_tail and not M8:
        Mp = p((V_MA, V_MB)[n ^ 1])
        seq = ['NEED', f'v_pk_fma_f32 {Mp}, {p(V_T01N)}, {p(V_T01D)}, {Mp}', ex[0],
               f'v_pk_fma_f32 {Mp}, {p(V_T23N)}, {p(V_T23D)}, {Mp}', sh[8], 'ACC', ex[1], sh[9]]
    elif with_tail:
        seq = [l3[0], l3[1], ex[0], l3[2], l3[3], sh[8], l3[4], ex[1], sh[9], 'NEED', l3[5], 'ACC']
    else:
        seq = [ex[0], sh[8], ex[1], sh[9], 'ACC']
    for op in seq:
        if op == 'NEED':
            lg.need('Ra', 'Rb', 'Rc', 'Rd')
        elif op == 'ACC':
            if n == 0:
                if with_tail:
                    acc_write(lg, va_prev)
                acc_read(lg, va_cur)
                lg.op('dA', f'ds_read_b64 {p(va_nxt)}, v{V_PD} offset:{(uo+1)*256 + DESCA - DESCP}')
        else:
            I(op)
    for i in range(2, 12):
        I(ex[i])
        if 8 + i < 16:
            I(sh[8 + i])
        if n == 0 and i == 11:
            lg.need('dP', 'dA')
            va_add(V_VAP, va_nxt)
            lg.op('P0a', f'ds_read_b32 v{B5[0]+2}, v{V_VAP}')
            lg.op('P0b', f'ds_read_b32 v{B5[0]+3}, v{V_VAP+1}')
    for op in ex[12:]:
        I(op)
    for i in range(0, 16, 2):
        if M8:
            I(f'v_pk_fma_f32 {p(Z+i)}, {p(Z+i)}, {p(V_SCP)}, {sp(S_C)}')
        else:
            I(f'v_pk_add_f32 {p(Z+i)}, {p(Z+i)}, {sp(S_C)}')
    def T(k): return f'v_pk_mul_f32 {p(V_TT[k&1])}, {p(g+4*k)}, {p(Z+4*k+2)}'
    def DD(k): return f'v_pk_mul_f32 {p(Z+4*k+2)}, {p(Z+4*k)}, {p(Z+4*k+2)}'
    def NN(k): return f'v_pk_fma_f32 {p(Z+4*k)}, {p(g+4*k+2)}, {p(Z+4*k)}, {p(V_TT[k&1])}'
    for k0 in (0, 2):
        for op in (T(k0), T(k0 + 1), DD(k0), DD(k0 + 1), NN(k0), NN(k0 + 1)):
            I(op)
        if n == 0 and k0 == 0:
            lg.need('S0', 'S1', 'S2', 'S3')
            s_safe()
        I(f's_mov_b64 exec, {sp(S_LDX)}')
        for i in range(4 * k0, 4 * k0 + 8):
            I(gload(n, i))
        I('s_mov_b64 exec, -1')
    if n == 1:
        s_reads(lg, uo + 2)
    I(f'v_pk_mul_f32 {p(V_T01N)}, {p(Z)}, {p(Z+6)}')
    I(f'v_pk_mul_f32 {p(V_T23N)}, {p(Z+8)}, {p(Z+14)}')
    I(f'v_pk_mul_f32 {p(V_T01D)}, {p(Z+2)}, {p(Z+6)}')
    I(f'v_pk_mul_f32 {p(V_T23D)}, {p(Z+10)}, {p(Z+14)}')
    I(f'v_pk_fma_f32 {p(V_T01N)}, {p(Z+4)}, {p(Z+2)}, {p(V_T01N)}')
    I(f'v_pk_fma_f32 {p(V_T23N)}, {p(Z+12)}, {p(Z+10)}, {p(V_T23N)}')

PRIO = {
    3: {(3, 0): 2, (2, 0): 1, (1, 0): 0},
    5: {(2, 0): 2, (1, 0): 1, (1, 1): 0},
    6: {(3, 0): 2, (1, 0): 1, (1, 1): 0},
    7: {(2, 1): 2, (1, 0): 1, (1, 1): 0},
    8: {(4, 0): 2, (2, 0): 1, (1, 1): 0},
    9: {(3, 0): 2, (2, 1): 1, (1, 1): 0},
    0: {},
}[opt('prio', 9)]
def prio(tag, phase=0):
    for (t, ph), lvl in PRIO.items():
        if ph != phase:
            continue
        I(f's_cmp_eq_u32 s{S_CNT}, {t}')
        I(f's_cbranch_scc0 L_PR{tag}_{lvl}')
        I(f's_setprio {lvl}')
        L(f'L_PR{tag}_{lvl}')

def split_hilo(a, b, t0, t1):
    I(f'v_cvt_pk_bf16_f32 v{t0}, v{a}, v{b}')
    I(f'v_lshlrev_b32 v{t1}, 16, v{t0}')
    I(f'v_and_b32 v{t0}, 0xffff0000, v{t0}')
    I(f'v_sub_f32 v{a}, v{a}, v{t1}')
    I(f'v_sub_f32 v{b}, v{b}, v{t0}')
    I(f'v_cvt_pk_bf16_f32 v{a}, v{t1}, v{a}')
    I(f'v_cvt_pk_bf16_f32 v{b}, v{t0}, v{b}')

V_AA, V_AB, V_AD, V_AP = 6, 7, 8, 9
SA, SB, SD = 80, 96, 112

def phase0_addr():
    I(f's_and_b32 s{S_T}, s{S_W}, 3')
    I(f's_lshr_b32 s{S_T+1}, s{S_W}, 2')
    I(f'v_and_b32 v12, 15, v{V_LANE}')
    I(f'v_lshrrev_b32 v13, 4, v{V_LANE}')
    I(f'v_bfe_u32 v14, v{V_LANE}, 1, 3')
    I(f'v_xor_b32 v14, v14, v13')
    I(f'v_lshlrev_b32 v14, 4, v14')
    I(f'v_lshl_or_b32 v14, v12, 7, v14')
    I(f's_lshl_b32 s{S_T+2}, s{S_T}, 11')
    I(f'v_add_u32 v{V_AA}, s{S_T+2}, v14')
    I(f'v_bfe_u32 v14, v{V_LANE}, 2, 2')
    I(f'v_lshl_add_u32 v14, v13, 3, v14')
    I(f'v_lshlrev_b32 v14, 7, v14')
    I(f'v_and_b32 v15, 3, v{V_LANE}')
    I(f'v_lshl_add_u32 v14, v15, 3, v14')
    I(f's_lshl_b32 s{S_T+2}, s{S_T+1}, 5')
    I(f'v_or_b32 v14, s{S_T+2}, v14')
    I(f'v_and_b32 v15, 24, v{V_LANE}')
    I(f'v_lshlrev_b32 v15, 2, v15')
    I(f'v_xor_b32 v14, v14, v15')
    I(f'v_add_u32 v{V_AB}, {WRAW}, v14')
    I(f's_lshl_b32 s{S_T+2}, s{S_T}, 12')
    I(f'v_lshlrev_b32 v13, 10, v13')
    I(f'v_add_u32 v13, s{S_T+2}, v13')
    I(f's_lshl_b32 s{S_T+2}, s{S_T+1}, 6')
    I(f's_add_u32 s{S_T+2}, s{S_T+2}, {NTI}')
    I(f'v_lshl_add_u32 v{V_AD}, v12, 2, v13')
    I(f'v_add_u32 v{V_AD}, s{S_T+2}, v{V_AD}')
    I(f's_and_b32 s{S_T+2}, s{S_T+1}, 1')
    I(f's_lshl_b32 s{S_T+2}, s{S_T+2}, 7')
    I(f's_lshr_b32 s{S_T+3}, s{S_T+1}, 1')
    I(f's_lshl_b32 s{S_T+3}, s{S_T+3}, 2')
    I(f's_add_u32 s{S_T+2}, s{S_T+2}, s{S_T+3}')
    I(f's_add_u32 s{S_T+2}, s{S_T+2}, {PT}')
    I(f'v_lshl_add_u32 v{V_AP}, v12, 3, v13')
    I(f'v_add_u32 v{V_AP}, s{S_T+2}, v{V_AP}')

def b_reads(dst, off):
    for sg in range(2):
        for pp in range(2):
            I(f'ds_read_b64_tr_b16 {vr(dst+4*sg+2*pp,2)}, v{V_AB} offset:{off+sg*4096+pp*512}')

def mm16(d, b):
    I(f'v_mfma_f32_16x16x32_bf16 {vr(d,4)}, {vr(SA,4)}, {vr(b,4)}, 0')
    I(f'v_mfma_f32_16x16x32_bf16 {vr(d,4)}, {vr(SA+4,4)}, {vr(b+4,4)}, {vr(d,4)}')

def phase0a():
    I(f'v_add_u32 v12, {XOWN}, v{V_AA}')
    I(f'v_xor_b32 v13, 64, v{V_AA}')
    I(f'v_add_u32 v13, {XOWN}, v13')
    I(f'ds_read_b128 {vr(SA,4)}, v12')
    I(f'ds_read_b128 {vr(SA+4,4)}, v13')
    b_reads(SB, 8192)
    b_reads(SB + 8, WV_ - WRAW)
    I(f's_mov_b32 s{S_T+4}, 0x{f2u(-LOG2E):x}')
    I(f's_mov_b32 s{S_T+6}, 0x7fffffff')
    I(f's_mov_b32 s{S_T+7}, 0xffff0000')
    I('s_waitcnt lgkmcnt(4)')
    mm16(SD, SB)
    I('s_waitcnt lgkmcnt(0)')
    mm16(SD + 4, SB + 8)
    I('s_nop 4')
    for i in range(4):
        I(f'v_mul_f32 v{SD+i}, s{S_T+4}, v{SD+i}')
    for i in range(4):
        I(f'v_and_b32 v{SD+8+i}, s{S_T+6}, v{SD+i}')
    for i in range(4):
        if SV:
            I(f'v_mul_f32 v{SD+4+i}, 0x{f2u(2.0**SV):x}, v{SD+4+i}')
        I(f'v_add_u32 v{SD+8+i}, 0x8000, v{SD+8+i}')
    I(f'v_cvt_pk_bf16_f32 v{SD+4}, v{SD+4}, v{SD+5}')
    I(f'v_cvt_pk_bf16_f32 v{SD+6}, v{SD+6}, v{SD+7}')
    I(f'v_lshrrev_b32 v{SD+5}, 16, v{SD+4}')
    I(f'v_lshrrev_b32 v{SD+7}, 16, v{SD+6}')
    I(f'v_and_b32 v{SD+4}, 0xffff, v{SD+4}')
    I(f'v_and_b32 v{SD+6}, 0xffff, v{SD+6}')
    for i in range(4):
        I(f'v_sub_u32 v{SD+8+i}, v{SD+8+i}, v{SD+4+i} clamp')
    for i in range(4):
        I(f'v_and_or_b32 v{SD+8+i}, v{SD+8+i}, s{S_T+7}, v{SD+4+i}')
    for i in range(4):
        I(f'v_bfi_b32 v{SD+i}, s{S_T+6}, v{SD+8+i}, v{SD+i}')
        I(f'ds_write_b32 v{V_AD}, v{SD+i} offset:{i*256}')

def phase0b():
    b_reads(SB, 0)
    b_reads(SB + 8, WU_ - WRAW)
    I(f's_mov_b32 s{S_T+4}, 0x{f2u(-LOG2E):x}')
    I(f's_mov_b32 s{S_T+5}, 0x{f2u(2.0**(SV+KH)):x}')
    I(f'v_mov_b32 v13, 0x{f2u(-float(KEXP)):x}')
    I(f's_and_b32 s{S_T+6}, s{S_W}, 3')
    I('s_waitcnt lgkmcnt(4)')
    mm16(SD, SB)
    I('s_waitcnt lgkmcnt(0)')
    mm16(SD + 4, SB + 8)
    I('s_nop 4')
    for i in range(4):
        I(f'v_fma_f32 v{SD+i}, v{SD+i}, s{S_T+4}, v13')
    split_hilo(SD, SD + 1, 12, 13)
    split_hilo(SD + 2, SD + 3, 12, 13)
    for i in range(4):
        I(f'v_mul_f32 v{SD+4+i}, s{S_T+5}, v{SD+4+i}')
    I(f's_cmp_eq_u32 s{S_T+6}, 3')
    I(f's_cselect_b64 exec, 0xffff, -1')
    I(f'ds_write_b32 v{V_AP}, v{SD}')
    I(f'ds_write_b32 v{V_AP}, v{SD+4} offset:{ACCN-PT}')
    I(f's_cselect_b64 exec, 0, -1')
    for i in range(1, 4):
        I(f'ds_write_b32 v{V_AP}, v{SD+i} offset:{i*256}')
        I(f'ds_write_b32 v{V_AP}, v{SD+4+i} offset:{ACCN-PT+i*256}')
    I('s_mov_b64 exec, -1')

def phase0c():
    I(f'v_bfe_u32 v13, v{V_LANE}, 2, 2')
    I(f'v_lshlrev_b32 v13, 7, v13')
    I(f'v_bfe_u32 v15, v{V_LANE}, 4, 1')
    I(f'v_lshl_add_u32 v13, v15, 5, v13')
    I(f'v_and_b32 v15, 3, v{V_LANE}')
    I(f'v_lshl_add_u32 v13, v15, 3, v13')
    I(f'v_and_b32 v15, 8, v{V_LANE}')
    I(f'v_lshlrev_b32 v15, 2, v15')
    I(f'v_xor_b32 v13, v13, v15')
    I(f'v_add_u32 v13, {WG_ + 16384}, v13')
    I(f'ds_read_b64_tr_b16 v[96:97], v13')
    I(f'ds_read_b64_tr_b16 v[98:99], v13 offset:64')
    I(f's_mov_b32 s{S_T+4}, 0x{f2u(-LOG2E):x}')
    I(f'v_cmp_lt_u32 vcc, 31, v{V_LANE}')
    I('s_waitcnt lgkmcnt(0)')
    for m in range(4):
        I(f'v_lshlrev_b32 v{100+2*m}, 16, v{96+m}')
        I(f'v_and_b32 v{101+2*m}, 0xffff0000, v{96+m}')
    for j in range(8):
        I(f'v_mul_f32 v{100+j}, s{S_T+4}, v{100+j}')
    for m in range(4):
        dst = B5[m >> 1] + (m & 1)
        I(f'v_cvt_pk_bf16_f32 v{96+m}, v{100+2*m}, v{101+2*m}')
        I(f'v_lshlrev_b32 v12, 16, v{96+m}')
        I(f'v_and_b32 v13, 0xffff0000, v{96+m}')
        I(f'v_sub_f32 v12, v{100+2*m}, v12')
        I(f'v_sub_f32 v13, v{101+2*m}, v13')
        I(f'v_cvt_pk_bf16_f32 v12, v12, v13')
        I(f'v_cndmask_b32 v{dst}, v{96+m}, v12, vcc')

def a5_const():
    I(f'v_bfe_u32 v12, v{V_LANE}, 2, 1')
    I(f'v_lshrrev_b32 v13, 5, v{V_LANE}')
    I(f'v_xor_b32 v12, v12, v13')
    I(f'v_and_b32 v13, 1, v{V_LANE}')
    I(f'v_lshl_or_b32 v12, v12, 1, v13')
    I(f'v_mov_b32 v13, 0x3f803f80')
    I(f'v_cmp_eq_u32 vcc, 0, v12')
    I(f'v_cmp_eq_u32 {sp(S_T)}, 1, v12')
    I('s_nop 1')
    I(f'v_cndmask_b32 v{A5+2}, 0, v13, vcc')
    I(f'v_cndmask_b32 v{A5+3}, 0, v13, {sp(S_T)}')

def nt_prefetch(vt, first=0, nl=None, dst=96):
    I(f's_lshr_b32 s{S_T}, s2, 4')
    I(f's_lshl_b32 s{S_T+1}, s{S_W}, 4')
    I(f's_add_u32 s{S_T}, s{S_T}, s{S_T+1}')
    I(f's_and_b32 s{S_T+1}, s{S_T}, 7')
    I(f's_lshl_b32 s{S_T+1}, s{S_T+1}, 5')
    I(f's_lshr_b32 s{S_T}, s{S_T}, 3')
    I(f's_add_u32 s{S_T}, s{S_T}, s{S_T+1}')
    if not opt('xmap', 1):
        I(f's_lshr_b32 s{S_T}, s2, 4')
        I(f's_lshl_b32 s{S_T+1}, s{S_W}, 4')
        I(f's_add_u32 s{S_T}, s{S_T}, s{S_T+1}')
    I(f's_lshl_b32 s{S_T}, s{S_T}, 1')
    I(f's_bfe_u32 s{S_T+1}, s2, 0x10003')
    I(f's_add_u32 s{S_T}, s{S_T}, s{S_T+1}')
    I(f's_mul_i32 s{S_T}, s{S_T}, {NB*128}')
    I(f's_add_u32 s{S_T}, s{S_T}, 0x{WS_NT:x}')
    srd_off(S_NTS, S_WSP, S_WSP + 1, f's{S_T}', NB * 128)
    if NPFM >= 3:
        I(f'v_lshlrev_b32 v{vt}, {7 if NPFM >= 4 else 6}, v{V_LANE}')
        I(f'v_add_u32 v{vt+1}, 4096, v{vt}')
        nl = opt("pfl", 20) if nl is None else nl
        I(f's_mov_b32 exec_lo, 0x{(((1 << nl) - 1) << first) & 0xffffffff:x}')
        I(f's_mov_b32 exec_hi, 0x{(((1 << nl) - 1) << first) >> 32:x}')
        for k in range(NPF):
            I(f'buffer_load_dword v{dst+k}, v{vt+k}, {sr4(S_NTS)}, 0 offen' + (LSC if opt('pfsc', 1) else ''))
        I('s_mov_b64 exec, -1')
        return
    I(f'v_lshlrev_b32 v{vt}, 4, v{V_LANE}')
    I(f'v_add_u32 v{vt+1}, 4096, v{vt}')
    for k in range(NPF):
        I(f'buffer_load_dwordx4 {vr(96+4*k,4)}, v{vt+(k>>2)}, {sr4(S_NTS)}, 0 offen offset:{(k&3)*1024}' + LSC)

def ptr_consts():
    I(f'v_lshrrev_b32 v{V_PS1}, 5, v{V_LANE}')
    I(f's_lshl_b32 s{S_T}, s{S_W}, 4')
    I(f's_add_u32 s{S_T}, s{S_T}, {DESCP}')
    I(f'v_lshlrev_b32 v{V_PD}, 3, v{V_PS1}')
    I(f'v_add_u32 v{V_PS1}, v{V_PS1}, v{V_PS1}')
    I(f'v_add_u32 v{V_PD}, s{S_T}, v{V_PD}')
    I(f'v_bfe_u32 v{V_VAP}, v{V_LANE}, 2, 1')
    I(f'v_and_b32 v{V_PE}, 1, v{V_LANE}')
    I(f'v_lshl_or_b32 v{V_VAP}, v{V_VAP}, 1, v{V_PE}')
    I(f'v_bfe_u32 v{V_PE}, v{V_LANE}, 3, 2')
    I(f'v_bfe_u32 v{V_PS0}, v{V_LANE}, 1, 1')
    I(f'v_lshl_or_b32 v{V_PE}, v{V_PE}, 1, v{V_PS0}')
    I(f'v_lshlrev_b32 v{V_PE}, 3, v{V_PE}')
    I(f'v_add_u32 v{V_PE}, {LE}, v{V_PE}')

def gen():
    e(f'.globl {KNAME}')
    e('.p2align 8')
    e(f'.type {KNAME},@function')
    L(KNAME)
    I(f's_cmp_ge_u32 s2, {NWG}')
    I('s_cbranch_scc1 L_END')
    I('s_load_dwordx8 s[84:91], s[0:1], 0')
    I('s_load_dwordx4 s[4:7], s[0:1], 32')
    I('s_load_dwordx4 s[8:11], s[0:1], 48')
    I('s_load_dwordx4 s[56:59], s[0:1], 64')
    if PROF:
        I(f'v_mov_b32 v{V_PROF}, 0')
    rstamp(30)
    stamp(0)
    zregs()
    zero_range(CNT, DESCP + 2560 - CNT, X + 2, X)
    I(f'v_lshlrev_b32 v{X+6}, 2, v{V_TID}')
    I(f's_mul_i32 s61, s2, {CH*4}')
    I(f's_mul_i32 s63, s2, {CH}')
    I(f's_sub_u32 s63, {E_EDGES}, s63')
    I(f's_min_u32 s63, s63, {CH}')
    I(f's_lshl_b32 s64, s63, 2')
    I(f'v_add_u32 v{X+8}, 4096, v{X+6}')
    I(f'v_add_u32 v{X+9}, 8192, v{X+6}')
    I(f'v_add_u32 v{X+10}, 12288, v{X+6}')
    I(f'v_lshrrev_b32 v{X+1}, 6, v{V_TID}')
    I(f'v_and_b32 v{V_LANE}, 63, v{V_TID}')
    I(f'v_readfirstlane_b32 s{S_W}, v{X+1}')
    I('s_and_b32 s3, s2, 7')
    I('s_lshl_b32 s3, s3, 5')
    I('s_lshr_b32 s60, s2, 3')
    I('s_add_u32 s3, s3, s60')
    if not opt('xmap', 1):
        I('s_mov_b32 s3, s2')
    I(f's_mul_i32 s62, s2, {CH*8}')
    I(f's_lshl_b32 s65, s63, 3')
    I(f'v_and_b32 v97, 0x50, v{V_TID}')
    I(f'v_lshlrev_b32 v96, 1, v97')
    I(f'v_or_b32 v97, v97, v96')
    I(f'v_and_b32 v97, 0x60, v97')
    I(f'v_xor_b32 v97, v97, v{X}')
    I(f'v_and_b32 v96, 0x20, v96')
    I(f'v_lshlrev_b32 v98, 4, v{V_LANE}')
    I(f'v_xor_b32 v96, v96, v98')
    I(f's_lshl_b32 s66, s{S_W}, 10')
    I(f'v_and_b32 v101, 0x1fff, v97')
    I(f'v_lshrrev_b32 v98, 3, v{V_TID}')
    I(f'v_bfe_u32 v99, v98, 1, 3')
    I(f'v_and_b32 v100, 7, v{V_TID}')
    I(f'v_xor_b32 v99, v99, v100')
    I(f'v_lshlrev_b32 v99, 4, v99')
    I(f'v_lshl_add_u32 v99, v98, 7, v99')
    I(f's_mul_i32 s60, s3, {NB*128}')
    I(f'v_add_u32 v99, s60, v99')
    I(f'v_add_u32 v96, 16384, v96')
    I('s_waitcnt lgkmcnt(0)')
    I(f's_or_b32 s67, s2, s{S_W}')
    I('s_cmp_lg_u32 s67, 0')
    I('s_cbranch_scc1 L_NOTAG')
    I('s_memrealtime s[68:69]')
    I(f'v_mov_b32 v{X+2}, 0')
    I('s_waitcnt lgkmcnt(0)')
    I('s_or_b32 s68, s68, 1')
    I(f'v_mov_b32 v{X+3}, s68')
    I('s_mov_b64 exec, 1')
    I(f'global_store_dword v{X+2}, v{X+3}, s[56:57] sc1')
    I('s_mov_b64 exec, -1')
    L('L_NOTAG')
    def dst_loads():
        srd_off(S_DST, 90, 91, 's61', 's64')
        for k in range(4):
            I(f'buffer_load_dword v{64+k}, v{X+6 if k == 0 else X+7+k}, {sr4(S_DST)}, 0 offen' + ELD)
    def dma_loads():
        srd(S_WS, 8, 9, 132 * 128)
        I(f's_add_u32 m0, s66, {WG_}')
        srd(S_XS, 84, 85, N_NODES * 128)
        I(f'buffer_load_dwordx4 v97, {sr4(S_WS)}, 0 offen lds')
        I(f's_cmp_lt_u32 s{S_W}, 8')
        I(f's_cselect_b32 s{S_NTS}, s6, s4')
        I(f's_cselect_b32 s{S_NTS+1}, s7, s5')
        I(f's_mov_b32 s{S_NTS+2}, {64*128}')
        I(f's_mov_b32 s{S_NTS+3}, 0x00020000')
        I(f's_add_u32 m0, s66, {WV_}')
        I('s_nop 0')
        I(f'buffer_load_dwordx4 v101, {sr4(S_NTS)}, 0 offen lds')
        I(f's_cmp_lt_u32 s{S_W}, 8')
        I('s_cbranch_scc0 L_D3B')
        I(f's_add_u32 m0, s66, {XOWN}')
        I('s_nop 0')
        I(f'buffer_load_dwordx4 v99, {sr4(S_XS)}, 0 offen lds')
        I('s_branch L_D3C')
        L('L_D3B')
        I(f's_mov_b32 m0, {WG_ + 16384}')
        I('s_nop 0')
        I(f'buffer_load_dwordx4 v96, {sr4(S_WS)}, 0 offen lds')
        L('L_D3C')
    if opt('t0', 0):
        I(f'v_and_b32 v60, 15, v{V_LANE}')
        I(f'v_lshlrev_b32 v60, 20, v60')
        I(f'v_and_b32 v61, 1, v{V_LANE}')
        I(f'v_lshlrev_b32 v61, 20, v61')
        I(f'global_load_dword v62, v60, s[58:59]')
        I(f'global_load_dword v63, v61, s[10:11]')
    ORDER = opt('order', 2)
    if ORDER == 0:
        dma_loads()
    dst_loads()
    if ORDER == 2:
        dma_loads()
    F1 = opt('f1', 1)
    if F1:
        I('s_barrier')
    srd_off(S_SRC, 88, 89, 's61', 's64')
    LATE = opt('late', 1)
    def src_load(k):
        I(f'buffer_load_dword v{68+k}, v{X+6 if k == 0 else 43+k}, {sr4(S_SRC)}, 0 offen' + ELD)
    for k in range(1, 4):
        I(f'v_mov_b32 v{43+k}, v{X+7+k}')
    NS = opt('ns', 1) if LATE else 4
    for k in range(NS):
        src_load(k)
    srd_off(S_EA, 86, 87, 's62', 's65')
    I(f'v_lshlrev_b32 v92, 3, v{V_TID}')
    for k in range(1, 4):
        I(f'v_add_u32 v{92+k}, {8192*k}, v92')
    def e_load(k):
        I(f'buffer_load_dwordx2 v[{72+2*k}:{73+2*k}], v{92+k}, {sr4(S_EA)}, 0 offen' + ELD)
    NEE = opt('ne', 1) if LATE else opt('nee', 4)
    for k in range(NEE):
        e_load(k)
    if ORDER == 1:
        dma_loads()
    I(f's_mov_b64 {sp(S_DBG)}, s[56:57]')
    I(f's_add_u32 s{S_WSP}, s58, 0x{WSB:x}')
    I(f's_addc_u32 s{S_WSP+1}, s59, 0')
    stamp(1)
    srd(S_OUT, 10, 11, N_NODES * 128)
    I(f's_mul_i32 s{S_T}, s2, {CAP*4}')
    srd_off(S_RW, S_WSP, S_WSP + 1, f's{S_T}', CAP * 4)
    I(f's_lshl_b32 s{S_T}, s{S_T}, 1')
    I(f's_add_u32 s{S_T}, s{S_T}, 0x{WS_RE:x}')
    srd_off(S_RE, S_WSP, S_WSP + 1, f's{S_T}', CAP * 8)
    I(f's_lshl_b32 s{S_T}, s2, 11')
    I(f's_add_u32 s{S_T}, s{S_T}, 0x{WS_TAB:x}')
    srd_off(S_TAB, S_WSP, S_WSP + 1, f's{S_T}', (KREP - 1) * 0x80000 + 2048)
    I(f's_mul_i32 s{S_T}, s3, {NB*256}')
    I(f's_add_u32 s{S_T}, s{S_T}, 0x{WS_NT:x}')
    srd_off(S_NTS, S_WSP, S_WSP + 1, f's{S_T}', NB * 256)
    I(f's_add_u32 s{S_NTG}, s{S_WSP}, 0x{WS_NT:x}')
    I(f's_addc_u32 s{S_NTG+1}, s{S_WSP+1}, 0')
    I(f's_or_b32 s{S_NTG+1}, s{S_NTG+1}, 0x80000000')
    I(f's_mov_b32 s{S_NTG+2}, 0x400000')
    I(f's_mov_b32 s{S_NTG+3}, 0x00c00000')
    srd_off(S_DST, S_WSP, S_WSP + 1, '0x%x' % WS_RW, NWG * CAP * 4)
    if not LATE:
        srd_off(S_SRC, S_WSP, S_WSP + 1, '0x%x' % WS_RE, NWG * CAP * 8)
    for k in range(4):
        I(f'v_add_u32 v{X+1}, {1024*k}, v{V_TID}')
        I(f'v_cmp_gt_u32 {sp(S_MASK+2*k)}, s63, v{X+1}')
    I(f's_mov_b32 s{S_C}, 0x{f2u(2.0**-KH):x}')
    I(f's_mov_b32 s{S_C+1}, 0x{f2u(2.0**-KH):x}')
    I(f's_mov_b32 s{S_JB}, 0')
    I(f's_mov_b32 s{S_WID}, 128')
    I(f'v_and_b32 v{V_J4}, 7, v{V_LANE}')
    I(f'v_lshlrev_b32 v{V_J4}, 3, v{V_J4}')
    if CM:
        I(f'v_and_b32 v{X+1}, 56, v{V_LANE}')
        I(f's_and_b32 s{S_T}, s{S_W}, 1')
        I(f's_lshl_b32 s{S_T}, s{S_T}, 7')
        I(f's_lshr_b32 s{S_T+1}, s{S_W}, 1')
        I(f's_add_u32 s{S_T}, s{S_T}, s{S_T+1}')
    else:
        I(f'v_lshrrev_b32 v{X+1}, 3, v{V_LANE}')
        I(f's_lshl_b32 s{S_T}, s{S_W}, 4')
    I(f'v_add_u32 v{X+1}, s{S_T}, v{X+1}')
    I(f'v_lshlrev_b32 v{V_TAB+2}, 11, v{X+1}')
    I(f'v_mul_u32_u24 v{V_CB4}, {CAP*4}, v{X+1}')
    I(f'v_add_u32 v{V_CB4}, v{V_CB4}, v{V_J4}')
    I(f'v_and_b32 v{V_CH8}, 31, v{V_LANE}')
    I(f'v_lshlrev_b32 v{V_CH8}, 3, v{V_CH8}')
    I(f'v_add_u32 v{V_CHP}, {PT}, v{V_CH8}')
    phase0_addr()
    a5_const()
    if not F1:
        I(f's_waitcnt vmcnt({8 + NEE if ORDER == 0 else 0})')
        I('s_barrier')
    stamp(2)
    def late_loads():
        if LATE:
            for k in range(NS, 4):
                src_load(k)
        for k in range(NEE, 4):
            e_load(k)
        I(f'v_mov_b32 v12, 0')
        I(f'global_load_dword v10, v12, {sp(S_DBG)} sc1')
        if TCH:
            I(f'v_lshlrev_b32 v13, 13, v{V_LANE}')
            I(f'buffer_load_dword v60, v13, {sr4(S_RW)}, 0 offen')
            I(f'buffer_load_dword v61, v13, {sr4(S_RE)}, 0 offen')
            I(f'buffer_load_dword v62, v13, {sr4(S_TAB)}, 0 offen')
            I(f'buffer_load_dword v63, v13, {sr4(S_NTS)}, 0 offen')
        srd_off(S_EA, S_WSP, S_WSP + 1, '0x%x' % WS_TAB, KREP * 0x80000)
        if LATE:
            srd_off(S_SRC, S_WSP, S_WSP + 1, '0x%x' % WS_RE, NWG * CAP * 8)
    if not LATE:
        late_loads()
    if not F1:
        phase0a()
    I(f's_mov_b32 s{S_T}, -{NB}')
    I(f'v_mov_b32 v{X+1}, 4')
    BN, WD, RK = 28, 32, 36
    for k in range(4):
        I(f's_waitcnt vmcnt({((3 + NS + NEE if ORDER == 0 else 6 + NS + NEE) if LATE else (12 if ORDER == 0 else 15) + TCH) - k})')
        I(f's_mov_b64 exec, {sp(S_MASK+2*k)}')
        if k == 3:
            I('s_cbranch_execz L_B1')
        I(f'v_mul_u32_u24 v{BN+k}, 21400, v{64+k}')
        I(f'v_lshrrev_b32 v{BN+k}, 20, v{BN+k}')
        I(f'v_mad_i32_i24 v{WD+k}, v{BN+k}, s{S_T}, v{64+k}')
        I(f'v_lshlrev_b32 v{BN+k}, 2, v{BN+k}')
        I(f'ds_add_rtn_u32 v{RK+k}, v{BN+k}, v{X+1} offset:{HIST}')
        I(f'v_lshlrev_b32 v{WD+k}, 26, v{WD+k}')
    L('L_B1')
    I('s_mov_b64 exec, -1')
    if LATE:
        late_loads()
    I(f'v_add_u32 v{X+1}, {NTI}, v{X}')
    stamp(3)
    I({0: 's_waitcnt lgkmcnt(0)', 1: 's_waitcnt vmcnt(1) lgkmcnt(0)', 2: f's_waitcnt vmcnt({9 + TCH}) lgkmcnt(0)'}[ORDER])
    I('s_barrier')
    stamp(4)
    if not F1:
        I(f'ds_read_b128 v[112:115], v{X+1}')
    I(f's_cmp_lg_u32 s{S_W}, 0')
    I('s_cbranch_scc1 L_NOSCAN')
    I(f'ds_read_b128 v[96:99], v{X} offset:{HIST}')
    I('s_waitcnt lgkmcnt(0)')
    for k in range(4):
        I(f'v_add_u32 v{108+k}, 4, v{96+k}')
        I(f'v_and_b32 v{108+k}, -8, v{108+k}')
    I('v_add_u32 v101, v108, v109')
    I('v_add_u32 v102, v101, v110')
    I('v_add_u32 v103, v102, v111')
    I('v_mov_b32 v104, v103')
    wave_scan(104)
    I(f'v_readlane_b32 s{S_T+4}, v104, 63')
    I('v_sub_u32 v104, v104, v103')
    I(f'v_mov_b32 v100, {MISC+8}')
    I(f'v_mov_b32 v105, s{S_T+4}')
    I('ds_write_b32 v100, v105')
    I('v_add_u32 v105, v104, v108')
    I('v_add_u32 v106, v104, v101')
    I('v_add_u32 v107, v104, v102')
    I(f'ds_write_b128 v{X}, v[104:107] offset:{HBASE}')
    for k in range(4):
        I(f'v_lshl_or_b32 v{108+k}, v{96+k}, 16, v{104+k}')
    I(f'ds_write_b128 v{X}, v[108:111] offset:{HIST}')
    L('L_NOSCAN')
    if F1:
        phase0a()
    I('s_waitcnt lgkmcnt(0)')
    if not F1:
        I(f'buffer_store_dwordx4 v[112:115], v{X}, {sr4(S_NTS)}, 0 offen' + SC)
    if T1:
        I(f's_mul_i32 s{S_T+4}, s3, {NB*128}')
        I(f'v_mov_b32 v60, s{S_T+4}')
        I(f'buffer_load_dword v61, v60, {sr4(S_OUT)}, 0 offen')
    if not SRCL:
        I(f's_waitcnt vmcnt({4 + TCH + T1 if LATE else 6 - F1 + TCH + T1})')
        for k in range(4):
            I(f'v_lshl_or_b32 v{WD+k}, v{68+k}, 3, v{WD+k}')
    I('s_barrier')
    stamp(5)
    if F1:
        I(f'ds_read_b128 v[112:115], v{X+1}')
    for k in range(4):
        I(f's_mov_b64 exec, {sp(S_MASK+2*k)}')
        I(f'ds_read_b32 v{BN+k}, v{BN+k} offset:{HBASE}')
    if F1:
        I('s_mov_b64 exec, -1')
        I('s_waitcnt lgkmcnt(4)')
        I(f'buffer_store_dwordx4 v[112:115], v{X}, {sr4(S_NTS)}, 0 offen' + SC)
    if SRCL == 1:
        I(f's_waitcnt vmcnt({5 + TCH + T1})')
        for k in range(4):
            I(f'v_lshl_or_b32 v{WD+k}, v{68+k}, 3, v{WD+k}')
    if SRCL < 2:
        I(f's_waitcnt vmcnt({1 + TCH + T1})')
        I(f'v_readfirstlane_b32 s{S_TAG}, v10')
    for k in range(4):
        I(f's_mov_b64 exec, {sp(S_MASK+2*k)}')
        if k == 3:
            I('s_cbranch_execz L_B2')
        if SRCL == 2:
            assert LATE and not TCH and not T1
            order_ = [f's{j}' for j in range(NS)] + [f'e{j}' for j in range(NEE)] + [f's{j}' for j in range(NS, 4)] + [f'e{j}' for j in range(NEE, 4)] + ['tag', 'nt']
            need_ = max(order_.index(f's{k}'), order_.index(f'e{k}'))
            I(f's_waitcnt vmcnt({len(order_) - 1 - need_}) lgkmcnt({3 - k + 2*k})')
            I(f'v_lshl_or_b32 v{WD+k}, v{68+k}, 3, v{WD+k}')
        else:
            I(f's_waitcnt lgkmcnt({3 - k + 2*k})')
        I(f'v_add_u32 v{RK+k}, v{BN+k}, v{RK+k}')
        I(f'v_add_u32 v{BN+k}, v{RK+k}, v{RK+k}')
        I(f'ds_write_b32 v{RK+k}, v{WD+k} offset:{STGW}')
        I(f'ds_write_b64 v{BN+k}, v[{72+2*k}:{73+2*k}] offset:{STGE}')
    L('L_B2')
    I('s_mov_b64 exec, -1')
    if SRCL == 2:
        I('s_waitcnt vmcnt(1)')
        I(f'v_readfirstlane_b32 s{S_TAG}, v10')
    I(f'v_mov_b32 v13, {MISC+8}')
    I(f'ds_read_b32 v13, v13')
    I(f's_mov_b32 s{S_T}, 0x40000')
    L('L_TAGP')
    I(f's_cmp_lg_u32 s{S_TAG}, 0')
    I('s_cbranch_scc1 L_TAGD')
    I(f'v_mov_b32 v12, 0')
    I(f'global_load_dword v10, v12, {sp(S_DBG)} sc1')
    I('s_waitcnt vmcnt(0)')
    I(f'v_readfirstlane_b32 s{S_TAG}, v10')
    I(f's_sub_u32 s{S_T}, s{S_T}, 1')
    I('s_cbranch_scc1 L_END')
    I('s_branch L_TAGP')
    L('L_TAGD')
    I(f'v_add_u32 v{X+2}, 16384, v{X}')
    I(f'v_lshlrev_b32 v12, 3, v{V_LANE}')
    I(f's_mul_i32 s{S_TAG2}, s{S_TAG}, 0x9e3779b1')
    I(f's_and_b32 s{S_TAG2}, s{S_TAG2}, 0x{TAGM:x}')
    I('s_waitcnt lgkmcnt(0)')
    I(f'v_readfirstlane_b32 s{S_T}, v13')
    I('s_barrier')
    I(f's_add_u32 s{S_T}, s{S_T}, 127')
    I(f's_and_b32 s{S_RW+2}, s{S_T}, -128')
    I(f's_lshl_b32 s{S_RE+2}, s{S_RW+2}, 1')
    stamp(6)
    if opt('early', 0):
        I(f'ds_read_b64 v[92:93], v12 offset:{HIST}')
        I(f'ds_read_b64 v[94:95], v12 offset:{HIST+512}')
        I(f'v_lshlrev_b32 v60, 4, v{V_LANE}')
        I('s_waitcnt lgkmcnt(0)')
        for k in range(4):
            I(f'v_or_b32 v{120+2*k}, s{S_TAG2}, v{92+k}')
            I(f'v_mov_b32 v{121+2*k}, s{S_TAG}')
        I(f's_cmp_lg_u32 s{S_W}, 0')
        I('s_cbranch_scc1 L_EARLY')
        I(f'buffer_store_dwordx4 v[120:123], v60, {sr4(S_TAB)}, 0 offen' + SC)
        I(f'buffer_store_dwordx4 v[124:127], v60, {sr4(S_TAB)}, 0 offen offset:1024' + SC)
        L('L_EARLY')
    I(f'ds_read_b128 v[64:67], v{X} offset:{STGW}')
    I(f'ds_read_b128 v[68:71], v{X} offset:{STGE}')
    I(f'ds_read_b128 v[72:75], v{X} offset:{STGE+16384}')
    I(f'ds_read_b64 v[92:93], v12 offset:{HIST}')
    I(f'ds_read_b64 v[94:95], v12 offset:{HIST+512}')
    I('s_waitcnt lgkmcnt(4)')
    I(f'buffer_store_dwordx4 v[64:67], v{X}, {sr4(S_RW)}, 0 offen' + SC)
    I('s_waitcnt lgkmcnt(3)')
    I(f'buffer_store_dwordx4 v[68:71], v{X}, {sr4(S_RE)}, 0 offen' + SC)
    I('s_waitcnt lgkmcnt(2)')
    I(f'buffer_store_dwordx4 v[72:75], v{X+2}, {sr4(S_RE)}, 0 offen' + SC)
    I('s_waitcnt lgkmcnt(0)')
    for k in range(4):
        I(f'v_or_b32 v{120+2*k}, s{S_TAG2}, v{92+k}')
        I(f'v_mov_b32 v{121+2*k}, s{S_TAG}')
    PF1 = opt('pf1', 0)
    if PF1:
        nt_prefetch(12, 49 - PF1, PF1, 61)
    pre = opt('pre', 'xbc').replace('0', '')
    def piece(c):
        if c == 'x':
            zregs()
            zero_range(EXTRA, 16384, X + 2, X)
            fill_desca()
        elif c == 'b':
            phase0b()
        elif c == 'c':
            phase0c()
    for c in pre:
        piece(c)
    stamp(7)
    I(f's_lshl_b32 s{S_T+1}, s3, 3')
    I(f'v_add_u32 v76, s{S_T+1}, v{V_TAB+2}')
    I(f'v_add_u32 v77, {RSTEP*2048}, v76')
    I(f'v_lshlrev_b32 v60, 4, v{V_LANE}')
    for r in range(2):
        I(f's_mov_b64 {sp(S_MASK+2*r)}, -1')
    I(f's_waitcnt vmcnt({1 if PF1 else 0})')
    stamp(8)
    I('s_barrier')
    stamp(9)
    I(f's_cmp_lg_u32 s{S_W}, {99 if opt("early", 0) else 0}')
    I('s_cbranch_scc1 L_POLL0')
    for k in range(KREP - 1, -1, -1):
        I(f's_mov_b32 s{S_T}, 0x{k*0x80000:x}')
        I(f'buffer_store_dwordx4 v[120:123], v60, {sr4(S_TAB)}, s{S_T} offen' + SC)
        I(f'buffer_store_dwordx4 v[124:127], v60, {sr4(S_TAB)}, s{S_T} offen offset:1024' + SC)
    L('L_POLL0')
    PF2 = opt('pf2', 0)
    if PF2:
        nt_prefetch(61, 49 - PF2, PF2, 63)
    EP = opt('ep', 0)
    for r in range(2 if EP else 0):
        I(f'buffer_load_dwordx2 {p(64+2*r)}, v{76+r}, {sr4(S_EA)}, 0 offen' + LSC)
    for c in 'xbc':
        if c not in pre:
            piece(c)
    fill_words()
    zregs()
    zero_range(LE, CNT - LE, X + 2, X)
    ptr_consts()
    I(f's_mov_b32 s{S_T}, 0x40000')
    I(f's_mov_b32 s{S_T+1}, 0x{TAGM:x}')
    if opt('ps', 0):
        I(f's_sleep {opt("ps", 0)}')
    if EP:
        I('s_branch L_POLLC')
    L('L_POLL')
    for r in range(2):
        I(f's_mov_b64 exec, {sp(S_MASK+2*r)}')
        I(f'buffer_load_dwordx2 {p(64+2*r)}, v{76+r}, {sr4(S_EA)}, 0 offen' + LSC)
    L('L_POLLC')
    for r in range(2):
        I(f's_waitcnt vmcnt({1-r})')
        I(f's_mov_b64 exec, {sp(S_MASK+2*r)}')
        I(f'v_xor_b32 v{V_TAB+r}, s{S_TAG2}, v{64+2*r}')
        I(f'v_xor_b32 v{65+2*r}, s{S_TAG}, v{65+2*r}')
        I(f'v_and_or_b32 v{65+2*r}, v{V_TAB+r}, s{S_T+1}, v{65+2*r}')
        I(f'v_cmp_ne_u32 {sp(S_MASK+2*r)}, 0, v{65+2*r}')
    I(f's_or_b64 {sp(S_T+2)}, {sp(S_MASK)}, {sp(S_MASK+2)}')
    I('s_cbranch_scc0 L_POLLED')
    I(f's_sub_u32 s{S_T}, s{S_T}, 1')
    I('s_cbranch_scc1 L_END')
    if opt('sleep', 0):
        I(f's_sleep {opt("sleep", 0)}')
    I('s_branch L_POLL')
    L('L_POLLED')
    I('s_mov_b64 exec, -1')
    stamp(10)
    def RB(s_): return 64 + 8 * (s_ >> 1)
    def MK(s_): return sp(S_MASK + 2 * s_)
    AD = X
    L('L_PASS')
    I(f'v_add_u32 v{X+10}, s{S_JB}, v{V_CB4}')
    I(f'v_add_u32 v{X+8}, s{S_JB}, v{V_J4}')
    SDW = 'src0_sel:DWORD src1_sel:WORD_1'
    for r in range(2):
        I(f'v_add_u32_sdwa v{X+r}, v{V_TAB+r}, v{X+10} dst_sel:DWORD dst_unused:UNUSED_PAD src0_sel:WORD_0 src1_sel:DWORD')
        I(f'v_cmp_lt_u32_sdwa {MK(2*r)}, v{X+8}, v{V_TAB+r} {SDW}')
        if r:
            I(f'v_add_u32 v{X+r}, {RSTEP*CAP*4}, v{X+r}')
        I(f'v_add_u32 v{X+2+r}, v{X+r}, v{X+r}')
        I(f's_mov_b64 exec, {MK(2*r)}')
        I(f'buffer_load_dwordx2 {p(RB(2*r)+4)}, v{X+r}, {sr4(S_DST)}, 0 offen' + LSC)
        I(f'buffer_load_dwordx4 {vr(RB(2*r),4)}, v{X+2+r}, {sr4(S_SRC)}, 0 offen' + LSC)
        I('s_mov_b64 exec, -1')
    I(f'v_add_u32 v{X+9}, s{S_WID}, v{X+8}')
    I(f'v_add_u32 v{X+10}, 4, v{X+8}')
    I(f's_cmp_eq_u32 s{S_WID}, 128')
    I(f's_cselect_b32 s{S_T}, 64, 0x10000')
    I(f'v_add_u32 v{X+8}, s{S_T}, v{X+8}')
    for r in range(2):
        I(f'v_cmp_lt_u32_sdwa {MK(4+2*r)}, v{X+8}, v{V_TAB+r} {SDW}')
        I(f'v_cmp_lt_u32_sdwa {MK(2*r+1)}, v{X+10}, v{V_TAB+r} {SDW}')
    I(f'v_add_u32 v{X+8}, 4, v{X+8}')
    for r in range(2):
        I(f's_mov_b64 exec, {MK(4+2*r)}')
        I(f'buffer_load_dwordx2 {p(RB(4+2*r)+4)}, v{X+r}, {sr4(S_DST)}, 0 offen offset:64' + LSC)
        I(f'buffer_load_dwordx4 {vr(RB(4+2*r),4)}, v{X+2+r}, {sr4(S_SRC)}, 0 offen offset:128' + LSC)
    I('s_mov_b64 exec, -1')
    for r in range(2):
        I(f'v_cmp_lt_u32_sdwa {MK(5+2*r)}, v{X+8}, v{V_TAB+r} {SDW}')
    I(f'v_cmp_lt_u32_sdwa vcc, v{X+9}, v{V_TAB} {SDW}')
    I(f'v_cmp_lt_u32_sdwa {sp(S_T)}, v{X+9}, v{V_TAB+1} {SDW}')
    I(f'v_mov_b32 v{X+8}, 4')
    I(f's_or_b64 vcc, vcc, {sp(S_T)}')
    I(f's_cbranch_scc0 L_NOMORE')
    I(f'v_mov_b32 v{X+9}, {MISC}')
    I(f'ds_write_b32 v{X+9}, v{X+8}')
    L('L_NOMORE')
    stamp(11)
    for s_ in range(8):
        if s_ >= 4:
            I(f's_mov_b64 exec, {MK(s_)}')
            I(f's_cbranch_execz L_C{s_}')
        if s_ % 2 == 0:
            I(f's_waitcnt vmcnt({7 - s_})')
        if s_ < 4:
            I(f's_mov_b64 exec, {MK(s_)}')
        I(f'v_lshrrev_b32 v{AD+s_}, 24, v{RB(s_)+4+(s_&1)}')
        if opt('safe', 0):
            I(f'v_and_b32 v{AD+s_}, 0xfc, v{AD+s_}')
        I(f'ds_add_rtn_u32 v{RB(s_)+6+(s_&1)}, v{AD+s_}, v{X+8} offset:{CNT}')
        if s_ >= 4:
            L(f'L_C{s_}')
    I('s_mov_b64 exec, -1')
    I(f'v_lshlrev_b32 v{X+8}, 2, v{V_LANE}')
    I(f'v_mov_b32 v{X+9}, {MISC}')
    I(f's_mov_b32 s{S_T+2}, 0x1fff8')
    I('s_waitcnt lgkmcnt(0)')
    I('s_barrier')
    stamp(12)
    if NPFM in (2, 3, 4):
        nt_prefetch(60, dst=62)
        I(f's_mov_b32 s{S_T+2}, 0x1fff8')
    NG, GS, MI = X + 10, X + 11, X + 12
    I(f'ds_read_b32 v{NG}, v{X+8} offset:{CNT}')
    I(f'ds_read_b32 v{X+9}, v{X+9}')
    I('s_waitcnt lgkmcnt(1)')
    I(f'v_add_u32 v{NG}, 28, v{NG}')
    I(f'v_and_b32 v{NG}, 0xffffffe0, v{NG}')
    I(f'v_mov_b32 v{GS}, v{NG}')
    wave_scan(GS)
    I(f'v_readlane_b32 s{S_T}, v{GS}, 63')
    I(f'v_sub_u32 v{GS}, v{GS}, v{NG}')
    if PROF == 5:
        stamp(19)
    I(f'ds_write_b32 v{X+8}, v{GS} offset:{BASET}')
    for s_ in range(8):
        I(f's_mov_b64 exec, {MK(s_)}')
        I(f'ds_read_b32 v{AD+s_}, v{AD+s_} offset:{BASET}')
    I('s_mov_b64 exec, -1')
    I(f'v_readfirstlane_b32 s{S_MORE}, v{X+9}')
    out.insert(len(out) - 1, '    s_waitcnt lgkmcnt(9)')
    I(f's_lshr_b32 s{S_T}, s{S_T}, 5')
    I(f's_cmp_eq_u32 s{S_WID}, 128')
    I(f's_cselect_b32 s{S_T+1}, {MAXG}, -1')
    I(f's_cmp_gt_u32 s{S_T}, s{S_T+1}')
    I('s_cbranch_scc1 L_OVERFLOW')
    def place(tag):
        I(f's_waitcnt vmcnt({NPF}) lgkmcnt(0)')
        for s_ in range(8):
            wd, rk, ee = RB(s_) + 4 + (s_ & 1), RB(s_) + 6 + (s_ & 1), RB(s_) + 2 * (s_ & 1)
            I(f's_mov_b64 exec, {MK(s_)}')
            if s_ >= 4:
                I(f's_cbranch_execz L_P{tag}{s_}')
            I(f'v_add_u32 v{AD+s_}, v{AD+s_}, v{rk}')
            I(f'v_and_b32 v{wd}, s{S_T+2}, v{wd}')
            I(f'v_add_u32 v{rk}, v{AD+s_}, v{AD+s_}')
            I(f'ds_write_b32 v{AD+s_}, v{wd} offset:{LS}')
            I(f'ds_write_b64 v{rk}, {p(ee)} offset:{LE}')
            if s_ >= 4:
                L(f'L_P{tag}{s_}')
        I('s_mov_b64 exec, -1')
    if PROF == 5:
        stamp(20)
    SWAP = opt('swap', 0)
    if SWAP:
        I(f's_bitcmp1_b32 s{S_W}, {SWAP}')
        I('s_cbranch_scc0 L_DFIRST')
        place('a')
        L('L_DFIRST')
    SB_, SR_, SG0 = S_T + 4, S_T + 5, S_T + 6
    I(f's_add_u32 s{S_T}, s{S_T}, 3')
    I(f's_lshr_b32 s{S_T}, s{S_T}, 2')
    I(f's_lshr_b32 s{SB_}, s{S_T}, 4')
    I(f's_and_b32 s{SR_}, s{S_T}, 15')
    I(f's_add_u32 s{S_T+1}, s{SB_}, 1')
    I(f'v_cvt_f32_u32 v{MI}, s{S_T+1}')
    I(f'v_cvt_f32_u32 v{MI+1}, s{SB_}')
    I(f'v_rcp_f32 v{MI}, v{MI}')
    I(f'v_rcp_f32 v{MI+1}, v{MI+1}')
    I(f's_mul_i32 s{SG0}, s{SR_}, s{S_T+1}')
    I(f's_lshl_b32 s{SG0}, s{SG0}, 2')
    I(f'v_lshrrev_b32 v{GS}, 5, v{GS}')
    I(f'v_mul_f32 v{MI}, 0x47800000, v{MI}')
    I(f'v_mul_f32 v{MI+1}, 0x47800000, v{MI+1}')
    I(f'v_lshrrev_b32 v{NG}, 5, v{NG}')
    I(f'v_cvt_u32_f32 v{MI}, v{MI}')
    I(f'v_cvt_u32_f32 v{MI+1}, v{MI+1}')
    I(f's_cmp_lt_u32 s{S_W}, s{SR_}')
    I(f's_cselect_b32 s{S_L}, s{S_T+1}, s{SB_}')
    I(f'v_add_u32 v{MI}, 2, v{MI}')
    I(f'v_add_u32 v{MI+1}, 2, v{MI+1}')
    I(f's_min_u32 s{S_T}, s{S_W}, s{SR_}')
    I(f's_mul_i32 s{S_T+3}, s{S_W}, s{SB_}')
    I(f's_add_u32 s{S_T+3}, s{S_T+3}, s{S_T}')
    I(f's_sub_u32 s{S_T+1}, 0, s{S_T+1}')
    I(f's_sub_u32 s{SB_}, 0, s{SB_}')
    I(f's_lshl_b32 s{SR_}, s{SR_}, 2')
    D0, D1, D2, D3, NR = 96, 97, 98, 99, 100
    I(f'v_lshlrev_b32 v{NR}, 8, v{V_LANE}')
    I(f'v_add_u32 v{NR+1}, {ACCN}, v{NR}')
    I(f's_mov_b32 s{S_T}, s{S_W}')
    L('L_DLOOP')
    I(f'v_cmp_lt_u32 vcc, s{S_T}, v{NG}')
    I('s_and_b64 exec, exec, vcc')
    I('s_cbranch_execz L_DEND')
    I(f'v_add_u32 v{D0}, s{S_T}, v{GS}')
    I(f'v_subrev_u32 v{D1}, s{SG0}, v{D0}')
    I(f'v_cmp_gt_u32 vcc, s{SG0}, v{D0}')
    I(f'v_mul_u32_u24 v{D2}, v{D0}, v{MI}')
    I(f'v_mul_u32_u24 v{D3}, v{D1}, v{MI+1}')
    I(f'v_lshrrev_b32 v{D2}, 16, v{D2}')
    I(f'v_lshrrev_b32 v{D3}, 16, v{D3}')
    I(f'v_mad_i32_i24 v{D0}, v{D2}, s{S_T+1}, v{D0}')
    I(f'v_mad_i32_i24 v{D1}, v{D3}, s{SB_}, v{D1}')
    I(f'v_add_u32 v{D3}, s{SR_}, v{D3}')
    I(f'v_cndmask_b32 v{D0}, v{D1}, v{D0}, vcc')
    I(f'v_cndmask_b32 v{D2}, v{D3}, v{D2}, vcc')
    I(f'v_cmp_le_u32 vcc, s{S_T}, v{D0}')
    I(f'v_lshl_add_u32 v{D0}, v{D0}, 6, v{D2}')
    I(f'v_lshlrev_b32 v{D1}, 8, v{D2}')
    I(f'v_lshlrev_b32 v{D0}, 2, v{D0}')
    I(f'v_add_u32 v{D1}, {EXTRA}, v{D1}')
    I(f'v_add_u32 v{D3}, {DESCA}, v{D0}')
    I(f'v_cndmask_b32 v{D1}, v{D1}, v{NR+1}, vcc')
    I(f'ds_write_b32 v{D0}, v{NR} offset:{DESCP}')
    I(f'ds_write_b32 v{D3}, v{D1}')
    I(f's_add_u32 s{S_T+7}, s{S_T}, 1')
    I(f'v_cmp_eq_u32 vcc, s{S_T+7}, v{NG}')
    I(f's_and_saveexec_b64 {sp(S_EX)}, vcc')
    I(f'ds_write_b32 v{X+8}, v{D2} offset:{NINFO+256}')
    I(f's_mov_b64 exec, {sp(S_EX)}')
    I(f's_cmp_lg_u32 s{S_T}, 0')
    I('s_cbranch_scc1 L_DNF')
    I(f'ds_write_b32 v{X+8}, v{D2} offset:{NINFO}')
    L('L_DNF')
    I(f's_add_u32 s{S_T}, s{S_T}, 16')
    I('s_branch L_DLOOP')
    L('L_DEND')
    I('s_mov_b64 exec, -1')
    I(f's_lshl_b32 s{S_T}, s{S_T+3}, 7')
    I(f's_lshl_b32 s{S_T+1}, s{S_L}, 5')
    I(f'v_mov_b32 v{D0}, s{S_T}')
    I(f'v_mad_u32_u24 v{V_PS0}, v{V_PS1}, s{S_T+1}, v{D0}')
    I(f'v_add_u32 v{D0}, v{D0}, v{D0}')
    I(f'v_add_u32 v{V_PS1}, s{S_T+1}, v{V_PS0}')
    I(f'v_add_u32 v{V_PE}, v{V_PE}, v{D0}')
    I(f's_lshl_b32 s{S_T+1}, s{S_L}, 6')
    I(f'v_mad_u32_u24 v{V_PE}, v{V_VAP}, s{S_T+1}, v{V_PE}')
    if opt('safe', 0):
        I(f's_min_u32 s{S_L}, s{S_L}, 9')
        I(f's_mov_b32 s{S_MORE}, 0')
    I(f's_mov_b32 s{S_CNT}, s{S_L}')
    if SWAP:
        I(f's_bitcmp1_b32 s{S_W}, {SWAP}')
        I('s_cbranch_scc1 L_PDONE')
    if PROF == 5:
        stamp(21)
    place('b')
    L('L_PDONE')
    stamp(13)
    I('s_waitcnt lgkmcnt(0)')
    I('s_barrier')
    stamp(14)
    I(f's_cmp_eq_u32 s{S_L}, 0')
    I('s_cbranch_scc1 L_FOLD')
    lg = Lg()
    FP = opt('fp', 0)
    if FP:
        for lvl in (3, 2, 1):
            I(f's_cmp_lt_u32 s{S_W}, {4 * (4 - lvl)}')
            I(f's_cbranch_scc0 L_FP{lvl}')
            I(f's_setprio {lvl}')
            I('s_branch L_FPD')
            L(f'L_FP{lvl}')
        L('L_FPD')
    s_reads(lg, 0)
    lg.op('dP', f'ds_read_b64 {p(V_VAP)}, v{V_PD}')
    lg.op('dA', f'ds_read_b64 {p(V_VAA[0])}, v{V_PD} offset:{DESCA-DESCP}')
    lg.op('e', f'ds_read_b64 {p(A5)}, v{V_PE}')
    lg.need('S0', 'S1', 'S2', 'S3')
    s_safe()
    STG_ = [int(x) for x in opt('stag', '0,0,0').split(',')]
    for gi, d in enumerate(STG_):
        if d:
            I(f's_cmp_ge_u32 s{S_W}, {4 * (gi + 1)}')
            I(f's_cbranch_scc0 L_ST{gi}')
            I(f's_sleep {d}')
            L(f'L_ST{gi}')
    for n in range(2):
        for i in range(16):
            I(gload(n, i))
        if n == 0 and FP == 2:
            I('s_setprio 0')
    s_reads(lg, 1)
    I(f'v_mov_b32 v{V_C8P}, v{V_CH8}')
    I(f'v_mov_b32 v{V_C8P+1}, v{V_CH8}')
    I(f'v_mov_b32 v{V_CPP}, v{V_CHP}')
    I(f'v_mov_b32 v{V_CPP+1}, v{V_CHP}')
    if M8:
        I(f'v_mov_b32 v{V_SCP}, 0x{f2u(2.0**KH):x}')
        I(f'v_mov_b32 v{V_SCP+1}, 0x{f2u(2.0**KH):x}')
    I(f's_mov_b32 s{S_BP0}, 64')
    I(f's_mov_b32 s{S_BP0+1}, 64')
    I(f's_mov_b32 s{S_BP1}, 128')
    I(f's_mov_b32 s{S_BP1+1}, 512')
    lg.need('dP', 'dA')
    va_add(V_VAP, V_VAA[0])
    lg.op('P0a', f'ds_read_b32 v{B5[0]+2}, v{V_VAP}')
    lg.op('P0b', f'ds_read_b32 v{B5[0]+3}, v{V_VAP+1}')
    lg.op('P1a', f'ds_read_b32 v{B5[1]+2}, v{V_VAP} offset:4')
    lg.op('P1b', f'ds_read_b32 v{B5[1]+3}, v{V_VAP+1} offset:4')
    I(f's_cmp_eq_u32 s{S_CNT}, 1')
    I(f's_cselect_b64 {sp(S_LDX)}, 0, {LDXV}')
    I('s_waitcnt lgkmcnt(0)')
    lg.q = []
    if opt('prio', 3):
        I('s_setprio 3')
    stamp(15)
    rstamp(28)
    half(lg, 0, 0, 0, False)
    if PROF == 4:
        stamp(19)
        lg.q = []
    state0 = list(lg.q)
    def step(par, uo):
        prio(f'm{par}', 1)
        half(lg, 1, par, uo)
        if PROF == 4:
            I('s_memtime s[98:99]')
            I(f's_sub_u32 s92, s{S_L}, s{S_CNT}')
            I(f's_add_u32 m0, s92, 20')
            I('s_waitcnt lgkmcnt(0)')
            I(f'v_writelane_b32 v{V_PROF}, s98, m0')
        I(f's_sub_u32 s{S_CNT}, s{S_CNT}, 1')
        I(f's_cmp_eq_u32 s{S_CNT}, 0')
        I(f's_cbranch_scc1 L_FIN{par}')
        I(f's_cmp_eq_u32 s{S_CNT}, 1')
        I(f's_cselect_b64 {sp(S_LDX)}, 0, {LDXV}')
        prio(f'{par}')
        half(lg, 0, par ^ 1, uo + 1)
    def loop_body():
        step(0, 0)
        step(1, 1)
        I(f'v_lshl_add_u64 {p(V_PS0)}, {p(V_PS0)}, 0, {sp(S_BP0)}')
        I(f'v_lshl_add_u64 {p(V_PE)}, {p(V_PE)}, 0, {sp(S_BP1)}')
        I('s_branch L_LOOP')
    mark = len(out)
    loop_body()
    del out[mark:]
    qb = list(lg.q)
    n = min(len(qb), len(state0))
    assert PROF == 4 or qb[len(qb)-n:] == state0[len(state0)-n:], (state0, qb)
    lg.q = list(qb if len(qb) >= len(state0) else state0)
    e('.p2align 3')
    L('L_LOOP')
    mark = len(out)
    loop_body()
    drop = opt('drop', '')
    if drop:
        body = out[mark:]
        keep = []
        for l in body:
            t = l.strip()
            if 'v' in drop and (t.startswith('buffer_load') or t.startswith('s_mov_b64 exec') or 'vmcnt' in t):
                continue
            if 'l' in drop and (t.startswith('ds_') or 'lgkmcnt' in t):
                continue
            if 'm' in drop and t.startswith('v_mfma'):
                continue
            if 'n' in drop and t.startswith('s_nop'):
                continue
            keep.append(l)
        out[mark:] = keep
    assert lg.q == qb, (lg.q, qb)
    print('loop entry queue', state0, 'back edge queue', qb, file=sys.stderr)
    for pr in range(2):
        L(f'L_FIN{pr}')
        if M8:
            I(f'v_pk_mul_f32 {p(V_T01N)}, {p(V_T01N)}, {p(V_T23D)}')
            I(f'v_pk_mul_f32 {p(V_T23D)}, {p(V_T01D)}, {p(V_T23D)}')
            I(f'v_pk_fma_f32 {p(V_T01N)}, {p(V_T23N)}, {p(V_T01D)}, {p(V_T01N)}')
            I(f'v_rcp_f32 v{V_T23D}, v{V_T23D}')
            I(f'v_rcp_f32 v{V_T23D+1}, v{V_T23D+1}')
            I('s_waitcnt lgkmcnt(0)')
            I(f'v_pk_fma_f32 {p(V_MB)}, {p(V_T01N)}, {p(V_T23D)}, {p(V_MB)}')
        else:
            for r_ in (V_T01D, V_T01D + 1, V_T23D, V_T23D + 1):
                I(f'v_rcp_f32 v{r_}, v{r_}')
            I('s_waitcnt lgkmcnt(0)')
            I(f'v_pk_fma_f32 {p(V_MB)}, {p(V_T01N)}, {p(V_T01D)}, {p(V_MB)}')
            I(f'v_pk_fma_f32 {p(V_MB)}, {p(V_T23N)}, {p(V_T23D)}, {p(V_MB)}')
        acc_write(Lg(), V_VAA[pr])
        if pr == 0:
            I('s_branch L_FOLD')
    L('L_FOLD')
    stamp(16)
    FL = opt('fl', 0)
    I(f'v_lshrrev_b32 v{X}, 4, v{V_TID}')
    I(f'v_and_b32 v{X+1}, 15, v{V_TID}')
    if FL:
        I(f'v_lshlrev_b32 v{X+6}, 3, v{X+1}')
        I(f'v_lshrrev_b32 v{X+2}, 3, v{X+1}')
        I(f'v_and_b32 v{X+1}, 7, v{X+1}')
        I(f'v_lshlrev_b32 v{X+1}, 5, v{X+1}')
        I(f'v_lshl_add_u32 v{X+1}, v{X+2}, 2, v{X+1}')
    else:
        I(f'v_lshlrev_b32 v{X+6}, 2, v{X+1}')
        I(f'v_lshlrev_b32 v{X+1}, 4, v{X+1}')
    I(f'v_lshl_add_u32 v{X+2}, v{X}, 8, v{X+1}')
    I(f'v_add_u32 v{X+2}, {ACCN}, v{X+2}')
    I(f'v_add_u32 v{X+1}, {EXTRA}, v{X+1}')
    def rd4(dst, ad):
        if FL:
            I(f'ds_read2_b32 v[{dst}:{dst+1}], v{ad} offset0:0 offset1:2')
            I(f'ds_read2_b32 v[{dst+2}:{dst+3}], v{ad} offset0:4 offset1:6')
        else:
            I(f'ds_read_b128 v[{dst}:{dst+3}], v{ad}')
    I(f'v_lshlrev_b32 v{X+3}, 2, v{X}')
    I(f's_mul_i32 s{S_T+4}, s3, {NB*128}')
    I(f'v_lshl_add_u32 v{X+6}, v{X}, 7, v{X+6}')
    I(f'v_add_u32 v{X+6}, s{S_T+4}, v{X+6}')
    I(f'v_mov_b32 v{X+7}, 0')
    I(f'ds_read_b32 v{X+4}, v{X+3} offset:{NINFO}')
    I(f'ds_read_b32 v{X+5}, v{X+3} offset:{NINFO+256}')
    I(f's_mov_b32 s{S_T+2}, 0x{f2u(2.0**-(SV+KH)):x}')
    I(f's_mov_b32 s{S_T+3}, 0x{f2u(-LOG2E * 2.0**-(SV+KH)):x}')
    I(f'v_cmp_gt_u32 vcc, {NB*16}, v{V_TID}')
    I('s_waitcnt vmcnt(0) lgkmcnt(0)')
    I('s_barrier')
    stamp(17)
    rstamp(29)
    if PROF:
        I(f'v_writelane_b32 v{V_PROF}, s{S_L}, 27')
    I(f's_and_saveexec_b64 {sp(S_EX)}, vcc')
    I('s_cbranch_execz L_FDONE')
    rd4(64, X + 2)
    I(f's_mov_b64 {sp(S_T)}, exec')
    L('L_FLOOP')
    I(f'v_cmp_lt_u32 vcc, v{X+4}, v{X+5}')
    I('s_and_b64 exec, exec, vcc')
    I('s_cbranch_execz L_FLEND')
    I(f'v_add_u32 v{X+4}, 1, v{X+4}')
    I(f'v_lshl_add_u32 v{X+7}, v{X+4}, 8, v{X+1}')
    rd4(72, X + 7)
    I('s_waitcnt lgkmcnt(0)')
    for k in range(4):
        I(f'v_add_f32 v{64+k}, v{64+k}, v{72+k}')
    I('s_branch L_FLOOP')
    L('L_FLEND')
    I(f's_mov_b64 exec, {sp(S_T)}')
    I('s_waitcnt lgkmcnt(0)')
    I(f's_cmp_lg_u32 s{S_MORE}, 0')
    I('s_cbranch_scc1 L_WB')
    for k in range(4):
        I(f'v_mul_f32 v{72+k}, s{S_T+3}, v{64+k}')
    for k in range(4):
        I(f'v_exp_f32 v{72+k}, v{72+k}')
    for k in range(4):
        I(f'v_mul_f32 v{64+k}, s{S_T+2}, v{64+k}')
    for k in range(4):
        I(f'v_add_f32 v{72+k}, 1.0, v{72+k}')
    for k in range(4):
        I(f'v_rcp_f32 v{72+k}, v{72+k}')
    I('s_nop 0')
    for k in range(4):
        I(f'v_mul_f32 v{64+k}, v{64+k}, v{72+k}')
    if FL:
        I('v_cvt_pk_bf16_f32 v80, v64, v65')
        I('v_cvt_pk_bf16_f32 v81, v66, v67')
        I(f'buffer_store_dwordx2 v[80:81], v{X+6}, {sr4(S_OUT)}, 0 offen' + OSC)
    else:
        I('v_cvt_pk_bf16_f32 v80, v64, v66')
        I('v_cvt_pk_bf16_f32 v81, v65, v67')
        I(f'buffer_store_dword v80, v{X+6}, {sr4(S_OUT)}, 0 offen' + OSC)
        I(f'buffer_store_dword v81, v{X+6}, {sr4(S_OUT)}, 0 offen offset:64' + OSC)
    stamp(18)
    prof_store()
    diag_end()
    I('s_endpgm')
    L('L_WB')
    if FL:
        I(f'ds_write2_b32 v{X+2}, v64, v65 offset0:0 offset1:2')
        I(f'ds_write2_b32 v{X+2}, v66, v67 offset0:4 offset1:6')
    else:
        I(f'ds_write_b128 v{X+2}, v[64:67]')
    L('L_FDONE')
    I('s_mov_b64 exec, -1')
    I(f's_cmp_eq_u32 s{S_MORE}, 0')
    I('s_cbranch_scc1 L_QUIT')
    I(f's_add_u32 s{S_JB}, s{S_JB}, s{S_WID}')
    I('s_branch L_REFILL')
    L('L_OVERFLOW')
    I(f's_mov_b32 s{S_WID}, 64')
    L('L_REFILL')
    I('s_waitcnt vmcnt(0) lgkmcnt(0)')
    I('s_barrier')
    fill_zero()
    fill_words()
    ptr_consts()
    I('s_waitcnt lgkmcnt(0)')
    I('s_barrier')
    I('s_branch L_PASS')
    L('L_QUIT')
    prof_store()
    L('L_END')
    I('s_endpgm')

hdr = open('standalone__edge_featured_mpnn_egc__graph.s.ref').read().split('\n')
for line in hdr:
    if line.startswith('; Override'):
        break
    e(line)
e(f'; @launch grid=({NWG},1,1) block=(1024,1,1) lds={LDS_BYTES}')
e('.amdgcn_target "amdgcn-amd-amdhsa--gfx950"')
e('.text')
gen()
e('.section .rodata,"a"')
e('.p2align 6')
e(f'.amdhsa_kernel {KNAME}')
e('  .amdhsa_next_free_vgpr 128')
e('  .amdhsa_next_free_sgpr 102')
e('  .amdhsa_accum_offset 128')
e('  .amdhsa_group_segment_fixed_size 0')
e('  .amdhsa_kernarg_size 80')
e('  .amdhsa_user_sgpr_count 2')
e('  .amdhsa_user_sgpr_kernarg_segment_ptr 1')
e('  .amdhsa_system_sgpr_workgroup_id_x 1')
e('  .amdhsa_float_denorm_mode_32 3')
e('.end_amdhsa_kernel')
open(sys.argv[1], 'w').write('\n'.join(x for x in out if x is not None) + '\n')
```

```python
import sys, struct

OPT = dict(a.split('=') for a in sys.argv[2:] if '=' in a)
def opt(name, default):
    return type(default)(OPT.get(name, default))

KNAME = 'standalone__edge_featured_mpnn_egc__graph_kernel'
N_NODES = 12500
E_EDGES = 800000
NB = 49
NWG = 256
CH = 3136
WS_RW = 0
WS_RE = 0x00400000
CAP = CH + 256
WS_TAB = 0x00B00000
WS_NT = 0x00C00000
WS_PROF = 0x01000000
M8 = opt('m8', 0)
if M8:
    KH, KEXP, SV = 13, 26, 0
else:
    KH, KEXP, SV = 31, 31, 30
LOG2E = 1.4426950408889634
SC = opt('sc', 'sc1')
SC = (' ' + SC.replace('+', ' ')) if SC != 'none' else ''
LSC = opt('lsc', 'sc1')
LSC = (' ' + LSC.replace('+', ' ')) if LSC != 'none' else ''
GSC = opt('gsc', 'sc1')
GSC = (' ' + GSC.replace('+', ' ')) if GSC != 'none' else ''
ELD = opt('eld', 'none')
ELD = (' ' + ELD.replace('+', ' ')) if ELD != 'none' else ''

def f2u(x):
    return struct.unpack('<I', struct.pack('<f', x))[0]

out = []
def e(s=''):
    out.append(s)
def I(s):
    out.append('    ' + s)
def L(name):
    out.append(name + ':')
def vr(a, n):
    return f'v[{a}:{a+n-1}]' if n > 1 else f'v{a}'
def sr4(a):
    return f's[{a}:{a+3}]'
def sp(a):
    return f's[{a}:{a+1}]'
def p(r):
    return f'v[{r}:{r+1}]'

def srd(d, lo, hi, nrec):
    I(f's_mov_b32 s{d}, s{lo}')
    I(f's_mov_b32 s{d+1}, s{hi}')
    I(f's_mov_b32 s{d+2}, {nrec}')
    I(f's_mov_b32 s{d+3}, 0x00020000')

def srd_off(d, lo, hi, off, nrec):
    I(f's_add_u32 s{d}, s{lo}, {off}')
    I(f's_addc_u32 s{d+1}, s{hi}, 0')
    I(f's_mov_b32 s{d+2}, {nrec}')
    I(f's_mov_b32 s{d+3}, 0x00020000')

def wave_scan(v):
    for sh in (1, 2, 4, 8):
        I('s_nop 1')
        I(f'v_add_u32_dpp v{v}, v{v}, v{v} row_shr:{sh} row_mask:0xf bank_mask:0xf')
    I('s_nop 1')
    I(f'v_add_u32_dpp v{v}, v{v}, v{v} row_bcast:15 row_mask:0xa bank_mask:0xf')
    I('s_nop 1')
    I(f'v_add_u32_dpp v{v}, v{v}, v{v} row_bcast:31 row_mask:0xc bank_mask:0xf')
    I('s_nop 1')

LS = 0
ZR = 18688
LE = 18688
CNT = 56064
MISC = 56320
BASET = 56576
NINFO = 56832
HIST = 57344
HBASE = 58368
DESCP = 59392
EXTRA = 67840
DESCA = 84224
PT = 86784
ACCN = 99328
WRAW = 111872
WG_, WV_, WU_ = WRAW, WRAW + 17408, WRAW + 25600
XOWN = WRAW + 33792
LDS_BYTES = XOWN + 8192
STGW = 0
STGE = CAP * 4
NTI = EXTRA
MAXG = 576
assert STGE + CAP * 8 <= CNT

V_TID, V_LANE = 0, 1
V_MA, V_MB = 2, 4
V_VAA = (6, 8)
V_VAP = 10
V_PS0, V_PS1, V_PE, V_PD, V_CH8, V_CHP = 12, 13, 14, 15, 16, 17
V_PROF = 18
V_TAB = 20
V_J4, V_CB4 = 24, 25
V_X = 26
V_T01D, V_T01N, V_T23D, V_T23N = 40, 42, 44, 46
B5 = (48, 52)
A5 = 56
V_TT = (60, 62)
G = (64, 80)
Z = 96
S = 112

S_XS, S_WS, S_DST, S_SRC, S_EA, S_RW, S_RE, S_TAB, S_NTS, S_NTG, S_OUT = 12, 16, 20, 24, 28, 32, 36, 40, 44, 48, 52
S_MASK = 56
S_W, S_L, S_CNT, S_JB, S_WID, S_MORE = 72, 73, 74, 75, 76, 77
S_C = 78
S_EX = 80
S_LDX = 82
S_T = 84
S_WSP = 94
S_DBG = 96
S_TAG, S_TAG2, S_TAG3 = 100, 101, 11
TAGM = 0xC003C003
TAGL = MISC + 64

NT2 = 2 if opt('touch', 0) else 0
LDXV = 0 if opt('noload', 0) else -1
NPFM = opt('npf', 4)
NPF = {0: 0, 1: 7, 2: 7, 3: 2, 4: 1, 5: 1}[NPFM]
NPF1 = NPF if NPFM in (1, 5) else 0
WSB = opt('wsb', 0) << 20
TCH = 4 if opt('touch', 0) else 0
T1 = opt('t1', 0)
OSC = opt('osc', 'nt')
OSC = (' ' + OSC.replace('+', ' ')) if OSC != 'none' else ''
KREP = opt('krep', 1)
assert KREP == 1
CM = opt('cm', 1)
RSTEP = 64 if CM else 8
SRCL = opt('srcl', 2)
PROF = opt('prof', 0)
DIAG = opt('diag', -1)
def diag_end():
    if DIAG < 0:
        return
    I('s_memrealtime s[98:99]')
    I('s_waitcnt lgkmcnt(0)')
    I('v_readlane_b32 s92, v18, 1')
    I('v_readlane_b32 s93, v18, 0')
    I('s_nop 3')
    I('s_sub_u32 s92, s92, s93')
    I('s_lshl_b32 s92, s92, 2')
    I('s_mov_b32 s93, s98')
    lbl = f'L_DG{len(out)}'
    L(lbl)
    I('s_memrealtime s[98:99]')
    I('s_waitcnt lgkmcnt(0)')
    I('s_sub_u32 s98, s98, s93')
    I('s_cmp_lt_u32 s98, s92')
    I(f's_cbranch_scc1 {lbl}')
def stamp(i):
    if DIAG >= 0 and i in (0, DIAG):
        I('s_memrealtime s[98:99]')
        I('s_waitcnt lgkmcnt(0)')
        if i == 0:
            I('v_writelane_b32 v18, s98, 0')
        if i == DIAG:
            I('v_writelane_b32 v18, s98, 1')
    if not PROF:
        return
    I('s_memtime s[98:99]')
    I('s_waitcnt lgkmcnt(0)')
    I(f'v_writelane_b32 v{V_PROF}, s98, {i}')
def rstamp(i):
    if not PROF:
        return
    I('s_memrealtime s[98:99]')
    I('s_waitcnt lgkmcnt(0)')
    I(f'v_writelane_b32 v{V_PROF}, s98, {i}')
def prof_store():
    if not PROF:
        return
    rstamp(31)
    if PROF == 3:
        I(f's_lshl_b32 s98, s2, 4')
        I(f's_add_u32 s98, s98, s{S_W}')
        I(f's_cmp_lg_u32 s98, {opt("pwave", 80)}')
        I('s_cbranch_scc1 L_END')
        I('s_mov_b64 exec, -1')
        I(f'v_readlane_b32 s98, v{V_PROF}, 0')
        I(f'v_readlane_b32 s99, v{V_PROF}, 30')
        I(f'v_readlane_b32 s{S_T}, v{V_PROF}, 31')
        I('s_nop 3')
        I(f's_sub_u32 s{S_T}, s{S_T}, s99')
        I(f's_add_u32 s{S_T}, s{S_T}, s98')
        I(f'v_writelane_b32 v{V_PROF}, s{S_T}, 9')
        I(f'v_subrev_u32 v{V_PROF}, s98, v{V_PROF}')
        I(f'v_mbcnt_lo_u32_b32 v{V_PROF+1}, -1, 0')
        I(f'v_lshlrev_b32 v{V_PROF+1}, 2, v{V_PROF+1}')
        I(f'v_add_u32 v{V_PROF+1}, -8, v{V_PROF+1}')
        I('s_mov_b64 exec, 0x3fff8')
        I(f'global_store_dword v{V_PROF+1}, v{V_PROF}, {sp(S_DBG)}')
        return
    I('s_mov_b64 exec, 0xffffffff')
    I(f's_add_u32 s{S_T}, s{S_WSP}, 0x{WS_PROF:x}')
    I(f's_addc_u32 s{S_T+1}, s{S_WSP+1}, 0')
    I(f'v_mbcnt_lo_u32_b32 v{V_PROF+1}, -1, 0')
    I(f'v_lshlrev_b32 v{V_PROF+1}, 2, v{V_PROF+1}')
    I(f's_lshl_b32 s98, s2, 4')
    I(f's_add_u32 s98, s98, s{S_W}')
    I(f's_lshl_b32 s98, s98, 7')
    I(f'v_add_u32 v{V_PROF+1}, s98, v{V_PROF+1}')
    I(f'global_store_dword v{V_PROF+1}, v{V_PROF}, {sp(S_T)}')

class Lg:
    def __init__(self):
        self.q = []
    def op(self, tag, text):
        I(text)
        self.q.append(tag)
    def need(self, *tags):
        idx = -1
        for t in tags:
            for i in range(len(self.q) - 1, -1, -1):
                if self.q[i] == t:
                    idx = max(idx, i)
                    break
        if idx < 0:
            return
        n = len(self.q) - 1 - idx
        assert n <= 15, (tags, n)
        I(f's_waitcnt lgkmcnt({n})')
        self.q = self.q[idx + 1:]

X = V_X

def zero_range(a, nbytes, zr, ad):
    k = 0
    base = a if a + nbytes <= 65536 + 16384 and a < 65536 - 3 * 16384 else None
    off = 0
    areg = ad
    if a + ((nbytes - 1) // 16384) * 16384 > 65535:
        I(f'v_add_u32 v{X+1}, {a}, v{ad}')
        areg = X + 1
        a0 = 0
    else:
        a0 = a
    while off < nbytes:
        n = min(16384, nbytes - off)
        if n < 16384:
            I(f'v_cmp_gt_u32 vcc, {n // 16}, v{V_TID}')
            I(f's_and_saveexec_b64 {sp(S_EX)}, vcc')
        I(f'ds_write_b128 v{areg}, v[{zr}:{zr+3}] offset:{a0 + off}')
        if n < 16384:
            I(f's_mov_b64 exec, {sp(S_EX)}')
        off += n

def zregs():
    I(f'v_lshlrev_b32 v{X}, 4, v{V_TID}')
    for k in range(4):
        I(f'v_mov_b32 v{X+2+k}, 0')

def fill_desca():
    I(f'v_and_b32 v{X+6}, 15, v{V_TID}')
    I(f'v_lshlrev_b32 v{X+6}, 10, v{X+6}')
    I(f'v_add_u32 v{X+6}, {EXTRA}, v{X+6}')
    for k in range(1, 4):
        I(f'v_add_u32 v{X+6+k}, {256*k}, v{X+6}')
    I(f'v_add_u32 v{X+1}, {DESCA}, v{X}')
    I(f'v_cmp_gt_u32 vcc, 160, v{V_TID}')
    I(f's_and_saveexec_b64 {sp(S_EX)}, vcc')
    I(f'ds_write_b128 v{X+1}, v[{X+6}:{X+9}]')
    I(f's_mov_b64 exec, {sp(S_EX)}')

def fill_zero():
    zregs()
    zero_range(ZR, 65536, X + 2, X)
    fill_desca()

def fill_words():
    I(f'v_lshlrev_b32 v{X}, 4, v{V_TID}')
    I(f'v_and_b32 v{X+2}, 7, v{V_TID}')
    I(f'v_lshlrev_b32 v{X+2}, 5, v{X+2}')
    I(f'v_add_u32 v{X+2}, {N_NODES*8}, v{X+2}')
    for k in range(1, 4):
        I(f'v_add_u32 v{X+2+k}, {8*k}, v{X+2}')
    I(f'ds_write_b128 v{X}, v[{X+2}:{X+5}] offset:{LS}')
    I(f'v_cmp_gt_u32 vcc, 144, v{V_TID}')
    I(f's_and_saveexec_b64 {sp(S_EX)}, vcc')
    I(f'ds_write_b128 v{X}, v[{X+2}:{X+5}] offset:{LS+16384}')
    I(f's_mov_b64 exec, {sp(S_EX)}')

V_C8P, V_CPP, V_SCP = 26, 28, 30
S_BP0, S_BP1 = 88, 90

def tail_ops(n):
    M = (V_MA, V_MB)[n]
    return [f'v_rcp_f32 v{V_T01D}, v{V_T01D}',
            f'v_rcp_f32 v{V_T01D+1}, v{V_T01D+1}',
            f'v_pk_fma_f32 {p(M)}, {p(V_T01N)}, {p(V_T01D)}, {p(M)}']

def acc_write(lg, va):
    lg.op('Wa', f'ds_write2_b32 v{va}, v{V_MA}, v{V_MB} offset0:0 offset1:1')
    lg.op('Wb', f'ds_write2_b32 v{va+1}, v{V_MA+1}, v{V_MB+1} offset0:0 offset1:1')

def acc_read(lg, va):
    lg.op('Ra', f'ds_read_b32 v{V_MA}, v{va}')
    lg.op('Rb', f'ds_read_b32 v{V_MA+1}, v{va+1}')
    lg.op('Rc', f'ds_read_b32 v{V_MB}, v{va} offset:4')
    lg.op('Rd', f'ds_read_b32 v{V_MB+1}, v{va+1} offset:4')

def va_add(vap, vaa):
    I(f'v_lshl_add_u64 {p(vap)}, {p(vap)}, 0, {p(V_CPP)}')
    I(f'v_lshl_add_u64 {p(vaa)}, {p(vaa)}, 0, {p(V_C8P)}')

def gload(n, i):
    return f'buffer_load_dword v{G[n]+i}, v{S + (i & 1) * 8 + (i >> 1)}, {sr4(S_NTG)}, 0 offen offset:{4*n}' + GSC

def s_safe():
    if opt('safe', 0):
        for i in range(16):
            I(f'v_and_b32 v{S+i}, 0x1fff8, v{S+i}')

def s_reads(lg, uo):
    lg.op('S0', f'ds_read_b128 {vr(S,4)}, v{V_PS0} offset:{uo*32}')
    lg.op('S1', f'ds_read_b128 {vr(S+4,4)}, v{V_PS0} offset:{uo*32+16}')
    lg.op('S2', f'ds_read_b128 {vr(S+8,4)}, v{V_PS1} offset:{uo*32}')
    lg.op('S3', f'ds_read_b128 {vr(S+12,4)}, v{V_PS1} offset:{uo*32+16}')

def half(lg, n, par, uo, with_tail=True):
    g = G[n]
    I('s_waitcnt vmcnt(16)')
    if n == 0:
        lg.need('P0a', 'P0b', 'e')
    else:
        lg.need('P1a', 'P1b')
    I(f'v_mfma_f32_32x32x16_bf16 {vr(Z,16)}, {vr(A5,4)}, {vr(B5[n],4)}, {vr(g,16)}')
    t = tail_ops(n ^ 1)
    va_prev, va_cur, va_nxt = V_VAA[par ^ 1], V_VAA[par], V_VAA[par ^ 1]
    sh = [f'v_lshlrev_b32 v{g+i}, 16, v{g+i}' for i in range(16)]
    ex = [f'v_exp_f32 v{Z+i}, v{Z+i} clamp' for i in range(16)]
    l3 = [f'v_pk_mul_f32 {p(V_T01N)}, {p(V_T01N)}, {p(V_T23D)}',
          f'v_pk_mul_f32 {p(V_T23D)}, {p(V_T01D)}, {p(V_T23D)}',
          f'v_pk_fma_f32 {p(V_T01N)}, {p(V_T23N)}, {p(V_T01D)}, {p(V_T01N)}',
          f'v_rcp_f32 v{V_T23D}, v{V_T23D}',
          f'v_rcp_f32 v{V_T23D+1}, v{V_T23D+1}',
          f'v_pk_fma_f32 {p((V_MA, V_MB)[n ^ 1])}, {p(V_T01N)}, {p(V_T23D)}, {p((V_MA, V_MB)[n ^ 1])}']
    if with_tail and not M8:
        for r_ in (V_T01D, V_T01D + 1, V_T23D, V_T23D + 1):
            I(f'v_rcp_f32 v{r_}, v{r_}')
    else:
        I('s_nop 3')
    if n == 1:
        lg.op('e', f'ds_read_b64 {p(A5)}, v{V_PE} offset:{(uo+1)*64}')
        lg.op('P1a', f'ds_read_b32 v{B5[1]+2}, v{V_VAP} offset:4')
        lg.op('P1b', f'ds_read_b32 v{B5[1]+3}, v{V_VAP+1} offset:4')
    else:
        lg.op('dP', f'ds_read_b64 {p(V_VAP)}, v{V_PD} offset:{(uo+1)*256}')
        I('s_nop 1')
    for op in sh[:8]:
        I(op)
    seq = []
    if with_tail and not M8:
        Mp = p((V_MA, V_MB)[n ^ 1])
        seq = ['NEED', f'v_pk_fma_f32 {Mp}, {p(V_T01N)}, {p(V_T01D)}, {Mp}', ex[0],
               f'v_pk_fma_f32 {Mp}, {p(V_T23N)}, {p(V_T23D)}, {Mp}', sh[8], 'ACC', ex[1], sh[9]]
    elif with_tail:
        seq = [l3[0], l3[1], ex[0], l3[2], l3[3], sh[8], l3[4], ex[1], sh[9], 'NEED', l3[5], 'ACC']
    else:
        seq = [ex[0], sh[8], ex[1], sh[9], 'ACC']
    for op in seq:
        if op == 'NEED':
            lg.need('Ra', 'Rb', 'Rc', 'Rd')
        elif op == 'ACC':
            if n == 0:
                if with_tail:
                    acc_write(lg, va_prev)
                acc_read(lg, va_cur)
                lg.op('dA', f'ds_read_b64 {p(va_nxt)}, v{V_PD} offset:{(uo+1)*256 + DESCA - DESCP}')
        else:
            I(op)
    for i in range(2, 12):
        I(ex[i])
        if 8 + i < 16:
            I(sh[8 + i])
        if n == 0 and i == 11:
            lg.need('dP', 'dA')
            va_add(V_VAP, va_nxt)
            lg.op('P0a', f'ds_read_b32 v{B5[0]+2}, v{V_VAP}')
            lg.op('P0b', f'ds_read_b32 v{B5[0]+3}, v{V_VAP+1}')
    for op in ex[12:]:
        I(op)
    for i in range(0, 16, 2):
        if M8:
            I(f'v_pk_fma_f32 {p(Z+i)}, {p(Z+i)}, {p(V_SCP)}, {sp(S_C)}')
        else:
            I(f'v_pk_add_f32 {p(Z+i)}, {p(Z+i)}, {sp(S_C)}')
    def T(k): return f'v_pk_mul_f32 {p(V_TT[k&1])}, {p(g+4*k)}, {p(Z+4*k+2)}'
    def DD(k): return f'v_pk_mul_f32 {p(Z+4*k+2)}, {p(Z+4*k)}, {p(Z+4*k+2)}'
    def NN(k): return f'v_pk_fma_f32 {p(Z+4*k)}, {p(g+4*k+2)}, {p(Z+4*k)}, {p(V_TT[k&1])}'
    for k0 in (0, 2):
        for op in (T(k0), T(k0 + 1), DD(k0), DD(k0 + 1), NN(k0), NN(k0 + 1)):
            I(op)
        if n == 0 and k0 == 0:
            lg.need('S0', 'S1', 'S2', 'S3')
            s_safe()
        I(f's_mov_b64 exec, {sp(S_LDX)}')
        for i in range(4 * k0, 4 * k0 + 8):
            I(gload(n, i))
        I('s_mov_b64 exec, -1')
    if n == 1:
        s_reads(lg, uo + 2)
    I(f'v_pk_mul_f32 {p(V_T01N)}, {p(Z)}, {p(Z+6)}')
    I(f'v_pk_mul_f32 {p(V_T23N)}, {p(Z+8)}, {p(Z+14)}')
    I(f'v_pk_mul_f32 {p(V_T01D)}, {p(Z+2)}, {p(Z+6)}')
    I(f'v_pk_mul_f32 {p(V_T23D)}, {p(Z+10)}, {p(Z+14)}')
    I(f'v_pk_fma_f32 {p(V_T01N)}, {p(Z+4)}, {p(Z+2)}, {p(V_T01N)}')
    I(f'v_pk_fma_f32 {p(V_T23N)}, {p(Z+12)}, {p(Z+10)}, {p(V_T23N)}')

PRIO = {
    3: {(3, 0): 2, (2, 0): 1, (1, 0): 0},
    5: {(2, 0): 2, (1, 0): 1, (1, 1): 0},
    6: {(3, 0): 2, (1, 0): 1, (1, 1): 0},
    7: {(2, 1): 2, (1, 0): 1, (1, 1): 0},
    8: {(4, 0): 2, (2, 0): 1, (1, 1): 0},
    9: {(3, 0): 2, (2, 1): 1, (1, 1): 0},
    0: {},
}[opt('prio', 9)]
def prio(tag, phase=0):
    for (t, ph), lvl in PRIO.items():
        if ph != phase:
            continue
        I(f's_cmp_eq_u32 s{S_CNT}, {t}')
        I(f's_cbranch_scc0 L_PR{tag}_{lvl}')
        I(f's_setprio {lvl}')
        L(f'L_PR{tag}_{lvl}')

def split_hilo(a, b, t0, t1):
    I(f'v_cvt_pk_bf16_f32 v{t0}, v{a}, v{b}')
    I(f'v_lshlrev_b32 v{t1}, 16, v{t0}')
    I(f'v_and_b32 v{t0}, 0xffff0000, v{t0}')
    I(f'v_sub_f32 v{a}, v{a}, v{t1}')
    I(f'v_sub_f32 v{b}, v{b}, v{t0}')
    I(f'v_cvt_pk_bf16_f32 v{a}, v{t1}, v{a}')
    I(f'v_cvt_pk_bf16_f32 v{b}, v{t0}, v{b}')

V_AA, V_AB, V_AD, V_AP = 6, 7, 8, 9
SA, SB, SD = 80, 96, 112

def phase0_addr():
    I(f's_and_b32 s{S_T}, s{S_W}, 3')
    I(f's_lshr_b32 s{S_T+1}, s{S_W}, 2')
    I(f'v_and_b32 v12, 15, v{V_LANE}')
    I(f'v_lshrrev_b32 v13, 4, v{V_LANE}')
    I(f'v_bfe_u32 v14, v{V_LANE}, 1, 3')
    I(f'v_xor_b32 v14, v14, v13')
    I(f'v_lshlrev_b32 v14, 4, v14')
    I(f'v_lshl_or_b32 v14, v12, 7, v14')
    I(f's_lshl_b32 s{S_T+2}, s{S_T}, 11')
    I(f'v_add_u32 v{V_AA}, s{S_T+2}, v14')
    I(f'v_bfe_u32 v14, v{V_LANE}, 2, 2')
    I(f'v_lshl_add_u32 v14, v13, 3, v14')
    I(f'v_lshlrev_b32 v14, 7, v14')
    I(f'v_and_b32 v15, 3, v{V_LANE}')
    I(f'v_lshl_add_u32 v14, v15, 3, v14')
    I(f's_lshl_b32 s{S_T+2}, s{S_T+1}, 5')
    I(f'v_or_b32 v14, s{S_T+2}, v14')
    I(f'v_and_b32 v15, 24, v{V_LANE}')
    I(f'v_lshlrev_b32 v15, 2, v15')
    I(f'v_xor_b32 v14, v14, v15')
    I(f'v_add_u32 v{V_AB}, {WRAW}, v14')
    I(f's_lshl_b32 s{S_T+2}, s{S_T}, 12')
    I(f'v_lshlrev_b32 v13, 10, v13')
    I(f'v_add_u32 v13, s{S_T+2}, v13')
    I(f's_lshl_b32 s{S_T+2}, s{S_T+1}, 6')
    I(f's_add_u32 s{S_T+2}, s{S_T+2}, {NTI}')
    I(f'v_lshl_add_u32 v{V_AD}, v12, 2, v13')
    I(f'v_add_u32 v{V_AD}, s{S_T+2}, v{V_AD}')
    I(f's_and_b32 s{S_T+2}, s{S_T+1}, 1')
    I(f's_lshl_b32 s{S_T+2}, s{S_T+2}, 7')
    I(f's_lshr_b32 s{S_T+3}, s{S_T+1}, 1')
    I(f's_lshl_b32 s{S_T+3}, s{S_T+3}, 2')
    I(f's_add_u32 s{S_T+2}, s{S_T+2}, s{S_T+3}')
    I(f's_add_u32 s{S_T+2}, s{S_T+2}, {PT}')
    I(f'v_lshl_add_u32 v{V_AP}, v12, 3, v13')
    I(f'v_add_u32 v{V_AP}, s{S_T+2}, v{V_AP}')

def b_reads(dst, off):
    for sg in range(2):
        for pp in range(2):
            I(f'ds_read_b64_tr_b16 {vr(dst+4*sg+2*pp,2)}, v{V_AB} offset:{off+sg*4096+pp*512}')

def mm16(d, b):
    I(f'v_mfma_f32_16x16x32_bf16 {vr(d,4)}, {vr(SA,4)}, {vr(b,4)}, 0')
    I(f'v_mfma_f32_16x16x32_bf16 {vr(d,4)}, {vr(SA+4,4)}, {vr(b+4,4)}, {vr(d,4)}')

def phase0a():
    I(f'v_add_u32 v12, {XOWN}, v{V_AA}')
    I(f'v_xor_b32 v13, 64, v{V_AA}')
    I(f'v_add_u32 v13, {XOWN}, v13')
    I(f'ds_read_b128 {vr(SA,4)}, v12')
    I(f'ds_read_b128 {vr(SA+4,4)}, v13')
    b_reads(SB, 8192)
    b_reads(SB + 8, WV_ - WRAW)
    I(f's_mov_b32 s{S_T+4}, 0x{f2u(-LOG2E):x}')
    I(f's_mov_b32 s{S_T+6}, 0x7fffffff')
    I(f's_mov_b32 s{S_T+7}, 0xffff0000')
    I('s_waitcnt lgkmcnt(4)')
    mm16(SD, SB)
    I('s_waitcnt lgkmcnt(0)')
    mm16(SD + 4, SB + 8)
    I('s_nop 4')
    for i in range(4):
        I(f'v_mul_f32 v{SD+i}, s{S_T+4}, v{SD+i}')
    for i in range(4):
        I(f'v_and_b32 v{SD+8+i}, s{S_T+6}, v{SD+i}')
    for i in range(4):
        if SV:
            I(f'v_mul_f32 v{SD+4+i}, 0x{f2u(2.0**SV):x}, v{SD+4+i}')
        I(f'v_add_u32 v{SD+8+i}, 0x8000, v{SD+8+i}')
    I(f'v_cvt_pk_bf16_f32 v{SD+4}, v{SD+4}, v{SD+5}')
    I(f'v_cvt_pk_bf16_f32 v{SD+6}, v{SD+6}, v{SD+7}')
    I(f'v_lshrrev_b32 v{SD+5}, 16, v{SD+4}')
    I(f'v_lshrrev_b32 v{SD+7}, 16, v{SD+6}')
    I(f'v_and_b32 v{SD+4}, 0xffff, v{SD+4}')
    I(f'v_and_b32 v{SD+6}, 0xffff, v{SD+6}')
    for i in range(4):
        I(f'v_sub_u32 v{SD+8+i}, v{SD+8+i}, v{SD+4+i} clamp')
    for i in range(4):
        I(f'v_and_or_b32 v{SD+8+i}, v{SD+8+i}, s{S_T+7}, v{SD+4+i}')
    for i in range(4):
        I(f'v_bfi_b32 v{SD+i}, s{S_T+6}, v{SD+8+i}, v{SD+i}')
        I(f'ds_write_b32 v{V_AD}, v{SD+i} offset:{i*256}')

def phase0b():
    b_reads(SB, 0)
    b_reads(SB + 8, WU_ - WRAW)
    I(f's_mov_b32 s{S_T+4}, 0x{f2u(-LOG2E):x}')
    I(f's_mov_b32 s{S_T+5}, 0x{f2u(2.0**(SV+KH)):x}')
    I(f'v_mov_b32 v13, 0x{f2u(-float(KEXP)):x}')
    I(f's_and_b32 s{S_T+6}, s{S_W}, 3')
    I('s_waitcnt lgkmcnt(4)')
    mm16(SD, SB)
    I('s_waitcnt lgkmcnt(0)')
    mm16(SD + 4, SB + 8)
    I('s_nop 4')
    for i in range(4):
        I(f'v_fma_f32 v{SD+i}, v{SD+i}, s{S_T+4}, v13')
    split_hilo(SD, SD + 1, 12, 13)
    split_hilo(SD + 2, SD + 3, 12, 13)
    for i in range(4):
        I(f'v_mul_f32 v{SD+4+i}, s{S_T+5}, v{SD+4+i}')
    I(f's_cmp_eq_u32 s{S_T+6}, 3')
    I(f's_cselect_b64 exec, 0xffff, -1')
    I(f'ds_write_b32 v{V_AP}, v{SD}')
    I(f'ds_write_b32 v{V_AP}, v{SD+4} offset:{ACCN-PT}')
    I(f's_cselect_b64 exec, 0, -1')
    for i in range(1, 4):
        I(f'ds_write_b32 v{V_AP}, v{SD+i} offset:{i*256}')
        I(f'ds_write_b32 v{V_AP}, v{SD+4+i} offset:{ACCN-PT+i*256}')
    I('s_mov_b64 exec, -1')

def phase0c():
    I(f'v_bfe_u32 v13, v{V_LANE}, 2, 2')
    I(f'v_lshlrev_b32 v13, 7, v13')
    I(f'v_bfe_u32 v15, v{V_LANE}, 4, 1')
    I(f'v_lshl_add_u32 v13, v15, 5, v13')
    I(f'v_and_b32 v15, 3, v{V_LANE}')
    I(f'v_lshl_add_u32 v13, v15, 3, v13')
    I(f'v_and_b32 v15, 8, v{V_LANE}')
    I(f'v_lshlrev_b32 v15, 2, v15')
    I(f'v_xor_b32 v13, v13, v15')
    I(f'v_add_u32 v13, {WG_ + 16384}, v13')
    I(f'ds_read_b64_tr_b16 v[96:97], v13')
    I(f'ds_read_b64_tr_b16 v[98:99], v13 offset:64')
    I(f's_mov_b32 s{S_T+4}, 0x{f2u(-LOG2E):x}')
    I(f'v_cmp_lt_u32 vcc, 31, v{V_LANE}')
    I('s_waitcnt lgkmcnt(0)')
    for m in range(4):
        I(f'v_lshlrev_b32 v{100+2*m}, 16, v{96+m}')
        I(f'v_and_b32 v{101+2*m}, 0xffff0000, v{96+m}')
    for j in range(8):
        I(f'v_mul_f32 v{100+j}, s{S_T+4}, v{100+j}')
    for m in range(4):
        dst = B5[m >> 1] + (m & 1)
        I(f'v_cvt_pk_bf16_f32 v{96+m}, v{100+2*m}, v{101+2*m}')
        I(f'v_lshlrev_b32 v12, 16, v{96+m}')
        I(f'v_and_b32 v13, 0xffff0000, v{96+m}')
        I(f'v_sub_f32 v12, v{100+2*m}, v12')
        I(f'v_sub_f32 v13, v{101+2*m}, v13')
        I(f'v_cvt_pk_bf16_f32 v12, v12, v13')
        I(f'v_cndmask_b32 v{dst}, v{96+m}, v12, vcc')

def a5_const():
    I(f'v_bfe_u32 v12, v{V_LANE}, 2, 1')
    I(f'v_lshrrev_b32 v13, 5, v{V_LANE}')
    I(f'v_xor_b32 v12, v12, v13')
    I(f'v_and_b32 v13, 1, v{V_LANE}')
    I(f'v_lshl_or_b32 v12, v12, 1, v13')
    I(f'v_mov_b32 v13, 0x3f803f80')
    I(f'v_cmp_eq_u32 vcc, 0, v12')
    I(f'v_cmp_eq_u32 {sp(S_T)}, 1, v12')
    I('s_nop 1')
    I(f'v_cndmask_b32 v{A5+2}, 0, v13, vcc')
    I(f'v_cndmask_b32 v{A5+3}, 0, v13, {sp(S_T)}')

def nt_prefetch(vt, first=0, nl=None, dst=96):
    I(f's_lshr_b32 s{S_T}, s2, 4')
    I(f's_lshl_b32 s{S_T+1}, s{S_W}, 4')
    I(f's_add_u32 s{S_T}, s{S_T}, s{S_T+1}')
    I(f's_and_b32 s{S_T+1}, s{S_T}, 7')
    I(f's_lshl_b32 s{S_T+1}, s{S_T+1}, 5')
    I(f's_lshr_b32 s{S_T}, s{S_T}, 3')
    I(f's_add_u32 s{S_T}, s{S_T}, s{S_T+1}')
    if not opt('xmap', 1):
        I(f's_lshr_b32 s{S_T}, s2, 4')
        I(f's_lshl_b32 s{S_T+1}, s{S_W}, 4')
        I(f's_add_u32 s{S_T}, s{S_T}, s{S_T+1}')
    I(f's_lshl_b32 s{S_T}, s{S_T}, 1')
    I(f's_bfe_u32 s{S_T+1}, s2, 0x10003')
    I(f's_add_u32 s{S_T}, s{S_T}, s{S_T+1}')
    I(f's_mul_i32 s{S_T}, s{S_T}, {NB*128}')
    I(f's_add_u32 s{S_T}, s{S_T}, 0x{WS_NT:x}')
    srd_off(S_NTS, S_WSP, S_WSP + 1, f's{S_T}', NB * 128)
    if NPFM >= 3:
        I(f'v_lshlrev_b32 v{vt}, {7 if NPFM >= 4 else 6}, v{V_LANE}')
        I(f'v_add_u32 v{vt+1}, 4096, v{vt}')
        nl = opt("pfl", 6) if nl is None else nl
        I(f's_mov_b32 exec_lo, 0x{(((1 << nl) - 1) << first) & 0xffffffff:x}')
        I(f's_mov_b32 exec_hi, 0x{(((1 << nl) - 1) << first) >> 32:x}')
        for k in range(NPF):
            I(f'buffer_load_dword v{dst+k}, v{vt+k}, {sr4(S_NTS)}, 0 offen' + (LSC if opt('pfsc', 1) else ''))
        I('s_mov_b64 exec, -1')
        return
    I(f'v_lshlrev_b32 v{vt}, 4, v{V_LANE}')
    I(f'v_add_u32 v{vt+1}, 4096, v{vt}')
    for k in range(NPF):
        I(f'buffer_load_dwordx4 {vr(96+4*k,4)}, v{vt+(k>>2)}, {sr4(S_NTS)}, 0 offen offset:{(k&3)*1024}' + LSC)

def ptr_consts():
    I(f'v_lshrrev_b32 v{V_PS1}, 5, v{V_LANE}')
    I(f's_lshl_b32 s{S_T}, s{S_W}, 4')
    I(f's_add_u32 s{S_T}, s{S_T}, {DESCP}')
    I(f'v_lshlrev_b32 v{V_PD}, 3, v{V_PS1}')
    I(f'v_add_u32 v{V_PS1}, v{V_PS1}, v{V_PS1}')
    I(f'v_add_u32 v{V_PD}, s{S_T}, v{V_PD}')
    I(f'v_bfe_u32 v{V_VAP}, v{V_LANE}, 2, 1')
    I(f'v_and_b32 v{V_PE}, 1, v{V_LANE}')
    I(f'v_lshl_or_b32 v{V_VAP}, v{V_VAP}, 1, v{V_PE}')
    I(f'v_bfe_u32 v{V_PE}, v{V_LANE}, 3, 2')
    I(f'v_bfe_u32 v{V_PS0}, v{V_LANE}, 1, 1')
    I(f'v_lshl_or_b32 v{V_PE}, v{V_PE}, 1, v{V_PS0}')
    I(f'v_lshlrev_b32 v{V_PE}, 3, v{V_PE}')
    I(f'v_add_u32 v{V_PE}, {LE}, v{V_PE}')

def gen():
    e(f'.globl {KNAME}')
    e('.p2align 8')
    e(f'.type {KNAME},@function')
    L(KNAME)
    I(f's_cmp_ge_u32 s2, {NWG}')
    I('s_cbranch_scc1 L_END')
    I('s_load_dwordx8 s[84:91], s[0:1], 0')
    I('s_load_dwordx4 s[4:7], s[0:1], 32')
    I('s_load_dwordx4 s[8:11], s[0:1], 48')
    I('s_load_dwordx4 s[56:59], s[0:1], 64')
    if PROF:
        I(f'v_mov_b32 v{V_PROF}, 0')
    rstamp(30)
    stamp(0)
    zregs()
    zero_range(CNT, DESCP + 2560 - CNT, X + 2, X)
    I(f'v_lshlrev_b32 v{X+6}, 2, v{V_TID}')
    I(f's_mul_i32 s61, s2, {CH*4}')
    I(f's_mul_i32 s63, s2, {CH}')
    I(f's_sub_u32 s63, {E_EDGES}, s63')
    I(f's_min_u32 s63, s63, {CH}')
    I(f's_lshl_b32 s64, s63, 2')
    I(f'v_add_u32 v{X+8}, 4096, v{X+6}')
    I(f'v_add_u32 v{X+9}, 8192, v{X+6}')
    I(f'v_add_u32 v{X+10}, 12288, v{X+6}')
    I(f'v_lshrrev_b32 v{X+1}, 6, v{V_TID}')
    I(f'v_and_b32 v{V_LANE}, 63, v{V_TID}')
    I(f'v_readfirstlane_b32 s{S_W}, v{X+1}')
    I('s_and_b32 s3, s2, 7')
    I('s_lshl_b32 s3, s3, 5')
    I('s_lshr_b32 s60, s2, 3')
    I('s_add_u32 s3, s3, s60')
    if not opt('xmap', 1):
        I('s_mov_b32 s3, s2')
    I(f's_mul_i32 s62, s2, {CH*8}')
    I(f's_lshl_b32 s65, s63, 3')
    I(f'v_and_b32 v97, 0x50, v{V_TID}')
    I(f'v_lshlrev_b32 v96, 1, v97')
    I(f'v_or_b32 v97, v97, v96')
    I(f'v_and_b32 v97, 0x60, v97')
    I(f'v_xor_b32 v97, v97, v{X}')
    I(f'v_and_b32 v96, 0x20, v96')
    I(f'v_lshlrev_b32 v98, 4, v{V_LANE}')
    I(f'v_xor_b32 v96, v96, v98')
    I(f's_lshl_b32 s66, s{S_W}, 10')
    I(f'v_and_b32 v101, 0x1fff, v97')
    I(f'v_lshrrev_b32 v98, 3, v{V_TID}')
    I(f'v_bfe_u32 v99, v98, 1, 3')
    I(f'v_and_b32 v100, 7, v{V_TID}')
    I(f'v_xor_b32 v99, v99, v100')
    I(f'v_lshlrev_b32 v99, 4, v99')
    I(f'v_lshl_add_u32 v99, v98, 7, v99')
    I(f's_mul_i32 s60, s3, {NB*128}')
    I(f'v_add_u32 v99, s60, v99')
    I(f'v_add_u32 v96, 16384, v96')
    I('s_waitcnt lgkmcnt(0)')
    I(f's_or_b32 s67, s2, s{S_W}')
    I('s_cmp_lg_u32 s67, 0')
    I('s_cbranch_scc1 L_NOTAG')
    I('s_memrealtime s[68:69]')
    I(f'v_mov_b32 v{X+2}, 0')
    I('s_waitcnt lgkmcnt(0)')
    I('s_or_b32 s68, s68, 1')
    I(f'v_mov_b32 v{X+3}, s68')
    I('s_mov_b64 exec, 1')
    I(f'global_store_dword v{X+2}, v{X+3}, s[56:57] sc1')
    I('s_mov_b64 exec, -1')
    L('L_NOTAG')
    def dst_loads():
        srd_off(S_DST, 90, 91, 's61', 's64')
        for k in range(4):
            I(f'buffer_load_dword v{64+k}, v{X+6 if k == 0 else X+7+k}, {sr4(S_DST)}, 0 offen' + ELD)
    def dma_loads():
        srd(S_WS, 8, 9, 132 * 128)
        I(f's_add_u32 m0, s66, {WG_}')
        srd(S_XS, 84, 85, N_NODES * 128)
        I(f'buffer_load_dwordx4 v97, {sr4(S_WS)}, 0 offen lds')
        I(f's_cmp_lt_u32 s{S_W}, 8')
        I(f's_cselect_b32 s{S_NTS}, s6, s4')
        I(f's_cselect_b32 s{S_NTS+1}, s7, s5')
        I(f's_mov_b32 s{S_NTS+2}, {64*128}')
        I(f's_mov_b32 s{S_NTS+3}, 0x00020000')
        I(f's_add_u32 m0, s66, {WV_}')
        I('s_nop 0')
        I(f'buffer_load_dwordx4 v101, {sr4(S_NTS)}, 0 offen lds')
        I(f's_cmp_lt_u32 s{S_W}, 8')
        I('s_cbranch_scc0 L_D3B')
        I(f's_add_u32 m0, s66, {XOWN}')
        I('s_nop 0')
        I(f'buffer_load_dwordx4 v99, {sr4(S_XS)}, 0 offen lds')
        I('s_branch L_D3C')
        L('L_D3B')
        I(f's_mov_b32 m0, {WG_ + 16384}')
        I('s_nop 0')
        I(f'buffer_load_dwordx4 v96, {sr4(S_WS)}, 0 offen lds')
        L('L_D3C')
    if opt('t0', 0):
        I(f'v_and_b32 v60, 15, v{V_LANE}')
        I(f'v_lshlrev_b32 v60, 20, v60')
        I(f'v_and_b32 v61, 1, v{V_LANE}')
        I(f'v_lshlrev_b32 v61, 20, v61')
        I(f'global_load_dword v62, v60, s[58:59]')
        I(f'global_load_dword v63, v61, s[10:11]')
    ORDER = opt('order', 2)
    if ORDER == 0:
        dma_loads()
    dst_loads()
    if ORDER == 2:
        dma_loads()
    F1 = opt('f1', 1)
    if F1:
        I('s_barrier')
    srd_off(S_SRC, 88, 89, 's61', 's64')
    LATE = opt('late', 1)
    def src_load(k):
        I(f'buffer_load_dword v{68+k}, v{X+6 if k == 0 else 43+k}, {sr4(S_SRC)}, 0 offen' + ELD)
    for k in range(1, 4):
        I(f'v_mov_b32 v{43+k}, v{X+7+k}')
    NS = opt('ns', 1) if LATE else 4
    for k in range(NS):
        src_load(k)
    srd_off(S_EA, 86, 87, 's62', 's65')
    I(f'v_lshlrev_b32 v92, 3, v{V_TID}')
    for k in range(1, 4):
        I(f'v_add_u32 v{92+k}, {8192*k}, v92')
    def e_load(k):
        I(f'buffer_load_dwordx2 v[{72+2*k}:{73+2*k}], v{92+k}, {sr4(S_EA)}, 0 offen' + ELD)
    NEE = opt('ne', 1) if LATE else opt('nee', 4)
    for k in range(NEE):
        e_load(k)
    if ORDER == 1:
        dma_loads()
    I(f's_mov_b64 {sp(S_DBG)}, s[56:57]')
    I(f's_add_u32 s{S_WSP}, s58, 0x{WSB:x}')
    I(f's_addc_u32 s{S_WSP+1}, s59, 0')
    stamp(1)
    srd(S_OUT, 10, 11, N_NODES * 128)
    I(f's_mul_i32 s{S_T}, s2, {CAP*4}')
    srd_off(S_RW, S_WSP, S_WSP + 1, f's{S_T}', CAP * 4)
    I(f's_lshl_b32 s{S_T}, s{S_T}, 1')
    I(f's_add_u32 s{S_T}, s{S_T}, 0x{WS_RE:x}')
    srd_off(S_RE, S_WSP, S_WSP + 1, f's{S_T}', CAP * 8)
    I(f's_lshl_b32 s{S_T}, s2, 11')
    I(f's_add_u32 s{S_T}, s{S_T}, 0x{WS_TAB:x}')
    srd_off(S_TAB, S_WSP, S_WSP + 1, f's{S_T}', (KREP - 1) * 0x80000 + 2048)
    I(f's_mul_i32 s{S_T}, s3, {NB*256}')
    I(f's_add_u32 s{S_T}, s{S_T}, 0x{WS_NT:x}')
    srd_off(S_NTS, S_WSP, S_WSP + 1, f's{S_T}', NB * 256)
    I(f's_add_u32 s{S_NTG}, s{S_WSP}, 0x{WS_NT:x}')
    I(f's_addc_u32 s{S_NTG+1}, s{S_WSP+1}, 0')
    I(f's_or_b32 s{S_NTG+1}, s{S_NTG+1}, 0x80000000')
    I(f's_mov_b32 s{S_NTG+2}, 0x400000')
    I(f's_mov_b32 s{S_NTG+3}, 0x00c00000')
    srd_off(S_DST, S_WSP, S_WSP + 1, '0x%x' % WS_RW, NWG * CAP * 4)
    if not LATE:
        srd_off(S_SRC, S_WSP, S_WSP + 1, '0x%x' % WS_RE, NWG * CAP * 8)
    for k in range(4):
        I(f'v_add_u32 v{X+1}, {1024*k}, v{V_TID}')
        I(f'v_cmp_gt_u32 {sp(S_MASK+2*k)}, s63, v{X+1}')
    I(f's_mov_b32 s{S_C}, 0x{f2u(2.0**-KH):x}')
    I(f's_mov_b32 s{S_C+1}, 0x{f2u(2.0**-KH):x}')
    I(f's_mov_b32 s{S_JB}, 0')
    I(f's_mov_b32 s{S_WID}, 128')
    I(f'v_and_b32 v{V_J4}, 7, v{V_LANE}')
    I(f'v_lshlrev_b32 v{V_J4}, 3, v{V_J4}')
    if CM:
        I(f'v_and_b32 v{X+1}, 56, v{V_LANE}')
        I(f's_and_b32 s{S_T}, s{S_W}, 1')
        I(f's_lshl_b32 s{S_T}, s{S_T}, 7')
        I(f's_lshr_b32 s{S_T+1}, s{S_W}, 1')
        I(f's_add_u32 s{S_T}, s{S_T}, s{S_T+1}')
    else:
        I(f'v_lshrrev_b32 v{X+1}, 3, v{V_LANE}')
        I(f's_lshl_b32 s{S_T}, s{S_W}, 4')
    I(f'v_add_u32 v{X+1}, s{S_T}, v{X+1}')
    I(f'v_lshlrev_b32 v{V_TAB+2}, 11, v{X+1}')
    I(f'v_mul_u32_u24 v{V_CB4}, {CAP*4}, v{X+1}')
    I(f'v_add_u32 v{V_CB4}, v{V_CB4}, v{V_J4}')
    I(f'v_and_b32 v{V_CH8}, 31, v{V_LANE}')
    I(f'v_lshlrev_b32 v{V_CH8}, 3, v{V_CH8}')
    I(f'v_add_u32 v{V_CHP}, {PT}, v{V_CH8}')
    phase0_addr()
    a5_const()
    if not F1:
        I(f's_waitcnt vmcnt({8 + NEE if ORDER == 0 else 0})')
        I('s_barrier')
    stamp(2)
    def late_loads():
        if LATE:
            for k in range(NS, 4):
                src_load(k)
        for k in range(NEE, 4):
            e_load(k)
        I(f'v_mov_b32 v12, 0')
        I(f'global_load_dword v10, v12, {sp(S_DBG)} sc1')
        if TCH:
            I(f'v_lshlrev_b32 v13, 13, v{V_LANE}')
            I(f'buffer_load_dword v60, v13, {sr4(S_RW)}, 0 offen')
            I(f'buffer_load_dword v61, v13, {sr4(S_RE)}, 0 offen')
            I(f'buffer_load_dword v62, v13, {sr4(S_TAB)}, 0 offen')
            I(f'buffer_load_dword v63, v13, {sr4(S_NTS)}, 0 offen')
        srd_off(S_EA, S_WSP, S_WSP + 1, '0x%x' % WS_TAB, 0x80000 + NWG * 128)
        if LATE:
            srd_off(S_SRC, S_WSP, S_WSP + 1, '0x%x' % WS_RE, NWG * CAP * 8)
    if not LATE:
        late_loads()
    if not F1:
        phase0a()
    I(f's_mov_b32 s{S_T}, -{NB}')
    I(f'v_mov_b32 v{X+1}, 4')
    BN, WD, RK = 28, 32, 36
    for k in range(4):
        I(f's_waitcnt vmcnt({((3 + NS + NEE if ORDER == 0 else 6 + NS + NEE) if LATE else (12 if ORDER == 0 else 15) + TCH) - k})')
        I(f's_mov_b64 exec, {sp(S_MASK+2*k)}')
        if k == 3:
            I('s_cbranch_execz L_B1')
        I(f'v_mul_u32_u24 v{BN+k}, 21400, v{64+k}')
        I(f'v_lshrrev_b32 v{BN+k}, 20, v{BN+k}')
        I(f'v_mad_i32_i24 v{WD+k}, v{BN+k}, s{S_T}, v{64+k}')
        I(f'v_lshlrev_b32 v{BN+k}, 2, v{BN+k}')
        I(f'ds_add_rtn_u32 v{RK+k}, v{BN+k}, v{X+1} offset:{HIST}')
        I(f'v_lshlrev_b32 v{WD+k}, 26, v{WD+k}')
    L('L_B1')
    I('s_mov_b64 exec, -1')
    if LATE:
        late_loads()
    I(f'v_add_u32 v{X+1}, {NTI}, v{X}')
    stamp(3)
    I({0: 's_waitcnt lgkmcnt(0)', 1: 's_waitcnt vmcnt(1) lgkmcnt(0)', 2: f's_waitcnt vmcnt({9 + TCH}) lgkmcnt(0)'}[ORDER])
    I('s_barrier')
    stamp(4)
    if not F1:
        I(f'ds_read_b128 v[112:115], v{X+1}')
    I(f's_cmp_lg_u32 s{S_W}, 0')
    I('s_cbranch_scc1 L_NOSCAN')
    I(f'ds_read_b128 v[96:99], v{X} offset:{HIST}')
    I('s_waitcnt lgkmcnt(0)')
    for k in range(4):
        I(f'v_add_u32 v{108+k}, 4, v{96+k}')
        I(f'v_and_b32 v{108+k}, -8, v{108+k}')
    I('v_add_u32 v101, v108, v109')
    I('v_add_u32 v102, v101, v110')
    I('v_add_u32 v103, v102, v111')
    I('v_mov_b32 v104, v103')
    wave_scan(104)
    I(f'v_readlane_b32 s{S_T+4}, v104, 63')
    I('v_sub_u32 v104, v104, v103')
    I(f'v_mov_b32 v100, {MISC+8}')
    I(f'v_mov_b32 v105, s{S_T+4}')
    I('ds_write_b32 v100, v105')
    I('v_add_u32 v105, v104, v108')
    I('v_add_u32 v106, v104, v101')
    I('v_add_u32 v107, v104, v102')
    I(f'ds_write_b128 v{X}, v[104:107] offset:{HBASE}')
    for k in range(4):
        I(f'v_lshl_or_b32 v{108+k}, v{96+k}, 16, v{104+k}')
    I(f'ds_write_b128 v{X}, v[108:111] offset:{HIST}')
    L('L_NOSCAN')
    if F1:
        phase0a()
    I('s_waitcnt lgkmcnt(0)')
    if not F1:
        I(f'buffer_store_dwordx4 v[112:115], v{X}, {sr4(S_NTS)}, 0 offen' + SC)
    if T1:
        I(f's_mul_i32 s{S_T+4}, s3, {NB*128}')
        I(f'v_mov_b32 v60, s{S_T+4}')
        I(f'buffer_load_dword v61, v60, {sr4(S_OUT)}, 0 offen')
    if not SRCL:
        I(f's_waitcnt vmcnt({4 + TCH + T1 if LATE else 6 - F1 + TCH + T1})')
        for k in range(4):
            I(f'v_lshl_or_b32 v{WD+k}, v{68+k}, 3, v{WD+k}')
    I('s_barrier')
    stamp(5)
    if F1:
        I(f'ds_read_b128 v[112:115], v{X+1}')
    for k in range(4):
        I(f's_mov_b64 exec, {sp(S_MASK+2*k)}')
        I(f'ds_read_b32 v{BN+k}, v{BN+k} offset:{HBASE}')
    if F1:
        I('s_mov_b64 exec, -1')
        I('s_waitcnt lgkmcnt(4)')
        I(f'buffer_store_dwordx4 v[112:115], v{X}, {sr4(S_NTS)}, 0 offen' + SC)
    if SRCL == 1:
        I(f's_waitcnt vmcnt({5 + TCH + T1})')
        for k in range(4):
            I(f'v_lshl_or_b32 v{WD+k}, v{68+k}, 3, v{WD+k}')
    if SRCL < 2:
        I(f's_waitcnt vmcnt({1 + TCH + T1})')
        I(f'v_readfirstlane_b32 s{S_TAG}, v10')
    for k in range(4):
        I(f's_mov_b64 exec, {sp(S_MASK+2*k)}')
        if k == 3:
            I('s_cbranch_execz L_B2')
        if SRCL == 2:
            assert LATE and not TCH and not T1
            order_ = [f's{j}' for j in range(NS)] + [f'e{j}' for j in range(NEE)] + [f's{j}' for j in range(NS, 4)] + [f'e{j}' for j in range(NEE, 4)] + ['tag', 'nt']
            need_ = max(order_.index(f's{k}'), order_.index(f'e{k}'))
            I(f's_waitcnt vmcnt({len(order_) - 1 - need_}) lgkmcnt({3 - k + 2*k})')
            I(f'v_lshl_or_b32 v{WD+k}, v{68+k}, 3, v{WD+k}')
        else:
            I(f's_waitcnt lgkmcnt({3 - k + 2*k})')
        I(f'v_add_u32 v{RK+k}, v{BN+k}, v{RK+k}')
        I(f'v_add_u32 v{BN+k}, v{RK+k}, v{RK+k}')
        I(f'ds_write_b32 v{RK+k}, v{WD+k} offset:{STGW}')
        I(f'ds_write_b64 v{BN+k}, v[{72+2*k}:{73+2*k}] offset:{STGE}')
    L('L_B2')
    I('s_mov_b64 exec, -1')
    if SRCL == 2:
        I('s_waitcnt vmcnt(1)')
        I(f'v_readfirstlane_b32 s{S_TAG}, v10')
    I(f'v_mov_b32 v13, {MISC+8}')
    I(f'ds_read_b32 v13, v13')
    I(f's_mov_b32 s{S_T}, 0x40000')
    L('L_TAGP')
    I(f's_cmp_lg_u32 s{S_TAG}, 0')
    I('s_cbranch_scc1 L_TAGD')
    I(f'v_mov_b32 v12, 0')
    I(f'global_load_dword v10, v12, {sp(S_DBG)} sc1')
    I('s_waitcnt vmcnt(0)')
    I(f'v_readfirstlane_b32 s{S_TAG}, v10')
    I(f's_sub_u32 s{S_T}, s{S_T}, 1')
    I('s_cbranch_scc1 L_END')
    I('s_branch L_TAGP')
    L('L_TAGD')
    I(f'v_add_u32 v{X+2}, 16384, v{X}')
    I(f'v_lshlrev_b32 v12, 3, v{V_LANE}')
    I(f's_mul_i32 s{S_TAG2}, s{S_TAG}, 0x9e3779b1')
    I(f's_and_b32 s{S_TAG2}, s{S_TAG2}, 0x{TAGM:x}')
    I('s_waitcnt lgkmcnt(0)')
    I(f'v_readfirstlane_b32 s{S_T}, v13')
    I('s_barrier')
    I(f's_add_u32 s{S_T}, s{S_T}, 127')
    I(f's_and_b32 s{S_RW+2}, s{S_T}, -128')
    I(f's_lshl_b32 s{S_RE+2}, s{S_RW+2}, 1')
    stamp(6)
    if opt('early', 0):
        I(f'ds_read_b64 v[92:93], v12 offset:{HIST}')
        I(f'ds_read_b64 v[94:95], v12 offset:{HIST+512}')
        I(f'v_lshlrev_b32 v60, 4, v{V_LANE}')
        I('s_waitcnt lgkmcnt(0)')
        for k in range(4):
            I(f'v_or_b32 v{120+2*k}, s{S_TAG2}, v{92+k}')
            I(f'v_mov_b32 v{121+2*k}, s{S_TAG}')
        I(f's_cmp_lg_u32 s{S_W}, 0')
        I('s_cbranch_scc1 L_EARLY')
        I(f'buffer_store_dwordx4 v[120:123], v60, {sr4(S_TAB)}, 0 offen' + SC)
        I(f'buffer_store_dwordx4 v[124:127], v60, {sr4(S_TAB)}, 0 offen offset:1024' + SC)
        L('L_EARLY')
    I(f'ds_read_b128 v[64:67], v{X} offset:{STGW}')
    I(f'ds_read_b128 v[68:71], v{X} offset:{STGE}')
    I(f'ds_read_b128 v[72:75], v{X} offset:{STGE+16384}')
    I(f'ds_read_b64 v[92:93], v12 offset:{HIST}')
    I(f'ds_read_b64 v[94:95], v12 offset:{HIST+512}')
    I('s_waitcnt lgkmcnt(4)')
    I(f'buffer_store_dwordx4 v[64:67], v{X}, {sr4(S_RW)}, 0 offen' + SC)
    I(f'v_mov_b32 v62, v{X}')
    I(f'v_mov_b32 v63, v{X+2}')
    I('s_waitcnt lgkmcnt(0)')
    for k in range(4):
        I(f'v_or_b32 v{120+2*k}, s{S_TAG2}, v{92+k}')
        I(f'v_mov_b32 v{121+2*k}, s{S_TAG}')
    pre = opt('pre', 'x').replace('0', '')
    def piece(c):
        if c == 'x':
            zregs()
            zero_range(EXTRA, 16384, X + 2, X)
            fill_desca()
        elif c == 'b':
            phase0b()
        elif c == 'c':
            phase0c()
    for c in pre:
        piece(c)
    I(f'v_lshlrev_b32 v60, 4, v{V_LANE}')
    stamp(7)
    I('s_waitcnt vmcnt(0)')
    I('s_barrier')
    I(f's_cmp_lg_u32 s{S_W}, 0')
    I('s_cbranch_scc1 L_POLL0')
    I(f'buffer_store_dwordx4 v[120:123], v60, {sr4(S_TAB)}, 0 offen' + SC)
    I(f'buffer_store_dwordx4 v[124:127], v60, {sr4(S_TAB)}, 0 offen offset:1024' + SC)
    L('L_POLL0')
    I(f'buffer_store_dwordx4 v[68:71], v62, {sr4(S_RE)}, 0 offen' + SC)
    I(f'buffer_store_dwordx4 v[72:75], v63, {sr4(S_RE)}, 0 offen' + SC)
    stamp(8)
    mid = opt('mid', 'b').replace('0', '')
    def piece2(c):
        if c == 'f':
            fill_words()
            zregs()
            zero_range(LE, CNT - LE, X + 2, X)
        else:
            piece(c)
    for c in mid:
        piece2(c)
    I(f's_lshl_b32 s{S_T+1}, s3, 3')
    I(f'v_add_u32 v76, s{S_T+1}, v{V_TAB+2}')
    I(f'v_add_u32 v77, {RSTEP*2048}, v76')
    I(f'v_lshrrev_b32 v{V_TAB+2}, 4, v{V_TAB+2}')
    I(f'v_add_u32 v{V_TAB+2}, 0x80000, v{V_TAB+2}')
    I(f'v_add_u32 v{V_TAB+3}, {RSTEP*128}, v{V_TAB+2}')
    I(f's_mul_i32 s{S_TAG3}, s{S_TAG}, 0x85ebca6b')
    I(f's_lshl_b32 s{S_T}, s2, 7')
    I(f's_add_u32 s{S_T}, s{S_T}, 0x80000')
    I(f'v_mov_b32 v60, s{S_T}')
    I(f'v_mov_b32 v62, s{S_TAG}')
    I(f'v_mov_b32 v63, s{S_TAG3}')
    for r in range(2):
        I(f's_mov_b64 {sp(S_MASK+2*r)}, -1')
    I('s_waitcnt vmcnt(0)')
    I('s_barrier')
    stamp(9)
    I(f's_cmp_lg_u32 s{S_W}, 0')
    I('s_cbranch_scc1 L_FLAG2')
    I('s_mov_b64 exec, 1')
    I(f'buffer_store_dwordx2 v[62:63], v60, {sr4(S_EA)}, 0 offen' + SC)
    I('s_mov_b64 exec, -1')
    L('L_FLAG2')
    EP = 1
    for r in range(2):
        I(f'buffer_load_dwordx2 {p(64+2*r)}, v{76+r}, {sr4(S_EA)}, 0 offen' + LSC)
    for c in 'xbcf':
        if c not in pre + mid:
            piece2(c)
    ptr_consts()
    I(f's_mov_b32 s{S_T}, 0x40000')
    I(f's_mov_b32 s{S_T+1}, 0x{TAGM:x}')
    if opt('ps', 0):
        I(f's_sleep {opt("ps", 0)}')
    if EP:
        I('s_branch L_POLLC')
    L('L_POLL')
    for r in range(2):
        I(f's_mov_b64 exec, {sp(S_MASK+2*r)}')
        I(f'buffer_load_dwordx2 {p(64+2*r)}, v{76+r}, {sr4(S_EA)}, 0 offen' + LSC)
    L('L_POLLC')
    for r in range(2):
        I(f's_waitcnt vmcnt({1-r})')
        I(f's_mov_b64 exec, {sp(S_MASK+2*r)}')
        I(f'v_xor_b32 v{V_TAB+r}, s{S_TAG2}, v{64+2*r}')
        I(f'v_xor_b32 v{65+2*r}, s{S_TAG}, v{65+2*r}')
        I(f'v_and_or_b32 v{65+2*r}, v{V_TAB+r}, s{S_T+1}, v{65+2*r}')
        I(f'v_cmp_ne_u32 {sp(S_MASK+2*r)}, 0, v{65+2*r}')
    I(f's_or_b64 {sp(S_T+2)}, {sp(S_MASK)}, {sp(S_MASK+2)}')
    I('s_cbranch_scc0 L_POLLED')
    I(f's_sub_u32 s{S_T}, s{S_T}, 1')
    I('s_cbranch_scc1 L_END')
    if opt('sleep', 0):
        I(f's_sleep {opt("sleep", 0)}')
    I('s_branch L_POLL')
    L('L_POLLED')
    I('s_mov_b64 exec, -1')
    stamp(10)
    def RB(s_): return 64 + 8 * (s_ >> 1)
    def MK(s_): return sp(S_MASK + 2 * s_)
    AD = X
    L('L_PASS')
    I(f'v_add_u32 v{X+10}, s{S_JB}, v{V_CB4}')
    I(f'v_add_u32 v{X+8}, s{S_JB}, v{V_J4}')
    SDW = 'src0_sel:DWORD src1_sel:WORD_1'
    for r in range(2):
        I(f'v_add_u32_sdwa v{X+r}, v{V_TAB+r}, v{X+10} dst_sel:DWORD dst_unused:UNUSED_PAD src0_sel:WORD_0 src1_sel:DWORD')
        I(f'v_cmp_lt_u32_sdwa {MK(2*r)}, v{X+8}, v{V_TAB+r} {SDW}')
        if r:
            I(f'v_add_u32 v{X+r}, {RSTEP*CAP*4}, v{X+r}')
        I(f'v_add_u32 v{96+r}, v{X+r}, v{X+r}')
        I(f's_mov_b64 exec, {MK(2*r)}')
        I(f'buffer_load_dwordx2 {p(RB(2*r)+4)}, v{X+r}, {sr4(S_DST)}, 0 offen' + LSC)
        I('s_mov_b64 exec, -1')
    I(f'v_add_u32 v{X+9}, s{S_WID}, v{X+8}')
    I(f'v_add_u32 v{X+10}, 4, v{X+8}')
    I(f's_cmp_eq_u32 s{S_WID}, 128')
    I(f's_cselect_b32 s{S_T}, 64, 0x10000')
    I(f'v_add_u32 v{X+8}, s{S_T}, v{X+8}')
    for r in range(2):
        I(f'v_cmp_lt_u32_sdwa {MK(4+2*r)}, v{X+8}, v{V_TAB+r} {SDW}')
        I(f'v_cmp_lt_u32_sdwa {MK(2*r+1)}, v{X+10}, v{V_TAB+r} {SDW}')
    I(f'v_add_u32 v{X+8}, 4, v{X+8}')
    for r in range(2):
        I(f's_mov_b64 exec, {MK(4+2*r)}')
        I(f'buffer_load_dwordx2 {p(RB(4+2*r)+4)}, v{X+r}, {sr4(S_DST)}, 0 offen offset:64' + LSC)
    I('s_mov_b64 exec, -1')
    BE = opt('be', 0)
    if BE:
        for r in range(2):
            I(f'buffer_load_dwordx2 {p(100+2*r)}, v{V_TAB+2+r}, {sr4(S_EA)}, 0 offen' + LSC)
    for r in range(2):
        I(f'v_cmp_lt_u32_sdwa {MK(5+2*r)}, v{X+8}, v{V_TAB+r} {SDW}')
    I(f'v_cmp_lt_u32_sdwa vcc, v{X+9}, v{V_TAB} {SDW}')
    I(f'v_cmp_lt_u32_sdwa {sp(S_T)}, v{X+9}, v{V_TAB+1} {SDW}')
    I(f'v_mov_b32 v{X+8}, 4')
    I(f's_or_b64 vcc, vcc, {sp(S_T)}')
    I(f's_cbranch_scc0 L_NOMORE')
    I(f'v_mov_b32 v{X+9}, {MISC}')
    I(f'ds_write_b32 v{X+9}, v{X+8}')
    L('L_NOMORE')
    stamp(11)
    e('    ; count')
    for s_ in range(8):
        if s_ >= 4:
            I(f's_mov_b64 exec, {MK(s_)}')
            I(f's_cbranch_execz L_C{s_}')
        if s_ % 2 == 0:
            I(f's_waitcnt vmcnt({3 + 2 * BE - s_ // 2})')
        if s_ < 4:
            I(f's_mov_b64 exec, {MK(s_)}')
        I(f'v_lshrrev_b32 v{AD+s_}, 24, v{RB(s_)+4+(s_&1)}')
        if opt('safe', 0):
            I(f'v_and_b32 v{AD+s_}, 0xfc, v{AD+s_}')
        I(f'ds_add_rtn_u32 v{RB(s_)+6+(s_&1)}, v{AD+s_}, v{X+8} offset:{CNT}')
        if s_ >= 4:
            L(f'L_C{s_}')
    I('s_mov_b64 exec, -1')
    def check2():
        I(f'v_xor_b32 v100, s{S_TAG}, v100')
        I(f'v_xor_b32 v101, s{S_TAG3}, v101')
        I(f'v_xor_b32 v102, s{S_TAG}, v102')
        I(f'v_xor_b32 v103, s{S_TAG3}, v103')
        I('v_or3_b32 v100, v100, v101, v102')
        I('v_or_b32 v100, v100, v103')
        I('v_cmp_ne_u32 vcc, 0, v100')
    def e_loads():
        for hf in range(2):
            for r in range(2):
                I(f's_mov_b64 exec, {MK(4*hf+2*r)}')
                I(f'buffer_load_dwordx4 {vr(RB(4*hf+2*r),4)}, v{96+r}, {sr4(S_SRC)}, 0 offen offset:{128*hf}' + LSC)
        I('s_mov_b64 exec, -1')
    I(f's_mov_b32 s{S_CNT}, 1')
    if BE:
        I('s_waitcnt vmcnt(0)')
        check2()
        I('s_nop 0')
        I('s_cbranch_vccnz L_NOTYET')
        e_loads()
        I(f's_mov_b32 s{S_CNT}, 0')
        I('s_branch L_EDONE')
        L('L_NOTYET')
    for r in range(2):
        I(f'buffer_load_dwordx2 {p(100+2*r)}, v{V_TAB+2+r}, {sr4(S_EA)}, 0 offen' + LSC)
    L('L_EDONE')
    I(f'v_lshlrev_b32 v{X+8}, 2, v{V_LANE}')
    I(f'v_mov_b32 v{X+9}, {MISC}')
    I(f's_mov_b32 s{S_T+2}, 0x1fff8')
    I('s_waitcnt lgkmcnt(0)')
    I('s_barrier')
    stamp(12)
    def do_pf():
        if NPFM in (2, 3, 4):
            I(f's_mov_b32 s{S_T+7}, s{S_T}')
            nt_prefetch(60, dst=62)
            I(f's_mov_b32 s{S_T}, s{S_T+7}')
    def poll2():
        I(f's_cmp_eq_u32 s{S_CNT}, 0')
        I('s_cbranch_scc1 L_HAVEE')
        I(f's_mov_b32 s{S_T+3}, 0x40000')
        L('L_POLL2')
        I('s_waitcnt vmcnt(0)')
        I(f'v_xor_b32 v100, s{S_TAG}, v100')
        I(f'v_xor_b32 v101, s{S_TAG3}, v101')
        I(f'v_xor_b32 v102, s{S_TAG}, v102')
        I(f'v_xor_b32 v103, s{S_TAG3}, v103')
        I('v_or3_b32 v100, v100, v101, v102')
        I('v_or_b32 v100, v100, v103')
        I('v_cmp_ne_u32 vcc, 0, v100')
        I(f's_sub_u32 s{S_T+3}, s{S_T+3}, 1')
        I('s_cbranch_scc1 L_END')
        I('s_cbranch_vccz L_POLLED2')
        for r in range(2):
            I(f'buffer_load_dwordx2 {p(100+2*r)}, v{V_TAB+2+r}, {sr4(S_EA)}, 0 offen' + LSC)
        I('s_branch L_POLL2')
        L('L_POLLED2')
        for hf in range(2):
            for r in range(2):
                I(f's_mov_b64 exec, {MK(4*hf+2*r)}')
                I(f'buffer_load_dwordx4 {vr(RB(4*hf+2*r),4)}, v{96+r}, {sr4(S_SRC)}, 0 offen offset:{128*hf}' + LSC)
        I('s_mov_b64 exec, -1')
        L('L_HAVEE')
    B2 = opt('b2', 1)
    if B2 == 0:
        poll2()
        do_pf()
    NG, GS, MI = X + 10, X + 11, X + 12
    I(f'ds_read_b32 v{NG}, v{X+8} offset:{CNT}')
    I(f'ds_read_b32 v{X+9}, v{X+9}')
    I('s_waitcnt lgkmcnt(1)')
    I(f'v_add_u32 v{NG}, 28, v{NG}')
    I(f'v_and_b32 v{NG}, 0xffffffe0, v{NG}')
    I(f'v_mov_b32 v{GS}, v{NG}')
    wave_scan(GS)
    I(f'v_readlane_b32 s{S_T}, v{GS}, 63')
    I(f'v_sub_u32 v{GS}, v{GS}, v{NG}')
    if PROF == 5:
        stamp(19)
    I(f'ds_write_b32 v{X+8}, v{GS} offset:{BASET}')
    for s_ in range(8):
        I(f's_mov_b64 exec, {MK(s_)}')
        I(f'ds_read_b32 v{AD+s_}, v{AD+s_} offset:{BASET}')
    I('s_mov_b64 exec, -1')
    if B2 == 1:
        poll2()
        do_pf()
    I(f'v_readfirstlane_b32 s{S_MORE}, v{X+9}')
    out.insert(len(out) - 1, '    s_waitcnt lgkmcnt(9)')
    I(f's_lshr_b32 s{S_T}, s{S_T}, 5')
    I(f's_cmp_eq_u32 s{S_WID}, 128')
    I(f's_cselect_b32 s{S_T+1}, {MAXG}, -1')
    I(f's_cmp_gt_u32 s{S_T}, s{S_T+1}')
    I('s_cbranch_scc1 L_OVERFLOW')
    def place(tag):
        I('s_waitcnt lgkmcnt(0)')
        for s_ in range(8):
            wd, rk = RB(s_) + 4 + (s_ & 1), RB(s_) + 6 + (s_ & 1)
            I(f's_mov_b64 exec, {MK(s_)}')
            if s_ >= 4:
                I(f's_cbranch_execz L_P{tag}{s_}')
            I(f'v_add_u32 v{AD+s_}, v{AD+s_}, v{rk}')
            I(f'v_and_b32 v{wd}, s{S_T+2}, v{wd}')
            I(f'v_add_u32 v{rk}, v{AD+s_}, v{AD+s_}')
            I(f'ds_write_b32 v{AD+s_}, v{wd} offset:{LS}')
            if s_ >= 4:
                L(f'L_P{tag}{s_}')
        for s_ in range(8):
            rk, ee = RB(s_) + 6 + (s_ & 1), RB(s_) + 2 * (s_ & 1)
            I(f's_mov_b64 exec, {MK(s_)}')
            if s_ >= 4:
                I(f's_cbranch_execz L_Q{tag}{s_}')
            if s_ % 2 == 0:
                I(f's_waitcnt vmcnt({3 - s_ // 2 + NPF})')
            I(f'ds_write_b64 v{rk}, {p(ee)} offset:{LE}')
            if s_ >= 4:
                L(f'L_Q{tag}{s_}')
        I('s_mov_b64 exec, -1')
    if PROF == 5:
        stamp(20)
    SWAP = opt('swap', 0)
    if SWAP:
        I(f's_bitcmp1_b32 s{S_W}, {SWAP}')
        I('s_cbranch_scc0 L_DFIRST')
        place('a')
        L('L_DFIRST')
    SB_, SR_, SG0 = S_T + 4, S_T + 5, S_T + 6
    I(f's_add_u32 s{S_T}, s{S_T}, 3')
    I(f's_lshr_b32 s{S_T}, s{S_T}, 2')
    I(f's_lshr_b32 s{SB_}, s{S_T}, 4')
    I(f's_and_b32 s{SR_}, s{S_T}, 15')
    I(f's_add_u32 s{S_T+1}, s{SB_}, 1')
    I(f'v_cvt_f32_u32 v{MI}, s{S_T+1}')
    I(f'v_cvt_f32_u32 v{MI+1}, s{SB_}')
    I(f'v_rcp_f32 v{MI}, v{MI}')
    I(f'v_rcp_f32 v{MI+1}, v{MI+1}')
    I(f's_mul_i32 s{SG0}, s{SR_}, s{S_T+1}')
    I(f's_lshl_b32 s{SG0}, s{SG0}, 2')
    I(f'v_lshrrev_b32 v{GS}, 5, v{GS}')
    I(f'v_mul_f32 v{MI}, 0x47800000, v{MI}')
    I(f'v_mul_f32 v{MI+1}, 0x47800000, v{MI+1}')
    I(f'v_lshrrev_b32 v{NG}, 5, v{NG}')
    I(f'v_cvt_u32_f32 v{MI}, v{MI}')
    I(f'v_cvt_u32_f32 v{MI+1}, v{MI+1}')
    I(f's_cmp_lt_u32 s{S_W}, s{SR_}')
    I(f's_cselect_b32 s{S_L}, s{S_T+1}, s{SB_}')
    I(f'v_add_u32 v{MI}, 2, v{MI}')
    I(f'v_add_u32 v{MI+1}, 2, v{MI+1}')
    I(f's_min_u32 s{S_T}, s{S_W}, s{SR_}')
    I(f's_mul_i32 s{S_T+3}, s{S_W}, s{SB_}')
    I(f's_add_u32 s{S_T+3}, s{S_T+3}, s{S_T}')
    I(f's_sub_u32 s{S_T+1}, 0, s{S_T+1}')
    I(f's_sub_u32 s{SB_}, 0, s{SB_}')
    I(f's_lshl_b32 s{SR_}, s{SR_}, 2')
    D0, D1, D2, D3, NR = 96, 97, 98, 99, 100
    I(f'v_lshlrev_b32 v{NR}, 8, v{V_LANE}')
    I(f'v_add_u32 v{NR+1}, {ACCN}, v{NR}')
    I(f's_mov_b32 s{S_T}, s{S_W}')
    L('L_DLOOP')
    I(f'v_cmp_lt_u32 vcc, s{S_T}, v{NG}')
    I('s_and_b64 exec, exec, vcc')
    I('s_cbranch_execz L_DEND')
    I(f'v_add_u32 v{D0}, s{S_T}, v{GS}')
    I(f'v_subrev_u32 v{D1}, s{SG0}, v{D0}')
    I(f'v_cmp_gt_u32 vcc, s{SG0}, v{D0}')
    I(f'v_mul_u32_u24 v{D2}, v{D0}, v{MI}')
    I(f'v_mul_u32_u24 v{D3}, v{D1}, v{MI+1}')
    I(f'v_lshrrev_b32 v{D2}, 16, v{D2}')
    I(f'v_lshrrev_b32 v{D3}, 16, v{D3}')
    I(f'v_mad_i32_i24 v{D0}, v{D2}, s{S_T+1}, v{D0}')
    I(f'v_mad_i32_i24 v{D1}, v{D3}, s{SB_}, v{D1}')
    I(f'v_add_u32 v{D3}, s{SR_}, v{D3}')
    I(f'v_cndmask_b32 v{D0}, v{D1}, v{D0}, vcc')
    I(f'v_cndmask_b32 v{D2}, v{D3}, v{D2}, vcc')
    I(f'v_cmp_le_u32 vcc, s{S_T}, v{D0}')
    I(f'v_lshl_add_u32 v{D0}, v{D0}, 6, v{D2}')
    I(f'v_lshlrev_b32 v{D1}, 8, v{D2}')
    I(f'v_lshlrev_b32 v{D0}, 2, v{D0}')
    I(f'v_add_u32 v{D1}, {EXTRA}, v{D1}')
    I(f'v_add_u32 v{D3}, {DESCA}, v{D0}')
    I(f'v_cndmask_b32 v{D1}, v{D1}, v{NR+1}, vcc')
    I(f'ds_write_b32 v{D0}, v{NR} offset:{DESCP}')
    I(f'ds_write_b32 v{D3}, v{D1}')
    I(f's_add_u32 s{S_T+7}, s{S_T}, 1')
    I(f'v_cmp_eq_u32 vcc, s{S_T+7}, v{NG}')
    I(f's_and_saveexec_b64 {sp(S_EX)}, vcc')
    I(f'ds_write_b32 v{X+8}, v{D2} offset:{NINFO+256}')
    I(f's_mov_b64 exec, {sp(S_EX)}')
    I(f's_cmp_lg_u32 s{S_T}, 0')
    I('s_cbranch_scc1 L_DNF')
    I(f'ds_write_b32 v{X+8}, v{D2} offset:{NINFO}')
    L('L_DNF')
    I(f's_add_u32 s{S_T}, s{S_T}, 16')
    I('s_branch L_DLOOP')
    L('L_DEND')
    I('s_mov_b64 exec, -1')
    I(f's_lshl_b32 s{S_T}, s{S_T+3}, 7')
    I(f's_lshl_b32 s{S_T+1}, s{S_L}, 5')
    I(f'v_mov_b32 v{D0}, s{S_T}')
    I(f'v_mad_u32_u24 v{V_PS0}, v{V_PS1}, s{S_T+1}, v{D0}')
    I(f'v_add_u32 v{D0}, v{D0}, v{D0}')
    I(f'v_add_u32 v{V_PS1}, s{S_T+1}, v{V_PS0}')
    I(f'v_add_u32 v{V_PE}, v{V_PE}, v{D0}')
    I(f's_lshl_b32 s{S_T+1}, s{S_L}, 6')
    I(f'v_mad_u32_u24 v{V_PE}, v{V_VAP}, s{S_T+1}, v{V_PE}')
    if opt('safe', 0):
        I(f's_min_u32 s{S_L}, s{S_L}, 9')
        I(f's_mov_b32 s{S_MORE}, 0')
    I(f's_mov_b32 s{S_CNT}, s{S_L}')
    if B2 == 2:
        poll2()
        do_pf()
    if SWAP:
        I(f's_bitcmp1_b32 s{S_W}, {SWAP}')
        I('s_cbranch_scc1 L_PDONE')
    if PROF == 5:
        stamp(21)
    place('b')
    L('L_PDONE')
    stamp(13)
    I('s_waitcnt lgkmcnt(0)')
    I('s_barrier')
    stamp(14)
    I(f's_cmp_eq_u32 s{S_L}, 0')
    I('s_cbranch_scc1 L_FOLD')
    lg = Lg()
    FP = opt('fp', 0)
    if FP:
        for lvl in (3, 2, 1):
            I(f's_cmp_lt_u32 s{S_W}, {4 * (4 - lvl)}')
            I(f's_cbranch_scc0 L_FP{lvl}')
            I(f's_setprio {lvl}')
            I('s_branch L_FPD')
            L(f'L_FP{lvl}')
        L('L_FPD')
    s_reads(lg, 0)
    lg.op('dP', f'ds_read_b64 {p(V_VAP)}, v{V_PD}')
    lg.op('dA', f'ds_read_b64 {p(V_VAA[0])}, v{V_PD} offset:{DESCA-DESCP}')
    lg.op('e', f'ds_read_b64 {p(A5)}, v{V_PE}')
    lg.need('S0', 'S1', 'S2', 'S3')
    s_safe()
    STG_ = [int(x) for x in opt('stag', '0,0,0').split(',')]
    for gi, d in enumerate(STG_):
        if d:
            I(f's_cmp_ge_u32 s{S_W}, {4 * (gi + 1)}')
            I(f's_cbranch_scc0 L_ST{gi}')
            I(f's_sleep {d}')
            L(f'L_ST{gi}')
    for n in range(2):
        for i in range(16):
            I(gload(n, i))
        if n == 0 and FP == 2:
            I('s_setprio 0')
    s_reads(lg, 1)
    I(f'v_mov_b32 v{V_C8P}, v{V_CH8}')
    I(f'v_mov_b32 v{V_C8P+1}, v{V_CH8}')
    I(f'v_mov_b32 v{V_CPP}, v{V_CHP}')
    I(f'v_mov_b32 v{V_CPP+1}, v{V_CHP}')
    if M8:
        I(f'v_mov_b32 v{V_SCP}, 0x{f2u(2.0**KH):x}')
        I(f'v_mov_b32 v{V_SCP+1}, 0x{f2u(2.0**KH):x}')
    I(f's_mov_b32 s{S_BP0}, 64')
    I(f's_mov_b32 s{S_BP0+1}, 64')
    I(f's_mov_b32 s{S_BP1}, 128')
    I(f's_mov_b32 s{S_BP1+1}, 512')
    lg.need('dP', 'dA')
    va_add(V_VAP, V_VAA[0])
    lg.op('P0a', f'ds_read_b32 v{B5[0]+2}, v{V_VAP}')
    lg.op('P0b', f'ds_read_b32 v{B5[0]+3}, v{V_VAP+1}')
    lg.op('P1a', f'ds_read_b32 v{B5[1]+2}, v{V_VAP} offset:4')
    lg.op('P1b', f'ds_read_b32 v{B5[1]+3}, v{V_VAP+1} offset:4')
    I(f's_cmp_eq_u32 s{S_CNT}, 1')
    I(f's_cselect_b64 {sp(S_LDX)}, 0, {LDXV}')
    I('s_waitcnt lgkmcnt(0)')
    lg.q = []
    if opt('prio', 3):
        I('s_setprio 3')
    stamp(15)
    rstamp(28)
    half(lg, 0, 0, 0, False)
    if PROF == 4:
        stamp(19)
        lg.q = []
    state0 = list(lg.q)
    def step(par, uo):
        prio(f'm{par}', 1)
        half(lg, 1, par, uo)
        if PROF == 4:
            I('s_memtime s[98:99]')
            I(f's_sub_u32 s92, s{S_L}, s{S_CNT}')
            I(f's_add_u32 m0, s92, 20')
            I('s_waitcnt lgkmcnt(0)')
            I(f'v_writelane_b32 v{V_PROF}, s98, m0')
        I(f's_sub_u32 s{S_CNT}, s{S_CNT}, 1')
        I(f's_cmp_eq_u32 s{S_CNT}, 0')
        I(f's_cbranch_scc1 L_FIN{par}')
        I(f's_cmp_eq_u32 s{S_CNT}, 1')
        I(f's_cselect_b64 {sp(S_LDX)}, 0, {LDXV}')
        prio(f'{par}')
        half(lg, 0, par ^ 1, uo + 1)
    def loop_body():
        step(0, 0)
        step(1, 1)
        I(f'v_lshl_add_u64 {p(V_PS0)}, {p(V_PS0)}, 0, {sp(S_BP0)}')
        I(f'v_lshl_add_u64 {p(V_PE)}, {p(V_PE)}, 0, {sp(S_BP1)}')
        I('s_branch L_LOOP')
    mark = len(out)
    loop_body()
    del out[mark:]
    qb = list(lg.q)
    n = min(len(qb), len(state0))
    assert PROF == 4 or qb[len(qb)-n:] == state0[len(state0)-n:], (state0, qb)
    lg.q = list(qb if len(qb) >= len(state0) else state0)
    e('.p2align 3')
    L('L_LOOP')
    mark = len(out)
    loop_body()
    drop = opt('drop', '')
    if drop:
        body = out[mark:]
        keep = []
        for l in body:
            t = l.strip()
            if 'v' in drop and (t.startswith('buffer_load') or t.startswith('s_mov_b64 exec') or 'vmcnt' in t):
                continue
            if 'l' in drop and (t.startswith('ds_') or 'lgkmcnt' in t):
                continue
            if 'm' in drop and t.startswith('v_mfma'):
                continue
            if 'n' in drop and t.startswith('s_nop'):
                continue
            keep.append(l)
        out[mark:] = keep
    assert lg.q == qb, (lg.q, qb)
    print('loop entry queue', state0, 'back edge queue', qb, file=sys.stderr)
    for pr in range(2):
        L(f'L_FIN{pr}')
        if M8:
            I(f'v_pk_mul_f32 {p(V_T01N)}, {p(V_T01N)}, {p(V_T23D)}')
            I(f'v_pk_mul_f32 {p(V_T23D)}, {p(V_T01D)}, {p(V_T23D)}')
            I(f'v_pk_fma_f32 {p(V_T01N)}, {p(V_T23N)}, {p(V_T01D)}, {p(V_T01N)}')
            I(f'v_rcp_f32 v{V_T23D}, v{V_T23D}')
            I(f'v_rcp_f32 v{V_T23D+1}, v{V_T23D+1}')
            I('s_waitcnt lgkmcnt(0)')
            I(f'v_pk_fma_f32 {p(V_MB)}, {p(V_T01N)}, {p(V_T23D)}, {p(V_MB)}')
        else:
            for r_ in (V_T01D, V_T01D + 1, V_T23D, V_T23D + 1):
                I(f'v_rcp_f32 v{r_}, v{r_}')
            I('s_waitcnt lgkmcnt(0)')
            I(f'v_pk_fma_f32 {p(V_MB)}, {p(V_T01N)}, {p(V_T01D)}, {p(V_MB)}')
            I(f'v_pk_fma_f32 {p(V_MB)}, {p(V_T23N)}, {p(V_T23D)}, {p(V_MB)}')
        acc_write(Lg(), V_VAA[pr])
        if pr == 0:
            I('s_branch L_FOLD')
    L('L_FOLD')
    stamp(16)
    FL = opt('fl', 0)
    I(f'v_lshrrev_b32 v{X}, 4, v{V_TID}')
    I(f'v_and_b32 v{X+1}, 15, v{V_TID}')
    if FL:
        I(f'v_lshlrev_b32 v{X+6}, 3, v{X+1}')
        I(f'v_lshrrev_b32 v{X+2}, 3, v{X+1}')
        I(f'v_and_b32 v{X+1}, 7, v{X+1}')
        I(f'v_lshlrev_b32 v{X+1}, 5, v{X+1}')
        I(f'v_lshl_add_u32 v{X+1}, v{X+2}, 2, v{X+1}')
    else:
        I(f'v_lshlrev_b32 v{X+6}, 2, v{X+1}')
        I(f'v_lshlrev_b32 v{X+1}, 4, v{X+1}')
    I(f'v_lshl_add_u32 v{X+2}, v{X}, 8, v{X+1}')
    I(f'v_add_u32 v{X+2}, {ACCN}, v{X+2}')
    I(f'v_add_u32 v{X+1}, {EXTRA}, v{X+1}')
    def rd4(dst, ad):
        if FL:
            I(f'ds_read2_b32 v[{dst}:{dst+1}], v{ad} offset0:0 offset1:2')
            I(f'ds_read2_b32 v[{dst+2}:{dst+3}], v{ad} offset0:4 offset1:6')
        else:
            I(f'ds_read_b128 v[{dst}:{dst+3}], v{ad}')
    I(f'v_lshlrev_b32 v{X+3}, 2, v{X}')
    I(f's_mul_i32 s{S_T+4}, s3, {NB*128}')
    I(f'v_lshl_add_u32 v{X+6}, v{X}, 7, v{X+6}')
    I(f'v_add_u32 v{X+6}, s{S_T+4}, v{X+6}')
    I(f'v_mov_b32 v{X+7}, 0')
    I(f'ds_read_b32 v{X+4}, v{X+3} offset:{NINFO}')
    I(f'ds_read_b32 v{X+5}, v{X+3} offset:{NINFO+256}')
    I(f's_mov_b32 s{S_T+2}, 0x{f2u(2.0**-(SV+KH)):x}')
    I(f's_mov_b32 s{S_T+3}, 0x{f2u(-LOG2E * 2.0**-(SV+KH)):x}')
    I(f'v_cmp_gt_u32 vcc, {NB*16}, v{V_TID}')
    I('s_waitcnt vmcnt(0) lgkmcnt(0)')
    I('s_barrier')
    stamp(17)
    rstamp(29)
    if PROF:
        I(f'v_writelane_b32 v{V_PROF}, s{S_L}, 27')
    I(f's_and_saveexec_b64 {sp(S_EX)}, vcc')
    I('s_cbranch_execz L_FDONE')
    rd4(64, X + 2)
    I(f's_mov_b64 {sp(S_T)}, exec')
    L('L_FLOOP')
    I(f'v_cmp_lt_u32 vcc, v{X+4}, v{X+5}')
    I('s_and_b64 exec, exec, vcc')
    I('s_cbranch_execz L_FLEND')
    I(f'v_add_u32 v{X+4}, 1, v{X+4}')
    I(f'v_lshl_add_u32 v{X+7}, v{X+4}, 8, v{X+1}')
    rd4(72, X + 7)
    I('s_waitcnt lgkmcnt(0)')
    for k in range(4):
        I(f'v_add_f32 v{64+k}, v{64+k}, v{72+k}')
    I('s_branch L_FLOOP')
    L('L_FLEND')
    I(f's_mov_b64 exec, {sp(S_T)}')
    I('s_waitcnt lgkmcnt(0)')
    I(f's_cmp_lg_u32 s{S_MORE}, 0')
    I('s_cbranch_scc1 L_WB')
    for k in range(4):
        I(f'v_mul_f32 v{72+k}, s{S_T+3}, v{64+k}')
    for k in range(4):
        I(f'v_exp_f32 v{72+k}, v{72+k}')
    for k in range(4):
        I(f'v_mul_f32 v{64+k}, s{S_T+2}, v{64+k}')
    for k in range(4):
        I(f'v_add_f32 v{72+k}, 1.0, v{72+k}')
    for k in range(4):
        I(f'v_rcp_f32 v{72+k}, v{72+k}')
    I('s_nop 0')
    for k in range(4):
        I(f'v_mul_f32 v{64+k}, v{64+k}, v{72+k}')
    if FL:
        I('v_cvt_pk_bf16_f32 v80, v64, v65')
        I('v_cvt_pk_bf16_f32 v81, v66, v67')
        I(f'buffer_store_dwordx2 v[80:81], v{X+6}, {sr4(S_OUT)}, 0 offen' + OSC)
    else:
        I('v_cvt_pk_bf16_f32 v80, v64, v66')
        I('v_cvt_pk_bf16_f32 v81, v65, v67')
        I(f'buffer_store_dword v80, v{X+6}, {sr4(S_OUT)}, 0 offen' + OSC)
        I(f'buffer_store_dword v81, v{X+6}, {sr4(S_OUT)}, 0 offen offset:64' + OSC)
    stamp(18)
    prof_store()
    diag_end()
    I('s_endpgm')
    L('L_WB')
    if FL:
        I(f'ds_write2_b32 v{X+2}, v64, v65 offset0:0 offset1:2')
        I(f'ds_write2_b32 v{X+2}, v66, v67 offset0:4 offset1:6')
    else:
        I(f'ds_write_b128 v{X+2}, v[64:67]')
    L('L_FDONE')
    I('s_mov_b64 exec, -1')
    I(f's_cmp_eq_u32 s{S_MORE}, 0')
    I('s_cbranch_scc1 L_QUIT')
    I(f's_add_u32 s{S_JB}, s{S_JB}, s{S_WID}')
    I('s_branch L_REFILL')
    L('L_OVERFLOW')
    I(f's_mov_b32 s{S_WID}, 64')
    L('L_REFILL')
    I('s_waitcnt vmcnt(0) lgkmcnt(0)')
    I('s_barrier')
    fill_zero()
    fill_words()
    ptr_consts()
    I('s_waitcnt lgkmcnt(0)')
    I('s_barrier')
    I('s_branch L_PASS')
    L('L_QUIT')
    prof_store()
    L('L_END')
    I('s_endpgm')


DOC = """
"""
hdr = open('standalone__edge_featured_mpnn_egc__graph.s.ref').read().split('\n')
for line in hdr:
    if line.startswith('; Override'):
        break
    e(line)
e(f'; @launch grid=({NWG},1,1) block=(1024,1,1) lds={LDS_BYTES}')
e('.amdgcn_target "amdgcn-amd-amdhsa--gfx950"')
for line in DOC.strip().split('\n'):
    e(line)
e('.text')
gen()
e('.section .rodata,"a"')
e('.p2align 6')
e(f'.amdhsa_kernel {KNAME}')
e('  .amdhsa_next_free_vgpr 128')
e('  .amdhsa_next_free_sgpr 102')
e('  .amdhsa_accum_offset 128')
e('  .amdhsa_group_segment_fixed_size 0')
e('  .amdhsa_kernarg_size 80')
e('  .amdhsa_user_sgpr_count 2')
e('  .amdhsa_user_sgpr_kernarg_segment_ptr 1')
e('  .amdhsa_system_sgpr_workgroup_id_x 1')
e('  .amdhsa_float_denorm_mode_32 3')
e('.end_amdhsa_kernel')
open(sys.argv[1], 'w').write('\n'.join(x for x in out if x is not None) + '\n')
```

```python
import sys, struct

OPT = dict(a.split('=') for a in sys.argv[2:] if '=' in a)
def opt(name, default):
    return type(default)(OPT.get(name, default))

KNAME = 'standalone__edge_featured_mpnn_egc__graph_kernel'
N_NODES = 12500
E_EDGES = 800000
NB = 49
NWG = 256
CH = 3136
WS_RW = 0
WS_RE = 0x00400000
CAP = CH + 256
WS_TAB = 0x00B00000
WS_NT = 0x00C00000
WS_PROF = 0x01000000
M8 = opt('m8', 0)
if M8:
    KH, KEXP, SV = 13, 26, 0
else:
    KH, KEXP, SV = 31, 31, 30
LOG2E = 1.4426950408889634
SC = opt('sc', 'sc1')
SC = (' ' + SC.replace('+', ' ')) if SC != 'none' else ''
LSC = opt('lsc', 'sc1')
LSC = (' ' + LSC.replace('+', ' ')) if LSC != 'none' else ''
GSC = opt('gsc', 'sc1')
GSC = (' ' + GSC.replace('+', ' ')) if GSC != 'none' else ''
ELD = opt('eld', 'none')
ELD = (' ' + ELD.replace('+', ' ')) if ELD != 'none' else ''

def f2u(x):
    return struct.unpack('<I', struct.pack('<f', x))[0]

out = []
def e(s=''):
    out.append(s)
def I(s):
    out.append('    ' + s)
def L(name):
    out.append(name + ':')
def vr(a, n):
    return f'v[{a}:{a+n-1}]' if n > 1 else f'v{a}'
def sr4(a):
    return f's[{a}:{a+3}]'
def sp(a):
    return f's[{a}:{a+1}]'
def p(r):
    return f'v[{r}:{r+1}]'

def srd(d, lo, hi, nrec):
    I(f's_mov_b32 s{d}, s{lo}')
    I(f's_mov_b32 s{d+1}, s{hi}')
    I(f's_mov_b32 s{d+2}, {nrec}')
    I(f's_mov_b32 s{d+3}, 0x00020000')

def srd_off(d, lo, hi, off, nrec):
    I(f's_add_u32 s{d}, s{lo}, {off}')
    I(f's_addc_u32 s{d+1}, s{hi}, 0')
    I(f's_mov_b32 s{d+2}, {nrec}')
    I(f's_mov_b32 s{d+3}, 0x00020000')

def wave_scan(v):
    for sh in (1, 2, 4, 8):
        I('s_nop 1')
        I(f'v_add_u32_dpp v{v}, v{v}, v{v} row_shr:{sh} row_mask:0xf bank_mask:0xf')
    I('s_nop 1')
    I(f'v_add_u32_dpp v{v}, v{v}, v{v} row_bcast:15 row_mask:0xa bank_mask:0xf')
    I('s_nop 1')
    I(f'v_add_u32_dpp v{v}, v{v}, v{v} row_bcast:31 row_mask:0xc bank_mask:0xf')
    I('s_nop 1')

LS = 0
ZR = 18688
LE = 18688
CNT = 56064
MISC = 56320
BASET = 56576
NINFO = 56832
HIST = 57344
HBASE = 58368
DESCP = 59392
EXTRA = 67840
DESCA = 84224
PT = 86784
ACCN = 99328
WRAW = 111872
WG_, WV_, WU_ = WRAW, WRAW + 17408, WRAW + 25600
XOWN = WRAW + 33792
LDS_BYTES = XOWN + 8192
STGW = 0
STGE = CAP * 4
NTI = EXTRA
MAXG = 576
assert STGE + CAP * 8 <= CNT

V_TID, V_LANE = 0, 1
V_MA, V_MB = 2, 4
V_VAA = (6, 8)
V_VAP = 10
V_PS0, V_PS1, V_PE, V_PD, V_CH8, V_CHP = 12, 13, 14, 15, 16, 17
V_PROF = 18
V_TAB = 20
V_J4, V_CB4 = 24, 25
V_X = 26
V_T01D, V_T01N, V_T23D, V_T23N = 40, 42, 44, 46
B5 = (48, 52)
A5 = 56
V_TT = (60, 62)
G = (64, 80)
Z = 96
S = 112

S_XS, S_WS, S_DST, S_SRC, S_EA, S_RW, S_RE, S_TAB, S_NTS, S_NTG, S_OUT = 12, 16, 20, 24, 28, 32, 36, 40, 44, 48, 52
S_MASK = 56
S_W, S_L, S_CNT, S_JB, S_WID, S_MORE = 72, 73, 74, 75, 76, 77
S_C = 78
S_EX = 80
S_LDX = 82
S_T = 84
S_WSP = 94
S_DBG = 96
S_TAG, S_TAG2 = 100, 101
TAGM = 0xC003C003
TAGL = MISC + 64

NT2 = 2 if opt('touch', 0) else 0
LDXV = 0 if opt('noload', 0) else -1
NPFM = opt('npf', 4)
NPF = {0: 0, 1: 7, 2: 7, 3: 2, 4: 1, 5: 1}[NPFM]
NPF1 = NPF if NPFM in (1, 5) else 0
WSB = opt('wsb', 0) << 20
TCH = 4 if opt('touch', 0) else 0
T1 = opt('t1', 0)
OSC = opt('osc', 'nt')
OSC = (' ' + OSC.replace('+', ' ')) if OSC != 'none' else ''
KREP = opt('krep', 1)
assert KREP == 1
CM = opt('cm', 1)
RSTEP = 64 if CM else 8
SRCL = opt('srcl', 2)
PROF = opt('prof', 0)
DIAG = opt('diag', -1)
def diag_end():
    if DIAG < 0:
        return
    I('s_memrealtime s[98:99]')
    I('s_waitcnt lgkmcnt(0)')
    I('v_readlane_b32 s92, v18, 1')
    I('v_readlane_b32 s93, v18, 0')
    I('s_nop 3')
    I('s_sub_u32 s92, s92, s93')
    I('s_lshl_b32 s92, s92, 2')
    I('s_mov_b32 s93, s98')
    lbl = f'L_DG{len(out)}'
    L(lbl)
    I('s_memrealtime s[98:99]')
    I('s_waitcnt lgkmcnt(0)')
    I('s_sub_u32 s98, s98, s93')
    I('s_cmp_lt_u32 s98, s92')
    I(f's_cbranch_scc1 {lbl}')
def stamp(i):
    if DIAG >= 0 and i in (0, DIAG):
        I('s_memrealtime s[98:99]')
        I('s_waitcnt lgkmcnt(0)')
        if i == 0:
            I('v_writelane_b32 v18, s98, 0')
        if i == DIAG:
            I('v_writelane_b32 v18, s98, 1')
    if not PROF:
        return
    I('s_memtime s[98:99]')
    I('s_waitcnt lgkmcnt(0)')
    I(f'v_writelane_b32 v{V_PROF}, s98, {i}')
def rstamp(i):
    if not PROF:
        return
    I('s_memrealtime s[98:99]')
    I('s_waitcnt lgkmcnt(0)')
    I(f'v_writelane_b32 v{V_PROF}, s98, {i}')
def prof_store():
    if not PROF:
        return
    rstamp(31)
    if PROF == 3:
        I(f's_lshl_b32 s98, s2, 4')
        I(f's_add_u32 s98, s98, s{S_W}')
        I(f's_cmp_lg_u32 s98, {opt("pwave", 80)}')
        I('s_cbranch_scc1 L_END')
        I('s_mov_b64 exec, -1')
        I(f'v_readlane_b32 s98, v{V_PROF}, 0')
        I(f'v_readlane_b32 s99, v{V_PROF}, 30')
        I(f'v_readlane_b32 s{S_T}, v{V_PROF}, 31')
        I('s_nop 3')
        I(f's_sub_u32 s{S_T}, s{S_T}, s99')
        I(f's_add_u32 s{S_T}, s{S_T}, s98')
        I(f'v_writelane_b32 v{V_PROF}, s{S_T}, 9')
        I(f'v_subrev_u32 v{V_PROF}, s98, v{V_PROF}')
        I(f'v_mbcnt_lo_u32_b32 v{V_PROF+1}, -1, 0')
        I(f'v_lshlrev_b32 v{V_PROF+1}, 2, v{V_PROF+1}')
        I(f'v_add_u32 v{V_PROF+1}, -8, v{V_PROF+1}')
        I('s_mov_b64 exec, 0x3fff8')
        I(f'global_store_dword v{V_PROF+1}, v{V_PROF}, {sp(S_DBG)}')
        return
    I('s_mov_b64 exec, 0xffffffff')
    I(f's_add_u32 s{S_T}, s{S_WSP}, 0x{WS_PROF:x}')
    I(f's_addc_u32 s{S_T+1}, s{S_WSP+1}, 0')
    I(f'v_mbcnt_lo_u32_b32 v{V_PROF+1}, -1, 0')
    I(f'v_lshlrev_b32 v{V_PROF+1}, 2, v{V_PROF+1}')
    I(f's_lshl_b32 s98, s2, 4')
    I(f's_add_u32 s98, s98, s{S_W}')
    I(f's_lshl_b32 s98, s98, 7')
    I(f'v_add_u32 v{V_PROF+1}, s98, v{V_PROF+1}')
    I(f'global_store_dword v{V_PROF+1}, v{V_PROF}, {sp(S_T)}')

class Lg:
    def __init__(self):
        self.q = []
    def op(self, tag, text):
        I(text)
        self.q.append(tag)
    def need(self, *tags):
        idx = -1
        for t in tags:
            for i in range(len(self.q) - 1, -1, -1):
                if self.q[i] == t:
                    idx = max(idx, i)
                    break
        if idx < 0:
            return
        n = len(self.q) - 1 - idx
        assert n <= 15, (tags, n)
        I(f's_waitcnt lgkmcnt({n})')
        self.q = self.q[idx + 1:]

X = V_X

def zero_range(a, nbytes, zr, ad):
    k = 0
    base = a if a + nbytes <= 65536 + 16384 and a < 65536 - 3 * 16384 else None
    off = 0
    areg = ad
    if a + ((nbytes - 1) // 16384) * 16384 > 65535:
        I(f'v_add_u32 v{X+1}, {a}, v{ad}')
        areg = X + 1
        a0 = 0
    else:
        a0 = a
    while off < nbytes:
        n = min(16384, nbytes - off)
        if n < 16384:
            I(f'v_cmp_gt_u32 vcc, {n // 16}, v{V_TID}')
            I(f's_and_saveexec_b64 {sp(S_EX)}, vcc')
        I(f'ds_write_b128 v{areg}, v[{zr}:{zr+3}] offset:{a0 + off}')
        if n < 16384:
            I(f's_mov_b64 exec, {sp(S_EX)}')
        off += n

def zregs():
    I(f'v_lshlrev_b32 v{X}, 4, v{V_TID}')
    for k in range(4):
        I(f'v_mov_b32 v{X+2+k}, 0')

def fill_desca():
    I(f'v_and_b32 v{X+6}, 15, v{V_TID}')
    I(f'v_lshlrev_b32 v{X+6}, 10, v{X+6}')
    I(f'v_add_u32 v{X+6}, {EXTRA}, v{X+6}')
    for k in range(1, 4):
        I(f'v_add_u32 v{X+6+k}, {256*k}, v{X+6}')
    I(f'v_add_u32 v{X+1}, {DESCA}, v{X}')
    I(f'v_cmp_gt_u32 vcc, 160, v{V_TID}')
    I(f's_and_saveexec_b64 {sp(S_EX)}, vcc')
    I(f'ds_write_b128 v{X+1}, v[{X+6}:{X+9}]')
    I(f's_mov_b64 exec, {sp(S_EX)}')

def fill_zero():
    zregs()
    zero_range(ZR, 65536, X + 2, X)
    fill_desca()

def fill_words():
    I(f'v_lshlrev_b32 v{X}, 4, v{V_TID}')
    I(f'v_and_b32 v{X+2}, 7, v{V_TID}')
    I(f'v_lshlrev_b32 v{X+2}, 5, v{X+2}')
    I(f'v_add_u32 v{X+2}, {N_NODES*8}, v{X+2}')
    for k in range(1, 4):
        I(f'v_add_u32 v{X+2+k}, {8*k}, v{X+2}')
    I(f'ds_write_b128 v{X}, v[{X+2}:{X+5}] offset:{LS}')
    I(f'v_cmp_gt_u32 vcc, 144, v{V_TID}')
    I(f's_and_saveexec_b64 {sp(S_EX)}, vcc')
    I(f'ds_write_b128 v{X}, v[{X+2}:{X+5}] offset:{LS+16384}')
    I(f's_mov_b64 exec, {sp(S_EX)}')

V_C8P, V_CPP, V_SCP = 26, 28, 30
S_BP0, S_BP1 = 88, 90

def tail_ops(n):
    M = (V_MA, V_MB)[n]
    return [f'v_rcp_f32 v{V_T01D}, v{V_T01D}',
            f'v_rcp_f32 v{V_T01D+1}, v{V_T01D+1}',
            f'v_pk_fma_f32 {p(M)}, {p(V_T01N)}, {p(V_T01D)}, {p(M)}']

def acc_write(lg, va):
    lg.op('Wa', f'ds_write2_b32 v{va}, v{V_MA}, v{V_MB} offset0:0 offset1:1')
    lg.op('Wb', f'ds_write2_b32 v{va+1}, v{V_MA+1}, v{V_MB+1} offset0:0 offset1:1')

def acc_read(lg, va):
    lg.op('Ra', f'ds_read_b32 v{V_MA}, v{va}')
    lg.op('Rb', f'ds_read_b32 v{V_MA+1}, v{va+1}')
    lg.op('Rc', f'ds_read_b32 v{V_MB}, v{va} offset:4')
    lg.op('Rd', f'ds_read_b32 v{V_MB+1}, v{va+1} offset:4')

def va_add(vap, vaa):
    I(f'v_lshl_add_u64 {p(vap)}, {p(vap)}, 0, {p(V_CPP)}')
    I(f'v_lshl_add_u64 {p(vaa)}, {p(vaa)}, 0, {p(V_C8P)}')

def gload(n, i):
    return f'buffer_load_dword v{G[n]+i}, v{S + (i & 1) * 8 + (i >> 1)}, {sr4(S_NTG)}, 0 offen offset:{4*n}' + GSC

def s_safe():
    if opt('safe', 0):
        for i in range(16):
            I(f'v_and_b32 v{S+i}, 0x1fff8, v{S+i}')

def s_reads(lg, uo):
    lg.op('S0', f'ds_read_b128 {vr(S,4)}, v{V_PS0} offset:{uo*32}')
    lg.op('S1', f'ds_read_b128 {vr(S+4,4)}, v{V_PS0} offset:{uo*32+16}')
    lg.op('S2', f'ds_read_b128 {vr(S+8,4)}, v{V_PS1} offset:{uo*32}')
    lg.op('S3', f'ds_read_b128 {vr(S+12,4)}, v{V_PS1} offset:{uo*32+16}')

def half(lg, n, par, uo, with_tail=True):
    g = G[n]
    I('s_waitcnt vmcnt(16)')
    if n == 0:
        lg.need('P0a', 'P0b', 'e')
    else:
        lg.need('P1a', 'P1b')
    I(f'v_mfma_f32_32x32x16_bf16 {vr(Z,16)}, {vr(A5,4)}, {vr(B5[n],4)}, {vr(g,16)}')
    t = tail_ops(n ^ 1)
    va_prev, va_cur, va_nxt = V_VAA[par ^ 1], V_VAA[par], V_VAA[par ^ 1]
    sh = [f'v_lshlrev_b32 v{g+i}, 16, v{g+i}' for i in range(16)]
    ex = [f'v_exp_f32 v{Z+i}, v{Z+i} clamp' for i in range(16)]
    l3 = [f'v_pk_mul_f32 {p(V_T01N)}, {p(V_T01N)}, {p(V_T23D)}',
          f'v_pk_mul_f32 {p(V_T23D)}, {p(V_T01D)}, {p(V_T23D)}',
          f'v_pk_fma_f32 {p(V_T01N)}, {p(V_T23N)}, {p(V_T01D)}, {p(V_T01N)}',
          f'v_rcp_f32 v{V_T23D}, v{V_T23D}',
          f'v_rcp_f32 v{V_T23D+1}, v{V_T23D+1}',
          f'v_pk_fma_f32 {p((V_MA, V_MB)[n ^ 1])}, {p(V_T01N)}, {p(V_T23D)}, {p((V_MA, V_MB)[n ^ 1])}']
    if with_tail and not M8:
        for r_ in (V_T01D, V_T01D + 1, V_T23D, V_T23D + 1):
            I(f'v_rcp_f32 v{r_}, v{r_}')
    else:
        I('s_nop 3')
    if n == 1:
        lg.op('e', f'ds_read_b64 {p(A5)}, v{V_PE} offset:{(uo+1)*64}')
        lg.op('P1a', f'ds_read_b32 v{B5[1]+2}, v{V_VAP} offset:4')
        lg.op('P1b', f'ds_read_b32 v{B5[1]+3}, v{V_VAP+1} offset:4')
    else:
        lg.op('dP', f'ds_read_b64 {p(V_VAP)}, v{V_PD} offset:{(uo+1)*256}')
        I('s_nop 1')
    for op in sh[:8]:
        I(op)
    seq = []
    if with_tail and not M8:
        Mp = p((V_MA, V_MB)[n ^ 1])
        seq = ['NEED', f'v_pk_fma_f32 {Mp}, {p(V_T01N)}, {p(V_T01D)}, {Mp}', ex[0],
               f'v_pk_fma_f32 {Mp}, {p(V_T23N)}, {p(V_T23D)}, {Mp}', sh[8], 'ACC', ex[1], sh[9]]
    elif with_tail:
        seq = [l3[0], l3[1], ex[0], l3[2], l3[3], sh[8], l3[4], ex[1], sh[9], 'NEED', l3[5], 'ACC']
    else:
        seq = [ex[0], sh[8], ex[1], sh[9], 'ACC']
    for op in seq:
        if op == 'NEED':
            lg.need('Ra', 'Rb', 'Rc', 'Rd')
        elif op == 'ACC':
            if n == 0:
                if with_tail:
                    acc_write(lg, va_prev)
                acc_read(lg, va_cur)
                lg.op('dA', f'ds_read_b64 {p(va_nxt)}, v{V_PD} offset:{(uo+1)*256 + DESCA - DESCP}')
        else:
            I(op)
    for i in range(2, 12):
        I(ex[i])
        if 8 + i < 16:
            I(sh[8 + i])
        if n == 0 and i == 11:
            lg.need('dP', 'dA')
            va_add(V_VAP, va_nxt)
            lg.op('P0a', f'ds_read_b32 v{B5[0]+2}, v{V_VAP}')
            lg.op('P0b', f'ds_read_b32 v{B5[0]+3}, v{V_VAP+1}')
    for op in ex[12:]:
        I(op)
    for i in range(0, 16, 2):
        if M8:
            I(f'v_pk_fma_f32 {p(Z+i)}, {p(Z+i)}, {p(V_SCP)}, {sp(S_C)}')
        else:
            I(f'v_pk_add_f32 {p(Z+i)}, {p(Z+i)}, {sp(S_C)}')
    def T(k): return f'v_pk_mul_f32 {p(V_TT[k&1])}, {p(g+4*k)}, {p(Z+4*k+2)}'
    def DD(k): return f'v_pk_mul_f32 {p(Z+4*k+2)}, {p(Z+4*k)}, {p(Z+4*k+2)}'
    def NN(k): return f'v_pk_fma_f32 {p(Z+4*k)}, {p(g+4*k+2)}, {p(Z+4*k)}, {p(V_TT[k&1])}'
    for k0 in (0, 2):
        for op in (T(k0), T(k0 + 1), DD(k0), DD(k0 + 1), NN(k0), NN(k0 + 1)):
            I(op)
        if n == 0 and k0 == 0:
            lg.need('S0', 'S1', 'S2', 'S3')
            s_safe()
        I(f's_mov_b64 exec, {sp(S_LDX)}')
        for i in range(4 * k0, 4 * k0 + 8):
            I(gload(n, i))
        I('s_mov_b64 exec, -1')
    if n == 1:
        s_reads(lg, uo + 2)
    I(f'v_pk_mul_f32 {p(V_T01N)}, {p(Z)}, {p(Z+6)}')
    I(f'v_pk_mul_f32 {p(V_T23N)}, {p(Z+8)}, {p(Z+14)}')
    I(f'v_pk_mul_f32 {p(V_T01D)}, {p(Z+2)}, {p(Z+6)}')
    I(f'v_pk_mul_f32 {p(V_T23D)}, {p(Z+10)}, {p(Z+14)}')
    I(f'v_pk_fma_f32 {p(V_T01N)}, {p(Z+4)}, {p(Z+2)}, {p(V_T01N)}')
    I(f'v_pk_fma_f32 {p(V_T23N)}, {p(Z+12)}, {p(Z+10)}, {p(V_T23N)}')

PRIO = {
    3: {(3, 0): 2, (2, 0): 1, (1, 0): 0},
    5: {(2, 0): 2, (1, 0): 1, (1, 1): 0},
    6: {(3, 0): 2, (1, 0): 1, (1, 1): 0},
    7: {(2, 1): 2, (1, 0): 1, (1, 1): 0},
    8: {(4, 0): 2, (2, 0): 1, (1, 1): 0},
    9: {(3, 0): 2, (2, 1): 1, (1, 1): 0},
    0: {},
}[opt('prio', 9)]
def prio(tag, phase=0):
    for (t, ph), lvl in PRIO.items():
        if ph != phase:
            continue
        I(f's_cmp_eq_u32 s{S_CNT}, {t}')
        I(f's_cbranch_scc0 L_PR{tag}_{lvl}')
        I(f's_setprio {lvl}')
        L(f'L_PR{tag}_{lvl}')

def split_hilo(a, b, t0, t1):
    I(f'v_cvt_pk_bf16_f32 v{t0}, v{a}, v{b}')
    I(f'v_lshlrev_b32 v{t1}, 16, v{t0}')
    I(f'v_and_b32 v{t0}, 0xffff0000, v{t0}')
    I(f'v_sub_f32 v{a}, v{a}, v{t1}')
    I(f'v_sub_f32 v{b}, v{b}, v{t0}')
    I(f'v_cvt_pk_bf16_f32 v{a}, v{t1}, v{a}')
    I(f'v_cvt_pk_bf16_f32 v{b}, v{t0}, v{b}')

V_AA, V_AB, V_AD, V_AP = 6, 7, 8, 9
SA, SB, SD = 80, 96, 112

def phase0_addr():
    I(f's_and_b32 s{S_T}, s{S_W}, 3')
    I(f's_lshr_b32 s{S_T+1}, s{S_W}, 2')
    I(f'v_and_b32 v12, 15, v{V_LANE}')
    I(f'v_lshrrev_b32 v13, 4, v{V_LANE}')
    I(f'v_bfe_u32 v14, v{V_LANE}, 1, 3')
    I(f'v_xor_b32 v14, v14, v13')
    I(f'v_lshlrev_b32 v14, 4, v14')
    I(f'v_lshl_or_b32 v14, v12, 7, v14')
    I(f's_lshl_b32 s{S_T+2}, s{S_T}, 11')
    I(f'v_add_u32 v{V_AA}, s{S_T+2}, v14')
    I(f'v_bfe_u32 v14, v{V_LANE}, 2, 2')
    I(f'v_lshl_add_u32 v14, v13, 3, v14')
    I(f'v_lshlrev_b32 v14, 7, v14')
    I(f'v_and_b32 v15, 3, v{V_LANE}')
    I(f'v_lshl_add_u32 v14, v15, 3, v14')
    I(f's_lshl_b32 s{S_T+2}, s{S_T+1}, 5')
    I(f'v_or_b32 v14, s{S_T+2}, v14')
    I(f'v_and_b32 v15, 24, v{V_LANE}')
    I(f'v_lshlrev_b32 v15, 2, v15')
    I(f'v_xor_b32 v14, v14, v15')
    I(f'v_add_u32 v{V_AB}, {WRAW}, v14')
    I(f's_lshl_b32 s{S_T+2}, s{S_T}, 12')
    I(f'v_lshlrev_b32 v13, 10, v13')
    I(f'v_add_u32 v13, s{S_T+2}, v13')
    I(f's_lshl_b32 s{S_T+2}, s{S_T+1}, 6')
    I(f's_add_u32 s{S_T+2}, s{S_T+2}, {NTI}')
    I(f'v_lshl_add_u32 v{V_AD}, v12, 2, v13')
    I(f'v_add_u32 v{V_AD}, s{S_T+2}, v{V_AD}')
    I(f's_and_b32 s{S_T+2}, s{S_T+1}, 1')
    I(f's_lshl_b32 s{S_T+2}, s{S_T+2}, 7')
    I(f's_lshr_b32 s{S_T+3}, s{S_T+1}, 1')
    I(f's_lshl_b32 s{S_T+3}, s{S_T+3}, 2')
    I(f's_add_u32 s{S_T+2}, s{S_T+2}, s{S_T+3}')
    I(f's_add_u32 s{S_T+2}, s{S_T+2}, {PT}')
    I(f'v_lshl_add_u32 v{V_AP}, v12, 3, v13')
    I(f'v_add_u32 v{V_AP}, s{S_T+2}, v{V_AP}')

def b_reads(dst, off):
    for sg in range(2):
        for pp in range(2):
            I(f'ds_read_b64_tr_b16 {vr(dst+4*sg+2*pp,2)}, v{V_AB} offset:{off+sg*4096+pp*512}')

def mm16(d, b):
    I(f'v_mfma_f32_16x16x32_bf16 {vr(d,4)}, {vr(SA,4)}, {vr(b,4)}, 0')
    I(f'v_mfma_f32_16x16x32_bf16 {vr(d,4)}, {vr(SA+4,4)}, {vr(b+4,4)}, {vr(d,4)}')

def phase0a():
    I(f'v_add_u32 v12, {XOWN}, v{V_AA}')
    I(f'v_xor_b32 v13, 64, v{V_AA}')
    I(f'v_add_u32 v13, {XOWN}, v13')
    I(f'ds_read_b128 {vr(SA,4)}, v12')
    I(f'ds_read_b128 {vr(SA+4,4)}, v13')
    b_reads(SB, 8192)
    b_reads(SB + 8, WV_ - WRAW)
    I(f's_mov_b32 s{S_T+4}, 0x{f2u(-LOG2E):x}')
    I(f's_mov_b32 s{S_T+6}, 0x7fffffff')
    I(f's_mov_b32 s{S_T+7}, 0xffff0000')
    I('s_waitcnt lgkmcnt(4)')
    mm16(SD, SB)
    I('s_waitcnt lgkmcnt(0)')
    mm16(SD + 4, SB + 8)
    I('s_nop 4')
    for i in range(4):
        I(f'v_mul_f32 v{SD+i}, s{S_T+4}, v{SD+i}')
    for i in range(4):
        I(f'v_and_b32 v{SD+8+i}, s{S_T+6}, v{SD+i}')
    for i in range(4):
        if SV:
            I(f'v_mul_f32 v{SD+4+i}, 0x{f2u(2.0**SV):x}, v{SD+4+i}')
        I(f'v_add_u32 v{SD+8+i}, 0x8000, v{SD+8+i}')
    I(f'v_cvt_pk_bf16_f32 v{SD+4}, v{SD+4}, v{SD+5}')
    I(f'v_cvt_pk_bf16_f32 v{SD+6}, v{SD+6}, v{SD+7}')
    I(f'v_lshrrev_b32 v{SD+5}, 16, v{SD+4}')
    I(f'v_lshrrev_b32 v{SD+7}, 16, v{SD+6}')
    I(f'v_and_b32 v{SD+4}, 0xffff, v{SD+4}')
    I(f'v_and_b32 v{SD+6}, 0xffff, v{SD+6}')
    for i in range(4):
        I(f'v_sub_u32 v{SD+8+i}, v{SD+8+i}, v{SD+4+i} clamp')
    for i in range(4):
        I(f'v_and_or_b32 v{SD+8+i}, v{SD+8+i}, s{S_T+7}, v{SD+4+i}')
    for i in range(4):
        I(f'v_bfi_b32 v{SD+i}, s{S_T+6}, v{SD+8+i}, v{SD+i}')
        I(f'ds_write_b32 v{V_AD}, v{SD+i} offset:{i*256}')

def phase0b():
    b_reads(SB, 0)
    b_reads(SB + 8, WU_ - WRAW)
    I(f's_mov_b32 s{S_T+4}, 0x{f2u(-LOG2E):x}')
    I(f's_mov_b32 s{S_T+5}, 0x{f2u(2.0**(SV+KH)):x}')
    I(f'v_mov_b32 v13, 0x{f2u(-float(KEXP)):x}')
    I(f's_and_b32 s{S_T+6}, s{S_W}, 3')
    I('s_waitcnt lgkmcnt(4)')
    mm16(SD, SB)
    I('s_waitcnt lgkmcnt(0)')
    mm16(SD + 4, SB + 8)
    I('s_nop 4')
    for i in range(4):
        I(f'v_fma_f32 v{SD+i}, v{SD+i}, s{S_T+4}, v13')
    split_hilo(SD, SD + 1, 12, 13)
    split_hilo(SD + 2, SD + 3, 12, 13)
    for i in range(4):
        I(f'v_mul_f32 v{SD+4+i}, s{S_T+5}, v{SD+4+i}')
    I(f's_cmp_eq_u32 s{S_T+6}, 3')
    I(f's_cselect_b64 exec, 0xffff, -1')
    I(f'ds_write_b32 v{V_AP}, v{SD}')
    I(f'ds_write_b32 v{V_AP}, v{SD+4} offset:{ACCN-PT}')
    I(f's_cselect_b64 exec, 0, -1')
    for i in range(1, 4):
        I(f'ds_write_b32 v{V_AP}, v{SD+i} offset:{i*256}')
        I(f'ds_write_b32 v{V_AP}, v{SD+4+i} offset:{ACCN-PT+i*256}')
    I('s_mov_b64 exec, -1')

def phase0c():
    I(f'v_bfe_u32 v13, v{V_LANE}, 2, 2')
    I(f'v_lshlrev_b32 v13, 7, v13')
    I(f'v_bfe_u32 v15, v{V_LANE}, 4, 1')
    I(f'v_lshl_add_u32 v13, v15, 5, v13')
    I(f'v_and_b32 v15, 3, v{V_LANE}')
    I(f'v_lshl_add_u32 v13, v15, 3, v13')
    I(f'v_and_b32 v15, 8, v{V_LANE}')
    I(f'v_lshlrev_b32 v15, 2, v15')
    I(f'v_xor_b32 v13, v13, v15')
    I(f'v_add_u32 v13, {WG_ + 16384}, v13')
    I(f'ds_read_b64_tr_b16 v[96:97], v13')
    I(f'ds_read_b64_tr_b16 v[98:99], v13 offset:64')
    I(f's_mov_b32 s{S_T+4}, 0x{f2u(-LOG2E):x}')
    I(f'v_cmp_lt_u32 vcc, 31, v{V_LANE}')
    I('s_waitcnt lgkmcnt(0)')
    for m in range(4):
        I(f'v_lshlrev_b32 v{100+2*m}, 16, v{96+m}')
        I(f'v_and_b32 v{101+2*m}, 0xffff0000, v{96+m}')
    for j in range(8):
        I(f'v_mul_f32 v{100+j}, s{S_T+4}, v{100+j}')
    for m in range(4):
        dst = B5[m >> 1] + (m & 1)
        I(f'v_cvt_pk_bf16_f32 v{96+m}, v{100+2*m}, v{101+2*m}')
        I(f'v_lshlrev_b32 v12, 16, v{96+m}')
        I(f'v_and_b32 v13, 0xffff0000, v{96+m}')
        I(f'v_sub_f32 v12, v{100+2*m}, v12')
        I(f'v_sub_f32 v13, v{101+2*m}, v13')
        I(f'v_cvt_pk_bf16_f32 v12, v12, v13')
        I(f'v_cndmask_b32 v{dst}, v{96+m}, v12, vcc')

def a5_const():
    I(f'v_bfe_u32 v12, v{V_LANE}, 2, 1')
    I(f'v_lshrrev_b32 v13, 5, v{V_LANE}')
    I(f'v_xor_b32 v12, v12, v13')
    I(f'v_and_b32 v13, 1, v{V_LANE}')
    I(f'v_lshl_or_b32 v12, v12, 1, v13')
    I(f'v_mov_b32 v13, 0x3f803f80')
    I(f'v_cmp_eq_u32 vcc, 0, v12')
    I(f'v_cmp_eq_u32 {sp(S_T)}, 1, v12')
    I('s_nop 1')
    I(f'v_cndmask_b32 v{A5+2}, 0, v13, vcc')
    I(f'v_cndmask_b32 v{A5+3}, 0, v13, {sp(S_T)}')

def nt_prefetch(vt, first=0, nl=None, dst=96):
    I(f's_lshr_b32 s{S_T}, s2, 4')
    I(f's_lshl_b32 s{S_T+1}, s{S_W}, 4')
    I(f's_add_u32 s{S_T}, s{S_T}, s{S_T+1}')
    I(f's_and_b32 s{S_T+1}, s{S_T}, 7')
    I(f's_lshl_b32 s{S_T+1}, s{S_T+1}, 5')
    I(f's_lshr_b32 s{S_T}, s{S_T}, 3')
    I(f's_add_u32 s{S_T}, s{S_T}, s{S_T+1}')
    if not opt('xmap', 1):
        I(f's_lshr_b32 s{S_T}, s2, 4')
        I(f's_lshl_b32 s{S_T+1}, s{S_W}, 4')
        I(f's_add_u32 s{S_T}, s{S_T}, s{S_T+1}')
    I(f's_lshl_b32 s{S_T}, s{S_T}, 1')
    I(f's_bfe_u32 s{S_T+1}, s2, 0x10003')
    I(f's_add_u32 s{S_T}, s{S_T}, s{S_T+1}')
    I(f's_mul_i32 s{S_T}, s{S_T}, {NB*128}')
    I(f's_add_u32 s{S_T}, s{S_T}, 0x{WS_NT:x}')
    srd_off(S_NTS, S_WSP, S_WSP + 1, f's{S_T}', NB * 128)
    if NPFM >= 3:
        I(f'v_lshlrev_b32 v{vt}, {7 if NPFM >= 4 else 6}, v{V_LANE}')
        I(f'v_add_u32 v{vt+1}, 4096, v{vt}')
        nl = opt("pfl", 20) if nl is None else nl
        I(f's_mov_b32 exec_lo, 0x{(((1 << nl) - 1) << first) & 0xffffffff:x}')
        I(f's_mov_b32 exec_hi, 0x{(((1 << nl) - 1) << first) >> 32:x}')
        for k in range(NPF):
            I(f'buffer_load_dword v{dst+k}, v{vt+k}, {sr4(S_NTS)}, 0 offen' + (LSC if opt('pfsc', 1) else ''))
        I('s_mov_b64 exec, -1')
        return
    I(f'v_lshlrev_b32 v{vt}, 4, v{V_LANE}')
    I(f'v_add_u32 v{vt+1}, 4096, v{vt}')
    for k in range(NPF):
        I(f'buffer_load_dwordx4 {vr(96+4*k,4)}, v{vt+(k>>2)}, {sr4(S_NTS)}, 0 offen offset:{(k&3)*1024}' + LSC)

def ptr_consts():
    I(f'v_lshrrev_b32 v{V_PS1}, 5, v{V_LANE}')
    I(f's_lshl_b32 s{S_T}, s{S_W}, 4')
    I(f's_add_u32 s{S_T}, s{S_T}, {DESCP}')
    I(f'v_lshlrev_b32 v{V_PD}, 3, v{V_PS1}')
    I(f'v_add_u32 v{V_PS1}, v{V_PS1}, v{V_PS1}')
    I(f'v_add_u32 v{V_PD}, s{S_T}, v{V_PD}')
    I(f'v_bfe_u32 v{V_VAP}, v{V_LANE}, 2, 1')
    I(f'v_and_b32 v{V_PE}, 1, v{V_LANE}')
    I(f'v_lshl_or_b32 v{V_VAP}, v{V_VAP}, 1, v{V_PE}')
    I(f'v_bfe_u32 v{V_PE}, v{V_LANE}, 3, 2')
    I(f'v_bfe_u32 v{V_PS0}, v{V_LANE}, 1, 1')
    I(f'v_lshl_or_b32 v{V_PE}, v{V_PE}, 1, v{V_PS0}')
    I(f'v_lshlrev_b32 v{V_PE}, 3, v{V_PE}')
    I(f'v_add_u32 v{V_PE}, {LE}, v{V_PE}')

def gen():
    e(f'.globl {KNAME}')
    e('.p2align 8')
    e(f'.type {KNAME},@function')
    L(KNAME)
    I(f's_cmp_ge_u32 s2, {NWG}')
    I('s_cbranch_scc1 L_END')
    I('s_load_dwordx8 s[84:91], s[0:1], 0')
    I('s_load_dwordx4 s[4:7], s[0:1], 32')
    I('s_load_dwordx4 s[8:11], s[0:1], 48')
    I('s_load_dwordx4 s[56:59], s[0:1], 64')
    if PROF:
        I(f'v_mov_b32 v{V_PROF}, 0')
    rstamp(30)
    stamp(0)
    zregs()
    zero_range(CNT, DESCP + 2560 - CNT, X + 2, X)
    I(f'v_lshlrev_b32 v{X+6}, 2, v{V_TID}')
    I(f's_mul_i32 s61, s2, {CH*4}')
    I(f's_mul_i32 s63, s2, {CH}')
    I(f's_sub_u32 s63, {E_EDGES}, s63')
    I(f's_min_u32 s63, s63, {CH}')
    I(f's_lshl_b32 s64, s63, 2')
    I(f'v_add_u32 v{X+8}, 4096, v{X+6}')
    I(f'v_add_u32 v{X+9}, 8192, v{X+6}')
    I(f'v_add_u32 v{X+10}, 12288, v{X+6}')
    I(f'v_lshrrev_b32 v{X+1}, 6, v{V_TID}')
    I(f'v_and_b32 v{V_LANE}, 63, v{V_TID}')
    I(f'v_readfirstlane_b32 s{S_W}, v{X+1}')
    I('s_and_b32 s3, s2, 7')
    I('s_lshl_b32 s3, s3, 5')
    I('s_lshr_b32 s60, s2, 3')
    I('s_add_u32 s3, s3, s60')
    if not opt('xmap', 1):
        I('s_mov_b32 s3, s2')
    I(f's_mul_i32 s62, s2, {CH*8}')
    I(f's_lshl_b32 s65, s63, 3')
    I(f'v_and_b32 v97, 0x50, v{V_TID}')
    I(f'v_lshlrev_b32 v96, 1, v97')
    I(f'v_or_b32 v97, v97, v96')
    I(f'v_and_b32 v97, 0x60, v97')
    I(f'v_xor_b32 v97, v97, v{X}')
    I(f'v_and_b32 v96, 0x20, v96')
    I(f'v_lshlrev_b32 v98, 4, v{V_LANE}')
    I(f'v_xor_b32 v96, v96, v98')
    I(f's_lshl_b32 s66, s{S_W}, 10')
    I(f'v_and_b32 v101, 0x1fff, v97')
    I(f'v_lshrrev_b32 v98, 3, v{V_TID}')
    I(f'v_bfe_u32 v99, v98, 1, 3')
    I(f'v_and_b32 v100, 7, v{V_TID}')
    I(f'v_xor_b32 v99, v99, v100')
    I(f'v_lshlrev_b32 v99, 4, v99')
    I(f'v_lshl_add_u32 v99, v98, 7, v99')
    I(f's_mul_i32 s60, s3, {NB*128}')
    I(f'v_add_u32 v99, s60, v99')
    I(f'v_add_u32 v96, 16384, v96')
    I('s_waitcnt lgkmcnt(0)')
    I(f's_or_b32 s67, s2, s{S_W}')
    I('s_cmp_lg_u32 s67, 0')
    I('s_cbranch_scc1 L_NOTAG')
    I('s_memrealtime s[68:69]')
    I(f'v_mov_b32 v{X+2}, 0')
    I('s_waitcnt lgkmcnt(0)')
    I('s_or_b32 s68, s68, 1')
    I(f'v_mov_b32 v{X+3}, s68')
    I('s_mov_b64 exec, 1')
    I(f'global_store_dword v{X+2}, v{X+3}, s[56:57] sc1')
    I('s_mov_b64 exec, -1')
    L('L_NOTAG')
    def dst_loads():
        srd_off(S_DST, 90, 91, 's61', 's64')
        for k in range(4):
            I(f'buffer_load_dword v{64+k}, v{X+6 if k == 0 else X+7+k}, {sr4(S_DST)}, 0 offen' + ELD)
    def dma_loads():
        srd(S_WS, 8, 9, 132 * 128)
        I(f's_add_u32 m0, s66, {WG_}')
        srd(S_XS, 84, 85, N_NODES * 128)
        I(f'buffer_load_dwordx4 v97, {sr4(S_WS)}, 0 offen lds')
        I(f's_cmp_lt_u32 s{S_W}, 8')
        I(f's_cselect_b32 s{S_NTS}, s6, s4')
        I(f's_cselect_b32 s{S_NTS+1}, s7, s5')
        I(f's_mov_b32 s{S_NTS+2}, {64*128}')
        I(f's_mov_b32 s{S_NTS+3}, 0x00020000')
        I(f's_add_u32 m0, s66, {WV_}')
        I('s_nop 0')
        I(f'buffer_load_dwordx4 v101, {sr4(S_NTS)}, 0 offen lds')
        I(f's_cmp_lt_u32 s{S_W}, 8')
        I('s_cbranch_scc0 L_D3B')
        I(f's_add_u32 m0, s66, {XOWN}')
        I('s_nop 0')
        I(f'buffer_load_dwordx4 v99, {sr4(S_XS)}, 0 offen lds')
        I('s_branch L_D3C')
        L('L_D3B')
        I(f's_mov_b32 m0, {WG_ + 16384}')
        I('s_nop 0')
        I(f'buffer_load_dwordx4 v96, {sr4(S_WS)}, 0 offen lds')
        L('L_D3C')
    if opt('t0', 0):
        I(f'v_and_b32 v60, 15, v{V_LANE}')
        I(f'v_lshlrev_b32 v60, 20, v60')
        I(f'v_and_b32 v61, 1, v{V_LANE}')
        I(f'v_lshlrev_b32 v61, 20, v61')
        I(f'global_load_dword v62, v60, s[58:59]')
        I(f'global_load_dword v63, v61, s[10:11]')
    ORDER = opt('order', 2)
    if ORDER == 0:
        dma_loads()
    dst_loads()
    if ORDER == 2:
        dma_loads()
    F1 = opt('f1', 1)
    if F1:
        I('s_barrier')
    srd_off(S_SRC, 88, 89, 's61', 's64')
    LATE = opt('late', 1)
    def src_load(k):
        I(f'buffer_load_dword v{68+k}, v{X+6 if k == 0 else 43+k}, {sr4(S_SRC)}, 0 offen' + ELD)
    for k in range(1, 4):
        I(f'v_mov_b32 v{43+k}, v{X+7+k}')
    NS = opt('ns', 1) if LATE else 4
    for k in range(NS):
        src_load(k)
    srd_off(S_EA, 86, 87, 's62', 's65')
    I(f'v_lshlrev_b32 v92, 3, v{V_TID}')
    for k in range(1, 4):
        I(f'v_add_u32 v{92+k}, {8192*k}, v92')
    def e_load(k):
        I(f'buffer_load_dwordx2 v[{72+2*k}:{73+2*k}], v{92+k}, {sr4(S_EA)}, 0 offen' + ELD)
    NEE = opt('ne', 1) if LATE else opt('nee', 4)
    for k in range(NEE):
        e_load(k)
    if ORDER == 1:
        dma_loads()
    I(f's_mov_b64 {sp(S_DBG)}, s[56:57]')
    I(f's_add_u32 s{S_WSP}, s58, 0x{WSB:x}')
    I(f's_addc_u32 s{S_WSP+1}, s59, 0')
    stamp(1)
    srd(S_OUT, 10, 11, N_NODES * 128)
    I(f's_mul_i32 s{S_T}, s2, {CAP*4}')
    srd_off(S_RW, S_WSP, S_WSP + 1, f's{S_T}', CAP * 4)
    I(f's_lshl_b32 s{S_T}, s{S_T}, 1')
    I(f's_add_u32 s{S_T}, s{S_T}, 0x{WS_RE:x}')
    srd_off(S_RE, S_WSP, S_WSP + 1, f's{S_T}', CAP * 8)
    I(f's_lshl_b32 s{S_T}, s2, 11')
    I(f's_add_u32 s{S_T}, s{S_T}, 0x{WS_TAB:x}')
    srd_off(S_TAB, S_WSP, S_WSP + 1, f's{S_T}', (KREP - 1) * 0x80000 + 2048)
    I(f's_mul_i32 s{S_T}, s3, {NB*256}')
    I(f's_add_u32 s{S_T}, s{S_T}, 0x{WS_NT:x}')
    srd_off(S_NTS, S_WSP, S_WSP + 1, f's{S_T}', NB * 256)
    I(f's_add_u32 s{S_NTG}, s{S_WSP}, 0x{WS_NT:x}')
    I(f's_addc_u32 s{S_NTG+1}, s{S_WSP+1}, 0')
    I(f's_or_b32 s{S_NTG+1}, s{S_NTG+1}, 0x80000000')
    I(f's_mov_b32 s{S_NTG+2}, 0x400000')
    I(f's_mov_b32 s{S_NTG+3}, 0x00c00000')
    srd_off(S_DST, S_WSP, S_WSP + 1, '0x%x' % WS_RW, NWG * CAP * 4)
    if not LATE:
        srd_off(S_SRC, S_WSP, S_WSP + 1, '0x%x' % WS_RE, NWG * CAP * 8)
    for k in range(4):
        I(f'v_add_u32 v{X+1}, {1024*k}, v{V_TID}')
        I(f'v_cmp_gt_u32 {sp(S_MASK+2*k)}, s63, v{X+1}')
    I(f's_mov_b32 s{S_C}, 0x{f2u(2.0**-KH):x}')
    I(f's_mov_b32 s{S_C+1}, 0x{f2u(2.0**-KH):x}')
    I(f's_mov_b32 s{S_JB}, 0')
    I(f's_mov_b32 s{S_WID}, 128')
    I(f'v_and_b32 v{V_J4}, 7, v{V_LANE}')
    I(f'v_lshlrev_b32 v{V_J4}, 3, v{V_J4}')
    if CM:
        I(f'v_and_b32 v{X+1}, 56, v{V_LANE}')
        I(f's_and_b32 s{S_T}, s{S_W}, 1')
        I(f's_lshl_b32 s{S_T}, s{S_T}, 7')
        I(f's_lshr_b32 s{S_T+1}, s{S_W}, 1')
        I(f's_add_u32 s{S_T}, s{S_T}, s{S_T+1}')
    else:
        I(f'v_lshrrev_b32 v{X+1}, 3, v{V_LANE}')
        I(f's_lshl_b32 s{S_T}, s{S_W}, 4')
    I(f'v_add_u32 v{X+1}, s{S_T}, v{X+1}')
    I(f'v_lshlrev_b32 v{V_TAB+2}, 11, v{X+1}')
    I(f'v_mul_u32_u24 v{V_CB4}, {CAP*4}, v{X+1}')
    I(f'v_add_u32 v{V_CB4}, v{V_CB4}, v{V_J4}')
    I(f'v_and_b32 v{V_CH8}, 31, v{V_LANE}')
    I(f'v_lshlrev_b32 v{V_CH8}, 3, v{V_CH8}')
    I(f'v_add_u32 v{V_CHP}, {PT}, v{V_CH8}')
    phase0_addr()
    a5_const()
    if not F1:
        I(f's_waitcnt vmcnt({8 + NEE if ORDER == 0 else 0})')
        I('s_barrier')
    stamp(2)
    def late_loads():
        if LATE:
            for k in range(NS, 4):
                src_load(k)
        for k in range(NEE, 4):
            e_load(k)
        I(f'v_mov_b32 v12, 0')
        I(f'global_load_dword v10, v12, {sp(S_DBG)} sc1')
        if TCH:
            I(f'v_lshlrev_b32 v13, 13, v{V_LANE}')
            I(f'buffer_load_dword v60, v13, {sr4(S_RW)}, 0 offen')
            I(f'buffer_load_dword v61, v13, {sr4(S_RE)}, 0 offen')
            I(f'buffer_load_dword v62, v13, {sr4(S_TAB)}, 0 offen')
            I(f'buffer_load_dword v63, v13, {sr4(S_NTS)}, 0 offen')
        srd_off(S_EA, S_WSP, S_WSP + 1, '0x%x' % WS_TAB, KREP * 0x80000)
        if LATE:
            srd_off(S_SRC, S_WSP, S_WSP + 1, '0x%x' % WS_RE, NWG * CAP * 8)
    if not LATE:
        late_loads()
    if not F1:
        phase0a()
    I(f's_mov_b32 s{S_T}, -{NB}')
    I(f'v_mov_b32 v{X+1}, 4')
    BN, WD, RK = 28, 32, 36
    for k in range(4):
        I(f's_waitcnt vmcnt({((3 + NS + NEE if ORDER == 0 else 6 + NS + NEE) if LATE else (12 if ORDER == 0 else 15) + TCH) - k})')
        I(f's_mov_b64 exec, {sp(S_MASK+2*k)}')
        if k == 3:
            I('s_cbranch_execz L_B1')
        I(f'v_mul_u32_u24 v{BN+k}, 21400, v{64+k}')
        I(f'v_lshrrev_b32 v{BN+k}, 20, v{BN+k}')
        I(f'v_mad_i32_i24 v{WD+k}, v{BN+k}, s{S_T}, v{64+k}')
        I(f'v_lshlrev_b32 v{BN+k}, 2, v{BN+k}')
        I(f'ds_add_rtn_u32 v{RK+k}, v{BN+k}, v{X+1} offset:{HIST}')
        I(f'v_lshlrev_b32 v{WD+k}, 26, v{WD+k}')
    L('L_B1')
    I('s_mov_b64 exec, -1')
    if LATE:
        late_loads()
    I(f'v_add_u32 v{X+1}, {NTI}, v{X}')
    stamp(3)
    I({0: 's_waitcnt lgkmcnt(0)', 1: 's_waitcnt vmcnt(1) lgkmcnt(0)', 2: f's_waitcnt vmcnt({9 + TCH}) lgkmcnt(0)'}[ORDER])
    I('s_barrier')
    stamp(4)
    if not F1:
        I(f'ds_read_b128 v[112:115], v{X+1}')
    I(f's_cmp_lg_u32 s{S_W}, 0')
    I('s_cbranch_scc1 L_NOSCAN')
    I(f'ds_read_b128 v[96:99], v{X} offset:{HIST}')
    I('s_waitcnt lgkmcnt(0)')
    for k in range(4):
        I(f'v_add_u32 v{108+k}, 4, v{96+k}')
        I(f'v_and_b32 v{108+k}, -8, v{108+k}')
    I('v_add_u32 v101, v108, v109')
    I('v_add_u32 v102, v101, v110')
    I('v_add_u32 v103, v102, v111')
    I('v_mov_b32 v104, v103')
    wave_scan(104)
    I(f'v_readlane_b32 s{S_T+4}, v104, 63')
    I('v_sub_u32 v104, v104, v103')
    I(f'v_mov_b32 v100, {MISC+8}')
    I(f'v_mov_b32 v105, s{S_T+4}')
    I('ds_write_b32 v100, v105')
    I('v_add_u32 v105, v104, v108')
    I('v_add_u32 v106, v104, v101')
    I('v_add_u32 v107, v104, v102')
    I(f'ds_write_b128 v{X}, v[104:107] offset:{HBASE}')
    for k in range(4):
        I(f'v_lshl_or_b32 v{108+k}, v{96+k}, 16, v{104+k}')
    I(f'ds_write_b128 v{X}, v[108:111] offset:{HIST}')
    L('L_NOSCAN')
    if F1:
        phase0a()
    I('s_waitcnt lgkmcnt(0)')
    if not F1:
        I(f'buffer_store_dwordx4 v[112:115], v{X}, {sr4(S_NTS)}, 0 offen' + SC)
    if T1:
        I(f's_mul_i32 s{S_T+4}, s3, {NB*128}')
        I(f'v_mov_b32 v60, s{S_T+4}')
        I(f'buffer_load_dword v61, v60, {sr4(S_OUT)}, 0 offen')
    if not SRCL:
        I(f's_waitcnt vmcnt({4 + TCH + T1 if LATE else 6 - F1 + TCH + T1})')
        for k in range(4):
            I(f'v_lshl_or_b32 v{WD+k}, v{68+k}, 3, v{WD+k}')
    I('s_barrier')
    stamp(5)
    if F1:
        I(f'ds_read_b128 v[112:115], v{X+1}')
    for k in range(4):
        I(f's_mov_b64 exec, {sp(S_MASK+2*k)}')
        I(f'ds_read_b32 v{BN+k}, v{BN+k} offset:{HBASE}')
    if F1:
        I('s_mov_b64 exec, -1')
        I('s_waitcnt lgkmcnt(4)')
        I(f'buffer_store_dwordx4 v[112:115], v{X}, {sr4(S_NTS)}, 0 offen' + SC)
    if SRCL == 1:
        I(f's_waitcnt vmcnt({5 + TCH + T1})')
        for k in range(4):
            I(f'v_lshl_or_b32 v{WD+k}, v{68+k}, 3, v{WD+k}')
    if SRCL < 2:
        I(f's_waitcnt vmcnt({1 + TCH + T1})')
        I(f'v_readfirstlane_b32 s{S_TAG}, v10')
    for k in range(4):
        I(f's_mov_b64 exec, {sp(S_MASK+2*k)}')
        if k == 3:
            I('s_cbranch_execz L_B2')
        if SRCL == 2:
            assert LATE and not TCH and not T1
            order_ = [f's{j}' for j in range(NS)] + [f'e{j}' for j in range(NEE)] + [f's{j}' for j in range(NS, 4)] + [f'e{j}' for j in range(NEE, 4)] + ['tag', 'nt']
            need_ = max(order_.index(f's{k}'), order_.index(f'e{k}'))
            I(f's_waitcnt vmcnt({len(order_) - 1 - need_}) lgkmcnt({3 - k + 2*k})')
            I(f'v_lshl_or_b32 v{WD+k}, v{68+k}, 3, v{WD+k}')
        else:
            I(f's_waitcnt lgkmcnt({3 - k + 2*k})')
        I(f'v_add_u32 v{RK+k}, v{BN+k}, v{RK+k}')
        I(f'v_add_u32 v{BN+k}, v{RK+k}, v{RK+k}')
        I(f'ds_write_b32 v{RK+k}, v{WD+k} offset:{STGW}')
        I(f'ds_write_b64 v{BN+k}, v[{72+2*k}:{73+2*k}] offset:{STGE}')
    L('L_B2')
    I('s_mov_b64 exec, -1')
    if SRCL == 2:
        I('s_waitcnt vmcnt(1)')
        I(f'v_readfirstlane_b32 s{S_TAG}, v10')
    I(f'v_mov_b32 v13, {MISC+8}')
    I(f'ds_read_b32 v13, v13')
    I(f's_mov_b32 s{S_T}, 0x40000')
    L('L_TAGP')
    I(f's_cmp_lg_u32 s{S_TAG}, 0')
    I('s_cbranch_scc1 L_TAGD')
    I(f'v_mov_b32 v12, 0')
    I(f'global_load_dword v10, v12, {sp(S_DBG)} sc1')
    I('s_waitcnt vmcnt(0)')
    I(f'v_readfirstlane_b32 s{S_TAG}, v10')
    I(f's_sub_u32 s{S_T}, s{S_T}, 1')
    I('s_cbranch_scc1 L_END')
    I('s_branch L_TAGP')
    L('L_TAGD')
    I(f'v_add_u32 v{X+2}, 16384, v{X}')
    I(f'v_lshlrev_b32 v12, 3, v{V_LANE}')
    I(f's_mul_i32 s{S_TAG2}, s{S_TAG}, 0x9e3779b1')
    I(f's_and_b32 s{S_TAG2}, s{S_TAG2}, 0x{TAGM:x}')
    I('s_waitcnt lgkmcnt(0)')
    I(f'v_readfirstlane_b32 s{S_T}, v13')
    I('s_barrier')
    I(f's_add_u32 s{S_T}, s{S_T}, 127')
    I(f's_and_b32 s{S_RW+2}, s{S_T}, -128')
    I(f's_lshl_b32 s{S_RE+2}, s{S_RW+2}, 1')
    stamp(6)
    if opt('early', 0):
        I(f'ds_read_b64 v[92:93], v12 offset:{HIST}')
        I(f'ds_read_b64 v[94:95], v12 offset:{HIST+512}')
        I(f'v_lshlrev_b32 v60, 4, v{V_LANE}')
        I('s_waitcnt lgkmcnt(0)')
        for k in range(4):
            I(f'v_or_b32 v{120+2*k}, s{S_TAG2}, v{92+k}')
            I(f'v_mov_b32 v{121+2*k}, s{S_TAG}')
        I(f's_cmp_lg_u32 s{S_W}, 0')
        I('s_cbranch_scc1 L_EARLY')
        I(f'buffer_store_dwordx4 v[120:123], v60, {sr4(S_TAB)}, 0 offen' + SC)
        I(f'buffer_store_dwordx4 v[124:127], v60, {sr4(S_TAB)}, 0 offen offset:1024' + SC)
        L('L_EARLY')
    I(f'ds_read_b128 v[64:67], v{X} offset:{STGW}')
    I(f'ds_read_b128 v[68:71], v{X} offset:{STGE}')
    I(f'ds_read_b128 v[72:75], v{X} offset:{STGE+16384}')
    I(f'ds_read_b64 v[92:93], v12 offset:{HIST}')
    I(f'ds_read_b64 v[94:95], v12 offset:{HIST+512}')
    I('s_waitcnt lgkmcnt(4)')
    I(f'buffer_store_dwordx4 v[64:67], v{X}, {sr4(S_RW)}, 0 offen' + SC)
    I('s_waitcnt lgkmcnt(3)')
    I(f'buffer_store_dwordx4 v[68:71], v{X}, {sr4(S_RE)}, 0 offen' + SC)
    I('s_waitcnt lgkmcnt(2)')
    I(f'buffer_store_dwordx4 v[72:75], v{X+2}, {sr4(S_RE)}, 0 offen' + SC)
    I('s_waitcnt lgkmcnt(0)')
    for k in range(4):
        I(f'v_or_b32 v{120+2*k}, s{S_TAG2}, v{92+k}')
        I(f'v_mov_b32 v{121+2*k}, s{S_TAG}')
    PF1 = opt('pf1', 0)
    if PF1:
        nt_prefetch(12, 49 - PF1, PF1, 61)
    pre = opt('pre', 'xbc').replace('0', '')
    def piece(c):
        if c == 'x':
            zregs()
            zero_range(EXTRA, 16384, X + 2, X)
            fill_desca()
        elif c == 'b':
            phase0b()
        elif c == 'c':
            phase0c()
    for c in pre:
        piece(c)
    stamp(7)
    I(f's_lshl_b32 s{S_T+1}, s3, 3')
    I(f'v_add_u32 v76, s{S_T+1}, v{V_TAB+2}')
    I(f'v_add_u32 v77, {RSTEP*2048}, v76')
    I(f'v_lshlrev_b32 v60, 4, v{V_LANE}')
    for r in range(2):
        I(f's_mov_b64 {sp(S_MASK+2*r)}, -1')
    I(f's_waitcnt vmcnt({1 if PF1 else 0})')
    stamp(8)
    I('s_barrier')
    stamp(9)
    I(f's_cmp_lg_u32 s{S_W}, {99 if opt("early", 0) else 0}')
    I('s_cbranch_scc1 L_POLL0')
    for k in range(KREP - 1, -1, -1):
        I(f's_mov_b32 s{S_T}, 0x{k*0x80000:x}')
        I(f'buffer_store_dwordx4 v[120:123], v60, {sr4(S_TAB)}, s{S_T} offen' + SC)
        I(f'buffer_store_dwordx4 v[124:127], v60, {sr4(S_TAB)}, s{S_T} offen offset:1024' + SC)
    L('L_POLL0')
    PF2 = opt('pf2', 0)
    if PF2:
        nt_prefetch(61, 49 - PF2, PF2, 63)
    EP = opt('ep', 0)
    for r in range(2 if EP else 0):
        I(f'buffer_load_dwordx2 {p(64+2*r)}, v{76+r}, {sr4(S_EA)}, 0 offen' + LSC)
    for c in 'xbc':
        if c not in pre:
            piece(c)
    fill_words()
    zregs()
    zero_range(LE, CNT - LE, X + 2, X)
    ptr_consts()
    I(f's_mov_b32 s{S_T}, 0x40000')
    I(f's_mov_b32 s{S_T+1}, 0x{TAGM:x}')
    if opt('ps', 0):
        I(f's_sleep {opt("ps", 0)}')
    if EP:
        I('s_branch L_POLLC')
    L('L_POLL')
    for r in range(2):
        I(f's_mov_b64 exec, {sp(S_MASK+2*r)}')
        I(f'buffer_load_dwordx2 {p(64+2*r)}, v{76+r}, {sr4(S_EA)}, 0 offen' + LSC)
    L('L_POLLC')
    for r in range(2):
        I(f's_waitcnt vmcnt({1-r})')
        I(f's_mov_b64 exec, {sp(S_MASK+2*r)}')
        I(f'v_xor_b32 v{V_TAB+r}, s{S_TAG2}, v{64+2*r}')
        I(f'v_xor_b32 v{65+2*r}, s{S_TAG}, v{65+2*r}')
        I(f'v_and_or_b32 v{65+2*r}, v{V_TAB+r}, s{S_T+1}, v{65+2*r}')
        I(f'v_cmp_ne_u32 {sp(S_MASK+2*r)}, 0, v{65+2*r}')
    I(f's_or_b64 {sp(S_T+2)}, {sp(S_MASK)}, {sp(S_MASK+2)}')
    I('s_cbranch_scc0 L_POLLED')
    I(f's_sub_u32 s{S_T}, s{S_T}, 1')
    I('s_cbranch_scc1 L_END')
    if opt('sleep', 0):
        I(f's_sleep {opt("sleep", 0)}')
    I('s_branch L_POLL')
    L('L_POLLED')
    I('s_mov_b64 exec, -1')
    stamp(10)
    def RB(s_): return 64 + 8 * (s_ >> 1)
    def MK(s_): return sp(S_MASK + 2 * s_)
    AD = X
    L('L_PASS')
    I(f'v_add_u32 v{X+10}, s{S_JB}, v{V_CB4}')
    I(f'v_add_u32 v{X+8}, s{S_JB}, v{V_J4}')
    SDW = 'src0_sel:DWORD src1_sel:WORD_1'
    for r in range(2):
        I(f'v_add_u32_sdwa v{X+r}, v{V_TAB+r}, v{X+10} dst_sel:DWORD dst_unused:UNUSED_PAD src0_sel:WORD_0 src1_sel:DWORD')
        I(f'v_cmp_lt_u32_sdwa {MK(2*r)}, v{X+8}, v{V_TAB+r} {SDW}')
        if r:
            I(f'v_add_u32 v{X+r}, {RSTEP*CAP*4}, v{X+r}')
        I(f'v_add_u32 v{X+2+r}, v{X+r}, v{X+r}')
        I(f's_mov_b64 exec, {MK(2*r)}')
        I(f'buffer_load_dwordx2 {p(RB(2*r)+4)}, v{X+r}, {sr4(S_DST)}, 0 offen' + LSC)
        I(f'buffer_load_dwordx4 {vr(RB(2*r),4)}, v{X+2+r}, {sr4(S_SRC)}, 0 offen' + LSC)
        I('s_mov_b64 exec, -1')
    I(f'v_add_u32 v{X+9}, s{S_WID}, v{X+8}')
    I(f'v_add_u32 v{X+10}, 4, v{X+8}')
    I(f's_cmp_eq_u32 s{S_WID}, 128')
    I(f's_cselect_b32 s{S_T}, 64, 0x10000')
    I(f'v_add_u32 v{X+8}, s{S_T}, v{X+8}')
    for r in range(2):
        I(f'v_cmp_lt_u32_sdwa {MK(4+2*r)}, v{X+8}, v{V_TAB+r} {SDW}')
        I(f'v_cmp_lt_u32_sdwa {MK(2*r+1)}, v{X+10}, v{V_TAB+r} {SDW}')
    I(f'v_add_u32 v{X+8}, 4, v{X+8}')
    for r in range(2):
        I(f's_mov_b64 exec, {MK(4+2*r)}')
        I(f'buffer_load_dwordx2 {p(RB(4+2*r)+4)}, v{X+r}, {sr4(S_DST)}, 0 offen offset:64' + LSC)
        I(f'buffer_load_dwordx4 {vr(RB(4+2*r),4)}, v{X+2+r}, {sr4(S_SRC)}, 0 offen offset:128' + LSC)
    I('s_mov_b64 exec, -1')
    for r in range(2):
        I(f'v_cmp_lt_u32_sdwa {MK(5+2*r)}, v{X+8}, v{V_TAB+r} {SDW}')
    I(f'v_cmp_lt_u32_sdwa vcc, v{X+9}, v{V_TAB} {SDW}')
    I(f'v_cmp_lt_u32_sdwa {sp(S_T)}, v{X+9}, v{V_TAB+1} {SDW}')
    I(f'v_mov_b32 v{X+8}, 4')
    I(f's_or_b64 vcc, vcc, {sp(S_T)}')
    I(f's_cbranch_scc0 L_NOMORE')
    I(f'v_mov_b32 v{X+9}, {MISC}')
    I(f'ds_write_b32 v{X+9}, v{X+8}')
    L('L_NOMORE')
    stamp(11)
    e('    ; count')
    for s_ in range(8):
        if s_ >= 4:
            I(f's_mov_b64 exec, {MK(s_)}')
            I(f's_cbranch_execz L_C{s_}')
        if s_ % 2 == 0:
            I(f's_waitcnt vmcnt({7 - s_})')
        if s_ < 4:
            I(f's_mov_b64 exec, {MK(s_)}')
        I(f'v_lshrrev_b32 v{AD+s_}, 24, v{RB(s_)+4+(s_&1)}')
        if opt('safe', 0):
            I(f'v_and_b32 v{AD+s_}, 0xfc, v{AD+s_}')
        I(f'ds_add_rtn_u32 v{RB(s_)+6+(s_&1)}, v{AD+s_}, v{X+8} offset:{CNT}')
        if s_ >= 4:
            L(f'L_C{s_}')
    I('s_mov_b64 exec, -1')
    I(f'v_lshlrev_b32 v{X+8}, 2, v{V_LANE}')
    I(f'v_mov_b32 v{X+9}, {MISC}')
    I(f's_mov_b32 s{S_T+2}, 0x1fff8')
    I('s_waitcnt lgkmcnt(0)')
    I('s_barrier')
    stamp(12)
    if NPFM in (2, 3, 4):
        nt_prefetch(60, dst=62)
        I(f's_mov_b32 s{S_T+2}, 0x1fff8')
    NG, GS, MI = X + 10, X + 11, X + 12
    I(f'ds_read_b32 v{NG}, v{X+8} offset:{CNT}')
    I(f'ds_read_b32 v{X+9}, v{X+9}')
    I('s_waitcnt lgkmcnt(1)')
    I(f'v_add_u32 v{NG}, 28, v{NG}')
    I(f'v_and_b32 v{NG}, 0xffffffe0, v{NG}')
    I(f'v_mov_b32 v{GS}, v{NG}')
    wave_scan(GS)
    I(f'v_readlane_b32 s{S_T}, v{GS}, 63')
    I(f'v_sub_u32 v{GS}, v{GS}, v{NG}')
    if PROF == 5:
        stamp(19)
    I(f'ds_write_b32 v{X+8}, v{GS} offset:{BASET}')
    for s_ in range(8):
        I(f's_mov_b64 exec, {MK(s_)}')
        I(f'ds_read_b32 v{AD+s_}, v{AD+s_} offset:{BASET}')
    I('s_mov_b64 exec, -1')
    I(f'v_readfirstlane_b32 s{S_MORE}, v{X+9}')
    out.insert(len(out) - 1, '    s_waitcnt lgkmcnt(9)')
    I(f's_lshr_b32 s{S_T}, s{S_T}, 5')
    I(f's_cmp_eq_u32 s{S_WID}, 128')
    I(f's_cselect_b32 s{S_T+1}, {MAXG}, -1')
    I(f's_cmp_gt_u32 s{S_T}, s{S_T+1}')
    I('s_cbranch_scc1 L_OVERFLOW')
    def place(tag):
        I(f's_waitcnt vmcnt({NPF}) lgkmcnt(0)')
        for s_ in range(8):
            wd, rk, ee = RB(s_) + 4 + (s_ & 1), RB(s_) + 6 + (s_ & 1), RB(s_) + 2 * (s_ & 1)
            I(f's_mov_b64 exec, {MK(s_)}')
            if s_ >= 4:
                I(f's_cbranch_execz L_P{tag}{s_}')
            I(f'v_add_u32 v{AD+s_}, v{AD+s_}, v{rk}')
            I(f'v_and_b32 v{wd}, s{S_T+2}, v{wd}')
            I(f'v_add_u32 v{rk}, v{AD+s_}, v{AD+s_}')
            I(f'ds_write_b32 v{AD+s_}, v{wd} offset:{LS}')
            I(f'ds_write_b64 v{rk}, {p(ee)} offset:{LE}')
            if s_ >= 4:
                L(f'L_P{tag}{s_}')
        I('s_mov_b64 exec, -1')
    if PROF == 5:
        stamp(20)
    SWAP = opt('swap', 0)
    if SWAP:
        I(f's_bitcmp1_b32 s{S_W}, {SWAP}')
        I('s_cbranch_scc0 L_DFIRST')
        place('a')
        L('L_DFIRST')
    SB_, SR_, SG0 = S_T + 4, S_T + 5, S_T + 6
    I(f's_add_u32 s{S_T}, s{S_T}, 3')
    I(f's_lshr_b32 s{S_T}, s{S_T}, 2')
    I(f's_lshr_b32 s{SB_}, s{S_T}, 4')
    I(f's_and_b32 s{SR_}, s{S_T}, 15')
    I(f's_add_u32 s{S_T+1}, s{SB_}, 1')
    I(f'v_cvt_f32_u32 v{MI}, s{S_T+1}')
    I(f'v_cvt_f32_u32 v{MI+1}, s{SB_}')
    I(f'v_rcp_f32 v{MI}, v{MI}')
    I(f'v_rcp_f32 v{MI+1}, v{MI+1}')
    I(f's_mul_i32 s{SG0}, s{SR_}, s{S_T+1}')
    I(f's_lshl_b32 s{SG0}, s{SG0}, 2')
    I(f'v_lshrrev_b32 v{GS}, 5, v{GS}')
    I(f'v_mul_f32 v{MI}, 0x47800000, v{MI}')
    I(f'v_mul_f32 v{MI+1}, 0x47800000, v{MI+1}')
    I(f'v_lshrrev_b32 v{NG}, 5, v{NG}')
    I(f'v_cvt_u32_f32 v{MI}, v{MI}')
    I(f'v_cvt_u32_f32 v{MI+1}, v{MI+1}')
    I(f's_cmp_lt_u32 s{S_W}, s{SR_}')
    I(f's_cselect_b32 s{S_L}, s{S_T+1}, s{SB_}')
    I(f'v_add_u32 v{MI}, 2, v{MI}')
    I(f'v_add_u32 v{MI+1}, 2, v{MI+1}')
    I(f's_min_u32 s{S_T}, s{S_W}, s{SR_}')
    I(f's_mul_i32 s{S_T+3}, s{S_W}, s{SB_}')
    I(f's_add_u32 s{S_T+3}, s{S_T+3}, s{S_T}')
    I(f's_sub_u32 s{S_T+1}, 0, s{S_T+1}')
    I(f's_sub_u32 s{SB_}, 0, s{SB_}')
    I(f's_lshl_b32 s{SR_}, s{SR_}, 2')
    D0, D1, D2, D3, NR = 96, 97, 98, 99, 100
    I(f'v_lshlrev_b32 v{NR}, 8, v{V_LANE}')
    I(f'v_add_u32 v{NR+1}, {ACCN}, v{NR}')
    I(f's_mov_b32 s{S_T}, s{S_W}')
    L('L_DLOOP')
    I(f'v_cmp_lt_u32 vcc, s{S_T}, v{NG}')
    I('s_and_b64 exec, exec, vcc')
    I('s_cbranch_execz L_DEND')
    I(f'v_add_u32 v{D0}, s{S_T}, v{GS}')
    I(f'v_subrev_u32 v{D1}, s{SG0}, v{D0}')
    I(f'v_cmp_gt_u32 vcc, s{SG0}, v{D0}')
    I(f'v_mul_u32_u24 v{D2}, v{D0}, v{MI}')
    I(f'v_mul_u32_u24 v{D3}, v{D1}, v{MI+1}')
    I(f'v_lshrrev_b32 v{D2}, 16, v{D2}')
    I(f'v_lshrrev_b32 v{D3}, 16, v{D3}')
    I(f'v_mad_i32_i24 v{D0}, v{D2}, s{S_T+1}, v{D0}')
    I(f'v_mad_i32_i24 v{D1}, v{D3}, s{SB_}, v{D1}')
    I(f'v_add_u32 v{D3}, s{SR_}, v{D3}')
    I(f'v_cndmask_b32 v{D0}, v{D1}, v{D0}, vcc')
    I(f'v_cndmask_b32 v{D2}, v{D3}, v{D2}, vcc')
    I(f'v_cmp_le_u32 vcc, s{S_T}, v{D0}')
    I(f'v_lshl_add_u32 v{D0}, v{D0}, 6, v{D2}')
    I(f'v_lshlrev_b32 v{D1}, 8, v{D2}')
    I(f'v_lshlrev_b32 v{D0}, 2, v{D0}')
    I(f'v_add_u32 v{D1}, {EXTRA}, v{D1}')
    I(f'v_add_u32 v{D3}, {DESCA}, v{D0}')
    I(f'v_cndmask_b32 v{D1}, v{D1}, v{NR+1}, vcc')
    I(f'ds_write_b32 v{D0}, v{NR} offset:{DESCP}')
    I(f'ds_write_b32 v{D3}, v{D1}')
    I(f's_add_u32 s{S_T+7}, s{S_T}, 1')
    I(f'v_cmp_eq_u32 vcc, s{S_T+7}, v{NG}')
    I(f's_and_saveexec_b64 {sp(S_EX)}, vcc')
    I(f'ds_write_b32 v{X+8}, v{D2} offset:{NINFO+256}')
    I(f's_mov_b64 exec, {sp(S_EX)}')
    I(f's_cmp_lg_u32 s{S_T}, 0')
    I('s_cbranch_scc1 L_DNF')
    I(f'ds_write_b32 v{X+8}, v{D2} offset:{NINFO}')
    L('L_DNF')
    I(f's_add_u32 s{S_T}, s{S_T}, 16')
    I('s_branch L_DLOOP')
    L('L_DEND')
    I('s_mov_b64 exec, -1')
    I(f's_lshl_b32 s{S_T}, s{S_T+3}, 7')
    I(f's_lshl_b32 s{S_T+1}, s{S_L}, 5')
    I(f'v_mov_b32 v{D0}, s{S_T}')
    I(f'v_mad_u32_u24 v{V_PS0}, v{V_PS1}, s{S_T+1}, v{D0}')
    I(f'v_add_u32 v{D0}, v{D0}, v{D0}')
    I(f'v_add_u32 v{V_PS1}, s{S_T+1}, v{V_PS0}')
    I(f'v_add_u32 v{V_PE}, v{V_PE}, v{D0}')
    I(f's_lshl_b32 s{S_T+1}, s{S_L}, 6')
    I(f'v_mad_u32_u24 v{V_PE}, v{V_VAP}, s{S_T+1}, v{V_PE}')
    if opt('safe', 0):
        I(f's_min_u32 s{S_L}, s{S_L}, 9')
        I(f's_mov_b32 s{S_MORE}, 0')
    I(f's_mov_b32 s{S_CNT}, s{S_L}')
    if SWAP:
        I(f's_bitcmp1_b32 s{S_W}, {SWAP}')
        I('s_cbranch_scc1 L_PDONE')
    if PROF == 5:
        stamp(21)
    place('b')
    L('L_PDONE')
    stamp(13)
    I('s_waitcnt lgkmcnt(0)')
    I('s_barrier')
    stamp(14)
    I(f's_cmp_eq_u32 s{S_L}, 0')
    I('s_cbranch_scc1 L_FOLD')
    lg = Lg()
    FP = opt('fp', 0)
    if FP:
        for lvl in (3, 2, 1):
            I(f's_cmp_lt_u32 s{S_W}, {4 * (4 - lvl)}')
            I(f's_cbranch_scc0 L_FP{lvl}')
            I(f's_setprio {lvl}')
            I('s_branch L_FPD')
            L(f'L_FP{lvl}')
        L('L_FPD')
    s_reads(lg, 0)
    lg.op('dP', f'ds_read_b64 {p(V_VAP)}, v{V_PD}')
    lg.op('dA', f'ds_read_b64 {p(V_VAA[0])}, v{V_PD} offset:{DESCA-DESCP}')
    lg.op('e', f'ds_read_b64 {p(A5)}, v{V_PE}')
    lg.need('S0', 'S1', 'S2', 'S3')
    s_safe()
    STG_ = [int(x) for x in opt('stag', '0,0,0').split(',')]
    for gi, d in enumerate(STG_):
        if d:
            I(f's_cmp_ge_u32 s{S_W}, {4 * (gi + 1)}')
            I(f's_cbranch_scc0 L_ST{gi}')
            I(f's_sleep {d}')
            L(f'L_ST{gi}')
    for n in range(2):
        for i in range(16):
            I(gload(n, i))
        if n == 0 and FP == 2:
            I('s_setprio 0')
    s_reads(lg, 1)
    I(f'v_mov_b32 v{V_C8P}, v{V_CH8}')
    I(f'v_mov_b32 v{V_C8P+1}, v{V_CH8}')
    I(f'v_mov_b32 v{V_CPP}, v{V_CHP}')
    I(f'v_mov_b32 v{V_CPP+1}, v{V_CHP}')
    if M8:
        I(f'v_mov_b32 v{V_SCP}, 0x{f2u(2.0**KH):x}')
        I(f'v_mov_b32 v{V_SCP+1}, 0x{f2u(2.0**KH):x}')
    I(f's_mov_b32 s{S_BP0}, 64')
    I(f's_mov_b32 s{S_BP0+1}, 64')
    I(f's_mov_b32 s{S_BP1}, 128')
    I(f's_mov_b32 s{S_BP1+1}, 512')
    lg.need('dP', 'dA')
    va_add(V_VAP, V_VAA[0])
    lg.op('P0a', f'ds_read_b32 v{B5[0]+2}, v{V_VAP}')
    lg.op('P0b', f'ds_read_b32 v{B5[0]+3}, v{V_VAP+1}')
    lg.op('P1a', f'ds_read_b32 v{B5[1]+2}, v{V_VAP} offset:4')
    lg.op('P1b', f'ds_read_b32 v{B5[1]+3}, v{V_VAP+1} offset:4')
    I(f's_cmp_eq_u32 s{S_CNT}, 1')
    I(f's_cselect_b64 {sp(S_LDX)}, 0, {LDXV}')
    I('s_waitcnt lgkmcnt(0)')
    lg.q = []
    if opt('prio', 3):
        I('s_setprio 3')
    stamp(15)
    rstamp(28)
    half(lg, 0, 0, 0, False)
    if PROF == 4:
        stamp(19)
        lg.q = []
    state0 = list(lg.q)
    def step(par, uo):
        prio(f'm{par}', 1)
        half(lg, 1, par, uo)
        if PROF == 4:
            I('s_memtime s[98:99]')
            I(f's_sub_u32 s92, s{S_L}, s{S_CNT}')
            I(f's_add_u32 m0, s92, 20')
            I('s_waitcnt lgkmcnt(0)')
            I(f'v_writelane_b32 v{V_PROF}, s98, m0')
        I(f's_sub_u32 s{S_CNT}, s{S_CNT}, 1')
        I(f's_cmp_eq_u32 s{S_CNT}, 0')
        I(f's_cbranch_scc1 L_FIN{par}')
        I(f's_cmp_eq_u32 s{S_CNT}, 1')
        I(f's_cselect_b64 {sp(S_LDX)}, 0, {LDXV}')
        prio(f'{par}')
        half(lg, 0, par ^ 1, uo + 1)
    def loop_body():
        step(0, 0)
        step(1, 1)
        I(f'v_lshl_add_u64 {p(V_PS0)}, {p(V_PS0)}, 0, {sp(S_BP0)}')
        I(f'v_lshl_add_u64 {p(V_PE)}, {p(V_PE)}, 0, {sp(S_BP1)}')
        I('s_branch L_LOOP')
    mark = len(out)
    loop_body()
    del out[mark:]
    qb = list(lg.q)
    n = min(len(qb), len(state0))
    assert PROF == 4 or qb[len(qb)-n:] == state0[len(state0)-n:], (state0, qb)
    lg.q = list(qb if len(qb) >= len(state0) else state0)
    e('.p2align 3')
    L('L_LOOP')
    mark = len(out)
    loop_body()
    drop = opt('drop', '')
    if drop:
        body = out[mark:]
        keep = []
        for l in body:
            t = l.strip()
            if 'v' in drop and (t.startswith('buffer_load') or t.startswith('s_mov_b64 exec') or 'vmcnt' in t):
                continue
            if 'l' in drop and (t.startswith('ds_') or 'lgkmcnt' in t):
                continue
            if 'm' in drop and t.startswith('v_mfma'):
                continue
            if 'n' in drop and t.startswith('s_nop'):
                continue
            keep.append(l)
        out[mark:] = keep
    assert lg.q == qb, (lg.q, qb)
    print('loop entry queue', state0, 'back edge queue', qb, file=sys.stderr)
    for pr in range(2):
        L(f'L_FIN{pr}')
        if M8:
            I(f'v_pk_mul_f32 {p(V_T01N)}, {p(V_T01N)}, {p(V_T23D)}')
            I(f'v_pk_mul_f32 {p(V_T23D)}, {p(V_T01D)}, {p(V_T23D)}')
            I(f'v_pk_fma_f32 {p(V_T01N)}, {p(V_T23N)}, {p(V_T01D)}, {p(V_T01N)}')
            I(f'v_rcp_f32 v{V_T23D}, v{V_T23D}')
            I(f'v_rcp_f32 v{V_T23D+1}, v{V_T23D+1}')
            I('s_waitcnt lgkmcnt(0)')
            I(f'v_pk_fma_f32 {p(V_MB)}, {p(V_T01N)}, {p(V_T23D)}, {p(V_MB)}')
        else:
            for r_ in (V_T01D, V_T01D + 1, V_T23D, V_T23D + 1):
                I(f'v_rcp_f32 v{r_}, v{r_}')
            I('s_waitcnt lgkmcnt(0)')
            I(f'v_pk_fma_f32 {p(V_MB)}, {p(V_T01N)}, {p(V_T01D)}, {p(V_MB)}')
            I(f'v_pk_fma_f32 {p(V_MB)}, {p(V_T23N)}, {p(V_T23D)}, {p(V_MB)}')
        acc_write(Lg(), V_VAA[pr])
        if pr == 0:
            I('s_branch L_FOLD')
    L('L_FOLD')
    stamp(16)
    FL = opt('fl', 0)
    I(f'v_lshrrev_b32 v{X}, 4, v{V_TID}')
    I(f'v_and_b32 v{X+1}, 15, v{V_TID}')
    if FL:
        I(f'v_lshlrev_b32 v{X+6}, 3, v{X+1}')
        I(f'v_lshrrev_b32 v{X+2}, 3, v{X+1}')
        I(f'v_and_b32 v{X+1}, 7, v{X+1}')
        I(f'v_lshlrev_b32 v{X+1}, 5, v{X+1}')
        I(f'v_lshl_add_u32 v{X+1}, v{X+2}, 2, v{X+1}')
    else:
        I(f'v_lshlrev_b32 v{X+6}, 2, v{X+1}')
        I(f'v_lshlrev_b32 v{X+1}, 4, v{X+1}')
    I(f'v_lshl_add_u32 v{X+2}, v{X}, 8, v{X+1}')
    I(f'v_add_u32 v{X+2}, {ACCN}, v{X+2}')
    I(f'v_add_u32 v{X+1}, {EXTRA}, v{X+1}')
    def rd4(dst, ad):
        if FL:
            I(f'ds_read2_b32 v[{dst}:{dst+1}], v{ad} offset0:0 offset1:2')
            I(f'ds_read2_b32 v[{dst+2}:{dst+3}], v{ad} offset0:4 offset1:6')
        else:
            I(f'ds_read_b128 v[{dst}:{dst+3}], v{ad}')
    I(f'v_lshlrev_b32 v{X+3}, 2, v{X}')
    I(f's_mul_i32 s{S_T+4}, s3, {NB*128}')
    I(f'v_lshl_add_u32 v{X+6}, v{X}, 7, v{X+6}')
    I(f'v_add_u32 v{X+6}, s{S_T+4}, v{X+6}')
    I(f'v_mov_b32 v{X+7}, 0')
    I(f'ds_read_b32 v{X+4}, v{X+3} offset:{NINFO}')
    I(f'ds_read_b32 v{X+5}, v{X+3} offset:{NINFO+256}')
    I(f's_mov_b32 s{S_T+2}, 0x{f2u(2.0**-(SV+KH)):x}')
    I(f's_mov_b32 s{S_T+3}, 0x{f2u(-LOG2E * 2.0**-(SV+KH)):x}')
    I(f'v_cmp_gt_u32 vcc, {NB*16}, v{V_TID}')
    I('s_waitcnt vmcnt(0) lgkmcnt(0)')
    I('s_barrier')
    stamp(17)
    rstamp(29)
    if PROF:
        I(f'v_writelane_b32 v{V_PROF}, s{S_L}, 27')
    I(f's_and_saveexec_b64 {sp(S_EX)}, vcc')
    I('s_cbranch_execz L_FDONE')
    rd4(64, X + 2)
    I(f's_mov_b64 {sp(S_T)}, exec')
    L('L_FLOOP')
    I(f'v_cmp_lt_u32 vcc, v{X+4}, v{X+5}')
    I('s_and_b64 exec, exec, vcc')
    I('s_cbranch_execz L_FLEND')
    I(f'v_add_u32 v{X+4}, 1, v{X+4}')
    I(f'v_lshl_add_u32 v{X+7}, v{X+4}, 8, v{X+1}')
    rd4(72, X + 7)
    I('s_waitcnt lgkmcnt(0)')
    for k in range(4):
        I(f'v_add_f32 v{64+k}, v{64+k}, v{72+k}')
    I('s_branch L_FLOOP')
    L('L_FLEND')
    I(f's_mov_b64 exec, {sp(S_T)}')
    I('s_waitcnt lgkmcnt(0)')
    I(f's_cmp_lg_u32 s{S_MORE}, 0')
    I('s_cbranch_scc1 L_WB')
    for k in range(4):
        I(f'v_mul_f32 v{72+k}, s{S_T+3}, v{64+k}')
    for k in range(4):
        I(f'v_exp_f32 v{72+k}, v{72+k}')
    for k in range(4):
        I(f'v_mul_f32 v{64+k}, s{S_T+2}, v{64+k}')
    for k in range(4):
        I(f'v_add_f32 v{72+k}, 1.0, v{72+k}')
    for k in range(4):
        I(f'v_rcp_f32 v{72+k}, v{72+k}')
    I('s_nop 0')
    for k in range(4):
        I(f'v_mul_f32 v{64+k}, v{64+k}, v{72+k}')
    if FL:
        I('v_cvt_pk_bf16_f32 v80, v64, v65')
        I('v_cvt_pk_bf16_f32 v81, v66, v67')
        I(f'buffer_store_dwordx2 v[80:81], v{X+6}, {sr4(S_OUT)}, 0 offen' + OSC)
    else:
        I('v_cvt_pk_bf16_f32 v80, v64, v66')
        I('v_cvt_pk_bf16_f32 v81, v65, v67')
        I(f'buffer_store_dword v80, v{X+6}, {sr4(S_OUT)}, 0 offen' + OSC)
        I(f'buffer_store_dword v81, v{X+6}, {sr4(S_OUT)}, 0 offen offset:64' + OSC)
    stamp(18)
    prof_store()
    diag_end()
    I('s_endpgm')
    L('L_WB')
    if FL:
        I(f'ds_write2_b32 v{X+2}, v64, v65 offset0:0 offset1:2')
        I(f'ds_write2_b32 v{X+2}, v66, v67 offset0:4 offset1:6')
    else:
        I(f'ds_write_b128 v{X+2}, v[64:67]')
    L('L_FDONE')
    I('s_mov_b64 exec, -1')
    I(f's_cmp_eq_u32 s{S_MORE}, 0')
    I('s_cbranch_scc1 L_QUIT')
    I(f's_add_u32 s{S_JB}, s{S_JB}, s{S_WID}')
    I('s_branch L_REFILL')
    L('L_OVERFLOW')
    I(f's_mov_b32 s{S_WID}, 64')
    L('L_REFILL')
    I('s_waitcnt vmcnt(0) lgkmcnt(0)')
    I('s_barrier')
    fill_zero()
    fill_words()
    ptr_consts()
    I('s_waitcnt lgkmcnt(0)')
    I('s_barrier')
    I('s_branch L_PASS')
    L('L_QUIT')
    prof_store()
    L('L_END')
    I('s_endpgm')


DOC = """
"""
hdr = open('standalone__edge_featured_mpnn_egc__graph.s.ref').read().split('\n')
for line in hdr:
    if line.startswith('; Override'):
        break
    e(line)
e(f'; @launch grid=({NWG},1,1) block=(1024,1,1) lds={LDS_BYTES}')
e('.amdgcn_target "amdgcn-amd-amdhsa--gfx950"')
for line in DOC.strip().split('\n'):
    e(line)
e('.text')
gen()
e('.section .rodata,"a"')
e('.p2align 6')
e(f'.amdhsa_kernel {KNAME}')
e('  .amdhsa_next_free_vgpr 128')
e('  .amdhsa_next_free_sgpr 102')
e('  .amdhsa_accum_offset 128')
e('  .amdhsa_group_segment_fixed_size 0')
e('  .amdhsa_kernarg_size 80')
e('  .amdhsa_user_sgpr_count 2')
e('  .amdhsa_user_sgpr_kernarg_segment_ptr 1')
e('  .amdhsa_system_sgpr_workgroup_id_x 1')
e('  .amdhsa_float_denorm_mode_32 3')
e('.end_amdhsa_kernel')
open(sys.argv[1], 'w').write('\n'.join(x for x in out if x is not None) + '\n')
```

```python
import sys, struct

OPT = dict(a.split('=') for a in sys.argv[2:] if '=' in a)
def opt(name, default):
    return type(default)(OPT.get(name, default))

KNAME = 'standalone__edge_featured_mpnn_egc__graph_kernel'
N_NODES = 12500
E_EDGES = 800000
NB = 49
NWG = 256
CH = 3136
WS_RW = 0
WS_RE = 0x00400000
CAP = CH + 256
WS_TAB = 0x00B00000
WS_NT = 0x00C00000
WS_PROF = 0x01000000
M8 = opt('m8', 0)
if M8:
    KH, KEXP, SV = 13, 26, 0
else:
    KH, KEXP, SV = 31, 31, 30
LOG2E = 1.4426950408889634
SC = opt('sc', 'sc1')
SC = (' ' + SC.replace('+', ' ')) if SC != 'none' else ''
LSC = opt('lsc', 'sc1')
LSC = (' ' + LSC.replace('+', ' ')) if LSC != 'none' else ''
GSC = opt('gsc', 'sc1')
GSC = (' ' + GSC.replace('+', ' ')) if GSC != 'none' else ''
ELD = opt('eld', 'none')
ELD = (' ' + ELD.replace('+', ' ')) if ELD != 'none' else ''

def f2u(x):
    return struct.unpack('<I', struct.pack('<f', x))[0]

out = []
def e(s=''):
    out.append(s)
def I(s):
    out.append('    ' + s)
def L(name):
    out.append(name + ':')
def vr(a, n):
    return f'v[{a}:{a+n-1}]' if n > 1 else f'v{a}'
def sr4(a):
    return f's[{a}:{a+3}]'
def sp(a):
    return f's[{a}:{a+1}]'
def p(r):
    return f'v[{r}:{r+1}]'

def srd(d, lo, hi, nrec):
    I(f's_mov_b32 s{d}, s{lo}')
    I(f's_mov_b32 s{d+1}, s{hi}')
    I(f's_mov_b32 s{d+2}, {nrec}')
    I(f's_mov_b32 s{d+3}, 0x00020000')

def srd_off(d, lo, hi, off, nrec):
    I(f's_add_u32 s{d}, s{lo}, {off}')
    I(f's_addc_u32 s{d+1}, s{hi}, 0')
    I(f's_mov_b32 s{d+2}, {nrec}')
    I(f's_mov_b32 s{d+3}, 0x00020000')

def wave_scan(v):
    for sh in (1, 2, 4, 8):
        I('s_nop 1')
        I(f'v_add_u32_dpp v{v}, v{v}, v{v} row_shr:{sh} row_mask:0xf bank_mask:0xf')
    I('s_nop 1')
    I(f'v_add_u32_dpp v{v}, v{v}, v{v} row_bcast:15 row_mask:0xa bank_mask:0xf')
    I('s_nop 1')
    I(f'v_add_u32_dpp v{v}, v{v}, v{v} row_bcast:31 row_mask:0xc bank_mask:0xf')
    I('s_nop 1')

LS = 0
ZR = 18688
LE = 18688
CNT = 56064
MISC = 56320
BASET = 56576
NINFO = 56832
HIST = 57344
HBASE = 58368
DESCP = 59392
EXTRA = 67840
DESCA = 84224
PT = 86784
ACCN = 99328
WRAW = 111872
WG_, WV_, WU_ = WRAW, WRAW + 17408, WRAW + 25600
XOWN = WRAW + 33792
LDS_BYTES = XOWN + 8192
STGW = 0
STGE = CAP * 4
NTI = EXTRA
MAXG = 576
assert STGE + CAP * 8 <= CNT

V_TID, V_LANE = 0, 1
V_MA, V_MB = 2, 4
V_VAA = (6, 8)
V_VAP = 10
V_PS0, V_PS1, V_PE, V_PD, V_CH8, V_CHP = 12, 13, 14, 15, 16, 17
V_PROF = 18
V_TAB = 20
V_J4, V_CB4 = 24, 25
V_X = 26
V_T01D, V_T01N, V_T23D, V_T23N = 40, 42, 44, 46
B5 = (48, 52)
A5 = 56
V_TT = (60, 62)
G = (64, 80)
Z = 96
S = 112

S_XS, S_WS, S_DST, S_SRC, S_EA, S_RW, S_RE, S_TAB, S_NTS, S_NTG, S_OUT = 12, 16, 20, 24, 28, 32, 36, 40, 44, 48, 52
S_MASK = 56
S_W, S_L, S_CNT, S_JB, S_WID, S_MORE = 72, 73, 74, 75, 76, 77
S_C = 78
S_EX = 80
S_LDX = 82
S_T = 84
S_WSP = 94
S_DBG = 96
S_TAG, S_TAG2 = 100, 101
TAGM = 0xC003C003
TAGL = MISC + 64

NT2 = 2 if opt('touch', 0) else 0
LDXV = 0 if opt('noload', 0) else -1
NPFM = opt('npf', 4)
NPF = {0: 0, 1: 7, 2: 7, 3: 2, 4: 1, 5: 1}[NPFM]
NPF1 = NPF if NPFM in (1, 5) else 0
WSB = opt('wsb', 0) << 20
TCH = 4 if opt('touch', 0) else 0
T1 = opt('t1', 0)
OSC = opt('osc', 'nt')
OSC = (' ' + OSC.replace('+', ' ')) if OSC != 'none' else ''
KREP = opt('krep', 1)
assert KREP == 1
CM = opt('cm', 1)
RSTEP = 64 if CM else 8
SRCL = opt('srcl', 2)
PROF = opt('prof', 0)
DIAG = opt('diag', -1)
def diag_end():
    if DIAG < 0:
        return
    I('s_memrealtime s[98:99]')
    I('s_waitcnt lgkmcnt(0)')
    I('v_readlane_b32 s92, v18, 1')
    I('v_readlane_b32 s93, v18, 0')
    I('s_nop 3')
    I('s_sub_u32 s92, s92, s93')
    I('s_lshr_b32 s92, s92, 3' if opt('dcyc', 0) else 's_lshl_b32 s92, s92, 2')
    I('s_mov_b32 s93, s98')
    lbl = f'L_DG{len(out)}'
    L(lbl)
    I('s_memrealtime s[98:99]')
    I('s_waitcnt lgkmcnt(0)')
    I('s_sub_u32 s98, s98, s93')
    I('s_cmp_lt_u32 s98, s92')
    I(f's_cbranch_scc1 {lbl}')
def stamp(i):
    if DIAG >= 0 and i in (opt('dfrom', 0), DIAG):
        I('s_memtime s[98:99]' if opt('dcyc', 0) else 's_memrealtime s[98:99]')
        I('s_waitcnt lgkmcnt(0)')
        if i == opt('dfrom', 0):
            I('v_writelane_b32 v18, s98, 0')
        if i == DIAG:
            I('v_writelane_b32 v18, s98, 1')
    if not PROF:
        return
    I('s_memtime s[98:99]')
    I('s_waitcnt lgkmcnt(0)')
    I(f'v_writelane_b32 v{V_PROF}, s98, {i}')
def rstamp(i):
    if not PROF:
        return
    I('s_memrealtime s[98:99]')
    I('s_waitcnt lgkmcnt(0)')
    I(f'v_writelane_b32 v{V_PROF}, s98, {i}')
def prof_store():
    if not PROF:
        return
    rstamp(31)
    if PROF == 3:
        I(f's_lshl_b32 s98, s2, 4')
        I(f's_add_u32 s98, s98, s{S_W}')
        I(f's_cmp_lg_u32 s98, {opt("pwave", 80)}')
        I('s_cbranch_scc1 L_END')
        I('s_mov_b64 exec, -1')
        I(f'v_readlane_b32 s98, v{V_PROF}, 0')
        I(f'v_readlane_b32 s99, v{V_PROF}, 30')
        I(f'v_readlane_b32 s{S_T}, v{V_PROF}, 31')
        I('s_nop 3')
        I(f's_sub_u32 s{S_T}, s{S_T}, s99')
        I(f's_add_u32 s{S_T}, s{S_T}, s98')
        I(f'v_writelane_b32 v{V_PROF}, s{S_T}, 9')
        I(f'v_subrev_u32 v{V_PROF}, s98, v{V_PROF}')
        I(f'v_mbcnt_lo_u32_b32 v{V_PROF+1}, -1, 0')
        I(f'v_lshlrev_b32 v{V_PROF+1}, 2, v{V_PROF+1}')
        I(f'v_add_u32 v{V_PROF+1}, -8, v{V_PROF+1}')
        I('s_mov_b64 exec, 0x3fff8')
        I(f'global_store_dword v{V_PROF+1}, v{V_PROF}, {sp(S_DBG)}')
        return
    I('s_mov_b64 exec, 0xffffffff')
    I(f's_add_u32 s{S_T}, s{S_WSP}, 0x{WS_PROF:x}')
    I(f's_addc_u32 s{S_T+1}, s{S_WSP+1}, 0')
    I(f'v_mbcnt_lo_u32_b32 v{V_PROF+1}, -1, 0')
    I(f'v_lshlrev_b32 v{V_PROF+1}, 2, v{V_PROF+1}')
    I(f's_lshl_b32 s98, s2, 4')
    I(f's_add_u32 s98, s98, s{S_W}')
    I(f's_lshl_b32 s98, s98, 7')
    I(f'v_add_u32 v{V_PROF+1}, s98, v{V_PROF+1}')
    I(f'global_store_dword v{V_PROF+1}, v{V_PROF}, {sp(S_T)}')

class Lg:
    def __init__(self):
        self.q = []
    def op(self, tag, text):
        I(text)
        self.q.append(tag)
    def need(self, *tags):
        idx = -1
        for t in tags:
            for i in range(len(self.q) - 1, -1, -1):
                if self.q[i] == t:
                    idx = max(idx, i)
                    break
        if idx < 0:
            return
        n = len(self.q) - 1 - idx
        assert n <= 15, (tags, n)
        I(f's_waitcnt lgkmcnt({n})')
        self.q = self.q[idx + 1:]

X = V_X

def zero_range(a, nbytes, zr, ad):
    k = 0
    base = a if a + nbytes <= 65536 + 16384 and a < 65536 - 3 * 16384 else None
    off = 0
    areg = ad
    if a + ((nbytes - 1) // 16384) * 16384 > 65535:
        I(f'v_add_u32 v{X+1}, {a}, v{ad}')
        areg = X + 1
        a0 = 0
    else:
        a0 = a
    while off < nbytes:
        n = min(16384, nbytes - off)
        if n < 16384:
            I(f'v_cmp_gt_u32 vcc, {n // 16}, v{V_TID}')
            I(f's_and_saveexec_b64 {sp(S_EX)}, vcc')
        I(f'ds_write_b128 v{areg}, v[{zr}:{zr+3}] offset:{a0 + off}')
        if n < 16384:
            I(f's_mov_b64 exec, {sp(S_EX)}')
        off += n

def zregs():
    I(f'v_lshlrev_b32 v{X}, 4, v{V_TID}')
    for k in range(4):
        I(f'v_mov_b32 v{X+2+k}, 0')

def fill_desca():
    I(f'v_and_b32 v{X+6}, 15, v{V_TID}')
    I(f'v_lshlrev_b32 v{X+6}, 10, v{X+6}')
    I(f'v_add_u32 v{X+6}, {EXTRA}, v{X+6}')
    for k in range(1, 4):
        I(f'v_add_u32 v{X+6+k}, {256*k}, v{X+6}')
    I(f'v_add_u32 v{X+1}, {DESCA}, v{X}')
    I(f'v_cmp_gt_u32 vcc, 160, v{V_TID}')
    I(f's_and_saveexec_b64 {sp(S_EX)}, vcc')
    I(f'ds_write_b128 v{X+1}, v[{X+6}:{X+9}]')
    I(f's_mov_b64 exec, {sp(S_EX)}')

def fill_zero():
    zregs()
    zero_range(ZR, 65536, X + 2, X)
    fill_desca()

def fill_words():
    I(f'v_lshlrev_b32 v{X}, 4, v{V_TID}')
    I(f'v_and_b32 v{X+2}, 7, v{V_TID}')
    I(f'v_lshlrev_b32 v{X+2}, 5, v{X+2}')
    I(f'v_add_u32 v{X+2}, {N_NODES*8}, v{X+2}')
    for k in range(1, 4):
        I(f'v_add_u32 v{X+2+k}, {8*k}, v{X+2}')
    I(f'ds_write_b128 v{X}, v[{X+2}:{X+5}] offset:{LS}')
    I(f'v_cmp_gt_u32 vcc, 144, v{V_TID}')
    I(f's_and_saveexec_b64 {sp(S_EX)}, vcc')
    I(f'ds_write_b128 v{X}, v[{X+2}:{X+5}] offset:{LS+16384}')
    I(f's_mov_b64 exec, {sp(S_EX)}')

V_C8P, V_CPP, V_SCP = 26, 28, 30
S_BP0, S_BP1 = 88, 90

def tail_ops(n):
    M = (V_MA, V_MB)[n]
    return [f'v_rcp_f32 v{V_T01D}, v{V_T01D}',
            f'v_rcp_f32 v{V_T01D+1}, v{V_T01D+1}',
            f'v_pk_fma_f32 {p(M)}, {p(V_T01N)}, {p(V_T01D)}, {p(M)}']

def acc_write(lg, va):
    lg.op('Wa', f'ds_write2_b32 v{va}, v{V_MA}, v{V_MB} offset0:0 offset1:1')
    lg.op('Wb', f'ds_write2_b32 v{va+1}, v{V_MA+1}, v{V_MB+1} offset0:0 offset1:1')

def acc_read(lg, va):
    lg.op('Ra', f'ds_read_b32 v{V_MA}, v{va}')
    lg.op('Rb', f'ds_read_b32 v{V_MA+1}, v{va+1}')
    lg.op('Rc', f'ds_read_b32 v{V_MB}, v{va} offset:4')
    lg.op('Rd', f'ds_read_b32 v{V_MB+1}, v{va+1} offset:4')

def va_add(vap, vaa):
    I(f'v_lshl_add_u64 {p(vap)}, {p(vap)}, 0, {p(V_CPP)}')
    I(f'v_lshl_add_u64 {p(vaa)}, {p(vaa)}, 0, {p(V_C8P)}')

def gload(n, i):
    return f'buffer_load_dword v{G[n]+i}, v{S + (i & 1) * 8 + (i >> 1)}, {sr4(S_NTG)}, 0 offen offset:{4*n}' + GSC

def s_safe():
    if opt('safe', 0):
        for i in range(16):
            I(f'v_and_b32 v{S+i}, 0x1fff8, v{S+i}')

def s_reads(lg, uo):
    lg.op('S0', f'ds_read_b128 {vr(S,4)}, v{V_PS0} offset:{uo*32}')
    lg.op('S1', f'ds_read_b128 {vr(S+4,4)}, v{V_PS0} offset:{uo*32+16}')
    lg.op('S2', f'ds_read_b128 {vr(S+8,4)}, v{V_PS1} offset:{uo*32}')
    lg.op('S3', f'ds_read_b128 {vr(S+12,4)}, v{V_PS1} offset:{uo*32+16}')

def half(lg, n, par, uo, with_tail=True):
    g = G[n]
    I('s_waitcnt vmcnt(16)')
    if n == 0:
        lg.need('P0a', 'P0b', 'e')
    else:
        lg.need('P1a', 'P1b')
    I(f'v_mfma_f32_32x32x16_bf16 {vr(Z,16)}, {vr(A5,4)}, {vr(B5[n],4)}, {vr(g,16)}')
    t = tail_ops(n ^ 1)
    va_prev, va_cur, va_nxt = V_VAA[par ^ 1], V_VAA[par], V_VAA[par ^ 1]
    sh = [f'v_lshlrev_b32 v{g+i}, 16, v{g+i}' for i in range(16)]
    ex = [f'v_exp_f32 v{Z+i}, v{Z+i} clamp' for i in range(16)]
    l3 = [f'v_pk_mul_f32 {p(V_T01N)}, {p(V_T01N)}, {p(V_T23D)}',
          f'v_pk_mul_f32 {p(V_T23D)}, {p(V_T01D)}, {p(V_T23D)}',
          f'v_pk_fma_f32 {p(V_T01N)}, {p(V_T23N)}, {p(V_T01D)}, {p(V_T01N)}',
          f'v_rcp_f32 v{V_T23D}, v{V_T23D}',
          f'v_rcp_f32 v{V_T23D+1}, v{V_T23D+1}',
          f'v_pk_fma_f32 {p((V_MA, V_MB)[n ^ 1])}, {p(V_T01N)}, {p(V_T23D)}, {p((V_MA, V_MB)[n ^ 1])}']
    if with_tail and not M8:
        for r_ in (V_T01D, V_T01D + 1, V_T23D, V_T23D + 1):
            I(f'v_rcp_f32 v{r_}, v{r_}')
    else:
        I('s_nop 3')
    if n == 1:
        lg.op('e', f'ds_read_b64 {p(A5)}, v{V_PE} offset:{(uo+1)*64}')
        lg.op('P1a', f'ds_read_b32 v{B5[1]+2}, v{V_VAP} offset:4')
        lg.op('P1b', f'ds_read_b32 v{B5[1]+3}, v{V_VAP+1} offset:4')
    else:
        lg.op('dP', f'ds_read_b64 {p(V_VAP)}, v{V_PD} offset:{(uo+1)*256}')
        I('s_nop 1')
    for op in sh[:8]:
        I(op)
    seq = []
    if with_tail and not M8:
        Mp = p((V_MA, V_MB)[n ^ 1])
        seq = ['NEED', f'v_pk_fma_f32 {Mp}, {p(V_T01N)}, {p(V_T01D)}, {Mp}', ex[0],
               f'v_pk_fma_f32 {Mp}, {p(V_T23N)}, {p(V_T23D)}, {Mp}', sh[8], 'ACC', ex[1], sh[9]]
    elif with_tail:
        seq = [l3[0], l3[1], ex[0], l3[2], l3[3], sh[8], l3[4], ex[1], sh[9], 'NEED', l3[5], 'ACC']
    else:
        seq = [ex[0], sh[8], ex[1], sh[9], 'ACC']
    for op in seq:
        if op == 'NEED':
            lg.need('Ra', 'Rb', 'Rc', 'Rd')
        elif op == 'ACC':
            if n == 0:
                if with_tail:
                    acc_write(lg, va_prev)
                acc_read(lg, va_cur)
                lg.op('dA', f'ds_read_b64 {p(va_nxt)}, v{V_PD} offset:{(uo+1)*256 + DESCA - DESCP}')
        else:
            I(op)
    for i in range(2, 12):
        I(ex[i])
        if 8 + i < 16:
            I(sh[8 + i])
        if n == 0 and i == 11:
            lg.need('dP', 'dA')
            va_add(V_VAP, va_nxt)
            lg.op('P0a', f'ds_read_b32 v{B5[0]+2}, v{V_VAP}')
            lg.op('P0b', f'ds_read_b32 v{B5[0]+3}, v{V_VAP+1}')
    for op in ex[12:]:
        I(op)
    for i in range(0, 16, 2):
        if M8:
            I(f'v_pk_fma_f32 {p(Z+i)}, {p(Z+i)}, {p(V_SCP)}, {sp(S_C)}')
        else:
            I(f'v_pk_add_f32 {p(Z+i)}, {p(Z+i)}, {sp(S_C)}')
    def T(k): return f'v_pk_mul_f32 {p(V_TT[k&1])}, {p(g+4*k)}, {p(Z+4*k+2)}'
    def DD(k): return f'v_pk_mul_f32 {p(Z+4*k+2)}, {p(Z+4*k)}, {p(Z+4*k+2)}'
    def NN(k): return f'v_pk_fma_f32 {p(Z+4*k)}, {p(g+4*k+2)}, {p(Z+4*k)}, {p(V_TT[k&1])}'
    for k0 in (0, 2):
        for op in (T(k0), T(k0 + 1), DD(k0), DD(k0 + 1), NN(k0), NN(k0 + 1)):
            I(op)
        if n == 0 and k0 == 0:
            lg.need('S0', 'S1', 'S2', 'S3')
            s_safe()
        I(f's_mov_b64 exec, {sp(S_LDX)}')
        for i in range(4 * k0, 4 * k0 + 8):
            I(gload(n, i))
        I('s_mov_b64 exec, -1')
    if n == 1:
        s_reads(lg, uo + 2)
    I(f'v_pk_mul_f32 {p(V_T01N)}, {p(Z)}, {p(Z+6)}')
    I(f'v_pk_mul_f32 {p(V_T23N)}, {p(Z+8)}, {p(Z+14)}')
    I(f'v_pk_mul_f32 {p(V_T01D)}, {p(Z+2)}, {p(Z+6)}')
    I(f'v_pk_mul_f32 {p(V_T23D)}, {p(Z+10)}, {p(Z+14)}')
    I(f'v_pk_fma_f32 {p(V_T01N)}, {p(Z+4)}, {p(Z+2)}, {p(V_T01N)}')
    I(f'v_pk_fma_f32 {p(V_T23N)}, {p(Z+12)}, {p(Z+10)}, {p(V_T23N)}')

PRIO = {
    3: {(3, 0): 2, (2, 0): 1, (1, 0): 0},
    5: {(2, 0): 2, (1, 0): 1, (1, 1): 0},
    6: {(3, 0): 2, (1, 0): 1, (1, 1): 0},
    7: {(2, 1): 2, (1, 0): 1, (1, 1): 0},
    8: {(4, 0): 2, (2, 0): 1, (1, 1): 0},
    9: {(3, 0): 2, (2, 1): 1, (1, 1): 0},
    0: {},
}[opt('prio', 9)]
def prio(tag, phase=0):
    for (t, ph), lvl in PRIO.items():
        if ph != phase:
            continue
        I(f's_cmp_eq_u32 s{S_CNT}, {t}')
        I(f's_cbranch_scc0 L_PR{tag}_{lvl}')
        I(f's_setprio {lvl}')
        L(f'L_PR{tag}_{lvl}')

def split_hilo(a, b, t0, t1):
    I(f'v_cvt_pk_bf16_f32 v{t0}, v{a}, v{b}')
    I(f'v_lshlrev_b32 v{t1}, 16, v{t0}')
    I(f'v_and_b32 v{t0}, 0xffff0000, v{t0}')
    I(f'v_sub_f32 v{a}, v{a}, v{t1}')
    I(f'v_sub_f32 v{b}, v{b}, v{t0}')
    I(f'v_cvt_pk_bf16_f32 v{a}, v{t1}, v{a}')
    I(f'v_cvt_pk_bf16_f32 v{b}, v{t0}, v{b}')

V_AA, V_AB, V_AD, V_AP = 6, 7, 8, 9
SA, SB, SD = 80, 96, 112

def phase0_addr():
    I(f's_and_b32 s{S_T}, s{S_W}, 3')
    I(f's_lshr_b32 s{S_T+1}, s{S_W}, 2')
    I(f'v_and_b32 v12, 15, v{V_LANE}')
    I(f'v_lshrrev_b32 v13, 4, v{V_LANE}')
    I(f'v_bfe_u32 v14, v{V_LANE}, 1, 3')
    I(f'v_xor_b32 v14, v14, v13')
    I(f'v_lshlrev_b32 v14, 4, v14')
    I(f'v_lshl_or_b32 v14, v12, 7, v14')
    I(f's_lshl_b32 s{S_T+2}, s{S_T}, 11')
    I(f'v_add_u32 v{V_AA}, s{S_T+2}, v14')
    I(f'v_bfe_u32 v14, v{V_LANE}, 2, 2')
    I(f'v_lshl_add_u32 v14, v13, 3, v14')
    I(f'v_lshlrev_b32 v14, 7, v14')
    I(f'v_and_b32 v15, 3, v{V_LANE}')
    I(f'v_lshl_add_u32 v14, v15, 3, v14')
    I(f's_lshl_b32 s{S_T+2}, s{S_T+1}, 5')
    I(f'v_or_b32 v14, s{S_T+2}, v14')
    I(f'v_and_b32 v15, 24, v{V_LANE}')
    I(f'v_lshlrev_b32 v15, 2, v15')
    I(f'v_xor_b32 v14, v14, v15')
    I(f'v_add_u32 v{V_AB}, {WRAW}, v14')
    I(f's_lshl_b32 s{S_T+2}, s{S_T}, 12')
    I(f'v_lshlrev_b32 v13, 10, v13')
    I(f'v_add_u32 v13, s{S_T+2}, v13')
    I(f's_lshl_b32 s{S_T+2}, s{S_T+1}, 6')
    I(f's_add_u32 s{S_T+2}, s{S_T+2}, {NTI}')
    I(f'v_lshl_add_u32 v{V_AD}, v12, 2, v13')
    I(f'v_add_u32 v{V_AD}, s{S_T+2}, v{V_AD}')
    I(f's_and_b32 s{S_T+2}, s{S_T+1}, 1')
    I(f's_lshl_b32 s{S_T+2}, s{S_T+2}, 7')
    I(f's_lshr_b32 s{S_T+3}, s{S_T+1}, 1')
    I(f's_lshl_b32 s{S_T+3}, s{S_T+3}, 2')
    I(f's_add_u32 s{S_T+2}, s{S_T+2}, s{S_T+3}')
    I(f's_add_u32 s{S_T+2}, s{S_T+2}, {PT}')
    I(f'v_lshl_add_u32 v{V_AP}, v12, 3, v13')
    I(f'v_add_u32 v{V_AP}, s{S_T+2}, v{V_AP}')

def b_reads(dst, off):
    for sg in range(2):
        for pp in range(2):
            I(f'ds_read_b64_tr_b16 {vr(dst+4*sg+2*pp,2)}, v{V_AB} offset:{off+sg*4096+pp*512}')

def mm16(d, b):
    I(f'v_mfma_f32_16x16x32_bf16 {vr(d,4)}, {vr(SA,4)}, {vr(b,4)}, 0')
    I(f'v_mfma_f32_16x16x32_bf16 {vr(d,4)}, {vr(SA+4,4)}, {vr(b+4,4)}, {vr(d,4)}')

def phase0a():
    I(f'v_add_u32 v12, {XOWN}, v{V_AA}')
    I(f'v_xor_b32 v13, 64, v{V_AA}')
    I(f'v_add_u32 v13, {XOWN}, v13')
    I(f'ds_read_b128 {vr(SA,4)}, v12')
    I(f'ds_read_b128 {vr(SA+4,4)}, v13')
    b_reads(SB, 8192)
    b_reads(SB + 8, WV_ - WRAW)
    I(f's_mov_b32 s{S_T+4}, 0x{f2u(-LOG2E):x}')
    I(f's_mov_b32 s{S_T+6}, 0x7fffffff')
    I(f's_mov_b32 s{S_T+7}, 0xffff0000')
    I('s_waitcnt lgkmcnt(4)')
    mm16(SD, SB)
    I('s_waitcnt lgkmcnt(0)')
    mm16(SD + 4, SB + 8)
    I('s_nop 4')
    for i in range(4):
        I(f'v_mul_f32 v{SD+i}, s{S_T+4}, v{SD+i}')
    for i in range(4):
        I(f'v_and_b32 v{SD+8+i}, s{S_T+6}, v{SD+i}')
    for i in range(4):
        if SV:
            I(f'v_mul_f32 v{SD+4+i}, 0x{f2u(2.0**SV):x}, v{SD+4+i}')
        I(f'v_add_u32 v{SD+8+i}, 0x8000, v{SD+8+i}')
    I(f'v_cvt_pk_bf16_f32 v{SD+4}, v{SD+4}, v{SD+5}')
    I(f'v_cvt_pk_bf16_f32 v{SD+6}, v{SD+6}, v{SD+7}')
    I(f'v_lshrrev_b32 v{SD+5}, 16, v{SD+4}')
    I(f'v_lshrrev_b32 v{SD+7}, 16, v{SD+6}')
    I(f'v_and_b32 v{SD+4}, 0xffff, v{SD+4}')
    I(f'v_and_b32 v{SD+6}, 0xffff, v{SD+6}')
    for i in range(4):
        I(f'v_sub_u32 v{SD+8+i}, v{SD+8+i}, v{SD+4+i} clamp')
    for i in range(4):
        I(f'v_and_or_b32 v{SD+8+i}, v{SD+8+i}, s{S_T+7}, v{SD+4+i}')
    for i in range(4):
        I(f'v_bfi_b32 v{SD+i}, s{S_T+6}, v{SD+8+i}, v{SD+i}')
        I(f'ds_write_b32 v{V_AD}, v{SD+i} offset:{i*256}')

def phase0b():
    b_reads(SB, 0)
    b_reads(SB + 8, WU_ - WRAW)
    I(f's_mov_b32 s{S_T+4}, 0x{f2u(-LOG2E):x}')
    I(f's_mov_b32 s{S_T+5}, 0x{f2u(2.0**(SV+KH)):x}')
    I(f'v_mov_b32 v13, 0x{f2u(-float(KEXP)):x}')
    I(f's_and_b32 s{S_T+6}, s{S_W}, 3')
    I('s_waitcnt lgkmcnt(4)')
    mm16(SD, SB)
    I('s_waitcnt lgkmcnt(0)')
    mm16(SD + 4, SB + 8)
    I('s_nop 4')
    for i in range(4):
        I(f'v_fma_f32 v{SD+i}, v{SD+i}, s{S_T+4}, v13')
    split_hilo(SD, SD + 1, 12, 13)
    split_hilo(SD + 2, SD + 3, 12, 13)
    for i in range(4):
        I(f'v_mul_f32 v{SD+4+i}, s{S_T+5}, v{SD+4+i}')
    I(f's_cmp_eq_u32 s{S_T+6}, 3')
    I(f's_cselect_b64 exec, 0xffff, -1')
    I(f'ds_write_b32 v{V_AP}, v{SD}')
    I(f'ds_write_b32 v{V_AP}, v{SD+4} offset:{ACCN-PT}')
    I(f's_cselect_b64 exec, 0, -1')
    for i in range(1, 4):
        I(f'ds_write_b32 v{V_AP}, v{SD+i} offset:{i*256}')
        I(f'ds_write_b32 v{V_AP}, v{SD+4+i} offset:{ACCN-PT+i*256}')
    I('s_mov_b64 exec, -1')

def phase0c():
    I(f'v_bfe_u32 v13, v{V_LANE}, 2, 2')
    I(f'v_lshlrev_b32 v13, 7, v13')
    I(f'v_bfe_u32 v15, v{V_LANE}, 4, 1')
    I(f'v_lshl_add_u32 v13, v15, 5, v13')
    I(f'v_and_b32 v15, 3, v{V_LANE}')
    I(f'v_lshl_add_u32 v13, v15, 3, v13')
    I(f'v_and_b32 v15, 8, v{V_LANE}')
    I(f'v_lshlrev_b32 v15, 2, v15')
    I(f'v_xor_b32 v13, v13, v15')
    I(f'v_add_u32 v13, {WG_ + 16384}, v13')
    I(f'ds_read_b64_tr_b16 v[96:97], v13')
    I(f'ds_read_b64_tr_b16 v[98:99], v13 offset:64')
    I(f's_mov_b32 s{S_T+4}, 0x{f2u(-LOG2E):x}')
    I(f'v_cmp_lt_u32 vcc, 31, v{V_LANE}')
    I('s_waitcnt lgkmcnt(0)')
    for m in range(4):
        I(f'v_lshlrev_b32 v{100+2*m}, 16, v{96+m}')
        I(f'v_and_b32 v{101+2*m}, 0xffff0000, v{96+m}')
    for j in range(8):
        I(f'v_mul_f32 v{100+j}, s{S_T+4}, v{100+j}')
    for m in range(4):
        dst = B5[m >> 1] + (m & 1)
        I(f'v_cvt_pk_bf16_f32 v{96+m}, v{100+2*m}, v{101+2*m}')
        I(f'v_lshlrev_b32 v12, 16, v{96+m}')
        I(f'v_and_b32 v13, 0xffff0000, v{96+m}')
        I(f'v_sub_f32 v12, v{100+2*m}, v12')
        I(f'v_sub_f32 v13, v{101+2*m}, v13')
        I(f'v_cvt_pk_bf16_f32 v12, v12, v13')
        I(f'v_cndmask_b32 v{dst}, v{96+m}, v12, vcc')

def a5_const():
    I(f'v_bfe_u32 v12, v{V_LANE}, 2, 1')
    I(f'v_lshrrev_b32 v13, 5, v{V_LANE}')
    I(f'v_xor_b32 v12, v12, v13')
    I(f'v_and_b32 v13, 1, v{V_LANE}')
    I(f'v_lshl_or_b32 v12, v12, 1, v13')
    I(f'v_mov_b32 v13, 0x3f803f80')
    I(f'v_cmp_eq_u32 vcc, 0, v12')
    I(f'v_cmp_eq_u32 {sp(S_T)}, 1, v12')
    I('s_nop 1')
    I(f'v_cndmask_b32 v{A5+2}, 0, v13, vcc')
    I(f'v_cndmask_b32 v{A5+3}, 0, v13, {sp(S_T)}')

def nt_prefetch(vt, first=0, nl=None, dst=96):
    I(f's_lshr_b32 s{S_T}, s2, 4')
    I(f's_lshl_b32 s{S_T+1}, s{S_W}, 4')
    I(f's_add_u32 s{S_T}, s{S_T}, s{S_T+1}')
    I(f's_and_b32 s{S_T+1}, s{S_T}, 7')
    I(f's_lshl_b32 s{S_T+1}, s{S_T+1}, 5')
    I(f's_lshr_b32 s{S_T}, s{S_T}, 3')
    I(f's_add_u32 s{S_T}, s{S_T}, s{S_T+1}')
    if not opt('xmap', 1):
        I(f's_lshr_b32 s{S_T}, s2, 4')
        I(f's_lshl_b32 s{S_T+1}, s{S_W}, 4')
        I(f's_add_u32 s{S_T}, s{S_T}, s{S_T+1}')
    I(f's_lshl_b32 s{S_T}, s{S_T}, 1')
    I(f's_bfe_u32 s{S_T+1}, s2, 0x10003')
    I(f's_add_u32 s{S_T}, s{S_T}, s{S_T+1}')
    I(f's_mul_i32 s{S_T}, s{S_T}, {NB*128}')
    I(f's_add_u32 s{S_T}, s{S_T}, 0x{WS_NT:x}')
    srd_off(S_NTS, S_WSP, S_WSP + 1, f's{S_T}', NB * 128)
    if NPFM >= 3:
        I(f'v_lshlrev_b32 v{vt}, {7 if NPFM >= 4 else 6}, v{V_LANE}')
        I(f'v_add_u32 v{vt+1}, 4096, v{vt}')
        nl = opt("pfl", 20) if nl is None else nl
        I(f's_mov_b32 exec_lo, 0x{(((1 << nl) - 1) << first) & 0xffffffff:x}')
        I(f's_mov_b32 exec_hi, 0x{(((1 << nl) - 1) << first) >> 32:x}')
        for k in range(NPF):
            I(f'buffer_load_dword v{dst+k}, v{vt+k}, {sr4(S_NTS)}, 0 offen' + (LSC if opt('pfsc', 1) else ''))
        I('s_mov_b64 exec, -1')
        return
    I(f'v_lshlrev_b32 v{vt}, 4, v{V_LANE}')
    I(f'v_add_u32 v{vt+1}, 4096, v{vt}')
    for k in range(NPF):
        I(f'buffer_load_dwordx4 {vr(96+4*k,4)}, v{vt+(k>>2)}, {sr4(S_NTS)}, 0 offen offset:{(k&3)*1024}' + LSC)

def ptr_consts():
    I(f'v_lshrrev_b32 v{V_PS1}, 5, v{V_LANE}')
    I(f's_lshl_b32 s{S_T}, s{S_W}, 4')
    I(f's_add_u32 s{S_T}, s{S_T}, {DESCP}')
    I(f'v_lshlrev_b32 v{V_PD}, 3, v{V_PS1}')
    I(f'v_add_u32 v{V_PS1}, v{V_PS1}, v{V_PS1}')
    I(f'v_add_u32 v{V_PD}, s{S_T}, v{V_PD}')
    I(f'v_bfe_u32 v{V_VAP}, v{V_LANE}, 2, 1')
    I(f'v_and_b32 v{V_PE}, 1, v{V_LANE}')
    I(f'v_lshl_or_b32 v{V_VAP}, v{V_VAP}, 1, v{V_PE}')
    I(f'v_bfe_u32 v{V_PE}, v{V_LANE}, 3, 2')
    I(f'v_bfe_u32 v{V_PS0}, v{V_LANE}, 1, 1')
    I(f'v_lshl_or_b32 v{V_PE}, v{V_PE}, 1, v{V_PS0}')
    I(f'v_lshlrev_b32 v{V_PE}, 3, v{V_PE}')
    I(f'v_add_u32 v{V_PE}, {LE}, v{V_PE}')

def gen():
    e(f'.globl {KNAME}')
    e('.p2align 8')
    e(f'.type {KNAME},@function')
    L(KNAME)
    I(f's_cmp_ge_u32 s2, {NWG}')
    I('s_cbranch_scc1 L_END')
    I('s_load_dwordx8 s[84:91], s[0:1], 0')
    I('s_load_dwordx4 s[4:7], s[0:1], 32')
    I('s_load_dwordx4 s[8:11], s[0:1], 48')
    I('s_load_dwordx4 s[56:59], s[0:1], 64')
    if PROF:
        I(f'v_mov_b32 v{V_PROF}, 0')
    rstamp(30)
    stamp(0)
    zregs()
    zero_range(CNT, DESCP + 2560 - CNT, X + 2, X)
    I(f'v_lshlrev_b32 v{X+6}, 2, v{V_TID}')
    I(f's_mul_i32 s61, s2, {CH*4}')
    I(f's_mul_i32 s63, s2, {CH}')
    I(f's_sub_u32 s63, {E_EDGES}, s63')
    I(f's_min_u32 s63, s63, {CH}')
    I(f's_lshl_b32 s64, s63, 2')
    I(f'v_add_u32 v{X+8}, 4096, v{X+6}')
    I(f'v_add_u32 v{X+9}, 8192, v{X+6}')
    I(f'v_add_u32 v{X+10}, 12288, v{X+6}')
    I(f'v_lshrrev_b32 v{X+1}, 6, v{V_TID}')
    I(f'v_and_b32 v{V_LANE}, 63, v{V_TID}')
    I(f'v_readfirstlane_b32 s{S_W}, v{X+1}')
    I('s_and_b32 s3, s2, 7')
    I('s_lshl_b32 s3, s3, 5')
    I('s_lshr_b32 s60, s2, 3')
    I('s_add_u32 s3, s3, s60')
    if not opt('xmap', 1):
        I('s_mov_b32 s3, s2')
    I(f's_mul_i32 s62, s2, {CH*8}')
    I(f's_lshl_b32 s65, s63, 3')
    I(f'v_and_b32 v97, 0x50, v{V_TID}')
    I(f'v_lshlrev_b32 v96, 1, v97')
    I(f'v_or_b32 v97, v97, v96')
    I(f'v_and_b32 v97, 0x60, v97')
    I(f'v_xor_b32 v97, v97, v{X}')
    I(f'v_and_b32 v96, 0x20, v96')
    I(f'v_lshlrev_b32 v98, 4, v{V_LANE}')
    I(f'v_xor_b32 v96, v96, v98')
    I(f's_lshl_b32 s66, s{S_W}, 10')
    I(f'v_and_b32 v101, 0x1fff, v97')
    I(f'v_lshrrev_b32 v98, 3, v{V_TID}')
    I(f'v_bfe_u32 v99, v98, 1, 3')
    I(f'v_and_b32 v100, 7, v{V_TID}')
    I(f'v_xor_b32 v99, v99, v100')
    I(f'v_lshlrev_b32 v99, 4, v99')
    I(f'v_lshl_add_u32 v99, v98, 7, v99')
    I(f's_mul_i32 s60, s3, {NB*128}')
    I(f'v_add_u32 v99, s60, v99')
    I(f'v_add_u32 v96, 16384, v96')
    I('s_waitcnt lgkmcnt(0)')
    I(f's_or_b32 s67, s2, s{S_W}')
    I('s_cmp_lg_u32 s67, 0')
    I('s_cbranch_scc1 L_NOTAG')
    I('s_memrealtime s[68:69]')
    I(f'v_mov_b32 v{X+2}, 0')
    I('s_waitcnt lgkmcnt(0)')
    I('s_or_b32 s68, s68, 1')
    I(f'v_mov_b32 v{X+3}, s68')
    I('s_mov_b64 exec, 1')
    I(f'global_store_dword v{X+2}, v{X+3}, s[56:57] sc1')
    I('s_mov_b64 exec, -1')
    L('L_NOTAG')
    def dst_loads():
        srd_off(S_DST, 90, 91, 's61', 's64')
        for k in range(4):
            I(f'buffer_load_dword v{64+k}, v{X+6 if k == 0 else X+7+k}, {sr4(S_DST)}, 0 offen' + ELD)
    def dma_loads():
        srd(S_WS, 8, 9, 132 * 128)
        I(f's_add_u32 m0, s66, {WG_}')
        srd(S_XS, 84, 85, N_NODES * 128)
        I(f'buffer_load_dwordx4 v97, {sr4(S_WS)}, 0 offen lds')
        I(f's_cmp_lt_u32 s{S_W}, 8')
        I(f's_cselect_b32 s{S_NTS}, s6, s4')
        I(f's_cselect_b32 s{S_NTS+1}, s7, s5')
        I(f's_mov_b32 s{S_NTS+2}, {64*128}')
        I(f's_mov_b32 s{S_NTS+3}, 0x00020000')
        I(f's_add_u32 m0, s66, {WV_}')
        I('s_nop 0')
        I(f'buffer_load_dwordx4 v101, {sr4(S_NTS)}, 0 offen lds')
        I(f's_cmp_lt_u32 s{S_W}, 8')
        I('s_cbranch_scc0 L_D3B')
        I(f's_add_u32 m0, s66, {XOWN}')
        I('s_nop 0')
        I(f'buffer_load_dwordx4 v99, {sr4(S_XS)}, 0 offen lds')
        I('s_branch L_D3C')
        L('L_D3B')
        I(f's_mov_b32 m0, {WG_ + 16384}')
        I('s_nop 0')
        I(f'buffer_load_dwordx4 v96, {sr4(S_WS)}, 0 offen lds')
        L('L_D3C')
    if opt('t0', 0):
        I(f'v_and_b32 v60, 15, v{V_LANE}')
        I(f'v_lshlrev_b32 v60, 20, v60')
        I(f'v_and_b32 v61, 1, v{V_LANE}')
        I(f'v_lshlrev_b32 v61, 20, v61')
        I(f'global_load_dword v62, v60, s[58:59]')
        I(f'global_load_dword v63, v61, s[10:11]')
    ORDER = opt('order', 2)
    if ORDER == 0:
        dma_loads()
    dst_loads()
    if ORDER == 2:
        dma_loads()
    F1 = opt('f1', 1)
    if F1:
        I('s_barrier')
    srd_off(S_SRC, 88, 89, 's61', 's64')
    LATE = opt('late', 1)
    def src_load(k):
        I(f'buffer_load_dword v{68+k}, v{X+6 if k == 0 else 43+k}, {sr4(S_SRC)}, 0 offen' + ELD)
    for k in range(1, 4):
        I(f'v_mov_b32 v{43+k}, v{X+7+k}')
    NS = opt('ns', 1) if LATE else 4
    for k in range(NS):
        src_load(k)
    srd_off(S_EA, 86, 87, 's62', 's65')
    I(f'v_lshlrev_b32 v92, 3, v{V_TID}')
    for k in range(1, 4):
        I(f'v_add_u32 v{92+k}, {8192*k}, v92')
    def e_load(k):
        I(f'buffer_load_dwordx2 v[{72+2*k}:{73+2*k}], v{92+k}, {sr4(S_EA)}, 0 offen' + ELD)
    NEE = opt('ne', 1) if LATE else opt('nee', 4)
    for k in range(NEE):
        e_load(k)
    if ORDER == 1:
        dma_loads()
    I(f's_mov_b64 {sp(S_DBG)}, s[56:57]')
    I(f's_add_u32 s{S_WSP}, s58, 0x{WSB:x}')
    I(f's_addc_u32 s{S_WSP+1}, s59, 0')
    stamp(1)
    srd(S_OUT, 10, 11, N_NODES * 128)
    I(f's_mul_i32 s{S_T}, s2, {CAP*4}')
    srd_off(S_RW, S_WSP, S_WSP + 1, f's{S_T}', CAP * 4)
    I(f's_lshl_b32 s{S_T}, s{S_T}, 1')
    I(f's_add_u32 s{S_T}, s{S_T}, 0x{WS_RE:x}')
    srd_off(S_RE, S_WSP, S_WSP + 1, f's{S_T}', CAP * 8)
    I(f's_lshl_b32 s{S_T}, s2, 11')
    I(f's_add_u32 s{S_T}, s{S_T}, 0x{WS_TAB:x}')
    srd_off(S_TAB, S_WSP, S_WSP + 1, f's{S_T}', (KREP - 1) * 0x80000 + 2048)
    I(f's_mul_i32 s{S_T}, s3, {NB*256}')
    I(f's_add_u32 s{S_T}, s{S_T}, 0x{WS_NT:x}')
    srd_off(S_NTS, S_WSP, S_WSP + 1, f's{S_T}', NB * 256)
    I(f's_add_u32 s{S_NTG}, s{S_WSP}, 0x{WS_NT:x}')
    I(f's_addc_u32 s{S_NTG+1}, s{S_WSP+1}, 0')
    I(f's_or_b32 s{S_NTG+1}, s{S_NTG+1}, 0x80000000')
    I(f's_mov_b32 s{S_NTG+2}, 0x400000')
    I(f's_mov_b32 s{S_NTG+3}, 0x00c00000')
    srd_off(S_DST, S_WSP, S_WSP + 1, '0x%x' % WS_RW, NWG * CAP * 4)
    if not LATE:
        srd_off(S_SRC, S_WSP, S_WSP + 1, '0x%x' % WS_RE, NWG * CAP * 8)
    for k in range(4):
        I(f'v_add_u32 v{X+1}, {1024*k}, v{V_TID}')
        I(f'v_cmp_gt_u32 {sp(S_MASK+2*k)}, s63, v{X+1}')
    I(f's_mov_b32 s{S_C}, 0x{f2u(2.0**-KH):x}')
    I(f's_mov_b32 s{S_C+1}, 0x{f2u(2.0**-KH):x}')
    I(f's_mov_b32 s{S_JB}, 0')
    I(f's_mov_b32 s{S_WID}, 128')
    I(f'v_and_b32 v{V_J4}, 7, v{V_LANE}')
    I(f'v_lshlrev_b32 v{V_J4}, 3, v{V_J4}')
    if CM:
        I(f'v_and_b32 v{X+1}, 56, v{V_LANE}')
        I(f's_and_b32 s{S_T}, s{S_W}, 1')
        I(f's_lshl_b32 s{S_T}, s{S_T}, 7')
        I(f's_lshr_b32 s{S_T+1}, s{S_W}, 1')
        I(f's_add_u32 s{S_T}, s{S_T}, s{S_T+1}')
    else:
        I(f'v_lshrrev_b32 v{X+1}, 3, v{V_LANE}')
        I(f's_lshl_b32 s{S_T}, s{S_W}, 4')
    I(f'v_add_u32 v{X+1}, s{S_T}, v{X+1}')
    I(f'v_lshlrev_b32 v{V_TAB+2}, 11, v{X+1}')
    I(f'v_mul_u32_u24 v{V_CB4}, {CAP*4}, v{X+1}')
    I(f'v_add_u32 v{V_CB4}, v{V_CB4}, v{V_J4}')
    I(f'v_and_b32 v{V_CH8}, 31, v{V_LANE}')
    I(f'v_lshlrev_b32 v{V_CH8}, 3, v{V_CH8}')
    I(f'v_add_u32 v{V_CHP}, {PT}, v{V_CH8}')
    phase0_addr()
    a5_const()
    if not F1:
        I(f's_waitcnt vmcnt({8 + NEE if ORDER == 0 else 0})')
        I('s_barrier')
    stamp(2)
    def late_loads():
        if LATE:
            for k in range(NS, 4):
                src_load(k)
        for k in range(NEE, 4):
            e_load(k)
        I(f'v_mov_b32 v12, 0')
        I(f'global_load_dword v10, v12, {sp(S_DBG)} sc1')
        if TCH:
            I(f'v_lshlrev_b32 v13, 13, v{V_LANE}')
            I(f'buffer_load_dword v60, v13, {sr4(S_RW)}, 0 offen')
            I(f'buffer_load_dword v61, v13, {sr4(S_RE)}, 0 offen')
            I(f'buffer_load_dword v62, v13, {sr4(S_TAB)}, 0 offen')
            I(f'buffer_load_dword v63, v13, {sr4(S_NTS)}, 0 offen')
        srd_off(S_EA, S_WSP, S_WSP + 1, '0x%x' % WS_TAB, KREP * 0x80000)
        if LATE:
            srd_off(S_SRC, S_WSP, S_WSP + 1, '0x%x' % WS_RE, NWG * CAP * 8)
    if not LATE:
        late_loads()
    if not F1:
        phase0a()
    I(f's_mov_b32 s{S_T}, -{NB}')
    I(f'v_mov_b32 v{X+1}, 4')
    BN, WD, RK = 28, 32, 36
    for k in range(4):
        I(f's_waitcnt vmcnt({((3 + NS + NEE if ORDER == 0 else 6 + NS + NEE) if LATE else (12 if ORDER == 0 else 15) + TCH) - k})')
        I(f's_mov_b64 exec, {sp(S_MASK+2*k)}')
        if k == 3:
            I('s_cbranch_execz L_B1')
        I(f'v_mul_u32_u24 v{BN+k}, 21400, v{64+k}')
        I(f'v_lshrrev_b32 v{BN+k}, 20, v{BN+k}')
        I(f'v_mad_i32_i24 v{WD+k}, v{BN+k}, s{S_T}, v{64+k}')
        I(f'v_lshlrev_b32 v{BN+k}, 2, v{BN+k}')
        I(f'ds_add_rtn_u32 v{RK+k}, v{BN+k}, v{X+1} offset:{HIST}')
        I(f'v_lshlrev_b32 v{WD+k}, 26, v{WD+k}')
    L('L_B1')
    I('s_mov_b64 exec, -1')
    if LATE:
        late_loads()
    I(f'v_add_u32 v{X+1}, {NTI}, v{X}')
    stamp(3)
    I({0: 's_waitcnt lgkmcnt(0)', 1: 's_waitcnt vmcnt(1) lgkmcnt(0)', 2: f's_waitcnt vmcnt({9 + TCH}) lgkmcnt(0)'}[ORDER])
    I('s_barrier')
    stamp(4)
    if not F1:
        I(f'ds_read_b128 v[112:115], v{X+1}')
    I(f's_cmp_lg_u32 s{S_W}, 0')
    I('s_cbranch_scc1 L_NOSCAN')
    I(f'ds_read_b128 v[96:99], v{X} offset:{HIST}')
    I('s_waitcnt lgkmcnt(0)')
    for k in range(4):
        I(f'v_add_u32 v{108+k}, 4, v{96+k}')
        I(f'v_and_b32 v{108+k}, -8, v{108+k}')
    I('v_add_u32 v101, v108, v109')
    I('v_add_u32 v102, v101, v110')
    I('v_add_u32 v103, v102, v111')
    I('v_mov_b32 v104, v103')
    wave_scan(104)
    I(f'v_readlane_b32 s{S_T+4}, v104, 63')
    I('v_sub_u32 v104, v104, v103')
    I(f'v_mov_b32 v100, {MISC+8}')
    I(f'v_mov_b32 v105, s{S_T+4}')
    I('ds_write_b32 v100, v105')
    I('v_add_u32 v105, v104, v108')
    I('v_add_u32 v106, v104, v101')
    I('v_add_u32 v107, v104, v102')
    I(f'ds_write_b128 v{X}, v[104:107] offset:{HBASE}')
    for k in range(4):
        I(f'v_lshl_or_b32 v{108+k}, v{96+k}, 16, v{104+k}')
    I(f'ds_write_b128 v{X}, v[108:111] offset:{HIST}')
    L('L_NOSCAN')
    if F1:
        phase0a()
    I('s_waitcnt lgkmcnt(0)')
    if not F1:
        I(f'buffer_store_dwordx4 v[112:115], v{X}, {sr4(S_NTS)}, 0 offen' + SC)
    if T1:
        I(f's_mul_i32 s{S_T+4}, s3, {NB*128}')
        I(f'v_mov_b32 v60, s{S_T+4}')
        I(f'buffer_load_dword v61, v60, {sr4(S_OUT)}, 0 offen')
    if not SRCL:
        I(f's_waitcnt vmcnt({4 + TCH + T1 if LATE else 6 - F1 + TCH + T1})')
        for k in range(4):
            I(f'v_lshl_or_b32 v{WD+k}, v{68+k}, 3, v{WD+k}')
    I('s_barrier')
    stamp(5)
    if F1:
        I(f'ds_read_b128 v[112:115], v{X+1}')
    for k in range(4):
        I(f's_mov_b64 exec, {sp(S_MASK+2*k)}')
        I(f'ds_read_b32 v{BN+k}, v{BN+k} offset:{HBASE}')
    if F1:
        I('s_mov_b64 exec, -1')
        I('s_waitcnt lgkmcnt(4)')
        I(f'buffer_store_dwordx4 v[112:115], v{X}, {sr4(S_NTS)}, 0 offen' + SC)
    if SRCL == 1:
        I(f's_waitcnt vmcnt({5 + TCH + T1})')
        for k in range(4):
            I(f'v_lshl_or_b32 v{WD+k}, v{68+k}, 3, v{WD+k}')
    if SRCL < 2:
        I(f's_waitcnt vmcnt({1 + TCH + T1})')
        I(f'v_readfirstlane_b32 s{S_TAG}, v10')
    for k in range(4):
        I(f's_mov_b64 exec, {sp(S_MASK+2*k)}')
        if k == 3:
            I('s_cbranch_execz L_B2')
        if SRCL == 2:
            assert LATE and not TCH and not T1
            order_ = [f's{j}' for j in range(NS)] + [f'e{j}' for j in range(NEE)] + [f's{j}' for j in range(NS, 4)] + [f'e{j}' for j in range(NEE, 4)] + ['tag', 'nt']
            need_ = max(order_.index(f's{k}'), order_.index(f'e{k}'))
            I(f's_waitcnt vmcnt({len(order_) - 1 - need_}) lgkmcnt({3 - k + 2*k})')
            I(f'v_lshl_or_b32 v{WD+k}, v{68+k}, 3, v{WD+k}')
        else:
            I(f's_waitcnt lgkmcnt({3 - k + 2*k})')
        I(f'v_add_u32 v{RK+k}, v{BN+k}, v{RK+k}')
        I(f'v_add_u32 v{BN+k}, v{RK+k}, v{RK+k}')
        I(f'ds_write_b32 v{RK+k}, v{WD+k} offset:{STGW}')
        I(f'ds_write_b64 v{BN+k}, v[{72+2*k}:{73+2*k}] offset:{STGE}')
    L('L_B2')
    I('s_mov_b64 exec, -1')
    if SRCL == 2:
        I('s_waitcnt vmcnt(1)')
        I(f'v_readfirstlane_b32 s{S_TAG}, v10')
    I(f'v_mov_b32 v13, {MISC+8}')
    I(f'ds_read_b32 v13, v13')
    I(f's_mov_b32 s{S_T}, 0x40000')
    L('L_TAGP')
    I(f's_cmp_lg_u32 s{S_TAG}, 0')
    I('s_cbranch_scc1 L_TAGD')
    I(f'v_mov_b32 v12, 0')
    I(f'global_load_dword v10, v12, {sp(S_DBG)} sc1')
    I('s_waitcnt vmcnt(0)')
    I(f'v_readfirstlane_b32 s{S_TAG}, v10')
    I(f's_sub_u32 s{S_T}, s{S_T}, 1')
    I('s_cbranch_scc1 L_END')
    I('s_branch L_TAGP')
    L('L_TAGD')
    I(f'v_add_u32 v{X+2}, 16384, v{X}')
    I(f'v_lshlrev_b32 v12, 3, v{V_LANE}')
    I(f's_mul_i32 s{S_TAG2}, s{S_TAG}, 0x9e3779b1')
    I(f's_and_b32 s{S_TAG2}, s{S_TAG2}, 0x{TAGM:x}')
    I('s_waitcnt lgkmcnt(0)')
    I(f'v_readfirstlane_b32 s{S_T}, v13')
    I('s_barrier')
    I(f's_add_u32 s{S_T}, s{S_T}, 127')
    I(f's_and_b32 s{S_RW+2}, s{S_T}, -128')
    I(f's_lshl_b32 s{S_RE+2}, s{S_RW+2}, 1')
    stamp(6)
    if opt('early', 0):
        I(f'ds_read_b64 v[92:93], v12 offset:{HIST}')
        I(f'ds_read_b64 v[94:95], v12 offset:{HIST+512}')
        I(f'v_lshlrev_b32 v60, 4, v{V_LANE}')
        I('s_waitcnt lgkmcnt(0)')
        for k in range(4):
            I(f'v_or_b32 v{120+2*k}, s{S_TAG2}, v{92+k}')
            I(f'v_mov_b32 v{121+2*k}, s{S_TAG}')
        I(f's_cmp_lg_u32 s{S_W}, 0')
        I('s_cbranch_scc1 L_EARLY')
        I(f'buffer_store_dwordx4 v[120:123], v60, {sr4(S_TAB)}, 0 offen' + SC)
        I(f'buffer_store_dwordx4 v[124:127], v60, {sr4(S_TAB)}, 0 offen offset:1024' + SC)
        L('L_EARLY')
    I(f'ds_read_b128 v[64:67], v{X} offset:{STGW}')
    I(f'ds_read_b128 v[68:71], v{X} offset:{STGE}')
    I(f'ds_read_b128 v[72:75], v{X} offset:{STGE+16384}')
    I(f'ds_read_b64 v[92:93], v12 offset:{HIST}')
    I(f'ds_read_b64 v[94:95], v12 offset:{HIST+512}')
    I('s_waitcnt lgkmcnt(4)')
    I(f'buffer_store_dwordx4 v[64:67], v{X}, {sr4(S_RW)}, 0 offen' + SC)
    I('s_waitcnt lgkmcnt(3)')
    I(f'buffer_store_dwordx4 v[68:71], v{X}, {sr4(S_RE)}, 0 offen' + SC)
    I('s_waitcnt lgkmcnt(2)')
    I(f'buffer_store_dwordx4 v[72:75], v{X+2}, {sr4(S_RE)}, 0 offen' + SC)
    I('s_waitcnt lgkmcnt(0)')
    for k in range(4):
        I(f'v_or_b32 v{120+2*k}, s{S_TAG2}, v{92+k}')
        I(f'v_mov_b32 v{121+2*k}, s{S_TAG}')
    PF1 = opt('pf1', 0)
    if PF1:
        nt_prefetch(12, 49 - PF1, PF1, 61)
    pre = opt('pre', 'xbc').replace('0', '')
    def piece(c):
        if c == 'x':
            zregs()
            zero_range(EXTRA, 16384, X + 2, X)
            fill_desca()
        elif c == 'b':
            phase0b()
        elif c == 'c':
            phase0c()
    for c in pre:
        piece(c)
    stamp(7)
    I(f's_lshl_b32 s{S_T+1}, s3, 3')
    I(f'v_add_u32 v76, s{S_T+1}, v{V_TAB+2}')
    I(f'v_add_u32 v77, {RSTEP*2048}, v76')
    I(f'v_lshlrev_b32 v60, 4, v{V_LANE}')
    for r in range(2):
        I(f's_mov_b64 {sp(S_MASK+2*r)}, -1')
    I(f's_waitcnt vmcnt({1 if PF1 else 0})')
    stamp(8)
    I('s_barrier')
    stamp(9)
    I(f's_cmp_lg_u32 s{S_W}, {99 if opt("early", 0) else 0}')
    I('s_cbranch_scc1 L_POLL0')
    for k in range(KREP - 1, -1, -1):
        I(f's_mov_b32 s{S_T}, 0x{k*0x80000:x}')
        I(f'buffer_store_dwordx4 v[120:123], v60, {sr4(S_TAB)}, s{S_T} offen' + SC)
        I(f'buffer_store_dwordx4 v[124:127], v60, {sr4(S_TAB)}, s{S_T} offen offset:1024' + SC)
    L('L_POLL0')
    PF2 = opt('pf2', 0)
    if PF2:
        nt_prefetch(61, 49 - PF2, PF2, 63)
    EP = opt('ep', 0)
    for r in range(2 if EP else 0):
        I(f'buffer_load_dwordx2 {p(64+2*r)}, v{76+r}, {sr4(S_EA)}, 0 offen' + LSC)
    for c in 'xbc':
        if c not in pre:
            piece(c)
    fill_words()
    zregs()
    zero_range(LE, CNT - LE, X + 2, X)
    ptr_consts()
    I(f's_mov_b32 s{S_T}, 0x40000')
    I(f's_mov_b32 s{S_T+1}, 0x{TAGM:x}')
    if opt('ps', 0):
        I(f's_sleep {opt("ps", 0)}')
    if EP:
        I('s_branch L_POLLC')
    L('L_POLL')
    for r in range(2):
        I(f's_mov_b64 exec, {sp(S_MASK+2*r)}')
        I(f'buffer_load_dwordx2 {p(64+2*r)}, v{76+r}, {sr4(S_EA)}, 0 offen' + LSC)
    L('L_POLLC')
    for r in range(2):
        I(f's_waitcnt vmcnt({1-r})')
        I(f's_mov_b64 exec, {sp(S_MASK+2*r)}')
        I(f'v_xor_b32 v{V_TAB+r}, s{S_TAG2}, v{64+2*r}')
        I(f'v_xor_b32 v{65+2*r}, s{S_TAG}, v{65+2*r}')
        I(f'v_and_or_b32 v{65+2*r}, v{V_TAB+r}, s{S_T+1}, v{65+2*r}')
        I(f'v_cmp_ne_u32 {sp(S_MASK+2*r)}, 0, v{65+2*r}')
    I(f's_or_b64 {sp(S_T+2)}, {sp(S_MASK)}, {sp(S_MASK+2)}')
    I('s_cbranch_scc0 L_POLLED')
    I(f's_sub_u32 s{S_T}, s{S_T}, 1')
    I('s_cbranch_scc1 L_END')
    if opt('sleep', 0):
        I(f's_sleep {opt("sleep", 0)}')
    I('s_branch L_POLL')
    L('L_POLLED')
    I('s_mov_b64 exec, -1')
    stamp(10)
    def RB(s_): return 64 + 8 * (s_ >> 1)
    def MK(s_): return sp(S_MASK + 2 * s_)
    AD = X
    L('L_PASS')
    I(f'v_add_u32 v{X+10}, s{S_JB}, v{V_CB4}')
    I(f'v_add_u32 v{X+8}, s{S_JB}, v{V_J4}')
    SDW = 'src0_sel:DWORD src1_sel:WORD_1'
    for r in range(2):
        I(f'v_add_u32_sdwa v{X+r}, v{V_TAB+r}, v{X+10} dst_sel:DWORD dst_unused:UNUSED_PAD src0_sel:WORD_0 src1_sel:DWORD')
        I(f'v_cmp_lt_u32_sdwa {MK(2*r)}, v{X+8}, v{V_TAB+r} {SDW}')
        if r:
            I(f'v_add_u32 v{X+r}, {RSTEP*CAP*4}, v{X+r}')
        I(f'v_add_u32 v{X+2+r}, v{X+r}, v{X+r}')
        I(f's_mov_b64 exec, {MK(2*r)}')
        I(f'buffer_load_dwordx2 {p(RB(2*r)+4)}, v{X+r}, {sr4(S_DST)}, 0 offen' + LSC)
        I(f'buffer_load_dwordx4 {vr(RB(2*r),4)}, v{X+2+r}, {sr4(S_SRC)}, 0 offen' + LSC)
        I('s_mov_b64 exec, -1')
    I(f'v_add_u32 v{X+9}, s{S_WID}, v{X+8}')
    I(f'v_add_u32 v{X+10}, 4, v{X+8}')
    I(f's_cmp_eq_u32 s{S_WID}, 128')
    I(f's_cselect_b32 s{S_T}, 64, 0x10000')
    I(f'v_add_u32 v{X+8}, s{S_T}, v{X+8}')
    for r in range(2):
        I(f'v_cmp_lt_u32_sdwa {MK(4+2*r)}, v{X+8}, v{V_TAB+r} {SDW}')
        I(f'v_cmp_lt_u32_sdwa {MK(2*r+1)}, v{X+10}, v{V_TAB+r} {SDW}')
    I(f'v_add_u32 v{X+8}, 4, v{X+8}')
    for r in range(2):
        I(f's_mov_b64 exec, {MK(4+2*r)}')
        I(f'buffer_load_dwordx2 {p(RB(4+2*r)+4)}, v{X+r}, {sr4(S_DST)}, 0 offen offset:64' + LSC)
        I(f'buffer_load_dwordx4 {vr(RB(4+2*r),4)}, v{X+2+r}, {sr4(S_SRC)}, 0 offen offset:128' + LSC)
    I('s_mov_b64 exec, -1')
    for r in range(2):
        I(f'v_cmp_lt_u32_sdwa {MK(5+2*r)}, v{X+8}, v{V_TAB+r} {SDW}')
    I(f'v_cmp_lt_u32_sdwa vcc, v{X+9}, v{V_TAB} {SDW}')
    I(f'v_cmp_lt_u32_sdwa {sp(S_T)}, v{X+9}, v{V_TAB+1} {SDW}')
    I(f'v_mov_b32 v{X+8}, 4')
    I(f's_or_b64 vcc, vcc, {sp(S_T)}')
    I(f's_cbranch_scc0 L_NOMORE')
    I(f'v_mov_b32 v{X+9}, {MISC}')
    I(f'ds_write_b32 v{X+9}, v{X+8}')
    L('L_NOMORE')
    stamp(11)
    e('    ; count')
    for s_ in range(8):
        if s_ >= 4:
            I(f's_mov_b64 exec, {MK(s_)}')
            I(f's_cbranch_execz L_C{s_}')
        if s_ % 2 == 0:
            I(f's_waitcnt vmcnt({7 - s_})')
        if s_ < 4:
            I(f's_mov_b64 exec, {MK(s_)}')
        I(f'v_lshrrev_b32 v{AD+s_}, 24, v{RB(s_)+4+(s_&1)}')
        if opt('safe', 0):
            I(f'v_and_b32 v{AD+s_}, 0xfc, v{AD+s_}')
        I(f'ds_add_rtn_u32 v{RB(s_)+6+(s_&1)}, v{AD+s_}, v{X+8} offset:{CNT}')
        if s_ >= 4:
            L(f'L_C{s_}')
    I('s_mov_b64 exec, -1')
    I(f'v_lshlrev_b32 v{X+8}, 2, v{V_LANE}')
    I(f'v_mov_b32 v{X+9}, {MISC}')
    I(f's_mov_b32 s{S_T+2}, 0x1fff8')
    I('s_waitcnt lgkmcnt(0)')
    I('s_barrier')
    stamp(12)
    if NPFM in (2, 3, 4):
        nt_prefetch(60, dst=62)
        I(f's_mov_b32 s{S_T+2}, 0x1fff8')
    NG, GS, MI = X + 10, X + 11, X + 12
    I(f'ds_read_b32 v{NG}, v{X+8} offset:{CNT}')
    I(f'ds_read_b32 v{X+9}, v{X+9}')
    I('s_waitcnt lgkmcnt(1)')
    I(f'v_add_u32 v{NG}, 28, v{NG}')
    I(f'v_and_b32 v{NG}, 0xffffffe0, v{NG}')
    I(f'v_mov_b32 v{GS}, v{NG}')
    wave_scan(GS)
    I(f'v_readlane_b32 s{S_T}, v{GS}, 63')
    I(f'v_sub_u32 v{GS}, v{GS}, v{NG}')
    if PROF == 5:
        stamp(19)
    I(f'ds_write_b32 v{X+8}, v{GS} offset:{BASET}')
    for s_ in range(8):
        I(f's_mov_b64 exec, {MK(s_)}')
        I(f'ds_read_b32 v{AD+s_}, v{AD+s_} offset:{BASET}')
    I('s_mov_b64 exec, -1')
    I(f'v_readfirstlane_b32 s{S_MORE}, v{X+9}')
    out.insert(len(out) - 1, '    s_waitcnt lgkmcnt(9)')
    I(f's_lshr_b32 s{S_T}, s{S_T}, 5')
    I(f's_cmp_eq_u32 s{S_WID}, 128')
    I(f's_cselect_b32 s{S_T+1}, {MAXG}, -1')
    I(f's_cmp_gt_u32 s{S_T}, s{S_T+1}')
    I('s_cbranch_scc1 L_OVERFLOW')
    def place(tag):
        I(f's_waitcnt vmcnt({NPF}) lgkmcnt(0)')
        for s_ in range(8):
            wd, rk, ee = RB(s_) + 4 + (s_ & 1), RB(s_) + 6 + (s_ & 1), RB(s_) + 2 * (s_ & 1)
            I(f's_mov_b64 exec, {MK(s_)}')
            if s_ >= 4:
                I(f's_cbranch_execz L_P{tag}{s_}')
            I(f'v_add_u32 v{AD+s_}, v{AD+s_}, v{rk}')
            I(f'v_and_b32 v{wd}, s{S_T+2}, v{wd}')
            I(f'v_add_u32 v{rk}, v{AD+s_}, v{AD+s_}')
            I(f'ds_write_b32 v{AD+s_}, v{wd} offset:{LS}')
            I(f'ds_write_b64 v{rk}, {p(ee)} offset:{LE}')
            if s_ >= 4:
                L(f'L_P{tag}{s_}')
        I('s_mov_b64 exec, -1')
    if PROF == 5:
        stamp(20)
    SWAP = opt('swap', 0)
    if SWAP:
        I(f's_bitcmp1_b32 s{S_W}, {SWAP}')
        I('s_cbranch_scc0 L_DFIRST')
        place('a')
        L('L_DFIRST')
    SB_, SR_, SG0 = S_T + 4, S_T + 5, S_T + 6
    I(f's_add_u32 s{S_T}, s{S_T}, 3')
    I(f's_lshr_b32 s{S_T}, s{S_T}, 2')
    I(f's_lshr_b32 s{SB_}, s{S_T}, 4')
    I(f's_and_b32 s{SR_}, s{S_T}, 15')
    I(f's_add_u32 s{S_T+1}, s{SB_}, 1')
    I(f'v_cvt_f32_u32 v{MI}, s{S_T+1}')
    I(f'v_cvt_f32_u32 v{MI+1}, s{SB_}')
    I(f'v_rcp_f32 v{MI}, v{MI}')
    I(f'v_rcp_f32 v{MI+1}, v{MI+1}')
    I(f's_mul_i32 s{SG0}, s{SR_}, s{S_T+1}')
    I(f's_lshl_b32 s{SG0}, s{SG0}, 2')
    I(f'v_lshrrev_b32 v{GS}, 5, v{GS}')
    I(f'v_mul_f32 v{MI}, 0x47800000, v{MI}')
    I(f'v_mul_f32 v{MI+1}, 0x47800000, v{MI+1}')
    I(f'v_lshrrev_b32 v{NG}, 5, v{NG}')
    I(f'v_cvt_u32_f32 v{MI}, v{MI}')
    I(f'v_cvt_u32_f32 v{MI+1}, v{MI+1}')
    I(f's_cmp_lt_u32 s{S_W}, s{SR_}')
    I(f's_cselect_b32 s{S_L}, s{S_T+1}, s{SB_}')
    I(f'v_add_u32 v{MI}, 2, v{MI}')
    I(f'v_add_u32 v{MI+1}, 2, v{MI+1}')
    I(f's_min_u32 s{S_T}, s{S_W}, s{SR_}')
    I(f's_mul_i32 s{S_T+3}, s{S_W}, s{SB_}')
    I(f's_add_u32 s{S_T+3}, s{S_T+3}, s{S_T}')
    I(f's_sub_u32 s{S_T+1}, 0, s{S_T+1}')
    I(f's_sub_u32 s{SB_}, 0, s{SB_}')
    I(f's_lshl_b32 s{SR_}, s{SR_}, 2')
    D0, D1, D2, D3, NR = 96, 97, 98, 99, 100
    I(f'v_lshlrev_b32 v{NR}, 8, v{V_LANE}')
    I(f'v_add_u32 v{NR+1}, {ACCN}, v{NR}')
    I(f's_mov_b32 s{S_T}, s{S_W}')
    L('L_DLOOP')
    I(f'v_cmp_lt_u32 vcc, s{S_T}, v{NG}')
    I('s_and_b64 exec, exec, vcc')
    I('s_cbranch_execz L_DEND')
    I(f'v_add_u32 v{D0}, s{S_T}, v{GS}')
    I(f'v_subrev_u32 v{D1}, s{SG0}, v{D0}')
    I(f'v_cmp_gt_u32 vcc, s{SG0}, v{D0}')
    I(f'v_mul_u32_u24 v{D2}, v{D0}, v{MI}')
    I(f'v_mul_u32_u24 v{D3}, v{D1}, v{MI+1}')
    I(f'v_lshrrev_b32 v{D2}, 16, v{D2}')
    I(f'v_lshrrev_b32 v{D3}, 16, v{D3}')
    I(f'v_mad_i32_i24 v{D0}, v{D2}, s{S_T+1}, v{D0}')
    I(f'v_mad_i32_i24 v{D1}, v{D3}, s{SB_}, v{D1}')
    I(f'v_add_u32 v{D3}, s{SR_}, v{D3}')
    I(f'v_cndmask_b32 v{D0}, v{D1}, v{D0}, vcc')
    I(f'v_cndmask_b32 v{D2}, v{D3}, v{D2}, vcc')
    I(f'v_cmp_le_u32 vcc, s{S_T}, v{D0}')
    I(f'v_lshl_add_u32 v{D0}, v{D0}, 6, v{D2}')
    I(f'v_lshlrev_b32 v{D1}, 8, v{D2}')
    I(f'v_lshlrev_b32 v{D0}, 2, v{D0}')
    I(f'v_add_u32 v{D1}, {EXTRA}, v{D1}')
    I(f'v_add_u32 v{D3}, {DESCA}, v{D0}')
    I(f'v_cndmask_b32 v{D1}, v{D1}, v{NR+1}, vcc')
    I(f'ds_write_b32 v{D0}, v{NR} offset:{DESCP}')
    I(f'ds_write_b32 v{D3}, v{D1}')
    I(f's_add_u32 s{S_T+7}, s{S_T}, 1')
    I(f'v_cmp_eq_u32 vcc, s{S_T+7}, v{NG}')
    I(f's_and_saveexec_b64 {sp(S_EX)}, vcc')
    I(f'ds_write_b32 v{X+8}, v{D2} offset:{NINFO+256}')
    I(f's_mov_b64 exec, {sp(S_EX)}')
    I(f's_cmp_lg_u32 s{S_T}, 0')
    I('s_cbranch_scc1 L_DNF')
    I(f'ds_write_b32 v{X+8}, v{D2} offset:{NINFO}')
    L('L_DNF')
    I(f's_add_u32 s{S_T}, s{S_T}, 16')
    I('s_branch L_DLOOP')
    L('L_DEND')
    I('s_mov_b64 exec, -1')
    I(f's_lshl_b32 s{S_T}, s{S_T+3}, 7')
    I(f's_lshl_b32 s{S_T+1}, s{S_L}, 5')
    I(f'v_mov_b32 v{D0}, s{S_T}')
    I(f'v_mad_u32_u24 v{V_PS0}, v{V_PS1}, s{S_T+1}, v{D0}')
    I(f'v_add_u32 v{D0}, v{D0}, v{D0}')
    I(f'v_add_u32 v{V_PS1}, s{S_T+1}, v{V_PS0}')
    I(f'v_add_u32 v{V_PE}, v{V_PE}, v{D0}')
    I(f's_lshl_b32 s{S_T+1}, s{S_L}, 6')
    I(f'v_mad_u32_u24 v{V_PE}, v{V_VAP}, s{S_T+1}, v{V_PE}')
    if opt('safe', 0):
        I(f's_min_u32 s{S_L}, s{S_L}, 9')
        I(f's_mov_b32 s{S_MORE}, 0')
    I(f's_mov_b32 s{S_CNT}, s{S_L}')
    if SWAP:
        I(f's_bitcmp1_b32 s{S_W}, {SWAP}')
        I('s_cbranch_scc1 L_PDONE')
    if PROF == 5:
        stamp(21)
    place('b')
    L('L_PDONE')
    stamp(13)
    I('s_waitcnt lgkmcnt(0)')
    I('s_barrier')
    stamp(14)
    I(f's_cmp_eq_u32 s{S_L}, 0')
    I('s_cbranch_scc1 L_FOLD')
    lg = Lg()
    FP = opt('fp', 0)
    if FP:
        for lvl in (3, 2, 1):
            I(f's_cmp_lt_u32 s{S_W}, {4 * (4 - lvl)}')
            I(f's_cbranch_scc0 L_FP{lvl}')
            I(f's_setprio {lvl}')
            I('s_branch L_FPD')
            L(f'L_FP{lvl}')
        L('L_FPD')
    s_reads(lg, 0)
    lg.op('dP', f'ds_read_b64 {p(V_VAP)}, v{V_PD}')
    lg.op('dA', f'ds_read_b64 {p(V_VAA[0])}, v{V_PD} offset:{DESCA-DESCP}')
    lg.op('e', f'ds_read_b64 {p(A5)}, v{V_PE}')
    lg.need('S0', 'S1', 'S2', 'S3')
    s_safe()
    STG_ = [int(x) for x in opt('stag', '0,0,0').split(',')]
    for gi, d in enumerate(STG_):
        if d:
            I(f's_cmp_ge_u32 s{S_W}, {4 * (gi + 1)}')
            I(f's_cbranch_scc0 L_ST{gi}')
            I(f's_sleep {d}')
            L(f'L_ST{gi}')
    for n in range(2):
        for i in range(16):
            I(gload(n, i))
        if n == 0 and FP == 2:
            I('s_setprio 0')
    s_reads(lg, 1)
    I(f'v_mov_b32 v{V_C8P}, v{V_CH8}')
    I(f'v_mov_b32 v{V_C8P+1}, v{V_CH8}')
    I(f'v_mov_b32 v{V_CPP}, v{V_CHP}')
    I(f'v_mov_b32 v{V_CPP+1}, v{V_CHP}')
    if M8:
        I(f'v_mov_b32 v{V_SCP}, 0x{f2u(2.0**KH):x}')
        I(f'v_mov_b32 v{V_SCP+1}, 0x{f2u(2.0**KH):x}')
    I(f's_mov_b32 s{S_BP0}, 64')
    I(f's_mov_b32 s{S_BP0+1}, 64')
    I(f's_mov_b32 s{S_BP1}, 128')
    I(f's_mov_b32 s{S_BP1+1}, 512')
    lg.need('dP', 'dA')
    va_add(V_VAP, V_VAA[0])
    lg.op('P0a', f'ds_read_b32 v{B5[0]+2}, v{V_VAP}')
    lg.op('P0b', f'ds_read_b32 v{B5[0]+3}, v{V_VAP+1}')
    lg.op('P1a', f'ds_read_b32 v{B5[1]+2}, v{V_VAP} offset:4')
    lg.op('P1b', f'ds_read_b32 v{B5[1]+3}, v{V_VAP+1} offset:4')
    I(f's_cmp_eq_u32 s{S_CNT}, 1')
    I(f's_cselect_b64 {sp(S_LDX)}, 0, {LDXV}')
    I('s_waitcnt lgkmcnt(0)')
    lg.q = []
    if opt('prio', 3):
        I('s_setprio 3')
    stamp(15)
    rstamp(28)
    half(lg, 0, 0, 0, False)
    if PROF == 4:
        stamp(19)
        lg.q = []
    state0 = list(lg.q)
    def step(par, uo):
        prio(f'm{par}', 1)
        half(lg, 1, par, uo)
        if PROF == 4:
            I('s_memtime s[98:99]')
            I(f's_sub_u32 s92, s{S_L}, s{S_CNT}')
            I(f's_add_u32 m0, s92, 20')
            I('s_waitcnt lgkmcnt(0)')
            I(f'v_writelane_b32 v{V_PROF}, s98, m0')
        I(f's_sub_u32 s{S_CNT}, s{S_CNT}, 1')
        I(f's_cmp_eq_u32 s{S_CNT}, 0')
        I(f's_cbranch_scc1 L_FIN{par}')
        I(f's_cmp_eq_u32 s{S_CNT}, 1')
        I(f's_cselect_b64 {sp(S_LDX)}, 0, {LDXV}')
        prio(f'{par}')
        half(lg, 0, par ^ 1, uo + 1)
    def loop_body():
        step(0, 0)
        step(1, 1)
        I(f'v_lshl_add_u64 {p(V_PS0)}, {p(V_PS0)}, 0, {sp(S_BP0)}')
        I(f'v_lshl_add_u64 {p(V_PE)}, {p(V_PE)}, 0, {sp(S_BP1)}')
        I('s_branch L_LOOP')
    mark = len(out)
    loop_body()
    del out[mark:]
    qb = list(lg.q)
    n = min(len(qb), len(state0))
    assert PROF == 4 or qb[len(qb)-n:] == state0[len(state0)-n:], (state0, qb)
    lg.q = list(qb if len(qb) >= len(state0) else state0)
    e('.p2align 3')
    L('L_LOOP')
    mark = len(out)
    loop_body()
    drop = opt('drop', '')
    if drop:
        body = out[mark:]
        keep = []
        for l in body:
            t = l.strip()
            if 'v' in drop and (t.startswith('buffer_load') or t.startswith('s_mov_b64 exec') or 'vmcnt' in t):
                continue
            if 'l' in drop and (t.startswith('ds_') or 'lgkmcnt' in t):
                continue
            if 'm' in drop and t.startswith('v_mfma'):
                continue
            if 'n' in drop and t.startswith('s_nop'):
                continue
            keep.append(l)
        out[mark:] = keep
    assert lg.q == qb, (lg.q, qb)
    print('loop entry queue', state0, 'back edge queue', qb, file=sys.stderr)
    for pr in range(2):
        L(f'L_FIN{pr}')
        if M8:
            I(f'v_pk_mul_f32 {p(V_T01N)}, {p(V_T01N)}, {p(V_T23D)}')
            I(f'v_pk_mul_f32 {p(V_T23D)}, {p(V_T01D)}, {p(V_T23D)}')
            I(f'v_pk_fma_f32 {p(V_T01N)}, {p(V_T23N)}, {p(V_T01D)}, {p(V_T01N)}')
            I(f'v_rcp_f32 v{V_T23D}, v{V_T23D}')
            I(f'v_rcp_f32 v{V_T23D+1}, v{V_T23D+1}')
            I('s_waitcnt lgkmcnt(0)')
            I(f'v_pk_fma_f32 {p(V_MB)}, {p(V_T01N)}, {p(V_T23D)}, {p(V_MB)}')
        else:
            for r_ in (V_T01D, V_T01D + 1, V_T23D, V_T23D + 1):
                I(f'v_rcp_f32 v{r_}, v{r_}')
            I('s_waitcnt lgkmcnt(0)')
            I(f'v_pk_fma_f32 {p(V_MB)}, {p(V_T01N)}, {p(V_T01D)}, {p(V_MB)}')
            I(f'v_pk_fma_f32 {p(V_MB)}, {p(V_T23N)}, {p(V_T23D)}, {p(V_MB)}')
        acc_write(Lg(), V_VAA[pr])
        if pr == 0:
            I('s_branch L_FOLD')
    L('L_FOLD')
    stamp(16)
    FL = opt('fl', 0)
    I(f'v_lshrrev_b32 v{X}, 4, v{V_TID}')
    I(f'v_and_b32 v{X+1}, 15, v{V_TID}')
    if FL:
        I(f'v_lshlrev_b32 v{X+6}, 3, v{X+1}')
        I(f'v_lshrrev_b32 v{X+2}, 3, v{X+1}')
        I(f'v_and_b32 v{X+1}, 7, v{X+1}')
        I(f'v_lshlrev_b32 v{X+1}, 5, v{X+1}')
        I(f'v_lshl_add_u32 v{X+1}, v{X+2}, 2, v{X+1}')
    else:
        I(f'v_lshlrev_b32 v{X+6}, 2, v{X+1}')
        I(f'v_lshlrev_b32 v{X+1}, 4, v{X+1}')
    I(f'v_lshl_add_u32 v{X+2}, v{X}, 8, v{X+1}')
    I(f'v_add_u32 v{X+2}, {ACCN}, v{X+2}')
    I(f'v_add_u32 v{X+1}, {EXTRA}, v{X+1}')
    def rd4(dst, ad):
        if FL:
            I(f'ds_read2_b32 v[{dst}:{dst+1}], v{ad} offset0:0 offset1:2')
            I(f'ds_read2_b32 v[{dst+2}:{dst+3}], v{ad} offset0:4 offset1:6')
        else:
            I(f'ds_read_b128 v[{dst}:{dst+3}], v{ad}')
    I(f'v_lshlrev_b32 v{X+3}, 2, v{X}')
    I(f's_mul_i32 s{S_T+4}, s3, {NB*128}')
    I(f'v_lshl_add_u32 v{X+6}, v{X}, 7, v{X+6}')
    I(f'v_add_u32 v{X+6}, s{S_T+4}, v{X+6}')
    I(f'v_mov_b32 v{X+7}, 0')
    I(f'ds_read_b32 v{X+4}, v{X+3} offset:{NINFO}')
    I(f'ds_read_b32 v{X+5}, v{X+3} offset:{NINFO+256}')
    I(f's_mov_b32 s{S_T+2}, 0x{f2u(2.0**-(SV+KH)):x}')
    I(f's_mov_b32 s{S_T+3}, 0x{f2u(-LOG2E * 2.0**-(SV+KH)):x}')
    I(f'v_cmp_gt_u32 vcc, {NB*16}, v{V_TID}')
    I('s_waitcnt vmcnt(0) lgkmcnt(0)')
    I('s_barrier')
    stamp(17)
    rstamp(29)
    if PROF:
        I(f'v_writelane_b32 v{V_PROF}, s{S_L}, 27')
    I(f's_and_saveexec_b64 {sp(S_EX)}, vcc')
    I('s_cbranch_execz L_FDONE')
    rd4(64, X + 2)
    I(f's_mov_b64 {sp(S_T)}, exec')
    L('L_FLOOP')
    I(f'v_cmp_lt_u32 vcc, v{X+4}, v{X+5}')
    I('s_and_b64 exec, exec, vcc')
    I('s_cbranch_execz L_FLEND')
    I(f'v_add_u32 v{X+4}, 1, v{X+4}')
    I(f'v_lshl_add_u32 v{X+7}, v{X+4}, 8, v{X+1}')
    rd4(72, X + 7)
    I('s_waitcnt lgkmcnt(0)')
    for k in range(4):
        I(f'v_add_f32 v{64+k}, v{64+k}, v{72+k}')
    I('s_branch L_FLOOP')
    L('L_FLEND')
    I(f's_mov_b64 exec, {sp(S_T)}')
    I('s_waitcnt lgkmcnt(0)')
    I(f's_cmp_lg_u32 s{S_MORE}, 0')
    I('s_cbranch_scc1 L_WB')
    for k in range(4):
        I(f'v_mul_f32 v{72+k}, s{S_T+3}, v{64+k}')
    for k in range(4):
        I(f'v_exp_f32 v{72+k}, v{72+k}')
    for k in range(4):
        I(f'v_mul_f32 v{64+k}, s{S_T+2}, v{64+k}')
    for k in range(4):
        I(f'v_add_f32 v{72+k}, 1.0, v{72+k}')
    for k in range(4):
        I(f'v_rcp_f32 v{72+k}, v{72+k}')
    I('s_nop 0')
    for k in range(4):
        I(f'v_mul_f32 v{64+k}, v{64+k}, v{72+k}')
    if FL:
        I('v_cvt_pk_bf16_f32 v80, v64, v65')
        I('v_cvt_pk_bf16_f32 v81, v66, v67')
        I(f'buffer_store_dwordx2 v[80:81], v{X+6}, {sr4(S_OUT)}, 0 offen' + OSC)
    else:
        I('v_cvt_pk_bf16_f32 v80, v64, v66')
        I('v_cvt_pk_bf16_f32 v81, v65, v67')
        I(f'buffer_store_dword v80, v{X+6}, {sr4(S_OUT)}, 0 offen' + OSC)
        I(f'buffer_store_dword v81, v{X+6}, {sr4(S_OUT)}, 0 offen offset:64' + OSC)
    stamp(18)
    prof_store()
    diag_end()
    I('s_endpgm')
    L('L_WB')
    if FL:
        I(f'ds_write2_b32 v{X+2}, v64, v65 offset0:0 offset1:2')
        I(f'ds_write2_b32 v{X+2}, v66, v67 offset0:4 offset1:6')
    else:
        I(f'ds_write_b128 v{X+2}, v[64:67]')
    L('L_FDONE')
    I('s_mov_b64 exec, -1')
    I(f's_cmp_eq_u32 s{S_MORE}, 0')
    I('s_cbranch_scc1 L_QUIT')
    I(f's_add_u32 s{S_JB}, s{S_JB}, s{S_WID}')
    I('s_branch L_REFILL')
    L('L_OVERFLOW')
    I(f's_mov_b32 s{S_WID}, 64')
    L('L_REFILL')
    I('s_waitcnt vmcnt(0) lgkmcnt(0)')
    I('s_barrier')
    fill_zero()
    fill_words()
    ptr_consts()
    I('s_waitcnt lgkmcnt(0)')
    I('s_barrier')
    I('s_branch L_PASS')
    L('L_QUIT')
    prof_store()
    L('L_END')
    I('s_endpgm')


DOC = """
"""
hdr = open('standalone__edge_featured_mpnn_egc__graph.s.ref').read().split('\n')
for line in hdr:
    if line.startswith('; Override'):
        break
    e(line)
e(f'; @launch grid=({NWG},1,1) block=(1024,1,1) lds={LDS_BYTES}')
e('.amdgcn_target "amdgcn-amd-amdhsa--gfx950"')
for line in DOC.strip().split('\n'):
    e(line)
e('.text')
gen()
e('.section .rodata,"a"')
e('.p2align 6')
e(f'.amdhsa_kernel {KNAME}')
e('  .amdhsa_next_free_vgpr 128')
e('  .amdhsa_next_free_sgpr 102')
e('  .amdhsa_accum_offset 128')
e('  .amdhsa_group_segment_fixed_size 0')
e('  .amdhsa_kernarg_size 80')
e('  .amdhsa_user_sgpr_count 2')
e('  .amdhsa_user_sgpr_kernarg_segment_ptr 1')
e('  .amdhsa_system_sgpr_workgroup_id_x 1')
e('  .amdhsa_float_denorm_mode_32 3')
e('.end_amdhsa_kernel')
open(sys.argv[1], 'w').write('\n'.join(x for x in out if x is not None) + '\n')
```

```python
import sys, struct

OPT = dict(a.split('=') for a in sys.argv[2:] if '=' in a)
def opt(name, default):
    return type(default)(OPT.get(name, default))

KNAME = 'standalone__edge_featured_mpnn_egc__graph_kernel'
N_NODES = 12500
E_EDGES = 800000
NB = 49
NWG = 256
CH = 3136
WS_RW = 0
WS_RE = 0x00400000
CAP = CH + 256
WS_TAB = 0x00B00000
WS_NT = 0x00C00000
WS_PROF = 0x01000000
M8 = opt('m8', 0)
if M8:
    KH, KEXP, SV = 13, 26, 0
else:
    KH, KEXP, SV = 31, 31, 30
LOG2E = 1.4426950408889634
SC = opt('sc', 'sc1')
SC = (' ' + SC.replace('+', ' ')) if SC != 'none' else ''
LSC = opt('lsc', 'sc1')
LSC = (' ' + LSC.replace('+', ' ')) if LSC != 'none' else ''
GSC = opt('gsc', 'sc1')
GSC = (' ' + GSC.replace('+', ' ')) if GSC != 'none' else ''
ELD = opt('eld', 'none')
ELD = (' ' + ELD.replace('+', ' ')) if ELD != 'none' else ''

def f2u(x):
    return struct.unpack('<I', struct.pack('<f', x))[0]

out = []
def e(s=''):
    out.append(s)
def I(s):
    out.append('    ' + s)
def L(name):
    out.append(name + ':')
def vr(a, n):
    return f'v[{a}:{a+n-1}]' if n > 1 else f'v{a}'
def sr4(a):
    return f's[{a}:{a+3}]'
def sp(a):
    return f's[{a}:{a+1}]'
def p(r):
    return f'v[{r}:{r+1}]'

def srd(d, lo, hi, nrec):
    I(f's_mov_b32 s{d}, s{lo}')
    I(f's_mov_b32 s{d+1}, s{hi}')
    I(f's_mov_b32 s{d+2}, {nrec}')
    I(f's_mov_b32 s{d+3}, 0x00020000')

def srd_off(d, lo, hi, off, nrec):
    I(f's_add_u32 s{d}, s{lo}, {off}')
    I(f's_addc_u32 s{d+1}, s{hi}, 0')
    I(f's_mov_b32 s{d+2}, {nrec}')
    I(f's_mov_b32 s{d+3}, 0x00020000')

def wave_scan(v):
    for sh in (1, 2, 4, 8):
        I('s_nop 1')
        I(f'v_add_u32_dpp v{v}, v{v}, v{v} row_shr:{sh} row_mask:0xf bank_mask:0xf')
    I('s_nop 1')
    I(f'v_add_u32_dpp v{v}, v{v}, v{v} row_bcast:15 row_mask:0xa bank_mask:0xf')
    I('s_nop 1')
    I(f'v_add_u32_dpp v{v}, v{v}, v{v} row_bcast:31 row_mask:0xc bank_mask:0xf')
    I('s_nop 1')

LS = 0
ZR = 18688
LE = 18688
CNT = 56064
MISC = 56320
BASET = 56576
NINFO = 56832
HIST = 57344
HBASE = 58368
DESCP = 59392
EXTRA = 67840
DESCA = 84224
PT = 86784
ACCN = 99328
WRAW = 111872
WG_, WV_, WU_ = WRAW, WRAW + 17408, WRAW + 25600
XOWN = WRAW + 33792
LDS_BYTES = XOWN + 8192
STGW = 0
STGE = CAP * 4
NTI = EXTRA
MAXG = 576
assert STGE + CAP * 8 <= CNT

V_TID, V_LANE = 0, 1
V_MA, V_MB = 2, 4
V_VAA = (6, 8)
V_VAP = 10
V_PS0, V_PS1, V_PE, V_PD, V_CH8, V_CHP = 12, 13, 14, 15, 16, 17
V_PROF = 18
V_TAB = 20
V_J4, V_CB4 = 24, 25
V_X = 26
V_T01D, V_T01N, V_T23D, V_T23N = 40, 42, 44, 46
B5 = (48, 52)
A5 = 56
V_TT = (60, 62)
G = (64, 80)
Z = 96
S = 112

S_XS, S_WS, S_DST, S_SRC, S_EA, S_RW, S_RE, S_TAB, S_NTS, S_NTG, S_OUT = 12, 16, 20, 24, 28, 32, 36, 40, 44, 48, 52
S_MASK = 56
S_W, S_L, S_CNT, S_JB, S_WID, S_MORE = 72, 73, 74, 75, 76, 77
S_C = 78
S_EX = 80
S_LDX = 82
S_T = 84
S_WSP = 94
S_DBG = 96
S_TAG, S_TAG2, S_TAG3 = 100, 101, 11
TAGM = 0xC003C003
TAGL = MISC + 64

NT2 = 2 if opt('touch', 0) else 0
LDXV = 0 if opt('noload', 0) else -1
NPFM = opt('npf', 4)
NPF = {0: 0, 1: 7, 2: 7, 3: 2, 4: 1, 5: 1}[NPFM]
NPF1 = NPF if NPFM in (1, 5) else 0
WSB = opt('wsb', 0) << 20
TCH = 4 if opt('touch', 0) else 0
T1 = opt('t1', 0)
OSC = opt('osc', 'nt')
OSC = (' ' + OSC.replace('+', ' ')) if OSC != 'none' else ''
KREP = opt('krep', 1)
assert KREP == 1
CM = opt('cm', 1)
RSTEP = 64 if CM else 8
SRCL = opt('srcl', 2)
PROF = opt('prof', 0)
DIAG = opt('diag', -1)
def diag_end():
    if DIAG < 0:
        return
    I('s_memrealtime s[98:99]')
    I('s_waitcnt lgkmcnt(0)')
    I('v_readlane_b32 s92, v18, 1')
    I('v_readlane_b32 s93, v18, 0')
    I('s_nop 3')
    I('s_sub_u32 s92, s92, s93')
    I('s_lshr_b32 s92, s92, 3' if opt('dcyc', 0) else 's_lshl_b32 s92, s92, 2')
    I('s_mov_b32 s93, s98')
    lbl = f'L_DG{len(out)}'
    L(lbl)
    I('s_memrealtime s[98:99]')
    I('s_waitcnt lgkmcnt(0)')
    I('s_sub_u32 s98, s98, s93')
    I('s_cmp_lt_u32 s98, s92')
    I(f's_cbranch_scc1 {lbl}')
def stamp(i):
    if DIAG >= 0 and i in (opt('dfrom', 0), DIAG):
        I('s_memtime s[98:99]' if opt('dcyc', 0) else 's_memrealtime s[98:99]')
        I('s_waitcnt lgkmcnt(0)')
        if i == opt('dfrom', 0):
            I('v_writelane_b32 v18, s98, 0')
        if i == DIAG:
            I('v_writelane_b32 v18, s98, 1')
    if not PROF:
        return
    I('s_memtime s[98:99]')
    I('s_waitcnt lgkmcnt(0)')
    I(f'v_writelane_b32 v{V_PROF}, s98, {i}')
def rstamp(i):
    if not PROF:
        return
    I('s_memrealtime s[98:99]')
    I('s_waitcnt lgkmcnt(0)')
    I(f'v_writelane_b32 v{V_PROF}, s98, {i}')
def prof_store():
    if not PROF:
        return
    rstamp(31)
    if PROF == 3:
        I(f's_lshl_b32 s98, s2, 4')
        I(f's_add_u32 s98, s98, s{S_W}')
        I(f's_cmp_lg_u32 s98, {opt("pwave", 80)}')
        I('s_cbranch_scc1 L_END')
        I('s_mov_b64 exec, -1')
        I(f'v_readlane_b32 s98, v{V_PROF}, 0')
        I(f'v_readlane_b32 s99, v{V_PROF}, 30')
        I(f'v_readlane_b32 s{S_T}, v{V_PROF}, 31')
        I('s_nop 3')
        I(f's_sub_u32 s{S_T}, s{S_T}, s99')
        I(f's_add_u32 s{S_T}, s{S_T}, s98')
        I(f'v_writelane_b32 v{V_PROF}, s{S_T}, 9')
        I(f'v_subrev_u32 v{V_PROF}, s98, v{V_PROF}')
        I(f'v_mbcnt_lo_u32_b32 v{V_PROF+1}, -1, 0')
        I(f'v_lshlrev_b32 v{V_PROF+1}, 2, v{V_PROF+1}')
        I(f'v_add_u32 v{V_PROF+1}, -8, v{V_PROF+1}')
        I('s_mov_b64 exec, 0x3fff8')
        I(f'global_store_dword v{V_PROF+1}, v{V_PROF}, {sp(S_DBG)}')
        return
    I('s_mov_b64 exec, 0xffffffff')
    I(f's_add_u32 s{S_T}, s{S_WSP}, 0x{WS_PROF:x}')
    I(f's_addc_u32 s{S_T+1}, s{S_WSP+1}, 0')
    I(f'v_mbcnt_lo_u32_b32 v{V_PROF+1}, -1, 0')
    I(f'v_lshlrev_b32 v{V_PROF+1}, 2, v{V_PROF+1}')
    I(f's_lshl_b32 s98, s2, 4')
    I(f's_add_u32 s98, s98, s{S_W}')
    I(f's_lshl_b32 s98, s98, 7')
    I(f'v_add_u32 v{V_PROF+1}, s98, v{V_PROF+1}')
    I(f'global_store_dword v{V_PROF+1}, v{V_PROF}, {sp(S_T)}')

class Lg:
    def __init__(self):
        self.q = []
    def op(self, tag, text):
        I(text)
        self.q.append(tag)
    def need(self, *tags):
        idx = -1
        for t in tags:
            for i in range(len(self.q) - 1, -1, -1):
                if self.q[i] == t:
                    idx = max(idx, i)
                    break
        if idx < 0:
            return
        n = len(self.q) - 1 - idx
        assert n <= 15, (tags, n)
        I(f's_waitcnt lgkmcnt({n})')
        self.q = self.q[idx + 1:]

X = V_X

def zero_range(a, nbytes, zr, ad):
    k = 0
    base = a if a + nbytes <= 65536 + 16384 and a < 65536 - 3 * 16384 else None
    off = 0
    areg = ad
    if a + ((nbytes - 1) // 16384) * 16384 > 65535:
        I(f'v_add_u32 v{X+1}, {a}, v{ad}')
        areg = X + 1
        a0 = 0
    else:
        a0 = a
    while off < nbytes:
        n = min(16384, nbytes - off)
        if n < 16384:
            I(f'v_cmp_gt_u32 vcc, {n // 16}, v{V_TID}')
            I(f's_and_saveexec_b64 {sp(S_EX)}, vcc')
        I(f'ds_write_b128 v{areg}, v[{zr}:{zr+3}] offset:{a0 + off}')
        if n < 16384:
            I(f's_mov_b64 exec, {sp(S_EX)}')
        off += n

def zregs():
    I(f'v_lshlrev_b32 v{X}, 4, v{V_TID}')
    for k in range(4):
        I(f'v_mov_b32 v{X+2+k}, 0')

def fill_desca():
    I(f'v_and_b32 v{X+6}, 15, v{V_TID}')
    I(f'v_lshlrev_b32 v{X+6}, 10, v{X+6}')
    I(f'v_add_u32 v{X+6}, {EXTRA}, v{X+6}')
    for k in range(1, 4):
        I(f'v_add_u32 v{X+6+k}, {256*k}, v{X+6}')
    I(f'v_add_u32 v{X+1}, {DESCA}, v{X}')
    I(f'v_cmp_gt_u32 vcc, 160, v{V_TID}')
    I(f's_and_saveexec_b64 {sp(S_EX)}, vcc')
    I(f'ds_write_b128 v{X+1}, v[{X+6}:{X+9}]')
    I(f's_mov_b64 exec, {sp(S_EX)}')

def fill_zero():
    zregs()
    zero_range(ZR, 65536, X + 2, X)
    fill_desca()

def fill_words():
    I(f'v_lshlrev_b32 v{X}, 4, v{V_TID}')
    I(f'v_and_b32 v{X+2}, 7, v{V_TID}')
    I(f'v_lshlrev_b32 v{X+2}, 5, v{X+2}')
    I(f'v_add_u32 v{X+2}, {N_NODES*8}, v{X+2}')
    for k in range(1, 4):
        I(f'v_add_u32 v{X+2+k}, {8*k}, v{X+2}')
    I(f'ds_write_b128 v{X}, v[{X+2}:{X+5}] offset:{LS}')
    I(f'v_cmp_gt_u32 vcc, 144, v{V_TID}')
    I(f's_and_saveexec_b64 {sp(S_EX)}, vcc')
    I(f'ds_write_b128 v{X}, v[{X+2}:{X+5}] offset:{LS+16384}')
    I(f's_mov_b64 exec, {sp(S_EX)}')

V_C8P, V_CPP, V_SCP = 26, 28, 30
S_BP0, S_BP1 = 88, 90

def tail_ops(n):
    M = (V_MA, V_MB)[n]
    return [f'v_rcp_f32 v{V_T01D}, v{V_T01D}',
            f'v_rcp_f32 v{V_T01D+1}, v{V_T01D+1}',
            f'v_pk_fma_f32 {p(M)}, {p(V_T01N)}, {p(V_T01D)}, {p(M)}']

def acc_write(lg, va):
    lg.op('Wa', f'ds_write2_b32 v{va}, v{V_MA}, v{V_MB} offset0:0 offset1:1')
    lg.op('Wb', f'ds_write2_b32 v{va+1}, v{V_MA+1}, v{V_MB+1} offset0:0 offset1:1')

def acc_read(lg, va):
    lg.op('Ra', f'ds_read_b32 v{V_MA}, v{va}')
    lg.op('Rb', f'ds_read_b32 v{V_MA+1}, v{va+1}')
    lg.op('Rc', f'ds_read_b32 v{V_MB}, v{va} offset:4')
    lg.op('Rd', f'ds_read_b32 v{V_MB+1}, v{va+1} offset:4')

def va_add(vap, vaa):
    I(f'v_lshl_add_u64 {p(vap)}, {p(vap)}, 0, {p(V_CPP)}')
    I(f'v_lshl_add_u64 {p(vaa)}, {p(vaa)}, 0, {p(V_C8P)}')

def gload(n, i):
    return f'buffer_load_dword v{G[n]+i}, v{S + (i & 1) * 8 + (i >> 1)}, {sr4(S_NTG)}, 0 offen offset:{4*n}' + GSC

def s_safe():
    if opt('safe', 0):
        for i in range(16):
            I(f'v_and_b32 v{S+i}, 0x1fff8, v{S+i}')

def s_reads(lg, uo):
    lg.op('S0', f'ds_read_b128 {vr(S,4)}, v{V_PS0} offset:{uo*32}')
    lg.op('S1', f'ds_read_b128 {vr(S+4,4)}, v{V_PS0} offset:{uo*32+16}')
    lg.op('S2', f'ds_read_b128 {vr(S+8,4)}, v{V_PS1} offset:{uo*32}')
    lg.op('S3', f'ds_read_b128 {vr(S+12,4)}, v{V_PS1} offset:{uo*32+16}')

def half(lg, n, par, uo, with_tail=True):
    g = G[n]
    I('s_waitcnt vmcnt(16)')
    if n == 0:
        lg.need('P0a', 'P0b', 'e')
    else:
        lg.need('P1a', 'P1b')
    I(f'v_mfma_f32_32x32x16_bf16 {vr(Z,16)}, {vr(A5,4)}, {vr(B5[n],4)}, {vr(g,16)}')
    t = tail_ops(n ^ 1)
    va_prev, va_cur, va_nxt = V_VAA[par ^ 1], V_VAA[par], V_VAA[par ^ 1]
    sh = [f'v_lshlrev_b32 v{g+i}, 16, v{g+i}' for i in range(16)]
    ex = [f'v_exp_f32 v{Z+i}, v{Z+i} clamp' for i in range(16)]
    l3 = [f'v_pk_mul_f32 {p(V_T01N)}, {p(V_T01N)}, {p(V_T23D)}',
          f'v_pk_mul_f32 {p(V_T23D)}, {p(V_T01D)}, {p(V_T23D)}',
          f'v_pk_fma_f32 {p(V_T01N)}, {p(V_T23N)}, {p(V_T01D)}, {p(V_T01N)}',
          f'v_rcp_f32 v{V_T23D}, v{V_T23D}',
          f'v_rcp_f32 v{V_T23D+1}, v{V_T23D+1}',
          f'v_pk_fma_f32 {p((V_MA, V_MB)[n ^ 1])}, {p(V_T01N)}, {p(V_T23D)}, {p((V_MA, V_MB)[n ^ 1])}']
    if with_tail and not M8:
        for r_ in (V_T01D, V_T01D + 1, V_T23D, V_T23D + 1):
            I(f'v_rcp_f32 v{r_}, v{r_}')
    else:
        I('s_nop 3')
    if n == 1:
        lg.op('e', f'ds_read_b64 {p(A5)}, v{V_PE} offset:{(uo+1)*64}')
        lg.op('P1a', f'ds_read_b32 v{B5[1]+2}, v{V_VAP} offset:4')
        lg.op('P1b', f'ds_read_b32 v{B5[1]+3}, v{V_VAP+1} offset:4')
    else:
        lg.op('dP', f'ds_read_b64 {p(V_VAP)}, v{V_PD} offset:{(uo+1)*256}')
        I('s_nop 1')
    for op in sh[:8]:
        I(op)
    seq = []
    if with_tail and not M8:
        Mp = p((V_MA, V_MB)[n ^ 1])
        seq = ['NEED', f'v_pk_fma_f32 {Mp}, {p(V_T01N)}, {p(V_T01D)}, {Mp}', ex[0],
               f'v_pk_fma_f32 {Mp}, {p(V_T23N)}, {p(V_T23D)}, {Mp}', sh[8], 'ACC', ex[1], sh[9]]
    elif with_tail:
        seq = [l3[0], l3[1], ex[0], l3[2], l3[3], sh[8], l3[4], ex[1], sh[9], 'NEED', l3[5], 'ACC']
    else:
        seq = [ex[0], sh[8], ex[1], sh[9], 'ACC']
    for op in seq:
        if op == 'NEED':
            lg.need('Ra', 'Rb', 'Rc', 'Rd')
        elif op == 'ACC':
            if n == 0:
                if with_tail:
                    acc_write(lg, va_prev)
                acc_read(lg, va_cur)
                lg.op('dA', f'ds_read_b64 {p(va_nxt)}, v{V_PD} offset:{(uo+1)*256 + DESCA - DESCP}')
        else:
            I(op)
    for i in range(2, 12):
        I(ex[i])
        if 8 + i < 16:
            I(sh[8 + i])
        if n == 0 and i == 11:
            lg.need('dP', 'dA')
            va_add(V_VAP, va_nxt)
            lg.op('P0a', f'ds_read_b32 v{B5[0]+2}, v{V_VAP}')
            lg.op('P0b', f'ds_read_b32 v{B5[0]+3}, v{V_VAP+1}')
    for op in ex[12:]:
        I(op)
    for i in range(0, 16, 2):
        if M8:
            I(f'v_pk_fma_f32 {p(Z+i)}, {p(Z+i)}, {p(V_SCP)}, {sp(S_C)}')
        else:
            I(f'v_pk_add_f32 {p(Z+i)}, {p(Z+i)}, {sp(S_C)}')
    def T(k): return f'v_pk_mul_f32 {p(V_TT[k&1])}, {p(g+4*k)}, {p(Z+4*k+2)}'
    def DD(k): return f'v_pk_mul_f32 {p(Z+4*k+2)}, {p(Z+4*k)}, {p(Z+4*k+2)}'
    def NN(k): return f'v_pk_fma_f32 {p(Z+4*k)}, {p(g+4*k+2)}, {p(Z+4*k)}, {p(V_TT[k&1])}'
    for k0 in (0, 2):
        for op in (T(k0), T(k0 + 1), DD(k0), DD(k0 + 1), NN(k0), NN(k0 + 1)):
            I(op)
        if n == 0 and k0 == 0:
            lg.need('S0', 'S1', 'S2', 'S3')
            s_safe()
        I(f's_mov_b64 exec, {sp(S_LDX)}')
        for i in range(4 * k0, 4 * k0 + 8):
            I(gload(n, i))
        I('s_mov_b64 exec, -1')
    if n == 1:
        s_reads(lg, uo + 2)
    I(f'v_pk_mul_f32 {p(V_T01N)}, {p(Z)}, {p(Z+6)}')
    I(f'v_pk_mul_f32 {p(V_T23N)}, {p(Z+8)}, {p(Z+14)}')
    I(f'v_pk_mul_f32 {p(V_T01D)}, {p(Z+2)}, {p(Z+6)}')
    I(f'v_pk_mul_f32 {p(V_T23D)}, {p(Z+10)}, {p(Z+14)}')
    I(f'v_pk_fma_f32 {p(V_T01N)}, {p(Z+4)}, {p(Z+2)}, {p(V_T01N)}')
    I(f'v_pk_fma_f32 {p(V_T23N)}, {p(Z+12)}, {p(Z+10)}, {p(V_T23N)}')

PRIO = {
    3: {(3, 0): 2, (2, 0): 1, (1, 0): 0},
    5: {(2, 0): 2, (1, 0): 1, (1, 1): 0},
    6: {(3, 0): 2, (1, 0): 1, (1, 1): 0},
    7: {(2, 1): 2, (1, 0): 1, (1, 1): 0},
    8: {(4, 0): 2, (2, 0): 1, (1, 1): 0},
    9: {(3, 0): 2, (2, 1): 1, (1, 1): 0},
    0: {},
}[opt('prio', 9)]
def prio(tag, phase=0):
    for (t, ph), lvl in PRIO.items():
        if ph != phase:
            continue
        I(f's_cmp_eq_u32 s{S_CNT}, {t}')
        I(f's_cbranch_scc0 L_PR{tag}_{lvl}')
        I(f's_setprio {lvl}')
        L(f'L_PR{tag}_{lvl}')

def split_hilo(a, b, t0, t1):
    I(f'v_cvt_pk_bf16_f32 v{t0}, v{a}, v{b}')
    I(f'v_lshlrev_b32 v{t1}, 16, v{t0}')
    I(f'v_and_b32 v{t0}, 0xffff0000, v{t0}')
    I(f'v_sub_f32 v{a}, v{a}, v{t1}')
    I(f'v_sub_f32 v{b}, v{b}, v{t0}')
    I(f'v_cvt_pk_bf16_f32 v{a}, v{t1}, v{a}')
    I(f'v_cvt_pk_bf16_f32 v{b}, v{t0}, v{b}')

V_AA, V_AB, V_AD, V_AP = 6, 7, 8, 9
SA, SB, SD = 80, 96, 112

def phase0_addr():
    I(f's_and_b32 s{S_T}, s{S_W}, 3')
    I(f's_lshr_b32 s{S_T+1}, s{S_W}, 2')
    I(f'v_and_b32 v12, 15, v{V_LANE}')
    I(f'v_lshrrev_b32 v13, 4, v{V_LANE}')
    I(f'v_bfe_u32 v14, v{V_LANE}, 1, 3')
    I(f'v_xor_b32 v14, v14, v13')
    I(f'v_lshlrev_b32 v14, 4, v14')
    I(f'v_lshl_or_b32 v14, v12, 7, v14')
    I(f's_lshl_b32 s{S_T+2}, s{S_T}, 11')
    I(f'v_add_u32 v{V_AA}, s{S_T+2}, v14')
    I(f'v_bfe_u32 v14, v{V_LANE}, 2, 2')
    I(f'v_lshl_add_u32 v14, v13, 3, v14')
    I(f'v_lshlrev_b32 v14, 7, v14')
    I(f'v_and_b32 v15, 3, v{V_LANE}')
    I(f'v_lshl_add_u32 v14, v15, 3, v14')
    I(f's_lshl_b32 s{S_T+2}, s{S_T+1}, 5')
    I(f'v_or_b32 v14, s{S_T+2}, v14')
    I(f'v_and_b32 v15, 24, v{V_LANE}')
    I(f'v_lshlrev_b32 v15, 2, v15')
    I(f'v_xor_b32 v14, v14, v15')
    I(f'v_add_u32 v{V_AB}, {WRAW}, v14')
    I(f's_lshl_b32 s{S_T+2}, s{S_T}, 12')
    I(f'v_lshlrev_b32 v13, 10, v13')
    I(f'v_add_u32 v13, s{S_T+2}, v13')
    I(f's_lshl_b32 s{S_T+2}, s{S_T+1}, 6')
    I(f's_add_u32 s{S_T+2}, s{S_T+2}, {NTI}')
    I(f'v_lshl_add_u32 v{V_AD}, v12, 2, v13')
    I(f'v_add_u32 v{V_AD}, s{S_T+2}, v{V_AD}')
    I(f's_and_b32 s{S_T+2}, s{S_T+1}, 1')
    I(f's_lshl_b32 s{S_T+2}, s{S_T+2}, 7')
    I(f's_lshr_b32 s{S_T+3}, s{S_T+1}, 1')
    I(f's_lshl_b32 s{S_T+3}, s{S_T+3}, 2')
    I(f's_add_u32 s{S_T+2}, s{S_T+2}, s{S_T+3}')
    I(f's_add_u32 s{S_T+2}, s{S_T+2}, {PT}')
    I(f'v_lshl_add_u32 v{V_AP}, v12, 3, v13')
    I(f'v_add_u32 v{V_AP}, s{S_T+2}, v{V_AP}')

def b_reads(dst, off):
    for sg in range(2):
        for pp in range(2):
            I(f'ds_read_b64_tr_b16 {vr(dst+4*sg+2*pp,2)}, v{V_AB} offset:{off+sg*4096+pp*512}')

def mm16(d, b):
    I(f'v_mfma_f32_16x16x32_bf16 {vr(d,4)}, {vr(SA,4)}, {vr(b,4)}, 0')
    I(f'v_mfma_f32_16x16x32_bf16 {vr(d,4)}, {vr(SA+4,4)}, {vr(b+4,4)}, {vr(d,4)}')

def phase0a():
    I(f'v_add_u32 v12, {XOWN}, v{V_AA}')
    I(f'v_xor_b32 v13, 64, v{V_AA}')
    I(f'v_add_u32 v13, {XOWN}, v13')
    I(f'ds_read_b128 {vr(SA,4)}, v12')
    I(f'ds_read_b128 {vr(SA+4,4)}, v13')
    b_reads(SB, 8192)
    b_reads(SB + 8, WV_ - WRAW)
    I(f's_mov_b32 s{S_T+4}, 0x{f2u(-LOG2E):x}')
    I(f's_mov_b32 s{S_T+6}, 0x7fffffff')
    I(f's_mov_b32 s{S_T+7}, 0xffff0000')
    I('s_waitcnt lgkmcnt(4)')
    mm16(SD, SB)
    I('s_waitcnt lgkmcnt(0)')
    mm16(SD + 4, SB + 8)
    I('s_nop 4')
    for i in range(4):
        I(f'v_mul_f32 v{SD+i}, s{S_T+4}, v{SD+i}')
    for i in range(4):
        I(f'v_and_b32 v{SD+8+i}, s{S_T+6}, v{SD+i}')
    for i in range(4):
        if SV:
            I(f'v_mul_f32 v{SD+4+i}, 0x{f2u(2.0**SV):x}, v{SD+4+i}')
        I(f'v_add_u32 v{SD+8+i}, 0x8000, v{SD+8+i}')
    I(f'v_cvt_pk_bf16_f32 v{SD+4}, v{SD+4}, v{SD+5}')
    I(f'v_cvt_pk_bf16_f32 v{SD+6}, v{SD+6}, v{SD+7}')
    I(f'v_lshrrev_b32 v{SD+5}, 16, v{SD+4}')
    I(f'v_lshrrev_b32 v{SD+7}, 16, v{SD+6}')
    I(f'v_and_b32 v{SD+4}, 0xffff, v{SD+4}')
    I(f'v_and_b32 v{SD+6}, 0xffff, v{SD+6}')
    for i in range(4):
        I(f'v_sub_u32 v{SD+8+i}, v{SD+8+i}, v{SD+4+i} clamp')
    for i in range(4):
        I(f'v_and_or_b32 v{SD+8+i}, v{SD+8+i}, s{S_T+7}, v{SD+4+i}')
    for i in range(4):
        I(f'v_bfi_b32 v{SD+i}, s{S_T+6}, v{SD+8+i}, v{SD+i}')
        I(f'ds_write_b32 v{V_AD}, v{SD+i} offset:{i*256}')

def phase0b():
    b_reads(SB, 0)
    b_reads(SB + 8, WU_ - WRAW)
    I(f's_mov_b32 s{S_T+4}, 0x{f2u(-LOG2E):x}')
    I(f's_mov_b32 s{S_T+5}, 0x{f2u(2.0**(SV+KH)):x}')
    I(f'v_mov_b32 v13, 0x{f2u(-float(KEXP)):x}')
    I(f's_and_b32 s{S_T+6}, s{S_W}, 3')
    I('s_waitcnt lgkmcnt(4)')
    mm16(SD, SB)
    I('s_waitcnt lgkmcnt(0)')
    mm16(SD + 4, SB + 8)
    I('s_nop 4')
    for i in range(4):
        I(f'v_fma_f32 v{SD+i}, v{SD+i}, s{S_T+4}, v13')
    split_hilo(SD, SD + 1, 12, 13)
    split_hilo(SD + 2, SD + 3, 12, 13)
    for i in range(4):
        I(f'v_mul_f32 v{SD+4+i}, s{S_T+5}, v{SD+4+i}')
    I(f's_cmp_eq_u32 s{S_T+6}, 3')
    I(f's_cselect_b64 exec, 0xffff, -1')
    I(f'ds_write_b32 v{V_AP}, v{SD}')
    I(f'ds_write_b32 v{V_AP}, v{SD+4} offset:{ACCN-PT}')
    I(f's_cselect_b64 exec, 0, -1')
    for i in range(1, 4):
        I(f'ds_write_b32 v{V_AP}, v{SD+i} offset:{i*256}')
        I(f'ds_write_b32 v{V_AP}, v{SD+4+i} offset:{ACCN-PT+i*256}')
    I('s_mov_b64 exec, -1')

def phase0c():
    I(f'v_bfe_u32 v13, v{V_LANE}, 2, 2')
    I(f'v_lshlrev_b32 v13, 7, v13')
    I(f'v_bfe_u32 v15, v{V_LANE}, 4, 1')
    I(f'v_lshl_add_u32 v13, v15, 5, v13')
    I(f'v_and_b32 v15, 3, v{V_LANE}')
    I(f'v_lshl_add_u32 v13, v15, 3, v13')
    I(f'v_and_b32 v15, 8, v{V_LANE}')
    I(f'v_lshlrev_b32 v15, 2, v15')
    I(f'v_xor_b32 v13, v13, v15')
    I(f'v_add_u32 v13, {WG_ + 16384}, v13')
    I(f'ds_read_b64_tr_b16 v[96:97], v13')
    I(f'ds_read_b64_tr_b16 v[98:99], v13 offset:64')
    I(f's_mov_b32 s{S_T+4}, 0x{f2u(-LOG2E):x}')
    I(f'v_cmp_lt_u32 vcc, 31, v{V_LANE}')
    I('s_waitcnt lgkmcnt(0)')
    for m in range(4):
        I(f'v_lshlrev_b32 v{100+2*m}, 16, v{96+m}')
        I(f'v_and_b32 v{101+2*m}, 0xffff0000, v{96+m}')
    for j in range(8):
        I(f'v_mul_f32 v{100+j}, s{S_T+4}, v{100+j}')
    for m in range(4):
        dst = B5[m >> 1] + (m & 1)
        I(f'v_cvt_pk_bf16_f32 v{96+m}, v{100+2*m}, v{101+2*m}')
        I(f'v_lshlrev_b32 v12, 16, v{96+m}')
        I(f'v_and_b32 v13, 0xffff0000, v{96+m}')
        I(f'v_sub_f32 v12, v{100+2*m}, v12')
        I(f'v_sub_f32 v13, v{101+2*m}, v13')
        I(f'v_cvt_pk_bf16_f32 v12, v12, v13')
        I(f'v_cndmask_b32 v{dst}, v{96+m}, v12, vcc')

def a5_const():
    I(f'v_bfe_u32 v12, v{V_LANE}, 2, 1')
    I(f'v_lshrrev_b32 v13, 5, v{V_LANE}')
    I(f'v_xor_b32 v12, v12, v13')
    I(f'v_and_b32 v13, 1, v{V_LANE}')
    I(f'v_lshl_or_b32 v12, v12, 1, v13')
    I(f'v_mov_b32 v13, 0x3f803f80')
    I(f'v_cmp_eq_u32 vcc, 0, v12')
    I(f'v_cmp_eq_u32 {sp(S_T)}, 1, v12')
    I('s_nop 1')
    I(f'v_cndmask_b32 v{A5+2}, 0, v13, vcc')
    I(f'v_cndmask_b32 v{A5+3}, 0, v13, {sp(S_T)}')

def nt_prefetch(vt, first=0, nl=None, dst=96):
    if CM:
        I(f's_lshr_b32 s{S_T}, s2, 4')
        I(f's_lshl_b32 s{S_T+1}, s{S_W}, 4')
        I(f's_add_u32 s{S_T}, s{S_T}, s{S_T+1}')
    else:
        I(f's_lshr_b32 s{S_T}, s2, 4')
        I(f's_lshl_b32 s{S_T+1}, s{S_W}, 4')
        I(f's_add_u32 s{S_T}, s{S_T}, s{S_T+1}')
        I(f's_and_b32 s{S_T+1}, s{S_T}, 7')
        I(f's_lshl_b32 s{S_T+1}, s{S_T+1}, 5')
        I(f's_lshr_b32 s{S_T}, s{S_T}, 3')
        I(f's_add_u32 s{S_T}, s{S_T}, s{S_T+1}')
    if not opt('xmap', 1):
        I(f's_lshr_b32 s{S_T}, s2, 4')
        I(f's_lshl_b32 s{S_T+1}, s{S_W}, 4')
        I(f's_add_u32 s{S_T}, s{S_T}, s{S_T+1}')
    I(f's_lshl_b32 s{S_T}, s{S_T}, 1')
    I(f's_bfe_u32 s{S_T+1}, s2, 0x10003')
    I(f's_add_u32 s{S_T}, s{S_T}, s{S_T+1}')
    I(f's_mul_i32 s{S_T}, s{S_T}, {NB*128}')
    I(f's_add_u32 s{S_T}, s{S_T}, 0x{WS_NT:x}')
    srd_off(S_NTS, S_WSP, S_WSP + 1, f's{S_T}', NB * 128)
    if NPFM >= 3:
        I(f'v_lshlrev_b32 v{vt}, {7 if NPFM >= 4 else 6}, v{V_LANE}')
        I(f'v_add_u32 v{vt+1}, 4096, v{vt}')
        nl = opt("pfl", 6) if nl is None else nl
        I(f's_mov_b32 exec_lo, 0x{(((1 << nl) - 1) << first) & 0xffffffff:x}')
        I(f's_mov_b32 exec_hi, 0x{(((1 << nl) - 1) << first) >> 32:x}')
        for k in range(NPF):
            I(f'buffer_load_dword v{dst+k}, v{vt+k}, {sr4(S_NTS)}, 0 offen' + (LSC if opt('pfsc', 1) else ''))
        I('s_mov_b64 exec, -1')
        return
    I(f'v_lshlrev_b32 v{vt}, 4, v{V_LANE}')
    I(f'v_add_u32 v{vt+1}, 4096, v{vt}')
    for k in range(NPF):
        I(f'buffer_load_dwordx4 {vr(96+4*k,4)}, v{vt+(k>>2)}, {sr4(S_NTS)}, 0 offen offset:{(k&3)*1024}' + LSC)

def ptr_consts():
    I(f'v_lshrrev_b32 v{V_PS1}, 5, v{V_LANE}')
    I(f's_lshl_b32 s{S_T}, s{S_W}, 4')
    I(f's_add_u32 s{S_T}, s{S_T}, {DESCP}')
    I(f'v_lshlrev_b32 v{V_PD}, 3, v{V_PS1}')
    I(f'v_add_u32 v{V_PS1}, v{V_PS1}, v{V_PS1}')
    I(f'v_add_u32 v{V_PD}, s{S_T}, v{V_PD}')
    I(f'v_bfe_u32 v{V_VAP}, v{V_LANE}, 2, 1')
    I(f'v_and_b32 v{V_PE}, 1, v{V_LANE}')
    I(f'v_lshl_or_b32 v{V_VAP}, v{V_VAP}, 1, v{V_PE}')
    I(f'v_bfe_u32 v{V_PE}, v{V_LANE}, 3, 2')
    I(f'v_bfe_u32 v{V_PS0}, v{V_LANE}, 1, 1')
    I(f'v_lshl_or_b32 v{V_PE}, v{V_PE}, 1, v{V_PS0}')
    I(f'v_lshlrev_b32 v{V_PE}, 3, v{V_PE}')
    I(f'v_add_u32 v{V_PE}, {LE}, v{V_PE}')

def gen():
    e(f'.globl {KNAME}')
    e('.p2align 8')
    e(f'.type {KNAME},@function')
    L(KNAME)
    I(f's_cmp_ge_u32 s2, {NWG}')
    I('s_cbranch_scc1 L_END')
    I('s_load_dwordx8 s[84:91], s[0:1], 0')
    I('s_load_dwordx4 s[4:7], s[0:1], 32')
    I('s_load_dwordx4 s[8:11], s[0:1], 48')
    I('s_load_dwordx4 s[56:59], s[0:1], 64')
    if PROF:
        I(f'v_mov_b32 v{V_PROF}, 0')
    rstamp(30)
    stamp(0)
    zregs()
    zero_range(CNT, DESCP + 2560 - CNT, X + 2, X)
    I(f'v_lshlrev_b32 v{X+6}, 2, v{V_TID}')
    I(f's_mul_i32 s61, s2, {CH*4}')
    I(f's_mul_i32 s63, s2, {CH}')
    I(f's_sub_u32 s63, {E_EDGES}, s63')
    I(f's_min_u32 s63, s63, {CH}')
    I(f's_lshl_b32 s64, s63, 2')
    I(f'v_add_u32 v{X+8}, 4096, v{X+6}')
    I(f'v_add_u32 v{X+9}, 8192, v{X+6}')
    I(f'v_add_u32 v{X+10}, 12288, v{X+6}')
    I(f'v_lshrrev_b32 v{X+1}, 6, v{V_TID}')
    I(f'v_and_b32 v{V_LANE}, 63, v{V_TID}')
    I(f'v_readfirstlane_b32 s{S_W}, v{X+1}')
    I('s_and_b32 s3, s2, 7')
    I('s_lshl_b32 s3, s3, 5')
    I('s_lshr_b32 s60, s2, 3')
    I('s_add_u32 s3, s3, s60')
    if not opt('xmap', 1):
        I('s_mov_b32 s3, s2')
    I(f's_mul_i32 s62, s2, {CH*8}')
    I(f's_lshl_b32 s65, s63, 3')
    I(f'v_and_b32 v97, 0x50, v{V_TID}')
    I(f'v_lshlrev_b32 v96, 1, v97')
    I(f'v_or_b32 v97, v97, v96')
    I(f'v_and_b32 v97, 0x60, v97')
    I(f'v_xor_b32 v97, v97, v{X}')
    I(f'v_and_b32 v96, 0x20, v96')
    I(f'v_lshlrev_b32 v98, 4, v{V_LANE}')
    I(f'v_xor_b32 v96, v96, v98')
    I(f's_lshl_b32 s66, s{S_W}, 10')
    I(f'v_and_b32 v101, 0x1fff, v97')
    I(f'v_lshrrev_b32 v98, 3, v{V_TID}')
    I(f'v_bfe_u32 v99, v98, 1, 3')
    I(f'v_and_b32 v100, 7, v{V_TID}')
    I(f'v_xor_b32 v99, v99, v100')
    I(f'v_lshlrev_b32 v99, 4, v99')
    I(f'v_lshl_add_u32 v99, v98, 7, v99')
    I(f's_mul_i32 s60, s3, {NB*128}')
    I(f'v_add_u32 v99, s60, v99')
    I(f'v_add_u32 v96, 16384, v96')
    I('s_waitcnt lgkmcnt(0)')
    I(f's_or_b32 s67, s2, s{S_W}')
    I('s_cmp_lg_u32 s67, 0')
    I('s_cbranch_scc1 L_NOTAG')
    I('s_memrealtime s[68:69]')
    I(f'v_mov_b32 v{X+2}, 0')
    I('s_waitcnt lgkmcnt(0)')
    I('s_or_b32 s68, s68, 1')
    I(f'v_mov_b32 v{X+3}, s68')
    I('s_mov_b64 exec, 1')
    I(f'global_store_dword v{X+2}, v{X+3}, s[56:57] sc1')
    I('s_mov_b64 exec, -1')
    L('L_NOTAG')
    def dst_loads():
        srd_off(S_DST, 90, 91, 's61', 's64')
        for k in range(4):
            I(f'buffer_load_dword v{64+k}, v{X+6 if k == 0 else X+7+k}, {sr4(S_DST)}, 0 offen' + ELD)
    def dma_loads():
        srd(S_WS, 8, 9, 132 * 128)
        I(f's_add_u32 m0, s66, {WG_}')
        srd(S_XS, 84, 85, N_NODES * 128)
        I(f'buffer_load_dwordx4 v97, {sr4(S_WS)}, 0 offen lds')
        I(f's_cmp_lt_u32 s{S_W}, 8')
        I(f's_cselect_b32 s{S_NTS}, s6, s4')
        I(f's_cselect_b32 s{S_NTS+1}, s7, s5')
        I(f's_mov_b32 s{S_NTS+2}, {64*128}')
        I(f's_mov_b32 s{S_NTS+3}, 0x00020000')
        I(f's_add_u32 m0, s66, {WV_}')
        I('s_nop 0')
        I(f'buffer_load_dwordx4 v101, {sr4(S_NTS)}, 0 offen lds')
        I(f's_cmp_lt_u32 s{S_W}, 8')
        I('s_cbranch_scc0 L_D3B')
        I(f's_add_u32 m0, s66, {XOWN}')
        I('s_nop 0')
        I(f'buffer_load_dwordx4 v99, {sr4(S_XS)}, 0 offen lds')
        I('s_branch L_D3C')
        L('L_D3B')
        I(f's_mov_b32 m0, {WG_ + 16384}')
        I('s_nop 0')
        I(f'buffer_load_dwordx4 v96, {sr4(S_WS)}, 0 offen lds')
        L('L_D3C')
    if opt('t0', 0):
        I(f'v_and_b32 v60, 15, v{V_LANE}')
        I(f'v_lshlrev_b32 v60, 20, v60')
        I(f'v_and_b32 v61, 1, v{V_LANE}')
        I(f'v_lshlrev_b32 v61, 20, v61')
        I(f'global_load_dword v62, v60, s[58:59]')
        I(f'global_load_dword v63, v61, s[10:11]')
    ORDER = opt('order', 2)
    if ORDER == 0:
        dma_loads()
    dst_loads()
    if ORDER == 2:
        dma_loads()
    F1 = opt('f1', 1)
    if F1:
        I('s_barrier')
    srd_off(S_SRC, 88, 89, 's61', 's64')
    LATE = opt('late', 1)
    def src_load(k):
        I(f'buffer_load_dword v{68+k}, v{X+6 if k == 0 else 43+k}, {sr4(S_SRC)}, 0 offen' + ELD)
    for k in range(1, 4):
        I(f'v_mov_b32 v{43+k}, v{X+7+k}')
    NS = opt('ns', 1) if LATE else 4
    for k in range(NS):
        src_load(k)
    srd_off(S_EA, 86, 87, 's62', 's65')
    I(f'v_lshlrev_b32 v92, 3, v{V_TID}')
    for k in range(1, 4):
        I(f'v_add_u32 v{92+k}, {8192*k}, v92')
    def e_load(k):
        I(f'buffer_load_dwordx2 v[{72+2*k}:{73+2*k}], v{92+k}, {sr4(S_EA)}, 0 offen' + ELD)
    NEE = opt('ne', 1) if LATE else opt('nee', 4)
    for k in range(NEE):
        e_load(k)
    if ORDER == 1:
        dma_loads()
    I(f's_mov_b64 {sp(S_DBG)}, s[56:57]')
    I(f's_add_u32 s{S_WSP}, s58, 0x{WSB:x}')
    I(f's_addc_u32 s{S_WSP+1}, s59, 0')
    stamp(1)
    srd(S_OUT, 10, 11, N_NODES * 128)
    I(f's_mul_i32 s{S_T}, s2, {CAP*4}')
    srd_off(S_RW, S_WSP, S_WSP + 1, f's{S_T}', CAP * 4)
    I(f's_lshl_b32 s{S_T}, s{S_T}, 1')
    I(f's_add_u32 s{S_T}, s{S_T}, 0x{WS_RE:x}')
    srd_off(S_RE, S_WSP, S_WSP + 1, f's{S_T}', CAP * 8)
    I(f's_lshl_b32 s{S_T}, s2, 11')
    I(f's_add_u32 s{S_T}, s{S_T}, 0x{WS_TAB:x}')
    srd_off(S_TAB, S_WSP, S_WSP + 1, f's{S_T}', (KREP - 1) * 0x80000 + 2048)
    I(f's_mul_i32 s{S_T}, s3, {NB*256}')
    I(f's_add_u32 s{S_T}, s{S_T}, 0x{WS_NT:x}')
    srd_off(S_NTS, S_WSP, S_WSP + 1, f's{S_T}', NB * 256)
    I(f's_add_u32 s{S_NTG}, s{S_WSP}, 0x{WS_NT:x}')
    I(f's_addc_u32 s{S_NTG+1}, s{S_WSP+1}, 0')
    I(f's_or_b32 s{S_NTG+1}, s{S_NTG+1}, 0x80000000')
    I(f's_mov_b32 s{S_NTG+2}, 0x400000')
    I(f's_mov_b32 s{S_NTG+3}, 0x00c00000')
    srd_off(S_DST, S_WSP, S_WSP + 1, '0x%x' % WS_RW, NWG * CAP * 4)
    if not LATE:
        srd_off(S_SRC, S_WSP, S_WSP + 1, '0x%x' % WS_RE, NWG * CAP * 8)
    for k in range(4):
        I(f'v_add_u32 v{X+1}, {1024*k}, v{V_TID}')
        I(f'v_cmp_gt_u32 {sp(S_MASK+2*k)}, s63, v{X+1}')
    I(f's_mov_b32 s{S_C}, 0x{f2u(2.0**-KH):x}')
    I(f's_mov_b32 s{S_C+1}, 0x{f2u(2.0**-KH):x}')
    I(f's_mov_b32 s{S_JB}, 0')
    I(f's_mov_b32 s{S_WID}, 128')
    I(f'v_and_b32 v{V_J4}, 7, v{V_LANE}')
    I(f'v_lshlrev_b32 v{V_J4}, 3, v{V_J4}')
    if CM:
        I(f'v_and_b32 v{X+1}, 56, v{V_LANE}')
        I(f's_and_b32 s{S_T}, s{S_W}, 1')
        I(f's_lshl_b32 s{S_T}, s{S_T}, 7')
        I(f's_lshr_b32 s{S_T+1}, s{S_W}, 1')
        I(f's_add_u32 s{S_T}, s{S_T}, s{S_T+1}')
    else:
        I(f'v_lshrrev_b32 v{X+1}, 3, v{V_LANE}')
        I(f's_lshl_b32 s{S_T}, s{S_W}, 4')
    I(f'v_add_u32 v{X+1}, s{S_T}, v{X+1}')
    I(f'v_lshlrev_b32 v{V_TAB+2}, 11, v{X+1}')
    I(f'v_mul_u32_u24 v{V_CB4}, {CAP*4}, v{X+1}')
    I(f'v_add_u32 v{V_CB4}, v{V_CB4}, v{V_J4}')
    I(f'v_and_b32 v{V_CH8}, 31, v{V_LANE}')
    I(f'v_lshlrev_b32 v{V_CH8}, 3, v{V_CH8}')
    I(f'v_add_u32 v{V_CHP}, {PT}, v{V_CH8}')
    phase0_addr()
    a5_const()
    if not F1:
        I(f's_waitcnt vmcnt({8 + NEE if ORDER == 0 else 0})')
        I('s_barrier')
    stamp(2)
    def late_loads():
        if LATE:
            for k in range(NS, 4):
                src_load(k)
        for k in range(NEE, 4):
            e_load(k)
        I(f'v_mov_b32 v12, 0')
        I(f'global_load_dword v10, v12, {sp(S_DBG)} sc1')
        if TCH:
            I(f'v_lshlrev_b32 v13, 13, v{V_LANE}')
            I(f'buffer_load_dword v60, v13, {sr4(S_RW)}, 0 offen')
            I(f'buffer_load_dword v61, v13, {sr4(S_RE)}, 0 offen')
            I(f'buffer_load_dword v62, v13, {sr4(S_TAB)}, 0 offen')
            I(f'buffer_load_dword v63, v13, {sr4(S_NTS)}, 0 offen')
        srd_off(S_EA, S_WSP, S_WSP + 1, '0x%x' % WS_TAB, 0x80000 + NWG * 128)
        if LATE:
            srd_off(S_SRC, S_WSP, S_WSP + 1, '0x%x' % WS_RE, NWG * CAP * 8)
    if not LATE:
        late_loads()
    if not F1:
        phase0a()
    I(f's_mov_b32 s{S_T}, -{NB}')
    I(f'v_mov_b32 v{X+1}, 4')
    BN, WD, RK = 28, 32, 36
    for k in range(4):
        I(f's_waitcnt vmcnt({((3 + NS + NEE if ORDER == 0 else 6 + NS + NEE) if LATE else (12 if ORDER == 0 else 15) + TCH) - k})')
        I(f's_mov_b64 exec, {sp(S_MASK+2*k)}')
        if k == 3:
            I('s_cbranch_execz L_B1')
        I(f'v_mul_u32_u24 v{BN+k}, 21400, v{64+k}')
        I(f'v_lshrrev_b32 v{BN+k}, 20, v{BN+k}')
        I(f'v_mad_i32_i24 v{WD+k}, v{BN+k}, s{S_T}, v{64+k}')
        I(f'v_lshlrev_b32 v{BN+k}, 2, v{BN+k}')
        I(f'ds_add_rtn_u32 v{RK+k}, v{BN+k}, v{X+1} offset:{HIST}')
        I(f'v_lshlrev_b32 v{WD+k}, 26, v{WD+k}')
    L('L_B1')
    I('s_mov_b64 exec, -1')
    if LATE:
        late_loads()
    I(f'v_add_u32 v{X+1}, {NTI}, v{X}')
    stamp(3)
    I({0: 's_waitcnt lgkmcnt(0)', 1: 's_waitcnt vmcnt(1) lgkmcnt(0)', 2: f's_waitcnt vmcnt({9 + TCH}) lgkmcnt(0)'}[ORDER])
    I('s_barrier')
    stamp(4)
    if not F1:
        I(f'ds_read_b128 v[112:115], v{X+1}')
    I(f's_cmp_lg_u32 s{S_W}, 0')
    I('s_cbranch_scc1 L_NOSCAN')
    I(f'ds_read_b128 v[96:99], v{X} offset:{HIST}')
    I('s_waitcnt lgkmcnt(0)')
    for k in range(4):
        I(f'v_add_u32 v{108+k}, 4, v{96+k}')
        I(f'v_and_b32 v{108+k}, -8, v{108+k}')
    I('v_add_u32 v101, v108, v109')
    I('v_add_u32 v102, v101, v110')
    I('v_add_u32 v103, v102, v111')
    I('v_mov_b32 v104, v103')
    wave_scan(104)
    I(f'v_readlane_b32 s{S_T+4}, v104, 63')
    I('v_sub_u32 v104, v104, v103')
    I(f'v_mov_b32 v100, {MISC+8}')
    I(f'v_mov_b32 v105, s{S_T+4}')
    I('ds_write_b32 v100, v105')
    I('v_add_u32 v105, v104, v108')
    I('v_add_u32 v106, v104, v101')
    I('v_add_u32 v107, v104, v102')
    I(f'ds_write_b128 v{X}, v[104:107] offset:{HBASE}')
    for k in range(4):
        I(f'v_lshl_or_b32 v{108+k}, v{96+k}, 16, v{104+k}')
    I(f'ds_write_b128 v{X}, v[108:111] offset:{HIST}')
    L('L_NOSCAN')
    if F1:
        phase0a()
    I('s_waitcnt lgkmcnt(0)')
    if not F1:
        I(f'buffer_store_dwordx4 v[112:115], v{X}, {sr4(S_NTS)}, 0 offen' + SC)
    if T1:
        I(f's_mul_i32 s{S_T+4}, s3, {NB*128}')
        I(f'v_mov_b32 v60, s{S_T+4}')
        I(f'buffer_load_dword v61, v60, {sr4(S_OUT)}, 0 offen')
    if not SRCL:
        I(f's_waitcnt vmcnt({4 + TCH + T1 if LATE else 6 - F1 + TCH + T1})')
        for k in range(4):
            I(f'v_lshl_or_b32 v{WD+k}, v{68+k}, 3, v{WD+k}')
    I('s_barrier')
    stamp(5)
    if F1:
        I(f'ds_read_b128 v[112:115], v{X+1}')
    for k in range(4):
        I(f's_mov_b64 exec, {sp(S_MASK+2*k)}')
        I(f'ds_read_b32 v{BN+k}, v{BN+k} offset:{HBASE}')
    if F1:
        I('s_mov_b64 exec, -1')
        I('s_waitcnt lgkmcnt(4)')
        I(f'buffer_store_dwordx4 v[112:115], v{X}, {sr4(S_NTS)}, 0 offen' + SC)
    if SRCL == 1:
        I(f's_waitcnt vmcnt({5 + TCH + T1})')
        for k in range(4):
            I(f'v_lshl_or_b32 v{WD+k}, v{68+k}, 3, v{WD+k}')
    if SRCL < 2:
        I(f's_waitcnt vmcnt({1 + TCH + T1})')
        I(f'v_readfirstlane_b32 s{S_TAG}, v10')
    for k in range(4):
        I(f's_mov_b64 exec, {sp(S_MASK+2*k)}')
        if k == 3:
            I('s_cbranch_execz L_B2')
        if SRCL == 2:
            assert LATE and not TCH and not T1
            order_ = [f's{j}' for j in range(NS)] + [f'e{j}' for j in range(NEE)] + [f's{j}' for j in range(NS, 4)] + [f'e{j}' for j in range(NEE, 4)] + ['tag', 'nt']
            need_ = max(order_.index(f's{k}'), order_.index(f'e{k}'))
            I(f's_waitcnt vmcnt({len(order_) - 1 - need_}) lgkmcnt({3 - k + 2*k})')
            I(f'v_lshl_or_b32 v{WD+k}, v{68+k}, 3, v{WD+k}')
        else:
            I(f's_waitcnt lgkmcnt({3 - k + 2*k})')
        I(f'v_add_u32 v{RK+k}, v{BN+k}, v{RK+k}')
        I(f'v_add_u32 v{BN+k}, v{RK+k}, v{RK+k}')
        I(f'ds_write_b32 v{RK+k}, v{WD+k} offset:{STGW}')
        I(f'ds_write_b64 v{BN+k}, v[{72+2*k}:{73+2*k}] offset:{STGE}')
    L('L_B2')
    I('s_mov_b64 exec, -1')
    if SRCL == 2:
        I('s_waitcnt vmcnt(1)')
        I(f'v_readfirstlane_b32 s{S_TAG}, v10')
    I(f'v_mov_b32 v13, {MISC+8}')
    I(f'ds_read_b32 v13, v13')
    I(f's_mov_b32 s{S_T}, 0x40000')
    L('L_TAGP')
    I(f's_cmp_lg_u32 s{S_TAG}, 0')
    I('s_cbranch_scc1 L_TAGD')
    I(f'v_mov_b32 v12, 0')
    I(f'global_load_dword v10, v12, {sp(S_DBG)} sc1')
    I('s_waitcnt vmcnt(0)')
    I(f'v_readfirstlane_b32 s{S_TAG}, v10')
    I(f's_sub_u32 s{S_T}, s{S_T}, 1')
    I('s_cbranch_scc1 L_END')
    I('s_branch L_TAGP')
    L('L_TAGD')
    I(f'v_add_u32 v{X+2}, 16384, v{X}')
    I(f'v_lshlrev_b32 v12, 3, v{V_LANE}')
    I(f's_mul_i32 s{S_TAG2}, s{S_TAG}, 0x9e3779b1')
    I(f's_and_b32 s{S_TAG2}, s{S_TAG2}, 0x{TAGM:x}')
    I('s_waitcnt lgkmcnt(0)')
    I(f'v_readfirstlane_b32 s{S_T}, v13')
    I('s_barrier')
    I(f's_add_u32 s{S_T}, s{S_T}, 127')
    I(f's_and_b32 s{S_RW+2}, s{S_T}, -128')
    I(f's_lshl_b32 s{S_RE+2}, s{S_RW+2}, 1')
    stamp(6)
    if opt('early', 0):
        I(f'ds_read_b64 v[92:93], v12 offset:{HIST}')
        I(f'ds_read_b64 v[94:95], v12 offset:{HIST+512}')
        I(f'v_lshlrev_b32 v60, 4, v{V_LANE}')
        I('s_waitcnt lgkmcnt(0)')
        for k in range(4):
            I(f'v_or_b32 v{120+2*k}, s{S_TAG2}, v{92+k}')
            I(f'v_mov_b32 v{121+2*k}, s{S_TAG}')
        I(f's_cmp_lg_u32 s{S_W}, 0')
        I('s_cbranch_scc1 L_EARLY')
        I(f'buffer_store_dwordx4 v[120:123], v60, {sr4(S_TAB)}, 0 offen' + SC)
        I(f'buffer_store_dwordx4 v[124:127], v60, {sr4(S_TAB)}, 0 offen offset:1024' + SC)
        L('L_EARLY')
    I(f'ds_read_b128 v[64:67], v{X} offset:{STGW}')
    I(f'ds_read_b128 v[68:71], v{X} offset:{STGE}')
    I(f'ds_read_b128 v[72:75], v{X} offset:{STGE+16384}')
    I(f'ds_read_b64 v[92:93], v12 offset:{HIST}')
    I(f'ds_read_b64 v[94:95], v12 offset:{HIST+512}')
    I('s_waitcnt lgkmcnt(4)')
    I(f'buffer_store_dwordx4 v[64:67], v{X}, {sr4(S_RW)}, 0 offen' + SC)
    I(f'v_mov_b32 v62, v{X}')
    I(f'v_mov_b32 v63, v{X+2}')
    I('s_waitcnt lgkmcnt(0)')
    for k in range(4):
        I(f'v_or_b32 v{120+2*k}, s{S_TAG2}, v{92+k}')
        I(f'v_mov_b32 v{121+2*k}, s{S_TAG}')
    pre = opt('pre', 'x').replace('0', '')
    def piece(c):
        if c == 'x':
            zregs()
            zero_range(EXTRA, 16384, X + 2, X)
            fill_desca()
        elif c == 'b':
            phase0b()
        elif c == 'c':
            phase0c()
    for c in pre:
        piece(c)
    I(f'v_lshlrev_b32 v60, 4, v{V_LANE}')
    stamp(7)
    I('s_waitcnt vmcnt(0)')
    I('s_barrier')
    I(f's_cmp_lg_u32 s{S_W}, 0')
    I('s_cbranch_scc1 L_POLL0')
    I(f'buffer_store_dwordx4 v[120:123], v60, {sr4(S_TAB)}, 0 offen' + SC)
    I(f'buffer_store_dwordx4 v[124:127], v60, {sr4(S_TAB)}, 0 offen offset:1024' + SC)
    L('L_POLL0')
    I(f'buffer_store_dwordx4 v[68:71], v62, {sr4(S_RE)}, 0 offen' + SC)
    I(f'buffer_store_dwordx4 v[72:75], v63, {sr4(S_RE)}, 0 offen' + SC)
    stamp(8)
    mid = opt('mid', 'bc').replace('0', '')
    def piece2(c):
        if c == 'f':
            fill_words()
            zregs()
            zero_range(LE, CNT - LE, X + 2, X)
        else:
            piece(c)
    for c in mid:
        piece2(c)
    I(f's_lshl_b32 s{S_T+1}, s3, 3')
    I(f'v_add_u32 v76, s{S_T+1}, v{V_TAB+2}')
    I(f'v_add_u32 v77, {RSTEP*2048}, v76')
    I(f'v_lshrrev_b32 v{V_TAB+2}, 4, v{V_TAB+2}')
    I(f'v_add_u32 v{V_TAB+2}, 0x80000, v{V_TAB+2}')
    I(f'v_add_u32 v{V_TAB+3}, {RSTEP*128}, v{V_TAB+2}')
    I(f's_mul_i32 s{S_TAG3}, s{S_TAG}, 0x85ebca6b')
    I(f's_lshl_b32 s{S_T}, s2, 7')
    I(f's_add_u32 s{S_T}, s{S_T}, 0x80000')
    I(f'v_mov_b32 v60, s{S_T}')
    I(f'v_mov_b32 v62, s{S_TAG}')
    I(f'v_mov_b32 v63, s{S_TAG3}')
    for r in range(2):
        I(f's_mov_b64 {sp(S_MASK+2*r)}, -1')
    I('s_waitcnt vmcnt(0)')
    I('s_barrier')
    stamp(9)
    I(f's_cmp_lg_u32 s{S_W}, 0')
    I('s_cbranch_scc1 L_FLAG2')
    I('s_mov_b64 exec, 1')
    I(f'buffer_store_dwordx2 v[62:63], v60, {sr4(S_EA)}, 0 offen' + SC)
    I('s_mov_b64 exec, -1')
    L('L_FLAG2')
    EP = 1
    for r in range(2):
        I(f'buffer_load_dwordx2 {p(64+2*r)}, v{76+r}, {sr4(S_EA)}, 0 offen' + LSC)
    for c in 'xbcf':
        if c not in pre + mid:
            piece2(c)
    ptr_consts()
    I(f's_mov_b32 s{S_T}, 0x40000')
    I(f's_mov_b32 s{S_T+1}, 0x{TAGM:x}')
    if opt('ps', 0):
        I(f's_sleep {opt("ps", 0)}')
    if EP:
        I('s_branch L_POLLC')
    L('L_POLL')
    for r in range(2):
        I(f's_mov_b64 exec, {sp(S_MASK+2*r)}')
        I(f'buffer_load_dwordx2 {p(64+2*r)}, v{76+r}, {sr4(S_EA)}, 0 offen' + LSC)
    L('L_POLLC')
    for r in range(2):
        I(f's_waitcnt vmcnt({1-r})')
        I(f's_mov_b64 exec, {sp(S_MASK+2*r)}')
        I(f'v_xor_b32 v{V_TAB+r}, s{S_TAG2}, v{64+2*r}')
        I(f'v_xor_b32 v{65+2*r}, s{S_TAG}, v{65+2*r}')
        I(f'v_and_or_b32 v{65+2*r}, v{V_TAB+r}, s{S_T+1}, v{65+2*r}')
        I(f'v_cmp_ne_u32 {sp(S_MASK+2*r)}, 0, v{65+2*r}')
    I(f's_or_b64 {sp(S_T+2)}, {sp(S_MASK)}, {sp(S_MASK+2)}')
    I('s_cbranch_scc0 L_POLLED')
    I(f's_sub_u32 s{S_T}, s{S_T}, 1')
    I('s_cbranch_scc1 L_END')
    if opt('sleep', 0):
        I(f's_sleep {opt("sleep", 0)}')
    I('s_branch L_POLL')
    L('L_POLLED')
    I('s_mov_b64 exec, -1')
    stamp(10)
    def RB(s_): return 64 + 8 * (s_ >> 1)
    def MK(s_): return sp(S_MASK + 2 * s_)
    AD = X
    L('L_PASS')
    I(f'v_add_u32 v{X+10}, s{S_JB}, v{V_CB4}')
    I(f'v_add_u32 v{X+8}, s{S_JB}, v{V_J4}')
    SDW = 'src0_sel:DWORD src1_sel:WORD_1'
    for r in range(2):
        I(f'v_add_u32_sdwa v{X+r}, v{V_TAB+r}, v{X+10} dst_sel:DWORD dst_unused:UNUSED_PAD src0_sel:WORD_0 src1_sel:DWORD')
        I(f'v_cmp_lt_u32_sdwa {MK(2*r)}, v{X+8}, v{V_TAB+r} {SDW}')
        if r:
            I(f'v_add_u32 v{X+r}, {RSTEP*CAP*4}, v{X+r}')
        I(f'v_add_u32 v{96+r}, v{X+r}, v{X+r}')
        I(f's_mov_b64 exec, {MK(2*r)}')
        I(f'buffer_load_dwordx2 {p(RB(2*r)+4)}, v{X+r}, {sr4(S_DST)}, 0 offen' + LSC)
        I('s_mov_b64 exec, -1')
    I(f'v_add_u32 v{X+9}, s{S_WID}, v{X+8}')
    I(f'v_add_u32 v{X+10}, 4, v{X+8}')
    I(f's_cmp_eq_u32 s{S_WID}, 128')
    I(f's_cselect_b32 s{S_T}, 64, 0x10000')
    I(f'v_add_u32 v{X+8}, s{S_T}, v{X+8}')
    for r in range(2):
        I(f'v_cmp_lt_u32_sdwa {MK(4+2*r)}, v{X+8}, v{V_TAB+r} {SDW}')
        I(f'v_cmp_lt_u32_sdwa {MK(2*r+1)}, v{X+10}, v{V_TAB+r} {SDW}')
    I(f'v_add_u32 v{X+8}, 4, v{X+8}')
    for r in range(2):
        I(f's_mov_b64 exec, {MK(4+2*r)}')
        I(f'buffer_load_dwordx2 {p(RB(4+2*r)+4)}, v{X+r}, {sr4(S_DST)}, 0 offen offset:64' + LSC)
    I('s_mov_b64 exec, -1')
    PF3 = opt('pf3', 0)
    if PF3:
        nt_prefetch(60, 49 - PF3, PF3, 63)
    BE = opt('be', 0)
    if BE:
        for r in range(2):
            I(f'buffer_load_dwordx2 {p(100+2*r)}, v{V_TAB+2+r}, {sr4(S_EA)}, 0 offen' + LSC)
    for r in range(2):
        I(f'v_cmp_lt_u32_sdwa {MK(5+2*r)}, v{X+8}, v{V_TAB+r} {SDW}')
    I(f'v_cmp_lt_u32_sdwa vcc, v{X+9}, v{V_TAB} {SDW}')
    I(f'v_cmp_lt_u32_sdwa {sp(S_T)}, v{X+9}, v{V_TAB+1} {SDW}')
    I(f'v_mov_b32 v{X+8}, 4')
    I(f's_or_b64 vcc, vcc, {sp(S_T)}')
    I(f's_cbranch_scc0 L_NOMORE')
    I(f'v_mov_b32 v{X+9}, {MISC}')
    I(f'ds_write_b32 v{X+9}, v{X+8}')
    L('L_NOMORE')
    stamp(11)
    e('    ; count')
    for s_ in range(8):
        if s_ >= 4:
            I(f's_mov_b64 exec, {MK(s_)}')
            I(f's_cbranch_execz L_C{s_}')
        if s_ % 2 == 0:
            I(f's_waitcnt vmcnt({3 + 2 * BE + (1 if PF3 else 0) - s_ // 2})')
        if s_ < 4:
            I(f's_mov_b64 exec, {MK(s_)}')
        I(f'v_lshrrev_b32 v{AD+s_}, 24, v{RB(s_)+4+(s_&1)}')
        if opt('safe', 0):
            I(f'v_and_b32 v{AD+s_}, 0xfc, v{AD+s_}')
        I(f'ds_add_rtn_u32 v{RB(s_)+6+(s_&1)}, v{AD+s_}, v{X+8} offset:{CNT}')
        if s_ >= 4:
            L(f'L_C{s_}')
    I('s_mov_b64 exec, -1')
    def check2():
        I(f'v_xor_b32 v100, s{S_TAG}, v100')
        I(f'v_xor_b32 v101, s{S_TAG3}, v101')
        I(f'v_xor_b32 v102, s{S_TAG}, v102')
        I(f'v_xor_b32 v103, s{S_TAG3}, v103')
        I('v_or3_b32 v100, v100, v101, v102')
        I('v_or_b32 v100, v100, v103')
        I('v_cmp_ne_u32 vcc, 0, v100')
    def e_loads():
        for hf in range(2):
            for r in range(2):
                I(f's_mov_b64 exec, {MK(4*hf+2*r)}')
                I(f'buffer_load_dwordx4 {vr(RB(4*hf+2*r),4)}, v{96+r}, {sr4(S_SRC)}, 0 offen offset:{128*hf}' + LSC)
        I('s_mov_b64 exec, -1')
    I(f's_mov_b32 s{S_CNT}, 1')
    if BE:
        I('s_waitcnt vmcnt(0)')
        check2()
        I('s_nop 0')
        I('s_cbranch_vccnz L_NOTYET')
        e_loads()
        I(f's_mov_b32 s{S_CNT}, 0')
        I('s_branch L_EDONE')
        L('L_NOTYET')
    for r in range(2):
        I(f'buffer_load_dwordx2 {p(100+2*r)}, v{V_TAB+2+r}, {sr4(S_EA)}, 0 offen' + LSC)
    L('L_EDONE')
    I(f'v_lshlrev_b32 v{X+8}, 2, v{V_LANE}')
    I(f'v_mov_b32 v{X+9}, {MISC}')
    I(f's_mov_b32 s{S_T+2}, 0x1fff8')
    I('s_waitcnt lgkmcnt(0)')
    I('s_barrier')
    stamp(12)
    def do_pf():
        if NPFM in (2, 3, 4):
            I(f's_mov_b32 s{S_T+7}, s{S_T}')
            nt_prefetch(60, dst=62)
            I(f's_mov_b32 s{S_T}, s{S_T+7}')
    def poll2():
        I(f's_cmp_eq_u32 s{S_CNT}, 0')
        I('s_cbranch_scc1 L_HAVEE')
        I(f's_mov_b32 s{S_T+3}, 0x40000')
        L('L_POLL2')
        I('s_waitcnt vmcnt(0)')
        I(f'v_xor_b32 v100, s{S_TAG}, v100')
        I(f'v_xor_b32 v101, s{S_TAG3}, v101')
        I(f'v_xor_b32 v102, s{S_TAG}, v102')
        I(f'v_xor_b32 v103, s{S_TAG3}, v103')
        I('v_or3_b32 v100, v100, v101, v102')
        I('v_or_b32 v100, v100, v103')
        I('v_cmp_ne_u32 vcc, 0, v100')
        I(f's_sub_u32 s{S_T+3}, s{S_T+3}, 1')
        I('s_cbranch_scc1 L_END')
        I('s_cbranch_vccz L_POLLED2')
        for r in range(2):
            I(f'buffer_load_dwordx2 {p(100+2*r)}, v{V_TAB+2+r}, {sr4(S_EA)}, 0 offen' + LSC)
        I('s_branch L_POLL2')
        L('L_POLLED2')
        for hf in range(2):
            for r in range(2):
                I(f's_mov_b64 exec, {MK(4*hf+2*r)}')
                I(f'buffer_load_dwordx4 {vr(RB(4*hf+2*r),4)}, v{96+r}, {sr4(S_SRC)}, 0 offen offset:{128*hf}' + LSC)
        I('s_mov_b64 exec, -1')
        L('L_HAVEE')
    B2 = opt('b2', 1)
    if B2 == 0:
        poll2()
        do_pf()
    NG, GS, MI = X + 10, X + 11, X + 12
    I(f'ds_read_b32 v{NG}, v{X+8} offset:{CNT}')
    I(f'ds_read_b32 v{X+9}, v{X+9}')
    I('s_waitcnt lgkmcnt(1)')
    I(f'v_add_u32 v{NG}, 28, v{NG}')
    I(f'v_and_b32 v{NG}, 0xffffffe0, v{NG}')
    I(f'v_mov_b32 v{GS}, v{NG}')
    wave_scan(GS)
    I(f'v_readlane_b32 s{S_T}, v{GS}, 63')
    I(f'v_sub_u32 v{GS}, v{GS}, v{NG}')
    if PROF == 5:
        stamp(19)
    I(f'ds_write_b32 v{X+8}, v{GS} offset:{BASET}')
    for s_ in range(8):
        I(f's_mov_b64 exec, {MK(s_)}')
        I(f'ds_read_b32 v{AD+s_}, v{AD+s_} offset:{BASET}')
    I('s_mov_b64 exec, -1')
    if B2 == 1:
        poll2()
        do_pf()
    I(f'v_readfirstlane_b32 s{S_MORE}, v{X+9}')
    out.insert(len(out) - 1, '    s_waitcnt lgkmcnt(9)')
    I(f's_lshr_b32 s{S_T}, s{S_T}, 5')
    I(f's_cmp_eq_u32 s{S_WID}, 128')
    I(f's_cselect_b32 s{S_T+1}, {MAXG}, -1')
    I(f's_cmp_gt_u32 s{S_T}, s{S_T+1}')
    I('s_cbranch_scc1 L_OVERFLOW')
    def place(tag):
        I('s_waitcnt lgkmcnt(0)')
        for s_ in range(8):
            wd, rk = RB(s_) + 4 + (s_ & 1), RB(s_) + 6 + (s_ & 1)
            I(f's_mov_b64 exec, {MK(s_)}')
            if s_ >= 4:
                I(f's_cbranch_execz L_P{tag}{s_}')
            I(f'v_add_u32 v{AD+s_}, v{AD+s_}, v{rk}')
            I(f'v_and_b32 v{wd}, s{S_T+2}, v{wd}')
            I(f'v_add_u32 v{rk}, v{AD+s_}, v{AD+s_}')
            I(f'ds_write_b32 v{AD+s_}, v{wd} offset:{LS}')
            if s_ >= 4:
                L(f'L_P{tag}{s_}')
        for s_ in range(8):
            rk, ee = RB(s_) + 6 + (s_ & 1), RB(s_) + 2 * (s_ & 1)
            I(f's_mov_b64 exec, {MK(s_)}')
            if s_ >= 4:
                I(f's_cbranch_execz L_Q{tag}{s_}')
            if s_ % 2 == 0:
                I(f's_waitcnt vmcnt({3 - s_ // 2 + NPF})')
            I(f'ds_write_b64 v{rk}, {p(ee)} offset:{LE}')
            if s_ >= 4:
                L(f'L_Q{tag}{s_}')
        I('s_mov_b64 exec, -1')
    if PROF == 5:
        stamp(20)
    SWAP = opt('swap', 0)
    if SWAP:
        I(f's_bitcmp1_b32 s{S_W}, {SWAP}')
        I('s_cbranch_scc0 L_DFIRST')
        place('a')
        L('L_DFIRST')
    SB_, SR_, SG0 = S_T + 4, S_T + 5, S_T + 6
    I(f's_add_u32 s{S_T}, s{S_T}, 3')
    I(f's_lshr_b32 s{S_T}, s{S_T}, 2')
    I(f's_lshr_b32 s{SB_}, s{S_T}, 4')
    I(f's_and_b32 s{SR_}, s{S_T}, 15')
    I(f's_add_u32 s{S_T+1}, s{SB_}, 1')
    I(f'v_cvt_f32_u32 v{MI}, s{S_T+1}')
    I(f'v_cvt_f32_u32 v{MI+1}, s{SB_}')
    I(f'v_rcp_f32 v{MI}, v{MI}')
    I(f'v_rcp_f32 v{MI+1}, v{MI+1}')
    I(f's_mul_i32 s{SG0}, s{SR_}, s{S_T+1}')
    I(f's_lshl_b32 s{SG0}, s{SG0}, 2')
    I(f'v_lshrrev_b32 v{GS}, 5, v{GS}')
    I(f'v_mul_f32 v{MI}, 0x47800000, v{MI}')
    I(f'v_mul_f32 v{MI+1}, 0x47800000, v{MI+1}')
    I(f'v_lshrrev_b32 v{NG}, 5, v{NG}')
    I(f'v_cvt_u32_f32 v{MI}, v{MI}')
    I(f'v_cvt_u32_f32 v{MI+1}, v{MI+1}')
    I(f's_cmp_lt_u32 s{S_W}, s{SR_}')
    I(f's_cselect_b32 s{S_L}, s{S_T+1}, s{SB_}')
    I(f'v_add_u32 v{MI}, 2, v{MI}')
    I(f'v_add_u32 v{MI+1}, 2, v{MI+1}')
    I(f's_min_u32 s{S_T}, s{S_W}, s{SR_}')
    I(f's_mul_i32 s{S_T+3}, s{S_W}, s{SB_}')
    I(f's_add_u32 s{S_T+3}, s{S_T+3}, s{S_T}')
    I(f's_sub_u32 s{S_T+1}, 0, s{S_T+1}')
    I(f's_sub_u32 s{SB_}, 0, s{SB_}')
    I(f's_lshl_b32 s{SR_}, s{SR_}, 2')
    D0, D1, D2, D3, NR = 96, 97, 98, 99, 100
    I(f'v_lshlrev_b32 v{NR}, 8, v{V_LANE}')
    I(f'v_add_u32 v{NR+1}, {ACCN}, v{NR}')
    I(f's_mov_b32 s{S_T}, s{S_W}')
    L('L_DLOOP')
    I(f'v_cmp_lt_u32 vcc, s{S_T}, v{NG}')
    I('s_and_b64 exec, exec, vcc')
    I('s_cbranch_execz L_DEND')
    I(f'v_add_u32 v{D0}, s{S_T}, v{GS}')
    I(f'v_subrev_u32 v{D1}, s{SG0}, v{D0}')
    I(f'v_cmp_gt_u32 vcc, s{SG0}, v{D0}')
    I(f'v_mul_u32_u24 v{D2}, v{D0}, v{MI}')
    I(f'v_mul_u32_u24 v{D3}, v{D1}, v{MI+1}')
    I(f'v_lshrrev_b32 v{D2}, 16, v{D2}')
    I(f'v_lshrrev_b32 v{D3}, 16, v{D3}')
    I(f'v_mad_i32_i24 v{D0}, v{D2}, s{S_T+1}, v{D0}')
    I(f'v_mad_i32_i24 v{D1}, v{D3}, s{SB_}, v{D1}')
    I(f'v_add_u32 v{D3}, s{SR_}, v{D3}')
    I(f'v_cndmask_b32 v{D0}, v{D1}, v{D0}, vcc')
    I(f'v_cndmask_b32 v{D2}, v{D3}, v{D2}, vcc')
    I(f'v_cmp_le_u32 vcc, s{S_T}, v{D0}')
    I(f'v_lshl_add_u32 v{D0}, v{D0}, 6, v{D2}')
    I(f'v_lshlrev_b32 v{D1}, 8, v{D2}')
    I(f'v_lshlrev_b32 v{D0}, 2, v{D0}')
    I(f'v_add_u32 v{D1}, {EXTRA}, v{D1}')
    I(f'v_add_u32 v{D3}, {DESCA}, v{D0}')
    I(f'v_cndmask_b32 v{D1}, v{D1}, v{NR+1}, vcc')
    I(f'ds_write_b32 v{D0}, v{NR} offset:{DESCP}')
    I(f'ds_write_b32 v{D3}, v{D1}')
    I(f's_add_u32 s{S_T+7}, s{S_T}, 1')
    I(f'v_cmp_eq_u32 vcc, s{S_T+7}, v{NG}')
    I(f's_and_saveexec_b64 {sp(S_EX)}, vcc')
    I(f'ds_write_b32 v{X+8}, v{D2} offset:{NINFO+256}')
    I(f's_mov_b64 exec, {sp(S_EX)}')
    I(f's_cmp_lg_u32 s{S_T}, 0')
    I('s_cbranch_scc1 L_DNF')
    I(f'ds_write_b32 v{X+8}, v{D2} offset:{NINFO}')
    L('L_DNF')
    I(f's_add_u32 s{S_T}, s{S_T}, 16')
    I('s_branch L_DLOOP')
    L('L_DEND')
    I('s_mov_b64 exec, -1')
    I(f's_lshl_b32 s{S_T}, s{S_T+3}, 7')
    I(f's_lshl_b32 s{S_T+1}, s{S_L}, 5')
    I(f'v_mov_b32 v{D0}, s{S_T}')
    I(f'v_mad_u32_u24 v{V_PS0}, v{V_PS1}, s{S_T+1}, v{D0}')
    I(f'v_add_u32 v{D0}, v{D0}, v{D0}')
    I(f'v_add_u32 v{V_PS1}, s{S_T+1}, v{V_PS0}')
    I(f'v_add_u32 v{V_PE}, v{V_PE}, v{D0}')
    I(f's_lshl_b32 s{S_T+1}, s{S_L}, 6')
    I(f'v_mad_u32_u24 v{V_PE}, v{V_VAP}, s{S_T+1}, v{V_PE}')
    if opt('safe', 0):
        I(f's_min_u32 s{S_L}, s{S_L}, 9')
        I(f's_mov_b32 s{S_MORE}, 0')
    I(f's_mov_b32 s{S_CNT}, s{S_L}')
    if B2 == 2:
        poll2()
        do_pf()
    if SWAP:
        I(f's_bitcmp1_b32 s{S_W}, {SWAP}')
        I('s_cbranch_scc1 L_PDONE')
    if PROF == 5:
        stamp(21)
    place('b')
    L('L_PDONE')
    stamp(13)
    I('s_waitcnt lgkmcnt(0)')
    I('s_barrier')
    stamp(14)
    I(f's_cmp_eq_u32 s{S_L}, 0')
    I('s_cbranch_scc1 L_FOLD')
    lg = Lg()
    FP = opt('fp', 0)
    if FP:
        for lvl in (3, 2, 1):
            I(f's_cmp_lt_u32 s{S_W}, {4 * (4 - lvl)}')
            I(f's_cbranch_scc0 L_FP{lvl}')
            I(f's_setprio {lvl}')
            I('s_branch L_FPD')
            L(f'L_FP{lvl}')
        L('L_FPD')
    s_reads(lg, 0)
    lg.op('dP', f'ds_read_b64 {p(V_VAP)}, v{V_PD}')
    lg.op('dA', f'ds_read_b64 {p(V_VAA[0])}, v{V_PD} offset:{DESCA-DESCP}')
    lg.op('e', f'ds_read_b64 {p(A5)}, v{V_PE}')
    lg.need('S0', 'S1', 'S2', 'S3')
    s_safe()
    STG_ = [int(x) for x in opt('stag', '0,0,0').split(',')]
    for gi, d in enumerate(STG_):
        if d:
            I(f's_cmp_ge_u32 s{S_W}, {4 * (gi + 1)}')
            I(f's_cbranch_scc0 L_ST{gi}')
            I(f's_sleep {d}')
            L(f'L_ST{gi}')
    for n in range(2):
        for i in range(16):
            I(gload(n, i))
        if n == 0 and FP == 2:
            I('s_setprio 0')
    s_reads(lg, 1)
    I(f'v_mov_b32 v{V_C8P}, v{V_CH8}')
    I(f'v_mov_b32 v{V_C8P+1}, v{V_CH8}')
    I(f'v_mov_b32 v{V_CPP}, v{V_CHP}')
    I(f'v_mov_b32 v{V_CPP+1}, v{V_CHP}')
    if M8:
        I(f'v_mov_b32 v{V_SCP}, 0x{f2u(2.0**KH):x}')
        I(f'v_mov_b32 v{V_SCP+1}, 0x{f2u(2.0**KH):x}')
    I(f's_mov_b32 s{S_BP0}, 64')
    I(f's_mov_b32 s{S_BP0+1}, 64')
    I(f's_mov_b32 s{S_BP1}, 128')
    I(f's_mov_b32 s{S_BP1+1}, 512')
    lg.need('dP', 'dA')
    va_add(V_VAP, V_VAA[0])
    lg.op('P0a', f'ds_read_b32 v{B5[0]+2}, v{V_VAP}')
    lg.op('P0b', f'ds_read_b32 v{B5[0]+3}, v{V_VAP+1}')
    lg.op('P1a', f'ds_read_b32 v{B5[1]+2}, v{V_VAP} offset:4')
    lg.op('P1b', f'ds_read_b32 v{B5[1]+3}, v{V_VAP+1} offset:4')
    I(f's_cmp_eq_u32 s{S_CNT}, 1')
    I(f's_cselect_b64 {sp(S_LDX)}, 0, {LDXV}')
    I('s_waitcnt lgkmcnt(0)')
    lg.q = []
    if opt('prio', 3):
        I('s_setprio 3')
    stamp(15)
    rstamp(28)
    half(lg, 0, 0, 0, False)
    if PROF == 4:
        stamp(19)
        lg.q = []
    state0 = list(lg.q)
    def step(par, uo):
        prio(f'm{par}', 1)
        half(lg, 1, par, uo)
        if PROF == 4:
            I('s_memtime s[98:99]')
            I(f's_sub_u32 s92, s{S_L}, s{S_CNT}')
            I(f's_add_u32 m0, s92, 20')
            I('s_waitcnt lgkmcnt(0)')
            I(f'v_writelane_b32 v{V_PROF}, s98, m0')
        I(f's_sub_u32 s{S_CNT}, s{S_CNT}, 1')
        I(f's_cmp_eq_u32 s{S_CNT}, 0')
        I(f's_cbranch_scc1 L_FIN{par}')
        I(f's_cmp_eq_u32 s{S_CNT}, 1')
        I(f's_cselect_b64 {sp(S_LDX)}, 0, {LDXV}')
        prio(f'{par}')
        half(lg, 0, par ^ 1, uo + 1)
    def loop_body():
        step(0, 0)
        step(1, 1)
        I(f'v_lshl_add_u64 {p(V_PS0)}, {p(V_PS0)}, 0, {sp(S_BP0)}')
        I(f'v_lshl_add_u64 {p(V_PE)}, {p(V_PE)}, 0, {sp(S_BP1)}')
        I('s_branch L_LOOP')
    mark = len(out)
    loop_body()
    del out[mark:]
    qb = list(lg.q)
    n = min(len(qb), len(state0))
    assert PROF == 4 or qb[len(qb)-n:] == state0[len(state0)-n:], (state0, qb)
    lg.q = list(qb if len(qb) >= len(state0) else state0)
    e('.p2align 3')
    L('L_LOOP')
    mark = len(out)
    loop_body()
    drop = opt('drop', '')
    if drop:
        body = out[mark:]
        keep = []
        for l in body:
            t = l.strip()
            if 'v' in drop and (t.startswith('buffer_load') or t.startswith('s_mov_b64 exec') or 'vmcnt' in t):
                continue
            if 'l' in drop and (t.startswith('ds_') or 'lgkmcnt' in t):
                continue
            if 'm' in drop and t.startswith('v_mfma'):
                continue
            if 'n' in drop and t.startswith('s_nop'):
                continue
            keep.append(l)
        out[mark:] = keep
    assert lg.q == qb, (lg.q, qb)
    print('loop entry queue', state0, 'back edge queue', qb, file=sys.stderr)
    for pr in range(2):
        L(f'L_FIN{pr}')
        if M8:
            I(f'v_pk_mul_f32 {p(V_T01N)}, {p(V_T01N)}, {p(V_T23D)}')
            I(f'v_pk_mul_f32 {p(V_T23D)}, {p(V_T01D)}, {p(V_T23D)}')
            I(f'v_pk_fma_f32 {p(V_T01N)}, {p(V_T23N)}, {p(V_T01D)}, {p(V_T01N)}')
            I(f'v_rcp_f32 v{V_T23D}, v{V_T23D}')
            I(f'v_rcp_f32 v{V_T23D+1}, v{V_T23D+1}')
            I('s_waitcnt lgkmcnt(0)')
            I(f'v_pk_fma_f32 {p(V_MB)}, {p(V_T01N)}, {p(V_T23D)}, {p(V_MB)}')
        else:
            for r_ in (V_T01D, V_T01D + 1, V_T23D, V_T23D + 1):
                I(f'v_rcp_f32 v{r_}, v{r_}')
            I('s_waitcnt lgkmcnt(0)')
            I(f'v_pk_fma_f32 {p(V_MB)}, {p(V_T01N)}, {p(V_T01D)}, {p(V_MB)}')
            I(f'v_pk_fma_f32 {p(V_MB)}, {p(V_T23N)}, {p(V_T23D)}, {p(V_MB)}')
        acc_write(Lg(), V_VAA[pr])
        if pr == 0:
            I('s_branch L_FOLD')
    L('L_FOLD')
    stamp(16)
    FL = opt('fl', 0)
    I(f'v_lshrrev_b32 v{X}, 4, v{V_TID}')
    I(f'v_and_b32 v{X+1}, 15, v{V_TID}')
    if FL:
        I(f'v_lshlrev_b32 v{X+6}, 3, v{X+1}')
        I(f'v_lshrrev_b32 v{X+2}, 3, v{X+1}')
        I(f'v_and_b32 v{X+1}, 7, v{X+1}')
        I(f'v_lshlrev_b32 v{X+1}, 5, v{X+1}')
        I(f'v_lshl_add_u32 v{X+1}, v{X+2}, 2, v{X+1}')
    else:
        I(f'v_lshlrev_b32 v{X+6}, 2, v{X+1}')
        I(f'v_lshlrev_b32 v{X+1}, 4, v{X+1}')
    I(f'v_lshl_add_u32 v{X+2}, v{X}, 8, v{X+1}')
    I(f'v_add_u32 v{X+2}, {ACCN}, v{X+2}')
    I(f'v_add_u32 v{X+1}, {EXTRA}, v{X+1}')
    def rd4(dst, ad):
        if FL:
            I(f'ds_read2_b32 v[{dst}:{dst+1}], v{ad} offset0:0 offset1:2')
            I(f'ds_read2_b32 v[{dst+2}:{dst+3}], v{ad} offset0:4 offset1:6')
        else:
            I(f'ds_read_b128 v[{dst}:{dst+3}], v{ad}')
    I(f'v_lshlrev_b32 v{X+3}, 2, v{X}')
    I(f's_mul_i32 s{S_T+4}, s3, {NB*128}')
    I(f'v_lshl_add_u32 v{X+6}, v{X}, 7, v{X+6}')
    I(f'v_add_u32 v{X+6}, s{S_T+4}, v{X+6}')
    I(f'v_mov_b32 v{X+7}, 0')
    I(f'ds_read_b32 v{X+4}, v{X+3} offset:{NINFO}')
    I(f'ds_read_b32 v{X+5}, v{X+3} offset:{NINFO+256}')
    I(f's_mov_b32 s{S_T+2}, 0x{f2u(2.0**-(SV+KH)):x}')
    I(f's_mov_b32 s{S_T+3}, 0x{f2u(-LOG2E * 2.0**-(SV+KH)):x}')
    I(f'v_cmp_gt_u32 vcc, {NB*16}, v{V_TID}')
    I('s_waitcnt vmcnt(0) lgkmcnt(0)')
    I('s_barrier')
    stamp(17)
    rstamp(29)
    if PROF:
        I(f'v_writelane_b32 v{V_PROF}, s{S_L}, 27')
    I(f's_and_saveexec_b64 {sp(S_EX)}, vcc')
    I('s_cbranch_execz L_FDONE')
    rd4(64, X + 2)
    I(f's_mov_b64 {sp(S_T)}, exec')
    L('L_FLOOP')
    I(f'v_cmp_lt_u32 vcc, v{X+4}, v{X+5}')
    I('s_and_b64 exec, exec, vcc')
    I('s_cbranch_execz L_FLEND')
    I(f'v_add_u32 v{X+4}, 1, v{X+4}')
    I(f'v_lshl_add_u32 v{X+7}, v{X+4}, 8, v{X+1}')
    rd4(72, X + 7)
    I('s_waitcnt lgkmcnt(0)')
    for k in range(4):
        I(f'v_add_f32 v{64+k}, v{64+k}, v{72+k}')
    I('s_branch L_FLOOP')
    L('L_FLEND')
    I(f's_mov_b64 exec, {sp(S_T)}')
    I('s_waitcnt lgkmcnt(0)')
    I(f's_cmp_lg_u32 s{S_MORE}, 0')
    I('s_cbranch_scc1 L_WB')
    for k in range(4):
        I(f'v_mul_f32 v{72+k}, s{S_T+3}, v{64+k}')
    for k in range(4):
        I(f'v_exp_f32 v{72+k}, v{72+k}')
    for k in range(4):
        I(f'v_mul_f32 v{64+k}, s{S_T+2}, v{64+k}')
    for k in range(4):
        I(f'v_add_f32 v{72+k}, 1.0, v{72+k}')
    for k in range(4):
        I(f'v_rcp_f32 v{72+k}, v{72+k}')
    I('s_nop 0')
    for k in range(4):
        I(f'v_mul_f32 v{64+k}, v{64+k}, v{72+k}')
    if FL:
        I('v_cvt_pk_bf16_f32 v80, v64, v65')
        I('v_cvt_pk_bf16_f32 v81, v66, v67')
        I(f'buffer_store_dwordx2 v[80:81], v{X+6}, {sr4(S_OUT)}, 0 offen' + OSC)
    else:
        I('v_cvt_pk_bf16_f32 v80, v64, v66')
        I('v_cvt_pk_bf16_f32 v81, v65, v67')
        I(f'buffer_store_dword v80, v{X+6}, {sr4(S_OUT)}, 0 offen' + OSC)
        I(f'buffer_store_dword v81, v{X+6}, {sr4(S_OUT)}, 0 offen offset:64' + OSC)
    stamp(18)
    prof_store()
    diag_end()
    I('s_endpgm')
    L('L_WB')
    if FL:
        I(f'ds_write2_b32 v{X+2}, v64, v65 offset0:0 offset1:2')
        I(f'ds_write2_b32 v{X+2}, v66, v67 offset0:4 offset1:6')
    else:
        I(f'ds_write_b128 v{X+2}, v[64:67]')
    L('L_FDONE')
    I('s_mov_b64 exec, -1')
    I(f's_cmp_eq_u32 s{S_MORE}, 0')
    I('s_cbranch_scc1 L_QUIT')
    I(f's_add_u32 s{S_JB}, s{S_JB}, s{S_WID}')
    I('s_branch L_REFILL')
    L('L_OVERFLOW')
    I(f's_mov_b32 s{S_WID}, 64')
    L('L_REFILL')
    I('s_waitcnt vmcnt(0) lgkmcnt(0)')
    I('s_barrier')
    fill_zero()
    fill_words()
    ptr_consts()
    I('s_waitcnt lgkmcnt(0)')
    I('s_barrier')
    I('s_branch L_PASS')
    L('L_QUIT')
    prof_store()
    L('L_END')
    I('s_endpgm')


DOC = """
"""
hdr = open('standalone__edge_featured_mpnn_egc__graph.s.ref').read().split('\n')
for line in hdr:
    if line.startswith('; Override'):
        break
    e(line)
e(f'; @launch grid=({NWG},1,1) block=(1024,1,1) lds={LDS_BYTES}')
e('.amdgcn_target "amdgcn-amd-amdhsa--gfx950"')
for line in DOC.strip().split('\n'):
    e(line)
e('.text')
gen()
e('.section .rodata,"a"')
e('.p2align 6')
e(f'.amdhsa_kernel {KNAME}')
e('  .amdhsa_next_free_vgpr 128')
e('  .amdhsa_next_free_sgpr 102')
e('  .amdhsa_accum_offset 128')
e('  .amdhsa_group_segment_fixed_size 0')
e('  .amdhsa_kernarg_size 80')
e('  .amdhsa_user_sgpr_count 2')
e('  .amdhsa_user_sgpr_kernarg_segment_ptr 1')
e('  .amdhsa_system_sgpr_workgroup_id_x 1')
e('  .amdhsa_float_denorm_mode_32 3')
e('.end_amdhsa_kernel')
open(sys.argv[1], 'w').write('\n'.join(x for x in out if x is not None) + '\n')
```

```python
import sys, struct

OPT = dict(a.split('=') for a in sys.argv[2:] if '=' in a)
def opt(name, default):
    return type(default)(OPT.get(name, default))

KNAME = 'standalone__edge_featured_mpnn_egc__graph_kernel'
N_NODES = 12500
E_EDGES = 800000
NB = 49
NWG = 256
CH = 3136
WS_RW = 0
WS_RE = 0x00400000
CAP = CH + 256
WS_TAB = 0x00B00000
WS_NT = 0x00C00000
WS_PROF = 0x01000000
M8 = opt('m8', 0)
if M8:
    KH, KEXP, SV = 13, 26, 0
else:
    KH, KEXP, SV = 31, 31, 30
LOG2E = 1.4426950408889634
SC = opt('sc', 'sc1')
SC = (' ' + SC.replace('+', ' ')) if SC != 'none' else ''
LSC = opt('lsc', 'sc1')
LSC = (' ' + LSC.replace('+', ' ')) if LSC != 'none' else ''
GSC = opt('gsc', 'sc1')
GSC = (' ' + GSC.replace('+', ' ')) if GSC != 'none' else ''
ELD = opt('eld', 'none')
ELD = (' ' + ELD.replace('+', ' ')) if ELD != 'none' else ''

def f2u(x):
    return struct.unpack('<I', struct.pack('<f', x))[0]

out = []
def e(s=''):
    out.append(s)
def I(s):
    out.append('    ' + s)
def L(name):
    out.append(name + ':')
def vr(a, n):
    return f'v[{a}:{a+n-1}]' if n > 1 else f'v{a}'
def sr4(a):
    return f's[{a}:{a+3}]'
def sp(a):
    return f's[{a}:{a+1}]'
def p(r):
    return f'v[{r}:{r+1}]'

def srd(d, lo, hi, nrec):
    I(f's_mov_b32 s{d}, s{lo}')
    I(f's_mov_b32 s{d+1}, s{hi}')
    I(f's_mov_b32 s{d+2}, {nrec}')
    I(f's_mov_b32 s{d+3}, 0x00020000')

def srd_off(d, lo, hi, off, nrec):
    I(f's_add_u32 s{d}, s{lo}, {off}')
    I(f's_addc_u32 s{d+1}, s{hi}, 0')
    I(f's_mov_b32 s{d+2}, {nrec}')
    I(f's_mov_b32 s{d+3}, 0x00020000')

def wave_scan(v):
    for sh in (1, 2, 4, 8):
        I('s_nop 1')
        I(f'v_add_u32_dpp v{v}, v{v}, v{v} row_shr:{sh} row_mask:0xf bank_mask:0xf')
    I('s_nop 1')
    I(f'v_add_u32_dpp v{v}, v{v}, v{v} row_bcast:15 row_mask:0xa bank_mask:0xf')
    I('s_nop 1')
    I(f'v_add_u32_dpp v{v}, v{v}, v{v} row_bcast:31 row_mask:0xc bank_mask:0xf')
    I('s_nop 1')

LS = 0
ZR = 18688
LE = 18688
CNT = 56064
MISC = 56320
BASET = 56576
NINFO = 56832
HIST = 57344
HBASE = 58368
DESCP = 59392
EXTRA = 67840
DESCA = 84224
PT = 86784
ACCN = 99328
WRAW = 111872
WG_, WV_, WU_ = WRAW, WRAW + 17408, WRAW + 25600
XOWN = WRAW + 33792
LDS_BYTES = XOWN + 8192
STGW = 0
STGE = CAP * 4
NTI = EXTRA
MAXG = 576
assert STGE + CAP * 8 <= CNT

V_TID, V_LANE = 0, 1
V_MA, V_MB = 2, 4
V_VAA = (6, 8)
V_VAP = 10
V_PS0, V_PS1, V_PE, V_PD, V_CH8, V_CHP = 12, 13, 14, 15, 16, 17
V_PROF = 18
V_TAB = 20
V_J4, V_CB4 = 24, 25
V_X = 26
V_T01D, V_T01N, V_T23D, V_T23N = 40, 42, 44, 46
B5 = (48, 52)
A5 = 56
V_TT = (60, 62)
G = (64, 80)
Z = 96
S = 112

S_XS, S_WS, S_DST, S_SRC, S_EA, S_RW, S_RE, S_TAB, S_NTS, S_NTG, S_OUT = 12, 16, 20, 24, 28, 32, 36, 40, 44, 48, 52
S_MASK = 56
S_W, S_L, S_CNT, S_JB, S_WID, S_MORE = 72, 73, 74, 75, 76, 77
S_C = 78
S_EX = 80
S_LDX = 82
S_T = 84
S_WSP = 94
S_DBG = 96
S_TAG, S_TAG2, S_TAG3 = 100, 101, 11
TAGM = 0xC003C003
TAGL = MISC + 64

NT2 = 2 if opt('touch', 0) else 0
LDXV = 0 if opt('noload', 0) else -1
NPFM = opt('npf', 4)
NPF = {0: 0, 1: 7, 2: 7, 3: 2, 4: 1, 5: 1}[NPFM]
NPF1 = NPF if NPFM in (1, 5) else 0
WSB = opt('wsb', 0) << 20
TCH = 4 if opt('touch', 0) else 0
T1 = opt('t1', 0)
OSC = opt('osc', 'nt')
OSC = (' ' + OSC.replace('+', ' ')) if OSC != 'none' else ''
KREP = opt('krep', 1)
assert KREP == 1
CM = opt('cm', 1)
RSTEP = 64 if CM else 8
SRCL = opt('srcl', 2)
TP = opt('tp', 1)
PROF = opt('prof', 0)
DIAG = opt('diag', -1)
def diag_end():
    if DIAG < 0:
        return
    I('s_memrealtime s[98:99]')
    I('s_waitcnt lgkmcnt(0)')
    I('v_readlane_b32 s92, v18, 1')
    I('v_readlane_b32 s93, v18, 0')
    I('s_nop 3')
    I('s_sub_u32 s92, s92, s93')
    I('s_lshr_b32 s92, s92, 3' if opt('dcyc', 0) else 's_lshl_b32 s92, s92, 2')
    I('s_mov_b32 s93, s98')
    lbl = f'L_DG{len(out)}'
    L(lbl)
    I('s_memrealtime s[98:99]')
    I('s_waitcnt lgkmcnt(0)')
    I('s_sub_u32 s98, s98, s93')
    I('s_cmp_lt_u32 s98, s92')
    I(f's_cbranch_scc1 {lbl}')
def stamp(i):
    if DIAG >= 0 and i in (opt('dfrom', 0), DIAG):
        I('s_memtime s[98:99]' if opt('dcyc', 0) else 's_memrealtime s[98:99]')
        I('s_waitcnt lgkmcnt(0)')
        if i == opt('dfrom', 0):
            I('v_writelane_b32 v18, s98, 0')
        if i == DIAG:
            I('v_writelane_b32 v18, s98, 1')
    if not PROF:
        return
    I('s_memtime s[98:99]')
    I('s_waitcnt lgkmcnt(0)')
    I(f'v_writelane_b32 v{V_PROF}, s98, {i}')
def rstamp(i):
    if not PROF:
        return
    I('s_memrealtime s[98:99]')
    I('s_waitcnt lgkmcnt(0)')
    I(f'v_writelane_b32 v{V_PROF}, s98, {i}')
def prof_store():
    if not PROF:
        return
    rstamp(31)
    if PROF == 3:
        I(f's_lshl_b32 s98, s2, 4')
        I(f's_add_u32 s98, s98, s{S_W}')
        I(f's_cmp_lg_u32 s98, {opt("pwave", 80)}')
        I('s_cbranch_scc1 L_END')
        I('s_mov_b64 exec, -1')
        I(f'v_readlane_b32 s98, v{V_PROF}, 0')
        I(f'v_readlane_b32 s99, v{V_PROF}, 30')
        I(f'v_readlane_b32 s{S_T}, v{V_PROF}, 31')
        I('s_nop 3')
        I(f's_sub_u32 s{S_T}, s{S_T}, s99')
        I(f's_add_u32 s{S_T}, s{S_T}, s98')
        I(f'v_writelane_b32 v{V_PROF}, s{S_T}, 9')
        I(f'v_subrev_u32 v{V_PROF}, s98, v{V_PROF}')
        I(f'v_mbcnt_lo_u32_b32 v{V_PROF+1}, -1, 0')
        I(f'v_lshlrev_b32 v{V_PROF+1}, 2, v{V_PROF+1}')
        I(f'v_add_u32 v{V_PROF+1}, -8, v{V_PROF+1}')
        I('s_mov_b64 exec, 0x3fff8')
        I(f'global_store_dword v{V_PROF+1}, v{V_PROF}, {sp(S_DBG)}')
        return
    I('s_mov_b64 exec, 0xffffffff')
    I(f's_add_u32 s{S_T}, s{S_WSP}, 0x{WS_PROF:x}')
    I(f's_addc_u32 s{S_T+1}, s{S_WSP+1}, 0')
    I(f'v_mbcnt_lo_u32_b32 v{V_PROF+1}, -1, 0')
    I(f'v_lshlrev_b32 v{V_PROF+1}, 2, v{V_PROF+1}')
    I(f's_lshl_b32 s98, s2, 4')
    I(f's_add_u32 s98, s98, s{S_W}')
    I(f's_lshl_b32 s98, s98, 7')
    I(f'v_add_u32 v{V_PROF+1}, s98, v{V_PROF+1}')
    I(f'global_store_dword v{V_PROF+1}, v{V_PROF}, {sp(S_T)}')

class Lg:
    def __init__(self):
        self.q = []
    def op(self, tag, text):
        I(text)
        self.q.append(tag)
    def need(self, *tags):
        idx = -1
        for t in tags:
            for i in range(len(self.q) - 1, -1, -1):
                if self.q[i] == t:
                    idx = max(idx, i)
                    break
        if idx < 0:
            return
        n = len(self.q) - 1 - idx
        assert n <= 15, (tags, n)
        I(f's_waitcnt lgkmcnt({n})')
        self.q = self.q[idx + 1:]

X = V_X

def zero_range(a, nbytes, zr, ad):
    k = 0
    base = a if a + nbytes <= 65536 + 16384 and a < 65536 - 3 * 16384 else None
    off = 0
    areg = ad
    if a + ((nbytes - 1) // 16384) * 16384 > 65535:
        I(f'v_add_u32 v{X+1}, {a}, v{ad}')
        areg = X + 1
        a0 = 0
    else:
        a0 = a
    while off < nbytes:
        n = min(16384, nbytes - off)
        if n < 16384:
            I(f'v_cmp_gt_u32 vcc, {n // 16}, v{V_TID}')
            I(f's_and_saveexec_b64 {sp(S_EX)}, vcc')
        I(f'ds_write_b128 v{areg}, v[{zr}:{zr+3}] offset:{a0 + off}')
        if n < 16384:
            I(f's_mov_b64 exec, {sp(S_EX)}')
        off += n

def zregs():
    I(f'v_lshlrev_b32 v{X}, 4, v{V_TID}')
    for k in range(4):
        I(f'v_mov_b32 v{X+2+k}, 0')

def fill_desca():
    I(f'v_and_b32 v{X+6}, 15, v{V_TID}')
    I(f'v_lshlrev_b32 v{X+6}, 10, v{X+6}')
    I(f'v_add_u32 v{X+6}, {EXTRA}, v{X+6}')
    for k in range(1, 4):
        I(f'v_add_u32 v{X+6+k}, {256*k}, v{X+6}')
    I(f'v_add_u32 v{X+1}, {DESCA}, v{X}')
    I(f'v_cmp_gt_u32 vcc, 160, v{V_TID}')
    I(f's_and_saveexec_b64 {sp(S_EX)}, vcc')
    I(f'ds_write_b128 v{X+1}, v[{X+6}:{X+9}]')
    I(f's_mov_b64 exec, {sp(S_EX)}')

def fill_zero():
    zregs()
    zero_range(ZR, 65536, X + 2, X)
    fill_desca()

def fill_words():
    I(f'v_lshlrev_b32 v{X}, 4, v{V_TID}')
    I(f'v_and_b32 v{X+2}, 7, v{V_TID}')
    I(f'v_lshlrev_b32 v{X+2}, 5, v{X+2}')
    I(f'v_add_u32 v{X+2}, {N_NODES*8}, v{X+2}')
    for k in range(1, 4):
        I(f'v_add_u32 v{X+2+k}, {8*k}, v{X+2}')
    I(f'ds_write_b128 v{X}, v[{X+2}:{X+5}] offset:{LS}')
    I(f'v_cmp_gt_u32 vcc, 144, v{V_TID}')
    I(f's_and_saveexec_b64 {sp(S_EX)}, vcc')
    I(f'ds_write_b128 v{X}, v[{X+2}:{X+5}] offset:{LS+16384}')
    I(f's_mov_b64 exec, {sp(S_EX)}')

V_C8P, V_CPP, V_SCP = 26, 28, 30
S_BP0, S_BP1 = 88, 90

def tail_ops(n):
    M = (V_MA, V_MB)[n]
    return [f'v_rcp_f32 v{V_T01D}, v{V_T01D}',
            f'v_rcp_f32 v{V_T01D+1}, v{V_T01D+1}',
            f'v_pk_fma_f32 {p(M)}, {p(V_T01N)}, {p(V_T01D)}, {p(M)}']

def acc_write(lg, va):
    lg.op('Wa', f'ds_write2_b32 v{va}, v{V_MA}, v{V_MB} offset0:0 offset1:1')
    lg.op('Wb', f'ds_write2_b32 v{va+1}, v{V_MA+1}, v{V_MB+1} offset0:0 offset1:1')

def acc_read(lg, va):
    lg.op('Ra', f'ds_read_b32 v{V_MA}, v{va}')
    lg.op('Rb', f'ds_read_b32 v{V_MA+1}, v{va+1}')
    lg.op('Rc', f'ds_read_b32 v{V_MB}, v{va} offset:4')
    lg.op('Rd', f'ds_read_b32 v{V_MB+1}, v{va+1} offset:4')

def va_add(vap, vaa):
    I(f'v_lshl_add_u64 {p(vap)}, {p(vap)}, 0, {p(V_CPP)}')
    I(f'v_lshl_add_u64 {p(vaa)}, {p(vaa)}, 0, {p(V_C8P)}')

def gload(n, i):
    return f'buffer_load_dword v{G[n]+i}, v{S + (i & 1) * 8 + (i >> 1)}, {sr4(S_NTG)}, 0 offen offset:{4*n}' + GSC

def s_safe():
    if opt('safe', 0):
        for i in range(16):
            I(f'v_and_b32 v{S+i}, 0x1fff8, v{S+i}')

def s_reads(lg, uo):
    lg.op('S0', f'ds_read_b128 {vr(S,4)}, v{V_PS0} offset:{uo*32}')
    lg.op('S1', f'ds_read_b128 {vr(S+4,4)}, v{V_PS0} offset:{uo*32+16}')
    lg.op('S2', f'ds_read_b128 {vr(S+8,4)}, v{V_PS1} offset:{uo*32}')
    lg.op('S3', f'ds_read_b128 {vr(S+12,4)}, v{V_PS1} offset:{uo*32+16}')

def half(lg, n, par, uo, with_tail=True):
    g = G[n]
    I('s_waitcnt vmcnt(16)')
    if n == 0:
        lg.need('P0a', 'P0b', 'e')
    else:
        lg.need('P1a', 'P1b')
    I(f'v_mfma_f32_32x32x16_bf16 {vr(Z,16)}, {vr(A5,4)}, {vr(B5[n],4)}, {vr(g,16)}')
    t = tail_ops(n ^ 1)
    va_prev, va_cur, va_nxt = V_VAA[par ^ 1], V_VAA[par], V_VAA[par ^ 1]
    sh = [f'v_lshlrev_b32 v{g+i}, 16, v{g+i}' for i in range(16)]
    ex = [f'v_exp_f32 v{Z+i}, v{Z+i} clamp' for i in range(16)]
    l3 = [f'v_pk_mul_f32 {p(V_T01N)}, {p(V_T01N)}, {p(V_T23D)}',
          f'v_pk_mul_f32 {p(V_T23D)}, {p(V_T01D)}, {p(V_T23D)}',
          f'v_pk_fma_f32 {p(V_T01N)}, {p(V_T23N)}, {p(V_T01D)}, {p(V_T01N)}',
          f'v_rcp_f32 v{V_T23D}, v{V_T23D}',
          f'v_rcp_f32 v{V_T23D+1}, v{V_T23D+1}',
          f'v_pk_fma_f32 {p((V_MA, V_MB)[n ^ 1])}, {p(V_T01N)}, {p(V_T23D)}, {p((V_MA, V_MB)[n ^ 1])}']
    if with_tail and not M8:
        for r_ in (V_T01D, V_T01D + 1, V_T23D, V_T23D + 1):
            I(f'v_rcp_f32 v{r_}, v{r_}')
    else:
        I('s_nop 3')
    if n == 1:
        lg.op('e', f'ds_read_b64 {p(A5)}, v{V_PE} offset:{(uo+1)*64}')
        lg.op('P1a', f'ds_read_b32 v{B5[1]+2}, v{V_VAP} offset:4')
        lg.op('P1b', f'ds_read_b32 v{B5[1]+3}, v{V_VAP+1} offset:4')
    else:
        lg.op('dP', f'ds_read_b64 {p(V_VAP)}, v{V_PD} offset:{(uo+1)*256}')
        I('s_nop 1')
    for op in sh[:8]:
        I(op)
    seq = []
    if with_tail and not M8:
        Mp = p((V_MA, V_MB)[n ^ 1])
        seq = ['NEED', f'v_pk_fma_f32 {Mp}, {p(V_T01N)}, {p(V_T01D)}, {Mp}', ex[0],
               f'v_pk_fma_f32 {Mp}, {p(V_T23N)}, {p(V_T23D)}, {Mp}', sh[8], 'ACC', ex[1], sh[9]]
    elif with_tail:
        seq = [l3[0], l3[1], ex[0], l3[2], l3[3], sh[8], l3[4], ex[1], sh[9], 'NEED', l3[5], 'ACC']
    else:
        seq = [ex[0], sh[8], ex[1], sh[9], 'ACC']
    for op in seq:
        if op == 'NEED':
            lg.need('Ra', 'Rb', 'Rc', 'Rd')
        elif op == 'ACC':
            if n == 0:
                if with_tail:
                    acc_write(lg, va_prev)
                acc_read(lg, va_cur)
                lg.op('dA', f'ds_read_b64 {p(va_nxt)}, v{V_PD} offset:{(uo+1)*256 + DESCA - DESCP}')
        else:
            I(op)
    for i in range(2, 12):
        I(ex[i])
        if 8 + i < 16:
            I(sh[8 + i])
        if n == 0 and i == 11:
            lg.need('dP', 'dA')
            va_add(V_VAP, va_nxt)
            lg.op('P0a', f'ds_read_b32 v{B5[0]+2}, v{V_VAP}')
            lg.op('P0b', f'ds_read_b32 v{B5[0]+3}, v{V_VAP+1}')
    for op in ex[12:]:
        I(op)
    for i in range(0, 16, 2):
        if M8:
            I(f'v_pk_fma_f32 {p(Z+i)}, {p(Z+i)}, {p(V_SCP)}, {sp(S_C)}')
        else:
            I(f'v_pk_add_f32 {p(Z+i)}, {p(Z+i)}, {sp(S_C)}')
    def T(k): return f'v_pk_mul_f32 {p(V_TT[k&1])}, {p(g+4*k)}, {p(Z+4*k+2)}'
    def DD(k): return f'v_pk_mul_f32 {p(Z+4*k+2)}, {p(Z+4*k)}, {p(Z+4*k+2)}'
    def NN(k): return f'v_pk_fma_f32 {p(Z+4*k)}, {p(g+4*k+2)}, {p(Z+4*k)}, {p(V_TT[k&1])}'
    for k0 in (0, 2):
        for op in (T(k0), T(k0 + 1), DD(k0), DD(k0 + 1), NN(k0), NN(k0 + 1)):
            I(op)
        if n == 0 and k0 == 0:
            lg.need('S0', 'S1', 'S2', 'S3')
            s_safe()
        I(f's_mov_b64 exec, {sp(S_LDX)}')
        for i in range(4 * k0, 4 * k0 + 8):
            I(gload(n, i))
        I('s_mov_b64 exec, -1')
    if n == 1:
        s_reads(lg, uo + 2)
    I(f'v_pk_mul_f32 {p(V_T01N)}, {p(Z)}, {p(Z+6)}')
    I(f'v_pk_mul_f32 {p(V_T23N)}, {p(Z+8)}, {p(Z+14)}')
    I(f'v_pk_mul_f32 {p(V_T01D)}, {p(Z+2)}, {p(Z+6)}')
    I(f'v_pk_mul_f32 {p(V_T23D)}, {p(Z+10)}, {p(Z+14)}')
    I(f'v_pk_fma_f32 {p(V_T01N)}, {p(Z+4)}, {p(Z+2)}, {p(V_T01N)}')
    I(f'v_pk_fma_f32 {p(V_T23N)}, {p(Z+12)}, {p(Z+10)}, {p(V_T23N)}')

PRIO = {
    3: {(3, 0): 2, (2, 0): 1, (1, 0): 0},
    5: {(2, 0): 2, (1, 0): 1, (1, 1): 0},
    6: {(3, 0): 2, (1, 0): 1, (1, 1): 0},
    7: {(2, 1): 2, (1, 0): 1, (1, 1): 0},
    8: {(4, 0): 2, (2, 0): 1, (1, 1): 0},
    9: {(3, 0): 2, (2, 1): 1, (1, 1): 0},
    0: {},
}[opt('prio', 9)]
def prio(tag, phase=0):
    for (t, ph), lvl in PRIO.items():
        if ph != phase:
            continue
        I(f's_cmp_eq_u32 s{S_CNT}, {t}')
        I(f's_cbranch_scc0 L_PR{tag}_{lvl}')
        I(f's_setprio {lvl}')
        L(f'L_PR{tag}_{lvl}')

def split_hilo(a, b, t0, t1):
    I(f'v_cvt_pk_bf16_f32 v{t0}, v{a}, v{b}')
    I(f'v_lshlrev_b32 v{t1}, 16, v{t0}')
    I(f'v_and_b32 v{t0}, 0xffff0000, v{t0}')
    I(f'v_sub_f32 v{a}, v{a}, v{t1}')
    I(f'v_sub_f32 v{b}, v{b}, v{t0}')
    I(f'v_cvt_pk_bf16_f32 v{a}, v{t1}, v{a}')
    I(f'v_cvt_pk_bf16_f32 v{b}, v{t0}, v{b}')

V_AA, V_AB, V_AD, V_AP = 6, 7, 8, 9
SA, SB, SD = 80, 96, 112

def phase0_addr():
    I(f's_and_b32 s{S_T}, s{S_W}, 3')
    I(f's_lshr_b32 s{S_T+1}, s{S_W}, 2')
    I(f'v_and_b32 v12, 15, v{V_LANE}')
    I(f'v_lshrrev_b32 v13, 4, v{V_LANE}')
    I(f'v_bfe_u32 v14, v{V_LANE}, 1, 3')
    I(f'v_xor_b32 v14, v14, v13')
    I(f'v_lshlrev_b32 v14, 4, v14')
    I(f'v_lshl_or_b32 v14, v12, 7, v14')
    I(f's_lshl_b32 s{S_T+2}, s{S_T}, 11')
    I(f'v_add_u32 v{V_AA}, s{S_T+2}, v14')
    I(f'v_bfe_u32 v14, v{V_LANE}, 2, 2')
    I(f'v_lshl_add_u32 v14, v13, 3, v14')
    I(f'v_lshlrev_b32 v14, 7, v14')
    I(f'v_and_b32 v15, 3, v{V_LANE}')
    I(f'v_lshl_add_u32 v14, v15, 3, v14')
    I(f's_lshl_b32 s{S_T+2}, s{S_T+1}, 5')
    I(f'v_or_b32 v14, s{S_T+2}, v14')
    I(f'v_and_b32 v15, 24, v{V_LANE}')
    I(f'v_lshlrev_b32 v15, 2, v15')
    I(f'v_xor_b32 v14, v14, v15')
    I(f'v_add_u32 v{V_AB}, {WRAW}, v14')
    I(f's_lshl_b32 s{S_T+2}, s{S_T}, 12')
    I(f'v_lshlrev_b32 v13, 10, v13')
    I(f'v_add_u32 v13, s{S_T+2}, v13')
    I(f's_lshl_b32 s{S_T+2}, s{S_T+1}, 6')
    I(f's_add_u32 s{S_T+2}, s{S_T+2}, {NTI}')
    I(f'v_lshl_add_u32 v{V_AD}, v12, 2, v13')
    I(f'v_add_u32 v{V_AD}, s{S_T+2}, v{V_AD}')
    I(f's_and_b32 s{S_T+2}, s{S_T+1}, 1')
    I(f's_lshl_b32 s{S_T+2}, s{S_T+2}, 7')
    I(f's_lshr_b32 s{S_T+3}, s{S_T+1}, 1')
    I(f's_lshl_b32 s{S_T+3}, s{S_T+3}, 2')
    I(f's_add_u32 s{S_T+2}, s{S_T+2}, s{S_T+3}')
    I(f's_add_u32 s{S_T+2}, s{S_T+2}, {PT}')
    I(f'v_lshl_add_u32 v{V_AP}, v12, 3, v13')
    I(f'v_add_u32 v{V_AP}, s{S_T+2}, v{V_AP}')

def b_reads(dst, off):
    for sg in range(2):
        for pp in range(2):
            I(f'ds_read_b64_tr_b16 {vr(dst+4*sg+2*pp,2)}, v{V_AB} offset:{off+sg*4096+pp*512}')

def mm16(d, b):
    I(f'v_mfma_f32_16x16x32_bf16 {vr(d,4)}, {vr(SA,4)}, {vr(b,4)}, 0')
    I(f'v_mfma_f32_16x16x32_bf16 {vr(d,4)}, {vr(SA+4,4)}, {vr(b+4,4)}, {vr(d,4)}')

def phase0a():
    I(f'v_add_u32 v12, {XOWN}, v{V_AA}')
    I(f'v_xor_b32 v13, 64, v{V_AA}')
    I(f'v_add_u32 v13, {XOWN}, v13')
    I(f'ds_read_b128 {vr(SA,4)}, v12')
    I(f'ds_read_b128 {vr(SA+4,4)}, v13')
    b_reads(SB, 8192)
    b_reads(SB + 8, WV_ - WRAW)
    I(f's_mov_b32 s{S_T+4}, 0x{f2u(-LOG2E):x}')
    I(f's_mov_b32 s{S_T+6}, 0x7fffffff')
    I(f's_mov_b32 s{S_T+7}, 0xffff0000')
    I('s_waitcnt lgkmcnt(4)')
    mm16(SD, SB)
    I('s_waitcnt lgkmcnt(0)')
    mm16(SD + 4, SB + 8)
    I('s_nop 4')
    for i in range(4):
        I(f'v_mul_f32 v{SD+i}, s{S_T+4}, v{SD+i}')
    for i in range(4):
        I(f'v_and_b32 v{SD+8+i}, s{S_T+6}, v{SD+i}')
    for i in range(4):
        if SV:
            I(f'v_mul_f32 v{SD+4+i}, 0x{f2u(2.0**SV):x}, v{SD+4+i}')
        I(f'v_add_u32 v{SD+8+i}, 0x8000, v{SD+8+i}')
    I(f'v_cvt_pk_bf16_f32 v{SD+4}, v{SD+4}, v{SD+5}')
    I(f'v_cvt_pk_bf16_f32 v{SD+6}, v{SD+6}, v{SD+7}')
    I(f'v_lshrrev_b32 v{SD+5}, 16, v{SD+4}')
    I(f'v_lshrrev_b32 v{SD+7}, 16, v{SD+6}')
    I(f'v_and_b32 v{SD+4}, 0xffff, v{SD+4}')
    I(f'v_and_b32 v{SD+6}, 0xffff, v{SD+6}')
    for i in range(4):
        I(f'v_sub_u32 v{SD+8+i}, v{SD+8+i}, v{SD+4+i} clamp')
    for i in range(4):
        I(f'v_and_or_b32 v{SD+8+i}, v{SD+8+i}, s{S_T+7}, v{SD+4+i}')
    for i in range(4):
        I(f'v_bfi_b32 v{SD+i}, s{S_T+6}, v{SD+8+i}, v{SD+i}')
        I(f'ds_write_b32 v{V_AD}, v{SD+i} offset:{i*256}')

def phase0b():
    b_reads(SB, 0)
    b_reads(SB + 8, WU_ - WRAW)
    I(f's_mov_b32 s{S_T+4}, 0x{f2u(-LOG2E):x}')
    I(f's_mov_b32 s{S_T+5}, 0x{f2u(2.0**(SV+KH)):x}')
    I(f'v_mov_b32 v13, 0x{f2u(-float(KEXP)):x}')
    I(f's_and_b32 s{S_T+6}, s{S_W}, 3')
    I('s_waitcnt lgkmcnt(4)')
    mm16(SD, SB)
    I('s_waitcnt lgkmcnt(0)')
    mm16(SD + 4, SB + 8)
    I('s_nop 4')
    for i in range(4):
        I(f'v_fma_f32 v{SD+i}, v{SD+i}, s{S_T+4}, v13')
    split_hilo(SD, SD + 1, 12, 13)
    split_hilo(SD + 2, SD + 3, 12, 13)
    for i in range(4):
        I(f'v_mul_f32 v{SD+4+i}, s{S_T+5}, v{SD+4+i}')
    I(f's_cmp_eq_u32 s{S_T+6}, 3')
    I(f's_cselect_b64 exec, 0xffff, -1')
    I(f'ds_write_b32 v{V_AP}, v{SD}')
    I(f'ds_write_b32 v{V_AP}, v{SD+4} offset:{ACCN-PT}')
    I(f's_cselect_b64 exec, 0, -1')
    for i in range(1, 4):
        I(f'ds_write_b32 v{V_AP}, v{SD+i} offset:{i*256}')
        I(f'ds_write_b32 v{V_AP}, v{SD+4+i} offset:{ACCN-PT+i*256}')
    I('s_mov_b64 exec, -1')

def phase0c():
    I(f'v_bfe_u32 v13, v{V_LANE}, 2, 2')
    I(f'v_lshlrev_b32 v13, 7, v13')
    I(f'v_bfe_u32 v15, v{V_LANE}, 4, 1')
    I(f'v_lshl_add_u32 v13, v15, 5, v13')
    I(f'v_and_b32 v15, 3, v{V_LANE}')
    I(f'v_lshl_add_u32 v13, v15, 3, v13')
    I(f'v_and_b32 v15, 8, v{V_LANE}')
    I(f'v_lshlrev_b32 v15, 2, v15')
    I(f'v_xor_b32 v13, v13, v15')
    I(f'v_add_u32 v13, {WG_ + 16384}, v13')
    I(f'ds_read_b64_tr_b16 v[96:97], v13')
    I(f'ds_read_b64_tr_b16 v[98:99], v13 offset:64')
    I(f's_mov_b32 s{S_T+4}, 0x{f2u(-LOG2E):x}')
    I(f'v_cmp_lt_u32 vcc, 31, v{V_LANE}')
    I('s_waitcnt lgkmcnt(0)')
    for m in range(4):
        I(f'v_lshlrev_b32 v{100+2*m}, 16, v{96+m}')
        I(f'v_and_b32 v{101+2*m}, 0xffff0000, v{96+m}')
    for j in range(8):
        I(f'v_mul_f32 v{100+j}, s{S_T+4}, v{100+j}')
    for m in range(4):
        dst = B5[m >> 1] + (m & 1)
        I(f'v_cvt_pk_bf16_f32 v{96+m}, v{100+2*m}, v{101+2*m}')
        I(f'v_lshlrev_b32 v12, 16, v{96+m}')
        I(f'v_and_b32 v13, 0xffff0000, v{96+m}')
        I(f'v_sub_f32 v12, v{100+2*m}, v12')
        I(f'v_sub_f32 v13, v{101+2*m}, v13')
        I(f'v_cvt_pk_bf16_f32 v12, v12, v13')
        I(f'v_cndmask_b32 v{dst}, v{96+m}, v12, vcc')

def a5_const():
    I(f'v_bfe_u32 v12, v{V_LANE}, 2, 1')
    I(f'v_lshrrev_b32 v13, 5, v{V_LANE}')
    I(f'v_xor_b32 v12, v12, v13')
    I(f'v_and_b32 v13, 1, v{V_LANE}')
    I(f'v_lshl_or_b32 v12, v12, 1, v13')
    I(f'v_mov_b32 v13, 0x3f803f80')
    I(f'v_cmp_eq_u32 vcc, 0, v12')
    I(f'v_cmp_eq_u32 {sp(S_T)}, 1, v12')
    I('s_nop 1')
    I(f'v_cndmask_b32 v{A5+2}, 0, v13, vcc')
    I(f'v_cndmask_b32 v{A5+3}, 0, v13, {sp(S_T)}')

def nt_prefetch(vt, first=0, nl=None, dst=96):
    if CM:
        I(f's_lshr_b32 s{S_T}, s2, 4')
        I(f's_lshl_b32 s{S_T+1}, s{S_W}, 4')
        I(f's_add_u32 s{S_T}, s{S_T}, s{S_T+1}')
    else:
        I(f's_lshr_b32 s{S_T}, s2, 4')
        I(f's_lshl_b32 s{S_T+1}, s{S_W}, 4')
        I(f's_add_u32 s{S_T}, s{S_T}, s{S_T+1}')
        I(f's_and_b32 s{S_T+1}, s{S_T}, 7')
        I(f's_lshl_b32 s{S_T+1}, s{S_T+1}, 5')
        I(f's_lshr_b32 s{S_T}, s{S_T}, 3')
        I(f's_add_u32 s{S_T}, s{S_T}, s{S_T+1}')
    if not opt('xmap', 1):
        I(f's_lshr_b32 s{S_T}, s2, 4')
        I(f's_lshl_b32 s{S_T+1}, s{S_W}, 4')
        I(f's_add_u32 s{S_T}, s{S_T}, s{S_T+1}')
    I(f's_lshl_b32 s{S_T}, s{S_T}, 1')
    I(f's_bfe_u32 s{S_T+1}, s2, 0x10003')
    I(f's_add_u32 s{S_T}, s{S_T}, s{S_T+1}')
    I(f's_mul_i32 s{S_T}, s{S_T}, {NB*128}')
    I(f's_add_u32 s{S_T}, s{S_T}, 0x{WS_NT:x}')
    srd_off(S_NTS, S_WSP, S_WSP + 1, f's{S_T}', NB * 128)
    if NPFM >= 3:
        I(f'v_lshlrev_b32 v{vt}, {7 if NPFM >= 4 else 6}, v{V_LANE}')
        I(f'v_add_u32 v{vt+1}, 4096, v{vt}')
        nl = opt("pfl", 6) if nl is None else nl
        I(f's_mov_b32 exec_lo, 0x{(((1 << nl) - 1) << first) & 0xffffffff:x}')
        I(f's_mov_b32 exec_hi, 0x{(((1 << nl) - 1) << first) >> 32:x}')
        for k in range(NPF):
            I(f'buffer_load_dword v{dst+k}, v{vt+k}, {sr4(S_NTS)}, 0 offen' + (LSC if opt('pfsc', 1) else ''))
        I('s_mov_b64 exec, -1')
        return
    I(f'v_lshlrev_b32 v{vt}, 4, v{V_LANE}')
    I(f'v_add_u32 v{vt+1}, 4096, v{vt}')
    for k in range(NPF):
        I(f'buffer_load_dwordx4 {vr(96+4*k,4)}, v{vt+(k>>2)}, {sr4(S_NTS)}, 0 offen offset:{(k&3)*1024}' + LSC)

def ptr_consts():
    I(f'v_lshrrev_b32 v{V_PS1}, 5, v{V_LANE}')
    I(f's_lshl_b32 s{S_T}, s{S_W}, 4')
    I(f's_add_u32 s{S_T}, s{S_T}, {DESCP}')
    I(f'v_lshlrev_b32 v{V_PD}, 3, v{V_PS1}')
    I(f'v_add_u32 v{V_PS1}, v{V_PS1}, v{V_PS1}')
    I(f'v_add_u32 v{V_PD}, s{S_T}, v{V_PD}')
    I(f'v_bfe_u32 v{V_VAP}, v{V_LANE}, 2, 1')
    I(f'v_and_b32 v{V_PE}, 1, v{V_LANE}')
    I(f'v_lshl_or_b32 v{V_VAP}, v{V_VAP}, 1, v{V_PE}')
    I(f'v_bfe_u32 v{V_PE}, v{V_LANE}, 3, 2')
    I(f'v_bfe_u32 v{V_PS0}, v{V_LANE}, 1, 1')
    I(f'v_lshl_or_b32 v{V_PE}, v{V_PE}, 1, v{V_PS0}')
    I(f'v_lshlrev_b32 v{V_PE}, 3, v{V_PE}')
    I(f'v_add_u32 v{V_PE}, {LE}, v{V_PE}')

def gen():
    e(f'.globl {KNAME}')
    e('.p2align 8')
    e(f'.type {KNAME},@function')
    L(KNAME)
    I(f's_cmp_ge_u32 s2, {NWG}')
    I('s_cbranch_scc1 L_END')
    I('s_load_dwordx8 s[84:91], s[0:1], 0')
    I('s_load_dwordx4 s[4:7], s[0:1], 32')
    I('s_load_dwordx4 s[8:11], s[0:1], 48')
    I('s_load_dwordx4 s[56:59], s[0:1], 64')
    if PROF:
        I(f'v_mov_b32 v{V_PROF}, 0')
    rstamp(30)
    stamp(0)
    zregs()
    zero_range(CNT, DESCP + 2560 - CNT, X + 2, X)
    I(f'v_lshlrev_b32 v{X+6}, 2, v{V_TID}')
    I(f's_mul_i32 s61, s2, {CH*4}')
    I(f's_mul_i32 s63, s2, {CH}')
    I(f's_sub_u32 s63, {E_EDGES}, s63')
    I(f's_min_u32 s63, s63, {CH}')
    I(f's_lshl_b32 s64, s63, 2')
    I(f'v_add_u32 v{X+8}, 4096, v{X+6}')
    I(f'v_add_u32 v{X+9}, 8192, v{X+6}')
    I(f'v_add_u32 v{X+10}, 12288, v{X+6}')
    I(f'v_lshrrev_b32 v{X+1}, 6, v{V_TID}')
    I(f'v_and_b32 v{V_LANE}, 63, v{V_TID}')
    I(f'v_readfirstlane_b32 s{S_W}, v{X+1}')
    I('s_and_b32 s3, s2, 7')
    I('s_lshl_b32 s3, s3, 5')
    I('s_lshr_b32 s60, s2, 3')
    I('s_add_u32 s3, s3, s60')
    if not opt('xmap', 1):
        I('s_mov_b32 s3, s2')
    I(f's_mul_i32 s62, s2, {CH*8}')
    I(f's_lshl_b32 s65, s63, 3')
    I(f'v_and_b32 v97, 0x50, v{V_TID}')
    I(f'v_lshlrev_b32 v96, 1, v97')
    I(f'v_or_b32 v97, v97, v96')
    I(f'v_and_b32 v97, 0x60, v97')
    I(f'v_xor_b32 v97, v97, v{X}')
    I(f'v_and_b32 v96, 0x20, v96')
    I(f'v_lshlrev_b32 v98, 4, v{V_LANE}')
    I(f'v_xor_b32 v96, v96, v98')
    I(f's_lshl_b32 s66, s{S_W}, 10')
    I(f'v_and_b32 v101, 0x1fff, v97')
    I(f'v_lshrrev_b32 v98, 3, v{V_TID}')
    I(f'v_bfe_u32 v99, v98, 1, 3')
    I(f'v_and_b32 v100, 7, v{V_TID}')
    I(f'v_xor_b32 v99, v99, v100')
    I(f'v_lshlrev_b32 v99, 4, v99')
    I(f'v_lshl_add_u32 v99, v98, 7, v99')
    I(f's_mul_i32 s60, s3, {NB*128}')
    I(f'v_add_u32 v99, s60, v99')
    I(f'v_add_u32 v96, 16384, v96')
    I('s_waitcnt lgkmcnt(0)')
    I(f's_or_b32 s67, s2, s{S_W}')
    I('s_cmp_lg_u32 s67, 0')
    I('s_cbranch_scc1 L_NOTAG')
    I('s_memrealtime s[68:69]')
    I(f'v_mov_b32 v{X+2}, 0')
    I('s_waitcnt lgkmcnt(0)')
    I('s_or_b32 s68, s68, 1')
    I(f'v_mov_b32 v{X+3}, s68')
    I('s_mov_b64 exec, 1')
    I(f'global_store_dword v{X+2}, v{X+3}, s[56:57] sc1')
    I('s_mov_b64 exec, -1')
    L('L_NOTAG')
    def dst_loads():
        srd_off(S_DST, 90, 91, 's61', 's64')
        for k in range(4):
            I(f'buffer_load_dword v{64+k}, v{X+6 if k == 0 else X+7+k}, {sr4(S_DST)}, 0 offen' + ELD)
    def dma_loads():
        srd(S_WS, 8, 9, 132 * 128)
        I(f's_add_u32 m0, s66, {WG_}')
        srd(S_XS, 84, 85, N_NODES * 128)
        I(f'buffer_load_dwordx4 v97, {sr4(S_WS)}, 0 offen lds')
        I(f's_cmp_lt_u32 s{S_W}, 8')
        I(f's_cselect_b32 s{S_NTS}, s6, s4')
        I(f's_cselect_b32 s{S_NTS+1}, s7, s5')
        I(f's_mov_b32 s{S_NTS+2}, {64*128}')
        I(f's_mov_b32 s{S_NTS+3}, 0x00020000')
        I(f's_add_u32 m0, s66, {WV_}')
        I('s_nop 0')
        I(f'buffer_load_dwordx4 v101, {sr4(S_NTS)}, 0 offen lds')
        I(f's_cmp_lt_u32 s{S_W}, 8')
        I('s_cbranch_scc0 L_D3B')
        I(f's_add_u32 m0, s66, {XOWN}')
        I('s_nop 0')
        I(f'buffer_load_dwordx4 v99, {sr4(S_XS)}, 0 offen lds')
        I('s_branch L_D3C')
        L('L_D3B')
        I(f's_mov_b32 m0, {WG_ + 16384}')
        I('s_nop 0')
        I(f'buffer_load_dwordx4 v96, {sr4(S_WS)}, 0 offen lds')
        L('L_D3C')
    if opt('t0', 0):
        I(f'v_and_b32 v60, 15, v{V_LANE}')
        I(f'v_lshlrev_b32 v60, 20, v60')
        I(f'v_and_b32 v61, 1, v{V_LANE}')
        I(f'v_lshlrev_b32 v61, 20, v61')
        I(f'global_load_dword v62, v60, s[58:59]')
        I(f'global_load_dword v63, v61, s[10:11]')
    ORDER = opt('order', 2)
    if ORDER == 0:
        dma_loads()
    dst_loads()
    if ORDER == 2:
        dma_loads()
    F1 = opt('f1', 1)
    if F1:
        I('s_barrier')
    srd_off(S_SRC, 88, 89, 's61', 's64')
    LATE = opt('late', 1)
    def src_load(k):
        I(f'buffer_load_dword v{68+k}, v{X+6 if k == 0 else 43+k}, {sr4(S_SRC)}, 0 offen' + ELD)
    for k in range(1, 4):
        I(f'v_mov_b32 v{43+k}, v{X+7+k}')
    NS = opt('ns', 1) if LATE else 4
    for k in range(NS):
        src_load(k)
    srd_off(S_EA, 86, 87, 's62', 's65')
    I(f'v_lshlrev_b32 v92, 3, v{V_TID}')
    for k in range(1, 4):
        I(f'v_add_u32 v{92+k}, {8192*k}, v92')
    def e_load(k):
        I(f'buffer_load_dwordx2 v[{72+2*k}:{73+2*k}], v{92+k}, {sr4(S_EA)}, 0 offen' + ELD)
    NEE = opt('ne', 1) if LATE else opt('nee', 4)
    for k in range(NEE):
        e_load(k)
    if ORDER == 1:
        dma_loads()
    I(f's_mov_b64 {sp(S_DBG)}, s[56:57]')
    I(f's_add_u32 s{S_WSP}, s58, 0x{WSB:x}')
    I(f's_addc_u32 s{S_WSP+1}, s59, 0')
    stamp(1)
    srd(S_OUT, 10, 11, N_NODES * 128)
    I(f's_mul_i32 s{S_T}, s2, {CAP*4}')
    srd_off(S_RW, S_WSP, S_WSP + 1, f's{S_T}', CAP * 4)
    I(f's_lshl_b32 s{S_T}, s{S_T}, 1')
    I(f's_add_u32 s{S_T}, s{S_T}, 0x{WS_RE:x}')
    srd_off(S_RE, S_WSP, S_WSP + 1, f's{S_T}', CAP * 8)
    I(f's_lshl_b32 s{S_T}, s2, 11')
    I(f's_add_u32 s{S_T}, s{S_T}, 0x{WS_TAB:x}')
    srd_off(S_TAB, S_WSP, S_WSP + 1, f's{S_T}', (KREP - 1) * 0x80000 + 2048)
    I(f's_mul_i32 s{S_T}, s3, {NB*256}')
    I(f's_add_u32 s{S_T}, s{S_T}, 0x{WS_NT:x}')
    srd_off(S_NTS, S_WSP, S_WSP + 1, f's{S_T}', NB * 256)
    I(f's_add_u32 s{S_NTG}, s{S_WSP}, 0x{WS_NT:x}')
    I(f's_addc_u32 s{S_NTG+1}, s{S_WSP+1}, 0')
    I(f's_or_b32 s{S_NTG+1}, s{S_NTG+1}, 0x80000000')
    I(f's_mov_b32 s{S_NTG+2}, 0x400000')
    I(f's_mov_b32 s{S_NTG+3}, 0x00c00000')
    srd_off(S_DST, S_WSP, S_WSP + 1, '0x%x' % WS_RW, NWG * CAP * 4)
    if not LATE:
        srd_off(S_SRC, S_WSP, S_WSP + 1, '0x%x' % WS_RE, NWG * CAP * 8)
    for k in range(4):
        I(f'v_add_u32 v{X+1}, {1024*k}, v{V_TID}')
        I(f'v_cmp_gt_u32 {sp(S_MASK+2*k)}, s63, v{X+1}')
    I(f's_mov_b32 s{S_C}, 0x{f2u(2.0**-KH):x}')
    I(f's_mov_b32 s{S_C+1}, 0x{f2u(2.0**-KH):x}')
    I(f's_mov_b32 s{S_JB}, 0')
    I(f's_mov_b32 s{S_WID}, 128')
    I(f'v_and_b32 v{V_J4}, 7, v{V_LANE}')
    I(f'v_lshlrev_b32 v{V_J4}, 3, v{V_J4}')
    if CM:
        I(f'v_and_b32 v{X+1}, 56, v{V_LANE}')
        I(f's_and_b32 s{S_T}, s{S_W}, 1')
        I(f's_lshl_b32 s{S_T}, s{S_T}, 7')
        I(f's_lshr_b32 s{S_T+1}, s{S_W}, 1')
        I(f's_add_u32 s{S_T}, s{S_T}, s{S_T+1}')
    else:
        I(f'v_lshrrev_b32 v{X+1}, 3, v{V_LANE}')
        I(f's_lshl_b32 s{S_T}, s{S_W}, 4')
    I(f'v_add_u32 v{X+1}, s{S_T}, v{X+1}')
    I(f'v_lshlrev_b32 v{V_TAB+2}, 11, v{X+1}')
    I(f'v_mul_u32_u24 v{V_CB4}, {CAP*4}, v{X+1}')
    I(f'v_add_u32 v{V_CB4}, v{V_CB4}, v{V_J4}')
    I(f'v_and_b32 v{V_CH8}, 31, v{V_LANE}')
    I(f'v_lshlrev_b32 v{V_CH8}, 3, v{V_CH8}')
    I(f'v_add_u32 v{V_CHP}, {PT}, v{V_CH8}')
    phase0_addr()
    a5_const()
    if not F1:
        I(f's_waitcnt vmcnt({8 + NEE if ORDER == 0 else 0})')
        I('s_barrier')
    stamp(2)
    def late_loads():
        if LATE:
            for k in range(NS, 4):
                src_load(k)
        for k in range(NEE, 4):
            e_load(k)
        if not (LATE and TP):
            I(f'v_mov_b32 v12, 0')
            I(f'global_load_dword v10, v12, {sp(S_DBG)} sc1')
        if TCH:
            I(f'v_lshlrev_b32 v13, 13, v{V_LANE}')
            I(f'buffer_load_dword v60, v13, {sr4(S_RW)}, 0 offen')
            I(f'buffer_load_dword v61, v13, {sr4(S_RE)}, 0 offen')
            I(f'buffer_load_dword v62, v13, {sr4(S_TAB)}, 0 offen')
            I(f'buffer_load_dword v63, v13, {sr4(S_NTS)}, 0 offen')
        srd_off(S_EA, S_WSP, S_WSP + 1, '0x%x' % WS_TAB, 0x80000 + NWG * 128)
        if LATE:
            srd_off(S_SRC, S_WSP, S_WSP + 1, '0x%x' % WS_RE, NWG * CAP * 8)
    if not LATE:
        late_loads()
    elif TP:
        I(f'v_mov_b32 v12, 0')
        I(f'global_load_dword v10, v12, {sp(S_DBG)} sc1')
    if not F1:
        phase0a()
    I(f's_mov_b32 s{S_T}, -{NB}')
    I(f'v_mov_b32 v{X+1}, 4')
    BN, WD, RK = 28, 32, 36
    for k in range(4):
        I(f's_waitcnt vmcnt({((3 + NS + NEE + TP if ORDER == 0 else 6 + NS + NEE + TP) if LATE else (12 if ORDER == 0 else 15) + TCH) - k})')
        I(f's_mov_b64 exec, {sp(S_MASK+2*k)}')
        if k == 3:
            I('s_cbranch_execz L_B1')
        I(f'v_mul_u32_u24 v{BN+k}, 21400, v{64+k}')
        I(f'v_lshrrev_b32 v{BN+k}, 20, v{BN+k}')
        I(f'v_mad_i32_i24 v{WD+k}, v{BN+k}, s{S_T}, v{64+k}')
        I(f'v_lshlrev_b32 v{BN+k}, 2, v{BN+k}')
        I(f'ds_add_rtn_u32 v{RK+k}, v{BN+k}, v{X+1} offset:{HIST}')
        I(f'v_lshlrev_b32 v{WD+k}, 26, v{WD+k}')
    L('L_B1')
    I('s_mov_b64 exec, -1')
    if LATE:
        late_loads()
    I(f'v_add_u32 v{X+1}, {NTI}, v{X}')
    stamp(3)
    I({0: 's_waitcnt lgkmcnt(0)', 1: 's_waitcnt vmcnt(1) lgkmcnt(0)', 2: f's_waitcnt vmcnt({9 + TCH}) lgkmcnt(0)'}[ORDER])
    I('s_barrier')
    stamp(4)
    if not F1:
        I(f'ds_read_b128 v[112:115], v{X+1}')
    I(f's_cmp_lg_u32 s{S_W}, 0')
    I('s_cbranch_scc1 L_NOSCAN')
    I(f'ds_read_b128 v[96:99], v{X} offset:{HIST}')
    I('s_waitcnt lgkmcnt(0)')
    for k in range(4):
        I(f'v_add_u32 v{108+k}, 4, v{96+k}')
        I(f'v_and_b32 v{108+k}, -8, v{108+k}')
    I('v_add_u32 v101, v108, v109')
    I('v_add_u32 v102, v101, v110')
    I('v_add_u32 v103, v102, v111')
    I('v_mov_b32 v104, v103')
    wave_scan(104)
    I(f'v_readlane_b32 s{S_T+4}, v104, 63')
    I('v_sub_u32 v104, v104, v103')
    I(f'v_mov_b32 v100, {MISC+8}')
    I(f'v_mov_b32 v105, s{S_T+4}')
    I('ds_write_b32 v100, v105')
    I('v_add_u32 v105, v104, v108')
    I('v_add_u32 v106, v104, v101')
    I('v_add_u32 v107, v104, v102')
    I(f'ds_write_b128 v{X}, v[104:107] offset:{HBASE}')
    for k in range(4):
        I(f'v_lshl_or_b32 v{108+k}, v{96+k}, 16, v{104+k}')
    I(f'ds_write_b128 v{X}, v[108:111] offset:{HIST}')
    L('L_NOSCAN')
    if F1:
        phase0a()
    I('s_waitcnt lgkmcnt(0)')
    if not F1:
        I(f'buffer_store_dwordx4 v[112:115], v{X}, {sr4(S_NTS)}, 0 offen' + SC)
    if T1:
        I(f's_mul_i32 s{S_T+4}, s3, {NB*128}')
        I(f'v_mov_b32 v60, s{S_T+4}')
        I(f'buffer_load_dword v61, v60, {sr4(S_OUT)}, 0 offen')
    if not SRCL:
        I(f's_waitcnt vmcnt({4 + TCH + T1 if LATE else 6 - F1 + TCH + T1})')
        for k in range(4):
            I(f'v_lshl_or_b32 v{WD+k}, v{68+k}, 3, v{WD+k}')
    I('s_barrier')
    stamp(5)
    if F1:
        I(f'ds_read_b128 v[112:115], v{X+1}')
    for k in range(4):
        I(f's_mov_b64 exec, {sp(S_MASK+2*k)}')
        I(f'ds_read_b32 v{BN+k}, v{BN+k} offset:{HBASE}')
    if F1:
        I('s_mov_b64 exec, -1')
        I('s_waitcnt lgkmcnt(4)')
        I(f'buffer_store_dwordx4 v[112:115], v{X}, {sr4(S_NTS)}, 0 offen' + SC)
    if SRCL == 1:
        I(f's_waitcnt vmcnt({5 + TCH + T1})')
        for k in range(4):
            I(f'v_lshl_or_b32 v{WD+k}, v{68+k}, 3, v{WD+k}')
    if SRCL < 2:
        I(f's_waitcnt vmcnt({2 + TCH + T1})')
    for k in range(4):
        I(f's_mov_b64 exec, {sp(S_MASK+2*k)}')
        if k == 3:
            I('s_cbranch_execz L_B2')
        if SRCL == 2:
            assert LATE and not TCH and not T1
            order_ = [f's{j}' for j in range(NS)] + [f'e{j}' for j in range(NEE)] + ['tag'] * TP + [f's{j}' for j in range(NS, 4)] + [f'e{j}' for j in range(NEE, 4)] + ['tag'] * (1 - TP) + ['nt']
            need_ = max(order_.index(f's{k}'), order_.index(f'e{k}'))
            I(f's_waitcnt vmcnt({len(order_) - 1 - need_}) lgkmcnt({3 - k + 2*k})')
            I(f'v_lshl_or_b32 v{WD+k}, v{68+k}, 3, v{WD+k}')
        else:
            I(f's_waitcnt lgkmcnt({3 - k + 2*k})')
        I(f'v_add_u32 v{RK+k}, v{BN+k}, v{RK+k}')
        I(f'v_add_u32 v{BN+k}, v{RK+k}, v{RK+k}')
        I(f'ds_write_b32 v{RK+k}, v{WD+k} offset:{STGW}')
        I(f'ds_write_b64 v{BN+k}, v[{72+2*k}:{73+2*k}] offset:{STGE}')
    L('L_B2')
    I('s_mov_b64 exec, -1')
    I(f'v_mov_b32 v13, {MISC+8}')
    I(f'ds_read_b32 v13, v13')
    I(f'v_add_u32 v{X+2}, 16384, v{X}')
    I(f'v_lshlrev_b32 v12, 3, v{V_LANE}')
    I('s_waitcnt lgkmcnt(0)')
    I(f'v_readfirstlane_b32 s{S_T}, v13')
    I('s_barrier')
    I(f's_add_u32 s{S_T}, s{S_T}, 127')
    I(f's_and_b32 s{S_RW+2}, s{S_T}, -128')
    I(f's_lshl_b32 s{S_RE+2}, s{S_RW+2}, 1')
    stamp(6)
    if opt('early', 0):
        I(f'ds_read_b64 v[92:93], v12 offset:{HIST}')
        I(f'ds_read_b64 v[94:95], v12 offset:{HIST+512}')
        I(f'v_lshlrev_b32 v60, 4, v{V_LANE}')
        I('s_waitcnt lgkmcnt(0)')
        for k in range(4):
            I(f'v_or_b32 v{120+2*k}, s{S_TAG2}, v{92+k}')
            I(f'v_mov_b32 v{121+2*k}, s{S_TAG}')
        I(f's_cmp_lg_u32 s{S_W}, 0')
        I('s_cbranch_scc1 L_EARLY')
        I(f'buffer_store_dwordx4 v[120:123], v60, {sr4(S_TAB)}, 0 offen' + SC)
        I(f'buffer_store_dwordx4 v[124:127], v60, {sr4(S_TAB)}, 0 offen offset:1024' + SC)
        L('L_EARLY')
    I(f'ds_read_b128 v[64:67], v{X} offset:{STGW}')
    I(f'ds_read_b128 v[68:71], v{X} offset:{STGE}')
    I(f'ds_read_b128 v[72:75], v{X} offset:{STGE+16384}')
    I(f'ds_read_b64 v[92:93], v12 offset:{HIST}')
    I(f'ds_read_b64 v[94:95], v12 offset:{HIST+512}')
    I('s_waitcnt lgkmcnt(4)')
    I(f'buffer_store_dwordx4 v[64:67], v{X}, {sr4(S_RW)}, 0 offen' + SC)
    I(f'v_mov_b32 v62, v{X}')
    I(f'v_mov_b32 v63, v{X+2}')
    I('s_waitcnt vmcnt(2) lgkmcnt(0)')
    I(f'v_readfirstlane_b32 s{S_TAG}, v10')
    I(f's_mov_b32 s{S_T}, 0x40000')
    L('L_TAGP')
    I(f's_cmp_lg_u32 s{S_TAG}, 0')
    I('s_cbranch_scc1 L_TAGD')
    I(f'v_mov_b32 v12, 0')
    I(f'global_load_dword v10, v12, {sp(S_DBG)} sc1')
    I('s_waitcnt vmcnt(0)')
    I(f'v_readfirstlane_b32 s{S_TAG}, v10')
    I(f's_sub_u32 s{S_T}, s{S_T}, 1')
    I('s_cbranch_scc1 L_END')
    I('s_branch L_TAGP')
    L('L_TAGD')
    I(f's_mul_i32 s{S_TAG2}, s{S_TAG}, 0x9e3779b1')
    I(f's_and_b32 s{S_TAG2}, s{S_TAG2}, 0x{TAGM:x}')
    for k in range(4):
        I(f'v_or_b32 v{120+2*k}, s{S_TAG2}, v{92+k}')
        I(f'v_mov_b32 v{121+2*k}, s{S_TAG}')
    pre = opt('pre', 'x').replace('0', '')
    def piece(c):
        if c == 'x':
            zregs()
            zero_range(EXTRA, 16384, X + 2, X)
            fill_desca()
        elif c == 'b':
            phase0b()
        elif c == 'c':
            phase0c()
    for c in pre:
        piece(c)
    I(f'v_lshlrev_b32 v60, 4, v{V_LANE}')
    stamp(7)
    I('s_waitcnt vmcnt(0)')
    I('s_barrier')
    I(f's_cmp_lg_u32 s{S_W}, 0')
    I('s_cbranch_scc1 L_POLL0')
    I(f'buffer_store_dwordx4 v[120:123], v60, {sr4(S_TAB)}, 0 offen' + SC)
    I(f'buffer_store_dwordx4 v[124:127], v60, {sr4(S_TAB)}, 0 offen offset:1024' + SC)
    L('L_POLL0')
    I(f'buffer_store_dwordx4 v[68:71], v62, {sr4(S_RE)}, 0 offen' + SC)
    I(f'buffer_store_dwordx4 v[72:75], v63, {sr4(S_RE)}, 0 offen' + SC)
    stamp(8)
    mid = opt('mid', 'bc').replace('0', '')
    def piece2(c):
        if c == 'f':
            fill_words()
            zregs()
            zero_range(LE, CNT - LE, X + 2, X)
        else:
            piece(c)
    for c in mid:
        piece2(c)
    I(f's_lshl_b32 s{S_T+1}, s3, 3')
    I(f'v_add_u32 v76, s{S_T+1}, v{V_TAB+2}')
    I(f'v_add_u32 v77, {RSTEP*2048}, v76')
    I(f'v_lshrrev_b32 v{V_TAB+2}, 4, v{V_TAB+2}')
    I(f'v_add_u32 v{V_TAB+2}, 0x80000, v{V_TAB+2}')
    I(f'v_add_u32 v{V_TAB+3}, {RSTEP*128}, v{V_TAB+2}')
    I(f's_mul_i32 s{S_TAG3}, s{S_TAG}, 0x85ebca6b')
    I(f's_lshl_b32 s{S_T}, s2, 7')
    I(f's_add_u32 s{S_T}, s{S_T}, 0x80000')
    I(f'v_mov_b32 v60, s{S_T}')
    I(f'v_mov_b32 v62, s{S_TAG}')
    I(f'v_mov_b32 v63, s{S_TAG3}')
    for r in range(2):
        I(f's_mov_b64 {sp(S_MASK+2*r)}, -1')
    I('s_waitcnt vmcnt(0)')
    I('s_barrier')
    stamp(9)
    I(f's_cmp_lg_u32 s{S_W}, 0')
    I('s_cbranch_scc1 L_FLAG2')
    I('s_mov_b64 exec, 1')
    I(f'buffer_store_dwordx2 v[62:63], v60, {sr4(S_EA)}, 0 offen' + SC)
    I('s_mov_b64 exec, -1')
    L('L_FLAG2')
    EP = 1
    for r in range(2):
        I(f'buffer_load_dwordx2 {p(64+2*r)}, v{76+r}, {sr4(S_EA)}, 0 offen' + LSC)
    for c in 'xbcf':
        if c not in pre + mid:
            piece2(c)
    ptr_consts()
    I(f's_mov_b32 s{S_T}, 0x40000')
    I(f's_mov_b32 s{S_T+1}, 0x{TAGM:x}')
    if opt('ps', 0):
        I(f's_sleep {opt("ps", 0)}')
    if EP:
        I('s_branch L_POLLC')
    L('L_POLL')
    for r in range(2):
        I(f's_mov_b64 exec, {sp(S_MASK+2*r)}')
        I(f'buffer_load_dwordx2 {p(64+2*r)}, v{76+r}, {sr4(S_EA)}, 0 offen' + LSC)
    L('L_POLLC')
    for r in range(2):
        I(f's_waitcnt vmcnt({1-r})')
        I(f's_mov_b64 exec, {sp(S_MASK+2*r)}')
        I(f'v_xor_b32 v{V_TAB+r}, s{S_TAG2}, v{64+2*r}')
        I(f'v_xor_b32 v{65+2*r}, s{S_TAG}, v{65+2*r}')
        I(f'v_and_or_b32 v{65+2*r}, v{V_TAB+r}, s{S_T+1}, v{65+2*r}')
        I(f'v_cmp_ne_u32 {sp(S_MASK+2*r)}, 0, v{65+2*r}')
    I(f's_or_b64 {sp(S_T+2)}, {sp(S_MASK)}, {sp(S_MASK+2)}')
    I('s_cbranch_scc0 L_POLLED')
    I(f's_sub_u32 s{S_T}, s{S_T}, 1')
    I('s_cbranch_scc1 L_END')
    if opt('sleep', 0):
        I(f's_sleep {opt("sleep", 0)}')
    I('s_branch L_POLL')
    L('L_POLLED')
    I('s_mov_b64 exec, -1')
    stamp(10)
    def RB(s_): return 64 + 8 * (s_ >> 1)
    def MK(s_): return sp(S_MASK + 2 * s_)
    AD = X
    L('L_PASS')
    I(f'v_add_u32 v{X+10}, s{S_JB}, v{V_CB4}')
    I(f'v_add_u32 v{X+8}, s{S_JB}, v{V_J4}')
    SDW = 'src0_sel:DWORD src1_sel:WORD_1'
    for r in range(2):
        I(f'v_add_u32_sdwa v{X+r}, v{V_TAB+r}, v{X+10} dst_sel:DWORD dst_unused:UNUSED_PAD src0_sel:WORD_0 src1_sel:DWORD')
        I(f'v_cmp_lt_u32_sdwa {MK(2*r)}, v{X+8}, v{V_TAB+r} {SDW}')
        if r:
            I(f'v_add_u32 v{X+r}, {RSTEP*CAP*4}, v{X+r}')
        I(f'v_add_u32 v{96+r}, v{X+r}, v{X+r}')
        I(f's_mov_b64 exec, {MK(2*r)}')
        I(f'buffer_load_dwordx2 {p(RB(2*r)+4)}, v{X+r}, {sr4(S_DST)}, 0 offen' + LSC)
        I('s_mov_b64 exec, -1')
    I(f'v_add_u32 v{X+9}, s{S_WID}, v{X+8}')
    I(f'v_add_u32 v{X+10}, 4, v{X+8}')
    I(f's_cmp_eq_u32 s{S_WID}, 128')
    I(f's_cselect_b32 s{S_T}, 64, 0x10000')
    I(f'v_add_u32 v{X+8}, s{S_T}, v{X+8}')
    for r in range(2):
        I(f'v_cmp_lt_u32_sdwa {MK(4+2*r)}, v{X+8}, v{V_TAB+r} {SDW}')
        I(f'v_cmp_lt_u32_sdwa {MK(2*r+1)}, v{X+10}, v{V_TAB+r} {SDW}')
    I(f'v_add_u32 v{X+8}, 4, v{X+8}')
    for r in range(2):
        I(f's_mov_b64 exec, {MK(4+2*r)}')
        I(f'buffer_load_dwordx2 {p(RB(4+2*r)+4)}, v{X+r}, {sr4(S_DST)}, 0 offen offset:64' + LSC)
    I('s_mov_b64 exec, -1')
    PF3 = opt('pf3', 0)
    if PF3:
        nt_prefetch(60, 49 - PF3, PF3, 63)
    BE = opt('be', 0)
    if BE:
        for r in range(2):
            I(f'buffer_load_dwordx2 {p(100+2*r)}, v{V_TAB+2+r}, {sr4(S_EA)}, 0 offen' + LSC)
    for r in range(2):
        I(f'v_cmp_lt_u32_sdwa {MK(5+2*r)}, v{X+8}, v{V_TAB+r} {SDW}')
    I(f'v_cmp_lt_u32_sdwa vcc, v{X+9}, v{V_TAB} {SDW}')
    I(f'v_cmp_lt_u32_sdwa {sp(S_T)}, v{X+9}, v{V_TAB+1} {SDW}')
    I(f'v_mov_b32 v{X+8}, 4')
    I(f's_or_b64 vcc, vcc, {sp(S_T)}')
    I(f's_cbranch_scc0 L_NOMORE')
    I(f'v_mov_b32 v{X+9}, {MISC}')
    I(f'ds_write_b32 v{X+9}, v{X+8}')
    L('L_NOMORE')
    stamp(11)
    e('    ; count')
    for s_ in range(8):
        if s_ >= 4:
            I(f's_mov_b64 exec, {MK(s_)}')
            I(f's_cbranch_execz L_C{s_}')
        if s_ % 2 == 0:
            I(f's_waitcnt vmcnt({3 + 2 * BE + (1 if PF3 else 0) - s_ // 2})')
        if s_ < 4:
            I(f's_mov_b64 exec, {MK(s_)}')
        I(f'v_lshrrev_b32 v{AD+s_}, 24, v{RB(s_)+4+(s_&1)}')
        if opt('safe', 0):
            I(f'v_and_b32 v{AD+s_}, 0xfc, v{AD+s_}')
        I(f'ds_add_rtn_u32 v{RB(s_)+6+(s_&1)}, v{AD+s_}, v{X+8} offset:{CNT}')
        if s_ >= 4:
            L(f'L_C{s_}')
    I('s_mov_b64 exec, -1')
    def check2():
        I(f'v_xor_b32 v100, s{S_TAG}, v100')
        I(f'v_xor_b32 v101, s{S_TAG3}, v101')
        I(f'v_xor_b32 v102, s{S_TAG}, v102')
        I(f'v_xor_b32 v103, s{S_TAG3}, v103')
        I('v_or3_b32 v100, v100, v101, v102')
        I('v_or_b32 v100, v100, v103')
        I('v_cmp_ne_u32 vcc, 0, v100')
    def e_loads():
        for hf in range(2):
            for r in range(2):
                I(f's_mov_b64 exec, {MK(4*hf+2*r)}')
                I(f'buffer_load_dwordx4 {vr(RB(4*hf+2*r),4)}, v{96+r}, {sr4(S_SRC)}, 0 offen offset:{128*hf}' + LSC)
        I('s_mov_b64 exec, -1')
    I(f's_mov_b32 s{S_CNT}, 1')
    if BE:
        I('s_waitcnt vmcnt(0)')
        check2()
        I('s_nop 0')
        I('s_cbranch_vccnz L_NOTYET')
        e_loads()
        I(f's_mov_b32 s{S_CNT}, 0')
        I('s_branch L_EDONE')
        L('L_NOTYET')
    for r in range(2):
        I(f'buffer_load_dwordx2 {p(100+2*r)}, v{V_TAB+2+r}, {sr4(S_EA)}, 0 offen' + LSC)
    L('L_EDONE')
    I(f'v_lshlrev_b32 v{X+8}, 2, v{V_LANE}')
    I(f'v_mov_b32 v{X+9}, {MISC}')
    I(f's_mov_b32 s{S_T+2}, 0x1fff8')
    I('s_waitcnt lgkmcnt(0)')
    I('s_barrier')
    stamp(12)
    def do_pf():
        if NPFM in (2, 3, 4):
            I(f's_mov_b32 s{S_T+7}, s{S_T}')
            nt_prefetch(60, dst=62)
            I(f's_mov_b32 s{S_T}, s{S_T+7}')
    def poll2():
        I(f's_cmp_eq_u32 s{S_CNT}, 0')
        I('s_cbranch_scc1 L_HAVEE')
        I(f's_mov_b32 s{S_T+3}, 0x40000')
        L('L_POLL2')
        I('s_waitcnt vmcnt(0)')
        I(f'v_xor_b32 v100, s{S_TAG}, v100')
        I(f'v_xor_b32 v101, s{S_TAG3}, v101')
        I(f'v_xor_b32 v102, s{S_TAG}, v102')
        I(f'v_xor_b32 v103, s{S_TAG3}, v103')
        I('v_or3_b32 v100, v100, v101, v102')
        I('v_or_b32 v100, v100, v103')
        I('v_cmp_ne_u32 vcc, 0, v100')
        I(f's_sub_u32 s{S_T+3}, s{S_T+3}, 1')
        I('s_cbranch_scc1 L_END')
        I('s_cbranch_vccz L_POLLED2')
        for r in range(2):
            I(f'buffer_load_dwordx2 {p(100+2*r)}, v{V_TAB+2+r}, {sr4(S_EA)}, 0 offen' + LSC)
        I('s_branch L_POLL2')
        L('L_POLLED2')
        for hf in range(2):
            for r in range(2):
                I(f's_mov_b64 exec, {MK(4*hf+2*r)}')
                I(f'buffer_load_dwordx4 {vr(RB(4*hf+2*r),4)}, v{96+r}, {sr4(S_SRC)}, 0 offen offset:{128*hf}' + LSC)
        I('s_mov_b64 exec, -1')
        L('L_HAVEE')
    B2 = opt('b2', 1)
    if B2 == 0:
        poll2()
        do_pf()
    NG, GS, MI = X + 10, X + 11, X + 12
    I(f'ds_read_b32 v{NG}, v{X+8} offset:{CNT}')
    I(f'ds_read_b32 v{X+9}, v{X+9}')
    I('s_waitcnt lgkmcnt(1)')
    I(f'v_add_u32 v{NG}, 28, v{NG}')
    I(f'v_and_b32 v{NG}, 0xffffffe0, v{NG}')
    I(f'v_mov_b32 v{GS}, v{NG}')
    wave_scan(GS)
    I(f'v_readlane_b32 s{S_T}, v{GS}, 63')
    I(f'v_sub_u32 v{GS}, v{GS}, v{NG}')
    if PROF == 5:
        stamp(19)
    I(f'ds_write_b32 v{X+8}, v{GS} offset:{BASET}')
    for s_ in range(8):
        I(f's_mov_b64 exec, {MK(s_)}')
        I(f'ds_read_b32 v{AD+s_}, v{AD+s_} offset:{BASET}')
    I('s_mov_b64 exec, -1')
    if B2 == 1:
        poll2()
        do_pf()
    I(f'v_readfirstlane_b32 s{S_MORE}, v{X+9}')
    out.insert(len(out) - 1, '    s_waitcnt lgkmcnt(9)')
    I(f's_lshr_b32 s{S_T}, s{S_T}, 5')
    I(f's_cmp_eq_u32 s{S_WID}, 128')
    I(f's_cselect_b32 s{S_T+1}, {MAXG}, -1')
    I(f's_cmp_gt_u32 s{S_T}, s{S_T+1}')
    I('s_cbranch_scc1 L_OVERFLOW')
    def place(tag):
        I('s_waitcnt lgkmcnt(0)')
        for s_ in range(8):
            wd, rk = RB(s_) + 4 + (s_ & 1), RB(s_) + 6 + (s_ & 1)
            I(f's_mov_b64 exec, {MK(s_)}')
            if s_ >= 4:
                I(f's_cbranch_execz L_P{tag}{s_}')
            I(f'v_add_u32 v{AD+s_}, v{AD+s_}, v{rk}')
            I(f'v_and_b32 v{wd}, s{S_T+2}, v{wd}')
            I(f'v_add_u32 v{rk}, v{AD+s_}, v{AD+s_}')
            I(f'ds_write_b32 v{AD+s_}, v{wd} offset:{LS}')
            if s_ >= 4:
                L(f'L_P{tag}{s_}')
        for s_ in range(8):
            rk, ee = RB(s_) + 6 + (s_ & 1), RB(s_) + 2 * (s_ & 1)
            I(f's_mov_b64 exec, {MK(s_)}')
            if s_ >= 4:
                I(f's_cbranch_execz L_Q{tag}{s_}')
            if s_ % 2 == 0:
                I(f's_waitcnt vmcnt({3 - s_ // 2 + NPF})')
            I(f'ds_write_b64 v{rk}, {p(ee)} offset:{LE}')
            if s_ >= 4:
                L(f'L_Q{tag}{s_}')
        I('s_mov_b64 exec, -1')
    if PROF == 5:
        stamp(20)
    SWAP = opt('swap', 0)
    if SWAP:
        I(f's_bitcmp1_b32 s{S_W}, {SWAP}')
        I('s_cbranch_scc0 L_DFIRST')
        place('a')
        L('L_DFIRST')
    SB_, SR_, SG0 = S_T + 4, S_T + 5, S_T + 6
    I(f's_add_u32 s{S_T}, s{S_T}, 3')
    I(f's_lshr_b32 s{S_T}, s{S_T}, 2')
    I(f's_lshr_b32 s{SB_}, s{S_T}, 4')
    I(f's_and_b32 s{SR_}, s{S_T}, 15')
    I(f's_add_u32 s{S_T+1}, s{SB_}, 1')
    I(f'v_cvt_f32_u32 v{MI}, s{S_T+1}')
    I(f'v_cvt_f32_u32 v{MI+1}, s{SB_}')
    I(f'v_rcp_f32 v{MI}, v{MI}')
    I(f'v_rcp_f32 v{MI+1}, v{MI+1}')
    I(f's_mul_i32 s{SG0}, s{SR_}, s{S_T+1}')
    I(f's_lshl_b32 s{SG0}, s{SG0}, 2')
    I(f'v_lshrrev_b32 v{GS}, 5, v{GS}')
    I(f'v_mul_f32 v{MI}, 0x47800000, v{MI}')
    I(f'v_mul_f32 v{MI+1}, 0x47800000, v{MI+1}')
    I(f'v_lshrrev_b32 v{NG}, 5, v{NG}')
    I(f'v_cvt_u32_f32 v{MI}, v{MI}')
    I(f'v_cvt_u32_f32 v{MI+1}, v{MI+1}')
    I(f's_cmp_lt_u32 s{S_W}, s{SR_}')
    I(f's_cselect_b32 s{S_L}, s{S_T+1}, s{SB_}')
    I(f'v_add_u32 v{MI}, 2, v{MI}')
    I(f'v_add_u32 v{MI+1}, 2, v{MI+1}')
    I(f's_min_u32 s{S_T}, s{S_W}, s{SR_}')
    I(f's_mul_i32 s{S_T+3}, s{S_W}, s{SB_}')
    I(f's_add_u32 s{S_T+3}, s{S_T+3}, s{S_T}')
    I(f's_sub_u32 s{S_T+1}, 0, s{S_T+1}')
    I(f's_sub_u32 s{SB_}, 0, s{SB_}')
    I(f's_lshl_b32 s{SR_}, s{SR_}, 2')
    D0, D1, D2, D3, NR = 96, 97, 98, 99, 100
    I(f'v_lshlrev_b32 v{NR}, 8, v{V_LANE}')
    I(f'v_add_u32 v{NR+1}, {ACCN}, v{NR}')
    I(f's_mov_b32 s{S_T}, s{S_W}')
    L('L_DLOOP')
    I(f'v_cmp_lt_u32 vcc, s{S_T}, v{NG}')
    I('s_and_b64 exec, exec, vcc')
    I('s_cbranch_execz L_DEND')
    I(f'v_add_u32 v{D0}, s{S_T}, v{GS}')
    I(f'v_subrev_u32 v{D1}, s{SG0}, v{D0}')
    I(f'v_cmp_gt_u32 vcc, s{SG0}, v{D0}')
    I(f'v_mul_u32_u24 v{D2}, v{D0}, v{MI}')
    I(f'v_mul_u32_u24 v{D3}, v{D1}, v{MI+1}')
    I(f'v_lshrrev_b32 v{D2}, 16, v{D2}')
    I(f'v_lshrrev_b32 v{D3}, 16, v{D3}')
    I(f'v_mad_i32_i24 v{D0}, v{D2}, s{S_T+1}, v{D0}')
    I(f'v_mad_i32_i24 v{D1}, v{D3}, s{SB_}, v{D1}')
    I(f'v_add_u32 v{D3}, s{SR_}, v{D3}')
    I(f'v_cndmask_b32 v{D0}, v{D1}, v{D0}, vcc')
    I(f'v_cndmask_b32 v{D2}, v{D3}, v{D2}, vcc')
    I(f'v_cmp_le_u32 vcc, s{S_T}, v{D0}')
    I(f'v_lshl_add_u32 v{D0}, v{D0}, 6, v{D2}')
    I(f'v_lshlrev_b32 v{D1}, 8, v{D2}')
    I(f'v_lshlrev_b32 v{D0}, 2, v{D0}')
    I(f'v_add_u32 v{D1}, {EXTRA}, v{D1}')
    I(f'v_add_u32 v{D3}, {DESCA}, v{D0}')
    I(f'v_cndmask_b32 v{D1}, v{D1}, v{NR+1}, vcc')
    I(f'ds_write_b32 v{D0}, v{NR} offset:{DESCP}')
    I(f'ds_write_b32 v{D3}, v{D1}')
    I(f's_add_u32 s{S_T+7}, s{S_T}, 1')
    I(f'v_cmp_eq_u32 vcc, s{S_T+7}, v{NG}')
    I(f's_and_saveexec_b64 {sp(S_EX)}, vcc')
    I(f'ds_write_b32 v{X+8}, v{D2} offset:{NINFO+256}')
    I(f's_mov_b64 exec, {sp(S_EX)}')
    I(f's_cmp_lg_u32 s{S_T}, 0')
    I('s_cbranch_scc1 L_DNF')
    I(f'ds_write_b32 v{X+8}, v{D2} offset:{NINFO}')
    L('L_DNF')
    I(f's_add_u32 s{S_T}, s{S_T}, 16')
    I('s_branch L_DLOOP')
    L('L_DEND')
    I('s_mov_b64 exec, -1')
    I(f's_lshl_b32 s{S_T}, s{S_T+3}, 7')
    I(f's_lshl_b32 s{S_T+1}, s{S_L}, 5')
    I(f'v_mov_b32 v{D0}, s{S_T}')
    I(f'v_mad_u32_u24 v{V_PS0}, v{V_PS1}, s{S_T+1}, v{D0}')
    I(f'v_add_u32 v{D0}, v{D0}, v{D0}')
    I(f'v_add_u32 v{V_PS1}, s{S_T+1}, v{V_PS0}')
    I(f'v_add_u32 v{V_PE}, v{V_PE}, v{D0}')
    I(f's_lshl_b32 s{S_T+1}, s{S_L}, 6')
    I(f'v_mad_u32_u24 v{V_PE}, v{V_VAP}, s{S_T+1}, v{V_PE}')
    if opt('safe', 0):
        I(f's_min_u32 s{S_L}, s{S_L}, 9')
        I(f's_mov_b32 s{S_MORE}, 0')
    I(f's_mov_b32 s{S_CNT}, s{S_L}')
    if B2 == 2:
        poll2()
        do_pf()
    if SWAP:
        I(f's_bitcmp1_b32 s{S_W}, {SWAP}')
        I('s_cbranch_scc1 L_PDONE')
    if PROF == 5:
        stamp(21)
    place('b')
    L('L_PDONE')
    stamp(13)
    I('s_waitcnt lgkmcnt(0)')
    I('s_barrier')
    stamp(14)
    I(f's_cmp_eq_u32 s{S_L}, 0')
    I('s_cbranch_scc1 L_FOLD')
    lg = Lg()
    FP = opt('fp', 0)
    if FP:
        for lvl in (3, 2, 1):
            I(f's_cmp_lt_u32 s{S_W}, {4 * (4 - lvl)}')
            I(f's_cbranch_scc0 L_FP{lvl}')
            I(f's_setprio {lvl}')
            I('s_branch L_FPD')
            L(f'L_FP{lvl}')
        L('L_FPD')
    s_reads(lg, 0)
    lg.op('dP', f'ds_read_b64 {p(V_VAP)}, v{V_PD}')
    lg.op('dA', f'ds_read_b64 {p(V_VAA[0])}, v{V_PD} offset:{DESCA-DESCP}')
    lg.op('e', f'ds_read_b64 {p(A5)}, v{V_PE}')
    lg.need('S0', 'S1', 'S2', 'S3')
    s_safe()
    STG_ = [int(x) for x in opt('stag', '0,0,0').split(',')]
    for gi, d in enumerate(STG_):
        if d:
            I(f's_cmp_ge_u32 s{S_W}, {4 * (gi + 1)}')
            I(f's_cbranch_scc0 L_ST{gi}')
            I(f's_sleep {d}')
            L(f'L_ST{gi}')
    for n in range(2):
        for i in range(16):
            I(gload(n, i))
        if n == 0 and FP == 2:
            I('s_setprio 0')
    s_reads(lg, 1)
    I(f'v_mov_b32 v{V_C8P}, v{V_CH8}')
    I(f'v_mov_b32 v{V_C8P+1}, v{V_CH8}')
    I(f'v_mov_b32 v{V_CPP}, v{V_CHP}')
    I(f'v_mov_b32 v{V_CPP+1}, v{V_CHP}')
    if M8:
        I(f'v_mov_b32 v{V_SCP}, 0x{f2u(2.0**KH):x}')
        I(f'v_mov_b32 v{V_SCP+1}, 0x{f2u(2.0**KH):x}')
    I(f's_mov_b32 s{S_BP0}, 64')
    I(f's_mov_b32 s{S_BP0+1}, 64')
    I(f's_mov_b32 s{S_BP1}, 128')
    I(f's_mov_b32 s{S_BP1+1}, 512')
    lg.need('dP', 'dA')
    va_add(V_VAP, V_VAA[0])
    lg.op('P0a', f'ds_read_b32 v{B5[0]+2}, v{V_VAP}')
    lg.op('P0b', f'ds_read_b32 v{B5[0]+3}, v{V_VAP+1}')
    lg.op('P1a', f'ds_read_b32 v{B5[1]+2}, v{V_VAP} offset:4')
    lg.op('P1b', f'ds_read_b32 v{B5[1]+3}, v{V_VAP+1} offset:4')
    I(f's_cmp_eq_u32 s{S_CNT}, 1')
    I(f's_cselect_b64 {sp(S_LDX)}, 0, {LDXV}')
    I('s_waitcnt lgkmcnt(0)')
    lg.q = []
    if opt('prio', 3):
        I('s_setprio 3')
    stamp(15)
    rstamp(28)
    half(lg, 0, 0, 0, False)
    if PROF == 4:
        stamp(19)
        lg.q = []
    state0 = list(lg.q)
    def step(par, uo):
        prio(f'm{par}', 1)
        half(lg, 1, par, uo)
        if PROF == 4:
            I('s_memtime s[98:99]')
            I(f's_sub_u32 s92, s{S_L}, s{S_CNT}')
            I(f's_add_u32 m0, s92, 20')
            I('s_waitcnt lgkmcnt(0)')
            I(f'v_writelane_b32 v{V_PROF}, s98, m0')
        I(f's_sub_u32 s{S_CNT}, s{S_CNT}, 1')
        I(f's_cmp_eq_u32 s{S_CNT}, 0')
        I(f's_cbranch_scc1 L_FIN{par}')
        I(f's_cmp_eq_u32 s{S_CNT}, 1')
        I(f's_cselect_b64 {sp(S_LDX)}, 0, {LDXV}')
        prio(f'{par}')
        half(lg, 0, par ^ 1, uo + 1)
    def loop_body():
        step(0, 0)
        step(1, 1)
        I(f'v_lshl_add_u64 {p(V_PS0)}, {p(V_PS0)}, 0, {sp(S_BP0)}')
        I(f'v_lshl_add_u64 {p(V_PE)}, {p(V_PE)}, 0, {sp(S_BP1)}')
        I('s_branch L_LOOP')
    mark = len(out)
    loop_body()
    del out[mark:]
    qb = list(lg.q)
    n = min(len(qb), len(state0))
    assert PROF == 4 or qb[len(qb)-n:] == state0[len(state0)-n:], (state0, qb)
    lg.q = list(qb if len(qb) >= len(state0) else state0)
    e('.p2align 3')
    L('L_LOOP')
    mark = len(out)
    loop_body()
    drop = opt('drop', '')
    if drop:
        body = out[mark:]
        keep = []
        for l in body:
            t = l.strip()
            if 'v' in drop and (t.startswith('buffer_load') or t.startswith('s_mov_b64 exec') or 'vmcnt' in t):
                continue
            if 'l' in drop and (t.startswith('ds_') or 'lgkmcnt' in t):
                continue
            if 'm' in drop and t.startswith('v_mfma'):
                continue
            if 'n' in drop and t.startswith('s_nop'):
                continue
            keep.append(l)
        out[mark:] = keep
    assert lg.q == qb, (lg.q, qb)
    print('loop entry queue', state0, 'back edge queue', qb, file=sys.stderr)
    for pr in range(2):
        L(f'L_FIN{pr}')
        if M8:
            I(f'v_pk_mul_f32 {p(V_T01N)}, {p(V_T01N)}, {p(V_T23D)}')
            I(f'v_pk_mul_f32 {p(V_T23D)}, {p(V_T01D)}, {p(V_T23D)}')
            I(f'v_pk_fma_f32 {p(V_T01N)}, {p(V_T23N)}, {p(V_T01D)}, {p(V_T01N)}')
            I(f'v_rcp_f32 v{V_T23D}, v{V_T23D}')
            I(f'v_rcp_f32 v{V_T23D+1}, v{V_T23D+1}')
            I('s_waitcnt lgkmcnt(0)')
            I(f'v_pk_fma_f32 {p(V_MB)}, {p(V_T01N)}, {p(V_T23D)}, {p(V_MB)}')
        else:
            for r_ in (V_T01D, V_T01D + 1, V_T23D, V_T23D + 1):
                I(f'v_rcp_f32 v{r_}, v{r_}')
            I('s_waitcnt lgkmcnt(0)')
            I(f'v_pk_fma_f32 {p(V_MB)}, {p(V_T01N)}, {p(V_T01D)}, {p(V_MB)}')
            I(f'v_pk_fma_f32 {p(V_MB)}, {p(V_T23N)}, {p(V_T23D)}, {p(V_MB)}')
        acc_write(Lg(), V_VAA[pr])
        if pr == 0:
            I('s_branch L_FOLD')
    L('L_FOLD')
    stamp(16)
    FL = opt('fl', 0)
    I(f'v_lshrrev_b32 v{X}, 4, v{V_TID}')
    I(f'v_and_b32 v{X+1}, 15, v{V_TID}')
    if FL:
        I(f'v_lshlrev_b32 v{X+6}, 3, v{X+1}')
        I(f'v_lshrrev_b32 v{X+2}, 3, v{X+1}')
        I(f'v_and_b32 v{X+1}, 7, v{X+1}')
        I(f'v_lshlrev_b32 v{X+1}, 5, v{X+1}')
        I(f'v_lshl_add_u32 v{X+1}, v{X+2}, 2, v{X+1}')
    else:
        I(f'v_lshlrev_b32 v{X+6}, 2, v{X+1}')
        I(f'v_lshlrev_b32 v{X+1}, 4, v{X+1}')
    I(f'v_lshl_add_u32 v{X+2}, v{X}, 8, v{X+1}')
    I(f'v_add_u32 v{X+2}, {ACCN}, v{X+2}')
    I(f'v_add_u32 v{X+1}, {EXTRA}, v{X+1}')
    def rd4(dst, ad):
        if FL:
            I(f'ds_read2_b32 v[{dst}:{dst+1}], v{ad} offset0:0 offset1:2')
            I(f'ds_read2_b32 v[{dst+2}:{dst+3}], v{ad} offset0:4 offset1:6')
        else:
            I(f'ds_read_b128 v[{dst}:{dst+3}], v{ad}')
    I(f'v_lshlrev_b32 v{X+3}, 2, v{X}')
    I(f's_mul_i32 s{S_T+4}, s3, {NB*128}')
    I(f'v_lshl_add_u32 v{X+6}, v{X}, 7, v{X+6}')
    I(f'v_add_u32 v{X+6}, s{S_T+4}, v{X+6}')
    I(f'v_mov_b32 v{X+7}, 0')
    I(f'ds_read_b32 v{X+4}, v{X+3} offset:{NINFO}')
    I(f'ds_read_b32 v{X+5}, v{X+3} offset:{NINFO+256}')
    I(f's_mov_b32 s{S_T+2}, 0x{f2u(2.0**-(SV+KH)):x}')
    I(f's_mov_b32 s{S_T+3}, 0x{f2u(-LOG2E * 2.0**-(SV+KH)):x}')
    I(f'v_cmp_gt_u32 vcc, {NB*16}, v{V_TID}')
    I('s_waitcnt vmcnt(0) lgkmcnt(0)')
    I('s_barrier')
    stamp(17)
    rstamp(29)
    if PROF:
        I(f'v_writelane_b32 v{V_PROF}, s{S_L}, 27')
    I(f's_and_saveexec_b64 {sp(S_EX)}, vcc')
    I('s_cbranch_execz L_FDONE')
    rd4(64, X + 2)
    I(f's_mov_b64 {sp(S_T)}, exec')
    L('L_FLOOP')
    I(f'v_cmp_lt_u32 vcc, v{X+4}, v{X+5}')
    I('s_and_b64 exec, exec, vcc')
    I('s_cbranch_execz L_FLEND')
    I(f'v_add_u32 v{X+4}, 1, v{X+4}')
    I(f'v_lshl_add_u32 v{X+7}, v{X+4}, 8, v{X+1}')
    rd4(72, X + 7)
    I('s_waitcnt lgkmcnt(0)')
    for k in range(4):
        I(f'v_add_f32 v{64+k}, v{64+k}, v{72+k}')
    I('s_branch L_FLOOP')
    L('L_FLEND')
    I(f's_mov_b64 exec, {sp(S_T)}')
    I('s_waitcnt lgkmcnt(0)')
    I(f's_cmp_lg_u32 s{S_MORE}, 0')
    I('s_cbranch_scc1 L_WB')
    for k in range(4):
        I(f'v_mul_f32 v{72+k}, s{S_T+3}, v{64+k}')
    for k in range(4):
        I(f'v_exp_f32 v{72+k}, v{72+k}')
    for k in range(4):
        I(f'v_mul_f32 v{64+k}, s{S_T+2}, v{64+k}')
    for k in range(4):
        I(f'v_add_f32 v{72+k}, 1.0, v{72+k}')
    for k in range(4):
        I(f'v_rcp_f32 v{72+k}, v{72+k}')
    I('s_nop 0')
    for k in range(4):
        I(f'v_mul_f32 v{64+k}, v{64+k}, v{72+k}')
    if FL:
        I('v_cvt_pk_bf16_f32 v80, v64, v65')
        I('v_cvt_pk_bf16_f32 v81, v66, v67')
        I(f'buffer_store_dwordx2 v[80:81], v{X+6}, {sr4(S_OUT)}, 0 offen' + OSC)
    else:
        I('v_cvt_pk_bf16_f32 v80, v64, v66')
        I('v_cvt_pk_bf16_f32 v81, v65, v67')
        I(f'buffer_store_dword v80, v{X+6}, {sr4(S_OUT)}, 0 offen' + OSC)
        I(f'buffer_store_dword v81, v{X+6}, {sr4(S_OUT)}, 0 offen offset:64' + OSC)
    stamp(18)
    prof_store()
    diag_end()
    I('s_endpgm')
    L('L_WB')
    if FL:
        I(f'ds_write2_b32 v{X+2}, v64, v65 offset0:0 offset1:2')
        I(f'ds_write2_b32 v{X+2}, v66, v67 offset0:4 offset1:6')
    else:
        I(f'ds_write_b128 v{X+2}, v[64:67]')
    L('L_FDONE')
    I('s_mov_b64 exec, -1')
    I(f's_cmp_eq_u32 s{S_MORE}, 0')
    I('s_cbranch_scc1 L_QUIT')
    I(f's_add_u32 s{S_JB}, s{S_JB}, s{S_WID}')
    I('s_branch L_REFILL')
    L('L_OVERFLOW')
    I(f's_mov_b32 s{S_WID}, 64')
    L('L_REFILL')
    I('s_waitcnt vmcnt(0) lgkmcnt(0)')
    I('s_barrier')
    fill_zero()
    fill_words()
    ptr_consts()
    I('s_waitcnt lgkmcnt(0)')
    I('s_barrier')
    I('s_branch L_PASS')
    L('L_QUIT')
    prof_store()
    L('L_END')
    I('s_endpgm')


DOC = """
"""
hdr = open('standalone__edge_featured_mpnn_egc__graph.s.ref').read().split('\n')
for line in hdr:
    if line.startswith('; Override'):
        break
    e(line)
e(f'; @launch grid=({NWG},1,1) block=(1024,1,1) lds={LDS_BYTES}')
e('.amdgcn_target "amdgcn-amd-amdhsa--gfx950"')
for line in DOC.strip().split('\n'):
    e(line)
e('.text')
gen()
e('.section .rodata,"a"')
e('.p2align 6')
e(f'.amdhsa_kernel {KNAME}')
e('  .amdhsa_next_free_vgpr 128')
e('  .amdhsa_next_free_sgpr 102')
e('  .amdhsa_accum_offset 128')
e('  .amdhsa_group_segment_fixed_size 0')
e('  .amdhsa_kernarg_size 80')
e('  .amdhsa_user_sgpr_count 2')
e('  .amdhsa_user_sgpr_kernarg_segment_ptr 1')
e('  .amdhsa_system_sgpr_workgroup_id_x 1')
e('  .amdhsa_float_denorm_mode_32 3')
e('.end_amdhsa_kernel')
open(sys.argv[1], 'w').write('\n'.join(x for x in out if x is not None) + '\n')
```

```python
import sys, struct

OPT = dict(a.split('=') for a in sys.argv[2:] if '=' in a)
def opt(name, default):
    return type(default)(OPT.get(name, default))

KNAME = 'standalone__edge_featured_mpnn_egc__graph_kernel'
N_NODES = 12500
E_EDGES = 800000
NB = 49
NWG = 256
CH = 3136
WS_RW = 0
WS_RE = 0x00400000
CAP = CH + 256
WS_TAB = 0x00B00000
WS_NT = 0x00C00000
WS_PROF = 0x01000000
M8 = opt('m8', 0)
if M8:
    KH, KEXP, SV = 13, 26, 0
else:
    KH, KEXP, SV = 31, 31, 30
LOG2E = 1.4426950408889634
SC = opt('sc', 'sc1')
SC = (' ' + SC.replace('+', ' ')) if SC != 'none' else ''
LSC = opt('lsc', 'sc1')
LSC = (' ' + LSC.replace('+', ' ')) if LSC != 'none' else ''
GSC = opt('gsc', 'sc1')
GSC = (' ' + GSC.replace('+', ' ')) if GSC != 'none' else ''
ELD = opt('eld', 'none')
ELD = (' ' + ELD.replace('+', ' ')) if ELD != 'none' else ''

def f2u(x):
    return struct.unpack('<I', struct.pack('<f', x))[0]

out = []
def e(s=''):
    out.append(s)
def I(s):
    out.append('    ' + s)
def L(name):
    out.append(name + ':')
def vr(a, n):
    return f'v[{a}:{a+n-1}]' if n > 1 else f'v{a}'
def sr4(a):
    return f's[{a}:{a+3}]'
def sp(a):
    return f's[{a}:{a+1}]'
def p(r):
    return f'v[{r}:{r+1}]'

def srd(d, lo, hi, nrec):
    I(f's_mov_b32 s{d}, s{lo}')
    I(f's_mov_b32 s{d+1}, s{hi}')
    I(f's_mov_b32 s{d+2}, {nrec}')
    I(f's_mov_b32 s{d+3}, 0x00020000')

def srd_off(d, lo, hi, off, nrec):
    I(f's_add_u32 s{d}, s{lo}, {off}')
    I(f's_addc_u32 s{d+1}, s{hi}, 0')
    I(f's_mov_b32 s{d+2}, {nrec}')
    I(f's_mov_b32 s{d+3}, 0x00020000')

def wave_scan(v):
    for sh in (1, 2, 4, 8):
        I('s_nop 1')
        I(f'v_add_u32_dpp v{v}, v{v}, v{v} row_shr:{sh} row_mask:0xf bank_mask:0xf')
    I('s_nop 1')
    I(f'v_add_u32_dpp v{v}, v{v}, v{v} row_bcast:15 row_mask:0xa bank_mask:0xf')
    I('s_nop 1')
    I(f'v_add_u32_dpp v{v}, v{v}, v{v} row_bcast:31 row_mask:0xc bank_mask:0xf')
    I('s_nop 1')

LS = 0
ZR = 18688
LE = 18688
CNT = 56064
MISC = 56320
BASET = 56576
NINFO = 56832
HIST = 57344
HBASE = 58368
DESCP = 59392
CNT2 = 61952
BASE2 = 64000
EXTRA = 67840
DESCA = 84224
PT = 86784
ACCN = 99328
WRAW = 111872
WG_, WV_, WU_ = WRAW, WRAW + 17408, WRAW + 25600
XOWN = WRAW + 33792
LDS_BYTES = XOWN + 8192
STGW = 0
STGE = CAP * 4
NTI = EXTRA
MAXG = 576
assert STGE + CAP * 8 <= CNT

V_TID, V_LANE = 0, 1
V_MA, V_MB = 2, 4
V_VAA = (6, 8)
V_VAP = 10
V_PS0, V_PS1, V_PE, V_PD, V_CH8, V_CHP = 12, 13, 14, 15, 16, 17
V_PROF = 18
V_TAB = 20
V_J4, V_CB4 = 24, 25
V_X = 26
V_T01D, V_T01N, V_T23D, V_T23N = 40, 42, 44, 46
B5 = (48, 52)
A5 = 56
V_TT = (60, 62)
G = (64, 80)
Z = 96
S = 112

S_XS, S_WS, S_DST, S_SRC, S_EA, S_RW, S_RE, S_TAB, S_NTS, S_NTG, S_OUT = 12, 16, 20, 24, 28, 32, 36, 40, 44, 48, 52
S_MASK = 56
S_W, S_L, S_CNT, S_JB, S_WID, S_MORE = 72, 73, 74, 75, 76, 77
S_C = 78
S_EX = 80
S_LDX = 82
S_T = 84
S_WSP = 94
S_DBG = 96
S_TAG, S_TAG2, S_TAG3 = 100, 101, 11
TAGM = 0xC003C003
TAGL = MISC + 64

NT2 = 2 if opt('touch', 0) else 0
LDXV = 0 if opt('noload', 0) else -1
NPFM = opt('npf', 0)
NPF = {0: 0, 1: 7, 2: 7, 3: 2, 4: 1, 5: 1}[NPFM]
NPF1 = NPF if NPFM in (1, 5) else 0
WSB = opt('wsb', 0) << 20
TCH = 4 if opt('touch', 0) else 0
T1 = opt('t1', 0)
OSC = opt('osc', 'nt')
OSC = (' ' + OSC.replace('+', ' ')) if OSC != 'none' else ''
KREP = opt('krep', 1)
assert KREP == 1
CM = opt('cm', 1)
RSTEP = 64 if CM else 8
SRCL = opt('srcl', 1)
TP = opt('tp', 1)
BANDS = opt('bands', 1)
ROT = opt('rot', 1)
PROF = opt('prof', 0)
DIAG = opt('diag', -1)
def diag_end():
    if DIAG < 0:
        return
    I('s_memrealtime s[98:99]')
    I('s_waitcnt lgkmcnt(0)')
    I('v_readlane_b32 s92, v18, 1')
    I('v_readlane_b32 s93, v18, 0')
    I('s_nop 3')
    I('s_sub_u32 s92, s92, s93')
    I('s_lshr_b32 s92, s92, 3' if opt('dcyc', 0) else 's_lshl_b32 s92, s92, 2')
    I('s_mov_b32 s93, s98')
    lbl = f'L_DG{len(out)}'
    L(lbl)
    I('s_memrealtime s[98:99]')
    I('s_waitcnt lgkmcnt(0)')
    I('s_sub_u32 s98, s98, s93')
    I('s_cmp_lt_u32 s98, s92')
    I(f's_cbranch_scc1 {lbl}')
def stamp(i):
    if DIAG >= 0 and i in (opt('dfrom', 0), DIAG):
        I('s_memtime s[98:99]' if opt('dcyc', 0) else 's_memrealtime s[98:99]')
        I('s_waitcnt lgkmcnt(0)')
        if i == opt('dfrom', 0):
            I('v_writelane_b32 v18, s98, 0')
        if i == DIAG:
            I('v_writelane_b32 v18, s98, 1')
    if not PROF:
        return
    I('s_memtime s[98:99]')
    I('s_waitcnt lgkmcnt(0)')
    I(f'v_writelane_b32 v{V_PROF}, s98, {i}')
def rstamp(i):
    if not PROF:
        return
    I('s_memrealtime s[98:99]')
    I('s_waitcnt lgkmcnt(0)')
    I(f'v_writelane_b32 v{V_PROF}, s98, {i}')
def prof_store():
    if not PROF:
        return
    rstamp(31)
    if PROF == 3:
        I(f's_lshl_b32 s98, s2, 4')
        I(f's_add_u32 s98, s98, s{S_W}')
        I(f's_cmp_lg_u32 s98, {opt("pwave", 80)}')
        I('s_cbranch_scc1 L_END')
        I('s_mov_b64 exec, -1')
        I(f'v_readlane_b32 s98, v{V_PROF}, 0')
        I(f'v_readlane_b32 s99, v{V_PROF}, 30')
        I(f'v_readlane_b32 s{S_T}, v{V_PROF}, 31')
        I('s_nop 3')
        I(f's_sub_u32 s{S_T}, s{S_T}, s99')
        I(f's_add_u32 s{S_T}, s{S_T}, s98')
        I(f'v_writelane_b32 v{V_PROF}, s{S_T}, 9')
        I(f'v_subrev_u32 v{V_PROF}, s98, v{V_PROF}')
        I(f'v_mbcnt_lo_u32_b32 v{V_PROF+1}, -1, 0')
        I(f'v_lshlrev_b32 v{V_PROF+1}, 2, v{V_PROF+1}')
        I(f'v_add_u32 v{V_PROF+1}, -8, v{V_PROF+1}')
        I('s_mov_b64 exec, 0x3fff8')
        I(f'global_store_dword v{V_PROF+1}, v{V_PROF}, {sp(S_DBG)}')
        return
    I('s_mov_b64 exec, 0xffffffff')
    I(f's_add_u32 s{S_T}, s{S_WSP}, 0x{WS_PROF:x}')
    I(f's_addc_u32 s{S_T+1}, s{S_WSP+1}, 0')
    I(f'v_mbcnt_lo_u32_b32 v{V_PROF+1}, -1, 0')
    I(f'v_lshlrev_b32 v{V_PROF+1}, 2, v{V_PROF+1}')
    I(f's_lshl_b32 s98, s2, 4')
    I(f's_add_u32 s98, s98, s{S_W}')
    I(f's_lshl_b32 s98, s98, 7')
    I(f'v_add_u32 v{V_PROF+1}, s98, v{V_PROF+1}')
    I(f'global_store_dword v{V_PROF+1}, v{V_PROF}, {sp(S_T)}')

class Lg:
    def __init__(self):
        self.q = []
    def op(self, tag, text):
        I(text)
        self.q.append(tag)
    def need(self, *tags):
        idx = -1
        for t in tags:
            for i in range(len(self.q) - 1, -1, -1):
                if self.q[i] == t:
                    idx = max(idx, i)
                    break
        if idx < 0:
            return
        n = len(self.q) - 1 - idx
        assert n <= 15, (tags, n)
        I(f's_waitcnt lgkmcnt({n})')
        self.q = self.q[idx + 1:]

X = V_X

def zero_range(a, nbytes, zr, ad):
    k = 0
    base = a if a + nbytes <= 65536 + 16384 and a < 65536 - 3 * 16384 else None
    off = 0
    areg = ad
    if a + ((nbytes - 1) // 16384) * 16384 > 65535:
        I(f'v_add_u32 v{X+1}, {a}, v{ad}')
        areg = X + 1
        a0 = 0
    else:
        a0 = a
    while off < nbytes:
        n = min(16384, nbytes - off)
        if n < 16384:
            I(f'v_cmp_gt_u32 vcc, {n // 16}, v{V_TID}')
            I(f's_and_saveexec_b64 {sp(S_EX)}, vcc')
        I(f'ds_write_b128 v{areg}, v[{zr}:{zr+3}] offset:{a0 + off}')
        if n < 16384:
            I(f's_mov_b64 exec, {sp(S_EX)}')
        off += n

def zregs():
    I(f'v_lshlrev_b32 v{X}, 4, v{V_TID}')
    for k in range(4):
        I(f'v_mov_b32 v{X+2+k}, 0')

def fill_desca():
    I(f'v_and_b32 v{X+6}, 15, v{V_TID}')
    I(f'v_lshlrev_b32 v{X+6}, 10, v{X+6}')
    I(f'v_add_u32 v{X+6}, {EXTRA}, v{X+6}')
    for k in range(1, 4):
        I(f'v_add_u32 v{X+6+k}, {256*k}, v{X+6}')
    I(f'v_add_u32 v{X+1}, {DESCA}, v{X}')
    I(f'v_cmp_gt_u32 vcc, 160, v{V_TID}')
    I(f's_and_saveexec_b64 {sp(S_EX)}, vcc')
    I(f'ds_write_b128 v{X+1}, v[{X+6}:{X+9}]')
    I(f's_mov_b64 exec, {sp(S_EX)}')

def fill_zero():
    zregs()
    zero_range(ZR, 65536, X + 2, X)
    fill_desca()

def fill_words():
    I(f'v_lshlrev_b32 v{X}, 4, v{V_TID}')
    I(f'v_and_b32 v{X+2}, 7, v{V_TID}')
    I(f'v_lshlrev_b32 v{X+2}, 5, v{X+2}')
    I(f'v_add_u32 v{X+2}, {N_NODES*8}, v{X+2}')
    for k in range(1, 4):
        I(f'v_add_u32 v{X+2+k}, {8*k}, v{X+2}')
    I(f'ds_write_b128 v{X}, v[{X+2}:{X+5}] offset:{LS}')
    I(f'v_cmp_gt_u32 vcc, 144, v{V_TID}')
    I(f's_and_saveexec_b64 {sp(S_EX)}, vcc')
    I(f'ds_write_b128 v{X}, v[{X+2}:{X+5}] offset:{LS+16384}')
    I(f's_mov_b64 exec, {sp(S_EX)}')

V_C8P, V_CPP, V_SCP = 26, 28, 30
S_BP0, S_BP1 = 88, 90

def tail_ops(n):
    M = (V_MA, V_MB)[n]
    return [f'v_rcp_f32 v{V_T01D}, v{V_T01D}',
            f'v_rcp_f32 v{V_T01D+1}, v{V_T01D+1}',
            f'v_pk_fma_f32 {p(M)}, {p(V_T01N)}, {p(V_T01D)}, {p(M)}']

def acc_write(lg, va):
    lg.op('Wa', f'ds_write2_b32 v{va}, v{V_MA}, v{V_MB} offset0:0 offset1:1')
    lg.op('Wb', f'ds_write2_b32 v{va+1}, v{V_MA+1}, v{V_MB+1} offset0:0 offset1:1')

def acc_read(lg, va):
    lg.op('Ra', f'ds_read_b32 v{V_MA}, v{va}')
    lg.op('Rb', f'ds_read_b32 v{V_MA+1}, v{va+1}')
    lg.op('Rc', f'ds_read_b32 v{V_MB}, v{va} offset:4')
    lg.op('Rd', f'ds_read_b32 v{V_MB+1}, v{va+1} offset:4')

def va_add(vap, vaa):
    I(f'v_lshl_add_u64 {p(vap)}, {p(vap)}, 0, {p(V_CPP)}')
    I(f'v_lshl_add_u64 {p(vaa)}, {p(vaa)}, 0, {p(V_C8P)}')

def gload(n, i):
    return f'buffer_load_dword v{G[n]+i}, v{S + (i & 1) * 8 + (i >> 1)}, {sr4(S_NTG)}, 0 offen offset:{4*n}' + GSC

def s_safe():
    if opt('safe', 0):
        for i in range(16):
            I(f'v_and_b32 v{S+i}, 0x1fff8, v{S+i}')

def s_reads(lg, uo):
    lg.op('S0', f'ds_read_b128 {vr(S,4)}, v{V_PS0} offset:{uo*32}')
    lg.op('S1', f'ds_read_b128 {vr(S+4,4)}, v{V_PS0} offset:{uo*32+16}')
    lg.op('S2', f'ds_read_b128 {vr(S+8,4)}, v{V_PS1} offset:{uo*32}')
    lg.op('S3', f'ds_read_b128 {vr(S+12,4)}, v{V_PS1} offset:{uo*32+16}')

def half(lg, n, par, uo, with_tail=True):
    g = G[n]
    I('s_waitcnt vmcnt(16)')
    if n == 0:
        lg.need('P0a', 'P0b', 'e')
    else:
        lg.need('P1a', 'P1b')
    I(f'v_mfma_f32_32x32x16_bf16 {vr(Z,16)}, {vr(A5,4)}, {vr(B5[n],4)}, {vr(g,16)}')
    t = tail_ops(n ^ 1)
    va_prev, va_cur, va_nxt = V_VAA[par ^ 1], V_VAA[par], V_VAA[par ^ 1]
    sh = [f'v_lshlrev_b32 v{g+i}, 16, v{g+i}' for i in range(16)]
    ex = [f'v_exp_f32 v{Z+i}, v{Z+i} clamp' for i in range(16)]
    l3 = [f'v_pk_mul_f32 {p(V_T01N)}, {p(V_T01N)}, {p(V_T23D)}',
          f'v_pk_mul_f32 {p(V_T23D)}, {p(V_T01D)}, {p(V_T23D)}',
          f'v_pk_fma_f32 {p(V_T01N)}, {p(V_T23N)}, {p(V_T01D)}, {p(V_T01N)}',
          f'v_rcp_f32 v{V_T23D}, v{V_T23D}',
          f'v_rcp_f32 v{V_T23D+1}, v{V_T23D+1}',
          f'v_pk_fma_f32 {p((V_MA, V_MB)[n ^ 1])}, {p(V_T01N)}, {p(V_T23D)}, {p((V_MA, V_MB)[n ^ 1])}']
    if with_tail and not M8:
        for r_ in (V_T01D, V_T01D + 1, V_T23D, V_T23D + 1):
            I(f'v_rcp_f32 v{r_}, v{r_}')
    else:
        I('s_nop 3')
    if n == 1:
        lg.op('e', f'ds_read_b64 {p(A5)}, v{V_PE} offset:{(uo+1)*64}')
        lg.op('P1a', f'ds_read_b32 v{B5[1]+2}, v{V_VAP} offset:4')
        lg.op('P1b', f'ds_read_b32 v{B5[1]+3}, v{V_VAP+1} offset:4')
    else:
        lg.op('dP', f'ds_read_b64 {p(V_VAP)}, v{V_PD} offset:{(uo+1)*256}')
        I('s_nop 1')
    for op in sh[:8]:
        I(op)
    seq = []
    if with_tail and not M8:
        Mp = p((V_MA, V_MB)[n ^ 1])
        seq = ['NEED', f'v_pk_fma_f32 {Mp}, {p(V_T01N)}, {p(V_T01D)}, {Mp}', ex[0],
               f'v_pk_fma_f32 {Mp}, {p(V_T23N)}, {p(V_T23D)}, {Mp}', sh[8], 'ACC', ex[1], sh[9]]
    elif with_tail:
        seq = [l3[0], l3[1], ex[0], l3[2], l3[3], sh[8], l3[4], ex[1], sh[9], 'NEED', l3[5], 'ACC']
    else:
        seq = [ex[0], sh[8], ex[1], sh[9], 'ACC']
    for op in seq:
        if op == 'NEED':
            lg.need('Ra', 'Rb', 'Rc', 'Rd')
        elif op == 'ACC':
            if n == 0:
                if with_tail:
                    acc_write(lg, va_prev)
                acc_read(lg, va_cur)
                lg.op('dA', f'ds_read_b64 {p(va_nxt)}, v{V_PD} offset:{(uo+1)*256 + DESCA - DESCP}')
        else:
            I(op)
    for i in range(2, 12):
        I(ex[i])
        if 8 + i < 16:
            I(sh[8 + i])
        if n == 0 and i == 11:
            lg.need('dP', 'dA')
            va_add(V_VAP, va_nxt)
            lg.op('P0a', f'ds_read_b32 v{B5[0]+2}, v{V_VAP}')
            lg.op('P0b', f'ds_read_b32 v{B5[0]+3}, v{V_VAP+1}')
    for op in ex[12:]:
        I(op)
    for i in range(0, 16, 2):
        if M8:
            I(f'v_pk_fma_f32 {p(Z+i)}, {p(Z+i)}, {p(V_SCP)}, {sp(S_C)}')
        else:
            I(f'v_pk_add_f32 {p(Z+i)}, {p(Z+i)}, {sp(S_C)}')
    def T(k): return f'v_pk_mul_f32 {p(V_TT[k&1])}, {p(g+4*k)}, {p(Z+4*k+2)}'
    def DD(k): return f'v_pk_mul_f32 {p(Z+4*k+2)}, {p(Z+4*k)}, {p(Z+4*k+2)}'
    def NN(k): return f'v_pk_fma_f32 {p(Z+4*k)}, {p(g+4*k+2)}, {p(Z+4*k)}, {p(V_TT[k&1])}'
    for k0 in (0, 2):
        for op in (T(k0), T(k0 + 1), DD(k0), DD(k0 + 1), NN(k0), NN(k0 + 1)):
            I(op)
        if n == 0 and k0 == 0:
            lg.need('S0', 'S1', 'S2', 'S3')
            s_safe()
        I(f's_mov_b64 exec, {sp(S_LDX)}')
        for i in range(4 * k0, 4 * k0 + 8):
            I(gload(n, i))
        I('s_mov_b64 exec, -1')
    if n == 1:
        s_reads(lg, uo + 2)
    I(f'v_pk_mul_f32 {p(V_T01N)}, {p(Z)}, {p(Z+6)}')
    I(f'v_pk_mul_f32 {p(V_T23N)}, {p(Z+8)}, {p(Z+14)}')
    I(f'v_pk_mul_f32 {p(V_T01D)}, {p(Z+2)}, {p(Z+6)}')
    I(f'v_pk_mul_f32 {p(V_T23D)}, {p(Z+10)}, {p(Z+14)}')
    I(f'v_pk_fma_f32 {p(V_T01N)}, {p(Z+4)}, {p(Z+2)}, {p(V_T01N)}')
    I(f'v_pk_fma_f32 {p(V_T23N)}, {p(Z+12)}, {p(Z+10)}, {p(V_T23N)}')

PRIO = {
    3: {(3, 0): 2, (2, 0): 1, (1, 0): 0},
    5: {(2, 0): 2, (1, 0): 1, (1, 1): 0},
    6: {(3, 0): 2, (1, 0): 1, (1, 1): 0},
    7: {(2, 1): 2, (1, 0): 1, (1, 1): 0},
    8: {(4, 0): 2, (2, 0): 1, (1, 1): 0},
    9: {(3, 0): 2, (2, 1): 1, (1, 1): 0},
    10: {(5, 0): 2, (3, 0): 1, (1, 0): 0},
    11: {(5, 0): 2, (3, 0): 1, (1, 1): 0},
    12: {(4, 0): 2, (2, 0): 1, (1, 1): 0},
    13: {(5, 0): 2, (2, 0): 1, (1, 1): 0},
    0: {},
}[opt('prio', 9)]
def prio(tag, phase=0):
    for (t, ph), lvl in PRIO.items():
        if ph != phase:
            continue
        I(f's_cmp_eq_u32 s{S_CNT}, {t}')
        I(f's_cbranch_scc0 L_PR{tag}_{lvl}')
        I(f's_setprio {lvl}')
        L(f'L_PR{tag}_{lvl}')

def split_hilo(a, b, t0, t1):
    I(f'v_cvt_pk_bf16_f32 v{t0}, v{a}, v{b}')
    I(f'v_lshlrev_b32 v{t1}, 16, v{t0}')
    I(f'v_and_b32 v{t0}, 0xffff0000, v{t0}')
    I(f'v_sub_f32 v{a}, v{a}, v{t1}')
    I(f'v_sub_f32 v{b}, v{b}, v{t0}')
    I(f'v_cvt_pk_bf16_f32 v{a}, v{t1}, v{a}')
    I(f'v_cvt_pk_bf16_f32 v{b}, v{t0}, v{b}')

V_AA, V_AB, V_AD, V_AP = 6, 7, 8, 9
SA, SB, SD = 80, 96, 112

def phase0_addr():
    I(f's_and_b32 s{S_T}, s{S_W}, 3')
    I(f's_lshr_b32 s{S_T+1}, s{S_W}, 2')
    I(f'v_and_b32 v12, 15, v{V_LANE}')
    I(f'v_lshrrev_b32 v13, 4, v{V_LANE}')
    I(f'v_bfe_u32 v14, v{V_LANE}, 1, 3')
    I(f'v_xor_b32 v14, v14, v13')
    I(f'v_lshlrev_b32 v14, 4, v14')
    I(f'v_lshl_or_b32 v14, v12, 7, v14')
    I(f's_lshl_b32 s{S_T+2}, s{S_T}, 11')
    I(f'v_add_u32 v{V_AA}, s{S_T+2}, v14')
    I(f'v_bfe_u32 v14, v{V_LANE}, 2, 2')
    I(f'v_lshl_add_u32 v14, v13, 3, v14')
    I(f'v_lshlrev_b32 v14, 7, v14')
    I(f'v_and_b32 v15, 3, v{V_LANE}')
    I(f'v_lshl_add_u32 v14, v15, 3, v14')
    I(f's_lshl_b32 s{S_T+2}, s{S_T+1}, 5')
    I(f'v_or_b32 v14, s{S_T+2}, v14')
    I(f'v_and_b32 v15, 24, v{V_LANE}')
    I(f'v_lshlrev_b32 v15, 2, v15')
    I(f'v_xor_b32 v14, v14, v15')
    I(f'v_add_u32 v{V_AB}, {WRAW}, v14')
    I(f's_lshl_b32 s{S_T+2}, s{S_T}, 12')
    I(f'v_lshlrev_b32 v13, 10, v13')
    I(f'v_add_u32 v13, s{S_T+2}, v13')
    I(f's_lshl_b32 s{S_T+2}, s{S_T+1}, 6')
    I(f's_add_u32 s{S_T+2}, s{S_T+2}, {NTI}')
    I(f'v_lshl_add_u32 v{V_AD}, v12, 2, v13')
    I(f'v_add_u32 v{V_AD}, s{S_T+2}, v{V_AD}')
    I(f's_and_b32 s{S_T+2}, s{S_T+1}, 1')
    I(f's_lshl_b32 s{S_T+2}, s{S_T+2}, 7')
    I(f's_lshr_b32 s{S_T+3}, s{S_T+1}, 1')
    I(f's_lshl_b32 s{S_T+3}, s{S_T+3}, 2')
    I(f's_add_u32 s{S_T+2}, s{S_T+2}, s{S_T+3}')
    I(f's_add_u32 s{S_T+2}, s{S_T+2}, {PT}')
    I(f'v_lshl_add_u32 v{V_AP}, v12, 3, v13')
    I(f'v_add_u32 v{V_AP}, s{S_T+2}, v{V_AP}')

def b_reads(dst, off):
    for sg in range(2):
        for pp in range(2):
            I(f'ds_read_b64_tr_b16 {vr(dst+4*sg+2*pp,2)}, v{V_AB} offset:{off+sg*4096+pp*512}')

def mm16(d, b):
    I(f'v_mfma_f32_16x16x32_bf16 {vr(d,4)}, {vr(SA,4)}, {vr(b,4)}, 0')
    I(f'v_mfma_f32_16x16x32_bf16 {vr(d,4)}, {vr(SA+4,4)}, {vr(b+4,4)}, {vr(d,4)}')

def phase0a():
    I(f'v_add_u32 v12, {XOWN}, v{V_AA}')
    I(f'v_xor_b32 v13, 64, v{V_AA}')
    I(f'v_add_u32 v13, {XOWN}, v13')
    I(f'ds_read_b128 {vr(SA,4)}, v12')
    I(f'ds_read_b128 {vr(SA+4,4)}, v13')
    b_reads(SB, 8192)
    b_reads(SB + 8, WV_ - WRAW)
    I(f's_mov_b32 s{S_T+4}, 0x{f2u(-LOG2E):x}')
    I(f's_mov_b32 s{S_T+6}, 0x7fffffff')
    I(f's_mov_b32 s{S_T+7}, 0xffff0000')
    I('s_waitcnt lgkmcnt(4)')
    mm16(SD, SB)
    I('s_waitcnt lgkmcnt(0)')
    mm16(SD + 4, SB + 8)
    I('s_nop 4')
    for i in range(4):
        I(f'v_mul_f32 v{SD+i}, s{S_T+4}, v{SD+i}')
    for i in range(4):
        I(f'v_and_b32 v{SD+8+i}, s{S_T+6}, v{SD+i}')
    for i in range(4):
        if SV:
            I(f'v_mul_f32 v{SD+4+i}, 0x{f2u(2.0**SV):x}, v{SD+4+i}')
        I(f'v_add_u32 v{SD+8+i}, 0x8000, v{SD+8+i}')
    I(f'v_cvt_pk_bf16_f32 v{SD+4}, v{SD+4}, v{SD+5}')
    I(f'v_cvt_pk_bf16_f32 v{SD+6}, v{SD+6}, v{SD+7}')
    I(f'v_lshrrev_b32 v{SD+5}, 16, v{SD+4}')
    I(f'v_lshrrev_b32 v{SD+7}, 16, v{SD+6}')
    I(f'v_and_b32 v{SD+4}, 0xffff, v{SD+4}')
    I(f'v_and_b32 v{SD+6}, 0xffff, v{SD+6}')
    for i in range(4):
        I(f'v_sub_u32 v{SD+8+i}, v{SD+8+i}, v{SD+4+i} clamp')
    for i in range(4):
        I(f'v_and_or_b32 v{SD+8+i}, v{SD+8+i}, s{S_T+7}, v{SD+4+i}')
    for i in range(4):
        I(f'v_bfi_b32 v{SD+i}, s{S_T+6}, v{SD+8+i}, v{SD+i}')
        I(f'ds_write_b32 v{V_AD}, v{SD+i} offset:{i*256}')

def phase0b():
    b_reads(SB, 0)
    b_reads(SB + 8, WU_ - WRAW)
    I(f's_mov_b32 s{S_T+4}, 0x{f2u(-LOG2E):x}')
    I(f's_mov_b32 s{S_T+5}, 0x{f2u(2.0**(SV+KH)):x}')
    I(f'v_mov_b32 v13, 0x{f2u(-float(KEXP)):x}')
    I(f's_and_b32 s{S_T+6}, s{S_W}, 3')
    I('s_waitcnt lgkmcnt(4)')
    mm16(SD, SB)
    I('s_waitcnt lgkmcnt(0)')
    mm16(SD + 4, SB + 8)
    I('s_nop 4')
    for i in range(4):
        I(f'v_fma_f32 v{SD+i}, v{SD+i}, s{S_T+4}, v13')
    split_hilo(SD, SD + 1, 12, 13)
    split_hilo(SD + 2, SD + 3, 12, 13)
    for i in range(4):
        I(f'v_mul_f32 v{SD+4+i}, s{S_T+5}, v{SD+4+i}')
    I(f's_cmp_eq_u32 s{S_T+6}, 3')
    I(f's_cselect_b64 exec, 0xffff, -1')
    I(f'ds_write_b32 v{V_AP}, v{SD}')
    I(f'ds_write_b32 v{V_AP}, v{SD+4} offset:{ACCN-PT}')
    I(f's_cselect_b64 exec, 0, -1')
    for i in range(1, 4):
        I(f'ds_write_b32 v{V_AP}, v{SD+i} offset:{i*256}')
        I(f'ds_write_b32 v{V_AP}, v{SD+4+i} offset:{ACCN-PT+i*256}')
    I('s_mov_b64 exec, -1')

def phase0c():
    I(f'v_bfe_u32 v13, v{V_LANE}, 2, 2')
    I(f'v_lshlrev_b32 v13, 7, v13')
    I(f'v_bfe_u32 v15, v{V_LANE}, 4, 1')
    I(f'v_lshl_add_u32 v13, v15, 5, v13')
    I(f'v_and_b32 v15, 3, v{V_LANE}')
    I(f'v_lshl_add_u32 v13, v15, 3, v13')
    I(f'v_and_b32 v15, 8, v{V_LANE}')
    I(f'v_lshlrev_b32 v15, 2, v15')
    I(f'v_xor_b32 v13, v13, v15')
    I(f'v_add_u32 v13, {WG_ + 16384}, v13')
    I(f'ds_read_b64_tr_b16 v[96:97], v13')
    I(f'ds_read_b64_tr_b16 v[98:99], v13 offset:64')
    I(f's_mov_b32 s{S_T+4}, 0x{f2u(-LOG2E):x}')
    I(f'v_cmp_lt_u32 vcc, 31, v{V_LANE}')
    I('s_waitcnt lgkmcnt(0)')
    for m in range(4):
        I(f'v_lshlrev_b32 v{100+2*m}, 16, v{96+m}')
        I(f'v_and_b32 v{101+2*m}, 0xffff0000, v{96+m}')
    for j in range(8):
        I(f'v_mul_f32 v{100+j}, s{S_T+4}, v{100+j}')
    for m in range(4):
        dst = B5[m >> 1] + (m & 1)
        I(f'v_cvt_pk_bf16_f32 v{96+m}, v{100+2*m}, v{101+2*m}')
        I(f'v_lshlrev_b32 v12, 16, v{96+m}')
        I(f'v_and_b32 v13, 0xffff0000, v{96+m}')
        I(f'v_sub_f32 v12, v{100+2*m}, v12')
        I(f'v_sub_f32 v13, v{101+2*m}, v13')
        I(f'v_cvt_pk_bf16_f32 v12, v12, v13')
        I(f'v_cndmask_b32 v{dst}, v{96+m}, v12, vcc')

def a5_const():
    I(f'v_bfe_u32 v12, v{V_LANE}, 2, 1')
    I(f'v_lshrrev_b32 v13, 5, v{V_LANE}')
    I(f'v_xor_b32 v12, v12, v13')
    I(f'v_and_b32 v13, 1, v{V_LANE}')
    I(f'v_lshl_or_b32 v12, v12, 1, v13')
    I(f'v_mov_b32 v13, 0x3f803f80')
    I(f'v_cmp_eq_u32 vcc, 0, v12')
    I(f'v_cmp_eq_u32 {sp(S_T)}, 1, v12')
    I('s_nop 1')
    I(f'v_cndmask_b32 v{A5+2}, 0, v13, vcc')
    I(f'v_cndmask_b32 v{A5+3}, 0, v13, {sp(S_T)}')

def nt_prefetch(vt, first=0, nl=None, dst=96):
    if CM:
        I(f's_lshr_b32 s{S_T}, s2, 4')
        I(f's_lshl_b32 s{S_T+1}, s{S_W}, 4')
        I(f's_add_u32 s{S_T}, s{S_T}, s{S_T+1}')
    else:
        I(f's_lshr_b32 s{S_T}, s2, 4')
        I(f's_lshl_b32 s{S_T+1}, s{S_W}, 4')
        I(f's_add_u32 s{S_T}, s{S_T}, s{S_T+1}')
        I(f's_and_b32 s{S_T+1}, s{S_T}, 7')
        I(f's_lshl_b32 s{S_T+1}, s{S_T+1}, 5')
        I(f's_lshr_b32 s{S_T}, s{S_T}, 3')
        I(f's_add_u32 s{S_T}, s{S_T}, s{S_T+1}')
    if not opt('xmap', 1):
        I(f's_lshr_b32 s{S_T}, s2, 4')
        I(f's_lshl_b32 s{S_T+1}, s{S_W}, 4')
        I(f's_add_u32 s{S_T}, s{S_T}, s{S_T+1}')
    I(f's_lshl_b32 s{S_T}, s{S_T}, 1')
    I(f's_bfe_u32 s{S_T+1}, s2, 0x10003')
    I(f's_add_u32 s{S_T}, s{S_T}, s{S_T+1}')
    I(f's_mul_i32 s{S_T}, s{S_T}, {NB*128}')
    I(f's_add_u32 s{S_T}, s{S_T}, 0x{WS_NT:x}')
    srd_off(S_NTS, S_WSP, S_WSP + 1, f's{S_T}', NB * 128)
    if NPFM >= 3:
        I(f'v_lshlrev_b32 v{vt}, {7 if NPFM >= 4 else 6}, v{V_LANE}')
        I(f'v_add_u32 v{vt+1}, 4096, v{vt}')
        nl = opt("pfl", 6) if nl is None else nl
        I(f's_mov_b32 exec_lo, 0x{(((1 << nl) - 1) << first) & 0xffffffff:x}')
        I(f's_mov_b32 exec_hi, 0x{(((1 << nl) - 1) << first) >> 32:x}')
        for k in range(NPF):
            I(f'buffer_load_dword v{dst+k}, v{vt+k}, {sr4(S_NTS)}, 0 offen' + (LSC if opt('pfsc', 1) else ''))
        I('s_mov_b64 exec, -1')
        return
    I(f'v_lshlrev_b32 v{vt}, 4, v{V_LANE}')
    I(f'v_add_u32 v{vt+1}, 4096, v{vt}')
    for k in range(NPF):
        I(f'buffer_load_dwordx4 {vr(96+4*k,4)}, v{vt+(k>>2)}, {sr4(S_NTS)}, 0 offen offset:{(k&3)*1024}' + LSC)

def ptr_consts():
    I(f'v_lshrrev_b32 v{V_PS1}, 5, v{V_LANE}')
    I(f's_lshl_b32 s{S_T}, s{S_W}, 4')
    I(f's_add_u32 s{S_T}, s{S_T}, {DESCP}')
    I(f'v_lshlrev_b32 v{V_PD}, 3, v{V_PS1}')
    I(f'v_add_u32 v{V_PS1}, v{V_PS1}, v{V_PS1}')
    I(f'v_add_u32 v{V_PD}, s{S_T}, v{V_PD}')
    I(f'v_bfe_u32 v{V_VAP}, v{V_LANE}, 2, 1')
    I(f'v_and_b32 v{V_PE}, 1, v{V_LANE}')
    I(f'v_lshl_or_b32 v{V_VAP}, v{V_VAP}, 1, v{V_PE}')
    I(f'v_bfe_u32 v{V_PE}, v{V_LANE}, 3, 2')
    I(f'v_bfe_u32 v{V_PS0}, v{V_LANE}, 1, 1')
    I(f'v_lshl_or_b32 v{V_PE}, v{V_PE}, 1, v{V_PS0}')
    I(f'v_lshlrev_b32 v{V_PE}, 3, v{V_PE}')
    I(f'v_add_u32 v{V_PE}, {LE}, v{V_PE}')

def gen():
    e(f'.globl {KNAME}')
    e('.p2align 8')
    e(f'.type {KNAME},@function')
    L(KNAME)
    I(f's_cmp_ge_u32 s2, {NWG}')
    I('s_cbranch_scc1 L_END')
    I('s_load_dwordx8 s[84:91], s[0:1], 0')
    I('s_load_dwordx4 s[4:7], s[0:1], 32')
    I('s_load_dwordx4 s[8:11], s[0:1], 48')
    I('s_load_dwordx4 s[56:59], s[0:1], 64')
    if PROF:
        I(f'v_mov_b32 v{V_PROF}, 0')
    rstamp(30)
    stamp(0)
    zregs()
    zero_range(CNT, BASE2 - CNT, X + 2, X)
    I(f'v_lshlrev_b32 v{X+6}, 2, v{V_TID}')
    I(f's_mul_i32 s61, s2, {CH*4}')
    I(f's_mul_i32 s63, s2, {CH}')
    I(f's_sub_u32 s63, {E_EDGES}, s63')
    I(f's_min_u32 s63, s63, {CH}')
    I(f's_lshl_b32 s64, s63, 2')
    I(f'v_add_u32 v{X+8}, 4096, v{X+6}')
    I(f'v_add_u32 v{X+9}, 8192, v{X+6}')
    I(f'v_add_u32 v{X+10}, 12288, v{X+6}')
    I(f'v_lshrrev_b32 v{X+1}, 6, v{V_TID}')
    I(f'v_and_b32 v{V_LANE}, 63, v{V_TID}')
    I(f'v_readfirstlane_b32 s{S_W}, v{X+1}')
    I('s_and_b32 s3, s2, 7')
    I('s_lshl_b32 s3, s3, 5')
    I('s_lshr_b32 s60, s2, 3')
    I('s_add_u32 s3, s3, s60')
    if not opt('xmap', 1):
        I('s_mov_b32 s3, s2')
    I(f's_mul_i32 s62, s2, {CH*8}')
    I(f's_lshl_b32 s65, s63, 3')
    I(f'v_and_b32 v97, 0x50, v{V_TID}')
    I(f'v_lshlrev_b32 v96, 1, v97')
    I(f'v_or_b32 v97, v97, v96')
    I(f'v_and_b32 v97, 0x60, v97')
    I(f'v_xor_b32 v97, v97, v{X}')
    I(f'v_and_b32 v96, 0x20, v96')
    I(f'v_lshlrev_b32 v98, 4, v{V_LANE}')
    I(f'v_xor_b32 v96, v96, v98')
    I(f's_lshl_b32 s66, s{S_W}, 10')
    I(f'v_and_b32 v101, 0x1fff, v97')
    I(f'v_lshrrev_b32 v98, 3, v{V_TID}')
    I(f'v_bfe_u32 v99, v98, 1, 3')
    I(f'v_and_b32 v100, 7, v{V_TID}')
    I(f'v_xor_b32 v99, v99, v100')
    I(f'v_lshlrev_b32 v99, 4, v99')
    I(f'v_lshl_add_u32 v99, v98, 7, v99')
    I(f's_mul_i32 s60, s3, {NB*128}')
    I(f'v_add_u32 v99, s60, v99')
    I(f'v_add_u32 v96, 16384, v96')
    I('s_waitcnt lgkmcnt(0)')
    I(f's_or_b32 s67, s2, s{S_W}')
    I('s_cmp_lg_u32 s67, 0')
    I('s_cbranch_scc1 L_NOTAG')
    I('s_memrealtime s[68:69]')
    I(f'v_mov_b32 v{X+2}, 0')
    I('s_waitcnt lgkmcnt(0)')
    I('s_or_b32 s68, s68, 1')
    I(f'v_mov_b32 v{X+3}, s68')
    I('s_mov_b64 exec, 1')
    I(f'global_store_dword v{X+2}, v{X+3}, s[56:57] sc1')
    I('s_mov_b64 exec, -1')
    L('L_NOTAG')
    def dst_loads():
        srd_off(S_DST, 90, 91, 's61', 's64')
        for k in range(4):
            I(f'buffer_load_dword v{64+k}, v{X+6 if k == 0 else X+7+k}, {sr4(S_DST)}, 0 offen' + ELD)
    def dma_loads():
        srd(S_WS, 8, 9, 132 * 128)
        I(f's_add_u32 m0, s66, {WG_}')
        srd(S_XS, 84, 85, N_NODES * 128)
        I(f'buffer_load_dwordx4 v97, {sr4(S_WS)}, 0 offen lds')
        I(f's_cmp_lt_u32 s{S_W}, 8')
        I(f's_cselect_b32 s{S_NTS}, s6, s4')
        I(f's_cselect_b32 s{S_NTS+1}, s7, s5')
        I(f's_mov_b32 s{S_NTS+2}, {64*128}')
        I(f's_mov_b32 s{S_NTS+3}, 0x00020000')
        I(f's_add_u32 m0, s66, {WV_}')
        I('s_nop 0')
        I(f'buffer_load_dwordx4 v101, {sr4(S_NTS)}, 0 offen lds')
        I(f's_cmp_lt_u32 s{S_W}, 8')
        I('s_cbranch_scc0 L_D3B')
        I(f's_add_u32 m0, s66, {XOWN}')
        I('s_nop 0')
        I(f'buffer_load_dwordx4 v99, {sr4(S_XS)}, 0 offen lds')
        I('s_branch L_D3C')
        L('L_D3B')
        I(f's_mov_b32 m0, {WG_ + 16384}')
        I('s_nop 0')
        I(f'buffer_load_dwordx4 v96, {sr4(S_WS)}, 0 offen lds')
        L('L_D3C')
    if opt('t0', 0):
        I(f'v_and_b32 v60, 15, v{V_LANE}')
        I(f'v_lshlrev_b32 v60, 20, v60')
        I(f'v_and_b32 v61, 1, v{V_LANE}')
        I(f'v_lshlrev_b32 v61, 20, v61')
        I(f'global_load_dword v62, v60, s[58:59]')
        I(f'global_load_dword v63, v61, s[10:11]')
    ORDER = opt('order', 2)
    if ORDER == 0:
        dma_loads()
    dst_loads()
    if ORDER == 2:
        dma_loads()
    F1 = opt('f1', 1)
    if F1:
        I('s_barrier')
    srd_off(S_SRC, 88, 89, 's61', 's64')
    LATE = opt('late', 0)
    def src_load(k):
        I(f'buffer_load_dword v{68+k}, v{X+6 if k == 0 else 43+k}, {sr4(S_SRC)}, 0 offen' + ELD)
    for k in range(1, 4):
        I(f'v_mov_b32 v{43+k}, v{X+7+k}')
    NS = opt('ns', 1) if LATE else 4
    for k in range(NS):
        src_load(k)
    srd_off(S_EA, 86, 87, 's62', 's65')
    I(f'v_lshlrev_b32 v92, 3, v{V_TID}')
    for k in range(1, 4):
        I(f'v_add_u32 v{92+k}, {8192*k}, v92')
    def e_load(k):
        I(f'buffer_load_dwordx2 v[{72+2*k}:{73+2*k}], v{92+k}, {sr4(S_EA)}, 0 offen' + ELD)
    NEE = opt('ne', 1) if LATE else opt('nee', 4)
    for k in range(NEE):
        e_load(k)
    if ORDER == 1:
        dma_loads()
    I(f's_mov_b64 {sp(S_DBG)}, s[56:57]')
    I(f's_add_u32 s{S_WSP}, s58, 0x{WSB:x}')
    I(f's_addc_u32 s{S_WSP+1}, s59, 0')
    stamp(1)
    srd(S_OUT, 10, 11, N_NODES * 128)
    I(f's_mul_i32 s{S_T}, s2, {CAP*4}')
    srd_off(S_RW, S_WSP, S_WSP + 1, f's{S_T}', CAP * 4)
    I(f's_lshl_b32 s{S_T}, s{S_T}, 1')
    I(f's_add_u32 s{S_T}, s{S_T}, 0x{WS_RE:x}')
    srd_off(S_RE, S_WSP, S_WSP + 1, f's{S_T}', CAP * 8)
    I(f's_lshl_b32 s{S_T}, s2, 11')
    I(f's_add_u32 s{S_T}, s{S_T}, 0x{WS_TAB:x}')
    srd_off(S_TAB, S_WSP, S_WSP + 1, f's{S_T}', (KREP - 1) * 0x80000 + 2048)
    I(f's_mul_i32 s{S_T}, s3, {NB*256}')
    I(f's_add_u32 s{S_T}, s{S_T}, 0x{WS_NT:x}')
    srd_off(S_NTS, S_WSP, S_WSP + 1, f's{S_T}', NB * 256)
    I(f's_add_u32 s{S_NTG}, s{S_WSP}, 0x{WS_NT:x}')
    I(f's_addc_u32 s{S_NTG+1}, s{S_WSP+1}, 0')
    I(f's_or_b32 s{S_NTG+1}, s{S_NTG+1}, 0x80000000')
    I(f's_mov_b32 s{S_NTG+2}, 0x400000')
    I(f's_mov_b32 s{S_NTG+3}, 0x00c00000')
    srd_off(S_DST, S_WSP, S_WSP + 1, '0x%x' % WS_RW, NWG * CAP * 4)
    if not LATE:
        srd_off(S_SRC, S_WSP, S_WSP + 1, '0x%x' % WS_RE, NWG * CAP * 8)
    for k in range(4):
        I(f'v_add_u32 v{X+1}, {1024*k}, v{V_TID}')
        I(f'v_cmp_gt_u32 {sp(S_MASK+2*k)}, s63, v{X+1}')
    I(f's_mov_b32 s{S_C}, 0x{f2u(2.0**-KH):x}')
    I(f's_mov_b32 s{S_C+1}, 0x{f2u(2.0**-KH):x}')
    I(f's_mov_b32 s{S_JB}, 0')
    I(f's_mov_b32 s{S_WID}, 128')
    I(f'v_and_b32 v{V_J4}, 7, v{V_LANE}')
    I(f'v_lshlrev_b32 v{V_J4}, 3, v{V_J4}')
    if CM:
        I(f'v_and_b32 v{X+1}, 56, v{V_LANE}')
        I(f's_and_b32 s{S_T}, s{S_W}, 1')
        I(f's_lshl_b32 s{S_T}, s{S_T}, 7')
        I(f's_lshr_b32 s{S_T+1}, s{S_W}, 1')
        I(f's_add_u32 s{S_T}, s{S_T}, s{S_T+1}')
    else:
        I(f'v_lshrrev_b32 v{X+1}, 3, v{V_LANE}')
        I(f's_lshl_b32 s{S_T}, s{S_W}, 4')
    I(f'v_add_u32 v{X+1}, s{S_T}, v{X+1}')
    I(f'v_lshlrev_b32 v{V_TAB+2}, 11, v{X+1}')
    I(f'v_mul_u32_u24 v{V_CB4}, {CAP*4}, v{X+1}')
    I(f'v_add_u32 v{V_CB4}, v{V_CB4}, v{V_J4}')
    I(f'v_and_b32 v{V_CH8}, 31, v{V_LANE}')
    I(f'v_lshlrev_b32 v{V_CH8}, 3, v{V_CH8}')
    I(f'v_add_u32 v{V_CHP}, {PT}, v{V_CH8}')
    phase0_addr()
    a5_const()
    if not F1:
        I(f's_waitcnt vmcnt({8 + NEE if ORDER == 0 else 0})')
        I('s_barrier')
    stamp(2)
    def late_loads():
        if LATE:
            for k in range(NS, 4):
                src_load(k)
        for k in range(NEE, 4):
            e_load(k)
        if not (LATE and TP):
            I(f'v_mov_b32 v12, 0')
            I(f'global_load_dword v10, v12, {sp(S_DBG)} sc1')
        if TCH:
            I(f'v_lshlrev_b32 v13, 13, v{V_LANE}')
            I(f'buffer_load_dword v60, v13, {sr4(S_RW)}, 0 offen')
            I(f'buffer_load_dword v61, v13, {sr4(S_RE)}, 0 offen')
            I(f'buffer_load_dword v62, v13, {sr4(S_TAB)}, 0 offen')
            I(f'buffer_load_dword v63, v13, {sr4(S_NTS)}, 0 offen')
        srd_off(S_EA, S_WSP, S_WSP + 1, '0x%x' % WS_TAB, 0x80000 + NWG * 128)
        if LATE:
            srd_off(S_SRC, S_WSP, S_WSP + 1, '0x%x' % WS_RE, NWG * CAP * 8)
    if not LATE:
        late_loads()
    elif TP:
        I(f'v_mov_b32 v12, 0')
        I(f'global_load_dword v10, v12, {sp(S_DBG)} sc1')
    if not F1:
        phase0a()
    I(f's_mov_b32 s{S_T}, -{NB}')
    I(f'v_mov_b32 v{X+1}, 4')
    BN, WD, RK = 28, 32, 36
    for k in range(4):
        I(f's_waitcnt vmcnt({((3 + NS + NEE + TP if ORDER == 0 else 6 + NS + NEE + TP) if LATE else (12 if ORDER == 0 else 15) + TCH) - k})')
        I(f's_mov_b64 exec, {sp(S_MASK+2*k)}')
        if k == 3:
            I('s_cbranch_execz L_B1')
        I(f'v_mul_u32_u24 v{BN+k}, 21400, v{64+k}')
        I(f'v_lshrrev_b32 v{BN+k}, 20, v{BN+k}')
        I(f'v_mad_i32_i24 v{WD+k}, v{BN+k}, s{S_T}, v{64+k}')
        I(f'v_lshlrev_b32 v{BN+k}, 2, v{BN+k}')
        I(f'ds_add_rtn_u32 v{RK+k}, v{BN+k}, v{X+1} offset:{HIST}')
        I(f'v_lshlrev_b32 v{WD+k}, 26, v{WD+k}')
    L('L_B1')
    I('s_mov_b64 exec, -1')
    if LATE:
        late_loads()
    I(f'v_add_u32 v{X+1}, {NTI}, v{X}')
    stamp(3)
    I({0: 's_waitcnt lgkmcnt(0)', 1: 's_waitcnt vmcnt(1) lgkmcnt(0)', 2: f's_waitcnt vmcnt({9 + TCH}) lgkmcnt(0)'}[ORDER])
    I('s_barrier')
    stamp(4)
    if not F1:
        I(f'ds_read_b128 v[112:115], v{X+1}')
    I(f's_cmp_lg_u32 s{S_W}, 0')
    I('s_cbranch_scc1 L_NOSCAN')
    I(f'ds_read_b128 v[96:99], v{X} offset:{HIST}')
    I('s_waitcnt lgkmcnt(0)')
    for k in range(4):
        I(f'v_add_u32 v{108+k}, 4, v{96+k}')
        I(f'v_and_b32 v{108+k}, -8, v{108+k}')
    I('v_add_u32 v101, v108, v109')
    I('v_add_u32 v102, v101, v110')
    I('v_add_u32 v103, v102, v111')
    I('v_mov_b32 v104, v103')
    wave_scan(104)
    I(f'v_readlane_b32 s{S_T+4}, v104, 63')
    I('v_sub_u32 v104, v104, v103')
    I(f'v_mov_b32 v100, {MISC+8}')
    I(f'v_mov_b32 v105, s{S_T+4}')
    I('ds_write_b32 v100, v105')
    I('v_add_u32 v105, v104, v108')
    I('v_add_u32 v106, v104, v101')
    I('v_add_u32 v107, v104, v102')
    I(f'ds_write_b128 v{X}, v[104:107] offset:{HBASE}')
    for k in range(4):
        I(f'v_lshl_or_b32 v{108+k}, v{96+k}, 16, v{104+k}')
    I(f'ds_write_b128 v{X}, v[108:111] offset:{HIST}')
    L('L_NOSCAN')
    if F1:
        phase0a()
    I('s_waitcnt lgkmcnt(0)')
    if not F1:
        I(f'buffer_store_dwordx4 v[112:115], v{X}, {sr4(S_NTS)}, 0 offen' + SC)
    if T1:
        I(f's_mul_i32 s{S_T+4}, s3, {NB*128}')
        I(f'v_mov_b32 v60, s{S_T+4}')
        I(f'buffer_load_dword v61, v60, {sr4(S_OUT)}, 0 offen')
    if not SRCL:
        I(f's_waitcnt vmcnt({4 + TCH + T1 if LATE else 6 - F1 + TCH + T1})')
        for k in range(4):
            I(f'v_lshl_or_b32 v{WD+k}, v{68+k}, 3, v{WD+k}')
    I('s_barrier')
    stamp(5)
    if F1:
        I(f'ds_read_b128 v[112:115], v{X+1}')
    for k in range(4):
        I(f's_mov_b64 exec, {sp(S_MASK+2*k)}')
        I(f'ds_read_b32 v{BN+k}, v{BN+k} offset:{HBASE}')
    if F1:
        I('s_mov_b64 exec, -1')
        I('s_waitcnt lgkmcnt(4)')
        I(f'buffer_store_dwordx4 v[112:115], v{X}, {sr4(S_NTS)}, 0 offen' + SC)
    if SRCL == 1:
        I(f's_waitcnt vmcnt({5 + TCH + T1})')
        for k in range(4):
            I(f'v_lshl_or_b32 v{WD+k}, v{68+k}, 3, v{WD+k}')
            if BANDS:
                I(f'v_lshrrev_b32 v{68+k}, 11, v{68+k}')
                I(f'v_lshl_or_b32 v{WD+k}, v{68+k}, 23, v{WD+k}')
    if SRCL < 2:
        I(f's_waitcnt vmcnt({2 + TCH + T1})')
    for k in range(4):
        I(f's_mov_b64 exec, {sp(S_MASK+2*k)}')
        if k == 3:
            I('s_cbranch_execz L_B2')
        if SRCL == 2:
            assert LATE and not TCH and not T1
            order_ = [f's{j}' for j in range(NS)] + [f'e{j}' for j in range(NEE)] + ['tag'] * TP + [f's{j}' for j in range(NS, 4)] + [f'e{j}' for j in range(NEE, 4)] + ['tag'] * (1 - TP) + ['nt']
            need_ = max(order_.index(f's{k}'), order_.index(f'e{k}'))
            I(f's_waitcnt vmcnt({len(order_) - 1 - need_}) lgkmcnt({3 - k + 2*k})')
            I(f'v_lshl_or_b32 v{WD+k}, v{68+k}, 3, v{WD+k}')
        else:
            I(f's_waitcnt lgkmcnt({3 - k + 2*k})')
        I(f'v_add_u32 v{RK+k}, v{BN+k}, v{RK+k}')
        I(f'v_add_u32 v{BN+k}, v{RK+k}, v{RK+k}')
        I(f'ds_write_b32 v{RK+k}, v{WD+k} offset:{STGW}')
        I(f'ds_write_b64 v{BN+k}, v[{72+2*k}:{73+2*k}] offset:{STGE}')
    L('L_B2')
    I('s_mov_b64 exec, -1')
    I(f'v_mov_b32 v13, {MISC+8}')
    I(f'ds_read_b32 v13, v13')
    I(f'v_add_u32 v{X+2}, 16384, v{X}')
    I(f'v_lshlrev_b32 v12, 3, v{V_LANE}')
    I('s_waitcnt lgkmcnt(0)')
    I(f'v_readfirstlane_b32 s{S_T}, v13')
    I('s_barrier')
    I(f's_add_u32 s{S_T}, s{S_T}, 127')
    I(f's_and_b32 s{S_RW+2}, s{S_T}, -128')
    I(f's_lshl_b32 s{S_RE+2}, s{S_RW+2}, 1')
    stamp(6)
    if opt('early', 0):
        I(f'ds_read_b64 v[92:93], v12 offset:{HIST}')
        I(f'ds_read_b64 v[94:95], v12 offset:{HIST+512}')
        I(f'v_lshlrev_b32 v60, 4, v{V_LANE}')
        I('s_waitcnt lgkmcnt(0)')
        for k in range(4):
            I(f'v_or_b32 v{120+2*k}, s{S_TAG2}, v{92+k}')
            I(f'v_mov_b32 v{121+2*k}, s{S_TAG}')
        I(f's_cmp_lg_u32 s{S_W}, 0')
        I('s_cbranch_scc1 L_EARLY')
        I(f'buffer_store_dwordx4 v[120:123], v60, {sr4(S_TAB)}, 0 offen' + SC)
        I(f'buffer_store_dwordx4 v[124:127], v60, {sr4(S_TAB)}, 0 offen offset:1024' + SC)
        L('L_EARLY')
    I(f'ds_read_b128 v[64:67], v{X} offset:{STGW}')
    I(f'ds_read_b128 v[68:71], v{X} offset:{STGE}')
    I(f'ds_read_b128 v[72:75], v{X} offset:{STGE+16384}')
    I(f'ds_read_b64 v[92:93], v12 offset:{HIST}')
    I(f'ds_read_b64 v[94:95], v12 offset:{HIST+512}')
    I('s_waitcnt lgkmcnt(4)')
    I(f'buffer_store_dwordx4 v[64:67], v{X}, {sr4(S_RW)}, 0 offen' + SC)
    I(f'v_mov_b32 v62, v{X}')
    I(f'v_mov_b32 v63, v{X+2}')
    I('s_waitcnt vmcnt(2) lgkmcnt(0)')
    I(f'v_readfirstlane_b32 s{S_TAG}, v10')
    I(f's_mov_b32 s{S_T}, 0x40000')
    L('L_TAGP')
    I(f's_cmp_lg_u32 s{S_TAG}, 0')
    I('s_cbranch_scc1 L_TAGD')
    I(f'v_mov_b32 v12, 0')
    I(f'global_load_dword v10, v12, {sp(S_DBG)} sc1')
    I('s_waitcnt vmcnt(0)')
    I(f'v_readfirstlane_b32 s{S_TAG}, v10')
    I(f's_sub_u32 s{S_T}, s{S_T}, 1')
    I('s_cbranch_scc1 L_END')
    I('s_branch L_TAGP')
    L('L_TAGD')
    I(f's_mul_i32 s{S_TAG2}, s{S_TAG}, 0x9e3779b1')
    I(f's_and_b32 s{S_TAG2}, s{S_TAG2}, 0x{TAGM:x}')
    for k in range(4):
        I(f'v_or_b32 v{120+2*k}, s{S_TAG2}, v{92+k}')
        I(f'v_mov_b32 v{121+2*k}, s{S_TAG}')
    pre = opt('pre', 'x').replace('0', '')
    def piece(c):
        if c == 'x':
            zregs()
            zero_range(EXTRA, 16384, X + 2, X)
            fill_desca()
        elif c == 'b':
            phase0b()
        elif c == 'c':
            phase0c()
    for c in pre:
        piece(c)
    I(f'v_lshlrev_b32 v60, 4, v{V_LANE}')
    stamp(7)
    I('s_waitcnt vmcnt(0)')
    I('s_barrier')
    I(f's_cmp_lg_u32 s{S_W}, 0')
    I('s_cbranch_scc1 L_POLL0')
    I(f'buffer_store_dwordx4 v[120:123], v60, {sr4(S_TAB)}, 0 offen' + SC)
    I(f'buffer_store_dwordx4 v[124:127], v60, {sr4(S_TAB)}, 0 offen offset:1024' + SC)
    L('L_POLL0')
    I(f'buffer_store_dwordx4 v[68:71], v62, {sr4(S_RE)}, 0 offen' + SC)
    I(f'buffer_store_dwordx4 v[72:75], v63, {sr4(S_RE)}, 0 offen' + SC)
    stamp(8)
    mid = opt('mid', 'bc').replace('0', '')
    def piece2(c):
        if c == 'f':
            fill_words()
            zregs()
            zero_range(LE, CNT - LE, X + 2, X)
        else:
            piece(c)
    for c in mid:
        piece2(c)
    I(f's_lshl_b32 s{S_T+1}, s3, 3')
    I(f'v_add_u32 v76, s{S_T+1}, v{V_TAB+2}')
    I(f'v_add_u32 v77, {RSTEP*2048}, v76')
    I(f'v_lshrrev_b32 v{V_TAB+2}, 4, v{V_TAB+2}')
    I(f'v_add_u32 v{V_TAB+2}, 0x80000, v{V_TAB+2}')
    I(f'v_add_u32 v{V_TAB+3}, {RSTEP*128}, v{V_TAB+2}')
    I(f's_mul_i32 s{S_TAG3}, s{S_TAG}, 0x85ebca6b')
    I(f's_lshl_b32 s{S_T}, s2, 7')
    I(f's_add_u32 s{S_T}, s{S_T}, 0x80000')
    I(f'v_mov_b32 v60, s{S_T}')
    I(f'v_mov_b32 v62, s{S_TAG}')
    I(f'v_mov_b32 v63, s{S_TAG3}')
    for r in range(2):
        I(f's_mov_b64 {sp(S_MASK+2*r)}, -1')
    I('s_waitcnt vmcnt(0)')
    I('s_barrier')
    stamp(9)
    I(f's_cmp_lg_u32 s{S_W}, 0')
    I('s_cbranch_scc1 L_FLAG2')
    I('s_mov_b64 exec, 1')
    I(f'buffer_store_dwordx2 v[62:63], v60, {sr4(S_EA)}, 0 offen' + SC)
    I('s_mov_b64 exec, -1')
    L('L_FLAG2')
    EP = 1
    for r in range(2):
        I(f'buffer_load_dwordx2 {p(64+2*r)}, v{76+r}, {sr4(S_EA)}, 0 offen' + LSC)
    for c in 'xbcf':
        if c not in pre + mid:
            piece2(c)
    ptr_consts()
    I(f's_mov_b32 s{S_T}, 0x40000')
    I(f's_mov_b32 s{S_T+1}, 0x{TAGM:x}')
    if opt('ps', 0):
        I(f's_sleep {opt("ps", 0)}')
    if EP:
        I('s_branch L_POLLC')
    L('L_POLL')
    for r in range(2):
        I(f's_mov_b64 exec, {sp(S_MASK+2*r)}')
        I(f'buffer_load_dwordx2 {p(64+2*r)}, v{76+r}, {sr4(S_EA)}, 0 offen' + LSC)
    L('L_POLLC')
    for r in range(2):
        I(f's_waitcnt vmcnt({1-r})')
        I(f's_mov_b64 exec, {sp(S_MASK+2*r)}')
        I(f'v_xor_b32 v{V_TAB+r}, s{S_TAG2}, v{64+2*r}')
        I(f'v_xor_b32 v{65+2*r}, s{S_TAG}, v{65+2*r}')
        I(f'v_and_or_b32 v{65+2*r}, v{V_TAB+r}, s{S_T+1}, v{65+2*r}')
        I(f'v_cmp_ne_u32 {sp(S_MASK+2*r)}, 0, v{65+2*r}')
    I(f's_or_b64 {sp(S_T+2)}, {sp(S_MASK)}, {sp(S_MASK+2)}')
    I('s_cbranch_scc0 L_POLLED')
    I(f's_sub_u32 s{S_T}, s{S_T}, 1')
    I('s_cbranch_scc1 L_END')
    if opt('sleep', 0):
        I(f's_sleep {opt("sleep", 0)}')
    I('s_branch L_POLL')
    L('L_POLLED')
    I('s_mov_b64 exec, -1')
    stamp(10)
    def RB(s_): return 64 + 8 * (s_ >> 1)
    def MK(s_): return sp(S_MASK + 2 * s_)
    AD = X
    L('L_PASS')
    I(f'v_add_u32 v{X+10}, s{S_JB}, v{V_CB4}')
    I(f'v_add_u32 v{X+8}, s{S_JB}, v{V_J4}')
    SDW = 'src0_sel:DWORD src1_sel:WORD_1'
    for r in range(2):
        I(f'v_add_u32_sdwa v{X+r}, v{V_TAB+r}, v{X+10} dst_sel:DWORD dst_unused:UNUSED_PAD src0_sel:WORD_0 src1_sel:DWORD')
        I(f'v_cmp_lt_u32_sdwa {MK(2*r)}, v{X+8}, v{V_TAB+r} {SDW}')
        if r:
            I(f'v_add_u32 v{X+r}, {RSTEP*CAP*4}, v{X+r}')
        I(f'v_add_u32 v{96+r}, v{X+r}, v{X+r}')
        I(f's_mov_b64 exec, {MK(2*r)}')
        I(f'buffer_load_dwordx2 {p(RB(2*r)+4)}, v{X+r}, {sr4(S_DST)}, 0 offen' + LSC)
        I('s_mov_b64 exec, -1')
    I(f'v_add_u32 v{X+9}, s{S_WID}, v{X+8}')
    I(f'v_add_u32 v{X+10}, 4, v{X+8}')
    I(f's_cmp_eq_u32 s{S_WID}, 128')
    I(f's_cselect_b32 s{S_T}, 64, 0x10000')
    I(f'v_add_u32 v{X+8}, s{S_T}, v{X+8}')
    for r in range(2):
        I(f'v_cmp_lt_u32_sdwa {MK(4+2*r)}, v{X+8}, v{V_TAB+r} {SDW}')
        I(f'v_cmp_lt_u32_sdwa {MK(2*r+1)}, v{X+10}, v{V_TAB+r} {SDW}')
    I(f'v_add_u32 v{X+8}, 4, v{X+8}')
    for r in range(2):
        I(f's_mov_b64 exec, {MK(4+2*r)}')
        I(f'buffer_load_dwordx2 {p(RB(4+2*r)+4)}, v{X+r}, {sr4(S_DST)}, 0 offen offset:64' + LSC)
    I('s_mov_b64 exec, -1')
    PF3 = opt('pf3', 0)
    if PF3:
        nt_prefetch(60, 49 - PF3, PF3, 63)
    BE = opt('be', 0)
    if BE:
        for r in range(2):
            I(f'buffer_load_dwordx2 {p(100+2*r)}, v{V_TAB+2+r}, {sr4(S_EA)}, 0 offen' + LSC)
    for r in range(2):
        I(f'v_cmp_lt_u32_sdwa {MK(5+2*r)}, v{X+8}, v{V_TAB+r} {SDW}')
    I(f'v_cmp_lt_u32_sdwa vcc, v{X+9}, v{V_TAB} {SDW}')
    I(f'v_cmp_lt_u32_sdwa {sp(S_T)}, v{X+9}, v{V_TAB+1} {SDW}')
    I(f'v_mov_b32 v{X+8}, 4')
    I(f's_or_b64 vcc, vcc, {sp(S_T)}')
    I(f's_cbranch_scc0 L_NOMORE')
    I(f'v_mov_b32 v{X+9}, {MISC}')
    I(f'ds_write_b32 v{X+9}, v{X+8}')
    L('L_NOMORE')
    stamp(11)
    e('    ; count')
    for s_ in range(8):
        if s_ >= 4:
            I(f's_mov_b64 exec, {MK(s_)}')
            I(f's_cbranch_execz L_C{s_}')
        if s_ % 2 == 0:
            I(f's_waitcnt vmcnt({3 + 2 * BE + (1 if PF3 else 0) - s_ // 2})')
        if s_ < 4:
            I(f's_mov_b64 exec, {MK(s_)}')
        I(f'v_lshrrev_b32 v{AD+s_}, 21, v{RB(s_)+4+(s_&1)}')
        if opt('safe', 0):
            I(f'v_and_b32 v{AD+s_}, 0x7fc, v{AD+s_}')
        I(f'ds_add_rtn_u32 v{RB(s_)+6+(s_&1)}, v{AD+s_}, v{X+8} offset:{CNT2}')
        if s_ >= 4:
            L(f'L_C{s_}')
    I('s_mov_b64 exec, -1')
    def check2():
        I(f'v_xor_b32 v100, s{S_TAG}, v100')
        I(f'v_xor_b32 v101, s{S_TAG3}, v101')
        I(f'v_xor_b32 v102, s{S_TAG}, v102')
        I(f'v_xor_b32 v103, s{S_TAG3}, v103')
        I('v_or3_b32 v100, v100, v101, v102')
        I('v_or_b32 v100, v100, v103')
        I('v_cmp_ne_u32 vcc, 0, v100')
    def e_loads():
        for hf in range(2):
            for r in range(2):
                I(f's_mov_b64 exec, {MK(4*hf+2*r)}')
                I(f'buffer_load_dwordx4 {vr(RB(4*hf+2*r),4)}, v{96+r}, {sr4(S_SRC)}, 0 offen offset:{128*hf}' + LSC)
        I('s_mov_b64 exec, -1')
    assert not BE
    if BE:
        I('s_waitcnt vmcnt(0)')
        check2()
        I('s_nop 0')
        I('s_cbranch_vccnz L_NOTYET')
        e_loads()
        I(f's_mov_b32 s{S_CNT}, 0')
        I('s_branch L_EDONE')
        L('L_NOTYET')
    for r in range(2):
        I(f'buffer_load_dwordx2 {p(100+2*r)}, v{V_TAB+2+r}, {sr4(S_EA)}, 0 offen' + LSC)
    L('L_EDONE')
    I(f'v_lshlrev_b32 v{X+8}, 2, v{V_LANE}')
    I(f'v_mov_b32 v{X+9}, {MISC}')
    I(f's_mov_b32 s{S_T+2}, 0x1fff8')
    I('s_waitcnt lgkmcnt(0)')
    I('s_barrier')
    stamp(12)
    PFPOS = opt('pfpos', 4)
    def do_pf(late=False):
        if NPF and late == (PFPOS == 4):
            PFN = opt('pfn', 8)
            I(f's_lshr_b32 s{S_T+7}, s2, 3')
            I(f's_lshl_b32 s{S_T+7}, s{S_T+7}, 4')
            I(f's_add_u32 s{S_T+7}, s{S_T+7}, s{S_W}')
            I(f's_mul_i32 s{S_T+7}, s{S_T+7}, {PFN*128}')
            I(f'v_lshlrev_b32 v60, 7, v{V_LANE}')
            I(f'v_add_u32 v60, s{S_T+7}, v60')
            srd_off(S_NTS, S_WSP, S_WSP + 1, '0x%x' % WS_NT, NWG * NB * 256)
            I(f's_mov_b64 exec, 0x{(1 << PFN) - 1:x}')
            I(f'buffer_load_dword v62, v60, {sr4(S_NTS)}, 0 offen' + LSC)
            I('s_mov_b64 exec, -1')
    def poll2():
        I(f's_mov_b32 s{S_T+3}, 0x40000')
        L('L_POLL2')
        I('s_waitcnt vmcnt(0)')
        I(f'v_xor_b32 v100, s{S_TAG}, v100')
        I(f'v_xor_b32 v101, s{S_TAG3}, v101')
        I(f'v_xor_b32 v102, s{S_TAG}, v102')
        I(f'v_xor_b32 v103, s{S_TAG3}, v103')
        I('v_or3_b32 v100, v100, v101, v102')
        I('v_or_b32 v100, v100, v103')
        I('v_cmp_ne_u32 vcc, 0, v100')
        I(f's_sub_u32 s{S_T+3}, s{S_T+3}, 1')
        I('s_cbranch_scc1 L_END')
        I('s_cbranch_vccz L_POLLED2')
        for r in range(2):
            I(f'buffer_load_dwordx2 {p(100+2*r)}, v{V_TAB+2+r}, {sr4(S_EA)}, 0 offen' + LSC)
        I('s_branch L_POLL2')
        L('L_POLLED2')
        for hf in range(2):
            for r in range(2):
                I(f's_mov_b64 exec, {MK(4*hf+2*r)}')
                I(f'buffer_load_dwordx4 {vr(RB(4*hf+2*r),4)}, v{96+r}, {sr4(S_SRC)}, 0 offen offset:{128*hf}' + LSC)
        I('s_mov_b64 exec, -1')
        L('L_HAVEE')
    B2 = opt('b2', 2)
    if B2 == 0:
        poll2()
        do_pf()
    NG, GS, MI = X + 10, X + 11, X + 12
    I(f'v_lshlrev_b32 v98, 5, v{V_LANE}')
    I(f'ds_read_b128 v[104:107], v98 offset:{CNT2}')
    I(f'ds_read_b128 v[108:111], v98 offset:{CNT2+16}')
    I(f'ds_read_b32 v{X+9}, v{X+9}')
    I('s_waitcnt lgkmcnt(1)')
    I(f'v_add3_u32 v{NG}, v104, v105, v106')
    I(f'v_add3_u32 v{GS}, v107, v108, v109')
    I(f'v_add3_u32 v{NG}, v{NG}, v110, v111')
    I(f'v_add3_u32 v{NG}, v{NG}, v{GS}, 28')
    I(f'v_and_b32 v{NG}, 0xffffffe0, v{NG}')
    I(f'v_mov_b32 v{GS}, v{NG}')
    wave_scan(GS)
    I(f'v_readlane_b32 s{S_T}, v{GS}, 63')
    I(f'v_sub_u32 v{GS}, v{GS}, v{NG}')
    if B2 == 1:
        poll2()
        do_pf()
    I('s_waitcnt lgkmcnt(0)')
    I(f'v_readfirstlane_b32 s{S_MORE}, v{X+9}')
    I(f's_lshr_b32 s{S_T}, s{S_T}, 5')
    I(f's_cmp_eq_u32 s{S_WID}, 128')
    I(f's_cselect_b32 s{S_T+1}, {MAXG}, -1')
    I(f's_cmp_gt_u32 s{S_T}, s{S_T+1}')
    I('s_cbranch_scc1 L_OVERFLOW')
    def place(tag):
        I('s_waitcnt lgkmcnt(0)')
        I('s_barrier')
        for s_ in range(8):
            I(f's_mov_b64 exec, {MK(s_)}')
            I(f'v_add_u32 v{AD+s_}, v{AD+s_}, v{AD+s_}')
            I(f'ds_read_b64 {p(112+2*s_)}, v{AD+s_} offset:{BASE2}')
        if B2 == 3:
            I('s_mov_b64 exec, -1')
            poll2()
            do_pf()
        for s_ in range(8):
            wd, rk, ta = RB(s_) + 4 + (s_ & 1), RB(s_) + 6 + (s_ & 1), 112 + 2 * s_
            I(f's_mov_b64 exec, {MK(s_)}')
            if s_ >= 4:
                I(f's_cbranch_execz L_P{tag}{s_}')
            I(f's_waitcnt lgkmcnt({7 if s_ <= 4 else 11 - s_})')
            I(f'v_add_u32 v{ta}, v{ta}, v{rk}')
            I(f'v_sub_u32_sdwa v{rk}, v{ta}, v{ta+1} dst_sel:DWORD dst_unused:UNUSED_PAD src0_sel:DWORD src1_sel:WORD_1')
            I(f'v_and_b32 v{wd}, s{S_T+2}, v{wd}')
            I(f'v_min_u32 v{ta}, v{ta}, v{rk}')
            I(f'v_add_u32_sdwa v{ta}, v{ta}, v{ta+1} dst_sel:DWORD dst_unused:UNUSED_PAD src0_sel:DWORD src1_sel:WORD_0')
            I(f'v_add_u32 v{rk}, v{ta}, v{ta}')
            I(f'ds_write_b32 v{ta}, v{wd} offset:{LS}')
            if s_ >= 4:
                L(f'L_P{tag}{s_}')
        if PFPOS == 4:
            I('s_mov_b64 exec, -1')
            do_pf(True)
        for s_ in range(8):
            rk, ee = RB(s_) + 6 + (s_ & 1), RB(s_) + 2 * (s_ & 1)
            I(f's_mov_b64 exec, {MK(s_)}')
            if s_ >= 4:
                I(f's_cbranch_execz L_Q{tag}{s_}')
            if s_ % 2 == 0:
                I(f's_waitcnt vmcnt({3 - s_ // 2 + NPF})')
            I(f'ds_write_b64 v{rk}, {p(ee)} offset:{LE}')
            if s_ >= 4:
                L(f'L_Q{tag}{s_}')
        I('s_mov_b64 exec, -1')
    if PROF == 5:
        stamp(20)
    SWAP = opt('swap', 0)
    if SWAP:
        I(f's_bitcmp1_b32 s{S_W}, {SWAP}')
        I('s_cbranch_scc0 L_DFIRST')
        place('a')
        L('L_DFIRST')
    SB_, SR_, SG0 = S_T + 4, S_T + 5, S_T + 6
    I(f's_add_u32 s{S_T}, s{S_T}, 3')
    I(f's_lshr_b32 s{S_T}, s{S_T}, 2')
    I(f's_lshr_b32 s{SB_}, s{S_T}, 4')
    I(f's_and_b32 s{SR_}, s{S_T}, 15')
    I(f's_add_u32 s{S_T+1}, s{SB_}, 1')
    I(f'v_cvt_f32_u32 v{MI}, s{S_T+1}')
    I(f'v_cvt_f32_u32 v{MI+1}, s{SB_}')
    I(f'v_rcp_f32 v{MI}, v{MI}')
    I(f'v_rcp_f32 v{MI+1}, v{MI+1}')
    I(f's_mul_i32 s{SG0}, s{SR_}, s{S_T+1}')
    I(f's_lshl_b32 s{SG0}, s{SG0}, 2')
    I(f'v_lshrrev_b32 v{GS}, 5, v{GS}')
    I(f'v_mul_f32 v{MI}, 0x47800000, v{MI}')
    I(f'v_mul_f32 v{MI+1}, 0x47800000, v{MI+1}')
    I(f'v_lshrrev_b32 v{NG}, 5, v{NG}')
    I(f'v_cvt_u32_f32 v{MI}, v{MI}')
    I(f'v_cvt_u32_f32 v{MI+1}, v{MI+1}')
    I(f's_cmp_lt_u32 s{S_W}, s{SR_}')
    I(f's_cselect_b32 s{S_L}, s{S_T+1}, s{SB_}')
    I(f'v_add_u32 v{MI}, 2, v{MI}')
    I(f'v_add_u32 v{MI+1}, 2, v{MI+1}')
    I(f's_min_u32 s{S_T}, s{S_W}, s{SR_}')
    I(f's_mul_i32 s{S_T+3}, s{S_W}, s{SB_}')
    I(f's_add_u32 s{S_T+3}, s{S_T+3}, s{S_T}')
    I(f's_sub_u32 s{S_T+1}, 0, s{S_T+1}')
    I(f's_sub_u32 s{SB_}, 0, s{SB_}')
    I(f's_lshl_b32 s{SR_}, s{SR_}, 2')
    D0, D1, D2, D3, NR = 60, 61, 62, 63, 98
    I(f's_cmp_lg_u32 s{S_W}, 15')
    I('s_cbranch_scc1 L_NOTAB')
    I(f'v_subrev_u32 v{D1}, s{SG0}, v{GS}')
    I(f'v_cmp_gt_u32 vcc, s{SG0}, v{GS}')
    I(f'v_mul_u32_u24 v{D2}, v{GS}, v{MI}')
    I(f'v_mul_u32_u24 v{D3}, v{D1}, v{MI+1}')
    I(f'v_lshrrev_b32 v{D2}, 16, v{D2}')
    I(f'v_lshrrev_b32 v{D3}, 16, v{D3}')
    I(f'v_mad_i32_i24 v{D0}, v{D2}, s{S_T+1}, v{GS}')
    I(f'v_mad_i32_i24 v{D1}, v{D3}, s{SB_}, v{D1}')
    I(f'v_mov_b32 v{D2}, s{S_T+1}')
    I(f'v_mov_b32 v{D3}, s{SB_}')
    I(f'v_cndmask_b32 v{D0}, v{D1}, v{D0}, vcc')
    I(f'v_cndmask_b32 v{D2}, v{D3}, v{D2}, vcc')
    I('v_add_u32 v105, v105, v104')
    I(f'v_add_u32 v{D2}, v{D2}, v{D0}')
    I('v_add_u32 v106, v106, v105')
    I(f'v_sub_u32 v{D2}, 0, v{D2}')
    I('v_add_u32 v107, v107, v106')
    I(f'v_cmp_ne_u32 vcc, 0, v{D0}')
    I('v_add_u32 v108, v108, v107')
    I(f'v_cmp_lt_u32 {sp(S_EX)}, v{D2}, v{NG}')
    I('v_add_u32 v109, v109, v108')
    I(f's_and_b64 vcc, vcc, {sp(S_EX)}')
    I('v_add_u32 v110, v110, v109')
    I(f'v_lshlrev_b32 v{D2}, 5, v{D2}')
    I(f'v_lshlrev_b32 v113, 5, v{GS}')
    I(f'v_cndmask_b32 v112, 0, v{D2}, vcc' if ROT else 'v_mov_b32 v112, 0')
    I(f'v_lshl_or_b32 v113, v{NG}, 21, v113')
    for k in range(1, 8):
        I(f'v_add_u32 v{112+2*k}, v112, v{103+k}')
        I(f'v_mov_b32 v{113+2*k}, v113')
    I(f'v_lshlrev_b32 v{D0}, 6, v{V_LANE}')
    I(f's_mov_b32 exec_hi, 0x1ffff')
    for q in range(4):
        I(f'ds_write_b128 v{D0}, v[{112+4*q}:{115+4*q}] offset:{BASE2+16*q}')
    I('s_mov_b64 exec, -1')
    L('L_NOTAB')
    I(f'v_lshlrev_b32 v{NR}, 8, v{V_LANE}')
    I(f'v_add_u32 v{NR+1}, {ACCN}, v{NR}')
    I(f's_mov_b32 s{S_T}, s{S_W}')
    L('L_DLOOP')
    I(f'v_cmp_lt_u32 vcc, s{S_T}, v{NG}')
    I('s_and_b64 exec, exec, vcc')
    I('s_cbranch_execz L_DEND')
    I(f'v_add_u32 v{D0}, s{S_T}, v{GS}')
    I(f'v_subrev_u32 v{D1}, s{SG0}, v{D0}')
    I(f'v_cmp_gt_u32 vcc, s{SG0}, v{D0}')
    I(f'v_mul_u32_u24 v{D2}, v{D0}, v{MI}')
    I(f'v_mul_u32_u24 v{D3}, v{D1}, v{MI+1}')
    I(f'v_lshrrev_b32 v{D2}, 16, v{D2}')
    I(f'v_lshrrev_b32 v{D3}, 16, v{D3}')
    I(f'v_mad_i32_i24 v{D0}, v{D2}, s{S_T+1}, v{D0}')
    I(f'v_mad_i32_i24 v{D1}, v{D3}, s{SB_}, v{D1}')
    I(f'v_add_u32 v{D3}, s{SR_}, v{D3}')
    I(f'v_cndmask_b32 v{D0}, v{D1}, v{D0}, vcc')
    I(f'v_cndmask_b32 v{D2}, v{D3}, v{D2}, vcc')
    I(f'v_cmp_le_u32 vcc, s{S_T}, v{D0}')
    I(f'v_lshl_add_u32 v{D0}, v{D0}, 6, v{D2}')
    I(f'v_lshlrev_b32 v{D1}, 8, v{D2}')
    I(f'v_lshlrev_b32 v{D0}, 2, v{D0}')
    I(f'v_add_u32 v{D1}, {EXTRA}, v{D1}')
    I(f'v_add_u32 v{D3}, {DESCA}, v{D0}')
    I(f'v_cndmask_b32 v{D1}, v{D1}, v{NR+1}, vcc')
    I(f'ds_write_b32 v{D0}, v{NR} offset:{DESCP}')
    I(f'ds_write_b32 v{D3}, v{D1}')
    I(f's_add_u32 s{S_T+7}, s{S_T}, 1')
    I(f'v_cmp_eq_u32 vcc, s{S_T+7}, v{NG}')
    I(f's_and_saveexec_b64 {sp(S_EX)}, vcc')
    I(f'ds_write_b32 v{X+8}, v{D2} offset:{NINFO+256}')
    I(f's_mov_b64 exec, {sp(S_EX)}')
    I(f's_cmp_lg_u32 s{S_T}, 0')
    I('s_cbranch_scc1 L_DNF')
    I(f'ds_write_b32 v{X+8}, v{D2} offset:{NINFO}')
    L('L_DNF')
    I(f's_add_u32 s{S_T}, s{S_T}, 16')
    I('s_branch L_DLOOP')
    L('L_DEND')
    I('s_mov_b64 exec, -1')
    I(f's_lshl_b32 s{S_T}, s{S_T+3}, 7')
    I(f's_lshl_b32 s{S_T+1}, s{S_L}, 5')
    I(f'v_mov_b32 v{D0}, s{S_T}')
    I(f'v_mad_u32_u24 v{V_PS0}, v{V_PS1}, s{S_T+1}, v{D0}')
    I(f'v_add_u32 v{D0}, v{D0}, v{D0}')
    I(f'v_add_u32 v{V_PS1}, s{S_T+1}, v{V_PS0}')
    I(f'v_add_u32 v{V_PE}, v{V_PE}, v{D0}')
    I(f's_lshl_b32 s{S_T+1}, s{S_L}, 6')
    I(f'v_mad_u32_u24 v{V_PE}, v{V_VAP}, s{S_T+1}, v{V_PE}')
    if opt('safe', 0):
        I(f's_min_u32 s{S_L}, s{S_L}, 9')
        I(f's_mov_b32 s{S_MORE}, 0')
    I(f's_mov_b32 s{S_CNT}, s{S_L}')
    if B2 == 2:
        poll2()
        do_pf()
    if SWAP:
        I(f's_bitcmp1_b32 s{S_W}, {SWAP}')
        I('s_cbranch_scc1 L_PDONE')
    if PROF == 5:
        stamp(21)
    place('b')
    L('L_PDONE')
    stamp(13)
    I('s_waitcnt lgkmcnt(0)')
    I('s_barrier')
    stamp(14)
    I(f's_cmp_eq_u32 s{S_L}, 0')
    I('s_cbranch_scc1 L_FOLD')
    lg = Lg()
    FP = opt('fp', 0)
    if FP:
        for lvl in (3, 2, 1):
            I(f's_cmp_lt_u32 s{S_W}, {4 * (4 - lvl)}')
            I(f's_cbranch_scc0 L_FP{lvl}')
            I(f's_setprio {lvl}')
            I('s_branch L_FPD')
            L(f'L_FP{lvl}')
        L('L_FPD')
    s_reads(lg, 0)
    lg.op('dP', f'ds_read_b64 {p(V_VAP)}, v{V_PD}')
    lg.op('dA', f'ds_read_b64 {p(V_VAA[0])}, v{V_PD} offset:{DESCA-DESCP}')
    lg.op('e', f'ds_read_b64 {p(A5)}, v{V_PE}')
    lg.need('S0', 'S1', 'S2', 'S3')
    s_safe()
    STG_ = [int(x) for x in opt('stag', '0,0,0').split(',')]
    for gi, d in enumerate(STG_):
        if d:
            I(f's_cmp_ge_u32 s{S_W}, {4 * (gi + 1)}')
            I(f's_cbranch_scc0 L_ST{gi}')
            I(f's_sleep {d}')
            L(f'L_ST{gi}')
    for n in range(2):
        for i in range(16):
            I(gload(n, i))
        if n == 0 and FP == 2:
            I('s_setprio 0')
    s_reads(lg, 1)
    I(f'v_mov_b32 v{V_C8P}, v{V_CH8}')
    I(f'v_mov_b32 v{V_C8P+1}, v{V_CH8}')
    I(f'v_mov_b32 v{V_CPP}, v{V_CHP}')
    I(f'v_mov_b32 v{V_CPP+1}, v{V_CHP}')
    if M8:
        I(f'v_mov_b32 v{V_SCP}, 0x{f2u(2.0**KH):x}')
        I(f'v_mov_b32 v{V_SCP+1}, 0x{f2u(2.0**KH):x}')
    I(f's_mov_b32 s{S_BP0}, 64')
    I(f's_mov_b32 s{S_BP0+1}, 64')
    I(f's_mov_b32 s{S_BP1}, 128')
    I(f's_mov_b32 s{S_BP1+1}, 512')
    lg.need('dP', 'dA')
    va_add(V_VAP, V_VAA[0])
    lg.op('P0a', f'ds_read_b32 v{B5[0]+2}, v{V_VAP}')
    lg.op('P0b', f'ds_read_b32 v{B5[0]+3}, v{V_VAP+1}')
    lg.op('P1a', f'ds_read_b32 v{B5[1]+2}, v{V_VAP} offset:4')
    lg.op('P1b', f'ds_read_b32 v{B5[1]+3}, v{V_VAP+1} offset:4')
    I(f's_cmp_eq_u32 s{S_CNT}, 1')
    I(f's_cselect_b64 {sp(S_LDX)}, 0, {LDXV}')
    I('s_waitcnt lgkmcnt(0)')
    lg.q = []
    if opt('prio', 3):
        I('s_setprio 3')
    stamp(15)
    rstamp(28)
    half(lg, 0, 0, 0, False)
    if PROF == 4:
        stamp(19)
        lg.q = []
    state0 = list(lg.q)
    def step(par, uo):
        prio(f'm{par}', 1)
        half(lg, 1, par, uo)
        if PROF == 4:
            I('s_memtime s[98:99]')
            I(f's_sub_u32 s92, s{S_L}, s{S_CNT}')
            I(f's_add_u32 m0, s92, 20')
            I('s_waitcnt lgkmcnt(0)')
            I(f'v_writelane_b32 v{V_PROF}, s98, m0')
        I(f's_sub_u32 s{S_CNT}, s{S_CNT}, 1')
        I(f's_cmp_eq_u32 s{S_CNT}, 0')
        I(f's_cbranch_scc1 L_FIN{par}')
        I(f's_cmp_eq_u32 s{S_CNT}, 1')
        I(f's_cselect_b64 {sp(S_LDX)}, 0, {LDXV}')
        prio(f'{par}')
        half(lg, 0, par ^ 1, uo + 1)
    def loop_body():
        step(0, 0)
        step(1, 1)
        I(f'v_lshl_add_u64 {p(V_PS0)}, {p(V_PS0)}, 0, {sp(S_BP0)}')
        I(f'v_lshl_add_u64 {p(V_PE)}, {p(V_PE)}, 0, {sp(S_BP1)}')
        I('s_branch L_LOOP')
    mark = len(out)
    loop_body()
    del out[mark:]
    qb = list(lg.q)
    n = min(len(qb), len(state0))
    assert PROF == 4 or qb[len(qb)-n:] == state0[len(state0)-n:], (state0, qb)
    lg.q = list(qb if len(qb) >= len(state0) else state0)
    e('.p2align 3')
    L('L_LOOP')
    mark = len(out)
    loop_body()
    drop = opt('drop', '')
    if drop:
        body = out[mark:]
        keep = []
        for l in body:
            t = l.strip()
            if 'v' in drop and (t.startswith('buffer_load') or t.startswith('s_mov_b64 exec') or 'vmcnt' in t):
                continue
            if 'l' in drop and (t.startswith('ds_') or 'lgkmcnt' in t):
                continue
            if 'm' in drop and t.startswith('v_mfma'):
                continue
            if 'n' in drop and t.startswith('s_nop'):
                continue
            keep.append(l)
        out[mark:] = keep
    assert lg.q == qb, (lg.q, qb)
    print('loop entry queue', state0, 'back edge queue', qb, file=sys.stderr)
    for pr in range(2):
        L(f'L_FIN{pr}')
        if M8:
            I(f'v_pk_mul_f32 {p(V_T01N)}, {p(V_T01N)}, {p(V_T23D)}')
            I(f'v_pk_mul_f32 {p(V_T23D)}, {p(V_T01D)}, {p(V_T23D)}')
            I(f'v_pk_fma_f32 {p(V_T01N)}, {p(V_T23N)}, {p(V_T01D)}, {p(V_T01N)}')
            I(f'v_rcp_f32 v{V_T23D}, v{V_T23D}')
            I(f'v_rcp_f32 v{V_T23D+1}, v{V_T23D+1}')
            I('s_waitcnt lgkmcnt(0)')
            I(f'v_pk_fma_f32 {p(V_MB)}, {p(V_T01N)}, {p(V_T23D)}, {p(V_MB)}')
        else:
            for r_ in (V_T01D, V_T01D + 1, V_T23D, V_T23D + 1):
                I(f'v_rcp_f32 v{r_}, v{r_}')
            I('s_waitcnt lgkmcnt(0)')
            I(f'v_pk_fma_f32 {p(V_MB)}, {p(V_T01N)}, {p(V_T01D)}, {p(V_MB)}')
            I(f'v_pk_fma_f32 {p(V_MB)}, {p(V_T23N)}, {p(V_T23D)}, {p(V_MB)}')
        acc_write(Lg(), V_VAA[pr])
        if pr == 0:
            I('s_branch L_FOLD')
    L('L_FOLD')
    stamp(16)
    FL = opt('fl', 0)
    I(f'v_lshrrev_b32 v{X}, 4, v{V_TID}')
    I(f'v_and_b32 v{X+1}, 15, v{V_TID}')
    if FL:
        I(f'v_lshlrev_b32 v{X+6}, 3, v{X+1}')
        I(f'v_lshrrev_b32 v{X+2}, 3, v{X+1}')
        I(f'v_and_b32 v{X+1}, 7, v{X+1}')
        I(f'v_lshlrev_b32 v{X+1}, 5, v{X+1}')
        I(f'v_lshl_add_u32 v{X+1}, v{X+2}, 2, v{X+1}')
    else:
        I(f'v_lshlrev_b32 v{X+6}, 2, v{X+1}')
        I(f'v_lshlrev_b32 v{X+1}, 4, v{X+1}')
    I(f'v_lshl_add_u32 v{X+2}, v{X}, 8, v{X+1}')
    I(f'v_add_u32 v{X+2}, {ACCN}, v{X+2}')
    I(f'v_add_u32 v{X+1}, {EXTRA}, v{X+1}')
    def rd4(dst, ad):
        if FL:
            I(f'ds_read2_b32 v[{dst}:{dst+1}], v{ad} offset0:0 offset1:2')
            I(f'ds_read2_b32 v[{dst+2}:{dst+3}], v{ad} offset0:4 offset1:6')
        else:
            I(f'ds_read_b128 v[{dst}:{dst+3}], v{ad}')
    I(f'v_lshlrev_b32 v{X+3}, 2, v{X}')
    I(f's_mul_i32 s{S_T+4}, s3, {NB*128}')
    I(f'v_lshl_add_u32 v{X+6}, v{X}, 7, v{X+6}')
    I(f'v_add_u32 v{X+6}, s{S_T+4}, v{X+6}')
    I(f'v_mov_b32 v{X+7}, 0')
    I(f'ds_read_b32 v{X+4}, v{X+3} offset:{NINFO}')
    I(f'ds_read_b32 v{X+5}, v{X+3} offset:{NINFO+256}')
    I(f's_mov_b32 s{S_T+2}, 0x{f2u(2.0**-(SV+KH)):x}')
    I(f's_mov_b32 s{S_T+3}, 0x{f2u(-LOG2E * 2.0**-(SV+KH)):x}')
    I(f'v_cmp_gt_u32 vcc, {NB*16}, v{V_TID}')
    I('s_waitcnt vmcnt(0) lgkmcnt(0)')
    I('s_barrier')
    stamp(17)
    rstamp(29)
    if PROF:
        I(f'v_writelane_b32 v{V_PROF}, s{S_L}, 27')
    I(f's_and_saveexec_b64 {sp(S_EX)}, vcc')
    I('s_cbranch_execz L_FDONE')
    rd4(64, X + 2)
    I(f's_mov_b64 {sp(S_T)}, exec')
    L('L_FLOOP')
    I(f'v_cmp_lt_u32 vcc, v{X+4}, v{X+5}')
    I('s_and_b64 exec, exec, vcc')
    I('s_cbranch_execz L_FLEND')
    I(f'v_add_u32 v{X+4}, 1, v{X+4}')
    I(f'v_lshl_add_u32 v{X+7}, v{X+4}, 8, v{X+1}')
    rd4(72, X + 7)
    I('s_waitcnt lgkmcnt(0)')
    for k in range(4):
        I(f'v_add_f32 v{64+k}, v{64+k}, v{72+k}')
    I('s_branch L_FLOOP')
    L('L_FLEND')
    I(f's_mov_b64 exec, {sp(S_T)}')
    I('s_waitcnt lgkmcnt(0)')
    I(f's_cmp_lg_u32 s{S_MORE}, 0')
    I('s_cbranch_scc1 L_WB')
    for k in range(4):
        I(f'v_mul_f32 v{72+k}, s{S_T+3}, v{64+k}')
    for k in range(4):
        I(f'v_exp_f32 v{72+k}, v{72+k}')
    for k in range(4):
        I(f'v_mul_f32 v{64+k}, s{S_T+2}, v{64+k}')
    for k in range(4):
        I(f'v_add_f32 v{72+k}, 1.0, v{72+k}')
    for k in range(4):
        I(f'v_rcp_f32 v{72+k}, v{72+k}')
    I('s_nop 0')
    for k in range(4):
        I(f'v_mul_f32 v{64+k}, v{64+k}, v{72+k}')
    if FL:
        I('v_cvt_pk_bf16_f32 v80, v64, v65')
        I('v_cvt_pk_bf16_f32 v81, v66, v67')
        I(f'buffer_store_dwordx2 v[80:81], v{X+6}, {sr4(S_OUT)}, 0 offen' + OSC)
    else:
        I('v_cvt_pk_bf16_f32 v80, v64, v66')
        I('v_cvt_pk_bf16_f32 v81, v65, v67')
        I(f'buffer_store_dword v80, v{X+6}, {sr4(S_OUT)}, 0 offen' + OSC)
        I(f'buffer_store_dword v81, v{X+6}, {sr4(S_OUT)}, 0 offen offset:64' + OSC)
    stamp(18)
    prof_store()
    diag_end()
    I('s_endpgm')
    L('L_WB')
    if FL:
        I(f'ds_write2_b32 v{X+2}, v64, v65 offset0:0 offset1:2')
        I(f'ds_write2_b32 v{X+2}, v66, v67 offset0:4 offset1:6')
    else:
        I(f'ds_write_b128 v{X+2}, v[64:67]')
    L('L_FDONE')
    I('s_mov_b64 exec, -1')
    I(f's_cmp_eq_u32 s{S_MORE}, 0')
    I('s_cbranch_scc1 L_QUIT')
    I(f's_add_u32 s{S_JB}, s{S_JB}, s{S_WID}')
    I('s_branch L_REFILL')
    L('L_OVERFLOW')
    I(f's_mov_b32 s{S_WID}, 64')
    L('L_REFILL')
    I('s_waitcnt vmcnt(0) lgkmcnt(0)')
    I('s_barrier')
    fill_zero()
    fill_words()
    ptr_consts()
    I('s_waitcnt lgkmcnt(0)')
    I('s_barrier')
    I('s_branch L_PASS')
    L('L_QUIT')
    prof_store()
    L('L_END')
    I('s_endpgm')


DOC = """
"""
hdr = open('standalone__edge_featured_mpnn_egc__graph.s.ref').read().split('\n')
for line in hdr:
    if line.startswith('; Override'):
        break
    e(line)
e(f'; @launch grid=({NWG},1,1) block=(1024,1,1) lds={LDS_BYTES}')
e('.amdgcn_target "amdgcn-amd-amdhsa--gfx950"')
for line in DOC.strip().split('\n'):
    e(line)
e('.text')
gen()
e('.section .rodata,"a"')
e('.p2align 6')
e(f'.amdhsa_kernel {KNAME}')
e('  .amdhsa_next_free_vgpr 128')
e('  .amdhsa_next_free_sgpr 102')
e('  .amdhsa_accum_offset 128')
e('  .amdhsa_group_segment_fixed_size 0')
e('  .amdhsa_kernarg_size 80')
e('  .amdhsa_user_sgpr_count 2')
e('  .amdhsa_user_sgpr_kernarg_segment_ptr 1')
e('  .amdhsa_system_sgpr_workgroup_id_x 1')
e('  .amdhsa_float_denorm_mode_32 3')
e('.end_amdhsa_kernel')
open(sys.argv[1], 'w').write('\n'.join(x for x in out if x is not None) + '\n')
```

```python
import sys, struct

OPT = dict(a.split('=') for a in sys.argv[2:] if '=' in a)
def opt(name, default):
    return type(default)(OPT.get(name, default))

KNAME = 'standalone__edge_featured_mpnn_egc__graph_kernel'
N_NODES = 12500
E_EDGES = 800000
NB = 49
NWG = 256
CH = 3136
WS_RW = 0
WS_RE = 0x00400000
CAP = CH + 256
WS_TAB = 0x00B00000
WS_NT = 0x00C00000
WS_PROF = 0x01000000
M8 = opt('m8', 0)
if M8:
    KH, KEXP, SV = 13, 26, 0
else:
    KH, KEXP, SV = 31, 31, 30
LOG2E = 1.4426950408889634
SC = opt('sc', 'sc1')
SC = (' ' + SC.replace('+', ' ')) if SC != 'none' else ''
LSC = opt('lsc', 'sc1')
LSC = (' ' + LSC.replace('+', ' ')) if LSC != 'none' else ''
GSC = opt('gsc', 'sc1')
GSC = (' ' + GSC.replace('+', ' ')) if GSC != 'none' else ''
ELD = opt('eld', 'none')
ELD = (' ' + ELD.replace('+', ' ')) if ELD != 'none' else ''

def f2u(x):
    return struct.unpack('<I', struct.pack('<f', x))[0]

out = []
def e(s=''):
    out.append(s)
def I(s):
    out.append('    ' + s)
def L(name):
    out.append(name + ':')
def vr(a, n):
    return f'v[{a}:{a+n-1}]' if n > 1 else f'v{a}'
def sr4(a):
    return f's[{a}:{a+3}]'
def sp(a):
    return f's[{a}:{a+1}]'
def p(r):
    return f'v[{r}:{r+1}]'

def srd(d, lo, hi, nrec):
    I(f's_mov_b32 s{d}, s{lo}')
    I(f's_mov_b32 s{d+1}, s{hi}')
    I(f's_mov_b32 s{d+2}, {nrec}')
    I(f's_mov_b32 s{d+3}, 0x00020000')

def srd_off(d, lo, hi, off, nrec):
    I(f's_add_u32 s{d}, s{lo}, {off}')
    I(f's_addc_u32 s{d+1}, s{hi}, 0')
    I(f's_mov_b32 s{d+2}, {nrec}')
    I(f's_mov_b32 s{d+3}, 0x00020000')

def wave_scan(v):
    for sh in (1, 2, 4, 8):
        I('s_nop 1')
        I(f'v_add_u32_dpp v{v}, v{v}, v{v} row_shr:{sh} row_mask:0xf bank_mask:0xf')
    I('s_nop 1')
    I(f'v_add_u32_dpp v{v}, v{v}, v{v} row_bcast:15 row_mask:0xa bank_mask:0xf')
    I('s_nop 1')
    I(f'v_add_u32_dpp v{v}, v{v}, v{v} row_bcast:31 row_mask:0xc bank_mask:0xf')
    I('s_nop 1')

LS = 0
ZR = 18688
LE = 18688
CNT = 56064
MISC = 56320
BASET = 56576
NINFO = 56832
HIST = 57344
HBASE = 58368
DESCP = 59392
CNT2 = 61952
BASE2 = 64000
EXTRA = 67840
DESCA = 84224
PT = 86784
ACCN = 99328
WRAW = 111872
WG_, WV_, WU_ = WRAW, WRAW + 17408, WRAW + 25600
XOWN = WRAW + 33792
LDS_BYTES = XOWN + 8192
STGW = 0
STGE = CAP * 4
NTI = EXTRA
MAXG = 576
assert STGE + CAP * 8 <= CNT

V_TID, V_LANE = 0, 1
V_MA, V_MB = 2, 4
V_VAA = (6, 8)
V_VAP = 10
V_PS0, V_PS1, V_PE, V_PD, V_CH8, V_CHP = 12, 13, 14, 15, 16, 17
V_PROF = 18
V_TAB = 20
V_J4, V_CB4 = 24, 25
V_X = 26
V_T01D, V_T01N, V_T23D, V_T23N = 40, 42, 44, 46
B5 = (48, 52)
A5 = 56
V_TT = (60, 62)
G = (64, 80)
Z = 96
S = 112

S_XS, S_WS, S_DST, S_SRC, S_EA, S_RW, S_RE, S_TAB, S_NTS, S_NTG, S_OUT = 12, 16, 20, 24, 28, 32, 36, 40, 44, 48, 52
S_MASK = 56
S_W, S_L, S_CNT, S_JB, S_WID, S_MORE = 72, 73, 74, 75, 76, 77
S_C = 78
S_EX = 80
S_LDX = 82
S_T = 84
S_WSP = 94
S_DBG = 96
S_TAG, S_TAG2, S_TAG3 = 100, 101, 11
TAGM = 0xC003C003
TAGL = MISC + 64

NT2 = 2 if opt('touch', 0) else 0
LDXV = 0 if opt('noload', 0) else -1
NPFM = opt('npf', 4)
NPF = {0: 0, 1: 7, 2: 7, 3: 2, 4: 1, 5: 1}[NPFM]
NPF1 = NPF if NPFM in (1, 5) else 0
WSB = opt('wsb', 0) << 20
TCH = 4 if opt('touch', 0) else 0
T1 = opt('t1', 0)
OSC = opt('osc', 'nt')
OSC = (' ' + OSC.replace('+', ' ')) if OSC != 'none' else ''
KREP = opt('krep', 1)
assert KREP == 1
CM = opt('cm', 1)
RSTEP = 64 if CM else 8
SRCL = opt('srcl', 1)
TP = opt('tp', 1)
BANDS = opt('bands', 1)
ROT = opt('rot', 1)
TFLAG = opt('tflag', 1)
PROF = opt('prof', 0)
DIAG = opt('diag', -1)
def diag_end():
    if DIAG < 0:
        return
    I('s_memrealtime s[98:99]')
    I('s_waitcnt lgkmcnt(0)')
    I('v_readlane_b32 s92, v18, 1')
    I('v_readlane_b32 s93, v18, 0')
    I('s_nop 3')
    I('s_sub_u32 s92, s92, s93')
    I('s_lshr_b32 s92, s92, 3' if opt('dcyc', 0) else 's_lshl_b32 s92, s92, 2')
    I('s_mov_b32 s93, s98')
    lbl = f'L_DG{len(out)}'
    L(lbl)
    I('s_memrealtime s[98:99]')
    I('s_waitcnt lgkmcnt(0)')
    I('s_sub_u32 s98, s98, s93')
    I('s_cmp_lt_u32 s98, s92')
    I(f's_cbranch_scc1 {lbl}')
def stamp(i):
    if DIAG >= 0 and i in (opt('dfrom', 0), DIAG):
        I('s_memtime s[98:99]' if opt('dcyc', 0) else 's_memrealtime s[98:99]')
        I('s_waitcnt lgkmcnt(0)')
        if i == opt('dfrom', 0):
            I('v_writelane_b32 v18, s98, 0')
        if i == DIAG:
            I('v_writelane_b32 v18, s98, 1')
    if not PROF:
        return
    I('s_memtime s[98:99]')
    I('s_waitcnt lgkmcnt(0)')
    I(f'v_writelane_b32 v{V_PROF}, s98, {i}')
def rstamp(i):
    if not PROF:
        return
    I('s_memrealtime s[98:99]')
    I('s_waitcnt lgkmcnt(0)')
    I(f'v_writelane_b32 v{V_PROF}, s98, {i}')
def prof_store():
    if not PROF:
        return
    rstamp(31)
    if PROF == 3:
        I(f's_lshl_b32 s98, s2, 4')
        I(f's_add_u32 s98, s98, s{S_W}')
        I(f's_cmp_lg_u32 s98, {opt("pwave", 80)}')
        I('s_cbranch_scc1 L_END')
        I('s_mov_b64 exec, -1')
        I(f'v_readlane_b32 s98, v{V_PROF}, 0')
        I(f'v_readlane_b32 s99, v{V_PROF}, 30')
        I(f'v_readlane_b32 s{S_T}, v{V_PROF}, 31')
        I('s_nop 3')
        I(f's_sub_u32 s{S_T}, s{S_T}, s99')
        I(f's_add_u32 s{S_T}, s{S_T}, s98')
        I(f'v_writelane_b32 v{V_PROF}, s{S_T}, 9')
        I(f'v_subrev_u32 v{V_PROF}, s98, v{V_PROF}')
        I(f'v_mbcnt_lo_u32_b32 v{V_PROF+1}, -1, 0')
        I(f'v_lshlrev_b32 v{V_PROF+1}, 2, v{V_PROF+1}')
        I(f'v_add_u32 v{V_PROF+1}, -8, v{V_PROF+1}')
        I('s_mov_b64 exec, 0x3fff8')
        I(f'global_store_dword v{V_PROF+1}, v{V_PROF}, {sp(S_DBG)}')
        return
    I('s_mov_b64 exec, 0xffffffff')
    I(f's_add_u32 s{S_T}, s{S_WSP}, 0x{WS_PROF:x}')
    I(f's_addc_u32 s{S_T+1}, s{S_WSP+1}, 0')
    I(f'v_mbcnt_lo_u32_b32 v{V_PROF+1}, -1, 0')
    I(f'v_lshlrev_b32 v{V_PROF+1}, 2, v{V_PROF+1}')
    I(f's_lshl_b32 s98, s2, 4')
    I(f's_add_u32 s98, s98, s{S_W}')
    I(f's_lshl_b32 s98, s98, 7')
    I(f'v_add_u32 v{V_PROF+1}, s98, v{V_PROF+1}')
    I(f'global_store_dword v{V_PROF+1}, v{V_PROF}, {sp(S_T)}')

class Lg:
    def __init__(self):
        self.q = []
    def op(self, tag, text):
        I(text)
        self.q.append(tag)
    def need(self, *tags):
        idx = -1
        for t in tags:
            for i in range(len(self.q) - 1, -1, -1):
                if self.q[i] == t:
                    idx = max(idx, i)
                    break
        if idx < 0:
            return
        n = len(self.q) - 1 - idx
        assert n <= 15, (tags, n)
        I(f's_waitcnt lgkmcnt({n})')
        self.q = self.q[idx + 1:]

X = V_X

def zero_range(a, nbytes, zr, ad):
    k = 0
    base = a if a + nbytes <= 65536 + 16384 and a < 65536 - 3 * 16384 else None
    off = 0
    areg = ad
    if a + ((nbytes - 1) // 16384) * 16384 > 65535:
        I(f'v_add_u32 v{X+1}, {a}, v{ad}')
        areg = X + 1
        a0 = 0
    else:
        a0 = a
    while off < nbytes:
        n = min(16384, nbytes - off)
        if n < 16384:
            I(f'v_cmp_gt_u32 vcc, {n // 16}, v{V_TID}')
            I(f's_and_saveexec_b64 {sp(S_EX)}, vcc')
        I(f'ds_write_b128 v{areg}, v[{zr}:{zr+3}] offset:{a0 + off}')
        if n < 16384:
            I(f's_mov_b64 exec, {sp(S_EX)}')
        off += n

def zregs():
    I(f'v_lshlrev_b32 v{X}, 4, v{V_TID}')
    for k in range(4):
        I(f'v_mov_b32 v{X+2+k}, 0')

def fill_desca():
    I(f'v_and_b32 v{X+6}, 15, v{V_TID}')
    I(f'v_lshlrev_b32 v{X+6}, 10, v{X+6}')
    I(f'v_add_u32 v{X+6}, {EXTRA}, v{X+6}')
    for k in range(1, 4):
        I(f'v_add_u32 v{X+6+k}, {256*k}, v{X+6}')
    I(f'v_add_u32 v{X+1}, {DESCA}, v{X}')
    I(f'v_cmp_gt_u32 vcc, 160, v{V_TID}')
    I(f's_and_saveexec_b64 {sp(S_EX)}, vcc')
    I(f'ds_write_b128 v{X+1}, v[{X+6}:{X+9}]')
    I(f's_mov_b64 exec, {sp(S_EX)}')

def fill_zero():
    zregs()
    zero_range(ZR, 65536, X + 2, X)
    fill_desca()

def fill_words():
    I(f'v_lshlrev_b32 v{X}, 4, v{V_TID}')
    I(f'v_and_b32 v{X+2}, 7, v{V_TID}')
    I(f'v_lshlrev_b32 v{X+2}, 5, v{X+2}')
    I(f'v_add_u32 v{X+2}, {N_NODES*8}, v{X+2}')
    for k in range(1, 4):
        I(f'v_add_u32 v{X+2+k}, {8*k}, v{X+2}')
    I(f'ds_write_b128 v{X}, v[{X+2}:{X+5}] offset:{LS}')
    I(f'v_cmp_gt_u32 vcc, 144, v{V_TID}')
    I(f's_and_saveexec_b64 {sp(S_EX)}, vcc')
    I(f'ds_write_b128 v{X}, v[{X+2}:{X+5}] offset:{LS+16384}')
    I(f's_mov_b64 exec, {sp(S_EX)}')

V_C8P, V_CPP, V_SCP = 26, 28, 30
S_BP0, S_BP1 = 88, 90

def tail_ops(n):
    M = (V_MA, V_MB)[n]
    return [f'v_rcp_f32 v{V_T01D}, v{V_T01D}',
            f'v_rcp_f32 v{V_T01D+1}, v{V_T01D+1}',
            f'v_pk_fma_f32 {p(M)}, {p(V_T01N)}, {p(V_T01D)}, {p(M)}']

def acc_write(lg, va):
    lg.op('Wa', f'ds_write2_b32 v{va}, v{V_MA}, v{V_MB} offset0:0 offset1:1')
    lg.op('Wb', f'ds_write2_b32 v{va+1}, v{V_MA+1}, v{V_MB+1} offset0:0 offset1:1')

def acc_read(lg, va):
    lg.op('Ra', f'ds_read_b32 v{V_MA}, v{va}')
    lg.op('Rb', f'ds_read_b32 v{V_MA+1}, v{va+1}')
    lg.op('Rc', f'ds_read_b32 v{V_MB}, v{va} offset:4')
    lg.op('Rd', f'ds_read_b32 v{V_MB+1}, v{va+1} offset:4')

def va_add(vap, vaa):
    I(f'v_lshl_add_u64 {p(vap)}, {p(vap)}, 0, {p(V_CPP)}')
    I(f'v_lshl_add_u64 {p(vaa)}, {p(vaa)}, 0, {p(V_C8P)}')

def gload(n, i):
    return f'buffer_load_dword v{G[n]+i}, v{S + (i & 1) * 8 + (i >> 1)}, {sr4(S_NTG)}, 0 offen offset:{4*n}' + GSC

def s_safe():
    if opt('safe', 0):
        for i in range(16):
            I(f'v_and_b32 v{S+i}, 0x1fff8, v{S+i}')

def s_reads(lg, uo):
    lg.op('S0', f'ds_read_b128 {vr(S,4)}, v{V_PS0} offset:{uo*32}')
    lg.op('S1', f'ds_read_b128 {vr(S+4,4)}, v{V_PS0} offset:{uo*32+16}')
    lg.op('S2', f'ds_read_b128 {vr(S+8,4)}, v{V_PS1} offset:{uo*32}')
    lg.op('S3', f'ds_read_b128 {vr(S+12,4)}, v{V_PS1} offset:{uo*32+16}')

def half(lg, n, par, uo, with_tail=True):
    g = G[n]
    I('s_waitcnt vmcnt(16)')
    if n == 0:
        lg.need('P0a', 'P0b', 'e')
    else:
        lg.need('P1a', 'P1b')
    I(f'v_mfma_f32_32x32x16_bf16 {vr(Z,16)}, {vr(A5,4)}, {vr(B5[n],4)}, {vr(g,16)}')
    t = tail_ops(n ^ 1)
    va_prev, va_cur, va_nxt = V_VAA[par ^ 1], V_VAA[par], V_VAA[par ^ 1]
    sh = [f'v_lshlrev_b32 v{g+i}, 16, v{g+i}' for i in range(16)]
    ex = [f'v_exp_f32 v{Z+i}, v{Z+i} clamp' for i in range(16)]
    l3 = [f'v_pk_mul_f32 {p(V_T01N)}, {p(V_T01N)}, {p(V_T23D)}',
          f'v_pk_mul_f32 {p(V_T23D)}, {p(V_T01D)}, {p(V_T23D)}',
          f'v_pk_fma_f32 {p(V_T01N)}, {p(V_T23N)}, {p(V_T01D)}, {p(V_T01N)}',
          f'v_rcp_f32 v{V_T23D}, v{V_T23D}',
          f'v_rcp_f32 v{V_T23D+1}, v{V_T23D+1}',
          f'v_pk_fma_f32 {p((V_MA, V_MB)[n ^ 1])}, {p(V_T01N)}, {p(V_T23D)}, {p((V_MA, V_MB)[n ^ 1])}']
    if with_tail and not M8:
        for r_ in (V_T01D, V_T01D + 1, V_T23D, V_T23D + 1):
            I(f'v_rcp_f32 v{r_}, v{r_}')
    else:
        I('s_nop 3')
    if n == 1:
        lg.op('e', f'ds_read_b64 {p(A5)}, v{V_PE} offset:{(uo+1)*64}')
        lg.op('P1a', f'ds_read_b32 v{B5[1]+2}, v{V_VAP} offset:4')
        lg.op('P1b', f'ds_read_b32 v{B5[1]+3}, v{V_VAP+1} offset:4')
    else:
        lg.op('dP', f'ds_read_b64 {p(V_VAP)}, v{V_PD} offset:{(uo+1)*256}')
        I('s_nop 1')
    for op in sh[:8]:
        I(op)
    seq = []
    if with_tail and not M8:
        Mp = p((V_MA, V_MB)[n ^ 1])
        seq = ['NEED', f'v_pk_fma_f32 {Mp}, {p(V_T01N)}, {p(V_T01D)}, {Mp}', ex[0],
               f'v_pk_fma_f32 {Mp}, {p(V_T23N)}, {p(V_T23D)}, {Mp}', sh[8], 'ACC', ex[1], sh[9]]
    elif with_tail:
        seq = [l3[0], l3[1], ex[0], l3[2], l3[3], sh[8], l3[4], ex[1], sh[9], 'NEED', l3[5], 'ACC']
    else:
        seq = [ex[0], sh[8], ex[1], sh[9], 'ACC']
    for op in seq:
        if op == 'NEED':
            lg.need('Ra', 'Rb', 'Rc', 'Rd')
        elif op == 'ACC':
            if n == 0:
                if with_tail:
                    acc_write(lg, va_prev)
                acc_read(lg, va_cur)
                lg.op('dA', f'ds_read_b64 {p(va_nxt)}, v{V_PD} offset:{(uo+1)*256 + DESCA - DESCP}')
        else:
            I(op)
    for i in range(2, 12):
        I(ex[i])
        if 8 + i < 16:
            I(sh[8 + i])
        if n == 0 and i == 11:
            lg.need('dP', 'dA')
            va_add(V_VAP, va_nxt)
            lg.op('P0a', f'ds_read_b32 v{B5[0]+2}, v{V_VAP}')
            lg.op('P0b', f'ds_read_b32 v{B5[0]+3}, v{V_VAP+1}')
    for op in ex[12:]:
        I(op)
    for i in range(0, 16, 2):
        if M8:
            I(f'v_pk_fma_f32 {p(Z+i)}, {p(Z+i)}, {p(V_SCP)}, {sp(S_C)}')
        else:
            I(f'v_pk_add_f32 {p(Z+i)}, {p(Z+i)}, {sp(S_C)}')
    def T(k): return f'v_pk_mul_f32 {p(V_TT[k&1])}, {p(g+4*k)}, {p(Z+4*k+2)}'
    def DD(k): return f'v_pk_mul_f32 {p(Z+4*k+2)}, {p(Z+4*k)}, {p(Z+4*k+2)}'
    def NN(k): return f'v_pk_fma_f32 {p(Z+4*k)}, {p(g+4*k+2)}, {p(Z+4*k)}, {p(V_TT[k&1])}'
    for k0 in (0, 2):
        for op in (T(k0), T(k0 + 1), DD(k0), DD(k0 + 1), NN(k0), NN(k0 + 1)):
            I(op)
        if n == 0 and k0 == 0:
            lg.need('S0', 'S1', 'S2', 'S3')
            s_safe()
        I(f's_mov_b64 exec, {sp(S_LDX)}')
        for i in range(4 * k0, 4 * k0 + 8):
            I(gload(n, i))
        I('s_mov_b64 exec, -1')
    if n == 1:
        s_reads(lg, uo + 2)
    I(f'v_pk_mul_f32 {p(V_T01N)}, {p(Z)}, {p(Z+6)}')
    I(f'v_pk_mul_f32 {p(V_T23N)}, {p(Z+8)}, {p(Z+14)}')
    I(f'v_pk_mul_f32 {p(V_T01D)}, {p(Z+2)}, {p(Z+6)}')
    I(f'v_pk_mul_f32 {p(V_T23D)}, {p(Z+10)}, {p(Z+14)}')
    I(f'v_pk_fma_f32 {p(V_T01N)}, {p(Z+4)}, {p(Z+2)}, {p(V_T01N)}')
    I(f'v_pk_fma_f32 {p(V_T23N)}, {p(Z+12)}, {p(Z+10)}, {p(V_T23N)}')

PRIO = {
    3: {(3, 0): 2, (2, 0): 1, (1, 0): 0},
    5: {(2, 0): 2, (1, 0): 1, (1, 1): 0},
    6: {(3, 0): 2, (1, 0): 1, (1, 1): 0},
    7: {(2, 1): 2, (1, 0): 1, (1, 1): 0},
    8: {(4, 0): 2, (2, 0): 1, (1, 1): 0},
    9: {(3, 0): 2, (2, 1): 1, (1, 1): 0},
    10: {(5, 0): 2, (3, 0): 1, (1, 0): 0},
    11: {(5, 0): 2, (3, 0): 1, (1, 1): 0},
    12: {(4, 0): 2, (2, 0): 1, (1, 1): 0},
    13: {(5, 0): 2, (2, 0): 1, (1, 1): 0},
    0: {},
}[opt('prio', 9)]
def prio(tag, phase=0):
    for (t, ph), lvl in PRIO.items():
        if ph != phase:
            continue
        I(f's_cmp_eq_u32 s{S_CNT}, {t}')
        I(f's_cbranch_scc0 L_PR{tag}_{lvl}')
        I(f's_setprio {lvl}')
        L(f'L_PR{tag}_{lvl}')

def split_hilo(a, b, t0, t1):
    I(f'v_cvt_pk_bf16_f32 v{t0}, v{a}, v{b}')
    I(f'v_lshlrev_b32 v{t1}, 16, v{t0}')
    I(f'v_and_b32 v{t0}, 0xffff0000, v{t0}')
    I(f'v_sub_f32 v{a}, v{a}, v{t1}')
    I(f'v_sub_f32 v{b}, v{b}, v{t0}')
    I(f'v_cvt_pk_bf16_f32 v{a}, v{t1}, v{a}')
    I(f'v_cvt_pk_bf16_f32 v{b}, v{t0}, v{b}')

V_AA, V_AB, V_AD, V_AP = 6, 7, 8, 9
SA, SB, SD = 80, 96, 112

def phase0_addr():
    I(f's_and_b32 s{S_T}, s{S_W}, 3')
    I(f's_lshr_b32 s{S_T+1}, s{S_W}, 2')
    I(f'v_and_b32 v12, 15, v{V_LANE}')
    I(f'v_lshrrev_b32 v13, 4, v{V_LANE}')
    I(f'v_bfe_u32 v14, v{V_LANE}, 1, 3')
    I(f'v_xor_b32 v14, v14, v13')
    I(f'v_lshlrev_b32 v14, 4, v14')
    I(f'v_lshl_or_b32 v14, v12, 7, v14')
    I(f's_lshl_b32 s{S_T+2}, s{S_T}, 11')
    I(f'v_add_u32 v{V_AA}, s{S_T+2}, v14')
    I(f'v_bfe_u32 v14, v{V_LANE}, 2, 2')
    I(f'v_lshl_add_u32 v14, v13, 3, v14')
    I(f'v_lshlrev_b32 v14, 7, v14')
    I(f'v_and_b32 v15, 3, v{V_LANE}')
    I(f'v_lshl_add_u32 v14, v15, 3, v14')
    I(f's_lshl_b32 s{S_T+2}, s{S_T+1}, 5')
    I(f'v_or_b32 v14, s{S_T+2}, v14')
    I(f'v_and_b32 v15, 24, v{V_LANE}')
    I(f'v_lshlrev_b32 v15, 2, v15')
    I(f'v_xor_b32 v14, v14, v15')
    I(f'v_add_u32 v{V_AB}, {WRAW}, v14')
    I(f's_lshl_b32 s{S_T+2}, s{S_T}, 12')
    I(f'v_lshlrev_b32 v13, 10, v13')
    I(f'v_add_u32 v13, s{S_T+2}, v13')
    I(f's_lshl_b32 s{S_T+2}, s{S_T+1}, 6')
    I(f's_add_u32 s{S_T+2}, s{S_T+2}, {NTI}')
    I(f'v_lshl_add_u32 v{V_AD}, v12, 2, v13')
    I(f'v_add_u32 v{V_AD}, s{S_T+2}, v{V_AD}')
    I(f's_and_b32 s{S_T+2}, s{S_T+1}, 1')
    I(f's_lshl_b32 s{S_T+2}, s{S_T+2}, 7')
    I(f's_lshr_b32 s{S_T+3}, s{S_T+1}, 1')
    I(f's_lshl_b32 s{S_T+3}, s{S_T+3}, 2')
    I(f's_add_u32 s{S_T+2}, s{S_T+2}, s{S_T+3}')
    I(f's_add_u32 s{S_T+2}, s{S_T+2}, {PT}')
    I(f'v_lshl_add_u32 v{V_AP}, v12, 3, v13')
    I(f'v_add_u32 v{V_AP}, s{S_T+2}, v{V_AP}')

def b_reads(dst, off):
    for sg in range(2):
        for pp in range(2):
            I(f'ds_read_b64_tr_b16 {vr(dst+4*sg+2*pp,2)}, v{V_AB} offset:{off+sg*4096+pp*512}')

def mm16(d, b):
    I(f'v_mfma_f32_16x16x32_bf16 {vr(d,4)}, {vr(SA,4)}, {vr(b,4)}, 0')
    I(f'v_mfma_f32_16x16x32_bf16 {vr(d,4)}, {vr(SA+4,4)}, {vr(b+4,4)}, {vr(d,4)}')

def phase0a():
    I(f'v_add_u32 v12, {XOWN}, v{V_AA}')
    I(f'v_xor_b32 v13, 64, v{V_AA}')
    I(f'v_add_u32 v13, {XOWN}, v13')
    I(f'ds_read_b128 {vr(SA,4)}, v12')
    I(f'ds_read_b128 {vr(SA+4,4)}, v13')
    b_reads(SB, 8192)
    b_reads(SB + 8, WV_ - WRAW)
    I(f's_mov_b32 s{S_T+4}, 0x{f2u(-LOG2E):x}')
    I(f's_mov_b32 s{S_T+6}, 0x7fffffff')
    I(f's_mov_b32 s{S_T+7}, 0xffff0000')
    I('s_waitcnt lgkmcnt(4)')
    mm16(SD, SB)
    I('s_waitcnt lgkmcnt(0)')
    mm16(SD + 4, SB + 8)
    I('s_nop 4')
    for i in range(4):
        I(f'v_mul_f32 v{SD+i}, s{S_T+4}, v{SD+i}')
    for i in range(4):
        I(f'v_and_b32 v{SD+8+i}, s{S_T+6}, v{SD+i}')
    for i in range(4):
        if SV:
            I(f'v_mul_f32 v{SD+4+i}, 0x{f2u(2.0**SV):x}, v{SD+4+i}')
        I(f'v_add_u32 v{SD+8+i}, 0x8000, v{SD+8+i}')
    I(f'v_cvt_pk_bf16_f32 v{SD+4}, v{SD+4}, v{SD+5}')
    I(f'v_cvt_pk_bf16_f32 v{SD+6}, v{SD+6}, v{SD+7}')
    I(f'v_lshrrev_b32 v{SD+5}, 16, v{SD+4}')
    I(f'v_lshrrev_b32 v{SD+7}, 16, v{SD+6}')
    I(f'v_and_b32 v{SD+4}, 0xffff, v{SD+4}')
    I(f'v_and_b32 v{SD+6}, 0xffff, v{SD+6}')
    for i in range(4):
        I(f'v_sub_u32 v{SD+8+i}, v{SD+8+i}, v{SD+4+i} clamp')
    for i in range(4):
        I(f'v_and_or_b32 v{SD+8+i}, v{SD+8+i}, s{S_T+7}, v{SD+4+i}')
    for i in range(4):
        I(f'v_bfi_b32 v{SD+i}, s{S_T+6}, v{SD+8+i}, v{SD+i}')
        I(f'ds_write_b32 v{V_AD}, v{SD+i} offset:{i*256}')

def phase0b():
    b_reads(SB, 0)
    b_reads(SB + 8, WU_ - WRAW)
    I(f's_mov_b32 s{S_T+4}, 0x{f2u(-LOG2E):x}')
    I(f's_mov_b32 s{S_T+5}, 0x{f2u(2.0**(SV+KH)):x}')
    I(f'v_mov_b32 v13, 0x{f2u(-float(KEXP)):x}')
    I(f's_and_b32 s{S_T+6}, s{S_W}, 3')
    I('s_waitcnt lgkmcnt(4)')
    mm16(SD, SB)
    I('s_waitcnt lgkmcnt(0)')
    mm16(SD + 4, SB + 8)
    I('s_nop 4')
    for i in range(4):
        I(f'v_fma_f32 v{SD+i}, v{SD+i}, s{S_T+4}, v13')
    split_hilo(SD, SD + 1, 12, 13)
    split_hilo(SD + 2, SD + 3, 12, 13)
    for i in range(4):
        I(f'v_mul_f32 v{SD+4+i}, s{S_T+5}, v{SD+4+i}')
    I(f's_cmp_eq_u32 s{S_T+6}, 3')
    I(f's_cselect_b64 exec, 0xffff, -1')
    I(f'ds_write_b32 v{V_AP}, v{SD}')
    I(f'ds_write_b32 v{V_AP}, v{SD+4} offset:{ACCN-PT}')
    I(f's_cselect_b64 exec, 0, -1')
    for i in range(1, 4):
        I(f'ds_write_b32 v{V_AP}, v{SD+i} offset:{i*256}')
        I(f'ds_write_b32 v{V_AP}, v{SD+4+i} offset:{ACCN-PT+i*256}')
    I('s_mov_b64 exec, -1')

def phase0c():
    I(f'v_bfe_u32 v13, v{V_LANE}, 2, 2')
    I(f'v_lshlrev_b32 v13, 7, v13')
    I(f'v_bfe_u32 v15, v{V_LANE}, 4, 1')
    I(f'v_lshl_add_u32 v13, v15, 5, v13')
    I(f'v_and_b32 v15, 3, v{V_LANE}')
    I(f'v_lshl_add_u32 v13, v15, 3, v13')
    I(f'v_and_b32 v15, 8, v{V_LANE}')
    I(f'v_lshlrev_b32 v15, 2, v15')
    I(f'v_xor_b32 v13, v13, v15')
    I(f'v_add_u32 v13, {WG_ + 16384}, v13')
    I(f'ds_read_b64_tr_b16 v[96:97], v13')
    I(f'ds_read_b64_tr_b16 v[98:99], v13 offset:64')
    I(f's_mov_b32 s{S_T+4}, 0x{f2u(-LOG2E):x}')
    I(f'v_cmp_lt_u32 vcc, 31, v{V_LANE}')
    I('s_waitcnt lgkmcnt(0)')
    for m in range(4):
        I(f'v_lshlrev_b32 v{100+2*m}, 16, v{96+m}')
        I(f'v_and_b32 v{101+2*m}, 0xffff0000, v{96+m}')
    for j in range(8):
        I(f'v_mul_f32 v{100+j}, s{S_T+4}, v{100+j}')
    for m in range(4):
        dst = B5[m >> 1] + (m & 1)
        I(f'v_cvt_pk_bf16_f32 v{96+m}, v{100+2*m}, v{101+2*m}')
        I(f'v_lshlrev_b32 v12, 16, v{96+m}')
        I(f'v_and_b32 v13, 0xffff0000, v{96+m}')
        I(f'v_sub_f32 v12, v{100+2*m}, v12')
        I(f'v_sub_f32 v13, v{101+2*m}, v13')
        I(f'v_cvt_pk_bf16_f32 v12, v12, v13')
        I(f'v_cndmask_b32 v{dst}, v{96+m}, v12, vcc')

def a5_const():
    I(f'v_bfe_u32 v12, v{V_LANE}, 2, 1')
    I(f'v_lshrrev_b32 v13, 5, v{V_LANE}')
    I(f'v_xor_b32 v12, v12, v13')
    I(f'v_and_b32 v13, 1, v{V_LANE}')
    I(f'v_lshl_or_b32 v12, v12, 1, v13')
    I(f'v_mov_b32 v13, 0x3f803f80')
    I(f'v_cmp_eq_u32 vcc, 0, v12')
    I(f'v_cmp_eq_u32 {sp(S_T)}, 1, v12')
    I('s_nop 1')
    I(f'v_cndmask_b32 v{A5+2}, 0, v13, vcc')
    I(f'v_cndmask_b32 v{A5+3}, 0, v13, {sp(S_T)}')

def nt_prefetch(vt, first=0, nl=None, dst=96):
    if CM:
        I(f's_lshr_b32 s{S_T}, s2, 4')
        I(f's_lshl_b32 s{S_T+1}, s{S_W}, 4')
        I(f's_add_u32 s{S_T}, s{S_T}, s{S_T+1}')
    else:
        I(f's_lshr_b32 s{S_T}, s2, 4')
        I(f's_lshl_b32 s{S_T+1}, s{S_W}, 4')
        I(f's_add_u32 s{S_T}, s{S_T}, s{S_T+1}')
        I(f's_and_b32 s{S_T+1}, s{S_T}, 7')
        I(f's_lshl_b32 s{S_T+1}, s{S_T+1}, 5')
        I(f's_lshr_b32 s{S_T}, s{S_T}, 3')
        I(f's_add_u32 s{S_T}, s{S_T}, s{S_T+1}')
    if not opt('xmap', 1):
        I(f's_lshr_b32 s{S_T}, s2, 4')
        I(f's_lshl_b32 s{S_T+1}, s{S_W}, 4')
        I(f's_add_u32 s{S_T}, s{S_T}, s{S_T+1}')
    I(f's_lshl_b32 s{S_T}, s{S_T}, 1')
    I(f's_bfe_u32 s{S_T+1}, s2, 0x10003')
    I(f's_add_u32 s{S_T}, s{S_T}, s{S_T+1}')
    I(f's_mul_i32 s{S_T}, s{S_T}, {NB*128}')
    I(f's_add_u32 s{S_T}, s{S_T}, 0x{WS_NT:x}')
    srd_off(S_NTS, S_WSP, S_WSP + 1, f's{S_T}', NB * 128)
    if NPFM >= 3:
        I(f'v_lshlrev_b32 v{vt}, {7 if NPFM >= 4 else 6}, v{V_LANE}')
        I(f'v_add_u32 v{vt+1}, 4096, v{vt}')
        nl = opt("pfl", 6) if nl is None else nl
        I(f's_mov_b32 exec_lo, 0x{(((1 << nl) - 1) << first) & 0xffffffff:x}')
        I(f's_mov_b32 exec_hi, 0x{(((1 << nl) - 1) << first) >> 32:x}')
        for k in range(NPF):
            I(f'buffer_load_dword v{dst+k}, v{vt+k}, {sr4(S_NTS)}, 0 offen' + (LSC if opt('pfsc', 1) else ''))
        I('s_mov_b64 exec, -1')
        return
    I(f'v_lshlrev_b32 v{vt}, 4, v{V_LANE}')
    I(f'v_add_u32 v{vt+1}, 4096, v{vt}')
    for k in range(NPF):
        I(f'buffer_load_dwordx4 {vr(96+4*k,4)}, v{vt+(k>>2)}, {sr4(S_NTS)}, 0 offen offset:{(k&3)*1024}' + LSC)

def ptr_consts():
    I(f'v_lshrrev_b32 v{V_PS1}, 5, v{V_LANE}')
    I(f's_lshl_b32 s{S_T}, s{S_W}, 4')
    I(f's_add_u32 s{S_T}, s{S_T}, {DESCP}')
    I(f'v_lshlrev_b32 v{V_PD}, 3, v{V_PS1}')
    I(f'v_add_u32 v{V_PS1}, v{V_PS1}, v{V_PS1}')
    I(f'v_add_u32 v{V_PD}, s{S_T}, v{V_PD}')
    I(f'v_bfe_u32 v{V_VAP}, v{V_LANE}, 2, 1')
    I(f'v_and_b32 v{V_PE}, 1, v{V_LANE}')
    I(f'v_lshl_or_b32 v{V_VAP}, v{V_VAP}, 1, v{V_PE}')
    I(f'v_bfe_u32 v{V_PE}, v{V_LANE}, 3, 2')
    I(f'v_bfe_u32 v{V_PS0}, v{V_LANE}, 1, 1')
    I(f'v_lshl_or_b32 v{V_PE}, v{V_PE}, 1, v{V_PS0}')
    I(f'v_lshlrev_b32 v{V_PE}, 3, v{V_PE}')
    I(f'v_add_u32 v{V_PE}, {LE}, v{V_PE}')

def gen():
    e(f'.globl {KNAME}')
    e('.p2align 8')
    e(f'.type {KNAME},@function')
    L(KNAME)
    I(f's_cmp_ge_u32 s2, {NWG}')
    I('s_cbranch_scc1 L_END')
    I('s_load_dwordx8 s[84:91], s[0:1], 0')
    I('s_load_dwordx4 s[4:7], s[0:1], 32')
    I('s_load_dwordx4 s[8:11], s[0:1], 48')
    I('s_load_dwordx4 s[56:59], s[0:1], 64')
    if PROF:
        I(f'v_mov_b32 v{V_PROF}, 0')
    rstamp(30)
    stamp(0)
    zregs()
    zero_range(CNT, BASE2 - CNT, X + 2, X)
    I(f'v_lshlrev_b32 v{X+6}, 2, v{V_TID}')
    I(f's_mul_i32 s61, s2, {CH*4}')
    I(f's_mul_i32 s63, s2, {CH}')
    I(f's_sub_u32 s63, {E_EDGES}, s63')
    I(f's_min_u32 s63, s63, {CH}')
    I(f's_lshl_b32 s64, s63, 2')
    I(f'v_add_u32 v{X+8}, 4096, v{X+6}')
    I(f'v_add_u32 v{X+9}, 8192, v{X+6}')
    I(f'v_add_u32 v{X+10}, 12288, v{X+6}')
    I(f'v_lshrrev_b32 v{X+1}, 6, v{V_TID}')
    I(f'v_and_b32 v{V_LANE}, 63, v{V_TID}')
    I(f'v_readfirstlane_b32 s{S_W}, v{X+1}')
    I('s_and_b32 s3, s2, 7')
    I('s_lshl_b32 s3, s3, 5')
    I('s_lshr_b32 s60, s2, 3')
    I('s_add_u32 s3, s3, s60')
    if not opt('xmap', 1):
        I('s_mov_b32 s3, s2')
    I(f's_mul_i32 s62, s2, {CH*8}')
    I(f's_lshl_b32 s65, s63, 3')
    I(f'v_and_b32 v97, 0x50, v{V_TID}')
    I(f'v_lshlrev_b32 v96, 1, v97')
    I(f'v_or_b32 v97, v97, v96')
    I(f'v_and_b32 v97, 0x60, v97')
    I(f'v_xor_b32 v97, v97, v{X}')
    I(f'v_and_b32 v96, 0x20, v96')
    I(f'v_lshlrev_b32 v98, 4, v{V_LANE}')
    I(f'v_xor_b32 v96, v96, v98')
    I(f's_lshl_b32 s66, s{S_W}, 10')
    I(f'v_and_b32 v101, 0x1fff, v97')
    I(f'v_lshrrev_b32 v98, 3, v{V_TID}')
    I(f'v_bfe_u32 v99, v98, 1, 3')
    I(f'v_and_b32 v100, 7, v{V_TID}')
    I(f'v_xor_b32 v99, v99, v100')
    I(f'v_lshlrev_b32 v99, 4, v99')
    I(f'v_lshl_add_u32 v99, v98, 7, v99')
    I(f's_mul_i32 s60, s3, {NB*128}')
    I(f'v_add_u32 v99, s60, v99')
    I(f'v_add_u32 v96, 16384, v96')
    I('s_waitcnt lgkmcnt(0)')
    I(f's_or_b32 s67, s2, s{S_W}')
    I('s_cmp_lg_u32 s67, 0')
    I('s_cbranch_scc1 L_NOTAG')
    I('s_memrealtime s[68:69]')
    I(f'v_mov_b32 v{X+2}, 0')
    I('s_waitcnt lgkmcnt(0)')
    I('s_or_b32 s68, s68, 1')
    I(f'v_mov_b32 v{X+3}, s68')
    I('s_mov_b64 exec, 1')
    I(f'global_store_dword v{X+2}, v{X+3}, s[56:57] sc1')
    I('s_mov_b64 exec, -1')
    L('L_NOTAG')
    def dst_loads():
        srd_off(S_DST, 90, 91, 's61', 's64')
        for k in range(4):
            I(f'buffer_load_dword v{64+k}, v{X+6 if k == 0 else X+7+k}, {sr4(S_DST)}, 0 offen' + ELD)
    def dma_loads():
        srd(S_WS, 8, 9, 132 * 128)
        I(f's_add_u32 m0, s66, {WG_}')
        srd(S_XS, 84, 85, N_NODES * 128)
        I(f'buffer_load_dwordx4 v97, {sr4(S_WS)}, 0 offen lds')
        I(f's_cmp_lt_u32 s{S_W}, 8')
        I(f's_cselect_b32 s{S_NTS}, s6, s4')
        I(f's_cselect_b32 s{S_NTS+1}, s7, s5')
        I(f's_mov_b32 s{S_NTS+2}, {64*128}')
        I(f's_mov_b32 s{S_NTS+3}, 0x00020000')
        I(f's_add_u32 m0, s66, {WV_}')
        I('s_nop 0')
        I(f'buffer_load_dwordx4 v101, {sr4(S_NTS)}, 0 offen lds')
        I(f's_cmp_lt_u32 s{S_W}, 8')
        I('s_cbranch_scc0 L_D3B')
        I(f's_add_u32 m0, s66, {XOWN}')
        I('s_nop 0')
        I(f'buffer_load_dwordx4 v99, {sr4(S_XS)}, 0 offen lds')
        I('s_branch L_D3C')
        L('L_D3B')
        I(f's_mov_b32 m0, {WG_ + 16384}')
        I('s_nop 0')
        I(f'buffer_load_dwordx4 v96, {sr4(S_WS)}, 0 offen lds')
        L('L_D3C')
    if opt('t0', 0):
        I(f'v_and_b32 v60, 15, v{V_LANE}')
        I(f'v_lshlrev_b32 v60, 20, v60')
        I(f'v_and_b32 v61, 1, v{V_LANE}')
        I(f'v_lshlrev_b32 v61, 20, v61')
        I(f'global_load_dword v62, v60, s[58:59]')
        I(f'global_load_dword v63, v61, s[10:11]')
    ORDER = opt('order', 2)
    if ORDER == 0:
        dma_loads()
    dst_loads()
    if ORDER == 2:
        dma_loads()
    F1 = opt('f1', 1)
    if F1:
        I('s_barrier')
    srd_off(S_SRC, 88, 89, 's61', 's64')
    LATE = opt('late', 0)
    def src_load(k):
        I(f'buffer_load_dword v{68+k}, v{X+6 if k == 0 else 43+k}, {sr4(S_SRC)}, 0 offen' + ELD)
    for k in range(1, 4):
        I(f'v_mov_b32 v{43+k}, v{X+7+k}')
    NS = opt('ns', 1) if LATE else 4
    for k in range(NS):
        src_load(k)
    srd_off(S_EA, 86, 87, 's62', 's65')
    I(f'v_lshlrev_b32 v92, 3, v{V_TID}')
    for k in range(1, 4):
        I(f'v_add_u32 v{92+k}, {8192*k}, v92')
    def e_load(k):
        I(f'buffer_load_dwordx2 v[{72+2*k}:{73+2*k}], v{92+k}, {sr4(S_EA)}, 0 offen' + ELD)
    NEE = opt('ne', 1) if LATE else opt('nee', 4)
    for k in range(NEE):
        e_load(k)
    if ORDER == 1:
        dma_loads()
    I(f's_mov_b64 {sp(S_DBG)}, s[56:57]')
    I(f's_add_u32 s{S_WSP}, s58, 0x{WSB:x}')
    I(f's_addc_u32 s{S_WSP+1}, s59, 0')
    stamp(1)
    srd(S_OUT, 10, 11, N_NODES * 128)
    I(f's_mul_i32 s{S_T}, s2, {CAP*4}')
    srd_off(S_RW, S_WSP, S_WSP + 1, f's{S_T}', CAP * 4)
    I(f's_lshl_b32 s{S_T}, s{S_T}, 1')
    I(f's_add_u32 s{S_T}, s{S_T}, 0x{WS_RE:x}')
    srd_off(S_RE, S_WSP, S_WSP + 1, f's{S_T}', CAP * 8)
    I(f's_lshl_b32 s{S_T}, s2, 11')
    I(f's_add_u32 s{S_T}, s{S_T}, 0x{WS_TAB:x}')
    srd_off(S_TAB, S_WSP, S_WSP + 1, f's{S_T}', (KREP - 1) * 0x80000 + 2048)
    I(f's_mul_i32 s{S_T}, s3, {NB*256}')
    I(f's_add_u32 s{S_T}, s{S_T}, 0x{WS_NT:x}')
    srd_off(S_NTS, S_WSP, S_WSP + 1, f's{S_T}', NB * 256)
    I(f's_add_u32 s{S_NTG}, s{S_WSP}, 0x{WS_NT:x}')
    I(f's_addc_u32 s{S_NTG+1}, s{S_WSP+1}, 0')
    I(f's_or_b32 s{S_NTG+1}, s{S_NTG+1}, 0x80000000')
    I(f's_mov_b32 s{S_NTG+2}, 0x400000')
    I(f's_mov_b32 s{S_NTG+3}, 0x00c00000')
    srd_off(S_DST, S_WSP, S_WSP + 1, '0x%x' % WS_RW, NWG * CAP * 4)
    if not LATE:
        srd_off(S_SRC, S_WSP, S_WSP + 1, '0x%x' % WS_RE, NWG * CAP * 8)
    for k in range(4):
        I(f'v_add_u32 v{X+1}, {1024*k}, v{V_TID}')
        I(f'v_cmp_gt_u32 {sp(S_MASK+2*k)}, s63, v{X+1}')
    I(f's_mov_b32 s{S_C}, 0x{f2u(2.0**-KH):x}')
    I(f's_mov_b32 s{S_C+1}, 0x{f2u(2.0**-KH):x}')
    I(f's_mov_b32 s{S_JB}, 0')
    I(f's_mov_b32 s{S_WID}, 128')
    I(f'v_and_b32 v{V_J4}, 7, v{V_LANE}')
    I(f'v_lshlrev_b32 v{V_J4}, 3, v{V_J4}')
    if CM:
        I(f'v_and_b32 v{X+1}, 56, v{V_LANE}')
        I(f's_and_b32 s{S_T}, s{S_W}, 1')
        I(f's_lshl_b32 s{S_T}, s{S_T}, 7')
        I(f's_lshr_b32 s{S_T+1}, s{S_W}, 1')
        I(f's_add_u32 s{S_T}, s{S_T}, s{S_T+1}')
    else:
        I(f'v_lshrrev_b32 v{X+1}, 3, v{V_LANE}')
        I(f's_lshl_b32 s{S_T}, s{S_W}, 4')
    I(f'v_add_u32 v{X+1}, s{S_T}, v{X+1}')
    I(f'v_lshlrev_b32 v{V_TAB+2}, 11, v{X+1}')
    I(f'v_mul_u32_u24 v{V_CB4}, {CAP*4}, v{X+1}')
    I(f'v_add_u32 v{V_CB4}, v{V_CB4}, v{V_J4}')
    I(f'v_and_b32 v{V_CH8}, 31, v{V_LANE}')
    I(f'v_lshlrev_b32 v{V_CH8}, 3, v{V_CH8}')
    I(f'v_add_u32 v{V_CHP}, {PT}, v{V_CH8}')
    phase0_addr()
    a5_const()
    if not F1:
        I(f's_waitcnt vmcnt({8 + NEE if ORDER == 0 else 0})')
        I('s_barrier')
    stamp(2)
    def late_loads():
        if LATE:
            for k in range(NS, 4):
                src_load(k)
        for k in range(NEE, 4):
            e_load(k)
        if not (LATE and TP):
            I(f'v_mov_b32 v12, 0')
            I(f'global_load_dword v10, v12, {sp(S_DBG)} sc1')
        if TCH:
            I(f'v_lshlrev_b32 v13, 13, v{V_LANE}')
            I(f'buffer_load_dword v60, v13, {sr4(S_RW)}, 0 offen')
            I(f'buffer_load_dword v61, v13, {sr4(S_RE)}, 0 offen')
            I(f'buffer_load_dword v62, v13, {sr4(S_TAB)}, 0 offen')
            I(f'buffer_load_dword v63, v13, {sr4(S_NTS)}, 0 offen')
        srd_off(S_EA, S_WSP, S_WSP + 1, '0x%x' % WS_TAB, 0x80000 + NWG * 128)
        if LATE:
            srd_off(S_SRC, S_WSP, S_WSP + 1, '0x%x' % WS_RE, NWG * CAP * 8)
    if not LATE:
        late_loads()
    elif TP:
        I(f'v_mov_b32 v12, 0')
        I(f'global_load_dword v10, v12, {sp(S_DBG)} sc1')
    if not F1:
        phase0a()
    I(f's_mov_b32 s{S_T}, -{NB}')
    I(f'v_mov_b32 v{X+1}, 4')
    BN, WD, RK = 28, 32, 36
    for k in range(4):
        I(f's_waitcnt vmcnt({((3 + NS + NEE + TP if ORDER == 0 else 6 + NS + NEE + TP) if LATE else (12 if ORDER == 0 else 15) + TCH) - k})')
        I(f's_mov_b64 exec, {sp(S_MASK+2*k)}')
        if k == 3:
            I('s_cbranch_execz L_B1')
        I(f'v_mul_u32_u24 v{BN+k}, 21400, v{64+k}')
        I(f'v_lshrrev_b32 v{BN+k}, 20, v{BN+k}')
        I(f'v_mad_i32_i24 v{WD+k}, v{BN+k}, s{S_T}, v{64+k}')
        I(f'v_lshlrev_b32 v{BN+k}, 2, v{BN+k}')
        I(f'ds_add_rtn_u32 v{RK+k}, v{BN+k}, v{X+1} offset:{HIST}')
        I(f'v_lshlrev_b32 v{WD+k}, 26, v{WD+k}')
    L('L_B1')
    I('s_mov_b64 exec, -1')
    if LATE:
        late_loads()
    I(f'v_add_u32 v{X+1}, {NTI}, v{X}')
    stamp(3)
    I({0: 's_waitcnt lgkmcnt(0)', 1: 's_waitcnt vmcnt(1) lgkmcnt(0)', 2: f's_waitcnt vmcnt({9 + TCH}) lgkmcnt(0)'}[ORDER])
    I('s_barrier')
    stamp(4)
    if not F1:
        I(f'ds_read_b128 v[112:115], v{X+1}')
    I(f's_cmp_lg_u32 s{S_W}, 0')
    I('s_cbranch_scc1 L_NOSCAN')
    I(f'ds_read_b128 v[96:99], v{X} offset:{HIST}')
    I('s_waitcnt lgkmcnt(0)')
    for k in range(4):
        I(f'v_add_u32 v{108+k}, 4, v{96+k}')
        I(f'v_and_b32 v{108+k}, -8, v{108+k}')
    I('v_add_u32 v101, v108, v109')
    I('v_add_u32 v102, v101, v110')
    I('v_add_u32 v103, v102, v111')
    I('v_mov_b32 v104, v103')
    wave_scan(104)
    I(f'v_readlane_b32 s{S_T+4}, v104, 63')
    I('v_sub_u32 v104, v104, v103')
    I(f'v_mov_b32 v100, {MISC+8}')
    I(f'v_mov_b32 v105, s{S_T+4}')
    I('ds_write_b32 v100, v105')
    I('v_add_u32 v105, v104, v108')
    I('v_add_u32 v106, v104, v101')
    I('v_add_u32 v107, v104, v102')
    I(f'ds_write_b128 v{X}, v[104:107] offset:{HBASE}')
    for k in range(4):
        I(f'v_lshl_or_b32 v{108+k}, v{96+k}, 16, v{104+k}')
    I(f'ds_write_b128 v{X}, v[108:111] offset:{HIST}')
    L('L_NOSCAN')
    if F1:
        phase0a()
    I('s_waitcnt lgkmcnt(0)')
    if not F1:
        I(f'buffer_store_dwordx4 v[112:115], v{X}, {sr4(S_NTS)}, 0 offen' + SC)
    if T1:
        I(f's_mul_i32 s{S_T+4}, s3, {NB*128}')
        I(f'v_mov_b32 v60, s{S_T+4}')
        I(f'buffer_load_dword v61, v60, {sr4(S_OUT)}, 0 offen')
    if not SRCL:
        I(f's_waitcnt vmcnt({4 + TCH + T1 if LATE else 6 - F1 + TCH + T1})')
        for k in range(4):
            I(f'v_lshl_or_b32 v{WD+k}, v{68+k}, 3, v{WD+k}')
    I('s_barrier')
    stamp(5)
    if F1:
        I(f'ds_read_b128 v[112:115], v{X+1}')
    for k in range(4):
        I(f's_mov_b64 exec, {sp(S_MASK+2*k)}')
        I(f'ds_read_b32 v{BN+k}, v{BN+k} offset:{HBASE}')
    if F1:
        I('s_mov_b64 exec, -1')
        I('s_waitcnt lgkmcnt(4)')
        I(f'buffer_store_dwordx4 v[112:115], v{X}, {sr4(S_NTS)}, 0 offen' + SC)
    if SRCL == 1:
        I(f's_waitcnt vmcnt({5 + TCH + T1})')
        for k in range(4):
            I(f'v_lshl_or_b32 v{WD+k}, v{68+k}, 3, v{WD+k}')
            if BANDS:
                I(f'v_lshrrev_b32 v{68+k}, 11, v{68+k}')
                I(f'v_lshl_or_b32 v{WD+k}, v{68+k}, 23, v{WD+k}')
    if SRCL < 2:
        I(f's_waitcnt vmcnt({2 + TCH + T1})')
    for k in range(4):
        I(f's_mov_b64 exec, {sp(S_MASK+2*k)}')
        if k == 3:
            I('s_cbranch_execz L_B2')
        if SRCL == 2:
            assert LATE and not TCH and not T1
            order_ = [f's{j}' for j in range(NS)] + [f'e{j}' for j in range(NEE)] + ['tag'] * TP + [f's{j}' for j in range(NS, 4)] + [f'e{j}' for j in range(NEE, 4)] + ['tag'] * (1 - TP) + ['nt']
            need_ = max(order_.index(f's{k}'), order_.index(f'e{k}'))
            I(f's_waitcnt vmcnt({len(order_) - 1 - need_}) lgkmcnt({3 - k + 2*k})')
            I(f'v_lshl_or_b32 v{WD+k}, v{68+k}, 3, v{WD+k}')
        else:
            I(f's_waitcnt lgkmcnt({3 - k + 2*k})')
        I(f'v_add_u32 v{RK+k}, v{BN+k}, v{RK+k}')
        I(f'v_add_u32 v{BN+k}, v{RK+k}, v{RK+k}')
        I(f'ds_write_b32 v{RK+k}, v{WD+k} offset:{STGW}')
        I(f'ds_write_b64 v{BN+k}, v[{72+2*k}:{73+2*k}] offset:{STGE}')
    L('L_B2')
    I('s_mov_b64 exec, -1')
    I(f'v_mov_b32 v13, {MISC+8}')
    I(f'ds_read_b32 v13, v13')
    I(f'v_add_u32 v{X+2}, 16384, v{X}')
    I(f'v_lshlrev_b32 v12, 3, v{V_LANE}')
    I('s_waitcnt lgkmcnt(0)')
    I(f'v_readfirstlane_b32 s{S_T}, v13')
    I('s_barrier')
    I(f's_add_u32 s{S_T}, s{S_T}, 127')
    I(f's_and_b32 s{S_RW+2}, s{S_T}, -128')
    I(f's_lshl_b32 s{S_RE+2}, s{S_RW+2}, 1')
    stamp(6)
    if opt('early', 0):
        I(f'ds_read_b64 v[92:93], v12 offset:{HIST}')
        I(f'ds_read_b64 v[94:95], v12 offset:{HIST+512}')
        I(f'v_lshlrev_b32 v60, 4, v{V_LANE}')
        I('s_waitcnt lgkmcnt(0)')
        for k in range(4):
            I(f'v_or_b32 v{120+2*k}, s{S_TAG2}, v{92+k}')
            I(f'v_mov_b32 v{121+2*k}, s{S_TAG}')
        I(f's_cmp_lg_u32 s{S_W}, 0')
        I('s_cbranch_scc1 L_EARLY')
        I(f'buffer_store_dwordx4 v[120:123], v60, {sr4(S_TAB)}, 0 offen' + SC)
        I(f'buffer_store_dwordx4 v[124:127], v60, {sr4(S_TAB)}, 0 offen offset:1024' + SC)
        L('L_EARLY')
    I(f'ds_read_b128 v[64:67], v{X} offset:{STGW}')
    I(f'ds_read_b128 v[68:71], v{X} offset:{STGE}')
    I(f'ds_read_b128 v[72:75], v{X} offset:{STGE+16384}')
    I(f'ds_read_b64 v[92:93], v12 offset:{HIST}')
    I(f'ds_read_b64 v[94:95], v12 offset:{HIST+512}')
    I('s_waitcnt lgkmcnt(4)')
    I(f'buffer_store_dwordx4 v[64:67], v{X}, {sr4(S_RW)}, 0 offen' + SC)
    I(f'v_mov_b32 v62, v{X}')
    I(f'v_mov_b32 v63, v{X+2}')
    I('s_waitcnt vmcnt(2) lgkmcnt(0)')
    I(f'v_readfirstlane_b32 s{S_TAG}, v10')
    I(f's_mov_b32 s{S_T}, 0x40000')
    L('L_TAGP')
    I(f's_cmp_lg_u32 s{S_TAG}, 0')
    I('s_cbranch_scc1 L_TAGD')
    I(f'v_mov_b32 v12, 0')
    I(f'global_load_dword v10, v12, {sp(S_DBG)} sc1')
    I('s_waitcnt vmcnt(0)')
    I(f'v_readfirstlane_b32 s{S_TAG}, v10')
    I(f's_sub_u32 s{S_T}, s{S_T}, 1')
    I('s_cbranch_scc1 L_END')
    I('s_branch L_TAGP')
    L('L_TAGD')
    I(f's_mul_i32 s{S_TAG2}, s{S_TAG}, 0x9e3779b1')
    I(f's_and_b32 s{S_TAG2}, s{S_TAG2}, 0x{TAGM:x}')
    for k in range(4):
        I(f'v_or_b32 v{120+2*k}, s{S_TAG2}, v{92+k}')
        I(f'v_mov_b32 v{121+2*k}, s{S_TAG}')
    pre = opt('pre', 'x').replace('0', '')
    def piece(c):
        if c == 'x':
            zregs()
            zero_range(EXTRA, 16384, X + 2, X)
            fill_desca()
        elif c == 'b':
            phase0b()
        elif c == 'c':
            phase0c()
    for c in pre:
        piece(c)
    I(f'v_lshlrev_b32 v60, 4, v{V_LANE}')
    stamp(7)
    I('s_waitcnt vmcnt(0)')
    I('s_barrier')
    I(f's_cmp_lg_u32 s{S_W}, 0')
    I('s_cbranch_scc1 L_POLL0')
    I(f'buffer_store_dwordx4 v[120:123], v60, {sr4(S_TAB)}, 0 offen' + SC)
    I(f'buffer_store_dwordx4 v[124:127], v60, {sr4(S_TAB)}, 0 offen offset:1024' + SC)
    L('L_POLL0')
    I(f'buffer_store_dwordx4 v[68:71], v62, {sr4(S_RE)}, 0 offen' + SC)
    I(f'buffer_store_dwordx4 v[72:75], v63, {sr4(S_RE)}, 0 offen' + SC)
    stamp(8)
    mid = opt('mid', 'bc').replace('0', '')
    def piece2(c):
        if c == 'f':
            fill_words()
            zregs()
            zero_range(LE, CNT - LE, X + 2, X)
        else:
            piece(c)
    for c in mid:
        piece2(c)
    I(f's_lshl_b32 s{S_T+1}, s3, 3')
    I(f'v_add_u32 v76, s{S_T+1}, v{V_TAB+2}')
    I(f'v_add_u32 v77, {RSTEP*2048}, v76')
    I(f'v_lshrrev_b32 v{V_TAB+2}, 4, v{V_TAB+2}')
    I(f'v_add_u32 v{V_TAB+2}, 0x80000, v{V_TAB+2}')
    I(f'v_add_u32 v{V_TAB+3}, {RSTEP*128}, v{V_TAB+2}')
    I(f's_mul_i32 s{S_TAG3}, s{S_TAG}, 0x85ebca6b')
    I(f's_lshl_b32 s{S_T}, s2, 7')
    I(f's_add_u32 s{S_T}, s{S_T}, 0x80000')
    I(f'v_mov_b32 v60, s{S_T}')
    I(f'v_mov_b32 v62, s{S_TAG}')
    I(f'v_mov_b32 v63, s{S_TAG3}')
    for r in range(2):
        I(f's_mov_b64 {sp(S_MASK+2*r)}, -1')
    I('s_waitcnt vmcnt(0)')
    I('s_barrier')
    stamp(9)
    I(f's_cmp_lg_u32 s{S_W}, 0')
    I('s_cbranch_scc1 L_FLAG2')
    I('s_mov_b64 exec, 1')
    I(f'buffer_store_dwordx2 v[62:63], v60, {sr4(S_EA)}, 0 offen' + SC)
    I('s_mov_b64 exec, -1')
    L('L_FLAG2')
    EP = 1
    for r in range(2):
        I(f'buffer_load_dwordx2 {p(64+2*r)}, v{76+r}, {sr4(S_EA)}, 0 offen' + LSC)
    for c in 'xbcf':
        if c not in pre + mid:
            piece2(c)
    ptr_consts()
    I(f's_mov_b32 s{S_T}, 0x40000')
    I(f's_mov_b32 s{S_T+1}, 0x{TAGM:x}')
    if opt('ps', 0):
        I(f's_sleep {opt("ps", 0)}')
    if EP:
        I('s_branch L_POLLC')
    L('L_POLL')
    for r in range(2):
        I(f's_mov_b64 exec, {sp(S_MASK+2*r)}')
        I(f'buffer_load_dwordx2 {p(64+2*r)}, v{76+r}, {sr4(S_EA)}, 0 offen' + LSC)
    L('L_POLLC')
    for r in range(2):
        I(f's_waitcnt vmcnt({1-r})')
        I(f's_mov_b64 exec, {sp(S_MASK+2*r)}')
        I(f'v_xor_b32 v{V_TAB+r}, s{S_TAG2}, v{64+2*r}')
        I(f'v_xor_b32 v{65+2*r}, s{S_TAG}, v{65+2*r}')
        I(f'v_and_or_b32 v{65+2*r}, v{V_TAB+r}, s{S_T+1}, v{65+2*r}')
        I(f'v_cmp_ne_u32 {sp(S_MASK+2*r)}, 0, v{65+2*r}')
    I(f's_or_b64 {sp(S_T+2)}, {sp(S_MASK)}, {sp(S_MASK+2)}')
    I('s_cbranch_scc0 L_POLLED')
    I(f's_sub_u32 s{S_T}, s{S_T}, 1')
    I('s_cbranch_scc1 L_END')
    if opt('sleep', 0):
        I(f's_sleep {opt("sleep", 0)}')
    I('s_branch L_POLL')
    L('L_POLLED')
    I('s_mov_b64 exec, -1')
    stamp(10)
    def RB(s_): return 64 + 8 * (s_ >> 1)
    def MK(s_): return sp(S_MASK + 2 * s_)
    AD = X
    L('L_PASS')
    I(f'v_add_u32 v{X+10}, s{S_JB}, v{V_CB4}')
    I(f'v_add_u32 v{X+8}, s{S_JB}, v{V_J4}')
    SDW = 'src0_sel:DWORD src1_sel:WORD_1'
    for r in range(2):
        I(f'v_add_u32_sdwa v{X+r}, v{V_TAB+r}, v{X+10} dst_sel:DWORD dst_unused:UNUSED_PAD src0_sel:WORD_0 src1_sel:DWORD')
        I(f'v_cmp_lt_u32_sdwa {MK(2*r)}, v{X+8}, v{V_TAB+r} {SDW}')
        if r:
            I(f'v_add_u32 v{X+r}, {RSTEP*CAP*4}, v{X+r}')
        I(f'v_add_u32 v{96+r}, v{X+r}, v{X+r}')
        I(f's_mov_b64 exec, {MK(2*r)}')
        I(f'buffer_load_dwordx2 {p(RB(2*r)+4)}, v{X+r}, {sr4(S_DST)}, 0 offen' + LSC)
        I('s_mov_b64 exec, -1')
    I(f'v_add_u32 v{X+9}, s{S_WID}, v{X+8}')
    I(f'v_add_u32 v{X+10}, 4, v{X+8}')
    I(f's_cmp_eq_u32 s{S_WID}, 128')
    I(f's_cselect_b32 s{S_T}, 64, 0x10000')
    I(f'v_add_u32 v{X+8}, s{S_T}, v{X+8}')
    for r in range(2):
        I(f'v_cmp_lt_u32_sdwa {MK(4+2*r)}, v{X+8}, v{V_TAB+r} {SDW}')
        I(f'v_cmp_lt_u32_sdwa {MK(2*r+1)}, v{X+10}, v{V_TAB+r} {SDW}')
    I(f'v_add_u32 v{X+8}, 4, v{X+8}')
    for r in range(2):
        I(f's_mov_b64 exec, {MK(4+2*r)}')
        I(f'buffer_load_dwordx2 {p(RB(4+2*r)+4)}, v{X+r}, {sr4(S_DST)}, 0 offen offset:64' + LSC)
    I('s_mov_b64 exec, -1')
    PF3 = opt('pf3', 0)
    if PF3:
        nt_prefetch(60, 49 - PF3, PF3, 63)
    BE = opt('be', 0)
    if BE:
        for r in range(2):
            I(f'buffer_load_dwordx2 {p(100+2*r)}, v{V_TAB+2+r}, {sr4(S_EA)}, 0 offen' + LSC)
    for r in range(2):
        I(f'v_cmp_lt_u32_sdwa {MK(5+2*r)}, v{X+8}, v{V_TAB+r} {SDW}')
    I(f'v_cmp_lt_u32_sdwa vcc, v{X+9}, v{V_TAB} {SDW}')
    I(f'v_cmp_lt_u32_sdwa {sp(S_T)}, v{X+9}, v{V_TAB+1} {SDW}')
    I(f'v_mov_b32 v{X+8}, 4')
    I(f's_or_b64 vcc, vcc, {sp(S_T)}')
    I(f's_cbranch_scc0 L_NOMORE')
    I(f'v_mov_b32 v{X+9}, {MISC}')
    I(f'ds_write_b32 v{X+9}, v{X+8}')
    L('L_NOMORE')
    stamp(11)
    e('    ; count')
    for s_ in range(8):
        if s_ >= 4:
            I(f's_mov_b64 exec, {MK(s_)}')
            I(f's_cbranch_execz L_C{s_}')
        if s_ % 2 == 0:
            I(f's_waitcnt vmcnt({3 + 2 * BE + (1 if PF3 else 0) - s_ // 2})')
        if s_ < 4:
            I(f's_mov_b64 exec, {MK(s_)}')
        I(f'v_lshrrev_b32 v{AD+s_}, 21, v{RB(s_)+4+(s_&1)}')
        if opt('safe', 0):
            I(f'v_and_b32 v{AD+s_}, 0x7fc, v{AD+s_}')
        I(f'ds_add_rtn_u32 v{RB(s_)+6+(s_&1)}, v{AD+s_}, v{X+8} offset:{CNT2}')
        I(f'v_and_b32 v{RB(s_)+4+(s_&1)}, 0x1fff8, v{RB(s_)+4+(s_&1)}')
        if s_ >= 4:
            L(f'L_C{s_}')
    I('s_mov_b64 exec, -1')
    def check2():
        I(f'v_xor_b32 v100, s{S_TAG}, v100')
        I(f'v_xor_b32 v101, s{S_TAG3}, v101')
        I(f'v_xor_b32 v102, s{S_TAG}, v102')
        I(f'v_xor_b32 v103, s{S_TAG3}, v103')
        I('v_or3_b32 v100, v100, v101, v102')
        I('v_or_b32 v100, v100, v103')
        I('v_cmp_ne_u32 vcc, 0, v100')
    def e_loads():
        for hf in range(2):
            for r in range(2):
                I(f's_mov_b64 exec, {MK(4*hf+2*r)}')
                I(f'buffer_load_dwordx4 {vr(RB(4*hf+2*r),4)}, v{96+r}, {sr4(S_SRC)}, 0 offen offset:{128*hf}' + LSC)
        I('s_mov_b64 exec, -1')
    assert not BE
    if BE:
        I('s_waitcnt vmcnt(0)')
        check2()
        I('s_nop 0')
        I('s_cbranch_vccnz L_NOTYET')
        e_loads()
        I(f's_mov_b32 s{S_CNT}, 0')
        I('s_branch L_EDONE')
        L('L_NOTYET')
    for r in range(2):
        I(f'buffer_load_dwordx2 {p(100+2*r)}, v{V_TAB+2+r}, {sr4(S_EA)}, 0 offen' + LSC)
    L('L_EDONE')
    I(f'v_lshlrev_b32 v{X+8}, 2, v{V_LANE}')
    I(f'v_mov_b32 v{X+9}, {MISC}')
    I(f's_mov_b32 s{S_T+2}, 0x1fff8')
    I('s_waitcnt lgkmcnt(0)')
    I('s_barrier')
    stamp(12)
    PFPOS = opt('pfpos', 4)
    def do_pf(late=False):
        if NPF and late == (PFPOS == 4):
            PFN = opt('pfn', 5)
            I(f's_lshr_b32 s{S_T+7}, s2, 3')
            I(f's_lshl_b32 s{S_T+7}, s{S_T+7}, 4')
            I(f's_add_u32 s{S_T+7}, s{S_T+7}, s{S_W}')
            I(f's_mul_i32 s{S_T+7}, s{S_T+7}, {PFN*128}')
            I(f'v_lshlrev_b32 v60, 7, v{V_LANE}')
            I(f'v_add_u32 v60, s{S_T+7}, v60')
            srd_off(S_NTS, S_WSP, S_WSP + 1, '0x%x' % WS_NT, NWG * NB * 256)
            I(f's_mov_b64 exec, 0x{(1 << PFN) - 1:x}')
            I(f'buffer_load_dword v62, v60, {sr4(S_NTS)}, 0 offen' + LSC)
            I('s_mov_b64 exec, -1')
    def poll2():
        I(f's_mov_b32 s{S_T+3}, 0x40000')
        L('L_POLL2')
        I('s_waitcnt vmcnt(0)')
        I(f'v_xor_b32 v100, s{S_TAG}, v100')
        I(f'v_xor_b32 v101, s{S_TAG3}, v101')
        I(f'v_xor_b32 v102, s{S_TAG}, v102')
        I(f'v_xor_b32 v103, s{S_TAG3}, v103')
        I('v_or3_b32 v100, v100, v101, v102')
        I('v_or_b32 v100, v100, v103')
        I('v_cmp_ne_u32 vcc, 0, v100')
        I(f's_sub_u32 s{S_T+3}, s{S_T+3}, 1')
        I('s_cbranch_scc1 L_END')
        I('s_cbranch_vccz L_POLLED2')
        for r in range(2):
            I(f'buffer_load_dwordx2 {p(100+2*r)}, v{V_TAB+2+r}, {sr4(S_EA)}, 0 offen' + LSC)
        I('s_branch L_POLL2')
        L('L_POLLED2')
        for hf in range(2):
            for r in range(2):
                I(f's_mov_b64 exec, {MK(4*hf+2*r)}')
                I(f'buffer_load_dwordx4 {vr(RB(4*hf+2*r),4)}, v{96+r}, {sr4(S_SRC)}, 0 offen offset:{128*hf}' + LSC)
        I('s_mov_b64 exec, -1')
        L('L_HAVEE')
    B2 = opt('b2', 2)
    if B2 == 0:
        poll2()
        do_pf()
    NG, GS, MI = X + 10, X + 11, X + 12
    if opt('tprio', 1):
        I(f's_cmp_lg_u32 s{S_W}, 15')
        I('s_cbranch_scc1 L_TP')
        I('s_setprio 2')
        L('L_TP')
    I(f'v_lshlrev_b32 v98, 5, v{V_LANE}')
    I(f'ds_read_b128 v[104:107], v98 offset:{CNT2}')
    I(f'ds_read_b128 v[108:111], v98 offset:{CNT2+16}')
    I(f'ds_read_b32 v{X+9}, v{X+9}')
    I('s_waitcnt lgkmcnt(1)')
    I(f'v_add3_u32 v{NG}, v104, v105, v106')
    I(f'v_add3_u32 v{GS}, v107, v108, v109')
    I(f'v_add3_u32 v{NG}, v{NG}, v110, v111')
    I(f'v_add3_u32 v{NG}, v{NG}, v{GS}, 28')
    I(f'v_and_b32 v{NG}, 0xffffffe0, v{NG}')
    I(f'v_mov_b32 v{GS}, v{NG}')
    wave_scan(GS)
    I(f'v_readlane_b32 s{S_T}, v{GS}, 63')
    I(f'v_sub_u32 v{GS}, v{GS}, v{NG}')
    if B2 == 1:
        poll2()
        do_pf()
    I('s_waitcnt lgkmcnt(0)')
    I(f'v_readfirstlane_b32 s{S_MORE}, v{X+9}')
    I(f's_lshr_b32 s{S_T}, s{S_T}, 5')
    I(f's_cmp_eq_u32 s{S_WID}, 128')
    I(f's_cselect_b32 s{S_T+1}, {MAXG}, -1')
    I(f's_cmp_gt_u32 s{S_T}, s{S_T+1}')
    I('s_cbranch_scc1 L_OVERFLOW')
    def place(tag):
        if PROF == 5:
            stamp(19)
        if TFLAG:
            I(f'v_mov_b32 v60, {MISC+16}')
            I(f's_mov_b32 s{S_T+1}, 0x1000000')
            L('L_TWAIT')
            I(f's_sub_u32 s{S_T+1}, s{S_T+1}, 1')
            I('s_cbranch_scc1 L_END')
            I('ds_read_b32 v61, v60')
            I('s_waitcnt lgkmcnt(0)')
            I(f'v_readfirstlane_b32 s{S_T}, v61')
            I(f's_cmp_eq_u32 s{S_T}, 0')
            I('s_cbranch_scc1 L_TWAIT')
        else:
            I('s_waitcnt lgkmcnt(0)')
            I('s_barrier')
        if PROF == 5:
            stamp(20)
        for s_ in range(8):
            I(f's_mov_b64 exec, {MK(s_)}')
            I(f'ds_read_b32 v{AD+s_}, v{AD+s_} offset:{BASE2}')
        if B2 == 3:
            I('s_mov_b64 exec, -1')
            poll2()
            do_pf()
        for s_ in range(8):
            wd, rk, ta = RB(s_) + 4 + (s_ & 1), RB(s_) + 6 + (s_ & 1), 112 + 2 * s_
            I(f's_mov_b64 exec, {MK(s_)}')
            if s_ >= 4:
                I(f's_cbranch_execz L_P{tag}{s_}')
            I(f's_waitcnt lgkmcnt({7 if s_ <= 4 else 11 - s_})')
            I(f'v_add_u32 v{AD+s_}, v{AD+s_}, v{rk}')
            I(f'v_add_u32 v{rk}, v{AD+s_}, v{AD+s_}')
            I(f'ds_write_b32 v{AD+s_}, v{wd} offset:{LS}')
            if s_ >= 4:
                L(f'L_P{tag}{s_}')
        if PROF == 5:
            stamp(21)
        if PFPOS == 4:
            I('s_mov_b64 exec, -1')
            do_pf(True)
        for s_ in range(8):
            rk, ee = RB(s_) + 6 + (s_ & 1), RB(s_) + 2 * (s_ & 1)
            I(f's_mov_b64 exec, {MK(s_)}')
            if s_ >= 4:
                I(f's_cbranch_execz L_Q{tag}{s_}')
            if s_ % 2 == 0:
                I(f's_waitcnt vmcnt({3 - s_ // 2 + NPF})')
            I(f'ds_write_b64 v{rk}, {p(ee)} offset:{LE}')
            if s_ >= 4:
                L(f'L_Q{tag}{s_}')
        I('s_mov_b64 exec, -1')
    SWAP = opt('swap', 0)
    if SWAP:
        I(f's_bitcmp1_b32 s{S_W}, {SWAP}')
        I('s_cbranch_scc0 L_DFIRST')
        place('a')
        L('L_DFIRST')
    SB_, SR_, SG0 = S_T + 4, S_T + 5, S_T + 6
    I(f's_add_u32 s{S_T}, s{S_T}, 3')
    I(f's_lshr_b32 s{S_T}, s{S_T}, 2')
    I(f's_lshr_b32 s{SB_}, s{S_T}, 4')
    I(f's_and_b32 s{SR_}, s{S_T}, 15')
    I(f's_add_u32 s{S_T+1}, s{SB_}, 1')
    I(f'v_cvt_f32_u32 v{MI}, s{S_T+1}')
    I(f'v_cvt_f32_u32 v{MI+1}, s{SB_}')
    I(f'v_rcp_f32 v{MI}, v{MI}')
    I(f'v_rcp_f32 v{MI+1}, v{MI+1}')
    I(f's_mul_i32 s{SG0}, s{SR_}, s{S_T+1}')
    I(f's_lshl_b32 s{SG0}, s{SG0}, 2')
    I(f'v_lshrrev_b32 v{GS}, 5, v{GS}')
    I(f'v_mul_f32 v{MI}, 0x47800000, v{MI}')
    I(f'v_mul_f32 v{MI+1}, 0x47800000, v{MI+1}')
    I(f'v_lshrrev_b32 v{NG}, 5, v{NG}')
    I(f'v_cvt_u32_f32 v{MI}, v{MI}')
    I(f'v_cvt_u32_f32 v{MI+1}, v{MI+1}')
    I(f's_cmp_lt_u32 s{S_W}, s{SR_}')
    I(f's_cselect_b32 s{S_L}, s{S_T+1}, s{SB_}')
    I(f'v_add_u32 v{MI}, 2, v{MI}')
    I(f'v_add_u32 v{MI+1}, 2, v{MI+1}')
    I(f's_min_u32 s{S_T}, s{S_W}, s{SR_}')
    I(f's_mul_i32 s{S_T+3}, s{S_W}, s{SB_}')
    I(f's_add_u32 s{S_T+3}, s{S_T+3}, s{S_T}')
    I(f's_sub_u32 s{S_T+1}, 0, s{S_T+1}')
    I(f's_sub_u32 s{SB_}, 0, s{SB_}')
    I(f's_lshl_b32 s{SR_}, s{SR_}, 2')
    D0, D1, D2, D3, NR = 60, 61, 62, 63, 98
    I(f's_cmp_lg_u32 s{S_W}, 15')
    I('s_cbranch_scc1 L_NOTAB')
    I(f'v_subrev_u32 v{D1}, s{SG0}, v{GS}')
    I(f'v_cmp_gt_u32 vcc, s{SG0}, v{GS}')
    I(f'v_mul_u32_u24 v{D2}, v{GS}, v{MI}')
    I(f'v_mul_u32_u24 v{D3}, v{D1}, v{MI+1}')
    I(f'v_lshrrev_b32 v{D2}, 16, v{D2}')
    I(f'v_lshrrev_b32 v{D3}, 16, v{D3}')
    I(f'v_mad_i32_i24 v{D0}, v{D2}, s{S_T+1}, v{GS}')
    I(f'v_mad_i32_i24 v{D1}, v{D3}, s{SB_}, v{D1}')
    I(f'v_mov_b32 v{D2}, s{S_T+1}')
    I(f'v_mov_b32 v{D3}, s{SB_}')
    I(f'v_cndmask_b32 v{D0}, v{D1}, v{D0}, vcc')
    I(f'v_cndmask_b32 v{D2}, v{D3}, v{D2}, vcc')
    I('v_add_u32 v105, v105, v104')
    I(f'v_add_u32 v{D2}, v{D2}, v{D0}')
    I('v_add_u32 v106, v106, v105')
    I(f'v_sub_u32 v{D2}, 0, v{D2}')
    I('v_add_u32 v107, v107, v106')
    I(f'v_cmp_ne_u32 vcc, 0, v{D0}')
    I('v_add_u32 v108, v108, v107')
    I(f'v_cmp_lt_u32 {sp(S_EX)}, v{D2}, v{NG}')
    I('v_add_u32 v109, v109, v108')
    I(f's_and_b64 vcc, vcc, {sp(S_EX)}')
    I('v_add_u32 v110, v110, v109')
    I(f'v_lshlrev_b32 v{D2}, 5, v{D2}')
    I('v_add_u32 v111, v111, v110')
    I(f'v_cndmask_b32 v{D2}, 0, v{D2}, vcc' if ROT else f'v_mov_b32 v{D2}, 0')
    I(f'v_add_u32 v{D1}, {opt("rnd", 20)}, v111')
    I(f'v_sub_u32 v{D1}, v{D1}, v{D2} clamp')
    for k in range(8):
        I(f'v_sub_u32 v{112+k}, v{D1}, v{104+k}')
    I(f'v_min3_u32 v112, v112, v113, v114')
    I(f'v_min3_u32 v115, v115, v116, v117')
    I(f'v_min3_u32 v112, v112, v118, v119')
    I(f'v_min3_u32 v112, v112, v115, v{D1}')
    I(f'v_sub_u32 v{D1}, v{D1}, v112')
    I(f'v_lshlrev_b32 v{D3}, 5, v{GS}')
    I(f'v_sub_u32 v112, 0, v{D1}')
    for k in range(1, 8):
        I(f'v_sub_u32 v{112+k}, v{103+k}, v{D1}')
    for k in range(8):
        I(f'v_add_u32 v{120+k}, v{112+k}, v111')
    for k in range(8):
        I(f'v_min_u32 v{112+k}, v{112+k}, v{120+k}')
    for k in range(8):
        I(f'v_add_u32 v{112+k}, v{112+k}, v{D3}')
    I(f'v_lshlrev_b32 v{D0}, 5, v{V_LANE}')
    I(f's_mov_b32 exec_hi, 0x1ffff')
    for q in range(2):
        I(f'ds_write_b128 v{D0}, v[{112+4*q}:{115+4*q}] offset:{BASE2+16*q}')
    if TFLAG:
        I(f'v_mov_b32 v{D1}, {MISC+16}')
        I(f'ds_write_b32 v{D1}, v{D1}')
    I('s_mov_b64 exec, -1')
    if opt('tprio', 1):
        I('s_setprio 0')
    L('L_NOTAB')
    I(f'v_lshlrev_b32 v{NR}, 8, v{V_LANE}')
    I(f'v_add_u32 v{NR+1}, {ACCN}, v{NR}')
    I(f's_mov_b32 s{S_T}, s{S_W}')
    L('L_DLOOP')
    I(f'v_cmp_lt_u32 vcc, s{S_T}, v{NG}')
    I('s_and_b64 exec, exec, vcc')
    I('s_cbranch_execz L_DEND')
    I(f'v_add_u32 v{D0}, s{S_T}, v{GS}')
    I(f'v_subrev_u32 v{D1}, s{SG0}, v{D0}')
    I(f'v_cmp_gt_u32 vcc, s{SG0}, v{D0}')
    I(f'v_mul_u32_u24 v{D2}, v{D0}, v{MI}')
    I(f'v_mul_u32_u24 v{D3}, v{D1}, v{MI+1}')
    I(f'v_lshrrev_b32 v{D2}, 16, v{D2}')
    I(f'v_lshrrev_b32 v{D3}, 16, v{D3}')
    I(f'v_mad_i32_i24 v{D0}, v{D2}, s{S_T+1}, v{D0}')
    I(f'v_mad_i32_i24 v{D1}, v{D3}, s{SB_}, v{D1}')
    I(f'v_add_u32 v{D3}, s{SR_}, v{D3}')
    I(f'v_cndmask_b32 v{D0}, v{D1}, v{D0}, vcc')
    I(f'v_cndmask_b32 v{D2}, v{D3}, v{D2}, vcc')
    I(f'v_cmp_le_u32 vcc, s{S_T}, v{D0}')
    I(f'v_lshl_add_u32 v{D0}, v{D0}, 6, v{D2}')
    I(f'v_lshlrev_b32 v{D1}, 8, v{D2}')
    I(f'v_lshlrev_b32 v{D0}, 2, v{D0}')
    I(f'v_add_u32 v{D1}, {EXTRA}, v{D1}')
    I(f'v_add_u32 v{D3}, {DESCA}, v{D0}')
    I(f'v_cndmask_b32 v{D1}, v{D1}, v{NR+1}, vcc')
    I(f'ds_write_b32 v{D0}, v{NR} offset:{DESCP}')
    I(f'ds_write_b32 v{D3}, v{D1}')
    I(f's_add_u32 s{S_T+7}, s{S_T}, 1')
    I(f'v_cmp_eq_u32 vcc, s{S_T+7}, v{NG}')
    I(f's_and_saveexec_b64 {sp(S_EX)}, vcc')
    I(f'ds_write_b32 v{X+8}, v{D2} offset:{NINFO+256}')
    I(f's_mov_b64 exec, {sp(S_EX)}')
    I(f's_cmp_lg_u32 s{S_T}, 0')
    I('s_cbranch_scc1 L_DNF')
    I(f'ds_write_b32 v{X+8}, v{D2} offset:{NINFO}')
    L('L_DNF')
    I(f's_add_u32 s{S_T}, s{S_T}, 16')
    I('s_branch L_DLOOP')
    L('L_DEND')
    I('s_mov_b64 exec, -1')
    I(f's_lshl_b32 s{S_T}, s{S_T+3}, 7')
    I(f's_lshl_b32 s{S_T+1}, s{S_L}, 5')
    I(f'v_mov_b32 v{D0}, s{S_T}')
    I(f'v_mad_u32_u24 v{V_PS0}, v{V_PS1}, s{S_T+1}, v{D0}')
    I(f'v_add_u32 v{D0}, v{D0}, v{D0}')
    I(f'v_add_u32 v{V_PS1}, s{S_T+1}, v{V_PS0}')
    I(f'v_add_u32 v{V_PE}, v{V_PE}, v{D0}')
    I(f's_lshl_b32 s{S_T+1}, s{S_L}, 6')
    I(f'v_mad_u32_u24 v{V_PE}, v{V_VAP}, s{S_T+1}, v{V_PE}')
    if opt('safe', 0):
        I(f's_min_u32 s{S_L}, s{S_L}, 9')
        I(f's_mov_b32 s{S_MORE}, 0')
    I(f's_mov_b32 s{S_CNT}, s{S_L}')
    if B2 == 2:
        poll2()
        do_pf()
    if SWAP:
        I(f's_bitcmp1_b32 s{S_W}, {SWAP}')
        I('s_cbranch_scc1 L_PDONE')
    place('b')
    L('L_PDONE')
    stamp(13)
    I('s_waitcnt lgkmcnt(0)')
    I('s_barrier')
    stamp(14)
    I(f's_cmp_eq_u32 s{S_L}, 0')
    I('s_cbranch_scc1 L_FOLD')
    lg = Lg()
    FP = opt('fp', 0)
    if FP:
        for lvl in (3, 2, 1):
            I(f's_cmp_lt_u32 s{S_W}, {4 * (4 - lvl)}')
            I(f's_cbranch_scc0 L_FP{lvl}')
            I(f's_setprio {lvl}')
            I('s_branch L_FPD')
            L(f'L_FP{lvl}')
        L('L_FPD')
    s_reads(lg, 0)
    lg.op('dP', f'ds_read_b64 {p(V_VAP)}, v{V_PD}')
    lg.op('dA', f'ds_read_b64 {p(V_VAA[0])}, v{V_PD} offset:{DESCA-DESCP}')
    lg.op('e', f'ds_read_b64 {p(A5)}, v{V_PE}')
    lg.need('S0', 'S1', 'S2', 'S3')
    s_safe()
    STG_ = [int(x) for x in opt('stag', '0,0,0').split(',')]
    for gi, d in enumerate(STG_):
        if d:
            I(f's_cmp_ge_u32 s{S_W}, {4 * (gi + 1)}')
            I(f's_cbranch_scc0 L_ST{gi}')
            I(f's_sleep {d}')
            L(f'L_ST{gi}')
    for n in range(2):
        for i in range(16):
            I(gload(n, i))
        if n == 0 and FP == 2:
            I('s_setprio 0')
    s_reads(lg, 1)
    I(f'v_mov_b32 v{V_C8P}, v{V_CH8}')
    I(f'v_mov_b32 v{V_C8P+1}, v{V_CH8}')
    I(f'v_mov_b32 v{V_CPP}, v{V_CHP}')
    I(f'v_mov_b32 v{V_CPP+1}, v{V_CHP}')
    if M8:
        I(f'v_mov_b32 v{V_SCP}, 0x{f2u(2.0**KH):x}')
        I(f'v_mov_b32 v{V_SCP+1}, 0x{f2u(2.0**KH):x}')
    I(f's_mov_b32 s{S_BP0}, 64')
    I(f's_mov_b32 s{S_BP0+1}, 64')
    I(f's_mov_b32 s{S_BP1}, 128')
    I(f's_mov_b32 s{S_BP1+1}, 512')
    lg.need('dP', 'dA')
    va_add(V_VAP, V_VAA[0])
    lg.op('P0a', f'ds_read_b32 v{B5[0]+2}, v{V_VAP}')
    lg.op('P0b', f'ds_read_b32 v{B5[0]+3}, v{V_VAP+1}')
    lg.op('P1a', f'ds_read_b32 v{B5[1]+2}, v{V_VAP} offset:4')
    lg.op('P1b', f'ds_read_b32 v{B5[1]+3}, v{V_VAP+1} offset:4')
    I(f's_cmp_eq_u32 s{S_CNT}, 1')
    I(f's_cselect_b64 {sp(S_LDX)}, 0, {LDXV}')
    I('s_waitcnt lgkmcnt(0)')
    lg.q = []
    if opt('prio', 3):
        I('s_setprio 3')
    stamp(15)
    rstamp(28)
    half(lg, 0, 0, 0, False)
    if PROF == 4:
        stamp(19)
        lg.q = []
    state0 = list(lg.q)
    def step(par, uo):
        prio(f'm{par}', 1)
        half(lg, 1, par, uo)
        if PROF == 4:
            I('s_memtime s[98:99]')
            I(f's_sub_u32 s92, s{S_L}, s{S_CNT}')
            I(f's_add_u32 m0, s92, 20')
            I('s_waitcnt lgkmcnt(0)')
            I(f'v_writelane_b32 v{V_PROF}, s98, m0')
        I(f's_sub_u32 s{S_CNT}, s{S_CNT}, 1')
        I(f's_cmp_eq_u32 s{S_CNT}, 0')
        I(f's_cbranch_scc1 L_FIN{par}')
        I(f's_cmp_eq_u32 s{S_CNT}, 1')
        I(f's_cselect_b64 {sp(S_LDX)}, 0, {LDXV}')
        prio(f'{par}')
        half(lg, 0, par ^ 1, uo + 1)
    def loop_body():
        step(0, 0)
        step(1, 1)
        I(f'v_lshl_add_u64 {p(V_PS0)}, {p(V_PS0)}, 0, {sp(S_BP0)}')
        I(f'v_lshl_add_u64 {p(V_PE)}, {p(V_PE)}, 0, {sp(S_BP1)}')
        I('s_branch L_LOOP')
    mark = len(out)
    loop_body()
    del out[mark:]
    qb = list(lg.q)
    n = min(len(qb), len(state0))
    assert PROF == 4 or qb[len(qb)-n:] == state0[len(state0)-n:], (state0, qb)
    lg.q = list(qb if len(qb) >= len(state0) else state0)
    e('.p2align 3')
    L('L_LOOP')
    mark = len(out)
    loop_body()
    drop = opt('drop', '')
    if drop:
        body = out[mark:]
        keep = []
        for l in body:
            t = l.strip()
            if 'v' in drop and (t.startswith('buffer_load') or t.startswith('s_mov_b64 exec') or 'vmcnt' in t):
                continue
            if 'l' in drop and (t.startswith('ds_') or 'lgkmcnt' in t):
                continue
            if 'm' in drop and t.startswith('v_mfma'):
                continue
            if 'n' in drop and t.startswith('s_nop'):
                continue
            keep.append(l)
        out[mark:] = keep
    assert lg.q == qb, (lg.q, qb)
    print('loop entry queue', state0, 'back edge queue', qb, file=sys.stderr)
    for pr in range(2):
        L(f'L_FIN{pr}')
        if M8:
            I(f'v_pk_mul_f32 {p(V_T01N)}, {p(V_T01N)}, {p(V_T23D)}')
            I(f'v_pk_mul_f32 {p(V_T23D)}, {p(V_T01D)}, {p(V_T23D)}')
            I(f'v_pk_fma_f32 {p(V_T01N)}, {p(V_T23N)}, {p(V_T01D)}, {p(V_T01N)}')
            I(f'v_rcp_f32 v{V_T23D}, v{V_T23D}')
            I(f'v_rcp_f32 v{V_T23D+1}, v{V_T23D+1}')
            I('s_waitcnt lgkmcnt(0)')
            I(f'v_pk_fma_f32 {p(V_MB)}, {p(V_T01N)}, {p(V_T23D)}, {p(V_MB)}')
        else:
            for r_ in (V_T01D, V_T01D + 1, V_T23D, V_T23D + 1):
                I(f'v_rcp_f32 v{r_}, v{r_}')
            I('s_waitcnt lgkmcnt(0)')
            I(f'v_pk_fma_f32 {p(V_MB)}, {p(V_T01N)}, {p(V_T01D)}, {p(V_MB)}')
            I(f'v_pk_fma_f32 {p(V_MB)}, {p(V_T23N)}, {p(V_T23D)}, {p(V_MB)}')
        acc_write(Lg(), V_VAA[pr])
        if pr == 0:
            I('s_branch L_FOLD')
    L('L_FOLD')
    stamp(16)
    FL = opt('fl', 0)
    I(f'v_lshrrev_b32 v{X}, 4, v{V_TID}')
    I(f'v_and_b32 v{X+1}, 15, v{V_TID}')
    if FL:
        I(f'v_lshlrev_b32 v{X+6}, 3, v{X+1}')
        I(f'v_lshrrev_b32 v{X+2}, 3, v{X+1}')
        I(f'v_and_b32 v{X+1}, 7, v{X+1}')
        I(f'v_lshlrev_b32 v{X+1}, 5, v{X+1}')
        I(f'v_lshl_add_u32 v{X+1}, v{X+2}, 2, v{X+1}')
    else:
        I(f'v_lshlrev_b32 v{X+6}, 2, v{X+1}')
        I(f'v_lshlrev_b32 v{X+1}, 4, v{X+1}')
    I(f'v_lshl_add_u32 v{X+2}, v{X}, 8, v{X+1}')
    I(f'v_add_u32 v{X+2}, {ACCN}, v{X+2}')
    I(f'v_add_u32 v{X+1}, {EXTRA}, v{X+1}')
    def rd4(dst, ad):
        if FL:
            I(f'ds_read2_b32 v[{dst}:{dst+1}], v{ad} offset0:0 offset1:2')
            I(f'ds_read2_b32 v[{dst+2}:{dst+3}], v{ad} offset0:4 offset1:6')
        else:
            I(f'ds_read_b128 v[{dst}:{dst+3}], v{ad}')
    I(f'v_lshlrev_b32 v{X+3}, 2, v{X}')
    I(f's_mul_i32 s{S_T+4}, s3, {NB*128}')
    I(f'v_lshl_add_u32 v{X+6}, v{X}, 7, v{X+6}')
    I(f'v_add_u32 v{X+6}, s{S_T+4}, v{X+6}')
    I(f'v_mov_b32 v{X+7}, 0')
    I(f'ds_read_b32 v{X+4}, v{X+3} offset:{NINFO}')
    I(f'ds_read_b32 v{X+5}, v{X+3} offset:{NINFO+256}')
    I(f's_mov_b32 s{S_T+2}, 0x{f2u(2.0**-(SV+KH)):x}')
    I(f's_mov_b32 s{S_T+3}, 0x{f2u(-LOG2E * 2.0**-(SV+KH)):x}')
    I(f'v_cmp_gt_u32 vcc, {NB*16}, v{V_TID}')
    I('s_waitcnt vmcnt(0) lgkmcnt(0)')
    I('s_barrier')
    stamp(17)
    rstamp(29)
    if PROF:
        I(f'v_writelane_b32 v{V_PROF}, s{S_L}, 27')
    I(f's_and_saveexec_b64 {sp(S_EX)}, vcc')
    I('s_cbranch_execz L_FDONE')
    rd4(64, X + 2)
    I(f's_mov_b64 {sp(S_T)}, exec')
    L('L_FLOOP')
    I(f'v_cmp_lt_u32 vcc, v{X+4}, v{X+5}')
    I('s_and_b64 exec, exec, vcc')
    I('s_cbranch_execz L_FLEND')
    I(f'v_add_u32 v{X+4}, 1, v{X+4}')
    I(f'v_lshl_add_u32 v{X+7}, v{X+4}, 8, v{X+1}')
    rd4(72, X + 7)
    I('s_waitcnt lgkmcnt(0)')
    for k in range(4):
        I(f'v_add_f32 v{64+k}, v{64+k}, v{72+k}')
    I('s_branch L_FLOOP')
    L('L_FLEND')
    I(f's_mov_b64 exec, {sp(S_T)}')
    I('s_waitcnt lgkmcnt(0)')
    I(f's_cmp_lg_u32 s{S_MORE}, 0')
    I('s_cbranch_scc1 L_WB')
    for k in range(4):
        I(f'v_mul_f32 v{72+k}, s{S_T+3}, v{64+k}')
    for k in range(4):
        I(f'v_exp_f32 v{72+k}, v{72+k}')
    for k in range(4):
        I(f'v_mul_f32 v{64+k}, s{S_T+2}, v{64+k}')
    for k in range(4):
        I(f'v_add_f32 v{72+k}, 1.0, v{72+k}')
    for k in range(4):
        I(f'v_rcp_f32 v{72+k}, v{72+k}')
    I('s_nop 0')
    for k in range(4):
        I(f'v_mul_f32 v{64+k}, v{64+k}, v{72+k}')
    if FL:
        I('v_cvt_pk_bf16_f32 v80, v64, v65')
        I('v_cvt_pk_bf16_f32 v81, v66, v67')
        I(f'buffer_store_dwordx2 v[80:81], v{X+6}, {sr4(S_OUT)}, 0 offen' + OSC)
    else:
        I('v_cvt_pk_bf16_f32 v80, v64, v66')
        I('v_cvt_pk_bf16_f32 v81, v65, v67')
        I(f'buffer_store_dword v80, v{X+6}, {sr4(S_OUT)}, 0 offen' + OSC)
        I(f'buffer_store_dword v81, v{X+6}, {sr4(S_OUT)}, 0 offen offset:64' + OSC)
    stamp(18)
    prof_store()
    diag_end()
    I('s_endpgm')
    L('L_WB')
    if FL:
        I(f'ds_write2_b32 v{X+2}, v64, v65 offset0:0 offset1:2')
        I(f'ds_write2_b32 v{X+2}, v66, v67 offset0:4 offset1:6')
    else:
        I(f'ds_write_b128 v{X+2}, v[64:67]')
    L('L_FDONE')
    I('s_mov_b64 exec, -1')
    I(f's_cmp_eq_u32 s{S_MORE}, 0')
    I('s_cbranch_scc1 L_QUIT')
    I(f's_add_u32 s{S_JB}, s{S_JB}, s{S_WID}')
    I('s_branch L_REFILL')
    L('L_OVERFLOW')
    I(f's_mov_b32 s{S_WID}, 64')
    L('L_REFILL')
    I('s_waitcnt vmcnt(0) lgkmcnt(0)')
    I('s_barrier')
    fill_zero()
    fill_words()
    ptr_consts()
    I('s_waitcnt lgkmcnt(0)')
    I('s_barrier')
    I('s_branch L_PASS')
    L('L_QUIT')
    prof_store()
    L('L_END')
    I('s_endpgm')


DOC = """
"""
hdr = open('standalone__edge_featured_mpnn_egc__graph.s.ref').read().split('\n')
for line in hdr:
    if line.startswith('; Override'):
        break
    e(line)
e(f'; @launch grid=({NWG},1,1) block=(1024,1,1) lds={LDS_BYTES}')
e('.amdgcn_target "amdgcn-amd-amdhsa--gfx950"')
for line in DOC.strip().split('\n'):
    e(line)
e('.text')
gen()
e('.section .rodata,"a"')
e('.p2align 6')
e(f'.amdhsa_kernel {KNAME}')
e('  .amdhsa_next_free_vgpr 128')
e('  .amdhsa_next_free_sgpr 102')
e('  .amdhsa_accum_offset 128')
e('  .amdhsa_group_segment_fixed_size 0')
e('  .amdhsa_kernarg_size 80')
e('  .amdhsa_user_sgpr_count 2')
e('  .amdhsa_user_sgpr_kernarg_segment_ptr 1')
e('  .amdhsa_system_sgpr_workgroup_id_x 1')
e('  .amdhsa_float_denorm_mode_32 3')
e('.end_amdhsa_kernel')
open(sys.argv[1], 'w').write('\n'.join(x for x in out if x is not None) + '\n')
```

```python
import sys, struct

OPT = dict(a.split('=') for a in sys.argv[2:] if '=' in a)
def opt(name, default):
    return type(default)(OPT.get(name, default))

KNAME = 'standalone__edge_featured_mpnn_egc__graph_kernel'
N_NODES = 12500
E_EDGES = 800000
NB = 49
NWG = 256
CH = 3136
WS_RW = 0
WS_RE = 0x00400000
CAP = CH + 256
WS_TAB = 0x00B00000
WS_NT = 0x00C00000
WS_PROF = 0x01000000
M8 = opt('m8', 0)
if M8:
    KH, KEXP, SV = 13, 26, 0
else:
    KH, KEXP, SV = 31, 31, 30
LOG2E = 1.4426950408889634
SC = opt('sc', 'sc1')
SC = (' ' + SC.replace('+', ' ')) if SC != 'none' else ''
LSC = opt('lsc', 'sc1')
LSC = (' ' + LSC.replace('+', ' ')) if LSC != 'none' else ''
GSC = opt('gsc', 'sc1')
GSC = (' ' + GSC.replace('+', ' ')) if GSC != 'none' else ''
ELD = opt('eld', 'none')
ELD = (' ' + ELD.replace('+', ' ')) if ELD != 'none' else ''

def f2u(x):
    return struct.unpack('<I', struct.pack('<f', x))[0]

out = []
def e(s=''):
    out.append(s)
def I(s):
    out.append('    ' + s)
def L(name):
    out.append(name + ':')
def vr(a, n):
    return f'v[{a}:{a+n-1}]' if n > 1 else f'v{a}'
def sr4(a):
    return f's[{a}:{a+3}]'
def sp(a):
    return f's[{a}:{a+1}]'
def p(r):
    return f'v[{r}:{r+1}]'

def srd(d, lo, hi, nrec):
    I(f's_mov_b32 s{d}, s{lo}')
    I(f's_mov_b32 s{d+1}, s{hi}')
    I(f's_mov_b32 s{d+2}, {nrec}')
    I(f's_mov_b32 s{d+3}, 0x00020000')

def srd_off(d, lo, hi, off, nrec):
    I(f's_add_u32 s{d}, s{lo}, {off}')
    I(f's_addc_u32 s{d+1}, s{hi}, 0')
    I(f's_mov_b32 s{d+2}, {nrec}')
    I(f's_mov_b32 s{d+3}, 0x00020000')

def wave_scan(v):
    for sh in (1, 2, 4, 8):
        I('s_nop 1')
        I(f'v_add_u32_dpp v{v}, v{v}, v{v} row_shr:{sh} row_mask:0xf bank_mask:0xf')
    I('s_nop 1')
    I(f'v_add_u32_dpp v{v}, v{v}, v{v} row_bcast:15 row_mask:0xa bank_mask:0xf')
    I('s_nop 1')
    I(f'v_add_u32_dpp v{v}, v{v}, v{v} row_bcast:31 row_mask:0xc bank_mask:0xf')
    I('s_nop 1')

LS = 0
ZR = 18688
LE = 18688
CNT = 56064
MISC = 56320
BASET = 56576
NINFO = 56832
HIST = 57344
HBASE = 58368
DESCP = 59392
CNT2 = 61952
BASE2 = 64000
EXTRA = 67840
DESCA = 84224
PT = 86784
ACCN = 99328
WRAW = 111872
WG_, WV_, WU_ = WRAW, WRAW + 17408, WRAW + 25600
XOWN = WRAW + 33792
LDS_BYTES = XOWN + 8192
STGW = 0
STGE = CAP * 4
NTI = EXTRA
MAXG = 576
assert STGE + CAP * 8 <= CNT

V_TID, V_LANE = 0, 1
V_MA, V_MB = 2, 4
V_VAA = (6, 8)
V_VAP = 10
V_PS0, V_PS1, V_PE, V_PD, V_CH8, V_CHP = 12, 13, 14, 15, 16, 17
V_PROF = 18
V_TAB = 20
V_J4, V_CB4 = 24, 25
V_X = 26
V_T01D, V_T01N, V_T23D, V_T23N = 40, 42, 44, 46
B5 = (48, 52)
A5 = 56
V_TT = (60, 62)
G = (64, 80)
Z = 96
S = 112

S_XS, S_WS, S_DST, S_SRC, S_EA, S_RW, S_RE, S_TAB, S_NTS, S_NTG, S_OUT = 12, 16, 20, 24, 28, 32, 36, 40, 44, 48, 52
S_MASK = 56
S_W, S_L, S_CNT, S_JB, S_WID, S_MORE = 72, 73, 74, 75, 76, 77
S_C = 78
S_EX = 80
S_LDX = 82
S_T = 84
S_WSP = 94
S_DBG = 96
S_TAG, S_TAG2, S_TAG3 = 100, 101, 11
TAGM = 0xC003C003
TAGL = MISC + 64

NT2 = 2 if opt('touch', 0) else 0
LDXV = 0 if opt('noload', 0) else -1
NPFM = opt('npf', 4)
NPF = {0: 0, 1: 7, 2: 7, 3: 2, 4: 1, 5: 1}[NPFM]
NPF1 = NPF if NPFM in (1, 5) else 0
WSB = opt('wsb', 0) << 20
TCH = 4 if opt('touch', 0) else 0
T1 = opt('t1', 0)
OSC = opt('osc', 'nt')
OSC = (' ' + OSC.replace('+', ' ')) if OSC != 'none' else ''
KREP = opt('krep', 1)
assert KREP == 1
CM = opt('cm', 1)
RSTEP = 64 if CM else 8
SRCL = opt('srcl', 1)
TP = opt('tp', 1)
BANDS = opt('bands', 1)
ROT = opt('rot', 1)
TFLAG = opt('tflag', 1)
EK = opt('ek', 8)
EN = opt('en', 1)
PROF = opt('prof', 0)
DIAG = opt('diag', -1)
def diag_end():
    if DIAG < 0:
        return
    I('s_memrealtime s[98:99]')
    I('s_waitcnt lgkmcnt(0)')
    I('v_readlane_b32 s92, v18, 1')
    I('v_readlane_b32 s93, v18, 0')
    I('s_nop 3')
    I('s_sub_u32 s92, s92, s93')
    I('s_lshr_b32 s92, s92, 3' if opt('dcyc', 0) else 's_lshl_b32 s92, s92, 2')
    I('s_mov_b32 s93, s98')
    lbl = f'L_DG{len(out)}'
    L(lbl)
    I('s_memrealtime s[98:99]')
    I('s_waitcnt lgkmcnt(0)')
    I('s_sub_u32 s98, s98, s93')
    I('s_cmp_lt_u32 s98, s92')
    I(f's_cbranch_scc1 {lbl}')
def stamp(i):
    if DIAG >= 0 and i in (opt('dfrom', 0), DIAG):
        I('s_memtime s[98:99]' if opt('dcyc', 0) else 's_memrealtime s[98:99]')
        I('s_waitcnt lgkmcnt(0)')
        if i == opt('dfrom', 0):
            I('v_writelane_b32 v18, s98, 0')
        if i == DIAG:
            I('v_writelane_b32 v18, s98, 1')
    if not PROF:
        return
    I('s_memtime s[98:99]')
    I('s_waitcnt lgkmcnt(0)')
    I(f'v_writelane_b32 v{V_PROF}, s98, {i}')
def rstamp(i):
    if not PROF:
        return
    I('s_memrealtime s[98:99]')
    I('s_waitcnt lgkmcnt(0)')
    I(f'v_writelane_b32 v{V_PROF}, s98, {i}')
def prof_store():
    if not PROF:
        return
    rstamp(31)
    if PROF == 3:
        I(f's_lshl_b32 s98, s2, 4')
        I(f's_add_u32 s98, s98, s{S_W}')
        I(f's_cmp_lg_u32 s98, {opt("pwave", 80)}')
        I('s_cbranch_scc1 L_END')
        I('s_mov_b64 exec, -1')
        I(f'v_readlane_b32 s98, v{V_PROF}, 0')
        I(f'v_readlane_b32 s99, v{V_PROF}, 30')
        I(f'v_readlane_b32 s{S_T}, v{V_PROF}, 31')
        I('s_nop 3')
        I(f's_sub_u32 s{S_T}, s{S_T}, s99')
        I(f's_add_u32 s{S_T}, s{S_T}, s98')
        I(f'v_writelane_b32 v{V_PROF}, s{S_T}, 9')
        I(f'v_subrev_u32 v{V_PROF}, s98, v{V_PROF}')
        I(f'v_mbcnt_lo_u32_b32 v{V_PROF+1}, -1, 0')
        I(f'v_lshlrev_b32 v{V_PROF+1}, 2, v{V_PROF+1}')
        I(f'v_add_u32 v{V_PROF+1}, -8, v{V_PROF+1}')
        I('s_mov_b64 exec, 0x3fff8')
        I(f'global_store_dword v{V_PROF+1}, v{V_PROF}, {sp(S_DBG)}')
        return
    I('s_mov_b64 exec, 0xffffffff')
    I(f's_add_u32 s{S_T}, s{S_WSP}, 0x{WS_PROF:x}')
    I(f's_addc_u32 s{S_T+1}, s{S_WSP+1}, 0')
    I(f'v_mbcnt_lo_u32_b32 v{V_PROF+1}, -1, 0')
    I(f'v_lshlrev_b32 v{V_PROF+1}, 2, v{V_PROF+1}')
    I(f's_lshl_b32 s98, s2, 4')
    I(f's_add_u32 s98, s98, s{S_W}')
    I(f's_lshl_b32 s98, s98, 7')
    I(f'v_add_u32 v{V_PROF+1}, s98, v{V_PROF+1}')
    I(f'global_store_dword v{V_PROF+1}, v{V_PROF}, {sp(S_T)}')

class Lg:
    def __init__(self):
        self.q = []
    def op(self, tag, text):
        I(text)
        self.q.append(tag)
    def need(self, *tags):
        idx = -1
        for t in tags:
            for i in range(len(self.q) - 1, -1, -1):
                if self.q[i] == t:
                    idx = max(idx, i)
                    break
        if idx < 0:
            return
        n = len(self.q) - 1 - idx
        assert n <= 15, (tags, n)
        I(f's_waitcnt lgkmcnt({n})')
        self.q = self.q[idx + 1:]

X = V_X

def zero_range(a, nbytes, zr, ad):
    k = 0
    base = a if a + nbytes <= 65536 + 16384 and a < 65536 - 3 * 16384 else None
    off = 0
    areg = ad
    if a + ((nbytes - 1) // 16384) * 16384 > 65535:
        I(f'v_add_u32 v{X+1}, {a}, v{ad}')
        areg = X + 1
        a0 = 0
    else:
        a0 = a
    while off < nbytes:
        n = min(16384, nbytes - off)
        if n < 16384:
            I(f'v_cmp_gt_u32 vcc, {n // 16}, v{V_TID}')
            I(f's_and_saveexec_b64 {sp(S_EX)}, vcc')
        I(f'ds_write_b128 v{areg}, v[{zr}:{zr+3}] offset:{a0 + off}')
        if n < 16384:
            I(f's_mov_b64 exec, {sp(S_EX)}')
        off += n

def zregs():
    I(f'v_lshlrev_b32 v{X}, 4, v{V_TID}')
    for k in range(4):
        I(f'v_mov_b32 v{X+2+k}, 0')

def fill_desca():
    I(f'v_and_b32 v{X+6}, 15, v{V_TID}')
    I(f'v_lshlrev_b32 v{X+6}, 10, v{X+6}')
    I(f'v_add_u32 v{X+6}, {EXTRA}, v{X+6}')
    for k in range(1, 4):
        I(f'v_add_u32 v{X+6+k}, {256*k}, v{X+6}')
    I(f'v_add_u32 v{X+1}, {DESCA}, v{X}')
    I(f'v_cmp_gt_u32 vcc, 160, v{V_TID}')
    I(f's_and_saveexec_b64 {sp(S_EX)}, vcc')
    I(f'ds_write_b128 v{X+1}, v[{X+6}:{X+9}]')
    I(f's_mov_b64 exec, {sp(S_EX)}')

def fill_zero():
    zregs()
    zero_range(ZR, 65536, X + 2, X)
    fill_desca()

def fill_words():
    I(f'v_lshlrev_b32 v{X}, 4, v{V_TID}')
    I(f'v_and_b32 v{X+2}, 7, v{V_TID}')
    I(f'v_lshlrev_b32 v{X+2}, 5, v{X+2}')
    I(f'v_add_u32 v{X+2}, {N_NODES*8}, v{X+2}')
    for k in range(1, 4):
        I(f'v_add_u32 v{X+2+k}, {8*k}, v{X+2}')
    I(f'ds_write_b128 v{X}, v[{X+2}:{X+5}] offset:{LS}')
    I(f'v_cmp_gt_u32 vcc, 144, v{V_TID}')
    I(f's_and_saveexec_b64 {sp(S_EX)}, vcc')
    I(f'ds_write_b128 v{X}, v[{X+2}:{X+5}] offset:{LS+16384}')
    I(f's_mov_b64 exec, {sp(S_EX)}')

V_C8P, V_CPP, V_SCP = 26, 28, 30
S_BP0, S_BP1 = 88, 90

def tail_ops(n):
    M = (V_MA, V_MB)[n]
    return [f'v_rcp_f32 v{V_T01D}, v{V_T01D}',
            f'v_rcp_f32 v{V_T01D+1}, v{V_T01D+1}',
            f'v_pk_fma_f32 {p(M)}, {p(V_T01N)}, {p(V_T01D)}, {p(M)}']

def acc_write(lg, va):
    lg.op('Wa', f'ds_write2_b32 v{va}, v{V_MA}, v{V_MB} offset0:0 offset1:1')
    lg.op('Wb', f'ds_write2_b32 v{va+1}, v{V_MA+1}, v{V_MB+1} offset0:0 offset1:1')

def acc_read(lg, va):
    lg.op('Ra', f'ds_read_b32 v{V_MA}, v{va}')
    lg.op('Rb', f'ds_read_b32 v{V_MA+1}, v{va+1}')
    lg.op('Rc', f'ds_read_b32 v{V_MB}, v{va} offset:4')
    lg.op('Rd', f'ds_read_b32 v{V_MB+1}, v{va+1} offset:4')

def va_add(vap, vaa):
    I(f'v_lshl_add_u64 {p(vap)}, {p(vap)}, 0, {p(V_CPP)}')
    I(f'v_lshl_add_u64 {p(vaa)}, {p(vaa)}, 0, {p(V_C8P)}')

def gload(n, i):
    return f'buffer_load_dword v{G[n]+i}, v{S + (i & 1) * 8 + (i >> 1)}, {sr4(S_NTG)}, 0 offen offset:{4*n}' + GSC

def s_safe():
    if opt('safe', 0):
        for i in range(16):
            I(f'v_and_b32 v{S+i}, 0x1fff8, v{S+i}')

def s_reads(lg, uo):
    lg.op('S0', f'ds_read_b128 {vr(S,4)}, v{V_PS0} offset:{uo*32}')
    lg.op('S1', f'ds_read_b128 {vr(S+4,4)}, v{V_PS0} offset:{uo*32+16}')
    lg.op('S2', f'ds_read_b128 {vr(S+8,4)}, v{V_PS1} offset:{uo*32}')
    lg.op('S3', f'ds_read_b128 {vr(S+12,4)}, v{V_PS1} offset:{uo*32+16}')

def half(lg, n, par, uo, with_tail=True):
    g = G[n]
    I('s_waitcnt vmcnt(16)')
    if n == 0:
        lg.need('P0a', 'P0b', 'e')
    else:
        lg.need('P1a', 'P1b')
    I(f'v_mfma_f32_32x32x16_bf16 {vr(Z,16)}, {vr(A5,4)}, {vr(B5[n],4)}, {vr(g,16)}')
    t = tail_ops(n ^ 1)
    va_prev, va_cur, va_nxt = V_VAA[par ^ 1], V_VAA[par], V_VAA[par ^ 1]
    sh = [f'v_lshlrev_b32 v{g+i}, 16, v{g+i}' for i in range(16)]
    ex = [f'v_exp_f32 v{Z+i}, v{Z+i} clamp' for i in range(16)]
    l3 = [f'v_pk_mul_f32 {p(V_T01N)}, {p(V_T01N)}, {p(V_T23D)}',
          f'v_pk_mul_f32 {p(V_T23D)}, {p(V_T01D)}, {p(V_T23D)}',
          f'v_pk_fma_f32 {p(V_T01N)}, {p(V_T23N)}, {p(V_T01D)}, {p(V_T01N)}',
          f'v_rcp_f32 v{V_T23D}, v{V_T23D}',
          f'v_rcp_f32 v{V_T23D+1}, v{V_T23D+1}',
          f'v_pk_fma_f32 {p((V_MA, V_MB)[n ^ 1])}, {p(V_T01N)}, {p(V_T23D)}, {p((V_MA, V_MB)[n ^ 1])}']
    if with_tail and not M8:
        for r_ in (V_T01D, V_T01D + 1, V_T23D, V_T23D + 1):
            I(f'v_rcp_f32 v{r_}, v{r_}')
    else:
        I('s_nop 3')
    if n == 1:
        lg.op('e', f'ds_read_b64 {p(A5)}, v{V_PE} offset:{(uo+1)*64}')
        lg.op('P1a', f'ds_read_b32 v{B5[1]+2}, v{V_VAP} offset:4')
        lg.op('P1b', f'ds_read_b32 v{B5[1]+3}, v{V_VAP+1} offset:4')
    else:
        lg.op('dP', f'ds_read_b64 {p(V_VAP)}, v{V_PD} offset:{(uo+1)*256}')
        I('s_nop 1')
    for op in sh[:8]:
        I(op)
    seq = []
    if with_tail and not M8:
        Mp = p((V_MA, V_MB)[n ^ 1])
        seq = ['NEED', f'v_pk_fma_f32 {Mp}, {p(V_T01N)}, {p(V_T01D)}, {Mp}', ex[0],
               f'v_pk_fma_f32 {Mp}, {p(V_T23N)}, {p(V_T23D)}, {Mp}', sh[8], 'ACC', ex[1], sh[9]]
    elif with_tail:
        seq = [l3[0], l3[1], ex[0], l3[2], l3[3], sh[8], l3[4], ex[1], sh[9], 'NEED', l3[5], 'ACC']
    else:
        seq = [ex[0], sh[8], ex[1], sh[9], 'ACC']
    for op in seq:
        if op == 'NEED':
            lg.need('Ra', 'Rb', 'Rc', 'Rd')
        elif op == 'ACC':
            if n == 0:
                if with_tail:
                    acc_write(lg, va_prev)
                acc_read(lg, va_cur)
                lg.op('dA', f'ds_read_b64 {p(va_nxt)}, v{V_PD} offset:{(uo+1)*256 + DESCA - DESCP}')
        else:
            I(op)
    for i in range(2, 12):
        I(ex[i])
        if 8 + i < 16:
            I(sh[8 + i])
        if n == 0 and i == 11:
            lg.need('dP', 'dA')
            va_add(V_VAP, va_nxt)
            lg.op('P0a', f'ds_read_b32 v{B5[0]+2}, v{V_VAP}')
            lg.op('P0b', f'ds_read_b32 v{B5[0]+3}, v{V_VAP+1}')
    for op in ex[12:]:
        I(op)
    for i in range(0, 16, 2):
        if M8:
            I(f'v_pk_fma_f32 {p(Z+i)}, {p(Z+i)}, {p(V_SCP)}, {sp(S_C)}')
        else:
            I(f'v_pk_add_f32 {p(Z+i)}, {p(Z+i)}, {sp(S_C)}')
    def T(k): return f'v_pk_mul_f32 {p(V_TT[k&1])}, {p(g+4*k)}, {p(Z+4*k+2)}'
    def DD(k): return f'v_pk_mul_f32 {p(Z+4*k+2)}, {p(Z+4*k)}, {p(Z+4*k+2)}'
    def NN(k): return f'v_pk_fma_f32 {p(Z+4*k)}, {p(g+4*k+2)}, {p(Z+4*k)}, {p(V_TT[k&1])}'
    for k0 in (0, 2):
        for op in (T(k0), T(k0 + 1), DD(k0), DD(k0 + 1), NN(k0), NN(k0 + 1)):
            I(op)
        if n == 0 and k0 == 0:
            lg.need('S0', 'S1', 'S2', 'S3')
            s_safe()
        I(f's_mov_b64 exec, {sp(S_LDX)}')
        for i in range(4 * k0, 4 * k0 + 8):
            I(gload(n, i))
        I('s_mov_b64 exec, -1')
    if n == 1:
        s_reads(lg, uo + 2)
    I(f'v_pk_mul_f32 {p(V_T01N)}, {p(Z)}, {p(Z+6)}')
    I(f'v_pk_mul_f32 {p(V_T23N)}, {p(Z+8)}, {p(Z+14)}')
    I(f'v_pk_mul_f32 {p(V_T01D)}, {p(Z+2)}, {p(Z+6)}')
    I(f'v_pk_mul_f32 {p(V_T23D)}, {p(Z+10)}, {p(Z+14)}')
    I(f'v_pk_fma_f32 {p(V_T01N)}, {p(Z+4)}, {p(Z+2)}, {p(V_T01N)}')
    I(f'v_pk_fma_f32 {p(V_T23N)}, {p(Z+12)}, {p(Z+10)}, {p(V_T23N)}')

PRIO = {
    3: {(3, 0): 2, (2, 0): 1, (1, 0): 0},
    5: {(2, 0): 2, (1, 0): 1, (1, 1): 0},
    6: {(3, 0): 2, (1, 0): 1, (1, 1): 0},
    7: {(2, 1): 2, (1, 0): 1, (1, 1): 0},
    8: {(4, 0): 2, (2, 0): 1, (1, 1): 0},
    9: {(3, 0): 2, (2, 1): 1, (1, 1): 0},
    10: {(5, 0): 2, (3, 0): 1, (1, 0): 0},
    11: {(5, 0): 2, (3, 0): 1, (1, 1): 0},
    12: {(4, 0): 2, (2, 0): 1, (1, 1): 0},
    13: {(5, 0): 2, (2, 0): 1, (1, 1): 0},
    0: {},
}[opt('prio', 9)]
def prio(tag, phase=0):
    for (t, ph), lvl in PRIO.items():
        if ph != phase:
            continue
        I(f's_cmp_eq_u32 s{S_CNT}, {t}')
        I(f's_cbranch_scc0 L_PR{tag}_{lvl}')
        I(f's_setprio {lvl}')
        L(f'L_PR{tag}_{lvl}')

def split_hilo(a, b, t0, t1):
    I(f'v_cvt_pk_bf16_f32 v{t0}, v{a}, v{b}')
    I(f'v_lshlrev_b32 v{t1}, 16, v{t0}')
    I(f'v_and_b32 v{t0}, 0xffff0000, v{t0}')
    I(f'v_sub_f32 v{a}, v{a}, v{t1}')
    I(f'v_sub_f32 v{b}, v{b}, v{t0}')
    I(f'v_cvt_pk_bf16_f32 v{a}, v{t1}, v{a}')
    I(f'v_cvt_pk_bf16_f32 v{b}, v{t0}, v{b}')

V_AA, V_AB, V_AD, V_AP = 6, 7, 8, 9
SA, SB, SD = 80, 96, 112

def phase0_addr():
    I(f's_and_b32 s{S_T}, s{S_W}, 3')
    I(f's_lshr_b32 s{S_T+1}, s{S_W}, 2')
    I(f'v_and_b32 v12, 15, v{V_LANE}')
    I(f'v_lshrrev_b32 v13, 4, v{V_LANE}')
    I(f'v_bfe_u32 v14, v{V_LANE}, 1, 3')
    I(f'v_xor_b32 v14, v14, v13')
    I(f'v_lshlrev_b32 v14, 4, v14')
    I(f'v_lshl_or_b32 v14, v12, 7, v14')
    I(f's_lshl_b32 s{S_T+2}, s{S_T}, 11')
    I(f'v_add_u32 v{V_AA}, s{S_T+2}, v14')
    I(f'v_bfe_u32 v14, v{V_LANE}, 2, 2')
    I(f'v_lshl_add_u32 v14, v13, 3, v14')
    I(f'v_lshlrev_b32 v14, 7, v14')
    I(f'v_and_b32 v15, 3, v{V_LANE}')
    I(f'v_lshl_add_u32 v14, v15, 3, v14')
    I(f's_lshl_b32 s{S_T+2}, s{S_T+1}, 5')
    I(f'v_or_b32 v14, s{S_T+2}, v14')
    I(f'v_and_b32 v15, 24, v{V_LANE}')
    I(f'v_lshlrev_b32 v15, 2, v15')
    I(f'v_xor_b32 v14, v14, v15')
    I(f'v_add_u32 v{V_AB}, {WRAW}, v14')
    I(f's_lshl_b32 s{S_T+2}, s{S_T}, 12')
    I(f'v_lshlrev_b32 v13, 10, v13')
    I(f'v_add_u32 v13, s{S_T+2}, v13')
    I(f's_lshl_b32 s{S_T+2}, s{S_T+1}, 6')
    I(f's_add_u32 s{S_T+2}, s{S_T+2}, {NTI}')
    I(f'v_lshl_add_u32 v{V_AD}, v12, 2, v13')
    I(f'v_add_u32 v{V_AD}, s{S_T+2}, v{V_AD}')
    I(f's_and_b32 s{S_T+2}, s{S_T+1}, 1')
    I(f's_lshl_b32 s{S_T+2}, s{S_T+2}, 7')
    I(f's_lshr_b32 s{S_T+3}, s{S_T+1}, 1')
    I(f's_lshl_b32 s{S_T+3}, s{S_T+3}, 2')
    I(f's_add_u32 s{S_T+2}, s{S_T+2}, s{S_T+3}')
    I(f's_add_u32 s{S_T+2}, s{S_T+2}, {PT}')
    I(f'v_lshl_add_u32 v{V_AP}, v12, 3, v13')
    I(f'v_add_u32 v{V_AP}, s{S_T+2}, v{V_AP}')

def b_reads(dst, off):
    for sg in range(2):
        for pp in range(2):
            I(f'ds_read_b64_tr_b16 {vr(dst+4*sg+2*pp,2)}, v{V_AB} offset:{off+sg*4096+pp*512}')

def mm16(d, b):
    I(f'v_mfma_f32_16x16x32_bf16 {vr(d,4)}, {vr(SA,4)}, {vr(b,4)}, 0')
    I(f'v_mfma_f32_16x16x32_bf16 {vr(d,4)}, {vr(SA+4,4)}, {vr(b+4,4)}, {vr(d,4)}')

def phase0a():
    I(f'v_add_u32 v12, {XOWN}, v{V_AA}')
    I(f'v_xor_b32 v13, 64, v{V_AA}')
    I(f'v_add_u32 v13, {XOWN}, v13')
    I(f'ds_read_b128 {vr(SA,4)}, v12')
    I(f'ds_read_b128 {vr(SA+4,4)}, v13')
    b_reads(SB, 8192)
    b_reads(SB + 8, WV_ - WRAW)
    I(f's_mov_b32 s{S_T+4}, 0x{f2u(-LOG2E):x}')
    I(f's_mov_b32 s{S_T+6}, 0x7fffffff')
    I(f's_mov_b32 s{S_T+7}, 0xffff0000')
    I('s_waitcnt lgkmcnt(4)')
    mm16(SD, SB)
    I('s_waitcnt lgkmcnt(0)')
    mm16(SD + 4, SB + 8)
    I('s_nop 4')
    for i in range(4):
        I(f'v_mul_f32 v{SD+i}, s{S_T+4}, v{SD+i}')
    for i in range(4):
        I(f'v_and_b32 v{SD+8+i}, s{S_T+6}, v{SD+i}')
    for i in range(4):
        if SV:
            I(f'v_mul_f32 v{SD+4+i}, 0x{f2u(2.0**SV):x}, v{SD+4+i}')
        I(f'v_add_u32 v{SD+8+i}, 0x8000, v{SD+8+i}')
    I(f'v_cvt_pk_bf16_f32 v{SD+4}, v{SD+4}, v{SD+5}')
    I(f'v_cvt_pk_bf16_f32 v{SD+6}, v{SD+6}, v{SD+7}')
    I(f'v_lshrrev_b32 v{SD+5}, 16, v{SD+4}')
    I(f'v_lshrrev_b32 v{SD+7}, 16, v{SD+6}')
    I(f'v_and_b32 v{SD+4}, 0xffff, v{SD+4}')
    I(f'v_and_b32 v{SD+6}, 0xffff, v{SD+6}')
    for i in range(4):
        I(f'v_sub_u32 v{SD+8+i}, v{SD+8+i}, v{SD+4+i} clamp')
    for i in range(4):
        I(f'v_and_or_b32 v{SD+8+i}, v{SD+8+i}, s{S_T+7}, v{SD+4+i}')
    for i in range(4):
        I(f'v_bfi_b32 v{SD+i}, s{S_T+6}, v{SD+8+i}, v{SD+i}')
        I(f'ds_write_b32 v{V_AD}, v{SD+i} offset:{i*256}')

def phase0b():
    b_reads(SB, 0)
    b_reads(SB + 8, WU_ - WRAW)
    I(f's_mov_b32 s{S_T+4}, 0x{f2u(-LOG2E):x}')
    I(f's_mov_b32 s{S_T+5}, 0x{f2u(2.0**(SV+KH)):x}')
    I(f'v_mov_b32 v13, 0x{f2u(-float(KEXP)):x}')
    I(f's_and_b32 s{S_T+6}, s{S_W}, 3')
    I('s_waitcnt lgkmcnt(4)')
    mm16(SD, SB)
    I('s_waitcnt lgkmcnt(0)')
    mm16(SD + 4, SB + 8)
    I('s_nop 4')
    for i in range(4):
        I(f'v_fma_f32 v{SD+i}, v{SD+i}, s{S_T+4}, v13')
    split_hilo(SD, SD + 1, 12, 13)
    split_hilo(SD + 2, SD + 3, 12, 13)
    for i in range(4):
        I(f'v_mul_f32 v{SD+4+i}, s{S_T+5}, v{SD+4+i}')
    I(f's_cmp_eq_u32 s{S_T+6}, 3')
    I(f's_cselect_b64 exec, 0xffff, -1')
    I(f'ds_write_b32 v{V_AP}, v{SD}')
    I(f'ds_write_b32 v{V_AP}, v{SD+4} offset:{ACCN-PT}')
    I(f's_cselect_b64 exec, 0, -1')
    for i in range(1, 4):
        I(f'ds_write_b32 v{V_AP}, v{SD+i} offset:{i*256}')
        I(f'ds_write_b32 v{V_AP}, v{SD+4+i} offset:{ACCN-PT+i*256}')
    I('s_mov_b64 exec, -1')

def phase0c():
    I(f'v_bfe_u32 v13, v{V_LANE}, 2, 2')
    I(f'v_lshlrev_b32 v13, 7, v13')
    I(f'v_bfe_u32 v15, v{V_LANE}, 4, 1')
    I(f'v_lshl_add_u32 v13, v15, 5, v13')
    I(f'v_and_b32 v15, 3, v{V_LANE}')
    I(f'v_lshl_add_u32 v13, v15, 3, v13')
    I(f'v_and_b32 v15, 8, v{V_LANE}')
    I(f'v_lshlrev_b32 v15, 2, v15')
    I(f'v_xor_b32 v13, v13, v15')
    I(f'v_add_u32 v13, {WG_ + 16384}, v13')
    I(f'ds_read_b64_tr_b16 v[96:97], v13')
    I(f'ds_read_b64_tr_b16 v[98:99], v13 offset:64')
    I(f's_mov_b32 s{S_T+4}, 0x{f2u(-LOG2E):x}')
    I(f'v_cmp_lt_u32 vcc, 31, v{V_LANE}')
    I('s_waitcnt lgkmcnt(0)')
    for m in range(4):
        I(f'v_lshlrev_b32 v{100+2*m}, 16, v{96+m}')
        I(f'v_and_b32 v{101+2*m}, 0xffff0000, v{96+m}')
    for j in range(8):
        I(f'v_mul_f32 v{100+j}, s{S_T+4}, v{100+j}')
    for m in range(4):
        dst = B5[m >> 1] + (m & 1)
        I(f'v_cvt_pk_bf16_f32 v{96+m}, v{100+2*m}, v{101+2*m}')
        I(f'v_lshlrev_b32 v12, 16, v{96+m}')
        I(f'v_and_b32 v13, 0xffff0000, v{96+m}')
        I(f'v_sub_f32 v12, v{100+2*m}, v12')
        I(f'v_sub_f32 v13, v{101+2*m}, v13')
        I(f'v_cvt_pk_bf16_f32 v12, v12, v13')
        I(f'v_cndmask_b32 v{dst}, v{96+m}, v12, vcc')

def a5_const():
    I(f'v_bfe_u32 v12, v{V_LANE}, 2, 1')
    I(f'v_lshrrev_b32 v13, 5, v{V_LANE}')
    I(f'v_xor_b32 v12, v12, v13')
    I(f'v_and_b32 v13, 1, v{V_LANE}')
    I(f'v_lshl_or_b32 v12, v12, 1, v13')
    I(f'v_mov_b32 v13, 0x3f803f80')
    I(f'v_cmp_eq_u32 vcc, 0, v12')
    I(f'v_cmp_eq_u32 {sp(S_T)}, 1, v12')
    I('s_nop 1')
    I(f'v_cndmask_b32 v{A5+2}, 0, v13, vcc')
    I(f'v_cndmask_b32 v{A5+3}, 0, v13, {sp(S_T)}')

def nt_prefetch(vt, first=0, nl=None, dst=96):
    if CM:
        I(f's_lshr_b32 s{S_T}, s2, 4')
        I(f's_lshl_b32 s{S_T+1}, s{S_W}, 4')
        I(f's_add_u32 s{S_T}, s{S_T}, s{S_T+1}')
    else:
        I(f's_lshr_b32 s{S_T}, s2, 4')
        I(f's_lshl_b32 s{S_T+1}, s{S_W}, 4')
        I(f's_add_u32 s{S_T}, s{S_T}, s{S_T+1}')
        I(f's_and_b32 s{S_T+1}, s{S_T}, 7')
        I(f's_lshl_b32 s{S_T+1}, s{S_T+1}, 5')
        I(f's_lshr_b32 s{S_T}, s{S_T}, 3')
        I(f's_add_u32 s{S_T}, s{S_T}, s{S_T+1}')
    if not opt('xmap', 1):
        I(f's_lshr_b32 s{S_T}, s2, 4')
        I(f's_lshl_b32 s{S_T+1}, s{S_W}, 4')
        I(f's_add_u32 s{S_T}, s{S_T}, s{S_T+1}')
    I(f's_lshl_b32 s{S_T}, s{S_T}, 1')
    I(f's_bfe_u32 s{S_T+1}, s2, 0x10003')
    I(f's_add_u32 s{S_T}, s{S_T}, s{S_T+1}')
    I(f's_mul_i32 s{S_T}, s{S_T}, {NB*128}')
    I(f's_add_u32 s{S_T}, s{S_T}, 0x{WS_NT:x}')
    srd_off(S_NTS, S_WSP, S_WSP + 1, f's{S_T}', NB * 128)
    if NPFM >= 3:
        I(f'v_lshlrev_b32 v{vt}, {7 if NPFM >= 4 else 6}, v{V_LANE}')
        I(f'v_add_u32 v{vt+1}, 4096, v{vt}')
        nl = opt("pfl", 6) if nl is None else nl
        I(f's_mov_b32 exec_lo, 0x{(((1 << nl) - 1) << first) & 0xffffffff:x}')
        I(f's_mov_b32 exec_hi, 0x{(((1 << nl) - 1) << first) >> 32:x}')
        for k in range(NPF):
            I(f'buffer_load_dword v{dst+k}, v{vt+k}, {sr4(S_NTS)}, 0 offen' + (LSC if opt('pfsc', 1) else ''))
        I('s_mov_b64 exec, -1')
        return
    I(f'v_lshlrev_b32 v{vt}, 4, v{V_LANE}')
    I(f'v_add_u32 v{vt+1}, 4096, v{vt}')
    for k in range(NPF):
        I(f'buffer_load_dwordx4 {vr(96+4*k,4)}, v{vt+(k>>2)}, {sr4(S_NTS)}, 0 offen offset:{(k&3)*1024}' + LSC)

def ptr_consts():
    I(f'v_lshrrev_b32 v{V_PS1}, 5, v{V_LANE}')
    I(f's_lshl_b32 s{S_T}, s{S_W}, 4')
    I(f's_add_u32 s{S_T}, s{S_T}, {DESCP}')
    I(f'v_lshlrev_b32 v{V_PD}, 3, v{V_PS1}')
    I(f'v_add_u32 v{V_PS1}, v{V_PS1}, v{V_PS1}')
    I(f'v_add_u32 v{V_PD}, s{S_T}, v{V_PD}')
    I(f'v_bfe_u32 v{V_VAP}, v{V_LANE}, 2, 1')
    I(f'v_and_b32 v{V_PE}, 1, v{V_LANE}')
    I(f'v_lshl_or_b32 v{V_VAP}, v{V_VAP}, 1, v{V_PE}')
    I(f'v_bfe_u32 v{V_PE}, v{V_LANE}, 3, 2')
    I(f'v_bfe_u32 v{V_PS0}, v{V_LANE}, 1, 1')
    I(f'v_lshl_or_b32 v{V_PE}, v{V_PE}, 1, v{V_PS0}')
    I(f'v_lshlrev_b32 v{V_PE}, 3, v{V_PE}')
    I(f'v_add_u32 v{V_PE}, {LE}, v{V_PE}')

def gen():
    e(f'.globl {KNAME}')
    e('.p2align 8')
    e(f'.type {KNAME},@function')
    L(KNAME)
    I(f's_cmp_ge_u32 s2, {NWG}')
    I('s_cbranch_scc1 L_END')
    I('s_load_dwordx8 s[84:91], s[0:1], 0')
    I('s_load_dwordx4 s[4:7], s[0:1], 32')
    I('s_load_dwordx4 s[8:11], s[0:1], 48')
    I('s_load_dwordx4 s[56:59], s[0:1], 64')
    if PROF:
        I(f'v_mov_b32 v{V_PROF}, 0')
    rstamp(30)
    stamp(0)
    zregs()
    zero_range(CNT, BASE2 - CNT, X + 2, X)
    I(f'v_lshlrev_b32 v{X+6}, 2, v{V_TID}')
    I(f's_mul_i32 s61, s2, {CH*4}')
    I(f's_mul_i32 s63, s2, {CH}')
    I(f's_sub_u32 s63, {E_EDGES}, s63')
    I(f's_min_u32 s63, s63, {CH}')
    I(f's_lshl_b32 s64, s63, 2')
    I(f'v_add_u32 v{X+8}, 4096, v{X+6}')
    I(f'v_add_u32 v{X+9}, 8192, v{X+6}')
    I(f'v_add_u32 v{X+10}, 12288, v{X+6}')
    I(f'v_lshrrev_b32 v{X+1}, 6, v{V_TID}')
    I(f'v_and_b32 v{V_LANE}, 63, v{V_TID}')
    I(f'v_readfirstlane_b32 s{S_W}, v{X+1}')
    I('s_and_b32 s3, s2, 7')
    I('s_lshl_b32 s3, s3, 5')
    I('s_lshr_b32 s60, s2, 3')
    I('s_add_u32 s3, s3, s60')
    if not opt('xmap', 1):
        I('s_mov_b32 s3, s2')
    I(f's_mul_i32 s62, s2, {CH*8}')
    I(f's_lshl_b32 s65, s63, 3')
    I(f'v_and_b32 v97, 0x50, v{V_TID}')
    I(f'v_lshlrev_b32 v96, 1, v97')
    I(f'v_or_b32 v97, v97, v96')
    I(f'v_and_b32 v97, 0x60, v97')
    I(f'v_xor_b32 v97, v97, v{X}')
    I(f'v_and_b32 v96, 0x20, v96')
    I(f'v_lshlrev_b32 v98, 4, v{V_LANE}')
    I(f'v_xor_b32 v96, v96, v98')
    I(f's_lshl_b32 s66, s{S_W}, 10')
    I(f'v_and_b32 v101, 0x1fff, v97')
    I(f'v_lshrrev_b32 v98, 3, v{V_TID}')
    I(f'v_bfe_u32 v99, v98, 1, 3')
    I(f'v_and_b32 v100, 7, v{V_TID}')
    I(f'v_xor_b32 v99, v99, v100')
    I(f'v_lshlrev_b32 v99, 4, v99')
    I(f'v_lshl_add_u32 v99, v98, 7, v99')
    I(f's_mul_i32 s60, s3, {NB*128}')
    I(f'v_add_u32 v99, s60, v99')
    I(f'v_add_u32 v96, 16384, v96')
    I('s_waitcnt lgkmcnt(0)')
    I(f's_or_b32 s67, s2, s{S_W}')
    I('s_cmp_lg_u32 s67, 0')
    I('s_cbranch_scc1 L_NOTAG')
    I('s_memrealtime s[68:69]')
    I(f'v_mov_b32 v{X+2}, 0')
    I('s_waitcnt lgkmcnt(0)')
    I('s_or_b32 s68, s68, 1')
    I(f'v_mov_b32 v{X+3}, s68')
    I('s_mov_b64 exec, 1')
    I(f'global_store_dword v{X+2}, v{X+3}, s[56:57] sc1')
    I('s_mov_b64 exec, -1')
    L('L_NOTAG')
    def dst_loads():
        srd_off(S_DST, 90, 91, 's61', 's64')
        for k in range(4):
            I(f'buffer_load_dword v{64+k}, v{X+6 if k == 0 else X+7+k}, {sr4(S_DST)}, 0 offen' + ELD)
    def dma_loads():
        srd(S_WS, 8, 9, 132 * 128)
        I(f's_add_u32 m0, s66, {WG_}')
        srd(S_XS, 84, 85, N_NODES * 128)
        I(f'buffer_load_dwordx4 v97, {sr4(S_WS)}, 0 offen lds')
        I(f's_cmp_lt_u32 s{S_W}, 8')
        I(f's_cselect_b32 s{S_NTS}, s6, s4')
        I(f's_cselect_b32 s{S_NTS+1}, s7, s5')
        I(f's_mov_b32 s{S_NTS+2}, {64*128}')
        I(f's_mov_b32 s{S_NTS+3}, 0x00020000')
        I(f's_add_u32 m0, s66, {WV_}')
        I('s_nop 0')
        I(f'buffer_load_dwordx4 v101, {sr4(S_NTS)}, 0 offen lds')
        I(f's_cmp_lt_u32 s{S_W}, 8')
        I('s_cbranch_scc0 L_D3B')
        I(f's_add_u32 m0, s66, {XOWN}')
        I('s_nop 0')
        I(f'buffer_load_dwordx4 v99, {sr4(S_XS)}, 0 offen lds')
        I('s_branch L_D3C')
        L('L_D3B')
        I(f's_mov_b32 m0, {WG_ + 16384}')
        I('s_nop 0')
        I(f'buffer_load_dwordx4 v96, {sr4(S_WS)}, 0 offen lds')
        L('L_D3C')
    if opt('t0', 0):
        I(f'v_and_b32 v60, 15, v{V_LANE}')
        I(f'v_lshlrev_b32 v60, 20, v60')
        I(f'v_and_b32 v61, 1, v{V_LANE}')
        I(f'v_lshlrev_b32 v61, 20, v61')
        I(f'global_load_dword v62, v60, s[58:59]')
        I(f'global_load_dword v63, v61, s[10:11]')
    ORDER = opt('order', 2)
    if ORDER == 0:
        dma_loads()
    dst_loads()
    if ORDER == 2:
        dma_loads()
    F1 = opt('f1', 1)
    if F1:
        I('s_barrier')
    srd_off(S_SRC, 88, 89, 's61', 's64')
    LATE = opt('late', 0)
    def src_load(k):
        I(f'buffer_load_dword v{68+k}, v{X+6 if k == 0 else 43+k}, {sr4(S_SRC)}, 0 offen' + ELD)
    for k in range(1, 4):
        I(f'v_mov_b32 v{43+k}, v{X+7+k}')
    NS = opt('ns', 1) if LATE else 4
    for k in range(NS):
        src_load(k)
    srd_off(S_EA, 86, 87, 's62', 's65')
    I(f'v_lshlrev_b32 v92, 3, v{V_TID}')
    for k in range(1, 4):
        I(f'v_add_u32 v{92+k}, {8192*k}, v92')
    def e_load(k):
        I(f'buffer_load_dwordx2 v[{72+2*k}:{73+2*k}], v{92+k}, {sr4(S_EA)}, 0 offen' + ELD)
    NEE = opt('ne', 1) if LATE else opt('nee', 4)
    for k in range(NEE):
        e_load(k)
    if ORDER == 1:
        dma_loads()
    I(f's_mov_b64 {sp(S_DBG)}, s[56:57]')
    I(f's_add_u32 s{S_WSP}, s58, 0x{WSB:x}')
    I(f's_addc_u32 s{S_WSP+1}, s59, 0')
    stamp(1)
    srd(S_OUT, 10, 11, N_NODES * 128)
    I(f's_mul_i32 s{S_T}, s2, {CAP*4}')
    srd_off(S_RW, S_WSP, S_WSP + 1, f's{S_T}', CAP * 4)
    I(f's_lshl_b32 s{S_T}, s{S_T}, 1')
    I(f's_add_u32 s{S_T}, s{S_T}, 0x{WS_RE:x}')
    srd_off(S_RE, S_WSP, S_WSP + 1, f's{S_T}', CAP * 8)
    I(f's_lshl_b32 s{S_T}, s2, 11')
    I(f's_add_u32 s{S_T}, s{S_T}, 0x{WS_TAB:x}')
    srd_off(S_TAB, S_WSP, S_WSP + 1, f's{S_T}', (KREP - 1) * 0x80000 + 2048)
    I(f's_mul_i32 s{S_T}, s3, {NB*256}')
    I(f's_add_u32 s{S_T}, s{S_T}, 0x{WS_NT:x}')
    srd_off(S_NTS, S_WSP, S_WSP + 1, f's{S_T}', NB * 256)
    I(f's_add_u32 s{S_NTG}, s{S_WSP}, 0x{WS_NT:x}')
    I(f's_addc_u32 s{S_NTG+1}, s{S_WSP+1}, 0')
    I(f's_or_b32 s{S_NTG+1}, s{S_NTG+1}, 0x80000000')
    I(f's_mov_b32 s{S_NTG+2}, 0x400000')
    I(f's_mov_b32 s{S_NTG+3}, 0x00c00000')
    srd_off(S_DST, S_WSP, S_WSP + 1, '0x%x' % WS_RW, NWG * CAP * 4)
    if not LATE:
        srd_off(S_SRC, S_WSP, S_WSP + 1, '0x%x' % WS_RE, NWG * CAP * 8)
    for k in range(4):
        I(f'v_add_u32 v{X+1}, {1024*k}, v{V_TID}')
        I(f'v_cmp_gt_u32 {sp(S_MASK+2*k)}, s63, v{X+1}')
    I(f's_mov_b32 s{S_C}, 0x{f2u(2.0**-KH):x}')
    I(f's_mov_b32 s{S_C+1}, 0x{f2u(2.0**-KH):x}')
    I(f's_mov_b32 s{S_JB}, 0')
    I(f's_mov_b32 s{S_WID}, 128')
    I(f'v_and_b32 v{V_J4}, 7, v{V_LANE}')
    I(f'v_lshlrev_b32 v{V_J4}, 3, v{V_J4}')
    if CM:
        I(f'v_and_b32 v{X+1}, 56, v{V_LANE}')
        I(f's_and_b32 s{S_T}, s{S_W}, 1')
        I(f's_lshl_b32 s{S_T}, s{S_T}, 7')
        I(f's_lshr_b32 s{S_T+1}, s{S_W}, 1')
        I(f's_add_u32 s{S_T}, s{S_T}, s{S_T+1}')
    else:
        I(f'v_lshrrev_b32 v{X+1}, 3, v{V_LANE}')
        I(f's_lshl_b32 s{S_T}, s{S_W}, 4')
    I(f'v_add_u32 v{X+1}, s{S_T}, v{X+1}')
    I(f'v_lshlrev_b32 v{V_TAB+2}, 11, v{X+1}')
    I(f'v_mul_u32_u24 v{V_CB4}, {CAP*4}, v{X+1}')
    I(f'v_add_u32 v{V_CB4}, v{V_CB4}, v{V_J4}')
    I(f'v_and_b32 v{V_CH8}, 31, v{V_LANE}')
    I(f'v_lshlrev_b32 v{V_CH8}, 3, v{V_CH8}')
    I(f'v_add_u32 v{V_CHP}, {PT}, v{V_CH8}')
    phase0_addr()
    a5_const()
    if not F1:
        I(f's_waitcnt vmcnt({8 + NEE if ORDER == 0 else 0})')
        I('s_barrier')
    stamp(2)
    def late_loads():
        if LATE:
            for k in range(NS, 4):
                src_load(k)
        for k in range(NEE, 4):
            e_load(k)
        if not (LATE and TP):
            I(f'v_mov_b32 v12, 0')
            I(f'global_load_dword v10, v12, {sp(S_DBG)} sc1')
        if TCH:
            I(f'v_lshlrev_b32 v13, 13, v{V_LANE}')
            I(f'buffer_load_dword v60, v13, {sr4(S_RW)}, 0 offen')
            I(f'buffer_load_dword v61, v13, {sr4(S_RE)}, 0 offen')
            I(f'buffer_load_dword v62, v13, {sr4(S_TAB)}, 0 offen')
            I(f'buffer_load_dword v63, v13, {sr4(S_NTS)}, 0 offen')
        srd_off(S_EA, S_WSP, S_WSP + 1, '0x%x' % WS_TAB, 0x80000 + NWG * 128)
        if LATE:
            srd_off(S_SRC, S_WSP, S_WSP + 1, '0x%x' % WS_RE, NWG * CAP * 8)
    if not LATE:
        late_loads()
    elif TP:
        I(f'v_mov_b32 v12, 0')
        I(f'global_load_dword v10, v12, {sp(S_DBG)} sc1')
    if not F1:
        phase0a()
    I(f's_mov_b32 s{S_T}, -{NB}')
    I(f'v_mov_b32 v{X+1}, 4')
    BN, WD, RK = 28, 32, 36
    for k in range(4):
        I(f's_waitcnt vmcnt({((3 + NS + NEE + TP if ORDER == 0 else 6 + NS + NEE + TP) if LATE else (12 if ORDER == 0 else 15) + TCH) - k})')
        I(f's_mov_b64 exec, {sp(S_MASK+2*k)}')
        if k == 3:
            I('s_cbranch_execz L_B1')
        I(f'v_mul_u32_u24 v{BN+k}, 21400, v{64+k}')
        I(f'v_lshrrev_b32 v{BN+k}, 20, v{BN+k}')
        I(f'v_mad_i32_i24 v{WD+k}, v{BN+k}, s{S_T}, v{64+k}')
        I(f'v_lshlrev_b32 v{BN+k}, 2, v{BN+k}')
        I(f'ds_add_rtn_u32 v{RK+k}, v{BN+k}, v{X+1} offset:{HIST}')
        I(f'v_lshlrev_b32 v{WD+k}, 26, v{WD+k}')
    L('L_B1')
    I('s_mov_b64 exec, -1')
    if LATE:
        late_loads()
    I(f'v_add_u32 v{X+1}, {NTI}, v{X}')
    stamp(3)
    I({0: 's_waitcnt lgkmcnt(0)', 1: 's_waitcnt vmcnt(1) lgkmcnt(0)', 2: f's_waitcnt vmcnt({9 + TCH}) lgkmcnt(0)'}[ORDER])
    I('s_barrier')
    stamp(4)
    if not F1:
        I(f'ds_read_b128 v[112:115], v{X+1}')
    I(f's_cmp_lg_u32 s{S_W}, 0')
    I('s_cbranch_scc1 L_NOSCAN')
    I(f'ds_read_b128 v[96:99], v{X} offset:{HIST}')
    I('s_waitcnt lgkmcnt(0)')
    for k in range(4):
        I(f'v_add_u32 v{108+k}, 4, v{96+k}')
        I(f'v_and_b32 v{108+k}, -8, v{108+k}')
    I('v_add_u32 v101, v108, v109')
    I('v_add_u32 v102, v101, v110')
    I('v_add_u32 v103, v102, v111')
    I('v_mov_b32 v104, v103')
    wave_scan(104)
    I(f'v_readlane_b32 s{S_T+4}, v104, 63')
    I('v_sub_u32 v104, v104, v103')
    I(f'v_mov_b32 v100, {MISC+8}')
    I(f'v_mov_b32 v105, s{S_T+4}')
    I('ds_write_b32 v100, v105')
    I('v_add_u32 v105, v104, v108')
    I('v_add_u32 v106, v104, v101')
    I('v_add_u32 v107, v104, v102')
    I(f'ds_write_b128 v{X}, v[104:107] offset:{HBASE}')
    for k in range(4):
        I(f'v_lshl_or_b32 v{108+k}, v{96+k}, 16, v{104+k}')
    I(f'ds_write_b128 v{X}, v[108:111] offset:{HIST}')
    L('L_NOSCAN')
    if F1:
        phase0a()
    I('s_waitcnt lgkmcnt(0)')
    if not F1:
        I(f'buffer_store_dwordx4 v[112:115], v{X}, {sr4(S_NTS)}, 0 offen' + SC)
    if T1:
        I(f's_mul_i32 s{S_T+4}, s3, {NB*128}')
        I(f'v_mov_b32 v60, s{S_T+4}')
        I(f'buffer_load_dword v61, v60, {sr4(S_OUT)}, 0 offen')
    if not SRCL:
        I(f's_waitcnt vmcnt({4 + TCH + T1 if LATE else 6 - F1 + TCH + T1})')
        for k in range(4):
            I(f'v_lshl_or_b32 v{WD+k}, v{68+k}, 3, v{WD+k}')
    I('s_barrier')
    stamp(5)
    if F1:
        I(f'ds_read_b128 v[112:115], v{X+1}')
    for k in range(4):
        I(f's_mov_b64 exec, {sp(S_MASK+2*k)}')
        I(f'ds_read_b32 v{BN+k}, v{BN+k} offset:{HBASE}')
    if F1:
        I('s_mov_b64 exec, -1')
        I('s_waitcnt lgkmcnt(4)')
        I(f'buffer_store_dwordx4 v[112:115], v{X}, {sr4(S_NTS)}, 0 offen' + SC)
    if SRCL == 1:
        I(f's_waitcnt vmcnt({5 + TCH + T1})')
        for k in range(4):
            I(f'v_lshl_or_b32 v{WD+k}, v{68+k}, 3, v{WD+k}')
            if BANDS:
                I(f'v_lshrrev_b32 v{68+k}, 11, v{68+k}')
                I(f'v_lshl_or_b32 v{WD+k}, v{68+k}, 23, v{WD+k}')
    if SRCL < 2:
        I(f's_waitcnt vmcnt({2 + TCH + T1})')
    for k in range(4):
        I(f's_mov_b64 exec, {sp(S_MASK+2*k)}')
        if k == 3:
            I('s_cbranch_execz L_B2')
        if SRCL == 2:
            assert LATE and not TCH and not T1
            order_ = [f's{j}' for j in range(NS)] + [f'e{j}' for j in range(NEE)] + ['tag'] * TP + [f's{j}' for j in range(NS, 4)] + [f'e{j}' for j in range(NEE, 4)] + ['tag'] * (1 - TP) + ['nt']
            need_ = max(order_.index(f's{k}'), order_.index(f'e{k}'))
            I(f's_waitcnt vmcnt({len(order_) - 1 - need_}) lgkmcnt({3 - k + 2*k})')
            I(f'v_lshl_or_b32 v{WD+k}, v{68+k}, 3, v{WD+k}')
        else:
            I(f's_waitcnt lgkmcnt({3 - k + 2*k})')
        I(f'v_add_u32 v{RK+k}, v{BN+k}, v{RK+k}')
        I(f'v_add_u32 v{BN+k}, v{RK+k}, v{RK+k}')
        I(f'ds_write_b32 v{RK+k}, v{WD+k} offset:{STGW}')
        I(f'ds_write_b64 v{BN+k}, v[{72+2*k}:{73+2*k}] offset:{STGE}')
    L('L_B2')
    I('s_mov_b64 exec, -1')
    I(f'v_mov_b32 v13, {MISC+8}')
    I(f'ds_read_b32 v13, v13')
    I(f'v_add_u32 v{X+2}, 16384, v{X}')
    I(f'v_lshlrev_b32 v12, 3, v{V_LANE}')
    I('s_waitcnt lgkmcnt(0)')
    I(f'v_readfirstlane_b32 s{S_T}, v13')
    I('s_barrier')
    I(f's_add_u32 s{S_T}, s{S_T}, 127')
    I(f's_and_b32 s{S_RW+2}, s{S_T}, -128')
    I(f's_lshl_b32 s{S_RE+2}, s{S_RW+2}, 1')
    stamp(6)
    if opt('early', 0):
        I(f'ds_read_b64 v[92:93], v12 offset:{HIST}')
        I(f'ds_read_b64 v[94:95], v12 offset:{HIST+512}')
        I(f'v_lshlrev_b32 v60, 4, v{V_LANE}')
        I('s_waitcnt lgkmcnt(0)')
        for k in range(4):
            I(f'v_or_b32 v{120+2*k}, s{S_TAG2}, v{92+k}')
            I(f'v_mov_b32 v{121+2*k}, s{S_TAG}')
        I(f's_cmp_lg_u32 s{S_W}, 0')
        I('s_cbranch_scc1 L_EARLY')
        I(f'buffer_store_dwordx4 v[120:123], v60, {sr4(S_TAB)}, 0 offen' + SC)
        I(f'buffer_store_dwordx4 v[124:127], v60, {sr4(S_TAB)}, 0 offen offset:1024' + SC)
        L('L_EARLY')
    I(f'ds_read_b128 v[64:67], v{X} offset:{STGW}')
    I(f'ds_read_b128 v[68:71], v{X} offset:{STGE}')
    I(f'ds_read_b128 v[72:75], v{X} offset:{STGE+16384}')
    I(f'ds_read_b64 v[92:93], v12 offset:{HIST}')
    I(f'ds_read_b64 v[94:95], v12 offset:{HIST+512}')
    I('s_waitcnt lgkmcnt(4)')
    I(f'buffer_store_dwordx4 v[64:67], v{X}, {sr4(S_RW)}, 0 offen' + SC)
    I(f'v_mov_b32 v62, v{X}')
    I(f'v_mov_b32 v63, v{X+2}')
    I('s_waitcnt vmcnt(2) lgkmcnt(0)')
    I(f'v_readfirstlane_b32 s{S_TAG}, v10')
    I(f's_mov_b32 s{S_T}, 0x40000')
    L('L_TAGP')
    I(f's_cmp_lg_u32 s{S_TAG}, 0')
    I('s_cbranch_scc1 L_TAGD')
    I(f'v_mov_b32 v12, 0')
    I(f'global_load_dword v10, v12, {sp(S_DBG)} sc1')
    I('s_waitcnt vmcnt(0)')
    I(f'v_readfirstlane_b32 s{S_TAG}, v10')
    I(f's_sub_u32 s{S_T}, s{S_T}, 1')
    I('s_cbranch_scc1 L_END')
    I('s_branch L_TAGP')
    L('L_TAGD')
    I(f's_mul_i32 s{S_TAG2}, s{S_TAG}, 0x9e3779b1')
    I(f's_and_b32 s{S_TAG2}, s{S_TAG2}, 0x{TAGM:x}')
    for k in range(4):
        I(f'v_or_b32 v{120+2*k}, s{S_TAG2}, v{92+k}')
        I(f'v_mov_b32 v{121+2*k}, s{S_TAG}')
    pre = opt('pre', 'x').replace('0', '')
    def piece(c):
        if c == 'x':
            zregs()
            zero_range(EXTRA, 16384, X + 2, X)
            fill_desca()
        elif c == 'b':
            phase0b()
        elif c == 'c':
            phase0c()
    for c in pre:
        piece(c)
    I(f'v_lshlrev_b32 v60, 4, v{V_LANE}')
    stamp(7)
    I('s_waitcnt vmcnt(0)')
    I('s_barrier')
    I(f's_cmp_lg_u32 s{S_W}, 0')
    I('s_cbranch_scc1 L_POLL0')
    I(f'buffer_store_dwordx4 v[120:123], v60, {sr4(S_TAB)}, 0 offen' + SC)
    I(f'buffer_store_dwordx4 v[124:127], v60, {sr4(S_TAB)}, 0 offen offset:1024' + SC)
    L('L_POLL0')
    I(f'buffer_store_dwordx4 v[68:71], v62, {sr4(S_RE)}, 0 offen' + SC)
    I(f'buffer_store_dwordx4 v[72:75], v63, {sr4(S_RE)}, 0 offen' + SC)
    stamp(8)
    mid = opt('mid', 'bc').replace('0', '')
    def piece2(c):
        if c == 'f':
            fill_words()
            zregs()
            zero_range(LE, CNT - LE, X + 2, X)
        else:
            piece(c)
    for c in mid:
        piece2(c)
    I(f's_lshl_b32 s{S_T+1}, s3, 3')
    I(f'v_add_u32 v76, s{S_T+1}, v{V_TAB+2}')
    I(f'v_add_u32 v77, {RSTEP*2048}, v76')
    I(f'v_lshrrev_b32 v{V_TAB+2}, 4, v{V_TAB+2}')
    I(f'v_add_u32 v{V_TAB+2}, 0x80000, v{V_TAB+2}')
    I(f'v_add_u32 v{V_TAB+3}, {RSTEP*128}, v{V_TAB+2}')
    I(f's_mul_i32 s{S_TAG3}, s{S_TAG}, 0x85ebca6b')
    I(f's_lshl_b32 s{S_T}, s2, 7')
    I(f's_add_u32 s{S_T}, s{S_T}, 0x80000')
    I(f'v_mov_b32 v60, s{S_T}')
    I(f'v_mov_b32 v62, s{S_TAG}')
    I(f'v_mov_b32 v63, s{S_TAG3}')
    for r in range(2):
        I(f's_mov_b64 {sp(S_MASK+2*r)}, -1')
    I('s_waitcnt vmcnt(0)')
    I('s_barrier')
    stamp(9)
    I(f's_cmp_lg_u32 s{S_W}, 0')
    I('s_cbranch_scc1 L_FLAG2')
    I('s_mov_b64 exec, 1')
    I(f'buffer_store_dwordx2 v[62:63], v60, {sr4(S_EA)}, 0 offen' + SC)
    I('s_mov_b64 exec, -1')
    L('L_FLAG2')
    EP = 1
    for r in range(2):
        I(f'buffer_load_dwordx2 {p(64+2*r)}, v{76+r}, {sr4(S_EA)}, 0 offen' + LSC)
    for c in 'xbcf':
        if c not in pre + mid:
            piece2(c)
    ptr_consts()
    I(f's_mov_b32 s{S_T}, 0x40000')
    I(f's_mov_b32 s{S_T+1}, 0x{TAGM:x}')
    if opt('ps', 0):
        I(f's_sleep {opt("ps", 0)}')
    if EP:
        I('s_branch L_POLLC')
    L('L_POLL')
    for r in range(2):
        I(f's_mov_b64 exec, {sp(S_MASK+2*r)}')
        I(f'buffer_load_dwordx2 {p(64+2*r)}, v{76+r}, {sr4(S_EA)}, 0 offen' + LSC)
    L('L_POLLC')
    for r in range(2):
        I(f's_waitcnt vmcnt({1-r})')
        I(f's_mov_b64 exec, {sp(S_MASK+2*r)}')
        I(f'v_xor_b32 v{V_TAB+r}, s{S_TAG2}, v{64+2*r}')
        I(f'v_xor_b32 v{65+2*r}, s{S_TAG}, v{65+2*r}')
        I(f'v_and_or_b32 v{65+2*r}, v{V_TAB+r}, s{S_T+1}, v{65+2*r}')
        I(f'v_cmp_ne_u32 {sp(S_MASK+2*r)}, 0, v{65+2*r}')
    I(f's_or_b64 {sp(S_T+2)}, {sp(S_MASK)}, {sp(S_MASK+2)}')
    I('s_cbranch_scc0 L_POLLED')
    I(f's_sub_u32 s{S_T}, s{S_T}, 1')
    I('s_cbranch_scc1 L_END')
    if opt('sleep', 0):
        I(f's_sleep {opt("sleep", 0)}')
    I('s_branch L_POLL')
    L('L_POLLED')
    I('s_mov_b64 exec, -1')
    stamp(10)
    def RB(s_): return 64 + 8 * (s_ >> 1)
    def MK(s_): return sp(S_MASK + 2 * s_)
    AD = X
    L('L_PASS')
    I(f'v_add_u32 v{X+10}, s{S_JB}, v{V_CB4}')
    I(f'v_add_u32 v{X+8}, s{S_JB}, v{V_J4}')
    SDW = 'src0_sel:DWORD src1_sel:WORD_1'
    for r in range(2):
        I(f'v_add_u32_sdwa v{X+r}, v{V_TAB+r}, v{X+10} dst_sel:DWORD dst_unused:UNUSED_PAD src0_sel:WORD_0 src1_sel:DWORD')
        I(f'v_cmp_lt_u32_sdwa {MK(2*r)}, v{X+8}, v{V_TAB+r} {SDW}')
        if r:
            I(f'v_add_u32 v{X+r}, {RSTEP*CAP*4}, v{X+r}')
        I(f'v_add_u32 v{96+r}, v{X+r}, v{X+r}')
        I(f's_mov_b64 exec, {MK(2*r)}')
        I(f'buffer_load_dwordx2 {p(RB(2*r)+4)}, v{X+r}, {sr4(S_DST)}, 0 offen' + LSC)
        I('s_mov_b64 exec, -1')
    I(f'v_add_u32 v{X+9}, s{S_WID}, v{X+8}')
    I(f'v_add_u32 v{X+10}, 4, v{X+8}')
    I(f's_cmp_eq_u32 s{S_WID}, 128')
    I(f's_cselect_b32 s{S_T}, 64, 0x10000')
    I(f'v_add_u32 v{X+8}, s{S_T}, v{X+8}')
    for r in range(2):
        I(f'v_cmp_lt_u32_sdwa {MK(4+2*r)}, v{X+8}, v{V_TAB+r} {SDW}')
        I(f'v_cmp_lt_u32_sdwa {MK(2*r+1)}, v{X+10}, v{V_TAB+r} {SDW}')
    I(f'v_add_u32 v{X+8}, 4, v{X+8}')
    for r in range(2):
        I(f's_mov_b64 exec, {MK(4+2*r)}')
        I(f'buffer_load_dwordx2 {p(RB(4+2*r)+4)}, v{X+r}, {sr4(S_DST)}, 0 offen offset:64' + LSC)
    I('s_mov_b64 exec, -1')
    PF3 = opt('pf3', 0)
    if PF3:
        nt_prefetch(60, 49 - PF3, PF3, 63)
    BE = opt('be', 0)
    if BE:
        for r in range(2):
            I(f'buffer_load_dwordx2 {p(100+2*r)}, v{V_TAB+2+r}, {sr4(S_EA)}, 0 offen' + LSC)
    for r in range(2):
        I(f'v_cmp_lt_u32_sdwa {MK(5+2*r)}, v{X+8}, v{V_TAB+r} {SDW}')
    I(f'v_cmp_lt_u32_sdwa vcc, v{X+9}, v{V_TAB} {SDW}')
    I(f'v_cmp_lt_u32_sdwa {sp(S_T)}, v{X+9}, v{V_TAB+1} {SDW}')
    I(f'v_mov_b32 v{X+8}, 4')
    I(f's_or_b64 vcc, vcc, {sp(S_T)}')
    I(f's_cbranch_scc0 L_NOMORE')
    I(f'v_mov_b32 v{X+9}, {MISC}')
    I(f'ds_write_b32 v{X+9}, v{X+8}')
    L('L_NOMORE')
    stamp(11)
    e('    ; count')
    for s_ in range(8):
        if s_ >= 4:
            I(f's_mov_b64 exec, {MK(s_)}')
            I(f's_cbranch_execz L_C{s_}')
        if s_ % 2 == 0:
            I(f's_waitcnt vmcnt({3 + 2 * BE + (1 if PF3 else 0) - s_ // 2})')
        if s_ < 4:
            I(f's_mov_b64 exec, {MK(s_)}')
        I(f'v_lshrrev_b32 v{AD+s_}, 21, v{RB(s_)+4+(s_&1)}')
        if opt('safe', 0):
            I(f'v_and_b32 v{AD+s_}, 0x7fc, v{AD+s_}')
        I(f'ds_add_rtn_u32 v{RB(s_)+6+(s_&1)}, v{AD+s_}, v{X+8} offset:{CNT2}')
        I(f'v_and_b32 v{RB(s_)+4+(s_&1)}, 0x1fff8, v{RB(s_)+4+(s_&1)}')
        if s_ >= 4:
            L(f'L_C{s_}')
    I('s_mov_b64 exec, -1')
    def check2():
        I(f'v_xor_b32 v100, s{S_TAG}, v100')
        I(f'v_xor_b32 v101, s{S_TAG3}, v101')
        I(f'v_xor_b32 v102, s{S_TAG}, v102')
        I(f'v_xor_b32 v103, s{S_TAG3}, v103')
        I('v_or3_b32 v100, v100, v101, v102')
        I('v_or_b32 v100, v100, v103')
        I('v_cmp_ne_u32 vcc, 0, v100')
    def e_loads():
        for hf in range(2):
            for r in range(2):
                I(f's_mov_b64 exec, {MK(4*hf+2*r)}')
                I(f'buffer_load_dwordx4 {vr(RB(4*hf+2*r),4)}, v{96+r}, {sr4(S_SRC)}, 0 offen offset:{128*hf}' + LSC)
        I('s_mov_b64 exec, -1')
    assert not BE
    if BE:
        I('s_waitcnt vmcnt(0)')
        check2()
        I('s_nop 0')
        I('s_cbranch_vccnz L_NOTYET')
        e_loads()
        I(f's_mov_b32 s{S_CNT}, 0')
        I('s_branch L_EDONE')
        L('L_NOTYET')
    for r in range(2):
        I(f'buffer_load_dwordx2 {p(100+2*r)}, v{V_TAB+2+r}, {sr4(S_EA)}, 0 offen' + LSC)
    L('L_EDONE')
    I(f'v_lshlrev_b32 v{X+8}, 2, v{V_LANE}')
    I(f'v_mov_b32 v{X+9}, {MISC}')
    I(f's_mov_b32 s{S_T+2}, 0x1fff8')
    I('s_waitcnt lgkmcnt(0)')
    I('s_barrier')
    stamp(12)
    PFPOS = opt('pfpos', 4)
    def do_pf(late=False):
        if NPF and late == (PFPOS == 4):
            PFN = opt('pfn', 5)
            I(f's_lshr_b32 s{S_T+7}, s2, 3')
            I(f's_lshl_b32 s{S_T+7}, s{S_T+7}, 4')
            I(f's_add_u32 s{S_T+7}, s{S_T+7}, s{S_W}')
            I(f's_mul_i32 s{S_T+7}, s{S_T+7}, {PFN*128}')
            I(f'v_lshlrev_b32 v60, 7, v{V_LANE}')
            I(f'v_add_u32 v60, s{S_T+7}, v60')
            srd_off(S_NTS, S_WSP, S_WSP + 1, '0x%x' % WS_NT, NWG * NB * 256)
            I(f's_mov_b64 exec, 0x{(1 << PFN) - 1:x}')
            I(f'buffer_load_dword v62, v60, {sr4(S_NTS)}, 0 offen' + LSC)
            I('s_mov_b64 exec, -1')
    def poll2():
        I(f's_mov_b32 s{S_T+3}, 0x40000')
        L('L_POLL2')
        I('s_waitcnt vmcnt(0)')
        I(f'v_xor_b32 v100, s{S_TAG}, v100')
        I(f'v_xor_b32 v101, s{S_TAG3}, v101')
        I(f'v_xor_b32 v102, s{S_TAG}, v102')
        I(f'v_xor_b32 v103, s{S_TAG3}, v103')
        I('v_or3_b32 v100, v100, v101, v102')
        I('v_or_b32 v100, v100, v103')
        I('v_cmp_ne_u32 vcc, 0, v100')
        I(f's_sub_u32 s{S_T+3}, s{S_T+3}, 1')
        I('s_cbranch_scc1 L_END')
        I('s_cbranch_vccz L_POLLED2')
        for r in range(2):
            I(f'buffer_load_dwordx2 {p(100+2*r)}, v{V_TAB+2+r}, {sr4(S_EA)}, 0 offen' + LSC)
        I('s_branch L_POLL2')
        L('L_POLLED2')
        for hf in range(2):
            for r in range(2):
                I(f's_mov_b64 exec, {MK(4*hf+2*r)}')
                I(f'buffer_load_dwordx4 {vr(RB(4*hf+2*r),4)}, v{96+r}, {sr4(S_SRC)}, 0 offen offset:{128*hf}' + LSC)
        I('s_mov_b64 exec, -1')
        L('L_HAVEE')
    B2 = opt('b2', 2)
    if B2 == 0:
        poll2()
        do_pf()
    NG, GS, MI = X + 10, X + 11, X + 12
    if opt('tprio', 1):
        I(f's_cmp_lg_u32 s{S_W}, 15')
        I('s_cbranch_scc1 L_TP')
        I('s_setprio 2')
        L('L_TP')
    I(f'v_lshlrev_b32 v98, 5, v{V_LANE}')
    I(f'ds_read_b128 v[104:107], v98 offset:{CNT2}')
    I(f'ds_read_b128 v[108:111], v98 offset:{CNT2+16}')
    I(f'ds_read_b32 v{X+9}, v{X+9}')
    I('s_waitcnt lgkmcnt(1)')
    I(f'v_add3_u32 v{NG}, v104, v105, v106')
    I(f'v_add3_u32 v{GS}, v107, v108, v109')
    I(f'v_add3_u32 v{NG}, v{NG}, v110, v111')
    I(f'v_add3_u32 v{NG}, v{NG}, v{GS}, 28')
    I(f'v_and_b32 v{NG}, 0xffffffe0, v{NG}')
    I(f'v_mov_b32 v{GS}, v{NG}')
    wave_scan(GS)
    I(f'v_readlane_b32 s{S_T}, v{GS}, 63')
    I(f'v_sub_u32 v{GS}, v{GS}, v{NG}')
    if B2 == 1:
        poll2()
        do_pf()
    I('s_waitcnt lgkmcnt(0)')
    I(f'v_readfirstlane_b32 s{S_MORE}, v{X+9}')
    I(f's_lshr_b32 s{S_T}, s{S_T}, 5')
    I(f's_cmp_eq_u32 s{S_WID}, 128')
    I(f's_cselect_b32 s{S_T+1}, {MAXG}, -1')
    I(f's_cmp_gt_u32 s{S_T}, s{S_T+1}')
    I('s_cbranch_scc1 L_OVERFLOW')
    def place(tag):
        if PROF == 5:
            stamp(19)
        if TFLAG:
            I(f'v_mov_b32 v60, {MISC+16}')
            I(f's_mov_b32 s{S_T+1}, 0x1000000')
            L('L_TWAIT')
            I(f's_sub_u32 s{S_T+1}, s{S_T+1}, 1')
            I('s_cbranch_scc1 L_END')
            I('ds_read_b32 v61, v60')
            I('s_waitcnt lgkmcnt(0)')
            I(f'v_readfirstlane_b32 s{S_T}, v61')
            I(f's_cmp_eq_u32 s{S_T}, 0')
            I('s_cbranch_scc1 L_TWAIT')
        else:
            I('s_waitcnt lgkmcnt(0)')
            I('s_barrier')
        if PROF == 5:
            stamp(20)
        for s_ in range(8):
            I(f's_mov_b64 exec, {MK(s_)}')
            I(f'ds_read_b32 v{AD+s_}, v{AD+s_} offset:{BASE2}')
        if B2 == 3:
            I('s_mov_b64 exec, -1')
            poll2()
            do_pf()
        for s_ in range(8):
            wd, rk, ta = RB(s_) + 4 + (s_ & 1), RB(s_) + 6 + (s_ & 1), 112 + 2 * s_
            I(f's_mov_b64 exec, {MK(s_)}')
            if s_ >= 4:
                I(f's_cbranch_execz L_P{tag}{s_}')
            I(f's_waitcnt lgkmcnt({7 if s_ <= 4 else 11 - s_})')
            I(f'v_add_u32 v{AD+s_}, v{AD+s_}, v{rk}')
            I(f'v_add_u32 v{rk}, v{AD+s_}, v{AD+s_}')
            I(f'ds_write_b32 v{AD+s_}, v{wd} offset:{LS}')
            if s_ >= 4:
                L(f'L_P{tag}{s_}')
        if EK:
            I('s_mov_b64 exec, 1')
            I(f'v_mov_b32 v60, {MISC+24}')
            I(f'v_mov_b32 v61, 1')
            I('ds_add_u32 v60, v61')
        if PROF == 5:
            stamp(21)
        if PFPOS == 4:
            I('s_mov_b64 exec, -1')
            do_pf(True)
        for s_ in range(8):
            rk, ee = RB(s_) + 6 + (s_ & 1), RB(s_) + 2 * (s_ & 1)
            I(f's_mov_b64 exec, {MK(s_)}')
            if s_ >= 4:
                I(f's_cbranch_execz L_Q{tag}{s_}')
            if s_ % 2 == 0:
                I(f's_waitcnt vmcnt({3 - s_ // 2 + NPF})')
            I(f'ds_write_b64 v{rk}, {p(ee)} offset:{LE}')
            if s_ >= 4:
                L(f'L_Q{tag}{s_}')
        I('s_mov_b64 exec, -1')
    SWAP = opt('swap', 0)
    if SWAP:
        I(f's_bitcmp1_b32 s{S_W}, {SWAP}')
        I('s_cbranch_scc0 L_DFIRST')
        place('a')
        L('L_DFIRST')
    SB_, SR_, SG0 = S_T + 4, S_T + 5, S_T + 6
    I(f's_add_u32 s{S_T}, s{S_T}, 3')
    I(f's_lshr_b32 s{S_T}, s{S_T}, 2')
    I(f's_lshr_b32 s{SB_}, s{S_T}, 4')
    I(f's_and_b32 s{SR_}, s{S_T}, 15')
    I(f's_add_u32 s{S_T+1}, s{SB_}, 1')
    I(f'v_cvt_f32_u32 v{MI}, s{S_T+1}')
    I(f'v_cvt_f32_u32 v{MI+1}, s{SB_}')
    I(f'v_rcp_f32 v{MI}, v{MI}')
    I(f'v_rcp_f32 v{MI+1}, v{MI+1}')
    I(f's_mul_i32 s{SG0}, s{SR_}, s{S_T+1}')
    I(f's_lshl_b32 s{SG0}, s{SG0}, 2')
    I(f'v_lshrrev_b32 v{GS}, 5, v{GS}')
    I(f'v_mul_f32 v{MI}, 0x47800000, v{MI}')
    I(f'v_mul_f32 v{MI+1}, 0x47800000, v{MI+1}')
    I(f'v_lshrrev_b32 v{NG}, 5, v{NG}')
    I(f'v_cvt_u32_f32 v{MI}, v{MI}')
    I(f'v_cvt_u32_f32 v{MI+1}, v{MI+1}')
    I(f's_cmp_lt_u32 s{S_W}, s{SR_}')
    I(f's_cselect_b32 s{S_L}, s{S_T+1}, s{SB_}')
    I(f'v_add_u32 v{MI}, 2, v{MI}')
    I(f'v_add_u32 v{MI+1}, 2, v{MI+1}')
    I(f's_min_u32 s{S_T}, s{S_W}, s{SR_}')
    I(f's_mul_i32 s{S_T+3}, s{S_W}, s{SB_}')
    I(f's_add_u32 s{S_T+3}, s{S_T+3}, s{S_T}')
    I(f's_sub_u32 s{S_T+1}, 0, s{S_T+1}')
    I(f's_sub_u32 s{SB_}, 0, s{SB_}')
    I(f's_lshl_b32 s{SR_}, s{SR_}, 2')
    D0, D1, D2, D3, NR = 60, 61, 62, 63, 98
    I(f's_cmp_lg_u32 s{S_W}, 15')
    I('s_cbranch_scc1 L_NOTAB')
    I(f'v_subrev_u32 v{D1}, s{SG0}, v{GS}')
    I(f'v_cmp_gt_u32 vcc, s{SG0}, v{GS}')
    I(f'v_mul_u32_u24 v{D2}, v{GS}, v{MI}')
    I(f'v_mul_u32_u24 v{D3}, v{D1}, v{MI+1}')
    I(f'v_lshrrev_b32 v{D2}, 16, v{D2}')
    I(f'v_lshrrev_b32 v{D3}, 16, v{D3}')
    I(f'v_mad_i32_i24 v{D0}, v{D2}, s{S_T+1}, v{GS}')
    I(f'v_mad_i32_i24 v{D1}, v{D3}, s{SB_}, v{D1}')
    I(f'v_mov_b32 v{D2}, s{S_T+1}')
    I(f'v_mov_b32 v{D3}, s{SB_}')
    I(f'v_cndmask_b32 v{D0}, v{D1}, v{D0}, vcc')
    I(f'v_cndmask_b32 v{D2}, v{D3}, v{D2}, vcc')
    I('v_add_u32 v105, v105, v104')
    I(f'v_add_u32 v{D2}, v{D2}, v{D0}')
    I('v_add_u32 v106, v106, v105')
    I(f'v_sub_u32 v{D2}, 0, v{D2}')
    I('v_add_u32 v107, v107, v106')
    I(f'v_cmp_ne_u32 vcc, 0, v{D0}')
    I('v_add_u32 v108, v108, v107')
    I(f'v_cmp_lt_u32 {sp(S_EX)}, v{D2}, v{NG}')
    I('v_add_u32 v109, v109, v108')
    I(f's_and_b64 vcc, vcc, {sp(S_EX)}')
    I('v_add_u32 v110, v110, v109')
    I(f'v_lshlrev_b32 v{D2}, 5, v{D2}')
    I('v_add_u32 v111, v111, v110')
    I(f'v_cndmask_b32 v{D2}, 0, v{D2}, vcc' if ROT else f'v_mov_b32 v{D2}, 0')
    I(f'v_add_u32 v{D1}, {opt("rnd", 20)}, v111')
    I(f'v_sub_u32 v{D1}, v{D1}, v{D2} clamp')
    for k in range(8):
        I(f'v_sub_u32 v{112+k}, v{D1}, v{104+k}')
    I(f'v_min3_u32 v112, v112, v113, v114')
    I(f'v_min3_u32 v115, v115, v116, v117')
    I(f'v_min3_u32 v112, v112, v118, v119')
    I(f'v_min3_u32 v112, v112, v115, v{D1}')
    I(f'v_sub_u32 v{D1}, v{D1}, v112')
    I(f'v_lshlrev_b32 v{D3}, 5, v{GS}')
    I(f'v_sub_u32 v112, 0, v{D1}')
    for k in range(1, 8):
        I(f'v_sub_u32 v{112+k}, v{103+k}, v{D1}')
    for k in range(8):
        I(f'v_add_u32 v{120+k}, v{112+k}, v111')
    for k in range(8):
        I(f'v_min_u32 v{112+k}, v{112+k}, v{120+k}')
    for k in range(8):
        I(f'v_add_u32 v{112+k}, v{112+k}, v{D3}')
    I(f'v_lshlrev_b32 v{D0}, 5, v{V_LANE}')
    I(f's_mov_b32 exec_hi, 0x1ffff')
    for q in range(2):
        I(f'ds_write_b128 v{D0}, v[{112+4*q}:{115+4*q}] offset:{BASE2+16*q}')
    if TFLAG:
        I(f'v_mov_b32 v{D1}, {MISC+16}')
        I(f'ds_write_b32 v{D1}, v{D1}')
    I('s_mov_b64 exec, -1')
    if opt('tprio', 1):
        I('s_setprio 0')
    L('L_NOTAB')
    I(f'v_lshlrev_b32 v{NR}, 8, v{V_LANE}')
    I(f'v_add_u32 v{NR+1}, {ACCN}, v{NR}')
    I(f's_mov_b32 s{S_T}, s{S_W}')
    L('L_DLOOP')
    I(f'v_cmp_lt_u32 vcc, s{S_T}, v{NG}')
    I('s_and_b64 exec, exec, vcc')
    I('s_cbranch_execz L_DEND')
    I(f'v_add_u32 v{D0}, s{S_T}, v{GS}')
    I(f'v_subrev_u32 v{D1}, s{SG0}, v{D0}')
    I(f'v_cmp_gt_u32 vcc, s{SG0}, v{D0}')
    I(f'v_mul_u32_u24 v{D2}, v{D0}, v{MI}')
    I(f'v_mul_u32_u24 v{D3}, v{D1}, v{MI+1}')
    I(f'v_lshrrev_b32 v{D2}, 16, v{D2}')
    I(f'v_lshrrev_b32 v{D3}, 16, v{D3}')
    I(f'v_mad_i32_i24 v{D0}, v{D2}, s{S_T+1}, v{D0}')
    I(f'v_mad_i32_i24 v{D1}, v{D3}, s{SB_}, v{D1}')
    I(f'v_add_u32 v{D3}, s{SR_}, v{D3}')
    I(f'v_cndmask_b32 v{D0}, v{D1}, v{D0}, vcc')
    I(f'v_cndmask_b32 v{D2}, v{D3}, v{D2}, vcc')
    I(f'v_cmp_le_u32 vcc, s{S_T}, v{D0}')
    I(f'v_lshl_add_u32 v{D0}, v{D0}, 6, v{D2}')
    I(f'v_lshlrev_b32 v{D1}, 8, v{D2}')
    I(f'v_lshlrev_b32 v{D0}, 2, v{D0}')
    I(f'v_add_u32 v{D1}, {EXTRA}, v{D1}')
    I(f'v_add_u32 v{D3}, {DESCA}, v{D0}')
    I(f'v_cndmask_b32 v{D1}, v{D1}, v{NR+1}, vcc')
    I(f'ds_write_b32 v{D0}, v{NR} offset:{DESCP}')
    I(f'ds_write_b32 v{D3}, v{D1}')
    I(f's_add_u32 s{S_T+7}, s{S_T}, 1')
    I(f'v_cmp_eq_u32 vcc, s{S_T+7}, v{NG}')
    I(f's_and_saveexec_b64 {sp(S_EX)}, vcc')
    I(f'ds_write_b32 v{X+8}, v{D2} offset:{NINFO+256}')
    I(f's_mov_b64 exec, {sp(S_EX)}')
    I(f's_cmp_lg_u32 s{S_T}, 0')
    I('s_cbranch_scc1 L_DNF')
    I(f'ds_write_b32 v{X+8}, v{D2} offset:{NINFO}')
    L('L_DNF')
    I(f's_add_u32 s{S_T}, s{S_T}, 16')
    I('s_branch L_DLOOP')
    L('L_DEND')
    I('s_mov_b64 exec, -1')
    I(f's_lshl_b32 s{S_T}, s{S_T+3}, 7')
    I(f's_lshl_b32 s{S_T+1}, s{S_L}, 5')
    I(f'v_mov_b32 v{D0}, s{S_T}')
    I(f'v_mad_u32_u24 v{V_PS0}, v{V_PS1}, s{S_T+1}, v{D0}')
    I(f'v_add_u32 v{D0}, v{D0}, v{D0}')
    I(f'v_add_u32 v{V_PS1}, s{S_T+1}, v{V_PS0}')
    I(f'v_add_u32 v{V_PE}, v{V_PE}, v{D0}')
    I(f's_lshl_b32 s{S_T+1}, s{S_L}, 6')
    I(f'v_mad_u32_u24 v{V_PE}, v{V_VAP}, s{S_T+1}, v{V_PE}')
    if opt('safe', 0):
        I(f's_min_u32 s{S_L}, s{S_L}, 9')
        I(f's_mov_b32 s{S_MORE}, 0')
    I(f's_mov_b32 s{S_CNT}, s{S_L}')
    if B2 == 2:
        poll2()
        do_pf()
    if SWAP:
        I(f's_bitcmp1_b32 s{S_W}, {SWAP}')
        I('s_cbranch_scc1 L_PDONE')
    place('b')
    L('L_PDONE')
    stamp(13)
    if EK:
        e('    ; the older waves are done early: they ask for their first rows as soon as every word is placed')
        I(f's_cmp_ge_u32 s{S_W}, {EK}')
        I('s_cbranch_scc1 L_NOEARLY')
        I(f's_cmp_eq_u32 s{S_L}, 0')
        I('s_cbranch_scc1 L_NOEARLY')
        I(f'v_mov_b32 v61, {MISC+24}')
        I(f's_mov_b32 s{S_T+1}, 0x1000000')
        L('L_WWAIT')
        I(f's_sub_u32 s{S_T+1}, s{S_T+1}, 1')
        I('s_cbranch_scc1 L_END')
        I('ds_read_b32 v63, v61')
        I('s_waitcnt lgkmcnt(0)')
        I(f'v_readfirstlane_b32 s{S_T}, v63')
        I(f's_cmp_lt_u32 s{S_T}, 16')
        I('s_cbranch_scc1 L_WWAIT')
        lge = Lg()
        s_reads(lge, 0)
        lge.need('S0', 'S1', 'S2', 'S3')
        s_safe()
        for n in range(EN):
            for i in range(16):
                I(gload(n, i))
        L('L_NOEARLY')
    I('s_waitcnt lgkmcnt(0)')
    I('s_barrier')
    stamp(14)
    I(f's_cmp_eq_u32 s{S_L}, 0')
    I('s_cbranch_scc1 L_FOLD')
    lg = Lg()
    FP = opt('fp', 0)
    if FP:
        for lvl in (3, 2, 1):
            I(f's_cmp_lt_u32 s{S_W}, {4 * (4 - lvl)}')
            I(f's_cbranch_scc0 L_FP{lvl}')
            I(f's_setprio {lvl}')
            I('s_branch L_FPD')
            L(f'L_FP{lvl}')
        L('L_FPD')
    if EK:
        I(f's_cmp_lt_u32 s{S_W}, {EK}')
        I('s_cbranch_scc1 L_HAVEG')
    s_reads(lg, 0)
    lg.need('S0', 'S1', 'S2', 'S3')
    s_safe()
    for n in range(2):
        if n == EN:
            L('L_HAVEG')
        for i in range(16):
            I(gload(n, i))
    if EN == 2:
        L('L_HAVEG')
    lg.op('dP', f'ds_read_b64 {p(V_VAP)}, v{V_PD}')
    lg.op('dA', f'ds_read_b64 {p(V_VAA[0])}, v{V_PD} offset:{DESCA-DESCP}')
    lg.op('e', f'ds_read_b64 {p(A5)}, v{V_PE}')
    s_reads(lg, 1)
    I(f'v_mov_b32 v{V_C8P}, v{V_CH8}')
    I(f'v_mov_b32 v{V_C8P+1}, v{V_CH8}')
    I(f'v_mov_b32 v{V_CPP}, v{V_CHP}')
    I(f'v_mov_b32 v{V_CPP+1}, v{V_CHP}')
    if M8:
        I(f'v_mov_b32 v{V_SCP}, 0x{f2u(2.0**KH):x}')
        I(f'v_mov_b32 v{V_SCP+1}, 0x{f2u(2.0**KH):x}')
    I(f's_mov_b32 s{S_BP0}, 64')
    I(f's_mov_b32 s{S_BP0+1}, 64')
    I(f's_mov_b32 s{S_BP1}, 128')
    I(f's_mov_b32 s{S_BP1+1}, 512')
    lg.need('dP', 'dA')
    va_add(V_VAP, V_VAA[0])
    lg.op('P0a', f'ds_read_b32 v{B5[0]+2}, v{V_VAP}')
    lg.op('P0b', f'ds_read_b32 v{B5[0]+3}, v{V_VAP+1}')
    lg.op('P1a', f'ds_read_b32 v{B5[1]+2}, v{V_VAP} offset:4')
    lg.op('P1b', f'ds_read_b32 v{B5[1]+3}, v{V_VAP+1} offset:4')
    I(f's_cmp_eq_u32 s{S_CNT}, 1')
    I(f's_cselect_b64 {sp(S_LDX)}, 0, {LDXV}')
    I('s_waitcnt lgkmcnt(0)')
    lg.q = []
    if opt('prio', 3):
        I('s_setprio 3')
    stamp(15)
    rstamp(28)
    half(lg, 0, 0, 0, False)
    if PROF == 4:
        stamp(19)
        lg.q = []
    state0 = list(lg.q)
    def step(par, uo):
        prio(f'm{par}', 1)
        half(lg, 1, par, uo)
        if PROF == 4:
            I('s_memtime s[98:99]')
            I(f's_sub_u32 s92, s{S_L}, s{S_CNT}')
            I(f's_add_u32 m0, s92, 20')
            I('s_waitcnt lgkmcnt(0)')
            I(f'v_writelane_b32 v{V_PROF}, s98, m0')
        I(f's_sub_u32 s{S_CNT}, s{S_CNT}, 1')
        I(f's_cmp_eq_u32 s{S_CNT}, 0')
        I(f's_cbranch_scc1 L_FIN{par}')
        I(f's_cmp_eq_u32 s{S_CNT}, 1')
        I(f's_cselect_b64 {sp(S_LDX)}, 0, {LDXV}')
        prio(f'{par}')
        half(lg, 0, par ^ 1, uo + 1)
    def loop_body():
        step(0, 0)
        step(1, 1)
        I(f'v_lshl_add_u64 {p(V_PS0)}, {p(V_PS0)}, 0, {sp(S_BP0)}')
        I(f'v_lshl_add_u64 {p(V_PE)}, {p(V_PE)}, 0, {sp(S_BP1)}')
        I('s_branch L_LOOP')
    mark = len(out)
    loop_body()
    del out[mark:]
    qb = list(lg.q)
    n = min(len(qb), len(state0))
    assert PROF == 4 or qb[len(qb)-n:] == state0[len(state0)-n:], (state0, qb)
    lg.q = list(qb if len(qb) >= len(state0) else state0)
    e('.p2align 3')
    L('L_LOOP')
    mark = len(out)
    loop_body()
    drop = opt('drop', '')
    if drop:
        body = out[mark:]
        keep = []
        for l in body:
            t = l.strip()
            if 'v' in drop and (t.startswith('buffer_load') or t.startswith('s_mov_b64 exec') or 'vmcnt' in t):
                continue
            if 'l' in drop and (t.startswith('ds_') or 'lgkmcnt' in t):
                continue
            if 'm' in drop and t.startswith('v_mfma'):
                continue
            if 'n' in drop and t.startswith('s_nop'):
                continue
            keep.append(l)
        out[mark:] = keep
    assert lg.q == qb, (lg.q, qb)
    print('loop entry queue', state0, 'back edge queue', qb, file=sys.stderr)
    for pr in range(2):
        L(f'L_FIN{pr}')
        if M8:
            I(f'v_pk_mul_f32 {p(V_T01N)}, {p(V_T01N)}, {p(V_T23D)}')
            I(f'v_pk_mul_f32 {p(V_T23D)}, {p(V_T01D)}, {p(V_T23D)}')
            I(f'v_pk_fma_f32 {p(V_T01N)}, {p(V_T23N)}, {p(V_T01D)}, {p(V_T01N)}')
            I(f'v_rcp_f32 v{V_T23D}, v{V_T23D}')
            I(f'v_rcp_f32 v{V_T23D+1}, v{V_T23D+1}')
            I('s_waitcnt lgkmcnt(0)')
            I(f'v_pk_fma_f32 {p(V_MB)}, {p(V_T01N)}, {p(V_T23D)}, {p(V_MB)}')
        else:
            for r_ in (V_T01D, V_T01D + 1, V_T23D, V_T23D + 1):
                I(f'v_rcp_f32 v{r_}, v{r_}')
            I('s_waitcnt lgkmcnt(0)')
            I(f'v_pk_fma_f32 {p(V_MB)}, {p(V_T01N)}, {p(V_T01D)}, {p(V_MB)}')
            I(f'v_pk_fma_f32 {p(V_MB)}, {p(V_T23N)}, {p(V_T23D)}, {p(V_MB)}')
        acc_write(Lg(), V_VAA[pr])
        if pr == 0:
            I('s_branch L_FOLD')
    L('L_FOLD')
    stamp(16)
    FL = opt('fl', 0)
    I(f'v_lshrrev_b32 v{X}, 4, v{V_TID}')
    I(f'v_and_b32 v{X+1}, 15, v{V_TID}')
    if FL:
        I(f'v_lshlrev_b32 v{X+6}, 3, v{X+1}')
        I(f'v_lshrrev_b32 v{X+2}, 3, v{X+1}')
        I(f'v_and_b32 v{X+1}, 7, v{X+1}')
        I(f'v_lshlrev_b32 v{X+1}, 5, v{X+1}')
        I(f'v_lshl_add_u32 v{X+1}, v{X+2}, 2, v{X+1}')
    else:
        I(f'v_lshlrev_b32 v{X+6}, 2, v{X+1}')
        I(f'v_lshlrev_b32 v{X+1}, 4, v{X+1}')
    I(f'v_lshl_add_u32 v{X+2}, v{X}, 8, v{X+1}')
    I(f'v_add_u32 v{X+2}, {ACCN}, v{X+2}')
    I(f'v_add_u32 v{X+1}, {EXTRA}, v{X+1}')
    def rd4(dst, ad):
        if FL:
            I(f'ds_read2_b32 v[{dst}:{dst+1}], v{ad} offset0:0 offset1:2')
            I(f'ds_read2_b32 v[{dst+2}:{dst+3}], v{ad} offset0:4 offset1:6')
        else:
            I(f'ds_read_b128 v[{dst}:{dst+3}], v{ad}')
    I(f'v_lshlrev_b32 v{X+3}, 2, v{X}')
    I(f's_mul_i32 s{S_T+4}, s3, {NB*128}')
    I(f'v_lshl_add_u32 v{X+6}, v{X}, 7, v{X+6}')
    I(f'v_add_u32 v{X+6}, s{S_T+4}, v{X+6}')
    I(f'v_mov_b32 v{X+7}, 0')
    I(f'ds_read_b32 v{X+4}, v{X+3} offset:{NINFO}')
    I(f'ds_read_b32 v{X+5}, v{X+3} offset:{NINFO+256}')
    I(f's_mov_b32 s{S_T+2}, 0x{f2u(2.0**-(SV+KH)):x}')
    I(f's_mov_b32 s{S_T+3}, 0x{f2u(-LOG2E * 2.0**-(SV+KH)):x}')
    I(f'v_cmp_gt_u32 vcc, {NB*16}, v{V_TID}')
    I('s_waitcnt vmcnt(0) lgkmcnt(0)')
    I('s_barrier')
    stamp(17)
    rstamp(29)
    if PROF:
        I(f'v_writelane_b32 v{V_PROF}, s{S_L}, 27')
    I(f's_and_saveexec_b64 {sp(S_EX)}, vcc')
    I('s_cbranch_execz L_FDONE')
    rd4(64, X + 2)
    I(f's_mov_b64 {sp(S_T)}, exec')
    L('L_FLOOP')
    I(f'v_cmp_lt_u32 vcc, v{X+4}, v{X+5}')
    I('s_and_b64 exec, exec, vcc')
    I('s_cbranch_execz L_FLEND')
    I(f'v_add_u32 v{X+4}, 1, v{X+4}')
    I(f'v_lshl_add_u32 v{X+7}, v{X+4}, 8, v{X+1}')
    rd4(72, X + 7)
    I('s_waitcnt lgkmcnt(0)')
    for k in range(4):
        I(f'v_add_f32 v{64+k}, v{64+k}, v{72+k}')
    I('s_branch L_FLOOP')
    L('L_FLEND')
    I(f's_mov_b64 exec, {sp(S_T)}')
    I('s_waitcnt lgkmcnt(0)')
    I(f's_cmp_lg_u32 s{S_MORE}, 0')
    I('s_cbranch_scc1 L_WB')
    for k in range(4):
        I(f'v_mul_f32 v{72+k}, s{S_T+3}, v{64+k}')
    for k in range(4):
        I(f'v_exp_f32 v{72+k}, v{72+k}')
    for k in range(4):
        I(f'v_mul_f32 v{64+k}, s{S_T+2}, v{64+k}')
    for k in range(4):
        I(f'v_add_f32 v{72+k}, 1.0, v{72+k}')
    for k in range(4):
        I(f'v_rcp_f32 v{72+k}, v{72+k}')
    I('s_nop 0')
    for k in range(4):
        I(f'v_mul_f32 v{64+k}, v{64+k}, v{72+k}')
    if FL:
        I('v_cvt_pk_bf16_f32 v80, v64, v65')
        I('v_cvt_pk_bf16_f32 v81, v66, v67')
        I(f'buffer_store_dwordx2 v[80:81], v{X+6}, {sr4(S_OUT)}, 0 offen' + OSC)
    else:
        I('v_cvt_pk_bf16_f32 v80, v64, v66')
        I('v_cvt_pk_bf16_f32 v81, v65, v67')
        I(f'buffer_store_dword v80, v{X+6}, {sr4(S_OUT)}, 0 offen' + OSC)
        I(f'buffer_store_dword v81, v{X+6}, {sr4(S_OUT)}, 0 offen offset:64' + OSC)
    stamp(18)
    prof_store()
    diag_end()
    I('s_endpgm')
    L('L_WB')
    if FL:
        I(f'ds_write2_b32 v{X+2}, v64, v65 offset0:0 offset1:2')
        I(f'ds_write2_b32 v{X+2}, v66, v67 offset0:4 offset1:6')
    else:
        I(f'ds_write_b128 v{X+2}, v[64:67]')
    L('L_FDONE')
    I('s_mov_b64 exec, -1')
    I(f's_cmp_eq_u32 s{S_MORE}, 0')
    I('s_cbranch_scc1 L_QUIT')
    I(f's_add_u32 s{S_JB}, s{S_JB}, s{S_WID}')
    I('s_branch L_REFILL')
    L('L_OVERFLOW')
    I(f's_mov_b32 s{S_WID}, 64')
    L('L_REFILL')
    I('s_waitcnt vmcnt(0) lgkmcnt(0)')
    I('s_barrier')
    fill_zero()
    fill_words()
    ptr_consts()
    I('s_waitcnt lgkmcnt(0)')
    I('s_barrier')
    I('s_branch L_PASS')
    L('L_QUIT')
    prof_store()
    L('L_END')
    I('s_endpgm')


DOC = """
"""
hdr = open('standalone__edge_featured_mpnn_egc__graph.s.ref').read().split('\n')
for line in hdr:
    if line.startswith('; Override'):
        break
    e(line)
e(f'; @launch grid=({NWG},1,1) block=(1024,1,1) lds={LDS_BYTES}')
e('.amdgcn_target "amdgcn-amd-amdhsa--gfx950"')
for line in DOC.strip().split('\n'):
    e(line)
e('.text')
gen()
e('.section .rodata,"a"')
e('.p2align 6')
e(f'.amdhsa_kernel {KNAME}')
e('  .amdhsa_next_free_vgpr 128')
e('  .amdhsa_next_free_sgpr 102')
e('  .amdhsa_accum_offset 128')
e('  .amdhsa_group_segment_fixed_size 0')
e('  .amdhsa_kernarg_size 80')
e('  .amdhsa_user_sgpr_count 2')
e('  .amdhsa_user_sgpr_kernarg_segment_ptr 1')
e('  .amdhsa_system_sgpr_workgroup_id_x 1')
e('  .amdhsa_float_denorm_mode_32 3')
e('.end_amdhsa_kernel')
open(sys.argv[1], 'w').write('\n'.join(x for x in out if x is not None) + '\n')
```

```python
import sys, struct

OPT = dict(a.split('=') for a in sys.argv[2:] if '=' in a)
def opt(name, default):
    return type(default)(OPT.get(name, default))

KNAME = 'standalone__edge_featured_mpnn_egc__graph_kernel'
N_NODES = 12500
E_EDGES = 800000
NB = 49
NWG = 256
CH = 3136
WS_RW = 0
WS_RE = 0x00400000
CAP = CH + 256
WS_TAB = 0x00B00000
WS_NT = 0x00C00000
WS_PROF = 0x01000000
M8 = opt('m8', 0)
if M8:
    KH, KEXP, SV = 13, 26, 0
else:
    KH, KEXP, SV = 31, 31, 30
LOG2E = 1.4426950408889634
SC = opt('sc', 'sc1')
SC = (' ' + SC.replace('+', ' ')) if SC != 'none' else ''
LSC = opt('lsc', 'sc1')
LSC = (' ' + LSC.replace('+', ' ')) if LSC != 'none' else ''
GSC = opt('gsc', 'sc1')
GSC = (' ' + GSC.replace('+', ' ')) if GSC != 'none' else ''
ELD = opt('eld', 'none')
ELD = (' ' + ELD.replace('+', ' ')) if ELD != 'none' else ''

def f2u(x):
    return struct.unpack('<I', struct.pack('<f', x))[0]

out = []
def e(s=''):
    out.append(s)
def I(s):
    out.append('    ' + s)
def L(name):
    out.append(name + ':')
def vr(a, n):
    return f'v[{a}:{a+n-1}]' if n > 1 else f'v{a}'
def sr4(a):
    return f's[{a}:{a+3}]'
def sp(a):
    return f's[{a}:{a+1}]'
def p(r):
    return f'v[{r}:{r+1}]'

def srd(d, lo, hi, nrec):
    I(f's_mov_b32 s{d}, s{lo}')
    I(f's_mov_b32 s{d+1}, s{hi}')
    I(f's_mov_b32 s{d+2}, {nrec}')
    I(f's_mov_b32 s{d+3}, 0x00020000')

def srd_off(d, lo, hi, off, nrec):
    I(f's_add_u32 s{d}, s{lo}, {off}')
    I(f's_addc_u32 s{d+1}, s{hi}, 0')
    I(f's_mov_b32 s{d+2}, {nrec}')
    I(f's_mov_b32 s{d+3}, 0x00020000')

def wave_scan(v):
    for sh in (1, 2, 4, 8):
        I('s_nop 1')
        I(f'v_add_u32_dpp v{v}, v{v}, v{v} row_shr:{sh} row_mask:0xf bank_mask:0xf')
    I('s_nop 1')
    I(f'v_add_u32_dpp v{v}, v{v}, v{v} row_bcast:15 row_mask:0xa bank_mask:0xf')
    I('s_nop 1')
    I(f'v_add_u32_dpp v{v}, v{v}, v{v} row_bcast:31 row_mask:0xc bank_mask:0xf')
    I('s_nop 1')

LS = 0
ZR = 18688
LE = 18688
CNT = 56064
MISC = 56320
BASET = 56576
NINFO = 56832
HIST = 57344
HBASE = 58368
DESCP = 59392
EXTRA = 67840
DESCA = 84224
PT = 86784
ACCN = 99328
WRAW = 111872
WG_, WV_, WU_ = WRAW, WRAW + 17408, WRAW + 25600
XOWN = WRAW + 33792
LDS_BYTES = XOWN + 8192
STGW = 0
STGE = CAP * 4
NTI = EXTRA
MAXG = 576
assert STGE + CAP * 8 <= CNT

V_TID, V_LANE = 0, 1
V_MA, V_MB = 2, 4
V_VAA = (6, 8)
V_VAP = 10
V_PS0, V_PS1, V_PE, V_PD, V_CH8, V_CHP = 12, 13, 14, 15, 16, 17
V_PROF = 18
V_TAB = 20
V_J4, V_CB4 = 24, 25
V_X = 26
V_T01D, V_T01N, V_T23D, V_T23N = 40, 42, 44, 46
B5 = (48, 52)
A5 = 56
V_TT = (60, 62)
G = (64, 80)
Z = 96
S = 112

S_XS, S_WS, S_DST, S_SRC, S_EA, S_RW, S_RE, S_TAB, S_NTS, S_NTG, S_OUT = 12, 16, 20, 24, 28, 32, 36, 40, 44, 48, 52
S_MASK = 56
S_W, S_L, S_CNT, S_JB, S_WID, S_MORE = 72, 73, 74, 75, 76, 77
S_C = 78
S_EX = 80
S_LDX = 82
S_T = 84
S_WSP = 94
S_DBG = 96
S_TAG, S_TAG2 = 100, 101
TAGM = 0xC003C003
TAGL = MISC + 64

NT2 = 2 if opt('touch', 0) else 0
LDXV = 0 if opt('noload', 0) else -1
NPFM = opt('npf', 4)
NPF = {0: 0, 1: 7, 2: 7, 3: 2, 4: 1, 5: 1}[NPFM]
NPF1 = NPF if NPFM in (1, 5) else 0
WSB = opt('wsb', 0) << 20
TCH = 4 if opt('touch', 0) else 0
T1 = opt('t1', 0)
OSC = opt('osc', 'nt')
OSC = (' ' + OSC.replace('+', ' ')) if OSC != 'none' else ''
KREP = opt('krep', 1)
assert KREP == 1
CM = opt('cm', 1)
RSTEP = 64 if CM else 8
SRCL = opt('srcl', 1)
PROF = opt('prof', 0)
DIAG = opt('diag', -1)
def diag_end():
    if DIAG < 0:
        return
    I('s_memrealtime s[98:99]')
    I('s_waitcnt lgkmcnt(0)')
    I('v_readlane_b32 s92, v18, 1')
    I('v_readlane_b32 s93, v18, 0')
    I('s_nop 3')
    I('s_sub_u32 s92, s92, s93')
    I('s_lshl_b32 s92, s92, 2')
    I('s_mov_b32 s93, s98')
    lbl = f'L_DG{len(out)}'
    L(lbl)
    I('s_memrealtime s[98:99]')
    I('s_waitcnt lgkmcnt(0)')
    I('s_sub_u32 s98, s98, s93')
    I('s_cmp_lt_u32 s98, s92')
    I(f's_cbranch_scc1 {lbl}')
def stamp(i):
    if DIAG >= 0 and i in (0, DIAG):
        I('s_memrealtime s[98:99]')
        I('s_waitcnt lgkmcnt(0)')
        if i == 0:
            I('v_writelane_b32 v18, s98, 0')
        if i == DIAG:
            I('v_writelane_b32 v18, s98, 1')
    if not PROF:
        return
    I('s_memtime s[98:99]')
    I('s_waitcnt lgkmcnt(0)')
    I(f'v_writelane_b32 v{V_PROF}, s98, {i}')
def rstamp(i):
    if not PROF:
        return
    I('s_memrealtime s[98:99]')
    I('s_waitcnt lgkmcnt(0)')
    I(f'v_writelane_b32 v{V_PROF}, s98, {i}')
def prof_store():
    if not PROF:
        return
    rstamp(31)
    if PROF == 3:
        I(f's_lshl_b32 s98, s2, 4')
        I(f's_add_u32 s98, s98, s{S_W}')
        I(f's_cmp_lg_u32 s98, {opt("pwave", 80)}')
        I('s_cbranch_scc1 L_END')
        I('s_mov_b64 exec, -1')
        I(f'v_readlane_b32 s98, v{V_PROF}, 0')
        I(f'v_readlane_b32 s99, v{V_PROF}, 30')
        I(f'v_readlane_b32 s{S_T}, v{V_PROF}, 31')
        I('s_nop 3')
        I(f's_sub_u32 s{S_T}, s{S_T}, s99')
        I(f's_add_u32 s{S_T}, s{S_T}, s98')
        I(f'v_writelane_b32 v{V_PROF}, s{S_T}, 9')
        I(f'v_subrev_u32 v{V_PROF}, s98, v{V_PROF}')
        I(f'v_mbcnt_lo_u32_b32 v{V_PROF+1}, -1, 0')
        I(f'v_lshlrev_b32 v{V_PROF+1}, 2, v{V_PROF+1}')
        I(f'v_add_u32 v{V_PROF+1}, -8, v{V_PROF+1}')
        I('s_mov_b64 exec, 0x3fff8')
        I(f'global_store_dword v{V_PROF+1}, v{V_PROF}, {sp(S_DBG)}')
        return
    I('s_mov_b64 exec, 0xffffffff')
    I(f's_add_u32 s{S_T}, s{S_WSP}, 0x{WS_PROF:x}')
    I(f's_addc_u32 s{S_T+1}, s{S_WSP+1}, 0')
    I(f'v_mbcnt_lo_u32_b32 v{V_PROF+1}, -1, 0')
    I(f'v_lshlrev_b32 v{V_PROF+1}, 2, v{V_PROF+1}')
    I(f's_lshl_b32 s98, s2, 4')
    I(f's_add_u32 s98, s98, s{S_W}')
    I(f's_lshl_b32 s98, s98, 7')
    I(f'v_add_u32 v{V_PROF+1}, s98, v{V_PROF+1}')
    I(f'global_store_dword v{V_PROF+1}, v{V_PROF}, {sp(S_T)}')

class Lg:
    def __init__(self):
        self.q = []
    def op(self, tag, text):
        I(text)
        self.q.append(tag)
    def need(self, *tags):
        idx = -1
        for t in tags:
            for i in range(len(self.q) - 1, -1, -1):
                if self.q[i] == t:
                    idx = max(idx, i)
                    break
        if idx < 0:
            return
        n = len(self.q) - 1 - idx
        assert n <= 15, (tags, n)
        I(f's_waitcnt lgkmcnt({n})')
        self.q = self.q[idx + 1:]

X = V_X

def zero_range(a, nbytes, zr, ad):
    k = 0
    base = a if a + nbytes <= 65536 + 16384 and a < 65536 - 3 * 16384 else None
    off = 0
    areg = ad
    if a + ((nbytes - 1) // 16384) * 16384 > 65535:
        I(f'v_add_u32 v{X+1}, {a}, v{ad}')
        areg = X + 1
        a0 = 0
    else:
        a0 = a
    while off < nbytes:
        n = min(16384, nbytes - off)
        if n < 16384:
            I(f'v_cmp_gt_u32 vcc, {n // 16}, v{V_TID}')
            I(f's_and_saveexec_b64 {sp(S_EX)}, vcc')
        I(f'ds_write_b128 v{areg}, v[{zr}:{zr+3}] offset:{a0 + off}')
        if n < 16384:
            I(f's_mov_b64 exec, {sp(S_EX)}')
        off += n

def zregs():
    I(f'v_lshlrev_b32 v{X}, 4, v{V_TID}')
    for k in range(4):
        I(f'v_mov_b32 v{X+2+k}, 0')

def fill_desca():
    I(f'v_and_b32 v{X+6}, 15, v{V_TID}')
    I(f'v_lshlrev_b32 v{X+6}, 10, v{X+6}')
    I(f'v_add_u32 v{X+6}, {EXTRA}, v{X+6}')
    for k in range(1, 4):
        I(f'v_add_u32 v{X+6+k}, {256*k}, v{X+6}')
    I(f'v_add_u32 v{X+1}, {DESCA}, v{X}')
    I(f'v_cmp_gt_u32 vcc, 160, v{V_TID}')
    I(f's_and_saveexec_b64 {sp(S_EX)}, vcc')
    I(f'ds_write_b128 v{X+1}, v[{X+6}:{X+9}]')
    I(f's_mov_b64 exec, {sp(S_EX)}')

def fill_zero():
    zregs()
    zero_range(ZR, 65536, X + 2, X)
    fill_desca()

def fill_words():
    I(f'v_lshlrev_b32 v{X}, 4, v{V_TID}')
    I(f'v_and_b32 v{X+2}, 7, v{V_TID}')
    I(f'v_lshlrev_b32 v{X+2}, 5, v{X+2}')
    I(f'v_add_u32 v{X+2}, {N_NODES*8}, v{X+2}')
    for k in range(1, 4):
        I(f'v_add_u32 v{X+2+k}, {8*k}, v{X+2}')
    I(f'ds_write_b128 v{X}, v[{X+2}:{X+5}] offset:{LS}')
    I(f'v_cmp_gt_u32 vcc, 144, v{V_TID}')
    I(f's_and_saveexec_b64 {sp(S_EX)}, vcc')
    I(f'ds_write_b128 v{X}, v[{X+2}:{X+5}] offset:{LS+16384}')
    I(f's_mov_b64 exec, {sp(S_EX)}')

V_C8P, V_CPP, V_SCP = 26, 28, 30
S_BP0, S_BP1 = 88, 90

def tail_ops(n):
    M = (V_MA, V_MB)[n]
    return [f'v_rcp_f32 v{V_T01D}, v{V_T01D}',
            f'v_rcp_f32 v{V_T01D+1}, v{V_T01D+1}',
            f'v_pk_fma_f32 {p(M)}, {p(V_T01N)}, {p(V_T01D)}, {p(M)}']

def acc_write(lg, va):
    lg.op('Wa', f'ds_write2_b32 v{va}, v{V_MA}, v{V_MB} offset0:0 offset1:1')
    lg.op('Wb', f'ds_write2_b32 v{va+1}, v{V_MA+1}, v{V_MB+1} offset0:0 offset1:1')

def acc_read(lg, va):
    lg.op('Ra', f'ds_read_b32 v{V_MA}, v{va}')
    lg.op('Rb', f'ds_read_b32 v{V_MA+1}, v{va+1}')
    lg.op('Rc', f'ds_read_b32 v{V_MB}, v{va} offset:4')
    lg.op('Rd', f'ds_read_b32 v{V_MB+1}, v{va+1} offset:4')

def va_add(vap, vaa):
    I(f'v_lshl_add_u64 {p(vap)}, {p(vap)}, 0, {p(V_CPP)}')
    I(f'v_lshl_add_u64 {p(vaa)}, {p(vaa)}, 0, {p(V_C8P)}')

def gload(n, i):
    return f'buffer_load_dword v{G[n]+i}, v{S + (i & 1) * 8 + (i >> 1)}, {sr4(S_NTG)}, 0 offen offset:{4*n}' + GSC

def s_safe():
    if opt('safe', 0):
        for i in range(16):
            I(f'v_and_b32 v{S+i}, 0x1fff8, v{S+i}')

def s_reads(lg, uo):
    lg.op('S0', f'ds_read_b128 {vr(S,4)}, v{V_PS0} offset:{uo*32}')
    lg.op('S1', f'ds_read_b128 {vr(S+4,4)}, v{V_PS0} offset:{uo*32+16}')
    lg.op('S2', f'ds_read_b128 {vr(S+8,4)}, v{V_PS1} offset:{uo*32}')
    lg.op('S3', f'ds_read_b128 {vr(S+12,4)}, v{V_PS1} offset:{uo*32+16}')

def half(lg, n, par, uo, with_tail=True):
    g = G[n]
    I('s_waitcnt vmcnt(16)')
    if n == 0:
        lg.need('P0a', 'P0b', 'e')
    else:
        lg.need('P1a', 'P1b')
    I(f'v_mfma_f32_32x32x16_bf16 {vr(Z,16)}, {vr(A5,4)}, {vr(B5[n],4)}, {vr(g,16)}')
    t = tail_ops(n ^ 1)
    va_prev, va_cur, va_nxt = V_VAA[par ^ 1], V_VAA[par], V_VAA[par ^ 1]
    sh = [f'v_lshlrev_b32 v{g+i}, 16, v{g+i}' for i in range(16)]
    ex = [f'v_exp_f32 v{Z+i}, v{Z+i} clamp' for i in range(16)]
    l3 = [f'v_pk_mul_f32 {p(V_T01N)}, {p(V_T01N)}, {p(V_T23D)}',
          f'v_pk_mul_f32 {p(V_T23D)}, {p(V_T01D)}, {p(V_T23D)}',
          f'v_pk_fma_f32 {p(V_T01N)}, {p(V_T23N)}, {p(V_T01D)}, {p(V_T01N)}',
          f'v_rcp_f32 v{V_T23D}, v{V_T23D}',
          f'v_rcp_f32 v{V_T23D+1}, v{V_T23D+1}',
          f'v_pk_fma_f32 {p((V_MA, V_MB)[n ^ 1])}, {p(V_T01N)}, {p(V_T23D)}, {p((V_MA, V_MB)[n ^ 1])}']
    if with_tail and not M8:
        for r_ in (V_T01D, V_T01D + 1, V_T23D, V_T23D + 1):
            I(f'v_rcp_f32 v{r_}, v{r_}')
    else:
        I('s_nop 3')
    if n == 1:
        lg.op('e', f'ds_read_b64 {p(A5)}, v{V_PE} offset:{(uo+1)*64}')
        lg.op('P1a', f'ds_read_b32 v{B5[1]+2}, v{V_VAP} offset:4')
        lg.op('P1b', f'ds_read_b32 v{B5[1]+3}, v{V_VAP+1} offset:4')
    else:
        lg.op('dP', f'ds_read_b64 {p(V_VAP)}, v{V_PD} offset:{(uo+1)*256}')
        I('s_nop 1')
    for op in sh[:8]:
        I(op)
    seq = []
    if with_tail and not M8:
        Mp = p((V_MA, V_MB)[n ^ 1])
        seq = ['NEED', f'v_pk_fma_f32 {Mp}, {p(V_T01N)}, {p(V_T01D)}, {Mp}', ex[0],
               f'v_pk_fma_f32 {Mp}, {p(V_T23N)}, {p(V_T23D)}, {Mp}', sh[8], 'ACC', ex[1], sh[9]]
    elif with_tail:
        seq = [l3[0], l3[1], ex[0], l3[2], l3[3], sh[8], l3[4], ex[1], sh[9], 'NEED', l3[5], 'ACC']
    else:
        seq = [ex[0], sh[8], ex[1], sh[9], 'ACC']
    for op in seq:
        if op == 'NEED':
            lg.need('Ra', 'Rb', 'Rc', 'Rd')
        elif op == 'ACC':
            if n == 0:
                if with_tail:
                    acc_write(lg, va_prev)
                acc_read(lg, va_cur)
                lg.op('dA', f'ds_read_b64 {p(va_nxt)}, v{V_PD} offset:{(uo+1)*256 + DESCA - DESCP}')
        else:
            I(op)
    for i in range(2, 12):
        I(ex[i])
        if 8 + i < 16:
            I(sh[8 + i])
        if n == 0 and i == 11:
            lg.need('dP', 'dA')
            va_add(V_VAP, va_nxt)
            lg.op('P0a', f'ds_read_b32 v{B5[0]+2}, v{V_VAP}')
            lg.op('P0b', f'ds_read_b32 v{B5[0]+3}, v{V_VAP+1}')
    for op in ex[12:]:
        I(op)
    for i in range(0, 16, 2):
        if M8:
            I(f'v_pk_fma_f32 {p(Z+i)}, {p(Z+i)}, {p(V_SCP)}, {sp(S_C)}')
        else:
            I(f'v_pk_add_f32 {p(Z+i)}, {p(Z+i)}, {sp(S_C)}')
    def T(k): return f'v_pk_mul_f32 {p(V_TT[k&1])}, {p(g+4*k)}, {p(Z+4*k+2)}'
    def DD(k): return f'v_pk_mul_f32 {p(Z+4*k+2)}, {p(Z+4*k)}, {p(Z+4*k+2)}'
    def NN(k): return f'v_pk_fma_f32 {p(Z+4*k)}, {p(g+4*k+2)}, {p(Z+4*k)}, {p(V_TT[k&1])}'
    for k0 in (0, 2):
        for op in (T(k0), T(k0 + 1), DD(k0), DD(k0 + 1), NN(k0), NN(k0 + 1)):
            I(op)
        if n == 0 and k0 == 0:
            lg.need('S0', 'S1', 'S2', 'S3')
            s_safe()
        I(f's_mov_b64 exec, {sp(S_LDX)}')
        for i in range(4 * k0, 4 * k0 + 8):
            I(gload(n, i))
        I('s_mov_b64 exec, -1')
    if n == 1:
        s_reads(lg, uo + 2)
    I(f'v_pk_mul_f32 {p(V_T01N)}, {p(Z)}, {p(Z+6)}')
    I(f'v_pk_mul_f32 {p(V_T23N)}, {p(Z+8)}, {p(Z+14)}')
    I(f'v_pk_mul_f32 {p(V_T01D)}, {p(Z+2)}, {p(Z+6)}')
    I(f'v_pk_mul_f32 {p(V_T23D)}, {p(Z+10)}, {p(Z+14)}')
    I(f'v_pk_fma_f32 {p(V_T01N)}, {p(Z+4)}, {p(Z+2)}, {p(V_T01N)}')
    I(f'v_pk_fma_f32 {p(V_T23N)}, {p(Z+12)}, {p(Z+10)}, {p(V_T23N)}')

PRIO = {
    3: {(3, 0): 2, (2, 0): 1, (1, 0): 0},
    5: {(2, 0): 2, (1, 0): 1, (1, 1): 0},
    6: {(3, 0): 2, (1, 0): 1, (1, 1): 0},
    7: {(2, 1): 2, (1, 0): 1, (1, 1): 0},
    8: {(4, 0): 2, (2, 0): 1, (1, 1): 0},
    9: {(3, 0): 2, (2, 1): 1, (1, 1): 0},
    0: {},
}[opt('prio', 9)]
def prio(tag, phase=0):
    for (t, ph), lvl in PRIO.items():
        if ph != phase:
            continue
        I(f's_cmp_eq_u32 s{S_CNT}, {t}')
        I(f's_cbranch_scc0 L_PR{tag}_{lvl}')
        I(f's_setprio {lvl}')
        L(f'L_PR{tag}_{lvl}')

def split_hilo(a, b, t0, t1):
    I(f'v_cvt_pk_bf16_f32 v{t0}, v{a}, v{b}')
    I(f'v_lshlrev_b32 v{t1}, 16, v{t0}')
    I(f'v_and_b32 v{t0}, 0xffff0000, v{t0}')
    I(f'v_sub_f32 v{a}, v{a}, v{t1}')
    I(f'v_sub_f32 v{b}, v{b}, v{t0}')
    I(f'v_cvt_pk_bf16_f32 v{a}, v{t1}, v{a}')
    I(f'v_cvt_pk_bf16_f32 v{b}, v{t0}, v{b}')

V_AA, V_AB, V_AD, V_AP = 6, 7, 8, 9
SA, SB, SD = 80, 96, 112

def phase0_addr():
    I(f's_and_b32 s{S_T}, s{S_W}, 3')
    I(f's_lshr_b32 s{S_T+1}, s{S_W}, 2')
    I(f'v_and_b32 v12, 15, v{V_LANE}')
    I(f'v_lshrrev_b32 v13, 4, v{V_LANE}')
    I(f'v_bfe_u32 v14, v{V_LANE}, 1, 3')
    I(f'v_xor_b32 v14, v14, v13')
    I(f'v_lshlrev_b32 v14, 4, v14')
    I(f'v_lshl_or_b32 v14, v12, 7, v14')
    I(f's_lshl_b32 s{S_T+2}, s{S_T}, 11')
    I(f'v_add_u32 v{V_AA}, s{S_T+2}, v14')
    I(f'v_bfe_u32 v14, v{V_LANE}, 2, 2')
    I(f'v_lshl_add_u32 v14, v13, 3, v14')
    I(f'v_lshlrev_b32 v14, 7, v14')
    I(f'v_and_b32 v15, 3, v{V_LANE}')
    I(f'v_lshl_add_u32 v14, v15, 3, v14')
    I(f's_lshl_b32 s{S_T+2}, s{S_T+1}, 5')
    I(f'v_or_b32 v14, s{S_T+2}, v14')
    I(f'v_and_b32 v15, 24, v{V_LANE}')
    I(f'v_lshlrev_b32 v15, 2, v15')
    I(f'v_xor_b32 v14, v14, v15')
    I(f'v_add_u32 v{V_AB}, {WRAW}, v14')
    I(f's_lshl_b32 s{S_T+2}, s{S_T}, 12')
    I(f'v_lshlrev_b32 v13, 10, v13')
    I(f'v_add_u32 v13, s{S_T+2}, v13')
    I(f's_lshl_b32 s{S_T+2}, s{S_T+1}, 6')
    I(f's_add_u32 s{S_T+2}, s{S_T+2}, {NTI}')
    I(f'v_lshl_add_u32 v{V_AD}, v12, 2, v13')
    I(f'v_add_u32 v{V_AD}, s{S_T+2}, v{V_AD}')
    I(f's_and_b32 s{S_T+2}, s{S_T+1}, 1')
    I(f's_lshl_b32 s{S_T+2}, s{S_T+2}, 7')
    I(f's_lshr_b32 s{S_T+3}, s{S_T+1}, 1')
    I(f's_lshl_b32 s{S_T+3}, s{S_T+3}, 2')
    I(f's_add_u32 s{S_T+2}, s{S_T+2}, s{S_T+3}')
    I(f's_add_u32 s{S_T+2}, s{S_T+2}, {PT}')
    I(f'v_lshl_add_u32 v{V_AP}, v12, 3, v13')
    I(f'v_add_u32 v{V_AP}, s{S_T+2}, v{V_AP}')

def b_reads(dst, off):
    for sg in range(2):
        for pp in range(2):
            I(f'ds_read_b64_tr_b16 {vr(dst+4*sg+2*pp,2)}, v{V_AB} offset:{off+sg*4096+pp*512}')

def mm16(d, b):
    I(f'v_mfma_f32_16x16x32_bf16 {vr(d,4)}, {vr(SA,4)}, {vr(b,4)}, 0')
    I(f'v_mfma_f32_16x16x32_bf16 {vr(d,4)}, {vr(SA+4,4)}, {vr(b+4,4)}, {vr(d,4)}')

def phase0a():
    I(f'v_add_u32 v12, {XOWN}, v{V_AA}')
    I(f'v_xor_b32 v13, 64, v{V_AA}')
    I(f'v_add_u32 v13, {XOWN}, v13')
    I(f'ds_read_b128 {vr(SA,4)}, v12')
    I(f'ds_read_b128 {vr(SA+4,4)}, v13')
    b_reads(SB, 8192)
    b_reads(SB + 8, WV_ - WRAW)
    I(f's_mov_b32 s{S_T+4}, 0x{f2u(-LOG2E):x}')
    I(f's_mov_b32 s{S_T+6}, 0x7fffffff')
    I(f's_mov_b32 s{S_T+7}, 0xffff0000')
    I('s_waitcnt lgkmcnt(4)')
    mm16(SD, SB)
    I('s_waitcnt lgkmcnt(0)')
    mm16(SD + 4, SB + 8)
    I('s_nop 4')
    for i in range(4):
        I(f'v_mul_f32 v{SD+i}, s{S_T+4}, v{SD+i}')
    for i in range(4):
        I(f'v_and_b32 v{SD+8+i}, s{S_T+6}, v{SD+i}')
    for i in range(4):
        if SV:
            I(f'v_mul_f32 v{SD+4+i}, 0x{f2u(2.0**SV):x}, v{SD+4+i}')
        I(f'v_add_u32 v{SD+8+i}, 0x8000, v{SD+8+i}')
    I(f'v_cvt_pk_bf16_f32 v{SD+4}, v{SD+4}, v{SD+5}')
    I(f'v_cvt_pk_bf16_f32 v{SD+6}, v{SD+6}, v{SD+7}')
    I(f'v_lshrrev_b32 v{SD+5}, 16, v{SD+4}')
    I(f'v_lshrrev_b32 v{SD+7}, 16, v{SD+6}')
    I(f'v_and_b32 v{SD+4}, 0xffff, v{SD+4}')
    I(f'v_and_b32 v{SD+6}, 0xffff, v{SD+6}')
    for i in range(4):
        I(f'v_sub_u32 v{SD+8+i}, v{SD+8+i}, v{SD+4+i} clamp')
    for i in range(4):
        I(f'v_and_or_b32 v{SD+8+i}, v{SD+8+i}, s{S_T+7}, v{SD+4+i}')
    for i in range(4):
        I(f'v_bfi_b32 v{SD+i}, s{S_T+6}, v{SD+8+i}, v{SD+i}')
        I(f'ds_write_b32 v{V_AD}, v{SD+i} offset:{i*256}')

def phase0b():
    b_reads(SB, 0)
    b_reads(SB + 8, WU_ - WRAW)
    I(f's_mov_b32 s{S_T+4}, 0x{f2u(-LOG2E):x}')
    I(f's_mov_b32 s{S_T+5}, 0x{f2u(2.0**(SV+KH)):x}')
    I(f'v_mov_b32 v13, 0x{f2u(-float(KEXP)):x}')
    I(f's_and_b32 s{S_T+6}, s{S_W}, 3')
    I('s_waitcnt lgkmcnt(4)')
    mm16(SD, SB)
    I('s_waitcnt lgkmcnt(0)')
    mm16(SD + 4, SB + 8)
    I('s_nop 4')
    for i in range(4):
        I(f'v_fma_f32 v{SD+i}, v{SD+i}, s{S_T+4}, v13')
    split_hilo(SD, SD + 1, 12, 13)
    split_hilo(SD + 2, SD + 3, 12, 13)
    for i in range(4):
        I(f'v_mul_f32 v{SD+4+i}, s{S_T+5}, v{SD+4+i}')
    I(f's_cmp_eq_u32 s{S_T+6}, 3')
    I(f's_cselect_b64 exec, 0xffff, -1')
    I(f'ds_write_b32 v{V_AP}, v{SD}')
    I(f'ds_write_b32 v{V_AP}, v{SD+4} offset:{ACCN-PT}')
    I(f's_cselect_b64 exec, 0, -1')
    for i in range(1, 4):
        I(f'ds_write_b32 v{V_AP}, v{SD+i} offset:{i*256}')
        I(f'ds_write_b32 v{V_AP}, v{SD+4+i} offset:{ACCN-PT+i*256}')
    I('s_mov_b64 exec, -1')

def phase0c():
    I(f'v_bfe_u32 v13, v{V_LANE}, 2, 2')
    I(f'v_lshlrev_b32 v13, 7, v13')
    I(f'v_bfe_u32 v15, v{V_LANE}, 4, 1')
    I(f'v_lshl_add_u32 v13, v15, 5, v13')
    I(f'v_and_b32 v15, 3, v{V_LANE}')
    I(f'v_lshl_add_u32 v13, v15, 3, v13')
    I(f'v_and_b32 v15, 8, v{V_LANE}')
    I(f'v_lshlrev_b32 v15, 2, v15')
    I(f'v_xor_b32 v13, v13, v15')
    I(f'v_add_u32 v13, {WG_ + 16384}, v13')
    I(f'ds_read_b64_tr_b16 v[96:97], v13')
    I(f'ds_read_b64_tr_b16 v[98:99], v13 offset:64')
    I(f's_mov_b32 s{S_T+4}, 0x{f2u(-LOG2E):x}')
    I(f'v_cmp_lt_u32 vcc, 31, v{V_LANE}')
    I('s_waitcnt lgkmcnt(0)')
    for m in range(4):
        I(f'v_lshlrev_b32 v{100+2*m}, 16, v{96+m}')
        I(f'v_and_b32 v{101+2*m}, 0xffff0000, v{96+m}')
    for j in range(8):
        I(f'v_mul_f32 v{100+j}, s{S_T+4}, v{100+j}')
    for m in range(4):
        dst = B5[m >> 1] + (m & 1)
        I(f'v_cvt_pk_bf16_f32 v{96+m}, v{100+2*m}, v{101+2*m}')
        I(f'v_lshlrev_b32 v12, 16, v{96+m}')
        I(f'v_and_b32 v13, 0xffff0000, v{96+m}')
        I(f'v_sub_f32 v12, v{100+2*m}, v12')
        I(f'v_sub_f32 v13, v{101+2*m}, v13')
        I(f'v_cvt_pk_bf16_f32 v12, v12, v13')
        I(f'v_cndmask_b32 v{dst}, v{96+m}, v12, vcc')

def a5_const():
    I(f'v_bfe_u32 v12, v{V_LANE}, 2, 1')
    I(f'v_lshrrev_b32 v13, 5, v{V_LANE}')
    I(f'v_xor_b32 v12, v12, v13')
    I(f'v_and_b32 v13, 1, v{V_LANE}')
    I(f'v_lshl_or_b32 v12, v12, 1, v13')
    I(f'v_mov_b32 v13, 0x3f803f80')
    I(f'v_cmp_eq_u32 vcc, 0, v12')
    I(f'v_cmp_eq_u32 {sp(S_T)}, 1, v12')
    I('s_nop 1')
    I(f'v_cndmask_b32 v{A5+2}, 0, v13, vcc')
    I(f'v_cndmask_b32 v{A5+3}, 0, v13, {sp(S_T)}')

def nt_prefetch(vt, first=0, nl=None, dst=96):
    I(f's_lshr_b32 s{S_T}, s2, 4')
    I(f's_lshl_b32 s{S_T+1}, s{S_W}, 4')
    I(f's_add_u32 s{S_T}, s{S_T}, s{S_T+1}')
    I(f's_and_b32 s{S_T+1}, s{S_T}, 7')
    I(f's_lshl_b32 s{S_T+1}, s{S_T+1}, 5')
    I(f's_lshr_b32 s{S_T}, s{S_T}, 3')
    I(f's_add_u32 s{S_T}, s{S_T}, s{S_T+1}')
    if not opt('xmap', 1):
        I(f's_lshr_b32 s{S_T}, s2, 4')
        I(f's_lshl_b32 s{S_T+1}, s{S_W}, 4')
        I(f's_add_u32 s{S_T}, s{S_T}, s{S_T+1}')
    I(f's_lshl_b32 s{S_T}, s{S_T}, 1')
    I(f's_bfe_u32 s{S_T+1}, s2, 0x10003')
    I(f's_add_u32 s{S_T}, s{S_T}, s{S_T+1}')
    I(f's_mul_i32 s{S_T}, s{S_T}, {NB*128}')
    I(f's_add_u32 s{S_T}, s{S_T}, 0x{WS_NT:x}')
    srd_off(S_NTS, S_WSP, S_WSP + 1, f's{S_T}', NB * 128)
    if NPFM >= 3:
        I(f'v_lshlrev_b32 v{vt}, {7 if NPFM >= 4 else 6}, v{V_LANE}')
        I(f'v_add_u32 v{vt+1}, 4096, v{vt}')
        nl = opt("pfl", 20) if nl is None else nl
        I(f's_mov_b32 exec_lo, 0x{(((1 << nl) - 1) << first) & 0xffffffff:x}')
        I(f's_mov_b32 exec_hi, 0x{(((1 << nl) - 1) << first) >> 32:x}')
        for k in range(NPF):
            I(f'buffer_load_dword v{dst+k}, v{vt+k}, {sr4(S_NTS)}, 0 offen' + (LSC if opt('pfsc', 1) else ''))
        I('s_mov_b64 exec, -1')
        return
    I(f'v_lshlrev_b32 v{vt}, 4, v{V_LANE}')
    I(f'v_add_u32 v{vt+1}, 4096, v{vt}')
    for k in range(NPF):
        I(f'buffer_load_dwordx4 {vr(96+4*k,4)}, v{vt+(k>>2)}, {sr4(S_NTS)}, 0 offen offset:{(k&3)*1024}' + LSC)

def ptr_consts():
    I(f'v_lshrrev_b32 v{V_PS1}, 5, v{V_LANE}')
    I(f's_lshl_b32 s{S_T}, s{S_W}, 4')
    I(f's_add_u32 s{S_T}, s{S_T}, {DESCP}')
    I(f'v_lshlrev_b32 v{V_PD}, 3, v{V_PS1}')
    I(f'v_add_u32 v{V_PS1}, v{V_PS1}, v{V_PS1}')
    I(f'v_add_u32 v{V_PD}, s{S_T}, v{V_PD}')
    I(f'v_bfe_u32 v{V_VAP}, v{V_LANE}, 2, 1')
    I(f'v_and_b32 v{V_PE}, 1, v{V_LANE}')
    I(f'v_lshl_or_b32 v{V_VAP}, v{V_VAP}, 1, v{V_PE}')
    I(f'v_bfe_u32 v{V_PE}, v{V_LANE}, 3, 2')
    I(f'v_bfe_u32 v{V_PS0}, v{V_LANE}, 1, 1')
    I(f'v_lshl_or_b32 v{V_PE}, v{V_PE}, 1, v{V_PS0}')
    I(f'v_lshlrev_b32 v{V_PE}, 3, v{V_PE}')
    I(f'v_add_u32 v{V_PE}, {LE}, v{V_PE}')

def gen():
    e(f'.globl {KNAME}')
    e('.p2align 8')
    e(f'.type {KNAME},@function')
    L(KNAME)
    I(f's_cmp_ge_u32 s2, {NWG}')
    I('s_cbranch_scc1 L_END')
    I('s_load_dwordx8 s[84:91], s[0:1], 0')
    I('s_load_dwordx4 s[4:7], s[0:1], 32')
    I('s_load_dwordx4 s[8:11], s[0:1], 48')
    I('s_load_dwordx4 s[56:59], s[0:1], 64')
    if PROF:
        I(f'v_mov_b32 v{V_PROF}, 0')
    rstamp(30)
    stamp(0)
    zregs()
    zero_range(CNT, DESCP + 2560 - CNT, X + 2, X)
    I(f'v_lshlrev_b32 v{X+6}, 2, v{V_TID}')
    I(f's_mul_i32 s61, s2, {CH*4}')
    I(f's_mul_i32 s63, s2, {CH}')
    I(f's_sub_u32 s63, {E_EDGES}, s63')
    I(f's_min_u32 s63, s63, {CH}')
    I(f's_lshl_b32 s64, s63, 2')
    I(f'v_add_u32 v{X+8}, 4096, v{X+6}')
    I(f'v_add_u32 v{X+9}, 8192, v{X+6}')
    I(f'v_add_u32 v{X+10}, 12288, v{X+6}')
    I(f'v_lshrrev_b32 v{X+1}, 6, v{V_TID}')
    I(f'v_and_b32 v{V_LANE}, 63, v{V_TID}')
    I(f'v_readfirstlane_b32 s{S_W}, v{X+1}')
    I('s_and_b32 s3, s2, 7')
    I('s_lshl_b32 s3, s3, 5')
    I('s_lshr_b32 s60, s2, 3')
    I('s_add_u32 s3, s3, s60')
    if not opt('xmap', 1):
        I('s_mov_b32 s3, s2')
    I(f's_mul_i32 s62, s2, {CH*8}')
    I(f's_lshl_b32 s65, s63, 3')
    I(f'v_and_b32 v97, 0x50, v{V_TID}')
    I(f'v_lshlrev_b32 v96, 1, v97')
    I(f'v_or_b32 v97, v97, v96')
    I(f'v_and_b32 v97, 0x60, v97')
    I(f'v_xor_b32 v97, v97, v{X}')
    I(f'v_and_b32 v96, 0x20, v96')
    I(f'v_lshlrev_b32 v98, 4, v{V_LANE}')
    I(f'v_xor_b32 v96, v96, v98')
    I(f's_lshl_b32 s66, s{S_W}, 10')
    I(f'v_and_b32 v101, 0x1fff, v97')
    I(f'v_lshrrev_b32 v98, 3, v{V_TID}')
    I(f'v_bfe_u32 v99, v98, 1, 3')
    I(f'v_and_b32 v100, 7, v{V_TID}')
    I(f'v_xor_b32 v99, v99, v100')
    I(f'v_lshlrev_b32 v99, 4, v99')
    I(f'v_lshl_add_u32 v99, v98, 7, v99')
    I(f's_mul_i32 s60, s3, {NB*128}')
    I(f'v_add_u32 v99, s60, v99')
    I(f'v_add_u32 v96, 16384, v96')
    I('s_waitcnt lgkmcnt(0)')
    I(f's_or_b32 s67, s2, s{S_W}')
    I('s_cmp_lg_u32 s67, 0')
    I('s_cbranch_scc1 L_NOTAG')
    I('s_memrealtime s[68:69]')
    I(f'v_mov_b32 v{X+2}, 0')
    I('s_waitcnt lgkmcnt(0)')
    I('s_or_b32 s68, s68, 1')
    I(f'v_mov_b32 v{X+3}, s68')
    I('s_mov_b64 exec, 1')
    I(f'global_store_dword v{X+2}, v{X+3}, s[56:57] sc1')
    I('s_mov_b64 exec, -1')
    L('L_NOTAG')
    def dst_loads():
        srd_off(S_DST, 90, 91, 's61', 's64')
        for k in range(4):
            I(f'buffer_load_dword v{64+k}, v{X+6 if k == 0 else X+7+k}, {sr4(S_DST)}, 0 offen' + ELD)
    def dma_loads():
        srd(S_WS, 8, 9, 132 * 128)
        I(f's_add_u32 m0, s66, {WG_}')
        srd(S_XS, 84, 85, N_NODES * 128)
        I(f'buffer_load_dwordx4 v97, {sr4(S_WS)}, 0 offen lds')
        I(f's_cmp_lt_u32 s{S_W}, 8')
        I(f's_cselect_b32 s{S_NTS}, s6, s4')
        I(f's_cselect_b32 s{S_NTS+1}, s7, s5')
        I(f's_mov_b32 s{S_NTS+2}, {64*128}')
        I(f's_mov_b32 s{S_NTS+3}, 0x00020000')
        I(f's_add_u32 m0, s66, {WV_}')
        I('s_nop 0')
        I(f'buffer_load_dwordx4 v101, {sr4(S_NTS)}, 0 offen lds')
        I(f's_cmp_lt_u32 s{S_W}, 8')
        I('s_cbranch_scc0 L_D3B')
        I(f's_add_u32 m0, s66, {XOWN}')
        I('s_nop 0')
        I(f'buffer_load_dwordx4 v99, {sr4(S_XS)}, 0 offen lds')
        I('s_branch L_D3C')
        L('L_D3B')
        I(f's_mov_b32 m0, {WG_ + 16384}')
        I('s_nop 0')
        I(f'buffer_load_dwordx4 v96, {sr4(S_WS)}, 0 offen lds')
        L('L_D3C')
    if opt('t0', 0):
        I(f'v_and_b32 v60, 15, v{V_LANE}')
        I(f'v_lshlrev_b32 v60, 20, v60')
        I(f'v_and_b32 v61, 1, v{V_LANE}')
        I(f'v_lshlrev_b32 v61, 20, v61')
        I(f'global_load_dword v62, v60, s[58:59]')
        I(f'global_load_dword v63, v61, s[10:11]')
    ORDER = opt('order', 2)
    if ORDER == 0:
        dma_loads()
    dst_loads()
    if ORDER == 2:
        dma_loads()
    F1 = opt('f1', 1)
    if F1:
        I('s_barrier')
    srd_off(S_SRC, 88, 89, 's61', 's64')
    LATE = opt('late', 1)
    def src_load(k):
        I(f'buffer_load_dword v{68+k}, v{X+6 if k == 0 else 43+k}, {sr4(S_SRC)}, 0 offen' + ELD)
    for k in range(1, 4):
        I(f'v_mov_b32 v{43+k}, v{X+7+k}')
    for k in range(1 if LATE else 4):
        src_load(k)
    srd_off(S_EA, 86, 87, 's62', 's65')
    I(f'v_lshlrev_b32 v92, 3, v{V_TID}')
    for k in range(1, 4):
        I(f'v_add_u32 v{92+k}, {8192*k}, v92')
    def e_load(k):
        I(f'buffer_load_dwordx2 v[{72+2*k}:{73+2*k}], v{92+k}, {sr4(S_EA)}, 0 offen' + ELD)
    NEE = 1 if LATE else opt('nee', 4)
    for k in range(NEE):
        e_load(k)
    if ORDER == 1:
        dma_loads()
    I(f's_mov_b64 {sp(S_DBG)}, s[56:57]')
    I(f's_add_u32 s{S_WSP}, s58, 0x{WSB:x}')
    I(f's_addc_u32 s{S_WSP+1}, s59, 0')
    stamp(1)
    srd(S_OUT, 10, 11, N_NODES * 128)
    I(f's_mul_i32 s{S_T}, s2, {CAP*4}')
    srd_off(S_RW, S_WSP, S_WSP + 1, f's{S_T}', CAP * 4)
    I(f's_lshl_b32 s{S_T}, s{S_T}, 1')
    I(f's_add_u32 s{S_T}, s{S_T}, 0x{WS_RE:x}')
    srd_off(S_RE, S_WSP, S_WSP + 1, f's{S_T}', CAP * 8)
    I(f's_lshl_b32 s{S_T}, s2, 11')
    I(f's_add_u32 s{S_T}, s{S_T}, 0x{WS_TAB:x}')
    srd_off(S_TAB, S_WSP, S_WSP + 1, f's{S_T}', (KREP - 1) * 0x80000 + 2048)
    I(f's_mul_i32 s{S_T}, s3, {NB*256}')
    I(f's_add_u32 s{S_T}, s{S_T}, 0x{WS_NT:x}')
    srd_off(S_NTS, S_WSP, S_WSP + 1, f's{S_T}', NB * 256)
    I(f's_add_u32 s{S_NTG}, s{S_WSP}, 0x{WS_NT:x}')
    I(f's_addc_u32 s{S_NTG+1}, s{S_WSP+1}, 0')
    I(f's_or_b32 s{S_NTG+1}, s{S_NTG+1}, 0x80000000')
    I(f's_mov_b32 s{S_NTG+2}, 0x400000')
    I(f's_mov_b32 s{S_NTG+3}, 0x00c00000')
    srd_off(S_DST, S_WSP, S_WSP + 1, '0x%x' % WS_RW, NWG * CAP * 4)
    if not LATE:
        srd_off(S_SRC, S_WSP, S_WSP + 1, '0x%x' % WS_RE, NWG * CAP * 8)
    for k in range(4):
        I(f'v_add_u32 v{X+1}, {1024*k}, v{V_TID}')
        I(f'v_cmp_gt_u32 {sp(S_MASK+2*k)}, s63, v{X+1}')
    I(f's_mov_b32 s{S_C}, 0x{f2u(2.0**-KH):x}')
    I(f's_mov_b32 s{S_C+1}, 0x{f2u(2.0**-KH):x}')
    I(f's_mov_b32 s{S_JB}, 0')
    I(f's_mov_b32 s{S_WID}, 128')
    I(f'v_and_b32 v{V_J4}, 7, v{V_LANE}')
    I(f'v_lshlrev_b32 v{V_J4}, 3, v{V_J4}')
    if CM:
        I(f'v_and_b32 v{X+1}, 56, v{V_LANE}')
        I(f's_and_b32 s{S_T}, s{S_W}, 1')
        I(f's_lshl_b32 s{S_T}, s{S_T}, 7')
        I(f's_lshr_b32 s{S_T+1}, s{S_W}, 1')
        I(f's_add_u32 s{S_T}, s{S_T}, s{S_T+1}')
    else:
        I(f'v_lshrrev_b32 v{X+1}, 3, v{V_LANE}')
        I(f's_lshl_b32 s{S_T}, s{S_W}, 4')
    I(f'v_add_u32 v{X+1}, s{S_T}, v{X+1}')
    I(f'v_lshlrev_b32 v{V_TAB+2}, 11, v{X+1}')
    I(f'v_mul_u32_u24 v{V_CB4}, {CAP*4}, v{X+1}')
    I(f'v_add_u32 v{V_CB4}, v{V_CB4}, v{V_J4}')
    I(f'v_and_b32 v{V_CH8}, 31, v{V_LANE}')
    I(f'v_lshlrev_b32 v{V_CH8}, 3, v{V_CH8}')
    I(f'v_add_u32 v{V_CHP}, {PT}, v{V_CH8}')
    phase0_addr()
    a5_const()
    if not F1:
        I(f's_waitcnt vmcnt({8 + NEE if ORDER == 0 else 0})')
        I('s_barrier')
    stamp(2)
    def late_loads():
        if LATE:
            for k in range(1, 4):
                src_load(k)
        for k in range(NEE, 4):
            e_load(k)
        I(f'v_mov_b32 v12, 0')
        I(f'global_load_dword v10, v12, {sp(S_DBG)} sc1')
        if TCH:
            I(f'v_lshlrev_b32 v13, 13, v{V_LANE}')
            I(f'buffer_load_dword v60, v13, {sr4(S_RW)}, 0 offen')
            I(f'buffer_load_dword v61, v13, {sr4(S_RE)}, 0 offen')
            I(f'buffer_load_dword v62, v13, {sr4(S_TAB)}, 0 offen')
            I(f'buffer_load_dword v63, v13, {sr4(S_NTS)}, 0 offen')
        srd_off(S_EA, S_WSP, S_WSP + 1, '0x%x' % WS_TAB, KREP * 0x80000)
        if LATE:
            srd_off(S_SRC, S_WSP, S_WSP + 1, '0x%x' % WS_RE, NWG * CAP * 8)
    if not LATE:
        late_loads()
    if not F1:
        phase0a()
    I(f's_mov_b32 s{S_T}, -{NB}')
    I(f'v_mov_b32 v{X+1}, 4')
    BN, WD, RK = 28, 32, 36
    for k in range(4):
        I(f's_waitcnt vmcnt({((5 if ORDER == 0 else 8) if LATE else (12 if ORDER == 0 else 15) + TCH) - k})')
        I(f's_mov_b64 exec, {sp(S_MASK+2*k)}')
        if k == 3:
            I('s_cbranch_execz L_B1')
        I(f'v_mul_u32_u24 v{BN+k}, 21400, v{64+k}')
        I(f'v_lshrrev_b32 v{BN+k}, 20, v{BN+k}')
        I(f'v_mad_i32_i24 v{WD+k}, v{BN+k}, s{S_T}, v{64+k}')
        I(f'v_lshlrev_b32 v{BN+k}, 2, v{BN+k}')
        I(f'ds_add_rtn_u32 v{RK+k}, v{BN+k}, v{X+1} offset:{HIST}')
        I(f'v_lshlrev_b32 v{WD+k}, 26, v{WD+k}')
    L('L_B1')
    I('s_mov_b64 exec, -1')
    if LATE:
        late_loads()
    I(f'v_add_u32 v{X+1}, {NTI}, v{X}')
    stamp(3)
    I({0: 's_waitcnt lgkmcnt(0)', 1: 's_waitcnt vmcnt(1) lgkmcnt(0)', 2: f's_waitcnt vmcnt({9 + TCH}) lgkmcnt(0)'}[ORDER])
    I('s_barrier')
    stamp(4)
    if not F1:
        I(f'ds_read_b128 v[112:115], v{X+1}')
    I(f's_cmp_lg_u32 s{S_W}, 0')
    I('s_cbranch_scc1 L_NOSCAN')
    I(f'ds_read_b128 v[96:99], v{X} offset:{HIST}')
    I('s_waitcnt lgkmcnt(0)')
    for k in range(4):
        I(f'v_add_u32 v{108+k}, 4, v{96+k}')
        I(f'v_and_b32 v{108+k}, -8, v{108+k}')
    I('v_add_u32 v101, v108, v109')
    I('v_add_u32 v102, v101, v110')
    I('v_add_u32 v103, v102, v111')
    I('v_mov_b32 v104, v103')
    wave_scan(104)
    I(f'v_readlane_b32 s{S_T+4}, v104, 63')
    I('v_sub_u32 v104, v104, v103')
    I(f'v_mov_b32 v100, {MISC+8}')
    I(f'v_mov_b32 v105, s{S_T+4}')
    I('ds_write_b32 v100, v105')
    I('v_add_u32 v105, v104, v108')
    I('v_add_u32 v106, v104, v101')
    I('v_add_u32 v107, v104, v102')
    I(f'ds_write_b128 v{X}, v[104:107] offset:{HBASE}')
    for k in range(4):
        I(f'v_lshl_or_b32 v{108+k}, v{96+k}, 16, v{104+k}')
    I(f'ds_write_b128 v{X}, v[108:111] offset:{HIST}')
    L('L_NOSCAN')
    if F1:
        phase0a()
    I('s_waitcnt lgkmcnt(0)')
    if not F1:
        I(f'buffer_store_dwordx4 v[112:115], v{X}, {sr4(S_NTS)}, 0 offen' + SC)
    if T1:
        I(f's_mul_i32 s{S_T+4}, s3, {NB*128}')
        I(f'v_mov_b32 v60, s{S_T+4}')
        I(f'buffer_load_dword v61, v60, {sr4(S_OUT)}, 0 offen')
    if not SRCL:
        I(f's_waitcnt vmcnt({4 + TCH + T1 if LATE else 6 - F1 + TCH + T1})')
        for k in range(4):
            I(f'v_lshl_or_b32 v{WD+k}, v{68+k}, 3, v{WD+k}')
    I('s_barrier')
    stamp(5)
    if F1:
        I(f'ds_read_b128 v[112:115], v{X+1}')
    for k in range(4):
        I(f's_mov_b64 exec, {sp(S_MASK+2*k)}')
        I(f'ds_read_b32 v{BN+k}, v{BN+k} offset:{HBASE}')
    if F1:
        I('s_mov_b64 exec, -1')
        I('s_waitcnt lgkmcnt(4)')
        I(f'buffer_store_dwordx4 v[112:115], v{X}, {sr4(S_NTS)}, 0 offen' + SC)
    if SRCL:
        I(f's_waitcnt vmcnt({5 + TCH + T1})')
        for k in range(4):
            I(f'v_lshl_or_b32 v{WD+k}, v{68+k}, 3, v{WD+k}')
    I(f's_waitcnt vmcnt({1 + TCH + T1})')
    I(f'v_readfirstlane_b32 s{S_TAG}, v10')
    for k in range(4):
        I(f's_mov_b64 exec, {sp(S_MASK+2*k)}')
        if k == 3:
            I('s_cbranch_execz L_B2')
        I(f's_waitcnt lgkmcnt({3 - k + 2*k})')
        I(f'v_add_u32 v{RK+k}, v{BN+k}, v{RK+k}')
        I(f'v_add_u32 v{BN+k}, v{RK+k}, v{RK+k}')
        I(f'ds_write_b32 v{RK+k}, v{WD+k} offset:{STGW}')
        I(f'ds_write_b64 v{BN+k}, v[{72+2*k}:{73+2*k}] offset:{STGE}')
    L('L_B2')
    I('s_mov_b64 exec, -1')
    I(f'v_mov_b32 v13, {MISC+8}')
    I(f'ds_read_b32 v13, v13')
    I(f's_mov_b32 s{S_T}, 0x40000')
    L('L_TAGP')
    I(f's_cmp_lg_u32 s{S_TAG}, 0')
    I('s_cbranch_scc1 L_TAGD')
    I(f'v_mov_b32 v12, 0')
    I(f'global_load_dword v10, v12, {sp(S_DBG)} sc1')
    I('s_waitcnt vmcnt(0)')
    I(f'v_readfirstlane_b32 s{S_TAG}, v10')
    I(f's_sub_u32 s{S_T}, s{S_T}, 1')
    I('s_cbranch_scc1 L_END')
    I('s_branch L_TAGP')
    L('L_TAGD')
    I(f'v_add_u32 v{X+2}, 16384, v{X}')
    I(f'v_lshlrev_b32 v12, 3, v{V_LANE}')
    I(f's_mul_i32 s{S_TAG2}, s{S_TAG}, 0x9e3779b1')
    I(f's_and_b32 s{S_TAG2}, s{S_TAG2}, 0x{TAGM:x}')
    I('s_waitcnt lgkmcnt(0)')
    I(f'v_readfirstlane_b32 s{S_T}, v13')
    I('s_barrier')
    I(f's_add_u32 s{S_T}, s{S_T}, 127')
    I(f's_and_b32 s{S_RW+2}, s{S_T}, -128')
    I(f's_lshl_b32 s{S_RE+2}, s{S_RW+2}, 1')
    stamp(6)
    if opt('early', 0):
        I(f'ds_read_b64 v[92:93], v12 offset:{HIST}')
        I(f'ds_read_b64 v[94:95], v12 offset:{HIST+512}')
        I(f'v_lshlrev_b32 v60, 4, v{V_LANE}')
        I('s_waitcnt lgkmcnt(0)')
        for k in range(4):
            I(f'v_or_b32 v{120+2*k}, s{S_TAG2}, v{92+k}')
            I(f'v_mov_b32 v{121+2*k}, s{S_TAG}')
        I(f's_cmp_lg_u32 s{S_W}, 0')
        I('s_cbranch_scc1 L_EARLY')
        I(f'buffer_store_dwordx4 v[120:123], v60, {sr4(S_TAB)}, 0 offen' + SC)
        I(f'buffer_store_dwordx4 v[124:127], v60, {sr4(S_TAB)}, 0 offen offset:1024' + SC)
        L('L_EARLY')
    I(f'ds_read_b128 v[64:67], v{X} offset:{STGW}')
    I(f'ds_read_b128 v[68:71], v{X} offset:{STGE}')
    I(f'ds_read_b128 v[72:75], v{X} offset:{STGE+16384}')
    I(f'ds_read_b64 v[92:93], v12 offset:{HIST}')
    I(f'ds_read_b64 v[94:95], v12 offset:{HIST+512}')
    I('s_waitcnt lgkmcnt(4)')
    I(f'buffer_store_dwordx4 v[64:67], v{X}, {sr4(S_RW)}, 0 offen' + SC)
    I('s_waitcnt lgkmcnt(3)')
    I(f'buffer_store_dwordx4 v[68:71], v{X}, {sr4(S_RE)}, 0 offen' + SC)
    I('s_waitcnt lgkmcnt(2)')
    I(f'buffer_store_dwordx4 v[72:75], v{X+2}, {sr4(S_RE)}, 0 offen' + SC)
    I('s_waitcnt lgkmcnt(0)')
    for k in range(4):
        I(f'v_or_b32 v{120+2*k}, s{S_TAG2}, v{92+k}')
        I(f'v_mov_b32 v{121+2*k}, s{S_TAG}')
    PF1 = opt('pf1', 0)
    if PF1:
        nt_prefetch(12, 49 - PF1, PF1, 61)
    pre = opt('pre', 'xbc').replace('0', '')
    def piece(c):
        if c == 'x':
            zregs()
            zero_range(EXTRA, 16384, X + 2, X)
            fill_desca()
        elif c == 'b':
            phase0b()
        elif c == 'c':
            phase0c()
    for c in pre:
        piece(c)
    stamp(7)
    I(f's_lshl_b32 s{S_T+1}, s3, 3')
    I(f'v_add_u32 v76, s{S_T+1}, v{V_TAB+2}')
    I(f'v_add_u32 v77, {RSTEP*2048}, v76')
    I(f'v_lshlrev_b32 v60, 4, v{V_LANE}')
    for r in range(2):
        I(f's_mov_b64 {sp(S_MASK+2*r)}, -1')
    I(f's_waitcnt vmcnt({1 if PF1 else 0})')
    stamp(8)
    I('s_barrier')
    stamp(9)
    I(f's_cmp_lg_u32 s{S_W}, {99 if opt("early", 0) else 0}')
    I('s_cbranch_scc1 L_POLL0')
    for k in range(KREP - 1, -1, -1):
        I(f's_mov_b32 s{S_T}, 0x{k*0x80000:x}')
        I(f'buffer_store_dwordx4 v[120:123], v60, {sr4(S_TAB)}, s{S_T} offen' + SC)
        I(f'buffer_store_dwordx4 v[124:127], v60, {sr4(S_TAB)}, s{S_T} offen offset:1024' + SC)
    L('L_POLL0')
    PF2 = opt('pf2', 0)
    if PF2:
        nt_prefetch(61, 49 - PF2, PF2, 63)
    EP = opt('ep', 0)
    for r in range(2 if EP else 0):
        I(f'buffer_load_dwordx2 {p(64+2*r)}, v{76+r}, {sr4(S_EA)}, 0 offen' + LSC)
    for c in 'xbc':
        if c not in pre:
            piece(c)
    fill_words()
    zregs()
    zero_range(LE, CNT - LE, X + 2, X)
    ptr_consts()
    I(f's_mov_b32 s{S_T}, 0x40000')
    I(f's_mov_b32 s{S_T+1}, 0x{TAGM:x}')
    if opt('ps', 0):
        I(f's_sleep {opt("ps", 0)}')
    if EP:
        I('s_branch L_POLLC')
    L('L_POLL')
    for r in range(2):
        I(f's_mov_b64 exec, {sp(S_MASK+2*r)}')
        I(f'buffer_load_dwordx2 {p(64+2*r)}, v{76+r}, {sr4(S_EA)}, 0 offen' + LSC)
    L('L_POLLC')
    for r in range(2):
        I(f's_waitcnt vmcnt({1-r})')
        I(f's_mov_b64 exec, {sp(S_MASK+2*r)}')
        I(f'v_xor_b32 v{V_TAB+r}, s{S_TAG2}, v{64+2*r}')
        I(f'v_xor_b32 v{65+2*r}, s{S_TAG}, v{65+2*r}')
        I(f'v_and_or_b32 v{65+2*r}, v{V_TAB+r}, s{S_T+1}, v{65+2*r}')
        I(f'v_cmp_ne_u32 {sp(S_MASK+2*r)}, 0, v{65+2*r}')
    I(f's_or_b64 {sp(S_T+2)}, {sp(S_MASK)}, {sp(S_MASK+2)}')
    I('s_cbranch_scc0 L_POLLED')
    I(f's_sub_u32 s{S_T}, s{S_T}, 1')
    I('s_cbranch_scc1 L_END')
    if opt('sleep', 0):
        I(f's_sleep {opt("sleep", 0)}')
    I('s_branch L_POLL')
    L('L_POLLED')
    I('s_mov_b64 exec, -1')
    stamp(10)
    def RB(s_): return 64 + 8 * (s_ >> 1)
    def MK(s_): return sp(S_MASK + 2 * s_)
    AD = X
    L('L_PASS')
    I(f'v_add_u32 v{X+10}, s{S_JB}, v{V_CB4}')
    I(f'v_add_u32 v{X+8}, s{S_JB}, v{V_J4}')
    SDW = 'src0_sel:DWORD src1_sel:WORD_1'
    for r in range(2):
        I(f'v_add_u32_sdwa v{X+r}, v{V_TAB+r}, v{X+10} dst_sel:DWORD dst_unused:UNUSED_PAD src0_sel:WORD_0 src1_sel:DWORD')
        I(f'v_cmp_lt_u32_sdwa {MK(2*r)}, v{X+8}, v{V_TAB+r} {SDW}')
        if r:
            I(f'v_add_u32 v{X+r}, {RSTEP*CAP*4}, v{X+r}')
        I(f'v_add_u32 v{X+2+r}, v{X+r}, v{X+r}')
        I(f's_mov_b64 exec, {MK(2*r)}')
        I(f'buffer_load_dwordx2 {p(RB(2*r)+4)}, v{X+r}, {sr4(S_DST)}, 0 offen' + LSC)
        I(f'buffer_load_dwordx4 {vr(RB(2*r),4)}, v{X+2+r}, {sr4(S_SRC)}, 0 offen' + LSC)
        I('s_mov_b64 exec, -1')
    I(f'v_add_u32 v{X+9}, s{S_WID}, v{X+8}')
    I(f'v_add_u32 v{X+10}, 4, v{X+8}')
    I(f's_cmp_eq_u32 s{S_WID}, 128')
    I(f's_cselect_b32 s{S_T}, 64, 0x10000')
    I(f'v_add_u32 v{X+8}, s{S_T}, v{X+8}')
    for r in range(2):
        I(f'v_cmp_lt_u32_sdwa {MK(4+2*r)}, v{X+8}, v{V_TAB+r} {SDW}')
        I(f'v_cmp_lt_u32_sdwa {MK(2*r+1)}, v{X+10}, v{V_TAB+r} {SDW}')
    I(f'v_add_u32 v{X+8}, 4, v{X+8}')
    for r in range(2):
        I(f's_mov_b64 exec, {MK(4+2*r)}')
        I(f'buffer_load_dwordx2 {p(RB(4+2*r)+4)}, v{X+r}, {sr4(S_DST)}, 0 offen offset:64' + LSC)
        I(f'buffer_load_dwordx4 {vr(RB(4+2*r),4)}, v{X+2+r}, {sr4(S_SRC)}, 0 offen offset:128' + LSC)
    I('s_mov_b64 exec, -1')
    for r in range(2):
        I(f'v_cmp_lt_u32_sdwa {MK(5+2*r)}, v{X+8}, v{V_TAB+r} {SDW}')
    I(f'v_cmp_lt_u32_sdwa vcc, v{X+9}, v{V_TAB} {SDW}')
    I(f'v_cmp_lt_u32_sdwa {sp(S_T)}, v{X+9}, v{V_TAB+1} {SDW}')
    I(f'v_mov_b32 v{X+8}, 4')
    I(f's_or_b64 vcc, vcc, {sp(S_T)}')
    I(f's_cbranch_scc0 L_NOMORE')
    I(f'v_mov_b32 v{X+9}, {MISC}')
    I(f'ds_write_b32 v{X+9}, v{X+8}')
    L('L_NOMORE')
    stamp(11)
    for s_ in range(8):
        if s_ >= 4:
            I(f's_mov_b64 exec, {MK(s_)}')
            I(f's_cbranch_execz L_C{s_}')
        if s_ % 2 == 0:
            I(f's_waitcnt vmcnt({7 - s_})')
        if s_ < 4:
            I(f's_mov_b64 exec, {MK(s_)}')
        I(f'v_lshrrev_b32 v{AD+s_}, 24, v{RB(s_)+4+(s_&1)}')
        if opt('safe', 0):
            I(f'v_and_b32 v{AD+s_}, 0xfc, v{AD+s_}')
        I(f'ds_add_rtn_u32 v{RB(s_)+6+(s_&1)}, v{AD+s_}, v{X+8} offset:{CNT}')
        if s_ >= 4:
            L(f'L_C{s_}')
    I('s_mov_b64 exec, -1')
    I(f'v_lshlrev_b32 v{X+8}, 2, v{V_LANE}')
    I(f'v_mov_b32 v{X+9}, {MISC}')
    I(f's_mov_b32 s{S_T+2}, 0x1fff8')
    I('s_waitcnt lgkmcnt(0)')
    I('s_barrier')
    stamp(12)
    if NPFM in (2, 3, 4):
        nt_prefetch(60, dst=62)
        I(f's_mov_b32 s{S_T+2}, 0x1fff8')
    NG, GS, MI = X + 10, X + 11, X + 12
    I(f'ds_read_b32 v{NG}, v{X+8} offset:{CNT}')
    I(f'ds_read_b32 v{X+9}, v{X+9}')
    I('s_waitcnt lgkmcnt(1)')
    I(f'v_add_u32 v{NG}, 28, v{NG}')
    I(f'v_and_b32 v{NG}, 0xffffffe0, v{NG}')
    I(f'v_mov_b32 v{GS}, v{NG}')
    wave_scan(GS)
    I(f'v_readlane_b32 s{S_T}, v{GS}, 63')
    I(f'v_sub_u32 v{GS}, v{GS}, v{NG}')
    if PROF == 5:
        stamp(19)
    I(f'ds_write_b32 v{X+8}, v{GS} offset:{BASET}')
    for s_ in range(8):
        I(f's_mov_b64 exec, {MK(s_)}')
        I(f'ds_read_b32 v{AD+s_}, v{AD+s_} offset:{BASET}')
    I('s_mov_b64 exec, -1')
    I(f'v_readfirstlane_b32 s{S_MORE}, v{X+9}')
    out.insert(len(out) - 1, '    s_waitcnt lgkmcnt(9)')
    I(f's_lshr_b32 s{S_T}, s{S_T}, 5')
    I(f's_cmp_eq_u32 s{S_WID}, 128')
    I(f's_cselect_b32 s{S_T+1}, {MAXG}, -1')
    I(f's_cmp_gt_u32 s{S_T}, s{S_T+1}')
    I('s_cbranch_scc1 L_OVERFLOW')
    def place(tag):
        I(f's_waitcnt vmcnt({NPF}) lgkmcnt(0)')
        for s_ in range(8):
            wd, rk, ee = RB(s_) + 4 + (s_ & 1), RB(s_) + 6 + (s_ & 1), RB(s_) + 2 * (s_ & 1)
            I(f's_mov_b64 exec, {MK(s_)}')
            if s_ >= 4:
                I(f's_cbranch_execz L_P{tag}{s_}')
            I(f'v_add_u32 v{AD+s_}, v{AD+s_}, v{rk}')
            I(f'v_and_b32 v{wd}, s{S_T+2}, v{wd}')
            I(f'v_add_u32 v{rk}, v{AD+s_}, v{AD+s_}')
            I(f'ds_write_b32 v{AD+s_}, v{wd} offset:{LS}')
            I(f'ds_write_b64 v{rk}, {p(ee)} offset:{LE}')
            if s_ >= 4:
                L(f'L_P{tag}{s_}')
        I('s_mov_b64 exec, -1')
    if PROF == 5:
        stamp(20)
    SWAP = opt('swap', 0)
    if SWAP:
        I(f's_bitcmp1_b32 s{S_W}, {SWAP}')
        I('s_cbranch_scc0 L_DFIRST')
        place('a')
        L('L_DFIRST')
    SB_, SR_, SG0 = S_T + 4, S_T + 5, S_T + 6
    I(f's_add_u32 s{S_T}, s{S_T}, 3')
    I(f's_lshr_b32 s{S_T}, s{S_T}, 2')
    I(f's_lshr_b32 s{SB_}, s{S_T}, 4')
    I(f's_and_b32 s{SR_}, s{S_T}, 15')
    I(f's_add_u32 s{S_T+1}, s{SB_}, 1')
    I(f'v_cvt_f32_u32 v{MI}, s{S_T+1}')
    I(f'v_cvt_f32_u32 v{MI+1}, s{SB_}')
    I(f'v_rcp_f32 v{MI}, v{MI}')
    I(f'v_rcp_f32 v{MI+1}, v{MI+1}')
    I(f's_mul_i32 s{SG0}, s{SR_}, s{S_T+1}')
    I(f's_lshl_b32 s{SG0}, s{SG0}, 2')
    I(f'v_lshrrev_b32 v{GS}, 5, v{GS}')
    I(f'v_mul_f32 v{MI}, 0x47800000, v{MI}')
    I(f'v_mul_f32 v{MI+1}, 0x47800000, v{MI+1}')
    I(f'v_lshrrev_b32 v{NG}, 5, v{NG}')
    I(f'v_cvt_u32_f32 v{MI}, v{MI}')
    I(f'v_cvt_u32_f32 v{MI+1}, v{MI+1}')
    I(f's_cmp_lt_u32 s{S_W}, s{SR_}')
    I(f's_cselect_b32 s{S_L}, s{S_T+1}, s{SB_}')
    I(f'v_add_u32 v{MI}, 2, v{MI}')
    I(f'v_add_u32 v{MI+1}, 2, v{MI+1}')
    I(f's_min_u32 s{S_T}, s{S_W}, s{SR_}')
    I(f's_mul_i32 s{S_T+3}, s{S_W}, s{SB_}')
    I(f's_add_u32 s{S_T+3}, s{S_T+3}, s{S_T}')
    I(f's_sub_u32 s{S_T+1}, 0, s{S_T+1}')
    I(f's_sub_u32 s{SB_}, 0, s{SB_}')
    I(f's_lshl_b32 s{SR_}, s{SR_}, 2')
    D0, D1, D2, D3, NR = 96, 97, 98, 99, 100
    I(f'v_lshlrev_b32 v{NR}, 8, v{V_LANE}')
    I(f'v_add_u32 v{NR+1}, {ACCN}, v{NR}')
    I(f's_mov_b32 s{S_T}, s{S_W}')
    L('L_DLOOP')
    I(f'v_cmp_lt_u32 vcc, s{S_T}, v{NG}')
    I('s_and_b64 exec, exec, vcc')
    I('s_cbranch_execz L_DEND')
    I(f'v_add_u32 v{D0}, s{S_T}, v{GS}')
    I(f'v_subrev_u32 v{D1}, s{SG0}, v{D0}')
    I(f'v_cmp_gt_u32 vcc, s{SG0}, v{D0}')
    I(f'v_mul_u32_u24 v{D2}, v{D0}, v{MI}')
    I(f'v_mul_u32_u24 v{D3}, v{D1}, v{MI+1}')
    I(f'v_lshrrev_b32 v{D2}, 16, v{D2}')
    I(f'v_lshrrev_b32 v{D3}, 16, v{D3}')
    I(f'v_mad_i32_i24 v{D0}, v{D2}, s{S_T+1}, v{D0}')
    I(f'v_mad_i32_i24 v{D1}, v{D3}, s{SB_}, v{D1}')
    I(f'v_add_u32 v{D3}, s{SR_}, v{D3}')
    I(f'v_cndmask_b32 v{D0}, v{D1}, v{D0}, vcc')
    I(f'v_cndmask_b32 v{D2}, v{D3}, v{D2}, vcc')
    I(f'v_cmp_le_u32 vcc, s{S_T}, v{D0}')
    I(f'v_lshl_add_u32 v{D0}, v{D0}, 6, v{D2}')
    I(f'v_lshlrev_b32 v{D1}, 8, v{D2}')
    I(f'v_lshlrev_b32 v{D0}, 2, v{D0}')
    I(f'v_add_u32 v{D1}, {EXTRA}, v{D1}')
    I(f'v_add_u32 v{D3}, {DESCA}, v{D0}')
    I(f'v_cndmask_b32 v{D1}, v{D1}, v{NR+1}, vcc')
    I(f'ds_write_b32 v{D0}, v{NR} offset:{DESCP}')
    I(f'ds_write_b32 v{D3}, v{D1}')
    I(f's_add_u32 s{S_T+7}, s{S_T}, 1')
    I(f'v_cmp_eq_u32 vcc, s{S_T+7}, v{NG}')
    I(f's_and_saveexec_b64 {sp(S_EX)}, vcc')
    I(f'ds_write_b32 v{X+8}, v{D2} offset:{NINFO+256}')
    I(f's_mov_b64 exec, {sp(S_EX)}')
    I(f's_cmp_lg_u32 s{S_T}, 0')
    I('s_cbranch_scc1 L_DNF')
    I(f'ds_write_b32 v{X+8}, v{D2} offset:{NINFO}')
    L('L_DNF')
    I(f's_add_u32 s{S_T}, s{S_T}, 16')
    I('s_branch L_DLOOP')
    L('L_DEND')
    I('s_mov_b64 exec, -1')
    I(f's_lshl_b32 s{S_T}, s{S_T+3}, 7')
    I(f's_lshl_b32 s{S_T+1}, s{S_L}, 5')
    I(f'v_mov_b32 v{D0}, s{S_T}')
    I(f'v_mad_u32_u24 v{V_PS0}, v{V_PS1}, s{S_T+1}, v{D0}')
    I(f'v_add_u32 v{D0}, v{D0}, v{D0}')
    I(f'v_add_u32 v{V_PS1}, s{S_T+1}, v{V_PS0}')
    I(f'v_add_u32 v{V_PE}, v{V_PE}, v{D0}')
    I(f's_lshl_b32 s{S_T+1}, s{S_L}, 6')
    I(f'v_mad_u32_u24 v{V_PE}, v{V_VAP}, s{S_T+1}, v{V_PE}')
    if opt('safe', 0):
        I(f's_min_u32 s{S_L}, s{S_L}, 9')
        I(f's_mov_b32 s{S_MORE}, 0')
    I(f's_mov_b32 s{S_CNT}, s{S_L}')
    if SWAP:
        I(f's_bitcmp1_b32 s{S_W}, {SWAP}')
        I('s_cbranch_scc1 L_PDONE')
    if PROF == 5:
        stamp(21)
    place('b')
    L('L_PDONE')
    stamp(13)
    I('s_waitcnt lgkmcnt(0)')
    I('s_barrier')
    stamp(14)
    I(f's_cmp_eq_u32 s{S_L}, 0')
    I('s_cbranch_scc1 L_FOLD')
    lg = Lg()
    FP = opt('fp', 0)
    if FP:
        for lvl in (3, 2, 1):
            I(f's_cmp_lt_u32 s{S_W}, {4 * (4 - lvl)}')
            I(f's_cbranch_scc0 L_FP{lvl}')
            I(f's_setprio {lvl}')
            I('s_branch L_FPD')
            L(f'L_FP{lvl}')
        L('L_FPD')
    s_reads(lg, 0)
    lg.op('dP', f'ds_read_b64 {p(V_VAP)}, v{V_PD}')
    lg.op('dA', f'ds_read_b64 {p(V_VAA[0])}, v{V_PD} offset:{DESCA-DESCP}')
    lg.op('e', f'ds_read_b64 {p(A5)}, v{V_PE}')
    lg.need('S0', 'S1', 'S2', 'S3')
    s_safe()
    STG_ = [int(x) for x in opt('stag', '0,0,0').split(',')]
    for gi, d in enumerate(STG_):
        if d:
            I(f's_cmp_ge_u32 s{S_W}, {4 * (gi + 1)}')
            I(f's_cbranch_scc0 L_ST{gi}')
            I(f's_sleep {d}')
            L(f'L_ST{gi}')
    for n in range(2):
        for i in range(16):
            I(gload(n, i))
        if n == 0 and FP == 2:
            I('s_setprio 0')
    s_reads(lg, 1)
    I(f'v_mov_b32 v{V_C8P}, v{V_CH8}')
    I(f'v_mov_b32 v{V_C8P+1}, v{V_CH8}')
    I(f'v_mov_b32 v{V_CPP}, v{V_CHP}')
    I(f'v_mov_b32 v{V_CPP+1}, v{V_CHP}')
    if M8:
        I(f'v_mov_b32 v{V_SCP}, 0x{f2u(2.0**KH):x}')
        I(f'v_mov_b32 v{V_SCP+1}, 0x{f2u(2.0**KH):x}')
    I(f's_mov_b32 s{S_BP0}, 64')
    I(f's_mov_b32 s{S_BP0+1}, 64')
    I(f's_mov_b32 s{S_BP1}, 128')
    I(f's_mov_b32 s{S_BP1+1}, 512')
    lg.need('dP', 'dA')
    va_add(V_VAP, V_VAA[0])
    lg.op('P0a', f'ds_read_b32 v{B5[0]+2}, v{V_VAP}')
    lg.op('P0b', f'ds_read_b32 v{B5[0]+3}, v{V_VAP+1}')
    lg.op('P1a', f'ds_read_b32 v{B5[1]+2}, v{V_VAP} offset:4')
    lg.op('P1b', f'ds_read_b32 v{B5[1]+3}, v{V_VAP+1} offset:4')
    I(f's_cmp_eq_u32 s{S_CNT}, 1')
    I(f's_cselect_b64 {sp(S_LDX)}, 0, {LDXV}')
    I('s_waitcnt lgkmcnt(0)')
    lg.q = []
    if opt('prio', 3):
        I('s_setprio 3')
    stamp(15)
    rstamp(28)
    half(lg, 0, 0, 0, False)
    if PROF == 4:
        stamp(19)
        lg.q = []
    state0 = list(lg.q)
    def step(par, uo):
        prio(f'm{par}', 1)
        half(lg, 1, par, uo)
        if PROF == 4:
            I('s_memtime s[98:99]')
            I(f's_sub_u32 s92, s{S_L}, s{S_CNT}')
            I(f's_add_u32 m0, s92, 20')
            I('s_waitcnt lgkmcnt(0)')
            I(f'v_writelane_b32 v{V_PROF}, s98, m0')
        I(f's_sub_u32 s{S_CNT}, s{S_CNT}, 1')
        I(f's_cmp_eq_u32 s{S_CNT}, 0')
        I(f's_cbranch_scc1 L_FIN{par}')
        I(f's_cmp_eq_u32 s{S_CNT}, 1')
        I(f's_cselect_b64 {sp(S_LDX)}, 0, {LDXV}')
        prio(f'{par}')
        half(lg, 0, par ^ 1, uo + 1)
    def loop_body():
        step(0, 0)
        step(1, 1)
        I(f'v_lshl_add_u64 {p(V_PS0)}, {p(V_PS0)}, 0, {sp(S_BP0)}')
        I(f'v_lshl_add_u64 {p(V_PE)}, {p(V_PE)}, 0, {sp(S_BP1)}')
        I('s_branch L_LOOP')
    mark = len(out)
    loop_body()
    del out[mark:]
    qb = list(lg.q)
    n = min(len(qb), len(state0))
    assert PROF == 4 or qb[len(qb)-n:] == state0[len(state0)-n:], (state0, qb)
    lg.q = list(qb if len(qb) >= len(state0) else state0)
    e('.p2align 3')
    L('L_LOOP')
    mark = len(out)
    loop_body()
    drop = opt('drop', '')
    if drop:
        body = out[mark:]
        keep = []
        for l in body:
            t = l.strip()
            if 'v' in drop and (t.startswith('buffer_load') or t.startswith('s_mov_b64 exec') or 'vmcnt' in t):
                continue
            if 'l' in drop and (t.startswith('ds_') or 'lgkmcnt' in t):
                continue
            if 'm' in drop and t.startswith('v_mfma'):
                continue
            if 'n' in drop and t.startswith('s_nop'):
                continue
            keep.append(l)
        out[mark:] = keep
    assert lg.q == qb, (lg.q, qb)
    print('loop entry queue', state0, 'back edge queue', qb, file=sys.stderr)
    for pr in range(2):
        L(f'L_FIN{pr}')
        if M8:
            I(f'v_pk_mul_f32 {p(V_T01N)}, {p(V_T01N)}, {p(V_T23D)}')
            I(f'v_pk_mul_f32 {p(V_T23D)}, {p(V_T01D)}, {p(V_T23D)}')
            I(f'v_pk_fma_f32 {p(V_T01N)}, {p(V_T23N)}, {p(V_T01D)}, {p(V_T01N)}')
            I(f'v_rcp_f32 v{V_T23D}, v{V_T23D}')
            I(f'v_rcp_f32 v{V_T23D+1}, v{V_T23D+1}')
            I('s_waitcnt lgkmcnt(0)')
            I(f'v_pk_fma_f32 {p(V_MB)}, {p(V_T01N)}, {p(V_T23D)}, {p(V_MB)}')
        else:
            for r_ in (V_T01D, V_T01D + 1, V_T23D, V_T23D + 1):
                I(f'v_rcp_f32 v{r_}, v{r_}')
            I('s_waitcnt lgkmcnt(0)')
            I(f'v_pk_fma_f32 {p(V_MB)}, {p(V_T01N)}, {p(V_T01D)}, {p(V_MB)}')
            I(f'v_pk_fma_f32 {p(V_MB)}, {p(V_T23N)}, {p(V_T23D)}, {p(V_MB)}')
        acc_write(Lg(), V_VAA[pr])
        if pr == 0:
            I('s_branch L_FOLD')
    L('L_FOLD')
    stamp(16)
    FL = opt('fl', 0)
    I(f'v_lshrrev_b32 v{X}, 4, v{V_TID}')
    I(f'v_and_b32 v{X+1}, 15, v{V_TID}')
    if FL:
        I(f'v_lshlrev_b32 v{X+6}, 3, v{X+1}')
        I(f'v_lshrrev_b32 v{X+2}, 3, v{X+1}')
        I(f'v_and_b32 v{X+1}, 7, v{X+1}')
        I(f'v_lshlrev_b32 v{X+1}, 5, v{X+1}')
        I(f'v_lshl_add_u32 v{X+1}, v{X+2}, 2, v{X+1}')
    else:
        I(f'v_lshlrev_b32 v{X+6}, 2, v{X+1}')
        I(f'v_lshlrev_b32 v{X+1}, 4, v{X+1}')
    I(f'v_lshl_add_u32 v{X+2}, v{X}, 8, v{X+1}')
    I(f'v_add_u32 v{X+2}, {ACCN}, v{X+2}')
    I(f'v_add_u32 v{X+1}, {EXTRA}, v{X+1}')
    def rd4(dst, ad):
        if FL:
            I(f'ds_read2_b32 v[{dst}:{dst+1}], v{ad} offset0:0 offset1:2')
            I(f'ds_read2_b32 v[{dst+2}:{dst+3}], v{ad} offset0:4 offset1:6')
        else:
            I(f'ds_read_b128 v[{dst}:{dst+3}], v{ad}')
    I(f'v_lshlrev_b32 v{X+3}, 2, v{X}')
    I(f's_mul_i32 s{S_T+4}, s3, {NB*128}')
    I(f'v_lshl_add_u32 v{X+6}, v{X}, 7, v{X+6}')
    I(f'v_add_u32 v{X+6}, s{S_T+4}, v{X+6}')
    I(f'v_mov_b32 v{X+7}, 0')
    I(f'ds_read_b32 v{X+4}, v{X+3} offset:{NINFO}')
    I(f'ds_read_b32 v{X+5}, v{X+3} offset:{NINFO+256}')
    I(f's_mov_b32 s{S_T+2}, 0x{f2u(2.0**-(SV+KH)):x}')
    I(f's_mov_b32 s{S_T+3}, 0x{f2u(-LOG2E * 2.0**-(SV+KH)):x}')
    I(f'v_cmp_gt_u32 vcc, {NB*16}, v{V_TID}')
    I('s_waitcnt vmcnt(0) lgkmcnt(0)')
    I('s_barrier')
    stamp(17)
    rstamp(29)
    if PROF:
        I(f'v_writelane_b32 v{V_PROF}, s{S_L}, 27')
    I(f's_and_saveexec_b64 {sp(S_EX)}, vcc')
    I('s_cbranch_execz L_FDONE')
    rd4(64, X + 2)
    I(f's_mov_b64 {sp(S_T)}, exec')
    L('L_FLOOP')
    I(f'v_cmp_lt_u32 vcc, v{X+4}, v{X+5}')
    I('s_and_b64 exec, exec, vcc')
    I('s_cbranch_execz L_FLEND')
    I(f'v_add_u32 v{X+4}, 1, v{X+4}')
    I(f'v_lshl_add_u32 v{X+7}, v{X+4}, 8, v{X+1}')
    rd4(72, X + 7)
    I('s_waitcnt lgkmcnt(0)')
    for k in range(4):
        I(f'v_add_f32 v{64+k}, v{64+k}, v{72+k}')
    I('s_branch L_FLOOP')
    L('L_FLEND')
    I(f's_mov_b64 exec, {sp(S_T)}')
    I('s_waitcnt lgkmcnt(0)')
    I(f's_cmp_lg_u32 s{S_MORE}, 0')
    I('s_cbranch_scc1 L_WB')
    for k in range(4):
        I(f'v_mul_f32 v{72+k}, s{S_T+3}, v{64+k}')
    for k in range(4):
        I(f'v_exp_f32 v{72+k}, v{72+k}')
    for k in range(4):
        I(f'v_mul_f32 v{64+k}, s{S_T+2}, v{64+k}')
    for k in range(4):
        I(f'v_add_f32 v{72+k}, 1.0, v{72+k}')
    for k in range(4):
        I(f'v_rcp_f32 v{72+k}, v{72+k}')
    I('s_nop 0')
    for k in range(4):
        I(f'v_mul_f32 v{64+k}, v{64+k}, v{72+k}')
    if FL:
        I('v_cvt_pk_bf16_f32 v80, v64, v65')
        I('v_cvt_pk_bf16_f32 v81, v66, v67')
        I(f'buffer_store_dwordx2 v[80:81], v{X+6}, {sr4(S_OUT)}, 0 offen' + OSC)
    else:
        I('v_cvt_pk_bf16_f32 v80, v64, v66')
        I('v_cvt_pk_bf16_f32 v81, v65, v67')
        I(f'buffer_store_dword v80, v{X+6}, {sr4(S_OUT)}, 0 offen' + OSC)
        I(f'buffer_store_dword v81, v{X+6}, {sr4(S_OUT)}, 0 offen offset:64' + OSC)
    stamp(18)
    prof_store()
    diag_end()
    I('s_endpgm')
    L('L_WB')
    if FL:
        I(f'ds_write2_b32 v{X+2}, v64, v65 offset0:0 offset1:2')
        I(f'ds_write2_b32 v{X+2}, v66, v67 offset0:4 offset1:6')
    else:
        I(f'ds_write_b128 v{X+2}, v[64:67]')
    L('L_FDONE')
    I('s_mov_b64 exec, -1')
    I(f's_cmp_eq_u32 s{S_MORE}, 0')
    I('s_cbranch_scc1 L_QUIT')
    I(f's_add_u32 s{S_JB}, s{S_JB}, s{S_WID}')
    I('s_branch L_REFILL')
    L('L_OVERFLOW')
    I(f's_mov_b32 s{S_WID}, 64')
    L('L_REFILL')
    I('s_waitcnt vmcnt(0) lgkmcnt(0)')
    I('s_barrier')
    fill_zero()
    fill_words()
    ptr_consts()
    I('s_waitcnt lgkmcnt(0)')
    I('s_barrier')
    I('s_branch L_PASS')
    L('L_QUIT')
    prof_store()
    L('L_END')
    I('s_endpgm')

hdr = open('standalone__edge_featured_mpnn_egc__graph.s.ref').read().split('\n')
for line in hdr:
    if line.startswith('; Override'):
        break
    e(line)
e(f'; @launch grid=({NWG},1,1) block=(1024,1,1) lds={LDS_BYTES}')
e('.amdgcn_target "amdgcn-amd-amdhsa--gfx950"')
e('.text')
gen()
e('.section .rodata,"a"')
e('.p2align 6')
e(f'.amdhsa_kernel {KNAME}')
e('  .amdhsa_next_free_vgpr 128')
e('  .amdhsa_next_free_sgpr 102')
e('  .amdhsa_accum_offset 128')
e('  .amdhsa_group_segment_fixed_size 0')
e('  .amdhsa_kernarg_size 80')
e('  .amdhsa_user_sgpr_count 2')
e('  .amdhsa_user_sgpr_kernarg_segment_ptr 1')
e('  .amdhsa_system_sgpr_workgroup_id_x 1')
e('  .amdhsa_float_denorm_mode_32 3')
e('.end_amdhsa_kernel')
open(sys.argv[1], 'w').write('\n'.join(x for x in out if x is not None) + '\n')
```

```python
import sys, struct

OPT = dict(a.split('=') for a in sys.argv[2:] if '=' in a)
def opt(name, default):
    return type(default)(OPT.get(name, default))

KNAME = 'standalone__edge_featured_mpnn_egc__graph_kernel'
N_NODES = 12500
E_EDGES = 800000
NB = 49
NWG = 256
CH = 3136
WS_RW = 0
WS_RE = 0x00400000
CAP = CH + 256
WS_TAB = 0x00B00000
WS_NT = 0x00C00000
WS_PROF = 0x01000000
M8 = opt('m8', 0)
if M8:
    KH, KEXP, SV = 13, 26, 0
else:
    KH, KEXP, SV = 31, 31, 30
LOG2E = 1.4426950408889634
SC = opt('sc', 'sc1')
SC = (' ' + SC.replace('+', ' ')) if SC != 'none' else ''
LSC = opt('lsc', 'sc1')
LSC = (' ' + LSC.replace('+', ' ')) if LSC != 'none' else ''
GSC = opt('gsc', 'sc1')
GSC = (' ' + GSC.replace('+', ' ')) if GSC != 'none' else ''
ELD = opt('eld', 'none')
ELD = (' ' + ELD.replace('+', ' ')) if ELD != 'none' else ''

def f2u(x):
    return struct.unpack('<I', struct.pack('<f', x))[0]

out = []
def e(s=''):
    out.append(s)
def I(s):
    out.append('    ' + s)
def L(name):
    out.append(name + ':')
def vr(a, n):
    return f'v[{a}:{a+n-1}]' if n > 1 else f'v{a}'
def sr4(a):
    return f's[{a}:{a+3}]'
def sp(a):
    return f's[{a}:{a+1}]'
def p(r):
    return f'v[{r}:{r+1}]'

def srd(d, lo, hi, nrec):
    I(f's_mov_b32 s{d}, s{lo}')
    I(f's_mov_b32 s{d+1}, s{hi}')
    I(f's_mov_b32 s{d+2}, {nrec}')
    I(f's_mov_b32 s{d+3}, 0x00020000')

def srd_off(d, lo, hi, off, nrec):
    I(f's_add_u32 s{d}, s{lo}, {off}')
    I(f's_addc_u32 s{d+1}, s{hi}, 0')
    I(f's_mov_b32 s{d+2}, {nrec}')
    I(f's_mov_b32 s{d+3}, 0x00020000')

def wave_scan(v):
    for sh in (1, 2, 4, 8):
        I('s_nop 1')
        I(f'v_add_u32_dpp v{v}, v{v}, v{v} row_shr:{sh} row_mask:0xf bank_mask:0xf')
    I('s_nop 1')
    I(f'v_add_u32_dpp v{v}, v{v}, v{v} row_bcast:15 row_mask:0xa bank_mask:0xf')
    I('s_nop 1')
    I(f'v_add_u32_dpp v{v}, v{v}, v{v} row_bcast:31 row_mask:0xc bank_mask:0xf')
    I('s_nop 1')

LS = 0
ZR = 18688
LE = 18688
CNT = 56064
MISC = 56320
BASET = 56576
NINFO = 56832
HIST = 57344
HBASE = 58368
DESCP = 59392
CNT2 = 61952
BASE2 = 64000
EXTRA = 67840
DESCA = 84224
PT = 86784
ACCN = 99328
WRAW = 111872
WG_, WV_, WU_ = WRAW, WRAW + 17408, WRAW + 25600
XOWN = WRAW + 33792
LDS_BYTES = XOWN + 8192
STGW = 0
STGE = CAP * 4
NTI = EXTRA
MAXG = 576
assert STGE + CAP * 8 <= CNT

V_TID, V_LANE = 0, 1
V_MA, V_MB = 2, 4
V_VAA = (6, 8)
V_VAP = 10
V_PS0, V_PS1, V_PE, V_PD, V_CH8, V_CHP = 12, 13, 14, 15, 16, 17
V_PROF = 18
V_TAB = 20
V_J4, V_CB4 = 24, 25
V_X = 26
V_T01D, V_T01N, V_T23D, V_T23N = 40, 42, 44, 46
B5 = (48, 52)
A5 = 56
V_TT = (60, 62)
G = (64, 80)
Z = 96
S = 112

S_XS, S_WS, S_DST, S_SRC, S_EA, S_RW, S_RE, S_TAB, S_NTS, S_NTG, S_OUT = 12, 16, 20, 24, 28, 32, 36, 40, 44, 48, 52
S_MASK = 56
S_W, S_L, S_CNT, S_JB, S_WID, S_MORE = 72, 73, 74, 75, 76, 77
S_C = 78
S_EX = 80
S_LDX = 82
S_T = 84
S_WSP = 94
S_DBG = 96
S_TAG, S_TAG2, S_TAG3 = 100, 101, 11
TAGM = 0xC003C003
TAGL = MISC + 64

NT2 = 2 if opt('touch', 0) else 0
LDXV = 0 if opt('noload', 0) else -1
NPFM = opt('npf', 4)
NPF = {0: 0, 1: 7, 2: 7, 3: 2, 4: 1, 5: 1}[NPFM]
NPF1 = NPF if NPFM in (1, 5) else 0
WSB = opt('wsb', 0) << 20
TCH = 4 if opt('touch', 0) else 0
T1 = opt('t1', 0)
OSC = opt('osc', 'nt')
OSC = (' ' + OSC.replace('+', ' ')) if OSC != 'none' else ''
KREP = opt('krep', 1)
assert KREP == 1
CM = opt('cm', 1)
RSTEP = 64 if CM else 8
SRCL = opt('srcl', 1)
TP = opt('tp', 1)
BANDS = opt('bands', 1)
ROT = opt('rot', 1)
TFLAG = opt('tflag', 1)
EK = opt('ek', 8)
EN = opt('en', 1)
PROF = opt('prof', 0)
DIAG = opt('diag', -1)
def diag_end():
    if DIAG < 0:
        return
    I('s_memrealtime s[98:99]')
    I('s_waitcnt lgkmcnt(0)')
    I('v_readlane_b32 s92, v18, 1')
    I('v_readlane_b32 s93, v18, 0')
    I('s_nop 3')
    I('s_sub_u32 s92, s92, s93')
    I('s_lshr_b32 s92, s92, 3' if opt('dcyc', 0) else 's_lshl_b32 s92, s92, 2')
    I('s_mov_b32 s93, s98')
    lbl = f'L_DG{len(out)}'
    L(lbl)
    I('s_memrealtime s[98:99]')
    I('s_waitcnt lgkmcnt(0)')
    I('s_sub_u32 s98, s98, s93')
    I('s_cmp_lt_u32 s98, s92')
    I(f's_cbranch_scc1 {lbl}')
def stamp(i):
    if DIAG >= 0 and i in (opt('dfrom', 0), DIAG):
        I('s_memtime s[98:99]' if opt('dcyc', 0) else 's_memrealtime s[98:99]')
        I('s_waitcnt lgkmcnt(0)')
        if i == opt('dfrom', 0):
            I('v_writelane_b32 v18, s98, 0')
        if i == DIAG:
            I('v_writelane_b32 v18, s98, 1')
    if not PROF:
        return
    I('s_memtime s[98:99]')
    I('s_waitcnt lgkmcnt(0)')
    I(f'v_writelane_b32 v{V_PROF}, s98, {i}')
def rstamp(i):
    if not PROF:
        return
    I('s_memrealtime s[98:99]')
    I('s_waitcnt lgkmcnt(0)')
    I(f'v_writelane_b32 v{V_PROF}, s98, {i}')
def prof_store():
    if not PROF:
        return
    rstamp(31)
    if PROF == 3:
        I(f's_lshl_b32 s98, s2, 4')
        I(f's_add_u32 s98, s98, s{S_W}')
        I(f's_cmp_lg_u32 s98, {opt("pwave", 80)}')
        I('s_cbranch_scc1 L_END')
        I('s_mov_b64 exec, -1')
        I(f'v_readlane_b32 s98, v{V_PROF}, 0')
        I(f'v_readlane_b32 s99, v{V_PROF}, 30')
        I(f'v_readlane_b32 s{S_T}, v{V_PROF}, 31')
        I('s_nop 3')
        I(f's_sub_u32 s{S_T}, s{S_T}, s99')
        I(f's_add_u32 s{S_T}, s{S_T}, s98')
        I(f'v_writelane_b32 v{V_PROF}, s{S_T}, 9')
        I(f'v_subrev_u32 v{V_PROF}, s98, v{V_PROF}')
        I(f'v_mbcnt_lo_u32_b32 v{V_PROF+1}, -1, 0')
        I(f'v_lshlrev_b32 v{V_PROF+1}, 2, v{V_PROF+1}')
        I(f'v_add_u32 v{V_PROF+1}, -8, v{V_PROF+1}')
        I('s_mov_b64 exec, 0x3fff8')
        I(f'global_store_dword v{V_PROF+1}, v{V_PROF}, {sp(S_DBG)}')
        return
    I('s_mov_b64 exec, 0xffffffff')
    I(f's_add_u32 s{S_T}, s{S_WSP}, 0x{WS_PROF:x}')
    I(f's_addc_u32 s{S_T+1}, s{S_WSP+1}, 0')
    I(f'v_mbcnt_lo_u32_b32 v{V_PROF+1}, -1, 0')
    I(f'v_lshlrev_b32 v{V_PROF+1}, 2, v{V_PROF+1}')
    I(f's_lshl_b32 s98, s2, 4')
    I(f's_add_u32 s98, s98, s{S_W}')
    I(f's_lshl_b32 s98, s98, 7')
    I(f'v_add_u32 v{V_PROF+1}, s98, v{V_PROF+1}')
    I(f'global_store_dword v{V_PROF+1}, v{V_PROF}, {sp(S_T)}')

class Lg:
    def __init__(self):
        self.q = []
    def op(self, tag, text):
        I(text)
        self.q.append(tag)
    def need(self, *tags):
        idx = -1
        for t in tags:
            for i in range(len(self.q) - 1, -1, -1):
                if self.q[i] == t:
                    idx = max(idx, i)
                    break
        if idx < 0:
            return
        n = len(self.q) - 1 - idx
        assert n <= 15, (tags, n)
        I(f's_waitcnt lgkmcnt({n})')
        self.q = self.q[idx + 1:]

X = V_X

def zero_range(a, nbytes, zr, ad):
    k = 0
    base = a if a + nbytes <= 65536 + 16384 and a < 65536 - 3 * 16384 else None
    off = 0
    areg = ad
    if a + ((nbytes - 1) // 16384) * 16384 > 65535:
        I(f'v_add_u32 v{X+1}, {a}, v{ad}')
        areg = X + 1
        a0 = 0
    else:
        a0 = a
    while off < nbytes:
        n = min(16384, nbytes - off)
        if n < 16384:
            I(f'v_cmp_gt_u32 vcc, {n // 16}, v{V_TID}')
            I(f's_and_saveexec_b64 {sp(S_EX)}, vcc')
        I(f'ds_write_b128 v{areg}, v[{zr}:{zr+3}] offset:{a0 + off}')
        if n < 16384:
            I(f's_mov_b64 exec, {sp(S_EX)}')
        off += n

def zregs():
    I(f'v_lshlrev_b32 v{X}, 4, v{V_TID}')
    for k in range(4):
        I(f'v_mov_b32 v{X+2+k}, 0')

def fill_desca():
    I(f'v_and_b32 v{X+6}, 15, v{V_TID}')
    I(f'v_lshlrev_b32 v{X+6}, 10, v{X+6}')
    I(f'v_add_u32 v{X+6}, {EXTRA}, v{X+6}')
    for k in range(1, 4):
        I(f'v_add_u32 v{X+6+k}, {256*k}, v{X+6}')
    I(f'v_add_u32 v{X+1}, {DESCA}, v{X}')
    I(f'v_cmp_gt_u32 vcc, 160, v{V_TID}')
    I(f's_and_saveexec_b64 {sp(S_EX)}, vcc')
    I(f'ds_write_b128 v{X+1}, v[{X+6}:{X+9}]')
    I(f's_mov_b64 exec, {sp(S_EX)}')

def fill_zero():
    zregs()
    zero_range(ZR, 65536, X + 2, X)
    fill_desca()

def fill_words():
    I(f'v_lshlrev_b32 v{X}, 4, v{V_TID}')
    I(f'v_and_b32 v{X+2}, 7, v{V_TID}')
    I(f'v_lshlrev_b32 v{X+2}, 5, v{X+2}')
    I(f'v_add_u32 v{X+2}, {N_NODES*8}, v{X+2}')
    for k in range(1, 4):
        I(f'v_add_u32 v{X+2+k}, {8*k}, v{X+2}')
    I(f'ds_write_b128 v{X}, v[{X+2}:{X+5}] offset:{LS}')
    I(f'v_cmp_gt_u32 vcc, 144, v{V_TID}')
    I(f's_and_saveexec_b64 {sp(S_EX)}, vcc')
    I(f'ds_write_b128 v{X}, v[{X+2}:{X+5}] offset:{LS+16384}')
    I(f's_mov_b64 exec, {sp(S_EX)}')

V_C8P, V_CPP, V_SCP = 26, 28, 30
S_BP0, S_BP1 = 88, 90

def tail_ops(n):
    M = (V_MA, V_MB)[n]
    return [f'v_rcp_f32 v{V_T01D}, v{V_T01D}',
            f'v_rcp_f32 v{V_T01D+1}, v{V_T01D+1}',
            f'v_pk_fma_f32 {p(M)}, {p(V_T01N)}, {p(V_T01D)}, {p(M)}']

def acc_write(lg, va):
    lg.op('Wa', f'ds_write2_b32 v{va}, v{V_MA}, v{V_MB} offset0:0 offset1:1')
    lg.op('Wb', f'ds_write2_b32 v{va+1}, v{V_MA+1}, v{V_MB+1} offset0:0 offset1:1')

def acc_read(lg, va):
    lg.op('Ra', f'ds_read_b32 v{V_MA}, v{va}')
    lg.op('Rb', f'ds_read_b32 v{V_MA+1}, v{va+1}')
    lg.op('Rc', f'ds_read_b32 v{V_MB}, v{va} offset:4')
    lg.op('Rd', f'ds_read_b32 v{V_MB+1}, v{va+1} offset:4')

def va_add(vap, vaa):
    I(f'v_lshl_add_u64 {p(vap)}, {p(vap)}, 0, {p(V_CPP)}')
    I(f'v_lshl_add_u64 {p(vaa)}, {p(vaa)}, 0, {p(V_C8P)}')

def gload(n, i):
    return f'buffer_load_dword v{G[n]+i}, v{S + (i & 1) * 8 + (i >> 1)}, {sr4(S_NTG)}, 0 offen offset:{4*n}' + GSC

def s_safe():
    if opt('safe', 0):
        for i in range(16):
            I(f'v_and_b32 v{S+i}, 0x1fff8, v{S+i}')

def s_reads(lg, uo):
    lg.op('S0', f'ds_read_b128 {vr(S,4)}, v{V_PS0} offset:{uo*32}')
    lg.op('S1', f'ds_read_b128 {vr(S+4,4)}, v{V_PS0} offset:{uo*32+16}')
    lg.op('S2', f'ds_read_b128 {vr(S+8,4)}, v{V_PS1} offset:{uo*32}')
    lg.op('S3', f'ds_read_b128 {vr(S+12,4)}, v{V_PS1} offset:{uo*32+16}')

def half(lg, n, par, uo, with_tail=True):
    g = G[n]
    I('s_waitcnt vmcnt(16)')
    if n == 0:
        lg.need('P0a', 'P0b', 'e')
    else:
        lg.need('P1a', 'P1b')
    I(f'v_mfma_f32_32x32x16_bf16 {vr(Z,16)}, {vr(A5,4)}, {vr(B5[n],4)}, {vr(g,16)}')
    t = tail_ops(n ^ 1)
    va_prev, va_cur, va_nxt = V_VAA[par ^ 1], V_VAA[par], V_VAA[par ^ 1]
    sh = [f'v_lshlrev_b32 v{g+i}, 16, v{g+i}' for i in range(16)]
    ex = [f'v_exp_f32 v{Z+i}, v{Z+i} clamp' for i in range(16)]
    l3 = [f'v_pk_mul_f32 {p(V_T01N)}, {p(V_T01N)}, {p(V_T23D)}',
          f'v_pk_mul_f32 {p(V_T23D)}, {p(V_T01D)}, {p(V_T23D)}',
          f'v_pk_fma_f32 {p(V_T01N)}, {p(V_T23N)}, {p(V_T01D)}, {p(V_T01N)}',
          f'v_rcp_f32 v{V_T23D}, v{V_T23D}',
          f'v_rcp_f32 v{V_T23D+1}, v{V_T23D+1}',
          f'v_pk_fma_f32 {p((V_MA, V_MB)[n ^ 1])}, {p(V_T01N)}, {p(V_T23D)}, {p((V_MA, V_MB)[n ^ 1])}']
    if with_tail and not M8:
        for r_ in (V_T01D, V_T01D + 1, V_T23D, V_T23D + 1):
            I(f'v_rcp_f32 v{r_}, v{r_}')
    else:
        I('s_nop 3')
    if n == 1:
        lg.op('e', f'ds_read_b64 {p(A5)}, v{V_PE} offset:{(uo+1)*64}')
        lg.op('P1a', f'ds_read_b32 v{B5[1]+2}, v{V_VAP} offset:4')
        lg.op('P1b', f'ds_read_b32 v{B5[1]+3}, v{V_VAP+1} offset:4')
    else:
        lg.op('dP', f'ds_read_b64 {p(V_VAP)}, v{V_PD} offset:{(uo+1)*256}')
        I('s_nop 1')
    for op in sh[:8]:
        I(op)
    seq = []
    if with_tail and not M8:
        Mp = p((V_MA, V_MB)[n ^ 1])
        seq = ['NEED', f'v_pk_fma_f32 {Mp}, {p(V_T01N)}, {p(V_T01D)}, {Mp}', ex[0],
               f'v_pk_fma_f32 {Mp}, {p(V_T23N)}, {p(V_T23D)}, {Mp}', sh[8], 'ACC', ex[1], sh[9]]
    elif with_tail:
        seq = [l3[0], l3[1], ex[0], l3[2], l3[3], sh[8], l3[4], ex[1], sh[9], 'NEED', l3[5], 'ACC']
    else:
        seq = [ex[0], sh[8], ex[1], sh[9], 'ACC']
    for op in seq:
        if op == 'NEED':
            lg.need('Ra', 'Rb', 'Rc', 'Rd')
        elif op == 'ACC':
            if n == 0:
                if with_tail:
                    acc_write(lg, va_prev)
                acc_read(lg, va_cur)
                lg.op('dA', f'ds_read_b64 {p(va_nxt)}, v{V_PD} offset:{(uo+1)*256 + DESCA - DESCP}')
        else:
            I(op)
    for i in range(2, 12):
        I(ex[i])
        if 8 + i < 16:
            I(sh[8 + i])
        if n == 0 and i == 11:
            lg.need('dP', 'dA')
            va_add(V_VAP, va_nxt)
            lg.op('P0a', f'ds_read_b32 v{B5[0]+2}, v{V_VAP}')
            lg.op('P0b', f'ds_read_b32 v{B5[0]+3}, v{V_VAP+1}')
    for op in ex[12:]:
        I(op)
    for i in range(0, 16, 2):
        if M8:
            I(f'v_pk_fma_f32 {p(Z+i)}, {p(Z+i)}, {p(V_SCP)}, {sp(S_C)}')
        else:
            I(f'v_pk_add_f32 {p(Z+i)}, {p(Z+i)}, {sp(S_C)}')
    def T(k): return f'v_pk_mul_f32 {p(V_TT[k&1])}, {p(g+4*k)}, {p(Z+4*k+2)}'
    def DD(k): return f'v_pk_mul_f32 {p(Z+4*k+2)}, {p(Z+4*k)}, {p(Z+4*k+2)}'
    def NN(k): return f'v_pk_fma_f32 {p(Z+4*k)}, {p(g+4*k+2)}, {p(Z+4*k)}, {p(V_TT[k&1])}'
    for k0 in (0, 2):
        for op in (T(k0), T(k0 + 1), DD(k0), DD(k0 + 1), NN(k0), NN(k0 + 1)):
            I(op)
        if n == 0 and k0 == 0:
            lg.need('S0', 'S1', 'S2', 'S3')
            s_safe()
        I(f's_mov_b64 exec, {sp(S_LDX)}')
        for i in range(4 * k0, 4 * k0 + 8):
            I(gload(n, i))
        I('s_mov_b64 exec, -1')
    if n == 1:
        s_reads(lg, uo + 2)
    I(f'v_pk_mul_f32 {p(V_T01N)}, {p(Z)}, {p(Z+6)}')
    I(f'v_pk_mul_f32 {p(V_T23N)}, {p(Z+8)}, {p(Z+14)}')
    I(f'v_pk_mul_f32 {p(V_T01D)}, {p(Z+2)}, {p(Z+6)}')
    I(f'v_pk_mul_f32 {p(V_T23D)}, {p(Z+10)}, {p(Z+14)}')
    I(f'v_pk_fma_f32 {p(V_T01N)}, {p(Z+4)}, {p(Z+2)}, {p(V_T01N)}')
    I(f'v_pk_fma_f32 {p(V_T23N)}, {p(Z+12)}, {p(Z+10)}, {p(V_T23N)}')

PRIO = {
    3: {(3, 0): 2, (2, 0): 1, (1, 0): 0},
    5: {(2, 0): 2, (1, 0): 1, (1, 1): 0},
    6: {(3, 0): 2, (1, 0): 1, (1, 1): 0},
    7: {(2, 1): 2, (1, 0): 1, (1, 1): 0},
    8: {(4, 0): 2, (2, 0): 1, (1, 1): 0},
    9: {(3, 0): 2, (2, 1): 1, (1, 1): 0},
    10: {(5, 0): 2, (3, 0): 1, (1, 0): 0},
    11: {(5, 0): 2, (3, 0): 1, (1, 1): 0},
    12: {(4, 0): 2, (2, 0): 1, (1, 1): 0},
    13: {(5, 0): 2, (2, 0): 1, (1, 1): 0},
    0: {},
}[opt('prio', 9)]
def prio(tag, phase=0):
    for (t, ph), lvl in PRIO.items():
        if ph != phase:
            continue
        I(f's_cmp_eq_u32 s{S_CNT}, {t}')
        I(f's_cbranch_scc0 L_PR{tag}_{lvl}')
        I(f's_setprio {lvl}')
        L(f'L_PR{tag}_{lvl}')

def split_hilo(a, b, t0, t1):
    I(f'v_cvt_pk_bf16_f32 v{t0}, v{a}, v{b}')
    I(f'v_lshlrev_b32 v{t1}, 16, v{t0}')
    I(f'v_and_b32 v{t0}, 0xffff0000, v{t0}')
    I(f'v_sub_f32 v{a}, v{a}, v{t1}')
    I(f'v_sub_f32 v{b}, v{b}, v{t0}')
    I(f'v_cvt_pk_bf16_f32 v{a}, v{t1}, v{a}')
    I(f'v_cvt_pk_bf16_f32 v{b}, v{t0}, v{b}')

V_AA, V_AB, V_AD, V_AP = 6, 7, 8, 9
SA, SB, SD = 80, 96, 112

def phase0_addr():
    I(f's_and_b32 s{S_T}, s{S_W}, 3')
    I(f's_lshr_b32 s{S_T+1}, s{S_W}, 2')
    I(f'v_and_b32 v12, 15, v{V_LANE}')
    I(f'v_lshrrev_b32 v13, 4, v{V_LANE}')
    I(f'v_bfe_u32 v14, v{V_LANE}, 1, 3')
    I(f'v_xor_b32 v14, v14, v13')
    I(f'v_lshlrev_b32 v14, 4, v14')
    I(f'v_lshl_or_b32 v14, v12, 7, v14')
    I(f's_lshl_b32 s{S_T+2}, s{S_T}, 11')
    I(f'v_add_u32 v{V_AA}, s{S_T+2}, v14')
    I(f'v_bfe_u32 v14, v{V_LANE}, 2, 2')
    I(f'v_lshl_add_u32 v14, v13, 3, v14')
    I(f'v_lshlrev_b32 v14, 7, v14')
    I(f'v_and_b32 v15, 3, v{V_LANE}')
    I(f'v_lshl_add_u32 v14, v15, 3, v14')
    I(f's_lshl_b32 s{S_T+2}, s{S_T+1}, 5')
    I(f'v_or_b32 v14, s{S_T+2}, v14')
    I(f'v_and_b32 v15, 24, v{V_LANE}')
    I(f'v_lshlrev_b32 v15, 2, v15')
    I(f'v_xor_b32 v14, v14, v15')
    I(f'v_add_u32 v{V_AB}, {WRAW}, v14')
    I(f's_lshl_b32 s{S_T+2}, s{S_T}, 12')
    I(f'v_lshlrev_b32 v13, 10, v13')
    I(f'v_add_u32 v13, s{S_T+2}, v13')
    I(f's_lshl_b32 s{S_T+2}, s{S_T+1}, 6')
    I(f's_add_u32 s{S_T+2}, s{S_T+2}, {NTI}')
    I(f'v_lshl_add_u32 v{V_AD}, v12, 2, v13')
    I(f'v_add_u32 v{V_AD}, s{S_T+2}, v{V_AD}')
    I(f's_and_b32 s{S_T+2}, s{S_T+1}, 1')
    I(f's_lshl_b32 s{S_T+2}, s{S_T+2}, 7')
    I(f's_lshr_b32 s{S_T+3}, s{S_T+1}, 1')
    I(f's_lshl_b32 s{S_T+3}, s{S_T+3}, 2')
    I(f's_add_u32 s{S_T+2}, s{S_T+2}, s{S_T+3}')
    I(f's_add_u32 s{S_T+2}, s{S_T+2}, {PT}')
    I(f'v_lshl_add_u32 v{V_AP}, v12, 3, v13')
    I(f'v_add_u32 v{V_AP}, s{S_T+2}, v{V_AP}')

def b_reads(dst, off):
    for sg in range(2):
        for pp in range(2):
            I(f'ds_read_b64_tr_b16 {vr(dst+4*sg+2*pp,2)}, v{V_AB} offset:{off+sg*4096+pp*512}')

def mm16(d, b):
    I(f'v_mfma_f32_16x16x32_bf16 {vr(d,4)}, {vr(SA,4)}, {vr(b,4)}, 0')
    I(f'v_mfma_f32_16x16x32_bf16 {vr(d,4)}, {vr(SA+4,4)}, {vr(b+4,4)}, {vr(d,4)}')

def phase0a():
    I(f'v_add_u32 v12, {XOWN}, v{V_AA}')
    I(f'v_xor_b32 v13, 64, v{V_AA}')
    I(f'v_add_u32 v13, {XOWN}, v13')
    I(f'ds_read_b128 {vr(SA,4)}, v12')
    I(f'ds_read_b128 {vr(SA+4,4)}, v13')
    b_reads(SB, 8192)
    b_reads(SB + 8, WV_ - WRAW)
    I(f's_mov_b32 s{S_T+4}, 0x{f2u(-LOG2E):x}')
    I(f's_mov_b32 s{S_T+6}, 0x7fffffff')
    I(f's_mov_b32 s{S_T+7}, 0xffff0000')
    I('s_waitcnt lgkmcnt(4)')
    mm16(SD, SB)
    I('s_waitcnt lgkmcnt(0)')
    mm16(SD + 4, SB + 8)
    I('s_nop 4')
    for i in range(4):
        I(f'v_mul_f32 v{SD+i}, s{S_T+4}, v{SD+i}')
    for i in range(4):
        I(f'v_and_b32 v{SD+8+i}, s{S_T+6}, v{SD+i}')
    for i in range(4):
        if SV:
            I(f'v_mul_f32 v{SD+4+i}, 0x{f2u(2.0**SV):x}, v{SD+4+i}')
        I(f'v_add_u32 v{SD+8+i}, 0x8000, v{SD+8+i}')
    I(f'v_cvt_pk_bf16_f32 v{SD+4}, v{SD+4}, v{SD+5}')
    I(f'v_cvt_pk_bf16_f32 v{SD+6}, v{SD+6}, v{SD+7}')
    I(f'v_lshrrev_b32 v{SD+5}, 16, v{SD+4}')
    I(f'v_lshrrev_b32 v{SD+7}, 16, v{SD+6}')
    I(f'v_and_b32 v{SD+4}, 0xffff, v{SD+4}')
    I(f'v_and_b32 v{SD+6}, 0xffff, v{SD+6}')
    for i in range(4):
        I(f'v_sub_u32 v{SD+8+i}, v{SD+8+i}, v{SD+4+i} clamp')
    for i in range(4):
        I(f'v_and_or_b32 v{SD+8+i}, v{SD+8+i}, s{S_T+7}, v{SD+4+i}')
    for i in range(4):
        I(f'v_bfi_b32 v{SD+i}, s{S_T+6}, v{SD+8+i}, v{SD+i}')
        I(f'ds_write_b32 v{V_AD}, v{SD+i} offset:{i*256}')

def phase0b():
    b_reads(SB, 0)
    b_reads(SB + 8, WU_ - WRAW)
    I(f's_mov_b32 s{S_T+4}, 0x{f2u(-LOG2E):x}')
    I(f's_mov_b32 s{S_T+5}, 0x{f2u(2.0**(SV+KH)):x}')
    I(f'v_mov_b32 v13, 0x{f2u(-float(KEXP)):x}')
    I(f's_and_b32 s{S_T+6}, s{S_W}, 3')
    I('s_waitcnt lgkmcnt(4)')
    mm16(SD, SB)
    I('s_waitcnt lgkmcnt(0)')
    mm16(SD + 4, SB + 8)
    I('s_nop 4')
    for i in range(4):
        I(f'v_fma_f32 v{SD+i}, v{SD+i}, s{S_T+4}, v13')
    split_hilo(SD, SD + 1, 12, 13)
    split_hilo(SD + 2, SD + 3, 12, 13)
    for i in range(4):
        I(f'v_mul_f32 v{SD+4+i}, s{S_T+5}, v{SD+4+i}')
    I(f's_cmp_eq_u32 s{S_T+6}, 3')
    I(f's_cselect_b64 exec, 0xffff, -1')
    I(f'ds_write_b32 v{V_AP}, v{SD}')
    I(f'ds_write_b32 v{V_AP}, v{SD+4} offset:{ACCN-PT}')
    I(f's_cselect_b64 exec, 0, -1')
    for i in range(1, 4):
        I(f'ds_write_b32 v{V_AP}, v{SD+i} offset:{i*256}')
        I(f'ds_write_b32 v{V_AP}, v{SD+4+i} offset:{ACCN-PT+i*256}')
    I('s_mov_b64 exec, -1')

def phase0c():
    I(f'v_bfe_u32 v13, v{V_LANE}, 2, 2')
    I(f'v_lshlrev_b32 v13, 7, v13')
    I(f'v_bfe_u32 v15, v{V_LANE}, 4, 1')
    I(f'v_lshl_add_u32 v13, v15, 5, v13')
    I(f'v_and_b32 v15, 3, v{V_LANE}')
    I(f'v_lshl_add_u32 v13, v15, 3, v13')
    I(f'v_and_b32 v15, 8, v{V_LANE}')
    I(f'v_lshlrev_b32 v15, 2, v15')
    I(f'v_xor_b32 v13, v13, v15')
    I(f'v_add_u32 v13, {WG_ + 16384}, v13')
    I(f'ds_read_b64_tr_b16 v[96:97], v13')
    I(f'ds_read_b64_tr_b16 v[98:99], v13 offset:64')
    I(f's_mov_b32 s{S_T+4}, 0x{f2u(-LOG2E):x}')
    I(f'v_cmp_lt_u32 vcc, 31, v{V_LANE}')
    I('s_waitcnt lgkmcnt(0)')
    for m in range(4):
        I(f'v_lshlrev_b32 v{100+2*m}, 16, v{96+m}')
        I(f'v_and_b32 v{101+2*m}, 0xffff0000, v{96+m}')
    for j in range(8):
        I(f'v_mul_f32 v{100+j}, s{S_T+4}, v{100+j}')
    for m in range(4):
        dst = B5[m >> 1] + (m & 1)
        I(f'v_cvt_pk_bf16_f32 v{96+m}, v{100+2*m}, v{101+2*m}')
        I(f'v_lshlrev_b32 v12, 16, v{96+m}')
        I(f'v_and_b32 v13, 0xffff0000, v{96+m}')
        I(f'v_sub_f32 v12, v{100+2*m}, v12')
        I(f'v_sub_f32 v13, v{101+2*m}, v13')
        I(f'v_cvt_pk_bf16_f32 v12, v12, v13')
        I(f'v_cndmask_b32 v{dst}, v{96+m}, v12, vcc')

def a5_const():
    I(f'v_bfe_u32 v12, v{V_LANE}, 2, 1')
    I(f'v_lshrrev_b32 v13, 5, v{V_LANE}')
    I(f'v_xor_b32 v12, v12, v13')
    I(f'v_and_b32 v13, 1, v{V_LANE}')
    I(f'v_lshl_or_b32 v12, v12, 1, v13')
    I(f'v_mov_b32 v13, 0x3f803f80')
    I(f'v_cmp_eq_u32 vcc, 0, v12')
    I(f'v_cmp_eq_u32 {sp(S_T)}, 1, v12')
    I('s_nop 1')
    I(f'v_cndmask_b32 v{A5+2}, 0, v13, vcc')
    I(f'v_cndmask_b32 v{A5+3}, 0, v13, {sp(S_T)}')

def nt_prefetch(vt, first=0, nl=None, dst=96):
    if CM:
        I(f's_lshr_b32 s{S_T}, s2, 4')
        I(f's_lshl_b32 s{S_T+1}, s{S_W}, 4')
        I(f's_add_u32 s{S_T}, s{S_T}, s{S_T+1}')
    else:
        I(f's_lshr_b32 s{S_T}, s2, 4')
        I(f's_lshl_b32 s{S_T+1}, s{S_W}, 4')
        I(f's_add_u32 s{S_T}, s{S_T}, s{S_T+1}')
        I(f's_and_b32 s{S_T+1}, s{S_T}, 7')
        I(f's_lshl_b32 s{S_T+1}, s{S_T+1}, 5')
        I(f's_lshr_b32 s{S_T}, s{S_T}, 3')
        I(f's_add_u32 s{S_T}, s{S_T}, s{S_T+1}')
    if not opt('xmap', 1):
        I(f's_lshr_b32 s{S_T}, s2, 4')
        I(f's_lshl_b32 s{S_T+1}, s{S_W}, 4')
        I(f's_add_u32 s{S_T}, s{S_T}, s{S_T+1}')
    I(f's_lshl_b32 s{S_T}, s{S_T}, 1')
    I(f's_bfe_u32 s{S_T+1}, s2, 0x10003')
    I(f's_add_u32 s{S_T}, s{S_T}, s{S_T+1}')
    I(f's_mul_i32 s{S_T}, s{S_T}, {NB*128}')
    I(f's_add_u32 s{S_T}, s{S_T}, 0x{WS_NT:x}')
    srd_off(S_NTS, S_WSP, S_WSP + 1, f's{S_T}', NB * 128)
    if NPFM >= 3:
        I(f'v_lshlrev_b32 v{vt}, {7 if NPFM >= 4 else 6}, v{V_LANE}')
        I(f'v_add_u32 v{vt+1}, 4096, v{vt}')
        nl = opt("pfl", 6) if nl is None else nl
        I(f's_mov_b32 exec_lo, 0x{(((1 << nl) - 1) << first) & 0xffffffff:x}')
        I(f's_mov_b32 exec_hi, 0x{(((1 << nl) - 1) << first) >> 32:x}')
        for k in range(NPF):
            I(f'buffer_load_dword v{dst+k}, v{vt+k}, {sr4(S_NTS)}, 0 offen' + (LSC if opt('pfsc', 1) else ''))
        I('s_mov_b64 exec, -1')
        return
    I(f'v_lshlrev_b32 v{vt}, 4, v{V_LANE}')
    I(f'v_add_u32 v{vt+1}, 4096, v{vt}')
    for k in range(NPF):
        I(f'buffer_load_dwordx4 {vr(96+4*k,4)}, v{vt+(k>>2)}, {sr4(S_NTS)}, 0 offen offset:{(k&3)*1024}' + LSC)

def ptr_consts():
    I(f'v_lshrrev_b32 v{V_PS1}, 5, v{V_LANE}')
    I(f's_lshl_b32 s{S_T}, s{S_W}, 4')
    I(f's_add_u32 s{S_T}, s{S_T}, {DESCP}')
    I(f'v_lshlrev_b32 v{V_PD}, 3, v{V_PS1}')
    I(f'v_add_u32 v{V_PS1}, v{V_PS1}, v{V_PS1}')
    I(f'v_add_u32 v{V_PD}, s{S_T}, v{V_PD}')
    I(f'v_bfe_u32 v{V_VAP}, v{V_LANE}, 2, 1')
    I(f'v_and_b32 v{V_PE}, 1, v{V_LANE}')
    I(f'v_lshl_or_b32 v{V_VAP}, v{V_VAP}, 1, v{V_PE}')
    I(f'v_bfe_u32 v{V_PE}, v{V_LANE}, 3, 2')
    I(f'v_bfe_u32 v{V_PS0}, v{V_LANE}, 1, 1')
    I(f'v_lshl_or_b32 v{V_PE}, v{V_PE}, 1, v{V_PS0}')
    I(f'v_lshlrev_b32 v{V_PE}, 3, v{V_PE}')
    I(f'v_add_u32 v{V_PE}, {LE}, v{V_PE}')

def gen():
    e(f'.globl {KNAME}')
    e('.p2align 8')
    e(f'.type {KNAME},@function')
    L(KNAME)
    I(f's_cmp_ge_u32 s2, {NWG}')
    I('s_cbranch_scc1 L_END')
    I('s_load_dwordx8 s[84:91], s[0:1], 0')
    I('s_load_dwordx4 s[4:7], s[0:1], 32')
    I('s_load_dwordx4 s[8:11], s[0:1], 48')
    I('s_load_dwordx4 s[56:59], s[0:1], 64')
    if PROF:
        I(f'v_mov_b32 v{V_PROF}, 0')
    rstamp(30)
    stamp(0)
    zregs()
    zero_range(CNT, BASE2 - CNT, X + 2, X)
    I(f'v_lshlrev_b32 v{X+6}, 2, v{V_TID}')
    I(f's_mul_i32 s61, s2, {CH*4}')
    I(f's_mul_i32 s63, s2, {CH}')
    I(f's_sub_u32 s63, {E_EDGES}, s63')
    I(f's_min_u32 s63, s63, {CH}')
    I(f's_lshl_b32 s64, s63, 2')
    I(f'v_add_u32 v{X+8}, 4096, v{X+6}')
    I(f'v_add_u32 v{X+9}, 8192, v{X+6}')
    I(f'v_add_u32 v{X+10}, 12288, v{X+6}')
    I(f'v_lshrrev_b32 v{X+1}, 6, v{V_TID}')
    I(f'v_and_b32 v{V_LANE}, 63, v{V_TID}')
    I(f'v_readfirstlane_b32 s{S_W}, v{X+1}')
    I('s_and_b32 s3, s2, 7')
    I('s_lshl_b32 s3, s3, 5')
    I('s_lshr_b32 s60, s2, 3')
    I('s_add_u32 s3, s3, s60')
    if not opt('xmap', 1):
        I('s_mov_b32 s3, s2')
    I(f's_mul_i32 s62, s2, {CH*8}')
    I(f's_lshl_b32 s65, s63, 3')
    I(f'v_and_b32 v97, 0x50, v{V_TID}')
    I(f'v_lshlrev_b32 v96, 1, v97')
    I(f'v_or_b32 v97, v97, v96')
    I(f'v_and_b32 v97, 0x60, v97')
    I(f'v_xor_b32 v97, v97, v{X}')
    I(f'v_and_b32 v96, 0x20, v96')
    I(f'v_lshlrev_b32 v98, 4, v{V_LANE}')
    I(f'v_xor_b32 v96, v96, v98')
    I(f's_lshl_b32 s66, s{S_W}, 10')
    I(f'v_and_b32 v101, 0x1fff, v97')
    I(f'v_lshrrev_b32 v98, 3, v{V_TID}')
    I(f'v_bfe_u32 v99, v98, 1, 3')
    I(f'v_and_b32 v100, 7, v{V_TID}')
    I(f'v_xor_b32 v99, v99, v100')
    I(f'v_lshlrev_b32 v99, 4, v99')
    I(f'v_lshl_add_u32 v99, v98, 7, v99')
    I(f's_mul_i32 s60, s3, {NB*128}')
    I(f'v_add_u32 v99, s60, v99')
    I(f'v_add_u32 v96, 16384, v96')
    I('s_waitcnt lgkmcnt(0)')
    I(f's_or_b32 s67, s2, s{S_W}')
    I('s_cmp_lg_u32 s67, 0')
    I('s_cbranch_scc1 L_NOTAG')
    I('s_memrealtime s[68:69]')
    I(f'v_mov_b32 v{X+2}, 0')
    I('s_waitcnt lgkmcnt(0)')
    I('s_or_b32 s68, s68, 1')
    I(f'v_mov_b32 v{X+3}, s68')
    I('s_mov_b64 exec, 1')
    I(f'global_store_dword v{X+2}, v{X+3}, s[56:57] sc1')
    I('s_mov_b64 exec, -1')
    L('L_NOTAG')
    def dst_loads():
        srd_off(S_DST, 90, 91, 's61', 's64')
        for k in range(4):
            I(f'buffer_load_dword v{64+k}, v{X+6 if k == 0 else X+7+k}, {sr4(S_DST)}, 0 offen' + ELD)
    DL = opt('dl', 1)
    def dma_loads():
        if not DL:
            return dma_loads3()
        srd(S_WS, 8, 9, 132 * 128)
        I(f's_cmp_lt_u32 s{S_W}, 8')
        I('s_cbranch_scc0 L_D3B')
        srd(S_XS, 84, 85, N_NODES * 128)
        I(f's_add_u32 m0, s66, {XOWN}')
        srd(S_NTS, 6, 7, 64 * 128)
        I(f'buffer_load_dwordx4 v99, {sr4(S_XS)}, 0 offen lds')
        I(f's_add_u32 m0, s66, {WV_}')
        I('s_nop 0')
        I(f'buffer_load_dwordx4 v101, {sr4(S_NTS)}, 0 offen lds')
        I('s_branch L_D3C')
        L('L_D3B')
        I(f's_add_u32 m0, s66, {WG_}')
        I('s_nop 0')
        I(f'buffer_load_dwordx4 v97, {sr4(S_WS)}, 0 offen lds')
        I(f's_mov_b32 m0, {WG_ + 16384}')
        I('s_nop 0')
        I(f'buffer_load_dwordx4 v96, {sr4(S_WS)}, 0 offen lds')
        L('L_D3C')
    def dma_late():
        srd(S_XS, 4, 5, 64 * 128)
        I(f's_cmp_lt_u32 s{S_W}, 8')
        I('s_cbranch_scc0 L_D4B')
        I(f's_add_u32 m0, s66, {WG_}')
        I('s_nop 0')
        I(f'buffer_load_dwordx4 v97, {sr4(S_WS)}, 0 offen lds')
        I('s_branch L_D4C')
        L('L_D4B')
        I(f's_add_u32 m0, s66, {WV_}')
        I('s_nop 0')
        I(f'buffer_load_dwordx4 v101, {sr4(S_XS)}, 0 offen lds')
        L('L_D4C')
    def dma_loads3():
        srd(S_WS, 8, 9, 132 * 128)
        I(f's_add_u32 m0, s66, {WG_}')
        srd(S_XS, 84, 85, N_NODES * 128)
        I(f'buffer_load_dwordx4 v97, {sr4(S_WS)}, 0 offen lds')
        I(f's_cmp_lt_u32 s{S_W}, 8')
        I(f's_cselect_b32 s{S_NTS}, s6, s4')
        I(f's_cselect_b32 s{S_NTS+1}, s7, s5')
        I(f's_mov_b32 s{S_NTS+2}, {64*128}')
        I(f's_mov_b32 s{S_NTS+3}, 0x00020000')
        I(f's_add_u32 m0, s66, {WV_}')
        I('s_nop 0')
        I(f'buffer_load_dwordx4 v101, {sr4(S_NTS)}, 0 offen lds')
        I(f's_cmp_lt_u32 s{S_W}, 8')
        I('s_cbranch_scc0 L_D3B')
        I(f's_add_u32 m0, s66, {XOWN}')
        I('s_nop 0')
        I(f'buffer_load_dwordx4 v99, {sr4(S_XS)}, 0 offen lds')
        I('s_branch L_D3C')
        L('L_D3B')
        I(f's_mov_b32 m0, {WG_ + 16384}')
        I('s_nop 0')
        I(f'buffer_load_dwordx4 v96, {sr4(S_WS)}, 0 offen lds')
        L('L_D3C')
    if opt('t0', 0):
        I(f'v_and_b32 v60, 15, v{V_LANE}')
        I(f'v_lshlrev_b32 v60, 20, v60')
        I(f'v_and_b32 v61, 1, v{V_LANE}')
        I(f'v_lshlrev_b32 v61, 20, v61')
        I(f'global_load_dword v62, v60, s[58:59]')
        I(f'global_load_dword v63, v61, s[10:11]')
    ORDER = opt('order', 2)
    if ORDER == 0:
        dma_loads()
    dst_loads()
    if ORDER == 2:
        dma_loads()
    F1 = opt('f1', 1)
    if F1:
        I('s_barrier')
    srd_off(S_SRC, 88, 89, 's61', 's64')
    LATE = opt('late', 0)
    def src_load(k):
        I(f'buffer_load_dword v{68+k}, v{X+6 if k == 0 else 43+k}, {sr4(S_SRC)}, 0 offen' + ELD)
    for k in range(1, 4):
        I(f'v_mov_b32 v{43+k}, v{X+7+k}')
    NS = opt('ns', 1) if LATE else 4
    for k in range(NS):
        src_load(k)
    srd_off(S_EA, 86, 87, 's62', 's65')
    I(f'v_lshlrev_b32 v92, 3, v{V_TID}')
    for k in range(1, 4):
        I(f'v_add_u32 v{92+k}, {8192*k}, v92')
    def e_load(k):
        I(f'buffer_load_dwordx2 v[{72+2*k}:{73+2*k}], v{92+k}, {sr4(S_EA)}, 0 offen' + ELD)
    NEE = opt('ne', 1) if LATE else opt('nee', 4)
    for k in range(NEE):
        e_load(k)
    if ORDER == 1:
        dma_loads()
    I(f's_mov_b64 {sp(S_DBG)}, s[56:57]')
    I(f's_add_u32 s{S_WSP}, s58, 0x{WSB:x}')
    I(f's_addc_u32 s{S_WSP+1}, s59, 0')
    stamp(1)
    srd(S_OUT, 10, 11, N_NODES * 128)
    I(f's_mul_i32 s{S_T}, s2, {CAP*4}')
    srd_off(S_RW, S_WSP, S_WSP + 1, f's{S_T}', CAP * 4)
    I(f's_lshl_b32 s{S_T}, s{S_T}, 1')
    I(f's_add_u32 s{S_T}, s{S_T}, 0x{WS_RE:x}')
    srd_off(S_RE, S_WSP, S_WSP + 1, f's{S_T}', CAP * 8)
    I(f's_lshl_b32 s{S_T}, s2, 11')
    I(f's_add_u32 s{S_T}, s{S_T}, 0x{WS_TAB:x}')
    srd_off(S_TAB, S_WSP, S_WSP + 1, f's{S_T}', (KREP - 1) * 0x80000 + 2048)
    I(f's_mul_i32 s{S_T}, s3, {NB*256}')
    I(f's_add_u32 s{S_T}, s{S_T}, 0x{WS_NT:x}')
    srd_off(S_NTS, S_WSP, S_WSP + 1, f's{S_T}', NB * 256)
    I(f's_add_u32 s{S_NTG}, s{S_WSP}, 0x{WS_NT:x}')
    I(f's_addc_u32 s{S_NTG+1}, s{S_WSP+1}, 0')
    I(f's_or_b32 s{S_NTG+1}, s{S_NTG+1}, 0x80000000')
    I(f's_mov_b32 s{S_NTG+2}, 0x400000')
    I(f's_mov_b32 s{S_NTG+3}, 0x00c00000')
    srd_off(S_DST, S_WSP, S_WSP + 1, '0x%x' % WS_RW, NWG * CAP * 4)
    if not LATE:
        srd_off(S_SRC, S_WSP, S_WSP + 1, '0x%x' % WS_RE, NWG * CAP * 8)
    for k in range(4):
        I(f'v_add_u32 v{X+1}, {1024*k}, v{V_TID}')
        I(f'v_cmp_gt_u32 {sp(S_MASK+2*k)}, s63, v{X+1}')
    I(f's_mov_b32 s{S_C}, 0x{f2u(2.0**-KH):x}')
    I(f's_mov_b32 s{S_C+1}, 0x{f2u(2.0**-KH):x}')
    I(f's_mov_b32 s{S_JB}, 0')
    I(f's_mov_b32 s{S_WID}, 128')
    I(f'v_and_b32 v{V_J4}, 7, v{V_LANE}')
    I(f'v_lshlrev_b32 v{V_J4}, 3, v{V_J4}')
    if CM:
        I(f'v_and_b32 v{X+1}, 56, v{V_LANE}')
        I(f's_and_b32 s{S_T}, s{S_W}, 1')
        I(f's_lshl_b32 s{S_T}, s{S_T}, 7')
        I(f's_lshr_b32 s{S_T+1}, s{S_W}, 1')
        I(f's_add_u32 s{S_T}, s{S_T}, s{S_T+1}')
    else:
        I(f'v_lshrrev_b32 v{X+1}, 3, v{V_LANE}')
        I(f's_lshl_b32 s{S_T}, s{S_W}, 4')
    I(f'v_add_u32 v{X+1}, s{S_T}, v{X+1}')
    I(f'v_lshlrev_b32 v{V_TAB+2}, 11, v{X+1}')
    I(f'v_mul_u32_u24 v{V_CB4}, {CAP*4}, v{X+1}')
    I(f'v_add_u32 v{V_CB4}, v{V_CB4}, v{V_J4}')
    I(f'v_and_b32 v{V_CH8}, 31, v{V_LANE}')
    I(f'v_lshlrev_b32 v{V_CH8}, 3, v{V_CH8}')
    I(f'v_add_u32 v{V_CHP}, {PT}, v{V_CH8}')
    phase0_addr()
    a5_const()
    if not F1:
        I(f's_waitcnt vmcnt({8 + NEE if ORDER == 0 else 0})')
        I('s_barrier')
    stamp(2)
    def late_loads():
        if LATE:
            for k in range(NS, 4):
                src_load(k)
        for k in range(NEE, 4):
            e_load(k)
        if not (LATE and TP):
            I(f'v_mov_b32 v12, 0')
            I(f'global_load_dword v10, v12, {sp(S_DBG)} sc1')
        if TCH:
            I(f'v_lshlrev_b32 v13, 13, v{V_LANE}')
            I(f'buffer_load_dword v60, v13, {sr4(S_RW)}, 0 offen')
            I(f'buffer_load_dword v61, v13, {sr4(S_RE)}, 0 offen')
            I(f'buffer_load_dword v62, v13, {sr4(S_TAB)}, 0 offen')
            I(f'buffer_load_dword v63, v13, {sr4(S_NTS)}, 0 offen')
        srd_off(S_EA, S_WSP, S_WSP + 1, '0x%x' % WS_TAB, 0x80000 + NWG * 128)
        if LATE:
            srd_off(S_SRC, S_WSP, S_WSP + 1, '0x%x' % WS_RE, NWG * CAP * 8)
    if not LATE:
        late_loads()
    elif TP:
        I(f'v_mov_b32 v12, 0')
        I(f'global_load_dword v10, v12, {sp(S_DBG)} sc1')
    if not F1:
        phase0a()
    I(f's_mov_b32 s{S_T}, -{NB}')
    I(f'v_mov_b32 v{X+1}, 4')
    BN, WD, RK = 28, 32, 36
    for k in range(4):
        I(f's_waitcnt vmcnt({((3 + NS + NEE + TP if ORDER == 0 else 6 + NS + NEE + TP) if LATE else (12 if ORDER == 0 else 15 - DL) + TCH) - k})')
        I(f's_mov_b64 exec, {sp(S_MASK+2*k)}')
        if k == 3:
            I('s_cbranch_execz L_B1')
        I(f'v_mul_u32_u24 v{BN+k}, 21400, v{64+k}')
        I(f'v_lshrrev_b32 v{BN+k}, 20, v{BN+k}')
        I(f'v_mad_i32_i24 v{WD+k}, v{BN+k}, s{S_T}, v{64+k}')
        I(f'v_lshlrev_b32 v{BN+k}, 2, v{BN+k}')
        I(f'ds_add_rtn_u32 v{RK+k}, v{BN+k}, v{X+1} offset:{HIST}')
        I(f'v_lshlrev_b32 v{WD+k}, 26, v{WD+k}')
    L('L_B1')
    I('s_mov_b64 exec, -1')
    if LATE:
        late_loads()
    if DL:
        assert not LATE and ORDER == 2 and SRCL == 1 and 'b' not in opt('pre', 'x')
        dma_late()
    I(f'v_add_u32 v{X+1}, {NTI}, v{X}')
    stamp(3)
    I({0: 's_waitcnt lgkmcnt(0)', 1: 's_waitcnt vmcnt(1) lgkmcnt(0)', 2: f's_waitcnt vmcnt({9 + DL + TCH}) lgkmcnt(0)'}[ORDER])
    I('s_barrier')
    stamp(4)
    if not F1:
        I(f'ds_read_b128 v[112:115], v{X+1}')
    I(f's_cmp_lg_u32 s{S_W}, 0')
    I('s_cbranch_scc1 L_NOSCAN')
    I(f'ds_read_b128 v[96:99], v{X} offset:{HIST}')
    I('s_waitcnt lgkmcnt(0)')
    for k in range(4):
        I(f'v_add_u32 v{108+k}, 4, v{96+k}')
        I(f'v_and_b32 v{108+k}, -8, v{108+k}')
    I('v_add_u32 v101, v108, v109')
    I('v_add_u32 v102, v101, v110')
    I('v_add_u32 v103, v102, v111')
    I('v_mov_b32 v104, v103')
    wave_scan(104)
    I(f'v_readlane_b32 s{S_T+4}, v104, 63')
    I('v_sub_u32 v104, v104, v103')
    I(f'v_mov_b32 v100, {MISC+8}')
    I(f'v_mov_b32 v105, s{S_T+4}')
    I('ds_write_b32 v100, v105')
    I('v_add_u32 v105, v104, v108')
    I('v_add_u32 v106, v104, v101')
    I('v_add_u32 v107, v104, v102')
    I(f'ds_write_b128 v{X}, v[104:107] offset:{HBASE}')
    for k in range(4):
        I(f'v_lshl_or_b32 v{108+k}, v{96+k}, 16, v{104+k}')
    I(f'ds_write_b128 v{X}, v[108:111] offset:{HIST}')
    L('L_NOSCAN')
    if F1:
        phase0a()
    I('s_waitcnt lgkmcnt(0)')
    if not F1:
        I(f'buffer_store_dwordx4 v[112:115], v{X}, {sr4(S_NTS)}, 0 offen' + SC)
    if T1:
        I(f's_mul_i32 s{S_T+4}, s3, {NB*128}')
        I(f'v_mov_b32 v60, s{S_T+4}')
        I(f'buffer_load_dword v61, v60, {sr4(S_OUT)}, 0 offen')
    if not SRCL:
        I(f's_waitcnt vmcnt({4 + TCH + T1 if LATE else 6 - F1 + TCH + T1})')
        for k in range(4):
            I(f'v_lshl_or_b32 v{WD+k}, v{68+k}, 3, v{WD+k}')
    I('s_barrier')
    stamp(5)
    if F1:
        I(f'ds_read_b128 v[112:115], v{X+1}')
    for k in range(4):
        I(f's_mov_b64 exec, {sp(S_MASK+2*k)}')
        I(f'ds_read_b32 v{BN+k}, v{BN+k} offset:{HBASE}')
    if F1:
        I('s_mov_b64 exec, -1')
        I('s_waitcnt lgkmcnt(4)')
        I(f'buffer_store_dwordx4 v[112:115], v{X}, {sr4(S_NTS)}, 0 offen' + SC)
    if SRCL == 1:
        I(f's_waitcnt vmcnt({6 + DL + TCH + T1})')
        for k in range(4):
            I(f'v_lshl_or_b32 v{WD+k}, v{68+k}, 3, v{WD+k}')
            if BANDS:
                I(f'v_lshrrev_b32 v{68+k}, 11, v{68+k}')
                I(f'v_lshl_or_b32 v{WD+k}, v{68+k}, 23, v{WD+k}')
    if SRCL < 2:
        I(f's_waitcnt vmcnt({2 + DL + TCH + T1})')
    for k in range(4):
        I(f's_mov_b64 exec, {sp(S_MASK+2*k)}')
        if k == 3:
            I('s_cbranch_execz L_B2')
        if SRCL == 2:
            assert LATE and not TCH and not T1
            order_ = [f's{j}' for j in range(NS)] + [f'e{j}' for j in range(NEE)] + ['tag'] * TP + [f's{j}' for j in range(NS, 4)] + [f'e{j}' for j in range(NEE, 4)] + ['tag'] * (1 - TP) + ['nt']
            need_ = max(order_.index(f's{k}'), order_.index(f'e{k}'))
            I(f's_waitcnt vmcnt({len(order_) - 1 - need_}) lgkmcnt({3 - k + 2*k})')
            I(f'v_lshl_or_b32 v{WD+k}, v{68+k}, 3, v{WD+k}')
        else:
            I(f's_waitcnt lgkmcnt({3 - k + 2*k})')
        I(f'v_add_u32 v{RK+k}, v{BN+k}, v{RK+k}')
        I(f'v_add_u32 v{BN+k}, v{RK+k}, v{RK+k}')
        I(f'ds_write_b32 v{RK+k}, v{WD+k} offset:{STGW}')
        I(f'ds_write_b64 v{BN+k}, v[{72+2*k}:{73+2*k}] offset:{STGE}')
    L('L_B2')
    I('s_mov_b64 exec, -1')
    I(f'v_mov_b32 v13, {MISC+8}')
    I(f'ds_read_b32 v13, v13')
    I(f'v_add_u32 v{X+2}, 16384, v{X}')
    I(f'v_lshlrev_b32 v12, 3, v{V_LANE}')
    I('s_waitcnt lgkmcnt(0)')
    I(f'v_readfirstlane_b32 s{S_T}, v13')
    I('s_barrier')
    I(f's_add_u32 s{S_T}, s{S_T}, 127')
    I(f's_and_b32 s{S_RW+2}, s{S_T}, -128')
    I(f's_lshl_b32 s{S_RE+2}, s{S_RW+2}, 1')
    stamp(6)
    if opt('early', 0):
        I(f'ds_read_b64 v[92:93], v12 offset:{HIST}')
        I(f'ds_read_b64 v[94:95], v12 offset:{HIST+512}')
        I(f'v_lshlrev_b32 v60, 4, v{V_LANE}')
        I('s_waitcnt lgkmcnt(0)')
        for k in range(4):
            I(f'v_or_b32 v{120+2*k}, s{S_TAG2}, v{92+k}')
            I(f'v_mov_b32 v{121+2*k}, s{S_TAG}')
        I(f's_cmp_lg_u32 s{S_W}, 0')
        I('s_cbranch_scc1 L_EARLY')
        I(f'buffer_store_dwordx4 v[120:123], v60, {sr4(S_TAB)}, 0 offen' + SC)
        I(f'buffer_store_dwordx4 v[124:127], v60, {sr4(S_TAB)}, 0 offen offset:1024' + SC)
        L('L_EARLY')
    I(f'ds_read_b128 v[64:67], v{X} offset:{STGW}')
    I(f'ds_read_b128 v[68:71], v{X} offset:{STGE}')
    I(f'ds_read_b128 v[72:75], v{X} offset:{STGE+16384}')
    I(f'ds_read_b64 v[92:93], v12 offset:{HIST}')
    I(f'ds_read_b64 v[94:95], v12 offset:{HIST+512}')
    I('s_waitcnt lgkmcnt(4)')
    I(f'buffer_store_dwordx4 v[64:67], v{X}, {sr4(S_RW)}, 0 offen' + SC)
    I(f'v_mov_b32 v62, v{X}')
    I(f'v_mov_b32 v63, v{X+2}')
    I(f's_waitcnt vmcnt({2 + DL}) lgkmcnt(0)')
    I(f'v_readfirstlane_b32 s{S_TAG}, v10')
    I(f's_mov_b32 s{S_T}, 0x40000')
    L('L_TAGP')
    I(f's_cmp_lg_u32 s{S_TAG}, 0')
    I('s_cbranch_scc1 L_TAGD')
    I(f'v_mov_b32 v12, 0')
    I(f'global_load_dword v10, v12, {sp(S_DBG)} sc1')
    I('s_waitcnt vmcnt(0)')
    I(f'v_readfirstlane_b32 s{S_TAG}, v10')
    I(f's_sub_u32 s{S_T}, s{S_T}, 1')
    I('s_cbranch_scc1 L_END')
    I('s_branch L_TAGP')
    L('L_TAGD')
    I(f's_mul_i32 s{S_TAG2}, s{S_TAG}, 0x9e3779b1')
    I(f's_and_b32 s{S_TAG2}, s{S_TAG2}, 0x{TAGM:x}')
    for k in range(4):
        I(f'v_or_b32 v{120+2*k}, s{S_TAG2}, v{92+k}')
        I(f'v_mov_b32 v{121+2*k}, s{S_TAG}')
    pre = opt('pre', 'x').replace('0', '')
    def piece(c):
        if c == 'x':
            zregs()
            zero_range(EXTRA, 16384, X + 2, X)
            fill_desca()
        elif c == 'b':
            phase0b()
        elif c == 'c':
            phase0c()
    for c in pre:
        piece(c)
    I(f'v_lshlrev_b32 v60, 4, v{V_LANE}')
    stamp(7)
    I('s_waitcnt vmcnt(0)')
    I('s_barrier')
    I(f's_cmp_lg_u32 s{S_W}, 0')
    I('s_cbranch_scc1 L_POLL0')
    I(f'buffer_store_dwordx4 v[120:123], v60, {sr4(S_TAB)}, 0 offen' + SC)
    I(f'buffer_store_dwordx4 v[124:127], v60, {sr4(S_TAB)}, 0 offen offset:1024' + SC)
    L('L_POLL0')
    I(f'buffer_store_dwordx4 v[68:71], v62, {sr4(S_RE)}, 0 offen' + SC)
    I(f'buffer_store_dwordx4 v[72:75], v63, {sr4(S_RE)}, 0 offen' + SC)
    stamp(8)
    mid = opt('mid', 'bc').replace('0', '')
    def piece2(c):
        if c == 'f':
            fill_words()
            zregs()
            zero_range(LE, CNT - LE, X + 2, X)
        else:
            piece(c)
    for c in mid:
        piece2(c)
    I(f's_lshl_b32 s{S_T+1}, s3, 3')
    I(f'v_add_u32 v76, s{S_T+1}, v{V_TAB+2}')
    I(f'v_add_u32 v77, {RSTEP*2048}, v76')
    I(f'v_lshrrev_b32 v{V_TAB+2}, 4, v{V_TAB+2}')
    I(f'v_add_u32 v{V_TAB+2}, 0x80000, v{V_TAB+2}')
    I(f'v_add_u32 v{V_TAB+3}, {RSTEP*128}, v{V_TAB+2}')
    I(f's_mul_i32 s{S_TAG3}, s{S_TAG}, 0x85ebca6b')
    I(f's_lshl_b32 s{S_T}, s2, 7')
    I(f's_add_u32 s{S_T}, s{S_T}, 0x80000')
    I(f'v_mov_b32 v60, s{S_T}')
    I(f'v_mov_b32 v62, s{S_TAG}')
    I(f'v_mov_b32 v63, s{S_TAG3}')
    for r in range(2):
        I(f's_mov_b64 {sp(S_MASK+2*r)}, -1')
    I('s_waitcnt vmcnt(0)')
    I('s_barrier')
    stamp(9)
    I(f's_cmp_lg_u32 s{S_W}, 0')
    I('s_cbranch_scc1 L_FLAG2')
    I('s_mov_b64 exec, 1')
    I(f'buffer_store_dwordx2 v[62:63], v60, {sr4(S_EA)}, 0 offen' + SC)
    I('s_mov_b64 exec, -1')
    L('L_FLAG2')
    EP = 1
    for r in range(2):
        I(f'buffer_load_dwordx2 {p(64+2*r)}, v{76+r}, {sr4(S_EA)}, 0 offen' + LSC)
    for c in 'xbcf':
        if c not in pre + mid:
            piece2(c)
    ptr_consts()
    I(f's_mov_b32 s{S_T}, 0x40000')
    I(f's_mov_b32 s{S_T+1}, 0x{TAGM:x}')
    if opt('ps', 0):
        I(f's_sleep {opt("ps", 0)}')
    if EP:
        I('s_branch L_POLLC')
    L('L_POLL')
    for r in range(2):
        I(f's_mov_b64 exec, {sp(S_MASK+2*r)}')
        I(f'buffer_load_dwordx2 {p(64+2*r)}, v{76+r}, {sr4(S_EA)}, 0 offen' + LSC)
    L('L_POLLC')
    for r in range(2):
        I(f's_waitcnt vmcnt({1-r})')
        I(f's_mov_b64 exec, {sp(S_MASK+2*r)}')
        I(f'v_xor_b32 v{V_TAB+r}, s{S_TAG2}, v{64+2*r}')
        I(f'v_xor_b32 v{65+2*r}, s{S_TAG}, v{65+2*r}')
        I(f'v_and_or_b32 v{65+2*r}, v{V_TAB+r}, s{S_T+1}, v{65+2*r}')
        I(f'v_cmp_ne_u32 {sp(S_MASK+2*r)}, 0, v{65+2*r}')
    I(f's_or_b64 {sp(S_T+2)}, {sp(S_MASK)}, {sp(S_MASK+2)}')
    I('s_cbranch_scc0 L_POLLED')
    I(f's_sub_u32 s{S_T}, s{S_T}, 1')
    I('s_cbranch_scc1 L_END')
    if opt('sleep', 0):
        I(f's_sleep {opt("sleep", 0)}')
    I('s_branch L_POLL')
    L('L_POLLED')
    I('s_mov_b64 exec, -1')
    stamp(10)
    def RB(s_): return 64 + 8 * (s_ >> 1)
    def MK(s_): return sp(S_MASK + 2 * s_)
    AD = X
    L('L_PASS')
    I(f'v_add_u32 v{X+10}, s{S_JB}, v{V_CB4}')
    I(f'v_add_u32 v{X+8}, s{S_JB}, v{V_J4}')
    SDW = 'src0_sel:DWORD src1_sel:WORD_1'
    for r in range(2):
        I(f'v_add_u32_sdwa v{X+r}, v{V_TAB+r}, v{X+10} dst_sel:DWORD dst_unused:UNUSED_PAD src0_sel:WORD_0 src1_sel:DWORD')
        I(f'v_cmp_lt_u32_sdwa {MK(2*r)}, v{X+8}, v{V_TAB+r} {SDW}')
        if r:
            I(f'v_add_u32 v{X+r}, {RSTEP*CAP*4}, v{X+r}')
        I(f'v_add_u32 v{96+r}, v{X+r}, v{X+r}')
        I(f's_mov_b64 exec, {MK(2*r)}')
        I(f'buffer_load_dwordx2 {p(RB(2*r)+4)}, v{X+r}, {sr4(S_DST)}, 0 offen' + LSC)
        I('s_mov_b64 exec, -1')
    I(f'v_add_u32 v{X+9}, s{S_WID}, v{X+8}')
    I(f'v_add_u32 v{X+10}, 4, v{X+8}')
    I(f's_cmp_eq_u32 s{S_WID}, 128')
    I(f's_cselect_b32 s{S_T}, 64, 0x10000')
    I(f'v_add_u32 v{X+8}, s{S_T}, v{X+8}')
    for r in range(2):
        I(f'v_cmp_lt_u32_sdwa {MK(4+2*r)}, v{X+8}, v{V_TAB+r} {SDW}')
        I(f'v_cmp_lt_u32_sdwa {MK(2*r+1)}, v{X+10}, v{V_TAB+r} {SDW}')
    I(f'v_add_u32 v{X+8}, 4, v{X+8}')
    for r in range(2):
        I(f's_mov_b64 exec, {MK(4+2*r)}')
        I(f'buffer_load_dwordx2 {p(RB(4+2*r)+4)}, v{X+r}, {sr4(S_DST)}, 0 offen offset:64' + LSC)
    I('s_mov_b64 exec, -1')
    PF3 = opt('pf3', 0)
    if PF3:
        nt_prefetch(60, 49 - PF3, PF3, 63)
    BE = opt('be', 0)
    if BE:
        for r in range(2):
            I(f'buffer_load_dwordx2 {p(100+2*r)}, v{V_TAB+2+r}, {sr4(S_EA)}, 0 offen' + LSC)
    for r in range(2):
        I(f'v_cmp_lt_u32_sdwa {MK(5+2*r)}, v{X+8}, v{V_TAB+r} {SDW}')
    I(f'v_cmp_lt_u32_sdwa vcc, v{X+9}, v{V_TAB} {SDW}')
    I(f'v_cmp_lt_u32_sdwa {sp(S_T)}, v{X+9}, v{V_TAB+1} {SDW}')
    I(f'v_mov_b32 v{X+8}, 4')
    I(f's_or_b64 vcc, vcc, {sp(S_T)}')
    I(f's_cbranch_scc0 L_NOMORE')
    I(f'v_mov_b32 v{X+9}, {MISC}')
    I(f'ds_write_b32 v{X+9}, v{X+8}')
    L('L_NOMORE')
    stamp(11)
    e('    ; count')
    for s_ in range(8):
        if s_ >= 4:
            I(f's_mov_b64 exec, {MK(s_)}')
            I(f's_cbranch_execz L_C{s_}')
        if s_ % 2 == 0:
            I(f's_waitcnt vmcnt({3 + 2 * BE + (1 if PF3 else 0) - s_ // 2})')
        if s_ < 4:
            I(f's_mov_b64 exec, {MK(s_)}')
        I(f'v_lshrrev_b32 v{AD+s_}, 21, v{RB(s_)+4+(s_&1)}')
        if opt('safe', 0):
            I(f'v_and_b32 v{AD+s_}, 0x7fc, v{AD+s_}')
        I(f'ds_add_rtn_u32 v{RB(s_)+6+(s_&1)}, v{AD+s_}, v{X+8} offset:{CNT2}')
        I(f'v_and_b32 v{RB(s_)+4+(s_&1)}, 0x1fff8, v{RB(s_)+4+(s_&1)}')
        if s_ >= 4:
            L(f'L_C{s_}')
    I('s_mov_b64 exec, -1')
    def check2():
        I(f'v_xor_b32 v100, s{S_TAG}, v100')
        I(f'v_xor_b32 v101, s{S_TAG3}, v101')
        I(f'v_xor_b32 v102, s{S_TAG}, v102')
        I(f'v_xor_b32 v103, s{S_TAG3}, v103')
        I('v_or3_b32 v100, v100, v101, v102')
        I('v_or_b32 v100, v100, v103')
        I('v_cmp_ne_u32 vcc, 0, v100')
    def e_loads():
        for hf in range(2):
            for r in range(2):
                I(f's_mov_b64 exec, {MK(4*hf+2*r)}')
                I(f'buffer_load_dwordx4 {vr(RB(4*hf+2*r),4)}, v{96+r}, {sr4(S_SRC)}, 0 offen offset:{128*hf}' + LSC)
        I('s_mov_b64 exec, -1')
    assert not BE
    if BE:
        I('s_waitcnt vmcnt(0)')
        check2()
        I('s_nop 0')
        I('s_cbranch_vccnz L_NOTYET')
        e_loads()
        I(f's_mov_b32 s{S_CNT}, 0')
        I('s_branch L_EDONE')
        L('L_NOTYET')
    for r in range(2):
        I(f'buffer_load_dwordx2 {p(100+2*r)}, v{V_TAB+2+r}, {sr4(S_EA)}, 0 offen' + LSC)
    L('L_EDONE')
    I(f'v_lshlrev_b32 v{X+8}, 2, v{V_LANE}')
    I(f'v_mov_b32 v{X+9}, {MISC}')
    I(f's_mov_b32 s{S_T+2}, 0x1fff8')
    I('s_waitcnt lgkmcnt(0)')
    I('s_barrier')
    stamp(12)
    PFPOS = opt('pfpos', 4)
    def do_pf(late=False):
        if NPF and late == (PFPOS == 4):
            PFN = opt('pfn', 5)
            I(f's_lshr_b32 s{S_T+7}, s2, 3')
            I(f's_lshl_b32 s{S_T+7}, s{S_T+7}, 4')
            I(f's_add_u32 s{S_T+7}, s{S_T+7}, s{S_W}')
            I(f's_mul_i32 s{S_T+7}, s{S_T+7}, {PFN*128}')
            I(f'v_lshlrev_b32 v60, 7, v{V_LANE}')
            I(f'v_add_u32 v60, s{S_T+7}, v60')
            srd_off(S_NTS, S_WSP, S_WSP + 1, '0x%x' % WS_NT, NWG * NB * 256)
            I(f's_mov_b64 exec, 0x{(1 << PFN) - 1:x}')
            I(f'buffer_load_dword v62, v60, {sr4(S_NTS)}, 0 offen' + LSC)
            I('s_mov_b64 exec, -1')
    def poll2():
        I(f's_mov_b32 s{S_T+3}, 0x40000')
        L('L_POLL2')
        I('s_waitcnt vmcnt(0)')
        I(f'v_xor_b32 v100, s{S_TAG}, v100')
        I(f'v_xor_b32 v101, s{S_TAG3}, v101')
        I(f'v_xor_b32 v102, s{S_TAG}, v102')
        I(f'v_xor_b32 v103, s{S_TAG3}, v103')
        I('v_or3_b32 v100, v100, v101, v102')
        I('v_or_b32 v100, v100, v103')
        I('v_cmp_ne_u32 vcc, 0, v100')
        I(f's_sub_u32 s{S_T+3}, s{S_T+3}, 1')
        I('s_cbranch_scc1 L_END')
        I('s_cbranch_vccz L_POLLED2')
        for r in range(2):
            I(f'buffer_load_dwordx2 {p(100+2*r)}, v{V_TAB+2+r}, {sr4(S_EA)}, 0 offen' + LSC)
        I('s_branch L_POLL2')
        L('L_POLLED2')
        for hf in range(2):
            for r in range(2):
                I(f's_mov_b64 exec, {MK(4*hf+2*r)}')
                I(f'buffer_load_dwordx4 {vr(RB(4*hf+2*r),4)}, v{96+r}, {sr4(S_SRC)}, 0 offen offset:{128*hf}' + LSC)
        I('s_mov_b64 exec, -1')
        L('L_HAVEE')
    B2 = opt('b2', 2)
    if B2 == 0:
        poll2()
        do_pf()
    NG, GS, MI = X + 10, X + 11, X + 12
    if opt('tprio', 1):
        I(f's_cmp_lg_u32 s{S_W}, 15')
        I('s_cbranch_scc1 L_TP')
        I('s_setprio 2')
        L('L_TP')
    I(f'v_lshlrev_b32 v98, 5, v{V_LANE}')
    I(f'ds_read_b128 v[104:107], v98 offset:{CNT2}')
    I(f'ds_read_b128 v[108:111], v98 offset:{CNT2+16}')
    I(f'ds_read_b32 v{X+9}, v{X+9}')
    I('s_waitcnt lgkmcnt(1)')
    I(f'v_add3_u32 v{NG}, v104, v105, v106')
    I(f'v_add3_u32 v{GS}, v107, v108, v109')
    I(f'v_add3_u32 v{NG}, v{NG}, v110, v111')
    I(f'v_add3_u32 v{NG}, v{NG}, v{GS}, 28')
    I(f'v_and_b32 v{NG}, 0xffffffe0, v{NG}')
    I(f'v_mov_b32 v{GS}, v{NG}')
    wave_scan(GS)
    I(f'v_readlane_b32 s{S_T}, v{GS}, 63')
    I(f'v_sub_u32 v{GS}, v{GS}, v{NG}')
    if B2 == 1:
        poll2()
        do_pf()
    I('s_waitcnt lgkmcnt(0)')
    I(f'v_readfirstlane_b32 s{S_MORE}, v{X+9}')
    I(f's_lshr_b32 s{S_T}, s{S_T}, 5')
    I(f's_cmp_eq_u32 s{S_WID}, 128')
    I(f's_cselect_b32 s{S_T+1}, {MAXG}, -1')
    I(f's_cmp_gt_u32 s{S_T}, s{S_T+1}')
    I('s_cbranch_scc1 L_OVERFLOW')
    def place(tag):
        if PROF == 5:
            stamp(19)
        if TFLAG:
            I(f'v_mov_b32 v60, {MISC+16}')
            I(f's_mov_b32 s{S_T+1}, 0x1000000')
            L('L_TWAIT')
            I(f's_sub_u32 s{S_T+1}, s{S_T+1}, 1')
            I('s_cbranch_scc1 L_END')
            I('ds_read_b32 v61, v60')
            I('s_waitcnt lgkmcnt(0)')
            I(f'v_readfirstlane_b32 s{S_T}, v61')
            I(f's_cmp_eq_u32 s{S_T}, 0')
            I('s_cbranch_scc1 L_TWAIT')
        else:
            I('s_waitcnt lgkmcnt(0)')
            I('s_barrier')
        if PROF == 5:
            stamp(20)
        for s_ in range(8):
            I(f's_mov_b64 exec, {MK(s_)}')
            I(f'ds_read_b32 v{AD+s_}, v{AD+s_} offset:{BASE2}')
        if B2 == 3:
            I('s_mov_b64 exec, -1')
            poll2()
            do_pf()
        for s_ in range(8):
            wd, rk, ta = RB(s_) + 4 + (s_ & 1), RB(s_) + 6 + (s_ & 1), 112 + 2 * s_
            I(f's_mov_b64 exec, {MK(s_)}')
            if s_ >= 4:
                I(f's_cbranch_execz L_P{tag}{s_}')
            I(f's_waitcnt lgkmcnt({7 if s_ <= 4 else 11 - s_})')
            I(f'v_add_u32 v{AD+s_}, v{AD+s_}, v{rk}')
            I(f'v_add_u32 v{rk}, v{AD+s_}, v{AD+s_}')
            I(f'ds_write_b32 v{AD+s_}, v{wd} offset:{LS}')
            if s_ >= 4:
                L(f'L_P{tag}{s_}')
        if EK:
            I('s_mov_b64 exec, 1')
            I(f'v_mov_b32 v60, {MISC+24}')
            I(f'v_mov_b32 v61, 1')
            I('ds_add_u32 v60, v61')
        if PROF == 5:
            stamp(21)
        if PFPOS == 4:
            I('s_mov_b64 exec, -1')
            do_pf(True)
        for s_ in range(8):
            rk, ee = RB(s_) + 6 + (s_ & 1), RB(s_) + 2 * (s_ & 1)
            I(f's_mov_b64 exec, {MK(s_)}')
            if s_ >= 4:
                I(f's_cbranch_execz L_Q{tag}{s_}')
            if s_ % 2 == 0:
                I(f's_waitcnt vmcnt({3 - s_ // 2 + NPF})')
            I(f'ds_write_b64 v{rk}, {p(ee)} offset:{LE}')
            if s_ >= 4:
                L(f'L_Q{tag}{s_}')
        I('s_mov_b64 exec, -1')
    SWAP = opt('swap', 0)
    if SWAP:
        I(f's_bitcmp1_b32 s{S_W}, {SWAP}')
        I('s_cbranch_scc0 L_DFIRST')
        place('a')
        L('L_DFIRST')
    SB_, SR_, SG0 = S_T + 4, S_T + 5, S_T + 6
    I(f's_add_u32 s{S_T}, s{S_T}, 3')
    I(f's_lshr_b32 s{S_T}, s{S_T}, 2')
    I(f's_lshr_b32 s{SB_}, s{S_T}, 4')
    I(f's_and_b32 s{SR_}, s{S_T}, 15')
    I(f's_add_u32 s{S_T+1}, s{SB_}, 1')
    I(f'v_cvt_f32_u32 v{MI}, s{S_T+1}')
    I(f'v_cvt_f32_u32 v{MI+1}, s{SB_}')
    I(f'v_rcp_f32 v{MI}, v{MI}')
    I(f'v_rcp_f32 v{MI+1}, v{MI+1}')
    I(f's_mul_i32 s{SG0}, s{SR_}, s{S_T+1}')
    I(f's_lshl_b32 s{SG0}, s{SG0}, 2')
    I(f'v_lshrrev_b32 v{GS}, 5, v{GS}')
    I(f'v_mul_f32 v{MI}, 0x47800000, v{MI}')
    I(f'v_mul_f32 v{MI+1}, 0x47800000, v{MI+1}')
    I(f'v_lshrrev_b32 v{NG}, 5, v{NG}')
    I(f'v_cvt_u32_f32 v{MI}, v{MI}')
    I(f'v_cvt_u32_f32 v{MI+1}, v{MI+1}')
    I(f's_cmp_lt_u32 s{S_W}, s{SR_}')
    I(f's_cselect_b32 s{S_L}, s{S_T+1}, s{SB_}')
    I(f'v_add_u32 v{MI}, 2, v{MI}')
    I(f'v_add_u32 v{MI+1}, 2, v{MI+1}')
    I(f's_min_u32 s{S_T}, s{S_W}, s{SR_}')
    I(f's_mul_i32 s{S_T+3}, s{S_W}, s{SB_}')
    I(f's_add_u32 s{S_T+3}, s{S_T+3}, s{S_T}')
    I(f's_sub_u32 s{S_T+1}, 0, s{S_T+1}')
    I(f's_sub_u32 s{SB_}, 0, s{SB_}')
    I(f's_lshl_b32 s{SR_}, s{SR_}, 2')
    D0, D1, D2, D3, NR = 60, 61, 62, 63, 98
    I(f's_cmp_lg_u32 s{S_W}, 15')
    I('s_cbranch_scc1 L_NOTAB')
    I(f'v_subrev_u32 v{D1}, s{SG0}, v{GS}')
    I(f'v_cmp_gt_u32 vcc, s{SG0}, v{GS}')
    I(f'v_mul_u32_u24 v{D2}, v{GS}, v{MI}')
    I(f'v_mul_u32_u24 v{D3}, v{D1}, v{MI+1}')
    I(f'v_lshrrev_b32 v{D2}, 16, v{D2}')
    I(f'v_lshrrev_b32 v{D3}, 16, v{D3}')
    I(f'v_mad_i32_i24 v{D0}, v{D2}, s{S_T+1}, v{GS}')
    I(f'v_mad_i32_i24 v{D1}, v{D3}, s{SB_}, v{D1}')
    I(f'v_mov_b32 v{D2}, s{S_T+1}')
    I(f'v_mov_b32 v{D3}, s{SB_}')
    I(f'v_cndmask_b32 v{D0}, v{D1}, v{D0}, vcc')
    I(f'v_cndmask_b32 v{D2}, v{D3}, v{D2}, vcc')
    I('v_add_u32 v105, v105, v104')
    I(f'v_add_u32 v{D2}, v{D2}, v{D0}')
    I('v_add_u32 v106, v106, v105')
    I(f'v_sub_u32 v{D2}, 0, v{D2}')
    I('v_add_u32 v107, v107, v106')
    I(f'v_cmp_ne_u32 vcc, 0, v{D0}')
    I('v_add_u32 v108, v108, v107')
    I(f'v_cmp_lt_u32 {sp(S_EX)}, v{D2}, v{NG}')
    I('v_add_u32 v109, v109, v108')
    I(f's_and_b64 vcc, vcc, {sp(S_EX)}')
    I('v_add_u32 v110, v110, v109')
    I(f'v_lshlrev_b32 v{D2}, 5, v{D2}')
    I('v_add_u32 v111, v111, v110')
    I(f'v_cndmask_b32 v{D2}, 0, v{D2}, vcc' if ROT else f'v_mov_b32 v{D2}, 0')
    I(f'v_add_u32 v{D1}, {opt("rnd", 20)}, v111')
    I(f'v_sub_u32 v{D1}, v{D1}, v{D2} clamp')
    for k in range(8):
        I(f'v_sub_u32 v{112+k}, v{D1}, v{104+k}')
    I(f'v_min3_u32 v112, v112, v113, v114')
    I(f'v_min3_u32 v115, v115, v116, v117')
    I(f'v_min3_u32 v112, v112, v118, v119')
    I(f'v_min3_u32 v112, v112, v115, v{D1}')
    I(f'v_sub_u32 v{D1}, v{D1}, v112')
    I(f'v_lshlrev_b32 v{D3}, 5, v{GS}')
    I(f'v_sub_u32 v112, 0, v{D1}')
    for k in range(1, 8):
        I(f'v_sub_u32 v{112+k}, v{103+k}, v{D1}')
    for k in range(8):
        I(f'v_add_u32 v{120+k}, v{112+k}, v111')
    for k in range(8):
        I(f'v_min_u32 v{112+k}, v{112+k}, v{120+k}')
    for k in range(8):
        I(f'v_add_u32 v{112+k}, v{112+k}, v{D3}')
    I(f'v_lshlrev_b32 v{D0}, 5, v{V_LANE}')
    I(f's_mov_b32 exec_hi, 0x1ffff')
    for q in range(2):
        I(f'ds_write_b128 v{D0}, v[{112+4*q}:{115+4*q}] offset:{BASE2+16*q}')
    if TFLAG:
        I(f'v_mov_b32 v{D1}, {MISC+16}')
        I(f'ds_write_b32 v{D1}, v{D1}')
    I('s_mov_b64 exec, -1')
    if opt('tprio', 1):
        I('s_setprio 0')
    L('L_NOTAB')
    I(f'v_lshlrev_b32 v{NR}, 8, v{V_LANE}')
    I(f'v_add_u32 v{NR+1}, {ACCN}, v{NR}')
    I(f's_mov_b32 s{S_T}, s{S_W}')
    L('L_DLOOP')
    I(f'v_cmp_lt_u32 vcc, s{S_T}, v{NG}')
    I('s_and_b64 exec, exec, vcc')
    I('s_cbranch_execz L_DEND')
    I(f'v_add_u32 v{D0}, s{S_T}, v{GS}')
    I(f'v_subrev_u32 v{D1}, s{SG0}, v{D0}')
    I(f'v_cmp_gt_u32 vcc, s{SG0}, v{D0}')
    I(f'v_mul_u32_u24 v{D2}, v{D0}, v{MI}')
    I(f'v_mul_u32_u24 v{D3}, v{D1}, v{MI+1}')
    I(f'v_lshrrev_b32 v{D2}, 16, v{D2}')
    I(f'v_lshrrev_b32 v{D3}, 16, v{D3}')
    I(f'v_mad_i32_i24 v{D0}, v{D2}, s{S_T+1}, v{D0}')
    I(f'v_mad_i32_i24 v{D1}, v{D3}, s{SB_}, v{D1}')
    I(f'v_add_u32 v{D3}, s{SR_}, v{D3}')
    I(f'v_cndmask_b32 v{D0}, v{D1}, v{D0}, vcc')
    I(f'v_cndmask_b32 v{D2}, v{D3}, v{D2}, vcc')
    I(f'v_cmp_le_u32 vcc, s{S_T}, v{D0}')
    I(f'v_lshl_add_u32 v{D0}, v{D0}, 6, v{D2}')
    I(f'v_lshlrev_b32 v{D1}, 8, v{D2}')
    I(f'v_lshlrev_b32 v{D0}, 2, v{D0}')
    I(f'v_add_u32 v{D1}, {EXTRA}, v{D1}')
    I(f'v_add_u32 v{D3}, {DESCA}, v{D0}')
    I(f'v_cndmask_b32 v{D1}, v{D1}, v{NR+1}, vcc')
    I(f'ds_write_b32 v{D0}, v{NR} offset:{DESCP}')
    I(f'ds_write_b32 v{D3}, v{D1}')
    I(f's_add_u32 s{S_T+7}, s{S_T}, 1')
    I(f'v_cmp_eq_u32 vcc, s{S_T+7}, v{NG}')
    I(f's_and_saveexec_b64 {sp(S_EX)}, vcc')
    I(f'ds_write_b32 v{X+8}, v{D2} offset:{NINFO+256}')
    I(f's_mov_b64 exec, {sp(S_EX)}')
    I(f's_cmp_lg_u32 s{S_T}, 0')
    I('s_cbranch_scc1 L_DNF')
    I(f'ds_write_b32 v{X+8}, v{D2} offset:{NINFO}')
    L('L_DNF')
    I(f's_add_u32 s{S_T}, s{S_T}, 16')
    I('s_branch L_DLOOP')
    L('L_DEND')
    I('s_mov_b64 exec, -1')
    I(f's_lshl_b32 s{S_T}, s{S_T+3}, 7')
    I(f's_lshl_b32 s{S_T+1}, s{S_L}, 5')
    I(f'v_mov_b32 v{D0}, s{S_T}')
    I(f'v_mad_u32_u24 v{V_PS0}, v{V_PS1}, s{S_T+1}, v{D0}')
    I(f'v_add_u32 v{D0}, v{D0}, v{D0}')
    I(f'v_add_u32 v{V_PS1}, s{S_T+1}, v{V_PS0}')
    I(f'v_add_u32 v{V_PE}, v{V_PE}, v{D0}')
    I(f's_lshl_b32 s{S_T+1}, s{S_L}, 6')
    I(f'v_mad_u32_u24 v{V_PE}, v{V_VAP}, s{S_T+1}, v{V_PE}')
    if opt('safe', 0):
        I(f's_min_u32 s{S_L}, s{S_L}, 9')
        I(f's_mov_b32 s{S_MORE}, 0')
    I(f's_mov_b32 s{S_CNT}, s{S_L}')
    if B2 == 2:
        poll2()
        do_pf()
    if SWAP:
        I(f's_bitcmp1_b32 s{S_W}, {SWAP}')
        I('s_cbranch_scc1 L_PDONE')
    place('b')
    L('L_PDONE')
    stamp(13)
    if EK:
        e('    ; the older waves are done early: they ask for their first rows as soon as every word is placed')
        I(f's_cmp_ge_u32 s{S_W}, {EK}')
        I('s_cbranch_scc1 L_NOEARLY')
        I(f's_cmp_eq_u32 s{S_L}, 0')
        I('s_cbranch_scc1 L_NOEARLY')
        I(f'v_mov_b32 v61, {MISC+24}')
        I(f's_mov_b32 s{S_T+1}, 0x1000000')
        L('L_WWAIT')
        I(f's_sub_u32 s{S_T+1}, s{S_T+1}, 1')
        I('s_cbranch_scc1 L_END')
        I('ds_read_b32 v63, v61')
        I('s_waitcnt lgkmcnt(0)')
        I(f'v_readfirstlane_b32 s{S_T}, v63')
        I(f's_cmp_lt_u32 s{S_T}, 16')
        I('s_cbranch_scc1 L_WWAIT')
        lge = Lg()
        s_reads(lge, 0)
        lge.need('S0', 'S1', 'S2', 'S3')
        s_safe()
        for n in range(EN):
            for i in range(16):
                I(gload(n, i))
        L('L_NOEARLY')
    I('s_waitcnt lgkmcnt(0)')
    I('s_barrier')
    stamp(14)
    I(f's_cmp_eq_u32 s{S_L}, 0')
    I('s_cbranch_scc1 L_FOLD')
    lg = Lg()
    FP = opt('fp', 0)
    if FP:
        for lvl in (3, 2, 1):
            I(f's_cmp_lt_u32 s{S_W}, {4 * (4 - lvl)}')
            I(f's_cbranch_scc0 L_FP{lvl}')
            I(f's_setprio {lvl}')
            I('s_branch L_FPD')
            L(f'L_FP{lvl}')
        L('L_FPD')
    if EK:
        I(f's_cmp_lt_u32 s{S_W}, {EK}')
        I('s_cbranch_scc1 L_HAVEG')
    s_reads(lg, 0)
    lg.need('S0', 'S1', 'S2', 'S3')
    s_safe()
    for n in range(2):
        if n == EN:
            L('L_HAVEG')
        for i in range(16):
            I(gload(n, i))
    if EN == 2:
        L('L_HAVEG')
    lg.op('dP', f'ds_read_b64 {p(V_VAP)}, v{V_PD}')
    lg.op('dA', f'ds_read_b64 {p(V_VAA[0])}, v{V_PD} offset:{DESCA-DESCP}')
    lg.op('e', f'ds_read_b64 {p(A5)}, v{V_PE}')
    s_reads(lg, 1)
    I(f'v_mov_b32 v{V_C8P}, v{V_CH8}')
    I(f'v_mov_b32 v{V_C8P+1}, v{V_CH8}')
    I(f'v_mov_b32 v{V_CPP}, v{V_CHP}')
    I(f'v_mov_b32 v{V_CPP+1}, v{V_CHP}')
    if M8:
        I(f'v_mov_b32 v{V_SCP}, 0x{f2u(2.0**KH):x}')
        I(f'v_mov_b32 v{V_SCP+1}, 0x{f2u(2.0**KH):x}')
    I(f's_mov_b32 s{S_BP0}, 64')
    I(f's_mov_b32 s{S_BP0+1}, 64')
    I(f's_mov_b32 s{S_BP1}, 128')
    I(f's_mov_b32 s{S_BP1+1}, 512')
    lg.need('dP', 'dA')
    va_add(V_VAP, V_VAA[0])
    lg.op('P0a', f'ds_read_b32 v{B5[0]+2}, v{V_VAP}')
    lg.op('P0b', f'ds_read_b32 v{B5[0]+3}, v{V_VAP+1}')
    lg.op('P1a', f'ds_read_b32 v{B5[1]+2}, v{V_VAP} offset:4')
    lg.op('P1b', f'ds_read_b32 v{B5[1]+3}, v{V_VAP+1} offset:4')
    I(f's_cmp_eq_u32 s{S_CNT}, 1')
    I(f's_cselect_b64 {sp(S_LDX)}, 0, {LDXV}')
    I('s_waitcnt lgkmcnt(0)')
    lg.q = []
    if opt('prio', 3):
        I('s_setprio 3')
    stamp(15)
    rstamp(28)
    half(lg, 0, 0, 0, False)
    if PROF == 4:
        stamp(19)
        lg.q = []
    state0 = list(lg.q)
    def step(par, uo):
        prio(f'm{par}', 1)
        half(lg, 1, par, uo)
        if PROF == 4:
            I('s_memtime s[98:99]')
            I(f's_sub_u32 s92, s{S_L}, s{S_CNT}')
            I(f's_add_u32 m0, s92, 20')
            I('s_waitcnt lgkmcnt(0)')
            I(f'v_writelane_b32 v{V_PROF}, s98, m0')
        I(f's_sub_u32 s{S_CNT}, s{S_CNT}, 1')
        I(f's_cmp_eq_u32 s{S_CNT}, 0')
        I(f's_cbranch_scc1 L_FIN{par}')
        I(f's_cmp_eq_u32 s{S_CNT}, 1')
        I(f's_cselect_b64 {sp(S_LDX)}, 0, {LDXV}')
        prio(f'{par}')
        half(lg, 0, par ^ 1, uo + 1)
    def loop_body():
        step(0, 0)
        step(1, 1)
        I(f'v_lshl_add_u64 {p(V_PS0)}, {p(V_PS0)}, 0, {sp(S_BP0)}')
        I(f'v_lshl_add_u64 {p(V_PE)}, {p(V_PE)}, 0, {sp(S_BP1)}')
        I('s_branch L_LOOP')
    mark = len(out)
    loop_body()
    del out[mark:]
    qb = list(lg.q)
    n = min(len(qb), len(state0))
    assert PROF == 4 or qb[len(qb)-n:] == state0[len(state0)-n:], (state0, qb)
    lg.q = list(qb if len(qb) >= len(state0) else state0)
    e('.p2align 3')
    L('L_LOOP')
    mark = len(out)
    loop_body()
    drop = opt('drop', '')
    if drop:
        body = out[mark:]
        keep = []
        for l in body:
            t = l.strip()
            if 'v' in drop and (t.startswith('buffer_load') or t.startswith('s_mov_b64 exec') or 'vmcnt' in t):
                continue
            if 'l' in drop and (t.startswith('ds_') or 'lgkmcnt' in t):
                continue
            if 'm' in drop and t.startswith('v_mfma'):
                continue
            if 'n' in drop and t.startswith('s_nop'):
                continue
            keep.append(l)
        out[mark:] = keep
    assert lg.q == qb, (lg.q, qb)
    print('loop entry queue', state0, 'back edge queue', qb, file=sys.stderr)
    for pr in range(2):
        L(f'L_FIN{pr}')
        if M8:
            I(f'v_pk_mul_f32 {p(V_T01N)}, {p(V_T01N)}, {p(V_T23D)}')
            I(f'v_pk_mul_f32 {p(V_T23D)}, {p(V_T01D)}, {p(V_T23D)}')
            I(f'v_pk_fma_f32 {p(V_T01N)}, {p(V_T23N)}, {p(V_T01D)}, {p(V_T01N)}')
            I(f'v_rcp_f32 v{V_T23D}, v{V_T23D}')
            I(f'v_rcp_f32 v{V_T23D+1}, v{V_T23D+1}')
            I('s_waitcnt lgkmcnt(0)')
            I(f'v_pk_fma_f32 {p(V_MB)}, {p(V_T01N)}, {p(V_T23D)}, {p(V_MB)}')
        else:
            for r_ in (V_T01D, V_T01D + 1, V_T23D, V_T23D + 1):
                I(f'v_rcp_f32 v{r_}, v{r_}')
            I('s_waitcnt lgkmcnt(0)')
            I(f'v_pk_fma_f32 {p(V_MB)}, {p(V_T01N)}, {p(V_T01D)}, {p(V_MB)}')
            I(f'v_pk_fma_f32 {p(V_MB)}, {p(V_T23N)}, {p(V_T23D)}, {p(V_MB)}')
        acc_write(Lg(), V_VAA[pr])
        if pr == 0:
            I('s_branch L_FOLD')
    L('L_FOLD')
    stamp(16)
    FL = opt('fl', 0)
    I(f'v_lshrrev_b32 v{X}, 4, v{V_TID}')
    I(f'v_and_b32 v{X+1}, 15, v{V_TID}')
    if FL:
        I(f'v_lshlrev_b32 v{X+6}, 3, v{X+1}')
        I(f'v_lshrrev_b32 v{X+2}, 3, v{X+1}')
        I(f'v_and_b32 v{X+1}, 7, v{X+1}')
        I(f'v_lshlrev_b32 v{X+1}, 5, v{X+1}')
        I(f'v_lshl_add_u32 v{X+1}, v{X+2}, 2, v{X+1}')
    else:
        I(f'v_lshlrev_b32 v{X+6}, 2, v{X+1}')
        I(f'v_lshlrev_b32 v{X+1}, 4, v{X+1}')
    I(f'v_lshl_add_u32 v{X+2}, v{X}, 8, v{X+1}')
    I(f'v_add_u32 v{X+2}, {ACCN}, v{X+2}')
    I(f'v_add_u32 v{X+1}, {EXTRA}, v{X+1}')
    def rd4(dst, ad):
        if FL:
            I(f'ds_read2_b32 v[{dst}:{dst+1}], v{ad} offset0:0 offset1:2')
            I(f'ds_read2_b32 v[{dst+2}:{dst+3}], v{ad} offset0:4 offset1:6')
        else:
            I(f'ds_read_b128 v[{dst}:{dst+3}], v{ad}')
    I(f'v_lshlrev_b32 v{X+3}, 2, v{X}')
    I(f's_mul_i32 s{S_T+4}, s3, {NB*128}')
    I(f'v_lshl_add_u32 v{X+6}, v{X}, 7, v{X+6}')
    I(f'v_add_u32 v{X+6}, s{S_T+4}, v{X+6}')
    I(f'v_mov_b32 v{X+7}, 0')
    I(f'ds_read_b32 v{X+4}, v{X+3} offset:{NINFO}')
    I(f'ds_read_b32 v{X+5}, v{X+3} offset:{NINFO+256}')
    I(f's_mov_b32 s{S_T+2}, 0x{f2u(2.0**-(SV+KH)):x}')
    I(f's_mov_b32 s{S_T+3}, 0x{f2u(-LOG2E * 2.0**-(SV+KH)):x}')
    I(f'v_cmp_gt_u32 vcc, {NB*16}, v{V_TID}')
    I('s_waitcnt vmcnt(0) lgkmcnt(0)')
    I('s_barrier')
    stamp(17)
    rstamp(29)
    if PROF:
        I(f'v_writelane_b32 v{V_PROF}, s{S_L}, 27')
    I(f's_and_saveexec_b64 {sp(S_EX)}, vcc')
    I('s_cbranch_execz L_FDONE')
    rd4(64, X + 2)
    I(f's_mov_b64 {sp(S_T)}, exec')
    L('L_FLOOP')
    I(f'v_cmp_lt_u32 vcc, v{X+4}, v{X+5}')
    I('s_and_b64 exec, exec, vcc')
    I('s_cbranch_execz L_FLEND')
    I(f'v_add_u32 v{X+4}, 1, v{X+4}')
    I(f'v_lshl_add_u32 v{X+7}, v{X+4}, 8, v{X+1}')
    rd4(72, X + 7)
    I('s_waitcnt lgkmcnt(0)')
    for k in range(4):
        I(f'v_add_f32 v{64+k}, v{64+k}, v{72+k}')
    I('s_branch L_FLOOP')
    L('L_FLEND')
    I(f's_mov_b64 exec, {sp(S_T)}')
    I('s_waitcnt lgkmcnt(0)')
    I(f's_cmp_lg_u32 s{S_MORE}, 0')
    I('s_cbranch_scc1 L_WB')
    for k in range(4):
        I(f'v_mul_f32 v{72+k}, s{S_T+3}, v{64+k}')
    for k in range(4):
        I(f'v_exp_f32 v{72+k}, v{72+k}')
    for k in range(4):
        I(f'v_mul_f32 v{64+k}, s{S_T+2}, v{64+k}')
    for k in range(4):
        I(f'v_add_f32 v{72+k}, 1.0, v{72+k}')
    for k in range(4):
        I(f'v_rcp_f32 v{72+k}, v{72+k}')
    I('s_nop 0')
    for k in range(4):
        I(f'v_mul_f32 v{64+k}, v{64+k}, v{72+k}')
    if FL:
        I('v_cvt_pk_bf16_f32 v80, v64, v65')
        I('v_cvt_pk_bf16_f32 v81, v66, v67')
        I(f'buffer_store_dwordx2 v[80:81], v{X+6}, {sr4(S_OUT)}, 0 offen' + OSC)
    else:
        I('v_cvt_pk_bf16_f32 v80, v64, v66')
        I('v_cvt_pk_bf16_f32 v81, v65, v67')
        I(f'buffer_store_dword v80, v{X+6}, {sr4(S_OUT)}, 0 offen' + OSC)
        I(f'buffer_store_dword v81, v{X+6}, {sr4(S_OUT)}, 0 offen offset:64' + OSC)
    stamp(18)
    prof_store()
    diag_end()
    I('s_endpgm')
    L('L_WB')
    if FL:
        I(f'ds_write2_b32 v{X+2}, v64, v65 offset0:0 offset1:2')
        I(f'ds_write2_b32 v{X+2}, v66, v67 offset0:4 offset1:6')
    else:
        I(f'ds_write_b128 v{X+2}, v[64:67]')
    L('L_FDONE')
    I('s_mov_b64 exec, -1')
    I(f's_cmp_eq_u32 s{S_MORE}, 0')
    I('s_cbranch_scc1 L_QUIT')
    I(f's_add_u32 s{S_JB}, s{S_JB}, s{S_WID}')
    I('s_branch L_REFILL')
    L('L_OVERFLOW')
    I(f's_mov_b32 s{S_WID}, 64')
    L('L_REFILL')
    I('s_waitcnt vmcnt(0) lgkmcnt(0)')
    I('s_barrier')
    fill_zero()
    fill_words()
    ptr_consts()
    I('s_waitcnt lgkmcnt(0)')
    I('s_barrier')
    I('s_branch L_PASS')
    L('L_QUIT')
    prof_store()
    L('L_END')
    I('s_endpgm')


DOC = """
"""
hdr = open('standalone__edge_featured_mpnn_egc__graph.s.ref').read().split('\n')
for line in hdr:
    if line.startswith('; Override'):
        break
    e(line)
e(f'; @launch grid=({NWG},1,1) block=(1024,1,1) lds={LDS_BYTES}')
e('.amdgcn_target "amdgcn-amd-amdhsa--gfx950"')
for line in DOC.strip().split('\n'):
    e(line)
e('.text')
gen()
e('.section .rodata,"a"')
e('.p2align 6')
e(f'.amdhsa_kernel {KNAME}')
e('  .amdhsa_next_free_vgpr 128')
e('  .amdhsa_next_free_sgpr 102')
e('  .amdhsa_accum_offset 128')
e('  .amdhsa_group_segment_fixed_size 0')
e('  .amdhsa_kernarg_size 80')
e('  .amdhsa_user_sgpr_count 2')
e('  .amdhsa_user_sgpr_kernarg_segment_ptr 1')
e('  .amdhsa_system_sgpr_workgroup_id_x 1')
e('  .amdhsa_float_denorm_mode_32 3')
e('.end_amdhsa_kernel')
open(sys.argv[1], 'w').write('\n'.join(x for x in out if x is not None) + '\n')
```

```python
import sys, struct

OPT = dict(a.split('=') for a in sys.argv[2:] if '=' in a)
def opt(name, default):
    return type(default)(OPT.get(name, default))

KNAME = 'standalone__edge_featured_mpnn_egc__graph_kernel'
N_NODES = 12500
E_EDGES = 800000
NB = 49
NWG = 256
CH = 3136
WS_RW = 0
WS_RE = 0x00400000
CAP = CH + 256
WS_TAB = 0x00B00000
WS_NT = 0x00C00000
WS_PROF = 0x01000000
M8 = opt('m8', 0)
if M8:
    KH, KEXP, SV = 13, 26, 0
else:
    KH, KEXP, SV = 31, 31, 30
LOG2E = 1.4426950408889634
SC = opt('sc', 'sc1')
SC = (' ' + SC.replace('+', ' ')) if SC != 'none' else ''
LSC = opt('lsc', 'sc1')
LSC = (' ' + LSC.replace('+', ' ')) if LSC != 'none' else ''
GSC = opt('gsc', 'sc1')
GSC = (' ' + GSC.replace('+', ' ')) if GSC != 'none' else ''
ELD = opt('eld', 'none')
ELD = (' ' + ELD.replace('+', ' ')) if ELD != 'none' else ''

def f2u(x):
    return struct.unpack('<I', struct.pack('<f', x))[0]

out = []
def e(s=''):
    out.append(s)
def I(s):
    out.append('    ' + s)
def L(name):
    out.append(name + ':')
def vr(a, n):
    return f'v[{a}:{a+n-1}]' if n > 1 else f'v{a}'
def sr4(a):
    return f's[{a}:{a+3}]'
def sp(a):
    return f's[{a}:{a+1}]'
def p(r):
    return f'v[{r}:{r+1}]'

def srd(d, lo, hi, nrec):
    I(f's_mov_b32 s{d}, s{lo}')
    I(f's_mov_b32 s{d+1}, s{hi}')
    I(f's_mov_b32 s{d+2}, {nrec}')
    I(f's_mov_b32 s{d+3}, 0x00020000')

def srd_off(d, lo, hi, off, nrec):
    I(f's_add_u32 s{d}, s{lo}, {off}')
    I(f's_addc_u32 s{d+1}, s{hi}, 0')
    I(f's_mov_b32 s{d+2}, {nrec}')
    I(f's_mov_b32 s{d+3}, 0x00020000')

def wave_scan(v):
    for sh in (1, 2, 4, 8):
        I('s_nop 1')
        I(f'v_add_u32_dpp v{v}, v{v}, v{v} row_shr:{sh} row_mask:0xf bank_mask:0xf')
    I('s_nop 1')
    I(f'v_add_u32_dpp v{v}, v{v}, v{v} row_bcast:15 row_mask:0xa bank_mask:0xf')
    I('s_nop 1')
    I(f'v_add_u32_dpp v{v}, v{v}, v{v} row_bcast:31 row_mask:0xc bank_mask:0xf')
    I('s_nop 1')

LS = 0
ZR = 18688
LE = 18688
CNT = 56064
MISC = 56320
BASET = 56576
NINFO = 56832
HIST = 57344
HBASE = 58368
DESCP = 59392
CNT2 = 61952
BASE2 = 64000
EXTRA = 67840
DESCA = 84224
PT = 86784
ACCN = 99328
WRAW = 111872
WG_, WV_, WU_ = WRAW, WRAW + 17408, WRAW + 25600
XOWN = WRAW + 33792
LDS_BYTES = XOWN + 8192
STGW = 0
STGE = CAP * 4
NTI = EXTRA
MAXG = 576
assert STGE + CAP * 8 <= CNT

V_TID, V_LANE = 0, 1
V_MA, V_MB = 2, 4
V_VAA = (6, 8)
V_VAP = 10
V_PS0, V_PS1, V_PE, V_PD, V_CH8, V_CHP = 12, 13, 14, 15, 16, 17
V_PROF = 18
V_TAB = 20
V_J4, V_CB4 = 24, 25
V_X = 26
V_T01D, V_T01N, V_T23D, V_T23N = 40, 42, 44, 46
B5 = (48, 52)
A5 = 56
V_TT = (60, 62)
G = (64, 80)
Z = 96
S = 112

S_XS, S_WS, S_DST, S_SRC, S_EA, S_RW, S_RE, S_TAB, S_NTS, S_NTG, S_OUT = 12, 16, 20, 24, 28, 32, 36, 40, 44, 48, 52
S_MASK = 56
S_W, S_L, S_CNT, S_JB, S_WID, S_MORE = 72, 73, 74, 75, 76, 77
S_C = 78
S_EX = 80
S_LDX = 82
S_T = 84
S_WSP = 94
S_DBG = 96
S_TAG, S_TAG2, S_TAG3 = 100, 101, 11
TAGM = 0xC003C003
TAGL = MISC + 64

NT2 = 2 if opt('touch', 0) else 0
LDXV = 0 if opt('noload', 0) else -1
NPFM = opt('npf', 4)
NPF = {0: 0, 1: 7, 2: 7, 3: 2, 4: 1, 5: 1}[NPFM]
NPF1 = NPF if NPFM in (1, 5) else 0
WSB = opt('wsb', 0) << 20
TCH = 4 if opt('touch', 0) else 0
T1 = opt('t1', 0)
OSC = opt('osc', 'nt')
OSC = (' ' + OSC.replace('+', ' ')) if OSC != 'none' else ''
KREP = opt('krep', 1)
assert KREP == 1
CM = opt('cm', 1)
RSTEP = 64 if CM else 8
SRCL = opt('srcl', 1)
TP = opt('tp', 1)
BANDS = opt('bands', 1)
ROT = opt('rot', 1)
TFLAG = opt('tflag', 1)
EK = opt('ek', 8)
EN = opt('en', 1)
PROF = opt('prof', 0)
DIAG = opt('diag', -1)
def diag_end():
    if DIAG < 0:
        return
    I('s_memrealtime s[98:99]')
    I('s_waitcnt lgkmcnt(0)')
    I('v_readlane_b32 s92, v18, 1')
    I('v_readlane_b32 s93, v18, 0')
    I('s_nop 3')
    I('s_sub_u32 s92, s92, s93')
    I('s_lshr_b32 s92, s92, 3' if opt('dcyc', 0) else 's_lshl_b32 s92, s92, 2')
    I('s_mov_b32 s93, s98')
    lbl = f'L_DG{len(out)}'
    L(lbl)
    I('s_memrealtime s[98:99]')
    I('s_waitcnt lgkmcnt(0)')
    I('s_sub_u32 s98, s98, s93')
    I('s_cmp_lt_u32 s98, s92')
    I(f's_cbranch_scc1 {lbl}')
def stamp(i):
    if DIAG >= 0 and i in (opt('dfrom', 0), DIAG):
        I('s_memtime s[98:99]' if opt('dcyc', 0) else 's_memrealtime s[98:99]')
        I('s_waitcnt lgkmcnt(0)')
        if i == opt('dfrom', 0):
            I('v_writelane_b32 v18, s98, 0')
        if i == DIAG:
            I('v_writelane_b32 v18, s98, 1')
    if not PROF:
        return
    I('s_memtime s[98:99]')
    I('s_waitcnt lgkmcnt(0)')
    I(f'v_writelane_b32 v{V_PROF}, s98, {i}')
def rstamp(i):
    if not PROF:
        return
    I('s_memrealtime s[98:99]')
    I('s_waitcnt lgkmcnt(0)')
    I(f'v_writelane_b32 v{V_PROF}, s98, {i}')
def prof_store():
    if not PROF:
        return
    rstamp(31)
    if PROF == 3:
        I(f's_lshl_b32 s98, s2, 4')
        I(f's_add_u32 s98, s98, s{S_W}')
        I(f's_cmp_lg_u32 s98, {opt("pwave", 80)}')
        I('s_cbranch_scc1 L_END')
        I('s_mov_b64 exec, -1')
        I(f'v_readlane_b32 s98, v{V_PROF}, 0')
        I(f'v_readlane_b32 s99, v{V_PROF}, 30')
        I(f'v_readlane_b32 s{S_T}, v{V_PROF}, 31')
        I('s_nop 3')
        I(f's_sub_u32 s{S_T}, s{S_T}, s99')
        I(f's_add_u32 s{S_T}, s{S_T}, s98')
        I(f'v_writelane_b32 v{V_PROF}, s{S_T}, 9')
        I(f'v_subrev_u32 v{V_PROF}, s98, v{V_PROF}')
        I(f'v_mbcnt_lo_u32_b32 v{V_PROF+1}, -1, 0')
        I(f'v_lshlrev_b32 v{V_PROF+1}, 2, v{V_PROF+1}')
        I(f'v_add_u32 v{V_PROF+1}, -8, v{V_PROF+1}')
        I('s_mov_b64 exec, 0x3fff8')
        I(f'global_store_dword v{V_PROF+1}, v{V_PROF}, {sp(S_DBG)}')
        return
    I('s_mov_b64 exec, 0xffffffff')
    I(f's_add_u32 s{S_T}, s{S_WSP}, 0x{WS_PROF:x}')
    I(f's_addc_u32 s{S_T+1}, s{S_WSP+1}, 0')
    I(f'v_mbcnt_lo_u32_b32 v{V_PROF+1}, -1, 0')
    I(f'v_lshlrev_b32 v{V_PROF+1}, 2, v{V_PROF+1}')
    I(f's_lshl_b32 s98, s2, 4')
    I(f's_add_u32 s98, s98, s{S_W}')
    I(f's_lshl_b32 s98, s98, 7')
    I(f'v_add_u32 v{V_PROF+1}, s98, v{V_PROF+1}')
    I(f'global_store_dword v{V_PROF+1}, v{V_PROF}, {sp(S_T)}')

class Lg:
    def __init__(self):
        self.q = []
    def op(self, tag, text):
        I(text)
        self.q.append(tag)
    def need(self, *tags):
        idx = -1
        for t in tags:
            for i in range(len(self.q) - 1, -1, -1):
                if self.q[i] == t:
                    idx = max(idx, i)
                    break
        if idx < 0:
            return
        n = len(self.q) - 1 - idx
        assert n <= 15, (tags, n)
        I(f's_waitcnt lgkmcnt({n})')
        self.q = self.q[idx + 1:]

X = V_X

def zero_range(a, nbytes, zr, ad):
    k = 0
    base = a if a + nbytes <= 65536 + 16384 and a < 65536 - 3 * 16384 else None
    off = 0
    areg = ad
    if a + ((nbytes - 1) // 16384) * 16384 > 65535:
        I(f'v_add_u32 v{X+1}, {a}, v{ad}')
        areg = X + 1
        a0 = 0
    else:
        a0 = a
    while off < nbytes:
        n = min(16384, nbytes - off)
        if n < 16384:
            I(f'v_cmp_gt_u32 vcc, {n // 16}, v{V_TID}')
            I(f's_and_saveexec_b64 {sp(S_EX)}, vcc')
        I(f'ds_write_b128 v{areg}, v[{zr}:{zr+3}] offset:{a0 + off}')
        if n < 16384:
            I(f's_mov_b64 exec, {sp(S_EX)}')
        off += n

def zregs():
    I(f'v_lshlrev_b32 v{X}, 4, v{V_TID}')
    for k in range(4):
        I(f'v_mov_b32 v{X+2+k}, 0')

def fill_desca():
    I(f'v_and_b32 v{X+6}, 15, v{V_TID}')
    I(f'v_lshlrev_b32 v{X+6}, 10, v{X+6}')
    I(f'v_add_u32 v{X+6}, {EXTRA}, v{X+6}')
    for k in range(1, 4):
        I(f'v_add_u32 v{X+6+k}, {256*k}, v{X+6}')
    I(f'v_add_u32 v{X+1}, {DESCA}, v{X}')
    I(f'v_cmp_gt_u32 vcc, 160, v{V_TID}')
    I(f's_and_saveexec_b64 {sp(S_EX)}, vcc')
    I(f'ds_write_b128 v{X+1}, v[{X+6}:{X+9}]')
    I(f's_mov_b64 exec, {sp(S_EX)}')

def fill_zero():
    zregs()
    zero_range(ZR, 65536, X + 2, X)
    fill_desca()

def fill_words():
    I(f'v_lshlrev_b32 v{X}, 4, v{V_TID}')
    I(f'v_and_b32 v{X+2}, 7, v{V_TID}')
    I(f'v_lshlrev_b32 v{X+2}, 5, v{X+2}')
    I(f'v_add_u32 v{X+2}, {N_NODES*8}, v{X+2}')
    for k in range(1, 4):
        I(f'v_add_u32 v{X+2+k}, {8*k}, v{X+2}')
    I(f'ds_write_b128 v{X}, v[{X+2}:{X+5}] offset:{LS}')
    I(f'v_cmp_gt_u32 vcc, 144, v{V_TID}')
    I(f's_and_saveexec_b64 {sp(S_EX)}, vcc')
    I(f'ds_write_b128 v{X}, v[{X+2}:{X+5}] offset:{LS+16384}')
    I(f's_mov_b64 exec, {sp(S_EX)}')

V_C8P, V_CPP, V_SCP = 26, 28, 30
S_BP0, S_BP1 = 88, 90

def tail_ops(n):
    M = (V_MA, V_MB)[n]
    return [f'v_rcp_f32 v{V_T01D}, v{V_T01D}',
            f'v_rcp_f32 v{V_T01D+1}, v{V_T01D+1}',
            f'v_pk_fma_f32 {p(M)}, {p(V_T01N)}, {p(V_T01D)}, {p(M)}']

def acc_write(lg, va):
    lg.op('Wa', f'ds_write2_b32 v{va}, v{V_MA}, v{V_MB} offset0:0 offset1:1')
    lg.op('Wb', f'ds_write2_b32 v{va+1}, v{V_MA+1}, v{V_MB+1} offset0:0 offset1:1')

def acc_read(lg, va):
    lg.op('Ra', f'ds_read_b32 v{V_MA}, v{va}')
    lg.op('Rb', f'ds_read_b32 v{V_MA+1}, v{va+1}')
    lg.op('Rc', f'ds_read_b32 v{V_MB}, v{va} offset:4')
    lg.op('Rd', f'ds_read_b32 v{V_MB+1}, v{va+1} offset:4')

def va_add(vap, vaa):
    I(f'v_lshl_add_u64 {p(vap)}, {p(vap)}, 0, {p(V_CPP)}')
    I(f'v_lshl_add_u64 {p(vaa)}, {p(vaa)}, 0, {p(V_C8P)}')

def gload(n, i):
    return f'buffer_load_dword v{G[n]+i}, v{S + (i & 1) * 8 + (i >> 1)}, {sr4(S_NTG)}, 0 offen offset:{4*n}' + GSC

def s_safe():
    if opt('safe', 0):
        for i in range(16):
            I(f'v_and_b32 v{S+i}, 0x1fff8, v{S+i}')

def s_reads(lg, uo):
    lg.op('S0', f'ds_read_b128 {vr(S,4)}, v{V_PS0} offset:{uo*32}')
    lg.op('S1', f'ds_read_b128 {vr(S+4,4)}, v{V_PS0} offset:{uo*32+16}')
    lg.op('S2', f'ds_read_b128 {vr(S+8,4)}, v{V_PS1} offset:{uo*32}')
    lg.op('S3', f'ds_read_b128 {vr(S+12,4)}, v{V_PS1} offset:{uo*32+16}')

def half(lg, n, par, uo, with_tail=True):
    g = G[n]
    I('s_waitcnt vmcnt(16)')
    if n == 0:
        lg.need('P0a', 'P0b', 'e')
    else:
        lg.need('P1a', 'P1b')
    I(f'v_mfma_f32_32x32x16_bf16 {vr(Z,16)}, {vr(A5,4)}, {vr(B5[n],4)}, {vr(g,16)}')
    t = tail_ops(n ^ 1)
    va_prev, va_cur, va_nxt = V_VAA[par ^ 1], V_VAA[par], V_VAA[par ^ 1]
    sh = [f'v_lshlrev_b32 v{g+i}, 16, v{g+i}' for i in range(16)]
    ex = [f'v_exp_f32 v{Z+i}, v{Z+i} clamp' for i in range(16)]
    l3 = [f'v_pk_mul_f32 {p(V_T01N)}, {p(V_T01N)}, {p(V_T23D)}',
          f'v_pk_mul_f32 {p(V_T23D)}, {p(V_T01D)}, {p(V_T23D)}',
          f'v_pk_fma_f32 {p(V_T01N)}, {p(V_T23N)}, {p(V_T01D)}, {p(V_T01N)}',
          f'v_rcp_f32 v{V_T23D}, v{V_T23D}',
          f'v_rcp_f32 v{V_T23D+1}, v{V_T23D+1}',
          f'v_pk_fma_f32 {p((V_MA, V_MB)[n ^ 1])}, {p(V_T01N)}, {p(V_T23D)}, {p((V_MA, V_MB)[n ^ 1])}']
    if with_tail and not M8:
        for r_ in (V_T01D, V_T01D + 1, V_T23D, V_T23D + 1):
            I(f'v_rcp_f32 v{r_}, v{r_}')
    else:
        I('s_nop 3')
    if n == 1:
        lg.op('e', f'ds_read_b64 {p(A5)}, v{V_PE} offset:{(uo+1)*64}')
        lg.op('P1a', f'ds_read_b32 v{B5[1]+2}, v{V_VAP} offset:4')
        lg.op('P1b', f'ds_read_b32 v{B5[1]+3}, v{V_VAP+1} offset:4')
    else:
        lg.op('dP', f'ds_read_b64 {p(V_VAP)}, v{V_PD} offset:{(uo+1)*256}')
        I('s_nop 1')
    for op in sh[:8]:
        I(op)
    seq = []
    if with_tail and not M8:
        Mp = p((V_MA, V_MB)[n ^ 1])
        seq = ['NEED', f'v_pk_fma_f32 {Mp}, {p(V_T01N)}, {p(V_T01D)}, {Mp}', ex[0],
               f'v_pk_fma_f32 {Mp}, {p(V_T23N)}, {p(V_T23D)}, {Mp}', sh[8], 'ACC', ex[1], sh[9]]
    elif with_tail:
        seq = [l3[0], l3[1], ex[0], l3[2], l3[3], sh[8], l3[4], ex[1], sh[9], 'NEED', l3[5], 'ACC']
    else:
        seq = [ex[0], sh[8], ex[1], sh[9], 'ACC']
    for op in seq:
        if op == 'NEED':
            lg.need('Ra', 'Rb', 'Rc', 'Rd')
        elif op == 'ACC':
            if n == 0:
                if with_tail:
                    acc_write(lg, va_prev)
                acc_read(lg, va_cur)
                lg.op('dA', f'ds_read_b64 {p(va_nxt)}, v{V_PD} offset:{(uo+1)*256 + DESCA - DESCP}')
        else:
            I(op)
    for i in range(2, 12):
        I(ex[i])
        if 8 + i < 16:
            I(sh[8 + i])
        if n == 0 and i == 11:
            lg.need('dP', 'dA')
            va_add(V_VAP, va_nxt)
            lg.op('P0a', f'ds_read_b32 v{B5[0]+2}, v{V_VAP}')
            lg.op('P0b', f'ds_read_b32 v{B5[0]+3}, v{V_VAP+1}')
    for op in ex[12:]:
        I(op)
    for i in range(0, 16, 2):
        if M8:
            I(f'v_pk_fma_f32 {p(Z+i)}, {p(Z+i)}, {p(V_SCP)}, {sp(S_C)}')
        else:
            I(f'v_pk_add_f32 {p(Z+i)}, {p(Z+i)}, {sp(S_C)}')
    def T(k): return f'v_pk_mul_f32 {p(V_TT[k&1])}, {p(g+4*k)}, {p(Z+4*k+2)}'
    def DD(k): return f'v_pk_mul_f32 {p(Z+4*k+2)}, {p(Z+4*k)}, {p(Z+4*k+2)}'
    def NN(k): return f'v_pk_fma_f32 {p(Z+4*k)}, {p(g+4*k+2)}, {p(Z+4*k)}, {p(V_TT[k&1])}'
    for k0 in (0, 2):
        for op in (T(k0), T(k0 + 1), DD(k0), DD(k0 + 1), NN(k0), NN(k0 + 1)):
            I(op)
        if n == 0 and k0 == 0:
            lg.need('S0', 'S1', 'S2', 'S3')
            s_safe()
        I(f's_mov_b64 exec, {sp(S_LDX)}')
        for i in range(4 * k0, 4 * k0 + 8):
            I(gload(n, i))
        I('s_mov_b64 exec, -1')
    if n == 1:
        s_reads(lg, uo + 2)
    I(f'v_pk_mul_f32 {p(V_T01N)}, {p(Z)}, {p(Z+6)}')
    I(f'v_pk_mul_f32 {p(V_T23N)}, {p(Z+8)}, {p(Z+14)}')
    I(f'v_pk_mul_f32 {p(V_T01D)}, {p(Z+2)}, {p(Z+6)}')
    I(f'v_pk_mul_f32 {p(V_T23D)}, {p(Z+10)}, {p(Z+14)}')
    I(f'v_pk_fma_f32 {p(V_T01N)}, {p(Z+4)}, {p(Z+2)}, {p(V_T01N)}')
    I(f'v_pk_fma_f32 {p(V_T23N)}, {p(Z+12)}, {p(Z+10)}, {p(V_T23N)}')

PRIO = {
    3: {(3, 0): 2, (2, 0): 1, (1, 0): 0},
    5: {(2, 0): 2, (1, 0): 1, (1, 1): 0},
    6: {(3, 0): 2, (1, 0): 1, (1, 1): 0},
    7: {(2, 1): 2, (1, 0): 1, (1, 1): 0},
    8: {(4, 0): 2, (2, 0): 1, (1, 1): 0},
    9: {(3, 0): 2, (2, 1): 1, (1, 1): 0},
    10: {(5, 0): 2, (3, 0): 1, (1, 0): 0},
    11: {(5, 0): 2, (3, 0): 1, (1, 1): 0},
    12: {(4, 0): 2, (2, 0): 1, (1, 1): 0},
    13: {(5, 0): 2, (2, 0): 1, (1, 1): 0},
    0: {},
}[opt('prio', 9)]
def prio(tag, phase=0):
    for (t, ph), lvl in PRIO.items():
        if ph != phase:
            continue
        I(f's_cmp_eq_u32 s{S_CNT}, {t}')
        I(f's_cbranch_scc0 L_PR{tag}_{lvl}')
        I(f's_setprio {lvl}')
        L(f'L_PR{tag}_{lvl}')

def split_hilo(a, b, t0, t1):
    I(f'v_cvt_pk_bf16_f32 v{t0}, v{a}, v{b}')
    I(f'v_lshlrev_b32 v{t1}, 16, v{t0}')
    I(f'v_and_b32 v{t0}, 0xffff0000, v{t0}')
    I(f'v_sub_f32 v{a}, v{a}, v{t1}')
    I(f'v_sub_f32 v{b}, v{b}, v{t0}')
    I(f'v_cvt_pk_bf16_f32 v{a}, v{t1}, v{a}')
    I(f'v_cvt_pk_bf16_f32 v{b}, v{t0}, v{b}')

V_AA, V_AB, V_AD, V_AP = 6, 7, 8, 9
SA, SB, SD = 80, 96, 112

def phase0_addr():
    I(f's_and_b32 s{S_T}, s{S_W}, 3')
    I(f's_lshr_b32 s{S_T+1}, s{S_W}, 2')
    I(f'v_and_b32 v12, 15, v{V_LANE}')
    I(f'v_lshrrev_b32 v13, 4, v{V_LANE}')
    I(f'v_bfe_u32 v14, v{V_LANE}, 1, 3')
    I(f'v_xor_b32 v14, v14, v13')
    I(f'v_lshlrev_b32 v14, 4, v14')
    I(f'v_lshl_or_b32 v14, v12, 7, v14')
    I(f's_lshl_b32 s{S_T+2}, s{S_T}, 11')
    I(f'v_add_u32 v{V_AA}, s{S_T+2}, v14')
    I(f'v_bfe_u32 v14, v{V_LANE}, 2, 2')
    I(f'v_lshl_add_u32 v14, v13, 3, v14')
    I(f'v_lshlrev_b32 v14, 7, v14')
    I(f'v_and_b32 v15, 3, v{V_LANE}')
    I(f'v_lshl_add_u32 v14, v15, 3, v14')
    I(f's_lshl_b32 s{S_T+2}, s{S_T+1}, 5')
    I(f'v_or_b32 v14, s{S_T+2}, v14')
    I(f'v_and_b32 v15, 24, v{V_LANE}')
    I(f'v_lshlrev_b32 v15, 2, v15')
    I(f'v_xor_b32 v14, v14, v15')
    I(f'v_add_u32 v{V_AB}, {WRAW}, v14')
    I(f's_lshl_b32 s{S_T+2}, s{S_T}, 12')
    I(f'v_lshlrev_b32 v13, 10, v13')
    I(f'v_add_u32 v13, s{S_T+2}, v13')
    I(f's_lshl_b32 s{S_T+2}, s{S_T+1}, 6')
    I(f's_add_u32 s{S_T+2}, s{S_T+2}, {NTI}')
    I(f'v_lshl_add_u32 v{V_AD}, v12, 2, v13')
    I(f'v_add_u32 v{V_AD}, s{S_T+2}, v{V_AD}')
    I(f's_and_b32 s{S_T+2}, s{S_T+1}, 1')
    I(f's_lshl_b32 s{S_T+2}, s{S_T+2}, 7')
    I(f's_lshr_b32 s{S_T+3}, s{S_T+1}, 1')
    I(f's_lshl_b32 s{S_T+3}, s{S_T+3}, 2')
    I(f's_add_u32 s{S_T+2}, s{S_T+2}, s{S_T+3}')
    I(f's_add_u32 s{S_T+2}, s{S_T+2}, {PT}')
    I(f'v_lshl_add_u32 v{V_AP}, v12, 3, v13')
    I(f'v_add_u32 v{V_AP}, s{S_T+2}, v{V_AP}')

def b_reads(dst, off):
    for sg in range(2):
        for pp in range(2):
            I(f'ds_read_b64_tr_b16 {vr(dst+4*sg+2*pp,2)}, v{V_AB} offset:{off+sg*4096+pp*512}')

def mm16(d, b):
    I(f'v_mfma_f32_16x16x32_bf16 {vr(d,4)}, {vr(SA,4)}, {vr(b,4)}, 0')
    I(f'v_mfma_f32_16x16x32_bf16 {vr(d,4)}, {vr(SA+4,4)}, {vr(b+4,4)}, {vr(d,4)}')

def phase0a():
    I(f'v_add_u32 v12, {XOWN}, v{V_AA}')
    I(f'v_xor_b32 v13, 64, v{V_AA}')
    I(f'v_add_u32 v13, {XOWN}, v13')
    I(f'ds_read_b128 {vr(SA,4)}, v12')
    I(f'ds_read_b128 {vr(SA+4,4)}, v13')
    b_reads(SB, 8192)
    b_reads(SB + 8, WV_ - WRAW)
    I(f's_mov_b32 s{S_T+4}, 0x{f2u(-LOG2E):x}')
    I(f's_mov_b32 s{S_T+6}, 0x7fffffff')
    I(f's_mov_b32 s{S_T+7}, 0xffff0000')
    I('s_waitcnt lgkmcnt(4)')
    mm16(SD, SB)
    I('s_waitcnt lgkmcnt(0)')
    mm16(SD + 4, SB + 8)
    I('s_nop 4')
    for i in range(4):
        I(f'v_mul_f32 v{SD+i}, s{S_T+4}, v{SD+i}')
    for i in range(4):
        I(f'v_and_b32 v{SD+8+i}, s{S_T+6}, v{SD+i}')
    for i in range(4):
        if SV:
            I(f'v_mul_f32 v{SD+4+i}, 0x{f2u(2.0**SV):x}, v{SD+4+i}')
        I(f'v_add_u32 v{SD+8+i}, 0x8000, v{SD+8+i}')
    I(f'v_cvt_pk_bf16_f32 v{SD+4}, v{SD+4}, v{SD+5}')
    I(f'v_cvt_pk_bf16_f32 v{SD+6}, v{SD+6}, v{SD+7}')
    I(f'v_lshrrev_b32 v{SD+5}, 16, v{SD+4}')
    I(f'v_lshrrev_b32 v{SD+7}, 16, v{SD+6}')
    I(f'v_and_b32 v{SD+4}, 0xffff, v{SD+4}')
    I(f'v_and_b32 v{SD+6}, 0xffff, v{SD+6}')
    for i in range(4):
        I(f'v_sub_u32 v{SD+8+i}, v{SD+8+i}, v{SD+4+i} clamp')
    for i in range(4):
        I(f'v_and_or_b32 v{SD+8+i}, v{SD+8+i}, s{S_T+7}, v{SD+4+i}')
    for i in range(4):
        I(f'v_bfi_b32 v{SD+i}, s{S_T+6}, v{SD+8+i}, v{SD+i}')
        I(f'ds_write_b32 v{V_AD}, v{SD+i} offset:{i*256}')

def phase0b():
    b_reads(SB, 0)
    b_reads(SB + 8, WU_ - WRAW)
    I(f's_mov_b32 s{S_T+4}, 0x{f2u(-LOG2E):x}')
    I(f's_mov_b32 s{S_T+5}, 0x{f2u(2.0**(SV+KH)):x}')
    I(f'v_mov_b32 v13, 0x{f2u(-float(KEXP)):x}')
    I(f's_and_b32 s{S_T+6}, s{S_W}, 3')
    I('s_waitcnt lgkmcnt(4)')
    mm16(SD, SB)
    I('s_waitcnt lgkmcnt(0)')
    mm16(SD + 4, SB + 8)
    I('s_nop 4')
    for i in range(4):
        I(f'v_fma_f32 v{SD+i}, v{SD+i}, s{S_T+4}, v13')
    split_hilo(SD, SD + 1, 12, 13)
    split_hilo(SD + 2, SD + 3, 12, 13)
    for i in range(4):
        I(f'v_mul_f32 v{SD+4+i}, s{S_T+5}, v{SD+4+i}')
    I(f's_cmp_eq_u32 s{S_T+6}, 3')
    I(f's_cselect_b64 exec, 0xffff, -1')
    I(f'ds_write_b32 v{V_AP}, v{SD}')
    I(f'ds_write_b32 v{V_AP}, v{SD+4} offset:{ACCN-PT}')
    I(f's_cselect_b64 exec, 0, -1')
    for i in range(1, 4):
        I(f'ds_write_b32 v{V_AP}, v{SD+i} offset:{i*256}')
        I(f'ds_write_b32 v{V_AP}, v{SD+4+i} offset:{ACCN-PT+i*256}')
    I('s_mov_b64 exec, -1')

def phase0c():
    I(f'v_bfe_u32 v13, v{V_LANE}, 2, 2')
    I(f'v_lshlrev_b32 v13, 7, v13')
    I(f'v_bfe_u32 v15, v{V_LANE}, 4, 1')
    I(f'v_lshl_add_u32 v13, v15, 5, v13')
    I(f'v_and_b32 v15, 3, v{V_LANE}')
    I(f'v_lshl_add_u32 v13, v15, 3, v13')
    I(f'v_and_b32 v15, 8, v{V_LANE}')
    I(f'v_lshlrev_b32 v15, 2, v15')
    I(f'v_xor_b32 v13, v13, v15')
    I(f'v_add_u32 v13, {WG_ + 16384}, v13')
    I(f'ds_read_b64_tr_b16 v[96:97], v13')
    I(f'ds_read_b64_tr_b16 v[98:99], v13 offset:64')
    I(f's_mov_b32 s{S_T+4}, 0x{f2u(-LOG2E):x}')
    I(f'v_cmp_lt_u32 vcc, 31, v{V_LANE}')
    I('s_waitcnt lgkmcnt(0)')
    for m in range(4):
        I(f'v_lshlrev_b32 v{100+2*m}, 16, v{96+m}')
        I(f'v_and_b32 v{101+2*m}, 0xffff0000, v{96+m}')
    for j in range(8):
        I(f'v_mul_f32 v{100+j}, s{S_T+4}, v{100+j}')
    for m in range(4):
        dst = B5[m >> 1] + (m & 1)
        I(f'v_cvt_pk_bf16_f32 v{96+m}, v{100+2*m}, v{101+2*m}')
        I(f'v_lshlrev_b32 v12, 16, v{96+m}')
        I(f'v_and_b32 v13, 0xffff0000, v{96+m}')
        I(f'v_sub_f32 v12, v{100+2*m}, v12')
        I(f'v_sub_f32 v13, v{101+2*m}, v13')
        I(f'v_cvt_pk_bf16_f32 v12, v12, v13')
        I(f'v_cndmask_b32 v{dst}, v{96+m}, v12, vcc')

def a5_const():
    I(f'v_bfe_u32 v12, v{V_LANE}, 2, 1')
    I(f'v_lshrrev_b32 v13, 5, v{V_LANE}')
    I(f'v_xor_b32 v12, v12, v13')
    I(f'v_and_b32 v13, 1, v{V_LANE}')
    I(f'v_lshl_or_b32 v12, v12, 1, v13')
    I(f'v_mov_b32 v13, 0x3f803f80')
    I(f'v_cmp_eq_u32 vcc, 0, v12')
    I(f'v_cmp_eq_u32 {sp(S_T)}, 1, v12')
    I('s_nop 1')
    I(f'v_cndmask_b32 v{A5+2}, 0, v13, vcc')
    I(f'v_cndmask_b32 v{A5+3}, 0, v13, {sp(S_T)}')

def nt_prefetch(vt, first=0, nl=None, dst=96):
    if CM:
        I(f's_lshr_b32 s{S_T}, s2, 4')
        I(f's_lshl_b32 s{S_T+1}, s{S_W}, 4')
        I(f's_add_u32 s{S_T}, s{S_T}, s{S_T+1}')
    else:
        I(f's_lshr_b32 s{S_T}, s2, 4')
        I(f's_lshl_b32 s{S_T+1}, s{S_W}, 4')
        I(f's_add_u32 s{S_T}, s{S_T}, s{S_T+1}')
        I(f's_and_b32 s{S_T+1}, s{S_T}, 7')
        I(f's_lshl_b32 s{S_T+1}, s{S_T+1}, 5')
        I(f's_lshr_b32 s{S_T}, s{S_T}, 3')
        I(f's_add_u32 s{S_T}, s{S_T}, s{S_T+1}')
    if not opt('xmap', 1):
        I(f's_lshr_b32 s{S_T}, s2, 4')
        I(f's_lshl_b32 s{S_T+1}, s{S_W}, 4')
        I(f's_add_u32 s{S_T}, s{S_T}, s{S_T+1}')
    I(f's_lshl_b32 s{S_T}, s{S_T}, 1')
    I(f's_bfe_u32 s{S_T+1}, s2, 0x10003')
    I(f's_add_u32 s{S_T}, s{S_T}, s{S_T+1}')
    I(f's_mul_i32 s{S_T}, s{S_T}, {NB*128}')
    I(f's_add_u32 s{S_T}, s{S_T}, 0x{WS_NT:x}')
    srd_off(S_NTS, S_WSP, S_WSP + 1, f's{S_T}', NB * 128)
    if NPFM >= 3:
        I(f'v_lshlrev_b32 v{vt}, {7 if NPFM >= 4 else 6}, v{V_LANE}')
        I(f'v_add_u32 v{vt+1}, 4096, v{vt}')
        nl = opt("pfl", 6) if nl is None else nl
        I(f's_mov_b32 exec_lo, 0x{(((1 << nl) - 1) << first) & 0xffffffff:x}')
        I(f's_mov_b32 exec_hi, 0x{(((1 << nl) - 1) << first) >> 32:x}')
        for k in range(NPF):
            I(f'buffer_load_dword v{dst+k}, v{vt+k}, {sr4(S_NTS)}, 0 offen' + (LSC if opt('pfsc', 1) else ''))
        I('s_mov_b64 exec, -1')
        return
    I(f'v_lshlrev_b32 v{vt}, 4, v{V_LANE}')
    I(f'v_add_u32 v{vt+1}, 4096, v{vt}')
    for k in range(NPF):
        I(f'buffer_load_dwordx4 {vr(96+4*k,4)}, v{vt+(k>>2)}, {sr4(S_NTS)}, 0 offen offset:{(k&3)*1024}' + LSC)

def ptr_consts():
    I(f'v_lshrrev_b32 v{V_PS1}, 5, v{V_LANE}')
    I(f's_lshl_b32 s{S_T}, s{S_W}, 4')
    I(f's_add_u32 s{S_T}, s{S_T}, {DESCP}')
    I(f'v_lshlrev_b32 v{V_PD}, 3, v{V_PS1}')
    I(f'v_add_u32 v{V_PS1}, v{V_PS1}, v{V_PS1}')
    I(f'v_add_u32 v{V_PD}, s{S_T}, v{V_PD}')
    I(f'v_bfe_u32 v{V_VAP}, v{V_LANE}, 2, 1')
    I(f'v_and_b32 v{V_PE}, 1, v{V_LANE}')
    I(f'v_lshl_or_b32 v{V_VAP}, v{V_VAP}, 1, v{V_PE}')
    I(f'v_bfe_u32 v{V_PE}, v{V_LANE}, 3, 2')
    I(f'v_bfe_u32 v{V_PS0}, v{V_LANE}, 1, 1')
    I(f'v_lshl_or_b32 v{V_PE}, v{V_PE}, 1, v{V_PS0}')
    I(f'v_lshlrev_b32 v{V_PE}, 3, v{V_PE}')
    I(f'v_add_u32 v{V_PE}, {LE}, v{V_PE}')

def gen():
    e(f'.globl {KNAME}')
    e('.p2align 8')
    e(f'.type {KNAME},@function')
    L(KNAME)
    I(f's_cmp_ge_u32 s2, {NWG}')
    I('s_cbranch_scc1 L_END')
    I('s_load_dwordx8 s[84:91], s[0:1], 0')
    I('s_load_dwordx4 s[4:7], s[0:1], 32')
    I('s_load_dwordx4 s[8:11], s[0:1], 48')
    I('s_load_dwordx4 s[56:59], s[0:1], 64')
    if PROF:
        I(f'v_mov_b32 v{V_PROF}, 0')
    rstamp(30)
    stamp(0)
    zregs()
    zero_range(CNT, BASE2 - CNT, X + 2, X)
    I(f'v_lshlrev_b32 v{X+6}, 2, v{V_TID}')
    I(f's_mul_i32 s61, s2, {CH*4}')
    I(f's_mul_i32 s63, s2, {CH}')
    I(f's_sub_u32 s63, {E_EDGES}, s63')
    I(f's_min_u32 s63, s63, {CH}')
    I(f's_lshl_b32 s64, s63, 2')
    I(f'v_add_u32 v{X+8}, 4096, v{X+6}')
    I(f'v_add_u32 v{X+9}, 8192, v{X+6}')
    I(f'v_add_u32 v{X+10}, 12288, v{X+6}')
    I(f'v_lshrrev_b32 v{X+1}, 6, v{V_TID}')
    I(f'v_and_b32 v{V_LANE}, 63, v{V_TID}')
    I(f'v_readfirstlane_b32 s{S_W}, v{X+1}')
    I('s_and_b32 s3, s2, 7')
    I('s_lshl_b32 s3, s3, 5')
    I('s_lshr_b32 s60, s2, 3')
    I('s_add_u32 s3, s3, s60')
    if not opt('xmap', 1):
        I('s_mov_b32 s3, s2')
    I(f's_mul_i32 s62, s2, {CH*8}')
    I(f's_lshl_b32 s65, s63, 3')
    I(f'v_and_b32 v97, 0x50, v{V_TID}')
    I(f'v_lshlrev_b32 v96, 1, v97')
    I(f'v_or_b32 v97, v97, v96')
    I(f'v_and_b32 v97, 0x60, v97')
    I(f'v_xor_b32 v97, v97, v{X}')
    I(f'v_and_b32 v96, 0x20, v96')
    I(f'v_lshlrev_b32 v98, 4, v{V_LANE}')
    I(f'v_xor_b32 v96, v96, v98')
    I(f's_lshl_b32 s66, s{S_W}, 10')
    I(f'v_and_b32 v101, 0x1fff, v97')
    I(f'v_lshrrev_b32 v98, 3, v{V_TID}')
    I(f'v_bfe_u32 v99, v98, 1, 3')
    I(f'v_and_b32 v100, 7, v{V_TID}')
    I(f'v_xor_b32 v99, v99, v100')
    I(f'v_lshlrev_b32 v99, 4, v99')
    I(f'v_lshl_add_u32 v99, v98, 7, v99')
    I(f's_mul_i32 s60, s3, {NB*128}')
    I(f'v_add_u32 v99, s60, v99')
    I(f'v_add_u32 v96, 16384, v96')
    I('s_waitcnt lgkmcnt(0)')
    I(f's_or_b32 s67, s2, s{S_W}')
    I('s_cmp_lg_u32 s67, 0')
    I('s_cbranch_scc1 L_NOTAG')
    I('s_memrealtime s[68:69]')
    I(f'v_mov_b32 v{X+2}, 0')
    I('s_waitcnt lgkmcnt(0)')
    I('s_or_b32 s68, s68, 1')
    I(f'v_mov_b32 v{X+3}, s68')
    I('s_mov_b64 exec, 1')
    I(f'global_store_dword v{X+2}, v{X+3}, s[56:57] sc1')
    I('s_mov_b64 exec, -1')
    L('L_NOTAG')
    def dst_loads():
        srd_off(S_DST, 90, 91, 's61', 's64')
        for k in range(4):
            I(f'buffer_load_dword v{64+k}, v{X+6 if k == 0 else X+7+k}, {sr4(S_DST)}, 0 offen' + ELD)
    def dma_loads():
        srd(S_WS, 8, 9, 132 * 128)
        I(f's_add_u32 m0, s66, {WG_}')
        srd(S_XS, 84, 85, N_NODES * 128)
        I(f'buffer_load_dwordx4 v97, {sr4(S_WS)}, 0 offen lds')
        I(f's_cmp_lt_u32 s{S_W}, 8')
        I(f's_cselect_b32 s{S_NTS}, s6, s4')
        I(f's_cselect_b32 s{S_NTS+1}, s7, s5')
        I(f's_mov_b32 s{S_NTS+2}, {64*128}')
        I(f's_mov_b32 s{S_NTS+3}, 0x00020000')
        I(f's_add_u32 m0, s66, {WV_}')
        I('s_nop 0')
        I(f'buffer_load_dwordx4 v101, {sr4(S_NTS)}, 0 offen lds')
        I(f's_cmp_lt_u32 s{S_W}, 8')
        I('s_cbranch_scc0 L_D3B')
        I(f's_add_u32 m0, s66, {XOWN}')
        I('s_nop 0')
        I(f'buffer_load_dwordx4 v99, {sr4(S_XS)}, 0 offen lds')
        I('s_branch L_D3C')
        L('L_D3B')
        I(f's_mov_b32 m0, {WG_ + 16384}')
        I('s_nop 0')
        I(f'buffer_load_dwordx4 v96, {sr4(S_WS)}, 0 offen lds')
        L('L_D3C')
    if opt('t0', 0):
        I(f'v_and_b32 v60, 15, v{V_LANE}')
        I(f'v_lshlrev_b32 v60, 20, v60')
        I(f'v_and_b32 v61, 1, v{V_LANE}')
        I(f'v_lshlrev_b32 v61, 20, v61')
        I(f'global_load_dword v62, v60, s[58:59]')
        I(f'global_load_dword v63, v61, s[10:11]')
    ORDER = opt('order', 2)
    if ORDER == 0:
        dma_loads()
    dst_loads()
    if ORDER == 2:
        dma_loads()
    F1 = opt('f1', 1)
    if F1:
        I('s_barrier')
    srd_off(S_SRC, 88, 89, 's61', 's64')
    LATE = opt('late', 0)
    def src_load(k):
        I(f'buffer_load_dword v{68+k}, v{X+6 if k == 0 else (43 if LATE else X+7)+k}, {sr4(S_SRC)}, 0 offen' + ELD)
    for k in range(1, 4 if LATE else 1):
        I(f'v_mov_b32 v{43+k}, v{X+7+k}')
    NS = opt('ns', 1) if LATE else 4
    for k in range(NS):
        src_load(k)
    srd_off(S_EA, 86, 87, 's62', 's65')
    I(f'v_lshlrev_b32 v92, 3, v{V_TID}')
    for k in range(1, 4):
        I(f'v_add_u32 v{92+k}, {8192*k}, v92')
    def e_load(k):
        I(f'buffer_load_dwordx2 v[{72+2*k}:{73+2*k}], v{92+k}, {sr4(S_EA)}, 0 offen' + ELD)
    NEE = opt('ne', 1) if LATE else opt('nee', 4)
    for k in range(NEE):
        e_load(k)
    if ORDER == 1:
        dma_loads()
    I(f's_mov_b64 {sp(S_DBG)}, s[56:57]')
    I(f's_add_u32 s{S_WSP}, s58, 0x{WSB:x}')
    I(f's_addc_u32 s{S_WSP+1}, s59, 0')
    stamp(1)
    srd(S_OUT, 10, 11, N_NODES * 128)
    I(f's_mul_i32 s{S_T}, s2, {CAP*4}')
    srd_off(S_RW, S_WSP, S_WSP + 1, f's{S_T}', CAP * 4)
    I(f's_lshl_b32 s{S_T}, s{S_T}, 1')
    I(f's_add_u32 s{S_T}, s{S_T}, 0x{WS_RE:x}')
    srd_off(S_RE, S_WSP, S_WSP + 1, f's{S_T}', CAP * 8)
    I(f's_lshl_b32 s{S_T}, s2, 11')
    I(f's_add_u32 s{S_T}, s{S_T}, 0x{WS_TAB:x}')
    srd_off(S_TAB, S_WSP, S_WSP + 1, f's{S_T}', (KREP - 1) * 0x80000 + 2048)
    I(f's_mul_i32 s{S_T}, s3, {NB*256}')
    I(f's_add_u32 s{S_T}, s{S_T}, 0x{WS_NT:x}')
    srd_off(S_NTS, S_WSP, S_WSP + 1, f's{S_T}', NB * 256)
    I(f's_add_u32 s{S_NTG}, s{S_WSP}, 0x{WS_NT:x}')
    I(f's_addc_u32 s{S_NTG+1}, s{S_WSP+1}, 0')
    I(f's_or_b32 s{S_NTG+1}, s{S_NTG+1}, 0x80000000')
    I(f's_mov_b32 s{S_NTG+2}, 0x400000')
    I(f's_mov_b32 s{S_NTG+3}, 0x00c00000')
    srd_off(S_DST, S_WSP, S_WSP + 1, '0x%x' % WS_RW, NWG * CAP * 4)
    if not LATE:
        srd_off(S_SRC, S_WSP, S_WSP + 1, '0x%x' % WS_RE, NWG * CAP * 8)
    for k in range(4):
        I(f'v_add_u32 v{X+1}, {1024*k}, v{V_TID}')
        I(f'v_cmp_gt_u32 {sp(S_MASK+2*k)}, s63, v{X+1}')
    I(f's_mov_b32 s{S_C}, 0x{f2u(2.0**-KH):x}')
    I(f's_mov_b32 s{S_C+1}, 0x{f2u(2.0**-KH):x}')
    I(f's_mov_b32 s{S_JB}, 0')
    I(f's_mov_b32 s{S_WID}, 128')
    I(f'v_and_b32 v{V_J4}, 7, v{V_LANE}')
    I(f'v_lshlrev_b32 v{V_J4}, 3, v{V_J4}')
    if CM:
        I(f'v_and_b32 v{X+1}, 56, v{V_LANE}')
        I(f's_and_b32 s{S_T}, s{S_W}, 1')
        I(f's_lshl_b32 s{S_T}, s{S_T}, 7')
        I(f's_lshr_b32 s{S_T+1}, s{S_W}, 1')
        I(f's_add_u32 s{S_T}, s{S_T}, s{S_T+1}')
    else:
        I(f'v_lshrrev_b32 v{X+1}, 3, v{V_LANE}')
        I(f's_lshl_b32 s{S_T}, s{S_W}, 4')
    I(f'v_add_u32 v{X+1}, s{S_T}, v{X+1}')
    I(f'v_lshlrev_b32 v{V_TAB+2}, 11, v{X+1}')
    I(f'v_mul_u32_u24 v{V_CB4}, {CAP*4}, v{X+1}')
    I(f'v_add_u32 v{V_CB4}, v{V_CB4}, v{V_J4}')
    I(f'v_and_b32 v{V_CH8}, 31, v{V_LANE}')
    I(f'v_lshlrev_b32 v{V_CH8}, 3, v{V_CH8}')
    I(f'v_add_u32 v{V_CHP}, {PT}, v{V_CH8}')
    phase0_addr()
    a5_const()
    if not F1:
        I(f's_waitcnt vmcnt({8 + NEE if ORDER == 0 else 0})')
        I('s_barrier')
    stamp(2)
    def late_loads():
        if LATE:
            for k in range(NS, 4):
                src_load(k)
        for k in range(NEE, 4):
            e_load(k)
        if not (LATE and TP):
            I(f'v_mov_b32 v12, 0')
            I(f'global_load_dword v10, v12, {sp(S_DBG)} sc1')
        if TCH:
            I(f'v_lshlrev_b32 v13, 13, v{V_LANE}')
            I(f'buffer_load_dword v60, v13, {sr4(S_RW)}, 0 offen')
            I(f'buffer_load_dword v61, v13, {sr4(S_RE)}, 0 offen')
            I(f'buffer_load_dword v62, v13, {sr4(S_TAB)}, 0 offen')
            I(f'buffer_load_dword v63, v13, {sr4(S_NTS)}, 0 offen')
        srd_off(S_EA, S_WSP, S_WSP + 1, '0x%x' % WS_TAB, 0x80000 + NWG * 128)
        if LATE:
            srd_off(S_SRC, S_WSP, S_WSP + 1, '0x%x' % WS_RE, NWG * CAP * 8)
    if not LATE:
        late_loads()
    elif TP:
        I(f'v_mov_b32 v12, 0')
        I(f'global_load_dword v10, v12, {sp(S_DBG)} sc1')
    if not F1:
        phase0a()
    I(f's_mov_b32 s{S_T}, -{NB}')
    I(f'v_mov_b32 v{X+1}, 4')
    BN, WD, RK = 28, 32, 36
    for k in range(4):
        I(f's_waitcnt vmcnt({((3 + NS + NEE + TP if ORDER == 0 else 6 + NS + NEE + TP) if LATE else (12 if ORDER == 0 else 15) + TCH) - k})')
        I(f's_mov_b64 exec, {sp(S_MASK+2*k)}')
        if k == 3:
            I('s_cbranch_execz L_B1')
        I(f'v_mul_u32_u24 v{BN+k}, 21400, v{64+k}')
        I(f'v_lshrrev_b32 v{BN+k}, 20, v{BN+k}')
        I(f'v_mad_i32_i24 v{WD+k}, v{BN+k}, s{S_T}, v{64+k}')
        I(f'v_lshlrev_b32 v{BN+k}, 2, v{BN+k}')
        I(f'ds_add_rtn_u32 v{RK+k}, v{BN+k}, v{X+1} offset:{HIST}')
        I(f'v_lshlrev_b32 v{WD+k}, 26, v{WD+k}')
    L('L_B1')
    I('s_mov_b64 exec, -1')
    if LATE:
        late_loads()
    I(f'v_add_u32 v{X+1}, {NTI}, v{X}')
    stamp(3)
    I({0: 's_waitcnt lgkmcnt(0)', 1: 's_waitcnt vmcnt(1) lgkmcnt(0)', 2: f's_waitcnt vmcnt({9 + TCH}) lgkmcnt(0)'}[ORDER])
    I('s_barrier')
    stamp(4)
    if not F1:
        I(f'ds_read_b128 v[112:115], v{X+1}')
    I(f's_cmp_lg_u32 s{S_W}, 0')
    I('s_cbranch_scc1 L_NOSCAN')
    I(f'ds_read_b128 v[96:99], v{X} offset:{HIST}')
    I('s_waitcnt lgkmcnt(0)')
    for k in range(4):
        I(f'v_add_u32 v{108+k}, 4, v{96+k}')
        I(f'v_and_b32 v{108+k}, -8, v{108+k}')
    I('v_add_u32 v101, v108, v109')
    I('v_add_u32 v102, v101, v110')
    I('v_add_u32 v103, v102, v111')
    I('v_mov_b32 v104, v103')
    wave_scan(104)
    I(f'v_readlane_b32 s{S_T+4}, v104, 63')
    I('v_sub_u32 v104, v104, v103')
    I(f'v_mov_b32 v100, {MISC+8}')
    I(f'v_mov_b32 v105, s{S_T+4}')
    I('ds_write_b32 v100, v105')
    I('v_add_u32 v105, v104, v108')
    I('v_add_u32 v106, v104, v101')
    I('v_add_u32 v107, v104, v102')
    I(f'ds_write_b128 v{X}, v[104:107] offset:{HBASE}')
    for k in range(4):
        I(f'v_lshl_or_b32 v{108+k}, v{96+k}, 16, v{104+k}')
    I(f'ds_write_b128 v{X}, v[108:111] offset:{HIST}')
    L('L_NOSCAN')
    if F1:
        phase0a()
    I('s_waitcnt lgkmcnt(0)')
    if not F1:
        I(f'buffer_store_dwordx4 v[112:115], v{X}, {sr4(S_NTS)}, 0 offen' + SC)
    if T1:
        I(f's_mul_i32 s{S_T+4}, s3, {NB*128}')
        I(f'v_mov_b32 v60, s{S_T+4}')
        I(f'buffer_load_dword v61, v60, {sr4(S_OUT)}, 0 offen')
    if not SRCL:
        I(f's_waitcnt vmcnt({4 + TCH + T1 if LATE else 6 - F1 + TCH + T1})')
        for k in range(4):
            I(f'v_lshl_or_b32 v{WD+k}, v{68+k}, 3, v{WD+k}')
    I('s_barrier')
    stamp(5)
    if F1:
        I(f'ds_read_b128 v[112:115], v{X+1}')
    for k in range(4):
        I(f's_mov_b64 exec, {sp(S_MASK+2*k)}')
        I(f'ds_read_b32 v{BN+k}, v{BN+k} offset:{HBASE}')
    if F1:
        I('s_mov_b64 exec, -1')
        I('s_waitcnt lgkmcnt(4)')
        I(f'buffer_store_dwordx4 v[112:115], v{X}, {sr4(S_NTS)}, 0 offen' + SC)
    if SRCL == 1:
        I(f's_waitcnt vmcnt({6 + TCH + T1})')
        for k in range(4):
            I(f'v_lshl_or_b32 v{WD+k}, v{68+k}, 3, v{WD+k}')
            if BANDS:
                I(f'v_lshrrev_b32 v{68+k}, 11, v{68+k}')
                I(f'v_lshl_or_b32 v{WD+k}, v{68+k}, 23, v{WD+k}')
    if SRCL < 2:
        I(f's_waitcnt vmcnt({2 + TCH + T1})')
    for k in range(4):
        I(f's_mov_b64 exec, {sp(S_MASK+2*k)}')
        if k == 3:
            I('s_cbranch_execz L_B2')
        if SRCL == 2:
            assert LATE and not TCH and not T1
            order_ = [f's{j}' for j in range(NS)] + [f'e{j}' for j in range(NEE)] + ['tag'] * TP + [f's{j}' for j in range(NS, 4)] + [f'e{j}' for j in range(NEE, 4)] + ['tag'] * (1 - TP) + ['nt']
            need_ = max(order_.index(f's{k}'), order_.index(f'e{k}'))
            I(f's_waitcnt vmcnt({len(order_) - 1 - need_}) lgkmcnt({3 - k + 2*k})')
            I(f'v_lshl_or_b32 v{WD+k}, v{68+k}, 3, v{WD+k}')
        else:
            I(f's_waitcnt lgkmcnt({3 - k + 2*k})')
        I(f'v_add_u32 v{RK+k}, v{BN+k}, v{RK+k}')
        I(f'v_add_u32 v{BN+k}, v{RK+k}, v{RK+k}')
        I(f'ds_write_b32 v{RK+k}, v{WD+k} offset:{STGW}')
        I(f'ds_write_b64 v{BN+k}, v[{72+2*k}:{73+2*k}] offset:{STGE}')
    L('L_B2')
    I('s_mov_b64 exec, -1')
    I(f'v_mov_b32 v13, {MISC+8}')
    I(f'ds_read_b32 v13, v13')
    I(f'v_add_u32 v{X+2}, 16384, v{X}')
    I(f'v_lshlrev_b32 v12, 3, v{V_LANE}')
    I('s_waitcnt lgkmcnt(0)')
    I(f'v_readfirstlane_b32 s{S_T}, v13')
    I('s_barrier')
    I(f's_add_u32 s{S_T}, s{S_T}, 127')
    I(f's_and_b32 s{S_RW+2}, s{S_T}, -128')
    I(f's_lshl_b32 s{S_RE+2}, s{S_RW+2}, 1')
    stamp(6)
    if opt('early', 0):
        I(f'ds_read_b64 v[92:93], v12 offset:{HIST}')
        I(f'ds_read_b64 v[94:95], v12 offset:{HIST+512}')
        I(f'v_lshlrev_b32 v60, 4, v{V_LANE}')
        I('s_waitcnt lgkmcnt(0)')
        for k in range(4):
            I(f'v_or_b32 v{120+2*k}, s{S_TAG2}, v{92+k}')
            I(f'v_mov_b32 v{121+2*k}, s{S_TAG}')
        I(f's_cmp_lg_u32 s{S_W}, 0')
        I('s_cbranch_scc1 L_EARLY')
        I(f'buffer_store_dwordx4 v[120:123], v60, {sr4(S_TAB)}, 0 offen' + SC)
        I(f'buffer_store_dwordx4 v[124:127], v60, {sr4(S_TAB)}, 0 offen offset:1024' + SC)
        L('L_EARLY')
    I(f'ds_read_b128 v[64:67], v{X} offset:{STGW}')
    I(f'ds_read_b128 v[68:71], v{X} offset:{STGE}')
    I(f'ds_read_b128 v[72:75], v{X} offset:{STGE+16384}')
    I(f'ds_read_b64 v[92:93], v12 offset:{HIST}')
    I(f'ds_read_b64 v[94:95], v12 offset:{HIST+512}')
    I('s_waitcnt lgkmcnt(4)')
    I(f'buffer_store_dwordx4 v[64:67], v{X}, {sr4(S_RW)}, 0 offen' + SC)
    I(f'v_mov_b32 v62, v{X}')
    I(f'v_mov_b32 v63, v{X+2}')
    I('s_waitcnt vmcnt(2) lgkmcnt(0)')
    I(f'v_readfirstlane_b32 s{S_TAG}, v10')
    I(f's_mov_b32 s{S_T}, 0x40000')
    L('L_TAGP')
    I(f's_cmp_lg_u32 s{S_TAG}, 0')
    I('s_cbranch_scc1 L_TAGD')
    I(f'v_mov_b32 v12, 0')
    I(f'global_load_dword v10, v12, {sp(S_DBG)} sc1')
    I('s_waitcnt vmcnt(0)')
    I(f'v_readfirstlane_b32 s{S_TAG}, v10')
    I(f's_sub_u32 s{S_T}, s{S_T}, 1')
    I('s_cbranch_scc1 L_END')
    I('s_branch L_TAGP')
    L('L_TAGD')
    I(f's_mul_i32 s{S_TAG2}, s{S_TAG}, 0x9e3779b1')
    I(f's_and_b32 s{S_TAG2}, s{S_TAG2}, 0x{TAGM:x}')
    for k in range(4):
        I(f'v_or_b32 v{120+2*k}, s{S_TAG2}, v{92+k}')
        I(f'v_mov_b32 v{121+2*k}, s{S_TAG}')
    pre = opt('pre', 'x').replace('0', '')
    def piece(c):
        if c == 'x':
            zregs()
            zero_range(EXTRA, 16384, X + 2, X)
            fill_desca()
        elif c == 'b':
            phase0b()
        elif c == 'c':
            phase0c()
    for c in pre:
        piece(c)
    I(f'v_lshlrev_b32 v60, 4, v{V_LANE}')
    stamp(7)
    I('s_waitcnt vmcnt(0)')
    I('s_barrier')
    I(f's_cmp_lg_u32 s{S_W}, 0')
    I('s_cbranch_scc1 L_POLL0')
    I(f'buffer_store_dwordx4 v[120:123], v60, {sr4(S_TAB)}, 0 offen' + SC)
    I(f'buffer_store_dwordx4 v[124:127], v60, {sr4(S_TAB)}, 0 offen offset:1024' + SC)
    L('L_POLL0')
    I(f'buffer_store_dwordx4 v[68:71], v62, {sr4(S_RE)}, 0 offen' + SC)
    I(f'buffer_store_dwordx4 v[72:75], v63, {sr4(S_RE)}, 0 offen' + SC)
    stamp(8)
    mid = opt('mid', 'bc').replace('0', '')
    def piece2(c):
        if c == 'f':
            fill_words()
            zregs()
            zero_range(LE, CNT - LE, X + 2, X)
        else:
            piece(c)
    for c in mid:
        piece2(c)
    I(f's_lshl_b32 s{S_T+1}, s3, 3')
    I(f'v_add_u32 v76, s{S_T+1}, v{V_TAB+2}')
    I(f'v_add_u32 v77, {RSTEP*2048}, v76')
    I(f'v_lshrrev_b32 v{V_TAB+2}, 4, v{V_TAB+2}')
    I(f'v_add_u32 v{V_TAB+2}, 0x80000, v{V_TAB+2}')
    I(f'v_add_u32 v{V_TAB+3}, {RSTEP*128}, v{V_TAB+2}')
    I(f's_mul_i32 s{S_TAG3}, s{S_TAG}, 0x85ebca6b')
    I(f's_lshl_b32 s{S_T}, s2, 7')
    I(f's_add_u32 s{S_T}, s{S_T}, 0x80000')
    I(f'v_mov_b32 v60, s{S_T}')
    I(f'v_mov_b32 v62, s{S_TAG}')
    I(f'v_mov_b32 v63, s{S_TAG3}')
    for r in range(2):
        I(f's_mov_b64 {sp(S_MASK+2*r)}, -1')
    I('s_waitcnt vmcnt(0)')
    I('s_barrier')
    stamp(9)
    I(f's_cmp_lg_u32 s{S_W}, 0')
    I('s_cbranch_scc1 L_FLAG2')
    I('s_mov_b64 exec, 1')
    I(f'buffer_store_dwordx2 v[62:63], v60, {sr4(S_EA)}, 0 offen' + SC)
    I('s_mov_b64 exec, -1')
    L('L_FLAG2')
    EP = 1
    for r in range(2):
        I(f'buffer_load_dwordx2 {p(64+2*r)}, v{76+r}, {sr4(S_EA)}, 0 offen' + LSC)
    for c in 'xbcf':
        if c not in pre + mid:
            piece2(c)
    ptr_consts()
    I(f's_mov_b32 s{S_T}, 0x40000')
    I(f's_mov_b32 s{S_T+1}, 0x{TAGM:x}')
    if opt('ps', 0):
        I(f's_sleep {opt("ps", 0)}')
    if EP:
        I('s_branch L_POLLC')
    L('L_POLL')
    for r in range(2):
        I(f's_mov_b64 exec, {sp(S_MASK+2*r)}')
        I(f'buffer_load_dwordx2 {p(64+2*r)}, v{76+r}, {sr4(S_EA)}, 0 offen' + LSC)
    L('L_POLLC')
    for r in range(2):
        I(f's_waitcnt vmcnt({1-r})')
        I(f's_mov_b64 exec, {sp(S_MASK+2*r)}')
        I(f'v_xor_b32 v{V_TAB+r}, s{S_TAG2}, v{64+2*r}')
        I(f'v_xor_b32 v{65+2*r}, s{S_TAG}, v{65+2*r}')
        I(f'v_and_or_b32 v{65+2*r}, v{V_TAB+r}, s{S_T+1}, v{65+2*r}')
        I(f'v_cmp_ne_u32 {sp(S_MASK+2*r)}, 0, v{65+2*r}')
    I(f's_or_b64 {sp(S_T+2)}, {sp(S_MASK)}, {sp(S_MASK+2)}')
    I('s_cbranch_scc0 L_POLLED')
    I(f's_sub_u32 s{S_T}, s{S_T}, 1')
    I('s_cbranch_scc1 L_END')
    if opt('sleep', 0):
        I(f's_sleep {opt("sleep", 0)}')
    I('s_branch L_POLL')
    L('L_POLLED')
    I('s_mov_b64 exec, -1')
    stamp(10)
    def RB(s_): return 64 + 8 * (s_ >> 1)
    def MK(s_): return sp(S_MASK + 2 * s_)
    AD = X
    L('L_PASS')
    I(f'v_add_u32 v{X+10}, s{S_JB}, v{V_CB4}')
    I(f'v_add_u32 v{X+8}, s{S_JB}, v{V_J4}')
    SDW = 'src0_sel:DWORD src1_sel:WORD_1'
    for r in range(2):
        I(f'v_add_u32_sdwa v{X+r}, v{V_TAB+r}, v{X+10} dst_sel:DWORD dst_unused:UNUSED_PAD src0_sel:WORD_0 src1_sel:DWORD')
        I(f'v_cmp_lt_u32_sdwa {MK(2*r)}, v{X+8}, v{V_TAB+r} {SDW}')
        if r:
            I(f'v_add_u32 v{X+r}, {RSTEP*CAP*4}, v{X+r}')
        I(f'v_add_u32 v{96+r}, v{X+r}, v{X+r}')
        I(f's_mov_b64 exec, {MK(2*r)}')
        I(f'buffer_load_dwordx2 {p(RB(2*r)+4)}, v{X+r}, {sr4(S_DST)}, 0 offen' + LSC)
        I('s_mov_b64 exec, -1')
    I(f'v_add_u32 v{X+9}, s{S_WID}, v{X+8}')
    I(f'v_add_u32 v{X+10}, 4, v{X+8}')
    I(f's_cmp_eq_u32 s{S_WID}, 128')
    I(f's_cselect_b32 s{S_T}, 64, 0x10000')
    I(f'v_add_u32 v{X+8}, s{S_T}, v{X+8}')
    for r in range(2):
        I(f'v_cmp_lt_u32_sdwa {MK(4+2*r)}, v{X+8}, v{V_TAB+r} {SDW}')
        I(f'v_cmp_lt_u32_sdwa {MK(2*r+1)}, v{X+10}, v{V_TAB+r} {SDW}')
    I(f'v_add_u32 v{X+8}, 4, v{X+8}')
    for r in range(2):
        I(f's_mov_b64 exec, {MK(4+2*r)}')
        I(f'buffer_load_dwordx2 {p(RB(4+2*r)+4)}, v{X+r}, {sr4(S_DST)}, 0 offen offset:64' + LSC)
    I('s_mov_b64 exec, -1')
    PF3 = opt('pf3', 0)
    if PF3:
        nt_prefetch(60, 49 - PF3, PF3, 63)
    BE = opt('be', 0)
    if BE:
        for r in range(2):
            I(f'buffer_load_dwordx2 {p(100+2*r)}, v{V_TAB+2+r}, {sr4(S_EA)}, 0 offen' + LSC)
    for r in range(2):
        I(f'v_cmp_lt_u32_sdwa {MK(5+2*r)}, v{X+8}, v{V_TAB+r} {SDW}')
    I(f'v_cmp_lt_u32_sdwa vcc, v{X+9}, v{V_TAB} {SDW}')
    I(f'v_cmp_lt_u32_sdwa {sp(S_T)}, v{X+9}, v{V_TAB+1} {SDW}')
    I(f'v_mov_b32 v{X+8}, 4')
    I(f's_or_b64 vcc, vcc, {sp(S_T)}')
    I(f's_cbranch_scc0 L_NOMORE')
    I(f'v_mov_b32 v{X+9}, {MISC}')
    I(f'ds_write_b32 v{X+9}, v{X+8}')
    L('L_NOMORE')
    stamp(11)
    e('    ; count')
    for s_ in range(8):
        if s_ >= 4:
            I(f's_mov_b64 exec, {MK(s_)}')
            I(f's_cbranch_execz L_C{s_}')
        if s_ % 2 == 0:
            I(f's_waitcnt vmcnt({3 + 2 * BE + (1 if PF3 else 0) - s_ // 2})')
        if s_ < 4:
            I(f's_mov_b64 exec, {MK(s_)}')
        I(f'v_lshrrev_b32 v{AD+s_}, 21, v{RB(s_)+4+(s_&1)}')
        if opt('safe', 0):
            I(f'v_and_b32 v{AD+s_}, 0x7fc, v{AD+s_}')
        I(f'ds_add_rtn_u32 v{RB(s_)+6+(s_&1)}, v{AD+s_}, v{X+8} offset:{CNT2}')
        I(f'v_and_b32 v{RB(s_)+4+(s_&1)}, 0x1fff8, v{RB(s_)+4+(s_&1)}')
        if s_ >= 4:
            L(f'L_C{s_}')
    I('s_mov_b64 exec, -1')
    def check2():
        I(f'v_xor_b32 v100, s{S_TAG}, v100')
        I(f'v_xor_b32 v101, s{S_TAG3}, v101')
        I(f'v_xor_b32 v102, s{S_TAG}, v102')
        I(f'v_xor_b32 v103, s{S_TAG3}, v103')
        I('v_or3_b32 v100, v100, v101, v102')
        I('v_or_b32 v100, v100, v103')
        I('v_cmp_ne_u32 vcc, 0, v100')
    def e_loads():
        for hf in range(2):
            for r in range(2):
                I(f's_mov_b64 exec, {MK(4*hf+2*r)}')
                I(f'buffer_load_dwordx4 {vr(RB(4*hf+2*r),4)}, v{96+r}, {sr4(S_SRC)}, 0 offen offset:{128*hf}' + LSC)
        I('s_mov_b64 exec, -1')
    assert not BE
    if BE:
        I('s_waitcnt vmcnt(0)')
        check2()
        I('s_nop 0')
        I('s_cbranch_vccnz L_NOTYET')
        e_loads()
        I(f's_mov_b32 s{S_CNT}, 0')
        I('s_branch L_EDONE')
        L('L_NOTYET')
    for r in range(2):
        I(f'buffer_load_dwordx2 {p(100+2*r)}, v{V_TAB+2+r}, {sr4(S_EA)}, 0 offen' + LSC)
    L('L_EDONE')
    I(f'v_lshlrev_b32 v{X+8}, 2, v{V_LANE}')
    I(f'v_mov_b32 v{X+9}, {MISC}')
    I('s_waitcnt lgkmcnt(0)')
    I('s_barrier')
    stamp(12)
    PFPOS = opt('pfpos', 4)
    def do_pf(late=False):
        if NPF and late == (PFPOS == 4):
            PFN = opt('pfn', 5)
            I(f's_lshr_b32 s{S_T+7}, s2, 3')
            I(f's_lshl_b32 s{S_T+7}, s{S_T+7}, 4')
            I(f's_add_u32 s{S_T+7}, s{S_T+7}, s{S_W}')
            I(f's_mul_i32 s{S_T+7}, s{S_T+7}, {PFN*128}')
            I(f'v_lshlrev_b32 v60, 7, v{V_LANE}')
            I(f'v_add_u32 v60, s{S_T+7}, v60')
            srd_off(S_NTS, S_WSP, S_WSP + 1, '0x%x' % WS_NT, NWG * NB * 256)
            I(f's_mov_b64 exec, 0x{(1 << PFN) - 1:x}')
            I(f'buffer_load_dword v62, v60, {sr4(S_NTS)}, 0 offen' + LSC)
            I('s_mov_b64 exec, -1')
    def poll2():
        I(f's_mov_b32 s{S_T+3}, 0x40000')
        L('L_POLL2')
        I('s_waitcnt vmcnt(0)')
        I(f'v_xor_b32 v100, s{S_TAG}, v100')
        I(f'v_xor_b32 v101, s{S_TAG3}, v101')
        I(f'v_xor_b32 v102, s{S_TAG}, v102')
        I(f'v_xor_b32 v103, s{S_TAG3}, v103')
        I('v_or3_b32 v100, v100, v101, v102')
        I('v_or_b32 v100, v100, v103')
        I('v_cmp_ne_u32 vcc, 0, v100')
        I(f's_sub_u32 s{S_T+3}, s{S_T+3}, 1')
        I('s_cbranch_scc1 L_END')
        I('s_cbranch_vccz L_POLLED2')
        for r in range(2):
            I(f'buffer_load_dwordx2 {p(100+2*r)}, v{V_TAB+2+r}, {sr4(S_EA)}, 0 offen' + LSC)
        I('s_branch L_POLL2')
        L('L_POLLED2')
        for hf in range(2):
            for r in range(2):
                I(f's_mov_b64 exec, {MK(4*hf+2*r)}')
                I(f'buffer_load_dwordx4 {vr(RB(4*hf+2*r),4)}, v{96+r}, {sr4(S_SRC)}, 0 offen offset:{128*hf}' + LSC)
        I('s_mov_b64 exec, -1')
        L('L_HAVEE')
    B2 = opt('b2', 2)
    if B2 == 0:
        poll2()
        do_pf()
    NG, GS, MI = X + 10, X + 11, X + 12
    if opt('tprio', 1):
        I(f's_cmp_lg_u32 s{S_W}, 15')
        I('s_cbranch_scc1 L_TP')
        I('s_setprio 2')
        L('L_TP')
    I(f'v_lshlrev_b32 v98, 5, v{V_LANE}')
    I(f'ds_read_b128 v[104:107], v98 offset:{CNT2}')
    I(f'ds_read_b128 v[108:111], v98 offset:{CNT2+16}')
    I(f'ds_read_b32 v{X+9}, v{X+9}')
    I('s_waitcnt lgkmcnt(1)')
    I(f'v_add3_u32 v{NG}, v104, v105, v106')
    I(f'v_add3_u32 v{GS}, v107, v108, v109')
    I(f'v_add3_u32 v{NG}, v{NG}, v110, v111')
    I(f'v_add3_u32 v{NG}, v{NG}, v{GS}, 28')
    I(f'v_and_b32 v{NG}, 0xffffffe0, v{NG}')
    I(f'v_mov_b32 v{GS}, v{NG}')
    wave_scan(GS)
    I(f'v_readlane_b32 s{S_T}, v{GS}, 63')
    I(f'v_sub_u32 v{GS}, v{GS}, v{NG}')
    if B2 == 1:
        poll2()
        do_pf()
    I('s_waitcnt lgkmcnt(0)')
    I(f'v_readfirstlane_b32 s{S_MORE}, v{X+9}')
    I(f's_lshr_b32 s{S_T}, s{S_T}, 5')
    I(f's_cmp_eq_u32 s{S_WID}, 128')
    I(f's_cselect_b32 s{S_T+1}, {MAXG}, -1')
    I(f's_cmp_gt_u32 s{S_T}, s{S_T+1}')
    I('s_cbranch_scc1 L_OVERFLOW')
    def place(tag):
        if PROF == 5:
            stamp(19)
        if TFLAG:
            I(f'v_mov_b32 v60, {MISC+16}')
            I(f's_mov_b32 s{S_T+1}, 0x1000000')
            L('L_TWAIT')
            I(f's_sub_u32 s{S_T+1}, s{S_T+1}, 1')
            I('s_cbranch_scc1 L_END')
            I('ds_read_b32 v61, v60')
            I('s_waitcnt lgkmcnt(0)')
            I(f'v_readfirstlane_b32 s{S_T}, v61')
            I(f's_cmp_eq_u32 s{S_T}, 0')
            I('s_cbranch_scc1 L_TWAIT')
        else:
            I('s_waitcnt lgkmcnt(0)')
            I('s_barrier')
        if PROF == 5:
            stamp(20)
        for s_ in range(8):
            I(f's_mov_b64 exec, {MK(s_)}')
            I(f'ds_read_b32 v{AD+s_}, v{AD+s_} offset:{BASE2}')
        if B2 == 3:
            I('s_mov_b64 exec, -1')
            poll2()
            do_pf()
        for s_ in range(8):
            wd, rk, ta = RB(s_) + 4 + (s_ & 1), RB(s_) + 6 + (s_ & 1), 112 + 2 * s_
            I(f's_mov_b64 exec, {MK(s_)}')
            if s_ >= 4:
                I(f's_cbranch_execz L_P{tag}{s_}')
            I(f's_waitcnt lgkmcnt({7 if s_ <= 4 else 11 - s_})')
            I(f'v_add_u32 v{AD+s_}, v{AD+s_}, v{rk}')
            I(f'v_add_u32 v{rk}, v{AD+s_}, v{AD+s_}')
            I(f'ds_write_b32 v{AD+s_}, v{wd} offset:{LS}')
            if s_ >= 4:
                L(f'L_P{tag}{s_}')
        if EK:
            I('s_mov_b64 exec, 1')
            I(f'v_mov_b32 v60, {MISC+24}')
            I(f'v_mov_b32 v61, 1')
            I('ds_add_u32 v60, v61')
        if PROF == 5:
            stamp(21)
        if PFPOS == 4:
            I('s_mov_b64 exec, -1')
            do_pf(True)
        for s_ in range(8):
            rk, ee = RB(s_) + 6 + (s_ & 1), RB(s_) + 2 * (s_ & 1)
            I(f's_mov_b64 exec, {MK(s_)}')
            if s_ >= 4:
                I(f's_cbranch_execz L_Q{tag}{s_}')
            if s_ % 2 == 0:
                I(f's_waitcnt vmcnt({3 - s_ // 2 + NPF})')
            I(f'ds_write_b64 v{rk}, {p(ee)} offset:{LE}')
            if s_ >= 4:
                L(f'L_Q{tag}{s_}')
        I('s_mov_b64 exec, -1')
    SWAP = opt('swap', 0)
    if SWAP:
        I(f's_bitcmp1_b32 s{S_W}, {SWAP}')
        I('s_cbranch_scc0 L_DFIRST')
        place('a')
        L('L_DFIRST')
    SB_, SR_, SG0 = S_T + 4, S_T + 5, S_T + 6
    I(f's_add_u32 s{S_T}, s{S_T}, 3')
    I(f's_lshr_b32 s{S_T}, s{S_T}, 2')
    I(f's_lshr_b32 s{SB_}, s{S_T}, 4')
    I(f's_and_b32 s{SR_}, s{S_T}, 15')
    I(f's_add_u32 s{S_T+1}, s{SB_}, 1')
    I(f'v_cvt_f32_u32 v{MI}, s{S_T+1}')
    I(f'v_cvt_f32_u32 v{MI+1}, s{SB_}')
    I(f'v_rcp_f32 v{MI}, v{MI}')
    I(f'v_rcp_f32 v{MI+1}, v{MI+1}')
    I(f's_mul_i32 s{SG0}, s{SR_}, s{S_T+1}')
    I(f's_lshl_b32 s{SG0}, s{SG0}, 2')
    I(f'v_lshrrev_b32 v{GS}, 5, v{GS}')
    I(f'v_mul_f32 v{MI}, 0x47800000, v{MI}')
    I(f'v_mul_f32 v{MI+1}, 0x47800000, v{MI+1}')
    I(f'v_lshrrev_b32 v{NG}, 5, v{NG}')
    I(f'v_cvt_u32_f32 v{MI}, v{MI}')
    I(f'v_cvt_u32_f32 v{MI+1}, v{MI+1}')
    I(f's_cmp_lt_u32 s{S_W}, s{SR_}')
    I(f's_cselect_b32 s{S_L}, s{S_T+1}, s{SB_}')
    I(f'v_add_u32 v{MI}, 2, v{MI}')
    I(f'v_add_u32 v{MI+1}, 2, v{MI+1}')
    I(f's_min_u32 s{S_T}, s{S_W}, s{SR_}')
    I(f's_mul_i32 s{S_T+3}, s{S_W}, s{SB_}')
    I(f's_add_u32 s{S_T+3}, s{S_T+3}, s{S_T}')
    I(f's_sub_u32 s{S_T+1}, 0, s{S_T+1}')
    I(f's_sub_u32 s{SB_}, 0, s{SB_}')
    I(f's_lshl_b32 s{SR_}, s{SR_}, 2')
    D0, D1, D2, D3, NR = 60, 61, 62, 63, 98
    I(f's_cmp_lg_u32 s{S_W}, 15')
    I('s_cbranch_scc1 L_NOTAB')
    I(f'v_subrev_u32 v{D1}, s{SG0}, v{GS}')
    I(f'v_cmp_gt_u32 vcc, s{SG0}, v{GS}')
    I(f'v_mul_u32_u24 v{D2}, v{GS}, v{MI}')
    I(f'v_mul_u32_u24 v{D3}, v{D1}, v{MI+1}')
    I(f'v_lshrrev_b32 v{D2}, 16, v{D2}')
    I(f'v_lshrrev_b32 v{D3}, 16, v{D3}')
    I(f'v_mad_i32_i24 v{D0}, v{D2}, s{S_T+1}, v{GS}')
    I(f'v_mad_i32_i24 v{D1}, v{D3}, s{SB_}, v{D1}')
    I(f'v_mov_b32 v{D2}, s{S_T+1}')
    I(f'v_mov_b32 v{D3}, s{SB_}')
    I(f'v_cndmask_b32 v{D0}, v{D1}, v{D0}, vcc')
    I(f'v_cndmask_b32 v{D2}, v{D3}, v{D2}, vcc')
    I('v_add_u32 v105, v105, v104')
    I(f'v_add_u32 v{D2}, v{D2}, v{D0}')
    I('v_add_u32 v106, v106, v105')
    I(f'v_sub_u32 v{D2}, 0, v{D2}')
    I('v_add_u32 v107, v107, v106')
    I(f'v_cmp_ne_u32 vcc, 0, v{D0}')
    I('v_add_u32 v108, v108, v107')
    I(f'v_cmp_lt_u32 {sp(S_EX)}, v{D2}, v{NG}')
    I('v_add_u32 v109, v109, v108')
    I(f's_and_b64 vcc, vcc, {sp(S_EX)}')
    I('v_add_u32 v110, v110, v109')
    I(f'v_lshlrev_b32 v{D2}, 5, v{D2}')
    I('v_add_u32 v111, v111, v110')
    I(f'v_cndmask_b32 v{D2}, 0, v{D2}, vcc' if ROT else f'v_mov_b32 v{D2}, 0')
    I(f'v_add_u32 v{D1}, {opt("rnd", 20)}, v111')
    I(f'v_sub_u32 v{D1}, v{D1}, v{D2} clamp')
    for k in range(8):
        I(f'v_sub_u32 v{112+k}, v{D1}, v{104+k}')
    I(f'v_min3_u32 v112, v112, v113, v114')
    I(f'v_min3_u32 v115, v115, v116, v117')
    I(f'v_min3_u32 v112, v112, v118, v119')
    I(f'v_min3_u32 v112, v112, v115, v{D1}')
    I(f'v_sub_u32 v{D1}, v{D1}, v112')
    I(f'v_lshlrev_b32 v{D3}, 5, v{GS}')
    I(f'v_sub_u32 v112, 0, v{D1}')
    for k in range(1, 8):
        I(f'v_sub_u32 v{112+k}, v{103+k}, v{D1}')
    for k in range(8):
        I(f'v_add_u32 v{120+k}, v{112+k}, v111')
    for k in range(8):
        I(f'v_min_u32 v{112+k}, v{112+k}, v{120+k}')
    for k in range(8):
        I(f'v_add_u32 v{112+k}, v{112+k}, v{D3}')
    I(f'v_lshlrev_b32 v{D0}, 5, v{V_LANE}')
    I(f's_mov_b32 exec_hi, 0x1ffff')
    for q in range(2):
        I(f'ds_write_b128 v{D0}, v[{112+4*q}:{115+4*q}] offset:{BASE2+16*q}')
    if TFLAG:
        I(f'v_mov_b32 v{D1}, {MISC+16}')
        I(f'ds_write_b32 v{D1}, v{D1}')
    I('s_mov_b64 exec, -1')
    if opt('tprio', 1):
        I('s_setprio 0')
    L('L_NOTAB')
    I(f'v_lshlrev_b32 v{NR}, 8, v{V_LANE}')
    I(f'v_add_u32 v{NR+1}, {ACCN}, v{NR}')
    I(f's_mov_b32 s{S_T}, s{S_W}')
    L('L_DLOOP')
    I(f'v_cmp_lt_u32 vcc, s{S_T}, v{NG}')
    I('s_and_b64 exec, exec, vcc')
    I('s_cbranch_execz L_DEND')
    I(f'v_add_u32 v{D0}, s{S_T}, v{GS}')
    I(f'v_subrev_u32 v{D1}, s{SG0}, v{D0}')
    I(f'v_cmp_gt_u32 vcc, s{SG0}, v{D0}')
    I(f'v_mul_u32_u24 v{D2}, v{D0}, v{MI}')
    I(f'v_mul_u32_u24 v{D3}, v{D1}, v{MI+1}')
    I(f'v_lshrrev_b32 v{D2}, 16, v{D2}')
    I(f'v_lshrrev_b32 v{D3}, 16, v{D3}')
    I(f'v_mad_i32_i24 v{D0}, v{D2}, s{S_T+1}, v{D0}')
    I(f'v_mad_i32_i24 v{D1}, v{D3}, s{SB_}, v{D1}')
    I(f'v_add_u32 v{D3}, s{SR_}, v{D3}')
    I(f'v_cndmask_b32 v{D0}, v{D1}, v{D0}, vcc')
    I(f'v_cndmask_b32 v{D2}, v{D3}, v{D2}, vcc')
    I(f'v_cmp_le_u32 vcc, s{S_T}, v{D0}')
    I(f'v_lshl_add_u32 v{D0}, v{D0}, 6, v{D2}')
    I(f'v_lshlrev_b32 v{D1}, 8, v{D2}')
    I(f'v_lshlrev_b32 v{D0}, 2, v{D0}')
    I(f'v_add_u32 v{D1}, {EXTRA}, v{D1}')
    I(f'v_add_u32 v{D3}, {DESCA}, v{D0}')
    I(f'v_cndmask_b32 v{D1}, v{D1}, v{NR+1}, vcc')
    I(f'ds_write_b32 v{D0}, v{NR} offset:{DESCP}')
    I(f'ds_write_b32 v{D3}, v{D1}')
    I(f's_add_u32 s{S_T+7}, s{S_T}, 1')
    I(f'v_cmp_eq_u32 vcc, s{S_T+7}, v{NG}')
    I(f's_and_saveexec_b64 {sp(S_EX)}, vcc')
    I(f'ds_write_b32 v{X+8}, v{D2} offset:{NINFO+256}')
    I(f's_mov_b64 exec, {sp(S_EX)}')
    I(f's_cmp_lg_u32 s{S_T}, 0')
    I('s_cbranch_scc1 L_DNF')
    I(f'ds_write_b32 v{X+8}, v{D2} offset:{NINFO}')
    L('L_DNF')
    I(f's_add_u32 s{S_T}, s{S_T}, 16')
    I('s_branch L_DLOOP')
    L('L_DEND')
    I('s_mov_b64 exec, -1')
    I(f's_lshl_b32 s{S_T}, s{S_T+3}, 7')
    I(f's_lshl_b32 s{S_T+1}, s{S_L}, 5')
    I(f'v_mov_b32 v{D0}, s{S_T}')
    I(f'v_mad_u32_u24 v{V_PS0}, v{V_PS1}, s{S_T+1}, v{D0}')
    I(f'v_add_u32 v{D0}, v{D0}, v{D0}')
    I(f'v_add_u32 v{V_PS1}, s{S_T+1}, v{V_PS0}')
    I(f'v_add_u32 v{V_PE}, v{V_PE}, v{D0}')
    I(f's_lshl_b32 s{S_T+1}, s{S_L}, 6')
    I(f'v_mad_u32_u24 v{V_PE}, v{V_VAP}, s{S_T+1}, v{V_PE}')
    if opt('safe', 0):
        I(f's_min_u32 s{S_L}, s{S_L}, 9')
        I(f's_mov_b32 s{S_MORE}, 0')
    I(f's_mov_b32 s{S_CNT}, s{S_L}')
    if B2 == 2:
        poll2()
        do_pf()
    if SWAP:
        I(f's_bitcmp1_b32 s{S_W}, {SWAP}')
        I('s_cbranch_scc1 L_PDONE')
    place('b')
    L('L_PDONE')
    stamp(13)
    if EK:
        e('    ; the older waves are done early: they ask for their first rows as soon as every word is placed')
        I(f's_cmp_ge_u32 s{S_W}, {EK}')
        I('s_cbranch_scc1 L_NOEARLY')
        I(f's_cmp_eq_u32 s{S_L}, 0')
        I('s_cbranch_scc1 L_NOEARLY')
        I(f'v_mov_b32 v61, {MISC+24}')
        I(f's_mov_b32 s{S_T+1}, 0x1000000')
        L('L_WWAIT')
        I(f's_sub_u32 s{S_T+1}, s{S_T+1}, 1')
        I('s_cbranch_scc1 L_END')
        I('ds_read_b32 v63, v61')
        I('s_waitcnt lgkmcnt(0)')
        I(f'v_readfirstlane_b32 s{S_T}, v63')
        I(f's_cmp_lt_u32 s{S_T}, 16')
        I('s_cbranch_scc1 L_WWAIT')
        lge = Lg()
        s_reads(lge, 0)
        lge.need('S0', 'S1', 'S2', 'S3')
        s_safe()
        for n in range(EN):
            for i in range(16):
                I(gload(n, i))
        L('L_NOEARLY')
    I('s_waitcnt lgkmcnt(0)')
    I('s_barrier')
    stamp(14)
    I(f's_cmp_eq_u32 s{S_L}, 0')
    I('s_cbranch_scc1 L_FOLD')
    lg = Lg()
    FP = opt('fp', 0)
    if FP:
        for lvl in (3, 2, 1):
            I(f's_cmp_lt_u32 s{S_W}, {4 * (4 - lvl)}')
            I(f's_cbranch_scc0 L_FP{lvl}')
            I(f's_setprio {lvl}')
            I('s_branch L_FPD')
            L(f'L_FP{lvl}')
        L('L_FPD')
    if EK:
        I(f's_cmp_lt_u32 s{S_W}, {EK}')
        I('s_cbranch_scc1 L_HAVEG')
    s_reads(lg, 0)
    lg.need('S0', 'S1', 'S2', 'S3')
    s_safe()
    for n in range(2):
        if n == EN:
            L('L_HAVEG')
        for i in range(16):
            I(gload(n, i))
    if EN == 2:
        L('L_HAVEG')
    lg.op('dP', f'ds_read_b64 {p(V_VAP)}, v{V_PD}')
    lg.op('dA', f'ds_read_b64 {p(V_VAA[0])}, v{V_PD} offset:{DESCA-DESCP}')
    lg.op('e', f'ds_read_b64 {p(A5)}, v{V_PE}')
    s_reads(lg, 1)
    I(f'v_mov_b32 v{V_C8P}, v{V_CH8}')
    I(f'v_mov_b32 v{V_C8P+1}, v{V_CH8}')
    I(f'v_mov_b32 v{V_CPP}, v{V_CHP}')
    I(f'v_mov_b32 v{V_CPP+1}, v{V_CHP}')
    if M8:
        I(f'v_mov_b32 v{V_SCP}, 0x{f2u(2.0**KH):x}')
        I(f'v_mov_b32 v{V_SCP+1}, 0x{f2u(2.0**KH):x}')
    I(f's_mov_b32 s{S_BP0}, 64')
    I(f's_mov_b32 s{S_BP0+1}, 64')
    I(f's_mov_b32 s{S_BP1}, 128')
    I(f's_mov_b32 s{S_BP1+1}, 512')
    lg.need('dP', 'dA')
    va_add(V_VAP, V_VAA[0])
    lg.op('P0a', f'ds_read_b32 v{B5[0]+2}, v{V_VAP}')
    lg.op('P0b', f'ds_read_b32 v{B5[0]+3}, v{V_VAP+1}')
    lg.op('P1a', f'ds_read_b32 v{B5[1]+2}, v{V_VAP} offset:4')
    lg.op('P1b', f'ds_read_b32 v{B5[1]+3}, v{V_VAP+1} offset:4')
    I(f's_cmp_eq_u32 s{S_CNT}, 1')
    I(f's_cselect_b64 {sp(S_LDX)}, 0, {LDXV}')
    I('s_waitcnt lgkmcnt(0)')
    lg.q = []
    if opt('prio', 3):
        I('s_setprio 3')
    stamp(15)
    rstamp(28)
    half(lg, 0, 0, 0, False)
    if PROF == 4:
        stamp(19)
        lg.q = []
    state0 = list(lg.q)
    def step(par, uo):
        prio(f'm{par}', 1)
        half(lg, 1, par, uo)
        if PROF == 4:
            I('s_memtime s[98:99]')
            I(f's_sub_u32 s92, s{S_L}, s{S_CNT}')
            I(f's_add_u32 m0, s92, 20')
            I('s_waitcnt lgkmcnt(0)')
            I(f'v_writelane_b32 v{V_PROF}, s98, m0')
        I(f's_sub_u32 s{S_CNT}, s{S_CNT}, 1')
        I(f's_cmp_eq_u32 s{S_CNT}, 0')
        I(f's_cbranch_scc1 L_FIN{par}')
        I(f's_cmp_eq_u32 s{S_CNT}, 1')
        I(f's_cselect_b64 {sp(S_LDX)}, 0, {LDXV}')
        prio(f'{par}')
        half(lg, 0, par ^ 1, uo + 1)
    def loop_body():
        step(0, 0)
        step(1, 1)
        I(f'v_lshl_add_u64 {p(V_PS0)}, {p(V_PS0)}, 0, {sp(S_BP0)}')
        I(f'v_lshl_add_u64 {p(V_PE)}, {p(V_PE)}, 0, {sp(S_BP1)}')
        I('s_branch L_LOOP')
    mark = len(out)
    loop_body()
    del out[mark:]
    qb = list(lg.q)
    n = min(len(qb), len(state0))
    assert PROF == 4 or qb[len(qb)-n:] == state0[len(state0)-n:], (state0, qb)
    lg.q = list(qb if len(qb) >= len(state0) else state0)
    e('.p2align 3')
    L('L_LOOP')
    mark = len(out)
    loop_body()
    drop = opt('drop', '')
    if drop:
        body = out[mark:]
        keep = []
        for l in body:
            t = l.strip()
            if 'v' in drop and (t.startswith('buffer_load') or t.startswith('s_mov_b64 exec') or 'vmcnt' in t):
                continue
            if 'l' in drop and (t.startswith('ds_') or 'lgkmcnt' in t):
                continue
            if 'm' in drop and t.startswith('v_mfma'):
                continue
            if 'n' in drop and t.startswith('s_nop'):
                continue
            keep.append(l)
        out[mark:] = keep
    assert lg.q == qb, (lg.q, qb)
    print('loop entry queue', state0, 'back edge queue', qb, file=sys.stderr)
    for pr in range(2):
        L(f'L_FIN{pr}')
        if M8:
            I(f'v_pk_mul_f32 {p(V_T01N)}, {p(V_T01N)}, {p(V_T23D)}')
            I(f'v_pk_mul_f32 {p(V_T23D)}, {p(V_T01D)}, {p(V_T23D)}')
            I(f'v_pk_fma_f32 {p(V_T01N)}, {p(V_T23N)}, {p(V_T01D)}, {p(V_T01N)}')
            I(f'v_rcp_f32 v{V_T23D}, v{V_T23D}')
            I(f'v_rcp_f32 v{V_T23D+1}, v{V_T23D+1}')
            I('s_waitcnt lgkmcnt(0)')
            I(f'v_pk_fma_f32 {p(V_MB)}, {p(V_T01N)}, {p(V_T23D)}, {p(V_MB)}')
        else:
            for r_ in (V_T01D, V_T01D + 1, V_T23D, V_T23D + 1):
                I(f'v_rcp_f32 v{r_}, v{r_}')
            I('s_waitcnt lgkmcnt(0)')
            I(f'v_pk_fma_f32 {p(V_MB)}, {p(V_T01N)}, {p(V_T01D)}, {p(V_MB)}')
            I(f'v_pk_fma_f32 {p(V_MB)}, {p(V_T23N)}, {p(V_T23D)}, {p(V_MB)}')
        acc_write(Lg(), V_VAA[pr])
        if pr == 0:
            I('s_branch L_FOLD')
    L('L_FOLD')
    stamp(16)
    FL = opt('fl', 0)
    I(f'v_lshrrev_b32 v{X}, 4, v{V_TID}')
    I(f'v_and_b32 v{X+1}, 15, v{V_TID}')
    if FL:
        I(f'v_lshlrev_b32 v{X+6}, 3, v{X+1}')
        I(f'v_lshrrev_b32 v{X+2}, 3, v{X+1}')
        I(f'v_and_b32 v{X+1}, 7, v{X+1}')
        I(f'v_lshlrev_b32 v{X+1}, 5, v{X+1}')
        I(f'v_lshl_add_u32 v{X+1}, v{X+2}, 2, v{X+1}')
    else:
        I(f'v_lshlrev_b32 v{X+6}, 2, v{X+1}')
        I(f'v_lshlrev_b32 v{X+1}, 4, v{X+1}')
    I(f'v_lshl_add_u32 v{X+2}, v{X}, 8, v{X+1}')
    I(f'v_add_u32 v{X+2}, {ACCN}, v{X+2}')
    I(f'v_add_u32 v{X+1}, {EXTRA}, v{X+1}')
    def rd4(dst, ad):
        if FL:
            I(f'ds_read2_b32 v[{dst}:{dst+1}], v{ad} offset0:0 offset1:2')
            I(f'ds_read2_b32 v[{dst+2}:{dst+3}], v{ad} offset0:4 offset1:6')
        else:
            I(f'ds_read_b128 v[{dst}:{dst+3}], v{ad}')
    I(f'v_lshlrev_b32 v{X+3}, 2, v{X}')
    I(f's_mul_i32 s{S_T+4}, s3, {NB*128}')
    I(f'v_lshl_add_u32 v{X+6}, v{X}, 7, v{X+6}')
    I(f'v_add_u32 v{X+6}, s{S_T+4}, v{X+6}')
    I(f'v_mov_b32 v{X+7}, 0')
    I(f'ds_read_b32 v{X+4}, v{X+3} offset:{NINFO}')
    I(f'ds_read_b32 v{X+5}, v{X+3} offset:{NINFO+256}')
    I(f's_mov_b32 s{S_T+2}, 0x{f2u(2.0**-(SV+KH)):x}')
    I(f's_mov_b32 s{S_T+3}, 0x{f2u(-LOG2E * 2.0**-(SV+KH)):x}')
    I(f'v_cmp_gt_u32 vcc, {NB*16}, v{V_TID}')
    I('s_waitcnt vmcnt(0) lgkmcnt(0)')
    I('s_barrier')
    stamp(17)
    rstamp(29)
    if PROF:
        I(f'v_writelane_b32 v{V_PROF}, s{S_L}, 27')
    I(f's_and_saveexec_b64 {sp(S_EX)}, vcc')
    I('s_cbranch_execz L_FDONE')
    rd4(64, X + 2)
    I(f's_mov_b64 {sp(S_T)}, exec')
    L('L_FLOOP')
    I(f'v_cmp_lt_u32 vcc, v{X+4}, v{X+5}')
    I('s_and_b64 exec, exec, vcc')
    I('s_cbranch_execz L_FLEND')
    I(f'v_add_u32 v{X+4}, 1, v{X+4}')
    I(f'v_lshl_add_u32 v{X+7}, v{X+4}, 8, v{X+1}')
    rd4(72, X + 7)
    I('s_waitcnt lgkmcnt(0)')
    for k in range(4):
        I(f'v_add_f32 v{64+k}, v{64+k}, v{72+k}')
    I('s_branch L_FLOOP')
    L('L_FLEND')
    I(f's_mov_b64 exec, {sp(S_T)}')
    I('s_waitcnt lgkmcnt(0)')
    I(f's_cmp_lg_u32 s{S_MORE}, 0')
    I('s_cbranch_scc1 L_WB')
    for k in range(4):
        I(f'v_mul_f32 v{72+k}, s{S_T+3}, v{64+k}')
    for k in range(4):
        I(f'v_exp_f32 v{72+k}, v{72+k}')
    for k in range(4):
        I(f'v_mul_f32 v{64+k}, s{S_T+2}, v{64+k}')
    for k in range(4):
        I(f'v_add_f32 v{72+k}, 1.0, v{72+k}')
    for k in range(4):
        I(f'v_rcp_f32 v{72+k}, v{72+k}')
    I('s_nop 0')
    for k in range(4):
        I(f'v_mul_f32 v{64+k}, v{64+k}, v{72+k}')
    if FL:
        I('v_cvt_pk_bf16_f32 v80, v64, v65')
        I('v_cvt_pk_bf16_f32 v81, v66, v67')
        I(f'buffer_store_dwordx2 v[80:81], v{X+6}, {sr4(S_OUT)}, 0 offen' + OSC)
    else:
        I('v_cvt_pk_bf16_f32 v80, v64, v66')
        I('v_cvt_pk_bf16_f32 v81, v65, v67')
        I(f'buffer_store_dword v80, v{X+6}, {sr4(S_OUT)}, 0 offen' + OSC)
        I(f'buffer_store_dword v81, v{X+6}, {sr4(S_OUT)}, 0 offen offset:64' + OSC)
    stamp(18)
    prof_store()
    diag_end()
    I('s_endpgm')
    L('L_WB')
    if FL:
        I(f'ds_write2_b32 v{X+2}, v64, v65 offset0:0 offset1:2')
        I(f'ds_write2_b32 v{X+2}, v66, v67 offset0:4 offset1:6')
    else:
        I(f'ds_write_b128 v{X+2}, v[64:67]')
    L('L_FDONE')
    I('s_mov_b64 exec, -1')
    I(f's_cmp_eq_u32 s{S_MORE}, 0')
    I('s_cbranch_scc1 L_QUIT')
    I(f's_add_u32 s{S_JB}, s{S_JB}, s{S_WID}')
    I('s_branch L_REFILL')
    L('L_OVERFLOW')
    I(f's_mov_b32 s{S_WID}, 64')
    L('L_REFILL')
    I('s_waitcnt vmcnt(0) lgkmcnt(0)')
    I('s_barrier')
    fill_zero()
    fill_words()
    ptr_consts()
    I('s_waitcnt lgkmcnt(0)')
    I('s_barrier')
    I('s_branch L_PASS')
    L('L_QUIT')
    prof_store()
    L('L_END')
    I('s_endpgm')


DOC = """
"""
hdr = open('standalone__edge_featured_mpnn_egc__graph.s.ref').read().split('\n')
for line in hdr:
    if line.startswith('; Override'):
        break
    e(line)
e(f'; @launch grid=({NWG},1,1) block=(1024,1,1) lds={LDS_BYTES}')
e('.amdgcn_target "amdgcn-amd-amdhsa--gfx950"')
for line in DOC.strip().split('\n'):
    e(line)
e('.text')
gen()
e('.section .rodata,"a"')
e('.p2align 6')
e(f'.amdhsa_kernel {KNAME}')
e('  .amdhsa_next_free_vgpr 128')
e('  .amdhsa_next_free_sgpr 102')
e('  .amdhsa_accum_offset 128')
e('  .amdhsa_group_segment_fixed_size 0')
e('  .amdhsa_kernarg_size 80')
e('  .amdhsa_user_sgpr_count 2')
e('  .amdhsa_user_sgpr_kernarg_segment_ptr 1')
e('  .amdhsa_system_sgpr_workgroup_id_x 1')
e('  .amdhsa_float_denorm_mode_32 3')
e('.end_amdhsa_kernel')
fin = []
for x in out:
    if x is None:
        continue
    if fin and fin[-1].strip() == 's_mov_b64 exec, -1' and x.strip().startswith('s_mov_b64 exec,'):
        fin.pop()
    fin.append(x)
open(sys.argv[1], 'w').write('\n'.join(fin) + '\n')
```
